```python
import torch

def _softmax(x, axis=-1):
    return torch.softmax(x, dim=axis)
def _gelu(x):
    return torch.nn.functional.gelu(x, approximate="tanh")
def _silu(x):
    return torch.nn.functional.silu(x)
def _sigmoid(x):
    return torch.sigmoid(x)
def _layernorm(x, axis=-1, eps=1e-5):
    m = x.mean(dim=axis, keepdim=True)
    v = x.var(dim=axis, keepdim=True, unbiased=False)
    return (x - m) / torch.sqrt(v + eps)
def _scatter_add(tgt, idx, src, axis=0):
    return tgt.clone().index_add_(axis, idx, src)
def _segment_sum(src, seg, n):
    out = torch.zeros((n,) + src.shape[1:], dtype=src.dtype)
    return out.index_add_(0, seg, src)
def _pad(x, pw):
    flat = tuple(v for pair in reversed(pw) for v in pair)
    return torch.nn.functional.pad(x, flat)

kernel_name = 'standalone__kv_cache_quant_int4_int2_kv_with_per_channel_or_per_token_scales__prompt'

def setup_inputs():

    _w = (lambda a: (lambda t: t.to(torch.bfloat16) if t.is_floating_point() else t)(torch.as_tensor(a)))
    B = 1
    Sq = 2048
    Skv = 2048
    Hq = 32
    Hkv = 32
    Dh = 192
    bits = 8
    G = 64
    if G <= 0 or G >= Skv:
        G = max(1, Skv // 2)
    Skv = (Skv // G) * G
    ngk = Skv // G
    qmax = (1 << bits) - 1
    return {
        "q": _w((lambda *s: torch.randn(*s, dtype=torch.bfloat16) * 0.2)(B, Hq, Sq, Dh)),
        "qk": _w(torch.randint(0, qmax + 1, (B, Hkv, Skv, Dh)).to(torch.int32)),
        "qv": _w(torch.randint(0, qmax + 1, (B, Hkv, Skv, Dh)).to(torch.int32)),
        "k_scales": _w(torch.abs((lambda *s: torch.randn(*s, dtype=torch.bfloat16) * 0.2)(B, Hkv, ngk, Dh)) * 0.05 + 0.02),
        "k_zeros": _w((lambda *s: torch.randn(*s, dtype=torch.bfloat16) * 0.2)(B, Hkv, ngk, Dh) + float(qmax) / 2.0),
        "v_scales": _w(torch.abs((lambda *s: torch.randn(*s, dtype=torch.bfloat16) * 0.05)(B, Hkv, Skv, 1)) * 0.05 + 0.02),
        "v_zeros": _w((lambda *s: torch.randn(*s, dtype=torch.bfloat16) * 0.05)(B, Hkv, Skv, 1) + float(qmax) / 2.0),
    }

def reference(q, qk, qv, k_scales, k_zeros, v_scales, v_zeros):
    B, Hq, Sq, Dh = q.shape
    Hkv, Skv = qk.shape[1], qk.shape[2]
    ngk = k_scales.shape[2]
    G = Skv // ngk
    ks = (lambda x, n, axis: torch.repeat_interleave(x, n, dim=axis))(k_scales, G, axis=2)
    kz = (lambda x, n, axis: torch.repeat_interleave(x, n, dim=axis))(k_zeros, G, axis=2)
    k = ((lambda x, dt: x.to(dt))(qk, q.dtype) - kz) * ks
    v = ((lambda x, dt: x.to(dt))(qv, q.dtype) - v_zeros) * v_scales
    rep = Hq // Hkv
    if rep > 1:
        k = (lambda x, n, axis: torch.repeat_interleave(x, n, dim=axis))(k, rep, axis=1)
        v = (lambda x, n, axis: torch.repeat_interleave(x, n, dim=axis))(v, rep, axis=1)
    scale = float(Dh) ** -0.5
    logits = torch.einsum("bhqd,bhkd->bhqk", q, k) * scale
    p = _softmax(logits, axis=-1)
    o = torch.einsum("bhqk,bhkd->bhqd", p, v)
    return o
```

```python
import re, struct

def f32bits(x):
    return struct.unpack("<I", struct.pack("<f", x))[0]

_reg_re = re.compile(r"^(-|abs\()?([vas])(?:(\d+)|\[(\d+):(\d+)\])\)?$")

def parse_reg(tok):
    tok = tok.strip()
    m = _reg_re.match(tok)
    if not m:
        return None
    k = m.group(2)
    if m.group(3) is not None:
        lo = hi = int(m.group(3))
    else:
        lo, hi = int(m.group(4)), int(m.group(5))
    return [(k, i) for i in range(lo, hi + 1)]

TRANS = ("v_exp_f32", "v_log_f32", "v_rcp_f32", "v_rsq_f32", "v_sqrt_f32", "v_sin_f32", "v_cos_f32")

class Ins:
    __slots__ = ("text", "op", "kind", "wr", "rd", "srcc", "ws", "label")
    def __init__(self, text):
        self.text = text
        t = text.split(";")[0].strip()
        self.label = t.endswith(":")
        self.wr = set(); self.rd = set(); self.srcc = set(); self.ws = 1
        if self.label or not t or t.startswith("."):
            self.op = ""; self.kind = "none"; self.ws = 0
            return
        parts = t.split(None, 1)
        op = parts[0]; self.op = op
        rest = parts[1] if len(parts) > 1 else ""
        ops = [o.strip() for o in rest.split(",")] if rest else []
        if ops:
            last = ops[-1].split()
            ops[-1] = last[0] if last else ""
            mods = last[1:]
        else:
            mods = []
        regs = [parse_reg(o) for o in ops]
        def R(i):
            return set(regs[i]) if i < len(regs) and regs[i] else set()
        special = lambda o: o in ("vcc", "exec", "m0", "scc")
        if op.startswith("v_mfma"):
            self.kind = "mfma"
            self.wr = R(0); self.rd = R(1) | R(2) | R(3); self.srcc = R(3)
        elif op.startswith("v_cmp"):
            self.kind = "valu"
            self.wr = R(0) | ({("x", ops[0])} if special(ops[0]) else set())
            self.rd = R(1) | R(2)
        elif op.startswith("v_readfirstlane") or op.startswith("v_readlane"):
            self.kind = "valu"; self.wr = R(0); self.rd = R(1) | R(2)
        elif op.startswith("v_permlane"):
            self.kind = "valu"; self.wr = R(0) | R(1); self.rd = R(0) | R(1)
        elif op.startswith("v_"):
            self.kind = "trans" if op.replace("_e32", "").replace("_e64", "") in TRANS else "valu"
            self.wr = R(0)
            for i in range(1, len(ops)):
                self.rd |= R(i)
                if special(ops[i]): self.rd.add(("x", ops[i]))
            if op.startswith("v_fmac") or op.startswith("v_pk_fmac") or op.startswith("v_dot2c"):
                self.rd |= R(0)
            if op.startswith("v_add_co") or op.startswith("v_addc_co") or op.startswith("v_sub_co"):
                self.wr |= {("x", "vcc")}
        elif op.startswith("ds_add_rtn"):
            self.kind = "dsr"; self.wr = R(0); self.rd = R(1) | R(2)
        elif op.startswith("ds_read"):
            self.kind = "dsr"; self.wr = R(0); self.rd = R(1)
        elif op.startswith("ds_write"):
            self.kind = "dsw"
            for i in range(len(ops)): self.rd |= R(i)
        elif op.startswith("buffer_load") or op.startswith("global_load"):
            if "lds" in mods or "_lds_" in op:
                self.kind = "dma"
                for i in range(len(ops)): self.rd |= R(i)
                self.rd.add(("x", "m0"))
            else:
                self.kind = "vload"; self.wr = R(0)
                for i in range(1, len(ops)): self.rd |= R(i)
        elif op.startswith("buffer_store") or op.startswith("global_store") or op.startswith("buffer_atomic") or op.startswith("global_atomic"):
            self.kind = "vstore"
            for i in range(len(ops)): self.rd |= R(i)
        elif op == "s_nop":
            self.kind = "nop"; self.ws = int(ops[0], 0) + 1
        elif op.startswith("s_"):
            self.kind = "salu"
            if op.startswith(("s_cmp", "s_waitcnt", "s_barrier", "s_cbranch", "s_branch", "s_endpgm", "s_setprio", "s_sleep")):
                for i in range(len(ops)): self.rd |= R(i)
            else:
                self.wr = R(0) | ({("x", ops[0])} if ops and special(ops[0]) else set())
                for i in range(1, len(ops)): self.rd |= R(i)
        else:
            self.kind = "other"

def check_hazards(ins, where=""):
    probs = []
    n = len(ins)
    for i, a in enumerate(ins):
        if a.kind == "none": continue
        dist = 0
        for j in range(i + 1, min(n, i + 40)):
            b = ins[j]
            if b.kind == "none": continue
            def need(k, why):
                if dist < k:
                    probs.append(f"{where} hazard {why}: need {k} got {dist}\n    {a.text}\n    {b.text}")
            vw = {r for r in a.wr if r[0] in "va"}
            sw = {r for r in a.wr if r[0] in "sx"}
            if a.kind in ("valu", "trans"):
                if b.kind == "mfma" and vw & b.rd: need(2, "valu->mfma")
                if b.op.startswith("v_permlane") and vw & b.rd: need(2, "valu->permlane")
                if b.op.startswith(("v_readfirstlane", "v_readlane")) and vw & b.rd: need(1, "valu->readlane")
                if a.kind == "trans" and b.kind == "valu" and vw & b.rd: need(1, "trans->valu")
                if a.kind == "trans" and b.kind in ("vstore", "dsw", "mfma") and vw & b.rd: need(1, "trans->mem")
                if sw and b.kind in ("valu", "trans") and sw & b.rd: need(2, "valu sgpr->valu")
                if sw and b.kind in ("vload", "vstore", "dma") and sw & b.rd: need(5, "valu sgpr->vmem")
            if a.kind == "mfma":
                big = "32x32" in a.op
                n1, n2, n3 = (12, 10, 7) if big else (8, 6, 3)
                if b.kind == "mfma":
                    ab = b.rd - b.srcc
                    if vw & ab: need(n1, "mfma D->mfma AB")
                    if vw & b.srcc and vw != b.srcc: need(n2, "mfma D->mfma C overlap")
                    if vw & b.wr and not (vw == b.srcc): need(n1, "mfma D->mfma D WAW (conservative)")
                elif b.kind in ("valu", "trans", "vstore", "dsw", "dsr", "vload", "dma"):
                    if vw & (b.rd | b.wr): need(n1, "mfma D->valu/mem")
                    if b.kind in ("valu", "trans") and a.srcc & b.wr: need(n3, "mfma C WAR")
            if a.kind == "salu" and ("x", "m0") in a.wr and b.kind == "dma": need(1, "m0->dma")
            if a.kind == "vstore" and ("x4" in a.op or "x3" in a.op) and b.kind in ("valu", "trans"):
                if {r for r in a.rd if r[0] in "va"} & b.wr: need(2, "store data WAR")
            dist += b.ws
            if dist > 24: break
    return probs

class Prog:
    def __init__(self):
        self.ins = []
    def __call__(self, text):
        for l in text.strip("\n").split("\n"):
            self.ins.append(Ins(l.strip()))
    def extend(self, lst):
        for x in lst:
            self(x)
    def text(self):
        out = []
        for i in self.ins:
            out.append(i.text if (i.label or i.text.startswith(".")) else "    " + i.text)
        return "\n".join(out) + "\n"

def vr(base, n=1):
    return f"v{base}" if n == 1 else f"v[{base}:{base+n-1}]"
def ar(base, n=1):
    return f"a{base}" if n == 1 else f"a[{base}:{base+n-1}]"
def sr(base, n=1):
    return f"s{base}" if n == 1 else f"s[{base}:{base+n-1}]"
```

```python
import sys, math
from asmlib import *

NAME = "standalone__kv_cache_quant_int4_int2_kv_with_per_channel_or_per_token_scales__prompt"
OPT = dict(stamp=0, prod=1, q1=14, qa=3, qb=3, trip=3, vmgap=4, sb=6, sa=6, pl=10, c0=30, ahead=4, thr=64, dbgout=0, pa=78, snake=0, prog=1, pollq=3, fl=0, twop=0, sh4=0, lastu=1, tail2=1, tden=44, ab=0, pf2=1, map=0)
for a in sys.argv[2:]:
    k, v = a.split("="); OPT[k] = int(v)
NS = 6; D = 4
STAGE = 24576
HEADBYTES = 64 * STAGE
RING = NS * STAGE
LDS_BYTES = RING + 128 + 12288
CSCALE = (192.0 ** -0.5) * math.log2(math.e)
HEADER = open("cdna_kernels/" + NAME + ".s.ref").read().split("; Override launch geometry")[0]
MF = "v_mfma_f32_16x16x32_bf16"
NG = 96

V_FVAL = 0; V_RD = 1; V_RDK = [2, 3]; V_DMA = 4; V_L = [5, 6, 7, 8]
V_KLD = 9; V_KSC = 10; V_KST = 11; V_VLD = 12; V_FLAG = 13
V_T = 16; NTP = 2
V_VST = 20
V_FR = 24; NFS = 6
V_CT = 48; V_VO = 52; V_RS = [56, 60]; BX = 224; BY = 240; BZ = 144
V_POLL = V_VO; V_KA = V_VO + 2
UNIT = [64, 80, 160, 176]; HI = [96, 112]
def Sq(t, qb, tb): return (UNIT[t % 4] if tb == 0 else HI[t % 2]) + 4 * qb
def P(t, qb): return UNIT[t % 4] + 4 * qb
def NEGM(qb): return 128 + 4 * qb
def O(qb, db): return (qb * 12 + db) * 4
def Qf(qb, s, half=None):
    i = qb * 6 + s
    base, f = (192 + 4 * i, ar) if i < 16 else (192 + 4 * (i - 16), vr)
    return f(base, 4) if half is None else f(base + 2 * half, 2)
def FR(f): return vr(V_FR + 4 * (f % NFS), 4)

S_RDELTA = 3; S_WS = 4; S_Q = 8; S_OUT = 12; S_FLG = 20
S_WAVE = 25; S_DMK = 26; S_GOFF = 27; S_RK = 28; S_TMP = 29; S_RV = 30; S_CNT = 31; S_GOFFK = 32
S_PK0 = 33; S_PK1 = 34; S_PV0 = 35; S_PKS = 36; S_PVS = 37; S_CS = 38; S_RET = 39; S_PV1 = 16; S_PV2 = 17
S_PT = 48; S_DMV = 56; S_TK = 57; S_TV = 58; S_TP = 59
S_QK = 64; S_QV = 68; S_KS = 72; S_KZ = 76; S_VS = 80; S_VZ = 84; S_DBG = 88
S_NEED = 92; S_HOFF = 93; S_HEAD = 94; S_QB = 95; S_BUDGET = 96; S_MASK = 97
FLAG_OFF = 64 << 20
FST = 128 if OPT["fl"] else 4
SC1 = " sc1"; NTKV = " nt"; NTQ = " nt"; STF = " sc1"; OF = " sc0 sc1"

STAMPS = []
def SR(i): return [40, 42, 44, 46, 60, 62, 88, 90, 98, 100, 8][i]
def tstamp():
    if OPT["stamp"] != 5: return []
    if not STAMPS: STAMPS.extend(["t-3", "t-2", "t-1", "t0"])
    return [f"s_mov_b32 s{SR(0)}, s{SR(1)}", f"s_mov_b32 s{SR(1)}, s{SR(2)}", f"s_mov_b32 s{SR(2)}, s{SR(3)}", f"s_memtime s[{SR(3)}:{SR(3)+1}]"]
def pstamp(name):
    if OPT["stamp"] != 3: return []
    i = len(STAMPS); STAMPS.append(name)
    return [f"s_memtime s[{SR(i)}:{SR(i)+1}]"]
def stamp(name):
    if OPT["stamp"] != 1: return []
    i = len(STAMPS); STAMPS.append(name)
    return [f"s_memrealtime s[{SR(i)}:{SR(i)+1}]"]

class W:
    def __init__(self, *tags): self.tags = tags
class VM:
    def __init__(self, tag, text): self.tag = tag; self.text = text

def softmax_part(t, half):
    flat = []; prev = None
    for gp in range(8):
        qb = 2 * half + gp // 4; pi = gp % 4
        t0 = V_T + 2 * (gp % NTP); t1 = t0 + 1
        src = Sq(t, qb, pi >> 1) + 2 * (pi & 1)
        E = [f"v_exp_f32 v{t0}, v{src}", f"v_exp_f32 v{t1}, v{src+1}"]
        A = [f"v_add_f32 v{V_L[qb]}, v{V_L[qb]}, v{t0}", f"v_add_f32 v{V_L[qb]}, v{V_L[qb]}, v{t1}"]
        C = [f"v_cvt_pk_bf16_f32 v{P(t,qb)+pi}, v{t0}, v{t1}"]
        if OPT["ab"] == 1: A = []
        if OPT["ab"] == 2: E = [x.replace("v_exp_f32", "v_mov_b32") for x in E]
        flat += E if prev is None else [E[0]] + prev[0] + [E[1]] + prev[1]
        prev = (A, C)
    return flat + prev[0] + prev[1]

def kfrag(g):
    return 2 * (g >> 2) + (g & 1), (g >> 1) & 1
def frag_read(kind, f):
    if kind == "q":
        s, tb = kfrag(f % 12)
        return f"ds_read_b128 {FR(f)}, v{V_RDK[s&1]} offset:{(f//12)*12288 + tb*6144 + (s>>1)*128}"
    return f"ds_read_b128 {FR(f)}, v{V_RD} offset:{(f&1)*12288 + (f>>1)*1024}"

def dma_tile(part, pos, peel=False):
    dm, go, tmp = (S_DMK, S_GOFFK, S_TK) if part == "k" else (S_DMV, S_GOFF, S_TV)
    l = [f"s_mov_b32 m0, s{dm}"]
    for j in range(3):
        l.append(VM(("d" + part, (pos >> 1) % 4), f"buffer_load_dwordx4 v{V_DMA}, s[{S_WS}:{S_WS+3}], s{go} offen offset:{j*1024}{SC1} lds"))
    if peel and pos < 7:
        l += [f"s_add_u32 s{go}, s{go}, {STAGE}", f"s_sub_u32 s{tmp}, s{go}, {8*STAGE}", f"s_min_u32 s{go}, s{go}, s{tmp}"]
    elif peel and pos == 7:
        l += [f"s_mov_b32 s{go}, {8*STAGE + (0 if part == 'k' else 12288)}"]
    else:
        l += [f"s_add_u32 s{go}, s{go}, {STAGE}"]
    if pos % 2 == 0: l += [f"s_add_u32 s{dm}, s{dm}, 12288"]
    else: l += [f"s_add_u32 s{dm}, s{dm}, {2*STAGE - 12288}", f"s_sub_u32 s{tmp}, s{dm}, {RING}", f"s_min_u32 s{dm}, s{dm}, s{tmp}"]
    return l
def with_nop(l):
    out = []
    for i, x in enumerate(l):
        out.append(x)
        if isinstance(x, str) and " m0," in x and i + 1 < len(l) and isinstance(l[i + 1], VM): out.append("s_nop 0")
    return out
def rd_step(kind):
    cur, regs = (S_RK, V_RDK) if kind == "q" else (S_RV, [V_RD])
    return [f"s_add_u32 s{S_TMP}, s{cur}, {2*STAGE}", f"s_sub_u32 s{S_RDELTA}, s{S_TMP}, {RING}",
            f"s_min_u32 s{S_TMP}, s{S_TMP}, s{S_RDELTA}", f"s_sub_u32 s{S_RDELTA}, s{S_TMP}, s{cur}", f"s_mov_b32 s{cur}, s{S_TMP}"] + \
           [f"v_add_u32 v{r}, s{S_RDELTA}, v{r}" for r in regs]

def k_ld(h, buf, rs, tag):
    l = [VM(tag, f"buffer_load_dwordx2 v[{rs+2*i}:{rs+2*i+1}], v{V_KSC}, s[{srd_}:{srd_+3}], s{S_PKS} offen offset:{192*h}")
         for i, srd_ in enumerate((S_KS, S_KZ))]
    for j in range(4):
        so = S_PK0 if j < 2 else S_PK1
        l.append(VM(tag, f"buffer_load_dwordx4 v[{buf+4*j}:{buf+4*j+3}], v{V_KLD}, s[{S_QK}:{S_QK+3}], s{so} offen offset:{(j&1)*1536+384*h}{NTKV}"))
    return l
def v_ld(h, buf, rs, tag):
    l = [VM(tag, f"buffer_load_dwordx2 v[{rs+2*i}:{rs+2*i+1}], off, s[{srd_}:{srd_+3}], s{S_PVS} offset:{8*h}")
         for i, srd_ in enumerate((S_VS, S_VZ))]
    for r in range(4):
        so = S_PV0 if h == 0 else S_PV1
        l.append(VM(tag, f"buffer_load_dwordx4 v[{buf+4*r}:{buf+4*r+3}], v{V_VLD}, s[{S_QV}:{S_QV+3}], s{so} offen offset:{r*768}{NTKV}"))
    return l
def k_cv(h, buf, rs, out):
    l = []
    s0, s1, z0, z1 = V_CT, V_CT + 1, V_CT + 2, V_CT + 3
    for i in range(2):
        l += [f"v_lshlrev_b32 v{s0}, 16, v{rs+i}", f"v_and_b32 v{s1}, s{S_MASK}, v{rs+i}",
              f"v_lshlrev_b32 v{z0}, 16, v{rs+2+i}", f"v_and_b32 v{z1}, s{S_MASK}, v{rs+2+i}",
              f"v_mul_f32 v{s0}, s{S_CS}, v{s0}", f"v_mul_f32 v{s1}, s{S_CS}, v{s1}",
              f"v_mul_f32_e64 v{z0}, -v{z0}, v{s0}", f"v_mul_f32_e64 v{z1}, -v{z1}, v{s1}"]
        for j in range(4):
            a = buf + 4 * j + 2 * i; b = a + 1
            l += [f"v_cvt_f32_i32 v{a}, v{a}", f"v_cvt_f32_i32 v{b}, v{b}",
                  f"v_fma_f32 v{a}, v{a}, v{s0}, v{z0}", f"v_fma_f32 v{b}, v{b}, v{s1}, v{z1}",
                  f"v_cvt_pk_bf16_f32 v{out+4*j+2*h+i}, v{a}, v{b}"]
    return l
def k_st(j, out, tag="kst"):
    va = V_KST; g = []
    if j:
        va = V_KA + (j & 1); g.append(f"v_xor_b32 v{va}, {16*j}, v{V_KST}")
    g.append(VM(tag, f"buffer_store_dwordx4 v[{out+4*j}:{out+4*j+3}], v{va}, s[{S_WS}:{S_WS+3}], s{S_PK0} offen offset:{j*768}{STF}"))
    return g
def v_cv(h, buf, rs, out):
    l = []
    s0, s1, z0, z1 = V_CT, V_CT + 1, V_CT + 2, V_CT + 3
    for i in range(2):
        l += [f"v_lshlrev_b32 v{s0}, 16, v{rs+i}", f"v_and_b32 v{s1}, s{S_MASK}, v{rs+i}",
              f"v_lshlrev_b32 v{z0}, 16, v{rs+2+i}", f"v_and_b32 v{z1}, s{S_MASK}, v{rs+2+i}",
              f"v_mul_f32_e64 v{z0}, -v{z0}, v{s0}", f"v_mul_f32_e64 v{z1}, -v{z1}, v{s1}"]
        for e in range(4):
            a = buf + 4 * (2 * i) + e; b = buf + 4 * (2 * i + 1) + e
            l += [f"v_cvt_f32_i32 v{a}, v{a}", f"v_cvt_f32_i32 v{b}, v{b}",
                  f"v_fma_f32 v{a}, v{a}, v{s0}, v{z0}", f"v_fma_f32 v{b}, v{b}, v{s1}, v{z1}"]
    for e, i in [(0, 0), (1, 0), (0, 1), (1, 1), (2, 0), (2, 1), (3, 0), (3, 1)]:
        l.append(f"v_cvt_pk_bf16_f32 v{out+4*e+2*h+i}, v{buf+8*i+e}, v{buf+8*i+4+e}")
    return l
def v_st(e, out, tag="vst"):
    so = S_PV0 if e < 2 else S_PV2
    return [VM(tag, f"buffer_store_dwordx4 v[{out+4*e}:{out+4*e+3}], v{V_VST}, s[{S_WS}:{S_WS+3}], s{so} offen offset:{(e&1)*3072}{STF}")]
def k_adv():
    return [f"s_add_u32 s{S_PK0}, s{S_PK0}, {8*STAGE}", f"s_add_u32 s{S_PK1}, s{S_PK1}, {8*STAGE}", f"s_add_u32 s{S_PKS}, s{S_PKS}, {4*384}"]
def v_adv():
    return [f"s_add_u32 s{r}, s{r}, {8*STAGE}" for r in (S_PV0, S_PV1, S_PV2)] + [f"s_add_u32 s{S_PVS}, s{S_PVS}, {8*64}"]
HT = {"ka": (k_ld, k_cv, 0, BX, V_RS[0], BX), "kb": (k_ld, k_cv, 1, BY, V_RS[1], BX),
      "va": (v_ld, v_cv, 0, BZ, V_RS[0], BZ), "vb": (v_ld, v_cv, 1, BY, V_RS[1], BZ)}
def flag_post():
    return [f"v_add_u32 v{V_FVAL}, 1, v{V_FVAL}",
            VM("flag", f"buffer_store_dword v{V_FVAL}, v{V_FLAG}, s[{S_FLG}:{S_FLG+3}], 0 offen sc1")]
def poll_addr():
    return [f"v_bfe_u32 v{V_POLL+1}, v{V_DMA}, 4, 6", f"v_lshlrev_b32 v{V_POLL+1}, {7 if OPT['fl'] else 2}, v{V_POLL+1}"]
def poll_load():
    return poll_addr() + [VM("poll", f"buffer_load_dword v{V_POLL}, v{V_POLL+1}, s[{S_FLG}:{S_FLG+3}], 0 offen sc1")]
def poll_test():
    return [f"v_subrev_u32 v{V_POLL}, s{S_NEED}, v{V_POLL}", f"v_cmp_lt_u32 vcc, 15, v{V_POLL}", "s_nop 0", f"s_and_b32 s{S_TP}, vcc_lo, 0xff"]
def smem_flags():
    if OPT["fl"]: return [f"s_buffer_load_dword s{S_PT+i}, s[{S_FLG}:{S_FLG+3}], {128*i} glc" for i in range(8)]
    return [f"s_buffer_load_dwordx8 s[{S_PT}:{S_PT+7}], s[{S_FLG}:{S_FLG+3}], 0 glc"]
def smem_test():
    l = smem_flags() + ["s_waitcnt lgkmcnt(0)"]
    for i in range(8): l.append(f"s_sub_u32 s{S_PT+i}, s{S_PT+i}, s{S_NEED}")
    for i in range(1, 8): l.append(f"s_max_u32 s{S_PT}, s{S_PT}, s{S_PT+i}")
    return l + [f"s_cmp_lt_u32 s{S_PT}, 16"]
def poll_slow(site):
    l = [f"L_pollslow{site}:"]
    if site != "P":
        l += [f"s_mov_b32 s{S_TP}, 200", f"L_pollsm{site}:"] + smem_test() + [f"s_cbranch_scc1 L_pollok{site}",
              f"s_sub_u32 s{S_TP}, s{S_TP}, 1", f"s_cbranch_scc1 L_pollvec{site}", "s_sleep 1", f"s_branch L_pollsm{site}"]
    l += [f"L_pollvec{site}:",
            f"s_sub_u32 s{S_BUDGET}, s{S_BUDGET}, 1",
            f"s_cbranch_scc1 L_pollgiveup{site}",
            "s_sleep 2",
            f"buffer_load_dword v{V_POLL}, v{V_POLL+1}, s[{S_FLG}:{S_FLG+3}], 0 offen sc1",
            "s_waitcnt vmcnt(0)"] + poll_test() + [
            f"s_cbranch_scc1 L_pollvec{site}",
            f"s_branch L_pollok{site}",
            f"L_pollgiveup{site}:",
            f"s_mov_b32 s{S_BUDGET}, 0",
            f"s_branch L_pollok{site}"]
    return l
def tag_load():
    return [VM("tag", f"buffer_load_dword v{V_FVAL}, off, s[{S_DBG}:{S_DBG+3}], s{S_HOFF} sc1")]
def tag_check():
    return [f"v_readfirstlane_b32 s{S_NEED}, v{V_FVAL}", f"s_mov_b32 s{S_RET}, 100",
            "L_tagretry:", f"s_cmp_lg_u32 s{S_NEED}, 0", "s_cbranch_scc1 L_tagok",
            f"s_sub_u32 s{S_RET}, s{S_RET}, 1", "s_cbranch_scc1 L_tagslow", "s_sleep 8",
            f"s_buffer_load_dword s{S_NEED}, s[{S_DBG}:{S_DBG+3}], s{S_HOFF} glc", "s_waitcnt lgkmcnt(0)", "s_branch L_tagretry",
            "L_tagok:", f"s_add_u32 s{S_NEED}, s{S_NEED}, 1", f"v_mov_b32 v{V_FVAL}, s{S_NEED}"]
def first_post(n=0):
    return ["s_mov_b64 exec, 1", f"v_mov_b32 v{V_T}, 1", f"v_mov_b32 v{V_T+1}, {RING + 4*n}",
            f"ds_add_rtn_u32 v{V_T}, v{V_T+1}, v{V_T}", "s_waitcnt lgkmcnt(0)",
            f"v_readfirstlane_b32 s24, v{V_T}", "s_nop 0", "s_cmp_lg_u32 s24, 3", f"s_cbranch_scc1 L_nopost{n}",
            f"s_mul_i32 s{S_RET}, s{S_QB}, {FST}"] + (
            ["s_mov_b64 exec, 0xffffffff", f"v_bfe_u32 v{V_T}, v{V_DMA}, 2, 7",
             f"buffer_store_dword v{V_FVAL}, v{V_T}, s[{S_FLG}:{S_FLG+3}], s{S_RET} offen sc1"] if OPT["fl"] else
            [f"buffer_store_dword v{V_FVAL}, off, s[{S_FLG}:{S_FLG+3}], s{S_RET} sc1"]) + [
            f"L_nopost{n}:", "s_mov_b64 exec, -1"]
def poll_smem():
    l = poll_addr() + [f"s_mov_b32 s{S_RET}, 200", "L_pollretry:"] + smem_test()
    l += ["s_cbranch_scc1 L_pollokP",
          f"s_sub_u32 s{S_RET}, s{S_RET}, 1", "s_cbranch_scc1 L_pollslowP", "s_sleep 1", "s_branch L_pollretry",
          "L_pollokP:", f"s_add_u32 s{S_NEED}, s{S_NEED}, 1"]
    return l
def tag_slow():
    return ["L_tagslow:",
            f"s_sub_u32 s{S_BUDGET}, s{S_BUDGET}, 1",
            "s_cbranch_scc1 L_taggiveup",
            "s_sleep 2",
            f"buffer_load_dword v{V_FVAL}, off, s[{S_DBG}:{S_DBG+3}], s{S_HOFF} sc1",
            "s_waitcnt vmcnt(0)",
            f"v_readfirstlane_b32 s{S_NEED}, v{V_FVAL}", "s_nop 0", f"s_cmp_eq_u32 s{S_NEED}, 0", "s_cbranch_scc1 L_tagslow",
            "s_branch L_tagok",
            "L_taggiveup:",
            f"s_mov_b32 s{S_BUDGET}, 0",
            "s_branch L_tagok"]

def text_of(x):
    return "s_waitcnt" if isinstance(x, W) else (x.text if isinstance(x, VM) else x)
def kind_of(x):
    t = text_of(x)
    if t.endswith(":"): return "label"
    if t.startswith("v_"): return "valu"
    if t.startswith("ds_"): return "ds"
    if t.startswith("buffer_store"): return "store"
    if t.startswith("buffer_"): return "load"
    return "salu"
def cost_of(x):
    k = kind_of(x); t = text_of(x)
    if k == "label": return 0
    if k == "store": return 20 if "x4" in t else 8
    if k == "load": return 8
    if t.startswith("v_exp"): return 8
    if t.startswith("s_nop"): return 4 * (int(t.split()[1]) + 1)
    if t.startswith("s_cbranch") or t.startswith("s_branch"): return 12
    if t.startswith("s_barrier"): return 8
    return 4
def gap_time(ops):
    t = 4; prev = None
    for o in ops:
        k = kind_of(o)
        if k == "label": continue
        if k == "salu": t += cost_of(o)
        else: t = max(t, 8) + cost_of(o) + (8 if (k != "valu" and prev == "valu") else 0)
        prev = k
    return t

class Stream:
    def __init__(self, ops, first, last, maxper=99):
        self.ops = list(ops); self.first = first; self.last = last; self.maxper = maxper
        self.total = sum(cost_of(o) for o in self.ops); self.done = 0; self.i = 0

def pack(A, B, C, T, streams, novm=(), nosalu=(), light=()):
    out = []; over = 0; lastvm = -99
    for g in range(NG):
        a, b, c, tl = list(A[g]), list(B[g]), list(C[g]), list(T[g])
        cnt = {}; inC = set(); blocked = set()
        while True:
            best = None; bl = None; bsec = None
            for st in streams:
                if st.i >= len(st.ops) or g < st.first: continue
                force = g >= st.last
                if (cnt.get(id(st), 0) >= st.maxper or id(st) in blocked) and not force: continue
                o = st.ops[st.i]; k = kind_of(o); cst = cost_of(o)
                if k == "salu" and g in nosalu:
                    assert not force
                    continue
                if k in ("load", "store") and (g in novm or g - lastvm < OPT["vmgap"]) and not force: continue
                if k in ("load", "store", "ds"):
                    sec = "b" if id(st) not in inC and id(st) not in blocked else "c"
                    if sec == "c" and not force: continue
                elif k == "salu" and not a and cnt.get(id(st), 0) == 0:
                    sec = "a"
                else: sec = "c"
                tgt = st.total * (g - st.first + 1) / (st.last - st.first + 1)
                lag = tgt - st.done
                if not force:
                    if lag < cst / 2 - OPT["ahead"] and cst: continue
                    trial = (a + [o] if sec == "a" else a) + (b + [o] if sec == "b" else b) + (c + [o] if sec == "c" else c) + tl
                    if g in light and gap_time(trial) > 12 and k != "salu" and lag < 40: continue
                    if gap_time(trial) > 16:
                        if not (lag > 24 and gap_time(trial) <= 20): continue
                        if g % 2 == 0: continue
                key = (force, k in ("load", "store"), lag / max(1, (st.last - g + 1)) ** 0.5)
                if best is None or key > bl: best = st; bl = key; bsec = sec
            if best is None: break
            o = best.ops[best.i]
            {"a": a, "b": b, "c": c}[bsec].append(o)
            if bsec == "c": inC.add(id(best))
            if " m0," in text_of(o): blocked.add(id(best))
            if kind_of(o) in ("load", "store"): lastvm = g
            best.i += 1; best.done += cost_of(o); cnt[id(best)] = cnt.get(id(best), 0) + 1
        ops = a + b + c + tl
        tt = gap_time(ops)
        if tt > 16: over += tt - 16
        out.append(ops)
    for st in streams: assert st.i == len(st.ops)
    return out, over

def steady4(k, last=False):
    pl = OPT["pl"]
    t = {
        0: [("post", "kst"), ("cv", "va", 16, 99, 0, 95)],
        1: [("cv", "vb", 0, 30, 0, 95), ("ld", "ka", 0, 44)],
        2: [("cv", "vb", 30, 99, 0, 55), ("pollld", pl, pl + 16), ("vst", 0, 57), ("vst", 1, 65), ("vst", 2, 73), ("vst", 3, 85), ("dmaw", 0, 50)],
        3: [("post", "vst"), ("pollchk", 1), ("ld", "kb", 0, 44), ("cv", "ka", 0, 22, 0, 95), ("dmaw", 8, 74)],
        4: [("cv", "ka", 22, 99, 0, 95)],
        5: [("cv", "kb", 0, 22, 0, 95), ("ld", "va", 8, 50), ("pollld", 2, 10)],
        6: [("cv", "kb", 22, 99, 0, 95), ("pollchk", 1), ("dmaw", 8, 74)],
        7: [("cv", "va", 0, 16, 0, 95), ("ld", "vb", 0, 26), ("kst", 0, 57), ("kst", 1, 65), ("kst", 2, 73), ("kst", 3, 85), ("dmaw", 24, 50)],
    }[k]
    if last:
        dead = {1: ("ld",), 3: ("ld", "cv"), 4: ("cv",), 5: ("cv", "ld"), 6: ("cv",), 7: ("cv", "ld", "kst", "dmaw")}.get(k, ())
        t = [x for x in t if x[0] not in dead]
    return t
def steady_tasks(k, prod=True, poll=True):
    t = []
    if prod:
        if k == 7: t += [("vst", 0, 1), ("vst", 1, 9), ("vst", 2, 17), ("vst", 3, 25), ("ld", "kb", 33, 58), ("cv", "ka", 0, 16, 0, 95), ("dmaw", 59, 88)]
        if k == 0: t += [("cv", "ka", 16, 99, 0, 95)]
        if k == 1: t += [("cv", "kb", 0, 24, 20, 95), ("ld", "va", 0, 44)]
        if k == 2: t += [("cv", "kb", 24, 99, 0, 95)]
        if k == 3: t += [("cv", "va", 0, 22, 0, 95), ("ld", "vb", 0, 44)]
        if k == 4: t += [("cv", "va", 22, 99, 0, 95), ("kst", 0, 41), ("kst", 1, 49), ("kst", 2, 57), ("kst", 3, 65), ("dmaw", 0, 34)]
        if k == 5: t += [("cv", "vb", 0, 22, 0, 95), ("ld", "ka", 0, 44)]
        if k == 6: t += [("cv", "vb", 22, 99, 0, 95)] + ([("pf", 80, 92)] if OPT["pf2"] else [])
    if poll:
        if k == 1 and not prod and OPT["pf2"]: t.append(("pf", 80, 92))
        if k == 0: t.append(("post", "vst"))
        if k == 2: t.append(("pollld", OPT["pl"], OPT["pl"] + 16))
        if k == 3: t += [("pollchk", 1), ("dmaw", 8, 74)]
    return t

POLLSITES = []
GBAR = 4 * (24 - D) - 1
def qk_mfma(t0, g, czero=False):
    qb = (g >> 1) & 3
    w = (g & 1) ^ (qb & 1 if OPT["snake"] else 0)
    F = 2 * (g >> 3) + w
    t = t0 + F // 12; s, tb = kfrag(F % 12)
    d = vr(Sq(t, qb, tb), 4)
    c = ("0" if czero else vr(NEGM(qb), 4)) if (s < 2 and g % 2 == 0) else d
    return f"{MF} {d}, {FR(F)}, {Qf(qb,s)}, {c}"
def pv_mfma(t0, db, qb, w0, first=False):
    w = w0 ^ (qb & 1 if OPT["snake"] else 0)
    d = ar(O(qb, db), 4)
    return f"{MF} {d}, {FR(2*db+w)}, {vr(P(t0+w,qb),4)}, {'0' if (first and w0 == 0) else d}"

def gen_iter(it, tasks=(), dma=None, name=None, endops=(), peel=False, nxt=None, extra_sm=False, nostep=False, extra=(), extra_late=()):
    kind = "q" if it % 2 else "p"
    nk = nxt or ("p" if kind == "q" else "q")
    A = [[] for _ in range(NG)]; B = [[] for _ in range(NG)]; C = [[] for _ in range(NG)]; T = [[] for _ in range(NG)]
    streams = []; novm = set(range(0, NG, 2)); nosalu = set()
    for F in range(24):
        fr = F + D
        if OPT["ab"] == 3 and not peel and (fr >> 1) % 2: continue
        B[4 * F].append(frag_read(kind, fr) if fr < 24 else frag_read(nk, fr - 24))
    for F in range(2, 25, 2):
        A[4 * F - 1].append(f"s_waitcnt lgkmcnt({D-2})")
    smB = softmax_part(it, 1); smA = softmax_part(it + 1, 0)
    if extra_sm: smB = softmax_part(it, 0) + smB
    if kind == "q":
        streams.append(Stream(smB, 0, 50)); streams.append(Stream(smA, 52, 95))
    else:
        streams.append(Stream(smB + smA, 0, 95))
    if endops:
        A[92] += endops[:1]; A[94] += [A[95][0]] + list(endops[1:-1]); A[95] = []; T[95] = list(endops[-1:]); nosalu |= {94, 95}
    if extra: streams.append(Stream(extra, 0, 90))
    if extra_late: streams.append(Stream(extra_late, GBAR + 1, 94))
    if not OPT["prod"]: tasks = ()
    if dma is None:
        w = [t[1:] for t in tasks if t[0] == "dmaw"]
        w = w[0] if w else (0, GBAR - 5)
        p0 = it + 5 if kind == "q" else it + 2
        c_ = "k" if kind == "q" else "v"
        dma = [((c_, p0), (c_, p0 + 1)) + tuple(w)]
    if OPT["ab"] == 4 and not peel: dma = []
    for grp in dma:
        dl = []
        for part, pos in grp[:-2]: dl += dma_tile(part, pos, peel)
        n = max(i for i, x in enumerate(dl) if isinstance(x, VM)) + 1
        streams.append(Stream(dl[:n], grp[-2], grp[-1], maxper=2))
        streams.append(Stream(dl[n:], grp[-1] + 1, min(93 if endops else 95, grp[-1] + 12), maxper=2))
    nj = ((it + 2) // 2) if nk == "q" else ((it - 1) // 2 if kind == "q" else it // 2)
    wtags = [("dk" if nk == "q" else "dv", nj % 4)]
    if nk == kind:
        rs_ = rd_step(nk); streams.append(Stream(rs_[:5], 40, 70, maxper=1)); C[GBAR] += rs_[5:]
    elif not nostep:
        streams.append(Stream(rd_step(nk), 30, GBAR - 3, maxper=1))
    for t in tasks:
        k_ = t[0]
        if OPT["ab"] == 6 and k_ in ("cv", "kst", "vst"): continue
        if OPT["ab"] in (7, 9) and k_ in ("kst", "vst"): continue
        if OPT["ab"] == 8 and k_ in ("kst", "vst", "ld", "ldn"): continue
        if k_ == "cv":
            _, cv, h, buf, rs, outb = HT[t[1]]
            ops = cv(h, buf, rs, outb)[t[2]:t[3]]
            if OPT["ab"] == 9: ops = [x for x in ops if not x.startswith("v_cvt_f32_i32")]
            if t[2] == 0: ops = [W(t[1])] + ops
            streams.append(Stream(ops, t[4], t[5]))
        elif k_ in ("kst", "vst"):
            grp = k_st(t[1], BX) if k_ == "kst" else v_st(t[1], BZ)
            g = t[2]; assert g % 4 == 1 and not B[g], g
            B[g].append(grp[-1]); novm |= set(range(g - OPT["sb"], g + OPT["sa"] + 1))
            if grp[:-1]: streams.append(Stream(grp[:-1], max(0, g - 5), g - 1))
        elif k_ in ("ld", "ldn"):
            ld, _, h, buf, rs, _o = HT[t[1]]
            adv = {"ka": k_adv(), "va": v_adv()}.get(t[1], []) if k_ == "ld" else []
            streams.append(Stream(adv + ld(h, buf, rs, t[1]), t[2], t[3], maxper=1))
        elif k_ == "post":
            wtags += list(t[1:])
            streams.append(Stream(flag_post(), GBAR + 1, 93, maxper=1))
        elif k_ == "pf":
            streams.append(Stream([VM("pf", f"buffer_load_dword v15, v{V_DMA}, s[{S_DBG}:{S_DBG+3}], s{S_HOFF} offen")], t[1], t[2]))
        elif k_ == "pollld": streams.append(Stream(poll_load(), t[1], t[2], maxper=1))
        elif k_ == "pollchk":
            ps = len(POLLSITES); POLLSITES.append(ps)
            g = t[1]; assert g % 4 == 1 and not (GBAR - 6 <= g <= GBAR)
            pt = poll_test()
            A[g] += [W("poll")]; T[g] += pt[:2]; novm |= {g, g + 4}
            A[g + 3] += [pt[3]]; A[g + 4] += [f"s_cbranch_scc1 L_pollslow{ps}", f"L_pollok{ps}:"]; nosalu |= {g + 3, g + 4}
            A[g + 5] += [f"s_add_u32 s{S_NEED}, s{S_NEED}, 1"]
    A[GBAR - 1] += [W(*wtags)]; novm |= {GBAR}
    A[GBAR - 2] += A[GBAR]; A[GBAR] = ["s_barrier"]
    if endops:
        for st_ in streams: st_.last = min(st_.last, 94)
    if OPT["twop"]:
        novm |= set(range(7, NG, 8))
        fill, over = pack(A, B, C, T, streams, novm, nosalu)
        vg = {g for g in range(NG) if any(kind_of(o) == "load" for o in fill[g])}
        for st_ in streams: st_.i = 0; st_.done = 0
        fill2, over2 = pack(A, B, C, T, streams, novm | (set(range(NG)) - vg), nosalu, {g - 1 for g in vg})
        def pen(f): return sum(4 for g in range(1, NG) if any(kind_of(o) == "load" for o in f[g]) and gap_time(f[g - 1]) > 12)
        if over2 + pen(fill2) < over + pen(fill): fill, over = fill2, over2
        over += pen(fill)
    else:
        fill, over = pack(A, B, C, T, streams, novm, nosalu)
    if over: print(f"iter {name or it}: over budget by {over} cycles", file=sys.stderr)
    out = []
    for g in range(NG):
        if kind == "q": out.append(qk_mfma(it + 1, g))
        else: out.append(pv_mfma(it - 2, g >> 3, (g >> 1) & 3, g & 1, first=(peel and it == 2)))
        out += fill[g]
    return with_nop(out)

WA = [V_RS[0], V_RS[0] + 1]; RA = [V_RS[0] + 2, V_RS[0] + 3, V_RS[0] + 4]; GA = V_RS[0] + 5; TA = V_RS[0] + 6
RL = [V_CT, V_CT + 2, V_CT + 4, V_CT + 6]
def epi_prep():
    fl = [f"v_bfe_u32 v{TA}, v{V_DMA}, 4, 6", f"v_lshlrev_b32 v{GA}, 4, v{TA}",
          f"s_lshl_b32 s24, s{S_WAVE}, 1", "s_min_u32 s24, s24, 5", f"s_mul_i32 s24, s24, {STAGE}"]
    fl += [f"v_and_b32 v{WA[0]}, 15, v{TA}", f"v_lshrrev_b32 v{WA[1]}, 4, v{TA}", f"v_lshlrev_b32 v{WA[1]}, 1, v{WA[1]}",
           f"v_and_b32 v{TA+1}, 7, v{TA}", f"v_xor_b32 v{WA[1]}, v{WA[1]}, v{TA+1}", f"v_mul_u32_u24 v{WA[0]}, 384, v{WA[0]}",
           f"v_lshl_add_u32 v{WA[0]}, v{WA[1]}, 4, v{WA[0]}", f"v_add_u32 v{WA[0]}, s24, v{WA[0]}", f"v_xor_b32 v{WA[1]}, 16, v{WA[0]}"]
    for b in range(3):
        fl += [f"v_add_u32 v{RA[b]}, {64*b}, v{TA}", f"v_mul_u32_u24 v{TA+1}, 2731, v{RA[b]}", f"v_lshrrev_b32 v{TA+1}, 16, v{TA+1}",
               f"v_xor_b32 v{RA[b]}, v{RA[b]}, v{TA+1}", f"v_lshlrev_b32 v{RA[b]}, 4, v{RA[b]}", f"v_add_u32 v{RA[b]}, s24, v{RA[b]}"]
    for sw in ("v_permlane16_swap_b32", "v_permlane32_swap_b32"):
        fl += [f"v_mov_b32 v{RL[q]}, v{V_L[q]}" for q in range(4)]
        fl += [f"{sw} v{V_L[q]}, v{RL[q]}" for q in range(4)]
        fl += [f"v_add_f32 v{V_L[q]}, v{V_L[q]}, v{RL[q]}" for q in range(4)]
    fl += [f"v_rcp_f32 v{RL[q]}, v{V_L[q]}" for q in range(4)]
    fl += [f"s_lshl_b32 s24, s{S_QB}, 2", f"s_add_u32 s24, s24, s{S_WAVE}", f"s_mul_i32 s24, s24, {STAGE}"]
    return fl

def gen_tail():
    t0 = 62
    p = []
    def pv_pass(qbs, second):
        mf = []
        for db in range(12):
            for i, (qb, w) in enumerate([(q, w) for q in qbs for w in (0, 1)]):
                m = [pv_mfma(t0, db, qb, w)]
                if i in (0, 2):
                    fr = 2 * db + (i >> 1) + D
                    if fr < 24: m.append(frag_read("p", fr))
                    elif not second: m.append(frag_read("p", fr - 24))
                if i == 3 and not (second and db == 11):
                    n = D - 2
                    if second and 2 * db + 2 + D > 24: n = max(0, 24 - (2 * db + 4))
                    m.append(f"s_waitcnt lgkmcnt({n})")
                mf.append(m)
        return mf
    def inter(mf, fill):
        out = []; fill = list(fill)
        for m in mf:
            cur = m[1:]
            while fill and gap_time(cur + [fill[0]]) <= 16: cur.append(fill.pop(0))
            out += m[:1] + cur
        return out, fill
    chk = [f"v_max3_f32 v{V_T}, v{V_L[0]}, v{V_L[1]}, v{V_L[2]}", f"v_max_f32 v{V_T}, v{V_T}, v{V_L[3]}",
           f"s_mov_b32 s24, 0x{f32bits(2.0**OPT['thr']):08x}", f"v_cmp_lt_f32 vcc, s24, v{V_T}"]
    code, rest = inter(pv_pass((0, 1), False), softmax_part(63, 1) + chk)
    p += code + rest + ["s_nop 1", "s_cbranch_vccnz L_slow"]
    code, rest = inter(pv_pass((2, 3), True), epi_prep())
    p += code + rest + ["L_epi:"]
    RB = [128 + 4 * i for i in range(8)]
    pend = []; k = 0; nrb = 0
    for qb in range(4):
        for n in range(3):
            for half in range(2):
                ob = 64 + 8 * (k % 8); k += 1
                for tt in range(8):
                    r, e = divmod(8 * half + tt, 4)
                    p.append(f"v_accvgpr_read_b32 v{ob+tt}, a{O(qb,3*e+n)+r}")
                for i in range(4):
                    p.append(f"v_pk_mul_f32 v[{ob+2*i}:{ob+2*i+1}], v[{ob+2*i}:{ob+2*i+1}], v[{RL[qb]}:{RL[qb]+1}] op_sel_hi:[1,0]")
                for i in range(4):
                    p.append(f"v_cvt_pk_bf16_f32 v{ob+i}, v{ob+2*i}, v{ob+2*i+1}")
                if pend:
                    i6, reg, off = pend.pop(0)
                    p.append(f"s_waitcnt lgkmcnt({(5 - i6) + (2 * n + half)})")
                    p.append(f"buffer_store_dwordx4 v[{reg}:{reg+3}], v{GA}, s[{S_OUT}:{S_OUT+3}], s24 offen offset:{off}{OF}")
                    if i6 % 3 == 2: p.append("s_add_u32 s24, s24, 3072")
                p.append(f"ds_write_b128 v{WA[half]}, v[{ob}:{ob+3}] offset:{qb*6144 + n*128}")
        for i6 in range(6):
            i = 6 * qb + i6
            reg = RB[nrb % 8]; nrb += 1
            p.append(f"ds_read_b128 v[{reg}:{reg+3}], v{RA[i%3]} offset:{(i//3)*3072}")
            pend.append((i6, reg, (i6 % 3) * 1024))
    for i6, reg, off in pend:
        p.append(f"s_waitcnt lgkmcnt({5 - i6})")
        p.append(f"buffer_store_dwordx4 v[{reg}:{reg+3}], v{GA}, s[{S_OUT}:{S_OUT+3}], s24 offen offset:{off}{OF}")
        if i6 % 3 == 2: p.append("s_add_u32 s24, s24, 3072")
    return p

V_RD2 = 14
def epi_addr():
    fl = [f"v_bfe_u32 v{TA}, v{V_DMA}, 4, 6", f"v_lshlrev_b32 v{GA}, 4, v{TA}",
          f"s_lshl_b32 s24, s{S_WAVE}, 1", "s_min_u32 s24, s24, 5", f"s_mul_i32 s24, s24, {STAGE}"]
    fl += [f"v_and_b32 v{WA[0]}, 15, v{TA}", f"v_lshrrev_b32 v{WA[1]}, 4, v{TA}", f"v_lshlrev_b32 v{WA[1]}, 1, v{WA[1]}",
           f"v_and_b32 v{TA+1}, 7, v{TA}", f"v_xor_b32 v{WA[1]}, v{WA[1]}, v{TA+1}", f"v_mul_u32_u24 v{WA[0]}, 384, v{WA[0]}",
           f"v_lshl_add_u32 v{WA[0]}, v{WA[1]}, 4, v{WA[0]}", f"v_add_u32 v{WA[0]}, s24, v{WA[0]}", f"v_xor_b32 v{WA[1]}, 16, v{WA[0]}"]
    for b in range(3):
        fl += [f"v_add_u32 v{RA[b]}, {64*b}, v{TA}", f"v_mul_u32_u24 v{TA+1}, 2731, v{RA[b]}", f"v_lshrrev_b32 v{TA+1}, 16, v{TA+1}",
               f"v_xor_b32 v{RA[b]}, v{RA[b]}, v{TA+1}", f"v_lshlrev_b32 v{RA[b]}, 4, v{RA[b]}", f"v_add_u32 v{RA[b]}, s24, v{RA[b]}"]
    return fl
def epi_out0():
    return [f"s_lshl_b32 s24, s{S_QB}, 2", f"s_add_u32 s24, s24, s{S_WAVE}", f"s_mul_i32 s24, s24, {STAGE}"]
def epi_l(qs):
    fl = []
    for sw in ("v_permlane16_swap_b32", "v_permlane32_swap_b32"):
        fl += [f"v_mov_b32 v{RL[q]}, v{V_L[q]}" for q in qs] + ["s_nop 0"]
        fl += [f"{sw} v{V_L[q]}, v{RL[q]}" for q in qs] + ["s_nop 0"]
        fl += [f"v_add_f32 v{V_L[q]}, v{V_L[q]}, v{RL[q]}" for q in qs]
    return fl + [f"v_rcp_f32 v{RL[q]}, v{V_L[q]}" for q in qs] + ["s_nop 0"]
class LG:
    def __init__(self, tag): self.tag = tag
class DS:
    def __init__(self, tag, text): self.tag = tag; self.text = text
def ds_resolve(seq):
    out = []; ds = []
    for x in seq:
        if isinstance(x, DS): ds.append(x.tag); out.append(x.text)
        elif isinstance(x, LG):
            n = len(ds) - 1 - max(i for i, t in enumerate(ds) if t == x.tag)
            out.append(f"s_waitcnt lgkmcnt({min(n, 15)})")
        else:
            assert not (isinstance(x, str) and x.startswith("ds_")), x
            out.append(x)
    return out
def epi_q(qb, temps, pk, pend):
    RB = [128 + 4 * i for i in range(8)]
    p = []
    def store(i6, reg, q):
        l = [LG(("rb", q, i6)), f"buffer_store_dwordx4 v[{reg}:{reg+3}], v{GA}, s[{S_OUT}:{S_OUT+3}], s24 offen offset:{(i6%3)*1024}{OF}"]
        return l + (["s_add_u32 s24, s24, 3072"] if i6 % 3 == 2 else [])
    pend = list(pend)
    if qb is None:
        for x in pend: p += store(*x)
        return p, []
    for c in range(6):
        n, half = divmod(c, 2)
        ob = temps[(6 * qb + c) % len(temps)]
        for tt in range(8):
            r, e = divmod(8 * half + tt, 4)
            p.append(f"v_accvgpr_read_b32 v{ob+tt}, a{O(qb,3*e+n)+r}")
        if pk: p += [f"v_pk_mul_f32 v[{ob+2*i}:{ob+2*i+1}], v[{ob+2*i}:{ob+2*i+1}], v[{RL[qb]}:{RL[qb]+1}] op_sel_hi:[1,0]" for i in range(4)]
        else: p += [f"v_mul_f32 v{ob+i}, v{ob+i}, v{RL[qb]}" for i in range(8)]
        p += [f"v_cvt_pk_bf16_f32 v{ob+i}, v{ob+2*i}, v{ob+2*i+1}" for i in range(4)]
        if pend: p += store(*pend.pop(0))
        p.append(DS("w", f"ds_write_b128 v{WA[half]}, v[{ob}:{ob+3}] offset:{qb*6144 + n*128}"))
    newp = []
    for i6 in range(6):
        i = 6 * qb + i6; reg = RB[i % 8]
        p.append(DS(("rb", qb, i6), f"ds_read_b128 v[{reg}:{reg+3}], v{RA[i%3]} offset:{(i//3)*3072}"))
        newp.append((i6, reg, qb))
    return p, newp

def gen_tail2():
    passes = [(60, (0, 1)), (62, (0, 1)), (60, (2, 3)), (62, (2, 3))]
    def rd(i):
        ps, f = divmod(i, 24)
        va = V_RD if passes[ps][0] == 60 else V_RD2
        return DS(("f", i), f"ds_read_b128 {FR(f)}, v{va} offset:{(f&1)*12288 + (f>>1)*1024}")
    def tx(x): return x.text if isinstance(x, DS) else ("s_waitcnt" if isinstance(x, LG) else x)
    def run(ps, fill, lim):
        t0, qbs = passes[ps]
        out = []; fill = list(fill)
        for db in range(12):
            for i, (qb, w) in enumerate([(q, w) for q in qbs for w in (0, 1)]):
                out.append(pv_mfma(t0, db, qb, w))
                cur = []
                gi = 24 * ps + 2 * db
                if i in (0, 2) and gi + (i >> 1) + D < 96: cur.append(rd(gi + (i >> 1) + D))
                if i == 3 and gi + 3 < 96: cur.append(LG(("f", gi + 3)))
                L_ = 16 if i % 2 == 0 else lim
                while fill and gap_time([tx(x) for x in cur + [fill[0]]]) <= L_ + (12 if (tx(fill[0]).startswith(("buffer", "ds_")) and i % 2) else 0):
                    cur.append(fill.pop(0))
                out += cur
        return out, fill
    thr = f"s_mov_b32 s{S_TMP}, 0x{f32bits(2.0**OPT['thr']):08x}"
    seq = [DS(("f", i), "") for i in range(D)]
    c, r = run(0, softmax_part(63, 0), 16); seq += c + r + ["s_nop 1"]
    c, r = run(1, [f"v_max_f32 v{V_VST}, v{V_L[0]}, v{V_L[1]}", thr, f"v_cmp_lt_f32 vcc, s{S_TMP}, v{V_VST}"] + softmax_part(62, 1), 16)
    seq += c + r + ["s_cbranch_vccnz L_slow"]
    tempsA = [BX, BX + 8, BY, BY + 8]
    e0, pend = epi_q(0, tempsA, False, []); e1, pend = epi_q(1, tempsA, False, pend)
    ef, pend = epi_q(None, tempsA, False, pend); e1 += ef
    c, r = run(2, softmax_part(63, 1) + [f"v_max_f32 v{V_VST}, v{V_L[2]}, v{V_L[3]}", f"v_cmp_lt_f32 vcc, s{S_TMP}, v{V_VST}"] + epi_l((0, 1)) + epi_out0() + ["MARK"] + e0 + e1, OPT["tden"])
    if "MARK" in r:
        k = r.index("MARK"); c += r[:k]; r = r[k + 1:]
    c = [x for x in c if x != "MARK"]
    seq += c + ["s_nop 1", "s_cbranch_vccnz L_slow"]
    c, r = run(3, r, OPT["tden"]); seq += c + r
    seq += epi_l((2, 3))
    tempsB = [64 + 8 * i for i in range(8)]
    e2, pend = epi_q(2, tempsB, True, pend); e3, pend = epi_q(3, tempsB, True, pend); e4, _ = epi_q(None, tempsB, True, pend)
    seq += e2 + e3 + e4
    return [x for x in ds_resolve(seq) if x != ""]
def slow_epi():
    seq = epi_l((0, 1)) + epi_l((2, 3)) + epi_out0(); pend = []
    for q in (0, 1, 2, 3, None):
        e, pend = epi_q(q, [64 + 8 * i for i in range(8)], True, pend); seq += e
    return ds_resolve(seq)

def gen_slow():
    KF = 64; VF = 112; SS = 160; PP = 224; M = [240, 241, 242, 243]; KA = [244, 245]; LA = 246; t = V_T
    p = ["L_slow:", "s_waitcnt vmcnt(0) lgkmcnt(0)", "s_nop 15"]
    for i in range(192): p.append(f"v_accvgpr_write_b32 a{i}, 0")
    for q in range(4): p += [f"v_mov_b32 v{V_L[q]}, 0", f"v_mov_b32 v{M[q]}, 0xff7fffff"]
    p += [f"v_subrev_u32 v{KA[0]}, s{S_RK}, v{V_RDK[0]}", f"v_subrev_u32 v{KA[1]}, s{S_RK}, v{V_RDK[1]}", f"v_subrev_u32 v{LA}, s{S_RV}, v{V_RD}",
          f"s_mov_b32 s{S_PT}, 0", "L_slowloop:"]
    for i in range(1, 5): p.append(f"s_add_u32 s{S_PT+i}, s{S_PT}, {[0, 6144, 12288, 16384, 20480][i]}")
    for f in range(12):
        s, tb = kfrag(f)
        p.append(f"buffer_load_dwordx4 v[{KF+4*f}:{KF+4*f+3}], v{KA[s&1]}, s[{S_WS}:{S_WS+3}], s{S_PT+tb} offen offset:{(s>>1)*128} sc1")
    for db in range(12):
        p.append(f"buffer_load_dwordx4 v[{VF+4*db}:{VF+4*db+3}], v{LA}, s[{S_WS}:{S_WS+3}], s{S_PT+2+db//4} offen offset:{(db%4)*1024} sc1")
    p.append("s_waitcnt vmcnt(12)")
    for f in range(12):
        s, tb = kfrag(f)
        for qb in range(4):
            d = vr(SS + 8 * qb + 4 * tb, 4)
            p.append(f"{MF} {d}, v[{KF+4*f}:{KF+4*f+3}], {Qf(qb,s)}, {'0' if s == 0 else d}")
    p.append("s_nop 9")
    for qb in range(4):
        sb = SS + 8 * qb
        p += [f"v_max3_f32 v{t}, v{sb}, v{sb+1}, v{sb+2}", f"v_max3_f32 v{t}, v{t}, v{sb+3}, v{sb+4}",
              f"v_max3_f32 v{t}, v{t}, v{sb+5}, v{sb+6}", f"v_max3_f32 v{t}, v{t}, v{sb+7}, v{M[qb]}"]
        p += xlane("v_max_f32", t)
        p += [f"v_sub_f32 v{t+1}, v{M[qb]}, v{t}", f"v_exp_f32 v{t+1}, v{t+1}", f"v_mov_b32 v{M[qb]}, v{t}"]
        for i in range(8): p.append(f"v_sub_f32 v{sb+i}, v{sb+i}, v{t}")
        for i in range(8): p.append(f"v_exp_f32 v{sb+i}, v{sb+i}")
        p.append(f"v_mul_f32 v{V_L[qb]}, v{V_L[qb]}, v{t+1}")
        for i in range(8): p.append(f"v_add_f32 v{V_L[qb]}, v{V_L[qb]}, v{sb+i}")
        for i in range(4): p.append(f"v_cvt_pk_bf16_f32 v{PP+4*qb+i}, v{sb+2*i}, v{sb+2*i+1}")
        for i in range(48):
            a = O(qb, 0) + i; tt = t + 2 + (i % 2)
            p += [f"v_accvgpr_read_b32 v{tt}, a{a}", f"v_mul_f32 v{tt}, v{tt}, v{t+1}", f"v_accvgpr_write_b32 a{a}, v{tt}"]
    p += ["s_waitcnt vmcnt(0)", "s_nop 1"]
    for db in range(12):
        for qb in range(4):
            d = ar(O(qb, db), 4)
            p.append(f"{MF} {d}, v[{VF+4*db}:{VF+4*db+3}], v[{PP+4*qb}:{PP+4*qb+3}], {d}")
    p += [f"s_add_u32 s{S_PT}, s{S_PT}, {STAGE}", f"s_cmp_lt_u32 s{S_PT}, {HEADBYTES}", "s_nop 7", "s_cbranch_scc1 L_slowloop"]
    if OPT["tail2"]: p += slow_epi() + ["s_branch L_fin"]
    else: p += epi_prep() + ["s_branch L_epi"]
    return p

def interleave(mf, fill):
    out = []; fill = list(fill)
    for m in mf:
        out += m if isinstance(m, list) else [m]
        cur = []
        while fill and gap_time(cur + [fill[0]]) <= 16:
            cur.append(fill.pop(0))
        out += cur
    return out, fill

def xlane(op, t):
    l = []
    for sw in ("v_permlane16_swap_b32", "v_permlane32_swap_b32"):
        l += [f"v_mov_b32 v{t+1}, v{t}", "s_nop 1", f"{sw} v{t}, v{t+1}", "s_nop 1", f"{op} v{t}, v{t}, v{t+1}"]
    return l

def resolve(seq):
    vm = []
    for x in seq:
        if isinstance(x, VM): vm.append(x.tag)
        elif isinstance(x, W):
            best = None
            for tag in x.tags:
                n = 0; found = False
                for t in reversed(vm):
                    if t == tag: found = True; break
                    n += 1
                if found: best = n if best is None else min(best, n)
            if best is not None:
                x.n = best if getattr(x, "n", None) is None else min(x.n, best)
def fin(seq):
    out = []
    for x in seq:
        if isinstance(x, W):
            if OPT["ab"] and getattr(x, "n", None) is None: x.n = 63
            assert getattr(x, "n", None) is not None, x.tags
            out.append(f"s_waitcnt vmcnt({min(x.n, 63)})")
        elif isinstance(x, VM): out.append(x.text)
        else: out.append(x)
    return out
def srd(p, s, lo, hi, off_s, size):
    p += [f"s_add_u32 s{s}, s{lo}, s{off_s}", f"s_addc_u32 s{s+1}, s{hi}, 0", f"s_mov_b32 s{s+2}, {size}", f"s_mov_b32 s{s+3}, 0x20000"]
def sprinkle(code, extra):
    out = []; n = len(code); m = len(extra); j = 0
    for i, x in enumerate(code):
        out.append(x)
        while j < m and (i + 1) * m >= (j + 1) * n - n // 2:
            out.append(extra[j]); j += 1
    return out + extra[j:]

def gen_main():
    p = []
    p += [f"{NAME}_kernel:", "s_cmp_ge_u32 s2, 256", "s_cbranch_scc1 L_done",
          "s_load_dwordx16 s[40:55], s[0:1], 0", "s_load_dwordx4 s[16:19], s[0:1], 64"]
    if OPT["stamp"]:
        p += ["s_memtime s[100:101]", "s_memrealtime s[98:99]"]
    p += [f"s_and_b32 s{S_HEAD}, s2, 7", f"s_lshr_b32 s{S_QB}, s2, 3", f"s_lshr_b32 s24, s{S_QB}, 3", f"s_lshl_b32 s{S_HEAD}, s{S_HEAD}, 2",
          f"s_add_u32 s{S_HEAD}, s{S_HEAD}, s24", f"s_and_b32 s{S_QB}, s{S_QB}, 7"]
    if OPT["map"] == 1:
        p += [f"s_lshr_b32 s{S_HEAD}, s2, 3", f"s_and_b32 s{S_QB}, s2, 7"]
    VQD = 232
    if True:
        p += ["s_getpc_b64 s[60:61]", "L_pc:", f"s_sub_u32 s60, s60, L_pc-{NAME}_kernel", "s_subb_u32 s61, s61, 0",
              f"s_mov_b32 s62, L_slow-{NAME}_kernel", "s_mov_b32 s63, 0x20000",
              "s_lshr_b32 s22, s2, 3", "s_lshl_b32 s22, s22, 12",
              "v_lshlrev_b32 v30, 4, v0",
              VM("pf", "buffer_load_dwordx4 v[128:131], v30, s[60:63], s22 offen")]
    p += ["v_lshrrev_b32 v24, 6, v0",
          "v_and_b32 v25, 63, v0",
          f"v_readfirstlane_b32 s{S_WAVE}, v24",
          f"v_lshlrev_b32 v{V_RD}, 4, v25",
          "v_mul_u32_u24 v26, 43, v25", "v_lshrrev_b32 v26, 10, v26",
          "v_mul_u32_u24 v27, 24, v26",
          "v_sub_u32 v27, v25, v27",
          "v_lshrrev_b32 v28, 1, v24",
          "v_and_b32 v29, 1, v24",
          "v_lshlrev_b32 v30, 4, v29",
          "v_lshl_add_u32 v30, v28, 2, v30",
          "v_add_u32 v30, v30, v26",
          "v_mul_u32_u24 v30, 768, v30",
          "v_lshrrev_b32 v48, 1, v26", "v_lshlrev_b32 v48, 30, v48",
          "v_lshl_add_u32 v30, v27, 4, v30", f"v_or_b32 v{V_KLD}, v30, v48",
          f"v_lshl_or_b32 v{V_KSC}, v27, 3, v48",
          "v_mul_u32_u24 v30, 6144, v24",
          f"v_add3_u32 v{V_VLD}, v30, v{V_RD}, v48"]
    for sd, size in ((S_QK, HEADBYTES), (S_QV, HEADBYTES), (S_KS, 12288), (S_KZ, 12288), (S_VS, 4096), (S_VZ, 4096)):
        p += [f"s_mov_b32 s{sd+2}, {size}", f"s_mov_b32 s{sd+3}, 0x20000"]
    p += [f"s_mul_i32 s{S_PK0}, s{S_QB}, {STAGE}", f"s_add_u32 s{S_PK1}, s{S_PK0}, 6144", f"s_mov_b32 s{S_PV0}, s{S_PK0}",
          f"s_lshr_b32 s{S_PKS}, s{S_QB}, 1", f"s_mul_i32 s{S_PKS}, s{S_PKS}, 384", f"s_lshl_b32 s{S_PVS}, s{S_QB}, 6",
          f"s_lshl_b32 s24, s{S_WAVE}, 4", f"s_add_u32 s{S_PVS}, s{S_PVS}, s24",
          f"s_mul_i32 s24, s{S_HEAD}, {HEADBYTES}", f"s_mul_i32 s22, s{S_HEAD}, 12288", f"s_lshl_b32 s23, s{S_HEAD}, 12"]
    p += ["s_waitcnt lgkmcnt(0)"]
    def base(sd, lo, off): return [f"s_add_u32 s{sd}, s{lo}, s{off}", f"s_addc_u32 s{sd+1}, s{lo+1}, 0"]
    p += base(S_KS, 46, 22) + base(S_KZ, 48, 22) + base(S_QK, 42, 24)
    p += k_ld(0, 64, 32, "k0a") + k_ld(1, 80, 36, "k0b")
    p += base(S_VS, 50, 23) + base(S_VZ, 52, 23) + base(S_QV, 44, 24)
    p += [f"s_mov_b32 s{S_DBG}, s16", f"s_mov_b32 s{S_DBG+1}, s17", f"s_add_u32 s{S_PV1}, s{S_PK0}, 3072", f"s_add_u32 s{S_PV2}, s{S_PK0}, 6144"]
    p += v_ld(0, 96, 40, "v0a") + v_ld(1, 112, 44, "v0b")
    p += [f"v_mov_b32 v{V_T}, 0", f"v_mov_b32 v{V_T+1}, {RING}", f"ds_write_b32 v{V_T+1}, v{V_T}"]
    srd(p, S_WS, 18, 19, 24, HEADBYTES)
    p += [f"s_lshl_b32 s24, s{S_HEAD}, 10", f"s_add_u32 s24, s24, {FLAG_OFF}"]
    srd(p, S_FLG, 18, 19, 24, 8 * FST)
    p += ["v_mul_u32_u24 v30, 3072, v24", f"v_add_u32 v{V_DMA}, v30, v{V_RD}"]
    p += [f"s_mul_i32 s24, s{S_HEAD}, 786432"]
    srd(p, S_OUT, 54, 55, 24, 786432)
    p += ["s_waitcnt lgkmcnt(0)"]
    p += [f"s_or_b32 s{S_RET}, s{S_QB}, s{S_WAVE}", f"s_cmp_lg_u32 s{S_RET}, 0", "s_cbranch_scc1 L_notleader0",
          ] + smem_flags() + ["L_notleader0:", "s_barrier"]
    srd(p, S_Q, 40, 41, 24, 786432)
    p += [f"s_mov_b32 s{S_DBG+2}, 256", f"s_mov_b32 s{S_DBG+3}, 0x20000"]
    p += ["v_lshl_add_u32 v30, v24, 3, v26",
          "v_mul_u32_u24 v30, 384, v30",
          "v_lshlrev_b32 v31, 2, v29",
          "v_xor_b32 v31, v27, v31",
          "v_lshl_add_u32 v30, v31, 4, v30", f"v_or_b32 v{V_KST}, v30, v48",
          "v_lshlrev_b32 v30, 8, v24",
          "v_add_u32 v30, 12288, v30",
          "v_lshrrev_b32 v31, 4, v25", "v_lshl_add_u32 v30, v31, 10, v30", "v_and_b32 v31, 15, v25",
          "v_lshl_add_u32 v30, v31, 4, v30", f"v_or_b32 v{V_VST}, v30, v48"]
    p += [f"s_lshl_b32 s{S_HOFF}, s{S_HEAD}, 3", f"s_mul_i32 s24, s{S_QB}, {FST}",
          f"v_lshl_add_u32 v{V_FLAG}, v0, 2, s24", f"v_cmp_lt_u32 vcc, {31 if OPT['fl'] else 0}, v0", "v_mov_b32 v30, 0x40000000", "s_nop 0",
          f"v_cndmask_b32 v{V_FLAG}, v{V_FLAG}, v30, vcc",
          f"v_mov_b32 v{V_FVAL}, 0"]
    p += [f"s_mul_i32 s{S_DMK}, s{S_WAVE}, 3072", f"s_add_u32 s{S_DMK}, s{S_DMK}, 12288", f"s_add_u32 s{S_DMV}, s{S_DMK}, {STAGE}",
          f"s_add_u32 s24, s{S_QB}, 1", "s_and_b32 s24, s24, 7", f"s_mul_i32 s{S_GOFFK}, s24, {STAGE}", f"s_add_u32 s{S_GOFF}, s{S_GOFFK}, 12288",
          f"s_mov_b32 s{S_RK}, 0", f"s_mov_b32 s{S_RV}, {STAGE}", f"v_add_u32 v{V_RD}, {STAGE}, v{V_RD}",
          f"s_mov_b32 s{S_CS}, 0x{f32bits(CSCALE):08x}", f"s_mov_b32 s{S_MASK}, 0xffff0000",
          f"s_mov_b32 s{S_BUDGET}, 100000"]
    p += ["v_and_b32 v26, 15, v25", "v_lshrrev_b32 v27, 4, v25", "v_bfe_u32 v28, v25, 1, 3",
          "v_xor_b32 v29, v27, v28", "v_mul_u32_u24 v30, 384, v26", f"v_lshl_add_u32 v{V_RDK[0]}, v29, 4, v30",
          f"v_xor_b32 v{V_RDK[1]}, 64, v{V_RDK[0]}"]
    p += ["v_lshrrev_b32 v29, 1, v27", "v_xor_b32 v29, v29, v28", "v_lshl_add_u32 v31, v29, 4, v30",
          "v_and_b32 v29, 1, v27", "v_lshl_add_u32 v31, v29, 3, v31",
          ]
    p += [f"s_add_u32 s{S_TMP}, s{S_WAVE}, 3", f"s_mul_i32 s{S_TMP}, s{S_TMP}, {STAGE}", f"s_add_u32 s{S_TP}, s{S_TMP}, 12288",
          f"s_cmp_eq_u32 s{S_WAVE}, 3", f"s_cselect_b32 s{S_TMP}, {STAGE + 12288}, s{S_TMP}", f"s_cselect_b32 s{S_TP}, {RING + 128}, s{S_TP}"]
    p += [f"s_lshl_b32 s24, s{S_QB}, 2", f"s_add_u32 s24, s24, s{S_WAVE}", f"s_mul_i32 s24, s24, {STAGE}"]
    for b in range(6):
        p += [f"v_add_u32 v26, {64*b}, v25", "v_mul_u32_u24 v27, 2731, v26", "v_lshrrev_b32 v27, 17, v27",
              "v_and_b32 v27, 7, v27", "v_xor_b32 v26, v26, v27", f"v_lshlrev_b32 v{VQD+b}, 4, v26", f"v_add_u32 v{VQD+b}, s24, v{VQD+b}"]
    def q_dma(lst):
        l = []
        for i in lst:
            a, b = divmod(i, 6)
            l += [f"s_add_u32 m0, s{S_TMP if i < 12 else S_TP}, {(i%12)*1024}", f"s_mov_b32 s24, {a*6144}",
                  VM(("q", a), f"buffer_load_dwordx4 v{VQD+b}, s[{S_Q}:{S_Q+3}], s24 offen{NTQ} lds")]
        return l
    p += [f"s_cmp_lg_u32 s{S_RET}, 0", "s_cbranch_scc1 L_notleader", "s_waitcnt lgkmcnt(0)", "s_mov_b32 s24, 1"]
    for i in range(8):
        p += [f"s_lshr_b32 s{S_PT+i}, s{S_PT+i}, 8", f"s_min_u32 s{S_PT+i}, s{S_PT+i}, 31", f"s_bitset1_b32 s24, s{S_PT+i}"]
    p += ["s_ff0_i32_b32 s24, s24", "s_lshl_b32 s24, s24, 8", f"v_mov_b32 v{V_POLL}, s24",
          "s_mov_b64 exec, 1", f"buffer_store_dword v{V_POLL}, off, s[{S_DBG}:{S_DBG+3}], s{S_HOFF} sc1", "s_mov_b64 exec, -1",
          "L_notleader:"]
    def own_k(b):
        l = []
        for j in range(4):
            l += k_st(j, b, "st0")
            va = V_KST if j == 0 else V_KA + (j & 1)
            l += ["s_mov_b64 exec, s[62:63]", f"ds_write_b128 v{va}, v[{b+4*j}:{b+4*j+3}] offset:{j*768}", "s_mov_b64 exec, -1"]
        return l
    def own_v(b):
        l = [x for e in range(4) for x in v_st(e, b, "st0")]
        l += ["s_mov_b64 exec, s[62:63]"] + [f"ds_write_b128 v{V_VST}, v[{b+4*e}:{b+4*e+3}] offset:{STAGE - 12288 + e*3072}" for e in range(4)] + ["s_mov_b64 exec, -1"]
        return l
    p += ["s_mov_b32 s62, -1", "s_mov_b32 s63, 0xffff"]
    qa, qb_ = OPT["qa"], OPT["qa"] + OPT["qb"]
    p += [W("k0a")] + q_dma(range(0, qa)) + k_cv(0, 64, 32, 64) + [W("k0b")] + k_cv(1, 80, 36, 64) + own_k(64)
    p += [W("v0a")] + q_dma(range(qa, qb_)) + v_cv(0, 96, 40, 96) + [W("v0b")] + v_cv(1, 112, 44, 96) + own_v(96)
    p += tag_load()
    p += q_dma(range(qb_, OPT["q1"]))
    p += [W("tag")] + tag_check() + first_post(0) + stamp("posted")
    p += q_dma(range(OPT["q1"], 24))
    for q in range(4): p.append(f"v_mov_b32 v{V_L[q]}, 0")
    for kk in range(4):
        p += [f"v_xor_b32 v{32+kk}, {32*kk}, v31", f"v_add_u32 v{36+kk}, s{S_TP}, v{32+kk}", f"v_add_u32 v{32+kk}, s{S_TMP}, v{32+kk}"]
    p += k_adv() + v_adv()
    if OPT["pf2"]:
        p += [f"s_mov_b32 s{S_DBG}, s60", f"s_mov_b32 s{S_DBG+1}, s61", f"s_mov_b32 s{S_DBG+2}, L_slow-{NAME}_kernel",
              "s_lshr_b32 s24, s2, 3", f"s_mul_i32 s{S_HOFF}, s24, 43", f"s_lshr_b32 s{S_HOFF}, s{S_HOFF}, 7",
              f"s_mul_i32 s{S_RET}, s{S_HOFF}, 3", f"s_sub_u32 s24, s24, s{S_RET}", "s_lshl_b32 s24, s24, 10",
              f"s_mul_i32 s{S_HOFF}, s{S_HOFF}, 12288", f"s_add_u32 s{S_HOFF}, s{S_HOFF}, s24"]
    p += ["s_waitcnt lgkmcnt(0)", "s_barrier"] + stamp("barA")
    KF = 144
    for f in range(12):
        s, tb = kfrag(f)
        p.append(f"ds_read_b128 v[{KF+4*f}:{KF+4*f+3}], v{V_RDK[s&1]} offset:{tb*6144 + (s>>1)*128}")
    tq = V_CT
    def sm0(qb):
        a, b = Sq(0, qb, 0), Sq(0, qb, 1)
        l = [f"v_max3_f32 v{tq}, v{a}, v{a+1}, v{a+2}", f"v_max3_f32 v{tq}, v{tq}, v{a+3}, v{b}",
             f"v_max3_f32 v{tq}, v{tq}, v{b+1}, v{b+2}", f"v_max_f32 v{tq}, v{tq}, v{b+3}"] + xlane("v_max_f32", tq)
        l += [f"v_sub_f32 v{NEGM(qb)+i}, 0, v{tq}" for i in range(4)]
        rest = [f"v_sub_f32 v{r+i}, v{r+i}, v{tq}" for r in (a, b) for i in range(4)]
        rest += [f"v_exp_f32 v{r+i}, v{r+i}" for r in (a, b) for i in range(4)]
        rest += [f"v_add_f32 v{V_L[qb]}, v{V_L[qb]}, v{r+i}" for r in (a, b) for i in range(4)]
        rest += [f"v_cvt_pk_bf16_f32 v{a}, v{a}, v{a+1}", f"v_cvt_pk_bf16_f32 v{a+1}, v{a+2}, v{a+3}",
                 f"v_cvt_pk_bf16_f32 v{a+2}, v{b}, v{b+1}", f"v_cvt_pk_bf16_f32 v{a+3}, v{b+2}, v{b+3}"]
        return l, rest
    fl = []
    for qb in range(4):
        if qb == OPT["pollq"]:
            p += stamp("at poll") + poll_smem() + stamp("poll ok")
            p += with_nop(dma_tile("k", 1, True) + dma_tile("k", 2, True) + dma_tile("k", 3, True))
        p.append(W(("q", qb)))
        for s in range(6):
            for h in range(2):
                sp = s + 6 * h
                p.append(f"ds_read_b64 {Qf(qb,s,h)}, v{32+4*(qb>>1)+(sp&3)} offset:{(qb&1)*6144 + (sp>>2)*128}")
        if qb == 3: p += k_ld(0, BX, V_RS[0], "ka")
        p.append("s_waitcnt lgkmcnt(0)")
        for f in sorted(range(12), key=lambda f: kfrag(f)[::-1]):
            s, tb = kfrag(f)
            d = vr(Sq(0, qb, tb), 4)
            p.append(f"{MF} {d}, v[{KF+4*f}:{KF+4*f+3}], {Qf(qb,s)}, {'0' if s == 0 else d}")
        if qb == 3:
            if OPT["pollq"] == 4:
                p += poll_smem() + stamp("poll ok")
                p += with_nop(dma_tile("k", 1, True) + dma_tile("k", 2, True) + dma_tile("k", 3, True))
            p += [W(("dk", 0)), "s_barrier"] + [frag_read("q", 12 + f) for f in range(NFS)]
        else: p.append("s_nop 7")
        l, rest = sm0(qb)
        p += l
        if qb < 3: p += rest
        else: fl = rest
    if OPT["stamp"]:
        p += stamp("loop start") + ["s_memtime s[8:9]"]
    l = dma_tile("v", 1, True)
    dl = [l[0:1], l[1:2], l[2:3], l[3:4], l[4:7], l[7:]] + [[x] for x in k_ld(1, BY, V_RS[1], "kb")]
    p.append("s_nop 0")
    for g in range(48, 96):
        F = 2 * (g >> 3)
        if g % 8 == 0: p.append(f"s_waitcnt lgkmcnt({min(NFS - 2, 22 - F)})")
        p.append(qk_mfma(0, g))
        cur = []
        if g % 8 == 7 and F + NFS < 24: cur = [frag_read("q", F + NFS), frag_read("q", F + NFS + 1)]
        elif g % 4 == 1 and dl: cur = dl.pop(0)
        while fl and gap_time(cur + [fl[0]]) <= 16: cur.append(fl.pop(0))
        p += cur
    assert not dl and not fl
    p += rd_step("q") + [W(("dk", 1)), "s_barrier"] + [frag_read("q", f) for f in range(D)]
    p += [f"s_mov_b32 s{S_CNT}, {6 if (OPT['sh4'] and not OPT['lastu']) else 5}", f"s_waitcnt lgkmcnt({D-2})"]
    c0 = OPT["c0"]
    K_ = lambda *j: tuple(("k", x) for x in j)
    V_ = lambda *j: tuple(("v", x) for x in j)
    G = lambda it, t, d, **kw: pstamp(f"p{it}") + gen_iter(it, t, dma=d, name=f"p{it}", peel=True, **kw)
    p += G(1, [("cv", "ka", 0, 99, 30, 95)], [K_(4, 5) + (0, 70)], extra_sm=True, nostep=True)
    p += G(2, [("ldn", "va", 0, 24), ("cv", "kb", 0, 99, 0, 60), ("kst", 0, 61), ("kst", 1, 69), ("kst", 2, 81), ("kst", 3, 89)], [V_(2, 3) + (26, 54)])
    p += G(3, [("ld", "vb", 0, 24), ("post", "kst"), ("cv", "va", 0, 99, c0, 95)], [K_(6, 7) + V_(4, 5) + (14, 90)])
    p += G(4, [("ld", "ka", 0, 26), ("cv", "vb", 0, 99, c0, 95), ("pollld", OPT["pa"], OPT["pa"] + 8)], [V_(6, 7) + (28, 76)])
    p += G(5, [("vst", 0, 1), ("vst", 1, 9), ("vst", 2, 17), ("vst", 3, 25), ("ld", "kb", 32, 54), ("pollchk", 49), ("cv", "ka", 0, 99, c0, 95)],
           [K_(8, 9) + (56, 84)])
    if OPT["sh4"]:
        p += G(6, [("ld", "va", 0, 26), ("post", "vst"), ("cv", "kb", 0, 99, 50, 95)], [K_(10, 11) + (28, 74)])
        p += G(7, [("ld", "vb", 0, 24), ("pollld", 44, 50), ("cv", "va", 0, 16, c0, 95), ("kst", 0, 57), ("kst", 1, 65), ("kst", 2, 73), ("kst", 3, 85)],
               [K_(12, 13) + (24, 48)])
        p += G(8, [("post", "kst"), ("pollchk", 33), ("cv", "va", 16, 99, 0, 94)],
               [V_(8, 9, 10, 11) + (39, 90)], endops=["s_nop 0", "s_branch L_join"])
        JOIN = 1
        p += [".p2align 6", "L_loop:"]
        pro_ = p
        bodyA = []
        for k in range(8):
            if k == JOIN: bodyA.append("L_join:"); jpos = len(bodyA)
            eo = [f"s_sub_u32 s{S_CNT}, s{S_CNT}, 1", f"s_cmp_lg_u32 s{S_CNT}, 0", "s_cbranch_scc1 L_loop"] if k == 7 else ()
            bodyA += (tstamp() if k == 4 else []) + gen_iter(16 + k, steady4(k), endops=eo, name=f"k{k}")
        mid = []
        if OPT["lastu"]:
            for it in range(48, 56): mid += gen_iter(it, steady4(it % 8, last=True), name=f"T{it}")
        for it in range(56, 62): mid += gen_iter(it, dma=([] if it in (59, 61) else None), name=f"T{it}")
        bodyC = []
        t62 = gen_iter(62, dma=[], name="T62", nxt="p")
        for x in t62:
            if isinstance(x, W): x.n = 0; x.tags = ()
        tailc = t62 + gen_tail()
        resolve(pro_ + bodyA[jpos:] + bodyA + bodyA + mid)
    else:
        p += G(6, [("ld", "va", 0, 26), ("post", "vst"), ("cv", "kb", 0, 99, 50, 95)], [K_(10, 11) + (28, 74)])
        p += G(7, [("ld", "vb", 0, 22), ("pollld", 44, 50), ("kst", 0, 57), ("kst", 1, 65), ("kst", 2, 73), ("kst", 3, 85), ("cv", "va", 0, 99, c0, 95)],
               [K_(12, 13) + (23, 46)])
        p += G(8, [("ld", "ka", 0, 26), ("pollchk", 45), ("cv", "vb", 0, 99, c0, 95)], [V_(8, 9, 10, 11) + (51, 93)])
        p += G(9, [("vst", 0, 1), ("vst", 1, 9), ("vst", 2, 17), ("vst", 3, 25), ("ld", "kb", 32, 54), ("post", "vst"), ("cv", "ka", 0, 99, c0, 95)],
               [K_(14, 15) + (56, 90)])
        p += G(10, [("ld", "va", 0, 26), ("cv", "kb", 0, 99, 50, 95), ("pollld", 70, 84)], [V_(12, 13) + (28, 68)])
        p += G(11, [("ld", "vb", 0, 30), ("cv", "va", 0, 22, c0, 94), ("pollchk", 65)], [K_(16, 17) + (71, 90)], endops=["s_nop 0", "s_branch L_join"])
        JOIN = 4
        p += [".p2align 6", "L_loop:"]
        pro_ = p
        bodyA = []
        for k in range(8):
            if k == JOIN: bodyA.append("L_join:"); jpos = len(bodyA)
            eo = [f"s_sub_u32 s{S_CNT}, s{S_CNT}, 1", f"s_cmp_lg_u32 s{S_CNT}, 0", "s_cbranch_scc1 L_loop"] if k == 7 else ()
            bodyA += (tstamp() if k == 4 else []) + gen_iter(16 + k, steady_tasks(k), endops=eo, name=f"k{k}")
        mid = []
        for k in range(4): mid += gen_iter(48 + k, steady_tasks(k, prod=False), name=f"mid{k}")
        mid += [f"s_mov_b32 s{S_CNT}, 2", ".p2align 6", "L_loop2:"]
        bodyC = []
        for k in range(4):
            eo = [f"s_sub_u32 s{S_CNT}, s{S_CNT}, 1", f"s_cmp_lg_u32 s{S_CNT}, 0", "s_cbranch_scc1 L_loop2"] if k == 3 else ()
            bodyC += gen_iter(52 + k, name=f"C{k}", endops=eo)
        for x in bodyC:
            if isinstance(x, W): x.n = 18; x.tags = ()
        LE = (stamp("loop end") + ["s_memtime s[10:11]"]) if OPT["stamp"] else []
        if OPT["tail2"]:
            t60 = gen_iter(60, name="T60", extra=epi_addr())
            t61 = gen_iter(61, dma=[], name="T61", extra_late=[f"v_add_u32 v{V_RD2}, {2*STAGE}, v{V_RD}"])
            for seq, n in ((t60, 18), (t61, 0)):
                for x in seq:
                    if isinstance(x, W): x.n = n; x.tags = ()
            tailc = LE + t60 + t61 + gen_tail2() + ["L_fin:"]
        else:
            t60 = gen_iter(60, name="T60"); t61 = gen_iter(61, dma=[], name="T61"); t62 = gen_iter(62, dma=[], name="T62", nxt="p")
            for seq, n in ((t60, 18), (t61, 12), (t62, 0)):
                for x in seq:
                    if isinstance(x, W): x.n = n; x.tags = ()
            tailc = LE + t60 + t61 + t62 + gen_tail()
        resolve(pro_ + bodyA[jpos:] + bodyA + bodyA + mid)
    P_ = Prog()
    P_.extend(fin(pro_))
    a0 = len(P_.ins); P_.extend(fin(bodyA)); a1 = len(P_.ins)
    P_.extend(fin(mid))
    c0_ = len(P_.ins); P_.extend(fin(bodyC)); c1 = len(P_.ins)
    P_.extend(fin(tailc))
    p = P_
    if OPT["stamp"]:
        p("s_waitcnt vmcnt(0)")
        p.extend(stamp("end"))
        p("s_memtime s[22:23]")
        p("s_waitcnt lgkmcnt(0)")
        p("s_sub_u32 s22, s22, s100")
        regs = [98] + [SR(i) for i in range(len(STAMPS))]
        p("s_sub_u32 s10, s10, s8")
        regs += [10] * (14 - len(regs)) + [22, S_BUDGET]
        for i, s in enumerate(regs): p(f"v_mov_b32 v{64+i}, s{s}")
        p("s_add_u32 s8, s18, 0xfa00000"); p("s_addc_u32 s9, s19, 0"); p("s_mov_b32 s10, 1048576"); p("s_mov_b32 s11, 0x20000")
        p("s_lshl_b32 s24, s2, 2"); p(f"s_add_u32 s24, s24, s{S_WAVE}"); p("s_lshl_b32 s24, s24, 6")
        p("v_mov_b32 v32, s24")
        p(f"v_cmp_eq_u32 vcc, 0, v{GA}")
        p("s_and_saveexec_b64 s[20:21], vcc")
        for i in range(4):
            p(f"buffer_store_dwordx4 v[{64+4*i}:{67+4*i}], v32, s[8:11], 0 offen offset:{16*i}")
        open(sys.argv[1] + ".stamps", "w").write("\n".join(STAMPS))
    p("L_done:")
    p("s_endpgm")
    main_end0 = len(p.ins)
    for ps in POLLSITES + ["P"]: p.extend(poll_slow(ps))
    p.extend(tag_slow())
    main_end = len(p.ins)
    p.extend(gen_slow())
    slow_end = len(p.ins)
    ji = [i for i, x in enumerate(p.ins) if x.text == "L_join:"][0]
    lin = p.ins[:a0] + p.ins[ji:a1] + p.ins[a0:c1] + p.ins[c0_:main_end0]
    sl = [i for i, x in enumerate(p.ins) if x.text == "L_slowloop:"][0]
    ei = [i for i, x in enumerate(p.ins) if x.text in ("L_epi:", "L_fin:")][0]
    bi = [i for i, x in enumerate(p.ins) if x.text == "s_cbranch_scc1 L_slowloop"][0]
    probs = check_hazards(lin, "main") + check_hazards(p.ins[main_end:bi+1] + p.ins[sl:slow_end] + p.ins[ei:ei+60], "slow") + check_hazards(p.ins[main_end0:main_end], "aux")
    for x in probs: print(x, file=sys.stderr)
    return p

def kd(name, vgpr, sgpr, accum):
    return f""".amdhsa_kernel {name}
  .amdhsa_next_free_vgpr {vgpr}
  .amdhsa_next_free_sgpr {sgpr}
  .amdhsa_accum_offset {accum}
  .amdhsa_group_segment_fixed_size 0
  .amdhsa_kernarg_size 80
  .amdhsa_user_sgpr_count 2
  .amdhsa_user_sgpr_kernarg_segment_ptr 1
  .amdhsa_system_sgpr_workgroup_id_x 1
.end_amdhsa_kernel
"""
out = HEADER
out += f"; @launch grid=(256,1,1) block=(256,1,1) lds={LDS_BYTES}\n"
out += '.amdgcn_target "amdgcn-amd-amdhsa--gfx950"\n.text\n'
out += f".globl {NAME}_kernel\n.p2align 8\n.type {NAME}_kernel,@function\n" + gen_main().text()
out += '.section .rodata,"a"\n.p2align 6\n' + kd(NAME + "_kernel", 512, 102, 256)
open(sys.argv[1], "w").write(out)
```

```python
import sys, math
from asmlib import *

NAME = "standalone__kv_cache_quant_int4_int2_kv_with_per_channel_or_per_token_scales__prompt"
OPT = dict(stamp=0, prod=1, q1=14, qa=3, qb=3, trip=3, vmgap=4, sb=6, sa=6, pl=10, c0=30, ahead=4, thr=64, dbgout=0, pa=78, snake=0, prog=1, pollq=3, fl=0, twop=0, sh4=0, lastu=1, tail2=1, tden=44, ab=0, pf2=1, map=0)
for a in sys.argv[2:]:
    k, v = a.split("="); OPT[k] = int(v)
NS = 6; D = 4
STAGE = 24576
HEADBYTES = 64 * STAGE
RING = NS * STAGE
LDS_BYTES = RING + 128 + 12288
CSCALE = (192.0 ** -0.5) * math.log2(math.e)
HEADER = open("cdna_kernels/" + NAME + ".s.ref").read().split("; Override launch geometry")[0]
MF = "v_mfma_f32_16x16x32_bf16"
NG = 96

V_FVAL = 0; V_RD = 1; V_RDK = [2, 3]; V_DMA = 4; V_L = [5, 6, 7, 8]
V_KLD = 9; V_KSC = 10; V_KST = 11; V_VLD = 12; V_FLAG = 13
V_T = 16; NTP = 2
V_VST = 20
V_FR = 24; NFS = 6
V_CT = 48; V_VO = 52; V_RS = [56, 60]; BX = 224; BY = 240; BZ = 144
V_POLL = V_VO; V_KA = V_VO + 2
UNIT = [64, 80, 160, 176]; HI = [96, 112]
def Sq(t, qb, tb): return (UNIT[t % 4] if tb == 0 else HI[t % 2]) + 4 * qb
def P(t, qb): return UNIT[t % 4] + 4 * qb
def NEGM(qb): return 128 + 4 * qb
def O(qb, db): return (qb * 12 + db) * 4
def Qf(qb, s, half=None):
    i = qb * 6 + s
    base, f = (192 + 4 * i, ar) if i < 16 else (192 + 4 * (i - 16), vr)
    return f(base, 4) if half is None else f(base + 2 * half, 2)
def FR(f): return vr(V_FR + 4 * (f % NFS), 4)

S_RDELTA = 3; S_WS = 4; S_Q = 8; S_OUT = 12; S_FLG = 20
S_WAVE = 25; S_DMK = 26; S_GOFF = 27; S_RK = 28; S_TMP = 29; S_RV = 30; S_CNT = 31; S_GOFFK = 32
S_PK0 = 33; S_PK1 = 34; S_PV0 = 35; S_PKS = 36; S_PVS = 37; S_CS = 38; S_RET = 39; S_PV1 = 16; S_PV2 = 17
S_PT = 48; S_DMV = 56; S_TK = 57; S_TV = 58; S_TP = 59
S_QK = 64; S_QV = 68; S_KS = 72; S_KZ = 76; S_VS = 80; S_VZ = 84; S_DBG = 88
S_NEED = 92; S_HOFF = 93; S_HEAD = 94; S_QB = 95; S_BUDGET = 96; S_MASK = 97
FLAG_OFF = 64 << 20
FST = 128 if OPT["fl"] else 4
SC1 = " sc1"; NTKV = " nt"; NTQ = " nt"; STF = " sc1"; OF = " sc0 sc1"

STAMPS = []
def SR(i): return [40, 42, 44, 46, 60, 62, 88, 90, 98, 100, 8][i]
def tstamp():
    if OPT["stamp"] != 5: return []
    if not STAMPS: STAMPS.extend(["t-3", "t-2", "t-1", "t0"])
    return [f"s_mov_b32 s{SR(0)}, s{SR(1)}", f"s_mov_b32 s{SR(1)}, s{SR(2)}", f"s_mov_b32 s{SR(2)}, s{SR(3)}", f"s_memtime s[{SR(3)}:{SR(3)+1}]"]
def pstamp(name):
    if OPT["stamp"] != 3: return []
    i = len(STAMPS); STAMPS.append(name)
    return [f"s_memtime s[{SR(i)}:{SR(i)+1}]"]
def stamp(name):
    if OPT["stamp"] != 1: return []
    i = len(STAMPS); STAMPS.append(name)
    return [f"s_memrealtime s[{SR(i)}:{SR(i)+1}]"]

V_STAMP = 21
def istamp(name, force=False):
    if OPT["stamp"] not in (6, 7, 8): return []
    if OPT["stamp"] == 8 and not (force or name in ("p1", "p2", "p3", "p4", "p5", "p6", "p7", "p8", "p9", "p10", "p11", "T60", "T61", "tail", "end", "end2", "qk1")): return []
    if OPT["stamp"] != 8 and force: return []
    STAMPS.append(name)
    return ["s_waitcnt lgkmcnt(0)"] * (1 if force else 0) + [f"v_mov_b32_dpp v{V_STAMP}, v{V_STAMP} wave_shr:1 row_mask:0xf bank_mask:0xf", f"v_writelane_b32 v{V_STAMP}, s98, 0",
            ("s_memtime" if OPT["stamp"] == 6 else "s_memrealtime") + " s[98:99]"]

class W:
    def __init__(self, *tags): self.tags = tags
class VM:
    def __init__(self, tag, text): self.tag = tag; self.text = text

def softmax_part(t, half):
    flat = []; prev = None
    for gp in range(8):
        qb = 2 * half + gp // 4; pi = gp % 4
        t0 = V_T + 2 * (gp % NTP); t1 = t0 + 1
        src = Sq(t, qb, pi >> 1) + 2 * (pi & 1)
        E = [f"v_exp_f32 v{t0}, v{src}", f"v_exp_f32 v{t1}, v{src+1}"]
        A = [f"v_add_f32 v{V_L[qb]}, v{V_L[qb]}, v{t0}", f"v_add_f32 v{V_L[qb]}, v{V_L[qb]}, v{t1}"]
        C = [f"v_cvt_pk_bf16_f32 v{P(t,qb)+pi}, v{t0}, v{t1}"]
        if OPT["ab"] == 1: A = []
        if OPT["ab"] == 2: E = [x.replace("v_exp_f32", "v_mov_b32") for x in E]
        flat += E if prev is None else [E[0]] + prev[0] + [E[1]] + prev[1]
        prev = (A, C)
    return flat + prev[0] + prev[1]

def kfrag(g):
    return 2 * (g >> 2) + (g & 1), (g >> 1) & 1
def frag_read(kind, f):
    if kind == "q":
        s, tb = kfrag(f % 12)
        return f"ds_read_b128 {FR(f)}, v{V_RDK[s&1]} offset:{(f//12)*12288 + tb*6144 + (s>>1)*128}"
    return f"ds_read_b128 {FR(f)}, v{V_RD} offset:{(f&1)*12288 + (f>>1)*1024}"

def dma_tile(part, pos, peel=False):
    dm, go, tmp = (S_DMK, S_GOFFK, S_TK) if part == "k" else (S_DMV, S_GOFF, S_TV)
    l = [f"s_mov_b32 m0, s{dm}"]
    for j in range(3):
        l.append(VM(("d" + part, (pos >> 1) % 4), f"buffer_load_dwordx4 v{V_DMA}, s[{S_WS}:{S_WS+3}], s{go} offen offset:{j*1024}{SC1} lds"))
    if peel and pos < 7:
        l += [f"s_add_u32 s{go}, s{go}, {STAGE}", f"s_sub_u32 s{tmp}, s{go}, {8*STAGE}", f"s_min_u32 s{go}, s{go}, s{tmp}"]
    elif peel and pos == 7:
        l += [f"s_mov_b32 s{go}, {8*STAGE + (0 if part == 'k' else 12288)}"]
    else:
        l += [f"s_add_u32 s{go}, s{go}, {STAGE}"]
    if pos % 2 == 0: l += [f"s_add_u32 s{dm}, s{dm}, 12288"]
    else: l += [f"s_add_u32 s{dm}, s{dm}, {2*STAGE - 12288}", f"s_sub_u32 s{tmp}, s{dm}, {RING}", f"s_min_u32 s{dm}, s{dm}, s{tmp}"]
    return l
def with_nop(l):
    out = []
    for i, x in enumerate(l):
        out.append(x)
        if isinstance(x, str) and " m0," in x and i + 1 < len(l) and isinstance(l[i + 1], VM): out.append("s_nop 0")
    return out
def rd_step(kind):
    cur, regs = (S_RK, V_RDK) if kind == "q" else (S_RV, [V_RD])
    return [f"s_add_u32 s{S_TMP}, s{cur}, {2*STAGE}", f"s_sub_u32 s{S_RDELTA}, s{S_TMP}, {RING}",
            f"s_min_u32 s{S_TMP}, s{S_TMP}, s{S_RDELTA}", f"s_sub_u32 s{S_RDELTA}, s{S_TMP}, s{cur}", f"s_mov_b32 s{cur}, s{S_TMP}"] + \
           [f"v_add_u32 v{r}, s{S_RDELTA}, v{r}" for r in regs]

def k_ld(h, buf, rs, tag):
    l = [VM(tag, f"buffer_load_dwordx2 v[{rs+2*i}:{rs+2*i+1}], v{V_KSC}, s[{srd_}:{srd_+3}], s{S_PKS} offen offset:{192*h}")
         for i, srd_ in enumerate((S_KS, S_KZ))]
    for j in range(4):
        so = S_PK0 if j < 2 else S_PK1
        l.append(VM(tag, f"buffer_load_dwordx4 v[{buf+4*j}:{buf+4*j+3}], v{V_KLD}, s[{S_QK}:{S_QK+3}], s{so} offen offset:{(j&1)*1536+384*h}{NTKV}"))
    return l
def v_ld(h, buf, rs, tag):
    l = [VM(tag, f"buffer_load_dwordx2 v[{rs+2*i}:{rs+2*i+1}], off, s[{srd_}:{srd_+3}], s{S_PVS} offset:{8*h}")
         for i, srd_ in enumerate((S_VS, S_VZ))]
    for r in range(4):
        so = S_PV0 if h == 0 else S_PV1
        l.append(VM(tag, f"buffer_load_dwordx4 v[{buf+4*r}:{buf+4*r+3}], v{V_VLD}, s[{S_QV}:{S_QV+3}], s{so} offen offset:{r*768}{NTKV}"))
    return l
def k_cv(h, buf, rs, out):
    l = []
    s0, s1, z0, z1 = V_CT, V_CT + 1, V_CT + 2, V_CT + 3
    for i in range(2):
        l += [f"v_lshlrev_b32 v{s0}, 16, v{rs+i}", f"v_and_b32 v{s1}, s{S_MASK}, v{rs+i}",
              f"v_lshlrev_b32 v{z0}, 16, v{rs+2+i}", f"v_and_b32 v{z1}, s{S_MASK}, v{rs+2+i}",
              f"v_mul_f32 v{s0}, s{S_CS}, v{s0}", f"v_mul_f32 v{s1}, s{S_CS}, v{s1}",
              f"v_mul_f32_e64 v{z0}, -v{z0}, v{s0}", f"v_mul_f32_e64 v{z1}, -v{z1}, v{s1}"]
        for j in range(4):
            a = buf + 4 * j + 2 * i; b = a + 1
            l += [f"v_cvt_f32_i32 v{a}, v{a}", f"v_cvt_f32_i32 v{b}, v{b}",
                  f"v_fma_f32 v{a}, v{a}, v{s0}, v{z0}", f"v_fma_f32 v{b}, v{b}, v{s1}, v{z1}",
                  f"v_cvt_pk_bf16_f32 v{out+4*j+2*h+i}, v{a}, v{b}"]
    return l
def k_st(j, out, tag="kst"):
    va = V_KST; g = []
    if j:
        va = V_KA + (j & 1); g.append(f"v_xor_b32 v{va}, {16*j}, v{V_KST}")
    g.append(VM(tag, f"buffer_store_dwordx4 v[{out+4*j}:{out+4*j+3}], v{va}, s[{S_WS}:{S_WS+3}], s{S_PK0} offen offset:{j*768}{STF}"))
    return g
def v_cv(h, buf, rs, out):
    l = []
    s0, s1, z0, z1 = V_CT, V_CT + 1, V_CT + 2, V_CT + 3
    for i in range(2):
        l += [f"v_lshlrev_b32 v{s0}, 16, v{rs+i}", f"v_and_b32 v{s1}, s{S_MASK}, v{rs+i}",
              f"v_lshlrev_b32 v{z0}, 16, v{rs+2+i}", f"v_and_b32 v{z1}, s{S_MASK}, v{rs+2+i}",
              f"v_mul_f32_e64 v{z0}, -v{z0}, v{s0}", f"v_mul_f32_e64 v{z1}, -v{z1}, v{s1}"]
        for e in range(4):
            a = buf + 4 * (2 * i) + e; b = buf + 4 * (2 * i + 1) + e
            l += [f"v_cvt_f32_i32 v{a}, v{a}", f"v_cvt_f32_i32 v{b}, v{b}",
                  f"v_fma_f32 v{a}, v{a}, v{s0}, v{z0}", f"v_fma_f32 v{b}, v{b}, v{s1}, v{z1}"]
    for e, i in [(0, 0), (1, 0), (0, 1), (1, 1), (2, 0), (2, 1), (3, 0), (3, 1)]:
        l.append(f"v_cvt_pk_bf16_f32 v{out+4*e+2*h+i}, v{buf+8*i+e}, v{buf+8*i+4+e}")
    return l
def v_st(e, out, tag="vst"):
    so = S_PV0 if e < 2 else S_PV2
    return [VM(tag, f"buffer_store_dwordx4 v[{out+4*e}:{out+4*e+3}], v{V_VST}, s[{S_WS}:{S_WS+3}], s{so} offen offset:{(e&1)*3072}{STF}")]
def k_adv():
    return [f"s_add_u32 s{S_PK0}, s{S_PK0}, {8*STAGE}", f"s_add_u32 s{S_PK1}, s{S_PK1}, {8*STAGE}", f"s_add_u32 s{S_PKS}, s{S_PKS}, {4*384}"]
def v_adv():
    return [f"s_add_u32 s{r}, s{r}, {8*STAGE}" for r in (S_PV0, S_PV1, S_PV2)] + [f"s_add_u32 s{S_PVS}, s{S_PVS}, {8*64}"]
HT = {"ka": (k_ld, k_cv, 0, BX, V_RS[0], BX), "kb": (k_ld, k_cv, 1, BY, V_RS[1], BX),
      "va": (v_ld, v_cv, 0, BZ, V_RS[0], BZ), "vb": (v_ld, v_cv, 1, BY, V_RS[1], BZ)}
def flag_post():
    return [f"v_add_u32 v{V_FVAL}, 1, v{V_FVAL}",
            VM("flag", f"buffer_store_dword v{V_FVAL}, v{V_FLAG}, s[{S_FLG}:{S_FLG+3}], 0 offen sc1")]
def poll_addr():
    return [f"v_bfe_u32 v{V_POLL+1}, v{V_DMA}, 4, 6", f"v_lshlrev_b32 v{V_POLL+1}, {7 if OPT['fl'] else 2}, v{V_POLL+1}"]
def poll_load():
    return poll_addr() + [VM("poll", f"buffer_load_dword v{V_POLL}, v{V_POLL+1}, s[{S_FLG}:{S_FLG+3}], 0 offen sc1")]
def poll_test():
    return [f"v_subrev_u32 v{V_POLL}, s{S_NEED}, v{V_POLL}", f"v_cmp_lt_u32 vcc, 15, v{V_POLL}", "s_nop 0", f"s_and_b32 s{S_TP}, vcc_lo, 0xff"]
def smem_flags():
    if OPT["fl"]: return [f"s_buffer_load_dword s{S_PT+i}, s[{S_FLG}:{S_FLG+3}], {128*i} glc" for i in range(8)]
    return [f"s_buffer_load_dwordx8 s[{S_PT}:{S_PT+7}], s[{S_FLG}:{S_FLG+3}], 0 glc"]
def smem_test():
    l = smem_flags() + ["s_waitcnt lgkmcnt(0)"]
    for i in range(8): l.append(f"s_sub_u32 s{S_PT+i}, s{S_PT+i}, s{S_NEED}")
    for i in range(1, 8): l.append(f"s_max_u32 s{S_PT}, s{S_PT}, s{S_PT+i}")
    return l + [f"s_cmp_lt_u32 s{S_PT}, 16"]
def poll_slow(site):
    l = [f"L_pollslow{site}:"]
    if site != "P":
        l += [f"s_mov_b32 s{S_TP}, 200", f"L_pollsm{site}:"] + smem_test() + [f"s_cbranch_scc1 L_pollok{site}",
              f"s_sub_u32 s{S_TP}, s{S_TP}, 1", f"s_cbranch_scc1 L_pollvec{site}", "s_sleep 1", f"s_branch L_pollsm{site}"]
    l += [f"L_pollvec{site}:",
            f"s_sub_u32 s{S_BUDGET}, s{S_BUDGET}, 1",
            f"s_cbranch_scc1 L_pollgiveup{site}",
            "s_sleep 2",
            f"buffer_load_dword v{V_POLL}, v{V_POLL+1}, s[{S_FLG}:{S_FLG+3}], 0 offen sc1",
            "s_waitcnt vmcnt(0)"] + poll_test() + [
            f"s_cbranch_scc1 L_pollvec{site}",
            f"s_branch L_pollok{site}",
            f"L_pollgiveup{site}:",
            f"s_mov_b32 s{S_BUDGET}, 0",
            f"s_branch L_pollok{site}"]
    return l
def tag_load():
    return [VM("tag", f"buffer_load_dword v{V_FVAL}, off, s[{S_DBG}:{S_DBG+3}], s{S_HOFF} sc1")]
def tag_check():
    return [f"v_readfirstlane_b32 s{S_NEED}, v{V_FVAL}", f"s_mov_b32 s{S_RET}, 100",
            "L_tagretry:", f"s_cmp_lg_u32 s{S_NEED}, 0", "s_cbranch_scc1 L_tagok",
            f"s_sub_u32 s{S_RET}, s{S_RET}, 1", "s_cbranch_scc1 L_tagslow", "s_sleep 8",
            f"s_buffer_load_dword s{S_NEED}, s[{S_DBG}:{S_DBG+3}], s{S_HOFF} glc", "s_waitcnt lgkmcnt(0)", "s_branch L_tagretry",
            "L_tagok:", f"s_add_u32 s{S_NEED}, s{S_NEED}, 1", f"v_mov_b32 v{V_FVAL}, s{S_NEED}"]
def first_post(n=0):
    return ["s_mov_b64 exec, 1", f"v_mov_b32 v{V_T}, 1", f"v_mov_b32 v{V_T+1}, {RING + 4*n}",
            f"ds_add_rtn_u32 v{V_T}, v{V_T+1}, v{V_T}", "s_waitcnt lgkmcnt(0)",
            f"v_readfirstlane_b32 s24, v{V_T}", "s_nop 0", "s_cmp_lg_u32 s24, 3", f"s_cbranch_scc1 L_nopost{n}",
            f"s_mul_i32 s{S_RET}, s{S_QB}, {FST}"] + (
            ["s_mov_b64 exec, 0xffffffff", f"v_bfe_u32 v{V_T}, v{V_DMA}, 2, 7",
             f"buffer_store_dword v{V_FVAL}, v{V_T}, s[{S_FLG}:{S_FLG+3}], s{S_RET} offen sc1"] if OPT["fl"] else
            [f"buffer_store_dword v{V_FVAL}, off, s[{S_FLG}:{S_FLG+3}], s{S_RET} sc1"]) + [
            f"L_nopost{n}:", "s_mov_b64 exec, -1"]
def poll_smem():
    l = poll_addr() + [f"s_mov_b32 s{S_RET}, 200", "L_pollretry:"] + smem_test()
    l += ["s_cbranch_scc1 L_pollokP",
          f"s_sub_u32 s{S_RET}, s{S_RET}, 1", "s_cbranch_scc1 L_pollslowP", "s_sleep 1", "s_branch L_pollretry",
          "L_pollokP:", f"s_add_u32 s{S_NEED}, s{S_NEED}, 1"]
    return l
def tag_slow():
    return ["L_tagslow:",
            f"s_sub_u32 s{S_BUDGET}, s{S_BUDGET}, 1",
            "s_cbranch_scc1 L_taggiveup",
            "s_sleep 2",
            f"buffer_load_dword v{V_FVAL}, off, s[{S_DBG}:{S_DBG+3}], s{S_HOFF} sc1",
            "s_waitcnt vmcnt(0)",
            f"v_readfirstlane_b32 s{S_NEED}, v{V_FVAL}", "s_nop 0", f"s_cmp_eq_u32 s{S_NEED}, 0", "s_cbranch_scc1 L_tagslow",
            "s_branch L_tagok",
            "L_taggiveup:",
            f"s_mov_b32 s{S_BUDGET}, 0",
            "s_branch L_tagok"]

def text_of(x):
    return "s_waitcnt" if isinstance(x, W) else (x.text if isinstance(x, VM) else x)
def kind_of(x):
    t = text_of(x)
    if t.endswith(":"): return "label"
    if t.startswith("v_"): return "valu"
    if t.startswith("ds_"): return "ds"
    if t.startswith("buffer_store"): return "store"
    if t.startswith("buffer_"): return "load"
    return "salu"
def cost_of(x):
    k = kind_of(x); t = text_of(x)
    if k == "label": return 0
    if k == "store": return 20 if "x4" in t else 8
    if k == "load": return 8
    if t.startswith("v_exp"): return 8
    if t.startswith("s_nop"): return 4 * (int(t.split()[1]) + 1)
    if t.startswith("s_cbranch") or t.startswith("s_branch"): return 12
    if t.startswith("s_barrier"): return 8
    return 4
def gap_time(ops):
    t = 4; prev = None
    for o in ops:
        k = kind_of(o)
        if k == "label": continue
        if k == "salu": t += cost_of(o)
        else: t = max(t, 8) + cost_of(o) + (8 if (k != "valu" and prev == "valu") else 0)
        prev = k
    return t

class Stream:
    def __init__(self, ops, first, last, maxper=99):
        self.ops = list(ops); self.first = first; self.last = last; self.maxper = maxper
        self.total = sum(cost_of(o) for o in self.ops); self.done = 0; self.i = 0

def pack(A, B, C, T, streams, novm=(), nosalu=(), light=()):
    out = []; over = 0; lastvm = -99
    for g in range(NG):
        a, b, c, tl = list(A[g]), list(B[g]), list(C[g]), list(T[g])
        cnt = {}; inC = set(); blocked = set()
        while True:
            best = None; bl = None; bsec = None
            for st in streams:
                if st.i >= len(st.ops) or g < st.first: continue
                force = g >= st.last
                if (cnt.get(id(st), 0) >= st.maxper or id(st) in blocked) and not force: continue
                o = st.ops[st.i]; k = kind_of(o); cst = cost_of(o)
                if k == "salu" and g in nosalu:
                    assert not force
                    continue
                if k in ("load", "store") and (g in novm or g - lastvm < OPT["vmgap"]) and not force: continue
                if k in ("load", "store", "ds"):
                    sec = "b" if id(st) not in inC and id(st) not in blocked else "c"
                    if sec == "c" and not force: continue
                elif k == "salu" and not a and cnt.get(id(st), 0) == 0:
                    sec = "a"
                else: sec = "c"
                tgt = st.total * (g - st.first + 1) / (st.last - st.first + 1)
                lag = tgt - st.done
                if not force:
                    if lag < cst / 2 - OPT["ahead"] and cst: continue
                    trial = (a + [o] if sec == "a" else a) + (b + [o] if sec == "b" else b) + (c + [o] if sec == "c" else c) + tl
                    if g in light and gap_time(trial) > 12 and k != "salu" and lag < 40: continue
                    if gap_time(trial) > 16:
                        if not (lag > 24 and gap_time(trial) <= 20): continue
                        if g % 2 == 0: continue
                key = (force, k in ("load", "store"), lag / max(1, (st.last - g + 1)) ** 0.5)
                if best is None or key > bl: best = st; bl = key; bsec = sec
            if best is None: break
            o = best.ops[best.i]
            {"a": a, "b": b, "c": c}[bsec].append(o)
            if bsec == "c": inC.add(id(best))
            if " m0," in text_of(o): blocked.add(id(best))
            if kind_of(o) in ("load", "store"): lastvm = g
            best.i += 1; best.done += cost_of(o); cnt[id(best)] = cnt.get(id(best), 0) + 1
        ops = a + b + c + tl
        tt = gap_time(ops)
        if tt > 16: over += tt - 16
        out.append(ops)
    for st in streams: assert st.i == len(st.ops)
    return out, over

def steady4(k, last=False):
    pl = OPT["pl"]
    t = {
        0: [("post", "kst"), ("cv", "va", 16, 99, 0, 95)],
        1: [("cv", "vb", 0, 30, 0, 95), ("ld", "ka", 0, 44)],
        2: [("cv", "vb", 30, 99, 0, 55), ("pollld", pl, pl + 16), ("vst", 0, 57), ("vst", 1, 65), ("vst", 2, 73), ("vst", 3, 85), ("dmaw", 0, 50)],
        3: [("post", "vst"), ("pollchk", 1), ("ld", "kb", 0, 44), ("cv", "ka", 0, 22, 0, 95), ("dmaw", 8, 74)],
        4: [("cv", "ka", 22, 99, 0, 95)],
        5: [("cv", "kb", 0, 22, 0, 95), ("ld", "va", 8, 50), ("pollld", 2, 10)],
        6: [("cv", "kb", 22, 99, 0, 95), ("pollchk", 1), ("dmaw", 8, 74)],
        7: [("cv", "va", 0, 16, 0, 95), ("ld", "vb", 0, 26), ("kst", 0, 57), ("kst", 1, 65), ("kst", 2, 73), ("kst", 3, 85), ("dmaw", 24, 50)],
    }[k]
    if last:
        dead = {1: ("ld",), 3: ("ld", "cv"), 4: ("cv",), 5: ("cv", "ld"), 6: ("cv",), 7: ("cv", "ld", "kst", "dmaw")}.get(k, ())
        t = [x for x in t if x[0] not in dead]
    return t
def steady_tasks(k, prod=True, poll=True):
    t = []
    if prod:
        if k == 7: t += [("vst", 0, 1), ("vst", 1, 9), ("vst", 2, 17), ("vst", 3, 25), ("ld", "kb", 33, 58), ("cv", "ka", 0, 16, 0, 95), ("dmaw", 59, 88)]
        if k == 0: t += [("cv", "ka", 16, 99, 0, 95)]
        if k == 1: t += [("cv", "kb", 0, 24, 20, 95), ("ld", "va", 0, 44)]
        if k == 2: t += [("cv", "kb", 24, 99, 0, 95)]
        if k == 3: t += [("cv", "va", 0, 22, 0, 95), ("ld", "vb", 0, 44)]
        if k == 4: t += [("cv", "va", 22, 99, 0, 95), ("kst", 0, 41), ("kst", 1, 49), ("kst", 2, 57), ("kst", 3, 65), ("dmaw", 0, 34)]
        if k == 5: t += [("cv", "vb", 0, 22, 0, 95), ("ld", "ka", 0, 44)]
        if k == 6: t += [("cv", "vb", 22, 99, 0, 95)] + ([("pf", 80, 92)] if OPT["pf2"] else [])
    if poll:
        if k == 1 and not prod and OPT["pf2"]: t.append(("pf", 80, 92))
        if k == 0: t.append(("post", "vst"))
        if k == 2: t.append(("pollld", OPT["pl"], OPT["pl"] + 16))
        if k == 3: t += [("pollchk", 1), ("dmaw", 8, 74)]
    return t

POLLSITES = []
GBAR = 4 * (24 - D) - 1
def qk_mfma(t0, g, czero=False):
    qb = (g >> 1) & 3
    w = (g & 1) ^ (qb & 1 if OPT["snake"] else 0)
    F = 2 * (g >> 3) + w
    t = t0 + F // 12; s, tb = kfrag(F % 12)
    d = vr(Sq(t, qb, tb), 4)
    c = ("0" if czero else vr(NEGM(qb), 4)) if (s < 2 and g % 2 == 0) else d
    return f"{MF} {d}, {FR(F)}, {Qf(qb,s)}, {c}"
def pv_mfma(t0, db, qb, w0, first=False):
    w = w0 ^ (qb & 1 if OPT["snake"] else 0)
    d = ar(O(qb, db), 4)
    return f"{MF} {d}, {FR(2*db+w)}, {vr(P(t0+w,qb),4)}, {'0' if (first and w0 == 0) else d}"

def gen_iter(it, tasks=(), dma=None, name=None, endops=(), peel=False, nxt=None, extra_sm=False, nostep=False, extra=(), extra_late=()):
    kind = "q" if it % 2 else "p"
    nk = nxt or ("p" if kind == "q" else "q")
    A = [[] for _ in range(NG)]; B = [[] for _ in range(NG)]; C = [[] for _ in range(NG)]; T = [[] for _ in range(NG)]
    streams = []; novm = set(range(0, NG, 2)); nosalu = set()
    for F in range(24):
        fr = F + D
        if OPT["ab"] == 3 and not peel and (fr >> 1) % 2: continue
        B[4 * F].append(frag_read(kind, fr) if fr < 24 else frag_read(nk, fr - 24))
    for F in range(2, 25, 2):
        A[4 * F - 1].append(f"s_waitcnt lgkmcnt({D-2})")
    smB = softmax_part(it, 1); smA = softmax_part(it + 1, 0)
    if extra_sm: smB = softmax_part(it, 0) + smB
    if kind == "q":
        streams.append(Stream(smB, 0, 50)); streams.append(Stream(smA, 52, 95))
    else:
        streams.append(Stream(smB + smA, 0, 95))
    if endops:
        A[92] += endops[:1]; A[94] += [A[95][0]] + list(endops[1:-1]); A[95] = []; T[95] = list(endops[-1:]); nosalu |= {94, 95}
    if extra: streams.append(Stream(extra, 0, 90))
    if extra_late: streams.append(Stream(extra_late, GBAR + 1, 94))
    if not OPT["prod"]: tasks = ()
    if dma is None:
        w = [t[1:] for t in tasks if t[0] == "dmaw"]
        w = w[0] if w else (0, GBAR - 5)
        p0 = it + 5 if kind == "q" else it + 2
        c_ = "k" if kind == "q" else "v"
        dma = [((c_, p0), (c_, p0 + 1)) + tuple(w)]
    if OPT["ab"] == 4 and not peel: dma = []
    for grp in dma:
        dl = []
        for part, pos in grp[:-2]: dl += dma_tile(part, pos, peel)
        n = max(i for i, x in enumerate(dl) if isinstance(x, VM)) + 1
        streams.append(Stream(dl[:n], grp[-2], grp[-1], maxper=2))
        streams.append(Stream(dl[n:], grp[-1] + 1, min(93 if endops else 95, grp[-1] + 12), maxper=2))
    nj = ((it + 2) // 2) if nk == "q" else ((it - 1) // 2 if kind == "q" else it // 2)
    wtags = [("dk" if nk == "q" else "dv", nj % 4)]
    if nk == kind:
        rs_ = rd_step(nk); streams.append(Stream(rs_[:5], 40, 70, maxper=1)); C[GBAR] += rs_[5:]
    elif not nostep:
        streams.append(Stream(rd_step(nk), 30, GBAR - 3, maxper=1))
    for t in tasks:
        k_ = t[0]
        if OPT["ab"] == 6 and k_ in ("cv", "kst", "vst"): continue
        if OPT["ab"] in (7, 9) and k_ in ("kst", "vst"): continue
        if OPT["ab"] == 8 and k_ in ("kst", "vst", "ld", "ldn"): continue
        if k_ == "cv":
            _, cv, h, buf, rs, outb = HT[t[1]]
            ops = cv(h, buf, rs, outb)[t[2]:t[3]]
            if OPT["ab"] == 9: ops = [x for x in ops if not x.startswith("v_cvt_f32_i32")]
            if t[2] == 0: ops = [W(t[1])] + ops
            streams.append(Stream(ops, t[4], t[5]))
        elif k_ in ("kst", "vst"):
            grp = k_st(t[1], BX) if k_ == "kst" else v_st(t[1], BZ)
            g = t[2]; assert g % 4 == 1 and not B[g], g
            B[g].append(grp[-1]); novm |= set(range(g - OPT["sb"], g + OPT["sa"] + 1))
            if grp[:-1]: streams.append(Stream(grp[:-1], max(0, g - 5), g - 1))
        elif k_ in ("ld", "ldn"):
            ld, _, h, buf, rs, _o = HT[t[1]]
            adv = {"ka": k_adv(), "va": v_adv()}.get(t[1], []) if k_ == "ld" else []
            streams.append(Stream(adv + ld(h, buf, rs, t[1]), t[2], t[3], maxper=1))
        elif k_ == "post":
            wtags += list(t[1:])
            streams.append(Stream(flag_post(), GBAR + 1, 93, maxper=1))
        elif k_ == "pf":
            streams.append(Stream([VM("pf", f"buffer_load_dword v15, v{V_DMA}, s[{S_DBG}:{S_DBG+3}], s{S_HOFF} offen")], t[1], t[2]))
        elif k_ == "pollld": streams.append(Stream(poll_load(), t[1], t[2], maxper=1))
        elif k_ == "pollchk":
            ps = len(POLLSITES); POLLSITES.append(ps)
            g = t[1]; assert g % 4 == 1 and not (GBAR - 6 <= g <= GBAR)
            pt = poll_test()
            A[g] += [W("poll")]; T[g] += pt[:2]; novm |= {g, g + 4}
            A[g + 3] += [pt[3]]; A[g + 4] += [f"s_cbranch_scc1 L_pollslow{ps}", f"L_pollok{ps}:"]; nosalu |= {g + 3, g + 4}
            A[g + 5] += [f"s_add_u32 s{S_NEED}, s{S_NEED}, 1"]
    A[GBAR - 1] += [W(*wtags)]; novm |= {GBAR}
    A[GBAR - 2] += A[GBAR]; A[GBAR] = ["s_barrier"]
    if endops:
        for st_ in streams: st_.last = min(st_.last, 94)
    if OPT["twop"]:
        novm |= set(range(7, NG, 8))
        fill, over = pack(A, B, C, T, streams, novm, nosalu)
        vg = {g for g in range(NG) if any(kind_of(o) == "load" for o in fill[g])}
        for st_ in streams: st_.i = 0; st_.done = 0
        fill2, over2 = pack(A, B, C, T, streams, novm | (set(range(NG)) - vg), nosalu, {g - 1 for g in vg})
        def pen(f): return sum(4 for g in range(1, NG) if any(kind_of(o) == "load" for o in f[g]) and gap_time(f[g - 1]) > 12)
        if over2 + pen(fill2) < over + pen(fill): fill, over = fill2, over2
        over += pen(fill)
    else:
        fill, over = pack(A, B, C, T, streams, novm, nosalu)
    if over: print(f"iter {name or it}: over budget by {over} cycles", file=sys.stderr)
    out = istamp(name or str(it))
    for g in range(NG):
        if kind == "q": out.append(qk_mfma(it + 1, g))
        else: out.append(pv_mfma(it - 2, g >> 3, (g >> 1) & 3, g & 1, first=(peel and it == 2)))
        out += fill[g]
    return with_nop(out)

WA = [V_RS[0], V_RS[0] + 1]; RA = [V_RS[0] + 2, V_RS[0] + 3, V_RS[0] + 4]; GA = V_RS[0] + 5; TA = V_RS[0] + 6
RL = [V_CT, V_CT + 2, V_CT + 4, V_CT + 6]
def epi_prep():
    fl = [f"v_bfe_u32 v{TA}, v{V_DMA}, 4, 6", f"v_lshlrev_b32 v{GA}, 4, v{TA}",
          f"s_lshl_b32 s24, s{S_WAVE}, 1", "s_min_u32 s24, s24, 5", f"s_mul_i32 s24, s24, {STAGE}"]
    fl += [f"v_and_b32 v{WA[0]}, 15, v{TA}", f"v_lshrrev_b32 v{WA[1]}, 4, v{TA}", f"v_lshlrev_b32 v{WA[1]}, 1, v{WA[1]}",
           f"v_and_b32 v{TA+1}, 7, v{TA}", f"v_xor_b32 v{WA[1]}, v{WA[1]}, v{TA+1}", f"v_mul_u32_u24 v{WA[0]}, 384, v{WA[0]}",
           f"v_lshl_add_u32 v{WA[0]}, v{WA[1]}, 4, v{WA[0]}", f"v_add_u32 v{WA[0]}, s24, v{WA[0]}", f"v_xor_b32 v{WA[1]}, 16, v{WA[0]}"]
    for b in range(3):
        fl += [f"v_add_u32 v{RA[b]}, {64*b}, v{TA}", f"v_mul_u32_u24 v{TA+1}, 2731, v{RA[b]}", f"v_lshrrev_b32 v{TA+1}, 16, v{TA+1}",
               f"v_xor_b32 v{RA[b]}, v{RA[b]}, v{TA+1}", f"v_lshlrev_b32 v{RA[b]}, 4, v{RA[b]}", f"v_add_u32 v{RA[b]}, s24, v{RA[b]}"]
    for sw in ("v_permlane16_swap_b32", "v_permlane32_swap_b32"):
        fl += [f"v_mov_b32 v{RL[q]}, v{V_L[q]}" for q in range(4)]
        fl += [f"{sw} v{V_L[q]}, v{RL[q]}" for q in range(4)]
        fl += [f"v_add_f32 v{V_L[q]}, v{V_L[q]}, v{RL[q]}" for q in range(4)]
    fl += [f"v_rcp_f32 v{RL[q]}, v{V_L[q]}" for q in range(4)]
    fl += [f"s_lshl_b32 s24, s{S_QB}, 2", f"s_add_u32 s24, s24, s{S_WAVE}", f"s_mul_i32 s24, s24, {STAGE}"]
    return fl

def gen_tail():
    t0 = 62
    p = []
    def pv_pass(qbs, second):
        mf = []
        for db in range(12):
            for i, (qb, w) in enumerate([(q, w) for q in qbs for w in (0, 1)]):
                m = [pv_mfma(t0, db, qb, w)]
                if i in (0, 2):
                    fr = 2 * db + (i >> 1) + D
                    if fr < 24: m.append(frag_read("p", fr))
                    elif not second: m.append(frag_read("p", fr - 24))
                if i == 3 and not (second and db == 11):
                    n = D - 2
                    if second and 2 * db + 2 + D > 24: n = max(0, 24 - (2 * db + 4))
                    m.append(f"s_waitcnt lgkmcnt({n})")
                mf.append(m)
        return mf
    def inter(mf, fill):
        out = []; fill = list(fill)
        for m in mf:
            cur = m[1:]
            while fill and gap_time(cur + [fill[0]]) <= 16: cur.append(fill.pop(0))
            out += m[:1] + cur
        return out, fill
    chk = [f"v_max3_f32 v{V_T}, v{V_L[0]}, v{V_L[1]}, v{V_L[2]}", f"v_max_f32 v{V_T}, v{V_T}, v{V_L[3]}",
           f"s_mov_b32 s24, 0x{f32bits(2.0**OPT['thr']):08x}", f"v_cmp_lt_f32 vcc, s24, v{V_T}"]
    code, rest = inter(pv_pass((0, 1), False), softmax_part(63, 1) + chk)
    p += code + rest + ["s_nop 1", "s_cbranch_vccnz L_slow"]
    code, rest = inter(pv_pass((2, 3), True), epi_prep())
    p += code + rest + ["L_epi:"]
    RB = [128 + 4 * i for i in range(8)]
    pend = []; k = 0; nrb = 0
    for qb in range(4):
        for n in range(3):
            for half in range(2):
                ob = 64 + 8 * (k % 8); k += 1
                for tt in range(8):
                    r, e = divmod(8 * half + tt, 4)
                    p.append(f"v_accvgpr_read_b32 v{ob+tt}, a{O(qb,3*e+n)+r}")
                for i in range(4):
                    p.append(f"v_pk_mul_f32 v[{ob+2*i}:{ob+2*i+1}], v[{ob+2*i}:{ob+2*i+1}], v[{RL[qb]}:{RL[qb]+1}] op_sel_hi:[1,0]")
                for i in range(4):
                    p.append(f"v_cvt_pk_bf16_f32 v{ob+i}, v{ob+2*i}, v{ob+2*i+1}")
                if pend:
                    i6, reg, off = pend.pop(0)
                    p.append(f"s_waitcnt lgkmcnt({(5 - i6) + (2 * n + half)})")
                    p.append(f"buffer_store_dwordx4 v[{reg}:{reg+3}], v{GA}, s[{S_OUT}:{S_OUT+3}], s24 offen offset:{off}{OF}")
                    if i6 % 3 == 2: p.append("s_add_u32 s24, s24, 3072")
                p.append(f"ds_write_b128 v{WA[half]}, v[{ob}:{ob+3}] offset:{qb*6144 + n*128}")
        for i6 in range(6):
            i = 6 * qb + i6
            reg = RB[nrb % 8]; nrb += 1
            p.append(f"ds_read_b128 v[{reg}:{reg+3}], v{RA[i%3]} offset:{(i//3)*3072}")
            pend.append((i6, reg, (i6 % 3) * 1024))
    for i6, reg, off in pend:
        p.append(f"s_waitcnt lgkmcnt({5 - i6})")
        p.append(f"buffer_store_dwordx4 v[{reg}:{reg+3}], v{GA}, s[{S_OUT}:{S_OUT+3}], s24 offen offset:{off}{OF}")
        if i6 % 3 == 2: p.append("s_add_u32 s24, s24, 3072")
    return p

V_RD2 = 14
def epi_addr():
    fl = [f"v_bfe_u32 v{TA}, v{V_DMA}, 4, 6", f"v_lshlrev_b32 v{GA}, 4, v{TA}",
          f"s_lshl_b32 s24, s{S_WAVE}, 1", "s_min_u32 s24, s24, 5", f"s_mul_i32 s24, s24, {STAGE}"]
    fl += [f"v_and_b32 v{WA[0]}, 15, v{TA}", f"v_lshrrev_b32 v{WA[1]}, 4, v{TA}", f"v_lshlrev_b32 v{WA[1]}, 1, v{WA[1]}",
           f"v_and_b32 v{TA+1}, 7, v{TA}", f"v_xor_b32 v{WA[1]}, v{WA[1]}, v{TA+1}", f"v_mul_u32_u24 v{WA[0]}, 384, v{WA[0]}",
           f"v_lshl_add_u32 v{WA[0]}, v{WA[1]}, 4, v{WA[0]}", f"v_add_u32 v{WA[0]}, s24, v{WA[0]}", f"v_xor_b32 v{WA[1]}, 16, v{WA[0]}"]
    for b in range(3):
        fl += [f"v_add_u32 v{RA[b]}, {64*b}, v{TA}", f"v_mul_u32_u24 v{TA+1}, 2731, v{RA[b]}", f"v_lshrrev_b32 v{TA+1}, 16, v{TA+1}",
               f"v_xor_b32 v{RA[b]}, v{RA[b]}, v{TA+1}", f"v_lshlrev_b32 v{RA[b]}, 4, v{RA[b]}", f"v_add_u32 v{RA[b]}, s24, v{RA[b]}"]
    return fl
def epi_out0():
    return [f"s_lshl_b32 s24, s{S_QB}, 2", f"s_add_u32 s24, s24, s{S_WAVE}", f"s_mul_i32 s24, s24, {STAGE}"]
def epi_l(qs):
    fl = []
    for sw in ("v_permlane16_swap_b32", "v_permlane32_swap_b32"):
        fl += [f"v_mov_b32 v{RL[q]}, v{V_L[q]}" for q in qs] + ["s_nop 0"]
        fl += [f"{sw} v{V_L[q]}, v{RL[q]}" for q in qs] + ["s_nop 0"]
        fl += [f"v_add_f32 v{V_L[q]}, v{V_L[q]}, v{RL[q]}" for q in qs]
    return fl + [f"v_rcp_f32 v{RL[q]}, v{V_L[q]}" for q in qs] + ["s_nop 0"]
class LG:
    def __init__(self, tag): self.tag = tag
class DS:
    def __init__(self, tag, text): self.tag = tag; self.text = text
def ds_resolve(seq):
    out = []; ds = []
    for x in seq:
        if isinstance(x, DS): ds.append(x.tag); out.append(x.text)
        elif isinstance(x, LG):
            n = len(ds) - 1 - max(i for i, t in enumerate(ds) if t == x.tag)
            out.append(f"s_waitcnt lgkmcnt({min(n, 15)})")
        else:
            assert not (isinstance(x, str) and x.startswith("ds_")), x
            out.append(x)
    return out
def epi_q(qb, temps, pk, pend):
    RB = [128 + 4 * i for i in range(8)]
    p = []
    def store(i6, reg, q):
        l = [LG(("rb", q, i6)), f"buffer_store_dwordx4 v[{reg}:{reg+3}], v{GA}, s[{S_OUT}:{S_OUT+3}], s24 offen offset:{(i6%3)*1024}{OF}"]
        return l + (["s_add_u32 s24, s24, 3072"] if i6 % 3 == 2 else [])
    pend = list(pend)
    if qb is None:
        for x in pend: p += store(*x)
        return p, []
    for c in range(6):
        n, half = divmod(c, 2)
        ob = temps[(6 * qb + c) % len(temps)]
        for tt in range(8):
            r, e = divmod(8 * half + tt, 4)
            p.append(f"v_accvgpr_read_b32 v{ob+tt}, a{O(qb,3*e+n)+r}")
        if pk: p += [f"v_pk_mul_f32 v[{ob+2*i}:{ob+2*i+1}], v[{ob+2*i}:{ob+2*i+1}], v[{RL[qb]}:{RL[qb]+1}] op_sel_hi:[1,0]" for i in range(4)]
        else: p += [f"v_mul_f32 v{ob+i}, v{ob+i}, v{RL[qb]}" for i in range(8)]
        p += [f"v_cvt_pk_bf16_f32 v{ob+i}, v{ob+2*i}, v{ob+2*i+1}" for i in range(4)]
        if pend: p += store(*pend.pop(0))
        p.append(DS("w", f"ds_write_b128 v{WA[half]}, v[{ob}:{ob+3}] offset:{qb*6144 + n*128}"))
    newp = []
    for i6 in range(6):
        i = 6 * qb + i6; reg = RB[i % 8]
        p.append(DS(("rb", qb, i6), f"ds_read_b128 v[{reg}:{reg+3}], v{RA[i%3]} offset:{(i//3)*3072}"))
        newp.append((i6, reg, qb))
    return p, newp

def gen_tail2():
    passes = [(60, (0, 1)), (62, (0, 1)), (60, (2, 3)), (62, (2, 3))]
    def rd(i):
        ps, f = divmod(i, 24)
        va = V_RD if passes[ps][0] == 60 else V_RD2
        return DS(("f", i), f"ds_read_b128 {FR(f)}, v{va} offset:{(f&1)*12288 + (f>>1)*1024}")
    def tx(x): return x.text if isinstance(x, DS) else ("s_waitcnt" if isinstance(x, LG) else x)
    def run(ps, fill, lim):
        t0, qbs = passes[ps]
        out = []; fill = list(fill)
        for db in range(12):
            for i, (qb, w) in enumerate([(q, w) for q in qbs for w in (0, 1)]):
                out.append(pv_mfma(t0, db, qb, w))
                cur = []
                gi = 24 * ps + 2 * db
                if i in (0, 2) and gi + (i >> 1) + D < 96: cur.append(rd(gi + (i >> 1) + D))
                if i == 3 and gi + 3 < 96: cur.append(LG(("f", gi + 3)))
                L_ = 16 if i % 2 == 0 else lim
                while fill and gap_time([tx(x) for x in cur + [fill[0]]]) <= L_ + (12 if (tx(fill[0]).startswith(("buffer", "ds_")) and i % 2) else 0):
                    cur.append(fill.pop(0))
                out += cur
        return out, fill
    thr = f"s_mov_b32 s{S_TMP}, 0x{f32bits(2.0**OPT['thr']):08x}"
    seq = [DS(("f", i), "") for i in range(D)]
    c, r = run(0, softmax_part(63, 0), 16); seq += c + r + ["s_nop 1"]
    c, r = run(1, [f"v_max_f32 v{V_VST}, v{V_L[0]}, v{V_L[1]}", thr, f"v_cmp_lt_f32 vcc, s{S_TMP}, v{V_VST}"] + softmax_part(62, 1), 16)
    seq += c + r + ["s_cbranch_vccnz L_slow"]
    tempsA = [BX, BX + 8, BY, BY + 8]
    e0, pend = epi_q(0, tempsA, False, []); e1, pend = epi_q(1, tempsA, False, pend)
    ef, pend = epi_q(None, tempsA, False, pend); e1 += ef
    c, r = run(2, softmax_part(63, 1) + [f"v_max_f32 v{V_VST}, v{V_L[2]}, v{V_L[3]}", f"v_cmp_lt_f32 vcc, s{S_TMP}, v{V_VST}"] + epi_l((0, 1)) + epi_out0() + ["MARK"] + e0 + e1, OPT["tden"])
    if "MARK" in r:
        k = r.index("MARK"); c += r[:k]; r = r[k + 1:]
    c = [x for x in c if x != "MARK"]
    seq += c + ["s_nop 1", "s_cbranch_vccnz L_slow"]
    c, r = run(3, r, OPT["tden"]); seq += c + r
    seq += epi_l((2, 3))
    tempsB = [64 + 8 * i for i in range(8)]
    e2, pend = epi_q(2, tempsB, True, pend); e3, pend = epi_q(3, tempsB, True, pend); e4, _ = epi_q(None, tempsB, True, pend)
    seq += e2 + e3 + e4
    return [x for x in ds_resolve(seq) if x != ""]
def slow_epi():
    seq = epi_l((0, 1)) + epi_l((2, 3)) + epi_out0(); pend = []
    for q in (0, 1, 2, 3, None):
        e, pend = epi_q(q, [64 + 8 * i for i in range(8)], True, pend); seq += e
    return ds_resolve(seq)

def gen_slow():
    KF = 64; VF = 112; SS = 160; PP = 224; M = [240, 241, 242, 243]; KA = [244, 245]; LA = 246; t = V_T
    p = ["L_slow:", "s_waitcnt vmcnt(0) lgkmcnt(0)", "s_nop 15"]
    for i in range(192): p.append(f"v_accvgpr_write_b32 a{i}, 0")
    for q in range(4): p += [f"v_mov_b32 v{V_L[q]}, 0", f"v_mov_b32 v{M[q]}, 0xff7fffff"]
    p += [f"v_subrev_u32 v{KA[0]}, s{S_RK}, v{V_RDK[0]}", f"v_subrev_u32 v{KA[1]}, s{S_RK}, v{V_RDK[1]}", f"v_subrev_u32 v{LA}, s{S_RV}, v{V_RD}",
          f"s_mov_b32 s{S_PT}, 0", "L_slowloop:"]
    for i in range(1, 5): p.append(f"s_add_u32 s{S_PT+i}, s{S_PT}, {[0, 6144, 12288, 16384, 20480][i]}")
    for f in range(12):
        s, tb = kfrag(f)
        p.append(f"buffer_load_dwordx4 v[{KF+4*f}:{KF+4*f+3}], v{KA[s&1]}, s[{S_WS}:{S_WS+3}], s{S_PT+tb} offen offset:{(s>>1)*128} sc1")
    for db in range(12):
        p.append(f"buffer_load_dwordx4 v[{VF+4*db}:{VF+4*db+3}], v{LA}, s[{S_WS}:{S_WS+3}], s{S_PT+2+db//4} offen offset:{(db%4)*1024} sc1")
    p.append("s_waitcnt vmcnt(12)")
    for f in range(12):
        s, tb = kfrag(f)
        for qb in range(4):
            d = vr(SS + 8 * qb + 4 * tb, 4)
            p.append(f"{MF} {d}, v[{KF+4*f}:{KF+4*f+3}], {Qf(qb,s)}, {'0' if s == 0 else d}")
    p.append("s_nop 9")
    for qb in range(4):
        sb = SS + 8 * qb
        p += [f"v_max3_f32 v{t}, v{sb}, v{sb+1}, v{sb+2}", f"v_max3_f32 v{t}, v{t}, v{sb+3}, v{sb+4}",
              f"v_max3_f32 v{t}, v{t}, v{sb+5}, v{sb+6}", f"v_max3_f32 v{t}, v{t}, v{sb+7}, v{M[qb]}"]
        p += xlane("v_max_f32", t)
        p += [f"v_sub_f32 v{t+1}, v{M[qb]}, v{t}", f"v_exp_f32 v{t+1}, v{t+1}", f"v_mov_b32 v{M[qb]}, v{t}"]
        for i in range(8): p.append(f"v_sub_f32 v{sb+i}, v{sb+i}, v{t}")
        for i in range(8): p.append(f"v_exp_f32 v{sb+i}, v{sb+i}")
        p.append(f"v_mul_f32 v{V_L[qb]}, v{V_L[qb]}, v{t+1}")
        for i in range(8): p.append(f"v_add_f32 v{V_L[qb]}, v{V_L[qb]}, v{sb+i}")
        for i in range(4): p.append(f"v_cvt_pk_bf16_f32 v{PP+4*qb+i}, v{sb+2*i}, v{sb+2*i+1}")
        for i in range(48):
            a = O(qb, 0) + i; tt = t + 2 + (i % 2)
            p += [f"v_accvgpr_read_b32 v{tt}, a{a}", f"v_mul_f32 v{tt}, v{tt}, v{t+1}", f"v_accvgpr_write_b32 a{a}, v{tt}"]
    p += ["s_waitcnt vmcnt(0)", "s_nop 1"]
    for db in range(12):
        for qb in range(4):
            d = ar(O(qb, db), 4)
            p.append(f"{MF} {d}, v[{VF+4*db}:{VF+4*db+3}], v[{PP+4*qb}:{PP+4*qb+3}], {d}")
    p += [f"s_add_u32 s{S_PT}, s{S_PT}, {STAGE}", f"s_cmp_lt_u32 s{S_PT}, {HEADBYTES}", "s_nop 7", "s_cbranch_scc1 L_slowloop"]
    if OPT["tail2"]: p += slow_epi() + ["s_branch L_fin"]
    else: p += epi_prep() + ["s_branch L_epi"]
    return p

def interleave(mf, fill):
    out = []; fill = list(fill)
    for m in mf:
        out += m if isinstance(m, list) else [m]
        cur = []
        while fill and gap_time(cur + [fill[0]]) <= 16:
            cur.append(fill.pop(0))
        out += cur
    return out, fill

def xlane(op, t):
    l = []
    for sw in ("v_permlane16_swap_b32", "v_permlane32_swap_b32"):
        l += [f"v_mov_b32 v{t+1}, v{t}", "s_nop 1", f"{sw} v{t}, v{t+1}", "s_nop 1", f"{op} v{t}, v{t}, v{t+1}"]
    return l

def resolve(seq):
    vm = []
    for x in seq:
        if isinstance(x, VM): vm.append(x.tag)
        elif isinstance(x, W):
            best = None
            for tag in x.tags:
                n = 0; found = False
                for t in reversed(vm):
                    if t == tag: found = True; break
                    n += 1
                if found: best = n if best is None else min(best, n)
            if best is not None:
                x.n = best if getattr(x, "n", None) is None else min(x.n, best)
def fin(seq):
    out = []
    for x in seq:
        if isinstance(x, W):
            if OPT["ab"] and getattr(x, "n", None) is None: x.n = 63
            assert getattr(x, "n", None) is not None, x.tags
            out.append(f"s_waitcnt vmcnt({min(x.n, 63)})")
        elif isinstance(x, VM): out.append(x.text)
        else: out.append(x)
    return out
def srd(p, s, lo, hi, off_s, size):
    p += [f"s_add_u32 s{s}, s{lo}, s{off_s}", f"s_addc_u32 s{s+1}, s{hi}, 0", f"s_mov_b32 s{s+2}, {size}", f"s_mov_b32 s{s+3}, 0x20000"]
def sprinkle(code, extra):
    out = []; n = len(code); m = len(extra); j = 0
    for i, x in enumerate(code):
        out.append(x)
        while j < m and (i + 1) * m >= (j + 1) * n - n // 2:
            out.append(extra[j]); j += 1
    return out + extra[j:]

def gen_main():
    p = []
    p += [f"{NAME}_kernel:", "s_cmp_ge_u32 s2, 256", "s_cbranch_scc1 L_done",
          "s_load_dwordx16 s[40:55], s[0:1], 0", "s_load_dwordx4 s[16:19], s[0:1], 64"]
    if OPT["stamp"]:
        p += ["s_memtime s[100:101]", "s_memrealtime s[98:99]"]
    if OPT["dbgout"]:
        p += ["s_memrealtime s[98:99]"]
    p += [f"s_and_b32 s{S_HEAD}, s2, 7", f"s_lshr_b32 s{S_QB}, s2, 3", f"s_lshr_b32 s24, s{S_QB}, 3", f"s_lshl_b32 s{S_HEAD}, s{S_HEAD}, 2",
          f"s_add_u32 s{S_HEAD}, s{S_HEAD}, s24", f"s_and_b32 s{S_QB}, s{S_QB}, 7"]
    if OPT["map"] == 1:
        p += [f"s_lshr_b32 s{S_HEAD}, s2, 3", f"s_and_b32 s{S_QB}, s2, 7"]
    VQD = 232
    if True:
        p += ["s_getpc_b64 s[60:61]", "L_pc:", f"s_sub_u32 s60, s60, L_pc-{NAME}_kernel", "s_subb_u32 s61, s61, 0",
              f"s_mov_b32 s62, L_slow-{NAME}_kernel", "s_mov_b32 s63, 0x20000",
              "s_lshr_b32 s22, s2, 3", "s_lshl_b32 s22, s22, 12",
              "v_lshlrev_b32 v30, 4, v0",
              VM("pf", "buffer_load_dwordx4 v[128:131], v30, s[60:63], s22 offen")]
    p += ["v_lshrrev_b32 v24, 6, v0",
          "v_and_b32 v25, 63, v0",
          f"v_readfirstlane_b32 s{S_WAVE}, v24",
          f"v_lshlrev_b32 v{V_RD}, 4, v25",
          "v_mul_u32_u24 v26, 43, v25", "v_lshrrev_b32 v26, 10, v26",
          "v_mul_u32_u24 v27, 24, v26",
          "v_sub_u32 v27, v25, v27",
          "v_lshrrev_b32 v28, 1, v24",
          "v_and_b32 v29, 1, v24",
          "v_lshlrev_b32 v30, 4, v29",
          "v_lshl_add_u32 v30, v28, 2, v30",
          "v_add_u32 v30, v30, v26",
          "v_mul_u32_u24 v30, 768, v30",
          "v_lshrrev_b32 v48, 1, v26", "v_lshlrev_b32 v48, 30, v48",
          "v_lshl_add_u32 v30, v27, 4, v30", f"v_or_b32 v{V_KLD}, v30, v48",
          f"v_lshl_or_b32 v{V_KSC}, v27, 3, v48",
          "v_mul_u32_u24 v30, 6144, v24",
          f"v_add3_u32 v{V_VLD}, v30, v{V_RD}, v48"]
    for sd, size in ((S_QK, HEADBYTES), (S_QV, HEADBYTES), (S_KS, 12288), (S_KZ, 12288), (S_VS, 4096), (S_VZ, 4096)):
        p += [f"s_mov_b32 s{sd+2}, {size}", f"s_mov_b32 s{sd+3}, 0x20000"]
    p += [f"s_mul_i32 s{S_PK0}, s{S_QB}, {STAGE}", f"s_add_u32 s{S_PK1}, s{S_PK0}, 6144", f"s_mov_b32 s{S_PV0}, s{S_PK0}",
          f"s_lshr_b32 s{S_PKS}, s{S_QB}, 1", f"s_mul_i32 s{S_PKS}, s{S_PKS}, 384", f"s_lshl_b32 s{S_PVS}, s{S_QB}, 6",
          f"s_lshl_b32 s24, s{S_WAVE}, 4", f"s_add_u32 s{S_PVS}, s{S_PVS}, s24",
          f"s_mul_i32 s24, s{S_HEAD}, {HEADBYTES}", f"s_mul_i32 s22, s{S_HEAD}, 12288", f"s_lshl_b32 s23, s{S_HEAD}, 12"]
    p += ["s_waitcnt lgkmcnt(0)"] + istamp("karg", True)
    def base(sd, lo, off): return [f"s_add_u32 s{sd}, s{lo}, s{off}", f"s_addc_u32 s{sd+1}, s{lo+1}, 0"]
    p += base(S_KS, 46, 22) + base(S_KZ, 48, 22) + base(S_QK, 42, 24)
    p += k_ld(0, 64, 32, "k0a") + istamp("k0a-iss", True) + k_ld(1, 80, 36, "k0b") + istamp("k0b-iss", True)
    p += base(S_VS, 50, 23) + base(S_VZ, 52, 23) + base(S_QV, 44, 24)
    p += [f"s_mov_b32 s{S_DBG}, s16", f"s_mov_b32 s{S_DBG+1}, s17", f"s_add_u32 s{S_PV1}, s{S_PK0}, 3072", f"s_add_u32 s{S_PV2}, s{S_PK0}, 6144"]
    p += v_ld(0, 96, 40, "v0a") + v_ld(1, 112, 44, "v0b") + istamp("v0-iss", True)
    p += [f"v_mov_b32 v{V_T}, 0", f"v_mov_b32 v{V_T+1}, {RING}", f"ds_write_b32 v{V_T+1}, v{V_T}"]
    srd(p, S_WS, 18, 19, 24, HEADBYTES)
    p += [f"s_lshl_b32 s24, s{S_HEAD}, 10", f"s_add_u32 s24, s24, {FLAG_OFF}"]
    srd(p, S_FLG, 18, 19, 24, 8 * FST)
    p += ["v_mul_u32_u24 v30, 3072, v24", f"v_add_u32 v{V_DMA}, v30, v{V_RD}"]
    p += [f"s_mul_i32 s24, s{S_HEAD}, 786432"]
    srd(p, S_OUT, 54, 55, 24, 786432)
    p += ["s_waitcnt lgkmcnt(0)"]
    p += [f"s_or_b32 s{S_RET}, s{S_QB}, s{S_WAVE}", f"s_cmp_lg_u32 s{S_RET}, 0", "s_cbranch_scc1 L_notleader0",
          ] + smem_flags() + ["L_notleader0:"] + istamp("pre-bar0", True) + ["s_barrier"] + istamp("bar0", True)
    srd(p, S_Q, 40, 41, 24, 786432)
    p += [f"s_mov_b32 s{S_DBG+2}, 256", f"s_mov_b32 s{S_DBG+3}, 0x20000"]
    p += ["v_lshl_add_u32 v30, v24, 3, v26",
          "v_mul_u32_u24 v30, 384, v30",
          "v_lshlrev_b32 v31, 2, v29",
          "v_xor_b32 v31, v27, v31",
          "v_lshl_add_u32 v30, v31, 4, v30", f"v_or_b32 v{V_KST}, v30, v48",
          "v_lshlrev_b32 v30, 8, v24",
          "v_add_u32 v30, 12288, v30",
          "v_lshrrev_b32 v31, 4, v25", "v_lshl_add_u32 v30, v31, 10, v30", "v_and_b32 v31, 15, v25",
          "v_lshl_add_u32 v30, v31, 4, v30", f"v_or_b32 v{V_VST}, v30, v48"]
    p += [f"s_lshl_b32 s{S_HOFF}, s{S_HEAD}, 3", f"s_mul_i32 s24, s{S_QB}, {FST}",
          f"v_lshl_add_u32 v{V_FLAG}, v0, 2, s24", f"v_cmp_lt_u32 vcc, {31 if OPT['fl'] else 0}, v0", "v_mov_b32 v30, 0x40000000", "s_nop 0",
          f"v_cndmask_b32 v{V_FLAG}, v{V_FLAG}, v30, vcc",
          f"v_mov_b32 v{V_FVAL}, 0"]
    p += [f"s_mul_i32 s{S_DMK}, s{S_WAVE}, 3072", f"s_add_u32 s{S_DMK}, s{S_DMK}, 12288", f"s_add_u32 s{S_DMV}, s{S_DMK}, {STAGE}",
          f"s_add_u32 s24, s{S_QB}, 1", "s_and_b32 s24, s24, 7", f"s_mul_i32 s{S_GOFFK}, s24, {STAGE}", f"s_add_u32 s{S_GOFF}, s{S_GOFFK}, 12288",
          f"s_mov_b32 s{S_RK}, 0", f"s_mov_b32 s{S_RV}, {STAGE}", f"v_add_u32 v{V_RD}, {STAGE}, v{V_RD}",
          f"s_mov_b32 s{S_CS}, 0x{f32bits(CSCALE):08x}", f"s_mov_b32 s{S_MASK}, 0xffff0000",
          f"s_mov_b32 s{S_BUDGET}, 100000"]
    p += ["v_and_b32 v26, 15, v25", "v_lshrrev_b32 v27, 4, v25", "v_bfe_u32 v28, v25, 1, 3",
          "v_xor_b32 v29, v27, v28", "v_mul_u32_u24 v30, 384, v26", f"v_lshl_add_u32 v{V_RDK[0]}, v29, 4, v30",
          f"v_xor_b32 v{V_RDK[1]}, 64, v{V_RDK[0]}"]
    p += ["v_lshrrev_b32 v29, 1, v27", "v_xor_b32 v29, v29, v28", "v_lshl_add_u32 v31, v29, 4, v30",
          "v_and_b32 v29, 1, v27", "v_lshl_add_u32 v31, v29, 3, v31",
          ]
    p += [f"s_add_u32 s{S_TMP}, s{S_WAVE}, 3", f"s_mul_i32 s{S_TMP}, s{S_TMP}, {STAGE}", f"s_add_u32 s{S_TP}, s{S_TMP}, 12288",
          f"s_cmp_eq_u32 s{S_WAVE}, 3", f"s_cselect_b32 s{S_TMP}, {STAGE + 12288}, s{S_TMP}", f"s_cselect_b32 s{S_TP}, {RING + 128}, s{S_TP}"]
    p += [f"s_lshl_b32 s24, s{S_QB}, 2", f"s_add_u32 s24, s24, s{S_WAVE}", f"s_mul_i32 s24, s24, {STAGE}"]
    for b in range(6):
        p += [f"v_add_u32 v26, {64*b}, v25", "v_mul_u32_u24 v27, 2731, v26", "v_lshrrev_b32 v27, 17, v27",
              "v_and_b32 v27, 7, v27", "v_xor_b32 v26, v26, v27", f"v_lshlrev_b32 v{VQD+b}, 4, v26", f"v_add_u32 v{VQD+b}, s24, v{VQD+b}"]
    p += istamp("addr", True)
    def q_dma(lst):
        l = []
        for i in lst:
            a, b = divmod(i, 6)
            l += [f"s_add_u32 m0, s{S_TMP if i < 12 else S_TP}, {(i%12)*1024}", f"s_mov_b32 s24, {a*6144}",
                  VM(("q", a), f"buffer_load_dwordx4 v{VQD+b}, s[{S_Q}:{S_Q+3}], s24 offen{NTQ} lds")]
        return l
    p += [f"s_cmp_lg_u32 s{S_RET}, 0", "s_cbranch_scc1 L_notleader", "s_waitcnt lgkmcnt(0)", "s_mov_b32 s24, 1"]
    for i in range(8):
        p += [f"s_lshr_b32 s{S_PT+i}, s{S_PT+i}, 8", f"s_min_u32 s{S_PT+i}, s{S_PT+i}, 31", f"s_bitset1_b32 s24, s{S_PT+i}"]
    p += ["s_ff0_i32_b32 s24, s24", "s_lshl_b32 s24, s24, 8", f"v_mov_b32 v{V_POLL}, s24",
          "s_mov_b64 exec, 1", f"buffer_store_dword v{V_POLL}, off, s[{S_DBG}:{S_DBG+3}], s{S_HOFF} sc1", "s_mov_b64 exec, -1",
          "L_notleader:"]
    def own_k(b):
        l = []
        for j in range(4):
            l += k_st(j, b, "st0")
            va = V_KST if j == 0 else V_KA + (j & 1)
            l += ["s_mov_b64 exec, s[62:63]", f"ds_write_b128 v{va}, v[{b+4*j}:{b+4*j+3}] offset:{j*768}", "s_mov_b64 exec, -1"]
        return l
    def own_v(b):
        l = [x for e in range(4) for x in v_st(e, b, "st0")]
        l += ["s_mov_b64 exec, s[62:63]"] + [f"ds_write_b128 v{V_VST}, v[{b+4*e}:{b+4*e+3}] offset:{STAGE - 12288 + e*3072}" for e in range(4)] + ["s_mov_b64 exec, -1"]
        return l
    p += ["s_mov_b32 s62, -1", "s_mov_b32 s63, 0xffff"]
    qa, qb_ = OPT["qa"], OPT["qa"] + OPT["qb"]
    p += istamp("pre-k0a", True) + [W("k0a")] + istamp("k0a", True) + q_dma(range(0, qa)) + k_cv(0, 64, 32, 64) + [W("k0b")] + istamp("k0b", True) + k_cv(1, 80, 36, 64) + own_k(64)
    p += istamp("pre-v0a", True) + [W("v0a")] + istamp("v0a", True) + q_dma(range(qa, qb_)) + v_cv(0, 96, 40, 96) + [W("v0b")] + istamp("v0b", True) + v_cv(1, 112, 44, 96) + own_v(96)
    p += tag_load()
    p += q_dma(range(qb_, OPT["q1"]))
    p += istamp("pre-tag", True) + [W("tag")] + istamp("tag", True) + tag_check() + first_post(0) + stamp("posted") + istamp("posted", True)
    p += q_dma(range(OPT["q1"], 24)) + istamp("q-iss", True)
    for q in range(4): p.append(f"v_mov_b32 v{V_L[q]}, 0")
    for kk in range(4):
        p += [f"v_xor_b32 v{32+kk}, {32*kk}, v31", f"v_add_u32 v{36+kk}, s{S_TP}, v{32+kk}", f"v_add_u32 v{32+kk}, s{S_TMP}, v{32+kk}"]
    p += k_adv() + v_adv()
    if OPT["pf2"]:
        p += [f"s_mov_b32 s{S_DBG}, s60", f"s_mov_b32 s{S_DBG+1}, s61", f"s_mov_b32 s{S_DBG+2}, L_slow-{NAME}_kernel",
              "s_lshr_b32 s24, s2, 3", f"s_mul_i32 s{S_HOFF}, s24, 43", f"s_lshr_b32 s{S_HOFF}, s{S_HOFF}, 7",
              f"s_mul_i32 s{S_RET}, s{S_HOFF}, 3", f"s_sub_u32 s24, s24, s{S_RET}", "s_lshl_b32 s24, s24, 10",
              f"s_mul_i32 s{S_HOFF}, s{S_HOFF}, 12288", f"s_add_u32 s{S_HOFF}, s{S_HOFF}, s24"]
    p += ["s_waitcnt lgkmcnt(0)", "s_barrier"] + stamp("barA") + istamp("barA", True)
    KF = 144
    for f in range(12):
        s, tb = kfrag(f)
        p.append(f"ds_read_b128 v[{KF+4*f}:{KF+4*f+3}], v{V_RDK[s&1]} offset:{tb*6144 + (s>>1)*128}")
    tq = V_CT
    def sm0(qb):
        a, b = Sq(0, qb, 0), Sq(0, qb, 1)
        l = [f"v_max3_f32 v{tq}, v{a}, v{a+1}, v{a+2}", f"v_max3_f32 v{tq}, v{tq}, v{a+3}, v{b}",
             f"v_max3_f32 v{tq}, v{tq}, v{b+1}, v{b+2}", f"v_max_f32 v{tq}, v{tq}, v{b+3}"] + xlane("v_max_f32", tq)
        l += [f"v_sub_f32 v{NEGM(qb)+i}, 0, v{tq}" for i in range(4)]
        rest = [f"v_sub_f32 v{r+i}, v{r+i}, v{tq}" for r in (a, b) for i in range(4)]
        rest += [f"v_exp_f32 v{r+i}, v{r+i}" for r in (a, b) for i in range(4)]
        rest += [f"v_add_f32 v{V_L[qb]}, v{V_L[qb]}, v{r+i}" for r in (a, b) for i in range(4)]
        rest += [f"v_cvt_pk_bf16_f32 v{a}, v{a}, v{a+1}", f"v_cvt_pk_bf16_f32 v{a+1}, v{a+2}, v{a+3}",
                 f"v_cvt_pk_bf16_f32 v{a+2}, v{b}, v{b+1}", f"v_cvt_pk_bf16_f32 v{a+3}, v{b+2}, v{b+3}"]
        return l, rest
    fl = []
    for qb in range(4):
        if qb == OPT["pollq"]:
            p += stamp("at poll") + istamp("atpoll", True) + poll_smem() + stamp("poll ok") + istamp("pollok", True)
            p += with_nop(dma_tile("k", 1, True) + dma_tile("k", 2, True) + dma_tile("k", 3, True))
        p.append(W(("q", qb)))
        p += istamp(f"q{qb}", True)
        for s in range(6):
            for h in range(2):
                sp = s + 6 * h
                p.append(f"ds_read_b64 {Qf(qb,s,h)}, v{32+4*(qb>>1)+(sp&3)} offset:{(qb&1)*6144 + (sp>>2)*128}")
        if qb == 3: p += k_ld(0, BX, V_RS[0], "ka")
        p.append("s_waitcnt lgkmcnt(0)")
        for f in sorted(range(12), key=lambda f: kfrag(f)[::-1]):
            s, tb = kfrag(f)
            d = vr(Sq(0, qb, tb), 4)
            p.append(f"{MF} {d}, v[{KF+4*f}:{KF+4*f+3}], {Qf(qb,s)}, {'0' if s == 0 else d}")
        if qb == 3:
            if OPT["pollq"] == 4:
                p += poll_smem() + stamp("poll ok")
                p += with_nop(dma_tile("k", 1, True) + dma_tile("k", 2, True) + dma_tile("k", 3, True))
            p += istamp("pre-dk0", True) + [W(("dk", 0)), "s_barrier"] + istamp("dk0", True) + [frag_read("q", 12 + f) for f in range(NFS)]
        else: p.append("s_nop 7")
        l, rest = sm0(qb)
        p += l
        if qb < 3: p += rest
        else: fl = rest
    if OPT["stamp"]:
        p += stamp("loop start") + ["s_memtime s[8:9]"] + istamp("qk1")
    if OPT["dbgout"]: p += ["s_memrealtime s[100:101]"]
    l = dma_tile("v", 1, True)
    dl = [l[0:1], l[1:2], l[2:3], l[3:4], l[4:7], l[7:]] + [[x] for x in k_ld(1, BY, V_RS[1], "kb")]
    p.append("s_nop 0")
    for g in range(48, 96):
        F = 2 * (g >> 3)
        if g % 8 == 0: p.append(f"s_waitcnt lgkmcnt({min(NFS - 2, 22 - F)})")
        p.append(qk_mfma(0, g))
        cur = []
        if g % 8 == 7 and F + NFS < 24: cur = [frag_read("q", F + NFS), frag_read("q", F + NFS + 1)]
        elif g % 4 == 1 and dl: cur = dl.pop(0)
        while fl and gap_time(cur + [fl[0]]) <= 16: cur.append(fl.pop(0))
        p += cur
    assert not dl and not fl
    p += rd_step("q") + [W(("dk", 1)), "s_barrier"] + [frag_read("q", f) for f in range(D)]
    p += [f"s_mov_b32 s{S_CNT}, {6 if (OPT['sh4'] and not OPT['lastu']) else 5}", f"s_waitcnt lgkmcnt({D-2})"]
    c0 = OPT["c0"]
    K_ = lambda *j: tuple(("k", x) for x in j)
    V_ = lambda *j: tuple(("v", x) for x in j)
    G = lambda it, t, d, **kw: pstamp(f"p{it}") + gen_iter(it, t, dma=d, name=f"p{it}", peel=True, **kw)
    p += G(1, [("cv", "ka", 0, 99, 30, 95)], [K_(4, 5) + (0, 70)], extra_sm=True, nostep=True)
    p += G(2, [("ldn", "va", 0, 24), ("cv", "kb", 0, 99, 0, 60), ("kst", 0, 61), ("kst", 1, 69), ("kst", 2, 81), ("kst", 3, 89)], [V_(2, 3) + (26, 54)])
    p += G(3, [("ld", "vb", 0, 24), ("post", "kst"), ("cv", "va", 0, 99, c0, 95)], [K_(6, 7) + V_(4, 5) + (14, 90)])
    p += G(4, [("ld", "ka", 0, 26), ("cv", "vb", 0, 99, c0, 95), ("pollld", OPT["pa"], OPT["pa"] + 8)], [V_(6, 7) + (28, 76)])
    p += G(5, [("vst", 0, 1), ("vst", 1, 9), ("vst", 2, 17), ("vst", 3, 25), ("ld", "kb", 32, 54), ("pollchk", 49), ("cv", "ka", 0, 99, c0, 95)],
           [K_(8, 9) + (56, 84)])
    if OPT["sh4"]:
        p += G(6, [("ld", "va", 0, 26), ("post", "vst"), ("cv", "kb", 0, 99, 50, 95)], [K_(10, 11) + (28, 74)])
        p += G(7, [("ld", "vb", 0, 24), ("pollld", 44, 50), ("cv", "va", 0, 16, c0, 95), ("kst", 0, 57), ("kst", 1, 65), ("kst", 2, 73), ("kst", 3, 85)],
               [K_(12, 13) + (24, 48)])
        p += G(8, [("post", "kst"), ("pollchk", 33), ("cv", "va", 16, 99, 0, 94)],
               [V_(8, 9, 10, 11) + (39, 90)], endops=["s_nop 0", "s_branch L_join"])
        JOIN = 1
        p += [".p2align 6", "L_loop:"]
        pro_ = p
        bodyA = []
        for k in range(8):
            if k == JOIN: bodyA.append("L_join:"); jpos = len(bodyA)
            eo = [f"s_sub_u32 s{S_CNT}, s{S_CNT}, 1", f"s_cmp_lg_u32 s{S_CNT}, 0", "s_cbranch_scc1 L_loop"] if k == 7 else ()
            bodyA += (tstamp() if k == 4 else []) + gen_iter(16 + k, steady4(k), endops=eo, name=f"k{k}")
        mid = []
        if OPT["lastu"]:
            for it in range(48, 56): mid += gen_iter(it, steady4(it % 8, last=True), name=f"T{it}")
        for it in range(56, 62): mid += gen_iter(it, dma=([] if it in (59, 61) else None), name=f"T{it}")
        bodyC = []
        t62 = gen_iter(62, dma=[], name="T62", nxt="p")
        for x in t62:
            if isinstance(x, W): x.n = 0; x.tags = ()
        tailc = t62 + gen_tail()
        resolve(pro_ + bodyA[jpos:] + bodyA + bodyA + mid)
    else:
        p += G(6, [("ld", "va", 0, 26), ("post", "vst"), ("cv", "kb", 0, 99, 50, 95)], [K_(10, 11) + (28, 74)])
        p += G(7, [("ld", "vb", 0, 22), ("pollld", 44, 50), ("kst", 0, 57), ("kst", 1, 65), ("kst", 2, 73), ("kst", 3, 85), ("cv", "va", 0, 99, c0, 95)],
               [K_(12, 13) + (23, 46)])
        p += G(8, [("ld", "ka", 0, 26), ("pollchk", 45), ("cv", "vb", 0, 99, c0, 95)], [V_(8, 9, 10, 11) + (51, 93)])
        p += G(9, [("vst", 0, 1), ("vst", 1, 9), ("vst", 2, 17), ("vst", 3, 25), ("ld", "kb", 32, 54), ("post", "vst"), ("cv", "ka", 0, 99, c0, 95)],
               [K_(14, 15) + (56, 90)])
        p += G(10, [("ld", "va", 0, 26), ("cv", "kb", 0, 99, 50, 95), ("pollld", 70, 84)], [V_(12, 13) + (28, 68)])
        p += G(11, [("ld", "vb", 0, 30), ("cv", "va", 0, 22, c0, 94), ("pollchk", 65)], [K_(16, 17) + (71, 90)], endops=["s_nop 0", "s_branch L_join"])
        JOIN = 4
        p += [".p2align 6", "L_loop:"]
        pro_ = p
        bodyA = []
        for k in range(8):
            if k == JOIN: bodyA.append("L_join:"); jpos = len(bodyA)
            eo = [f"s_sub_u32 s{S_CNT}, s{S_CNT}, 1", f"s_cmp_lg_u32 s{S_CNT}, 0", "s_cbranch_scc1 L_loop"] if k == 7 else ()
            bodyA += (tstamp() if k == 4 else []) + gen_iter(16 + k, steady_tasks(k), endops=eo, name=f"k{k}")
        mid = []
        for k in range(4): mid += gen_iter(48 + k, steady_tasks(k, prod=False), name=f"mid{k}")
        mid += [f"s_mov_b32 s{S_CNT}, 2", ".p2align 6", "L_loop2:"]
        bodyC = []
        for k in range(4):
            eo = [f"s_sub_u32 s{S_CNT}, s{S_CNT}, 1", f"s_cmp_lg_u32 s{S_CNT}, 0", "s_cbranch_scc1 L_loop2"] if k == 3 else ()
            bodyC += gen_iter(52 + k, name=f"C{k}", endops=eo)
        for x in bodyC:
            if isinstance(x, W): x.n = 18; x.tags = ()
        LE = (stamp("loop end") + ["s_memtime s[10:11]"]) if OPT["stamp"] else []
        if OPT["tail2"]:
            t60 = gen_iter(60, name="T60", extra=epi_addr())
            t61 = gen_iter(61, dma=[], name="T61", extra_late=[f"v_add_u32 v{V_RD2}, {2*STAGE}, v{V_RD}"])
            for seq, n in ((t60, 18), (t61, 0)):
                for x in seq:
                    if isinstance(x, W): x.n = n; x.tags = ()
            tailc = LE + t60 + t61 + istamp("tail") + gen_tail2() + ["L_fin:"]
        else:
            t60 = gen_iter(60, name="T60"); t61 = gen_iter(61, dma=[], name="T61"); t62 = gen_iter(62, dma=[], name="T62", nxt="p")
            for seq, n in ((t60, 18), (t61, 12), (t62, 0)):
                for x in seq:
                    if isinstance(x, W): x.n = n; x.tags = ()
            tailc = LE + t60 + t61 + t62 + gen_tail()
        resolve(pro_ + bodyA[jpos:] + bodyA + bodyA + mid)
    P_ = Prog()
    P_.extend(fin(pro_))
    a0 = len(P_.ins); P_.extend(fin(bodyA)); a1 = len(P_.ins)
    P_.extend(fin(mid))
    c0_ = len(P_.ins); P_.extend(fin(bodyC)); c1 = len(P_.ins)
    P_.extend(fin(tailc))
    p = P_
    if OPT["stamp"] in (6, 7, 8):
        p("s_waitcnt vmcnt(0) lgkmcnt(0)")
        p.extend(istamp("end"))
        p("s_waitcnt lgkmcnt(0)")
        p.extend(istamp("end2"))
        p("s_add_u32 s8, s18, 0xfa00000"); p("s_addc_u32 s9, s19, 0"); p("s_mov_b32 s10, 1048576"); p("s_mov_b32 s11, 0x20000")
        p("s_lshl_b32 s24, s2, 2"); p(f"s_add_u32 s24, s24, s{S_WAVE}"); p("s_lshl_b32 s24, s24, 8")
        p(f"v_lshrrev_b32 v32, 2, v{GA}")
        p(f"buffer_store_dword v{V_STAMP}, v32, s[8:11], s24 offen")
        open(sys.argv[1] + ".stamps", "w").write("\n".join(STAMPS))
    elif OPT["stamp"]:
        p("s_waitcnt vmcnt(0)")
        p.extend(stamp("end"))
        p("s_memtime s[22:23]")
        p("s_waitcnt lgkmcnt(0)")
        p("s_sub_u32 s22, s22, s100")
        regs = [98] + [SR(i) for i in range(len(STAMPS))]
        p("s_sub_u32 s10, s10, s8")
        regs += [10] * (14 - len(regs)) + [22, S_BUDGET]
        for i, s in enumerate(regs): p(f"v_mov_b32 v{64+i}, s{s}")
        p("s_add_u32 s8, s18, 0xfa00000"); p("s_addc_u32 s9, s19, 0"); p("s_mov_b32 s10, 1048576"); p("s_mov_b32 s11, 0x20000")
        p("s_lshl_b32 s24, s2, 2"); p(f"s_add_u32 s24, s24, s{S_WAVE}"); p("s_lshl_b32 s24, s24, 6")
        p("v_mov_b32 v32, s24")
        p(f"v_cmp_eq_u32 vcc, 0, v{GA}")
        p("s_and_saveexec_b64 s[20:21], vcc")
        for i in range(4):
            p(f"buffer_store_dwordx4 v[{64+4*i}:{67+4*i}], v32, s[8:11], 0 offen offset:{16*i}")
        open(sys.argv[1] + ".stamps", "w").write("\n".join(STAMPS))
    if OPT["dbgout"] >= 2:
        p("s_waitcnt vmcnt(0)")
        if OPT["dbgout"] > 2:
            p(f"s_cmp_lg_u32 s2, {OPT['dbgout'] - 3}")
            p("s_cbranch_scc1 L_done")
        p("L_cal:")
        p("s_memrealtime s[40:41]")
        p("s_waitcnt lgkmcnt(0)")
        p("s_sub_u32 s40, s40, s98")
        p("s_cmp_lt_u32 s40, 12000")
        p("s_cbranch_scc1 L_cal")
    if OPT["dbgout"] == 1:
        p("s_load_dwordx2 s[8:9], s[0:1], 64")
        p("s_waitcnt vmcnt(0)")
        p("s_memrealtime s[40:41]")
        p("s_waitcnt lgkmcnt(0)")
        p("s_mov_b32 s10, 256"); p("s_mov_b32 s11, 0x20000")
        p("s_not_b32 s98, s98"); p("s_not_b32 s101, s100")
        for i, r in enumerate((40, 98, 100, 101)): p(f"v_mov_b32 v{64+i}, s{r}")
        p("s_mov_b64 exec, 1")
        for i in range(4): p(f"buffer_atomic_umax v{64+i}, off, s[8:11], 0 offset:{4+8*i}")
    p("L_done:")
    p("s_endpgm")
    main_end0 = len(p.ins)
    for ps in POLLSITES + ["P"]: p.extend(poll_slow(ps))
    p.extend(tag_slow())
    main_end = len(p.ins)
    p.extend(gen_slow())
    slow_end = len(p.ins)
    ji = [i for i, x in enumerate(p.ins) if x.text == "L_join:"][0]
    lin = p.ins[:a0] + p.ins[ji:a1] + p.ins[a0:c1] + p.ins[c0_:main_end0]
    sl = [i for i, x in enumerate(p.ins) if x.text == "L_slowloop:"][0]
    ei = [i for i, x in enumerate(p.ins) if x.text in ("L_epi:", "L_fin:")][0]
    bi = [i for i, x in enumerate(p.ins) if x.text == "s_cbranch_scc1 L_slowloop"][0]
    probs = check_hazards(lin, "main") + check_hazards(p.ins[main_end:bi+1] + p.ins[sl:slow_end] + p.ins[ei:ei+60], "slow") + check_hazards(p.ins[main_end0:main_end], "aux")
    for x in probs: print(x, file=sys.stderr)
    return p

def kd(name, vgpr, sgpr, accum):
    return f""".amdhsa_kernel {name}
  .amdhsa_next_free_vgpr {vgpr}
  .amdhsa_next_free_sgpr {sgpr}
  .amdhsa_accum_offset {accum}
  .amdhsa_group_segment_fixed_size 0
  .amdhsa_kernarg_size 80
  .amdhsa_user_sgpr_count 2
  .amdhsa_user_sgpr_kernarg_segment_ptr 1
  .amdhsa_system_sgpr_workgroup_id_x 1
.end_amdhsa_kernel
"""
out = HEADER
out += f"; @launch grid=(256,1,1) block=(256,1,1) lds={LDS_BYTES}\n"
out += '.amdgcn_target "amdgcn-amd-amdhsa--gfx950"\n.text\n'
out += f".globl {NAME}_kernel\n.p2align 8\n.type {NAME}_kernel,@function\n" + gen_main().text()
out += '.section .rodata,"a"\n.p2align 6\n' + kd(NAME + "_kernel", 512, 102, 256)
open(sys.argv[1], "w").write(out)
```

```python
import sys, math
from asmlib import *

NAME = "standalone__kv_cache_quant_int4_int2_kv_with_per_channel_or_per_token_scales__prompt"
OPT = dict(stamp=0, prod=1, q1=14, qa=3, qb=3, trip=3, vmgap=4, sb=6, sa=6, pl=10, c0=30, ahead=4, thr=64, dbgout=0, pa=78, snake=0, prog=1, pollq=3, fl=0, twop=0, sh4=0, lastu=1, tail2=1, tden=44, ab=0, pf2=1, map=0, calx="")
for a in sys.argv[2:]:
    k, v = a.split("="); OPT[k] = int(v) if v.lstrip("-").isdigit() else v
NS = 6; D = 4
STAGE = 24576
HEADBYTES = 64 * STAGE
RING = NS * STAGE
LDS_BYTES = RING + 128 + 12288
CSCALE = (192.0 ** -0.5) * math.log2(math.e)
HEADER = open("cdna_kernels/" + NAME + ".s.ref").read().split("; Override launch geometry")[0]
MF = "v_mfma_f32_16x16x32_bf16"
NG = 96

V_FVAL = 0; V_RD = 1; V_RDK = [2, 3]; V_DMA = 4; V_L = [5, 6, 7, 8]
V_KLD = 9; V_KSC = 10; V_KST = 11; V_VLD = 12; V_FLAG = 13
V_T = 16; NTP = 2
V_VST = 20
V_FR = 24; NFS = 6
V_CT = 48; V_VO = 52; V_RS = [56, 60]; BX = 224; BY = 240; BZ = 144
V_POLL = V_VO; V_KA = V_VO + 2
UNIT = [64, 80, 160, 176]; HI = [96, 112]
def Sq(t, qb, tb): return (UNIT[t % 4] if tb == 0 else HI[t % 2]) + 4 * qb
def P(t, qb): return UNIT[t % 4] + 4 * qb
def NEGM(qb): return 128 + 4 * qb
def O(qb, db): return (qb * 12 + db) * 4
def Qf(qb, s, half=None):
    i = qb * 6 + s
    base, f = (192 + 4 * i, ar) if i < 16 else (192 + 4 * (i - 16), vr)
    return f(base, 4) if half is None else f(base + 2 * half, 2)
def FR(f): return vr(V_FR + 4 * (f % NFS), 4)

S_RDELTA = 3; S_WS = 4; S_Q = 8; S_OUT = 12; S_FLG = 20
S_WAVE = 25; S_DMK = 26; S_GOFF = 27; S_RK = 28; S_TMP = 29; S_RV = 30; S_CNT = 31; S_GOFFK = 32
S_PK0 = 33; S_PK1 = 34; S_PV0 = 35; S_PKS = 36; S_PVS = 37; S_CS = 38; S_RET = 39; S_PV1 = 16; S_PV2 = 17
S_PT = 48; S_DMV = 56; S_TK = 57; S_TV = 58; S_TP = 59
S_QK = 64; S_QV = 68; S_KS = 72; S_KZ = 76; S_VS = 80; S_VZ = 84; S_DBG = 88
S_NEED = 92; S_HOFF = 93; S_HEAD = 94; S_QB = 95; S_BUDGET = 96; S_MASK = 97
FLAG_OFF = 64 << 20
FST = 128 if OPT["fl"] else 4
SC1 = " sc1"; NTKV = " nt"; NTQ = " nt"; STF = " sc1"; OF = " sc0 sc1"

STAMPS = []
def SR(i): return [40, 42, 44, 46, 60, 62, 88, 90, 98, 100, 8][i]
def tstamp():
    if OPT["stamp"] != 5: return []
    if not STAMPS: STAMPS.extend(["t-3", "t-2", "t-1", "t0"])
    return [f"s_mov_b32 s{SR(0)}, s{SR(1)}", f"s_mov_b32 s{SR(1)}, s{SR(2)}", f"s_mov_b32 s{SR(2)}, s{SR(3)}", f"s_memtime s[{SR(3)}:{SR(3)+1}]"]
def pstamp(name):
    if OPT["stamp"] != 3: return []
    i = len(STAMPS); STAMPS.append(name)
    return [f"s_memtime s[{SR(i)}:{SR(i)+1}]"]
def stamp(name):
    if OPT["stamp"] != 1: return []
    i = len(STAMPS); STAMPS.append(name)
    return [f"s_memrealtime s[{SR(i)}:{SR(i)+1}]"]

V_STAMP = 21
def istamp(name, force=False):
    if OPT["calx"] == name: return ["s_memrealtime s[100:101]"]
    if OPT["stamp"] not in (6, 7, 8): return []
    if OPT["stamp"] == 8 and not (force or name in ("p1", "p2", "p3", "p4", "p5", "p6", "p7", "p8", "p9", "p10", "p11", "T60", "T61", "tail", "end", "end2", "qk1")): return []
    if OPT["stamp"] != 8 and force: return []
    STAMPS.append(name)
    return ["s_waitcnt lgkmcnt(0)"] * (1 if force else 0) + [f"v_mov_b32_dpp v{V_STAMP}, v{V_STAMP} wave_shr:1 row_mask:0xf bank_mask:0xf", f"v_writelane_b32 v{V_STAMP}, s98, 0",
            ("s_memtime" if OPT["stamp"] == 6 else "s_memrealtime") + " s[98:99]"]

class W:
    def __init__(self, *tags): self.tags = tags
class VM:
    def __init__(self, tag, text): self.tag = tag; self.text = text

def softmax_part(t, half):
    flat = []; prev = None
    for gp in range(8):
        qb = 2 * half + gp // 4; pi = gp % 4
        t0 = V_T + 2 * (gp % NTP); t1 = t0 + 1
        src = Sq(t, qb, pi >> 1) + 2 * (pi & 1)
        E = [f"v_exp_f32 v{t0}, v{src}", f"v_exp_f32 v{t1}, v{src+1}"]
        A = [f"v_add_f32 v{V_L[qb]}, v{V_L[qb]}, v{t0}", f"v_add_f32 v{V_L[qb]}, v{V_L[qb]}, v{t1}"]
        C = [f"v_cvt_pk_bf16_f32 v{P(t,qb)+pi}, v{t0}, v{t1}"]
        if OPT["ab"] == 1: A = []
        if OPT["ab"] == 2: E = [x.replace("v_exp_f32", "v_mov_b32") for x in E]
        flat += E if prev is None else [E[0]] + prev[0] + [E[1]] + prev[1]
        prev = (A, C)
    return flat + prev[0] + prev[1]

def kfrag(g):
    return 2 * (g >> 2) + (g & 1), (g >> 1) & 1
def frag_read(kind, f):
    if kind == "q":
        s, tb = kfrag(f % 12)
        return f"ds_read_b128 {FR(f)}, v{V_RDK[s&1]} offset:{(f//12)*12288 + tb*6144 + (s>>1)*128}"
    return f"ds_read_b128 {FR(f)}, v{V_RD} offset:{(f&1)*12288 + (f>>1)*1024}"

def dma_tile(part, pos, peel=False):
    dm, go, tmp = (S_DMK, S_GOFFK, S_TK) if part == "k" else (S_DMV, S_GOFF, S_TV)
    l = [f"s_mov_b32 m0, s{dm}"]
    for j in range(3):
        l.append(VM(("d" + part, (pos >> 1) % 4), f"buffer_load_dwordx4 v{V_DMA}, s[{S_WS}:{S_WS+3}], s{go} offen offset:{j*1024}{SC1} lds"))
    if peel and pos < 7:
        l += [f"s_add_u32 s{go}, s{go}, {STAGE}", f"s_sub_u32 s{tmp}, s{go}, {8*STAGE}", f"s_min_u32 s{go}, s{go}, s{tmp}"]
    elif peel and pos == 7:
        l += [f"s_mov_b32 s{go}, {8*STAGE + (0 if part == 'k' else 12288)}"]
    else:
        l += [f"s_add_u32 s{go}, s{go}, {STAGE}"]
    if pos % 2 == 0: l += [f"s_add_u32 s{dm}, s{dm}, 12288"]
    else: l += [f"s_add_u32 s{dm}, s{dm}, {2*STAGE - 12288}", f"s_sub_u32 s{tmp}, s{dm}, {RING}", f"s_min_u32 s{dm}, s{dm}, s{tmp}"]
    return l
def with_nop(l):
    out = []
    for i, x in enumerate(l):
        out.append(x)
        if isinstance(x, str) and " m0," in x and i + 1 < len(l) and isinstance(l[i + 1], VM): out.append("s_nop 0")
    return out
def rd_step(kind):
    cur, regs = (S_RK, V_RDK) if kind == "q" else (S_RV, [V_RD])
    return [f"s_add_u32 s{S_TMP}, s{cur}, {2*STAGE}", f"s_sub_u32 s{S_RDELTA}, s{S_TMP}, {RING}",
            f"s_min_u32 s{S_TMP}, s{S_TMP}, s{S_RDELTA}", f"s_sub_u32 s{S_RDELTA}, s{S_TMP}, s{cur}", f"s_mov_b32 s{cur}, s{S_TMP}"] + \
           [f"v_add_u32 v{r}, s{S_RDELTA}, v{r}" for r in regs]

def k_ld(h, buf, rs, tag):
    l = [VM(tag, f"buffer_load_dwordx2 v[{rs+2*i}:{rs+2*i+1}], v{V_KSC}, s[{srd_}:{srd_+3}], s{S_PKS} offen offset:{192*h}")
         for i, srd_ in enumerate((S_KS, S_KZ))]
    for j in range(4):
        so = S_PK0 if j < 2 else S_PK1
        l.append(VM(tag, f"buffer_load_dwordx4 v[{buf+4*j}:{buf+4*j+3}], v{V_KLD}, s[{S_QK}:{S_QK+3}], s{so} offen offset:{(j&1)*1536+384*h}{NTKV}"))
    return l
def v_ld(h, buf, rs, tag):
    l = [VM(tag, f"buffer_load_dwordx2 v[{rs+2*i}:{rs+2*i+1}], off, s[{srd_}:{srd_+3}], s{S_PVS} offset:{8*h}")
         for i, srd_ in enumerate((S_VS, S_VZ))]
    for r in range(4):
        so = S_PV0 if h == 0 else S_PV1
        l.append(VM(tag, f"buffer_load_dwordx4 v[{buf+4*r}:{buf+4*r+3}], v{V_VLD}, s[{S_QV}:{S_QV+3}], s{so} offen offset:{r*768}{NTKV}"))
    return l
def k_cv(h, buf, rs, out):
    l = []
    s0, s1, z0, z1 = V_CT, V_CT + 1, V_CT + 2, V_CT + 3
    for i in range(2):
        l += [f"v_lshlrev_b32 v{s0}, 16, v{rs+i}", f"v_and_b32 v{s1}, s{S_MASK}, v{rs+i}",
              f"v_lshlrev_b32 v{z0}, 16, v{rs+2+i}", f"v_and_b32 v{z1}, s{S_MASK}, v{rs+2+i}",
              f"v_mul_f32 v{s0}, s{S_CS}, v{s0}", f"v_mul_f32 v{s1}, s{S_CS}, v{s1}",
              f"v_mul_f32_e64 v{z0}, -v{z0}, v{s0}", f"v_mul_f32_e64 v{z1}, -v{z1}, v{s1}"]
        for j in range(4):
            a = buf + 4 * j + 2 * i; b = a + 1
            l += [f"v_cvt_f32_i32 v{a}, v{a}", f"v_cvt_f32_i32 v{b}, v{b}",
                  f"v_fma_f32 v{a}, v{a}, v{s0}, v{z0}", f"v_fma_f32 v{b}, v{b}, v{s1}, v{z1}",
                  f"v_cvt_pk_bf16_f32 v{out+4*j+2*h+i}, v{a}, v{b}"]
    return l
def k_st(j, out, tag="kst"):
    va = V_KST; g = []
    if j:
        va = V_KA + (j & 1); g.append(f"v_xor_b32 v{va}, {16*j}, v{V_KST}")
    g.append(VM(tag, f"buffer_store_dwordx4 v[{out+4*j}:{out+4*j+3}], v{va}, s[{S_WS}:{S_WS+3}], s{S_PK0} offen offset:{j*768}{STF}"))
    return g
def v_cv(h, buf, rs, out):
    l = []
    s0, s1, z0, z1 = V_CT, V_CT + 1, V_CT + 2, V_CT + 3
    for i in range(2):
        l += [f"v_lshlrev_b32 v{s0}, 16, v{rs+i}", f"v_and_b32 v{s1}, s{S_MASK}, v{rs+i}",
              f"v_lshlrev_b32 v{z0}, 16, v{rs+2+i}", f"v_and_b32 v{z1}, s{S_MASK}, v{rs+2+i}",
              f"v_mul_f32_e64 v{z0}, -v{z0}, v{s0}", f"v_mul_f32_e64 v{z1}, -v{z1}, v{s1}"]
        for e in range(4):
            a = buf + 4 * (2 * i) + e; b = buf + 4 * (2 * i + 1) + e
            l += [f"v_cvt_f32_i32 v{a}, v{a}", f"v_cvt_f32_i32 v{b}, v{b}",
                  f"v_fma_f32 v{a}, v{a}, v{s0}, v{z0}", f"v_fma_f32 v{b}, v{b}, v{s1}, v{z1}"]
    for e, i in [(0, 0), (1, 0), (0, 1), (1, 1), (2, 0), (2, 1), (3, 0), (3, 1)]:
        l.append(f"v_cvt_pk_bf16_f32 v{out+4*e+2*h+i}, v{buf+8*i+e}, v{buf+8*i+4+e}")
    return l
def v_st(e, out, tag="vst"):
    so = S_PV0 if e < 2 else S_PV2
    return [VM(tag, f"buffer_store_dwordx4 v[{out+4*e}:{out+4*e+3}], v{V_VST}, s[{S_WS}:{S_WS+3}], s{so} offen offset:{(e&1)*3072}{STF}")]
def k_adv():
    return [f"s_add_u32 s{S_PK0}, s{S_PK0}, {8*STAGE}", f"s_add_u32 s{S_PK1}, s{S_PK1}, {8*STAGE}", f"s_add_u32 s{S_PKS}, s{S_PKS}, {4*384}"]
def v_adv():
    return [f"s_add_u32 s{r}, s{r}, {8*STAGE}" for r in (S_PV0, S_PV1, S_PV2)] + [f"s_add_u32 s{S_PVS}, s{S_PVS}, {8*64}"]
HT = {"ka": (k_ld, k_cv, 0, BX, V_RS[0], BX), "kb": (k_ld, k_cv, 1, BY, V_RS[1], BX),
      "va": (v_ld, v_cv, 0, BZ, V_RS[0], BZ), "vb": (v_ld, v_cv, 1, BY, V_RS[1], BZ)}
def flag_post():
    return [f"v_add_u32 v{V_FVAL}, 1, v{V_FVAL}",
            VM("flag", f"buffer_store_dword v{V_FVAL}, v{V_FLAG}, s[{S_FLG}:{S_FLG+3}], 0 offen sc1")]
def poll_addr():
    return [f"v_bfe_u32 v{V_POLL+1}, v{V_DMA}, 4, 6", f"v_lshlrev_b32 v{V_POLL+1}, {7 if OPT['fl'] else 2}, v{V_POLL+1}"]
def poll_load():
    return poll_addr() + [VM("poll", f"buffer_load_dword v{V_POLL}, v{V_POLL+1}, s[{S_FLG}:{S_FLG+3}], 0 offen sc1")]
def poll_test():
    return [f"v_subrev_u32 v{V_POLL}, s{S_NEED}, v{V_POLL}", f"v_cmp_lt_u32 vcc, 15, v{V_POLL}", "s_nop 0", f"s_and_b32 s{S_TP}, vcc_lo, 0xff"]
def smem_flags():
    if OPT["fl"]: return [f"s_buffer_load_dword s{S_PT+i}, s[{S_FLG}:{S_FLG+3}], {128*i} glc" for i in range(8)]
    return [f"s_buffer_load_dwordx8 s[{S_PT}:{S_PT+7}], s[{S_FLG}:{S_FLG+3}], 0 glc"]
def smem_test():
    l = smem_flags() + ["s_waitcnt lgkmcnt(0)"]
    for i in range(8): l.append(f"s_sub_u32 s{S_PT+i}, s{S_PT+i}, s{S_NEED}")
    for i in range(1, 8): l.append(f"s_max_u32 s{S_PT}, s{S_PT}, s{S_PT+i}")
    return l + [f"s_cmp_lt_u32 s{S_PT}, 16"]
def poll_slow(site):
    l = [f"L_pollslow{site}:"]
    if site != "P":
        l += [f"s_mov_b32 s{S_TP}, 200", f"L_pollsm{site}:"] + smem_test() + [f"s_cbranch_scc1 L_pollok{site}",
              f"s_sub_u32 s{S_TP}, s{S_TP}, 1", f"s_cbranch_scc1 L_pollvec{site}", "s_sleep 1", f"s_branch L_pollsm{site}"]
    l += [f"L_pollvec{site}:",
            f"s_sub_u32 s{S_BUDGET}, s{S_BUDGET}, 1",
            f"s_cbranch_scc1 L_pollgiveup{site}",
            "s_sleep 2",
            f"buffer_load_dword v{V_POLL}, v{V_POLL+1}, s[{S_FLG}:{S_FLG+3}], 0 offen sc1",
            "s_waitcnt vmcnt(0)"] + poll_test() + [
            f"s_cbranch_scc1 L_pollvec{site}",
            f"s_branch L_pollok{site}",
            f"L_pollgiveup{site}:",
            f"s_mov_b32 s{S_BUDGET}, 0",
            f"s_branch L_pollok{site}"]
    return l
def tag_load():
    return [VM("tag", f"buffer_load_dword v{V_FVAL}, off, s[{S_DBG}:{S_DBG+3}], s{S_HOFF} sc1")]
def tag_check():
    return [f"v_readfirstlane_b32 s{S_NEED}, v{V_FVAL}", f"s_mov_b32 s{S_RET}, 100",
            "L_tagretry:", f"s_cmp_lg_u32 s{S_NEED}, 0", "s_cbranch_scc1 L_tagok",
            f"s_sub_u32 s{S_RET}, s{S_RET}, 1", "s_cbranch_scc1 L_tagslow", "s_sleep 8",
            f"s_buffer_load_dword s{S_NEED}, s[{S_DBG}:{S_DBG+3}], s{S_HOFF} glc", "s_waitcnt lgkmcnt(0)", "s_branch L_tagretry",
            "L_tagok:", f"s_add_u32 s{S_NEED}, s{S_NEED}, 1", f"v_mov_b32 v{V_FVAL}, s{S_NEED}"]
def first_post(n=0):
    return ["s_mov_b64 exec, 1", f"v_mov_b32 v{V_T}, 1", f"v_mov_b32 v{V_T+1}, {RING + 4*n}",
            f"ds_add_rtn_u32 v{V_T}, v{V_T+1}, v{V_T}", "s_waitcnt lgkmcnt(0)",
            f"v_readfirstlane_b32 s24, v{V_T}", "s_nop 0", "s_cmp_lg_u32 s24, 3", f"s_cbranch_scc1 L_nopost{n}",
            f"s_mul_i32 s{S_RET}, s{S_QB}, {FST}"] + (
            ["s_mov_b64 exec, 0xffffffff", f"v_bfe_u32 v{V_T}, v{V_DMA}, 2, 7",
             f"buffer_store_dword v{V_FVAL}, v{V_T}, s[{S_FLG}:{S_FLG+3}], s{S_RET} offen sc1"] if OPT["fl"] else
            [f"buffer_store_dword v{V_FVAL}, off, s[{S_FLG}:{S_FLG+3}], s{S_RET} sc1"]) + [
            f"L_nopost{n}:", "s_mov_b64 exec, -1"]
def poll_smem():
    l = poll_addr() + [f"s_mov_b32 s{S_RET}, 200", "L_pollretry:"] + smem_test()
    l += ["s_cbranch_scc1 L_pollokP",
          f"s_sub_u32 s{S_RET}, s{S_RET}, 1", "s_cbranch_scc1 L_pollslowP", "s_sleep 1", "s_branch L_pollretry",
          "L_pollokP:", f"s_add_u32 s{S_NEED}, s{S_NEED}, 1"]
    return l
def tag_slow():
    return ["L_tagslow:",
            f"s_sub_u32 s{S_BUDGET}, s{S_BUDGET}, 1",
            "s_cbranch_scc1 L_taggiveup",
            "s_sleep 2",
            f"buffer_load_dword v{V_FVAL}, off, s[{S_DBG}:{S_DBG+3}], s{S_HOFF} sc1",
            "s_waitcnt vmcnt(0)",
            f"v_readfirstlane_b32 s{S_NEED}, v{V_FVAL}", "s_nop 0", f"s_cmp_eq_u32 s{S_NEED}, 0", "s_cbranch_scc1 L_tagslow",
            "s_branch L_tagok",
            "L_taggiveup:",
            f"s_mov_b32 s{S_BUDGET}, 0",
            "s_branch L_tagok"]

def text_of(x):
    return "s_waitcnt" if isinstance(x, W) else (x.text if isinstance(x, VM) else x)
def kind_of(x):
    t = text_of(x)
    if t.endswith(":"): return "label"
    if t.startswith("v_"): return "valu"
    if t.startswith("ds_"): return "ds"
    if t.startswith("buffer_store"): return "store"
    if t.startswith("buffer_"): return "load"
    return "salu"
def cost_of(x):
    k = kind_of(x); t = text_of(x)
    if k == "label": return 0
    if k == "store": return 20 if "x4" in t else 8
    if k == "load": return 8
    if t.startswith("v_exp"): return 8
    if t.startswith("s_nop"): return 4 * (int(t.split()[1]) + 1)
    if t.startswith("s_cbranch") or t.startswith("s_branch"): return 12
    if t.startswith("s_barrier"): return 8
    return 4
def gap_time(ops):
    t = 4; prev = None
    for o in ops:
        k = kind_of(o)
        if k == "label": continue
        if k == "salu": t += cost_of(o)
        else: t = max(t, 8) + cost_of(o) + (8 if (k != "valu" and prev == "valu") else 0)
        prev = k
    return t

class Stream:
    def __init__(self, ops, first, last, maxper=99):
        self.ops = list(ops); self.first = first; self.last = last; self.maxper = maxper
        self.total = sum(cost_of(o) for o in self.ops); self.done = 0; self.i = 0

def pack(A, B, C, T, streams, novm=(), nosalu=(), light=()):
    out = []; over = 0; lastvm = -99
    for g in range(NG):
        a, b, c, tl = list(A[g]), list(B[g]), list(C[g]), list(T[g])
        cnt = {}; inC = set(); blocked = set()
        while True:
            best = None; bl = None; bsec = None
            for st in streams:
                if st.i >= len(st.ops) or g < st.first: continue
                force = g >= st.last
                if (cnt.get(id(st), 0) >= st.maxper or id(st) in blocked) and not force: continue
                o = st.ops[st.i]; k = kind_of(o); cst = cost_of(o)
                if k == "salu" and g in nosalu:
                    assert not force
                    continue
                if k in ("load", "store") and (g in novm or g - lastvm < OPT["vmgap"]) and not force: continue
                if k in ("load", "store", "ds"):
                    sec = "b" if id(st) not in inC and id(st) not in blocked else "c"
                    if sec == "c" and not force: continue
                elif k == "salu" and not a and cnt.get(id(st), 0) == 0:
                    sec = "a"
                else: sec = "c"
                tgt = st.total * (g - st.first + 1) / (st.last - st.first + 1)
                lag = tgt - st.done
                if not force:
                    if lag < cst / 2 - OPT["ahead"] and cst: continue
                    trial = (a + [o] if sec == "a" else a) + (b + [o] if sec == "b" else b) + (c + [o] if sec == "c" else c) + tl
                    if g in light and gap_time(trial) > 12 and k != "salu" and lag < 40: continue
                    if gap_time(trial) > 16:
                        if not (lag > 24 and gap_time(trial) <= 20): continue
                        if g % 2 == 0: continue
                key = (force, k in ("load", "store"), lag / max(1, (st.last - g + 1)) ** 0.5)
                if best is None or key > bl: best = st; bl = key; bsec = sec
            if best is None: break
            o = best.ops[best.i]
            {"a": a, "b": b, "c": c}[bsec].append(o)
            if bsec == "c": inC.add(id(best))
            if " m0," in text_of(o): blocked.add(id(best))
            if kind_of(o) in ("load", "store"): lastvm = g
            best.i += 1; best.done += cost_of(o); cnt[id(best)] = cnt.get(id(best), 0) + 1
        ops = a + b + c + tl
        tt = gap_time(ops)
        if tt > 16: over += tt - 16
        out.append(ops)
    for st in streams: assert st.i == len(st.ops)
    return out, over

def steady4(k, last=False):
    pl = OPT["pl"]
    t = {
        0: [("post", "kst"), ("cv", "va", 16, 99, 0, 95)],
        1: [("cv", "vb", 0, 30, 0, 95), ("ld", "ka", 0, 44)],
        2: [("cv", "vb", 30, 99, 0, 55), ("pollld", pl, pl + 16), ("vst", 0, 57), ("vst", 1, 65), ("vst", 2, 73), ("vst", 3, 85), ("dmaw", 0, 50)],
        3: [("post", "vst"), ("pollchk", 1), ("ld", "kb", 0, 44), ("cv", "ka", 0, 22, 0, 95), ("dmaw", 8, 74)],
        4: [("cv", "ka", 22, 99, 0, 95)],
        5: [("cv", "kb", 0, 22, 0, 95), ("ld", "va", 8, 50), ("pollld", 2, 10)],
        6: [("cv", "kb", 22, 99, 0, 95), ("pollchk", 1), ("dmaw", 8, 74)],
        7: [("cv", "va", 0, 16, 0, 95), ("ld", "vb", 0, 26), ("kst", 0, 57), ("kst", 1, 65), ("kst", 2, 73), ("kst", 3, 85), ("dmaw", 24, 50)],
    }[k]
    if last:
        dead = {1: ("ld",), 3: ("ld", "cv"), 4: ("cv",), 5: ("cv", "ld"), 6: ("cv",), 7: ("cv", "ld", "kst", "dmaw")}.get(k, ())
        t = [x for x in t if x[0] not in dead]
    return t
def steady_tasks(k, prod=True, poll=True):
    t = []
    if prod:
        if k == 7: t += [("vst", 0, 1), ("vst", 1, 9), ("vst", 2, 17), ("vst", 3, 25), ("ld", "kb", 33, 58), ("cv", "ka", 0, 16, 0, 95), ("dmaw", 59, 88)]
        if k == 0: t += [("cv", "ka", 16, 99, 0, 95)]
        if k == 1: t += [("cv", "kb", 0, 24, 20, 95), ("ld", "va", 0, 44)]
        if k == 2: t += [("cv", "kb", 24, 99, 0, 95)]
        if k == 3: t += [("cv", "va", 0, 22, 0, 95), ("ld", "vb", 0, 44)]
        if k == 4: t += [("cv", "va", 22, 99, 0, 95), ("kst", 0, 41), ("kst", 1, 49), ("kst", 2, 57), ("kst", 3, 65), ("dmaw", 0, 34)]
        if k == 5: t += [("cv", "vb", 0, 22, 0, 95), ("ld", "ka", 0, 44)]
        if k == 6: t += [("cv", "vb", 22, 99, 0, 95)] + ([("pf", 80, 92)] if OPT["pf2"] else [])
    if poll:
        if k == 1 and not prod and OPT["pf2"]: t.append(("pf", 80, 92))
        if k == 0: t.append(("post", "vst"))
        if k == 2: t.append(("pollld", OPT["pl"], OPT["pl"] + 16))
        if k == 3: t += [("pollchk", 1), ("dmaw", 8, 74)]
    return t

POLLSITES = []
GBAR = 4 * (24 - D) - 1
def qk_mfma(t0, g, czero=False):
    qb = (g >> 1) & 3
    w = (g & 1) ^ (qb & 1 if OPT["snake"] else 0)
    F = 2 * (g >> 3) + w
    t = t0 + F // 12; s, tb = kfrag(F % 12)
    d = vr(Sq(t, qb, tb), 4)
    c = ("0" if czero else vr(NEGM(qb), 4)) if (s < 2 and g % 2 == 0) else d
    return f"{MF} {d}, {FR(F)}, {Qf(qb,s)}, {c}"
def pv_mfma(t0, db, qb, w0, first=False):
    w = w0 ^ (qb & 1 if OPT["snake"] else 0)
    d = ar(O(qb, db), 4)
    return f"{MF} {d}, {FR(2*db+w)}, {vr(P(t0+w,qb),4)}, {'0' if (first and w0 == 0) else d}"

def gen_iter(it, tasks=(), dma=None, name=None, endops=(), peel=False, nxt=None, extra_sm=False, nostep=False, extra=(), extra_late=()):
    kind = "q" if it % 2 else "p"
    nk = nxt or ("p" if kind == "q" else "q")
    A = [[] for _ in range(NG)]; B = [[] for _ in range(NG)]; C = [[] for _ in range(NG)]; T = [[] for _ in range(NG)]
    streams = []; novm = set(range(0, NG, 2)); nosalu = set()
    for F in range(24):
        fr = F + D
        if OPT["ab"] == 3 and not peel and (fr >> 1) % 2: continue
        B[4 * F].append(frag_read(kind, fr) if fr < 24 else frag_read(nk, fr - 24))
    for F in range(2, 25, 2):
        A[4 * F - 1].append(f"s_waitcnt lgkmcnt({D-2})")
    smB = softmax_part(it, 1); smA = softmax_part(it + 1, 0)
    if extra_sm: smB = softmax_part(it, 0) + smB
    if kind == "q":
        streams.append(Stream(smB, 0, 50)); streams.append(Stream(smA, 52, 95))
    else:
        streams.append(Stream(smB + smA, 0, 95))
    if endops:
        A[92] += endops[:1]; A[94] += [A[95][0]] + list(endops[1:-1]); A[95] = []; T[95] = list(endops[-1:]); nosalu |= {94, 95}
    if extra: streams.append(Stream(extra, 0, 90))
    if extra_late: streams.append(Stream(extra_late, GBAR + 1, 94))
    if not OPT["prod"]: tasks = ()
    if dma is None:
        w = [t[1:] for t in tasks if t[0] == "dmaw"]
        w = w[0] if w else (0, GBAR - 5)
        p0 = it + 5 if kind == "q" else it + 2
        c_ = "k" if kind == "q" else "v"
        dma = [((c_, p0), (c_, p0 + 1)) + tuple(w)]
    if OPT["ab"] == 4 and not peel: dma = []
    for grp in dma:
        dl = []
        for part, pos in grp[:-2]: dl += dma_tile(part, pos, peel)
        n = max(i for i, x in enumerate(dl) if isinstance(x, VM)) + 1
        streams.append(Stream(dl[:n], grp[-2], grp[-1], maxper=2))
        streams.append(Stream(dl[n:], grp[-1] + 1, min(93 if endops else 95, grp[-1] + 12), maxper=2))
    nj = ((it + 2) // 2) if nk == "q" else ((it - 1) // 2 if kind == "q" else it // 2)
    wtags = [("dk" if nk == "q" else "dv", nj % 4)]
    if nk == kind:
        rs_ = rd_step(nk); streams.append(Stream(rs_[:5], 40, 70, maxper=1)); C[GBAR] += rs_[5:]
    elif not nostep:
        streams.append(Stream(rd_step(nk), 30, GBAR - 3, maxper=1))
    for t in tasks:
        k_ = t[0]
        if OPT["ab"] == 6 and k_ in ("cv", "kst", "vst"): continue
        if OPT["ab"] in (7, 9) and k_ in ("kst", "vst"): continue
        if OPT["ab"] == 8 and k_ in ("kst", "vst", "ld", "ldn"): continue
        if k_ == "cv":
            _, cv, h, buf, rs, outb = HT[t[1]]
            ops = cv(h, buf, rs, outb)[t[2]:t[3]]
            if OPT["ab"] == 9: ops = [x for x in ops if not x.startswith("v_cvt_f32_i32")]
            if t[2] == 0: ops = [W(t[1])] + ops
            streams.append(Stream(ops, t[4], t[5]))
        elif k_ in ("kst", "vst"):
            grp = k_st(t[1], BX) if k_ == "kst" else v_st(t[1], BZ)
            g = t[2]; assert g % 4 == 1 and not B[g], g
            B[g].append(grp[-1]); novm |= set(range(g - OPT["sb"], g + OPT["sa"] + 1))
            if grp[:-1]: streams.append(Stream(grp[:-1], max(0, g - 5), g - 1))
        elif k_ in ("ld", "ldn"):
            ld, _, h, buf, rs, _o = HT[t[1]]
            adv = {"ka": k_adv(), "va": v_adv()}.get(t[1], []) if k_ == "ld" else []
            streams.append(Stream(adv + ld(h, buf, rs, t[1]), t[2], t[3], maxper=1))
        elif k_ == "post":
            wtags += list(t[1:])
            streams.append(Stream(flag_post(), GBAR + 1, 93, maxper=1))
        elif k_ == "pf":
            streams.append(Stream([VM("pf", f"buffer_load_dword v15, v{V_DMA}, s[{S_DBG}:{S_DBG+3}], s{S_HOFF} offen")], t[1], t[2]))
        elif k_ == "pollld": streams.append(Stream(poll_load(), t[1], t[2], maxper=1))
        elif k_ == "pollchk":
            ps = len(POLLSITES); POLLSITES.append(ps)
            g = t[1]; assert g % 4 == 1 and not (GBAR - 6 <= g <= GBAR)
            pt = poll_test()
            A[g] += [W("poll")]; T[g] += pt[:2]; novm |= {g, g + 4}
            A[g + 3] += [pt[3]]; A[g + 4] += [f"s_cbranch_scc1 L_pollslow{ps}", f"L_pollok{ps}:"]; nosalu |= {g + 3, g + 4}
            A[g + 5] += [f"s_add_u32 s{S_NEED}, s{S_NEED}, 1"]
    A[GBAR - 1] += [W(*wtags)]; novm |= {GBAR}
    A[GBAR - 2] += A[GBAR]; A[GBAR] = ["s_barrier"]
    if endops:
        for st_ in streams: st_.last = min(st_.last, 94)
    if OPT["twop"]:
        novm |= set(range(7, NG, 8))
        fill, over = pack(A, B, C, T, streams, novm, nosalu)
        vg = {g for g in range(NG) if any(kind_of(o) == "load" for o in fill[g])}
        for st_ in streams: st_.i = 0; st_.done = 0
        fill2, over2 = pack(A, B, C, T, streams, novm | (set(range(NG)) - vg), nosalu, {g - 1 for g in vg})
        def pen(f): return sum(4 for g in range(1, NG) if any(kind_of(o) == "load" for o in f[g]) and gap_time(f[g - 1]) > 12)
        if over2 + pen(fill2) < over + pen(fill): fill, over = fill2, over2
        over += pen(fill)
    else:
        fill, over = pack(A, B, C, T, streams, novm, nosalu)
    if over: print(f"iter {name or it}: over budget by {over} cycles", file=sys.stderr)
    out = istamp(name or str(it))
    for g in range(NG):
        if kind == "q": out.append(qk_mfma(it + 1, g))
        else: out.append(pv_mfma(it - 2, g >> 3, (g >> 1) & 3, g & 1, first=(peel and it == 2)))
        out += fill[g]
    return with_nop(out)

WA = [V_RS[0], V_RS[0] + 1]; RA = [V_RS[0] + 2, V_RS[0] + 3, V_RS[0] + 4]; GA = V_RS[0] + 5; TA = V_RS[0] + 6
RL = [V_CT, V_CT + 2, V_CT + 4, V_CT + 6]
def epi_prep():
    fl = [f"v_bfe_u32 v{TA}, v{V_DMA}, 4, 6", f"v_lshlrev_b32 v{GA}, 4, v{TA}",
          f"s_lshl_b32 s24, s{S_WAVE}, 1", "s_min_u32 s24, s24, 5", f"s_mul_i32 s24, s24, {STAGE}"]
    fl += [f"v_and_b32 v{WA[0]}, 15, v{TA}", f"v_lshrrev_b32 v{WA[1]}, 4, v{TA}", f"v_lshlrev_b32 v{WA[1]}, 1, v{WA[1]}",
           f"v_and_b32 v{TA+1}, 7, v{TA}", f"v_xor_b32 v{WA[1]}, v{WA[1]}, v{TA+1}", f"v_mul_u32_u24 v{WA[0]}, 384, v{WA[0]}",
           f"v_lshl_add_u32 v{WA[0]}, v{WA[1]}, 4, v{WA[0]}", f"v_add_u32 v{WA[0]}, s24, v{WA[0]}", f"v_xor_b32 v{WA[1]}, 16, v{WA[0]}"]
    for b in range(3):
        fl += [f"v_add_u32 v{RA[b]}, {64*b}, v{TA}", f"v_mul_u32_u24 v{TA+1}, 2731, v{RA[b]}", f"v_lshrrev_b32 v{TA+1}, 16, v{TA+1}",
               f"v_xor_b32 v{RA[b]}, v{RA[b]}, v{TA+1}", f"v_lshlrev_b32 v{RA[b]}, 4, v{RA[b]}", f"v_add_u32 v{RA[b]}, s24, v{RA[b]}"]
    for sw in ("v_permlane16_swap_b32", "v_permlane32_swap_b32"):
        fl += [f"v_mov_b32 v{RL[q]}, v{V_L[q]}" for q in range(4)]
        fl += [f"{sw} v{V_L[q]}, v{RL[q]}" for q in range(4)]
        fl += [f"v_add_f32 v{V_L[q]}, v{V_L[q]}, v{RL[q]}" for q in range(4)]
    fl += [f"v_rcp_f32 v{RL[q]}, v{V_L[q]}" for q in range(4)]
    fl += [f"s_lshl_b32 s24, s{S_QB}, 2", f"s_add_u32 s24, s24, s{S_WAVE}", f"s_mul_i32 s24, s24, {STAGE}"]
    return fl

def gen_tail():
    t0 = 62
    p = []
    def pv_pass(qbs, second):
        mf = []
        for db in range(12):
            for i, (qb, w) in enumerate([(q, w) for q in qbs for w in (0, 1)]):
                m = [pv_mfma(t0, db, qb, w)]
                if i in (0, 2):
                    fr = 2 * db + (i >> 1) + D
                    if fr < 24: m.append(frag_read("p", fr))
                    elif not second: m.append(frag_read("p", fr - 24))
                if i == 3 and not (second and db == 11):
                    n = D - 2
                    if second and 2 * db + 2 + D > 24: n = max(0, 24 - (2 * db + 4))
                    m.append(f"s_waitcnt lgkmcnt({n})")
                mf.append(m)
        return mf
    def inter(mf, fill):
        out = []; fill = list(fill)
        for m in mf:
            cur = m[1:]
            while fill and gap_time(cur + [fill[0]]) <= 16: cur.append(fill.pop(0))
            out += m[:1] + cur
        return out, fill
    chk = [f"v_max3_f32 v{V_T}, v{V_L[0]}, v{V_L[1]}, v{V_L[2]}", f"v_max_f32 v{V_T}, v{V_T}, v{V_L[3]}",
           f"s_mov_b32 s24, 0x{f32bits(2.0**OPT['thr']):08x}", f"v_cmp_lt_f32 vcc, s24, v{V_T}"]
    code, rest = inter(pv_pass((0, 1), False), softmax_part(63, 1) + chk)
    p += code + rest + ["s_nop 1", "s_cbranch_vccnz L_slow"]
    code, rest = inter(pv_pass((2, 3), True), epi_prep())
    p += code + rest + ["L_epi:"]
    RB = [128 + 4 * i for i in range(8)]
    pend = []; k = 0; nrb = 0
    for qb in range(4):
        for n in range(3):
            for half in range(2):
                ob = 64 + 8 * (k % 8); k += 1
                for tt in range(8):
                    r, e = divmod(8 * half + tt, 4)
                    p.append(f"v_accvgpr_read_b32 v{ob+tt}, a{O(qb,3*e+n)+r}")
                for i in range(4):
                    p.append(f"v_pk_mul_f32 v[{ob+2*i}:{ob+2*i+1}], v[{ob+2*i}:{ob+2*i+1}], v[{RL[qb]}:{RL[qb]+1}] op_sel_hi:[1,0]")
                for i in range(4):
                    p.append(f"v_cvt_pk_bf16_f32 v{ob+i}, v{ob+2*i}, v{ob+2*i+1}")
                if pend:
                    i6, reg, off = pend.pop(0)
                    p.append(f"s_waitcnt lgkmcnt({(5 - i6) + (2 * n + half)})")
                    p.append(f"buffer_store_dwordx4 v[{reg}:{reg+3}], v{GA}, s[{S_OUT}:{S_OUT+3}], s24 offen offset:{off}{OF}")
                    if i6 % 3 == 2: p.append("s_add_u32 s24, s24, 3072")
                p.append(f"ds_write_b128 v{WA[half]}, v[{ob}:{ob+3}] offset:{qb*6144 + n*128}")
        for i6 in range(6):
            i = 6 * qb + i6
            reg = RB[nrb % 8]; nrb += 1
            p.append(f"ds_read_b128 v[{reg}:{reg+3}], v{RA[i%3]} offset:{(i//3)*3072}")
            pend.append((i6, reg, (i6 % 3) * 1024))
    for i6, reg, off in pend:
        p.append(f"s_waitcnt lgkmcnt({5 - i6})")
        p.append(f"buffer_store_dwordx4 v[{reg}:{reg+3}], v{GA}, s[{S_OUT}:{S_OUT+3}], s24 offen offset:{off}{OF}")
        if i6 % 3 == 2: p.append("s_add_u32 s24, s24, 3072")
    return p

V_RD2 = 14
def epi_addr():
    fl = [f"v_bfe_u32 v{TA}, v{V_DMA}, 4, 6", f"v_lshlrev_b32 v{GA}, 4, v{TA}",
          f"s_lshl_b32 s24, s{S_WAVE}, 1", "s_min_u32 s24, s24, 5", f"s_mul_i32 s24, s24, {STAGE}"]
    fl += [f"v_and_b32 v{WA[0]}, 15, v{TA}", f"v_lshrrev_b32 v{WA[1]}, 4, v{TA}", f"v_lshlrev_b32 v{WA[1]}, 1, v{WA[1]}",
           f"v_and_b32 v{TA+1}, 7, v{TA}", f"v_xor_b32 v{WA[1]}, v{WA[1]}, v{TA+1}", f"v_mul_u32_u24 v{WA[0]}, 384, v{WA[0]}",
           f"v_lshl_add_u32 v{WA[0]}, v{WA[1]}, 4, v{WA[0]}", f"v_add_u32 v{WA[0]}, s24, v{WA[0]}", f"v_xor_b32 v{WA[1]}, 16, v{WA[0]}"]
    for b in range(3):
        fl += [f"v_add_u32 v{RA[b]}, {64*b}, v{TA}", f"v_mul_u32_u24 v{TA+1}, 2731, v{RA[b]}", f"v_lshrrev_b32 v{TA+1}, 16, v{TA+1}",
               f"v_xor_b32 v{RA[b]}, v{RA[b]}, v{TA+1}", f"v_lshlrev_b32 v{RA[b]}, 4, v{RA[b]}", f"v_add_u32 v{RA[b]}, s24, v{RA[b]}"]
    return fl
def epi_out0():
    return [f"s_lshl_b32 s24, s{S_QB}, 2", f"s_add_u32 s24, s24, s{S_WAVE}", f"s_mul_i32 s24, s24, {STAGE}"]
def epi_l(qs):
    fl = []
    for sw in ("v_permlane16_swap_b32", "v_permlane32_swap_b32"):
        fl += [f"v_mov_b32 v{RL[q]}, v{V_L[q]}" for q in qs] + ["s_nop 0"]
        fl += [f"{sw} v{V_L[q]}, v{RL[q]}" for q in qs] + ["s_nop 0"]
        fl += [f"v_add_f32 v{V_L[q]}, v{V_L[q]}, v{RL[q]}" for q in qs]
    return fl + [f"v_rcp_f32 v{RL[q]}, v{V_L[q]}" for q in qs] + ["s_nop 0"]
class LG:
    def __init__(self, tag): self.tag = tag
class DS:
    def __init__(self, tag, text): self.tag = tag; self.text = text
def ds_resolve(seq):
    out = []; ds = []
    for x in seq:
        if isinstance(x, DS): ds.append(x.tag); out.append(x.text)
        elif isinstance(x, LG):
            n = len(ds) - 1 - max(i for i, t in enumerate(ds) if t == x.tag)
            out.append(f"s_waitcnt lgkmcnt({min(n, 15)})")
        else:
            assert not (isinstance(x, str) and x.startswith("ds_")), x
            out.append(x)
    return out
def epi_q(qb, temps, pk, pend):
    RB = [128 + 4 * i for i in range(8)]
    p = []
    def store(i6, reg, q):
        l = [LG(("rb", q, i6)), f"buffer_store_dwordx4 v[{reg}:{reg+3}], v{GA}, s[{S_OUT}:{S_OUT+3}], s24 offen offset:{(i6%3)*1024}{OF}"]
        return l + (["s_add_u32 s24, s24, 3072"] if i6 % 3 == 2 else [])
    pend = list(pend)
    if qb is None:
        for x in pend: p += store(*x)
        return p, []
    for c in range(6):
        n, half = divmod(c, 2)
        ob = temps[(6 * qb + c) % len(temps)]
        for tt in range(8):
            r, e = divmod(8 * half + tt, 4)
            p.append(f"v_accvgpr_read_b32 v{ob+tt}, a{O(qb,3*e+n)+r}")
        if pk: p += [f"v_pk_mul_f32 v[{ob+2*i}:{ob+2*i+1}], v[{ob+2*i}:{ob+2*i+1}], v[{RL[qb]}:{RL[qb]+1}] op_sel_hi:[1,0]" for i in range(4)]
        else: p += [f"v_mul_f32 v{ob+i}, v{ob+i}, v{RL[qb]}" for i in range(8)]
        p += [f"v_cvt_pk_bf16_f32 v{ob+i}, v{ob+2*i}, v{ob+2*i+1}" for i in range(4)]
        if pend: p += store(*pend.pop(0))
        p.append(DS("w", f"ds_write_b128 v{WA[half]}, v[{ob}:{ob+3}] offset:{qb*6144 + n*128}"))
    newp = []
    for i6 in range(6):
        i = 6 * qb + i6; reg = RB[i % 8]
        p.append(DS(("rb", qb, i6), f"ds_read_b128 v[{reg}:{reg+3}], v{RA[i%3]} offset:{(i//3)*3072}"))
        newp.append((i6, reg, qb))
    return p, newp

def gen_tail2():
    passes = [(60, (0, 1)), (62, (0, 1)), (60, (2, 3)), (62, (2, 3))]
    def rd(i):
        ps, f = divmod(i, 24)
        va = V_RD if passes[ps][0] == 60 else V_RD2
        return DS(("f", i), f"ds_read_b128 {FR(f)}, v{va} offset:{(f&1)*12288 + (f>>1)*1024}")
    def tx(x): return x.text if isinstance(x, DS) else ("s_waitcnt" if isinstance(x, LG) else x)
    def run(ps, fill, lim):
        t0, qbs = passes[ps]
        out = []; fill = list(fill)
        for db in range(12):
            for i, (qb, w) in enumerate([(q, w) for q in qbs for w in (0, 1)]):
                out.append(pv_mfma(t0, db, qb, w))
                cur = []
                gi = 24 * ps + 2 * db
                if i in (0, 2) and gi + (i >> 1) + D < 96: cur.append(rd(gi + (i >> 1) + D))
                if i == 3 and gi + 3 < 96: cur.append(LG(("f", gi + 3)))
                L_ = 16 if i % 2 == 0 else lim
                while fill and gap_time([tx(x) for x in cur + [fill[0]]]) <= L_ + (12 if (tx(fill[0]).startswith(("buffer", "ds_")) and i % 2) else 0):
                    cur.append(fill.pop(0))
                out += cur
        return out, fill
    thr = f"s_mov_b32 s{S_TMP}, 0x{f32bits(2.0**OPT['thr']):08x}"
    seq = [DS(("f", i), "") for i in range(D)]
    c, r = run(0, softmax_part(63, 0), 16); seq += c + r + ["s_nop 1"]
    c, r = run(1, [f"v_max_f32 v{V_VST}, v{V_L[0]}, v{V_L[1]}", thr, f"v_cmp_lt_f32 vcc, s{S_TMP}, v{V_VST}"] + softmax_part(62, 1), 16)
    seq += c + r + ["s_cbranch_vccnz L_slow"]
    tempsA = [BX, BX + 8, BY, BY + 8]
    e0, pend = epi_q(0, tempsA, False, []); e1, pend = epi_q(1, tempsA, False, pend)
    ef, pend = epi_q(None, tempsA, False, pend); e1 += ef
    c, r = run(2, softmax_part(63, 1) + [f"v_max_f32 v{V_VST}, v{V_L[2]}, v{V_L[3]}", f"v_cmp_lt_f32 vcc, s{S_TMP}, v{V_VST}"] + epi_l((0, 1)) + epi_out0() + ["MARK"] + e0 + e1, OPT["tden"])
    if "MARK" in r:
        k = r.index("MARK"); c += r[:k]; r = r[k + 1:]
    c = [x for x in c if x != "MARK"]
    seq += c + ["s_nop 1", "s_cbranch_vccnz L_slow"]
    c, r = run(3, r, OPT["tden"]); seq += c + r
    seq += epi_l((2, 3))
    tempsB = [64 + 8 * i for i in range(8)]
    e2, pend = epi_q(2, tempsB, True, pend); e3, pend = epi_q(3, tempsB, True, pend); e4, _ = epi_q(None, tempsB, True, pend)
    seq += e2 + e3 + e4
    return [x for x in ds_resolve(seq) if x != ""]
def slow_epi():
    seq = epi_l((0, 1)) + epi_l((2, 3)) + epi_out0(); pend = []
    for q in (0, 1, 2, 3, None):
        e, pend = epi_q(q, [64 + 8 * i for i in range(8)], True, pend); seq += e
    return ds_resolve(seq)

def gen_slow():
    KF = 64; VF = 112; SS = 160; PP = 224; M = [240, 241, 242, 243]; KA = [244, 245]; LA = 246; t = V_T
    p = ["L_slow:", "s_waitcnt vmcnt(0) lgkmcnt(0)", "s_nop 15"]
    for i in range(192): p.append(f"v_accvgpr_write_b32 a{i}, 0")
    for q in range(4): p += [f"v_mov_b32 v{V_L[q]}, 0", f"v_mov_b32 v{M[q]}, 0xff7fffff"]
    p += [f"v_subrev_u32 v{KA[0]}, s{S_RK}, v{V_RDK[0]}", f"v_subrev_u32 v{KA[1]}, s{S_RK}, v{V_RDK[1]}", f"v_subrev_u32 v{LA}, s{S_RV}, v{V_RD}",
          f"s_mov_b32 s{S_PT}, 0", "L_slowloop:"]
    for i in range(1, 5): p.append(f"s_add_u32 s{S_PT+i}, s{S_PT}, {[0, 6144, 12288, 16384, 20480][i]}")
    for f in range(12):
        s, tb = kfrag(f)
        p.append(f"buffer_load_dwordx4 v[{KF+4*f}:{KF+4*f+3}], v{KA[s&1]}, s[{S_WS}:{S_WS+3}], s{S_PT+tb} offen offset:{(s>>1)*128} sc1")
    for db in range(12):
        p.append(f"buffer_load_dwordx4 v[{VF+4*db}:{VF+4*db+3}], v{LA}, s[{S_WS}:{S_WS+3}], s{S_PT+2+db//4} offen offset:{(db%4)*1024} sc1")
    p.append("s_waitcnt vmcnt(12)")
    for f in range(12):
        s, tb = kfrag(f)
        for qb in range(4):
            d = vr(SS + 8 * qb + 4 * tb, 4)
            p.append(f"{MF} {d}, v[{KF+4*f}:{KF+4*f+3}], {Qf(qb,s)}, {'0' if s == 0 else d}")
    p.append("s_nop 9")
    for qb in range(4):
        sb = SS + 8 * qb
        p += [f"v_max3_f32 v{t}, v{sb}, v{sb+1}, v{sb+2}", f"v_max3_f32 v{t}, v{t}, v{sb+3}, v{sb+4}",
              f"v_max3_f32 v{t}, v{t}, v{sb+5}, v{sb+6}", f"v_max3_f32 v{t}, v{t}, v{sb+7}, v{M[qb]}"]
        p += xlane("v_max_f32", t)
        p += [f"v_sub_f32 v{t+1}, v{M[qb]}, v{t}", f"v_exp_f32 v{t+1}, v{t+1}", f"v_mov_b32 v{M[qb]}, v{t}"]
        for i in range(8): p.append(f"v_sub_f32 v{sb+i}, v{sb+i}, v{t}")
        for i in range(8): p.append(f"v_exp_f32 v{sb+i}, v{sb+i}")
        p.append(f"v_mul_f32 v{V_L[qb]}, v{V_L[qb]}, v{t+1}")
        for i in range(8): p.append(f"v_add_f32 v{V_L[qb]}, v{V_L[qb]}, v{sb+i}")
        for i in range(4): p.append(f"v_cvt_pk_bf16_f32 v{PP+4*qb+i}, v{sb+2*i}, v{sb+2*i+1}")
        for i in range(48):
            a = O(qb, 0) + i; tt = t + 2 + (i % 2)
            p += [f"v_accvgpr_read_b32 v{tt}, a{a}", f"v_mul_f32 v{tt}, v{tt}, v{t+1}", f"v_accvgpr_write_b32 a{a}, v{tt}"]
    p += ["s_waitcnt vmcnt(0)", "s_nop 1"]
    for db in range(12):
        for qb in range(4):
            d = ar(O(qb, db), 4)
            p.append(f"{MF} {d}, v[{VF+4*db}:{VF+4*db+3}], v[{PP+4*qb}:{PP+4*qb+3}], {d}")
    p += [f"s_add_u32 s{S_PT}, s{S_PT}, {STAGE}", f"s_cmp_lt_u32 s{S_PT}, {HEADBYTES}", "s_nop 7", "s_cbranch_scc1 L_slowloop"]
    if OPT["tail2"]: p += slow_epi() + ["s_branch L_fin"]
    else: p += epi_prep() + ["s_branch L_epi"]
    return p

def interleave(mf, fill):
    out = []; fill = list(fill)
    for m in mf:
        out += m if isinstance(m, list) else [m]
        cur = []
        while fill and gap_time(cur + [fill[0]]) <= 16:
            cur.append(fill.pop(0))
        out += cur
    return out, fill

def xlane(op, t):
    l = []
    for sw in ("v_permlane16_swap_b32", "v_permlane32_swap_b32"):
        l += [f"v_mov_b32 v{t+1}, v{t}", "s_nop 1", f"{sw} v{t}, v{t+1}", "s_nop 1", f"{op} v{t}, v{t}, v{t+1}"]
    return l

def resolve(seq):
    vm = []
    for x in seq:
        if isinstance(x, VM): vm.append(x.tag)
        elif isinstance(x, W):
            best = None
            for tag in x.tags:
                n = 0; found = False
                for t in reversed(vm):
                    if t == tag: found = True; break
                    n += 1
                if found: best = n if best is None else min(best, n)
            if best is not None:
                x.n = best if getattr(x, "n", None) is None else min(x.n, best)
def fin(seq):
    out = []
    for x in seq:
        if isinstance(x, W):
            if OPT["ab"] and getattr(x, "n", None) is None: x.n = 63
            assert getattr(x, "n", None) is not None, x.tags
            out.append(f"s_waitcnt vmcnt({min(x.n, 63)})")
        elif isinstance(x, VM): out.append(x.text)
        else: out.append(x)
    return out
def srd(p, s, lo, hi, off_s, size):
    p += [f"s_add_u32 s{s}, s{lo}, s{off_s}", f"s_addc_u32 s{s+1}, s{hi}, 0", f"s_mov_b32 s{s+2}, {size}", f"s_mov_b32 s{s+3}, 0x20000"]
def sprinkle(code, extra):
    out = []; n = len(code); m = len(extra); j = 0
    for i, x in enumerate(code):
        out.append(x)
        while j < m and (i + 1) * m >= (j + 1) * n - n // 2:
            out.append(extra[j]); j += 1
    return out + extra[j:]

def gen_main():
    p = []
    p += [f"{NAME}_kernel:", "s_cmp_ge_u32 s2, 256", "s_cbranch_scc1 L_done",
          "s_load_dwordx16 s[40:55], s[0:1], 0", "s_load_dwordx4 s[16:19], s[0:1], 64"]
    if OPT["stamp"]:
        p += ["s_memtime s[100:101]", "s_memrealtime s[98:99]"]
    if OPT["dbgout"]:
        p += ["s_memrealtime s[98:99]"]
    p += [f"s_and_b32 s{S_HEAD}, s2, 7", f"s_lshr_b32 s{S_QB}, s2, 3", f"s_lshr_b32 s24, s{S_QB}, 3", f"s_lshl_b32 s{S_HEAD}, s{S_HEAD}, 2",
          f"s_add_u32 s{S_HEAD}, s{S_HEAD}, s24", f"s_and_b32 s{S_QB}, s{S_QB}, 7"]
    if OPT["map"] == 1:
        p += [f"s_lshr_b32 s{S_HEAD}, s2, 3", f"s_and_b32 s{S_QB}, s2, 7"]
    VQD = 232
    if True:
        p += ["s_getpc_b64 s[60:61]", "L_pc:", f"s_sub_u32 s60, s60, L_pc-{NAME}_kernel", "s_subb_u32 s61, s61, 0",
              f"s_mov_b32 s62, L_slow-{NAME}_kernel", "s_mov_b32 s63, 0x20000",
              "s_lshr_b32 s22, s2, 3", "s_lshl_b32 s22, s22, 12",
              "v_lshlrev_b32 v30, 4, v0",
              VM("pf", "buffer_load_dwordx4 v[128:131], v30, s[60:63], s22 offen")]
    p += ["v_lshrrev_b32 v24, 6, v0",
          "v_and_b32 v25, 63, v0",
          f"v_readfirstlane_b32 s{S_WAVE}, v24",
          f"v_lshlrev_b32 v{V_RD}, 4, v25",
          "v_mul_u32_u24 v26, 43, v25", "v_lshrrev_b32 v26, 10, v26",
          "v_mul_u32_u24 v27, 24, v26",
          "v_sub_u32 v27, v25, v27",
          "v_lshrrev_b32 v28, 1, v24",
          "v_and_b32 v29, 1, v24",
          "v_lshlrev_b32 v30, 4, v29",
          "v_lshl_add_u32 v30, v28, 2, v30",
          "v_add_u32 v30, v30, v26",
          "v_mul_u32_u24 v30, 768, v30",
          "v_lshrrev_b32 v48, 1, v26", "v_lshlrev_b32 v48, 30, v48",
          "v_lshl_add_u32 v30, v27, 4, v30", f"v_or_b32 v{V_KLD}, v30, v48",
          f"v_lshl_or_b32 v{V_KSC}, v27, 3, v48",
          "v_mul_u32_u24 v30, 6144, v24",
          f"v_add3_u32 v{V_VLD}, v30, v{V_RD}, v48"]
    for sd, size in ((S_QK, HEADBYTES), (S_QV, HEADBYTES), (S_KS, 12288), (S_KZ, 12288), (S_VS, 4096), (S_VZ, 4096)):
        p += [f"s_mov_b32 s{sd+2}, {size}", f"s_mov_b32 s{sd+3}, 0x20000"]
    p += [f"s_mul_i32 s{S_PK0}, s{S_QB}, {STAGE}", f"s_add_u32 s{S_PK1}, s{S_PK0}, 6144", f"s_mov_b32 s{S_PV0}, s{S_PK0}",
          f"s_lshr_b32 s{S_PKS}, s{S_QB}, 1", f"s_mul_i32 s{S_PKS}, s{S_PKS}, 384", f"s_lshl_b32 s{S_PVS}, s{S_QB}, 6",
          f"s_lshl_b32 s24, s{S_WAVE}, 4", f"s_add_u32 s{S_PVS}, s{S_PVS}, s24",
          f"s_mul_i32 s24, s{S_HEAD}, {HEADBYTES}", f"s_mul_i32 s22, s{S_HEAD}, 12288", f"s_lshl_b32 s23, s{S_HEAD}, 12"]
    p += ["s_waitcnt lgkmcnt(0)"] + istamp("karg", True)
    def base(sd, lo, off): return [f"s_add_u32 s{sd}, s{lo}, s{off}", f"s_addc_u32 s{sd+1}, s{lo+1}, 0"]
    p += base(S_KS, 46, 22) + base(S_KZ, 48, 22) + base(S_QK, 42, 24)
    p += k_ld(0, 64, 32, "k0a") + istamp("k0a-iss", True) + k_ld(1, 80, 36, "k0b") + istamp("k0b-iss", True)
    p += base(S_VS, 50, 23) + base(S_VZ, 52, 23) + base(S_QV, 44, 24)
    p += [f"s_mov_b32 s{S_DBG}, s16", f"s_mov_b32 s{S_DBG+1}, s17", f"s_add_u32 s{S_PV1}, s{S_PK0}, 3072", f"s_add_u32 s{S_PV2}, s{S_PK0}, 6144"]
    p += v_ld(0, 96, 40, "v0a") + v_ld(1, 112, 44, "v0b") + istamp("v0-iss", True)
    p += [f"v_mov_b32 v{V_T}, 0", f"v_mov_b32 v{V_T+1}, {RING}", f"ds_write_b32 v{V_T+1}, v{V_T}"]
    srd(p, S_WS, 18, 19, 24, HEADBYTES)
    p += [f"s_lshl_b32 s24, s{S_HEAD}, 10", f"s_add_u32 s24, s24, {FLAG_OFF}"]
    srd(p, S_FLG, 18, 19, 24, 8 * FST)
    p += ["v_mul_u32_u24 v30, 3072, v24", f"v_add_u32 v{V_DMA}, v30, v{V_RD}"]
    p += [f"s_mul_i32 s24, s{S_HEAD}, 786432"]
    srd(p, S_OUT, 54, 55, 24, 786432)
    p += ["s_waitcnt lgkmcnt(0)"]
    p += [f"s_or_b32 s{S_RET}, s{S_QB}, s{S_WAVE}", f"s_cmp_lg_u32 s{S_RET}, 0", "s_cbranch_scc1 L_notleader0",
          ] + smem_flags() + ["L_notleader0:"] + istamp("pre-bar0", True) + ["s_barrier"] + istamp("bar0", True)
    srd(p, S_Q, 40, 41, 24, 786432)
    p += [f"s_mov_b32 s{S_DBG+2}, 256", f"s_mov_b32 s{S_DBG+3}, 0x20000"]
    p += ["v_lshl_add_u32 v30, v24, 3, v26",
          "v_mul_u32_u24 v30, 384, v30",
          "v_lshlrev_b32 v31, 2, v29",
          "v_xor_b32 v31, v27, v31",
          "v_lshl_add_u32 v30, v31, 4, v30", f"v_or_b32 v{V_KST}, v30, v48",
          "v_lshlrev_b32 v30, 8, v24",
          "v_add_u32 v30, 12288, v30",
          "v_lshrrev_b32 v31, 4, v25", "v_lshl_add_u32 v30, v31, 10, v30", "v_and_b32 v31, 15, v25",
          "v_lshl_add_u32 v30, v31, 4, v30", f"v_or_b32 v{V_VST}, v30, v48"]
    p += [f"s_lshl_b32 s{S_HOFF}, s{S_HEAD}, 3", f"s_mul_i32 s24, s{S_QB}, {FST}",
          f"v_lshl_add_u32 v{V_FLAG}, v0, 2, s24", f"v_cmp_lt_u32 vcc, {31 if OPT['fl'] else 0}, v0", "v_mov_b32 v30, 0x40000000", "s_nop 0",
          f"v_cndmask_b32 v{V_FLAG}, v{V_FLAG}, v30, vcc",
          f"v_mov_b32 v{V_FVAL}, 0"]
    p += [f"s_mul_i32 s{S_DMK}, s{S_WAVE}, 3072", f"s_add_u32 s{S_DMK}, s{S_DMK}, 12288", f"s_add_u32 s{S_DMV}, s{S_DMK}, {STAGE}",
          f"s_add_u32 s24, s{S_QB}, 1", "s_and_b32 s24, s24, 7", f"s_mul_i32 s{S_GOFFK}, s24, {STAGE}", f"s_add_u32 s{S_GOFF}, s{S_GOFFK}, 12288",
          f"s_mov_b32 s{S_RK}, 0", f"s_mov_b32 s{S_RV}, {STAGE}", f"v_add_u32 v{V_RD}, {STAGE}, v{V_RD}",
          f"s_mov_b32 s{S_CS}, 0x{f32bits(CSCALE):08x}", f"s_mov_b32 s{S_MASK}, 0xffff0000",
          f"s_mov_b32 s{S_BUDGET}, 100000"]
    p += ["v_and_b32 v26, 15, v25", "v_lshrrev_b32 v27, 4, v25", "v_bfe_u32 v28, v25, 1, 3",
          "v_xor_b32 v29, v27, v28", "v_mul_u32_u24 v30, 384, v26", f"v_lshl_add_u32 v{V_RDK[0]}, v29, 4, v30",
          f"v_xor_b32 v{V_RDK[1]}, 64, v{V_RDK[0]}"]
    p += ["v_lshrrev_b32 v29, 1, v27", "v_xor_b32 v29, v29, v28", "v_lshl_add_u32 v31, v29, 4, v30",
          "v_and_b32 v29, 1, v27", "v_lshl_add_u32 v31, v29, 3, v31",
          ]
    p += [f"s_add_u32 s{S_TMP}, s{S_WAVE}, 3", f"s_mul_i32 s{S_TMP}, s{S_TMP}, {STAGE}", f"s_add_u32 s{S_TP}, s{S_TMP}, 12288",
          f"s_cmp_eq_u32 s{S_WAVE}, 3", f"s_cselect_b32 s{S_TMP}, {STAGE + 12288}, s{S_TMP}", f"s_cselect_b32 s{S_TP}, {RING + 128}, s{S_TP}"]
    p += [f"s_lshl_b32 s24, s{S_QB}, 2", f"s_add_u32 s24, s24, s{S_WAVE}", f"s_mul_i32 s24, s24, {STAGE}"]
    for b in range(6):
        p += [f"v_add_u32 v26, {64*b}, v25", "v_mul_u32_u24 v27, 2731, v26", "v_lshrrev_b32 v27, 17, v27",
              "v_and_b32 v27, 7, v27", "v_xor_b32 v26, v26, v27", f"v_lshlrev_b32 v{VQD+b}, 4, v26", f"v_add_u32 v{VQD+b}, s24, v{VQD+b}"]
    p += istamp("addr", True)
    def q_dma(lst):
        l = []
        for i in lst:
            a, b = divmod(i, 6)
            l += [f"s_add_u32 m0, s{S_TMP if i < 12 else S_TP}, {(i%12)*1024}", f"s_mov_b32 s24, {a*6144}",
                  VM(("q", a), f"buffer_load_dwordx4 v{VQD+b}, s[{S_Q}:{S_Q+3}], s24 offen{NTQ} lds")]
        return l
    p += [f"s_cmp_lg_u32 s{S_RET}, 0", "s_cbranch_scc1 L_notleader", "s_waitcnt lgkmcnt(0)", "s_mov_b32 s24, 1"]
    for i in range(8):
        p += [f"s_lshr_b32 s{S_PT+i}, s{S_PT+i}, 8", f"s_min_u32 s{S_PT+i}, s{S_PT+i}, 31", f"s_bitset1_b32 s24, s{S_PT+i}"]
    p += ["s_ff0_i32_b32 s24, s24", "s_lshl_b32 s24, s24, 8", f"v_mov_b32 v{V_POLL}, s24",
          "s_mov_b64 exec, 1", f"buffer_store_dword v{V_POLL}, off, s[{S_DBG}:{S_DBG+3}], s{S_HOFF} sc1", "s_mov_b64 exec, -1",
          "L_notleader:"]
    def own_k(b):
        l = []
        for j in range(4):
            l += k_st(j, b, "st0")
            va = V_KST if j == 0 else V_KA + (j & 1)
            l += ["s_mov_b64 exec, s[62:63]", f"ds_write_b128 v{va}, v[{b+4*j}:{b+4*j+3}] offset:{j*768}", "s_mov_b64 exec, -1"]
        return l
    def own_v(b):
        l = [x for e in range(4) for x in v_st(e, b, "st0")]
        l += ["s_mov_b64 exec, s[62:63]"] + [f"ds_write_b128 v{V_VST}, v[{b+4*e}:{b+4*e+3}] offset:{STAGE - 12288 + e*3072}" for e in range(4)] + ["s_mov_b64 exec, -1"]
        return l
    p += ["s_mov_b32 s62, -1", "s_mov_b32 s63, 0xffff"]
    qa, qb_ = OPT["qa"], OPT["qa"] + OPT["qb"]
    p += istamp("pre-k0a", True) + [W("k0a")] + istamp("k0a", True) + q_dma(range(0, qa)) + k_cv(0, 64, 32, 64) + [W("k0b")] + istamp("k0b", True) + k_cv(1, 80, 36, 64) + own_k(64)
    p += istamp("pre-v0a", True) + [W("v0a")] + istamp("v0a", True) + q_dma(range(qa, qb_)) + v_cv(0, 96, 40, 96) + [W("v0b")] + istamp("v0b", True) + v_cv(1, 112, 44, 96) + own_v(96)
    p += tag_load()
    p += q_dma(range(qb_, OPT["q1"]))
    p += istamp("pre-tag", True) + [W("tag")] + istamp("tag", True) + tag_check() + first_post(0) + stamp("posted") + istamp("posted", True)
    p += q_dma(range(OPT["q1"], 24)) + istamp("q-iss", True)
    for q in range(4): p.append(f"v_mov_b32 v{V_L[q]}, 0")
    for kk in range(4):
        p += [f"v_xor_b32 v{32+kk}, {32*kk}, v31", f"v_add_u32 v{36+kk}, s{S_TP}, v{32+kk}", f"v_add_u32 v{32+kk}, s{S_TMP}, v{32+kk}"]
    p += k_adv() + v_adv()
    if OPT["pf2"]:
        p += [f"s_mov_b32 s{S_DBG}, s60", f"s_mov_b32 s{S_DBG+1}, s61", f"s_mov_b32 s{S_DBG+2}, L_slow-{NAME}_kernel",
              "s_lshr_b32 s24, s2, 3", f"s_mul_i32 s{S_HOFF}, s24, 43", f"s_lshr_b32 s{S_HOFF}, s{S_HOFF}, 7",
              f"s_mul_i32 s{S_RET}, s{S_HOFF}, 3", f"s_sub_u32 s24, s24, s{S_RET}", "s_lshl_b32 s24, s24, 10",
              f"s_mul_i32 s{S_HOFF}, s{S_HOFF}, 12288", f"s_add_u32 s{S_HOFF}, s{S_HOFF}, s24"]
    p += ["s_waitcnt lgkmcnt(0)", "s_barrier"] + stamp("barA") + istamp("barA", True)
    KF = 144
    for f in range(12):
        s, tb = kfrag(f)
        p.append(f"ds_read_b128 v[{KF+4*f}:{KF+4*f+3}], v{V_RDK[s&1]} offset:{tb*6144 + (s>>1)*128}")
    tq = V_CT
    def sm0(qb):
        a, b = Sq(0, qb, 0), Sq(0, qb, 1)
        l = [f"v_max3_f32 v{tq}, v{a}, v{a+1}, v{a+2}", f"v_max3_f32 v{tq}, v{tq}, v{a+3}, v{b}",
             f"v_max3_f32 v{tq}, v{tq}, v{b+1}, v{b+2}", f"v_max_f32 v{tq}, v{tq}, v{b+3}"] + xlane("v_max_f32", tq)
        l += [f"v_sub_f32 v{NEGM(qb)+i}, 0, v{tq}" for i in range(4)]
        rest = [f"v_sub_f32 v{r+i}, v{r+i}, v{tq}" for r in (a, b) for i in range(4)]
        rest += [f"v_exp_f32 v{r+i}, v{r+i}" for r in (a, b) for i in range(4)]
        rest += [f"v_add_f32 v{V_L[qb]}, v{V_L[qb]}, v{r+i}" for r in (a, b) for i in range(4)]
        rest += [f"v_cvt_pk_bf16_f32 v{a}, v{a}, v{a+1}", f"v_cvt_pk_bf16_f32 v{a+1}, v{a+2}, v{a+3}",
                 f"v_cvt_pk_bf16_f32 v{a+2}, v{b}, v{b+1}", f"v_cvt_pk_bf16_f32 v{a+3}, v{b+2}, v{b+3}"]
        return l, rest
    fl = []
    for qb in range(4):
        if qb == OPT["pollq"]:
            p += stamp("at poll") + istamp("atpoll", True) + poll_smem() + stamp("poll ok") + istamp("pollok", True)
            p += with_nop(dma_tile("k", 1, True) + dma_tile("k", 2, True) + dma_tile("k", 3, True))
        p.append(W(("q", qb)))
        p += istamp(f"q{qb}", True)
        for s in range(6):
            for h in range(2):
                sp = s + 6 * h
                p.append(f"ds_read_b64 {Qf(qb,s,h)}, v{32+4*(qb>>1)+(sp&3)} offset:{(qb&1)*6144 + (sp>>2)*128}")
        if qb == 3: p += k_ld(0, BX, V_RS[0], "ka")
        p.append("s_waitcnt lgkmcnt(0)")
        for f in sorted(range(12), key=lambda f: kfrag(f)[::-1]):
            s, tb = kfrag(f)
            d = vr(Sq(0, qb, tb), 4)
            p.append(f"{MF} {d}, v[{KF+4*f}:{KF+4*f+3}], {Qf(qb,s)}, {'0' if s == 0 else d}")
        if qb == 3:
            if OPT["pollq"] == 4:
                p += poll_smem() + stamp("poll ok")
                p += with_nop(dma_tile("k", 1, True) + dma_tile("k", 2, True) + dma_tile("k", 3, True))
            p += istamp("pre-dk0", True) + [W(("dk", 0)), "s_barrier"] + istamp("dk0", True) + [frag_read("q", 12 + f) for f in range(NFS)]
        else: p.append("s_nop 7")
        l, rest = sm0(qb)
        p += l
        if qb < 3: p += rest
        else: fl = rest
    if OPT["stamp"]:
        p += stamp("loop start") + ["s_memtime s[8:9]"]
    p += istamp("qk1")
    if OPT["dbgout"]: p += ["s_memrealtime s[100:101]"]
    l = dma_tile("v", 1, True)
    dl = [l[0:1], l[1:2], l[2:3], l[3:4], l[4:7], l[7:]] + [[x] for x in k_ld(1, BY, V_RS[1], "kb")]
    p.append("s_nop 0")
    for g in range(48, 96):
        F = 2 * (g >> 3)
        if g % 8 == 0: p.append(f"s_waitcnt lgkmcnt({min(NFS - 2, 22 - F)})")
        p.append(qk_mfma(0, g))
        cur = []
        if g % 8 == 7 and F + NFS < 24: cur = [frag_read("q", F + NFS), frag_read("q", F + NFS + 1)]
        elif g % 4 == 1 and dl: cur = dl.pop(0)
        while fl and gap_time(cur + [fl[0]]) <= 16: cur.append(fl.pop(0))
        p += cur
    assert not dl and not fl
    p += rd_step("q") + [W(("dk", 1)), "s_barrier"] + [frag_read("q", f) for f in range(D)]
    p += [f"s_mov_b32 s{S_CNT}, {6 if (OPT['sh4'] and not OPT['lastu']) else 5}", f"s_waitcnt lgkmcnt({D-2})"]
    c0 = OPT["c0"]
    K_ = lambda *j: tuple(("k", x) for x in j)
    V_ = lambda *j: tuple(("v", x) for x in j)
    G = lambda it, t, d, **kw: pstamp(f"p{it}") + gen_iter(it, t, dma=d, name=f"p{it}", peel=True, **kw)
    p += G(1, [("cv", "ka", 0, 99, 30, 95)], [K_(4, 5) + (0, 70)], extra_sm=True, nostep=True)
    p += G(2, [("ldn", "va", 0, 24), ("cv", "kb", 0, 99, 0, 60), ("kst", 0, 61), ("kst", 1, 69), ("kst", 2, 81), ("kst", 3, 89)], [V_(2, 3) + (26, 54)])
    p += G(3, [("ld", "vb", 0, 24), ("post", "kst"), ("cv", "va", 0, 99, c0, 95)], [K_(6, 7) + V_(4, 5) + (14, 90)])
    p += G(4, [("ld", "ka", 0, 26), ("cv", "vb", 0, 99, c0, 95), ("pollld", OPT["pa"], OPT["pa"] + 8)], [V_(6, 7) + (28, 76)])
    p += G(5, [("vst", 0, 1), ("vst", 1, 9), ("vst", 2, 17), ("vst", 3, 25), ("ld", "kb", 32, 54), ("pollchk", 49), ("cv", "ka", 0, 99, c0, 95)],
           [K_(8, 9) + (56, 84)])
    if OPT["sh4"]:
        p += G(6, [("ld", "va", 0, 26), ("post", "vst"), ("cv", "kb", 0, 99, 50, 95)], [K_(10, 11) + (28, 74)])
        p += G(7, [("ld", "vb", 0, 24), ("pollld", 44, 50), ("cv", "va", 0, 16, c0, 95), ("kst", 0, 57), ("kst", 1, 65), ("kst", 2, 73), ("kst", 3, 85)],
               [K_(12, 13) + (24, 48)])
        p += G(8, [("post", "kst"), ("pollchk", 33), ("cv", "va", 16, 99, 0, 94)],
               [V_(8, 9, 10, 11) + (39, 90)], endops=["s_nop 0", "s_branch L_join"])
        JOIN = 1
        p += [".p2align 6", "L_loop:"]
        pro_ = p
        bodyA = []
        for k in range(8):
            if k == JOIN: bodyA.append("L_join:"); jpos = len(bodyA)
            eo = [f"s_sub_u32 s{S_CNT}, s{S_CNT}, 1", f"s_cmp_lg_u32 s{S_CNT}, 0", "s_cbranch_scc1 L_loop"] if k == 7 else ()
            bodyA += (tstamp() if k == 4 else []) + gen_iter(16 + k, steady4(k), endops=eo, name=f"k{k}")
        mid = []
        if OPT["lastu"]:
            for it in range(48, 56): mid += gen_iter(it, steady4(it % 8, last=True), name=f"T{it}")
        for it in range(56, 62): mid += gen_iter(it, dma=([] if it in (59, 61) else None), name=f"T{it}")
        bodyC = []
        t62 = gen_iter(62, dma=[], name="T62", nxt="p")
        for x in t62:
            if isinstance(x, W): x.n = 0; x.tags = ()
        tailc = t62 + gen_tail()
        resolve(pro_ + bodyA[jpos:] + bodyA + bodyA + mid)
    else:
        p += G(6, [("ld", "va", 0, 26), ("post", "vst"), ("cv", "kb", 0, 99, 50, 95)], [K_(10, 11) + (28, 74)])
        p += G(7, [("ld", "vb", 0, 22), ("pollld", 44, 50), ("kst", 0, 57), ("kst", 1, 65), ("kst", 2, 73), ("kst", 3, 85), ("cv", "va", 0, 99, c0, 95)],
               [K_(12, 13) + (23, 46)])
        p += G(8, [("ld", "ka", 0, 26), ("pollchk", 45), ("cv", "vb", 0, 99, c0, 95)], [V_(8, 9, 10, 11) + (51, 93)])
        p += G(9, [("vst", 0, 1), ("vst", 1, 9), ("vst", 2, 17), ("vst", 3, 25), ("ld", "kb", 32, 54), ("post", "vst"), ("cv", "ka", 0, 99, c0, 95)],
               [K_(14, 15) + (56, 90)])
        p += G(10, [("ld", "va", 0, 26), ("cv", "kb", 0, 99, 50, 95), ("pollld", 70, 84)], [V_(12, 13) + (28, 68)])
        p += G(11, [("ld", "vb", 0, 30), ("cv", "va", 0, 22, c0, 94), ("pollchk", 65)], [K_(16, 17) + (71, 90)], endops=["s_nop 0", "s_branch L_join"])
        JOIN = 4
        p += [".p2align 6", "L_loop:"]
        pro_ = p
        bodyA = []
        for k in range(8):
            if k == JOIN: bodyA.append("L_join:"); jpos = len(bodyA)
            eo = [f"s_sub_u32 s{S_CNT}, s{S_CNT}, 1", f"s_cmp_lg_u32 s{S_CNT}, 0", "s_cbranch_scc1 L_loop"] if k == 7 else ()
            bodyA += (tstamp() if k == 4 else []) + gen_iter(16 + k, steady_tasks(k), endops=eo, name=f"k{k}")
        mid = []
        for k in range(4): mid += gen_iter(48 + k, steady_tasks(k, prod=False), name=f"mid{k}")
        mid += [f"s_mov_b32 s{S_CNT}, 2", ".p2align 6", "L_loop2:"]
        bodyC = []
        for k in range(4):
            eo = [f"s_sub_u32 s{S_CNT}, s{S_CNT}, 1", f"s_cmp_lg_u32 s{S_CNT}, 0", "s_cbranch_scc1 L_loop2"] if k == 3 else ()
            bodyC += gen_iter(52 + k, name=f"C{k}", endops=eo)
        for x in bodyC:
            if isinstance(x, W): x.n = 18; x.tags = ()
        LE = (stamp("loop end") + ["s_memtime s[10:11]"]) if OPT["stamp"] else []
        if OPT["tail2"]:
            t60 = gen_iter(60, name="T60", extra=epi_addr())
            t61 = gen_iter(61, dma=[], name="T61", extra_late=[f"v_add_u32 v{V_RD2}, {2*STAGE}, v{V_RD}"])
            for seq, n in ((t60, 18), (t61, 0)):
                for x in seq:
                    if isinstance(x, W): x.n = n; x.tags = ()
            tailc = LE + t60 + t61 + istamp("tail") + gen_tail2() + ["L_fin:"]
        else:
            t60 = gen_iter(60, name="T60"); t61 = gen_iter(61, dma=[], name="T61"); t62 = gen_iter(62, dma=[], name="T62", nxt="p")
            for seq, n in ((t60, 18), (t61, 12), (t62, 0)):
                for x in seq:
                    if isinstance(x, W): x.n = n; x.tags = ()
            tailc = LE + t60 + t61 + t62 + gen_tail()
        resolve(pro_ + bodyA[jpos:] + bodyA + bodyA + mid)
    P_ = Prog()
    P_.extend(fin(pro_))
    a0 = len(P_.ins); P_.extend(fin(bodyA)); a1 = len(P_.ins)
    P_.extend(fin(mid))
    c0_ = len(P_.ins); P_.extend(fin(bodyC)); c1 = len(P_.ins)
    P_.extend(fin(tailc))
    p = P_
    if OPT["stamp"] in (6, 7, 8):
        p("s_waitcnt vmcnt(0) lgkmcnt(0)")
        p.extend(istamp("end"))
        p("s_waitcnt lgkmcnt(0)")
        p.extend(istamp("end2"))
        p("s_add_u32 s8, s18, 0xfa00000"); p("s_addc_u32 s9, s19, 0"); p("s_mov_b32 s10, 1048576"); p("s_mov_b32 s11, 0x20000")
        p("s_lshl_b32 s24, s2, 2"); p(f"s_add_u32 s24, s24, s{S_WAVE}"); p("s_lshl_b32 s24, s24, 8")
        p(f"v_lshrrev_b32 v32, 2, v{GA}")
        p(f"buffer_store_dword v{V_STAMP}, v32, s[8:11], s24 offen")
        open(sys.argv[1] + ".stamps", "w").write("\n".join(STAMPS))
    elif OPT["stamp"]:
        p("s_waitcnt vmcnt(0)")
        p.extend(stamp("end"))
        p("s_memtime s[22:23]")
        p("s_waitcnt lgkmcnt(0)")
        p("s_sub_u32 s22, s22, s100")
        regs = [98] + [SR(i) for i in range(len(STAMPS))]
        p("s_sub_u32 s10, s10, s8")
        regs += [10] * (14 - len(regs)) + [22, S_BUDGET]
        for i, s in enumerate(regs): p(f"v_mov_b32 v{64+i}, s{s}")
        p("s_add_u32 s8, s18, 0xfa00000"); p("s_addc_u32 s9, s19, 0"); p("s_mov_b32 s10, 1048576"); p("s_mov_b32 s11, 0x20000")
        p("s_lshl_b32 s24, s2, 2"); p(f"s_add_u32 s24, s24, s{S_WAVE}"); p("s_lshl_b32 s24, s24, 6")
        p("v_mov_b32 v32, s24")
        p(f"v_cmp_eq_u32 vcc, 0, v{GA}")
        p("s_and_saveexec_b64 s[20:21], vcc")
        for i in range(4):
            p(f"buffer_store_dwordx4 v[{64+4*i}:{67+4*i}], v32, s[8:11], 0 offen offset:{16*i}")
        open(sys.argv[1] + ".stamps", "w").write("\n".join(STAMPS))
    if OPT["calx"]:
        p("s_waitcnt vmcnt(0)")
        p("L_cal:")
        p("s_memrealtime s[40:41]")
        p("s_waitcnt lgkmcnt(0)")
        p("s_sub_u32 s40, s40, s100")
        p("s_cmp_lt_u32 s40, 10000")
        p("s_cbranch_scc1 L_cal")
    if OPT["dbgout"] >= 2:
        p("s_waitcnt vmcnt(0)")
        if OPT["dbgout"] > 2:
            p(f"s_cmp_lg_u32 s2, {OPT['dbgout'] - 3}")
            p("s_cbranch_scc1 L_done")
        p("L_cal:")
        p("s_memrealtime s[40:41]")
        p("s_waitcnt lgkmcnt(0)")
        p("s_sub_u32 s40, s40, s98")
        p("s_cmp_lt_u32 s40, 12000")
        p("s_cbranch_scc1 L_cal")
    if OPT["dbgout"] == 1:
        p("s_load_dwordx2 s[8:9], s[0:1], 64")
        p("s_waitcnt vmcnt(0)")
        p("s_memrealtime s[40:41]")
        p("s_waitcnt lgkmcnt(0)")
        p("s_mov_b32 s10, 256"); p("s_mov_b32 s11, 0x20000")
        p("s_not_b32 s98, s98"); p("s_not_b32 s101, s100")
        for i, r in enumerate((40, 98, 100, 101)): p(f"v_mov_b32 v{64+i}, s{r}")
        p("s_mov_b64 exec, 1")
        for i in range(4): p(f"buffer_atomic_umax v{64+i}, off, s[8:11], 0 offset:{4+8*i}")
    p("L_done:")
    p("s_endpgm")
    main_end0 = len(p.ins)
    for ps in POLLSITES + ["P"]: p.extend(poll_slow(ps))
    p.extend(tag_slow())
    main_end = len(p.ins)
    p.extend(gen_slow())
    slow_end = len(p.ins)
    ji = [i for i, x in enumerate(p.ins) if x.text == "L_join:"][0]
    lin = p.ins[:a0] + p.ins[ji:a1] + p.ins[a0:c1] + p.ins[c0_:main_end0]
    sl = [i for i, x in enumerate(p.ins) if x.text == "L_slowloop:"][0]
    ei = [i for i, x in enumerate(p.ins) if x.text in ("L_epi:", "L_fin:")][0]
    bi = [i for i, x in enumerate(p.ins) if x.text == "s_cbranch_scc1 L_slowloop"][0]
    probs = check_hazards(lin, "main") + check_hazards(p.ins[main_end:bi+1] + p.ins[sl:slow_end] + p.ins[ei:ei+60], "slow") + check_hazards(p.ins[main_end0:main_end], "aux")
    for x in probs: print(x, file=sys.stderr)
    return p

def kd(name, vgpr, sgpr, accum):
    return f""".amdhsa_kernel {name}
  .amdhsa_next_free_vgpr {vgpr}
  .amdhsa_next_free_sgpr {sgpr}
  .amdhsa_accum_offset {accum}
  .amdhsa_group_segment_fixed_size 0
  .amdhsa_kernarg_size 80
  .amdhsa_user_sgpr_count 2
  .amdhsa_user_sgpr_kernarg_segment_ptr 1
  .amdhsa_system_sgpr_workgroup_id_x 1
.end_amdhsa_kernel
"""
out = HEADER
out += f"; @launch grid=(256,1,1) block=(256,1,1) lds={LDS_BYTES}\n"
out += '.amdgcn_target "amdgcn-amd-amdhsa--gfx950"\n.text\n'
out += f".globl {NAME}_kernel\n.p2align 8\n.type {NAME}_kernel,@function\n" + gen_main().text()
out += '.section .rodata,"a"\n.p2align 6\n' + kd(NAME + "_kernel", 512, 102, 256)
open(sys.argv[1], "w").write(out)
```

```python
import sys, math
from asmlib import *

NAME = "standalone__kv_cache_quant_int4_int2_kv_with_per_channel_or_per_token_scales__prompt"
OPT = dict(stamp=0, vmgap=4, sb=6, sa=6, ahead=4, thr=64, pf2=1, calx="", qa=9, plv=50, plk=10, ckv=33, ckk=1, tden=24, touch=0, w0poll=1, cap=40, qb=12, q3e=1, ksc=0, few=1)
for a in sys.argv[2:]:
    k, v = a.split("="); OPT[k] = int(v) if v.lstrip("-").isdigit() else v
NS = 6
STAGE = 24576
HEADBYTES = 64 * STAGE
RING = NS * STAGE
LDS_BYTES = RING + 128
A0, B0, A1, B1, A2, B2 = [i * STAGE for i in range(6)]
CSCALE = (192.0 ** -0.5) * math.log2(math.e)
HEADER = open("cdna_kernels/" + NAME + ".s.ref").read().split("; Override launch geometry")[0]
MF = "v_mfma_f32_16x16x32_bf16"

V_FVAL = 0; V_RD = 1; V_RDK = [2, 3]; V_DMA = 4; V_L = [5, 6, 7, 8]
V_KLD = 9; V_KSC = 10; V_KST = 11; V_VLD = 12; V_FLAG = 13; V_RD2 = 14
V_T = 16; NTP = 2
V_VST = 20; V_STAMP = 21
V_FR = 24; NFS = 6
V_CT = 48; V_VO = 52; V_RS = [56, 60]; BX = 224; BY = 240; BZ = 144
V_POLL = V_VO; V_KA = V_VO + 2
UNIT = [64, 80, 160, 176]; HI = [96, 112]
VQD = 136; VQR = [22, 23, 142, 143]
def Sq(t, sl, tb): return (UNIT[t % 4] if tb == 0 else HI[t % 2]) + 4 * sl
def P(t, sl): return UNIT[t % 4] + 4 * sl
def NEGM(qb): return 128 + 4 * qb
def O(qb, db): return (qb * 12 + db) * 4
def Qf(qb, s, half=None):
    i = qb * 6 + s
    base, f = (192 + 4 * i, ar) if i < 16 else (192 + 4 * (i - 16), vr)
    return f(base, 4) if half is None else f(base + 2 * half, 2)
def FR(f): return vr(V_FR + 4 * (f % NFS), 4)

S_RDELTA = 3; S_WS = 4; S_Q = 8; S_OUT = 12; S_FLG = 20
S_WAVE = 25; S_DMK = 26; S_GOFF = 27; S_RK = 28; S_TMP = 29; S_RV = 30; S_CNT = 31; S_GOFFK = 32
S_PK0 = 33; S_PK1 = 34; S_PV0 = 35; S_PKS = 36; S_PVS = 37; S_CS = 38; S_RET = 39; S_PV1 = 16; S_PV2 = 17
S_QL = 40; S_QS = 41; S_TAG = 42
S_PT = 48; S_DMV = 56; S_TK = 57; S_TV = 58; S_TP = 59
S_QK = 64; S_QV = 68; S_KS = 72; S_KZ = 76; S_VS = 80; S_VZ = 84; S_DBG = 88
S_NEED = 92; S_HOFF = 93; S_HEAD = 94; S_QB = 95; S_BUDGET = 96; S_MASK = 97
FLAG_OFF = 64 << 20
SC1 = " sc1"; NTKV = " nt"; NTQ = " nt"; STF = " sc1"; OF = " sc0 sc1"

STAMPS = []
def istamp(name, force=False):
    if OPT["calx"] == name: return ["s_memrealtime s[100:101]"]
    if OPT["stamp"] not in (6, 8): return []
    if OPT["stamp"] == 8 and name.startswith("k") and not force: return []
    if OPT["few"] and force and name not in ("karg", "k0b", "postK", "pollK", "postV"): return []
    if OPT["stamp"] != 8 and force: return []
    STAMPS.append(name)
    return ["s_waitcnt lgkmcnt(0)"] * (1 if force else 0) + [f"v_mov_b32_dpp v{V_STAMP}, v{V_STAMP} wave_shr:1 row_mask:0xf bank_mask:0xf", f"v_writelane_b32 v{V_STAMP}, s98, 0",
            ("s_memtime" if OPT["stamp"] == 6 else "s_memrealtime") + " s[98:99]"]

class W:
    def __init__(self, *tags): self.tags = tags
class VM:
    def __init__(self, tag, text): self.tag = tag; self.text = text
class LG:
    def __init__(self, *tags): self.tags = tags
class DS:
    def __init__(self, tag, text): self.tag = tag; self.text = text

def mode_of(t):
    return {0: "a", 1: "a", 2: "b", 3: "b", 58: "a", 59: "a", 60: "a", 61: "b", 62: "b", 63: "b"}.get(t, "f")
def slot_q(t, sl):
    m = mode_of(t)
    return sl if m == "f" else (sl & 1) + (0 if m == "a" else 2)
def softmax_part(t, half):
    flat = []; prev = None
    for gp in range(8):
        sl = 2 * half + gp // 4; pi = gp % 4; l = V_L[slot_q(t, sl)]
        t0 = V_T + 2 * (gp % NTP); t1 = t0 + 1
        src = Sq(t, sl, pi >> 1) + 2 * (pi & 1)
        E = [f"v_exp_f32 v{t0}, v{src}", f"v_exp_f32 v{t1}, v{src+1}"]
        A = [f"v_add_f32 v{l}, v{l}, v{t0}", f"v_add_f32 v{l}, v{l}, v{t1}"]
        C = [f"v_cvt_pk_bf16_f32 v{P(t,sl)+pi}, v{t0}, v{t1}"]
        flat += E if prev is None else [E[0]] + prev[0] + [E[1]] + prev[1]
        prev = (A, C)
    return flat + prev[0] + prev[1]

class Grp:
    def __init__(self, rd, mf): self.rd = rd; self.mf = mf; self.reb = []
def qk_tile(t, w, slots, czero=False):
    gs = []
    for gi in range(6):
        s0 = 2 * (gi >> 1); tb = gi & 1
        rd = [(V_RDK[j], w * 12288 + tb * 6144 + (s0 >> 1) * 128) for j in range(2)]
        mf = []
        for sl, qb in slots:
            d = vr(Sq(t, sl, tb), 4)
            mf += [(0, d, Qf(qb, s0), (("0" if czero else vr(NEGM(qb), 4)) if s0 == 0 else d)), (1, d, Qf(qb, s0 + 1), d)]
        gs.append(Grp(rd, mf))
    return gs
def qk_full(t): return [g for w in range(2) for g in qk_tile(t + w, w, [(q, q) for q in range(4)])]
def qk_half(t, czero=False, ws=(0, 1)):
    return [g for w in ws for g in qk_tile(t, w, [(2 * w + j, slot_q(t, j)) for j in range(2)], czero)]
def pv_grp(t, db, first=False, va=V_RD):
    m = mode_of(t); mf = []
    for qb in (range(4) if m == "f" else [slot_q(t, 0), slot_q(t, 1)]):
        d = ar(O(qb, db), 4)
        for w in range(2):
            b = P(t + w, qb) if m == "f" else P(t, 2 * w + (qb & 1))
            mf.append((w, d, vr(b, 4), "0" if (first and w == 0) else d))
    return Grp([(va, w * 12288 + db * 1024) for w in range(2)], mf)
def pv_seq(t, first=False): return [pv_grp(t, db, first) for db in range(12)]
def pv_unchained(t, first=False):
    gs = []
    for w in range(2):
        for d0 in range(0, 12, 2):
            mf = []
            for j in range(2):
                qb = slot_q(t, j)
                for e in range(2):
                    d = ar(O(qb, d0 + e), 4)
                    mf.append((e, d, vr(P(t, 2 * w + j), 4), "0" if (first and w == 0) else d))
            gs.append(Grp([(V_RD, w * 12288 + (d0 + e) * 1024) for e in range(2)], mf))
    return gs
def rebase(gs, regs, delta):
    op = "v_add_u32" if delta >= 0 else "v_subrev_u32"
    gs[0].reb += [f"{op} v{r}, {abs(delta)}, v{r}" for r in regs]
    return gs
def rd_op(gi, j, g):
    f = 2 * gi + j
    return DS(("fr", f % NFS), f"ds_read_b128 {FR(f)}, v{g.rd[j][0]} offset:{g.rd[j][1]}")

def dma_tile(part, pos, peel=False):
    dm, go, tmp = (S_DMK, S_GOFFK, S_TK) if part == "k" else (S_DMV, S_GOFF, S_TV)
    l = [f"s_mov_b32 m0, s{dm}"]
    for j in range(3):
        l.append(VM(("d" + part, pos % 8), f"buffer_load_dwordx4 v{V_DMA}, s[{S_WS}:{S_WS+3}], s{go} offen offset:{j*1024}{SC1} lds"))
    if peel and pos < 7:
        l += [f"s_add_u32 s{go}, s{go}, {STAGE}", f"s_sub_u32 s{tmp}, s{go}, {8*STAGE}", f"s_min_u32 s{go}, s{go}, s{tmp}"]
    elif peel and pos == 7:
        l += [f"s_mov_b32 s{go}, {8*STAGE + (0 if part == 'k' else 12288)}"]
    else:
        l += [f"s_add_u32 s{go}, s{go}, {STAGE}"]
    if pos % 2 == 0: l += [f"s_add_u32 s{dm}, s{dm}, 12288"]
    else: l += [f"s_add_u32 s{dm}, s{dm}, {2*STAGE - 12288}", f"s_sub_u32 s{tmp}, s{dm}, {RING}", f"s_min_u32 s{dm}, s{dm}, s{tmp}"]
    return l
def q_dma(lst):
    l = []
    for i in lst:
        a, b = divmod(i, 6)
        l += [f"s_mov_b32 s{S_QS}, {a*6144}"] * (1 if (b == 0 or i == lst[0]) else 0)
        l += [f"s_add_u32 m0, s{S_QL}, {(a&1)*STAGE + b*1024}",
              VM(("q", a), f"buffer_load_dwordx4 v{VQD+b}, s[{S_Q}:{S_Q+3}], s{S_QS} offen{NTQ} lds")]
    return l
def q_frags(qb):
    l = []
    for s in range(6):
        for h in range(2):
            sp = s + 6 * h
            l.append(DS(("qf", qb), f"ds_read_b64 {Qf(qb,s,h)}, v{VQR[sp&3]} offset:{(qb&1)*STAGE + (sp>>2)*128}"))
    return l
def with_nop(l):
    out = []
    for i, x in enumerate(l):
        out.append(x)
        if isinstance(x, str) and " m0," in x and i + 1 < len(l) and isinstance(l[i + 1], VM): out.append("s_nop 0")
    return out
def rd_step(kind):
    cur, regs = (S_RK, V_RDK) if kind == "q" else (S_RV, [V_RD])
    return [f"s_add_u32 s{S_TMP}, s{cur}, {2*STAGE}", f"s_sub_u32 s{S_RDELTA}, s{S_TMP}, {RING}",
            f"s_min_u32 s{S_TMP}, s{S_TMP}, s{S_RDELTA}", f"s_sub_u32 s{S_RDELTA}, s{S_TMP}, s{cur}", f"s_mov_b32 s{cur}, s{S_TMP}"] + \
           [f"v_add_u32 v{r}, s{S_RDELTA}, v{r}" for r in regs]

def k_ld(h, buf, rs, tag, scal_first=True):
    sc = [VM(tag, f"buffer_load_dwordx2 v[{rs+2*i}:{rs+2*i+1}], v{V_KSC}, s[{srd_}:{srd_+3}], s{S_PKS} offen offset:{192*h}")
          for i, srd_ in enumerate((S_KS, S_KZ))]
    l = []
    for j in range(4):
        so = S_PK0 if j < 2 else S_PK1
        l.append(VM(tag, f"buffer_load_dwordx4 v[{buf+4*j}:{buf+4*j+3}], v{V_KLD}, s[{S_QK}:{S_QK+3}], s{so} offen offset:{(j&1)*1536+384*h}{NTKV}"))
    return sc + l if scal_first else l + sc
def v_ld(h, buf, rs, tag, scal_first=True):
    sc = [VM(tag, f"buffer_load_dwordx2 v[{rs+2*i}:{rs+2*i+1}], off, s[{srd_}:{srd_+3}], s{S_PVS} offset:{8*h}")
          for i, srd_ in enumerate((S_VS, S_VZ))]
    l = []
    for r in range(4):
        so = S_PV0 if h == 0 else S_PV1
        l.append(VM(tag, f"buffer_load_dwordx4 v[{buf+4*r}:{buf+4*r+3}], v{V_VLD}, s[{S_QV}:{S_QV+3}], s{so} offen offset:{r*768}{NTKV}"))
    return sc + l if scal_first else l + sc
def k_cv(h, buf, rs, out):
    l = []
    s0, s1, z0, z1 = V_CT, V_CT + 1, V_CT + 2, V_CT + 3
    for i in range(2):
        l += [f"v_lshlrev_b32 v{s0}, 16, v{rs+i}", f"v_and_b32 v{s1}, s{S_MASK}, v{rs+i}",
              f"v_lshlrev_b32 v{z0}, 16, v{rs+2+i}", f"v_and_b32 v{z1}, s{S_MASK}, v{rs+2+i}",
              f"v_mul_f32 v{s0}, s{S_CS}, v{s0}", f"v_mul_f32 v{s1}, s{S_CS}, v{s1}",
              f"v_mul_f32_e64 v{z0}, -v{z0}, v{s0}", f"v_mul_f32_e64 v{z1}, -v{z1}, v{s1}"]
        for j in range(4):
            a = buf + 4 * j + 2 * i; b = a + 1
            l += [f"v_cvt_f32_i32 v{a}, v{a}", f"v_cvt_f32_i32 v{b}, v{b}",
                  f"v_fma_f32 v{a}, v{a}, v{s0}, v{z0}", f"v_fma_f32 v{b}, v{b}, v{s1}, v{z1}",
                  f"v_cvt_pk_bf16_f32 v{out+4*j+2*h+i}, v{a}, v{b}"]
    return l
def k_st(j, out, tag="kst"):
    va = V_KST; g = []
    if j:
        va = V_KA + (j & 1); g.append(f"v_xor_b32 v{va}, {16*j}, v{V_KST}")
    g.append(VM(tag, f"buffer_store_dwordx4 v[{out+4*j}:{out+4*j+3}], v{va}, s[{S_WS}:{S_WS+3}], s{S_PK0} offen offset:{j*768}{STF}"))
    return g
def v_cv(h, buf, rs, out):
    l = []
    s0, s1, z0, z1 = V_CT, V_CT + 1, V_CT + 2, V_CT + 3
    for i in range(2):
        l += [f"v_lshlrev_b32 v{s0}, 16, v{rs+i}", f"v_and_b32 v{s1}, s{S_MASK}, v{rs+i}",
              f"v_lshlrev_b32 v{z0}, 16, v{rs+2+i}", f"v_and_b32 v{z1}, s{S_MASK}, v{rs+2+i}",
              f"v_mul_f32_e64 v{z0}, -v{z0}, v{s0}", f"v_mul_f32_e64 v{z1}, -v{z1}, v{s1}"]
        for e in range(4):
            a = buf + 4 * (2 * i) + e; b = buf + 4 * (2 * i + 1) + e
            l += [f"v_cvt_f32_i32 v{a}, v{a}", f"v_cvt_f32_i32 v{b}, v{b}",
                  f"v_fma_f32 v{a}, v{a}, v{s0}, v{z0}", f"v_fma_f32 v{b}, v{b}, v{s1}, v{z1}"]
    for e, i in [(0, 0), (1, 0), (0, 1), (1, 1), (2, 0), (2, 1), (3, 0), (3, 1)]:
        l.append(f"v_cvt_pk_bf16_f32 v{out+4*e+2*h+i}, v{buf+8*i+e}, v{buf+8*i+4+e}")
    return l
def v_st(e, out, tag="vst"):
    so = S_PV0 if e < 2 else S_PV2
    return [VM(tag, f"buffer_store_dwordx4 v[{out+4*e}:{out+4*e+3}], v{V_VST}, s[{S_WS}:{S_WS+3}], s{so} offen offset:{(e&1)*3072}{STF}")]
def k_adv():
    return [f"s_add_u32 s{S_PK0}, s{S_PK0}, {8*STAGE}", f"s_add_u32 s{S_PK1}, s{S_PK1}, {8*STAGE}", f"s_add_u32 s{S_PKS}, s{S_PKS}, {4*384}"]
def v_adv():
    return [f"s_add_u32 s{r}, s{r}, {8*STAGE}" for r in (S_PV0, S_PV1, S_PV2)] + [f"s_add_u32 s{S_PVS}, s{S_PVS}, {8*64}"]
HT = {"ka": (k_ld, k_cv, 0, BX, V_RS[0], BX), "kb": (k_ld, k_cv, 1, BY, V_RS[1], BX),
      "va": (v_ld, v_cv, 0, BZ, V_RS[0], BZ), "vb": (v_ld, v_cv, 1, BY, V_RS[1], BZ)}
def flag_post():
    return [f"v_add_u32 v{V_FVAL}, 1, v{V_FVAL}",
            VM("flag", f"buffer_store_dword v{V_FVAL}, v{V_FLAG}, s[{S_FLG}:{S_FLG+3}], 0 offen sc1")]
def poll_addr():
    return [f"v_bfe_u32 v{V_POLL+1}, v{V_DMA}, 4, 6", f"v_lshlrev_b32 v{V_POLL+1}, 2, v{V_POLL+1}"]
def poll_load():
    return poll_addr() + [VM("poll", f"buffer_load_dword v{V_POLL}, v{V_POLL+1}, s[{S_FLG}:{S_FLG+3}], 0 offen sc1")]
def poll_test():
    return [f"v_subrev_u32 v{V_POLL}, s{S_NEED}, v{V_POLL}", f"v_cmp_lt_u32 vcc, 15, v{V_POLL}", "s_nop 0", f"s_and_b32 s{S_TP}, vcc_lo, 0xff"]
def smem_flags():
    return [f"s_buffer_load_dwordx8 s[{S_PT}:{S_PT+7}], s[{S_FLG}:{S_FLG+3}], 0 glc"]
def smem_reduce():
    return [f"s_sub_u32 s{S_PT+i}, s{S_PT+i}, s{S_NEED}" for i in range(8)] + [f"s_max_u32 s{S_PT}, s{S_PT}, s{S_PT+i}" for i in range(1, 8)]
def smem_test():
    return smem_flags() + ["s_waitcnt lgkmcnt(0)"] + smem_reduce() + [f"s_cmp_lt_u32 s{S_PT}, 16"]
def poll_slow(site):
    l = [f"L_pollslow{site}:"] + ([f"s_add_u32 s{S_TAG+1}, s{S_TAG+1}, {1 << (6 * site)}"] if OPT["stamp"] else [])
    l += [f"s_mov_b32 s{S_TP}, 200", f"L_pollsm{site}:"] + smem_test() + [f"s_cbranch_scc1 L_pollok{site}",
          f"s_sub_u32 s{S_TP}, s{S_TP}, 1", f"s_cbranch_scc1 L_pollvec{site}", "s_sleep 1", f"s_branch L_pollsm{site}"]
    l += [f"L_pollvec{site}:"] + poll_addr() + [
            f"s_sub_u32 s{S_BUDGET}, s{S_BUDGET}, 1",
            f"s_cbranch_scc1 L_pollgiveup{site}",
            "s_sleep 2",
            f"buffer_load_dword v{V_POLL}, v{V_POLL+1}, s[{S_FLG}:{S_FLG+3}], 0 offen sc1",
            "s_waitcnt vmcnt(0)"] + poll_test() + [
            f"s_cbranch_scc1 L_pollvec{site}",
            f"s_branch L_pollok{site}",
            f"L_pollgiveup{site}:",
            f"s_mov_b32 s{S_BUDGET}, 0",
            f"s_branch L_pollok{site}"]
    return l
def tag_load():
    return [VM("tag", f"buffer_load_dword v{V_FVAL}, off, s[{S_DBG}:{S_DBG+3}], s{S_HOFF} sc1")]
def tag_check():
    return [f"s_cmp_lg_u32 s{S_WAVE}, 0", "s_cbranch_scc1 L_tagdone",
            f"v_readfirstlane_b32 s{S_TAG}, v{V_FVAL}", f"s_mov_b32 s{S_RET}, 100",
            "L_tagretry:", f"s_cmp_lg_u32 s{S_TAG}, 0", "s_cbranch_scc1 L_tagok",
            f"s_sub_u32 s{S_RET}, s{S_RET}, 1", "s_cbranch_scc1 L_tagslow", "s_sleep 4",
            f"s_buffer_load_dword s{S_TAG}, s[{S_DBG}:{S_DBG+3}], s{S_HOFF} glc", "s_waitcnt lgkmcnt(0)", "s_branch L_tagretry",
            "L_tagok:", f"v_mov_b32 v{V_FVAL}, s{S_TAG}", f"v_mov_b32 v{V_T}, {RING}", DS("w", f"ds_write_b32 v{V_T}, v{V_FVAL}"), "L_tagdone:"]
def tag_get():
    return [f"v_mov_b32 v{V_T}, {RING}", DS("tg", f"ds_read_b32 v{V_T+1}, v{V_T}")]
def tag_use():
    return [f"v_readfirstlane_b32 s{S_NEED}, v{V_T+1}", f"s_add_u32 s{S_NEED}, s{S_NEED}, 1"]
def tag_slow():
    return ["L_tagslow:",
            f"s_sub_u32 s{S_BUDGET}, s{S_BUDGET}, 1",
            "s_cbranch_scc1 L_taggiveup",
            "s_sleep 2",
            f"buffer_load_dword v{V_FVAL}, off, s[{S_DBG}:{S_DBG+3}], s{S_HOFF} sc1",
            "s_waitcnt vmcnt(0)",
            f"v_readfirstlane_b32 s{S_TAG}, v{V_FVAL}", "s_nop 0", f"s_cmp_eq_u32 s{S_TAG}, 0", "s_cbranch_scc1 L_tagslow",
            "s_branch L_tagok",
            "L_taggiveup:",
            f"s_mov_b32 s{S_BUDGET}, 0",
            "s_branch L_tagok"]

def text_of(x):
    return "s_waitcnt" if isinstance(x, (W, LG)) else (x.text if isinstance(x, (VM, DS)) else x)
def kind_of(x):
    t = text_of(x)
    if t.endswith(":"): return "label"
    if t.startswith("v_"): return "valu"
    if t.startswith("ds_"): return "ds"
    if t.startswith("buffer_store"): return "store"
    if t.startswith("buffer_"): return "load"
    return "salu"
def cost_of(x):
    k = kind_of(x); t = text_of(x)
    if k == "label": return 0
    if k == "store": return 20 if "x4" in t else 8
    if k == "load": return 8
    if t.startswith("ds_write"): return 16
    if t.startswith(("v_exp", "v_rcp")): return 8
    if t.startswith("s_nop"): return 4 * (int(t.split()[1]) + 1)
    if t.startswith("s_cbranch") or t.startswith("s_branch"): return 12
    if t.startswith("s_barrier"): return 8
    return 4
def gap_time(ops):
    t = 4; prev = None
    for o in ops:
        k = kind_of(o)
        if k == "label": continue
        if k == "salu": t += cost_of(o)
        else: t = max(t, 8) + cost_of(o) + (8 if (k != "valu" and prev == "valu") else 0)
        prev = k
    return t

class Stream:
    def __init__(self, ops, first, last, maxper=99, dense=0):
        self.ops = list(ops); self.first = first; self.last = last; self.maxper = maxper; self.dense = dense
        self.total = sum(cost_of(o) for o in self.ops); self.done = 0; self.i = 0

def pack(NG, A, B, C, T, streams, novm=(), nosalu=(), vmgap=4):
    out = []; over = 0; lastvm = -99
    for g in range(NG):
        a, b, c, tl = list(A[g]), list(B[g]), list(C[g]), list(T[g])
        cnt = {}; inC = set(); blocked = set()
        while True:
            best = None; bl = None; bsec = None
            for st in streams:
                if st.i >= len(st.ops) or g < st.first: continue
                force = g >= st.last
                if (cnt.get(id(st), 0) >= st.maxper or id(st) in blocked) and not force: continue
                o = st.ops[st.i]; k = kind_of(o); cst = cost_of(o)
                if k == "salu" and g in nosalu:
                    assert not force, (g, text_of(o))
                    continue
                if k in ("load", "store") and (g in novm or g - lastvm < vmgap) and not force: continue
                if k in ("load", "store", "ds"):
                    sec = "b" if id(st) not in inC and id(st) not in blocked else "c"
                    if sec == "c" and not force: continue
                elif k == "salu" and not a and cnt.get(id(st), 0) == 0:
                    sec = "a"
                else: sec = "c"
                tgt = st.total * (g - st.first + 1) / (st.last - st.first + 1)
                lag = tgt - st.done
                if not force:
                    if lag < cst / 2 - OPT["ahead"] and cst: continue
                    trial = (a + [o] if sec == "a" else a) + (b + [o] if sec == "b" else b) + (c + [o] if sec == "c" else c) + tl
                    gt = gap_time(trial)
                    if gt > 16:
                        if g % 2 == 0: continue
                        big = k == "store" or text_of(o).startswith("ds_write")
                        lim = max(20, st.dense) if lag > 24 else 16
                        if big and not (a + b + c + tl): lim = 32
                        if gt > lim: continue
                key = (force, k in ("load", "store"), lag / max(1, (st.last - g + 1)) ** 0.5)
                if best is None or key > bl: best = st; bl = key; bsec = sec
            if best is None: break
            o = best.ops[best.i]
            if bsec == "a": a.append(o)
            elif bsec == "b":
                b.append(o)
            else: c.append(o)
            if bsec == "c" or bsec == "b" and kind_of(o) != "ds" and False: inC.add(id(best))
            if bsec == "c": inC.add(id(best))
            if " m0," in text_of(o): blocked.add(id(best))
            if kind_of(o) in ("load", "store"): lastvm = g
            best.i += 1; best.done += cost_of(o); cnt[id(best)] = cnt.get(id(best), 0) + 1
        ops = a + b + c + tl
        tt = gap_time(ops)
        if tt > 16: over += tt - 16
        out.append(ops)
    for st in streams: assert st.i == len(st.ops)
    return out, over

POLLSITES = []
def gen_seg(name, groups, nxt, sm=(), bars=(), tasks=(), dma=(), extra=(), endops=(), fixed=(), peel=True, vmgap=None):
    starts = []; n = 0
    for g in groups: starts.append(n); n += len(g.mf)
    NG = n
    A = [[] for _ in range(NG)]; B = [[] for _ in range(NG)]; C = [[] for _ in range(NG)]; T = [[] for _ in range(NG)]
    streams = []; novm = set(range(0, NG, 2)); nosalu = set()
    allg = list(groups) + list(nxt)
    assert len(groups) % 3 == 0
    for i, g in enumerate(groups):
        g0 = starts[i]; ln = len(g.mf)
        if i + 2 < len(allg):
            t = allg[i + 2]
            B[g0].append(rd_op(i + 2, 0, t)); B[g0 + ln // 2].append(rd_op(i + 2, 1, t))
            if t.reb:
                assert g0 > 0
                C[g0 - 1] += t.reb
        if i + 1 < len(allg):
            A[g0 + ln - 1].append(LG(("fr", (2 * i + 2) % NFS), ("fr", (2 * i + 3) % NFS)))
    for ops, f, l in sm: streams.append(Stream(ops, f, l))
    streams += list(extra)
    if endops:
        A[NG-4] += endops[:1]; A[NG-2] += [A[NG-1][0]] + list(endops[1:-1]); A[NG-1] = []; T[NG-1] = list(endops[-1:]); nosalu |= {NG-2, NG-1}
    for grp in dma:
        dl = []
        for part, pos in grp[:-2]: dl += dma_tile(part, pos, peel)
        k = max(i for i, x in enumerate(dl) if isinstance(x, VM)) + 1
        streams.append(Stream(dl[:k], grp[-2], grp[-1], maxper=2))
        streams.append(Stream(dl[k:], min(grp[-1] + 1, NG - 3), min(NG - 3 if endops else NG - 1, grp[-1] + 12), maxper=2))
    bars = [(g, list(tg)) for g, tg in bars]
    for t in tasks:
        k_ = t[0]
        if k_ == "cv":
            _, cv, h, buf, rs, outb = HT[t[1]]
            ops = cv(h, buf, rs, outb)[t[2]:t[3]]
            if t[2] == 0: ops = [W(t[1])] + ops
            streams.append(Stream(ops, t[4], t[5]))
        elif k_ in ("kst", "vst"):
            grp = k_st(t[1], BX) if k_ == "kst" else v_st(t[1], BZ)
            g = t[2]; assert g % 2 == 1 and not B[g] and not A[g], (name, g)
            B[g].append(grp[-1]); novm |= set(range(g - OPT["sb"], g + OPT["sa"] + 1))
            if grp[:-1]: streams.append(Stream(grp[:-1], max(0, g - 5), g - 1))
        elif k_ in ("ld", "ldn"):
            ld, _, h, buf, rs, _o = HT[t[1]]
            adv = {"ka": k_adv(), "va": v_adv()}.get(t[1], []) if k_ == "ld" else []
            ops = ld(h, buf, rs, t[1])
            if len(t) > 4: ops = ops[2:] if t[4] == "raw" else ops[:2]
            streams.append(Stream(adv + ops, t[2], t[3], maxper=1))
        elif k_ == "post":
            bi = t[2] if len(t) > 2 else -1
            bars[bi][1].append(t[1])
            streams.append(Stream(flag_post(), bars[bi][0] + 1, min(NG - 3, bars[bi][0] + 14), maxper=1))
        elif k_ == "pf":
            streams.append(Stream([VM("pf", f"buffer_load_dword v15, v{V_DMA}, s[{S_DBG}:{S_DBG+3}], s{S_HOFF} offen")], t[1], t[2]))
        elif k_ == "pollld": streams.append(Stream(poll_load(), t[1], t[2], maxper=1))
        elif k_ == "pollchk":
            ps = len(POLLSITES); POLLSITES.append(ps)
            g = t[1]; assert g % 4 == 1
            pt = poll_test()
            A[g] += [W("poll")]; T[g] += pt[:2]; novm |= {g, g + 4}
            A[g + 3] += [pt[3]]; A[g + 4] += [f"s_cbranch_scc1 L_pollslow{ps}", f"L_pollok{ps}:"]; nosalu |= {g + 3, g + 4}
            A[g + 5] += [f"s_add_u32 s{S_NEED}, s{S_NEED}, 1"]
        elif k_ == "spollld": A[t[1]] += smem_flags()
        elif k_ == "spollchk":
            ps = len(POLLSITES); POLLSITES.append(ps)
            A[t[1]] += ["s_waitcnt lgkmcnt(0)"]
            streams.append(Stream(smem_reduce(), t[1] + 1, t[2] - 1, maxper=3))
            A[t[2]] += [f"s_cmp_ge_u32 s{S_PT}, 16", f"s_cbranch_scc1 L_pollslow{ps}", f"L_pollok{ps}:", f"s_add_u32 s{S_NEED}, s{S_NEED}, 1"]
        elif k_ == "step": streams.append(Stream(rd_step(t[1]), t[2], t[3], maxper=1))
        elif k_ == "q": streams.append(Stream(q_dma(t[1]), t[2], t[3], maxper=2))
        else: raise Exception(k_)
    for g, tags in bars:
        i = [j for j in range(len(groups)) if starts[j] + len(groups[j].mf) - 1 == g]
        assert i, (name, g)
        if len(groups[i[0]].mf) == 8:
            A[g - 2] += A[g]; A[g] = []
            if tags: A[g - 1] += [W(*tags)]
        elif tags: A[g - 2] += [W(*tags)]
        A[g] += ["s_barrier"]; novm |= {g}
    for g, sec, ops in fixed: {"A": A, "B": B, "C": C, "T": T}[sec][g] += ops
    if endops:
        for st_ in streams: st_.last = min(st_.last, NG - 2)
    m0w = sorted((st.first, st.last) for st in streams if any(" m0," in text_of(o) for o in st.ops))
    assert all(m0w[i][1] < m0w[i + 1][0] for i in range(len(m0w) - 1)), (name, m0w)
    fill, over = pack(NG, A, B, C, T, streams, novm, nosalu, vmgap or OPT["vmgap"])
    if over: print(f"seg {name}: over budget by {over} cycles", file=sys.stderr)
    out = istamp(name)
    g = 0
    for i, gr in enumerate(groups):
        for j, d, b, c in gr.mf:
            out.append(f"{MF} {d}, {FR(2*i+j)}, {b}, {c}")
            out += fill[g]; g += 1
    return with_nop(out)

GBAR = 79
def seg_groups(it):
    return qk_full(it + 1) if it % 2 else pv_seq(it - 2)
def gen_iter(it, tasks=(), dma=(), name=None, endops=(), peel=False, nxt=None, extra=(), bars=None, groups=None, sm=None, step=True):
    q = it % 2
    smB = softmax_part(it, 1); smA = softmax_part(it + 1, 0)
    if sm is None: sm = [(smB, 0, 50), (smA, 52, 95)] if q else [(smB + smA, 0, 95)]
    need = [("dv", (it - 1) % 8), ("dv", it % 8)] if q else [("dk", (it + 2) % 8), ("dk", (it + 3) % 8)]
    tasks = list(tasks) + ([("step", "p" if q else "q", 30, GBAR - 3)] if step else [])
    return gen_seg(name or f"i{it}", groups or seg_groups(it), nxt if nxt is not None else seg_groups(it + 1)[:2], sm,
                   bars if bars is not None else [(GBAR, need)], tasks, dma, extra, endops, peel=peel)

K_ = lambda *j: tuple(("k", x) for x in j)
V_ = lambda *j: tuple(("v", x) for x in j)
def steady(k):
    ckv, ckk = OPT["ckv"], OPT["ckk"]
    plv, plk = OPT["plv"], OPT["plk"]
    return {
        1: ([("cv", "va", 0, 22, 0, 95), ("ld", "vb", 0, 44)], [V_(2, 3) + (0, GBAR - 5)]),
        2: ([("cv", "va", 22, 99, 0, 95), ("kst", 0, 1), ("kst", 1, 9), ("kst", 2, 17), ("kst", 3, 25), ("post", "kst")], [K_(6, 7) + (33, 74)]),
        3: ([("cv", "vb", 0, 22, 0, 95), ("ld", "ka", 0, 44)], [V_(4, 5) + (0, GBAR - 5)]),
        4: ([("cv", "vb", 22, 99, 0, 95), ("pollld", plk, plk + 16)] + ([("pf", 80, 92)] if OPT["pf2"] else []), [V_(6, 7) + (0, GBAR - 5)]),
        5: ([("cv", "ka", 0, 16, 0, 95), ("pollchk", 1), ("vst", 0, 9), ("vst", 1, 17), ("vst", 2, 25), ("vst", 3, 33), ("post", "vst")], [K_(0, 1) + (41, 74)]),
        6: ([("cv", "ka", 16, 99, 0, 95), ("ld", "kb", 0, 30)], [K_(2, 3) + (31, 74)]),
        7: ([("cv", "kb", 0, 24, 40, 95), ("ld", "va", 0, 30), ("pollld", plv, plv + 10)], [K_(4, 5) + (31, 90)]),
        0: ([("cv", "kb", 24, 99, 0, 95), ("pollchk", ckv)], [V_(0, 1) + (ckv + 7, ckv + 44)]),
    }[k]

WA = [V_RS[0], V_RS[0] + 1]; RA = V_RS[0] + 2; GA = V_RS[0] + 3; TA = V_RS[0] + 4
RL = [V_CT, V_CT + 2, V_CT + 4, V_CT + 6]
S_EO = 24
def epi_addr():
    return [f"v_bfe_u32 v{TA}, v{V_DMA}, 4, 6", f"s_mul_i32 s{S_EO}, s{S_WAVE}, 6144", f"s_add_u32 s{S_EO}, s{S_EO}, {A2}",
            f"v_and_b32 v{WA[0]}, 15, v{TA}", f"v_lshrrev_b32 v{WA[1]}, 4, v{TA}", f"v_lshlrev_b32 v{WA[1]}, 1, v{WA[1]}",
            f"v_and_b32 v{TA+1}, 7, v{TA}", f"v_xor_b32 v{WA[1]}, v{WA[1]}, v{TA+1}", f"v_lshlrev_b32 v{WA[0]}, 7, v{WA[0]}",
            f"v_lshl_add_u32 v{WA[0]}, v{WA[1]}, 4, v{WA[0]}", f"v_add_u32 v{WA[0]}, s{S_EO}, v{WA[0]}", f"v_xor_b32 v{WA[1]}, 16, v{WA[0]}",
            f"v_lshrrev_b32 v{RA}, 3, v{TA}", f"v_mul_u32_u24 v{GA}, 384, v{RA}", f"v_lshl_add_u32 v{GA}, v{TA+1}, 4, v{GA}",
            f"v_xor_b32 v{RA}, v{RA}, v{TA}", f"v_lshlrev_b32 v{RA}, 4, v{RA}", f"v_add_u32 v{RA}, s{S_EO}, v{RA}",
            f"s_lshl_b32 s{S_EO}, s{S_QB}, 2", f"s_add_u32 s{S_EO}, s{S_EO}, s{S_WAVE}", f"s_mul_i32 s{S_EO}, s{S_EO}, {STAGE}",
            f"s_add_u32 s{S_QL}, s{S_EO}, 6144", f"s_add_u32 s{S_QS}, s{S_EO}, 12288", f"s_add_u32 s{S_TAG}, s{S_EO}, 18432"]
S_EQ = [S_EO, S_QL, S_QS, S_TAG]
def epi_l(qs):
    fl = []
    for sw in ("v_permlane16_swap_b32", "v_permlane32_swap_b32"):
        fl += [f"v_mov_b32 v{RL[q]}, v{V_L[q]}" for q in qs] + ["s_nop 0"]
        fl += [f"{sw} v{V_L[q]}, v{RL[q]}" for q in qs] + ["s_nop 0"]
        fl += [f"v_add_f32 v{V_L[q]}, v{V_L[q]}, v{RL[q]}" for q in qs]
    return fl + [f"v_rcp_f32 v{RL[q]}, v{V_L[q]}" for q in qs] + ["s_nop 0"]
class Epi:
    def __init__(self, temps, rbs): self.temps = temps; self.rbs = rbs; self.n = 0; self.pend = []
    def flush(self):
        p = []
        for qb, n, h, reg, tag in self.pend:
            p += [LG(tag), VM("out", f"buffer_store_dwordx4 v[{reg}:{reg+3}], v{GA}, s[{S_OUT}:{S_OUT+3}], s{S_EQ[qb]} offen offset:{n*128 + h*3072}{OF}")]
        self.pend = []
        return p
    def chunk(self, qb, n, pk=False):
        p = []; c = self.n; self.n += 1
        lb = (c % 3) * 2048
        for half in range(2):
            ob = self.temps[(2 * c + half) % len(self.temps)]
            for tt in range(8):
                r, e = divmod(8 * half + tt, 4)
                p.append(f"v_accvgpr_read_b32 v{ob+tt}, a{O(qb,3*e+n)+r}")
            if pk: p += [f"v_pk_mul_f32 v[{ob+2*i}:{ob+2*i+1}], v[{ob+2*i}:{ob+2*i+1}], v[{RL[qb]}:{RL[qb]+1}] op_sel_hi:[1,0]" for i in range(4)]
            else: p += [f"v_mul_f32 v{ob+i}, v{ob+i}, v{RL[qb]}" for i in range(8)]
            p += [f"v_cvt_pk_bf16_f32 v{ob+i}, v{ob+2*i}, v{ob+2*i+1}" for i in range(4)]
            if self.pend:
                x = self.pend.pop(0); rest = self.pend; self.pend = [x]; p += self.flush(); self.pend = rest
            p.append(DS("w", f"ds_write_b128 v{WA[half]}, v[{ob}:{ob+3}] offset:{lb}"))
        p += self.flush()
        for h in range(2):
            reg = self.rbs[(2 * c + h) % len(self.rbs)]; tag = ("rb", c % 4, h)
            p.append(DS(tag, f"ds_read_b128 v[{reg}:{reg+3}], v{RA} offset:{lb + h*1024}"))
            self.pend.append((qb, n, h, reg, tag))
        return p

def gen_tail():
    sp = softmax_part
    g57 = qk_half(58) + rebase(qk_half(59), V_RDK, A0 - A2)
    g58 = pv_seq(56)
    g59 = rebase(qk_half(60), V_RDK, A1 - A0) + rebase(qk_half(61), V_RDK, A2 - A1)
    g60 = rebase(pv_seq(58), [V_RD], B2 - B1) + rebase(pv_seq(59), [V_RD], B0 - B2)
    g61 = rebase(pv_seq(60), [V_RD], B1 - B0) + rebase(qk_half(62), V_RDK, A0 - A2)
    g62 = rebase(qk_half(63), V_RDK, A1 - A0) + rebase(pv_seq(61), [V_RD], B2 - B1)
    g63 = []
    for n in range(3):
        for e in range(4): g63 += [pv_grp(62, 3 * e + n), pv_grp(63, 3 * e + n, va=V_RD2)]
    g63[0].reb += [f"v_subrev_u32 v{V_RD2}, {B2 - B1}, v{V_RD}", f"v_subrev_u32 v{V_RD}, {B2 - B0}, v{V_RD}"]
    first57 = g57[:2]
    p = []
    p += gen_seg("S57", g57, g58[:2], [(sp(57, 1), 0, 40), (sp(58, 0), 41, 95)], [(GBAR, [("dv", 0), ("dv", 1)])],
                 [("step", "p", 30, GBAR - 3)], [K_(62, 63) + V_(58, 59) + (0, 74)], peel=False)
    p += gen_seg("S58", g58, g59[:2], [(sp(58, 1) + sp(59, 0) + sp(59, 1), 0, 95)], [(GBAR, [("dk", 7), ("dv", 3)])], [], [V_(60, 61) + (0, 40)], peel=False)
    p += gen_seg("S59", g59, g60[:2], [(epi_addr(), 0, 30), (sp(60, 0), 31, 60), (sp(60, 1), 61, 95)], [(15, [("dv", 5)])], [], [V_(62, 63) + (16, 50)], peel=False)
    p += gen_seg("S60", g60, g61[:2], [(sp(61, 0) + sp(61, 1) + epi_l((0, 1)), 0, 95)], [(GBAR, [("dv", 7)])])
    ep = Epi([BX, BX + 8, BY, BY + 8], [BZ, BZ + 4, BZ + 8, BZ + 12, NEGM(0), NEGM(1)])
    e01 = [x for qb in (0, 1) for n in range(3) for x in ep.chunk(qb, n)] + ep.flush()
    n1 = OPT.get("e1", 100)
    td = OPT["tden"]
    p += gen_seg("S61", g61, g62[:2], [(sp(62, 0), 78, 95)], extra=[Stream(e01[:n1], 52, 95, dense=td)])
    p += gen_seg("S62", g62, g63[:2], [(sp(62, 1), 2, 30), (sp(63, 0), 31, 60), (sp(63, 1), 61, 95)], extra=[Stream(e01[n1:], 0, 95, dense=td)])
    chk = [f"v_max3_f32 v{V_T}, v{V_L[0]}, v{V_L[1]}, v{V_L[2]}", f"v_max_f32 v{V_T}, v{V_T}, v{V_L[3]}",
           f"s_mov_b32 s{S_TMP}, 0x{f32bits(2.0**OPT['thr']):08x}", f"v_cmp_lt_f32 vcc, s{S_TMP}, v{V_T}"]
    c0 = ep.chunk(2, 0) + ep.chunk(3, 0)
    c1 = ep.chunk(2, 1) + ep.chunk(3, 1)
    p += gen_seg("S63", g63, [], [(epi_l((2, 3)) + chk, 0, 24)], extra=[Stream(c0, 36, 67, dense=td), Stream(c1, 68, 95, dense=td)],
                 fixed=[(29, "A", ["s_cbranch_vccnz L_slow"])])
    p += istamp("fin") + ["s_nop 7"] + ep.chunk(2, 2, True) + ep.chunk(3, 2, True) + ep.flush()
    return first57, p
def slow_epi():
    ep = Epi([64 + 8 * i for i in range(8)], [128 + 4 * i for i in range(8)])
    seq = epi_l((0, 1)) + epi_l((2, 3))
    for qb in range(4):
        for n in range(3): seq += ep.chunk(qb, n, True)
    return seq + ep.flush()

def kfrag(g):
    return 2 * (g >> 2) + (g & 1), (g >> 1) & 1
def gen_slow():
    KF = 64; VF = 112; SS = 160; PP = 224; M = [240, 241, 242, 243]; KA = [244, 245]; LA = 246; t = V_T
    p = ["L_slow:", "s_waitcnt vmcnt(0) lgkmcnt(0)", "s_nop 15"]
    for i in range(192): p.append(f"v_accvgpr_write_b32 a{i}, 0")
    for q in range(4): p += [f"v_mov_b32 v{V_L[q]}, 0", f"v_mov_b32 v{M[q]}, 0xff7fffff"]
    p += [f"v_subrev_u32 v{KA[0]}, {A1}, v{V_RDK[0]}", f"v_subrev_u32 v{KA[1]}, {A1}, v{V_RDK[1]}", f"v_subrev_u32 v{LA}, {B0}, v{V_RD}",
          f"s_mov_b32 s{S_PT}, 0", "L_slowloop:"]
    for i in range(1, 5): p.append(f"s_add_u32 s{S_PT+i}, s{S_PT}, {[0, 6144, 12288, 16384, 20480][i]}")
    for f in range(12):
        s, tb = kfrag(f)
        p.append(f"buffer_load_dwordx4 v[{KF+4*f}:{KF+4*f+3}], v{KA[s&1]}, s[{S_WS}:{S_WS+3}], s{S_PT+tb} offen offset:{(s>>1)*128} sc1")
    for db in range(12):
        p.append(f"buffer_load_dwordx4 v[{VF+4*db}:{VF+4*db+3}], v{LA}, s[{S_WS}:{S_WS+3}], s{S_PT+2+db//4} offen offset:{(db%4)*1024} sc1")
    p.append("s_waitcnt vmcnt(12)")
    for f in range(12):
        s, tb = kfrag(f)
        for qb in range(4):
            d = vr(SS + 8 * qb + 4 * tb, 4)
            p.append(f"{MF} {d}, v[{KF+4*f}:{KF+4*f+3}], {Qf(qb,s)}, {'0' if s == 0 else d}")
    p.append("s_nop 9")
    for qb in range(4):
        sb = SS + 8 * qb
        p += [f"v_max3_f32 v{t}, v{sb}, v{sb+1}, v{sb+2}", f"v_max3_f32 v{t}, v{t}, v{sb+3}, v{sb+4}",
              f"v_max3_f32 v{t}, v{t}, v{sb+5}, v{sb+6}", f"v_max3_f32 v{t}, v{t}, v{sb+7}, v{M[qb]}"]
        p += xlane("v_max_f32", t)
        p += [f"v_sub_f32 v{t+1}, v{M[qb]}, v{t}", f"v_exp_f32 v{t+1}, v{t+1}", f"v_mov_b32 v{M[qb]}, v{t}"]
        for i in range(8): p.append(f"v_sub_f32 v{sb+i}, v{sb+i}, v{t}")
        for i in range(8): p.append(f"v_exp_f32 v{sb+i}, v{sb+i}")
        p.append(f"v_mul_f32 v{V_L[qb]}, v{V_L[qb]}, v{t+1}")
        for i in range(8): p.append(f"v_add_f32 v{V_L[qb]}, v{V_L[qb]}, v{sb+i}")
        for i in range(4): p.append(f"v_cvt_pk_bf16_f32 v{PP+4*qb+i}, v{sb+2*i}, v{sb+2*i+1}")
        for i in range(48):
            a = O(qb, 0) + i; tt = t + 2 + (i % 2)
            p += [f"v_accvgpr_read_b32 v{tt}, a{a}", f"v_mul_f32 v{tt}, v{tt}, v{t+1}", f"v_accvgpr_write_b32 a{a}, v{tt}"]
    p += ["s_waitcnt vmcnt(0)", "s_nop 1"]
    for db in range(12):
        for qb in range(4):
            d = ar(O(qb, db), 4)
            p.append(f"{MF} {d}, v[{VF+4*db}:{VF+4*db+3}], v[{PP+4*qb}:{PP+4*qb+3}], {d}")
    p += [f"s_add_u32 s{S_PT}, s{S_PT}, {STAGE}", f"s_cmp_lt_u32 s{S_PT}, {HEADBYTES}", "s_nop 7", "s_cbranch_scc1 L_slowloop"]
    e = slow_epi(); resolve(e)
    return p + fin(e) + ["s_branch L_fin"]

def xlane(op, t, u=None):
    u = t + 1 if u is None else u
    l = []
    for sw in ("v_permlane16_swap_b32", "v_permlane32_swap_b32"):
        l += [f"v_mov_b32 v{u}, v{t}", "s_nop 1", f"{sw} v{t}, v{u}", "s_nop 1", f"{op} v{t}, v{t}, v{u}"]
    return l
def rowmax2(t, qs, tq):
    l = []
    ab = [(Sq(t, j, 0), Sq(t, j, 1)) for j in range(2)]
    l += [f"v_max3_f32 v{tq[j]}, v{a}, v{a+1}, v{a+2}" for j, (a, b) in enumerate(ab)]
    l += [f"v_max3_f32 v{tq[j]}, v{tq[j]}, v{a+3}, v{b}" for j, (a, b) in enumerate(ab)]
    l += [f"v_max3_f32 v{tq[j]}, v{tq[j]}, v{b+1}, v{b+2}" for j, (a, b) in enumerate(ab)]
    l += [f"v_max_f32 v{tq[j]}, v{tq[j]}, v{b+3}" for j, (a, b) in enumerate(ab)]
    for sw in ("v_permlane16_swap_b32", "v_permlane32_swap_b32"):
        l += [f"v_mov_b32 v{tq[j]+1}, v{tq[j]}" for j in range(2)] + ["s_nop 0"]
        l += [f"{sw} v{tq[j]}, v{tq[j]+1}" for j in range(2)] + ["s_nop 0"]
        l += [f"v_max_f32 v{tq[j]}, v{tq[j]}, v{tq[j]+1}" for j in range(2)]
    l += [f"v_sub_f32 v{NEGM(qs[j])+i}, 0, v{tq[j]}" for j in range(2) for i in range(4)]
    return l
def addneg(t, sl):
    n = NEGM(slot_q(t, sl))
    return [f"v_add_f32 v{Sq(t,sl,tb)+i}, v{Sq(t,sl,tb)+i}, v{n}" for tb in range(2) for i in range(4)]

def resolve(seq):
    vm = []; ds = []
    for x in seq:
        if isinstance(x, VM): vm.append(x.tag)
        elif isinstance(x, DS): ds.append(x.tag)
        elif isinstance(x, (W, LG)):
            q = vm if isinstance(x, W) else ds
            best = None
            for tag in x.tags:
                n = 0; found = False
                for t in reversed(q):
                    if t == tag: found = True; break
                    n += 1
                if found: best = n if best is None else min(best, n)
            if best is not None:
                x.n = best if getattr(x, "n", None) is None else min(x.n, best)
        else:
            assert not x.startswith(("ds_", "buffer_")) or "UNTRACKED" in x, x
def vm_size(x):
    t = x.text
    if t.startswith("buffer_store"): return 0
    if " lds" in t: return 1.0
    if "dwordx4" in t: return 0.75
    if "dwordx2" in t and "offen" in t: return 0.375
    return 0.125
def pace(seq, cap):
    out = []; q = []; on = False
    for x in seq:
        if isinstance(x, W): q = q[len(q) - min(len(q), x.n):]; on = True
        elif isinstance(x, VM):
            sz = vm_size(x)
            if on and not x.text.startswith("buffer_store") and sum(q) + sz > cap:
                while q and sum(q) + sz > cap: q.pop(0)
                w = W(); w.n = len(q)
                if out and out[-1] == "s_nop 0": out.pop()
                out.append(w)
            q.append(sz)
        out.append(x)
    return out
def fin(seq):
    out = []
    for x in seq:
        if isinstance(x, (W, LG)):
            assert getattr(x, "n", None) is not None, x.tags
            out.append(f"s_waitcnt vmcnt({min(x.n, 63)})" if isinstance(x, W) else f"s_waitcnt lgkmcnt({min(x.n, 15)})")
        elif isinstance(x, (VM, DS)): out.append(x.text)
        else: out.append(x.replace(" ;UNTRACKED", ""))
    return out
def srd(p, s, lo, hi, off_s, size):
    p += [f"s_add_u32 s{s}, s{lo}, s{off_s}", f"s_addc_u32 s{s+1}, s{hi}, 0", f"s_mov_b32 s{s+2}, {size}", f"s_mov_b32 s{s+3}, 0x20000"]

def gen_main():
    p = []
    p += [f"{NAME}_kernel:", "s_cmp_ge_u32 s2, 256", "s_cbranch_scc1 L_done",
          "s_load_dwordx16 s[40:55], s[0:1], 0", "s_load_dwordx4 s[16:19], s[0:1], 64"]
    if OPT["stamp"]: p += ["s_memrealtime s[98:99]" if OPT["stamp"] == 8 else "s_memtime s[98:99]"]
    p += [f"s_and_b32 s{S_HEAD}, s2, 7", f"s_lshr_b32 s{S_QB}, s2, 3", f"s_lshr_b32 s24, s{S_QB}, 3", f"s_lshl_b32 s{S_HEAD}, s{S_HEAD}, 2",
          f"s_add_u32 s{S_HEAD}, s{S_HEAD}, s24", f"s_and_b32 s{S_QB}, s{S_QB}, 7"]
    p += ["s_getpc_b64 s[60:61]", "L_pc:", f"s_sub_u32 s60, s60, L_pc-{NAME}_kernel", "s_subb_u32 s61, s61, 0",
          f"s_mov_b32 s62, L_slow-{NAME}_kernel", "s_mov_b32 s63, 0x20000",
          "s_lshr_b32 s22, s2, 3", "s_lshl_b32 s22, s22, 12",
          "v_lshlrev_b32 v30, 4, v0",
          VM("pf", "buffer_load_dwordx4 v[128:131], v30, s[60:63], s22 offen")]
    p += ["v_lshrrev_b32 v24, 6, v0",
          "v_and_b32 v25, 63, v0",
          f"v_readfirstlane_b32 s{S_WAVE}, v24",
          f"v_lshlrev_b32 v{V_RD}, 4, v25",
          "v_mul_u32_u24 v26, 43, v25", "v_lshrrev_b32 v26, 10, v26",
          "v_mul_u32_u24 v27, 24, v26",
          "v_sub_u32 v27, v25, v27",
          "v_lshrrev_b32 v28, 1, v24",
          "v_and_b32 v29, 1, v24",
          "v_lshlrev_b32 v30, 4, v29",
          "v_lshl_add_u32 v30, v28, 2, v30",
          "v_add_u32 v30, v30, v26",
          "v_mul_u32_u24 v30, 768, v30",
          "v_lshrrev_b32 v48, 1, v26", "v_lshlrev_b32 v48, 30, v48",
          "v_lshl_add_u32 v30, v27, 4, v30", f"v_or_b32 v{V_KLD}, v30, v48",
          f"v_lshl_or_b32 v{V_KSC}, v27, 3, v48",
          "v_mul_u32_u24 v30, 6144, v24",
          f"v_add3_u32 v{V_VLD}, v30, v{V_RD}, v48"]
    for sd, size in ((S_QK, HEADBYTES), (S_QV, HEADBYTES), (S_KS, 12288), (S_KZ, 12288), (S_VS, 4096), (S_VZ, 4096), (S_FLG, 32)):
        p += [f"s_mov_b32 s{sd+2}, {size}", f"s_mov_b32 s{sd+3}, 0x20000"]
    p += [f"s_mul_i32 s{S_PK0}, s{S_QB}, {STAGE}", f"s_add_u32 s{S_PK1}, s{S_PK0}, 6144", f"s_mov_b32 s{S_PV0}, s{S_PK0}",
          f"s_lshr_b32 s{S_PKS}, s{S_QB}, 1", f"s_mul_i32 s{S_PKS}, s{S_PKS}, 384", f"s_lshl_b32 s{S_PVS}, s{S_QB}, 6",
          f"s_lshl_b32 s24, s{S_WAVE}, 4", f"s_add_u32 s{S_PVS}, s{S_PVS}, s24",
          f"s_mul_i32 s24, s{S_HEAD}, {HEADBYTES}", f"s_mul_i32 s56, s{S_HEAD}, 12288", f"s_lshl_b32 s57, s{S_HEAD}, 12",
          f"s_lshl_b32 s58, s{S_HEAD}, 10", f"s_add_u32 s58, s58, {FLAG_OFF}",
          f"s_or_b32 s{S_RET}, s{S_QB}, s{S_WAVE}"]
    p += ["s_waitcnt lgkmcnt(0)"] + istamp("karg", True)
    def base(sd, lo, off): return [f"s_add_u32 s{sd}, s{lo}, s{off}", f"s_addc_u32 s{sd+1}, s{lo+1}, 0"]
    p += base(S_QK, 42, 24) + base(S_KS, 46, 56) + base(S_KZ, 48, 56)
    kl = [k_ld(0, 64, 32, "k0a"), k_ld(1, 80, 36, "k0b")]; vl = [v_ld(0, 96, 40, "v0a"), v_ld(1, 112, 44, "v0b")]
    for x in kl[1][:2]: x.tag = "k0a"
    for x in vl[1][:2]: x.tag = "v0a"
    if OPT["ksc"]:
        for x in kl[0][2:] + kl[1][2:]: x.tag = "kraw"
        for x in kl[1][:2]: x.tag = "k0b"
        p += kl[0][2:] + kl[1][2:] + kl[0][:2] + kl[1][:2]; kl[1] = []
    else: p += kl[0][2:] + kl[0][:2] + kl[1][:2]
    p += base(S_FLG, 18, 58) + base(S_VS, 50, 57) + base(S_VZ, 52, 57) + base(S_QV, 44, 24)
    p += [f"s_mul_i32 s59, s{S_HEAD}, 786432"] + base(S_OUT, 54, 59)
    p += [f"s_cmp_lg_u32 s{S_RET}, 0", "s_cbranch_scc1 L_notleader0"] + smem_flags() + ["L_notleader0:"]
    p += kl[1][2:]
    srd(p, S_WS, 18, 19, 24, HEADBYTES)
    srd(p, S_Q, 40, 41, 59, 786432)
    p += [f"s_mov_b32 s{S_DBG}, s16", f"s_mov_b32 s{S_DBG+1}, s17", f"s_add_u32 s{S_PV1}, s{S_PK0}, 3072", f"s_add_u32 s{S_PV2}, s{S_PK0}, 6144"]
    p += [f"s_mov_b32 s{S_DBG+2}, 256", f"s_mov_b32 s{S_DBG+3}, 0x20000", f"s_lshl_b32 s{S_HOFF}, s{S_HEAD}, 3"]
    if OPT["touch"]:
        p += [f"s_buffer_load_dword s44, s[{S_WS}:{S_WS+3}], s{S_PK0}", f"s_buffer_load_dword s45, s[{S_FLG}:{S_FLG+3}], 0",
              f"s_mul_i32 s24, s{S_PK0}, 4", f"s_buffer_load_dword s46, s[{S_Q}:{S_Q+3}], s24"]
    p += [f"s_cmp_lg_u32 s{S_RET}, 0", "s_cbranch_scc1 L_notleader", "s_waitcnt lgkmcnt(0)", f"s_mov_b32 s{S_TP}, 1"]
    for i in range(8):
        p += [f"s_lshr_b32 s{S_PT+i}, s{S_PT+i}, 8", f"s_min_u32 s{S_PT+i}, s{S_PT+i}, 31", f"s_bitset1_b32 s{S_TP}, s{S_PT+i}"]
    p += [f"s_ff0_i32_b32 s{S_TP}, s{S_TP}", f"s_lshl_b32 s{S_TP}, s{S_TP}, 8", f"v_mov_b32 v{V_POLL}, s{S_TP}",
          "s_mov_b64 exec, 1", f"buffer_store_dword v{V_POLL}, off, s[{S_DBG}:{S_DBG+3}], s{S_HOFF} sc1 ;UNTRACKED", "s_mov_b64 exec, -1",
          "L_notleader:"]
    p += vl[0][2:] + vl[0][:2] + vl[1][:2] + istamp("iss", True)
    p += [f"s_mov_b32 s{S_OUT+2}, 786432", f"s_mov_b32 s{S_OUT+3}, 0x20000"]
    p += [f"s_lshl_b32 s24, s{S_WAVE}, 8", f"s_add_u32 s{S_HOFF}, s{S_HOFF}, s24"]
    p += ["v_mul_u32_u24 v30, 3072, v24", f"v_add_u32 v{V_DMA}, v30, v{V_RD}"]
    p += ["v_lshl_add_u32 v30, v24, 3, v26",
          "v_mul_u32_u24 v30, 384, v30",
          "v_lshlrev_b32 v31, 2, v29",
          "v_xor_b32 v31, v27, v31",
          "v_lshl_add_u32 v30, v31, 4, v30", f"v_or_b32 v{V_KST}, v30, v48",
          "v_lshlrev_b32 v30, 8, v24",
          "v_add_u32 v30, 12288, v30",
          "v_lshrrev_b32 v31, 4, v25", "v_lshl_add_u32 v30, v31, 10, v30", "v_and_b32 v31, 15, v25",
          "v_lshl_add_u32 v30, v31, 4, v30", f"v_or_b32 v{V_VST}, v30, v48"]
    p += [f"s_lshl_b32 s24, s{S_QB}, 2",
          f"v_lshl_add_u32 v{V_FLAG}, v0, 2, s24", f"v_cmp_lt_u32 vcc, 0, v0", "v_mov_b32 v30, 0x40000000", "s_nop 0",
          f"v_cndmask_b32 v{V_FLAG}, v{V_FLAG}, v30, vcc"]
    p += [f"s_mul_i32 s{S_DMK}, s{S_WAVE}, 3072", f"s_add_u32 s{S_DMK}, s{S_DMK}, 12288", f"s_add_u32 s{S_DMV}, s{S_DMK}, {STAGE}",
          f"s_add_u32 s24, s{S_QB}, 1", "s_and_b32 s24, s24, 7", f"s_mul_i32 s{S_GOFFK}, s24, {STAGE}", f"s_add_u32 s{S_GOFF}, s{S_GOFFK}, 12288",
          f"s_mov_b32 s{S_RK}, {A2}", f"s_mov_b32 s{S_RV}, {B1}", f"v_add_u32 v{V_RD}, {B0}, v{V_RD}",
          f"s_mov_b32 s{S_CS}, 0x{f32bits(CSCALE):08x}", f"s_mov_b32 s{S_MASK}, 0xffff0000",
          f"s_mov_b32 s{S_BUDGET}, 100000"] + ([f"s_mov_b32 s{S_TAG+1}, 0"] if OPT["stamp"] else [])
    p += ["v_and_b32 v26, 15, v25", "v_lshrrev_b32 v27, 4, v25", "v_bfe_u32 v28, v25, 1, 3",
          "v_xor_b32 v29, v27, v28", "v_mul_u32_u24 v30, 384, v26", f"v_lshl_add_u32 v{V_RDK[0]}, v29, 4, v30",
          f"v_xor_b32 v{V_RDK[1]}, 64, v{V_RDK[0]}"]
    p += [f"s_mul_i32 s{S_QL}, s{S_WAVE}, 6144", f"s_add_u32 s{S_QL}, s{S_QL}, {A2}",
          "v_lshrrev_b32 v29, 1, v27", "v_xor_b32 v29, v29, v28", "v_lshl_add_u32 v31, v29, 4, v30",
          "v_and_b32 v29, 1, v27", "v_lshl_add_u32 v31, v29, 3, v31"]
    for kk in range(4):
        p += [f"v_xor_b32 v{VQR[kk]}, {32*kk}, v31", f"v_add_u32 v{VQR[kk]}, s{S_QL}, v{VQR[kk]}"]
    p += [f"s_lshl_b32 s24, s{S_QB}, 2", f"s_add_u32 s24, s24, s{S_WAVE}", f"s_mul_i32 s24, s24, {STAGE}"]
    for b in range(6):
        p += [f"v_add_u32 v26, {64*b}, v25", "v_mul_u32_u24 v27, 2731, v26", "v_lshrrev_b32 v27, 17, v27",
              "v_and_b32 v27, 7, v27", "v_xor_b32 v26, v26, v27", f"v_lshlrev_b32 v{VQD+b}, 4, v26", f"v_add_u32 v{VQD+b}, s24, v{VQD+b}"]
    for q in range(4): p.append(f"v_mov_b32 v{V_L[q]}, 0")
    def own_k(b):
        l = []
        for j in range(4):
            l += k_st(j, b, "kst")
            va = V_KST if j == 0 else V_KA + (j & 1)
            l += ["s_mov_b64 exec, s[62:63]", DS("w", f"ds_write_b128 v{va}, v[{b+4*j}:{b+4*j+3}] offset:{j*768}"), "s_mov_b64 exec, -1"]
        return l
    def own_v(b):
        l = [x for e in range(4) for x in v_st(e, b, "vst")]
        l += ["s_mov_b64 exec, s[62:63]"] + [DS("w", f"ds_write_b128 v{V_VST}, v[{b+4*e}:{b+4*e+3}] offset:{STAGE - 12288 + e*3072}") for e in range(4)] + ["s_mov_b64 exec, -1"]
        return l
    p += ["s_mov_b32 s62, -1", "s_mov_b32 s63, 0xffff"]
    qa = OPT["qa"]
    p += istamp("pre-k0a", True) + [W("k0a")] + istamp("k0a", True) + vl[1][2:] + k_cv(0, 64, 32, 64) + [W("k0b")] + istamp("k0b", True) + k_cv(1, 80, 36, 64) + own_k(64)
    p += tag_load() + with_nop(q_dma(list(range(0, qa)))) + istamp("kst", True)
    p += [W("tag")] + tag_check() + istamp("tag", True)
    p += ["s_waitcnt lgkmcnt(0)", "s_barrier"] + flag_post() + tag_get() + with_nop(q_dma(list(range(qa, OPT["qb"])))) + istamp("postK", True)
    p += v_cv(0, 96, 40, 96) + [LG("tg")] + tag_use() + v_cv(1, 112, 44, 96) + own_v(96)
    p += istamp("vst", True)
    p += k_adv() + v_adv()
    if OPT["pf2"]:
        p += [f"s_mov_b32 s{S_DBG}, s60", f"s_mov_b32 s{S_DBG+1}, s61", f"s_mov_b32 s{S_DBG+2}, L_slow-{NAME}_kernel",
              "s_lshr_b32 s24, s2, 3", f"s_mul_i32 s{S_HOFF}, s24, 43", f"s_lshr_b32 s{S_HOFF}, s{S_HOFF}, 7",
              f"s_mul_i32 s{S_RET}, s{S_HOFF}, 3", f"s_sub_u32 s24, s24, s{S_RET}", "s_lshl_b32 s24, s24, 10",
              f"s_mul_i32 s{S_HOFF}, s{S_HOFF}, 12288", f"s_add_u32 s{S_HOFF}, s{S_HOFF}, s24"]
    KF = 144
    for f in range(12):
        s, tb = kfrag(f)
        p.append(DS("kf", f"ds_read_b128 v[{KF+4*f}:{KF+4*f+3}], v{V_RDK[s&1]} offset:{tb*6144 + (s>>1)*128}"))
    ps = len(POLLSITES); POLLSITES.append(ps)
    if OPT["w0poll"]: p += [f"s_cmp_lg_u32 s{S_WAVE}, 0", f"s_cbranch_scc1 L_pollok{ps}"]
    p += smem_flags() + ["s_waitcnt lgkmcnt(0)"] + smem_reduce() + [f"s_cmp_ge_u32 s{S_PT}, 16", f"s_cbranch_scc1 L_pollslow{ps}", f"L_pollok{ps}:",
          f"s_add_u32 s{S_NEED}, s{S_NEED}, 1"] + ["s_barrier"] * OPT["w0poll"] + istamp("pollK", True)
    p += with_nop(dma_tile("k", 1, True) + q_dma(list(range(OPT["qb"], 12)))) + istamp("dmaK", True)
    def qk0(qb):
        l = []
        for f in sorted(range(12), key=lambda f: kfrag(f)[::-1]):
            s, tb = kfrag(f)
            d = vr(Sq(0, qb, tb), 4)
            l.append(f"{MF} {d}, v[{KF+4*f}:{KF+4*f+3}], {Qf(qb,s)}, {'0' if s == 0 else d}")
        return l
    p += [W(("q", 0))] + istamp("q0", True) + q_frags(0) + ["s_waitcnt lgkmcnt(0)"] + qk0(0)
    p += [W("vst"), "s_barrier"] + flag_post() + istamp("postV", True)
    p += with_nop(dma_tile("k", 2, True) + dma_tile("k", 3, True))
    p += [W(("q", 1))] + istamp("q1", True) + q_frags(1) + ["s_waitcnt lgkmcnt(0)"] + qk0(1) + with_nop(q_dma(list(range(12, 18))))
    p += rowmax2(0, (0, 1), (V_CT, V_CT + 2)) + addneg(0, 0) + addneg(0, 1) + softmax_part(0, 0)
    sp = softmax_part
    g1 = qk_half(0, ws=(1,))
    g2 = rebase(qk_half(1), V_RDK, A1 - A0)
    g3 = pv_unchained(0, True)
    g4 = rebase(pv_unchained(1), [V_RD], B1 - B0)
    g5 = rebase(qk_half(2, True), V_RDK, A0 - A1) + rebase(qk_half(3), V_RDK, A1 - A0)
    gi3 = rebase(qk_full(4), V_RDK, A2 - A1)
    gi4 = rebase(pv_seq(2, True), [V_RD], B0 - B1) + rebase(pv_seq(3), [V_RD], B1 - B0)
    p += istamp("pre-dk1", True) + [W(("dk", 1)), "s_barrier"] + [rd_op(i, j, g1[i]) for i in range(2) for j in range(2)]
    p += [LG(("fr", 0), ("fr", 1))]
    if OPT["q3e"]:
        p += gen_seg("S1", g1, g2[:2], [], [(15, [("dk", 3)])], [("spollld", 9), ("q", list(range(18, 21)), 0, 23)])
        p += gen_seg("S2", g2, g3[:2], [(sp(0, 1), 3, 47)], [], [("spollchk", 1, 9), ("q", list(range(21, 24)), 34, 47)], [V_(1, 2, 3) + (10, 33)], vmgap=2)
    else:
        p += gen_seg("S1", g1, g2[:2], [], [(15, [("dk", 3)])], [("spollld", 9)])
        p += gen_seg("S2", g2, g3[:2], [(sp(0, 1), 3, 47)], [], [("spollchk", 1, 9), ("q", list(range(18, 24)), 32, 47)], [V_(1, 2, 3) + (10, 31)], vmgap=2)
    p += gen_seg("S3", g3, g4[:2], [(sp(1, 0), 0, 47)], [(15, [("dv", 1)]), (39, [("dv", 3)])], [("ldn", "ka", 0, 22), ("ldn", "kb", 23, 46)])
    p += gen_seg("S4", g4, g5[:2], [(sp(1, 1), 0, 21)], [], [("ldn", "va", 0, 22, "raw")],
                 extra=[Stream([W(("q", 2))] + q_frags(2), 22, 34), Stream([W(("q", 3))] + q_frags(3), 35, 46)])
    p += istamp("pre-S5", True) + ["s_waitcnt lgkmcnt(0)", "s_barrier"]
    p += gen_seg("S5", g5, gi3[:2], [(rowmax2(2, (2, 3), (V_T, V_T + 2)), 27, 45), (addneg(2, 0) + addneg(2, 1) + sp(2, 0) + addneg(2, 2) + addneg(2, 3) + sp(2, 1), 46, 95)],
                 [(GBAR + 8, [("dk", 5)])], [], [K_(4, 5) + (1, 24)])
    p += gen_seg("i3", gi3, gi4[:2], [(sp(3, 0) + sp(3, 1), 0, 54), (sp(4, 0), 55, 95)], [(GBAR, [])],
                 [("cv", "ka", 0, 99, 0, 40), ("cv", "kb", 0, 99, 41, 68), ("kst", 0, 69), ("kst", 1, 73), ("kst", 2, 85), ("kst", 3, 89), ("ldn", "va", 42, 62, "sc")],
                 [K_(6, 7) + V_(4, 5) + (0, 60)])
    p += gen_seg("i4", gi4, seg_groups(5)[:2], [(sp(4, 1) + sp(5, 0), 0, 95)], [(47, []), (GBAR + 8, [("dk", 7)])],
                 [("ld", "vb", 0, 22), ("post", "kst", 0), ("cv", "va", 0, 99, 10, 95), ("step", "q", 30, 70)], [V_(6, 7) + (52, 84)])
    p += gen_iter(5, [("pollld", 2, 10), ("ld", "ka", 11, 40), ("pollchk", 41), ("cv", "vb", 0, 99, 30, 80), ("ld", "kb", 81, 95)], [K_(8, 9) + (48, 78)], peel=True)
    p += [f"s_mov_b32 s{S_CNT}, 7"]
    p += gen_iter(6, [("vst", 0, 1), ("vst", 1, 9), ("vst", 2, 17), ("vst", 3, 25), ("post", "vst"), ("cv", "ka", 0, 99, 20, 94)], [K_(10, 11) + (33, 74)],
                  peel=True, endops=["s_nop 0", "s_branch L_join"])
    p += [".p2align 6", "L_loop:"]
    pro_ = p
    first57, tail = gen_tail()
    bodyA = []
    for k in (1, 2, 3, 4, 5, 6, 7, 0):
        if k == 7: bodyA.append("L_join:"); jpos = len(bodyA)
        eo = [f"s_sub_u32 s{S_CNT}, s{S_CNT}, 1", f"s_cmp_lg_u32 s{S_CNT}, 0", "s_cbranch_scc1 L_loop"] if k == 0 else ()
        t, d = steady(k)
        bodyA += gen_iter(16 + k, t, d, name=f"k{k}", endops=eo)
    assert [g.rd for g in first57] == [g.rd for g in seg_groups(17)[:2]]
    tailc = tail + ["L_fin:"]
    resolve(pro_ + bodyA[jpos:] + bodyA + bodyA + tailc)
    if OPT["cap"]: pro_ = pace(pro_, OPT["cap"] / 4)
    P_ = Prog()
    P_.extend(fin(pro_))
    a0 = len(P_.ins); P_.extend(fin(bodyA)); a1 = len(P_.ins)
    P_.extend(fin(tailc))
    p = P_
    if OPT["stamp"]:
        p("s_waitcnt vmcnt(0) lgkmcnt(0)")
        p.extend(istamp("end"))
        p("s_waitcnt lgkmcnt(0)")
        p.extend(istamp("end2"))
        p(f"v_writelane_b32 v{V_STAMP}, s{S_TAG+1}, 63")
        p("s_add_u32 s8, s18, 0xfa00000"); p("s_addc_u32 s9, s19, 0"); p("s_mov_b32 s10, 1048576"); p("s_mov_b32 s11, 0x20000")
        p("s_lshl_b32 s24, s2, 2"); p(f"s_add_u32 s24, s24, s{S_WAVE}"); p("s_lshl_b32 s24, s24, 8")
        p(f"v_bfe_u32 v32, v{V_DMA}, 4, 6"); p("v_lshlrev_b32 v32, 2, v32")
        p(f"buffer_store_dword v{V_STAMP}, v32, s[8:11], s24 offen")
        open(sys.argv[1] + ".stamps", "w").write("\n".join(STAMPS))
    if OPT["calx"]:
        p("s_waitcnt vmcnt(0)")
        p("L_cal:")
        p("s_memrealtime s[40:41]")
        p("s_waitcnt lgkmcnt(0)")
        p("s_sub_u32 s40, s40, s100")
        p("s_cmp_lt_u32 s40, 10000")
        p("s_cbranch_scc1 L_cal")
    p("L_done:")
    p("s_endpgm")
    main_end0 = len(p.ins)
    for ps in POLLSITES: p.extend(poll_slow(ps))
    p.extend(tag_slow())
    main_end = len(p.ins)
    p.extend(gen_slow())
    slow_end = len(p.ins)
    ji = [i for i, x in enumerate(p.ins) if x.text == "L_join:"][0]
    lin = p.ins[:a0] + p.ins[ji:a1] + p.ins[a0:main_end0]
    sl = [i for i, x in enumerate(p.ins) if x.text == "L_slowloop:"][0]
    bi = [i for i, x in enumerate(p.ins) if x.text == "s_cbranch_scc1 L_slowloop"][0]
    probs = check_hazards(lin, "main") + check_hazards(p.ins[main_end:bi+1] + p.ins[sl:slow_end], "slow") + check_hazards(p.ins[main_end0:main_end], "aux")
    for x in probs: print(x, file=sys.stderr)
    return p

def kd(name, vgpr, sgpr, accum):
    return f""".amdhsa_kernel {name}
  .amdhsa_next_free_vgpr {vgpr}
  .amdhsa_next_free_sgpr {sgpr}
  .amdhsa_accum_offset {accum}
  .amdhsa_group_segment_fixed_size 0
  .amdhsa_kernarg_size 80
  .amdhsa_user_sgpr_count 2
  .amdhsa_user_sgpr_kernarg_segment_ptr 1
  .amdhsa_system_sgpr_workgroup_id_x 1
.end_amdhsa_kernel
"""
out = HEADER
out += f"; @launch grid=(256,1,1) block=(256,1,1) lds={LDS_BYTES}\n"
out += '.amdgcn_target "amdgcn-amd-amdhsa--gfx950"\n.text\n'
out += f".globl {NAME}_kernel\n.p2align 8\n.type {NAME}_kernel,@function\n" + gen_main().text()
out += '.section .rodata,"a"\n.p2align 6\n' + kd(NAME + "_kernel", 512, 102, 256)
open(sys.argv[1], "w").write(out)
```

```python
import sys, math
from asmlib import *

NAME = "standalone__kv_cache_quant_int4_int2_kv_with_per_channel_or_per_token_scales__prompt"
OPT = dict(stamp=0, vmgap=4, sb=6, sa=6, ahead=4, thr=64, pf2=1, calx="", qa=9, plv=2, plk=10, ckv=1, ckk=1, tden=24, touch=0, w0poll=1, cap=40, qb=12, q3e=1, ksc=0, few=1, qc=15, pb=39, pl4=40)
for a in sys.argv[2:]:
    k, v = a.split("="); OPT[k] = int(v) if v.lstrip("-").isdigit() else v
NS = 6
STAGE = 24576
HEADBYTES = 64 * STAGE
RING = NS * STAGE
LDS_BYTES = RING + 128
A0, B0, A1, B1, A2, B2 = [i * STAGE for i in range(6)]
CSCALE = (192.0 ** -0.5) * math.log2(math.e)
HEADER = open("cdna_kernels/" + NAME + ".s.ref").read().split("; Override launch geometry")[0]
MF = "v_mfma_f32_16x16x32_bf16"

V_FVAL = 0; V_RD = 1; V_RDK = [2, 3]; V_DMA = 4; V_L = [5, 6, 7, 8]
V_KLD = 9; V_KSC = 10; V_KST = 11; V_VLD = 12; V_FLAG = 13; V_RD2 = 14
V_T = 16; NTP = 2
V_VST = 20; V_STAMP = 21
V_FR = 24; NFS = 6
V_CT = 48; V_VO = 52; V_RS = [56, 60]; BX = 224; BY = 240; BZ = 144
V_POLL = V_VO; V_KA = V_VO + 2
UNIT = [64, 80, 160, 176]; HI = [96, 112]
VQD = 136; VQR = [22, 23, 142, 143]
def Sq(t, sl, tb): return (UNIT[t % 4] if tb == 0 else HI[t % 2]) + 4 * sl
def P(t, sl): return UNIT[t % 4] + 4 * sl
def NEGM(qb): return 128 + 4 * qb
def O(qb, db): return (qb * 12 + db) * 4
def Qf(qb, s, half=None):
    i = qb * 6 + s
    base, f = (192 + 4 * i, ar) if i < 16 else (192 + 4 * (i - 16), vr)
    return f(base, 4) if half is None else f(base + 2 * half, 2)
def FR(f): return vr(V_FR + 4 * (f % NFS), 4)

S_RDELTA = 3; S_WS = 4; S_Q = 8; S_OUT = 12; S_FLG = 20
S_WAVE = 25; S_DMK = 26; S_GOFF = 27; S_RK = 28; S_TMP = 29; S_RV = 30; S_CNT = 31; S_GOFFK = 32
S_PK0 = 33; S_PK1 = 34; S_PV0 = 35; S_PKS = 36; S_PVS = 37; S_CS = 38; S_RET = 39; S_PV1 = 16; S_PV2 = 17
S_QL = 40; S_QS = 41; S_TAG = 42
S_PT = 48; S_DMV = 56; S_TK = 57; S_TV = 58; S_TP = 59
S_QK = 64; S_QV = 68; S_KS = 72; S_KZ = 76; S_VS = 80; S_VZ = 84; S_DBG = 88
S_NEED = 92; S_HOFF = 93; S_HEAD = 94; S_QB = 95; S_BUDGET = 96; S_MASK = 97
FLAG_OFF = 64 << 20
SC1 = " sc1"; NTKV = " nt"; NTQ = " nt"; STF = " sc1"; OF = " sc0 sc1"

STAMPS = []
def istamp(name, force=False):
    if OPT["calx"] == name: return ["s_memrealtime s[100:101]"]
    if OPT["stamp"] not in (6, 8): return []
    if OPT["stamp"] == 8 and name.startswith("k") and not force: return []
    if OPT["few"] and force and name not in ("karg", "k0b", "postK", "pollK", "postV"): return []
    if OPT["stamp"] != 8 and force: return []
    STAMPS.append(name)
    return ["s_waitcnt lgkmcnt(0)"] * (1 if force else 0) + [f"v_mov_b32_dpp v{V_STAMP}, v{V_STAMP} wave_shr:1 row_mask:0xf bank_mask:0xf", f"v_writelane_b32 v{V_STAMP}, s98, 0",
            ("s_memtime" if OPT["stamp"] == 6 else "s_memrealtime") + " s[98:99]"]

class W:
    def __init__(self, *tags): self.tags = tags
class VM:
    def __init__(self, tag, text): self.tag = tag; self.text = text
class LG:
    def __init__(self, *tags): self.tags = tags
class DS:
    def __init__(self, tag, text): self.tag = tag; self.text = text

def mode_of(t):
    return {0: "a", 1: "a", 2: "b", 3: "b", 58: "a", 59: "a", 60: "a", 61: "b", 62: "b", 63: "b"}.get(t, "f")
def slot_q(t, sl):
    m = mode_of(t)
    return sl if m == "f" else (sl & 1) + (0 if m == "a" else 2)
def softmax_part(t, half):
    flat = []; prev = None
    for gp in range(8):
        sl = 2 * half + gp // 4; pi = gp % 4; l = V_L[slot_q(t, sl)]
        t0 = V_T + 2 * (gp % NTP); t1 = t0 + 1
        src = Sq(t, sl, pi >> 1) + 2 * (pi & 1)
        E = [f"v_exp_f32 v{t0}, v{src}", f"v_exp_f32 v{t1}, v{src+1}"]
        A = [f"v_add_f32 v{l}, v{l}, v{t0}", f"v_add_f32 v{l}, v{l}, v{t1}"]
        C = [f"v_cvt_pk_bf16_f32 v{P(t,sl)+pi}, v{t0}, v{t1}"]
        flat += E if prev is None else [E[0]] + prev[0] + [E[1]] + prev[1]
        prev = (A, C)
    return flat + prev[0] + prev[1]

class Grp:
    def __init__(self, rd, mf): self.rd = rd; self.mf = mf; self.reb = []
def qk_tile(t, w, slots, czero=False):
    gs = []
    for gi in range(6):
        s0 = 2 * (gi >> 1); tb = gi & 1
        rd = [(V_RDK[j], w * 12288 + tb * 6144 + (s0 >> 1) * 128) for j in range(2)]
        mf = []
        for sl, qb in slots:
            d = vr(Sq(t, sl, tb), 4)
            mf += [(0, d, Qf(qb, s0), (("0" if czero else vr(NEGM(qb), 4)) if s0 == 0 else d)), (1, d, Qf(qb, s0 + 1), d)]
        gs.append(Grp(rd, mf))
    return gs
def qk_full(t): return [g for w in range(2) for g in qk_tile(t + w, w, [(q, q) for q in range(4)])]
def qk_half(t, czero=False, ws=(0, 1)):
    return [g for w in ws for g in qk_tile(t, w, [(2 * w + j, slot_q(t, j)) for j in range(2)], czero)]
def pv_grp(t, db, first=False, va=V_RD):
    m = mode_of(t); mf = []
    for qb in (range(4) if m == "f" else [slot_q(t, 0), slot_q(t, 1)]):
        d = ar(O(qb, db), 4)
        for w in range(2):
            b = P(t + w, qb) if m == "f" else P(t, 2 * w + (qb & 1))
            mf.append((w, d, vr(b, 4), "0" if (first and w == 0) else d))
    return Grp([(va, w * 12288 + db * 1024) for w in range(2)], mf)
def pv_seq(t, first=False): return [pv_grp(t, db, first) for db in range(12)]
def pv_unchained(t, first=False):
    gs = []
    for w in range(2):
        for d0 in range(0, 12, 2):
            mf = []
            for j in range(2):
                qb = slot_q(t, j)
                for e in range(2):
                    d = ar(O(qb, d0 + e), 4)
                    mf.append((e, d, vr(P(t, 2 * w + j), 4), "0" if (first and w == 0) else d))
            gs.append(Grp([(V_RD, w * 12288 + (d0 + e) * 1024) for e in range(2)], mf))
    return gs
def rebase(gs, regs, delta):
    op = "v_add_u32" if delta >= 0 else "v_subrev_u32"
    gs[0].reb += [f"{op} v{r}, {abs(delta)}, v{r}" for r in regs]
    return gs
def rd_op(gi, j, g):
    f = 2 * gi + j
    return DS(("fr", f % NFS), f"ds_read_b128 {FR(f)}, v{g.rd[j][0]} offset:{g.rd[j][1]}")

def dma_tile(part, pos, peel=False):
    dm, go, tmp = (S_DMK, S_GOFFK, S_TK) if part == "k" else (S_DMV, S_GOFF, S_TV)
    l = [f"s_mov_b32 m0, s{dm}"]
    for j in range(3):
        l.append(VM(("d" + part, pos % 8), f"buffer_load_dwordx4 v{V_DMA}, s[{S_WS}:{S_WS+3}], s{go} offen offset:{j*1024}{SC1} lds"))
    if peel and pos < 7:
        l += [f"s_add_u32 s{go}, s{go}, {STAGE}", f"s_sub_u32 s{tmp}, s{go}, {8*STAGE}", f"s_min_u32 s{go}, s{go}, s{tmp}"]
    elif peel and pos == 7:
        l += [f"s_mov_b32 s{go}, {8*STAGE + (0 if part == 'k' else 12288)}"]
    else:
        l += [f"s_add_u32 s{go}, s{go}, {STAGE}"]
    if pos % 2 == 0: l += [f"s_add_u32 s{dm}, s{dm}, 12288"]
    else: l += [f"s_add_u32 s{dm}, s{dm}, {2*STAGE - 12288}", f"s_sub_u32 s{tmp}, s{dm}, {RING}", f"s_min_u32 s{dm}, s{dm}, s{tmp}"]
    return l
QOFF = [STAGE, 2 * STAGE, 0, STAGE]
def q_dma(lst):
    l = []
    for i in lst:
        a, b = divmod(i, 6)
        l += [f"s_mov_b32 s{S_QS}, {a*6144}"] * (1 if (b == 0 or i == lst[0]) else 0)
        l += [f"s_add_u32 m0, s{S_QL}, {QOFF[a] + b*1024}",
              VM(("q", a), f"buffer_load_dwordx4 v{VQD+b}, s[{S_Q}:{S_Q+3}], s{S_QS} offen{NTQ} lds")]
    return l
def q_frags(qb):
    l = []
    for s in range(6):
        for h in range(2):
            sp = s + 6 * h
            l.append(DS(("qf", qb), f"ds_read_b64 {Qf(qb,s,h)}, v{VQR[sp&3]} offset:{QOFF[qb] + (sp>>2)*128}"))
    return l
def with_nop(l):
    out = []
    for i, x in enumerate(l):
        out.append(x)
        if isinstance(x, str) and " m0," in x and i + 1 < len(l) and isinstance(l[i + 1], VM): out.append("s_nop 0")
    return out
def rd_step(kind):
    cur, regs = (S_RK, V_RDK) if kind == "q" else (S_RV, [V_RD])
    return [f"s_add_u32 s{S_TMP}, s{cur}, {2*STAGE}", f"s_sub_u32 s{S_RDELTA}, s{S_TMP}, {RING}",
            f"s_min_u32 s{S_TMP}, s{S_TMP}, s{S_RDELTA}", f"s_sub_u32 s{S_RDELTA}, s{S_TMP}, s{cur}", f"s_mov_b32 s{cur}, s{S_TMP}"] + \
           [f"v_add_u32 v{r}, s{S_RDELTA}, v{r}" for r in regs]

def k_ld(h, buf, rs, tag, scal_first=True):
    sc = [VM(tag, f"buffer_load_dwordx2 v[{rs+2*i}:{rs+2*i+1}], v{V_KSC}, s[{srd_}:{srd_+3}], s{S_PKS} offen offset:{192*h}")
          for i, srd_ in enumerate((S_KS, S_KZ))]
    l = []
    for j in range(4):
        so = S_PK0 if j < 2 else S_PK1
        l.append(VM(tag, f"buffer_load_dwordx4 v[{buf+4*j}:{buf+4*j+3}], v{V_KLD}, s[{S_QK}:{S_QK+3}], s{so} offen offset:{(j&1)*1536+384*h}{NTKV}"))
    return sc + l if scal_first else l + sc
def v_ld(h, buf, rs, tag, scal_first=True):
    sc = [VM(tag, f"buffer_load_dwordx2 v[{rs+2*i}:{rs+2*i+1}], off, s[{srd_}:{srd_+3}], s{S_PVS} offset:{8*h}")
          for i, srd_ in enumerate((S_VS, S_VZ))]
    l = []
    for r in range(4):
        so = S_PV0 if h == 0 else S_PV1
        l.append(VM(tag, f"buffer_load_dwordx4 v[{buf+4*r}:{buf+4*r+3}], v{V_VLD}, s[{S_QV}:{S_QV+3}], s{so} offen offset:{r*768}{NTKV}"))
    return sc + l if scal_first else l + sc
def k_cv(h, buf, rs, out):
    l = []
    s0, s1, z0, z1 = V_CT, V_CT + 1, V_CT + 2, V_CT + 3
    for i in range(2):
        l += [f"v_lshlrev_b32 v{s0}, 16, v{rs+i}", f"v_and_b32 v{s1}, s{S_MASK}, v{rs+i}",
              f"v_lshlrev_b32 v{z0}, 16, v{rs+2+i}", f"v_and_b32 v{z1}, s{S_MASK}, v{rs+2+i}",
              f"v_mul_f32 v{s0}, s{S_CS}, v{s0}", f"v_mul_f32 v{s1}, s{S_CS}, v{s1}",
              f"v_mul_f32_e64 v{z0}, -v{z0}, v{s0}", f"v_mul_f32_e64 v{z1}, -v{z1}, v{s1}"]
        for j in range(4):
            a = buf + 4 * j + 2 * i; b = a + 1
            l += [f"v_cvt_f32_i32 v{a}, v{a}", f"v_cvt_f32_i32 v{b}, v{b}",
                  f"v_fma_f32 v{a}, v{a}, v{s0}, v{z0}", f"v_fma_f32 v{b}, v{b}, v{s1}, v{z1}",
                  f"v_cvt_pk_bf16_f32 v{out+4*j+2*h+i}, v{a}, v{b}"]
    return l
def k_st(j, out, tag="kst"):
    va = V_KST; g = []
    if j:
        va = V_KA + (j & 1); g.append(f"v_xor_b32 v{va}, {16*j}, v{V_KST}")
    g.append(VM(tag, f"buffer_store_dwordx4 v[{out+4*j}:{out+4*j+3}], v{va}, s[{S_WS}:{S_WS+3}], s{S_PK0} offen offset:{j*768}{STF}"))
    return g
def v_cv(h, buf, rs, out):
    l = []
    s0, s1, z0, z1 = V_CT, V_CT + 1, V_CT + 2, V_CT + 3
    for i in range(2):
        l += [f"v_lshlrev_b32 v{s0}, 16, v{rs+i}", f"v_and_b32 v{s1}, s{S_MASK}, v{rs+i}",
              f"v_lshlrev_b32 v{z0}, 16, v{rs+2+i}", f"v_and_b32 v{z1}, s{S_MASK}, v{rs+2+i}",
              f"v_mul_f32_e64 v{z0}, -v{z0}, v{s0}", f"v_mul_f32_e64 v{z1}, -v{z1}, v{s1}"]
        for e in range(4):
            a = buf + 4 * (2 * i) + e; b = buf + 4 * (2 * i + 1) + e
            l += [f"v_cvt_f32_i32 v{a}, v{a}", f"v_cvt_f32_i32 v{b}, v{b}",
                  f"v_fma_f32 v{a}, v{a}, v{s0}, v{z0}", f"v_fma_f32 v{b}, v{b}, v{s1}, v{z1}"]
    for e, i in [(0, 0), (1, 0), (0, 1), (1, 1), (2, 0), (2, 1), (3, 0), (3, 1)]:
        l.append(f"v_cvt_pk_bf16_f32 v{out+4*e+2*h+i}, v{buf+8*i+e}, v{buf+8*i+4+e}")
    return l
def v_st(e, out, tag="vst"):
    so = S_PV0 if e < 2 else S_PV2
    return [VM(tag, f"buffer_store_dwordx4 v[{out+4*e}:{out+4*e+3}], v{V_VST}, s[{S_WS}:{S_WS+3}], s{so} offen offset:{(e&1)*3072}{STF}")]
def k_adv():
    return [f"s_add_u32 s{S_PK0}, s{S_PK0}, {8*STAGE}", f"s_add_u32 s{S_PK1}, s{S_PK1}, {8*STAGE}", f"s_add_u32 s{S_PKS}, s{S_PKS}, {4*384}"]
def v_adv():
    return [f"s_add_u32 s{r}, s{r}, {8*STAGE}" for r in (S_PV0, S_PV1, S_PV2)] + [f"s_add_u32 s{S_PVS}, s{S_PVS}, {8*64}"]
HT = {"ka": (k_ld, k_cv, 0, BX, V_RS[0], BX), "kb": (k_ld, k_cv, 1, BY, V_RS[1], BX),
      "va": (v_ld, v_cv, 0, BZ, V_RS[0], BZ), "vb": (v_ld, v_cv, 1, BY, V_RS[1], BZ)}
def flag_post():
    return [f"v_add_u32 v{V_FVAL}, 1, v{V_FVAL}",
            VM("flag", f"buffer_store_dword v{V_FVAL}, v{V_FLAG}, s[{S_FLG}:{S_FLG+3}], 0 offen sc1")]
def poll_addr():
    return [f"v_bfe_u32 v{V_POLL+1}, v{V_DMA}, 4, 6", f"v_lshlrev_b32 v{V_POLL+1}, 2, v{V_POLL+1}"]
def poll_load():
    return poll_addr() + [VM("poll", f"buffer_load_dword v{V_POLL}, v{V_POLL+1}, s[{S_FLG}:{S_FLG+3}], 0 offen sc1")]
def poll_test():
    return [f"v_subrev_u32 v{V_POLL}, s{S_NEED}, v{V_POLL}", f"v_cmp_lt_u32 vcc, 15, v{V_POLL}", "s_nop 0", f"s_and_b32 s{S_TP}, vcc_lo, 0xff"]
def smem_flags():
    return [f"s_buffer_load_dwordx8 s[{S_PT}:{S_PT+7}], s[{S_FLG}:{S_FLG+3}], 0 glc"]
def smem_reduce():
    return [f"s_sub_u32 s{S_PT+i}, s{S_PT+i}, s{S_NEED}" for i in range(8)] + [f"s_max_u32 s{S_PT}, s{S_PT}, s{S_PT+i}" for i in range(1, 8)]
def smem_test():
    return smem_flags() + ["s_waitcnt lgkmcnt(0)"] + smem_reduce() + [f"s_cmp_lt_u32 s{S_PT}, 16"]
def poll_slow(site):
    l = [f"L_pollslow{site}:"] + ([f"s_add_u32 s{S_TAG+1}, s{S_TAG+1}, {1 << (6 * site)}"] if OPT["stamp"] else [])
    l += [f"s_mov_b32 s{S_TP}, 200", f"L_pollsm{site}:"] + smem_test() + [f"s_cbranch_scc1 L_pollok{site}",
          f"s_sub_u32 s{S_TP}, s{S_TP}, 1", f"s_cbranch_scc1 L_pollvec{site}", "s_sleep 1", f"s_branch L_pollsm{site}"]
    l += [f"L_pollvec{site}:"] + poll_addr() + [
            f"s_sub_u32 s{S_BUDGET}, s{S_BUDGET}, 1",
            f"s_cbranch_scc1 L_pollgiveup{site}",
            "s_sleep 2",
            f"buffer_load_dword v{V_POLL}, v{V_POLL+1}, s[{S_FLG}:{S_FLG+3}], 0 offen sc1",
            "s_waitcnt vmcnt(0)"] + poll_test() + [
            f"s_cbranch_scc1 L_pollvec{site}",
            f"s_branch L_pollok{site}",
            f"L_pollgiveup{site}:",
            f"s_mov_b32 s{S_BUDGET}, 0",
            f"s_branch L_pollok{site}"]
    return l
def tag_load():
    return [VM("tag", f"buffer_load_dword v{V_FVAL}, off, s[{S_DBG}:{S_DBG+3}], s{S_HOFF} sc1")]
def tag_check():
    return [f"s_cmp_lg_u32 s{S_WAVE}, 0", "s_cbranch_scc1 L_tagdone",
            f"v_readfirstlane_b32 s{S_TAG}, v{V_FVAL}", f"s_mov_b32 s{S_RET}, 100",
            "L_tagretry:", f"s_cmp_lg_u32 s{S_TAG}, 0", "s_cbranch_scc1 L_tagok",
            f"s_sub_u32 s{S_RET}, s{S_RET}, 1", "s_cbranch_scc1 L_tagslow", "s_sleep 4",
            f"s_buffer_load_dword s{S_TAG}, s[{S_DBG}:{S_DBG+3}], s{S_HOFF} glc", "s_waitcnt lgkmcnt(0)", "s_branch L_tagretry",
            "L_tagok:", f"v_mov_b32 v{V_FVAL}, s{S_TAG}", f"v_mov_b32 v{V_T}, {RING}", DS("w", f"ds_write_b32 v{V_T}, v{V_FVAL}"), "L_tagdone:"]
def tag_get():
    return [f"v_mov_b32 v{V_T}, {RING}", DS("tg", f"ds_read_b32 v{V_T+1}, v{V_T}")]
def tag_use():
    return [f"v_readfirstlane_b32 s{S_NEED}, v{V_T+1}", f"s_add_u32 s{S_NEED}, s{S_NEED}, 1"]
def tag_slow():
    return ["L_tagslow:",
            f"s_sub_u32 s{S_BUDGET}, s{S_BUDGET}, 1",
            "s_cbranch_scc1 L_taggiveup",
            "s_sleep 2",
            f"buffer_load_dword v{V_FVAL}, off, s[{S_DBG}:{S_DBG+3}], s{S_HOFF} sc1",
            "s_waitcnt vmcnt(0)",
            f"v_readfirstlane_b32 s{S_TAG}, v{V_FVAL}", "s_nop 0", f"s_cmp_eq_u32 s{S_TAG}, 0", "s_cbranch_scc1 L_tagslow",
            "s_branch L_tagok",
            "L_taggiveup:",
            f"s_mov_b32 s{S_BUDGET}, 0",
            "s_branch L_tagok"]

def text_of(x):
    return "s_waitcnt" if isinstance(x, (W, LG)) else (x.text if isinstance(x, (VM, DS)) else x)
def kind_of(x):
    t = text_of(x)
    if t.endswith(":"): return "label"
    if t.startswith("v_"): return "valu"
    if t.startswith("ds_"): return "ds"
    if t.startswith("buffer_store"): return "store"
    if t.startswith("buffer_"): return "load"
    return "salu"
def cost_of(x):
    k = kind_of(x); t = text_of(x)
    if k == "label": return 0
    if k == "store": return 20 if "x4" in t else 8
    if k == "load": return 8
    if t.startswith("ds_write"): return 16
    if t.startswith(("v_exp", "v_rcp")): return 8
    if t.startswith("s_nop"): return 4 * (int(t.split()[1]) + 1)
    if t.startswith("s_cbranch") or t.startswith("s_branch"): return 12
    if t.startswith("s_barrier"): return 8
    return 4
def gap_time(ops):
    t = 4; prev = None
    for o in ops:
        k = kind_of(o)
        if k == "label": continue
        if k == "salu": t += cost_of(o)
        else: t = max(t, 8) + cost_of(o) + (8 if (k != "valu" and prev == "valu") else 0)
        prev = k
    return t

class Stream:
    def __init__(self, ops, first, last, maxper=99, dense=0):
        self.ops = list(ops); self.first = first; self.last = last; self.maxper = maxper; self.dense = dense
        self.total = sum(cost_of(o) for o in self.ops); self.done = 0; self.i = 0

def pack(NG, A, B, C, T, streams, novm=(), nosalu=(), vmgap=4):
    out = []; over = 0; lastvm = -99
    for g in range(NG):
        a, b, c, tl = list(A[g]), list(B[g]), list(C[g]), list(T[g])
        cnt = {}; inC = set(); blocked = set()
        while True:
            best = None; bl = None; bsec = None
            for st in streams:
                if st.i >= len(st.ops) or g < st.first: continue
                force = g >= st.last
                if (cnt.get(id(st), 0) >= st.maxper or id(st) in blocked) and not force: continue
                o = st.ops[st.i]; k = kind_of(o); cst = cost_of(o)
                if k == "salu" and g in nosalu:
                    assert not force, (g, text_of(o))
                    continue
                if k in ("load", "store") and (g in novm or g - lastvm < vmgap) and not force: continue
                if k in ("load", "store", "ds"):
                    sec = "b" if id(st) not in inC and id(st) not in blocked else "c"
                    if sec == "c" and not force: continue
                elif k == "salu" and not a and cnt.get(id(st), 0) == 0:
                    sec = "a"
                else: sec = "c"
                tgt = st.total * (g - st.first + 1) / (st.last - st.first + 1)
                lag = tgt - st.done
                if not force:
                    if lag < cst / 2 - OPT["ahead"] and cst: continue
                    trial = (a + [o] if sec == "a" else a) + (b + [o] if sec == "b" else b) + (c + [o] if sec == "c" else c) + tl
                    gt = gap_time(trial)
                    if gt > 16:
                        if g % 2 == 0: continue
                        big = k == "store" or text_of(o).startswith("ds_write")
                        lim = max(20, st.dense) if lag > 24 else 16
                        if big and not (a + b + c + tl): lim = 32
                        if gt > lim: continue
                key = (force, k in ("load", "store"), lag / max(1, (st.last - g + 1)) ** 0.5)
                if best is None or key > bl: best = st; bl = key; bsec = sec
            if best is None: break
            o = best.ops[best.i]
            if bsec == "a": a.append(o)
            elif bsec == "b":
                b.append(o)
            else: c.append(o)
            if bsec == "c" or bsec == "b" and kind_of(o) != "ds" and False: inC.add(id(best))
            if bsec == "c": inC.add(id(best))
            if " m0," in text_of(o): blocked.add(id(best))
            if kind_of(o) in ("load", "store"): lastvm = g
            best.i += 1; best.done += cost_of(o); cnt[id(best)] = cnt.get(id(best), 0) + 1
        ops = a + b + c + tl
        tt = gap_time(ops)
        if tt > 16: over += tt - 16
        out.append(ops)
    for st in streams: assert st.i == len(st.ops)
    return out, over

POLLSITES = []
def gen_seg(name, groups, nxt, sm=(), bars=(), tasks=(), dma=(), extra=(), endops=(), fixed=(), peel=True, vmgap=None):
    starts = []; n = 0
    for g in groups: starts.append(n); n += len(g.mf)
    NG = n
    A = [[] for _ in range(NG)]; B = [[] for _ in range(NG)]; C = [[] for _ in range(NG)]; T = [[] for _ in range(NG)]
    streams = []; novm = set(range(0, NG, 2)); nosalu = set()
    allg = list(groups) + list(nxt)
    assert len(groups) % 3 == 0
    for i, g in enumerate(groups):
        g0 = starts[i]; ln = len(g.mf)
        if i + 2 < len(allg):
            t = allg[i + 2]
            B[g0].append(rd_op(i + 2, 0, t)); B[g0 + ln // 2].append(rd_op(i + 2, 1, t))
            if t.reb:
                assert g0 > 0
                C[g0 - 1] += t.reb
        if i + 1 < len(allg):
            A[g0 + ln - 1].append(LG(("fr", (2 * i + 2) % NFS), ("fr", (2 * i + 3) % NFS)))
    for ops, f, l in sm: streams.append(Stream(ops, f, l))
    streams += list(extra)
    if endops:
        A[NG-4] += endops[:1]; A[NG-2] += [A[NG-1][0]] + list(endops[1:-1]); A[NG-1] = []; T[NG-1] = list(endops[-1:]); nosalu |= {NG-2, NG-1}
    for grp in dma:
        dl = []
        for part, pos in grp[:-2]: dl += dma_tile(part, pos, peel)
        k = max(i for i, x in enumerate(dl) if isinstance(x, VM)) + 1
        streams.append(Stream(dl[:k], grp[-2], grp[-1], maxper=2))
        streams.append(Stream(dl[k:], min(grp[-1] + 1, NG - 3), min(NG - 3 if endops else NG - 1, grp[-1] + 12), maxper=2))
    bars = [(g, list(tg)) for g, tg in bars]
    for t in tasks:
        k_ = t[0]
        if k_ == "cv":
            _, cv, h, buf, rs, outb = HT[t[1]]
            ops = cv(h, buf, rs, outb)[t[2]:t[3]]
            if t[2] == 0: ops = [W(t[1])] + ops
            streams.append(Stream(ops, t[4], t[5]))
        elif k_ in ("kst", "vst"):
            grp = k_st(t[1], BX) if k_ == "kst" else v_st(t[1], BZ)
            g = t[2]; assert g % 2 == 1 and not B[g] and not A[g], (name, g)
            B[g].append(grp[-1]); novm |= set(range(g - OPT["sb"], g + OPT["sa"] + 1))
            if grp[:-1]: streams.append(Stream(grp[:-1], max(0, g - 5), g - 1))
        elif k_ in ("ld", "ldn"):
            ld, _, h, buf, rs, _o = HT[t[1]]
            adv = {"ka": k_adv(), "va": v_adv()}.get(t[1], []) if k_ == "ld" else []
            ops = ld(h, buf, rs, t[1])
            if len(t) > 4: ops = ops[2:] if t[4] == "raw" else ops[:2]
            streams.append(Stream(adv + ops, t[2], t[3], maxper=1))
        elif k_ == "post":
            bi = t[2] if len(t) > 2 else -1
            bars[bi][1].append(t[1])
            streams.append(Stream(flag_post(), bars[bi][0] + 1, min(NG - 3, bars[bi][0] + 14), maxper=1))
        elif k_ == "pf":
            streams.append(Stream([VM("pf", f"buffer_load_dword v15, v{V_DMA}, s[{S_DBG}:{S_DBG+3}], s{S_HOFF} offen")], t[1], t[2]))
        elif k_ == "pollld": streams.append(Stream(poll_load(), t[1], t[2], maxper=1))
        elif k_ == "pollchk":
            ps = len(POLLSITES); POLLSITES.append(ps)
            g = t[1]; assert g % 4 == 1
            pt = poll_test()
            A[g] += [W("poll")]; T[g] += pt[:2]; novm |= {g, g + 4}
            A[g + 3] += [pt[3]]; A[g + 4] += [f"s_cbranch_scc1 L_pollslow{ps}", f"L_pollok{ps}:"]; nosalu |= {g + 3, g + 4}
            A[g + 5] += [f"s_add_u32 s{S_NEED}, s{S_NEED}, 1"]
        elif k_ == "spollld": A[t[1]] += smem_flags()
        elif k_ == "spollchk":
            ps = len(POLLSITES); POLLSITES.append(ps)
            A[t[1]] += ["s_waitcnt lgkmcnt(0)"]
            streams.append(Stream(smem_reduce(), t[1] + 1, t[2] - 1, maxper=3))
            A[t[2]] += [f"s_cmp_ge_u32 s{S_PT}, 16", f"s_cbranch_scc1 L_pollslow{ps}", f"L_pollok{ps}:", f"s_add_u32 s{S_NEED}, s{S_NEED}, 1"]
        elif k_ == "step": streams.append(Stream(rd_step(t[1]), t[2], t[3], maxper=1))
        elif k_ == "q": streams.append(Stream(q_dma(t[1]), t[2], t[3], maxper=2))
        else: raise Exception(k_)
    for g, tags in bars:
        i = [j for j in range(len(groups)) if starts[j] + len(groups[j].mf) - 1 == g]
        assert i, (name, g)
        if len(groups[i[0]].mf) == 8:
            A[g - 2] += A[g]; A[g] = []
            if tags: A[g - 1] += [W(*tags)]
        elif tags: A[g - 2] += [W(*tags)]
        A[g] += ["s_barrier"]; novm |= {g}
    for g, sec, ops in fixed: {"A": A, "B": B, "C": C, "T": T}[sec][g] += ops
    if endops:
        for st_ in streams: st_.last = min(st_.last, NG - 2)
    m0w = sorted((st.first, st.last) for st in streams if any(" m0," in text_of(o) for o in st.ops))
    assert all(m0w[i][1] < m0w[i + 1][0] for i in range(len(m0w) - 1)), (name, m0w)
    fill, over = pack(NG, A, B, C, T, streams, novm, nosalu, vmgap or OPT["vmgap"])
    if over: print(f"seg {name}: over budget by {over} cycles", file=sys.stderr)
    out = istamp(name)
    g = 0
    for i, gr in enumerate(groups):
        for j, d, b, c in gr.mf:
            out.append(f"{MF} {d}, {FR(2*i+j)}, {b}, {c}")
            out += fill[g]; g += 1
    return with_nop(out)

GBAR = 79
def seg_groups(it):
    return qk_full(it + 1) if it % 2 else pv_seq(it - 2)
def gen_iter(it, tasks=(), dma=(), name=None, endops=(), peel=False, nxt=None, extra=(), bars=None, groups=None, sm=None, step=True):
    q = it % 2
    smB = softmax_part(it, 1); smA = softmax_part(it + 1, 0)
    if sm is None: sm = [(smB, 0, 50), (smA, 52, 95)] if q else [(smB + smA, 0, 95)]
    need = [("dv", (it - 1) % 8), ("dv", it % 8)] if q else [("dk", (it + 2) % 8), ("dk", (it + 3) % 8)]
    tasks = list(tasks) + ([("step", "p" if q else "q", 30, GBAR - 3)] if step else [])
    return gen_seg(name or f"i{it}", groups or seg_groups(it), nxt if nxt is not None else seg_groups(it + 1)[:2], sm,
                   bars if bars is not None else [(GBAR, need)], tasks, dma, extra, endops, peel=peel)

K_ = lambda *j: tuple(("k", x) for x in j)
V_ = lambda *j: tuple(("v", x) for x in j)
def steady(k):
    ckv, ckk = OPT["ckv"], OPT["ckk"]
    plv, plk = OPT["plv"], OPT["plk"]
    return {
        1: ([("cv", "va", 0, 22, 0, 95), ("ld", "vb", 0, 44)], [V_(2, 3) + (0, GBAR - 5)]),
        2: ([("cv", "va", 22, 99, 0, 95), ("kst", 0, 1), ("kst", 1, 9), ("kst", 2, 17), ("kst", 3, 25), ("post", "kst")], [K_(6, 7) + (33, 74)]),
        3: ([("cv", "vb", 0, 22, 0, 95), ("ld", "ka", 0, 44)], [V_(4, 5) + (0, GBAR - 5)]),
        4: ([("cv", "vb", 22, 99, 0, 95), ("pollld", plk, plk + 16)] + ([("pf", 80, 92)] if OPT["pf2"] else []), [V_(6, 7) + (0, GBAR - 5)]),
        5: ([("cv", "ka", 0, 16, 0, 95), ("pollchk", 1), ("vst", 0, 9), ("vst", 1, 17), ("vst", 2, 25), ("vst", 3, 33), ("post", "vst")], [K_(0, 1) + (41, 74)]),
        6: ([("cv", "ka", 16, 99, 0, 95), ("ld", "kb", 0, 30)], [K_(2, 3) + (31, 74)]),
        7: ([("cv", "kb", 0, 24, 40, 95), ("ld", "va", 11, 40), ("pollld", plv, plv + 8)], [K_(4, 5) + (41, 90)]),
        0: ([("cv", "kb", 24, 99, 0, 95), ("pollchk", ckv)], [V_(0, 1) + (ckv + 7, ckv + 44)]),
    }[k]

WA = [V_RS[0], V_RS[0] + 1]; RA = V_RS[0] + 2; GA = V_RS[0] + 3; TA = V_RS[0] + 4
RL = [V_CT, V_CT + 2, V_CT + 4, V_CT + 6]
S_EO = 24
def epi_addr():
    return [f"v_bfe_u32 v{TA}, v{V_DMA}, 4, 6", f"s_mul_i32 s{S_EO}, s{S_WAVE}, 6144", f"s_add_u32 s{S_EO}, s{S_EO}, {A2}",
            f"v_and_b32 v{WA[0]}, 15, v{TA}", f"v_lshrrev_b32 v{WA[1]}, 4, v{TA}", f"v_lshlrev_b32 v{WA[1]}, 1, v{WA[1]}",
            f"v_and_b32 v{TA+1}, 7, v{TA}", f"v_xor_b32 v{WA[1]}, v{WA[1]}, v{TA+1}", f"v_lshlrev_b32 v{WA[0]}, 7, v{WA[0]}",
            f"v_lshl_add_u32 v{WA[0]}, v{WA[1]}, 4, v{WA[0]}", f"v_add_u32 v{WA[0]}, s{S_EO}, v{WA[0]}", f"v_xor_b32 v{WA[1]}, 16, v{WA[0]}",
            f"v_lshrrev_b32 v{RA}, 3, v{TA}", f"v_mul_u32_u24 v{GA}, 384, v{RA}", f"v_lshl_add_u32 v{GA}, v{TA+1}, 4, v{GA}",
            f"v_xor_b32 v{RA}, v{RA}, v{TA}", f"v_lshlrev_b32 v{RA}, 4, v{RA}", f"v_add_u32 v{RA}, s{S_EO}, v{RA}",
            f"s_lshl_b32 s{S_EO}, s{S_QB}, 2", f"s_add_u32 s{S_EO}, s{S_EO}, s{S_WAVE}", f"s_mul_i32 s{S_EO}, s{S_EO}, {STAGE}",
            f"s_add_u32 s{S_QL}, s{S_EO}, 6144", f"s_add_u32 s{S_QS}, s{S_EO}, 12288", f"s_add_u32 s{S_TAG}, s{S_EO}, 18432"]
S_EQ = [S_EO, S_QL, S_QS, S_TAG]
def epi_l(qs):
    fl = []
    for sw in ("v_permlane16_swap_b32", "v_permlane32_swap_b32"):
        fl += [f"v_mov_b32 v{RL[q]}, v{V_L[q]}" for q in qs] + ["s_nop 0"]
        fl += [f"{sw} v{V_L[q]}, v{RL[q]}" for q in qs] + ["s_nop 0"]
        fl += [f"v_add_f32 v{V_L[q]}, v{V_L[q]}, v{RL[q]}" for q in qs]
    return fl + [f"v_rcp_f32 v{RL[q]}, v{V_L[q]}" for q in qs] + ["s_nop 0"]
class Epi:
    def __init__(self, temps, rbs): self.temps = temps; self.rbs = rbs; self.n = 0; self.pend = []
    def flush(self):
        p = []
        for qb, n, h, reg, tag in self.pend:
            p += [LG(tag), VM("out", f"buffer_store_dwordx4 v[{reg}:{reg+3}], v{GA}, s[{S_OUT}:{S_OUT+3}], s{S_EQ[qb]} offen offset:{n*128 + h*3072}{OF}")]
        self.pend = []
        return p
    def chunk(self, qb, n, pk=False):
        p = []; c = self.n; self.n += 1
        lb = (c % 3) * 2048
        for half in range(2):
            ob = self.temps[(2 * c + half) % len(self.temps)]
            for tt in range(8):
                r, e = divmod(8 * half + tt, 4)
                p.append(f"v_accvgpr_read_b32 v{ob+tt}, a{O(qb,3*e+n)+r}")
            if pk: p += [f"v_pk_mul_f32 v[{ob+2*i}:{ob+2*i+1}], v[{ob+2*i}:{ob+2*i+1}], v[{RL[qb]}:{RL[qb]+1}] op_sel_hi:[1,0]" for i in range(4)]
            else: p += [f"v_mul_f32 v{ob+i}, v{ob+i}, v{RL[qb]}" for i in range(8)]
            p += [f"v_cvt_pk_bf16_f32 v{ob+i}, v{ob+2*i}, v{ob+2*i+1}" for i in range(4)]
            if self.pend:
                x = self.pend.pop(0); rest = self.pend; self.pend = [x]; p += self.flush(); self.pend = rest
            p.append(DS("w", f"ds_write_b128 v{WA[half]}, v[{ob}:{ob+3}] offset:{lb}"))
        p += self.flush()
        for h in range(2):
            reg = self.rbs[(2 * c + h) % len(self.rbs)]; tag = ("rb", c % 4, h)
            p.append(DS(tag, f"ds_read_b128 v[{reg}:{reg+3}], v{RA} offset:{lb + h*1024}"))
            self.pend.append((qb, n, h, reg, tag))
        return p

def gen_tail():
    sp = softmax_part
    g57 = qk_half(58) + rebase(qk_half(59), V_RDK, A0 - A2)
    g58 = pv_seq(56)
    g59 = rebase(qk_half(60), V_RDK, A1 - A0) + rebase(qk_half(61), V_RDK, A2 - A1)
    g60 = rebase(pv_seq(58), [V_RD], B2 - B1) + rebase(pv_seq(59), [V_RD], B0 - B2)
    g61 = rebase(pv_seq(60), [V_RD], B1 - B0) + rebase(qk_half(62), V_RDK, A0 - A2)
    g62 = rebase(qk_half(63), V_RDK, A1 - A0) + rebase(pv_seq(61), [V_RD], B2 - B1)
    g63 = []
    for n in range(3):
        for e in range(4): g63 += [pv_grp(62, 3 * e + n), pv_grp(63, 3 * e + n, va=V_RD2)]
    g63[0].reb += [f"v_subrev_u32 v{V_RD2}, {B2 - B1}, v{V_RD}", f"v_subrev_u32 v{V_RD}, {B2 - B0}, v{V_RD}"]
    first57 = g57[:2]
    p = []
    p += gen_seg("S57", g57, g58[:2], [(sp(57, 1), 0, 40), (sp(58, 0), 41, 95)], [(GBAR, [("dv", 0), ("dv", 1)])],
                 [("step", "p", 30, GBAR - 3)], [K_(62, 63) + V_(58, 59) + (0, 74)], peel=False)
    p += gen_seg("S58", g58, g59[:2], [(sp(58, 1) + sp(59, 0) + sp(59, 1), 0, 95)], [(GBAR, [("dk", 7), ("dv", 3)])], [], [V_(60, 61) + (0, 40)], peel=False)
    p += gen_seg("S59", g59, g60[:2], [(epi_addr(), 0, 30), (sp(60, 0), 31, 60), (sp(60, 1), 61, 95)], [(15, [("dv", 5)])], [], [V_(62, 63) + (16, 50)], peel=False)
    p += gen_seg("S60", g60, g61[:2], [(sp(61, 0) + sp(61, 1) + epi_l((0, 1)), 0, 95)], [(GBAR, [("dv", 7)])])
    ep = Epi([BX, BX + 8, BY, BY + 8], [BZ, BZ + 4, BZ + 8, BZ + 12, NEGM(0), NEGM(1)])
    e01 = [x for qb in (0, 1) for n in range(3) for x in ep.chunk(qb, n)] + ep.flush()
    n1 = OPT.get("e1", 100)
    td = OPT["tden"]
    p += gen_seg("S61", g61, g62[:2], [(sp(62, 0), 78, 95)], extra=[Stream(e01[:n1], 52, 95, dense=td)])
    p += gen_seg("S62", g62, g63[:2], [(sp(62, 1), 2, 30), (sp(63, 0), 31, 60), (sp(63, 1), 61, 95)], extra=[Stream(e01[n1:], 0, 95, dense=td)])
    chk = [f"v_max3_f32 v{V_T}, v{V_L[0]}, v{V_L[1]}, v{V_L[2]}", f"v_max_f32 v{V_T}, v{V_T}, v{V_L[3]}",
           f"s_mov_b32 s{S_TMP}, 0x{f32bits(2.0**OPT['thr']):08x}", f"v_cmp_lt_f32 vcc, s{S_TMP}, v{V_T}"]
    c0 = ep.chunk(2, 0) + ep.chunk(3, 0)
    c1 = ep.chunk(2, 1) + ep.chunk(3, 1)
    p += gen_seg("S63", g63, [], [(epi_l((2, 3)) + chk, 0, 24)], extra=[Stream(c0, 36, 67, dense=td), Stream(c1, 68, 95, dense=td)],
                 fixed=[(29, "A", ["s_cbranch_vccnz L_slow"])])
    p += istamp("fin") + ["s_nop 7"] + ep.chunk(2, 2, True) + ep.chunk(3, 2, True) + ep.flush()
    return first57, p
def slow_epi():
    ep = Epi([64 + 8 * i for i in range(8)], [128 + 4 * i for i in range(8)])
    seq = epi_l((0, 1)) + epi_l((2, 3))
    for qb in range(4):
        for n in range(3): seq += ep.chunk(qb, n, True)
    return seq + ep.flush()

def kfrag(g):
    return 2 * (g >> 2) + (g & 1), (g >> 1) & 1
def gen_slow():
    KF = 64; VF = 112; SS = 160; PP = 224; M = [240, 241, 242, 243]; KA = [244, 245]; LA = 246; t = V_T
    p = ["L_slow:", "s_waitcnt vmcnt(0) lgkmcnt(0)", "s_nop 15"]
    for i in range(192): p.append(f"v_accvgpr_write_b32 a{i}, 0")
    for q in range(4): p += [f"v_mov_b32 v{V_L[q]}, 0", f"v_mov_b32 v{M[q]}, 0xff7fffff"]
    p += [f"v_subrev_u32 v{KA[0]}, {A1}, v{V_RDK[0]}", f"v_subrev_u32 v{KA[1]}, {A1}, v{V_RDK[1]}", f"v_subrev_u32 v{LA}, {B0}, v{V_RD}",
          f"s_mov_b32 s{S_PT}, 0", "L_slowloop:"]
    for i in range(1, 5): p.append(f"s_add_u32 s{S_PT+i}, s{S_PT}, {[0, 6144, 12288, 16384, 20480][i]}")
    for f in range(12):
        s, tb = kfrag(f)
        p.append(f"buffer_load_dwordx4 v[{KF+4*f}:{KF+4*f+3}], v{KA[s&1]}, s[{S_WS}:{S_WS+3}], s{S_PT+tb} offen offset:{(s>>1)*128} sc1")
    for db in range(12):
        p.append(f"buffer_load_dwordx4 v[{VF+4*db}:{VF+4*db+3}], v{LA}, s[{S_WS}:{S_WS+3}], s{S_PT+2+db//4} offen offset:{(db%4)*1024} sc1")
    p.append("s_waitcnt vmcnt(12)")
    for f in range(12):
        s, tb = kfrag(f)
        for qb in range(4):
            d = vr(SS + 8 * qb + 4 * tb, 4)
            p.append(f"{MF} {d}, v[{KF+4*f}:{KF+4*f+3}], {Qf(qb,s)}, {'0' if s == 0 else d}")
    p.append("s_nop 9")
    for qb in range(4):
        sb = SS + 8 * qb
        p += [f"v_max3_f32 v{t}, v{sb}, v{sb+1}, v{sb+2}", f"v_max3_f32 v{t}, v{t}, v{sb+3}, v{sb+4}",
              f"v_max3_f32 v{t}, v{t}, v{sb+5}, v{sb+6}", f"v_max3_f32 v{t}, v{t}, v{sb+7}, v{M[qb]}"]
        p += xlane("v_max_f32", t)
        p += [f"v_sub_f32 v{t+1}, v{M[qb]}, v{t}", f"v_exp_f32 v{t+1}, v{t+1}", f"v_mov_b32 v{M[qb]}, v{t}"]
        for i in range(8): p.append(f"v_sub_f32 v{sb+i}, v{sb+i}, v{t}")
        for i in range(8): p.append(f"v_exp_f32 v{sb+i}, v{sb+i}")
        p.append(f"v_mul_f32 v{V_L[qb]}, v{V_L[qb]}, v{t+1}")
        for i in range(8): p.append(f"v_add_f32 v{V_L[qb]}, v{V_L[qb]}, v{sb+i}")
        for i in range(4): p.append(f"v_cvt_pk_bf16_f32 v{PP+4*qb+i}, v{sb+2*i}, v{sb+2*i+1}")
        for i in range(48):
            a = O(qb, 0) + i; tt = t + 2 + (i % 2)
            p += [f"v_accvgpr_read_b32 v{tt}, a{a}", f"v_mul_f32 v{tt}, v{tt}, v{t+1}", f"v_accvgpr_write_b32 a{a}, v{tt}"]
    p += ["s_waitcnt vmcnt(0)", "s_nop 1"]
    for db in range(12):
        for qb in range(4):
            d = ar(O(qb, db), 4)
            p.append(f"{MF} {d}, v[{VF+4*db}:{VF+4*db+3}], v[{PP+4*qb}:{PP+4*qb+3}], {d}")
    p += [f"s_add_u32 s{S_PT}, s{S_PT}, {STAGE}", f"s_cmp_lt_u32 s{S_PT}, {HEADBYTES}", "s_nop 7", "s_cbranch_scc1 L_slowloop"]
    e = slow_epi(); resolve(e)
    return p + fin(e) + ["s_branch L_fin"]

def xlane(op, t, u=None):
    u = t + 1 if u is None else u
    l = []
    for sw in ("v_permlane16_swap_b32", "v_permlane32_swap_b32"):
        l += [f"v_mov_b32 v{u}, v{t}", "s_nop 1", f"{sw} v{t}, v{u}", "s_nop 1", f"{op} v{t}, v{t}, v{u}"]
    return l
def rowmax2(t, qs, tq):
    l = []
    ab = [(Sq(t, j, 0), Sq(t, j, 1)) for j in range(2)]
    l += [f"v_max3_f32 v{tq[j]}, v{a}, v{a+1}, v{a+2}" for j, (a, b) in enumerate(ab)]
    l += [f"v_max3_f32 v{tq[j]}, v{tq[j]}, v{a+3}, v{b}" for j, (a, b) in enumerate(ab)]
    l += [f"v_max3_f32 v{tq[j]}, v{tq[j]}, v{b+1}, v{b+2}" for j, (a, b) in enumerate(ab)]
    l += [f"v_max_f32 v{tq[j]}, v{tq[j]}, v{b+3}" for j, (a, b) in enumerate(ab)]
    for sw in ("v_permlane16_swap_b32", "v_permlane32_swap_b32"):
        l += [f"v_mov_b32 v{tq[j]+1}, v{tq[j]}" for j in range(2)] + ["s_nop 0"]
        l += [f"{sw} v{tq[j]}, v{tq[j]+1}" for j in range(2)] + ["s_nop 0"]
        l += [f"v_max_f32 v{tq[j]}, v{tq[j]}, v{tq[j]+1}" for j in range(2)]
    l += [f"v_sub_f32 v{NEGM(qs[j])+i}, 0, v{tq[j]}" for j in range(2) for i in range(4)]
    return l
def addneg(t, sl):
    n = NEGM(slot_q(t, sl))
    return [f"v_add_f32 v{Sq(t,sl,tb)+i}, v{Sq(t,sl,tb)+i}, v{n}" for tb in range(2) for i in range(4)]

def resolve(seq):
    vm = []; ds = []
    for x in seq:
        if isinstance(x, VM): vm.append(x.tag)
        elif isinstance(x, DS): ds.append(x.tag)
        elif isinstance(x, (W, LG)):
            q = vm if isinstance(x, W) else ds
            best = None
            for tag in x.tags:
                n = 0; found = False
                for t in reversed(q):
                    if t == tag: found = True; break
                    n += 1
                if found: best = n if best is None else min(best, n)
            if best is not None:
                x.n = best if getattr(x, "n", None) is None else min(x.n, best)
        else:
            assert not x.startswith(("ds_", "buffer_")) or "UNTRACKED" in x, x
def vm_size(x):
    t = x.text
    if t.startswith("buffer_store"): return 0
    if " lds" in t: return 1.0
    if "dwordx4" in t: return 0.75
    if "dwordx2" in t and "offen" in t: return 0.375
    return 0.125
def pace(seq, cap):
    out = []; q = []; on = False
    for x in seq:
        if isinstance(x, W): q = q[len(q) - min(len(q), x.n):]; on = True
        elif isinstance(x, VM):
            sz = vm_size(x)
            if on and not x.text.startswith("buffer_store") and sum(q) + sz > cap:
                while q and sum(q) + sz > cap: q.pop(0)
                w = W(); w.n = len(q)
                if out and out[-1] == "s_nop 0": out.pop()
                out.append(w)
            q.append(sz)
        out.append(x)
    return out
def fin(seq):
    out = []
    for x in seq:
        if isinstance(x, (W, LG)):
            assert getattr(x, "n", None) is not None, x.tags
            out.append(f"s_waitcnt vmcnt({min(x.n, 63)})" if isinstance(x, W) else f"s_waitcnt lgkmcnt({min(x.n, 15)})")
        elif isinstance(x, (VM, DS)): out.append(x.text)
        else: out.append(x.replace(" ;UNTRACKED", ""))
    return out
def srd(p, s, lo, hi, off_s, size):
    p += [f"s_add_u32 s{s}, s{lo}, s{off_s}", f"s_addc_u32 s{s+1}, s{hi}, 0", f"s_mov_b32 s{s+2}, {size}", f"s_mov_b32 s{s+3}, 0x20000"]

def gen_main():
    p = []
    p += [f"{NAME}_kernel:", "s_cmp_ge_u32 s2, 256", "s_cbranch_scc1 L_done",
          "s_load_dwordx16 s[40:55], s[0:1], 0", "s_load_dwordx4 s[16:19], s[0:1], 64"]
    if OPT["stamp"]: p += ["s_memrealtime s[98:99]" if OPT["stamp"] == 8 else "s_memtime s[98:99]"]
    p += [f"s_and_b32 s{S_HEAD}, s2, 7", f"s_lshr_b32 s{S_QB}, s2, 3", f"s_lshr_b32 s24, s{S_QB}, 3", f"s_lshl_b32 s{S_HEAD}, s{S_HEAD}, 2",
          f"s_add_u32 s{S_HEAD}, s{S_HEAD}, s24", f"s_and_b32 s{S_QB}, s{S_QB}, 7"]
    p += ["s_getpc_b64 s[60:61]", "L_pc:", f"s_sub_u32 s60, s60, L_pc-{NAME}_kernel", "s_subb_u32 s61, s61, 0",
          f"s_mov_b32 s62, L_slow-{NAME}_kernel", "s_mov_b32 s63, 0x20000",
          "s_lshr_b32 s22, s2, 3", "s_lshl_b32 s22, s22, 12",
          "v_lshlrev_b32 v30, 4, v0",
          VM("pf", "buffer_load_dwordx4 v[128:131], v30, s[60:63], s22 offen")]
    p += ["v_lshrrev_b32 v24, 6, v0",
          "v_and_b32 v25, 63, v0",
          f"v_readfirstlane_b32 s{S_WAVE}, v24",
          f"v_lshlrev_b32 v{V_RD}, 4, v25",
          "v_mul_u32_u24 v26, 43, v25", "v_lshrrev_b32 v26, 10, v26",
          "v_mul_u32_u24 v27, 24, v26",
          "v_sub_u32 v27, v25, v27",
          "v_lshrrev_b32 v28, 1, v24",
          "v_and_b32 v29, 1, v24",
          "v_lshlrev_b32 v30, 4, v29",
          "v_lshl_add_u32 v30, v28, 2, v30",
          "v_add_u32 v30, v30, v26",
          "v_mul_u32_u24 v30, 768, v30",
          "v_lshrrev_b32 v48, 1, v26", "v_lshlrev_b32 v48, 30, v48",
          "v_lshl_add_u32 v30, v27, 4, v30", f"v_or_b32 v{V_KLD}, v30, v48",
          f"v_lshl_or_b32 v{V_KSC}, v27, 3, v48",
          "v_mul_u32_u24 v30, 6144, v24",
          f"v_add3_u32 v{V_VLD}, v30, v{V_RD}, v48"]
    for sd, size in ((S_QK, HEADBYTES), (S_QV, HEADBYTES), (S_KS, 12288), (S_KZ, 12288), (S_VS, 4096), (S_VZ, 4096), (S_FLG, 32)):
        p += [f"s_mov_b32 s{sd+2}, {size}", f"s_mov_b32 s{sd+3}, 0x20000"]
    p += [f"s_mul_i32 s{S_PK0}, s{S_QB}, {STAGE}", f"s_add_u32 s{S_PK1}, s{S_PK0}, 6144", f"s_mov_b32 s{S_PV0}, s{S_PK0}",
          f"s_lshr_b32 s{S_PKS}, s{S_QB}, 1", f"s_mul_i32 s{S_PKS}, s{S_PKS}, 384", f"s_lshl_b32 s{S_PVS}, s{S_QB}, 6",
          f"s_lshl_b32 s24, s{S_WAVE}, 4", f"s_add_u32 s{S_PVS}, s{S_PVS}, s24",
          f"s_mul_i32 s24, s{S_HEAD}, {HEADBYTES}", f"s_mul_i32 s56, s{S_HEAD}, 12288", f"s_lshl_b32 s57, s{S_HEAD}, 12",
          f"s_lshl_b32 s58, s{S_HEAD}, 10", f"s_add_u32 s58, s58, {FLAG_OFF}",
          f"s_or_b32 s{S_RET}, s{S_QB}, s{S_WAVE}"]
    p += ["s_waitcnt lgkmcnt(0)"] + istamp("karg", True)
    def base(sd, lo, off): return [f"s_add_u32 s{sd}, s{lo}, s{off}", f"s_addc_u32 s{sd+1}, s{lo+1}, 0"]
    p += base(S_QK, 42, 24) + base(S_KS, 46, 56) + base(S_KZ, 48, 56)
    kl = [k_ld(0, 64, 32, "k0a"), k_ld(1, 80, 36, "k0b")]; vl = [v_ld(0, 96, 40, "v0a"), v_ld(1, 112, 44, "v0b")]
    for x in kl[1][:2]: x.tag = "k0a"
    for x in vl[1][:2]: x.tag = "v0a"
    if OPT["ksc"]:
        for x in kl[0][2:] + kl[1][2:]: x.tag = "kraw"
        for x in kl[1][:2]: x.tag = "k0b"
        p += kl[0][2:] + kl[1][2:] + kl[0][:2] + kl[1][:2]; kl[1] = []
    else: p += kl[0][2:] + kl[0][:2] + kl[1][:2]
    p += base(S_FLG, 18, 58) + base(S_VS, 50, 57) + base(S_VZ, 52, 57) + base(S_QV, 44, 24)
    p += [f"s_mul_i32 s59, s{S_HEAD}, 786432"] + base(S_OUT, 54, 59)
    p += [f"s_cmp_lg_u32 s{S_RET}, 0", "s_cbranch_scc1 L_notleader0"] + smem_flags() + ["L_notleader0:"]
    p += kl[1][2:]
    srd(p, S_WS, 18, 19, 24, HEADBYTES)
    srd(p, S_Q, 40, 41, 59, 786432)
    p += [f"s_mov_b32 s{S_DBG}, s16", f"s_mov_b32 s{S_DBG+1}, s17", f"s_add_u32 s{S_PV1}, s{S_PK0}, 3072", f"s_add_u32 s{S_PV2}, s{S_PK0}, 6144"]
    p += [f"s_mov_b32 s{S_DBG+2}, 256", f"s_mov_b32 s{S_DBG+3}, 0x20000", f"s_lshl_b32 s{S_HOFF}, s{S_HEAD}, 3"]
    if OPT["touch"]:
        p += [f"s_buffer_load_dword s44, s[{S_WS}:{S_WS+3}], s{S_PK0}", f"s_buffer_load_dword s45, s[{S_FLG}:{S_FLG+3}], 0",
              f"s_mul_i32 s24, s{S_PK0}, 4", f"s_buffer_load_dword s46, s[{S_Q}:{S_Q+3}], s24"]
    p += [f"s_cmp_lg_u32 s{S_RET}, 0", "s_cbranch_scc1 L_notleader", "s_waitcnt lgkmcnt(0)", f"s_mov_b32 s{S_TP}, 1"]
    for i in range(8):
        p += [f"s_lshr_b32 s{S_PT+i}, s{S_PT+i}, 8", f"s_min_u32 s{S_PT+i}, s{S_PT+i}, 31", f"s_bitset1_b32 s{S_TP}, s{S_PT+i}"]
    p += [f"s_ff0_i32_b32 s{S_TP}, s{S_TP}", f"s_lshl_b32 s{S_TP}, s{S_TP}, 8", f"v_mov_b32 v{V_POLL}, s{S_TP}",
          "s_mov_b64 exec, 1", f"buffer_store_dword v{V_POLL}, off, s[{S_DBG}:{S_DBG+3}], s{S_HOFF} sc1 ;UNTRACKED", "s_mov_b64 exec, -1",
          "L_notleader:"]
    p += vl[0][2:] + vl[0][:2] + vl[1][:2] + istamp("iss", True)
    p += [f"s_mov_b32 s{S_OUT+2}, 786432", f"s_mov_b32 s{S_OUT+3}, 0x20000"]
    p += [f"s_lshl_b32 s24, s{S_WAVE}, 8", f"s_add_u32 s{S_HOFF}, s{S_HOFF}, s24"]
    p += ["v_mul_u32_u24 v30, 3072, v24", f"v_add_u32 v{V_DMA}, v30, v{V_RD}"]
    p += ["v_lshl_add_u32 v30, v24, 3, v26",
          "v_mul_u32_u24 v30, 384, v30",
          "v_lshlrev_b32 v31, 2, v29",
          "v_xor_b32 v31, v27, v31",
          "v_lshl_add_u32 v30, v31, 4, v30", f"v_or_b32 v{V_KST}, v30, v48",
          "v_lshlrev_b32 v30, 8, v24",
          "v_add_u32 v30, 12288, v30",
          "v_lshrrev_b32 v31, 4, v25", "v_lshl_add_u32 v30, v31, 10, v30", "v_and_b32 v31, 15, v25",
          "v_lshl_add_u32 v30, v31, 4, v30", f"v_or_b32 v{V_VST}, v30, v48"]
    p += [f"s_lshl_b32 s24, s{S_QB}, 2",
          f"v_lshl_add_u32 v{V_FLAG}, v0, 2, s24", f"v_cmp_lt_u32 vcc, 0, v0", "v_mov_b32 v30, 0x40000000", "s_nop 0",
          f"v_cndmask_b32 v{V_FLAG}, v{V_FLAG}, v30, vcc"]
    p += [f"s_mul_i32 s{S_DMK}, s{S_WAVE}, 3072", f"s_add_u32 s{S_DMK}, s{S_DMK}, 12288", f"s_add_u32 s{S_DMV}, s{S_DMK}, {STAGE}",
          f"s_add_u32 s24, s{S_QB}, 1", "s_and_b32 s24, s24, 7", f"s_mul_i32 s{S_GOFFK}, s24, {STAGE}", f"s_add_u32 s{S_GOFF}, s{S_GOFFK}, 12288",
          f"s_mov_b32 s{S_RK}, {A2}", f"s_mov_b32 s{S_RV}, {B1}", f"v_add_u32 v{V_RD}, {B0}, v{V_RD}",
          f"s_mov_b32 s{S_CS}, 0x{f32bits(CSCALE):08x}", f"s_mov_b32 s{S_MASK}, 0xffff0000",
          f"s_mov_b32 s{S_BUDGET}, 100000"] + ([f"s_mov_b32 s{S_TAG+1}, 0"] if OPT["stamp"] else [])
    p += ["v_and_b32 v26, 15, v25", "v_lshrrev_b32 v27, 4, v25", "v_bfe_u32 v28, v25, 1, 3",
          "v_xor_b32 v29, v27, v28", "v_mul_u32_u24 v30, 384, v26", f"v_lshl_add_u32 v{V_RDK[0]}, v29, 4, v30",
          f"v_xor_b32 v{V_RDK[1]}, 64, v{V_RDK[0]}"]
    p += [f"s_mul_i32 s{S_QL}, s{S_WAVE}, 6144", f"s_add_u32 s{S_QL}, s{S_QL}, {B1}",
          "v_lshrrev_b32 v29, 1, v27", "v_xor_b32 v29, v29, v28", "v_lshl_add_u32 v31, v29, 4, v30",
          "v_and_b32 v29, 1, v27", "v_lshl_add_u32 v31, v29, 3, v31"]
    for kk in range(4):
        p += [f"v_xor_b32 v{VQR[kk]}, {32*kk}, v31", f"v_add_u32 v{VQR[kk]}, s{S_QL}, v{VQR[kk]}"]
    p += [f"s_lshl_b32 s24, s{S_QB}, 2", f"s_add_u32 s24, s24, s{S_WAVE}", f"s_mul_i32 s24, s24, {STAGE}"]
    for b in range(6):
        p += [f"v_add_u32 v26, {64*b}, v25", "v_mul_u32_u24 v27, 2731, v26", "v_lshrrev_b32 v27, 17, v27",
              "v_and_b32 v27, 7, v27", "v_xor_b32 v26, v26, v27", f"v_lshlrev_b32 v{VQD+b}, 4, v26", f"v_add_u32 v{VQD+b}, s24, v{VQD+b}"]
    for q in range(4): p.append(f"v_mov_b32 v{V_L[q]}, 0")
    def own_k(b):
        l = []
        for j in range(4):
            l += k_st(j, b, "kst")
            va = V_KST if j == 0 else V_KA + (j & 1)
            l += ["s_mov_b64 exec, s[62:63]", DS("w", f"ds_write_b128 v{va}, v[{b+4*j}:{b+4*j+3}] offset:{j*768}"), "s_mov_b64 exec, -1"]
        return l
    def own_v(b):
        l = [x for e in range(4) for x in v_st(e, b, "vst")]
        l += ["s_mov_b64 exec, s[62:63]"] + [DS("w", f"ds_write_b128 v{V_VST}, v[{b+4*e}:{b+4*e+3}] offset:{STAGE - 12288 + e*3072}") for e in range(4)] + ["s_mov_b64 exec, -1"]
        return l
    p += ["s_mov_b32 s62, -1", "s_mov_b32 s63, 0xffff"]
    qa = OPT["qa"]
    p += istamp("pre-k0a", True) + [W("k0a")] + istamp("k0a", True) + vl[1][2:] + k_cv(0, 64, 32, 64) + [W("k0b")] + istamp("k0b", True) + k_cv(1, 80, 36, 64) + own_k(64)
    qb_, qc = OPT["qb"], OPT["qc"]
    p += tag_load() + with_nop(q_dma(list(range(0, qa)))) + istamp("kst", True)
    p += [W("tag")] + tag_check() + istamp("tag", True)
    p += ["s_waitcnt lgkmcnt(0)", "s_barrier"] + flag_post() + tag_get() + with_nop(q_dma(list(range(qa, qb_)))) + istamp("postK", True)
    p += v_cv(0, 96, 40, 96) + [LG("tg")] + tag_use() + v_cv(1, 112, 44, 96) + own_v(96)
    p += with_nop(q_dma(list(range(qb_, qc)))) + istamp("vst", True)
    p += k_adv() + v_adv()
    if OPT["pf2"]:
        p += [f"s_mov_b32 s{S_DBG}, s60", f"s_mov_b32 s{S_DBG+1}, s61", f"s_mov_b32 s{S_DBG+2}, L_slow-{NAME}_kernel",
              "s_lshr_b32 s24, s2, 3", f"s_mul_i32 s{S_HOFF}, s24, 43", f"s_lshr_b32 s{S_HOFF}, s{S_HOFF}, 7",
              f"s_mul_i32 s{S_RET}, s{S_HOFF}, 3", f"s_sub_u32 s24, s24, s{S_RET}", "s_lshl_b32 s24, s24, 10",
              f"s_mul_i32 s{S_HOFF}, s{S_HOFF}, 12288", f"s_add_u32 s{S_HOFF}, s{S_HOFF}, s24"]
    KF = 144
    for f in range(12):
        s, tb = kfrag(f)
        p.append(DS("kf", f"ds_read_b128 v[{KF+4*f}:{KF+4*f+3}], v{V_RDK[s&1]} offset:{tb*6144 + (s>>1)*128}"))
    ps = len(POLLSITES); POLLSITES.append(ps)
    if OPT["w0poll"]: p += [f"s_cmp_lg_u32 s{S_WAVE}, 0", f"s_cbranch_scc1 L_pollok{ps}"]
    p += smem_flags() + ["s_waitcnt lgkmcnt(0)"] + smem_reduce() + [f"s_cmp_ge_u32 s{S_PT}, 16", f"s_cbranch_scc1 L_pollslow{ps}", f"L_pollok{ps}:",
          f"s_add_u32 s{S_NEED}, s{S_NEED}, 1"] + ["s_barrier"] * OPT["w0poll"] + istamp("pollK", True)
    p += with_nop(dma_tile("k", 1, True) + q_dma(list(range(qc, 18)))) + istamp("dmaK", True)
    def qk0(qb):
        l = []
        for f in sorted(range(12), key=lambda f: kfrag(f)[::-1]):
            s, tb = kfrag(f)
            d = vr(Sq(0, qb, tb), 4)
            l.append(f"{MF} {d}, v[{KF+4*f}:{KF+4*f+3}], {Qf(qb,s)}, {'0' if s == 0 else d}")
        return l
    p += [W(("q", 0))] + istamp("q0", True) + q_frags(0) + ["s_waitcnt lgkmcnt(0)"] + qk0(0)
    p += [W("vst"), "s_barrier"] + flag_post() + istamp("postV", True)
    p += with_nop(dma_tile("k", 2, True) + dma_tile("k", 3, True))
    p += [W(("q", 1))] + istamp("q1", True) + q_frags(1) + ["s_waitcnt lgkmcnt(0)"] + qk0(1) + with_nop(q_dma(list(range(18, 24))))
    p += rowmax2(0, (0, 1), (V_CT, V_CT + 2)) + addneg(0, 0) + addneg(0, 1) + softmax_part(0, 0)
    sp = softmax_part
    g1 = qk_half(0, ws=(1,))
    g2 = rebase(qk_half(1), V_RDK, A1 - A0)
    g3 = pv_unchained(0, True)
    g4 = rebase(pv_unchained(1), [V_RD], B1 - B0)
    g5 = rebase(qk_half(2, True), V_RDK, A0 - A1) + rebase(qk_half(3), V_RDK, A1 - A0)
    gi3 = rebase(qk_full(4), V_RDK, A2 - A1)
    gi4 = rebase(pv_seq(2, True), [V_RD], B0 - B1) + rebase(pv_seq(3), [V_RD], B1 - B0)
    p += istamp("pre-dk1", True) + [W(("dk", 1)), "s_barrier"] + [rd_op(i, j, g1[i]) for i in range(2) for j in range(2)]
    p += [LG(("fr", 0), ("fr", 1))]
    p += gen_seg("S1", g1, g2[:2], [], [(15, [("dk", 3)])], [("spollld", 17)], extra=[Stream([W(("q", 2))] + q_frags(2) + [LG(("qf", 2))], 0, 12)])
    p += gen_seg("S2", g2, g3[:2], [(sp(0, 1), 3, 47)], [], [("spollchk", 5, 13), ("ldn", "ka", 36, 47)], [V_(1, 2, 3) + (14, 35)], vmgap=2)
    p += gen_seg("S3", g3, g4[:2], [(sp(1, 0), 0, 47)], [(15, [("dv", 1)]), (39, [("dv", 3)])], [("ldn", "kb", 0, 22), ("ldn", "va", 23, 46, "raw")])
    p += gen_seg("S4", g4, g5[:2], [(sp(1, 1), 0, 21)], [], [], extra=[Stream([W(("q", 3))] + q_frags(3), 22, 46)])
    p += istamp("pre-S5", True) + ["s_waitcnt lgkmcnt(0)", "s_barrier"]
    p += gen_seg("S5", g5, gi3[:2], [(rowmax2(2, (2, 3), (V_T, V_T + 2)), 27, 45), (addneg(2, 0) + addneg(2, 1) + sp(2, 0) + addneg(2, 2) + addneg(2, 3) + sp(2, 1), 46, 95)],
                 [(GBAR + 8, [("dk", 5)])], [("cv", "ka", 0, 99, 0, 34), ("cv", "kb", 0, 99, 35, 72), ("kst", 0, 73), ("kst", 1, 77), ("kst", 2, 89), ("kst", 3, 93),
                 ("ldn", "va", 36, 60, "sc")], [K_(4, 5) + (1, 24)])
    p += gen_seg("i3", gi3, gi4[:2], [(sp(3, 0) + sp(3, 1), 0, 54), (sp(4, 0), 55, 95)], [(OPT["pb"], []), (GBAR, [])],
                 [("ld", "vb", 0, 22), ("post", "kst", 0), ("cv", "va", 0, 99, 10, 95)], [K_(6, 7) + V_(4, 5) + (24, 90)])
    p += [f"s_mov_b32 s{S_CNT}, 7"]
    p += gen_seg("i4", gi4, seg_groups(5)[:2], [(sp(4, 1) + sp(5, 0), 0, 94)], [(47, []), (GBAR + 8, [("dk", 7)])],
                 [("ld", "ka", 0, 30), ("cv", "vb", 0, 99, 30, 94), ("step", "q", 30, 70), ("pollld", OPT["pl4"], OPT["pl4"] + 8)], [V_(6, 7) + (52, 84)],
                 endops=["s_nop 0", "s_branch L_join"])
    p += [".p2align 6", "L_loop:"]
    pro_ = p
    first57, tail = gen_tail()
    bodyA = []
    for k in (1, 2, 3, 4, 5, 6, 7, 0):
        if k == 5: bodyA.append("L_join:"); jpos = len(bodyA)
        eo = [f"s_sub_u32 s{S_CNT}, s{S_CNT}, 1", f"s_cmp_lg_u32 s{S_CNT}, 0", "s_cbranch_scc1 L_loop"] if k == 0 else ()
        t, d = steady(k)
        bodyA += gen_iter(16 + k, t, d, name=f"k{k}", endops=eo)
    assert [g.rd for g in first57] == [g.rd for g in seg_groups(17)[:2]]
    tailc = tail + ["L_fin:"]
    resolve(pro_ + bodyA[jpos:] + bodyA + bodyA + tailc)
    if OPT["cap"]: pro_ = pace(pro_, OPT["cap"] / 4)
    P_ = Prog()
    P_.extend(fin(pro_))
    a0 = len(P_.ins); P_.extend(fin(bodyA)); a1 = len(P_.ins)
    P_.extend(fin(tailc))
    p = P_
    if OPT["stamp"]:
        p("s_waitcnt vmcnt(0) lgkmcnt(0)")
        p.extend(istamp("end"))
        p("s_waitcnt lgkmcnt(0)")
        p.extend(istamp("end2"))
        p(f"v_writelane_b32 v{V_STAMP}, s{S_TAG+1}, 63")
        p("s_add_u32 s8, s18, 0xfa00000"); p("s_addc_u32 s9, s19, 0"); p("s_mov_b32 s10, 1048576"); p("s_mov_b32 s11, 0x20000")
        p("s_lshl_b32 s24, s2, 2"); p(f"s_add_u32 s24, s24, s{S_WAVE}"); p("s_lshl_b32 s24, s24, 8")
        p(f"v_bfe_u32 v32, v{V_DMA}, 4, 6"); p("v_lshlrev_b32 v32, 2, v32")
        p(f"buffer_store_dword v{V_STAMP}, v32, s[8:11], s24 offen")
        open(sys.argv[1] + ".stamps", "w").write("\n".join(STAMPS))
    if OPT["calx"]:
        p("s_waitcnt vmcnt(0)")
        p("L_cal:")
        p("s_memrealtime s[40:41]")
        p("s_waitcnt lgkmcnt(0)")
        p("s_sub_u32 s40, s40, s100")
        p("s_cmp_lt_u32 s40, 10000")
        p("s_cbranch_scc1 L_cal")
    p("L_done:")
    p("s_endpgm")
    main_end0 = len(p.ins)
    for ps in POLLSITES: p.extend(poll_slow(ps))
    p.extend(tag_slow())
    main_end = len(p.ins)
    p.extend(gen_slow())
    slow_end = len(p.ins)
    ji = [i for i, x in enumerate(p.ins) if x.text == "L_join:"][0]
    lin = p.ins[:a0] + p.ins[ji:a1] + p.ins[a0:main_end0]
    sl = [i for i, x in enumerate(p.ins) if x.text == "L_slowloop:"][0]
    bi = [i for i, x in enumerate(p.ins) if x.text == "s_cbranch_scc1 L_slowloop"][0]
    probs = check_hazards(lin, "main") + check_hazards(p.ins[main_end:bi+1] + p.ins[sl:slow_end], "slow") + check_hazards(p.ins[main_end0:main_end], "aux")
    for x in probs: print(x, file=sys.stderr)
    return p

def kd(name, vgpr, sgpr, accum):
    return f""".amdhsa_kernel {name}
  .amdhsa_next_free_vgpr {vgpr}
  .amdhsa_next_free_sgpr {sgpr}
  .amdhsa_accum_offset {accum}
  .amdhsa_group_segment_fixed_size 0
  .amdhsa_kernarg_size 80
  .amdhsa_user_sgpr_count 2
  .amdhsa_user_sgpr_kernarg_segment_ptr 1
  .amdhsa_system_sgpr_workgroup_id_x 1
.end_amdhsa_kernel
"""
out = HEADER
out += f"; @launch grid=(256,1,1) block=(256,1,1) lds={LDS_BYTES}\n"
out += '.amdgcn_target "amdgcn-amd-amdhsa--gfx950"\n.text\n'
out += f".globl {NAME}_kernel\n.p2align 8\n.type {NAME}_kernel,@function\n" + gen_main().text()
out += '.section .rodata,"a"\n.p2align 6\n' + kd(NAME + "_kernel", 512, 102, 256)
open(sys.argv[1], "w").write(out)
```

```python
import sys, math
from asmlib import *

NAME = "standalone__kv_cache_quant_int4_int2_kv_with_per_channel_or_per_token_scales__prompt"
OPT = dict(stamp=0, vmgap=4, sb=6, sa=6, ahead=4, thr=64, pf2=1, calx="", qa=6, plv=2, plk=10, ckv=1, ckk=1, tden=24, touch=0, w0poll=0, cap=48, qb=6, q3e=1, ksc=0, few=1, qc=15, pb=39, pl4=40, l2=1, k1e=0, greedy=1, g3n=3, pre=128, own1=1)
for a in sys.argv[2:]:
    k, v = a.split("="); OPT[k] = int(v) if v.lstrip("-").isdigit() else v
NS = 6
STAGE = 24576
HEADBYTES = 64 * STAGE
RING = NS * STAGE
LDS_BYTES = RING + 128
A0, B0, A1, B1, A2, B2 = [i * STAGE for i in range(6)]
CSCALE = (192.0 ** -0.5) * math.log2(math.e)
HEADER = open("cdna_kernels/" + NAME + ".s.ref").read().split("; Override launch geometry")[0]
MF = "v_mfma_f32_16x16x32_bf16"

V_FVAL = 0; V_RD = 1; V_RDK = [2, 3]; V_DMA = 4; V_L = [5, 6, 7, 8]
V_KLD = 9; V_KSC = 10; V_KST = 11; V_VLD = 12; V_FLAG = 13; V_RD2 = 14
V_T = 16; NTP = 2
V_VST = 20; V_STAMP = 21
V_FR = 24; NFS = 6
V_CT = 48; V_VO = 52; V_RS = [56, 60]; BX = 224; BY = 240; BZ = 144
V_POLL = V_VO; V_KA = V_VO + 2
UNIT = [64, 80, 160, 176]; HI = [96, 112]
VQD = 136; VQR = [22, 23, 142, 143]
def Sq(t, sl, tb): return (UNIT[t % 4] if tb == 0 else HI[t % 2]) + 4 * sl
def P(t, sl): return UNIT[t % 4] + 4 * sl
def NEGM(qb): return 128 + 4 * qb
def O(qb, db): return (qb * 12 + db) * 4
def Qf(qb, s, half=None):
    i = qb * 6 + s
    base, f = (192 + 4 * i, ar) if i < 16 else (192 + 4 * (i - 16), vr)
    return f(base, 4) if half is None else f(base + 2 * half, 2)
def FR(f): return vr(V_FR + 4 * (f % NFS), 4)

S_RDELTA = 3; S_WS = 4; S_Q = 8; S_OUT = 12; S_FLG = 20
S_WAVE = 25; S_DMK = 26; S_GOFF = 27; S_RK = 28; S_TMP = 29; S_RV = 30; S_CNT = 31; S_GOFFK = 32
S_PK0 = 33; S_PK1 = 34; S_PV0 = 35; S_PKS = 36; S_PVS = 37; S_CS = 38; S_RET = 39; S_PV1 = 16; S_PV2 = 17
S_QL = 40; S_QS = 41; S_TAG = 42; S_FOFF = 44; S_XCC = 45; S_OWN = 46
S_PT = 48; S_DMV = 56; S_TK = 57; S_TV = 58; S_TP = 59
S_QK = 64; S_QV = 68; S_KS = 72; S_KZ = 76; S_VS = 80; S_VZ = 84; S_DBG = 88
S_NEED = 92; S_HOFF = 93; S_HEAD = 94; S_QB = 95; S_BUDGET = 96; S_MASK = 97
FLAG_OFF = 64 << 20
SC1 = " sc1"; NTKV = " nt"; NTQ = " nt"; STF = " sc1"; OF = " sc0 sc1"

STAMPS = []
def istamp(name, force=False):
    if OPT["calx"] == name: return ["s_memrealtime s[100:101]"]
    if OPT["stamp"] not in (6, 8): return []
    if OPT["stamp"] == 8 and name.startswith("k") and not force: return []
    if OPT["few"] and force and name not in ("karg", "k0b", "vst", "tag", "post", "poll", "pre-dk1"): return []
    if OPT["stamp"] != 8 and force: return []
    STAMPS.append(name)
    return ["s_waitcnt lgkmcnt(0)"] * (1 if force else 0) + [f"v_mov_b32_dpp v{V_STAMP}, v{V_STAMP} wave_shr:1 row_mask:0xf bank_mask:0xf", f"v_writelane_b32 v{V_STAMP}, s98, 0",
            ("s_memtime" if OPT["stamp"] == 6 else "s_memrealtime") + " s[98:99]"]

def order_stamps():
    l = list(STAMPS); out = []
    for n in l:
        if "." in n: continue
        out.append(n); out += [m for m in l if m.startswith(n + ".")]
    return out
class W:
    def __init__(self, *tags): self.tags = tags
class VM:
    def __init__(self, tag, text): self.tag = tag; self.text = text
class LG:
    def __init__(self, *tags): self.tags = tags
class DS:
    def __init__(self, tag, text): self.tag = tag; self.text = text

def mode_of(t):
    return {0: "a", 1: "a", 2: "b", 3: "b", 58: "a", 59: "a", 60: "a", 61: "b", 62: "b", 63: "b"}.get(t, "f")
def slot_q(t, sl):
    m = mode_of(t)
    return sl if m == "f" else (sl & 1) + (0 if m == "a" else 2)
def softmax_part(t, half):
    flat = []; prev = None
    for gp in range(8):
        sl = 2 * half + gp // 4; pi = gp % 4; l = V_L[slot_q(t, sl)]
        t0 = V_T + 2 * (gp % NTP); t1 = t0 + 1
        src = Sq(t, sl, pi >> 1) + 2 * (pi & 1)
        E = [f"v_exp_f32 v{t0}, v{src}", f"v_exp_f32 v{t1}, v{src+1}"]
        A = [f"v_add_f32 v{l}, v{l}, v{t0}", f"v_add_f32 v{l}, v{l}, v{t1}"]
        C = [f"v_cvt_pk_bf16_f32 v{P(t,sl)+pi}, v{t0}, v{t1}"]
        flat += E if prev is None else [E[0]] + prev[0] + [E[1]] + prev[1]
        prev = (A, C)
    return flat + prev[0] + prev[1]

class Grp:
    def __init__(self, rd, mf): self.rd = rd; self.mf = mf; self.reb = []
def qk_tile(t, w, slots, czero=False):
    gs = []
    for gi in range(6):
        s0 = 2 * (gi >> 1); tb = gi & 1
        rd = [(V_RDK[j], w * 12288 + tb * 6144 + (s0 >> 1) * 128) for j in range(2)]
        mf = []
        for sl, qb in slots:
            d = vr(Sq(t, sl, tb), 4)
            mf += [(0, d, Qf(qb, s0), (("0" if czero else vr(NEGM(qb), 4)) if s0 == 0 else d)), (1, d, Qf(qb, s0 + 1), d)]
        gs.append(Grp(rd, mf))
    return gs
def qk_full(t): return [g for w in range(2) for g in qk_tile(t + w, w, [(q, q) for q in range(4)])]
def qk_half(t, czero=False, ws=(0, 1)):
    return [g for w in ws for g in qk_tile(t, w, [(2 * w + j, slot_q(t, j)) for j in range(2)], czero)]
def pv_grp(t, db, first=False, va=V_RD):
    m = mode_of(t); mf = []
    for qb in (range(4) if m == "f" else [slot_q(t, 0), slot_q(t, 1)]):
        d = ar(O(qb, db), 4)
        for w in range(2):
            b = P(t + w, qb) if m == "f" else P(t, 2 * w + (qb & 1))
            mf.append((w, d, vr(b, 4), "0" if (first and w == 0) else d))
    return Grp([(va, w * 12288 + db * 1024) for w in range(2)], mf)
def pv_seq(t, first=False): return [pv_grp(t, db, first) for db in range(12)]
def pv_unchained(t, first=False):
    gs = []
    for w in range(2):
        for d0 in range(0, 12, 2):
            mf = []
            for j in range(2):
                qb = slot_q(t, j)
                for e in range(2):
                    d = ar(O(qb, d0 + e), 4)
                    mf.append((e, d, vr(P(t, 2 * w + j), 4), "0" if (first and w == 0) else d))
            gs.append(Grp([(V_RD, w * 12288 + (d0 + e) * 1024) for e in range(2)], mf))
    return gs
def rebase(gs, regs, delta):
    op = "v_add_u32" if delta >= 0 else "v_subrev_u32"
    gs[0].reb += [f"{op} v{r}, {abs(delta)}, v{r}" for r in regs]
    return gs
def rd_op(gi, j, g):
    f = 2 * gi + j
    return DS(("fr", f % NFS), f"ds_read_b128 {FR(f)}, v{g.rd[j][0]} offset:{g.rd[j][1]}")

def dma_tile(part, pos, peel=False):
    dm, go, tmp = (S_DMK, S_GOFFK, S_TK) if part == "k" else (S_DMV, S_GOFF, S_TV)
    l = [f"s_mov_b32 m0, s{dm}"]
    for j in range(3):
        l.append(VM(("d" + part, pos % 8), f"buffer_load_dwordx4 v{V_DMA}, s[{S_WS}:{S_WS+3}], s{go} offen offset:{j*1024}{SC1} lds"))
    if peel and pos < 7:
        l += [f"s_add_u32 s{go}, s{go}, {STAGE}", f"s_sub_u32 s{tmp}, s{go}, {8*STAGE}", f"s_min_u32 s{go}, s{go}, s{tmp}"]
    elif peel and pos == 7:
        l += [f"s_mov_b32 s{go}, {8*STAGE + (0 if part == 'k' else 12288)}"]
    else:
        l += [f"s_add_u32 s{go}, s{go}, {STAGE}"]
    if pos % 2 == 0: l += [f"s_add_u32 s{dm}, s{dm}, 12288"]
    else: l += [f"s_add_u32 s{dm}, s{dm}, {2*STAGE - 12288}", f"s_sub_u32 s{tmp}, s{dm}, {RING}", f"s_min_u32 s{dm}, s{dm}, s{tmp}"]
    return l
QOFF = [STAGE, 0, 2 * STAGE, STAGE]
def q_dma(lst):
    l = []
    for i in lst:
        a, b = divmod(i, 6)
        l += [f"s_mov_b32 s{S_QS}, {a*6144}"] * (1 if (b == 0 or i == lst[0]) else 0)
        l += [f"s_add_u32 m0, s{S_QL}, {QOFF[a] + b*1024}",
              VM(("q", a), f"buffer_load_dwordx4 v{VQD+b}, s[{S_Q}:{S_Q+3}], s{S_QS} offen{NTQ} lds")]
    return l
def q_frags(qb):
    l = []
    for s in range(6):
        for h in range(2):
            sp = s + 6 * h
            l.append(DS(("qf", qb), f"ds_read_b64 {Qf(qb,s,h)}, v{VQR[sp&3]} offset:{QOFF[qb] + (sp>>2)*128}"))
    return l
def with_nop(l):
    out = []
    for i, x in enumerate(l):
        out.append(x)
        if isinstance(x, str) and " m0," in x and i + 1 < len(l) and isinstance(l[i + 1], VM): out.append("s_nop 0")
    return out
def rd_step(kind):
    cur, regs = (S_RK, V_RDK) if kind == "q" else (S_RV, [V_RD])
    return [f"s_add_u32 s{S_TMP}, s{cur}, {2*STAGE}", f"s_sub_u32 s{S_RDELTA}, s{S_TMP}, {RING}",
            f"s_min_u32 s{S_TMP}, s{S_TMP}, s{S_RDELTA}", f"s_sub_u32 s{S_RDELTA}, s{S_TMP}, s{cur}", f"s_mov_b32 s{cur}, s{S_TMP}"] + \
           [f"v_add_u32 v{r}, s{S_RDELTA}, v{r}" for r in regs]

def k_ld(h, buf, rs, tag, scal_first=True):
    sc = [VM(tag, f"buffer_load_dwordx2 v[{rs+2*i}:{rs+2*i+1}], v{V_KSC}, s[{srd_}:{srd_+3}], s{S_PKS} offen offset:{192*h}")
          for i, srd_ in enumerate((S_KS, S_KZ))]
    l = []
    for j in range(4):
        so = S_PK0 if j < 2 else S_PK1
        l.append(VM(tag, f"buffer_load_dwordx4 v[{buf+4*j}:{buf+4*j+3}], v{V_KLD}, s[{S_QK}:{S_QK+3}], s{so} offen offset:{(j&1)*1536+384*h}{NTKV}"))
    return sc + l if scal_first else l + sc
def v_ld(h, buf, rs, tag, scal_first=True):
    sc = [VM(tag, f"buffer_load_dwordx2 v[{rs+2*i}:{rs+2*i+1}], off, s[{srd_}:{srd_+3}], s{S_PVS} offset:{8*h}")
          for i, srd_ in enumerate((S_VS, S_VZ))]
    l = []
    for r in range(4):
        so = S_PV0 if h == 0 else S_PV1
        l.append(VM(tag, f"buffer_load_dwordx4 v[{buf+4*r}:{buf+4*r+3}], v{V_VLD}, s[{S_QV}:{S_QV+3}], s{so} offen offset:{r*768}{NTKV}"))
    return sc + l if scal_first else l + sc
def k_cv(h, buf, rs, out):
    l = []
    s0, s1, z0, z1 = V_CT, V_CT + 1, V_CT + 2, V_CT + 3
    for i in range(2):
        l += [f"v_lshlrev_b32 v{s0}, 16, v{rs+i}", f"v_and_b32 v{s1}, s{S_MASK}, v{rs+i}",
              f"v_lshlrev_b32 v{z0}, 16, v{rs+2+i}", f"v_and_b32 v{z1}, s{S_MASK}, v{rs+2+i}",
              f"v_mul_f32 v{s0}, s{S_CS}, v{s0}", f"v_mul_f32 v{s1}, s{S_CS}, v{s1}",
              f"v_mul_f32_e64 v{z0}, -v{z0}, v{s0}", f"v_mul_f32_e64 v{z1}, -v{z1}, v{s1}"]
        for j in range(4):
            a = buf + 4 * j + 2 * i; b = a + 1
            l += [f"v_cvt_f32_i32 v{a}, v{a}", f"v_cvt_f32_i32 v{b}, v{b}",
                  f"v_fma_f32 v{a}, v{a}, v{s0}, v{z0}", f"v_fma_f32 v{b}, v{b}, v{s1}, v{z1}",
                  f"v_cvt_pk_bf16_f32 v{out+4*j+2*h+i}, v{a}, v{b}"]
    return l
def k_st(j, out, tag="kst", STF=STF):
    va = V_KST; g = []
    if j:
        va = V_KA + (j & 1); g.append(f"v_xor_b32 v{va}, {16*j}, v{V_KST}")
    g.append(VM(tag, f"buffer_store_dwordx4 v[{out+4*j}:{out+4*j+3}], v{va}, s[{S_WS}:{S_WS+3}], s{S_PK0} offen offset:{j*768}{STF}"))
    return g
def v_cv(h, buf, rs, out):
    l = []
    s0, s1, z0, z1 = V_CT, V_CT + 1, V_CT + 2, V_CT + 3
    for i in range(2):
        l += [f"v_lshlrev_b32 v{s0}, 16, v{rs+i}", f"v_and_b32 v{s1}, s{S_MASK}, v{rs+i}",
              f"v_lshlrev_b32 v{z0}, 16, v{rs+2+i}", f"v_and_b32 v{z1}, s{S_MASK}, v{rs+2+i}",
              f"v_mul_f32_e64 v{z0}, -v{z0}, v{s0}", f"v_mul_f32_e64 v{z1}, -v{z1}, v{s1}"]
        for e in range(4):
            a = buf + 4 * (2 * i) + e; b = buf + 4 * (2 * i + 1) + e
            l += [f"v_cvt_f32_i32 v{a}, v{a}", f"v_cvt_f32_i32 v{b}, v{b}",
                  f"v_fma_f32 v{a}, v{a}, v{s0}, v{z0}", f"v_fma_f32 v{b}, v{b}, v{s1}, v{z1}"]
    for e, i in [(0, 0), (1, 0), (0, 1), (1, 1), (2, 0), (2, 1), (3, 0), (3, 1)]:
        l.append(f"v_cvt_pk_bf16_f32 v{out+4*e+2*h+i}, v{buf+8*i+e}, v{buf+8*i+4+e}")
    return l
def v_st(e, out, tag="vst", STF=STF):
    so = S_PV0 if e < 2 else S_PV2
    return [VM(tag, f"buffer_store_dwordx4 v[{out+4*e}:{out+4*e+3}], v{V_VST}, s[{S_WS}:{S_WS+3}], s{so} offen offset:{(e&1)*3072}{STF}")]
def k_adv():
    return [f"s_add_u32 s{S_PK0}, s{S_PK0}, {8*STAGE}", f"s_add_u32 s{S_PK1}, s{S_PK1}, {8*STAGE}", f"s_add_u32 s{S_PKS}, s{S_PKS}, {4*384}"]
def v_adv():
    return [f"s_add_u32 s{r}, s{r}, {8*STAGE}" for r in (S_PV0, S_PV1, S_PV2)] + [f"s_add_u32 s{S_PVS}, s{S_PVS}, {8*64}"]
HT = {"ka": (k_ld, k_cv, 0, BX, V_RS[0], BX), "kb": (k_ld, k_cv, 1, BY, V_RS[1], BX),
      "va": (v_ld, v_cv, 0, BZ, V_RS[0], BZ), "vb": (v_ld, v_cv, 1, BY, V_RS[1], BZ)}
def flag_post():
    return [f"v_add_u32 v{V_FVAL}, 1, v{V_FVAL}",
            VM("flag", f"buffer_store_dword v{V_FVAL}, v{V_FLAG}, s[{S_FLG}:{S_FLG+3}], 0 offen"),
            VM("flag", f"buffer_store_dword v{V_FVAL}, v{V_FLAG}, s[{S_FLG}:{S_FLG+3}], 0 offen offset:32 sc1")]
def poll_addr():
    return [f"v_bfe_u32 v{V_POLL+1}, v{V_DMA}, 4, 6", f"v_lshlrev_b32 v{V_POLL+1}, 2, v{V_POLL+1}"]
def poll_load():
    return poll_addr() + [VM("poll", f"buffer_load_dword v{V_POLL}, v{V_POLL+1}, s[{S_FLG}:{S_FLG+3}], s{S_FOFF} offen sc1")]
def poll_test():
    return [f"v_subrev_u32 v{V_POLL}, s{S_NEED}, v{V_POLL}", f"v_cmp_lt_u32 vcc, 15, v{V_POLL}", "s_nop 0", f"s_and_b32 s{S_TP}, vcc_lo, 0xff"]
def smem_flags():
    return [f"s_buffer_load_dwordx8 s[{S_PT}:{S_PT+7}], s[{S_FLG}:{S_FLG+3}], s{S_FOFF} glc"]
def smem_reduce():
    return [f"s_sub_u32 s{S_PT+i}, s{S_PT+i}, s{S_NEED}" for i in range(8)] + [f"s_max_u32 s{S_PT}, s{S_PT}, s{S_PT+i}" for i in range(1, 8)]
def smem_test():
    return smem_flags() + ["s_waitcnt lgkmcnt(0)"] + smem_reduce() + [f"s_cmp_lt_u32 s{S_PT}, 16"]
def poll_slow(site):
    l = [f"L_pollslow{site}:"] + ([f"s_add_u32 s{S_TAG+1}, s{S_TAG+1}, {1 << (6 * site)}"] if OPT["stamp"] else [])
    l += [f"s_mov_b32 s{S_TP}, {60 if site == 0 else 200}", f"L_pollsm{site}:"] + smem_test() + [f"s_cbranch_scc1 L_pollok{site}",
          f"s_sub_u32 s{S_TP}, s{S_TP}, 1", f"s_cbranch_scc1 L_pollvec{site}", "s_sleep 1", f"s_branch L_pollsm{site}"]
    l += [f"L_pollvec{site}:"] + poll_addr() + [
            f"s_sub_u32 s{S_BUDGET}, s{S_BUDGET}, 1",
            f"s_cbranch_scc1 L_pollgiveup{site}",
            "s_sleep 2",
            f"buffer_load_dword v{V_POLL}, v{V_POLL+1}, s[{S_FLG}:{S_FLG+3}], s{S_FOFF} offen sc1",
            "s_waitcnt vmcnt(0)"]
    if site == 0:
        l += [f"s_cmp_lg_u32 s{S_FOFF}, 0", "s_cbranch_scc1 L_nomix",
              f"v_xor_b32 v{V_POLL+1}, s{S_NEED}, v{V_POLL}", f"v_lshrrev_b32 v{V_POLL+1}, 5, v{V_POLL+1}", f"v_add_u32 v{V_POLL+1}, -1, v{V_POLL+1}",
              f"v_cmp_gt_u32 vcc, 31, v{V_POLL+1}", "s_nop 1", f"s_and_b32 s{S_TP}, vcc_lo, 0xff00", "s_cbranch_scc0 L_nomix"]
        l += fin([x for j in range(4) for x in k_st(j, BX)] + [x for e in range(4) for x in v_st(e, 112)])
        l += ["s_waitcnt vmcnt(0)", "s_barrier", f"s_and_b32 s{S_NEED}, s{S_NEED}, 0xfffffc00", f"s_add_u32 s{S_NEED}, s{S_NEED}, {16 << 5}",
              f"v_mov_b32 v{V_FVAL}, s{S_NEED}", f"s_add_u32 s{S_NEED}, s{S_NEED}, 1", f"s_mov_b32 s{S_FOFF}, 32"] + fin(flag_post()) + ["s_branch L_pollvec0", "L_nomix:"]
    l += poll_test() + [
            f"s_cbranch_scc1 L_pollvec{site}",
            f"s_branch L_pollok{site}",
            f"L_pollgiveup{site}:",
            f"s_mov_b32 s{S_BUDGET}, 0",
            f"s_branch L_pollok{site}"]
    return l
def tag_load():
    return [VM("tag", f"buffer_load_dword v{V_FVAL}, off, s[{S_DBG}:{S_DBG+3}], s{S_HOFF} sc1")]
def tag_check():
    return [f"s_cmp_lg_u32 s{S_WAVE}, 0", "s_cbranch_scc1 L_tagdone",
            f"v_readfirstlane_b32 s{S_TAG}, v{V_FVAL}", f"s_mov_b32 s{S_RET}, 100",
            "s_waitcnt lgkmcnt(0)", f"s_and_b32 s{S_OWN}, s{S_OWN}, 0xfffffc00",
            "L_tagretry:", f"s_cmp_eq_u32 s{S_TAG}, s{S_OWN}", f"s_cselect_b32 s{S_TAG}, 0, s{S_TAG}", f"s_cmp_lg_u32 s{S_TAG}, 0", "s_cbranch_scc1 L_tagok",
            f"s_sub_u32 s{S_RET}, s{S_RET}, 1", "s_cbranch_scc1 L_tagslow", "s_sleep 4",
            f"s_buffer_load_dword s{S_TAG}, s[{S_DBG}:{S_DBG+3}], s{S_HOFF} glc", "s_waitcnt lgkmcnt(0)", "s_branch L_tagretry",
            "L_tagok:", f"s_add_u32 s{S_TAG}, s{S_TAG}, s{S_XCC}", f"v_mov_b32 v{V_FVAL}, s{S_TAG}", f"v_mov_b32 v{V_T}, {RING}", DS("w", f"ds_write_b32 v{V_T}, v{V_FVAL}"), "L_tagdone:"]
def tag_get():
    return [f"v_mov_b32 v{V_T}, {RING}", DS("tg", f"ds_read_b32 v{V_T+1}, v{V_T}")]
def tag_use():
    return [f"v_readfirstlane_b32 s{S_NEED}, v{V_T+1}", f"s_add_u32 s{S_NEED}, s{S_NEED}, 1"]
def tag_slow():
    return ["L_tagslow:",
            f"s_sub_u32 s{S_BUDGET}, s{S_BUDGET}, 1",
            "s_cbranch_scc1 L_taggiveup",
            "s_sleep 2",
            f"buffer_load_dword v{V_FVAL}, off, s[{S_DBG}:{S_DBG+3}], s{S_HOFF} sc1",
            "s_waitcnt vmcnt(0)",
            f"v_readfirstlane_b32 s{S_TAG}, v{V_FVAL}", "s_nop 0", f"s_cmp_eq_u32 s{S_TAG}, s{S_OWN}", "s_cbranch_scc1 L_tagslow",
            f"s_cmp_eq_u32 s{S_TAG}, 0", "s_cbranch_scc1 L_tagslow",
            "s_branch L_tagok",
            "L_taggiveup:",
            f"s_mov_b32 s{S_BUDGET}, 0",
            "s_branch L_tagok"]

def text_of(x):
    return "s_waitcnt" if isinstance(x, (W, LG)) else (x.text if isinstance(x, (VM, DS)) else x)
def kind_of(x):
    t = text_of(x)
    if t.endswith(":"): return "label"
    if t.startswith("v_"): return "valu"
    if t.startswith("ds_"): return "ds"
    if t.startswith("buffer_store"): return "store"
    if t.startswith("buffer_"): return "load"
    return "salu"
def cost_of(x):
    k = kind_of(x); t = text_of(x)
    if k == "label": return 0
    if k == "store": return 20 if "x4" in t else 8
    if k == "load": return 8
    if t.startswith("ds_write"): return 16
    if t.startswith(("v_exp", "v_rcp")): return 8
    if t.startswith("s_nop"): return 4 * (int(t.split()[1]) + 1)
    if t.startswith("s_cbranch") or t.startswith("s_branch"): return 12
    if t.startswith("s_barrier"): return 8
    return 4
def gap_time(ops):
    t = 4; prev = None
    for o in ops:
        k = kind_of(o)
        if k == "label": continue
        if k == "salu": t += cost_of(o)
        else: t = max(t, 8) + cost_of(o) + (8 if (k != "valu" and prev == "valu") else 0)
        prev = k
    return t

class Stream:
    def __init__(self, ops, first, last, maxper=99, dense=0):
        self.ops = list(ops); self.first = first; self.last = last; self.maxper = maxper; self.dense = dense
        self.total = sum(cost_of(o) for o in self.ops); self.done = 0; self.i = 0

def pack(NG, A, B, C, T, streams, novm=(), nosalu=(), vmgap=4):
    out = []; over = 0; lastvm = -99
    for g in range(NG):
        a, b, c, tl = list(A[g]), list(B[g]), list(C[g]), list(T[g])
        cnt = {}; inC = set(); blocked = set()
        while True:
            best = None; bl = None; bsec = None
            for st in streams:
                if st.i >= len(st.ops) or g < st.first: continue
                force = g >= st.last
                if (cnt.get(id(st), 0) >= st.maxper or id(st) in blocked) and not force: continue
                o = st.ops[st.i]; k = kind_of(o); cst = cost_of(o)
                if k == "salu" and g in nosalu:
                    assert not force, (g, text_of(o))
                    continue
                if k in ("load", "store") and (g in novm or g - lastvm < vmgap) and not force: continue
                if k in ("load", "store", "ds"):
                    sec = "b" if id(st) not in inC and id(st) not in blocked else "c"
                    if sec == "c" and not force: continue
                elif k == "salu" and not a and cnt.get(id(st), 0) == 0:
                    sec = "a"
                else: sec = "c"
                tgt = st.total * (g - st.first + 1) / (st.last - st.first + 1)
                lag = tgt - st.done
                if not force:
                    if lag < cst / 2 - OPT["ahead"] and cst: continue
                    trial = (a + [o] if sec == "a" else a) + (b + [o] if sec == "b" else b) + (c + [o] if sec == "c" else c) + tl
                    gt = gap_time(trial)
                    if gt > 16:
                        if g % 2 == 0: continue
                        big = k == "store" or text_of(o).startswith("ds_write")
                        lim = max(20, st.dense) if lag > 24 else 16
                        if big and not (a + b + c + tl): lim = 32
                        if gt > lim: continue
                key = (force, k in ("load", "store"), lag / max(1, (st.last - g + 1)) ** 0.5)
                if best is None or key > bl: best = st; bl = key; bsec = sec
            if best is None: break
            o = best.ops[best.i]
            if bsec == "a": a.append(o)
            elif bsec == "b":
                b.append(o)
            else: c.append(o)
            if bsec == "c" or bsec == "b" and kind_of(o) != "ds" and False: inC.add(id(best))
            if bsec == "c": inC.add(id(best))
            if " m0," in text_of(o): blocked.add(id(best))
            if kind_of(o) in ("load", "store"): lastvm = g
            best.i += 1; best.done += cost_of(o); cnt[id(best)] = cnt.get(id(best), 0) + 1
        ops = a + b + c + tl
        tt = gap_time(ops)
        if tt > 16: over += tt - 16
        out.append(ops)
    for st in streams: assert st.i == len(st.ops)
    return out, over

POLLSITES = []
def gen_seg(name, groups, nxt, sm=(), bars=(), tasks=(), dma=(), extra=(), endops=(), fixed=(), peel=True, vmgap=None):
    starts = []; n = 0
    for g in groups: starts.append(n); n += len(g.mf)
    NG = n
    A = [[] for _ in range(NG)]; B = [[] for _ in range(NG)]; C = [[] for _ in range(NG)]; T = [[] for _ in range(NG)]
    streams = []; novm = set(range(0, NG, 2)); nosalu = set()
    allg = list(groups) + list(nxt)
    assert len(groups) % 3 == 0
    for i, g in enumerate(groups):
        g0 = starts[i]; ln = len(g.mf)
        if i + 2 < len(allg):
            t = allg[i + 2]
            B[g0].append(rd_op(i + 2, 0, t)); B[g0 + ln // 2].append(rd_op(i + 2, 1, t))
            if t.reb:
                assert g0 > 0
                C[g0 - 1] += t.reb
        if i + 1 < len(allg):
            A[g0 + ln - 1].append(LG(("fr", (2 * i + 2) % NFS), ("fr", (2 * i + 3) % NFS)))
    for ops, f, l in sm: streams.append(Stream(ops, f, l))
    streams += list(extra)
    if endops:
        A[NG-4] += endops[:1]; A[NG-2] += [A[NG-1][0]] + list(endops[1:-1]); A[NG-1] = []; T[NG-1] = list(endops[-1:]); nosalu |= {NG-2, NG-1}
    for grp in dma:
        dl = []
        for part, pos in grp[:-2]: dl += dma_tile(part, pos, peel)
        k = max(i for i, x in enumerate(dl) if isinstance(x, VM)) + 1
        lim = NG - 3 if endops else NG - 1
        if grp[-1] + 1 > lim: k = len(dl)
        streams.append(Stream(dl[:k], grp[-2], grp[-1], maxper=2))
        if dl[k:]: streams.append(Stream(dl[k:], grp[-1] + 1, min(lim, grp[-1] + 12), maxper=2))
    bars = [(g, list(tg)) for g, tg in bars]
    for t in tasks:
        k_ = t[0]
        if k_ == "cv":
            _, cv, h, buf, rs, outb = HT[t[1]]
            ops = cv(h, buf, rs, outb)[t[2]:t[3]]
            if t[2] == 0: ops = [W(t[1])] + ops
            streams.append(Stream(ops, t[4], t[5]))
        elif k_ in ("kst", "vst"):
            grp = k_st(t[1], BX) if k_ == "kst" else v_st(t[1], BZ)
            g = t[2]; assert g % 2 == 1 and not B[g] and not A[g], (name, g)
            B[g].append(grp[-1]); novm |= set(range(g - OPT["sb"], g + OPT["sa"] + 1))
            if grp[:-1]: streams.append(Stream(grp[:-1], max(0, g - 5), g - 1))
        elif k_ in ("ld", "ldn"):
            ld, _, h, buf, rs, _o = HT[t[1]]
            adv = {"ka": k_adv(), "va": v_adv()}.get(t[1], []) if k_ == "ld" else []
            ops = ld(h, buf, rs, t[1])
            if len(t) > 4: ops = ops[2:] if t[4] == "raw" else ops[:2]
            streams.append(Stream(adv + ops, t[2], t[3], maxper=1))
        elif k_ == "post":
            bi = t[2] if len(t) > 2 else -1
            bars[bi][1].append(t[1])
            streams.append(Stream(flag_post(), bars[bi][0] + 1, min(NG - 3, bars[bi][0] + 14), maxper=1))
        elif k_ == "pf":
            streams.append(Stream([VM("pf", f"buffer_load_dword v15, v{V_DMA}, s[{S_DBG}:{S_DBG+3}], s{S_HOFF} offen")], t[1], t[2]))
        elif k_ == "pollld": streams.append(Stream(poll_load(), t[1], t[2], maxper=1))
        elif k_ == "pollchk":
            ps = len(POLLSITES); POLLSITES.append(ps)
            g = t[1]; assert g % 4 == 1
            pt = poll_test()
            A[g] += [W("poll")]; T[g] += pt[:2]; novm |= {g, g + 4}
            A[g + 3] += [pt[3]]; A[g + 4] += [f"s_cbranch_scc1 L_pollslow{ps}", f"L_pollok{ps}:"]; nosalu |= {g + 3, g + 4}
            A[g + 5] += [f"s_add_u32 s{S_NEED}, s{S_NEED}, 1"]
        elif k_ == "spollld": A[t[1]] += smem_flags()
        elif k_ == "spollchk":
            ps = len(POLLSITES); POLLSITES.append(ps)
            A[t[1]] += ["s_waitcnt lgkmcnt(0)"]
            streams.append(Stream(smem_reduce(), t[1] + 1, t[2] - 1, maxper=3))
            A[t[2]] += [f"s_cmp_ge_u32 s{S_PT}, 16", f"s_cbranch_scc1 L_pollslow{ps}", f"L_pollok{ps}:", f"s_add_u32 s{S_NEED}, s{S_NEED}, 1"]
        elif k_ == "step": streams.append(Stream(rd_step(t[1]), t[2], t[3], maxper=1))
        elif k_ == "q": streams.append(Stream(q_dma(t[1]), t[2], t[3], maxper=2))
        else: raise Exception(k_)
    for g, tags in bars:
        i = [j for j in range(len(groups)) if starts[j] + len(groups[j].mf) - 1 == g]
        assert i, (name, g)
        if len(groups[i[0]].mf) == 8:
            A[g - 2] += A[g]; A[g] = []
            if tags: A[g - 1] += [W(*tags)]
        elif tags: A[g - 2] += [W(*tags)]
        A[g] += ["s_barrier"]; novm |= {g}
    for g, sec, ops in fixed: {"A": A, "B": B, "C": C, "T": T}[sec][g] += ops
    if endops:
        for st_ in streams: st_.last = min(st_.last, NG - 2)
    m0w = sorted((st.first, st.last) for st in streams if any(" m0," in text_of(o) for o in st.ops))
    assert all(m0w[i][1] < m0w[i + 1][0] for i in range(len(m0w) - 1)), (name, m0w)
    fill, over = pack(NG, A, B, C, T, streams, novm, nosalu, vmgap or OPT["vmgap"])
    if over: print(f"seg {name}: over budget by {over} cycles", file=sys.stderr)
    out = istamp(name)
    g = 0
    for i, gr in enumerate(groups):
        for j, d, b, c in gr.mf:
            out.append(f"{MF} {d}, {FR(2*i+j)}, {b}, {c}")
            out += fill[g]; g += 1
    return with_nop(out)

GBAR = 79
def seg_groups(it):
    return qk_full(it + 1) if it % 2 else pv_seq(it - 2)
def gen_iter(it, tasks=(), dma=(), name=None, endops=(), peel=False, nxt=None, extra=(), bars=None, groups=None, sm=None, step=True):
    q = it % 2
    smB = softmax_part(it, 1); smA = softmax_part(it + 1, 0)
    if sm is None: sm = [(smB, 0, 50), (smA, 52, 95)] if q else [(smB + smA, 0, 95)]
    need = [("dv", (it - 1) % 8), ("dv", it % 8)] if q else [("dk", (it + 2) % 8), ("dk", (it + 3) % 8)]
    tasks = list(tasks) + ([("step", "p" if q else "q", 30, GBAR - 3)] if step else [])
    return gen_seg(name or f"i{it}", groups or seg_groups(it), nxt if nxt is not None else seg_groups(it + 1)[:2], sm,
                   bars if bars is not None else [(GBAR, need)], tasks, dma, extra, endops, peel=peel)

K_ = lambda *j: tuple(("k", x) for x in j)
V_ = lambda *j: tuple(("v", x) for x in j)
def steady(k):
    ckv, ckk = OPT["ckv"], OPT["ckk"]
    plv, plk = OPT["plv"], OPT["plk"]
    return {
        1: ([("cv", "va", 0, 22, 0, 95), ("ld", "vb", 0, 44)], [V_(2, 3) + (0, GBAR - 5)]),
        2: ([("cv", "va", 22, 99, 0, 95), ("kst", 0, 1), ("kst", 1, 9), ("kst", 2, 17), ("kst", 3, 25), ("post", "kst")], [K_(6, 7) + (33, 74)]),
        3: ([("cv", "vb", 0, 22, 0, 95), ("ld", "ka", 0, 44)], [V_(4, 5) + (0, GBAR - 5)]),
        4: ([("cv", "vb", 22, 99, 0, 95), ("pollld", plk, plk + 16)] + ([("pf", 80, 92)] if OPT["pf2"] else []), [V_(6, 7) + (0, GBAR - 5)]),
        5: ([("cv", "ka", 0, 16, 0, 95), ("pollchk", 1), ("vst", 0, 9), ("vst", 1, 17), ("vst", 2, 25), ("vst", 3, 33), ("post", "vst")], [K_(0, 1) + (41, 74)]),
        6: ([("cv", "ka", 16, 99, 0, 95), ("ld", "kb", 0, 30)], [K_(2, 3) + (31, 74)]),
        7: ([("cv", "kb", 0, 24, 40, 95), ("ld", "va", 11, 40), ("pollld", plv, plv + 8)], [K_(4, 5) + (41, 90)]),
        0: ([("cv", "kb", 24, 99, 0, 95), ("pollchk", ckv)], [V_(0, 1) + (ckv + 7, ckv + 44)]),
    }[k]

WA = [V_RS[0], V_RS[0] + 1]; RA = V_RS[0] + 2; GA = V_RS[0] + 3; TA = V_RS[0] + 4
RL = [V_CT, V_CT + 2, V_CT + 4, V_CT + 6]
S_EO = 24
def epi_addr():
    return [f"v_bfe_u32 v{TA}, v{V_DMA}, 4, 6", f"s_mul_i32 s{S_EO}, s{S_WAVE}, 6144", f"s_add_u32 s{S_EO}, s{S_EO}, {A2}",
            f"v_and_b32 v{WA[0]}, 15, v{TA}", f"v_lshrrev_b32 v{WA[1]}, 4, v{TA}", f"v_lshlrev_b32 v{WA[1]}, 1, v{WA[1]}",
            f"v_and_b32 v{TA+1}, 7, v{TA}", f"v_xor_b32 v{WA[1]}, v{WA[1]}, v{TA+1}", f"v_lshlrev_b32 v{WA[0]}, 7, v{WA[0]}",
            f"v_lshl_add_u32 v{WA[0]}, v{WA[1]}, 4, v{WA[0]}", f"v_add_u32 v{WA[0]}, s{S_EO}, v{WA[0]}", f"v_xor_b32 v{WA[1]}, 16, v{WA[0]}",
            f"v_lshrrev_b32 v{RA}, 3, v{TA}", f"v_mul_u32_u24 v{GA}, 384, v{RA}", f"v_lshl_add_u32 v{GA}, v{TA+1}, 4, v{GA}",
            f"v_xor_b32 v{RA}, v{RA}, v{TA}", f"v_lshlrev_b32 v{RA}, 4, v{RA}", f"v_add_u32 v{RA}, s{S_EO}, v{RA}",
            f"s_lshl_b32 s{S_EO}, s{S_QB}, 2", f"s_add_u32 s{S_EO}, s{S_EO}, s{S_WAVE}", f"s_mul_i32 s{S_EO}, s{S_EO}, {STAGE}",
            f"s_add_u32 s{S_QL}, s{S_EO}, 6144", f"s_add_u32 s{S_QS}, s{S_EO}, 12288", f"s_add_u32 s{S_TAG}, s{S_EO}, 18432"]
S_EQ = [S_EO, S_QL, S_QS, S_TAG]
def epi_l(qs):
    fl = []
    for sw in ("v_permlane16_swap_b32", "v_permlane32_swap_b32"):
        fl += [f"v_mov_b32 v{RL[q]}, v{V_L[q]}" for q in qs] + ["s_nop 0"]
        fl += [f"{sw} v{V_L[q]}, v{RL[q]}" for q in qs] + ["s_nop 0"]
        fl += [f"v_add_f32 v{V_L[q]}, v{V_L[q]}, v{RL[q]}" for q in qs]
    return fl + [f"v_rcp_f32 v{RL[q]}, v{V_L[q]}" for q in qs] + ["s_nop 0"]
class Epi:
    def __init__(self, temps, rbs): self.temps = temps; self.rbs = rbs; self.n = 0; self.pend = []
    def flush(self):
        p = []
        for qb, n, h, reg, tag in self.pend:
            p += [LG(tag), VM("out", f"buffer_store_dwordx4 v[{reg}:{reg+3}], v{GA}, s[{S_OUT}:{S_OUT+3}], s{S_EQ[qb]} offen offset:{n*128 + h*3072}{OF}")]
        self.pend = []
        return p
    def chunk(self, qb, n, pk=False):
        p = []; c = self.n; self.n += 1
        lb = (c % 3) * 2048
        for half in range(2):
            ob = self.temps[(2 * c + half) % len(self.temps)]
            for tt in range(8):
                r, e = divmod(8 * half + tt, 4)
                p.append(f"v_accvgpr_read_b32 v{ob+tt}, a{O(qb,3*e+n)+r}")
            if pk: p += [f"v_pk_mul_f32 v[{ob+2*i}:{ob+2*i+1}], v[{ob+2*i}:{ob+2*i+1}], v[{RL[qb]}:{RL[qb]+1}] op_sel_hi:[1,0]" for i in range(4)]
            else: p += [f"v_mul_f32 v{ob+i}, v{ob+i}, v{RL[qb]}" for i in range(8)]
            p += [f"v_cvt_pk_bf16_f32 v{ob+i}, v{ob+2*i}, v{ob+2*i+1}" for i in range(4)]
            if self.pend:
                x = self.pend.pop(0); rest = self.pend; self.pend = [x]; p += self.flush(); self.pend = rest
            p.append(DS("w", f"ds_write_b128 v{WA[half]}, v[{ob}:{ob+3}] offset:{lb}"))
        p += self.flush()
        for h in range(2):
            reg = self.rbs[(2 * c + h) % len(self.rbs)]; tag = ("rb", c % 4, h)
            p.append(DS(tag, f"ds_read_b128 v[{reg}:{reg+3}], v{RA} offset:{lb + h*1024}"))
            self.pend.append((qb, n, h, reg, tag))
        return p

def gen_tail():
    sp = softmax_part
    g57 = qk_half(58) + rebase(qk_half(59), V_RDK, A0 - A2)
    g58 = pv_seq(56)
    g59 = rebase(qk_half(60), V_RDK, A1 - A0) + rebase(qk_half(61), V_RDK, A2 - A1)
    g60 = rebase(pv_seq(58), [V_RD], B2 - B1) + rebase(pv_seq(59), [V_RD], B0 - B2)
    g61 = rebase(pv_seq(60), [V_RD], B1 - B0) + rebase(qk_half(62), V_RDK, A0 - A2)
    g62 = rebase(qk_half(63), V_RDK, A1 - A0) + rebase(pv_seq(61), [V_RD], B2 - B1)
    g63 = []
    for n in range(3):
        for e in range(4): g63 += [pv_grp(62, 3 * e + n), pv_grp(63, 3 * e + n, va=V_RD2)]
    g63[0].reb += [f"v_subrev_u32 v{V_RD2}, {B2 - B1}, v{V_RD}", f"v_subrev_u32 v{V_RD}, {B2 - B0}, v{V_RD}"]
    first57 = g57[:2]
    p = []
    p += gen_seg("S57", g57, g58[:2], [(sp(57, 1), 0, 40), (sp(58, 0), 41, 95)], [(GBAR, [("dv", 0), ("dv", 1)])],
                 [("step", "p", 30, GBAR - 3)], [K_(62, 63) + V_(58, 59) + (0, 74)], peel=False)
    p += gen_seg("S58", g58, g59[:2], [(sp(58, 1) + sp(59, 0) + sp(59, 1), 0, 95)], [(GBAR, [("dk", 7), ("dv", 3)])], [], [V_(60, 61) + (0, 40)], peel=False)
    p += gen_seg("S59", g59, g60[:2], [(epi_addr(), 0, 30), (sp(60, 0), 31, 60), (sp(60, 1), 61, 95)], [(15, [("dv", 5)])], [], [V_(62, 63) + (16, 50)], peel=False)
    p += gen_seg("S60", g60, g61[:2], [(sp(61, 0) + sp(61, 1) + epi_l((0, 1)), 0, 95)], [(GBAR, [("dv", 7)])])
    ep = Epi([BX, BX + 8, BY, BY + 8], [BZ, BZ + 4, BZ + 8, BZ + 12, NEGM(0), NEGM(1)])
    e01 = [x for qb in (0, 1) for n in range(3) for x in ep.chunk(qb, n)] + ep.flush()
    n1 = OPT.get("e1", 100)
    td = OPT["tden"]
    p += gen_seg("S61", g61, g62[:2], [(sp(62, 0), 78, 95)], extra=[Stream(e01[:n1], 52, 95, dense=td)])
    p += gen_seg("S62", g62, g63[:2], [(sp(62, 1), 2, 30), (sp(63, 0), 31, 60), (sp(63, 1), 61, 95)], extra=[Stream(e01[n1:], 0, 95, dense=td)])
    chk = [f"v_max3_f32 v{V_T}, v{V_L[0]}, v{V_L[1]}, v{V_L[2]}", f"v_max_f32 v{V_T}, v{V_T}, v{V_L[3]}",
           f"s_mov_b32 s{S_TMP}, 0x{f32bits(2.0**OPT['thr']):08x}", f"v_cmp_lt_f32 vcc, s{S_TMP}, v{V_T}"]
    c0 = ep.chunk(2, 0) + ep.chunk(3, 0)
    c1 = ep.chunk(2, 1) + ep.chunk(3, 1)
    p += gen_seg("S63", g63, [], [(epi_l((2, 3)) + chk, 0, 24)], extra=[Stream(c0, 36, 67, dense=td), Stream(c1, 68, 95, dense=td)],
                 fixed=[(29, "A", ["s_cbranch_vccnz L_slow"])])
    p += istamp("fin") + ["s_nop 7"] + ep.chunk(2, 2, True) + ep.chunk(3, 2, True) + ep.flush()
    return first57, p
def slow_epi():
    ep = Epi([64 + 8 * i for i in range(8)], [128 + 4 * i for i in range(8)])
    seq = epi_l((0, 1)) + epi_l((2, 3))
    for qb in range(4):
        for n in range(3): seq += ep.chunk(qb, n, True)
    return seq + ep.flush()

def kfrag(g):
    return 2 * (g >> 2) + (g & 1), (g >> 1) & 1
def gen_slow():
    KF = 64; VF = 112; SS = 160; PP = 224; M = [240, 241, 242, 243]; KA = [244, 245]; LA = 246; t = V_T
    p = ["L_slow:", "s_waitcnt vmcnt(0) lgkmcnt(0)", "s_nop 15"]
    for i in range(192): p.append(f"v_accvgpr_write_b32 a{i}, 0")
    for q in range(4): p += [f"v_mov_b32 v{V_L[q]}, 0", f"v_mov_b32 v{M[q]}, 0xff7fffff"]
    p += [f"v_subrev_u32 v{KA[0]}, {A1}, v{V_RDK[0]}", f"v_subrev_u32 v{KA[1]}, {A1}, v{V_RDK[1]}", f"v_subrev_u32 v{LA}, {B0}, v{V_RD}",
          f"s_mov_b32 s{S_PT}, 0", "L_slowloop:"]
    for i in range(1, 5): p.append(f"s_add_u32 s{S_PT+i}, s{S_PT}, {[0, 6144, 12288, 16384, 20480][i]}")
    for f in range(12):
        s, tb = kfrag(f)
        p.append(f"buffer_load_dwordx4 v[{KF+4*f}:{KF+4*f+3}], v{KA[s&1]}, s[{S_WS}:{S_WS+3}], s{S_PT+tb} offen offset:{(s>>1)*128} sc1")
    for db in range(12):
        p.append(f"buffer_load_dwordx4 v[{VF+4*db}:{VF+4*db+3}], v{LA}, s[{S_WS}:{S_WS+3}], s{S_PT+2+db//4} offen offset:{(db%4)*1024} sc1")
    p.append("s_waitcnt vmcnt(12)")
    for f in range(12):
        s, tb = kfrag(f)
        for qb in range(4):
            d = vr(SS + 8 * qb + 4 * tb, 4)
            p.append(f"{MF} {d}, v[{KF+4*f}:{KF+4*f+3}], {Qf(qb,s)}, {'0' if s == 0 else d}")
    p.append("s_nop 9")
    for qb in range(4):
        sb = SS + 8 * qb
        p += [f"v_max3_f32 v{t}, v{sb}, v{sb+1}, v{sb+2}", f"v_max3_f32 v{t}, v{t}, v{sb+3}, v{sb+4}",
              f"v_max3_f32 v{t}, v{t}, v{sb+5}, v{sb+6}", f"v_max3_f32 v{t}, v{t}, v{sb+7}, v{M[qb]}"]
        p += xlane("v_max_f32", t)
        p += [f"v_sub_f32 v{t+1}, v{M[qb]}, v{t}", f"v_exp_f32 v{t+1}, v{t+1}", f"v_mov_b32 v{M[qb]}, v{t}"]
        for i in range(8): p.append(f"v_sub_f32 v{sb+i}, v{sb+i}, v{t}")
        for i in range(8): p.append(f"v_exp_f32 v{sb+i}, v{sb+i}")
        p.append(f"v_mul_f32 v{V_L[qb]}, v{V_L[qb]}, v{t+1}")
        for i in range(8): p.append(f"v_add_f32 v{V_L[qb]}, v{V_L[qb]}, v{sb+i}")
        for i in range(4): p.append(f"v_cvt_pk_bf16_f32 v{PP+4*qb+i}, v{sb+2*i}, v{sb+2*i+1}")
        for i in range(48):
            a = O(qb, 0) + i; tt = t + 2 + (i % 2)
            p += [f"v_accvgpr_read_b32 v{tt}, a{a}", f"v_mul_f32 v{tt}, v{tt}, v{t+1}", f"v_accvgpr_write_b32 a{a}, v{tt}"]
    p += ["s_waitcnt vmcnt(0)", "s_nop 1"]
    for db in range(12):
        for qb in range(4):
            d = ar(O(qb, db), 4)
            p.append(f"{MF} {d}, v[{VF+4*db}:{VF+4*db+3}], v[{PP+4*qb}:{PP+4*qb+3}], {d}")
    p += [f"s_add_u32 s{S_PT}, s{S_PT}, {STAGE}", f"s_cmp_lt_u32 s{S_PT}, {HEADBYTES}", "s_nop 7", "s_cbranch_scc1 L_slowloop"]
    e = slow_epi(); resolve(e)
    return p + fin(e) + ["s_branch L_fin"]

def xlane(op, t, u=None):
    u = t + 1 if u is None else u
    l = []
    for sw in ("v_permlane16_swap_b32", "v_permlane32_swap_b32"):
        l += [f"v_mov_b32 v{u}, v{t}", "s_nop 1", f"{sw} v{t}, v{u}", "s_nop 1", f"{op} v{t}, v{t}, v{u}"]
    return l
def rowmax2(t, qs, tq):
    l = []
    ab = [(Sq(t, j, 0), Sq(t, j, 1)) for j in range(2)]
    l += [f"v_max3_f32 v{tq[j]}, v{a}, v{a+1}, v{a+2}" for j, (a, b) in enumerate(ab)]
    l += [f"v_max3_f32 v{tq[j]}, v{tq[j]}, v{a+3}, v{b}" for j, (a, b) in enumerate(ab)]
    l += [f"v_max3_f32 v{tq[j]}, v{tq[j]}, v{b+1}, v{b+2}" for j, (a, b) in enumerate(ab)]
    l += [f"v_max_f32 v{tq[j]}, v{tq[j]}, v{b+3}" for j, (a, b) in enumerate(ab)]
    for sw in ("v_permlane16_swap_b32", "v_permlane32_swap_b32"):
        l += [f"v_mov_b32 v{tq[j]+1}, v{tq[j]}" for j in range(2)] + ["s_nop 0"]
        l += [f"{sw} v{tq[j]}, v{tq[j]+1}" for j in range(2)] + ["s_nop 0"]
        l += [f"v_max_f32 v{tq[j]}, v{tq[j]}, v{tq[j]+1}" for j in range(2)]
    l += [f"v_sub_f32 v{NEGM(qs[j])+i}, 0, v{tq[j]}" for j in range(2) for i in range(4)]
    return l
def addneg(t, sl):
    n = NEGM(slot_q(t, sl))
    return [f"v_add_f32 v{Sq(t,sl,tb)+i}, v{Sq(t,sl,tb)+i}, v{n}" for tb in range(2) for i in range(4)]

def resolve(seq):
    vm = []; ds = []
    for x in seq:
        if isinstance(x, VM): vm.append(x.tag)
        elif isinstance(x, DS): ds.append(x.tag)
        elif isinstance(x, (W, LG)):
            q = vm if isinstance(x, W) else ds
            best = None
            for tag in x.tags:
                n = 0; found = False
                for t in reversed(q):
                    if t == tag: found = True; break
                    n += 1
                if found: best = n if best is None else min(best, n)
            if best is not None:
                x.n = best if getattr(x, "n", None) is None else min(x.n, best)
        else:
            assert not x.startswith(("ds_", "buffer_")) or "UNTRACKED" in x, x
def vm_size(x):
    t = x.text
    if t.startswith("buffer_store"): return 0
    if x.tag == "pre": return 3.0
    if " lds" in t: return 1.0
    if "dwordx4" in t: return 0.75
    if "dwordx2" in t and "offen" in t: return 0.375
    return 0.125
def pace(seq, cap):
    out = []; q = []; on = False
    for x in seq:
        if isinstance(x, W): q = q[len(q) - min(len(q), x.n):]; on = True
        elif isinstance(x, VM):
            sz = vm_size(x)
            if on and not x.text.startswith("buffer_store") and sum(q) + sz > cap:
                while q and sum(q) + sz > cap: q.pop(0)
                w = W(); w.n = len(q)
                if out and out[-1] == "s_nop 0": out.pop()
                out.append(w)
            q.append(sz)
        out.append(x)
    return out
def fin(seq):
    out = []
    for x in seq:
        if isinstance(x, (W, LG)):
            assert getattr(x, "n", None) is not None, x.tags
            out.append(f"s_waitcnt vmcnt({min(x.n, 63)})" if isinstance(x, W) else f"s_waitcnt lgkmcnt({min(x.n, 15)})")
        elif isinstance(x, (VM, DS)): out.append(x.text)
        else: out.append(x.replace(" ;UNTRACKED", ""))
    return out
def groups_of(l):
    out = [[]]
    for x in l:
        out[-1].append(x)
        if isinstance(x, VM): out.append([])
    tail = out.pop()
    if tail: out[-1] += tail
    return out
def sprinkle(code, l):
    gs = groups_of(l); out = []; n = len(code); m = len(gs); j = 0
    for i, x in enumerate(code):
        while j < m and i * m >= j * n: out += with_nop(gs[j]); j += 1
        out.append(x)
    for g in gs[j:]: out += with_nop(g)
    return out
def srd(p, s, lo, hi, off_s, size):
    p += [f"s_add_u32 s{s}, s{lo}, s{off_s}", f"s_addc_u32 s{s+1}, s{hi}, 0", f"s_mov_b32 s{s+2}, {size}", f"s_mov_b32 s{s+3}, 0x20000"]

def gen_main():
    p = []
    p += [f"{NAME}_kernel:", "s_cmp_ge_u32 s2, 256", "s_cbranch_scc1 L_done",
          "s_load_dwordx16 s[40:55], s[0:1], 0", "s_load_dwordx4 s[16:19], s[0:1], 64"]
    if OPT["stamp"]: p += ["s_memrealtime s[98:99]" if OPT["stamp"] == 8 else "s_memtime s[98:99]"]
    p += [f"s_and_b32 s{S_HEAD}, s2, 7", f"s_lshr_b32 s{S_QB}, s2, 3", f"s_lshr_b32 s24, s{S_QB}, 3", f"s_lshl_b32 s{S_HEAD}, s{S_HEAD}, 2",
          f"s_add_u32 s{S_HEAD}, s{S_HEAD}, s24", f"s_and_b32 s{S_QB}, s{S_QB}, 7"]
    p += ["s_getpc_b64 s[60:61]", "L_pc:", f"s_sub_u32 s60, s60, L_pc-{NAME}_kernel", "s_subb_u32 s61, s61, 0",
          f"s_mov_b32 s62, L_slow-{NAME}_kernel", "s_mov_b32 s63, 0x20000",
          "s_lshr_b32 s22, s2, 3", "s_lshl_b32 s22, s22, 12",
          "v_lshlrev_b32 v30, 4, v0",
          VM("pf", "buffer_load_dwordx4 v[128:131], v30, s[60:63], s22 offen")]
    p += ["v_lshrrev_b32 v24, 6, v0",
          "v_and_b32 v25, 63, v0",
          f"v_readfirstlane_b32 s{S_WAVE}, v24",
          f"v_lshlrev_b32 v{V_RD}, 4, v25",
          "v_mul_u32_u24 v26, 43, v25", "v_lshrrev_b32 v26, 10, v26",
          "v_mul_u32_u24 v27, 24, v26",
          "v_sub_u32 v27, v25, v27",
          "v_lshrrev_b32 v28, 1, v24",
          "v_and_b32 v29, 1, v24",
          "v_lshlrev_b32 v30, 4, v29",
          "v_lshl_add_u32 v30, v28, 2, v30",
          "v_add_u32 v30, v30, v26",
          "v_mul_u32_u24 v30, 768, v30",
          "v_lshrrev_b32 v48, 1, v26", "v_lshlrev_b32 v48, 30, v48",
          "v_lshl_add_u32 v30, v27, 4, v30", f"v_or_b32 v{V_KLD}, v30, v48",
          f"v_lshl_or_b32 v{V_KSC}, v27, 3, v48",
          "v_mul_u32_u24 v30, 6144, v24",
          f"v_add3_u32 v{V_VLD}, v30, v{V_RD}, v48"]
    for sd, size in ((S_QK, HEADBYTES), (S_QV, HEADBYTES), (S_KS, 12288), (S_KZ, 12288), (S_VS, 4096), (S_VZ, 4096), (S_FLG, 64)):
        p += [f"s_mov_b32 s{sd+2}, {size}", f"s_mov_b32 s{sd+3}, 0x20000"]
    p += [f"s_mul_i32 s{S_PK0}, s{S_QB}, {STAGE}", f"s_add_u32 s{S_PK1}, s{S_PK0}, 6144", f"s_mov_b32 s{S_PV0}, s{S_PK0}",
          f"s_lshr_b32 s{S_PKS}, s{S_QB}, 1", f"s_mul_i32 s{S_PKS}, s{S_PKS}, 384", f"s_lshl_b32 s{S_PVS}, s{S_QB}, 6",
          f"s_lshl_b32 s24, s{S_WAVE}, 4", f"s_add_u32 s{S_PVS}, s{S_PVS}, s24",
          f"s_mul_i32 s24, s{S_HEAD}, {HEADBYTES}", f"s_mul_i32 s56, s{S_HEAD}, 12288", f"s_lshl_b32 s57, s{S_HEAD}, 12",
          f"s_lshl_b32 s58, s{S_HEAD}, 10", f"s_add_u32 s58, s58, {FLAG_OFF + 96}",
          f"s_or_b32 s{S_RET}, s{S_QB}, s{S_WAVE}"]
    p += ["s_waitcnt lgkmcnt(0)"] + istamp("karg", True)
    def base(sd, lo, off): return [f"s_add_u32 s{sd}, s{lo}, s{off}", f"s_addc_u32 s{sd+1}, s{lo+1}, 0"]
    p += base(S_QK, 42, 24) + base(S_KS, 46, 56) + base(S_KZ, 48, 56)
    kl = [k_ld(0, BX, 32, "k0a"), k_ld(1, BY, 36, "k0b")]; vl = [v_ld(0, 112, 40, "v0a"), v_ld(1, 80, 44, "v0b")]
    for x in kl[1][:2]: x.tag = "k0a"
    for x in vl[1][:2]: x.tag = "v0a"
    if OPT["ksc"]:
        for x in kl[0][2:] + kl[1][2:]: x.tag = "kraw"
        for x in kl[1][:2]: x.tag = "k0b"
        p += kl[0][2:] + kl[1][2:] + kl[0][:2] + kl[1][:2]; kl[1] = []
    else: p += kl[0][2:] + kl[0][:2] + kl[1][:2]
    p += base(S_FLG, 18, 58) + base(S_VS, 50, 57) + base(S_VZ, 52, 57) + base(S_QV, 44, 24)
    p += [f"s_mul_i32 s59, s{S_HEAD}, 786432"] + base(S_OUT, 54, 59) + base(S_Q, 40, 59)
    p += [f"s_cmp_lg_u32 s{S_RET}, 0", "s_cbranch_scc1 L_notleader0", f"s_buffer_load_dwordx16 s[40:55], s[{S_FLG}:{S_FLG+3}], 0 glc", "L_notleader0:"]
    p += kl[1][2:]
    srd(p, S_WS, 18, 19, 24, HEADBYTES)
    p += [f"s_mov_b32 s{S_Q+2}, 786432", f"s_mov_b32 s{S_Q+3}, 0x20000"]
    p += [f"s_mov_b32 s{S_DBG}, s16", f"s_mov_b32 s{S_DBG+1}, s17", f"s_add_u32 s{S_PV1}, s{S_PK0}, 3072", f"s_add_u32 s{S_PV2}, s{S_PK0}, 6144"]
    p += [f"s_mov_b32 s{S_DBG+2}, 256", f"s_mov_b32 s{S_DBG+3}, 0x20000", f"s_lshl_b32 s{S_HOFF}, s{S_HEAD}, 3"]
    p += [f"s_cmp_lg_u32 s{S_RET}, 0", "s_cbranch_scc1 L_notleader", "s_waitcnt lgkmcnt(0)", f"s_mov_b32 s{S_TP}, 1"]
    for i in range(16):
        p += [f"s_lshr_b32 s{40+i}, s{40+i}, 10", f"s_min_u32 s{40+i}, s{40+i}, 31", f"s_bitset1_b32 s{S_TP}, s{40+i}"]
    p += [f"s_ff0_i32_b32 s{S_TP}, s{S_TP}", f"s_lshl_b32 s{S_TP}, s{S_TP}, 10", f"v_mov_b32 v{V_POLL}, s{S_TP}",
          "s_mov_b64 exec, 1", f"buffer_store_dword v{V_POLL}, off, s[{S_DBG}:{S_DBG+3}], s{S_HOFF} sc1 ;UNTRACKED", "s_mov_b64 exec, -1",
          "L_notleader:"]
    p += [f"s_lshl_b32 s24, s{S_QB}, 2", f"s_add_u32 s24, s24, 32", f"s_buffer_load_dword s{S_OWN}, s[{S_FLG}:{S_FLG+3}], s24 glc",
          f"s_getreg_b32 s{S_XCC}, hwreg(HW_REG_XCC_ID, 0, 4)", f"s_lshl_b32 s{S_XCC}, s{S_XCC}, 5", f"s_mov_b32 s{S_FOFF}, 0"]
    p += vl[0][2:] + vl[0][:2] + vl[1][:2] + (vl[1][2:] if OPT["greedy"] else []) + istamp("iss", True)
    if OPT["pre"]:
        st = OPT["pre"]
        p += [f"v_mul_u32_u24 v31, {st}, v25", f"v_mul_u32_u24 v30, 6144, v24", "v_add_u32 v31, v30, v31"]
        if st == 128: p += ["v_or_b32 v31, v31, v48"]
        p += [VM("pre", f"buffer_load_dword v132, v31, s[{S_WS}:{S_WS+3}], s{S_PK0} offen nt")]
        if st == 64: p += ["v_add_u32 v30, 4096, v31", "s_mov_b64 exec, 0xffffffff", VM("pre", f"buffer_load_dword v133, v30, s[{S_WS}:{S_WS+3}], s{S_PK0} offen nt"), "s_mov_b64 exec, -1"]
    p += [f"s_mov_b32 s{S_OUT+2}, 786432", f"s_mov_b32 s{S_OUT+3}, 0x20000"]
    p += [f"s_lshl_b32 s24, s{S_WAVE}, 8", f"s_add_u32 s{S_HOFF}, s{S_HOFF}, s24"]
    p += ["v_mul_u32_u24 v30, 3072, v24", f"v_add_u32 v{V_DMA}, v30, v{V_RD}"]
    p += ["v_lshl_add_u32 v30, v24, 3, v26",
          "v_mul_u32_u24 v30, 384, v30",
          "v_lshlrev_b32 v31, 2, v29",
          "v_xor_b32 v31, v27, v31",
          "v_lshl_add_u32 v30, v31, 4, v30", f"v_or_b32 v{V_KST}, v30, v48",
          "v_lshlrev_b32 v30, 8, v24",
          "v_add_u32 v30, 12288, v30",
          "v_lshrrev_b32 v31, 4, v25", "v_lshl_add_u32 v30, v31, 10, v30", "v_and_b32 v31, 15, v25",
          "v_lshl_add_u32 v30, v31, 4, v30", f"v_or_b32 v{V_VST}, v30, v48"]
    p += [f"s_lshl_b32 s24, s{S_QB}, 2",
          f"v_lshl_add_u32 v{V_FLAG}, v0, 2, s24", f"v_cmp_lt_u32 vcc, 0, v0", "v_mov_b32 v30, 0x40000000", "s_nop 0",
          f"v_cndmask_b32 v{V_FLAG}, v{V_FLAG}, v30, vcc"]
    p += [f"s_mul_i32 s{S_DMK}, s{S_WAVE}, 3072", f"s_add_u32 s{S_DMK}, s{S_DMK}, 12288", f"s_add_u32 s{S_DMV}, s{S_DMK}, {STAGE}",
          f"s_add_u32 s24, s{S_QB}, 1", "s_and_b32 s24, s24, 7", f"s_mul_i32 s{S_GOFFK}, s24, {STAGE}", f"s_add_u32 s{S_GOFF}, s{S_GOFFK}, 12288",
          f"s_mov_b32 s{S_RK}, {A2}", f"s_mov_b32 s{S_RV}, {B1}", f"v_add_u32 v{V_RD}, {B0}, v{V_RD}",
          f"s_mov_b32 s{S_CS}, 0x{f32bits(CSCALE):08x}", f"s_mov_b32 s{S_MASK}, 0xffff0000",
          f"s_mov_b32 s{S_BUDGET}, 100000"] + ([f"s_mov_b32 s{S_TAG+1}, 0"] if OPT["stamp"] else [])
    p += ["v_and_b32 v26, 15, v25", "v_lshrrev_b32 v27, 4, v25", "v_bfe_u32 v28, v25, 1, 3",
          "v_xor_b32 v29, v27, v28", "v_mul_u32_u24 v30, 384, v26", f"v_lshl_add_u32 v{V_RDK[0]}, v29, 4, v30",
          f"v_xor_b32 v{V_RDK[1]}, 64, v{V_RDK[0]}"]
    p += [f"s_mul_i32 s{S_QL}, s{S_WAVE}, 6144", f"s_add_u32 s{S_QL}, s{S_QL}, {B1}",
          "v_lshrrev_b32 v29, 1, v27", "v_xor_b32 v29, v29, v28", "v_lshl_add_u32 v31, v29, 4, v30",
          "v_and_b32 v29, 1, v27", "v_lshl_add_u32 v31, v29, 3, v31"]
    for kk in range(4):
        p += [f"v_xor_b32 v{VQR[kk]}, {32*kk}, v31", f"v_add_u32 v{VQR[kk]}, s{S_QL}, v{VQR[kk]}"]
    p += [f"s_lshl_b32 s24, s{S_QB}, 2", f"s_add_u32 s24, s24, s{S_WAVE}", f"s_mul_i32 s24, s24, {STAGE}"]
    for b in range(6):
        p += [f"v_add_u32 v26, {64*b}, v25", "v_mul_u32_u24 v27, 2731, v26", "v_lshrrev_b32 v27, 17, v27",
              "v_and_b32 v27, 7, v27", "v_xor_b32 v26, v26, v27", f"v_lshlrev_b32 v{VQD+b}, 4, v26", f"v_add_u32 v{VQD+b}, s24, v{VQD+b}"]
    for q in range(4): p.append(f"v_mov_b32 v{V_L[q]}, 0")
    STF0 = "" if OPT["l2"] else STF
    def own_k(b):
        l = []
        for j in range(4):
            l += k_st(j, b, "kst", STF0)
            va = V_KST if j == 0 else V_KA + (j & 1)
            l += ["s_mov_b64 exec, s[62:63]", DS("w", f"ds_write_b128 v{va}, v[{b+4*j}:{b+4*j+3}] offset:{j*768}"), "s_mov_b64 exec, -1"]
        return l
    def own_v(b):
        l = [x for e in range(4) for x in v_st(e, b, "vst", STF0)]
        l += ["s_mov_b64 exec, s[62:63]"] + [DS("w", f"ds_write_b128 v{V_VST}, v[{b+4*e}:{b+4*e+3}] offset:{STAGE - 12288 + e*3072}") for e in range(4)] + ["s_mov_b64 exec, -1"]
        return l
    p += ["s_mov_b32 s62, -1", "s_mov_b32 s63, 0xffff"]
    qa = OPT["qa"]
    qb_, qc = OPT["qb"], OPT["qc"]
    R = lambda a, b: list(range(a, b))
    if OPT["greedy"]:
        p += [W("k0a")] + with_nop(q_dma(R(0, 3))) + k_cv(0, BX, 32, BX) + [W("k0b")] + istamp("k0b", True) + with_nop(q_dma(R(3, 6))) + k_cv(1, BY, 36, BX) + own_k(BX)
        p += [W("v0a")] + with_nop(q_dma(R(6, 9))) + v_cv(0, 112, 40, 112) + [W("v0b")] + with_nop(q_dma(R(9, 12))) + v_cv(1, 80, 44, 112) + own_v(112)
        p += tag_load() + with_nop(q_dma(R(12, 18))) + istamp("vst", True)
    else:
        p += [W("k0a")] + vl[1][2:] + k_cv(0, BX, 32, BX) + [W("k0b")] + istamp("k0b", True) + k_cv(1, BY, 36, BX) + own_k(BX)
        p += with_nop(q_dma(R(0, qa))) + istamp("kst", True)
        p += [W("v0a")] + sprinkle(v_cv(0, 112, 40, 112), q_dma(R(qa, qb_))) + [W("v0b")] + v_cv(1, 80, 44, 112) + own_v(112)
        p += tag_load() + with_nop(q_dma(R(qb_, 12))) + istamp("vst", True)
    p += [W("tag")] + tag_check() + istamp("tag", True)
    p += ["s_waitcnt lgkmcnt(0)", "s_barrier"] + flag_post() + tag_get() + istamp("post", True)
    if OPT["pf2"]:
        p += [f"s_mov_b32 s{S_DBG}, s60", f"s_mov_b32 s{S_DBG+1}, s61", f"s_mov_b32 s{S_DBG+2}, L_slow-{NAME}_kernel",
              "s_lshr_b32 s24, s2, 3", f"s_mul_i32 s{S_HOFF}, s24, 43", f"s_lshr_b32 s{S_HOFF}, s{S_HOFF}, 7",
              f"s_mul_i32 s{S_RET}, s{S_HOFF}, 3", f"s_sub_u32 s24, s24, s{S_RET}", "s_lshl_b32 s24, s24, 10",
              f"s_mul_i32 s{S_HOFF}, s{S_HOFF}, 12288", f"s_add_u32 s{S_HOFF}, s{S_HOFF}, s24"]
    KF = 144
    for f in range(12):
        s, tb = kfrag(f)
        p.append(DS("kf", f"ds_read_b128 v[{KF+4*f}:{KF+4*f+3}], v{V_RDK[s&1]} offset:{tb*6144 + (s>>1)*128}"))
    def qk0(qb):
        l = []
        for f in sorted(range(12), key=lambda f: kfrag(f)[::-1]):
            s, tb = kfrag(f)
            d = vr(Sq(0, qb, tb), 4)
            l.append(f"{MF} {d}, v[{KF+4*f}:{KF+4*f+3}], {Qf(qb,s)}, {'0' if s == 0 else d}")
        return l
    ps = len(POLLSITES); POLLSITES.append(ps)
    g3n = OPT["g3n"]
    pollchk = ["s_waitcnt lgkmcnt(0)"] + smem_reduce() + [f"s_cmp_ge_u32 s{S_PT}, 16", f"s_cbranch_scc1 L_pollslow{ps}", f"L_pollok{ps}:",
          f"s_add_u32 s{S_NEED}, s{S_NEED}, 1"] + istamp("poll", True)
    sm00 = rowmax2(0, (0, 1), (V_CT, V_CT + 2)) + addneg(0, 0) + addneg(0, 1) + softmax_part(0, 0)
    qrest = R(12 if OPT["greedy"] == 0 else 18, 18 + g3n)
    if OPT["own1"]:
        p += [W(("q", 0))] + q_frags(0) + [LG("tg")] + tag_use() + with_nop(q_dma(qrest[:3])) + [LG(("qf", 0))] + qk0(0)
        p += [W(("q", 1))] + q_frags(1) + with_nop(q_dma(qrest[3:6])) + [LG(("qf", 1))] + qk0(1) + ["s_nop 7"]
        g0 = pv_unchained(0, True)[:6]
        p += [rd_op(i, j, g0[i]) for i in range(2) for j in range(2)] + sprinkle(sm00, q_dma(qrest[6:])) + smem_flags() + [LG(("fr", 0), ("fr", 1))]
        p += gen_seg("S0", g0, []) + pollchk
        p += with_nop(dma_tile("k", 1, True) + dma_tile("k", 2, True) + dma_tile("k", 3, True) + dma_tile("v", 1, True)) + k_adv() + v_adv()
    else:
        p += [W(("q", 0))] + q_frags(0) + [LG("tg")] + tag_use() + [W(("q", 1))] + q_frags(1) + smem_flags()
        p += [LG(("qf", 0))] + with_nop(q_dma(qrest)) + pollchk
        p += with_nop(dma_tile("k", 1, True)) + k_adv() + v_adv()
        p += sprinkle(qk0(0) + qk0(1), dma_tile("k", 2, True)) + ["s_nop 7"]
        p += sprinkle(sm00, dma_tile("k", 3, True) + dma_tile("v", 1, True))
    sp = softmax_part
    g1 = qk_half(0, ws=(1,))
    g2 = rebase(qk_half(1), V_RDK, A1 - A0)
    g3 = pv_unchained(0, True)[6 if OPT["own1"] else 0:]
    g4 = rebase(pv_unchained(1), [V_RD], B1 - B0)
    g5 = rebase(qk_half(2, True), V_RDK, A0 - A1) + rebase(qk_half(3), V_RDK, A1 - A0)
    gi3 = rebase(qk_full(4), V_RDK, A2 - A1)
    gi4 = rebase(pv_seq(2, True), [V_RD], B0 - B1) + rebase(pv_seq(3), [V_RD], B1 - B0)
    p += istamp("pre-dk1", True) + [W(("dk", 1)), "s_barrier"] + [rd_op(i, j, g1[i]) for i in range(2) for j in range(2)]
    p += [LG(("fr", 0), ("fr", 1))]
    p += gen_seg("S1", g1, g2[:2], [], [(15, [("dk", 3)])], [], [V_(2, 3) + (0, 21)], vmgap=2)
    p += gen_seg("S2", g2, g3[:2], [(sp(0, 1), 3, 47)], [(39, [("dv", 3)])] if OPT["own1"] else [], ([("q", R(18 + g3n, 24), 0, 24)] if g3n < 6 else []) + [("ldn", "ka", 25 if g3n < 6 else 0, 47)])
    if OPT["own1"]: p += gen_seg("S3", g3, g4[:2], [(sp(1, 0), 0, 23)], [], [("ldn", "kb", 0, 23)])
    else: p += gen_seg("S3", g3, g4[:2], [(sp(1, 0), 0, 47)], [(15, [("dv", 3)])], [("ldn", "kb", 0, 22), ("ldn", "va", 23, 46, "raw")])
    p += gen_seg("S4", g4, g5[:2], [(sp(1, 1), 0, 21)], [], [("ldn", "va", 0, 30, "raw")] if OPT["own1"] else [], extra=[Stream([W(("q", 2))] + q_frags(2) + [W(("q", 3))] + q_frags(3), 16, 46)])
    p += istamp("pre-S5", True) + ["s_waitcnt lgkmcnt(0)", "s_barrier"]
    p += gen_seg("S5", g5, gi3[:2], [(rowmax2(2, (2, 3), (V_T, V_T + 2)), 27, 45), (addneg(2, 0) + addneg(2, 1) + sp(2, 0) + addneg(2, 2) + addneg(2, 3) + sp(2, 1), 46, 95)],
                 [(GBAR + 8, [("dk", 5)])], [("cv", "ka", 0, 99, 0, 34), ("cv", "kb", 0, 99, 35, 72), ("kst", 0, 73), ("kst", 1, 77), ("kst", 2, 89), ("kst", 3, 93),
                 ("ldn", "va", 36, 60, "sc")], [K_(4, 5) + (1, 24)])
    p += gen_seg("i3", gi3, gi4[:2], [(sp(3, 0) + sp(3, 1), 0, 54), (sp(4, 0), 55, 95)], [(OPT["pb"], []), (GBAR, [])],
                 [("ld", "vb", 0, 22), ("post", "kst", 0), ("cv", "va", 0, 99, 10, 95)], [K_(6, 7) + V_(4, 5) + (24, 90)])
    p += [f"s_mov_b32 s{S_CNT}, 7"]
    p += gen_seg("i4", gi4, seg_groups(5)[:2], [(sp(4, 1) + sp(5, 0), 0, 94)], [(47, []), (GBAR + 8, [("dk", 7)])],
                 [("ld", "ka", 0, 30), ("cv", "vb", 0, 99, 30, 94), ("step", "q", 30, 70), ("pollld", OPT["pl4"], OPT["pl4"] + 8)], [V_(6, 7) + (52, 84)],
                 endops=["s_nop 0", "s_branch L_join"])
    p += [".p2align 6", "L_loop:"]
    pro_ = p
    first57, tail = gen_tail()
    bodyA = []
    for k in (1, 2, 3, 4, 5, 6, 7, 0):
        if k == 5: bodyA.append("L_join:"); jpos = len(bodyA)
        eo = [f"s_sub_u32 s{S_CNT}, s{S_CNT}, 1", f"s_cmp_lg_u32 s{S_CNT}, 0", "s_cbranch_scc1 L_loop"] if k == 0 else ()
        t, d = steady(k)
        bodyA += gen_iter(16 + k, t, d, name=f"k{k}", endops=eo)
    assert [g.rd for g in first57] == [g.rd for g in seg_groups(17)[:2]]
    tailc = tail + ["L_fin:"]
    resolve(pro_ + bodyA[jpos:] + bodyA + bodyA + tailc)
    if OPT["cap"]: pro_ = pace(pro_, OPT["cap"] / 4)
    P_ = Prog()
    P_.extend(fin(pro_))
    a0 = len(P_.ins); P_.extend(fin(bodyA)); a1 = len(P_.ins)
    P_.extend(fin(tailc))
    p = P_
    if OPT["stamp"]:
        p("s_waitcnt vmcnt(0) lgkmcnt(0)")
        p.extend(istamp("end"))
        p("s_waitcnt lgkmcnt(0)")
        p.extend(istamp("end2"))
        p(f"v_writelane_b32 v{V_STAMP}, s{S_TAG+1}, 63")
        p("s_add_u32 s8, s18, 0xfa00000"); p("s_addc_u32 s9, s19, 0"); p("s_mov_b32 s10, 1048576"); p("s_mov_b32 s11, 0x20000")
        p("s_lshl_b32 s24, s2, 2"); p(f"s_add_u32 s24, s24, s{S_WAVE}"); p("s_lshl_b32 s24, s24, 8")
        p(f"v_bfe_u32 v32, v{V_DMA}, 4, 6"); p("v_lshlrev_b32 v32, 2, v32")
        p(f"buffer_store_dword v{V_STAMP}, v32, s[8:11], s24 offen")
        if OPT["stamp"] == 8: STAMPS.sort(key=lambda n: 0)
        open(sys.argv[1] + ".stamps", "w").write("\n".join(order_stamps()))
    if OPT["calx"]:
        p("s_waitcnt vmcnt(0)")
        p("L_cal:")
        p("s_memrealtime s[40:41]")
        p("s_waitcnt lgkmcnt(0)")
        p("s_sub_u32 s40, s40, s100")
        p("s_cmp_lt_u32 s40, 10000")
        p("s_cbranch_scc1 L_cal")
    p("L_done:")
    p("s_endpgm")
    main_end0 = len(p.ins)
    for ps in POLLSITES: p.extend(poll_slow(ps))
    p.extend(tag_slow())
    main_end = len(p.ins)
    p.extend(gen_slow())
    slow_end = len(p.ins)
    ji = [i for i, x in enumerate(p.ins) if x.text == "L_join:"][0]
    lin = p.ins[:a0] + p.ins[ji:a1] + p.ins[a0:main_end0]
    sl = [i for i, x in enumerate(p.ins) if x.text == "L_slowloop:"][0]
    bi = [i for i, x in enumerate(p.ins) if x.text == "s_cbranch_scc1 L_slowloop"][0]
    probs = check_hazards(lin, "main") + check_hazards(p.ins[main_end:bi+1] + p.ins[sl:slow_end], "slow") + check_hazards(p.ins[main_end0:main_end], "aux")
    for x in probs: print(x, file=sys.stderr)
    return p

def kd(name, vgpr, sgpr, accum):
    return f""".amdhsa_kernel {name}
  .amdhsa_next_free_vgpr {vgpr}
  .amdhsa_next_free_sgpr {sgpr}
  .amdhsa_accum_offset {accum}
  .amdhsa_group_segment_fixed_size 0
  .amdhsa_kernarg_size 80
  .amdhsa_user_sgpr_count 2
  .amdhsa_user_sgpr_kernarg_segment_ptr 1
  .amdhsa_system_sgpr_workgroup_id_x 1
.end_amdhsa_kernel
"""
out = HEADER
out += f"; @launch grid=(256,1,1) block=(256,1,1) lds={LDS_BYTES}\n"
out += '.amdgcn_target "amdgcn-amd-amdhsa--gfx950"\n.text\n'
out += f".globl {NAME}_kernel\n.p2align 8\n.type {NAME}_kernel,@function\n" + gen_main().text()
out += '.section .rodata,"a"\n.p2align 6\n' + kd(NAME + "_kernel", 512, 102, 256)
open(sys.argv[1], "w").write(out)
```

```python
import sys, math
from asmlib import *

NAME = "standalone__kv_cache_quant_int4_int2_kv_with_per_channel_or_per_token_scales__prompt"
OPT = dict(stamp=0, vmgap=4, sb=6, sa=6, ahead=4, thr=64, pf2=1, calx="", qa=9, plv=2, plk=10, ckv=1, ckk=1, tden=24, touch=0, w0poll=1, cap=40, qb=12, q3e=1, ksc=0, few=1, qc=15, pb=39, pl4=40)
for a in sys.argv[2:]:
    k, v = a.split("="); OPT[k] = int(v) if v.lstrip("-").isdigit() else v
NS = 6
STAGE = 24576
HEADBYTES = 64 * STAGE
RING = NS * STAGE
LDS_BYTES = RING + 128
A0, B0, A1, B1, A2, B2 = [i * STAGE for i in range(6)]
CSCALE = (192.0 ** -0.5) * math.log2(math.e)
HEADER = open("cdna_kernels/" + NAME + ".s.ref").read().split("; Override launch geometry")[0]
MF = "v_mfma_f32_16x16x32_bf16"

V_FVAL = 0; V_RD = 1; V_RDK = [2, 3]; V_DMA = 4; V_L = [5, 6, 7, 8]
V_KLD = 9; V_KSC = 10; V_KST = 11; V_VLD = 12; V_FLAG = 13; V_RD2 = 14
V_T = 16; NTP = 2
V_VST = 20; V_STAMP = 21
V_FR = 24; NFS = 6
V_CT = 48; V_VO = 52; V_RS = [56, 60]; BX = 224; BY = 240; BZ = 144
V_POLL = V_VO; V_KA = V_VO + 2
UNIT = [64, 80, 160, 176]; HI = [96, 112]
VQD = 136; VQR = [22, 23, 142, 143]
def Sq(t, sl, tb): return (UNIT[t % 4] if tb == 0 else HI[t % 2]) + 4 * sl
def P(t, sl): return UNIT[t % 4] + 4 * sl
def NEGM(qb): return 128 + 4 * qb
def O(qb, db): return (qb * 12 + db) * 4
def Qf(qb, s, half=None):
    i = qb * 6 + s
    base, f = (192 + 4 * i, ar) if i < 16 else (192 + 4 * (i - 16), vr)
    return f(base, 4) if half is None else f(base + 2 * half, 2)
def FR(f): return vr(V_FR + 4 * (f % NFS), 4)

S_RDELTA = 3; S_WS = 4; S_Q = 8; S_OUT = 12; S_FLG = 20
S_WAVE = 25; S_DMK = 26; S_GOFF = 27; S_RK = 28; S_TMP = 29; S_RV = 30; S_CNT = 31; S_GOFFK = 32
S_PK0 = 33; S_PK1 = 34; S_PV0 = 35; S_PKS = 36; S_PVS = 37; S_CS = 38; S_RET = 39; S_PV1 = 16; S_PV2 = 17
S_QL = 40; S_QS = 41; S_TAG = 42
S_PT = 48; S_DMV = 56; S_TK = 57; S_TV = 58; S_TP = 59
S_QK = 64; S_QV = 68; S_KS = 72; S_KZ = 76; S_VS = 80; S_VZ = 84; S_DBG = 88
S_NEED = 92; S_HOFF = 93; S_HEAD = 94; S_QB = 95; S_BUDGET = 96; S_MASK = 97
WSOFF = OPT.get("wsoff", 0) << 20
FLAG_OFF = WSOFF + (49 << 20)
SC1 = " sc1"; NTKV = " nt"; NTQ = " nt"; STF = " sc1"; OF = " sc0 sc1"

STAMPS = []
def istamp(name, force=False):
    if OPT["calx"] == name: return ["s_memrealtime s[100:101]"]
    if OPT["stamp"] not in (6, 8): return []
    if OPT["stamp"] == 8 and name.startswith("k") and not force: return []
    if OPT["few"] and force and name not in ("karg", "k0b", "postK", "pollK", "postV"): return []
    if OPT["stamp"] != 8 and force: return []
    STAMPS.append(name)
    return ["s_waitcnt lgkmcnt(0)"] * (1 if force else 0) + [f"v_mov_b32_dpp v{V_STAMP}, v{V_STAMP} wave_shr:1 row_mask:0xf bank_mask:0xf", f"v_writelane_b32 v{V_STAMP}, s98, 0",
            ("s_memtime" if OPT["stamp"] == 6 else "s_memrealtime") + " s[98:99]"]

class W:
    def __init__(self, *tags): self.tags = tags
class VM:
    def __init__(self, tag, text): self.tag = tag; self.text = text
class LG:
    def __init__(self, *tags): self.tags = tags
class DS:
    def __init__(self, tag, text): self.tag = tag; self.text = text

def mode_of(t):
    return {0: "a", 1: "a", 2: "b", 3: "b", 58: "a", 59: "a", 60: "a", 61: "b", 62: "b", 63: "b"}.get(t, "f")
def slot_q(t, sl):
    m = mode_of(t)
    return sl if m == "f" else (sl & 1) + (0 if m == "a" else 2)
def softmax_part(t, half):
    flat = []; prev = None
    for gp in range(8):
        sl = 2 * half + gp // 4; pi = gp % 4; l = V_L[slot_q(t, sl)]
        t0 = V_T + 2 * (gp % NTP); t1 = t0 + 1
        src = Sq(t, sl, pi >> 1) + 2 * (pi & 1)
        E = [f"v_exp_f32 v{t0}, v{src}", f"v_exp_f32 v{t1}, v{src+1}"]
        A = [f"v_add_f32 v{l}, v{l}, v{t0}", f"v_add_f32 v{l}, v{l}, v{t1}"]
        C = [f"v_cvt_pk_bf16_f32 v{P(t,sl)+pi}, v{t0}, v{t1}"]
        flat += E if prev is None else [E[0]] + prev[0] + [E[1]] + prev[1]
        prev = (A, C)
    return flat + prev[0] + prev[1]

class Grp:
    def __init__(self, rd, mf): self.rd = rd; self.mf = mf; self.reb = []
def qk_tile(t, w, slots, czero=False):
    gs = []
    for gi in range(6):
        s0 = 2 * (gi >> 1); tb = gi & 1
        rd = [(V_RDK[j], w * 12288 + tb * 6144 + (s0 >> 1) * 128) for j in range(2)]
        mf = []
        for sl, qb in slots:
            d = vr(Sq(t, sl, tb), 4)
            mf += [(0, d, Qf(qb, s0), (("0" if czero else vr(NEGM(qb), 4)) if s0 == 0 else d)), (1, d, Qf(qb, s0 + 1), d)]
        gs.append(Grp(rd, mf))
    return gs
def qk_full(t): return [g for w in range(2) for g in qk_tile(t + w, w, [(q, q) for q in range(4)])]
def qk_half(t, czero=False, ws=(0, 1)):
    return [g for w in ws for g in qk_tile(t, w, [(2 * w + j, slot_q(t, j)) for j in range(2)], czero)]
def pv_grp(t, db, first=False, va=V_RD):
    m = mode_of(t); mf = []
    for qb in (range(4) if m == "f" else [slot_q(t, 0), slot_q(t, 1)]):
        d = ar(O(qb, db), 4)
        for w in range(2):
            b = P(t + w, qb) if m == "f" else P(t, 2 * w + (qb & 1))
            mf.append((w, d, vr(b, 4), "0" if (first and w == 0) else d))
    return Grp([(va, w * 12288 + db * 1024) for w in range(2)], mf)
def pv_seq(t, first=False): return [pv_grp(t, db, first) for db in range(12)]
def pv_unchained(t, first=False):
    gs = []
    for w in range(2):
        for d0 in range(0, 12, 2):
            mf = []
            for j in range(2):
                qb = slot_q(t, j)
                for e in range(2):
                    d = ar(O(qb, d0 + e), 4)
                    mf.append((e, d, vr(P(t, 2 * w + j), 4), "0" if (first and w == 0) else d))
            gs.append(Grp([(V_RD, w * 12288 + (d0 + e) * 1024) for e in range(2)], mf))
    return gs
def rebase(gs, regs, delta):
    op = "v_add_u32" if delta >= 0 else "v_subrev_u32"
    gs[0].reb += [f"{op} v{r}, {abs(delta)}, v{r}" for r in regs]
    return gs
def rd_op(gi, j, g):
    f = 2 * gi + j
    return DS(("fr", f % NFS), f"ds_read_b128 {FR(f)}, v{g.rd[j][0]} offset:{g.rd[j][1]}")

def dma_tile(part, pos, peel=False):
    dm, go, tmp = (S_DMK, S_GOFFK, S_TK) if part == "k" else (S_DMV, S_GOFF, S_TV)
    l = [f"s_mov_b32 m0, s{dm}"]
    for j in range(3):
        l.append(VM(("d" + part, pos % 8), f"buffer_load_dwordx4 v{V_DMA}, s[{S_WS}:{S_WS+3}], s{go} offen offset:{j*1024}{SC1} lds"))
    if peel and pos < 7:
        l += [f"s_add_u32 s{go}, s{go}, {STAGE}", f"s_sub_u32 s{tmp}, s{go}, {8*STAGE}", f"s_min_u32 s{go}, s{go}, s{tmp}"]
    elif peel and pos == 7:
        l += [f"s_mov_b32 s{go}, {8*STAGE + (0 if part == 'k' else 12288)}"]
    else:
        l += [f"s_add_u32 s{go}, s{go}, {STAGE}"]
    if pos % 2 == 0: l += [f"s_add_u32 s{dm}, s{dm}, 12288"]
    else: l += [f"s_add_u32 s{dm}, s{dm}, {2*STAGE - 12288}", f"s_sub_u32 s{tmp}, s{dm}, {RING}", f"s_min_u32 s{dm}, s{dm}, s{tmp}"]
    return l
QOFF = [STAGE, 2 * STAGE, 0, STAGE]
def q_dma(lst):
    l = []
    for i in lst:
        a, b = divmod(i, 6)
        l += [f"s_mov_b32 s{S_QS}, {a*6144}"] * (1 if (b == 0 or i == lst[0]) else 0)
        l += [f"s_add_u32 m0, s{S_QL}, {QOFF[a] + b*1024}",
              VM(("q", a), f"buffer_load_dwordx4 v{VQD+b}, s[{S_Q}:{S_Q+3}], s{S_QS} offen{NTQ} lds")]
    return l
def q_frags(qb):
    l = []
    for s in range(6):
        for h in range(2):
            sp = s + 6 * h
            l.append(DS(("qf", qb), f"ds_read_b64 {Qf(qb,s,h)}, v{VQR[sp&3]} offset:{QOFF[qb] + (sp>>2)*128}"))
    return l
def with_nop(l):
    out = []
    for i, x in enumerate(l):
        out.append(x)
        if isinstance(x, str) and " m0," in x and i + 1 < len(l) and isinstance(l[i + 1], VM): out.append("s_nop 0")
    return out
def rd_step(kind):
    cur, regs = (S_RK, V_RDK) if kind == "q" else (S_RV, [V_RD])
    return [f"s_add_u32 s{S_TMP}, s{cur}, {2*STAGE}", f"s_sub_u32 s{S_RDELTA}, s{S_TMP}, {RING}",
            f"s_min_u32 s{S_TMP}, s{S_TMP}, s{S_RDELTA}", f"s_sub_u32 s{S_RDELTA}, s{S_TMP}, s{cur}", f"s_mov_b32 s{cur}, s{S_TMP}"] + \
           [f"v_add_u32 v{r}, s{S_RDELTA}, v{r}" for r in regs]

def k_ld(h, buf, rs, tag, scal_first=True):
    sc = [VM(tag, f"buffer_load_dwordx2 v[{rs+2*i}:{rs+2*i+1}], v{V_KSC}, s[{srd_}:{srd_+3}], s{S_PKS} offen offset:{192*h}")
          for i, srd_ in enumerate((S_KS, S_KZ))]
    l = []
    for j in range(4):
        so = S_PK0 if j < 2 else S_PK1
        l.append(VM(tag, f"buffer_load_dwordx4 v[{buf+4*j}:{buf+4*j+3}], v{V_KLD}, s[{S_QK}:{S_QK+3}], s{so} offen offset:{(j&1)*1536+384*h}{NTKV}"))
    return sc + l if scal_first else l + sc
def v_ld(h, buf, rs, tag, scal_first=True):
    sc = [VM(tag, f"buffer_load_dwordx2 v[{rs+2*i}:{rs+2*i+1}], off, s[{srd_}:{srd_+3}], s{S_PVS} offset:{8*h}")
          for i, srd_ in enumerate((S_VS, S_VZ))]
    l = []
    for r in range(4):
        so = S_PV0 if h == 0 else S_PV1
        l.append(VM(tag, f"buffer_load_dwordx4 v[{buf+4*r}:{buf+4*r+3}], v{V_VLD}, s[{S_QV}:{S_QV+3}], s{so} offen offset:{r*768}{NTKV}"))
    return sc + l if scal_first else l + sc
def k_cv(h, buf, rs, out):
    l = []
    s0, s1, z0, z1 = V_CT, V_CT + 1, V_CT + 2, V_CT + 3
    for i in range(2):
        l += [f"v_lshlrev_b32 v{s0}, 16, v{rs+i}", f"v_and_b32 v{s1}, s{S_MASK}, v{rs+i}",
              f"v_lshlrev_b32 v{z0}, 16, v{rs+2+i}", f"v_and_b32 v{z1}, s{S_MASK}, v{rs+2+i}",
              f"v_mul_f32 v{s0}, s{S_CS}, v{s0}", f"v_mul_f32 v{s1}, s{S_CS}, v{s1}",
              f"v_mul_f32_e64 v{z0}, -v{z0}, v{s0}", f"v_mul_f32_e64 v{z1}, -v{z1}, v{s1}"]
        for j in range(4):
            a = buf + 4 * j + 2 * i; b = a + 1
            l += [f"v_cvt_f32_i32 v{a}, v{a}", f"v_cvt_f32_i32 v{b}, v{b}",
                  f"v_fma_f32 v{a}, v{a}, v{s0}, v{z0}", f"v_fma_f32 v{b}, v{b}, v{s1}, v{z1}",
                  f"v_cvt_pk_bf16_f32 v{out+4*j+2*h+i}, v{a}, v{b}"]
    return l
def k_st(j, out, tag="kst"):
    va = V_KST; g = []
    if j:
        va = V_KA + (j & 1); g.append(f"v_xor_b32 v{va}, {16*j}, v{V_KST}")
    g.append(VM(tag, f"buffer_store_dwordx4 v[{out+4*j}:{out+4*j+3}], v{va}, s[{S_WS}:{S_WS+3}], s{S_PK0} offen offset:{j*768}{STF}"))
    return g
def v_cv(h, buf, rs, out):
    l = []
    s0, s1, z0, z1 = V_CT, V_CT + 1, V_CT + 2, V_CT + 3
    for i in range(2):
        l += [f"v_lshlrev_b32 v{s0}, 16, v{rs+i}", f"v_and_b32 v{s1}, s{S_MASK}, v{rs+i}",
              f"v_lshlrev_b32 v{z0}, 16, v{rs+2+i}", f"v_and_b32 v{z1}, s{S_MASK}, v{rs+2+i}",
              f"v_mul_f32_e64 v{z0}, -v{z0}, v{s0}", f"v_mul_f32_e64 v{z1}, -v{z1}, v{s1}"]
        for e in range(4):
            a = buf + 4 * (2 * i) + e; b = buf + 4 * (2 * i + 1) + e
            l += [f"v_cvt_f32_i32 v{a}, v{a}", f"v_cvt_f32_i32 v{b}, v{b}",
                  f"v_fma_f32 v{a}, v{a}, v{s0}, v{z0}", f"v_fma_f32 v{b}, v{b}, v{s1}, v{z1}"]
    for e, i in [(0, 0), (1, 0), (0, 1), (1, 1), (2, 0), (2, 1), (3, 0), (3, 1)]:
        l.append(f"v_cvt_pk_bf16_f32 v{out+4*e+2*h+i}, v{buf+8*i+e}, v{buf+8*i+4+e}")
    return l
def v_st(e, out, tag="vst"):
    so = S_PV0 if e < 2 else S_PV2
    return [VM(tag, f"buffer_store_dwordx4 v[{out+4*e}:{out+4*e+3}], v{V_VST}, s[{S_WS}:{S_WS+3}], s{so} offen offset:{(e&1)*3072}{STF}")]
def k_adv():
    return [f"s_add_u32 s{S_PK0}, s{S_PK0}, {8*STAGE}", f"s_add_u32 s{S_PK1}, s{S_PK1}, {8*STAGE}", f"s_add_u32 s{S_PKS}, s{S_PKS}, {4*384}"]
def v_adv():
    return [f"s_add_u32 s{r}, s{r}, {8*STAGE}" for r in (S_PV0, S_PV1, S_PV2)] + [f"s_add_u32 s{S_PVS}, s{S_PVS}, {8*64}"]
HT = {"ka": (k_ld, k_cv, 0, BX, V_RS[0], BX), "kb": (k_ld, k_cv, 1, BY, V_RS[1], BX),
      "va": (v_ld, v_cv, 0, BZ, V_RS[0], BZ), "vb": (v_ld, v_cv, 1, BY, V_RS[1], BZ)}
def flag_post():
    return [f"v_add_u32 v{V_FVAL}, 1, v{V_FVAL}",
            VM("flag", f"buffer_store_dword v{V_FVAL}, v{V_FLAG}, s[{S_FLG}:{S_FLG+3}], 0 offen sc1")]
def poll_addr():
    return [f"v_bfe_u32 v{V_POLL+1}, v{V_DMA}, 4, 6", f"v_lshlrev_b32 v{V_POLL+1}, 2, v{V_POLL+1}"]
def poll_load():
    return poll_addr() + [VM("poll", f"buffer_load_dword v{V_POLL}, v{V_POLL+1}, s[{S_FLG}:{S_FLG+3}], 0 offen sc1")]
def poll_test():
    return [f"v_subrev_u32 v{V_POLL}, s{S_NEED}, v{V_POLL}", f"v_cmp_lt_u32 vcc, 15, v{V_POLL}", "s_nop 0", f"s_and_b32 s{S_TP}, vcc_lo, 0xff"]
def smem_flags():
    return [f"s_buffer_load_dwordx8 s[{S_PT}:{S_PT+7}], s[{S_FLG}:{S_FLG+3}], 0 glc"]
def smem_reduce():
    return [f"s_sub_u32 s{S_PT+i}, s{S_PT+i}, s{S_NEED}" for i in range(8)] + [f"s_max_u32 s{S_PT}, s{S_PT}, s{S_PT+i}" for i in range(1, 8)]
def smem_test():
    return smem_flags() + ["s_waitcnt lgkmcnt(0)"] + smem_reduce() + [f"s_cmp_lt_u32 s{S_PT}, 16"]
def poll_slow(site):
    l = [f"L_pollslow{site}:"] + ([f"s_add_u32 s{S_TAG+1}, s{S_TAG+1}, {1 << (6 * site)}"] if OPT["stamp"] else [])
    l += [f"s_mov_b32 s{S_TP}, 200", f"L_pollsm{site}:"] + smem_test() + [f"s_cbranch_scc1 L_pollok{site}",
          f"s_sub_u32 s{S_TP}, s{S_TP}, 1", f"s_cbranch_scc1 L_pollvec{site}", "s_sleep 1", f"s_branch L_pollsm{site}"]
    l += [f"L_pollvec{site}:"] + poll_addr() + [
            f"s_sub_u32 s{S_BUDGET}, s{S_BUDGET}, 1",
            f"s_cbranch_scc1 L_pollgiveup{site}",
            "s_sleep 2",
            f"buffer_load_dword v{V_POLL}, v{V_POLL+1}, s[{S_FLG}:{S_FLG+3}], 0 offen sc1",
            "s_waitcnt vmcnt(0)"] + poll_test() + [
            f"s_cbranch_scc1 L_pollvec{site}",
            f"s_branch L_pollok{site}",
            f"L_pollgiveup{site}:",
            f"s_mov_b32 s{S_BUDGET}, 0",
            f"s_branch L_pollok{site}"]
    return l
def tag_load():
    return [VM("tag", f"buffer_load_dword v{V_FVAL}, off, s[{S_DBG}:{S_DBG+3}], s{S_HOFF} sc1")]
def tag_check():
    return [f"s_cmp_lg_u32 s{S_WAVE}, 0", "s_cbranch_scc1 L_tagdone",
            f"v_readfirstlane_b32 s{S_TAG}, v{V_FVAL}", f"s_mov_b32 s{S_RET}, 100",
            "L_tagretry:", f"s_cmp_lg_u32 s{S_TAG}, 0", "s_cbranch_scc1 L_tagok",
            f"s_sub_u32 s{S_RET}, s{S_RET}, 1", "s_cbranch_scc1 L_tagslow", "s_sleep 4",
            f"s_buffer_load_dword s{S_TAG}, s[{S_DBG}:{S_DBG+3}], s{S_HOFF} glc", "s_waitcnt lgkmcnt(0)", "s_branch L_tagretry",
            "L_tagok:", f"v_mov_b32 v{V_FVAL}, s{S_TAG}", f"v_mov_b32 v{V_T}, {RING}", DS("w", f"ds_write_b32 v{V_T}, v{V_FVAL}"), "L_tagdone:"]
def tag_get():
    return [f"v_mov_b32 v{V_T}, {RING}", DS("tg", f"ds_read_b32 v{V_T+1}, v{V_T}")]
def tag_use():
    return [f"v_readfirstlane_b32 s{S_NEED}, v{V_T+1}", f"s_add_u32 s{S_NEED}, s{S_NEED}, 1"]
def tag_slow():
    return ["L_tagslow:",
            f"s_sub_u32 s{S_BUDGET}, s{S_BUDGET}, 1",
            "s_cbranch_scc1 L_taggiveup",
            "s_sleep 2",
            f"buffer_load_dword v{V_FVAL}, off, s[{S_DBG}:{S_DBG+3}], s{S_HOFF} sc1",
            "s_waitcnt vmcnt(0)",
            f"v_readfirstlane_b32 s{S_TAG}, v{V_FVAL}", "s_nop 0", f"s_cmp_eq_u32 s{S_TAG}, 0", "s_cbranch_scc1 L_tagslow",
            "s_branch L_tagok",
            "L_taggiveup:",
            f"s_mov_b32 s{S_BUDGET}, 0",
            "s_branch L_tagok"]

def text_of(x):
    return "s_waitcnt" if isinstance(x, (W, LG)) else (x.text if isinstance(x, (VM, DS)) else x)
def kind_of(x):
    t = text_of(x)
    if t.endswith(":"): return "label"
    if t.startswith("v_"): return "valu"
    if t.startswith("ds_"): return "ds"
    if t.startswith("buffer_store"): return "store"
    if t.startswith("buffer_"): return "load"
    return "salu"
def cost_of(x):
    k = kind_of(x); t = text_of(x)
    if k == "label": return 0
    if k == "store": return 20 if "x4" in t else 8
    if k == "load": return 8
    if t.startswith("ds_write"): return 16
    if t.startswith(("v_exp", "v_rcp")): return 8
    if t.startswith("s_nop"): return 4 * (int(t.split()[1]) + 1)
    if t.startswith("s_cbranch") or t.startswith("s_branch"): return 12
    if t.startswith("s_barrier"): return 8
    return 4
def gap_time(ops):
    t = 4; prev = None
    for o in ops:
        k = kind_of(o)
        if k == "label": continue
        if k == "salu": t += cost_of(o)
        else: t = max(t, 8) + cost_of(o) + (8 if (k != "valu" and prev == "valu") else 0)
        prev = k
    return t

class Stream:
    def __init__(self, ops, first, last, maxper=99, dense=0):
        self.ops = list(ops); self.first = first; self.last = last; self.maxper = maxper; self.dense = dense
        self.total = sum(cost_of(o) for o in self.ops); self.done = 0; self.i = 0

def pack(NG, A, B, C, T, streams, novm=(), nosalu=(), vmgap=4):
    out = []; over = 0; lastvm = -99
    for g in range(NG):
        a, b, c, tl = list(A[g]), list(B[g]), list(C[g]), list(T[g])
        cnt = {}; inC = set(); blocked = set()
        while True:
            best = None; bl = None; bsec = None
            for st in streams:
                if st.i >= len(st.ops) or g < st.first: continue
                force = g >= st.last
                if (cnt.get(id(st), 0) >= st.maxper or id(st) in blocked) and not force: continue
                o = st.ops[st.i]; k = kind_of(o); cst = cost_of(o)
                if k == "salu" and g in nosalu:
                    assert not force, (g, text_of(o))
                    continue
                if k in ("load", "store") and (g in novm or g - lastvm < vmgap) and not force: continue
                if k in ("load", "store", "ds"):
                    sec = "b" if id(st) not in inC and id(st) not in blocked else "c"
                    if sec == "c" and not force: continue
                elif k == "salu" and not a and cnt.get(id(st), 0) == 0:
                    sec = "a"
                else: sec = "c"
                tgt = st.total * (g - st.first + 1) / (st.last - st.first + 1)
                lag = tgt - st.done
                if not force:
                    if lag < cst / 2 - OPT["ahead"] and cst: continue
                    trial = (a + [o] if sec == "a" else a) + (b + [o] if sec == "b" else b) + (c + [o] if sec == "c" else c) + tl
                    gt = gap_time(trial)
                    if gt > 16:
                        if g % 2 == 0: continue
                        big = k == "store" or text_of(o).startswith("ds_write")
                        lim = max(20, st.dense) if lag > 24 else 16
                        if big and not (a + b + c + tl): lim = 32
                        if gt > lim: continue
                key = (force, k in ("load", "store"), lag / max(1, (st.last - g + 1)) ** 0.5)
                if best is None or key > bl: best = st; bl = key; bsec = sec
            if best is None: break
            o = best.ops[best.i]
            if bsec == "a": a.append(o)
            elif bsec == "b":
                b.append(o)
            else: c.append(o)
            if bsec == "c" or bsec == "b" and kind_of(o) != "ds" and False: inC.add(id(best))
            if bsec == "c": inC.add(id(best))
            if " m0," in text_of(o): blocked.add(id(best))
            if kind_of(o) in ("load", "store"): lastvm = g
            best.i += 1; best.done += cost_of(o); cnt[id(best)] = cnt.get(id(best), 0) + 1
        ops = a + b + c + tl
        tt = gap_time(ops)
        if tt > 16: over += tt - 16
        out.append(ops)
    for st in streams: assert st.i == len(st.ops)
    return out, over

POLLSITES = []
def gen_seg(name, groups, nxt, sm=(), bars=(), tasks=(), dma=(), extra=(), endops=(), fixed=(), peel=True, vmgap=None):
    starts = []; n = 0
    for g in groups: starts.append(n); n += len(g.mf)
    NG = n
    A = [[] for _ in range(NG)]; B = [[] for _ in range(NG)]; C = [[] for _ in range(NG)]; T = [[] for _ in range(NG)]
    streams = []; novm = set(range(0, NG, 2)); nosalu = set()
    allg = list(groups) + list(nxt)
    assert len(groups) % 3 == 0
    for i, g in enumerate(groups):
        g0 = starts[i]; ln = len(g.mf)
        if i + 2 < len(allg):
            t = allg[i + 2]
            B[g0].append(rd_op(i + 2, 0, t)); B[g0 + ln // 2].append(rd_op(i + 2, 1, t))
            if t.reb:
                assert g0 > 0
                C[g0 - 1] += t.reb
        if i + 1 < len(allg):
            A[g0 + ln - 1].append(LG(("fr", (2 * i + 2) % NFS), ("fr", (2 * i + 3) % NFS)))
    for ops, f, l in sm: streams.append(Stream(ops, f, l))
    streams += list(extra)
    if endops:
        A[NG-4] += endops[:1]; A[NG-2] += [A[NG-1][0]] + list(endops[1:-1]); A[NG-1] = []; T[NG-1] = list(endops[-1:]); nosalu |= {NG-2, NG-1}
    for grp in dma:
        dl = []
        for part, pos in grp[:-2]: dl += dma_tile(part, pos, peel)
        k = max(i for i, x in enumerate(dl) if isinstance(x, VM)) + 1
        streams.append(Stream(dl[:k], grp[-2], grp[-1], maxper=2))
        streams.append(Stream(dl[k:], min(grp[-1] + 1, NG - 3), min(NG - 3 if endops else NG - 1, grp[-1] + 12), maxper=2))
    bars = [(g, list(tg)) for g, tg in bars]
    for t in tasks:
        k_ = t[0]
        if k_ == "cv":
            _, cv, h, buf, rs, outb = HT[t[1]]
            ops = cv(h, buf, rs, outb)[t[2]:t[3]]
            if t[2] == 0: ops = [W(t[1])] + ops
            streams.append(Stream(ops, t[4], t[5]))
        elif k_ in ("kst", "vst"):
            grp = k_st(t[1], BX) if k_ == "kst" else v_st(t[1], BZ)
            g = t[2]; assert g % 2 == 1 and not B[g] and not A[g], (name, g)
            B[g].append(grp[-1]); novm |= set(range(g - OPT["sb"], g + OPT["sa"] + 1))
            if grp[:-1]: streams.append(Stream(grp[:-1], max(0, g - 5), g - 1))
        elif k_ in ("ld", "ldn"):
            ld, _, h, buf, rs, _o = HT[t[1]]
            adv = {"ka": k_adv(), "va": v_adv()}.get(t[1], []) if k_ == "ld" else []
            ops = ld(h, buf, rs, t[1])
            if len(t) > 4: ops = ops[2:] if t[4] == "raw" else ops[:2]
            streams.append(Stream(adv + ops, t[2], t[3], maxper=1))
        elif k_ == "post":
            bi = t[2] if len(t) > 2 else -1
            bars[bi][1].append(t[1])
            streams.append(Stream(flag_post(), bars[bi][0] + 1, min(NG - 3, bars[bi][0] + 14), maxper=1))
        elif k_ == "pf":
            streams.append(Stream([VM("pf", f"buffer_load_dword v15, v{V_DMA}, s[{S_DBG}:{S_DBG+3}], s{S_HOFF} offen")], t[1], t[2]))
        elif k_ == "pollld": streams.append(Stream(poll_load(), t[1], t[2], maxper=1))
        elif k_ == "pollchk":
            ps = len(POLLSITES); POLLSITES.append(ps)
            g = t[1]; assert g % 4 == 1
            pt = poll_test()
            A[g] += [W("poll")]; T[g] += pt[:2]; novm |= {g, g + 4}
            A[g + 3] += [pt[3]]; A[g + 4] += [f"s_cbranch_scc1 L_pollslow{ps}", f"L_pollok{ps}:"]; nosalu |= {g + 3, g + 4}
            A[g + 5] += [f"s_add_u32 s{S_NEED}, s{S_NEED}, 1"]
        elif k_ == "spollld": A[t[1]] += smem_flags()
        elif k_ == "spollchk":
            ps = len(POLLSITES); POLLSITES.append(ps)
            A[t[1]] += ["s_waitcnt lgkmcnt(0)"]
            streams.append(Stream(smem_reduce(), t[1] + 1, t[2] - 1, maxper=3))
            A[t[2]] += [f"s_cmp_ge_u32 s{S_PT}, 16", f"s_cbranch_scc1 L_pollslow{ps}", f"L_pollok{ps}:", f"s_add_u32 s{S_NEED}, s{S_NEED}, 1"]
        elif k_ == "step": streams.append(Stream(rd_step(t[1]), t[2], t[3], maxper=1))
        elif k_ == "q": streams.append(Stream(q_dma(t[1]), t[2], t[3], maxper=2))
        else: raise Exception(k_)
    for g, tags in bars:
        i = [j for j in range(len(groups)) if starts[j] + len(groups[j].mf) - 1 == g]
        assert i, (name, g)
        if len(groups[i[0]].mf) == 8:
            A[g - 2] += A[g]; A[g] = []
            if tags: A[g - 1] += [W(*tags)]
        elif tags: A[g - 2] += [W(*tags)]
        A[g] += ["s_barrier"]; novm |= {g}
    for g, sec, ops in fixed: {"A": A, "B": B, "C": C, "T": T}[sec][g] += ops
    if endops:
        for st_ in streams: st_.last = min(st_.last, NG - 2)
    m0w = sorted((st.first, st.last) for st in streams if any(" m0," in text_of(o) for o in st.ops))
    assert all(m0w[i][1] < m0w[i + 1][0] for i in range(len(m0w) - 1)), (name, m0w)
    fill, over = pack(NG, A, B, C, T, streams, novm, nosalu, vmgap or OPT["vmgap"])
    if over: print(f"seg {name}: over budget by {over} cycles", file=sys.stderr)
    out = istamp(name)
    g = 0
    for i, gr in enumerate(groups):
        for j, d, b, c in gr.mf:
            out.append(f"{MF} {d}, {FR(2*i+j)}, {b}, {c}")
            out += fill[g]; g += 1
    return with_nop(out)

GBAR = 79
def seg_groups(it):
    return qk_full(it + 1) if it % 2 else pv_seq(it - 2)
def gen_iter(it, tasks=(), dma=(), name=None, endops=(), peel=False, nxt=None, extra=(), bars=None, groups=None, sm=None, step=True):
    q = it % 2
    smB = softmax_part(it, 1); smA = softmax_part(it + 1, 0)
    if sm is None: sm = [(smB, 0, 50), (smA, 52, 95)] if q else [(smB + smA, 0, 95)]
    need = [("dv", (it - 1) % 8), ("dv", it % 8)] if q else [("dk", (it + 2) % 8), ("dk", (it + 3) % 8)]
    tasks = list(tasks) + ([("step", "p" if q else "q", 30, GBAR - 3)] if step else [])
    return gen_seg(name or f"i{it}", groups or seg_groups(it), nxt if nxt is not None else seg_groups(it + 1)[:2], sm,
                   bars if bars is not None else [(GBAR, need)], tasks, dma, extra, endops, peel=peel)

K_ = lambda *j: tuple(("k", x) for x in j)
V_ = lambda *j: tuple(("v", x) for x in j)
def steady(k):
    ckv, ckk = OPT["ckv"], OPT["ckk"]
    plv, plk = OPT["plv"], OPT["plk"]
    return {
        1: ([("cv", "va", 0, 22, 0, 95), ("ld", "vb", 0, 44)], [V_(2, 3) + (0, GBAR - 5)]),
        2: ([("cv", "va", 22, 99, 0, 95), ("kst", 0, 1), ("kst", 1, 9), ("kst", 2, 17), ("kst", 3, 25), ("post", "kst")], [K_(6, 7) + (33, 74)]),
        3: ([("cv", "vb", 0, 22, 0, 95), ("ld", "ka", 0, 44)], [V_(4, 5) + (0, GBAR - 5)]),
        4: ([("cv", "vb", 22, 99, 0, 95), ("pollld", plk, plk + 16)] + ([("pf", 80, 92)] if OPT["pf2"] else []), [V_(6, 7) + (0, GBAR - 5)]),
        5: ([("cv", "ka", 0, 16, 0, 95), ("pollchk", 1), ("vst", 0, 9), ("vst", 1, 17), ("vst", 2, 25), ("vst", 3, 33), ("post", "vst")], [K_(0, 1) + (41, 74)]),
        6: ([("cv", "ka", 16, 99, 0, 95), ("ld", "kb", 0, 30)], [K_(2, 3) + (31, 74)]),
        7: ([("cv", "kb", 0, 24, 40, 95), ("ld", "va", 11, 40), ("pollld", plv, plv + 8)], [K_(4, 5) + (41, 90)]),
        0: ([("cv", "kb", 24, 99, 0, 95), ("pollchk", ckv)], [V_(0, 1) + (ckv + 7, ckv + 44)]),
    }[k]

WA = [V_RS[0], V_RS[0] + 1]; RA = V_RS[0] + 2; GA = V_RS[0] + 3; TA = V_RS[0] + 4
RL = [V_CT, V_CT + 2, V_CT + 4, V_CT + 6]
S_EO = 24
def epi_addr():
    return [f"v_bfe_u32 v{TA}, v{V_DMA}, 4, 6", f"s_mul_i32 s{S_EO}, s{S_WAVE}, 6144", f"s_add_u32 s{S_EO}, s{S_EO}, {A2}",
            f"v_and_b32 v{WA[0]}, 15, v{TA}", f"v_lshrrev_b32 v{WA[1]}, 4, v{TA}", f"v_lshlrev_b32 v{WA[1]}, 1, v{WA[1]}",
            f"v_and_b32 v{TA+1}, 7, v{TA}", f"v_xor_b32 v{WA[1]}, v{WA[1]}, v{TA+1}", f"v_lshlrev_b32 v{WA[0]}, 7, v{WA[0]}",
            f"v_lshl_add_u32 v{WA[0]}, v{WA[1]}, 4, v{WA[0]}", f"v_add_u32 v{WA[0]}, s{S_EO}, v{WA[0]}", f"v_xor_b32 v{WA[1]}, 16, v{WA[0]}",
            f"v_lshrrev_b32 v{RA}, 3, v{TA}", f"v_mul_u32_u24 v{GA}, 384, v{RA}", f"v_lshl_add_u32 v{GA}, v{TA+1}, 4, v{GA}",
            f"v_xor_b32 v{RA}, v{RA}, v{TA}", f"v_lshlrev_b32 v{RA}, 4, v{RA}", f"v_add_u32 v{RA}, s{S_EO}, v{RA}",
            f"s_lshl_b32 s{S_EO}, s{S_QB}, 2", f"s_add_u32 s{S_EO}, s{S_EO}, s{S_WAVE}", f"s_mul_i32 s{S_EO}, s{S_EO}, {STAGE}",
            f"s_add_u32 s{S_QL}, s{S_EO}, 6144", f"s_add_u32 s{S_QS}, s{S_EO}, 12288", f"s_add_u32 s{S_TAG}, s{S_EO}, 18432"]
S_EQ = [S_EO, S_QL, S_QS, S_TAG]
def epi_l(qs):
    fl = []
    for sw in ("v_permlane16_swap_b32", "v_permlane32_swap_b32"):
        fl += [f"v_mov_b32 v{RL[q]}, v{V_L[q]}" for q in qs] + ["s_nop 0"]
        fl += [f"{sw} v{V_L[q]}, v{RL[q]}" for q in qs] + ["s_nop 0"]
        fl += [f"v_add_f32 v{V_L[q]}, v{V_L[q]}, v{RL[q]}" for q in qs]
    return fl + [f"v_rcp_f32 v{RL[q]}, v{V_L[q]}" for q in qs] + ["s_nop 0"]
class Epi:
    def __init__(self, temps, rbs): self.temps = temps; self.rbs = rbs; self.n = 0; self.pend = []
    def flush(self):
        p = []
        for qb, n, h, reg, tag in self.pend:
            p += [LG(tag), VM("out", f"buffer_store_dwordx4 v[{reg}:{reg+3}], v{GA}, s[{S_OUT}:{S_OUT+3}], s{S_EQ[qb]} offen offset:{n*128 + h*3072}{OF}")]
        self.pend = []
        return p
    def chunk(self, qb, n, pk=False):
        p = []; c = self.n; self.n += 1
        lb = (c % 3) * 2048
        for half in range(2):
            ob = self.temps[(2 * c + half) % len(self.temps)]
            for tt in range(8):
                r, e = divmod(8 * half + tt, 4)
                p.append(f"v_accvgpr_read_b32 v{ob+tt}, a{O(qb,3*e+n)+r}")
            if pk: p += [f"v_pk_mul_f32 v[{ob+2*i}:{ob+2*i+1}], v[{ob+2*i}:{ob+2*i+1}], v[{RL[qb]}:{RL[qb]+1}] op_sel_hi:[1,0]" for i in range(4)]
            else: p += [f"v_mul_f32 v{ob+i}, v{ob+i}, v{RL[qb]}" for i in range(8)]
            p += [f"v_cvt_pk_bf16_f32 v{ob+i}, v{ob+2*i}, v{ob+2*i+1}" for i in range(4)]
            if self.pend:
                x = self.pend.pop(0); rest = self.pend; self.pend = [x]; p += self.flush(); self.pend = rest
            p.append(DS("w", f"ds_write_b128 v{WA[half]}, v[{ob}:{ob+3}] offset:{lb}"))
        p += self.flush()
        for h in range(2):
            reg = self.rbs[(2 * c + h) % len(self.rbs)]; tag = ("rb", c % 4, h)
            p.append(DS(tag, f"ds_read_b128 v[{reg}:{reg+3}], v{RA} offset:{lb + h*1024}"))
            self.pend.append((qb, n, h, reg, tag))
        return p

def gen_tail():
    sp = softmax_part
    g57 = qk_half(58) + rebase(qk_half(59), V_RDK, A0 - A2)
    g58 = pv_seq(56)
    g59 = rebase(qk_half(60), V_RDK, A1 - A0) + rebase(qk_half(61), V_RDK, A2 - A1)
    g60 = rebase(pv_seq(58), [V_RD], B2 - B1) + rebase(pv_seq(59), [V_RD], B0 - B2)
    g61 = rebase(pv_seq(60), [V_RD], B1 - B0) + rebase(qk_half(62), V_RDK, A0 - A2)
    g62 = rebase(qk_half(63), V_RDK, A1 - A0) + rebase(pv_seq(61), [V_RD], B2 - B1)
    g63 = []
    for n in range(3):
        for e in range(4): g63 += [pv_grp(62, 3 * e + n), pv_grp(63, 3 * e + n, va=V_RD2)]
    g63[0].reb += [f"v_subrev_u32 v{V_RD2}, {B2 - B1}, v{V_RD}", f"v_subrev_u32 v{V_RD}, {B2 - B0}, v{V_RD}"]
    first57 = g57[:2]
    p = []
    p += gen_seg("S57", g57, g58[:2], [(sp(57, 1), 0, 40), (sp(58, 0), 41, 95)], [(GBAR, [("dv", 0), ("dv", 1)])],
                 [("step", "p", 30, GBAR - 3)], [K_(62, 63) + V_(58, 59) + (0, 74)], peel=False)
    p += gen_seg("S58", g58, g59[:2], [(sp(58, 1) + sp(59, 0) + sp(59, 1), 0, 95)], [(GBAR, [("dk", 7), ("dv", 3)])], [], [V_(60, 61) + (0, 40)], peel=False)
    p += gen_seg("S59", g59, g60[:2], [(epi_addr(), 0, 30), (sp(60, 0), 31, 60), (sp(60, 1), 61, 95)], [(15, [("dv", 5)])], [], [V_(62, 63) + (16, 50)], peel=False)
    p += gen_seg("S60", g60, g61[:2], [(sp(61, 0) + sp(61, 1) + epi_l((0, 1)), 0, 95)], [(GBAR, [("dv", 7)])])
    ep = Epi([BX, BX + 8, BY, BY + 8], [BZ, BZ + 4, BZ + 8, BZ + 12, NEGM(0), NEGM(1)])
    e01 = [x for qb in (0, 1) for n in range(3) for x in ep.chunk(qb, n)] + ep.flush()
    n1 = OPT.get("e1", 100)
    td = OPT["tden"]
    p += gen_seg("S61", g61, g62[:2], [(sp(62, 0), 78, 95)], extra=[Stream(e01[:n1], 52, 95, dense=td)])
    p += gen_seg("S62", g62, g63[:2], [(sp(62, 1), 2, 30), (sp(63, 0), 31, 60), (sp(63, 1), 61, 95)], extra=[Stream(e01[n1:], 0, 95, dense=td)])
    chk = [f"v_max3_f32 v{V_T}, v{V_L[0]}, v{V_L[1]}, v{V_L[2]}", f"v_max_f32 v{V_T}, v{V_T}, v{V_L[3]}",
           f"s_mov_b32 s{S_TMP}, 0x{f32bits(2.0**OPT['thr']):08x}", f"v_cmp_lt_f32 vcc, s{S_TMP}, v{V_T}"]
    c0 = ep.chunk(2, 0) + ep.chunk(3, 0)
    c1 = ep.chunk(2, 1) + ep.chunk(3, 1)
    p += gen_seg("S63", g63, [], [(epi_l((2, 3)) + chk, 0, 24)], extra=[Stream(c0, 36, 67, dense=td), Stream(c1, 68, 95, dense=td)],
                 fixed=[(29, "A", ["s_cbranch_vccnz L_slow"])])
    p += istamp("fin") + ["s_nop 7"] + ep.chunk(2, 2, True) + ep.chunk(3, 2, True) + ep.flush()
    return first57, p
def slow_epi():
    ep = Epi([64 + 8 * i for i in range(8)], [128 + 4 * i for i in range(8)])
    seq = epi_l((0, 1)) + epi_l((2, 3))
    for qb in range(4):
        for n in range(3): seq += ep.chunk(qb, n, True)
    return seq + ep.flush()

def kfrag(g):
    return 2 * (g >> 2) + (g & 1), (g >> 1) & 1
def gen_slow():
    KF = 64; VF = 112; SS = 160; PP = 224; M = [240, 241, 242, 243]; KA = [244, 245]; LA = 246; t = V_T
    p = ["L_slow:", "s_waitcnt vmcnt(0) lgkmcnt(0)", "s_nop 15"]
    for i in range(192): p.append(f"v_accvgpr_write_b32 a{i}, 0")
    for q in range(4): p += [f"v_mov_b32 v{V_L[q]}, 0", f"v_mov_b32 v{M[q]}, 0xff7fffff"]
    p += [f"v_subrev_u32 v{KA[0]}, {A1}, v{V_RDK[0]}", f"v_subrev_u32 v{KA[1]}, {A1}, v{V_RDK[1]}", f"v_subrev_u32 v{LA}, {B0}, v{V_RD}",
          f"s_mov_b32 s{S_PT}, 0", "L_slowloop:"]
    for i in range(1, 5): p.append(f"s_add_u32 s{S_PT+i}, s{S_PT}, {[0, 6144, 12288, 16384, 20480][i]}")
    for f in range(12):
        s, tb = kfrag(f)
        p.append(f"buffer_load_dwordx4 v[{KF+4*f}:{KF+4*f+3}], v{KA[s&1]}, s[{S_WS}:{S_WS+3}], s{S_PT+tb} offen offset:{(s>>1)*128} sc1")
    for db in range(12):
        p.append(f"buffer_load_dwordx4 v[{VF+4*db}:{VF+4*db+3}], v{LA}, s[{S_WS}:{S_WS+3}], s{S_PT+2+db//4} offen offset:{(db%4)*1024} sc1")
    p.append("s_waitcnt vmcnt(12)")
    for f in range(12):
        s, tb = kfrag(f)
        for qb in range(4):
            d = vr(SS + 8 * qb + 4 * tb, 4)
            p.append(f"{MF} {d}, v[{KF+4*f}:{KF+4*f+3}], {Qf(qb,s)}, {'0' if s == 0 else d}")
    p.append("s_nop 9")
    for qb in range(4):
        sb = SS + 8 * qb
        p += [f"v_max3_f32 v{t}, v{sb}, v{sb+1}, v{sb+2}", f"v_max3_f32 v{t}, v{t}, v{sb+3}, v{sb+4}",
              f"v_max3_f32 v{t}, v{t}, v{sb+5}, v{sb+6}", f"v_max3_f32 v{t}, v{t}, v{sb+7}, v{M[qb]}"]
        p += xlane("v_max_f32", t)
        p += [f"v_sub_f32 v{t+1}, v{M[qb]}, v{t}", f"v_exp_f32 v{t+1}, v{t+1}", f"v_mov_b32 v{M[qb]}, v{t}"]
        for i in range(8): p.append(f"v_sub_f32 v{sb+i}, v{sb+i}, v{t}")
        for i in range(8): p.append(f"v_exp_f32 v{sb+i}, v{sb+i}")
        p.append(f"v_mul_f32 v{V_L[qb]}, v{V_L[qb]}, v{t+1}")
        for i in range(8): p.append(f"v_add_f32 v{V_L[qb]}, v{V_L[qb]}, v{sb+i}")
        for i in range(4): p.append(f"v_cvt_pk_bf16_f32 v{PP+4*qb+i}, v{sb+2*i}, v{sb+2*i+1}")
        for i in range(48):
            a = O(qb, 0) + i; tt = t + 2 + (i % 2)
            p += [f"v_accvgpr_read_b32 v{tt}, a{a}", f"v_mul_f32 v{tt}, v{tt}, v{t+1}", f"v_accvgpr_write_b32 a{a}, v{tt}"]
    p += ["s_waitcnt vmcnt(0)", "s_nop 1"]
    for db in range(12):
        for qb in range(4):
            d = ar(O(qb, db), 4)
            p.append(f"{MF} {d}, v[{VF+4*db}:{VF+4*db+3}], v[{PP+4*qb}:{PP+4*qb+3}], {d}")
    p += [f"s_add_u32 s{S_PT}, s{S_PT}, {STAGE}", f"s_cmp_lt_u32 s{S_PT}, {HEADBYTES}", "s_nop 7", "s_cbranch_scc1 L_slowloop"]
    e = slow_epi(); resolve(e)
    return p + fin(e) + ["s_branch L_fin"]

def xlane(op, t, u=None):
    u = t + 1 if u is None else u
    l = []
    for sw in ("v_permlane16_swap_b32", "v_permlane32_swap_b32"):
        l += [f"v_mov_b32 v{u}, v{t}", "s_nop 1", f"{sw} v{t}, v{u}", "s_nop 1", f"{op} v{t}, v{t}, v{u}"]
    return l
def rowmax2(t, qs, tq):
    l = []
    ab = [(Sq(t, j, 0), Sq(t, j, 1)) for j in range(2)]
    l += [f"v_max3_f32 v{tq[j]}, v{a}, v{a+1}, v{a+2}" for j, (a, b) in enumerate(ab)]
    l += [f"v_max3_f32 v{tq[j]}, v{tq[j]}, v{a+3}, v{b}" for j, (a, b) in enumerate(ab)]
    l += [f"v_max3_f32 v{tq[j]}, v{tq[j]}, v{b+1}, v{b+2}" for j, (a, b) in enumerate(ab)]
    l += [f"v_max_f32 v{tq[j]}, v{tq[j]}, v{b+3}" for j, (a, b) in enumerate(ab)]
    for sw in ("v_permlane16_swap_b32", "v_permlane32_swap_b32"):
        l += [f"v_mov_b32 v{tq[j]+1}, v{tq[j]}" for j in range(2)] + ["s_nop 0"]
        l += [f"{sw} v{tq[j]}, v{tq[j]+1}" for j in range(2)] + ["s_nop 0"]
        l += [f"v_max_f32 v{tq[j]}, v{tq[j]}, v{tq[j]+1}" for j in range(2)]
    l += [f"v_sub_f32 v{NEGM(qs[j])+i}, 0, v{tq[j]}" for j in range(2) for i in range(4)]
    return l
def addneg(t, sl):
    n = NEGM(slot_q(t, sl))
    return [f"v_add_f32 v{Sq(t,sl,tb)+i}, v{Sq(t,sl,tb)+i}, v{n}" for tb in range(2) for i in range(4)]

def resolve(seq):
    vm = []; ds = []
    for x in seq:
        if isinstance(x, VM): vm.append(x.tag)
        elif isinstance(x, DS): ds.append(x.tag)
        elif isinstance(x, (W, LG)):
            q = vm if isinstance(x, W) else ds
            best = None
            for tag in x.tags:
                n = 0; found = False
                for t in reversed(q):
                    if t == tag: found = True; break
                    n += 1
                if found: best = n if best is None else min(best, n)
            if best is not None:
                x.n = best if getattr(x, "n", None) is None else min(x.n, best)
        else:
            assert not x.startswith(("ds_", "buffer_")) or "UNTRACKED" in x, x
def vm_size(x):
    t = x.text
    if t.startswith("buffer_store"): return 0
    if " lds" in t: return 1.0
    if "dwordx4" in t: return 0.75
    if "dwordx2" in t and "offen" in t: return 0.375
    return 0.125
def pace(seq, cap):
    out = []; q = []; on = False
    for x in seq:
        if isinstance(x, W): q = q[len(q) - min(len(q), x.n):]; on = True
        elif isinstance(x, VM):
            sz = vm_size(x)
            if on and not x.text.startswith("buffer_store") and sum(q) + sz > cap:
                while q and sum(q) + sz > cap: q.pop(0)
                w = W(); w.n = len(q)
                if out and out[-1] == "s_nop 0": out.pop()
                out.append(w)
            q.append(sz)
        out.append(x)
    return out
def fin(seq):
    out = []
    for x in seq:
        if isinstance(x, (W, LG)):
            assert getattr(x, "n", None) is not None, x.tags
            out.append(f"s_waitcnt vmcnt({min(x.n, 63)})" if isinstance(x, W) else f"s_waitcnt lgkmcnt({min(x.n, 15)})")
        elif isinstance(x, (VM, DS)): out.append(x.text)
        else: out.append(x.replace(" ;UNTRACKED", ""))
    return out
def srd(p, s, lo, hi, off_s, size):
    p += [f"s_add_u32 s{s}, s{lo}, s{off_s}", f"s_addc_u32 s{s+1}, s{hi}, 0", f"s_mov_b32 s{s+2}, {size}", f"s_mov_b32 s{s+3}, 0x20000"]

def gen_main():
    p = []
    p += [f"{NAME}_kernel:", "s_cmp_ge_u32 s2, 256", "s_cbranch_scc1 L_done",
          "s_load_dwordx16 s[40:55], s[0:1], 0", "s_load_dwordx4 s[16:19], s[0:1], 64"]
    if OPT["stamp"]: p += ["s_memrealtime s[98:99]" if OPT["stamp"] == 8 else "s_memtime s[98:99]"]
    p += [f"s_and_b32 s{S_HEAD}, s2, 7", f"s_lshr_b32 s{S_QB}, s2, 3", f"s_lshr_b32 s24, s{S_QB}, 3", f"s_lshl_b32 s{S_HEAD}, s{S_HEAD}, 2",
          f"s_add_u32 s{S_HEAD}, s{S_HEAD}, s24", f"s_and_b32 s{S_QB}, s{S_QB}, 7"]
    p += ["s_getpc_b64 s[60:61]", "L_pc:", f"s_sub_u32 s60, s60, L_pc-{NAME}_kernel", "s_subb_u32 s61, s61, 0",
          f"s_mov_b32 s62, L_slow-{NAME}_kernel", "s_mov_b32 s63, 0x20000",
          "s_lshr_b32 s22, s2, 3", "s_lshl_b32 s22, s22, 12",
          "v_lshlrev_b32 v30, 4, v0",
          VM("pf", "buffer_load_dwordx4 v[128:131], v30, s[60:63], s22 offen")]
    p += ["v_lshrrev_b32 v24, 6, v0",
          "v_and_b32 v25, 63, v0",
          f"v_readfirstlane_b32 s{S_WAVE}, v24",
          f"v_lshlrev_b32 v{V_RD}, 4, v25",
          "v_mul_u32_u24 v26, 43, v25", "v_lshrrev_b32 v26, 10, v26",
          "v_mul_u32_u24 v27, 24, v26",
          "v_sub_u32 v27, v25, v27",
          "v_lshrrev_b32 v28, 1, v24",
          "v_and_b32 v29, 1, v24",
          "v_lshlrev_b32 v30, 4, v29",
          "v_lshl_add_u32 v30, v28, 2, v30",
          "v_add_u32 v30, v30, v26",
          "v_mul_u32_u24 v30, 768, v30",
          "v_lshrrev_b32 v48, 1, v26", "v_lshlrev_b32 v48, 30, v48",
          "v_lshl_add_u32 v30, v27, 4, v30", f"v_or_b32 v{V_KLD}, v30, v48",
          f"v_lshl_or_b32 v{V_KSC}, v27, 3, v48",
          "v_mul_u32_u24 v30, 6144, v24",
          f"v_add3_u32 v{V_VLD}, v30, v{V_RD}, v48"]
    for sd, size in ((S_QK, HEADBYTES), (S_QV, HEADBYTES), (S_KS, 12288), (S_KZ, 12288), (S_VS, 4096), (S_VZ, 4096), (S_FLG, 32)):
        p += [f"s_mov_b32 s{sd+2}, {size}", f"s_mov_b32 s{sd+3}, 0x20000"]
    p += [f"s_mul_i32 s{S_PK0}, s{S_QB}, {STAGE}", f"s_add_u32 s{S_PK1}, s{S_PK0}, 6144", f"s_mov_b32 s{S_PV0}, s{S_PK0}",
          f"s_lshr_b32 s{S_PKS}, s{S_QB}, 1", f"s_mul_i32 s{S_PKS}, s{S_PKS}, 384", f"s_lshl_b32 s{S_PVS}, s{S_QB}, 6",
          f"s_lshl_b32 s24, s{S_WAVE}, 4", f"s_add_u32 s{S_PVS}, s{S_PVS}, s24",
          f"s_mul_i32 s24, s{S_HEAD}, {HEADBYTES}", f"s_mul_i32 s56, s{S_HEAD}, 12288", f"s_lshl_b32 s57, s{S_HEAD}, 12",
          f"s_lshl_b32 s58, s{S_HEAD}, 10", f"s_add_u32 s58, s58, {FLAG_OFF}",
          f"s_or_b32 s{S_RET}, s{S_QB}, s{S_WAVE}"]
    p += ["s_waitcnt lgkmcnt(0)"] + istamp("karg", True)
    def base(sd, lo, off): return [f"s_add_u32 s{sd}, s{lo}, s{off}", f"s_addc_u32 s{sd+1}, s{lo+1}, 0"]
    p += base(S_QK, 42, 24) + base(S_KS, 46, 56) + base(S_KZ, 48, 56)
    kl = [k_ld(0, 64, 32, "k0a"), k_ld(1, 80, 36, "k0b")]; vl = [v_ld(0, 96, 40, "v0a"), v_ld(1, 112, 44, "v0b")]
    for x in kl[1][:2]: x.tag = "k0a"
    for x in vl[1][:2]: x.tag = "v0a"
    if OPT["ksc"]:
        for x in kl[0][2:] + kl[1][2:]: x.tag = "kraw"
        for x in kl[1][:2]: x.tag = "k0b"
        p += kl[0][2:] + kl[1][2:] + kl[0][:2] + kl[1][:2]; kl[1] = []
    else: p += kl[0][2:] + kl[0][:2] + kl[1][:2]
    p += base(S_FLG, 18, 58) + base(S_VS, 50, 57) + base(S_VZ, 52, 57) + base(S_QV, 44, 24)
    p += [f"s_mul_i32 s59, s{S_HEAD}, 786432"] + base(S_OUT, 54, 59)
    p += [f"s_cmp_lg_u32 s{S_RET}, 0", "s_cbranch_scc1 L_notleader0"] + smem_flags() + ["L_notleader0:"]
    p += kl[1][2:]
    p += [f"s_add_u32 s24, s24, {WSOFF}"] * (1 if WSOFF else 0)
    srd(p, S_WS, 18, 19, 24, HEADBYTES)
    srd(p, S_Q, 40, 41, 59, 786432)
    p += [f"s_mov_b32 s{S_DBG}, s16", f"s_mov_b32 s{S_DBG+1}, s17", f"s_add_u32 s{S_PV1}, s{S_PK0}, 3072", f"s_add_u32 s{S_PV2}, s{S_PK0}, 6144"]
    p += [f"s_mov_b32 s{S_DBG+2}, 256", f"s_mov_b32 s{S_DBG+3}, 0x20000", f"s_lshl_b32 s{S_HOFF}, s{S_HEAD}, 3"]
    if OPT["touch"]:
        p += [f"s_buffer_load_dword s44, s[{S_WS}:{S_WS+3}], s{S_PK0}", f"s_buffer_load_dword s45, s[{S_FLG}:{S_FLG+3}], 0",
              f"s_mul_i32 s24, s{S_PK0}, 4", f"s_buffer_load_dword s46, s[{S_Q}:{S_Q+3}], s24"]
    p += [f"s_cmp_lg_u32 s{S_RET}, 0", "s_cbranch_scc1 L_notleader", "s_waitcnt lgkmcnt(0)", f"s_mov_b32 s{S_TP}, 1"]
    for i in range(8):
        p += [f"s_lshr_b32 s{S_PT+i}, s{S_PT+i}, 8", f"s_min_u32 s{S_PT+i}, s{S_PT+i}, 31", f"s_bitset1_b32 s{S_TP}, s{S_PT+i}"]
    p += [f"s_ff0_i32_b32 s{S_TP}, s{S_TP}", f"s_lshl_b32 s{S_TP}, s{S_TP}, 8", f"v_mov_b32 v{V_POLL}, s{S_TP}",
          "s_mov_b64 exec, 1", f"buffer_store_dword v{V_POLL}, off, s[{S_DBG}:{S_DBG+3}], s{S_HOFF} sc1 ;UNTRACKED", "s_mov_b64 exec, -1",
          "L_notleader:"]
    p += vl[0][2:] + vl[0][:2] + vl[1][:2] + istamp("iss", True)
    p += [f"s_mov_b32 s{S_OUT+2}, 786432", f"s_mov_b32 s{S_OUT+3}, 0x20000"]
    p += [f"s_lshl_b32 s24, s{S_WAVE}, 8", f"s_add_u32 s{S_HOFF}, s{S_HOFF}, s24"]
    p += ["v_mul_u32_u24 v30, 3072, v24", f"v_add_u32 v{V_DMA}, v30, v{V_RD}"]
    p += ["v_lshl_add_u32 v30, v24, 3, v26",
          "v_mul_u32_u24 v30, 384, v30",
          "v_lshlrev_b32 v31, 2, v29",
          "v_xor_b32 v31, v27, v31",
          "v_lshl_add_u32 v30, v31, 4, v30", f"v_or_b32 v{V_KST}, v30, v48",
          "v_lshlrev_b32 v30, 8, v24",
          "v_add_u32 v30, 12288, v30",
          "v_lshrrev_b32 v31, 4, v25", "v_lshl_add_u32 v30, v31, 10, v30", "v_and_b32 v31, 15, v25",
          "v_lshl_add_u32 v30, v31, 4, v30", f"v_or_b32 v{V_VST}, v30, v48"]
    p += [f"s_lshl_b32 s24, s{S_QB}, 2",
          f"v_lshl_add_u32 v{V_FLAG}, v0, 2, s24", f"v_cmp_lt_u32 vcc, 0, v0", "v_mov_b32 v30, 0x40000000", "s_nop 0",
          f"v_cndmask_b32 v{V_FLAG}, v{V_FLAG}, v30, vcc"]
    p += [f"s_mul_i32 s{S_DMK}, s{S_WAVE}, 3072", f"s_add_u32 s{S_DMK}, s{S_DMK}, 12288", f"s_add_u32 s{S_DMV}, s{S_DMK}, {STAGE}",
          f"s_add_u32 s24, s{S_QB}, 1", "s_and_b32 s24, s24, 7", f"s_mul_i32 s{S_GOFFK}, s24, {STAGE}", f"s_add_u32 s{S_GOFF}, s{S_GOFFK}, 12288",
          f"s_mov_b32 s{S_RK}, {A2}", f"s_mov_b32 s{S_RV}, {B1}", f"v_add_u32 v{V_RD}, {B0}, v{V_RD}",
          f"s_mov_b32 s{S_CS}, 0x{f32bits(CSCALE):08x}", f"s_mov_b32 s{S_MASK}, 0xffff0000",
          f"s_mov_b32 s{S_BUDGET}, 100000"] + ([f"s_mov_b32 s{S_TAG+1}, 0"] if OPT["stamp"] else [])
    p += ["v_and_b32 v26, 15, v25", "v_lshrrev_b32 v27, 4, v25", "v_bfe_u32 v28, v25, 1, 3",
          "v_xor_b32 v29, v27, v28", "v_mul_u32_u24 v30, 384, v26", f"v_lshl_add_u32 v{V_RDK[0]}, v29, 4, v30",
          f"v_xor_b32 v{V_RDK[1]}, 64, v{V_RDK[0]}"]
    p += [f"s_mul_i32 s{S_QL}, s{S_WAVE}, 6144", f"s_add_u32 s{S_QL}, s{S_QL}, {B1}",
          "v_lshrrev_b32 v29, 1, v27", "v_xor_b32 v29, v29, v28", "v_lshl_add_u32 v31, v29, 4, v30",
          "v_and_b32 v29, 1, v27", "v_lshl_add_u32 v31, v29, 3, v31"]
    for kk in range(4):
        p += [f"v_xor_b32 v{VQR[kk]}, {32*kk}, v31", f"v_add_u32 v{VQR[kk]}, s{S_QL}, v{VQR[kk]}"]
    p += [f"s_lshl_b32 s24, s{S_QB}, 2", f"s_add_u32 s24, s24, s{S_WAVE}", f"s_mul_i32 s24, s24, {STAGE}"]
    for b in range(6):
        p += [f"v_add_u32 v26, {64*b}, v25", "v_mul_u32_u24 v27, 2731, v26", "v_lshrrev_b32 v27, 17, v27",
              "v_and_b32 v27, 7, v27", "v_xor_b32 v26, v26, v27", f"v_lshlrev_b32 v{VQD+b}, 4, v26", f"v_add_u32 v{VQD+b}, s24, v{VQD+b}"]
    for q in range(4): p.append(f"v_mov_b32 v{V_L[q]}, 0")
    def own_k(b):
        l = []
        for j in range(4):
            l += k_st(j, b, "kst")
            va = V_KST if j == 0 else V_KA + (j & 1)
            l += ["s_mov_b64 exec, s[62:63]", DS("w", f"ds_write_b128 v{va}, v[{b+4*j}:{b+4*j+3}] offset:{j*768}"), "s_mov_b64 exec, -1"]
        return l
    def own_v(b):
        l = [x for e in range(4) for x in v_st(e, b, "vst")]
        l += ["s_mov_b64 exec, s[62:63]"] + [DS("w", f"ds_write_b128 v{V_VST}, v[{b+4*e}:{b+4*e+3}] offset:{STAGE - 12288 + e*3072}") for e in range(4)] + ["s_mov_b64 exec, -1"]
        return l
    p += ["s_mov_b32 s62, -1", "s_mov_b32 s63, 0xffff"]
    qa = OPT["qa"]
    p += istamp("pre-k0a", True) + [W("k0a")] + istamp("k0a", True) + vl[1][2:] + k_cv(0, 64, 32, 64) + [W("k0b")] + istamp("k0b", True) + k_cv(1, 80, 36, 64) + own_k(64)
    qb_, qc = OPT["qb"], OPT["qc"]
    p += tag_load() + with_nop(q_dma(list(range(0, qa)))) + istamp("kst", True)
    p += [W("tag")] + tag_check() + istamp("tag", True)
    p += ["s_waitcnt lgkmcnt(0)", "s_barrier"] + flag_post() + tag_get() + with_nop(q_dma(list(range(qa, qb_)))) + istamp("postK", True)
    p += v_cv(0, 96, 40, 96) + [LG("tg")] + tag_use() + v_cv(1, 112, 44, 96) + own_v(96)
    p += with_nop(q_dma(list(range(qb_, qc)))) + istamp("vst", True)
    p += k_adv() + v_adv()
    if OPT["pf2"]:
        p += [f"s_mov_b32 s{S_DBG}, s60", f"s_mov_b32 s{S_DBG+1}, s61", f"s_mov_b32 s{S_DBG+2}, L_slow-{NAME}_kernel",
              "s_lshr_b32 s24, s2, 3", f"s_mul_i32 s{S_HOFF}, s24, 43", f"s_lshr_b32 s{S_HOFF}, s{S_HOFF}, 7",
              f"s_mul_i32 s{S_RET}, s{S_HOFF}, 3", f"s_sub_u32 s24, s24, s{S_RET}", "s_lshl_b32 s24, s24, 10",
              f"s_mul_i32 s{S_HOFF}, s{S_HOFF}, 12288", f"s_add_u32 s{S_HOFF}, s{S_HOFF}, s24"]
    KF = 144
    for f in range(12):
        s, tb = kfrag(f)
        p.append(DS("kf", f"ds_read_b128 v[{KF+4*f}:{KF+4*f+3}], v{V_RDK[s&1]} offset:{tb*6144 + (s>>1)*128}"))
    ps = len(POLLSITES); POLLSITES.append(ps)
    if OPT["w0poll"]: p += [f"s_cmp_lg_u32 s{S_WAVE}, 0", f"s_cbranch_scc1 L_pollok{ps}"]
    p += smem_flags() + ["s_waitcnt lgkmcnt(0)"] + smem_reduce() + [f"s_cmp_ge_u32 s{S_PT}, 16", f"s_cbranch_scc1 L_pollslow{ps}", f"L_pollok{ps}:",
          f"s_add_u32 s{S_NEED}, s{S_NEED}, 1"] + ["s_barrier"] * OPT["w0poll"] + istamp("pollK", True)
    p += with_nop(dma_tile("k", 1, True) + q_dma(list(range(qc, 18)))) + istamp("dmaK", True)
    def qk0(qb):
        l = []
        for f in sorted(range(12), key=lambda f: kfrag(f)[::-1]):
            s, tb = kfrag(f)
            d = vr(Sq(0, qb, tb), 4)
            l.append(f"{MF} {d}, v[{KF+4*f}:{KF+4*f+3}], {Qf(qb,s)}, {'0' if s == 0 else d}")
        return l
    p += [W(("q", 0))] + istamp("q0", True) + q_frags(0) + ["s_waitcnt lgkmcnt(0)"] + qk0(0)
    p += [W("vst"), "s_barrier"] + flag_post() + istamp("postV", True)
    p += with_nop(dma_tile("k", 2, True) + dma_tile("k", 3, True))
    p += [W(("q", 1))] + istamp("q1", True) + q_frags(1) + ["s_waitcnt lgkmcnt(0)"] + qk0(1) + with_nop(q_dma(list(range(18, 24))))
    p += rowmax2(0, (0, 1), (V_CT, V_CT + 2)) + addneg(0, 0) + addneg(0, 1) + softmax_part(0, 0)
    sp = softmax_part
    g1 = qk_half(0, ws=(1,))
    g2 = rebase(qk_half(1), V_RDK, A1 - A0)
    g3 = pv_unchained(0, True)
    g4 = rebase(pv_unchained(1), [V_RD], B1 - B0)
    g5 = rebase(qk_half(2, True), V_RDK, A0 - A1) + rebase(qk_half(3), V_RDK, A1 - A0)
    gi3 = rebase(qk_full(4), V_RDK, A2 - A1)
    gi4 = rebase(pv_seq(2, True), [V_RD], B0 - B1) + rebase(pv_seq(3), [V_RD], B1 - B0)
    p += istamp("pre-dk1", True) + [W(("dk", 1)), "s_barrier"] + [rd_op(i, j, g1[i]) for i in range(2) for j in range(2)]
    p += [LG(("fr", 0), ("fr", 1))]
    p += gen_seg("S1", g1, g2[:2], [], [(15, [("dk", 3)])], [("spollld", 17)], extra=[Stream([W(("q", 2))] + q_frags(2) + [LG(("qf", 2))], 0, 12)])
    p += gen_seg("S2", g2, g3[:2], [(sp(0, 1), 3, 47)], [], [("spollchk", 5, 13), ("ldn", "ka", 36, 47)], [V_(1, 2, 3) + (14, 35)], vmgap=2)
    p += gen_seg("S3", g3, g4[:2], [(sp(1, 0), 0, 47)], [(15, [("dv", 1)]), (39, [("dv", 3)])], [("ldn", "kb", 0, 22), ("ldn", "va", 23, 46, "raw")])
    p += gen_seg("S4", g4, g5[:2], [(sp(1, 1), 0, 21)], [], [], extra=[Stream([W(("q", 3))] + q_frags(3), 22, 46)])
    p += istamp("pre-S5", True) + ["s_waitcnt lgkmcnt(0)", "s_barrier"]
    p += gen_seg("S5", g5, gi3[:2], [(rowmax2(2, (2, 3), (V_T, V_T + 2)), 27, 45), (addneg(2, 0) + addneg(2, 1) + sp(2, 0) + addneg(2, 2) + addneg(2, 3) + sp(2, 1), 46, 95)],
                 [(GBAR + 8, [("dk", 5)])], [("cv", "ka", 0, 99, 0, 34), ("cv", "kb", 0, 99, 35, 72), ("kst", 0, 73), ("kst", 1, 77), ("kst", 2, 89), ("kst", 3, 93),
                 ("ldn", "va", 36, 60, "sc")], [K_(4, 5) + (1, 24)])
    p += gen_seg("i3", gi3, gi4[:2], [(sp(3, 0) + sp(3, 1), 0, 54), (sp(4, 0), 55, 95)], [(OPT["pb"], []), (GBAR, [])],
                 [("ld", "vb", 0, 22), ("post", "kst", 0), ("cv", "va", 0, 99, 10, 95)], [K_(6, 7) + V_(4, 5) + (24, 90)])
    p += [f"s_mov_b32 s{S_CNT}, 7"]
    p += gen_seg("i4", gi4, seg_groups(5)[:2], [(sp(4, 1) + sp(5, 0), 0, 94)], [(47, []), (GBAR + 8, [("dk", 7)])],
                 [("ld", "ka", 0, 30), ("cv", "vb", 0, 99, 30, 94), ("step", "q", 30, 70), ("pollld", OPT["pl4"], OPT["pl4"] + 8)], [V_(6, 7) + (52, 84)],
                 endops=["s_nop 0", "s_branch L_join"])
    p += [".p2align 6", "L_loop:"]
    pro_ = p
    first57, tail = gen_tail()
    bodyA = []
    for k in (1, 2, 3, 4, 5, 6, 7, 0):
        if k == 5: bodyA.append("L_join:"); jpos = len(bodyA)
        eo = [f"s_sub_u32 s{S_CNT}, s{S_CNT}, 1", f"s_cmp_lg_u32 s{S_CNT}, 0", "s_cbranch_scc1 L_loop"] if k == 0 else ()
        t, d = steady(k)
        bodyA += gen_iter(16 + k, t, d, name=f"k{k}", endops=eo)
    assert [g.rd for g in first57] == [g.rd for g in seg_groups(17)[:2]]
    tailc = tail + ["L_fin:"]
    resolve(pro_ + bodyA[jpos:] + bodyA + bodyA + tailc)
    if OPT["cap"]: pro_ = pace(pro_, OPT["cap"] / 4)
    P_ = Prog()
    P_.extend(fin(pro_))
    a0 = len(P_.ins); P_.extend(fin(bodyA)); a1 = len(P_.ins)
    P_.extend(fin(tailc))
    p = P_
    if OPT["stamp"]:
        p("s_waitcnt vmcnt(0) lgkmcnt(0)")
        p.extend(istamp("end"))
        p("s_waitcnt lgkmcnt(0)")
        p.extend(istamp("end2"))
        p(f"v_writelane_b32 v{V_STAMP}, s{S_TAG+1}, 63")
        p("s_add_u32 s8, s18, 0xfa00000"); p("s_addc_u32 s9, s19, 0"); p("s_mov_b32 s10, 1048576"); p("s_mov_b32 s11, 0x20000")
        p("s_lshl_b32 s24, s2, 2"); p(f"s_add_u32 s24, s24, s{S_WAVE}"); p("s_lshl_b32 s24, s24, 8")
        p(f"v_bfe_u32 v32, v{V_DMA}, 4, 6"); p("v_lshlrev_b32 v32, 2, v32")
        p(f"buffer_store_dword v{V_STAMP}, v32, s[8:11], s24 offen")
        open(sys.argv[1] + ".stamps", "w").write("\n".join(STAMPS))
    if OPT["calx"]:
        p("s_waitcnt vmcnt(0)")
        p("L_cal:")
        p("s_memrealtime s[40:41]")
        p("s_waitcnt lgkmcnt(0)")
        p("s_sub_u32 s40, s40, s100")
        p("s_cmp_lt_u32 s40, 10000")
        p("s_cbranch_scc1 L_cal")
    p("L_done:")
    p("s_endpgm")
    main_end0 = len(p.ins)
    for ps in POLLSITES: p.extend(poll_slow(ps))
    p.extend(tag_slow())
    main_end = len(p.ins)
    p.extend(gen_slow())
    slow_end = len(p.ins)
    ji = [i for i, x in enumerate(p.ins) if x.text == "L_join:"][0]
    lin = p.ins[:a0] + p.ins[ji:a1] + p.ins[a0:main_end0]
    sl = [i for i, x in enumerate(p.ins) if x.text == "L_slowloop:"][0]
    bi = [i for i, x in enumerate(p.ins) if x.text == "s_cbranch_scc1 L_slowloop"][0]
    probs = check_hazards(lin, "main") + check_hazards(p.ins[main_end:bi+1] + p.ins[sl:slow_end], "slow") + check_hazards(p.ins[main_end0:main_end], "aux")
    for x in probs: print(x, file=sys.stderr)
    return p

def kd(name, vgpr, sgpr, accum):
    return f""".amdhsa_kernel {name}
  .amdhsa_next_free_vgpr {vgpr}
  .amdhsa_next_free_sgpr {sgpr}
  .amdhsa_accum_offset {accum}
  .amdhsa_group_segment_fixed_size 0
  .amdhsa_kernarg_size 80
  .amdhsa_user_sgpr_count 2
  .amdhsa_user_sgpr_kernarg_segment_ptr 1
  .amdhsa_system_sgpr_workgroup_id_x 1
.end_amdhsa_kernel
"""
out = HEADER
out += f"; @launch grid=(256,1,1) block=(256,1,1) lds={LDS_BYTES}\n"
out += '.amdgcn_target "amdgcn-amd-amdhsa--gfx950"\n.text\n'
out += f".globl {NAME}_kernel\n.p2align 8\n.type {NAME}_kernel,@function\n" + gen_main().text()
out += '.section .rodata,"a"\n.p2align 6\n' + kd(NAME + "_kernel", 512, 102, 256)
open(sys.argv[1], "w").write(out)
```

```python
import sys, math
from asmlib import *

NAME = "standalone__kv_cache_quant_int4_int2_kv_with_per_channel_or_per_token_scales__prompt"
OPT = dict(stamp=0, vmgap=4, sb=6, sa=6, ahead=4, thr=64, pf2=1, calx="", qa=6, plv=2, plk=10, ckv=1, ckk=1, tden=24, touch=0, w0poll=0, cap=48, qb=6, q3e=1, ksc=0, few=1, qc=15, pb=39, pl4=40, l2=0, k1e=0, greedy=0, g3n=3, pre=0, own1=1)
for a in sys.argv[2:]:
    k, v = a.split("="); OPT[k] = int(v) if v.lstrip("-").isdigit() else v
NS = 6
STAGE = 24576
HEADBYTES = 64 * STAGE
RING = NS * STAGE
LDS_BYTES = RING + 128
A0, B0, A1, B1, A2, B2 = [i * STAGE for i in range(6)]
CSCALE = (192.0 ** -0.5) * math.log2(math.e)
HEADER = open("cdna_kernels/" + NAME + ".s.ref").read().split("; Override launch geometry")[0]
MF = "v_mfma_f32_16x16x32_bf16"

V_FVAL = 0; V_RD = 1; V_RDK = [2, 3]; V_DMA = 4; V_L = [5, 6, 7, 8]
V_KLD = 9; V_KSC = 10; V_KST = 11; V_VLD = 12; V_FLAG = 13; V_RD2 = 14
V_T = 16; NTP = 2
V_VST = 20; V_STAMP = 21
V_FR = 24; NFS = 6
V_CT = 48; V_VO = 52; V_RS = [56, 60]; BX = 224; BY = 240; BZ = 144
V_POLL = V_VO; V_KA = V_VO + 2
UNIT = [64, 80, 160, 176]; HI = [96, 112]
VQD = 136; VQR = [22, 23, 142, 143]
def Sq(t, sl, tb): return (UNIT[t % 4] if tb == 0 else HI[t % 2]) + 4 * sl
def P(t, sl): return UNIT[t % 4] + 4 * sl
def NEGM(qb): return 128 + 4 * qb
def O(qb, db): return (qb * 12 + db) * 4
def Qf(qb, s, half=None):
    i = qb * 6 + s
    base, f = (192 + 4 * i, ar) if i < 16 else (192 + 4 * (i - 16), vr)
    return f(base, 4) if half is None else f(base + 2 * half, 2)
def FR(f): return vr(V_FR + 4 * (f % NFS), 4)

S_RDELTA = 3; S_WS = 4; S_Q = 8; S_OUT = 12; S_FLG = 20
S_WAVE = 25; S_DMK = 26; S_GOFF = 27; S_RK = 28; S_TMP = 29; S_RV = 30; S_CNT = 31; S_GOFFK = 32
S_PK0 = 33; S_PK1 = 34; S_PV0 = 35; S_PKS = 36; S_PVS = 37; S_CS = 38; S_RET = 39; S_PV1 = 16; S_PV2 = 17
S_QL = 40; S_QS = 41; S_TAG = 42; S_FOFF = 44; S_XCC = 45; S_OWN = 46
S_PT = 48; S_DMV = 56; S_TK = 57; S_TV = 58; S_TP = 59
S_QK = 64; S_QV = 68; S_KS = 72; S_KZ = 76; S_VS = 80; S_VZ = 84; S_DBG = 88
S_NEED = 92; S_HOFF = 93; S_HEAD = 94; S_QB = 95; S_BUDGET = 96; S_MASK = 97
WSOFF = OPT.get("wsoff", 0) << 20
FLAG_OFF = WSOFF + (49 << 20)
SC1 = " sc1"; NTKV = " nt"; NTQ = " nt"; STF = " sc1"; OF = " sc0 sc1"

STAMPS = []
def istamp(name, force=False):
    if OPT["calx"] == name: return ["s_memrealtime s[100:101]"]
    if OPT["stamp"] not in (6, 8): return []
    if OPT["stamp"] == 8 and name.startswith("k") and not force: return []
    if OPT["few"] and force and name not in ("karg", "k0b", "vst", "tag", "post", "poll", "pre-dk1"): return []
    if OPT["stamp"] != 8 and force: return []
    STAMPS.append(name)
    return ["s_waitcnt lgkmcnt(0)"] * (1 if force else 0) + [f"v_mov_b32_dpp v{V_STAMP}, v{V_STAMP} wave_shr:1 row_mask:0xf bank_mask:0xf", f"v_writelane_b32 v{V_STAMP}, s98, 0",
            ("s_memtime" if OPT["stamp"] == 6 else "s_memrealtime") + " s[98:99]"]

def order_stamps():
    l = list(STAMPS); out = []
    for n in l:
        if "." in n: continue
        out.append(n); out += [m for m in l if m.startswith(n + ".")]
    return out
class W:
    def __init__(self, *tags): self.tags = tags
class VM:
    def __init__(self, tag, text): self.tag = tag; self.text = text
class LG:
    def __init__(self, *tags): self.tags = tags
class DS:
    def __init__(self, tag, text): self.tag = tag; self.text = text

def mode_of(t):
    return {0: "a", 1: "a", 2: "b", 3: "b", 58: "a", 59: "a", 60: "a", 61: "b", 62: "b", 63: "b"}.get(t, "f")
def slot_q(t, sl):
    m = mode_of(t)
    return sl if m == "f" else (sl & 1) + (0 if m == "a" else 2)
def softmax_part(t, half):
    flat = []; prev = None
    for gp in range(8):
        sl = 2 * half + gp // 4; pi = gp % 4; l = V_L[slot_q(t, sl)]
        t0 = V_T + 2 * (gp % NTP); t1 = t0 + 1
        src = Sq(t, sl, pi >> 1) + 2 * (pi & 1)
        E = [f"v_exp_f32 v{t0}, v{src}", f"v_exp_f32 v{t1}, v{src+1}"]
        A = [f"v_add_f32 v{l}, v{l}, v{t0}", f"v_add_f32 v{l}, v{l}, v{t1}"]
        C = [f"v_cvt_pk_bf16_f32 v{P(t,sl)+pi}, v{t0}, v{t1}"]
        flat += E if prev is None else [E[0]] + prev[0] + [E[1]] + prev[1]
        prev = (A, C)
    return flat + prev[0] + prev[1]

class Grp:
    def __init__(self, rd, mf): self.rd = rd; self.mf = mf; self.reb = []
def qk_tile(t, w, slots, czero=False):
    gs = []
    for gi in range(6):
        s0 = 2 * (gi >> 1); tb = gi & 1
        rd = [(V_RDK[j], w * 12288 + tb * 6144 + (s0 >> 1) * 128) for j in range(2)]
        mf = []
        for sl, qb in slots:
            d = vr(Sq(t, sl, tb), 4)
            mf += [(0, d, Qf(qb, s0), (("0" if czero else vr(NEGM(qb), 4)) if s0 == 0 else d)), (1, d, Qf(qb, s0 + 1), d)]
        gs.append(Grp(rd, mf))
    return gs
def qk_full(t): return [g for w in range(2) for g in qk_tile(t + w, w, [(q, q) for q in range(4)])]
def qk_half(t, czero=False, ws=(0, 1)):
    return [g for w in ws for g in qk_tile(t, w, [(2 * w + j, slot_q(t, j)) for j in range(2)], czero)]
def pv_grp(t, db, first=False, va=V_RD):
    m = mode_of(t); mf = []
    for qb in (range(4) if m == "f" else [slot_q(t, 0), slot_q(t, 1)]):
        d = ar(O(qb, db), 4)
        for w in range(2):
            b = P(t + w, qb) if m == "f" else P(t, 2 * w + (qb & 1))
            mf.append((w, d, vr(b, 4), "0" if (first and w == 0) else d))
    return Grp([(va, w * 12288 + db * 1024) for w in range(2)], mf)
def pv_seq(t, first=False): return [pv_grp(t, db, first) for db in range(12)]
def pv_unchained(t, first=False):
    gs = []
    for w in range(2):
        for d0 in range(0, 12, 2):
            mf = []
            for j in range(2):
                qb = slot_q(t, j)
                for e in range(2):
                    d = ar(O(qb, d0 + e), 4)
                    mf.append((e, d, vr(P(t, 2 * w + j), 4), "0" if (first and w == 0) else d))
            gs.append(Grp([(V_RD, w * 12288 + (d0 + e) * 1024) for e in range(2)], mf))
    return gs
def rebase(gs, regs, delta):
    op = "v_add_u32" if delta >= 0 else "v_subrev_u32"
    gs[0].reb += [f"{op} v{r}, {abs(delta)}, v{r}" for r in regs]
    return gs
def rd_op(gi, j, g):
    f = 2 * gi + j
    return DS(("fr", f % NFS), f"ds_read_b128 {FR(f)}, v{g.rd[j][0]} offset:{g.rd[j][1]}")

def dma_tile(part, pos, peel=False):
    dm, go, tmp = (S_DMK, S_GOFFK, S_TK) if part == "k" else (S_DMV, S_GOFF, S_TV)
    l = [f"s_mov_b32 m0, s{dm}"]
    for j in range(3):
        l.append(VM(("d" + part, pos % 8), f"buffer_load_dwordx4 v{V_DMA}, s[{S_WS}:{S_WS+3}], s{go} offen offset:{j*1024}{SC1} lds"))
    if peel and pos < 7:
        l += [f"s_add_u32 s{go}, s{go}, {STAGE}", f"s_sub_u32 s{tmp}, s{go}, {8*STAGE}", f"s_min_u32 s{go}, s{go}, s{tmp}"]
    elif peel and pos == 7:
        l += [f"s_mov_b32 s{go}, {8*STAGE + (0 if part == 'k' else 12288)}"]
    else:
        l += [f"s_add_u32 s{go}, s{go}, {STAGE}"]
    if pos % 2 == 0: l += [f"s_add_u32 s{dm}, s{dm}, 12288"]
    else: l += [f"s_add_u32 s{dm}, s{dm}, {2*STAGE - 12288}", f"s_sub_u32 s{tmp}, s{dm}, {RING}", f"s_min_u32 s{dm}, s{dm}, s{tmp}"]
    return l
QOFF = [STAGE, 0, 2 * STAGE, STAGE]
def q_dma(lst):
    l = []
    for i in lst:
        a, b = divmod(i, 6)
        l += [f"s_mov_b32 s{S_QS}, {a*6144}"] * (1 if (b == 0 or i == lst[0]) else 0)
        l += [f"s_add_u32 m0, s{S_QL}, {QOFF[a] + b*1024}",
              VM(("q", a), f"buffer_load_dwordx4 v{VQD+b}, s[{S_Q}:{S_Q+3}], s{S_QS} offen{NTQ} lds")]
    return l
def q_frags(qb):
    l = []
    for s in range(6):
        for h in range(2):
            sp = s + 6 * h
            l.append(DS(("qf", qb), f"ds_read_b64 {Qf(qb,s,h)}, v{VQR[sp&3]} offset:{QOFF[qb] + (sp>>2)*128}"))
    return l
def with_nop(l):
    out = []
    for i, x in enumerate(l):
        out.append(x)
        if isinstance(x, str) and " m0," in x and i + 1 < len(l) and isinstance(l[i + 1], VM): out.append("s_nop 0")
    return out
def rd_step(kind):
    cur, regs = (S_RK, V_RDK) if kind == "q" else (S_RV, [V_RD])
    return [f"s_add_u32 s{S_TMP}, s{cur}, {2*STAGE}", f"s_sub_u32 s{S_RDELTA}, s{S_TMP}, {RING}",
            f"s_min_u32 s{S_TMP}, s{S_TMP}, s{S_RDELTA}", f"s_sub_u32 s{S_RDELTA}, s{S_TMP}, s{cur}", f"s_mov_b32 s{cur}, s{S_TMP}"] + \
           [f"v_add_u32 v{r}, s{S_RDELTA}, v{r}" for r in regs]

def k_ld(h, buf, rs, tag, scal_first=True):
    sc = [VM(tag, f"buffer_load_dwordx2 v[{rs+2*i}:{rs+2*i+1}], v{V_KSC}, s[{srd_}:{srd_+3}], s{S_PKS} offen offset:{192*h}")
          for i, srd_ in enumerate((S_KS, S_KZ))]
    l = []
    for j in range(4):
        so = S_PK0 if j < 2 else S_PK1
        l.append(VM(tag, f"buffer_load_dwordx4 v[{buf+4*j}:{buf+4*j+3}], v{V_KLD}, s[{S_QK}:{S_QK+3}], s{so} offen offset:{(j&1)*1536+384*h}{NTKV}"))
    return sc + l if scal_first else l + sc
def v_ld(h, buf, rs, tag, scal_first=True):
    sc = [VM(tag, f"buffer_load_dwordx2 v[{rs+2*i}:{rs+2*i+1}], off, s[{srd_}:{srd_+3}], s{S_PVS} offset:{8*h}")
          for i, srd_ in enumerate((S_VS, S_VZ))]
    l = []
    for r in range(4):
        so = S_PV0 if h == 0 else S_PV1
        l.append(VM(tag, f"buffer_load_dwordx4 v[{buf+4*r}:{buf+4*r+3}], v{V_VLD}, s[{S_QV}:{S_QV+3}], s{so} offen offset:{r*768}{NTKV}"))
    return sc + l if scal_first else l + sc
def k_cv(h, buf, rs, out):
    l = []
    s0, s1, z0, z1 = V_CT, V_CT + 1, V_CT + 2, V_CT + 3
    for i in range(2):
        l += [f"v_lshlrev_b32 v{s0}, 16, v{rs+i}", f"v_and_b32 v{s1}, s{S_MASK}, v{rs+i}",
              f"v_lshlrev_b32 v{z0}, 16, v{rs+2+i}", f"v_and_b32 v{z1}, s{S_MASK}, v{rs+2+i}",
              f"v_mul_f32 v{s0}, s{S_CS}, v{s0}", f"v_mul_f32 v{s1}, s{S_CS}, v{s1}",
              f"v_mul_f32_e64 v{z0}, -v{z0}, v{s0}", f"v_mul_f32_e64 v{z1}, -v{z1}, v{s1}"]
        for j in range(4):
            a = buf + 4 * j + 2 * i; b = a + 1
            l += [f"v_cvt_f32_i32 v{a}, v{a}", f"v_cvt_f32_i32 v{b}, v{b}",
                  f"v_fma_f32 v{a}, v{a}, v{s0}, v{z0}", f"v_fma_f32 v{b}, v{b}, v{s1}, v{z1}",
                  f"v_cvt_pk_bf16_f32 v{out+4*j+2*h+i}, v{a}, v{b}"]
    return l
def k_st(j, out, tag="kst", STF=STF):
    va = V_KST; g = []
    if j:
        va = V_KA + (j & 1); g.append(f"v_xor_b32 v{va}, {16*j}, v{V_KST}")
    g.append(VM(tag, f"buffer_store_dwordx4 v[{out+4*j}:{out+4*j+3}], v{va}, s[{S_WS}:{S_WS+3}], s{S_PK0} offen offset:{j*768}{STF}"))
    return g
def v_cv(h, buf, rs, out):
    l = []
    s0, s1, z0, z1 = V_CT, V_CT + 1, V_CT + 2, V_CT + 3
    for i in range(2):
        l += [f"v_lshlrev_b32 v{s0}, 16, v{rs+i}", f"v_and_b32 v{s1}, s{S_MASK}, v{rs+i}",
              f"v_lshlrev_b32 v{z0}, 16, v{rs+2+i}", f"v_and_b32 v{z1}, s{S_MASK}, v{rs+2+i}",
              f"v_mul_f32_e64 v{z0}, -v{z0}, v{s0}", f"v_mul_f32_e64 v{z1}, -v{z1}, v{s1}"]
        for e in range(4):
            a = buf + 4 * (2 * i) + e; b = buf + 4 * (2 * i + 1) + e
            l += [f"v_cvt_f32_i32 v{a}, v{a}", f"v_cvt_f32_i32 v{b}, v{b}",
                  f"v_fma_f32 v{a}, v{a}, v{s0}, v{z0}", f"v_fma_f32 v{b}, v{b}, v{s1}, v{z1}"]
    for e, i in [(0, 0), (1, 0), (0, 1), (1, 1), (2, 0), (2, 1), (3, 0), (3, 1)]:
        l.append(f"v_cvt_pk_bf16_f32 v{out+4*e+2*h+i}, v{buf+8*i+e}, v{buf+8*i+4+e}")
    return l
def v_st(e, out, tag="vst", STF=STF):
    so = S_PV0 if e < 2 else S_PV2
    return [VM(tag, f"buffer_store_dwordx4 v[{out+4*e}:{out+4*e+3}], v{V_VST}, s[{S_WS}:{S_WS+3}], s{so} offen offset:{(e&1)*3072}{STF}")]
def k_adv():
    return [f"s_add_u32 s{S_PK0}, s{S_PK0}, {8*STAGE}", f"s_add_u32 s{S_PK1}, s{S_PK1}, {8*STAGE}", f"s_add_u32 s{S_PKS}, s{S_PKS}, {4*384}"]
def v_adv():
    return [f"s_add_u32 s{r}, s{r}, {8*STAGE}" for r in (S_PV0, S_PV1, S_PV2)] + [f"s_add_u32 s{S_PVS}, s{S_PVS}, {8*64}"]
HT = {"ka": (k_ld, k_cv, 0, BX, V_RS[0], BX), "kb": (k_ld, k_cv, 1, BY, V_RS[1], BX),
      "va": (v_ld, v_cv, 0, BZ, V_RS[0], BZ), "vb": (v_ld, v_cv, 1, BY, V_RS[1], BZ)}
def flag_post():
    return [f"v_add_u32 v{V_FVAL}, 1, v{V_FVAL}"] + [
            VM("flag", f"buffer_store_dword v{V_FVAL}, v{V_FLAG}, s[{S_FLG}:{S_FLG+3}], 0 offen")] * OPT["l2"] + [
            VM("flag", f"buffer_store_dword v{V_FVAL}, v{V_FLAG}, s[{S_FLG}:{S_FLG+3}], 0 offen offset:32 sc1")]
def poll_addr():
    return [f"v_bfe_u32 v{V_POLL+1}, v{V_DMA}, 4, 6", f"v_lshlrev_b32 v{V_POLL+1}, 2, v{V_POLL+1}"]
def poll_load():
    return poll_addr() + [VM("poll", f"buffer_load_dword v{V_POLL}, v{V_POLL+1}, s[{S_FLG}:{S_FLG+3}], s{S_FOFF} offen sc1")]
def poll_test():
    return [f"v_subrev_u32 v{V_POLL}, s{S_NEED}, v{V_POLL}", f"v_cmp_lt_u32 vcc, 15, v{V_POLL}", "s_nop 0", f"s_and_b32 s{S_TP}, vcc_lo, 0xff"]
def smem_flags():
    return [f"s_buffer_load_dwordx8 s[{S_PT}:{S_PT+7}], s[{S_FLG}:{S_FLG+3}], s{S_FOFF} glc"]
def smem_reduce():
    return [f"s_sub_u32 s{S_PT+i}, s{S_PT+i}, s{S_NEED}" for i in range(8)] + [f"s_max_u32 s{S_PT}, s{S_PT}, s{S_PT+i}" for i in range(1, 8)]
def smem_test():
    return smem_flags() + ["s_waitcnt lgkmcnt(0)"] + smem_reduce() + [f"s_cmp_lt_u32 s{S_PT}, 16"]
def poll_slow(site):
    l = [f"L_pollslow{site}:"] + ([f"s_add_u32 s{S_TAG+1}, s{S_TAG+1}, {1 << (6 * site)}"] if OPT["stamp"] else [])
    l += [f"s_mov_b32 s{S_TP}, {60 if site == 0 else 200}", f"L_pollsm{site}:"] + smem_test() + [f"s_cbranch_scc1 L_pollok{site}",
          f"s_sub_u32 s{S_TP}, s{S_TP}, 1", f"s_cbranch_scc1 L_pollvec{site}", "s_sleep 1", f"s_branch L_pollsm{site}"]
    l += [f"L_pollvec{site}:"] + poll_addr() + [
            f"s_sub_u32 s{S_BUDGET}, s{S_BUDGET}, 1",
            f"s_cbranch_scc1 L_pollgiveup{site}",
            "s_sleep 2",
            f"buffer_load_dword v{V_POLL}, v{V_POLL+1}, s[{S_FLG}:{S_FLG+3}], s{S_FOFF} offen sc1",
            "s_waitcnt vmcnt(0)"]
    if site == 0 and OPT["l2"]:
        l += [f"s_cmp_lg_u32 s{S_FOFF}, 0", "s_cbranch_scc1 L_nomix",
              f"v_xor_b32 v{V_POLL+1}, s{S_NEED}, v{V_POLL}", f"v_lshrrev_b32 v{V_POLL+1}, 5, v{V_POLL+1}", f"v_add_u32 v{V_POLL+1}, -1, v{V_POLL+1}",
              f"v_cmp_gt_u32 vcc, 31, v{V_POLL+1}", "s_nop 1", f"s_and_b32 s{S_TP}, vcc_lo, 0xff00", "s_cbranch_scc0 L_nomix"]
        l += fin([x for j in range(4) for x in k_st(j, BX)] + [x for e in range(4) for x in v_st(e, 112)])
        l += ["s_waitcnt vmcnt(0)", "s_barrier", f"s_and_b32 s{S_NEED}, s{S_NEED}, 0xfffffc00", f"s_add_u32 s{S_NEED}, s{S_NEED}, {16 << 5}",
              f"v_mov_b32 v{V_FVAL}, s{S_NEED}", f"s_add_u32 s{S_NEED}, s{S_NEED}, 1", f"s_mov_b32 s{S_FOFF}, 32"] + fin(flag_post()) + ["s_branch L_pollvec0", "L_nomix:"]
    l += poll_test() + [
            f"s_cbranch_scc1 L_pollvec{site}",
            f"s_branch L_pollok{site}",
            f"L_pollgiveup{site}:",
            f"s_mov_b32 s{S_BUDGET}, 0",
            f"s_branch L_pollok{site}"]
    return l
def tag_load():
    return [VM("tag", f"buffer_load_dword v{V_FVAL}, off, s[{S_DBG}:{S_DBG+3}], s{S_HOFF} sc1")]
def tag_check():
    return [f"s_cmp_lg_u32 s{S_WAVE}, 0", "s_cbranch_scc1 L_tagdone",
            f"v_readfirstlane_b32 s{S_TAG}, v{V_FVAL}", f"s_mov_b32 s{S_RET}, 100",
            "s_waitcnt lgkmcnt(0)", f"s_and_b32 s{S_OWN}, s{S_OWN}, 0xfffffc00",
            "L_tagretry:", f"s_cmp_eq_u32 s{S_TAG}, s{S_OWN}", f"s_cselect_b32 s{S_TAG}, 0, s{S_TAG}", f"s_cmp_lg_u32 s{S_TAG}, 0", "s_cbranch_scc1 L_tagok",
            f"s_sub_u32 s{S_RET}, s{S_RET}, 1", "s_cbranch_scc1 L_tagslow", "s_sleep 4",
            f"s_buffer_load_dword s{S_TAG}, s[{S_DBG}:{S_DBG+3}], s{S_HOFF} glc", "s_waitcnt lgkmcnt(0)", "s_branch L_tagretry",
            "L_tagok:", f"s_add_u32 s{S_TAG}, s{S_TAG}, s{S_XCC}", f"v_mov_b32 v{V_FVAL}, s{S_TAG}", f"v_mov_b32 v{V_T}, {RING}", DS("w", f"ds_write_b32 v{V_T}, v{V_FVAL}"), "L_tagdone:"]
def tag_get():
    return [f"v_mov_b32 v{V_T}, {RING}", DS("tg", f"ds_read_b32 v{V_T+1}, v{V_T}")]
def tag_use():
    return [f"v_readfirstlane_b32 s{S_NEED}, v{V_T+1}", f"s_add_u32 s{S_NEED}, s{S_NEED}, 1"]
def tag_slow():
    return ["L_tagslow:",
            f"s_sub_u32 s{S_BUDGET}, s{S_BUDGET}, 1",
            "s_cbranch_scc1 L_taggiveup",
            "s_sleep 2",
            f"buffer_load_dword v{V_FVAL}, off, s[{S_DBG}:{S_DBG+3}], s{S_HOFF} sc1",
            "s_waitcnt vmcnt(0)",
            f"v_readfirstlane_b32 s{S_TAG}, v{V_FVAL}", "s_nop 0", f"s_cmp_eq_u32 s{S_TAG}, s{S_OWN}", "s_cbranch_scc1 L_tagslow",
            f"s_cmp_eq_u32 s{S_TAG}, 0", "s_cbranch_scc1 L_tagslow",
            "s_branch L_tagok",
            "L_taggiveup:",
            f"s_mov_b32 s{S_BUDGET}, 0",
            "s_branch L_tagok"]

def text_of(x):
    return "s_waitcnt" if isinstance(x, (W, LG)) else (x.text if isinstance(x, (VM, DS)) else x)
def kind_of(x):
    t = text_of(x)
    if t.endswith(":"): return "label"
    if t.startswith("v_"): return "valu"
    if t.startswith("ds_"): return "ds"
    if t.startswith("buffer_store"): return "store"
    if t.startswith("buffer_"): return "load"
    return "salu"
def cost_of(x):
    k = kind_of(x); t = text_of(x)
    if k == "label": return 0
    if k == "store": return 20 if "x4" in t else 8
    if k == "load": return 8
    if t.startswith("ds_write"): return 16
    if t.startswith(("v_exp", "v_rcp")): return 8
    if t.startswith("s_nop"): return 4 * (int(t.split()[1]) + 1)
    if t.startswith("s_cbranch") or t.startswith("s_branch"): return 12
    if t.startswith("s_barrier"): return 8
    return 4
def gap_time(ops):
    t = 4; prev = None
    for o in ops:
        k = kind_of(o)
        if k == "label": continue
        if k == "salu": t += cost_of(o)
        else: t = max(t, 8) + cost_of(o) + (8 if (k != "valu" and prev == "valu") else 0)
        prev = k
    return t

class Stream:
    def __init__(self, ops, first, last, maxper=99, dense=0):
        self.ops = list(ops); self.first = first; self.last = last; self.maxper = maxper; self.dense = dense
        self.total = sum(cost_of(o) for o in self.ops); self.done = 0; self.i = 0

def pack(NG, A, B, C, T, streams, novm=(), nosalu=(), vmgap=4):
    out = []; over = 0; lastvm = -99
    for g in range(NG):
        a, b, c, tl = list(A[g]), list(B[g]), list(C[g]), list(T[g])
        cnt = {}; inC = set(); blocked = set()
        while True:
            best = None; bl = None; bsec = None
            for st in streams:
                if st.i >= len(st.ops) or g < st.first: continue
                force = g >= st.last
                if (cnt.get(id(st), 0) >= st.maxper or id(st) in blocked) and not force: continue
                o = st.ops[st.i]; k = kind_of(o); cst = cost_of(o)
                if k == "salu" and g in nosalu:
                    assert not force, (g, text_of(o))
                    continue
                if k in ("load", "store") and (g in novm or g - lastvm < vmgap) and not force: continue
                if k in ("load", "store", "ds"):
                    sec = "b" if id(st) not in inC and id(st) not in blocked else "c"
                    if sec == "c" and not force: continue
                elif k == "salu" and not a and cnt.get(id(st), 0) == 0:
                    sec = "a"
                else: sec = "c"
                tgt = st.total * (g - st.first + 1) / (st.last - st.first + 1)
                lag = tgt - st.done
                if not force:
                    if lag < cst / 2 - OPT["ahead"] and cst: continue
                    trial = (a + [o] if sec == "a" else a) + (b + [o] if sec == "b" else b) + (c + [o] if sec == "c" else c) + tl
                    gt = gap_time(trial)
                    if gt > 16:
                        if g % 2 == 0: continue
                        big = k == "store" or text_of(o).startswith("ds_write")
                        lim = max(20, st.dense) if lag > 24 else 16
                        if big and not (a + b + c + tl): lim = 32
                        if gt > lim: continue
                key = (force, k in ("load", "store"), lag / max(1, (st.last - g + 1)) ** 0.5)
                if best is None or key > bl: best = st; bl = key; bsec = sec
            if best is None: break
            o = best.ops[best.i]
            if bsec == "a": a.append(o)
            elif bsec == "b":
                b.append(o)
            else: c.append(o)
            if bsec == "c" or bsec == "b" and kind_of(o) != "ds" and False: inC.add(id(best))
            if bsec == "c": inC.add(id(best))
            if " m0," in text_of(o): blocked.add(id(best))
            if kind_of(o) in ("load", "store"): lastvm = g
            best.i += 1; best.done += cost_of(o); cnt[id(best)] = cnt.get(id(best), 0) + 1
        ops = a + b + c + tl
        tt = gap_time(ops)
        if tt > 16: over += tt - 16
        out.append(ops)
    for st in streams: assert st.i == len(st.ops)
    return out, over

POLLSITES = []
def gen_seg(name, groups, nxt, sm=(), bars=(), tasks=(), dma=(), extra=(), endops=(), fixed=(), peel=True, vmgap=None):
    starts = []; n = 0
    for g in groups: starts.append(n); n += len(g.mf)
    NG = n
    A = [[] for _ in range(NG)]; B = [[] for _ in range(NG)]; C = [[] for _ in range(NG)]; T = [[] for _ in range(NG)]
    streams = []; novm = set(range(0, NG, 2)); nosalu = set()
    allg = list(groups) + list(nxt)
    assert len(groups) % 3 == 0
    for i, g in enumerate(groups):
        g0 = starts[i]; ln = len(g.mf)
        if i + 2 < len(allg):
            t = allg[i + 2]
            B[g0].append(rd_op(i + 2, 0, t)); B[g0 + ln // 2].append(rd_op(i + 2, 1, t))
            if t.reb:
                assert g0 > 0
                C[g0 - 1] += t.reb
        if i + 1 < len(allg):
            A[g0 + ln - 1].append(LG(("fr", (2 * i + 2) % NFS), ("fr", (2 * i + 3) % NFS)))
    for ops, f, l in sm: streams.append(Stream(ops, f, l))
    streams += list(extra)
    if endops:
        A[NG-4] += endops[:1]; A[NG-2] += [A[NG-1][0]] + list(endops[1:-1]); A[NG-1] = []; T[NG-1] = list(endops[-1:]); nosalu |= {NG-2, NG-1}
    for grp in dma:
        dl = []
        for part, pos in grp[:-2]: dl += dma_tile(part, pos, peel)
        k = max(i for i, x in enumerate(dl) if isinstance(x, VM)) + 1
        lim = NG - 3 if endops else NG - 1
        if grp[-1] + 1 > lim: k = len(dl)
        streams.append(Stream(dl[:k], grp[-2], grp[-1], maxper=2))
        if dl[k:]: streams.append(Stream(dl[k:], grp[-1] + 1, min(lim, grp[-1] + 12), maxper=2))
    bars = [(g, list(tg)) for g, tg in bars]
    for t in tasks:
        k_ = t[0]
        if k_ == "cv":
            _, cv, h, buf, rs, outb = HT[t[1]]
            ops = cv(h, buf, rs, outb)[t[2]:t[3]]
            if t[2] == 0: ops = [W(t[1])] + ops
            streams.append(Stream(ops, t[4], t[5]))
        elif k_ in ("kst", "vst"):
            grp = k_st(t[1], BX) if k_ == "kst" else v_st(t[1], BZ)
            g = t[2]; assert g % 2 == 1 and not B[g] and not A[g], (name, g)
            B[g].append(grp[-1]); novm |= set(range(g - OPT["sb"], g + OPT["sa"] + 1))
            if grp[:-1]: streams.append(Stream(grp[:-1], max(0, g - 5), g - 1))
        elif k_ in ("ld", "ldn"):
            ld, _, h, buf, rs, _o = HT[t[1]]
            adv = {"ka": k_adv(), "va": v_adv()}.get(t[1], []) if k_ == "ld" else []
            ops = ld(h, buf, rs, t[1])
            if len(t) > 4: ops = ops[2:] if t[4] == "raw" else ops[:2]
            streams.append(Stream(adv + ops, t[2], t[3], maxper=1))
        elif k_ == "post":
            bi = t[2] if len(t) > 2 else -1
            bars[bi][1].append(t[1])
            streams.append(Stream(flag_post(), bars[bi][0] + 1, min(NG - 3, bars[bi][0] + 14), maxper=1))
        elif k_ == "pf":
            streams.append(Stream([VM("pf", f"buffer_load_dword v15, v{V_DMA}, s[{S_DBG}:{S_DBG+3}], s{S_HOFF} offen")], t[1], t[2]))
        elif k_ == "pollld": streams.append(Stream(poll_load(), t[1], t[2], maxper=1))
        elif k_ == "pollchk":
            ps = len(POLLSITES); POLLSITES.append(ps)
            g = t[1]; assert g % 4 == 1
            pt = poll_test()
            A[g] += [W("poll")]; T[g] += pt[:2]; novm |= {g, g + 4}
            A[g + 3] += [pt[3]]; A[g + 4] += [f"s_cbranch_scc1 L_pollslow{ps}", f"L_pollok{ps}:"]; nosalu |= {g + 3, g + 4}
            A[g + 5] += [f"s_add_u32 s{S_NEED}, s{S_NEED}, 1"]
        elif k_ == "spollld": A[t[1]] += smem_flags()
        elif k_ == "spollchk":
            ps = len(POLLSITES); POLLSITES.append(ps)
            A[t[1]] += ["s_waitcnt lgkmcnt(0)"]
            streams.append(Stream(smem_reduce(), t[1] + 1, t[2] - 1, maxper=3))
            A[t[2]] += [f"s_cmp_ge_u32 s{S_PT}, 16", f"s_cbranch_scc1 L_pollslow{ps}", f"L_pollok{ps}:", f"s_add_u32 s{S_NEED}, s{S_NEED}, 1"]
        elif k_ == "step": streams.append(Stream(rd_step(t[1]), t[2], t[3], maxper=1))
        elif k_ == "q": streams.append(Stream(q_dma(t[1]), t[2], t[3], maxper=2))
        else: raise Exception(k_)
    for g, tags in bars:
        i = [j for j in range(len(groups)) if starts[j] + len(groups[j].mf) - 1 == g]
        assert i, (name, g)
        if len(groups[i[0]].mf) == 8:
            A[g - 2] += A[g]; A[g] = []
            if tags: A[g - 1] += [W(*tags)]
        elif tags: A[g - 2] += [W(*tags)]
        A[g] += ["s_barrier"]; novm |= {g}
    for g, sec, ops in fixed: {"A": A, "B": B, "C": C, "T": T}[sec][g] += ops
    if endops:
        for st_ in streams: st_.last = min(st_.last, NG - 2)
    m0w = sorted((st.first, st.last) for st in streams if any(" m0," in text_of(o) for o in st.ops))
    assert all(m0w[i][1] < m0w[i + 1][0] for i in range(len(m0w) - 1)), (name, m0w)
    fill, over = pack(NG, A, B, C, T, streams, novm, nosalu, vmgap or OPT["vmgap"])
    if over: print(f"seg {name}: over budget by {over} cycles", file=sys.stderr)
    out = istamp(name)
    g = 0
    for i, gr in enumerate(groups):
        for j, d, b, c in gr.mf:
            out.append(f"{MF} {d}, {FR(2*i+j)}, {b}, {c}")
            out += fill[g]; g += 1
    return with_nop(out)

GBAR = 79
def seg_groups(it):
    return qk_full(it + 1) if it % 2 else pv_seq(it - 2)
def gen_iter(it, tasks=(), dma=(), name=None, endops=(), peel=False, nxt=None, extra=(), bars=None, groups=None, sm=None, step=True):
    q = it % 2
    smB = softmax_part(it, 1); smA = softmax_part(it + 1, 0)
    if sm is None: sm = [(smB, 0, 50), (smA, 52, 95)] if q else [(smB + smA, 0, 95)]
    need = [("dv", (it - 1) % 8), ("dv", it % 8)] if q else [("dk", (it + 2) % 8), ("dk", (it + 3) % 8)]
    tasks = list(tasks) + ([("step", "p" if q else "q", 30, GBAR - 3)] if step else [])
    return gen_seg(name or f"i{it}", groups or seg_groups(it), nxt if nxt is not None else seg_groups(it + 1)[:2], sm,
                   bars if bars is not None else [(GBAR, need)], tasks, dma, extra, endops, peel=peel)

K_ = lambda *j: tuple(("k", x) for x in j)
V_ = lambda *j: tuple(("v", x) for x in j)
def steady(k):
    ckv, ckk = OPT["ckv"], OPT["ckk"]
    plv, plk = OPT["plv"], OPT["plk"]
    return {
        1: ([("cv", "va", 0, 22, 0, 95), ("ld", "vb", 0, 44)], [V_(2, 3) + (0, GBAR - 5)]),
        2: ([("cv", "va", 22, 99, 0, 95), ("kst", 0, 1), ("kst", 1, 9), ("kst", 2, 17), ("kst", 3, 25), ("post", "kst")], [K_(6, 7) + (33, 74)]),
        3: ([("cv", "vb", 0, 22, 0, 95), ("ld", "ka", 0, 44)], [V_(4, 5) + (0, GBAR - 5)]),
        4: ([("cv", "vb", 22, 99, 0, 95), ("pollld", plk, plk + 16)] + ([("pf", 80, 92)] if OPT["pf2"] else []), [V_(6, 7) + (0, GBAR - 5)]),
        5: ([("cv", "ka", 0, 16, 0, 95), ("pollchk", 1), ("vst", 0, 9), ("vst", 1, 17), ("vst", 2, 25), ("vst", 3, 33), ("post", "vst")], [K_(0, 1) + (41, 74)]),
        6: ([("cv", "ka", 16, 99, 0, 95), ("ld", "kb", 0, 30)], [K_(2, 3) + (31, 74)]),
        7: ([("cv", "kb", 0, 24, 40, 95), ("ld", "va", 11, 40), ("pollld", plv, plv + 8)], [K_(4, 5) + (41, 90)]),
        0: ([("cv", "kb", 24, 99, 0, 95), ("pollchk", ckv)], [V_(0, 1) + (ckv + 7, ckv + 44)]),
    }[k]

WA = [V_RS[0], V_RS[0] + 1]; RA = V_RS[0] + 2; GA = V_RS[0] + 3; TA = V_RS[0] + 4
RL = [V_CT, V_CT + 2, V_CT + 4, V_CT + 6]
S_EO = 24
def epi_addr():
    return [f"v_bfe_u32 v{TA}, v{V_DMA}, 4, 6", f"s_mul_i32 s{S_EO}, s{S_WAVE}, 6144", f"s_add_u32 s{S_EO}, s{S_EO}, {A2}",
            f"v_and_b32 v{WA[0]}, 15, v{TA}", f"v_lshrrev_b32 v{WA[1]}, 4, v{TA}", f"v_lshlrev_b32 v{WA[1]}, 1, v{WA[1]}",
            f"v_and_b32 v{TA+1}, 7, v{TA}", f"v_xor_b32 v{WA[1]}, v{WA[1]}, v{TA+1}", f"v_lshlrev_b32 v{WA[0]}, 7, v{WA[0]}",
            f"v_lshl_add_u32 v{WA[0]}, v{WA[1]}, 4, v{WA[0]}", f"v_add_u32 v{WA[0]}, s{S_EO}, v{WA[0]}", f"v_xor_b32 v{WA[1]}, 16, v{WA[0]}",
            f"v_lshrrev_b32 v{RA}, 3, v{TA}", f"v_mul_u32_u24 v{GA}, 384, v{RA}", f"v_lshl_add_u32 v{GA}, v{TA+1}, 4, v{GA}",
            f"v_xor_b32 v{RA}, v{RA}, v{TA}", f"v_lshlrev_b32 v{RA}, 4, v{RA}", f"v_add_u32 v{RA}, s{S_EO}, v{RA}",
            f"s_lshl_b32 s{S_EO}, s{S_QB}, 2", f"s_add_u32 s{S_EO}, s{S_EO}, s{S_WAVE}", f"s_mul_i32 s{S_EO}, s{S_EO}, {STAGE}",
            f"s_add_u32 s{S_QL}, s{S_EO}, 6144", f"s_add_u32 s{S_QS}, s{S_EO}, 12288", f"s_add_u32 s{S_TAG}, s{S_EO}, 18432"]
S_EQ = [S_EO, S_QL, S_QS, S_TAG]
def epi_l(qs):
    fl = []
    for sw in ("v_permlane16_swap_b32", "v_permlane32_swap_b32"):
        fl += [f"v_mov_b32 v{RL[q]}, v{V_L[q]}" for q in qs] + ["s_nop 0"]
        fl += [f"{sw} v{V_L[q]}, v{RL[q]}" for q in qs] + ["s_nop 0"]
        fl += [f"v_add_f32 v{V_L[q]}, v{V_L[q]}, v{RL[q]}" for q in qs]
    return fl + [f"v_rcp_f32 v{RL[q]}, v{V_L[q]}" for q in qs] + ["s_nop 0"]
class Epi:
    def __init__(self, temps, rbs): self.temps = temps; self.rbs = rbs; self.n = 0; self.pend = []
    def flush(self):
        p = []
        for qb, n, h, reg, tag in self.pend:
            p += [LG(tag), VM("out", f"buffer_store_dwordx4 v[{reg}:{reg+3}], v{GA}, s[{S_OUT}:{S_OUT+3}], s{S_EQ[qb]} offen offset:{n*128 + h*3072}{OF}")]
        self.pend = []
        return p
    def chunk(self, qb, n, pk=False):
        p = []; c = self.n; self.n += 1
        lb = (c % 3) * 2048
        for half in range(2):
            ob = self.temps[(2 * c + half) % len(self.temps)]
            for tt in range(8):
                r, e = divmod(8 * half + tt, 4)
                p.append(f"v_accvgpr_read_b32 v{ob+tt}, a{O(qb,3*e+n)+r}")
            if pk: p += [f"v_pk_mul_f32 v[{ob+2*i}:{ob+2*i+1}], v[{ob+2*i}:{ob+2*i+1}], v[{RL[qb]}:{RL[qb]+1}] op_sel_hi:[1,0]" for i in range(4)]
            else: p += [f"v_mul_f32 v{ob+i}, v{ob+i}, v{RL[qb]}" for i in range(8)]
            p += [f"v_cvt_pk_bf16_f32 v{ob+i}, v{ob+2*i}, v{ob+2*i+1}" for i in range(4)]
            if self.pend:
                x = self.pend.pop(0); rest = self.pend; self.pend = [x]; p += self.flush(); self.pend = rest
            p.append(DS("w", f"ds_write_b128 v{WA[half]}, v[{ob}:{ob+3}] offset:{lb}"))
        p += self.flush()
        for h in range(2):
            reg = self.rbs[(2 * c + h) % len(self.rbs)]; tag = ("rb", c % 4, h)
            p.append(DS(tag, f"ds_read_b128 v[{reg}:{reg+3}], v{RA} offset:{lb + h*1024}"))
            self.pend.append((qb, n, h, reg, tag))
        return p

def gen_tail():
    sp = softmax_part
    g57 = qk_half(58) + rebase(qk_half(59), V_RDK, A0 - A2)
    g58 = pv_seq(56)
    g59 = rebase(qk_half(60), V_RDK, A1 - A0) + rebase(qk_half(61), V_RDK, A2 - A1)
    g60 = rebase(pv_seq(58), [V_RD], B2 - B1) + rebase(pv_seq(59), [V_RD], B0 - B2)
    g61 = rebase(pv_seq(60), [V_RD], B1 - B0) + rebase(qk_half(62), V_RDK, A0 - A2)
    g62 = rebase(qk_half(63), V_RDK, A1 - A0) + rebase(pv_seq(61), [V_RD], B2 - B1)
    g63 = []
    for n in range(3):
        for e in range(4): g63 += [pv_grp(62, 3 * e + n), pv_grp(63, 3 * e + n, va=V_RD2)]
    g63[0].reb += [f"v_subrev_u32 v{V_RD2}, {B2 - B1}, v{V_RD}", f"v_subrev_u32 v{V_RD}, {B2 - B0}, v{V_RD}"]
    first57 = g57[:2]
    p = []
    p += gen_seg("S57", g57, g58[:2], [(sp(57, 1), 0, 40), (sp(58, 0), 41, 95)], [(GBAR, [("dv", 0), ("dv", 1)])],
                 [("step", "p", 30, GBAR - 3)], [K_(62, 63) + V_(58, 59) + (0, 74)], peel=False)
    p += gen_seg("S58", g58, g59[:2], [(sp(58, 1) + sp(59, 0) + sp(59, 1), 0, 95)], [(GBAR, [("dk", 7), ("dv", 3)])], [], [V_(60, 61) + (0, 40)], peel=False)
    p += gen_seg("S59", g59, g60[:2], [(epi_addr(), 0, 30), (sp(60, 0), 31, 60), (sp(60, 1), 61, 95)], [(15, [("dv", 5)])], [], [V_(62, 63) + (16, 50)], peel=False)
    p += gen_seg("S60", g60, g61[:2], [(sp(61, 0) + sp(61, 1) + epi_l((0, 1)), 0, 95)], [(GBAR, [("dv", 7)])])
    ep = Epi([BX, BX + 8, BY, BY + 8], [BZ, BZ + 4, BZ + 8, BZ + 12, NEGM(0), NEGM(1)])
    e01 = [x for qb in (0, 1) for n in range(3) for x in ep.chunk(qb, n)] + ep.flush()
    n1 = OPT.get("e1", 100)
    td = OPT["tden"]
    p += gen_seg("S61", g61, g62[:2], [(sp(62, 0), 78, 95)], extra=[Stream(e01[:n1], 52, 95, dense=td)])
    p += gen_seg("S62", g62, g63[:2], [(sp(62, 1), 2, 30), (sp(63, 0), 31, 60), (sp(63, 1), 61, 95)], extra=[Stream(e01[n1:], 0, 95, dense=td)])
    chk = [f"v_max3_f32 v{V_T}, v{V_L[0]}, v{V_L[1]}, v{V_L[2]}", f"v_max_f32 v{V_T}, v{V_T}, v{V_L[3]}",
           f"s_mov_b32 s{S_TMP}, 0x{f32bits(2.0**OPT['thr']):08x}", f"v_cmp_lt_f32 vcc, s{S_TMP}, v{V_T}"]
    c0 = ep.chunk(2, 0) + ep.chunk(3, 0)
    c1 = ep.chunk(2, 1) + ep.chunk(3, 1)
    p += gen_seg("S63", g63, [], [(epi_l((2, 3)) + chk, 0, 24)], extra=[Stream(c0, 36, 67, dense=td), Stream(c1, 68, 95, dense=td)],
                 fixed=[(29, "A", ["s_cbranch_vccnz L_slow"])])
    p += istamp("fin") + ["s_nop 7"] + ep.chunk(2, 2, True) + ep.chunk(3, 2, True) + ep.flush()
    return first57, p
def slow_epi():
    ep = Epi([64 + 8 * i for i in range(8)], [128 + 4 * i for i in range(8)])
    seq = epi_l((0, 1)) + epi_l((2, 3))
    for qb in range(4):
        for n in range(3): seq += ep.chunk(qb, n, True)
    return seq + ep.flush()

def kfrag(g):
    return 2 * (g >> 2) + (g & 1), (g >> 1) & 1
def gen_slow():
    KF = 64; VF = 112; SS = 160; PP = 224; M = [240, 241, 242, 243]; KA = [244, 245]; LA = 246; t = V_T
    p = ["L_slow:", "s_waitcnt vmcnt(0) lgkmcnt(0)", "s_nop 15"]
    for i in range(192): p.append(f"v_accvgpr_write_b32 a{i}, 0")
    for q in range(4): p += [f"v_mov_b32 v{V_L[q]}, 0", f"v_mov_b32 v{M[q]}, 0xff7fffff"]
    p += [f"v_subrev_u32 v{KA[0]}, {A1}, v{V_RDK[0]}", f"v_subrev_u32 v{KA[1]}, {A1}, v{V_RDK[1]}", f"v_subrev_u32 v{LA}, {B0}, v{V_RD}",
          f"s_mov_b32 s{S_PT}, 0", "L_slowloop:"]
    for i in range(1, 5): p.append(f"s_add_u32 s{S_PT+i}, s{S_PT}, {[0, 6144, 12288, 16384, 20480][i]}")
    for f in range(12):
        s, tb = kfrag(f)
        p.append(f"buffer_load_dwordx4 v[{KF+4*f}:{KF+4*f+3}], v{KA[s&1]}, s[{S_WS}:{S_WS+3}], s{S_PT+tb} offen offset:{(s>>1)*128} sc1")
    for db in range(12):
        p.append(f"buffer_load_dwordx4 v[{VF+4*db}:{VF+4*db+3}], v{LA}, s[{S_WS}:{S_WS+3}], s{S_PT+2+db//4} offen offset:{(db%4)*1024} sc1")
    p.append("s_waitcnt vmcnt(12)")
    for f in range(12):
        s, tb = kfrag(f)
        for qb in range(4):
            d = vr(SS + 8 * qb + 4 * tb, 4)
            p.append(f"{MF} {d}, v[{KF+4*f}:{KF+4*f+3}], {Qf(qb,s)}, {'0' if s == 0 else d}")
    p.append("s_nop 9")
    for qb in range(4):
        sb = SS + 8 * qb
        p += [f"v_max3_f32 v{t}, v{sb}, v{sb+1}, v{sb+2}", f"v_max3_f32 v{t}, v{t}, v{sb+3}, v{sb+4}",
              f"v_max3_f32 v{t}, v{t}, v{sb+5}, v{sb+6}", f"v_max3_f32 v{t}, v{t}, v{sb+7}, v{M[qb]}"]
        p += xlane("v_max_f32", t)
        p += [f"v_sub_f32 v{t+1}, v{M[qb]}, v{t}", f"v_exp_f32 v{t+1}, v{t+1}", f"v_mov_b32 v{M[qb]}, v{t}"]
        for i in range(8): p.append(f"v_sub_f32 v{sb+i}, v{sb+i}, v{t}")
        for i in range(8): p.append(f"v_exp_f32 v{sb+i}, v{sb+i}")
        p.append(f"v_mul_f32 v{V_L[qb]}, v{V_L[qb]}, v{t+1}")
        for i in range(8): p.append(f"v_add_f32 v{V_L[qb]}, v{V_L[qb]}, v{sb+i}")
        for i in range(4): p.append(f"v_cvt_pk_bf16_f32 v{PP+4*qb+i}, v{sb+2*i}, v{sb+2*i+1}")
        for i in range(48):
            a = O(qb, 0) + i; tt = t + 2 + (i % 2)
            p += [f"v_accvgpr_read_b32 v{tt}, a{a}", f"v_mul_f32 v{tt}, v{tt}, v{t+1}", f"v_accvgpr_write_b32 a{a}, v{tt}"]
    p += ["s_waitcnt vmcnt(0)", "s_nop 1"]
    for db in range(12):
        for qb in range(4):
            d = ar(O(qb, db), 4)
            p.append(f"{MF} {d}, v[{VF+4*db}:{VF+4*db+3}], v[{PP+4*qb}:{PP+4*qb+3}], {d}")
    p += [f"s_add_u32 s{S_PT}, s{S_PT}, {STAGE}", f"s_cmp_lt_u32 s{S_PT}, {HEADBYTES}", "s_nop 7", "s_cbranch_scc1 L_slowloop"]
    e = slow_epi(); resolve(e)
    return p + fin(e) + ["s_branch L_fin"]

def xlane(op, t, u=None):
    u = t + 1 if u is None else u
    l = []
    for sw in ("v_permlane16_swap_b32", "v_permlane32_swap_b32"):
        l += [f"v_mov_b32 v{u}, v{t}", "s_nop 1", f"{sw} v{t}, v{u}", "s_nop 1", f"{op} v{t}, v{t}, v{u}"]
    return l
def rowmax2(t, qs, tq):
    l = []
    ab = [(Sq(t, j, 0), Sq(t, j, 1)) for j in range(2)]
    l += [f"v_max3_f32 v{tq[j]}, v{a}, v{a+1}, v{a+2}" for j, (a, b) in enumerate(ab)]
    l += [f"v_max3_f32 v{tq[j]}, v{tq[j]}, v{a+3}, v{b}" for j, (a, b) in enumerate(ab)]
    l += [f"v_max3_f32 v{tq[j]}, v{tq[j]}, v{b+1}, v{b+2}" for j, (a, b) in enumerate(ab)]
    l += [f"v_max_f32 v{tq[j]}, v{tq[j]}, v{b+3}" for j, (a, b) in enumerate(ab)]
    for sw in ("v_permlane16_swap_b32", "v_permlane32_swap_b32"):
        l += [f"v_mov_b32 v{tq[j]+1}, v{tq[j]}" for j in range(2)] + ["s_nop 0"]
        l += [f"{sw} v{tq[j]}, v{tq[j]+1}" for j in range(2)] + ["s_nop 0"]
        l += [f"v_max_f32 v{tq[j]}, v{tq[j]}, v{tq[j]+1}" for j in range(2)]
    l += [f"v_sub_f32 v{NEGM(qs[j])+i}, 0, v{tq[j]}" for j in range(2) for i in range(4)]
    return l
def addneg(t, sl):
    n = NEGM(slot_q(t, sl))
    return [f"v_add_f32 v{Sq(t,sl,tb)+i}, v{Sq(t,sl,tb)+i}, v{n}" for tb in range(2) for i in range(4)]

def resolve(seq):
    vm = []; ds = []
    for x in seq:
        if isinstance(x, VM): vm.append(x.tag)
        elif isinstance(x, DS): ds.append(x.tag)
        elif isinstance(x, (W, LG)):
            q = vm if isinstance(x, W) else ds
            best = None
            for tag in x.tags:
                n = 0; found = False
                for t in reversed(q):
                    if t == tag: found = True; break
                    n += 1
                if found: best = n if best is None else min(best, n)
            if best is not None:
                x.n = best if getattr(x, "n", None) is None else min(x.n, best)
        else:
            assert not x.startswith(("ds_", "buffer_")) or "UNTRACKED" in x, x
def vm_size(x):
    t = x.text
    if t.startswith("buffer_store"): return 0
    if x.tag == "pre": return 3.0
    if " lds" in t: return 1.0
    if "dwordx4" in t: return 0.75
    if "dwordx2" in t and "offen" in t: return 0.375
    return 0.125
def pace(seq, cap):
    out = []; q = []; on = False
    for x in seq:
        if isinstance(x, W): q = q[len(q) - min(len(q), x.n):]; on = True
        elif isinstance(x, VM):
            sz = vm_size(x)
            if on and not x.text.startswith("buffer_store") and sum(q) + sz > cap:
                while q and sum(q) + sz > cap: q.pop(0)
                w = W(); w.n = len(q)
                if out and out[-1] == "s_nop 0": out.pop()
                out.append(w)
            q.append(sz)
        out.append(x)
    return out
def fin(seq):
    out = []
    for x in seq:
        if isinstance(x, (W, LG)):
            assert getattr(x, "n", None) is not None, x.tags
            out.append(f"s_waitcnt vmcnt({min(x.n, 63)})" if isinstance(x, W) else f"s_waitcnt lgkmcnt({min(x.n, 15)})")
        elif isinstance(x, (VM, DS)): out.append(x.text)
        else: out.append(x.replace(" ;UNTRACKED", ""))
    return out
def groups_of(l):
    out = [[]]
    for x in l:
        out[-1].append(x)
        if isinstance(x, VM): out.append([])
    tail = out.pop()
    if tail: out[-1] += tail
    return out
def sprinkle(code, l):
    gs = groups_of(l); out = []; n = len(code); m = len(gs); j = 0
    for i, x in enumerate(code):
        while j < m and i * m >= j * n: out += with_nop(gs[j]); j += 1
        out.append(x)
    for g in gs[j:]: out += with_nop(g)
    return out
def srd(p, s, lo, hi, off_s, size):
    p += [f"s_add_u32 s{s}, s{lo}, s{off_s}", f"s_addc_u32 s{s+1}, s{hi}, 0", f"s_mov_b32 s{s+2}, {size}", f"s_mov_b32 s{s+3}, 0x20000"]

def gen_main():
    p = []
    p += [f"{NAME}_kernel:", "s_cmp_ge_u32 s2, 256", "s_cbranch_scc1 L_done",
          "s_load_dwordx16 s[40:55], s[0:1], 0", "s_load_dwordx4 s[16:19], s[0:1], 64"]
    if OPT["stamp"]: p += ["s_memrealtime s[98:99]" if OPT["stamp"] == 8 else "s_memtime s[98:99]"]
    p += [f"s_and_b32 s{S_HEAD}, s2, 7", f"s_lshr_b32 s{S_QB}, s2, 3", f"s_lshr_b32 s24, s{S_QB}, 3", f"s_lshl_b32 s{S_HEAD}, s{S_HEAD}, 2",
          f"s_add_u32 s{S_HEAD}, s{S_HEAD}, s24", f"s_and_b32 s{S_QB}, s{S_QB}, 7"]
    p += ["s_getpc_b64 s[60:61]", "L_pc:", f"s_sub_u32 s60, s60, L_pc-{NAME}_kernel", "s_subb_u32 s61, s61, 0",
          f"s_mov_b32 s62, L_slow-{NAME}_kernel", "s_mov_b32 s63, 0x20000",
          "s_lshr_b32 s22, s2, 3", "s_lshl_b32 s22, s22, 12",
          "v_lshlrev_b32 v30, 4, v0",
          VM("pf", "buffer_load_dwordx4 v[128:131], v30, s[60:63], s22 offen")]
    p += ["v_lshrrev_b32 v24, 6, v0",
          "v_and_b32 v25, 63, v0",
          f"v_readfirstlane_b32 s{S_WAVE}, v24",
          f"v_lshlrev_b32 v{V_RD}, 4, v25",
          "v_mul_u32_u24 v26, 43, v25", "v_lshrrev_b32 v26, 10, v26",
          "v_mul_u32_u24 v27, 24, v26",
          "v_sub_u32 v27, v25, v27",
          "v_lshrrev_b32 v28, 1, v24",
          "v_and_b32 v29, 1, v24",
          "v_lshlrev_b32 v30, 4, v29",
          "v_lshl_add_u32 v30, v28, 2, v30",
          "v_add_u32 v30, v30, v26",
          "v_mul_u32_u24 v30, 768, v30",
          "v_lshrrev_b32 v48, 1, v26", "v_lshlrev_b32 v48, 30, v48",
          "v_lshl_add_u32 v30, v27, 4, v30", f"v_or_b32 v{V_KLD}, v30, v48",
          f"v_lshl_or_b32 v{V_KSC}, v27, 3, v48",
          "v_mul_u32_u24 v30, 6144, v24",
          f"v_add3_u32 v{V_VLD}, v30, v{V_RD}, v48"]
    for sd, size in ((S_QK, HEADBYTES), (S_QV, HEADBYTES), (S_KS, 12288), (S_KZ, 12288), (S_VS, 4096), (S_VZ, 4096), (S_FLG, 64)):
        p += [f"s_mov_b32 s{sd+2}, {size}", f"s_mov_b32 s{sd+3}, 0x20000"]
    p += [f"s_mul_i32 s{S_PK0}, s{S_QB}, {STAGE}", f"s_add_u32 s{S_PK1}, s{S_PK0}, 6144", f"s_mov_b32 s{S_PV0}, s{S_PK0}",
          f"s_lshr_b32 s{S_PKS}, s{S_QB}, 1", f"s_mul_i32 s{S_PKS}, s{S_PKS}, 384", f"s_lshl_b32 s{S_PVS}, s{S_QB}, 6",
          f"s_lshl_b32 s24, s{S_WAVE}, 4", f"s_add_u32 s{S_PVS}, s{S_PVS}, s24",
          f"s_mul_i32 s24, s{S_HEAD}, {HEADBYTES}", f"s_mul_i32 s56, s{S_HEAD}, 12288", f"s_lshl_b32 s57, s{S_HEAD}, 12",
          f"s_lshl_b32 s58, s{S_HEAD}, 10", f"s_add_u32 s58, s58, {FLAG_OFF + 96}",
          f"s_or_b32 s{S_RET}, s{S_QB}, s{S_WAVE}"]
    p += ["s_waitcnt lgkmcnt(0)"] + istamp("karg", True)
    def base(sd, lo, off): return [f"s_add_u32 s{sd}, s{lo}, s{off}", f"s_addc_u32 s{sd+1}, s{lo+1}, 0"]
    p += base(S_QK, 42, 24) + base(S_KS, 46, 56) + base(S_KZ, 48, 56)
    kl = [k_ld(0, BX, 32, "k0a"), k_ld(1, BY, 36, "k0b")]; vl = [v_ld(0, 112, 40, "v0a"), v_ld(1, 80, 44, "v0b")]
    for x in kl[1][:2]: x.tag = "k0a"
    for x in vl[1][:2]: x.tag = "v0a"
    if OPT["ksc"]:
        for x in kl[0][2:] + kl[1][2:]: x.tag = "kraw"
        for x in kl[1][:2]: x.tag = "k0b"
        p += kl[0][2:] + kl[1][2:] + kl[0][:2] + kl[1][:2]; kl[1] = []
    else: p += kl[0][2:] + kl[0][:2] + kl[1][:2]
    p += base(S_FLG, 18, 58) + base(S_VS, 50, 57) + base(S_VZ, 52, 57) + base(S_QV, 44, 24)
    p += [f"s_mul_i32 s59, s{S_HEAD}, 786432"] + base(S_OUT, 54, 59) + base(S_Q, 40, 59)
    p += [f"s_cmp_lg_u32 s{S_RET}, 0", "s_cbranch_scc1 L_notleader0", f"s_buffer_load_dwordx16 s[40:55], s[{S_FLG}:{S_FLG+3}], 0 glc", "L_notleader0:"]
    p += kl[1][2:]
    p += [f"s_add_u32 s24, s24, {WSOFF}"] * (1 if WSOFF else 0)
    srd(p, S_WS, 18, 19, 24, HEADBYTES)
    p += [f"s_mov_b32 s{S_Q+2}, 786432", f"s_mov_b32 s{S_Q+3}, 0x20000"]
    p += [f"s_mov_b32 s{S_DBG}, s16", f"s_mov_b32 s{S_DBG+1}, s17", f"s_add_u32 s{S_PV1}, s{S_PK0}, 3072", f"s_add_u32 s{S_PV2}, s{S_PK0}, 6144"]
    p += [f"s_mov_b32 s{S_DBG+2}, 256", f"s_mov_b32 s{S_DBG+3}, 0x20000", f"s_lshl_b32 s{S_HOFF}, s{S_HEAD}, 3"]
    p += [f"s_cmp_lg_u32 s{S_RET}, 0", "s_cbranch_scc1 L_notleader", "s_waitcnt lgkmcnt(0)", f"s_mov_b32 s{S_TP}, 1"]
    for i in range(16):
        p += [f"s_lshr_b32 s{40+i}, s{40+i}, 10", f"s_min_u32 s{40+i}, s{40+i}, 31", f"s_bitset1_b32 s{S_TP}, s{40+i}"]
    p += [f"s_ff0_i32_b32 s{S_TP}, s{S_TP}", f"s_lshl_b32 s{S_TP}, s{S_TP}, 10", f"v_mov_b32 v{V_POLL}, s{S_TP}",
          "s_mov_b64 exec, 1", f"buffer_store_dword v{V_POLL}, off, s[{S_DBG}:{S_DBG+3}], s{S_HOFF} sc1 ;UNTRACKED", "s_mov_b64 exec, -1",
          "L_notleader:"]
    p += [f"s_lshl_b32 s24, s{S_QB}, 2", f"s_add_u32 s24, s24, 32", f"s_buffer_load_dword s{S_OWN}, s[{S_FLG}:{S_FLG+3}], s24 glc",
          ] + ([f"s_getreg_b32 s{S_XCC}, hwreg(HW_REG_XCC_ID, 0, 4)", f"s_lshl_b32 s{S_XCC}, s{S_XCC}, 5", f"s_mov_b32 s{S_FOFF}, 0"] if OPT["l2"] else
          [f"s_mov_b32 s{S_XCC}, 0", f"s_mov_b32 s{S_FOFF}, 32"])
    p += vl[0][2:] + vl[0][:2] + vl[1][:2] + (vl[1][2:] if OPT["greedy"] else []) + istamp("iss", True)
    if OPT["pre"]:
        st = OPT["pre"]
        p += [f"v_mul_u32_u24 v31, {st}, v25", f"v_mul_u32_u24 v30, 6144, v24", "v_add_u32 v31, v30, v31"]
        if st == 128: p += ["v_or_b32 v31, v31, v48"]
        p += [VM("pre", f"buffer_load_dword v132, v31, s[{S_WS}:{S_WS+3}], s{S_PK0} offen nt")]
        if st == 64: p += ["v_add_u32 v30, 4096, v31", "s_mov_b64 exec, 0xffffffff", VM("pre", f"buffer_load_dword v133, v30, s[{S_WS}:{S_WS+3}], s{S_PK0} offen nt"), "s_mov_b64 exec, -1"]
    p += [f"s_mov_b32 s{S_OUT+2}, 786432", f"s_mov_b32 s{S_OUT+3}, 0x20000"]
    p += [f"s_lshl_b32 s24, s{S_WAVE}, 8", f"s_add_u32 s{S_HOFF}, s{S_HOFF}, s24"]
    p += ["v_mul_u32_u24 v30, 3072, v24", f"v_add_u32 v{V_DMA}, v30, v{V_RD}"]
    p += ["v_lshl_add_u32 v30, v24, 3, v26",
          "v_mul_u32_u24 v30, 384, v30",
          "v_lshlrev_b32 v31, 2, v29",
          "v_xor_b32 v31, v27, v31",
          "v_lshl_add_u32 v30, v31, 4, v30", f"v_or_b32 v{V_KST}, v30, v48",
          "v_lshlrev_b32 v30, 8, v24",
          "v_add_u32 v30, 12288, v30",
          "v_lshrrev_b32 v31, 4, v25", "v_lshl_add_u32 v30, v31, 10, v30", "v_and_b32 v31, 15, v25",
          "v_lshl_add_u32 v30, v31, 4, v30", f"v_or_b32 v{V_VST}, v30, v48"]
    p += [f"s_lshl_b32 s24, s{S_QB}, 2",
          f"v_lshl_add_u32 v{V_FLAG}, v0, 2, s24", f"v_cmp_lt_u32 vcc, 0, v0", "v_mov_b32 v30, 0x40000000", "s_nop 0",
          f"v_cndmask_b32 v{V_FLAG}, v{V_FLAG}, v30, vcc"]
    p += [f"s_mul_i32 s{S_DMK}, s{S_WAVE}, 3072", f"s_add_u32 s{S_DMK}, s{S_DMK}, 12288", f"s_add_u32 s{S_DMV}, s{S_DMK}, {STAGE}",
          f"s_add_u32 s24, s{S_QB}, 1", "s_and_b32 s24, s24, 7", f"s_mul_i32 s{S_GOFFK}, s24, {STAGE}", f"s_add_u32 s{S_GOFF}, s{S_GOFFK}, 12288",
          f"s_mov_b32 s{S_RK}, {A2}", f"s_mov_b32 s{S_RV}, {B1}", f"v_add_u32 v{V_RD}, {B0}, v{V_RD}",
          f"s_mov_b32 s{S_CS}, 0x{f32bits(CSCALE):08x}", f"s_mov_b32 s{S_MASK}, 0xffff0000",
          f"s_mov_b32 s{S_BUDGET}, 100000"] + ([f"s_mov_b32 s{S_TAG+1}, 0"] if OPT["stamp"] else [])
    p += ["v_and_b32 v26, 15, v25", "v_lshrrev_b32 v27, 4, v25", "v_bfe_u32 v28, v25, 1, 3",
          "v_xor_b32 v29, v27, v28", "v_mul_u32_u24 v30, 384, v26", f"v_lshl_add_u32 v{V_RDK[0]}, v29, 4, v30",
          f"v_xor_b32 v{V_RDK[1]}, 64, v{V_RDK[0]}"]
    p += [f"s_mul_i32 s{S_QL}, s{S_WAVE}, 6144", f"s_add_u32 s{S_QL}, s{S_QL}, {B1}",
          "v_lshrrev_b32 v29, 1, v27", "v_xor_b32 v29, v29, v28", "v_lshl_add_u32 v31, v29, 4, v30",
          "v_and_b32 v29, 1, v27", "v_lshl_add_u32 v31, v29, 3, v31"]
    for kk in range(4):
        p += [f"v_xor_b32 v{VQR[kk]}, {32*kk}, v31", f"v_add_u32 v{VQR[kk]}, s{S_QL}, v{VQR[kk]}"]
    p += [f"s_lshl_b32 s24, s{S_QB}, 2", f"s_add_u32 s24, s24, s{S_WAVE}", f"s_mul_i32 s24, s24, {STAGE}"]
    for b in range(6):
        p += [f"v_add_u32 v26, {64*b}, v25", "v_mul_u32_u24 v27, 2731, v26", "v_lshrrev_b32 v27, 17, v27",
              "v_and_b32 v27, 7, v27", "v_xor_b32 v26, v26, v27", f"v_lshlrev_b32 v{VQD+b}, 4, v26", f"v_add_u32 v{VQD+b}, s24, v{VQD+b}"]
    for q in range(4): p.append(f"v_mov_b32 v{V_L[q]}, 0")
    STF0 = "" if OPT["l2"] else STF
    def own_k(b):
        l = []
        for j in range(4):
            l += k_st(j, b, "kst", STF0)
            va = V_KST if j == 0 else V_KA + (j & 1)
            l += ["s_mov_b64 exec, s[62:63]", DS("w", f"ds_write_b128 v{va}, v[{b+4*j}:{b+4*j+3}] offset:{j*768}"), "s_mov_b64 exec, -1"]
        return l
    def own_v(b):
        l = [x for e in range(4) for x in v_st(e, b, "vst", STF0)]
        l += ["s_mov_b64 exec, s[62:63]"] + [DS("w", f"ds_write_b128 v{V_VST}, v[{b+4*e}:{b+4*e+3}] offset:{STAGE - 12288 + e*3072}") for e in range(4)] + ["s_mov_b64 exec, -1"]
        return l
    p += ["s_mov_b32 s62, -1", "s_mov_b32 s63, 0xffff"]
    qa = OPT["qa"]
    qb_, qc = OPT["qb"], OPT["qc"]
    R = lambda a, b: list(range(a, b))
    if OPT["greedy"]:
        p += [W("k0a")] + with_nop(q_dma(R(0, 3))) + k_cv(0, BX, 32, BX) + [W("k0b")] + istamp("k0b", True) + with_nop(q_dma(R(3, 6))) + k_cv(1, BY, 36, BX) + own_k(BX)
        p += [W("v0a")] + with_nop(q_dma(R(6, 9))) + v_cv(0, 112, 40, 112) + [W("v0b")] + with_nop(q_dma(R(9, 12))) + v_cv(1, 80, 44, 112) + own_v(112)
        p += tag_load() + with_nop(q_dma(R(12, 18))) + istamp("vst", True)
    else:
        p += [W("k0a")] + vl[1][2:] + k_cv(0, BX, 32, BX) + [W("k0b")] + istamp("k0b", True) + k_cv(1, BY, 36, BX) + own_k(BX)
        p += with_nop(q_dma(R(0, qa))) + istamp("kst", True)
        p += [W("v0a")] + sprinkle(v_cv(0, 112, 40, 112), q_dma(R(qa, qb_))) + [W("v0b")] + v_cv(1, 80, 44, 112) + own_v(112)
        p += tag_load() + with_nop(q_dma(R(qb_, 12))) + istamp("vst", True)
    p += [W("tag")] + tag_check() + istamp("tag", True)
    p += ["s_waitcnt lgkmcnt(0)", "s_barrier"] + flag_post() + tag_get() + istamp("post", True)
    if OPT["pf2"]:
        p += [f"s_mov_b32 s{S_DBG}, s60", f"s_mov_b32 s{S_DBG+1}, s61", f"s_mov_b32 s{S_DBG+2}, L_slow-{NAME}_kernel",
              "s_lshr_b32 s24, s2, 3", f"s_mul_i32 s{S_HOFF}, s24, 43", f"s_lshr_b32 s{S_HOFF}, s{S_HOFF}, 7",
              f"s_mul_i32 s{S_RET}, s{S_HOFF}, 3", f"s_sub_u32 s24, s24, s{S_RET}", "s_lshl_b32 s24, s24, 10",
              f"s_mul_i32 s{S_HOFF}, s{S_HOFF}, 12288", f"s_add_u32 s{S_HOFF}, s{S_HOFF}, s24"]
    KF = 144
    for f in range(12):
        s, tb = kfrag(f)
        p.append(DS("kf", f"ds_read_b128 v[{KF+4*f}:{KF+4*f+3}], v{V_RDK[s&1]} offset:{tb*6144 + (s>>1)*128}"))
    def qk0(qb):
        l = []
        for f in sorted(range(12), key=lambda f: kfrag(f)[::-1]):
            s, tb = kfrag(f)
            d = vr(Sq(0, qb, tb), 4)
            l.append(f"{MF} {d}, v[{KF+4*f}:{KF+4*f+3}], {Qf(qb,s)}, {'0' if s == 0 else d}")
        return l
    ps = len(POLLSITES); POLLSITES.append(ps)
    g3n = OPT["g3n"]
    pollchk = ["s_waitcnt lgkmcnt(0)"] + smem_reduce() + [f"s_cmp_ge_u32 s{S_PT}, 16", f"s_cbranch_scc1 L_pollslow{ps}", f"L_pollok{ps}:",
          f"s_add_u32 s{S_NEED}, s{S_NEED}, 1"] + istamp("poll", True)
    sm00 = rowmax2(0, (0, 1), (V_CT, V_CT + 2)) + addneg(0, 0) + addneg(0, 1) + softmax_part(0, 0)
    qrest = R(12 if OPT["greedy"] == 0 else 18, 18 + g3n)
    if OPT["own1"]:
        p += [W(("q", 0))] + q_frags(0) + [LG("tg")] + tag_use() + with_nop(q_dma(qrest[:3])) + [LG(("qf", 0))] + qk0(0)
        p += [W(("q", 1))] + q_frags(1) + with_nop(q_dma(qrest[3:6])) + [LG(("qf", 1))] + qk0(1) + ["s_nop 7"]
        g0 = pv_unchained(0, True)[:6]
        p += [rd_op(i, j, g0[i]) for i in range(2) for j in range(2)] + sprinkle(sm00, q_dma(qrest[6:])) + smem_flags() + [LG(("fr", 0), ("fr", 1))]
        p += gen_seg("S0", g0, []) + pollchk
        p += with_nop(dma_tile("k", 1, True) + dma_tile("k", 2, True) + dma_tile("k", 3, True) + dma_tile("v", 1, True)) + k_adv() + v_adv()
    else:
        p += [W(("q", 0))] + q_frags(0) + [LG("tg")] + tag_use() + [W(("q", 1))] + q_frags(1) + smem_flags()
        p += [LG(("qf", 0))] + with_nop(q_dma(qrest)) + pollchk
        p += with_nop(dma_tile("k", 1, True)) + k_adv() + v_adv()
        p += sprinkle(qk0(0) + qk0(1), dma_tile("k", 2, True)) + ["s_nop 7"]
        p += sprinkle(sm00, dma_tile("k", 3, True) + dma_tile("v", 1, True))
    sp = softmax_part
    g1 = qk_half(0, ws=(1,))
    g2 = rebase(qk_half(1), V_RDK, A1 - A0)
    g3 = pv_unchained(0, True)[6 if OPT["own1"] else 0:]
    g4 = rebase(pv_unchained(1), [V_RD], B1 - B0)
    g5 = rebase(qk_half(2, True), V_RDK, A0 - A1) + rebase(qk_half(3), V_RDK, A1 - A0)
    gi3 = rebase(qk_full(4), V_RDK, A2 - A1)
    gi4 = rebase(pv_seq(2, True), [V_RD], B0 - B1) + rebase(pv_seq(3), [V_RD], B1 - B0)
    p += istamp("pre-dk1", True) + [W(("dk", 1)), "s_barrier"] + [rd_op(i, j, g1[i]) for i in range(2) for j in range(2)]
    p += [LG(("fr", 0), ("fr", 1))]
    p += gen_seg("S1", g1, g2[:2], [], [(15, [("dk", 3)])], [], [V_(2, 3) + (0, 21)], vmgap=2)
    p += gen_seg("S2", g2, g3[:2], [(sp(0, 1), 3, 47)], [(39, [("dv", 3)])] if OPT["own1"] else [], ([("q", R(18 + g3n, 24), 0, 24)] if g3n < 6 else []) + [("ldn", "ka", 25 if g3n < 6 else 0, 47)])
    if OPT["own1"]: p += gen_seg("S3", g3, g4[:2], [(sp(1, 0), 0, 23)], [], [("ldn", "kb", 0, 23)])
    else: p += gen_seg("S3", g3, g4[:2], [(sp(1, 0), 0, 47)], [(15, [("dv", 3)])], [("ldn", "kb", 0, 22), ("ldn", "va", 23, 46, "raw")])
    p += gen_seg("S4", g4, g5[:2], [(sp(1, 1), 0, 21)], [], [("ldn", "va", 0, 30, "raw")] if OPT["own1"] else [], extra=[Stream([W(("q", 2))] + q_frags(2) + [W(("q", 3))] + q_frags(3), 16, 46)])
    p += istamp("pre-S5", True) + ["s_waitcnt lgkmcnt(0)", "s_barrier"]
    p += gen_seg("S5", g5, gi3[:2], [(rowmax2(2, (2, 3), (V_T, V_T + 2)), 27, 45), (addneg(2, 0) + addneg(2, 1) + sp(2, 0) + addneg(2, 2) + addneg(2, 3) + sp(2, 1), 46, 95)],
                 [(GBAR + 8, [("dk", 5)])], [("cv", "ka", 0, 99, 0, 34), ("cv", "kb", 0, 99, 35, 72), ("kst", 0, 73), ("kst", 1, 77), ("kst", 2, 89), ("kst", 3, 93),
                 ("ldn", "va", 36, 60, "sc")], [K_(4, 5) + (1, 24)])
    p += gen_seg("i3", gi3, gi4[:2], [(sp(3, 0) + sp(3, 1), 0, 54), (sp(4, 0), 55, 95)], [(OPT["pb"], []), (GBAR, [])],
                 [("ld", "vb", 0, 22), ("post", "kst", 0), ("cv", "va", 0, 99, 10, 95)], [K_(6, 7) + V_(4, 5) + (24, 90)])
    p += [f"s_mov_b32 s{S_CNT}, 7"]
    p += gen_seg("i4", gi4, seg_groups(5)[:2], [(sp(4, 1) + sp(5, 0), 0, 94)], [(47, []), (GBAR + 8, [("dk", 7)])],
                 [("ld", "ka", 0, 30), ("cv", "vb", 0, 99, 30, 94), ("step", "q", 30, 70), ("pollld", OPT["pl4"], OPT["pl4"] + 8)], [V_(6, 7) + (52, 84)],
                 endops=["s_nop 0", "s_branch L_join"])
    p += [".p2align 6", "L_loop:"]
    pro_ = p
    first57, tail = gen_tail()
    bodyA = []
    for k in (1, 2, 3, 4, 5, 6, 7, 0):
        if k == 5: bodyA.append("L_join:"); jpos = len(bodyA)
        eo = [f"s_sub_u32 s{S_CNT}, s{S_CNT}, 1", f"s_cmp_lg_u32 s{S_CNT}, 0", "s_cbranch_scc1 L_loop"] if k == 0 else ()
        t, d = steady(k)
        bodyA += gen_iter(16 + k, t, d, name=f"k{k}", endops=eo)
    assert [g.rd for g in first57] == [g.rd for g in seg_groups(17)[:2]]
    tailc = tail + ["L_fin:"]
    resolve(pro_ + bodyA[jpos:] + bodyA + bodyA + tailc)
    if OPT["cap"]: pro_ = pace(pro_, OPT["cap"] / 4)
    P_ = Prog()
    P_.extend(fin(pro_))
    a0 = len(P_.ins); P_.extend(fin(bodyA)); a1 = len(P_.ins)
    P_.extend(fin(tailc))
    p = P_
    if OPT["stamp"]:
        p("s_waitcnt vmcnt(0) lgkmcnt(0)")
        p.extend(istamp("end"))
        p("s_waitcnt lgkmcnt(0)")
        p.extend(istamp("end2"))
        p(f"v_writelane_b32 v{V_STAMP}, s{S_TAG+1}, 63")
        p("s_add_u32 s8, s18, 0xfa00000"); p("s_addc_u32 s9, s19, 0"); p("s_mov_b32 s10, 1048576"); p("s_mov_b32 s11, 0x20000")
        p("s_lshl_b32 s24, s2, 2"); p(f"s_add_u32 s24, s24, s{S_WAVE}"); p("s_lshl_b32 s24, s24, 8")
        p(f"v_bfe_u32 v32, v{V_DMA}, 4, 6"); p("v_lshlrev_b32 v32, 2, v32")
        p(f"buffer_store_dword v{V_STAMP}, v32, s[8:11], s24 offen")
        if OPT["stamp"] == 8: STAMPS.sort(key=lambda n: 0)
        open(sys.argv[1] + ".stamps", "w").write("\n".join(order_stamps()))
    if OPT["calx"]:
        p("s_waitcnt vmcnt(0)")
        p("L_cal:")
        p("s_memrealtime s[40:41]")
        p("s_waitcnt lgkmcnt(0)")
        p("s_sub_u32 s40, s40, s100")
        p("s_cmp_lt_u32 s40, 10000")
        p("s_cbranch_scc1 L_cal")
    p("L_done:")
    p("s_endpgm")
    main_end0 = len(p.ins)
    for ps in POLLSITES: p.extend(poll_slow(ps))
    p.extend(tag_slow())
    main_end = len(p.ins)
    p.extend(gen_slow())
    slow_end = len(p.ins)
    ji = [i for i, x in enumerate(p.ins) if x.text == "L_join:"][0]
    lin = p.ins[:a0] + p.ins[ji:a1] + p.ins[a0:main_end0]
    sl = [i for i, x in enumerate(p.ins) if x.text == "L_slowloop:"][0]
    bi = [i for i, x in enumerate(p.ins) if x.text == "s_cbranch_scc1 L_slowloop"][0]
    probs = check_hazards(lin, "main") + check_hazards(p.ins[main_end:bi+1] + p.ins[sl:slow_end], "slow") + check_hazards(p.ins[main_end0:main_end], "aux")
    for x in probs: print(x, file=sys.stderr)
    return p

def kd(name, vgpr, sgpr, accum):
    return f""".amdhsa_kernel {name}
  .amdhsa_next_free_vgpr {vgpr}
  .amdhsa_next_free_sgpr {sgpr}
  .amdhsa_accum_offset {accum}
  .amdhsa_group_segment_fixed_size 0
  .amdhsa_kernarg_size 80
  .amdhsa_user_sgpr_count 2
  .amdhsa_user_sgpr_kernarg_segment_ptr 1
  .amdhsa_system_sgpr_workgroup_id_x 1
.end_amdhsa_kernel
"""
out = HEADER
out += f"; @launch grid=(256,1,1) block=(256,1,1) lds={LDS_BYTES}\n"
out += '.amdgcn_target "amdgcn-amd-amdhsa--gfx950"\n.text\n'
out += f".globl {NAME}_kernel\n.p2align 8\n.type {NAME}_kernel,@function\n" + gen_main().text()
out += '.section .rodata,"a"\n.p2align 6\n' + kd(NAME + "_kernel", 512, 102, 256)
open(sys.argv[1], "w").write(out)
```

```python
import sys, math
from asmlib import *

NAME = "standalone__kv_cache_quant_int4_int2_kv_with_per_channel_or_per_token_scales__prompt"
OPT = dict(stamp=0, vmgap=4, sb=6, sa=6, ahead=4, thr=64, pf2=1, calx="", qa=6, plv=2, plk=10, ckv=1, ckk=1, tden=24, touch=0, w0poll=0, cap=48, qb=6, q3e=1, ksc=0, few=1, qc=15, pb=39, pl4=40, l2=0, k1e=0, greedy=0, g3n=3, pre=0, own1=1, ab=0, pk=0, split=0, prent=1)
for a in sys.argv[2:]:
    k, v = a.split("="); OPT[k] = int(v) if v.lstrip("-").isdigit() else v
NS = 6
STAGE = 24576
HEADBYTES = 64 * STAGE
RING = NS * STAGE
LDS_BYTES = RING + 128
A0, B0, A1, B1, A2, B2 = [i * STAGE for i in range(6)]
CSCALE = (192.0 ** -0.5) * math.log2(math.e)
HEADER = open("cdna_kernels/" + NAME + ".s.ref").read().split("; Override launch geometry")[0]
MF = "v_mfma_f32_16x16x32_bf16"

V_FVAL = 0; V_RD = 1; V_RDK = [2, 3]; V_DMA = 4; V_L = [5, 6, 7, 8]
V_KLD = 9; V_KSC = 10; V_KST = 11; V_VLD = 12; V_FLAG = 13; V_RD2 = 14
V_T = 16; NTP = 2
V_VST = 20; V_STAMP = 21
V_FR = 24; NFS = 6
V_CT = 48; V_VO = 52; V_RS = [56, 60]; BX = 224; BY = 240; BZ = 144
V_POLL = V_VO; V_KA = V_VO + 2
UNIT = [64, 80, 160, 176]; HI = [96, 112]
VQD = 136; VQR = [22, 23, 142, 143]
def Sq(t, sl, tb): return (UNIT[t % 4] if tb == 0 else HI[t % 2]) + 4 * sl
def P(t, sl): return UNIT[t % 4] + 4 * sl
def NEGM(qb): return 128 + 4 * qb
def O(qb, db): return (qb * 12 + db) * 4
def Qf(qb, s, half=None):
    i = qb * 6 + s
    base, f = (192 + 4 * i, ar) if i < 16 else (192 + 4 * (i - 16), vr)
    return f(base, 4) if half is None else f(base + 2 * half, 2)
def FR(f): return vr(V_FR + 4 * (f % NFS), 4)

S_RDELTA = 3; S_WS = 4; S_Q = 8; S_OUT = 12; S_FLG = 20
S_WAVE = 25; S_DMK = 26; S_GOFF = 27; S_RK = 28; S_TMP = 29; S_RV = 30; S_CNT = 31; S_GOFFK = 32
S_PK0 = 33; S_PK1 = 34; S_PV0 = 35; S_PKS = 36; S_PVS = 37; S_CS = 38; S_RET = 39; S_PV1 = 16; S_PV2 = 17
S_QL = 40; S_QS = 41; S_TAG = 42; S_FOFF = 44; S_XCC = 45; S_OWN = 46
S_PT = 48; S_DMV = 56; S_TK = 57; S_TV = 58; S_TP = 59
S_QK = 64; S_QV = 68; S_KS = 72; S_KZ = 76; S_VS = 80; S_VZ = 84; S_DBG = 88
S_NEED = 92; S_HOFF = 93; S_HEAD = 94; S_QB = 95; S_BUDGET = 96; S_MASK = 97
WSOFF = OPT.get("wsoff", 0) << 20
FLAG_OFF = WSOFF + (49 << 20)
SC1 = " sc1"; NTKV = " nt"; NTQ = " nt"; STF = " sc1"; OF = " sc0 sc1"

STAMPS = []
def istamp(name, force=False):
    if OPT["calx"] == name: return ["s_memrealtime s[100:101]"]
    if OPT["stamp"] not in (6, 8, 9): return []
    if OPT["stamp"] == 8 and name.startswith("k") and not force: return []
    if OPT["few"] and force and name not in ("karg", "k0b", "vst", "tag", "post", "poll", "postV", "pollV", "pre-dk1"): return []
    if OPT["stamp"] != 8 and force: return []
    STAMPS.append(name)
    return ["s_waitcnt lgkmcnt(0)"] * (1 if force else 0) + [f"v_mov_b32_dpp v{V_STAMP}, v{V_STAMP} wave_shr:1 row_mask:0xf bank_mask:0xf", f"v_writelane_b32 v{V_STAMP}, s98, 0",
            ("s_memtime" if OPT["stamp"] == 6 else "s_memrealtime") + " s[98:99]"]

def order_stamps():
    l = list(STAMPS); out = []
    for n in l:
        if "." in n: continue
        out.append(n); out += [m for m in l if m.startswith(n + ".")]
    return out
class W:
    def __init__(self, *tags): self.tags = tags
class VM:
    def __init__(self, tag, text): self.tag = tag; self.text = text
class LG:
    def __init__(self, *tags): self.tags = tags
class DS:
    def __init__(self, tag, text): self.tag = tag; self.text = text

def mode_of(t):
    return {0: "a", 1: "a", 2: "b", 3: "b", 58: "a", 59: "a", 60: "a", 61: "b", 62: "b", 63: "b"}.get(t, "f")
def slot_q(t, sl):
    m = mode_of(t)
    return sl if m == "f" else (sl & 1) + (0 if m == "a" else 2)
def softmax_part(t, half):
    flat = []; prev = None
    for gp in range(8):
        sl = 2 * half + gp // 4; pi = gp % 4; l = V_L[slot_q(t, sl)]
        t0 = V_T + 2 * (gp % NTP); t1 = t0 + 1
        src = Sq(t, sl, pi >> 1) + 2 * (pi & 1)
        E = [f"v_exp_f32 v{t0}, v{src}", f"v_exp_f32 v{t1}, v{src+1}"]
        A = [f"v_add_f32 v{l}, v{l}, v{t0}", f"v_add_f32 v{l}, v{l}, v{t1}"]
        C = [f"v_cvt_pk_bf16_f32 v{P(t,sl)+pi}, v{t0}, v{t1}"]
        if 16 <= t < 26:
            if OPT["ab"] & 1: A = []
            if OPT["ab"] & 2: E = [x.replace("v_exp_f32", "v_mov_b32") for x in E]
            if OPT["ab"] & 32: C = []
            if OPT["ab"] & 64: E = []; A = []; C = []
        flat += E if prev is None else E[:1] + prev[0] + E[1:] + prev[1]
        prev = (A, C)
    return flat + prev[0] + prev[1]

class Grp:
    def __init__(self, rd, mf): self.rd = rd; self.mf = mf; self.reb = []
def qk_tile(t, w, slots, czero=False):
    gs = []
    for gi in range(6):
        s0 = 2 * (gi >> 1); tb = gi & 1
        rd = [(V_RDK[j], w * 12288 + tb * 6144 + (s0 >> 1) * 128) for j in range(2)]
        mf = []
        for sl, qb in slots:
            d = vr(Sq(t, sl, tb), 4)
            mf += [(0, d, Qf(qb, s0), (("0" if czero else vr(NEGM(qb), 4)) if s0 == 0 else d)), (1, d, Qf(qb, s0 + 1), d)]
        gs.append(Grp(rd, mf))
    return gs
def qk_full(t): return [g for w in range(2) for g in qk_tile(t + w, w, [(q, q) for q in range(4)])]
def qk_half(t, czero=False, ws=(0, 1)):
    return [g for w in ws for g in qk_tile(t, w, [(2 * w + j, slot_q(t, j)) for j in range(2)], czero)]
def pv_grp(t, db, first=False, va=V_RD):
    m = mode_of(t); mf = []
    for qb in (range(4) if m == "f" else [slot_q(t, 0), slot_q(t, 1)]):
        d = ar(O(qb, db), 4)
        for w in range(2):
            b = P(t + w, qb) if m == "f" else P(t, 2 * w + (qb & 1))
            mf.append((w, d, vr(b, 4), "0" if (first and w == 0) else d))
    return Grp([(va, w * 12288 + db * 1024) for w in range(2)], mf)
def pv_seq(t, first=False): return [pv_grp(t, db, first) for db in range(12)]
def pv_unchained(t, first=False):
    gs = []
    for w in range(2):
        for d0 in range(0, 12, 2):
            mf = []
            for j in range(2):
                qb = slot_q(t, j)
                for e in range(2):
                    d = ar(O(qb, d0 + e), 4)
                    mf.append((e, d, vr(P(t, 2 * w + j), 4), "0" if (first and w == 0) else d))
            gs.append(Grp([(V_RD, w * 12288 + (d0 + e) * 1024) for e in range(2)], mf))
    return gs
def rebase(gs, regs, delta):
    op = "v_add_u32" if delta >= 0 else "v_subrev_u32"
    gs[0].reb += [f"{op} v{r}, {abs(delta)}, v{r}" for r in regs]
    return gs
def rd_op(gi, j, g):
    f = 2 * gi + j
    return DS(("fr", f % NFS), f"ds_read_b128 {FR(f)}, v{g.rd[j][0]} offset:{g.rd[j][1]}")

def dma_tile(part, pos, peel=False):
    dm, go, tmp = (S_DMK, S_GOFFK, S_TK) if part == "k" else (S_DMV, S_GOFF, S_TV)
    l = [f"s_mov_b32 m0, s{dm}"]
    for j in range(3):
        l.append(VM(("d" + part, pos % 8), f"buffer_load_dwordx4 v{V_DMA}, s[{S_WS}:{S_WS+3}], s{go} offen offset:{j*1024}{SC1} lds"))
    if peel and pos < 7:
        l += [f"s_add_u32 s{go}, s{go}, {STAGE}", f"s_sub_u32 s{tmp}, s{go}, {8*STAGE}", f"s_min_u32 s{go}, s{go}, s{tmp}"]
    elif peel and pos == 7:
        l += [f"s_mov_b32 s{go}, {8*STAGE + (0 if part == 'k' else 12288)}"]
    else:
        l += [f"s_add_u32 s{go}, s{go}, {STAGE}"]
    if pos % 2 == 0: l += [f"s_add_u32 s{dm}, s{dm}, 12288"]
    else: l += [f"s_add_u32 s{dm}, s{dm}, {2*STAGE - 12288}", f"s_sub_u32 s{tmp}, s{dm}, {RING}", f"s_min_u32 s{dm}, s{dm}, s{tmp}"]
    return l
QOFF = [STAGE, 0, 2 * STAGE, STAGE]
def q_dma(lst):
    l = []
    for i in lst:
        a, b = divmod(i, 6)
        l += [f"s_mov_b32 s{S_QS}, {a*6144}"] * (1 if (b == 0 or i == lst[0]) else 0)
        l += [f"s_add_u32 m0, s{S_QL}, {QOFF[a] + b*1024}",
              VM(("q", a), f"buffer_load_dwordx4 v{VQD+b}, s[{S_Q}:{S_Q+3}], s{S_QS} offen{NTQ} lds")]
    return l
def q_frags(qb):
    l = []
    for s in range(6):
        for h in range(2):
            sp = s + 6 * h
            l.append(DS(("qf", qb), f"ds_read_b64 {Qf(qb,s,h)}, v{VQR[sp&3]} offset:{QOFF[qb] + (sp>>2)*128}"))
    return l
def with_nop(l):
    out = []
    for i, x in enumerate(l):
        out.append(x)
        if isinstance(x, str) and " m0," in x and i + 1 < len(l) and isinstance(l[i + 1], VM): out.append("s_nop 0")
    return out
def rd_step(kind):
    cur, regs = (S_RK, V_RDK) if kind == "q" else (S_RV, [V_RD])
    return [f"s_add_u32 s{S_TMP}, s{cur}, {2*STAGE}", f"s_sub_u32 s{S_RDELTA}, s{S_TMP}, {RING}",
            f"s_min_u32 s{S_TMP}, s{S_TMP}, s{S_RDELTA}", f"s_sub_u32 s{S_RDELTA}, s{S_TMP}, s{cur}", f"s_mov_b32 s{cur}, s{S_TMP}"] + \
           [f"v_add_u32 v{r}, s{S_RDELTA}, v{r}" for r in regs]

def k_ld(h, buf, rs, tag, scal_first=True):
    sc = [VM(tag, f"buffer_load_dwordx2 v[{rs+2*i}:{rs+2*i+1}], v{V_KSC}, s[{srd_}:{srd_+3}], s{S_PKS} offen offset:{192*h}")
          for i, srd_ in enumerate((S_KS, S_KZ))]
    l = []
    for j in range(4):
        so = S_PK0 if j < 2 else S_PK1
        l.append(VM(tag, f"buffer_load_dwordx4 v[{buf+4*j}:{buf+4*j+3}], v{V_KLD}, s[{S_QK}:{S_QK+3}], s{so} offen offset:{(j&1)*1536+384*h}{NTKV}"))
    return sc + l if scal_first else l + sc
def v_ld(h, buf, rs, tag, scal_first=True):
    sc = [VM(tag, f"buffer_load_dwordx2 v[{rs+2*i}:{rs+2*i+1}], off, s[{srd_}:{srd_+3}], s{S_PVS} offset:{8*h}")
          for i, srd_ in enumerate((S_VS, S_VZ))]
    l = []
    for r in range(4):
        so = S_PV0 if h == 0 else S_PV1
        l.append(VM(tag, f"buffer_load_dwordx4 v[{buf+4*r}:{buf+4*r+3}], v{V_VLD}, s[{S_QV}:{S_QV+3}], s{so} offen offset:{r*768}{NTKV}"))
    return sc + l if scal_first else l + sc
def k_cv(h, buf, rs, out):
    l = []
    s0, s1, z0, z1 = V_CT, V_CT + 1, V_CT + 2, V_CT + 3
    for i in range(2):
        l += [f"v_lshlrev_b32 v{s0}, 16, v{rs+i}", f"v_and_b32 v{s1}, s{S_MASK}, v{rs+i}",
              f"v_lshlrev_b32 v{z0}, 16, v{rs+2+i}", f"v_and_b32 v{z1}, s{S_MASK}, v{rs+2+i}",
              f"v_mul_f32 v{s0}, s{S_CS}, v{s0}", f"v_mul_f32 v{s1}, s{S_CS}, v{s1}",
              f"v_mul_f32_e64 v{z0}, -v{z0}, v{s0}", f"v_mul_f32_e64 v{z1}, -v{z1}, v{s1}"]
        for j in range(4):
            a = buf + 4 * j + 2 * i; b = a + 1
            l += [f"v_cvt_f32_i32 v{a}, v{a}", f"v_cvt_f32_i32 v{b}, v{b}",
                  f"v_fma_f32 v{a}, v{a}, v{s0}, v{z0}", f"v_fma_f32 v{b}, v{b}, v{s1}, v{z1}",
                  f"v_cvt_pk_bf16_f32 v{out+4*j+2*h+i}, v{a}, v{b}"]
    return l
def k_st(j, out, tag="kst", STF=STF):
    va = V_KST; g = []
    if j:
        va = V_KA + (j & 1); g.append(f"v_xor_b32 v{va}, {16*j}, v{V_KST}")
    g.append(VM(tag, f"buffer_store_dwordx4 v[{out+4*j}:{out+4*j+3}], v{va}, s[{S_WS}:{S_WS+3}], s{S_PK0} offen offset:{j*768}{STF}"))
    return g
def v_cv(h, buf, rs, out):
    l = []
    s0, s1, z0, z1 = V_CT, V_CT + 1, V_CT + 2, V_CT + 3
    for i in range(2):
        l += [f"v_lshlrev_b32 v{s0}, 16, v{rs+i}", f"v_and_b32 v{s1}, s{S_MASK}, v{rs+i}",
              f"v_lshlrev_b32 v{z0}, 16, v{rs+2+i}", f"v_and_b32 v{z1}, s{S_MASK}, v{rs+2+i}",
              f"v_mul_f32_e64 v{z0}, -v{z0}, v{s0}", f"v_mul_f32_e64 v{z1}, -v{z1}, v{s1}"]
        for e in range(4):
            a = buf + 4 * (2 * i) + e; b = buf + 4 * (2 * i + 1) + e
            l += [f"v_cvt_f32_i32 v{a}, v{a}", f"v_cvt_f32_i32 v{b}, v{b}",
                  f"v_fma_f32 v{a}, v{a}, v{s0}, v{z0}", f"v_fma_f32 v{b}, v{b}, v{s1}, v{z1}"]
    for e, i in [(0, 0), (1, 0), (0, 1), (1, 1), (2, 0), (2, 1), (3, 0), (3, 1)]:
        l.append(f"v_cvt_pk_bf16_f32 v{out+4*e+2*h+i}, v{buf+8*i+e}, v{buf+8*i+4+e}")
    return l
def v_st(e, out, tag="vst", STF=STF):
    so = S_PV0 if e < 2 else S_PV2
    return [VM(tag, f"buffer_store_dwordx4 v[{out+4*e}:{out+4*e+3}], v{V_VST}, s[{S_WS}:{S_WS+3}], s{so} offen offset:{(e&1)*3072}{STF}")]
def k_adv():
    return [f"s_add_u32 s{S_PK0}, s{S_PK0}, {8*STAGE}", f"s_add_u32 s{S_PK1}, s{S_PK1}, {8*STAGE}", f"s_add_u32 s{S_PKS}, s{S_PKS}, {4*384}"]
def v_adv():
    return [f"s_add_u32 s{r}, s{r}, {8*STAGE}" for r in (S_PV0, S_PV1, S_PV2)] + [f"s_add_u32 s{S_PVS}, s{S_PVS}, {8*64}"]
HT = {"ka": (k_ld, k_cv, 0, BX, V_RS[0], BX), "kb": (k_ld, k_cv, 1, BY, V_RS[1], BX),
      "va": (v_ld, v_cv, 0, BZ, V_RS[0], BZ), "vb": (v_ld, v_cv, 1, BY, V_RS[1], BZ)}
def flag_post(first=False):
    return [f"v_add_u32 v{V_FVAL}, 1, v{V_FVAL}"] + [
            VM("flag", f"buffer_store_dword v{V_FVAL}, v{V_FLAG}, s[{S_FLG}:{S_FLG+3}], 0 offen")] * (OPT["l2"] == 1 or (OPT["l2"] == 2 and first)) + [
            VM("flag", f"buffer_store_dword v{V_FVAL}, v{V_FLAG}, s[{S_FLG}:{S_FLG+3}], 0 offen offset:32 sc1")]
def poll_addr():
    return [f"v_bfe_u32 v{V_POLL+1}, v{V_DMA}, 4, 6", f"v_lshlrev_b32 v{V_POLL+1}, 2, v{V_POLL+1}"]
def poll_load():
    return poll_addr() + [VM("poll", f"buffer_load_dword v{V_POLL}, v{V_POLL+1}, s[{S_FLG}:{S_FLG+3}], s{S_FOFF} offen sc1")]
def poll_test():
    return [f"v_subrev_u32 v{V_POLL}, s{S_NEED}, v{V_POLL}", f"v_cmp_lt_u32 vcc, 15, v{V_POLL}", "s_nop 0", f"s_and_b32 s{S_TP}, vcc_lo, 0xff"]
def smem_flags():
    return [f"s_buffer_load_dwordx8 s[{S_PT}:{S_PT+7}], s[{S_FLG}:{S_FLG+3}], s{S_FOFF} glc"]
def smem_reduce():
    return [f"s_sub_u32 s{S_PT+i}, s{S_PT+i}, s{S_NEED}" for i in range(8)] + [f"s_max_u32 s{S_PT}, s{S_PT}, s{S_PT+i}" for i in range(1, 8)]
def smem_test():
    return smem_flags() + ["s_waitcnt lgkmcnt(0)"] + smem_reduce() + [f"s_cmp_lt_u32 s{S_PT}, 16"]
def poll_slow(site):
    l = [f"L_pollslow{site}:"] + ([f"s_add_u32 s{S_TAG+1}, s{S_TAG+1}, {1 << (6 * site)}"] if OPT["stamp"] else [])
    l += [f"s_mov_b32 s{S_TP}, {60 if site == 0 else 200}", f"L_pollsm{site}:"] + smem_test() + [f"s_cbranch_scc1 L_pollok{site}",
          f"s_sub_u32 s{S_TP}, s{S_TP}, 1", f"s_cbranch_scc1 L_pollvec{site}", "s_sleep 1", f"s_branch L_pollsm{site}"]
    l += [f"L_pollvec{site}:"] + poll_addr() + [
            f"s_sub_u32 s{S_BUDGET}, s{S_BUDGET}, 1",
            f"s_cbranch_scc1 L_pollgiveup{site}",
            "s_sleep 2",
            f"buffer_load_dword v{V_POLL}, v{V_POLL+1}, s[{S_FLG}:{S_FLG+3}], s{S_FOFF} offen sc1",
            "s_waitcnt vmcnt(0)"]
    if site == 0 and OPT["l2"]:
        l += [f"s_cmp_lg_u32 s{S_FOFF}, 0", "s_cbranch_scc1 L_nomix",
              f"v_xor_b32 v{V_POLL+1}, s{S_NEED}, v{V_POLL}", f"v_lshrrev_b32 v{V_POLL+1}, 5, v{V_POLL+1}", f"v_add_u32 v{V_POLL+1}, -1, v{V_POLL+1}",
              f"v_cmp_gt_u32 vcc, 31, v{V_POLL+1}", "s_nop 1", f"s_and_b32 s{S_TP}, vcc_lo, 0xff00", "s_cbranch_scc0 L_nomix"]
        l += fin([x for j in range(4) for x in k_st(j, BX)] + [x for e in range(4) for x in v_st(e, 112)])
        l += ["s_waitcnt vmcnt(0)", "s_barrier", f"s_and_b32 s{S_NEED}, s{S_NEED}, 0xfffffc00", f"s_add_u32 s{S_NEED}, s{S_NEED}, {16 << 5}",
              f"v_mov_b32 v{V_FVAL}, s{S_NEED}", f"s_add_u32 s{S_NEED}, s{S_NEED}, 1", f"s_mov_b32 s{S_FOFF}, 32"] + fin(flag_post()) + ["s_branch L_pollvec0", "L_nomix:"]
    l += poll_test() + [
            f"s_cbranch_scc1 L_pollvec{site}",
            f"s_branch L_pollok{site}",
            f"L_pollgiveup{site}:",
            f"s_mov_b32 s{S_BUDGET}, 0",
            f"s_branch L_pollok{site}"]
    return l
def tag_load():
    return [VM("tag", f"buffer_load_dword v{V_FVAL}, off, s[{S_DBG}:{S_DBG+3}], s{S_HOFF} sc1")]
def tag_check():
    return [f"s_cmp_lg_u32 s{S_WAVE}, 0", "s_cbranch_scc1 L_tagdone",
            f"v_readfirstlane_b32 s{S_TAG}, v{V_FVAL}", f"s_mov_b32 s{S_RET}, 100",
            "s_waitcnt lgkmcnt(0)", f"s_and_b32 s{S_OWN}, s{S_OWN}, 0xfffffc00",
            "L_tagretry:", f"s_cmp_eq_u32 s{S_TAG}, s{S_OWN}", f"s_cselect_b32 s{S_TAG}, 0, s{S_TAG}", f"s_cmp_lg_u32 s{S_TAG}, 0", "s_cbranch_scc1 L_tagok",
            f"s_sub_u32 s{S_RET}, s{S_RET}, 1", "s_cbranch_scc1 L_tagslow", "s_sleep 4",
            f"s_buffer_load_dword s{S_TAG}, s[{S_DBG}:{S_DBG+3}], s{S_HOFF} glc", "s_waitcnt lgkmcnt(0)", "s_branch L_tagretry",
            "L_tagok:", f"s_add_u32 s{S_TAG}, s{S_TAG}, s{S_XCC}", f"v_mov_b32 v{V_FVAL}, s{S_TAG}", f"v_mov_b32 v{V_T}, {RING}", DS("w", f"ds_write_b32 v{V_T}, v{V_FVAL}"), "L_tagdone:"]
def tag_get():
    return [f"v_mov_b32 v{V_T}, {RING}", DS("tg", f"ds_read_b32 v{V_T+1}, v{V_T}")]
def tag_use():
    return [f"v_readfirstlane_b32 s{S_NEED}, v{V_T+1}", f"s_add_u32 s{S_NEED}, s{S_NEED}, 1"]
def tag_slow():
    return ["L_tagslow:",
            f"s_sub_u32 s{S_BUDGET}, s{S_BUDGET}, 1",
            "s_cbranch_scc1 L_taggiveup",
            "s_sleep 2",
            f"buffer_load_dword v{V_FVAL}, off, s[{S_DBG}:{S_DBG+3}], s{S_HOFF} sc1",
            "s_waitcnt vmcnt(0)",
            f"v_readfirstlane_b32 s{S_TAG}, v{V_FVAL}", "s_nop 0", f"s_cmp_eq_u32 s{S_TAG}, s{S_OWN}", "s_cbranch_scc1 L_tagslow",
            f"s_cmp_eq_u32 s{S_TAG}, 0", "s_cbranch_scc1 L_tagslow",
            "s_branch L_tagok",
            "L_taggiveup:",
            f"s_mov_b32 s{S_BUDGET}, 0",
            "s_branch L_tagok"]

def text_of(x):
    return "s_waitcnt" if isinstance(x, (W, LG)) else (x.text if isinstance(x, (VM, DS)) else x)
def kind_of(x):
    t = text_of(x)
    if t.endswith(":"): return "label"
    if t.startswith("v_"): return "valu"
    if t.startswith("ds_"): return "ds"
    if t.startswith("buffer_store"): return "store"
    if t.startswith("buffer_"): return "load"
    return "salu"
def cost_of(x):
    k = kind_of(x); t = text_of(x)
    if k == "label": return 0
    if k == "store": return 20 if "x4" in t else 8
    if k == "load": return 8
    if t.startswith("ds_write"): return 16
    if t.startswith(("v_exp", "v_rcp")): return 8
    if t.startswith("s_nop"): return 4 * (int(t.split()[1]) + 1)
    if t.startswith("s_cbranch") or t.startswith("s_branch"): return 12
    if t.startswith("s_barrier"): return 8
    return 4
def gap_time(ops):
    t = 4; prev = None
    for o in ops:
        k = kind_of(o)
        if k == "label": continue
        if k == "salu": t += cost_of(o)
        else: t = max(t, 8) + cost_of(o) + (8 if (k != "valu" and prev == "valu") else 0)
        prev = k
    return t

class Stream:
    def __init__(self, ops, first, last, maxper=99, dense=0):
        self.ops = list(ops); self.first = first; self.last = last; self.maxper = maxper; self.dense = dense
        self.total = sum(cost_of(o) for o in self.ops); self.done = 0; self.i = 0

def pack(NG, A, B, C, T, streams, novm=(), nosalu=(), vmgap=4):
    out = []; over = 0; lastvm = -99
    for g in range(NG):
        a, b, c, tl = list(A[g]), list(B[g]), list(C[g]), list(T[g])
        cnt = {}; inC = set(); blocked = set()
        while True:
            best = None; bl = None; bsec = None
            for st in streams:
                if st.i >= len(st.ops) or g < st.first: continue
                force = g >= st.last
                if (cnt.get(id(st), 0) >= st.maxper or id(st) in blocked) and not force: continue
                o = st.ops[st.i]; k = kind_of(o); cst = cost_of(o)
                if k == "salu" and g in nosalu:
                    assert not force, (g, text_of(o))
                    continue
                if k in ("load", "store") and (g in novm or g - lastvm < vmgap) and not force: continue
                if k in ("load", "store", "ds"):
                    sec = "b" if id(st) not in inC and id(st) not in blocked else "c"
                    if sec == "c" and not force: continue
                elif k == "salu" and not a and cnt.get(id(st), 0) == 0:
                    sec = "a"
                else: sec = "c"
                tgt = st.total * (g - st.first + 1) / (st.last - st.first + 1)
                lag = tgt - st.done
                if not force:
                    if lag < cst / 2 - OPT["ahead"] and cst: continue
                    trial = (a + [o] if sec == "a" else a) + (b + [o] if sec == "b" else b) + (c + [o] if sec == "c" else c) + tl
                    gt = gap_time(trial)
                    if gt > 16:
                        if g % 2 == 0: continue
                        big = k == "store" or text_of(o).startswith("ds_write")
                        lim = max(20, st.dense) if lag > 24 else 16
                        if big and not (a + b + c + tl): lim = 32
                        if gt > lim: continue
                key = (force, k in ("load", "store"), lag / max(1, (st.last - g + 1)) ** 0.5)
                if best is None or key > bl: best = st; bl = key; bsec = sec
            if best is None: break
            o = best.ops[best.i]
            if bsec == "a": a.append(o)
            elif bsec == "b":
                b.append(o)
            else: c.append(o)
            if bsec == "c" or bsec == "b" and kind_of(o) != "ds" and False: inC.add(id(best))
            if bsec == "c": inC.add(id(best))
            if " m0," in text_of(o): blocked.add(id(best))
            if kind_of(o) in ("load", "store"): lastvm = g
            best.i += 1; best.done += cost_of(o); cnt[id(best)] = cnt.get(id(best), 0) + 1
        ops = a + b + c + tl
        tt = gap_time(ops)
        if tt > 16: over += tt - 16
        out.append(ops)
    for st in streams: assert st.i == len(st.ops)
    return out, over

POLLSITES = []
def gen_seg(name, groups, nxt, sm=(), bars=(), tasks=(), dma=(), extra=(), endops=(), fixed=(), peel=True, vmgap=None):
    starts = []; n = 0
    for g in groups: starts.append(n); n += len(g.mf)
    NG = n
    A = [[] for _ in range(NG)]; B = [[] for _ in range(NG)]; C = [[] for _ in range(NG)]; T = [[] for _ in range(NG)]
    streams = []; novm = set(range(0, NG, 2)); nosalu = set()
    allg = list(groups) + list(nxt)
    assert len(groups) % 3 == 0
    for i, g in enumerate(groups):
        g0 = starts[i]; ln = len(g.mf)
        if i + 2 < len(allg):
            t = allg[i + 2]
            if not (OPT["ab"] & 4 and name.startswith("k") and i % 2): B[g0].append(rd_op(i + 2, 0, t)); B[g0 + ln // 2].append(rd_op(i + 2, 1, t))
            if t.reb:
                assert g0 > 0
                C[g0 - 1] += t.reb
        if i + 1 < len(allg):
            A[g0 + ln - 1].append(LG(("fr", (2 * i + 2) % NFS), ("fr", (2 * i + 3) % NFS)))
    for ops, f, l in sm: streams.append(Stream(ops, f, l))
    streams += list(extra)
    if endops:
        A[NG-4] += endops[:1]; A[NG-2] += [A[NG-1][0]] + list(endops[1:-1]); A[NG-1] = []; T[NG-1] = list(endops[-1:]); nosalu |= {NG-2, NG-1}
    for grp in dma:
        dl = []
        for part, pos in grp[:-2]: dl += dma_tile(part, pos, peel)
        k = max(i for i, x in enumerate(dl) if isinstance(x, VM)) + 1
        lim = NG - 3 if endops else NG - 1
        if grp[-1] + 1 > lim: k = len(dl)
        streams.append(Stream(dl[:k], grp[-2], grp[-1], maxper=2))
        if dl[k:]: streams.append(Stream(dl[k:], grp[-1] + 1, min(lim, grp[-1] + 12), maxper=2))
    bars = [(g, list(tg)) for g, tg in bars]
    for t in tasks:
        k_ = t[0]
        if k_ == "cv":
            _, cv, h, buf, rs, outb = HT[t[1]]
            ops = cv(h, buf, rs, outb)[t[2]:t[3]]
            if t[2] == 0: ops = [W(t[1])] + ops
            streams.append(Stream(ops, t[4], t[5]))
        elif k_ in ("kst", "vst"):
            grp = k_st(t[1], BX) if k_ == "kst" else v_st(t[1], BZ)
            g = t[2]; assert g % 2 == 1 and not B[g] and not A[g], (name, g)
            B[g].append(grp[-1]); novm |= set(range(g - OPT["sb"], g + OPT["sa"] + 1))
            if grp[:-1]: streams.append(Stream(grp[:-1], max(0, g - 5), g - 1))
        elif k_ in ("ld", "ldn"):
            ld, _, h, buf, rs, _o = HT[t[1]]
            adv = {"ka": k_adv(), "va": v_adv()}.get(t[1], []) if k_ == "ld" else []
            ops = ld(h, buf, rs, t[1])
            if len(t) > 4: ops = ops[2:] if t[4] == "raw" else ops[:2]
            streams.append(Stream(adv + ops, t[2], t[3], maxper=1))
        elif k_ == "post":
            bi = t[2] if len(t) > 2 else -1
            bars[bi][1].append(t[1])
            streams.append(Stream(flag_post(), bars[bi][0] + 1, min(NG - 3, bars[bi][0] + 14), maxper=1))
        elif k_ == "pf":
            streams.append(Stream([VM("pf", f"buffer_load_dword v15, v{V_DMA}, s[{S_DBG}:{S_DBG+3}], s{S_HOFF} offen")], t[1], t[2]))
        elif k_ == "pollld": streams.append(Stream(poll_load(), t[1], t[2], maxper=1))
        elif k_ == "pollchk":
            ps = len(POLLSITES); POLLSITES.append(ps)
            g = t[1]; assert g % 4 == 1
            pt = poll_test()
            A[g] += [W("poll")]; T[g] += pt[:2]; novm |= {g, g + 4}
            A[g + 3] += [pt[3]]; A[g + 4] += [f"s_cbranch_scc1 L_pollslow{ps}", f"L_pollok{ps}:"]; nosalu |= {g + 3, g + 4}
            A[g + 5] += [f"s_add_u32 s{S_NEED}, s{S_NEED}, 1"]
        elif k_ == "spollld": A[t[1]] += smem_flags()
        elif k_ == "spollchk":
            ps = len(POLLSITES); POLLSITES.append(ps)
            A[t[1]] += ["s_waitcnt lgkmcnt(0)"]
            streams.append(Stream(smem_reduce(), t[1] + 1, t[2] - 1, maxper=3))
            A[t[2]] += [f"s_cmp_ge_u32 s{S_PT}, 16", f"s_cbranch_scc1 L_pollslow{ps}", f"L_pollok{ps}:", f"s_add_u32 s{S_NEED}, s{S_NEED}, 1"]
        elif k_ == "step": streams.append(Stream(rd_step(t[1]), t[2], t[3], maxper=1))
        elif k_ == "q": streams.append(Stream(q_dma(t[1]), t[2], t[3], maxper=2))
        else: raise Exception(k_)
    for g, tags in bars:
        i = [j for j in range(len(groups)) if starts[j] + len(groups[j].mf) - 1 == g]
        assert i, (name, g)
        if len(groups[i[0]].mf) == 8:
            A[g - 2] += A[g]; A[g] = []
            if tags: A[g - 1] += [W(*tags)]
        elif tags: A[g - 2] += [W(*tags)]
        A[g] += ["s_barrier"]; novm |= {g}
    for g, sec, ops in fixed: {"A": A, "B": B, "C": C, "T": T}[sec][g] += ops
    if endops:
        for st_ in streams: st_.last = min(st_.last, NG - 2)
    m0w = sorted((st.first, st.last) for st in streams if any(" m0," in text_of(o) for o in st.ops))
    assert all(m0w[i][1] < m0w[i + 1][0] for i in range(len(m0w) - 1)), (name, m0w)
    fill, over = pack(NG, A, B, C, T, streams, novm, nosalu, vmgap or OPT["vmgap"])
    if over: print(f"seg {name}: over budget by {over} cycles", file=sys.stderr)
    out = istamp(name)
    g = 0
    for i, gr in enumerate(groups):
        for j, d, b, c in gr.mf:
            out.append(f"{MF} {d}, {FR(2*i+j)}, {b}, {c}")
            out += fill[g]; g += 1
    return with_nop(out)

GBAR = 79
def seg_groups(it):
    return qk_full(it + 1) if it % 2 else pv_seq(it - 2)
def gen_iter(it, tasks=(), dma=(), name=None, endops=(), peel=False, nxt=None, extra=(), bars=None, groups=None, sm=None, step=True):
    q = it % 2
    smB = softmax_part(it, 1); smA = softmax_part(it + 1, 0)
    if sm is None: sm = [(smB, 0, 50), (smA, 52, 95)] if q else [(smB + smA, 0, 95)]
    need = [("dv", (it - 1) % 8), ("dv", it % 8)] if q else [("dk", (it + 2) % 8), ("dk", (it + 3) % 8)]
    tasks = list(tasks) + ([("step", "p" if q else "q", 30, GBAR - 3)] if step else [])
    return gen_seg(name or f"i{it}", groups or seg_groups(it), nxt if nxt is not None else seg_groups(it + 1)[:2], sm,
                   bars if bars is not None else [(GBAR, need)], tasks, dma, extra, endops, peel=peel)

K_ = lambda *j: tuple(("k", x) for x in j)
V_ = lambda *j: tuple(("v", x) for x in j)
def steady(k):
    ckv, ckk = OPT["ckv"], OPT["ckk"]
    plv, plk = OPT["plv"], OPT["plk"]
    return {
        1: ([("cv", "va", 0, 22, 0, 95), ("ld", "vb", 0, 44)], [V_(2, 3) + (0, GBAR - 5)]),
        2: ([("cv", "va", 22, 99, 0, 95), ("kst", 0, 1), ("kst", 1, 9), ("kst", 2, 17), ("kst", 3, 25), ("post", "kst")], [K_(6, 7) + (33, 74)]),
        3: ([("cv", "vb", 0, 22, 0, 95), ("ld", "ka", 0, 44)], [V_(4, 5) + (0, GBAR - 5)]),
        4: ([("cv", "vb", 22, 99, 0, 95), ("pollld", plk, plk + 16)] + ([("pf", 80, 92)] if OPT["pf2"] else []), [V_(6, 7) + (0, GBAR - 5)]),
        5: ([("cv", "ka", 0, 16, 0, 95), ("pollchk", 1), ("vst", 0, 9), ("vst", 1, 17), ("vst", 2, 25), ("vst", 3, 33), ("post", "vst")], [K_(0, 1) + (41, 74)]),
        6: ([("cv", "ka", 16, 99, 0, 95), ("ld", "kb", 0, 30)], [K_(2, 3) + (31, 74)]),
        7: ([("cv", "kb", 0, 24, 40, 95), ("ld", "va", 11, 40), ("pollld", plv, plv + 8)], [K_(4, 5) + (41, 90)]),
        0: ([("cv", "kb", 24, 99, 0, 95), ("pollchk", ckv)], [V_(0, 1) + (ckv + 7, ckv + 44)]),
    }[k]

WA = [V_RS[0], V_RS[0] + 1]; RA = V_RS[0] + 2; GA = V_RS[0] + 3; TA = V_RS[0] + 4
RL = [V_CT, V_CT + 2, V_CT + 4, V_CT + 6]
S_EO = 24
def epi_addr():
    return [f"v_bfe_u32 v{TA}, v{V_DMA}, 4, 6", f"s_mul_i32 s{S_EO}, s{S_WAVE}, 6144", f"s_add_u32 s{S_EO}, s{S_EO}, {A2}",
            f"v_and_b32 v{WA[0]}, 15, v{TA}", f"v_lshrrev_b32 v{WA[1]}, 4, v{TA}", f"v_lshlrev_b32 v{WA[1]}, 1, v{WA[1]}",
            f"v_and_b32 v{TA+1}, 7, v{TA}", f"v_xor_b32 v{WA[1]}, v{WA[1]}, v{TA+1}", f"v_lshlrev_b32 v{WA[0]}, 7, v{WA[0]}",
            f"v_lshl_add_u32 v{WA[0]}, v{WA[1]}, 4, v{WA[0]}", f"v_add_u32 v{WA[0]}, s{S_EO}, v{WA[0]}", f"v_xor_b32 v{WA[1]}, 16, v{WA[0]}",
            f"v_lshrrev_b32 v{RA}, 3, v{TA}", f"v_mul_u32_u24 v{GA}, 384, v{RA}", f"v_lshl_add_u32 v{GA}, v{TA+1}, 4, v{GA}",
            f"v_xor_b32 v{RA}, v{RA}, v{TA}", f"v_lshlrev_b32 v{RA}, 4, v{RA}", f"v_add_u32 v{RA}, s{S_EO}, v{RA}",
            f"s_lshl_b32 s{S_EO}, s{S_QB}, 2", f"s_add_u32 s{S_EO}, s{S_EO}, s{S_WAVE}", f"s_mul_i32 s{S_EO}, s{S_EO}, {STAGE}",
            f"s_add_u32 s{S_QL}, s{S_EO}, 6144", f"s_add_u32 s{S_QS}, s{S_EO}, 12288", f"s_add_u32 s{S_TAG}, s{S_EO}, 18432"]
S_EQ = [S_EO, S_QL, S_QS, S_TAG]
def epi_l(qs):
    fl = []
    for sw in ("v_permlane16_swap_b32", "v_permlane32_swap_b32"):
        fl += [f"v_mov_b32 v{RL[q]}, v{V_L[q]}" for q in qs] + ["s_nop 0"]
        fl += [f"{sw} v{V_L[q]}, v{RL[q]}" for q in qs] + ["s_nop 0"]
        fl += [f"v_add_f32 v{V_L[q]}, v{V_L[q]}, v{RL[q]}" for q in qs]
    return fl + [f"v_rcp_f32 v{RL[q]}, v{V_L[q]}" for q in qs] + ["s_nop 0"]
class Epi:
    def __init__(self, temps, rbs): self.temps = temps; self.rbs = rbs; self.n = 0; self.pend = []
    def flush(self):
        p = []
        for qb, n, h, reg, tag in self.pend:
            p += [LG(tag), VM("out", f"buffer_store_dwordx4 v[{reg}:{reg+3}], v{GA}, s[{S_OUT}:{S_OUT+3}], s{S_EQ[qb]} offen offset:{n*128 + h*3072}{OF}")]
        self.pend = []
        return p
    def chunk(self, qb, n, pk=False):
        p = []; c = self.n; self.n += 1
        lb = (c % 3) * 2048
        for half in range(2):
            ob = self.temps[(2 * c + half) % len(self.temps)]
            for tt in range(8):
                r, e = divmod(8 * half + tt, 4)
                p.append(f"v_accvgpr_read_b32 v{ob+tt}, a{O(qb,3*e+n)+r}")
            if pk: p += [f"v_pk_mul_f32 v[{ob+2*i}:{ob+2*i+1}], v[{ob+2*i}:{ob+2*i+1}], v[{RL[qb]}:{RL[qb]+1}] op_sel_hi:[1,0]" for i in range(4)]
            else: p += [f"v_mul_f32 v{ob+i}, v{ob+i}, v{RL[qb]}" for i in range(8)]
            p += [f"v_cvt_pk_bf16_f32 v{ob+i}, v{ob+2*i}, v{ob+2*i+1}" for i in range(4)]
            if self.pend:
                x = self.pend.pop(0); rest = self.pend; self.pend = [x]; p += self.flush(); self.pend = rest
            p.append(DS("w", f"ds_write_b128 v{WA[half]}, v[{ob}:{ob+3}] offset:{lb}"))
        p += self.flush()
        for h in range(2):
            reg = self.rbs[(2 * c + h) % len(self.rbs)]; tag = ("rb", c % 4, h)
            p.append(DS(tag, f"ds_read_b128 v[{reg}:{reg+3}], v{RA} offset:{lb + h*1024}"))
            self.pend.append((qb, n, h, reg, tag))
        return p

def gen_tail():
    sp = softmax_part
    g57 = qk_half(58) + rebase(qk_half(59), V_RDK, A0 - A2)
    g58 = pv_seq(56)
    g59 = rebase(qk_half(60), V_RDK, A1 - A0) + rebase(qk_half(61), V_RDK, A2 - A1)
    g60 = rebase(pv_seq(58), [V_RD], B2 - B1) + rebase(pv_seq(59), [V_RD], B0 - B2)
    g61 = rebase(pv_seq(60), [V_RD], B1 - B0) + rebase(qk_half(62), V_RDK, A0 - A2)
    g62 = rebase(qk_half(63), V_RDK, A1 - A0) + rebase(pv_seq(61), [V_RD], B2 - B1)
    g63 = []
    for n in range(3):
        for e in range(4): g63 += [pv_grp(62, 3 * e + n), pv_grp(63, 3 * e + n, va=V_RD2)]
    g63[0].reb += [f"v_subrev_u32 v{V_RD2}, {B2 - B1}, v{V_RD}", f"v_subrev_u32 v{V_RD}, {B2 - B0}, v{V_RD}"]
    first57 = g57[:2]
    p = []
    p += gen_seg("S57", g57, g58[:2], [(sp(57, 1), 0, 40), (sp(58, 0), 41, 95)], [(GBAR, [("dv", 0), ("dv", 1)])],
                 [("step", "p", 30, GBAR - 3)], [K_(62, 63) + V_(58, 59) + (0, 74)], peel=False)
    p += gen_seg("S58", g58, g59[:2], [(sp(58, 1) + sp(59, 0) + sp(59, 1), 0, 95)], [(GBAR, [("dk", 7), ("dv", 3)])], [], [V_(60, 61) + (0, 40)], peel=False)
    p += gen_seg("S59", g59, g60[:2], [(epi_addr(), 0, 30), (sp(60, 0), 31, 60), (sp(60, 1), 61, 95)], [(15, [("dv", 5)])], [], [V_(62, 63) + (16, 50)], peel=False)
    p += gen_seg("S60", g60, g61[:2], [(sp(61, 0) + sp(61, 1) + epi_l((0, 1)), 0, 95)], [(GBAR, [("dv", 7)])])
    ep = Epi([BX, BX + 8, BY, BY + 8], [BZ, BZ + 4, BZ + 8, BZ + 12, NEGM(0), NEGM(1)])
    e01 = [x for qb in (0, 1) for n in range(3) for x in ep.chunk(qb, n, OPT["pk"])] + ep.flush()
    n1 = OPT.get("e1", 100)
    td = OPT["tden"]
    p += gen_seg("S61", g61, g62[:2], [(sp(62, 0), 78, 95)], extra=[Stream(e01[:n1], 52, 95, dense=td)])
    p += gen_seg("S62", g62, g63[:2], [(sp(62, 1), 2, 30), (sp(63, 0), 31, 60), (sp(63, 1), 61, 95)], extra=[Stream(e01[n1:], 0, 95, dense=td)])
    chk = [f"v_max3_f32 v{V_T}, v{V_L[0]}, v{V_L[1]}, v{V_L[2]}", f"v_max_f32 v{V_T}, v{V_T}, v{V_L[3]}",
           f"s_mov_b32 s{S_TMP}, 0x{f32bits(2.0**OPT['thr']):08x}", f"v_cmp_lt_f32 vcc, s{S_TMP}, v{V_T}"]
    c0 = ep.chunk(2, 0, OPT["pk"]) + ep.chunk(3, 0, OPT["pk"])
    c1 = ep.chunk(2, 1, OPT["pk"]) + ep.chunk(3, 1, OPT["pk"])
    p += gen_seg("S63", g63, [], [(epi_l((2, 3)) + chk, 0, 24)], extra=[Stream(c0, 36, 67, dense=td), Stream(c1, 68, 95, dense=td)],
                 fixed=[(29, "A", ["s_cbranch_vccnz L_slow"])])
    p += istamp("fin") + ["s_nop 7"] + ep.chunk(2, 2, True) + ep.chunk(3, 2, True) + ep.flush()
    return first57, p
def slow_epi():
    ep = Epi([64 + 8 * i for i in range(8)], [128 + 4 * i for i in range(8)])
    seq = epi_l((0, 1)) + epi_l((2, 3))
    for qb in range(4):
        for n in range(3): seq += ep.chunk(qb, n, True)
    return seq + ep.flush()

def kfrag(g):
    return 2 * (g >> 2) + (g & 1), (g >> 1) & 1
def gen_slow():
    KF = 64; VF = 112; SS = 160; PP = 224; M = [240, 241, 242, 243]; KA = [244, 245]; LA = 246; t = V_T
    p = ["L_slow:", "s_waitcnt vmcnt(0) lgkmcnt(0)", "s_nop 15"]
    for i in range(192): p.append(f"v_accvgpr_write_b32 a{i}, 0")
    for q in range(4): p += [f"v_mov_b32 v{V_L[q]}, 0", f"v_mov_b32 v{M[q]}, 0xff7fffff"]
    p += [f"v_subrev_u32 v{KA[0]}, {A1}, v{V_RDK[0]}", f"v_subrev_u32 v{KA[1]}, {A1}, v{V_RDK[1]}", f"v_subrev_u32 v{LA}, {B0}, v{V_RD}",
          f"s_mov_b32 s{S_PT}, 0", "L_slowloop:"]
    for i in range(1, 5): p.append(f"s_add_u32 s{S_PT+i}, s{S_PT}, {[0, 6144, 12288, 16384, 20480][i]}")
    for f in range(12):
        s, tb = kfrag(f)
        p.append(f"buffer_load_dwordx4 v[{KF+4*f}:{KF+4*f+3}], v{KA[s&1]}, s[{S_WS}:{S_WS+3}], s{S_PT+tb} offen offset:{(s>>1)*128} sc1")
    for db in range(12):
        p.append(f"buffer_load_dwordx4 v[{VF+4*db}:{VF+4*db+3}], v{LA}, s[{S_WS}:{S_WS+3}], s{S_PT+2+db//4} offen offset:{(db%4)*1024} sc1")
    p.append("s_waitcnt vmcnt(12)")
    for f in range(12):
        s, tb = kfrag(f)
        for qb in range(4):
            d = vr(SS + 8 * qb + 4 * tb, 4)
            p.append(f"{MF} {d}, v[{KF+4*f}:{KF+4*f+3}], {Qf(qb,s)}, {'0' if s == 0 else d}")
    p.append("s_nop 9")
    for qb in range(4):
        sb = SS + 8 * qb
        p += [f"v_max3_f32 v{t}, v{sb}, v{sb+1}, v{sb+2}", f"v_max3_f32 v{t}, v{t}, v{sb+3}, v{sb+4}",
              f"v_max3_f32 v{t}, v{t}, v{sb+5}, v{sb+6}", f"v_max3_f32 v{t}, v{t}, v{sb+7}, v{M[qb]}"]
        p += xlane("v_max_f32", t)
        p += [f"v_sub_f32 v{t+1}, v{M[qb]}, v{t}", f"v_exp_f32 v{t+1}, v{t+1}", f"v_mov_b32 v{M[qb]}, v{t}"]
        for i in range(8): p.append(f"v_sub_f32 v{sb+i}, v{sb+i}, v{t}")
        for i in range(8): p.append(f"v_exp_f32 v{sb+i}, v{sb+i}")
        p.append(f"v_mul_f32 v{V_L[qb]}, v{V_L[qb]}, v{t+1}")
        for i in range(8): p.append(f"v_add_f32 v{V_L[qb]}, v{V_L[qb]}, v{sb+i}")
        for i in range(4): p.append(f"v_cvt_pk_bf16_f32 v{PP+4*qb+i}, v{sb+2*i}, v{sb+2*i+1}")
        for i in range(48):
            a = O(qb, 0) + i; tt = t + 2 + (i % 2)
            p += [f"v_accvgpr_read_b32 v{tt}, a{a}", f"v_mul_f32 v{tt}, v{tt}, v{t+1}", f"v_accvgpr_write_b32 a{a}, v{tt}"]
    p += ["s_waitcnt vmcnt(0)", "s_nop 1"]
    for db in range(12):
        for qb in range(4):
            d = ar(O(qb, db), 4)
            p.append(f"{MF} {d}, v[{VF+4*db}:{VF+4*db+3}], v[{PP+4*qb}:{PP+4*qb+3}], {d}")
    p += [f"s_add_u32 s{S_PT}, s{S_PT}, {STAGE}", f"s_cmp_lt_u32 s{S_PT}, {HEADBYTES}", "s_nop 7", "s_cbranch_scc1 L_slowloop"]
    e = slow_epi(); resolve(e)
    return p + fin(e) + ["s_branch L_fin"]

def xlane(op, t, u=None):
    u = t + 1 if u is None else u
    l = []
    for sw in ("v_permlane16_swap_b32", "v_permlane32_swap_b32"):
        l += [f"v_mov_b32 v{u}, v{t}", "s_nop 1", f"{sw} v{t}, v{u}", "s_nop 1", f"{op} v{t}, v{t}, v{u}"]
    return l
def rowmax2(t, qs, tq):
    l = []
    ab = [(Sq(t, j, 0), Sq(t, j, 1)) for j in range(2)]
    l += [f"v_max3_f32 v{tq[j]}, v{a}, v{a+1}, v{a+2}" for j, (a, b) in enumerate(ab)]
    l += [f"v_max3_f32 v{tq[j]}, v{tq[j]}, v{a+3}, v{b}" for j, (a, b) in enumerate(ab)]
    l += [f"v_max3_f32 v{tq[j]}, v{tq[j]}, v{b+1}, v{b+2}" for j, (a, b) in enumerate(ab)]
    l += [f"v_max_f32 v{tq[j]}, v{tq[j]}, v{b+3}" for j, (a, b) in enumerate(ab)]
    for sw in ("v_permlane16_swap_b32", "v_permlane32_swap_b32"):
        l += [f"v_mov_b32 v{tq[j]+1}, v{tq[j]}" for j in range(2)] + ["s_nop 0"]
        l += [f"{sw} v{tq[j]}, v{tq[j]+1}" for j in range(2)] + ["s_nop 0"]
        l += [f"v_max_f32 v{tq[j]}, v{tq[j]}, v{tq[j]+1}" for j in range(2)]
    l += [f"v_sub_f32 v{NEGM(qs[j])+i}, 0, v{tq[j]}" for j in range(2) for i in range(4)]
    return l
def addneg(t, sl):
    n = NEGM(slot_q(t, sl))
    return [f"v_add_f32 v{Sq(t,sl,tb)+i}, v{Sq(t,sl,tb)+i}, v{n}" for tb in range(2) for i in range(4)]

def resolve(seq):
    vm = []; ds = []
    for x in seq:
        if isinstance(x, VM): vm.append(x.tag)
        elif isinstance(x, DS): ds.append(x.tag)
        elif isinstance(x, (W, LG)):
            q = vm if isinstance(x, W) else ds
            best = None
            for tag in x.tags:
                n = 0; found = False
                for t in reversed(q):
                    if t == tag: found = True; break
                    n += 1
                if found: best = n if best is None else min(best, n)
            if best is not None:
                x.n = best if getattr(x, "n", None) is None else min(x.n, best)
        else:
            assert not x.startswith(("ds_", "buffer_")) or "UNTRACKED" in x, x
def vm_size(x):
    t = x.text
    if t.startswith("buffer_store"): return 0
    if x.tag == "pre": return 3.0
    if " lds" in t: return 1.0
    if "dwordx4" in t: return 0.75
    if "dwordx2" in t and "offen" in t: return 0.375
    return 0.125
def pace(seq, cap):
    out = []; q = []; on = False
    for x in seq:
        if isinstance(x, W): q = q[len(q) - min(len(q), x.n):]; on = True
        elif isinstance(x, VM):
            sz = vm_size(x)
            if on and not x.text.startswith("buffer_store") and sum(q) + sz > cap:
                while q and sum(q) + sz > cap: q.pop(0)
                w = W(); w.n = len(q)
                if out and out[-1] == "s_nop 0": out.pop()
                out.append(w)
            q.append(sz)
        out.append(x)
    return out
def fin(seq):
    out = []
    for x in seq:
        if isinstance(x, (W, LG)):
            if OPT["ab"] and getattr(x, "n", None) is None: x.n = 63
            assert getattr(x, "n", None) is not None, x.tags
            out.append(f"s_waitcnt vmcnt({min(x.n, 63)})" if isinstance(x, W) else f"s_waitcnt lgkmcnt({min(x.n, 15)})")
        elif isinstance(x, (VM, DS)): out.append(x.text)
        else: out.append(x.replace(" ;UNTRACKED", ""))
    return out
def groups_of(l):
    out = [[]]
    for x in l:
        out[-1].append(x)
        if isinstance(x, VM): out.append([])
    tail = out.pop()
    if tail: out[-1] += tail
    return out
def sprinkle(code, l):
    gs = groups_of(l); out = []; n = len(code); m = len(gs); j = 0
    for i, x in enumerate(code):
        while j < m and i * m >= j * n: out += with_nop(gs[j]); j += 1
        out.append(x)
    for g in gs[j:]: out += with_nop(g)
    return out
def srd(p, s, lo, hi, off_s, size):
    p += [f"s_add_u32 s{s}, s{lo}, s{off_s}", f"s_addc_u32 s{s+1}, s{hi}, 0", f"s_mov_b32 s{s+2}, {size}", f"s_mov_b32 s{s+3}, 0x20000"]

def gen_main():
    p = []
    p += [f"{NAME}_kernel:", "s_cmp_ge_u32 s2, 256", "s_cbranch_scc1 L_done",
          "s_load_dwordx16 s[40:55], s[0:1], 0", "s_load_dwordx4 s[16:19], s[0:1], 64"]
    if OPT["stamp"]: p += ["s_memtime s[98:99]" if OPT["stamp"] == 6 else "s_memrealtime s[98:99]"]
    p += [f"s_and_b32 s{S_HEAD}, s2, 7", f"s_lshr_b32 s{S_QB}, s2, 3", f"s_lshr_b32 s24, s{S_QB}, 3", f"s_lshl_b32 s{S_HEAD}, s{S_HEAD}, 2",
          f"s_add_u32 s{S_HEAD}, s{S_HEAD}, s24", f"s_and_b32 s{S_QB}, s{S_QB}, 7"]
    p += ["s_getpc_b64 s[60:61]", "L_pc:", f"s_sub_u32 s60, s60, L_pc-{NAME}_kernel", "s_subb_u32 s61, s61, 0",
          f"s_mov_b32 s62, L_slow-{NAME}_kernel", "s_mov_b32 s63, 0x20000",
          "s_lshr_b32 s22, s2, 3", "s_lshl_b32 s22, s22, 12",
          "v_lshlrev_b32 v30, 4, v0",
          VM("pf", "buffer_load_dwordx4 v[128:131], v30, s[60:63], s22 offen")]
    p += ["v_lshrrev_b32 v24, 6, v0",
          "v_and_b32 v25, 63, v0",
          f"v_readfirstlane_b32 s{S_WAVE}, v24",
          f"v_lshlrev_b32 v{V_RD}, 4, v25",
          "v_mul_u32_u24 v26, 43, v25", "v_lshrrev_b32 v26, 10, v26",
          "v_mul_u32_u24 v27, 24, v26",
          "v_sub_u32 v27, v25, v27",
          "v_lshrrev_b32 v28, 1, v24",
          "v_and_b32 v29, 1, v24",
          "v_lshlrev_b32 v30, 4, v29",
          "v_lshl_add_u32 v30, v28, 2, v30",
          "v_add_u32 v30, v30, v26",
          "v_mul_u32_u24 v30, 768, v30",
          "v_lshrrev_b32 v48, 1, v26", "v_lshlrev_b32 v48, 30, v48",
          "v_lshl_add_u32 v30, v27, 4, v30", f"v_or_b32 v{V_KLD}, v30, v48",
          f"v_lshl_or_b32 v{V_KSC}, v27, 3, v48",
          "v_mul_u32_u24 v30, 6144, v24",
          f"v_add3_u32 v{V_VLD}, v30, v{V_RD}, v48"]
    for sd, size in ((S_QK, HEADBYTES), (S_QV, HEADBYTES), (S_KS, 12288), (S_KZ, 12288), (S_VS, 4096), (S_VZ, 4096), (S_FLG, 64)):
        p += [f"s_mov_b32 s{sd+2}, {size}", f"s_mov_b32 s{sd+3}, 0x20000"]
    p += [f"s_mul_i32 s{S_PK0}, s{S_QB}, {STAGE}", f"s_add_u32 s{S_PK1}, s{S_PK0}, 6144", f"s_mov_b32 s{S_PV0}, s{S_PK0}",
          f"s_lshr_b32 s{S_PKS}, s{S_QB}, 1", f"s_mul_i32 s{S_PKS}, s{S_PKS}, 384", f"s_lshl_b32 s{S_PVS}, s{S_QB}, 6",
          f"s_lshl_b32 s24, s{S_WAVE}, 4", f"s_add_u32 s{S_PVS}, s{S_PVS}, s24",
          f"s_mul_i32 s24, s{S_HEAD}, {HEADBYTES}", f"s_mul_i32 s56, s{S_HEAD}, 12288", f"s_lshl_b32 s57, s{S_HEAD}, 12",
          f"s_lshl_b32 s58, s{S_HEAD}, 10", f"s_add_u32 s58, s58, {FLAG_OFF + 96}",
          f"s_or_b32 s{S_RET}, s{S_QB}, s{S_WAVE}"]
    p += ["s_waitcnt lgkmcnt(0)"] + istamp("karg", True)
    def base(sd, lo, off): return [f"s_add_u32 s{sd}, s{lo}, s{off}", f"s_addc_u32 s{sd+1}, s{lo+1}, 0"]
    p += base(S_QK, 42, 24) + base(S_KS, 46, 56) + base(S_KZ, 48, 56)
    kl = [k_ld(0, BX, 32, "k0a"), k_ld(1, BY, 36, "k0b")]; vl = [v_ld(0, 112, 40, "v0a"), v_ld(1, 80, 44, "v0b")]
    for x in kl[1][:2]: x.tag = "k0a"
    for x in vl[1][:2]: x.tag = "v0a"
    if OPT["ksc"]:
        for x in kl[0][2:] + kl[1][2:]: x.tag = "kraw"
        for x in kl[1][:2]: x.tag = "k0b"
        p += kl[0][2:] + kl[1][2:] + kl[0][:2] + kl[1][:2]; kl[1] = []
    else: p += kl[0][2:] + kl[0][:2] + kl[1][:2]
    p += base(S_FLG, 18, 58) + base(S_VS, 50, 57) + base(S_VZ, 52, 57) + base(S_QV, 44, 24)
    p += [f"s_mul_i32 s59, s{S_HEAD}, 786432"] + base(S_OUT, 54, 59) + base(S_Q, 40, 59)
    p += [f"s_cmp_lg_u32 s{S_RET}, 0", "s_cbranch_scc1 L_notleader0", f"s_buffer_load_dwordx16 s[40:55], s[{S_FLG}:{S_FLG+3}], 0 glc", "L_notleader0:"]
    p += kl[1][2:]
    p += [f"s_add_u32 s24, s24, {WSOFF}"] * (1 if WSOFF else 0)
    srd(p, S_WS, 18, 19, 24, HEADBYTES)
    p += [f"s_mov_b32 s{S_Q+2}, 786432", f"s_mov_b32 s{S_Q+3}, 0x20000"]
    p += [f"s_mov_b32 s{S_DBG}, s16", f"s_mov_b32 s{S_DBG+1}, s17", f"s_add_u32 s{S_PV1}, s{S_PK0}, 3072", f"s_add_u32 s{S_PV2}, s{S_PK0}, 6144"]
    p += [f"s_mov_b32 s{S_DBG+2}, 256", f"s_mov_b32 s{S_DBG+3}, 0x20000", f"s_lshl_b32 s{S_HOFF}, s{S_HEAD}, 3"]
    p += [f"s_cmp_lg_u32 s{S_RET}, 0", "s_cbranch_scc1 L_notleader", "s_waitcnt lgkmcnt(0)", f"s_mov_b32 s{S_TP}, 1"]
    for i in range(16):
        p += [f"s_lshr_b32 s{40+i}, s{40+i}, 10", f"s_min_u32 s{40+i}, s{40+i}, 31", f"s_bitset1_b32 s{S_TP}, s{40+i}"]
    p += [f"s_ff0_i32_b32 s{S_TP}, s{S_TP}", f"s_lshl_b32 s{S_TP}, s{S_TP}, 10", f"v_mov_b32 v{V_POLL}, s{S_TP}",
          "s_mov_b64 exec, 1", f"buffer_store_dword v{V_POLL}, off, s[{S_DBG}:{S_DBG+3}], s{S_HOFF} sc1 ;UNTRACKED", "s_mov_b64 exec, -1",
          "L_notleader:"]
    p += [f"s_lshl_b32 s24, s{S_QB}, 2", f"s_add_u32 s24, s24, 32", f"s_buffer_load_dword s{S_OWN}, s[{S_FLG}:{S_FLG+3}], s24 glc",
          ] + ([f"s_getreg_b32 s{S_XCC}, hwreg(HW_REG_XCC_ID, 0, 4)", f"s_lshl_b32 s{S_XCC}, s{S_XCC}, 5", f"s_mov_b32 s{S_FOFF}, 0"] if OPT["l2"] else
          [f"s_mov_b32 s{S_XCC}, 0", f"s_mov_b32 s{S_FOFF}, 32"])
    p += vl[0][2:] + vl[0][:2] + vl[1][:2] + (vl[1][2:] if OPT["greedy"] else []) + istamp("iss", True)
    if OPT["pre"]:
        st = OPT["pre"]
        p += [f"v_mul_u32_u24 v31, {st}, v25", f"v_mul_u32_u24 v30, 6144, v24", "v_add_u32 v31, v30, v31"]
        if st == 128: p += ["v_or_b32 v31, v31, v48"]
        p += [VM("pre", f"buffer_load_dword v132, v31, s[{S_WS}:{S_WS+3}], s{S_PK0} offen" + (" nt" if OPT["prent"] else ""))]
        if st == 64: p += ["v_add_u32 v30, 4096, v31", "s_mov_b64 exec, 0xffffffff", VM("pre", f"buffer_load_dword v133, v30, s[{S_WS}:{S_WS+3}], s{S_PK0} offen nt"), "s_mov_b64 exec, -1"]
    p += [f"s_mov_b32 s{S_OUT+2}, 786432", f"s_mov_b32 s{S_OUT+3}, 0x20000"]
    p += [f"s_lshl_b32 s24, s{S_WAVE}, 8", f"s_add_u32 s{S_HOFF}, s{S_HOFF}, s24"]
    p += ["v_mul_u32_u24 v30, 3072, v24", f"v_add_u32 v{V_DMA}, v30, v{V_RD}"]
    p += ["v_lshl_add_u32 v30, v24, 3, v26",
          "v_mul_u32_u24 v30, 384, v30",
          "v_lshlrev_b32 v31, 2, v29",
          "v_xor_b32 v31, v27, v31",
          "v_lshl_add_u32 v30, v31, 4, v30", f"v_or_b32 v{V_KST}, v30, v48",
          "v_lshlrev_b32 v30, 8, v24",
          "v_add_u32 v30, 12288, v30",
          "v_lshrrev_b32 v31, 4, v25", "v_lshl_add_u32 v30, v31, 10, v30", "v_and_b32 v31, 15, v25",
          "v_lshl_add_u32 v30, v31, 4, v30", f"v_or_b32 v{V_VST}, v30, v48"]
    p += [f"s_lshl_b32 s24, s{S_QB}, 2",
          f"v_lshl_add_u32 v{V_FLAG}, v0, 2, s24", f"v_cmp_lt_u32 vcc, 0, v0", "v_mov_b32 v30, 0x40000000", "s_nop 0",
          f"v_cndmask_b32 v{V_FLAG}, v{V_FLAG}, v30, vcc"]
    p += [f"s_mul_i32 s{S_DMK}, s{S_WAVE}, 3072", f"s_add_u32 s{S_DMK}, s{S_DMK}, 12288", f"s_add_u32 s{S_DMV}, s{S_DMK}, {STAGE}",
          f"s_add_u32 s24, s{S_QB}, 1", "s_and_b32 s24, s24, 7", f"s_mul_i32 s{S_GOFFK}, s24, {STAGE}", f"s_add_u32 s{S_GOFF}, s{S_GOFFK}, 12288",
          f"s_mov_b32 s{S_RK}, {A2}", f"s_mov_b32 s{S_RV}, {B1}", f"v_add_u32 v{V_RD}, {B0}, v{V_RD}",
          f"s_mov_b32 s{S_CS}, 0x{f32bits(CSCALE):08x}", f"s_mov_b32 s{S_MASK}, 0xffff0000",
          f"s_mov_b32 s{S_BUDGET}, 100000"] + ([f"s_mov_b32 s{S_TAG+1}, 0"] if OPT["stamp"] else [])
    p += ["v_and_b32 v26, 15, v25", "v_lshrrev_b32 v27, 4, v25", "v_bfe_u32 v28, v25, 1, 3",
          "v_xor_b32 v29, v27, v28", "v_mul_u32_u24 v30, 384, v26", f"v_lshl_add_u32 v{V_RDK[0]}, v29, 4, v30",
          f"v_xor_b32 v{V_RDK[1]}, 64, v{V_RDK[0]}"]
    p += [f"s_mul_i32 s{S_QL}, s{S_WAVE}, 6144", f"s_add_u32 s{S_QL}, s{S_QL}, {B1}",
          "v_lshrrev_b32 v29, 1, v27", "v_xor_b32 v29, v29, v28", "v_lshl_add_u32 v31, v29, 4, v30",
          "v_and_b32 v29, 1, v27", "v_lshl_add_u32 v31, v29, 3, v31"]
    for kk in range(4):
        p += [f"v_xor_b32 v{VQR[kk]}, {32*kk}, v31", f"v_add_u32 v{VQR[kk]}, s{S_QL}, v{VQR[kk]}"]
    p += [f"s_lshl_b32 s24, s{S_QB}, 2", f"s_add_u32 s24, s24, s{S_WAVE}", f"s_mul_i32 s24, s24, {STAGE}"]
    for b in range(6):
        p += [f"v_add_u32 v26, {64*b}, v25", "v_mul_u32_u24 v27, 2731, v26", "v_lshrrev_b32 v27, 17, v27",
              "v_and_b32 v27, 7, v27", "v_xor_b32 v26, v26, v27", f"v_lshlrev_b32 v{VQD+b}, 4, v26", f"v_add_u32 v{VQD+b}, s24, v{VQD+b}"]
    for q in range(4): p.append(f"v_mov_b32 v{V_L[q]}, 0")
    STF0 = "" if OPT["l2"] else STF
    def own_k(b):
        l = []
        for j in range(4):
            l += k_st(j, b, "kst", STF0)
            va = V_KST if j == 0 else V_KA + (j & 1)
            l += ["s_mov_b64 exec, s[62:63]", DS("w", f"ds_write_b128 v{va}, v[{b+4*j}:{b+4*j+3}] offset:{j*768}"), "s_mov_b64 exec, -1"]
        return l
    def own_v(b):
        l = [x for e in range(4) for x in v_st(e, b, "vst", STF0)]
        l += ["s_mov_b64 exec, s[62:63]"] + [DS("w", f"ds_write_b128 v{V_VST}, v[{b+4*e}:{b+4*e+3}] offset:{STAGE - 12288 + e*3072}") for e in range(4)] + ["s_mov_b64 exec, -1"]
        return l
    p += ["s_mov_b32 s62, -1", "s_mov_b32 s63, 0xffff"]
    qa = OPT["qa"]
    qb_, qc = OPT["qb"], OPT["qc"]
    R = lambda a, b: list(range(a, b))
    if OPT["split"]:
        p += [W("k0a")] + vl[1][2:] + k_cv(0, BX, 32, BX) + [W("k0b")] + istamp("k0b", True) + k_cv(1, BY, 36, BX) + own_k(BX)
        p += tag_load() + with_nop(q_dma(R(0, qa))) + [W("v0a")] + v_cv(0, 112, 40, 112)
        p += [W("tag")] + tag_check() + ["s_waitcnt lgkmcnt(0)", "s_barrier"] + flag_post() + tag_get() + istamp("post", True)
        p += with_nop(q_dma(R(qa, qb_))) + v_cv(1, 80, 44, 112) + own_v(112) + with_nop(q_dma(R(qb_, 12))) + istamp("vst", True)
    elif OPT["greedy"]:
        p += [W("k0a")] + with_nop(q_dma(R(0, 3))) + k_cv(0, BX, 32, BX) + [W("k0b")] + istamp("k0b", True) + with_nop(q_dma(R(3, 6))) + k_cv(1, BY, 36, BX) + own_k(BX)
        p += [W("v0a")] + with_nop(q_dma(R(6, 9))) + v_cv(0, 112, 40, 112) + [W("v0b")] + with_nop(q_dma(R(9, 12))) + v_cv(1, 80, 44, 112) + own_v(112)
        p += tag_load() + with_nop(q_dma(R(12, 18))) + istamp("vst", True)
    else:
        p += [W("k0a")] + vl[1][2:] + k_cv(0, BX, 32, BX) + [W("k0b")] + istamp("k0b", True) + k_cv(1, BY, 36, BX) + own_k(BX)
        p += with_nop(q_dma(R(0, qa))) + istamp("kst", True)
        p += [W("v0a")] + sprinkle(v_cv(0, 112, 40, 112), q_dma(R(qa, qb_))) + [W("v0b")] + v_cv(1, 80, 44, 112) + own_v(112)
        p += tag_load() + with_nop(q_dma(R(qb_, 12))) + istamp("vst", True)
    if not OPT["split"]:
        p += [W("tag")] + tag_check() + istamp("tag", True)
        p += ["s_waitcnt lgkmcnt(0)", "s_barrier"] + flag_post(True) + tag_get() + istamp("post", True)
    if OPT["pf2"]:
        p += [f"s_mov_b32 s{S_DBG}, s60", f"s_mov_b32 s{S_DBG+1}, s61", f"s_mov_b32 s{S_DBG+2}, L_slow-{NAME}_kernel",
              "s_lshr_b32 s24, s2, 3", f"s_mul_i32 s{S_HOFF}, s24, 43", f"s_lshr_b32 s{S_HOFF}, s{S_HOFF}, 7",
              f"s_mul_i32 s{S_RET}, s{S_HOFF}, 3", f"s_sub_u32 s24, s24, s{S_RET}", "s_lshl_b32 s24, s24, 10",
              f"s_mul_i32 s{S_HOFF}, s{S_HOFF}, 12288", f"s_add_u32 s{S_HOFF}, s{S_HOFF}, s24"]
    KF = 144
    for f in range(12):
        s, tb = kfrag(f)
        p.append(DS("kf", f"ds_read_b128 v[{KF+4*f}:{KF+4*f+3}], v{V_RDK[s&1]} offset:{tb*6144 + (s>>1)*128}"))
    def qk0(qb):
        l = []
        for f in sorted(range(12), key=lambda f: kfrag(f)[::-1]):
            s, tb = kfrag(f)
            d = vr(Sq(0, qb, tb), 4)
            l.append(f"{MF} {d}, v[{KF+4*f}:{KF+4*f+3}], {Qf(qb,s)}, {'0' if s == 0 else d}")
        return l
    ps = len(POLLSITES); POLLSITES.append(ps)
    g3n = OPT["g3n"]
    pollchk = ["s_waitcnt lgkmcnt(0)"] + smem_reduce() + [f"s_cmp_ge_u32 s{S_PT}, 16", f"s_cbranch_scc1 L_pollslow{ps}", f"L_pollok{ps}:",
          f"s_add_u32 s{S_NEED}, s{S_NEED}, 1"] + [f"s_mov_b32 s{S_FOFF}, 32"] * (OPT["l2"] == 2) + istamp("poll", True)
    sm00 = rowmax2(0, (0, 1), (V_CT, V_CT + 2)) + addneg(0, 0) + addneg(0, 1) + softmax_part(0, 0)
    qrest = R(12 if OPT["greedy"] == 0 else 18, 18 + g3n)
    if OPT["split"]:
        ps2 = len(POLLSITES); POLLSITES.append(ps2)
        pollchk2 = ["s_waitcnt lgkmcnt(0)"] + smem_reduce() + [f"s_cmp_ge_u32 s{S_PT}, 16", f"s_cbranch_scc1 L_pollslow{ps2}", f"L_pollok{ps2}:",
              f"s_add_u32 s{S_NEED}, s{S_NEED}, 1"] + istamp("pollV", True)
        p += [W(("q", 0))] + q_frags(0) + [LG("tg")] + tag_use() + [LG(("qf", 0))] + smem_flags() + qk0(0) + pollchk
        p += with_nop(dma_tile("k", 1, True)) + k_adv() + v_adv()
        p += [W("vst"), "s_barrier"] + flag_post() + istamp("postV", True)
        p += with_nop(dma_tile("k", 2, True) + dma_tile("k", 3, True))
        p += [W(("q", 1))] + q_frags(1) + with_nop(q_dma(R(12, 15))) + [LG(("qf", 1))] + qk0(1) + ["s_nop 7"]
        g0 = pv_unchained(0, True)[:6]
        p += [rd_op(i, j, g0[i]) for i in range(2) for j in range(2)] + sprinkle(sm00, q_dma(R(15, 18 + g3n))) + smem_flags() + [LG(("fr", 0), ("fr", 1))]
        p += gen_seg("S0", g0, [], tasks=[("q", R(18 + g3n, 24), 0, 22)] if g3n < 6 else [], vmgap=2) + pollchk2
        p += with_nop(dma_tile("v", 1, True))
        g3n = 6
    elif OPT["own1"] == 2:
        p += [W(("q", 0))] + q_frags(0) + [LG("tg")] + tag_use() + with_nop(q_dma(qrest[:3])) + [LG(("qf", 0))] + qk0(0)
        p += [W(("q", 1))] + q_frags(1) + smem_flags() + with_nop(q_dma(qrest[3:])) + [LG(("qf", 1))] + qk0(1) + pollchk
        g0 = pv_unchained(0, True)[:6]
        p += [rd_op(i, j, g0[i]) for i in range(2) for j in range(2)]
        p += sprinkle(sm00, dma_tile("k", 1, True) + dma_tile("k", 2, True) + dma_tile("k", 3, True) + dma_tile("v", 1, True)) + k_adv() + v_adv() + [LG(("fr", 0), ("fr", 1))]
        p += gen_seg("S0", g0, [], tasks=[("q", R(18 + g3n, 24), 0, 22)] if g3n < 6 else [], vmgap=2)
        g3n = 6
    elif OPT["own1"]:
        p += [W(("q", 0))] + q_frags(0) + [LG("tg")] + tag_use() + with_nop(q_dma(qrest[:3])) + [LG(("qf", 0))] + qk0(0)
        p += [W(("q", 1))] + q_frags(1) + with_nop(q_dma(qrest[3:6])) + [LG(("qf", 1))] + qk0(1) + ["s_nop 7"]
        g0 = pv_unchained(0, True)[:6]
        p += [rd_op(i, j, g0[i]) for i in range(2) for j in range(2)] + sprinkle(sm00, q_dma(qrest[6:])) + smem_flags() + [LG(("fr", 0), ("fr", 1))]
        p += gen_seg("S0", g0, []) + pollchk
        p += with_nop(dma_tile("k", 1, True) + dma_tile("k", 2, True) + dma_tile("k", 3, True) + dma_tile("v", 1, True)) + k_adv() + v_adv()
    else:
        p += [W(("q", 0))] + q_frags(0) + [LG("tg")] + tag_use() + [W(("q", 1))] + q_frags(1) + smem_flags()
        p += [LG(("qf", 0))] + with_nop(q_dma(qrest)) + pollchk
        p += with_nop(dma_tile("k", 1, True)) + k_adv() + v_adv()
        p += sprinkle(qk0(0) + qk0(1), dma_tile("k", 2, True)) + ["s_nop 7"]
        p += sprinkle(sm00, dma_tile("k", 3, True) + dma_tile("v", 1, True))
    sp = softmax_part
    g1 = qk_half(0, ws=(1,))
    g2 = rebase(qk_half(1), V_RDK, A1 - A0)
    g3 = pv_unchained(0, True)[6 if OPT["own1"] else 0:]
    g4 = rebase(pv_unchained(1), [V_RD], B1 - B0)
    g5 = rebase(qk_half(2, True), V_RDK, A0 - A1) + rebase(qk_half(3), V_RDK, A1 - A0)
    gi3 = rebase(qk_full(4), V_RDK, A2 - A1)
    gi4 = rebase(pv_seq(2, True), [V_RD], B0 - B1) + rebase(pv_seq(3), [V_RD], B1 - B0)
    p += istamp("pre-dk1", True) + [W(("dk", 1)), "s_barrier"] + [rd_op(i, j, g1[i]) for i in range(2) for j in range(2)]
    p += [LG(("fr", 0), ("fr", 1))]
    p += gen_seg("S1", g1, g2[:2], [], [(15, [("dk", 3)])], [], [V_(2, 3) + (0, 21)], vmgap=2)
    p += gen_seg("S2", g2, g3[:2], [(sp(0, 1), 3, 47)], [(39, [("dv", 3)])] if OPT["own1"] else [], ([("q", R(18 + g3n, 24), 0, 24)] if g3n < 6 else []) + [("ldn", "ka", 25 if g3n < 6 else 0, 47)])
    if OPT["own1"]: p += gen_seg("S3", g3, g4[:2], [(sp(1, 0), 0, 23)], [], [("ldn", "kb", 0, 23)])
    else: p += gen_seg("S3", g3, g4[:2], [(sp(1, 0), 0, 47)], [(15, [("dv", 3)])], [("ldn", "kb", 0, 22), ("ldn", "va", 23, 46, "raw")])
    p += gen_seg("S4", g4, g5[:2], [(sp(1, 1), 0, 21)], [], [("ldn", "va", 0, 30, "raw")] if OPT["own1"] else [], extra=[Stream([W(("q", 2))] + q_frags(2) + [W(("q", 3))] + q_frags(3), 16, 46)])
    p += istamp("pre-S5", True) + ["s_waitcnt lgkmcnt(0)", "s_barrier"]
    p += gen_seg("S5", g5, gi3[:2], [(rowmax2(2, (2, 3), (V_T, V_T + 2)), 27, 45), (addneg(2, 0) + addneg(2, 1) + sp(2, 0) + addneg(2, 2) + addneg(2, 3) + sp(2, 1), 46, 95)],
                 [(GBAR + 8, [("dk", 5)])], [("cv", "ka", 0, 99, 0, 34), ("cv", "kb", 0, 99, 35, 72), ("kst", 0, 73), ("kst", 1, 77), ("kst", 2, 89), ("kst", 3, 93),
                 ("ldn", "va", 36, 60, "sc")], [K_(4, 5) + (1, 24)])
    p += gen_seg("i3", gi3, gi4[:2], [(sp(3, 0) + sp(3, 1), 0, 54), (sp(4, 0), 55, 95)], [(OPT["pb"], []), (GBAR, [])],
                 [("ld", "vb", 0, 22), ("post", "kst", 0), ("cv", "va", 0, 99, 10, 95)], [K_(6, 7) + V_(4, 5) + (24, 90)])
    p += [f"s_mov_b32 s{S_CNT}, 7"]
    p += gen_seg("i4", gi4, seg_groups(5)[:2], [(sp(4, 1) + sp(5, 0), 0, 94)], [(47, []), (GBAR + 8, [("dk", 7)])],
                 [("ld", "ka", 0, 30), ("cv", "vb", 0, 99, 30, 94), ("step", "q", 30, 70), ("pollld", OPT["pl4"], OPT["pl4"] + 8)], [V_(6, 7) + (52, 84)],
                 endops=["s_nop 0", "s_branch L_join"])
    p += [".p2align 6", "L_loop:"]
    pro_ = p
    first57, tail = gen_tail()
    bodyA = []
    for k in (1, 2, 3, 4, 5, 6, 7, 0):
        if k == 5: bodyA.append("L_join:"); jpos = len(bodyA)
        eo = [f"s_sub_u32 s{S_CNT}, s{S_CNT}, 1", f"s_cmp_lg_u32 s{S_CNT}, 0", "s_cbranch_scc1 L_loop"] if k == 0 else ()
        t, d = steady(k)
        if OPT["ab"] & 8: d = []
        if OPT["ab"] & 16: t = [x for x in t if x[0] not in ("cv", "kst", "vst", "ld")]
        bodyA += gen_iter(16 + k, t, d, name=f"k{k}", endops=eo)
    assert [g.rd for g in first57] == [g.rd for g in seg_groups(17)[:2]]
    tailc = tail + ["L_fin:"]
    resolve(pro_ + bodyA[jpos:] + bodyA + bodyA + tailc)
    if OPT["cap"]: pro_ = pace(pro_, OPT["cap"] / 4)
    P_ = Prog()
    P_.extend(fin(pro_))
    a0 = len(P_.ins); P_.extend(fin(bodyA)); a1 = len(P_.ins)
    P_.extend(fin(tailc))
    p = P_
    if OPT["stamp"]:
        p("s_waitcnt vmcnt(0) lgkmcnt(0)")
        p.extend(istamp("end"))
        p("s_waitcnt lgkmcnt(0)")
        p.extend(istamp("end2"))
        p(f"v_writelane_b32 v{V_STAMP}, s{S_TAG+1}, 63")
        p("s_add_u32 s8, s18, 0xfa00000"); p("s_addc_u32 s9, s19, 0"); p("s_mov_b32 s10, 1048576"); p("s_mov_b32 s11, 0x20000")
        p("s_lshl_b32 s24, s2, 2"); p(f"s_add_u32 s24, s24, s{S_WAVE}"); p("s_lshl_b32 s24, s24, 8")
        p(f"v_bfe_u32 v32, v{V_DMA}, 4, 6"); p("v_lshlrev_b32 v32, 2, v32")
        p(f"buffer_store_dword v{V_STAMP}, v32, s[8:11], s24 offen")
        if OPT["stamp"] == 8: STAMPS.sort(key=lambda n: 0)
        open(sys.argv[1] + ".stamps", "w").write("\n".join(order_stamps()))
    if OPT["calx"]:
        p("s_waitcnt vmcnt(0)")
        p("L_cal:")
        p("s_memrealtime s[40:41]")
        p("s_waitcnt lgkmcnt(0)")
        p("s_sub_u32 s40, s40, s100")
        p("s_cmp_lt_u32 s40, 10000")
        p("s_cbranch_scc1 L_cal")
    p("L_done:")
    p("s_endpgm")
    main_end0 = len(p.ins)
    for ps in POLLSITES: p.extend(poll_slow(ps))
    p.extend(tag_slow())
    main_end = len(p.ins)
    p.extend(gen_slow())
    slow_end = len(p.ins)
    ji = [i for i, x in enumerate(p.ins) if x.text == "L_join:"][0]
    lin = p.ins[:a0] + p.ins[ji:a1] + p.ins[a0:main_end0]
    sl = [i for i, x in enumerate(p.ins) if x.text == "L_slowloop:"][0]
    bi = [i for i, x in enumerate(p.ins) if x.text == "s_cbranch_scc1 L_slowloop"][0]
    probs = check_hazards(lin, "main") + check_hazards(p.ins[main_end:bi+1] + p.ins[sl:slow_end], "slow") + check_hazards(p.ins[main_end0:main_end], "aux")
    for x in probs: print(x, file=sys.stderr)
    return p

def kd(name, vgpr, sgpr, accum):
    return f""".amdhsa_kernel {name}
  .amdhsa_next_free_vgpr {vgpr}
  .amdhsa_next_free_sgpr {sgpr}
  .amdhsa_accum_offset {accum}
  .amdhsa_group_segment_fixed_size 0
  .amdhsa_kernarg_size 80
  .amdhsa_user_sgpr_count 2
  .amdhsa_user_sgpr_kernarg_segment_ptr 1
  .amdhsa_system_sgpr_workgroup_id_x 1
.end_amdhsa_kernel
"""
out = HEADER
out += f"; @launch grid=(256,1,1) block=(256,1,1) lds={LDS_BYTES}\n"
out += '.amdgcn_target "amdgcn-amd-amdhsa--gfx950"\n.text\n'
out += f".globl {NAME}_kernel\n.p2align 8\n.type {NAME}_kernel,@function\n" + gen_main().text()
out += '.section .rodata,"a"\n.p2align 6\n' + kd(NAME + "_kernel", 512, 102, 256)
open(sys.argv[1], "w").write(out)
```

```python
import re, struct

def f32bits(x):
    return struct.unpack("<I", struct.pack("<f", x))[0]

_reg_re = re.compile(r"^(-|abs\()?([vas])(?:(\d+)|\[(\d+):(\d+)\])\)?$")

def parse_reg(tok):
    tok = tok.strip()
    m = _reg_re.match(tok)
    if not m:
        return None
    k = m.group(2)
    if m.group(3) is not None:
        lo = hi = int(m.group(3))
    else:
        lo, hi = int(m.group(4)), int(m.group(5))
    return [(k, i) for i in range(lo, hi + 1)]

TRANS = ("v_exp_f32", "v_log_f32", "v_rcp_f32", "v_rsq_f32", "v_sqrt_f32", "v_sin_f32", "v_cos_f32")

class Ins:
    __slots__ = ("text", "op", "kind", "wr", "rd", "srcc", "ws", "label", "dpp")
    def __init__(self, text):
        self.text = text
        t = text.split(";")[0].strip()
        self.label = t.endswith(":")
        self.wr = set(); self.rd = set(); self.srcc = set(); self.ws = 1; self.dpp = set()
        if self.label or not t or t.startswith("."):
            self.op = ""; self.kind = "none"; self.ws = 0
            return
        parts = t.split(None, 1)
        op = parts[0]; self.op = op
        rest = parts[1] if len(parts) > 1 else ""
        ops = [o.strip() for o in rest.split(",")] if rest else []
        if ops:
            last = ops[-1].split()
            ops[-1] = last[0] if last else ""
            mods = last[1:]
        else:
            mods = []
        regs = [parse_reg(o) for o in ops]
        def R(i):
            return set(regs[i]) if i < len(regs) and regs[i] else set()
        special = lambda o: o in ("vcc", "exec", "m0", "scc")
        if op.startswith("v_mfma"):
            self.kind = "mfma"
            self.wr = R(0); self.rd = R(1) | R(2) | R(3); self.srcc = R(3)
        elif op.startswith("v_cmp"):
            self.kind = "valu"
            self.wr = R(0) | ({("x", ops[0])} if special(ops[0]) else set())
            self.rd = R(1) | R(2)
        elif op.startswith("v_readfirstlane") or op.startswith("v_readlane"):
            self.kind = "valu"; self.wr = R(0); self.rd = R(1) | R(2)
        elif op.startswith("v_permlane"):
            self.kind = "valu"; self.wr = R(0) | R(1); self.rd = R(0) | R(1)
        elif op.startswith("v_"):
            self.kind = "trans" if op.replace("_e32", "").replace("_e64", "") in TRANS else "valu"
            self.wr = R(0)
            if op.endswith("_dpp"): self.dpp = R(1) | R(2)
            for i in range(1, len(ops)):
                self.rd |= R(i)
                if special(ops[i]): self.rd.add(("x", ops[i]))
            if op.startswith("v_fmac") or op.startswith("v_pk_fmac") or op.startswith("v_dot2c"):
                self.rd |= R(0)
            if op.startswith("v_add_co") or op.startswith("v_addc_co") or op.startswith("v_sub_co"):
                self.wr |= {("x", "vcc")}
        elif op.startswith(("ds_add_rtn", "ds_bpermute")):
            self.kind = "dsr"; self.wr = R(0); self.rd = R(1) | R(2)
        elif op.startswith("ds_read"):
            self.kind = "dsr"; self.wr = R(0); self.rd = R(1)
        elif op.startswith("ds_write"):
            self.kind = "dsw"
            for i in range(len(ops)): self.rd |= R(i)
        elif op.startswith("buffer_load") or op.startswith("global_load"):
            if "lds" in mods or "_lds_" in op:
                self.kind = "dma"
                for i in range(len(ops)): self.rd |= R(i)
                self.rd.add(("x", "m0"))
            else:
                self.kind = "vload"; self.wr = R(0)
                for i in range(1, len(ops)): self.rd |= R(i)
        elif op.startswith("buffer_store") or op.startswith("global_store") or op.startswith("buffer_atomic") or op.startswith("global_atomic"):
            self.kind = "vstore"
            for i in range(len(ops)): self.rd |= R(i)
        elif op == "s_nop":
            self.kind = "nop"; self.ws = int(ops[0], 0) + 1
        elif op.startswith("s_"):
            self.kind = "salu"
            if op.startswith(("s_cmp", "s_waitcnt", "s_barrier", "s_cbranch", "s_branch", "s_endpgm", "s_setprio", "s_sleep")):
                for i in range(len(ops)): self.rd |= R(i)
            else:
                self.wr = R(0) | ({("x", ops[0])} if ops and special(ops[0]) else set())
                for i in range(1, len(ops)): self.rd |= R(i)
        else:
            self.kind = "other"

def check_hazards(ins, where=""):
    probs = []
    n = len(ins)
    for i, a in enumerate(ins):
        if a.kind == "none": continue
        dist = 0
        for j in range(i + 1, min(n, i + 40)):
            b = ins[j]
            if b.kind == "none": continue
            def need(k, why):
                if dist < k:
                    probs.append(f"{where} hazard {why}: need {k} got {dist}\n    {a.text}\n    {b.text}")
            vw = {r for r in a.wr if r[0] in "va"}
            sw = {r for r in a.wr if r[0] in "sx"}
            if a.kind in ("valu", "trans"):
                if b.kind == "mfma" and vw & b.rd: need(2, "valu->mfma")
                if b.op.startswith("v_permlane") and vw & b.rd: need(2, "valu->permlane")
                if b.op.endswith("_dpp") and vw & b.dpp: need(2, "valu->dpp")
                if b.op.startswith(("v_readfirstlane", "v_readlane")) and vw & b.rd: need(1, "valu->readlane")
                if a.kind == "trans" and b.kind == "valu" and vw & b.rd: need(1, "trans->valu")
                if a.kind == "trans" and b.kind in ("vstore", "dsw", "mfma") and vw & b.rd: need(1, "trans->mem")
                if sw and b.kind in ("valu", "trans") and sw & b.rd: need(2, "valu sgpr->valu")
                if sw and b.kind in ("vload", "vstore", "dma") and sw & b.rd: need(5, "valu sgpr->vmem")
            if a.kind == "mfma":
                big = "32x32" in a.op
                n1, n2, n3 = (12, 10, 7) if big else (8, 6, 3)
                if "16x16x4_f32" in a.op: n1, n2, n3 = 10, 8, 0
                if b.kind == "mfma":
                    ab = b.rd - b.srcc
                    if vw & ab: need(n1, "mfma D->mfma AB")
                    if vw & b.srcc and vw != b.srcc: need(n2, "mfma D->mfma C overlap")
                    if vw & b.wr and not (vw == b.srcc): need(n1, "mfma D->mfma D WAW (conservative)")
                elif b.kind in ("valu", "trans", "vstore", "dsw", "dsr", "vload", "dma"):
                    if vw & (b.rd | b.wr): need(n1, "mfma D->valu/mem")
                    if b.kind in ("valu", "trans") and a.srcc & b.wr: need(n3, "mfma C WAR")
            if a.kind == "salu" and ("x", "m0") in a.wr and b.kind == "dma": need(1, "m0->dma")
            if a.kind == "vstore" and ("x4" in a.op or "x3" in a.op) and b.kind in ("valu", "trans"):
                if {r for r in a.rd if r[0] in "va"} & b.wr: need(2, "store data WAR")
            dist += b.ws
            if dist > 24: break
    return probs

class Prog:
    def __init__(self):
        self.ins = []
    def __call__(self, text):
        for l in text.strip("\n").split("\n"):
            self.ins.append(Ins(l.strip()))
    def extend(self, lst):
        for x in lst:
            self(x)
    def text(self):
        out = []
        for i in self.ins:
            out.append(i.text if (i.label or i.text.startswith(".")) else "    " + i.text)
        return "\n".join(out) + "\n"

def vr(base, n=1):
    return f"v{base}" if n == 1 else f"v[{base}:{base+n-1}]"
def ar(base, n=1):
    return f"a{base}" if n == 1 else f"a[{base}:{base+n-1}]"
def sr(base, n=1):
    return f"s{base}" if n == 1 else f"s[{base}:{base+n-1}]"
```

```python
import sys, math
from asmlib import *

NAME = "standalone__kv_cache_quant_int4_int2_kv_with_per_channel_or_per_token_scales__prompt"
OPT = dict(stamp=0, vmgap=4, sb=6, sa=6, ahead=8, thr=64, pf2=1, calx="", qa=6, plv=2, plk=10, ckv=1, ckk=1, tden=24, touch=0, w0poll=0, cap=48, qb=6, q3e=1, ksc=0, few=1, qc=15, pb=39, pl4=40, l2=2, k1e=0, greedy=0, g3n=3, pre=0, own1=1, ab=0, pk=0, split=0, prent=1, bal=1, flex=1, w2=0, dense="S61", dx=4, dvg=2, f3=1, pvs=1, qo=0, po=0, x2c=12, sst=1, ed=200, ed1=250, cut="16,42,8,48,18,38,12")
for a in sys.argv[2:]:
    k, v = a.split("="); OPT[k] = int(v) if v.lstrip("-").isdigit() else v
NS = 6
STAGE = 24576
HEADBYTES = 64 * STAGE
RING = NS * STAGE
LDS_BYTES = RING + 128
A0, B0, A1, B1, A2, B2 = [i * STAGE for i in range(6)]
CSCALE = (192.0 ** -0.5) * math.log2(math.e)
HEADER = open("cdna_kernels/" + NAME + ".s.ref").read().split("; Override launch geometry")[0]
MF = "v_mfma_f32_16x16x32_bf16"

V_FVAL = 0; V_RD = 1; V_RDK = [2, 3]; V_DMA = 4; V_L = [5, 6, 7, 8]
V_KLD = 9; V_KSC = 10; V_KST = 11; V_VLD = 12; V_FLAG = 13; V_RD2 = 14
V_T = 16; NTP = 2
V_VST = 20; V_STAMP = 21
V_FR = 24; NFS = 6
V_CT = 48; V_VO = 52; V_RS = [56, 60]; BX = 224; BY = 240; BZ = 144
V_POLL = V_VO; V_KA = V_VO + 2
UNIT = [64, 80, 160, 176]; HI = [96, 112]
VQD = 136; VQR = [22, 23, 142, 143]
def Sq(t, sl, tb): return (UNIT[t % 4] if tb == 0 else HI[t % 2]) + 4 * sl
def P(t, sl): return UNIT[t % 4] + 4 * sl
def NEGM(qb): return 128 + 4 * qb
def O(qb, db): return (qb * 12 + db) * 4
def Qf(qb, s, half=None):
    i = qb * 6 + s
    base, f = (192 + 4 * i, ar) if i < 16 else (192 + 4 * (i - 16), vr)
    return f(base, 4) if half is None else f(base + 2 * half, 2)
def FR(f): return vr(V_FR + 4 * (f % NFS), 4)

S_RDELTA = 3; S_WS = 4; S_Q = 8; S_OUT = 12; S_FLG = 20
S_WAVE = 25; S_DMK = 26; S_GOFF = 27; S_RK = 28; S_TMP = 29; S_RV = 30; S_CNT = 31; S_GOFFK = 32
S_PK0 = 33; S_PK1 = 34; S_PV0 = 35; S_PKS = 36; S_PVS = 37; S_CS = 38; S_RET = 39; S_PV1 = 16; S_PV2 = 17
S_QL = 40; S_QS = 41; S_TAG = 42; S_FOFF = 44; S_XCC = 45; S_OWN = 46
S_PT = 48; S_DMV = 56; S_TK = 57; S_TV = 58; S_TP = 59
S_QK = 64; S_QV = 68; S_KS = 72; S_KZ = 76; S_VS = 80; S_VZ = 84; S_DBG = 88
S_NEED = 92; S_HOFF = 93; S_HEAD = 94; S_QB = 95; S_BUDGET = 96; S_MASK = 97
WSOFF = OPT.get("wsoff", 0) << 20
FLAG_OFF = WSOFF + (49 << 20)
SC1 = " sc1"; NTKV = " nt"; NTQ = " nt"; STF = " sc1"; OF = " sc0 sc1"

STAMPS = []
def istamp(name, force=False):
    if OPT["calx"] == name: return ["s_memrealtime s[100:101]"]
    if OPT["stamp"] not in (6, 8, 9): return []
    if OPT["stamp"] == 8 and name.startswith("k") and not force: return []
    if OPT["few"] and force and name not in ("karg", "k0b", "vst", "tag", "post", "poll", "postV", "pollV", "pre-dk1"): return []
    if OPT["stamp"] != 8 and force: return []
    STAMPS.append(name)
    return ["s_waitcnt lgkmcnt(0)"] * (1 if force else 0) + [f"v_mov_b32_dpp v{V_STAMP}, v{V_STAMP} wave_shr:1 row_mask:0xf bank_mask:0xf", f"v_writelane_b32 v{V_STAMP}, s98, 0",
            ("s_memtime" if OPT["stamp"] == 6 else "s_memrealtime") + " s[98:99]"]

def order_stamps():
    l = list(STAMPS); out = []
    if "S62" in l:
        l.remove("S61"); l.insert(l.index("S62"), "S61")
    for n in l:
        if "." in n: continue
        out.append(n); out += [m for m in l if m.startswith(n + ".")]
    return out
class W:
    def __init__(self, *tags): self.tags = tags
class VM:
    def __init__(self, tag, text): self.tag = tag; self.text = text
class LG:
    def __init__(self, *tags): self.tags = tags
class DS:
    def __init__(self, tag, text): self.tag = tag; self.text = text

def mode_of(t):
    return {0: "a", 1: "a", 2: "b", 3: "b", 58: "a", 59: "a", 60: "a", 61: "b", 62: "b", 63: "b"}.get(t, "f")
def slot_q(t, sl):
    m = mode_of(t)
    return sl if m == "f" else (sl & 1) + (0 if m == "a" else 2)
def softmax_part(t, half):
    flat = []; prev = None
    for gp in range(8):
        sl = 2 * half + gp // 4; pi = gp % 4; l = V_L[slot_q(t, sl)]
        t0 = V_T + 2 * (gp % NTP); t1 = t0 + 1
        src = Sq(t, sl, pi >> 1) + 2 * (pi & 1)
        E = [f"v_exp_f32 v{t0}, v{src}", f"v_exp_f32 v{t1}, v{src+1}"]
        A = [f"v_add_f32 v{l}, v{l}, v{t0}", f"v_add_f32 v{l}, v{l}, v{t1}"]
        C = [f"v_cvt_pk_bf16_f32 v{P(t,sl)+pi}, v{t0}, v{t1}"]
        if 16 <= t < 26:
            if OPT["ab"] & 1: A = []
            if OPT["ab"] & 2: E = [x.replace("v_exp_f32", "v_mov_b32") for x in E]
            if OPT["ab"] & 32: C = []
            if OPT["ab"] & 64: E = []; A = []; C = []
        flat += E if prev is None else E[:1] + prev[0] + E[1:] + prev[1]
        prev = (A, C)
    return flat + prev[0] + prev[1]

class Grp:
    def __init__(self, rd, mf): self.rd = rd; self.mf = mf; self.reb = []
def qk_tile(t, w, slots, czero=False):
    gs = []
    if OPT["qo"] == 1 and len(slots) == 4:
        for s_ in range(6):
            rd = [(V_RDK[s_ & 1], w * 12288 + tb * 6144 + (s_ >> 1) * 128) for tb in range(2)]
            mf = []
            for sl, qb in slots:
                for tb in range(2):
                    d = vr(Sq(t, sl, tb), 4)
                    mf.append((tb, d, Qf(qb, s_), (("0" if czero else vr(NEGM(qb), 4)) if s_ == 0 else d)))
            gs.append(Grp(rd, mf))
        return gs
    for gi in range(6):
        s0 = 2 * (gi >> 1); tb = gi & 1
        rd = [(V_RDK[j], w * 12288 + tb * 6144 + (s0 >> 1) * 128) for j in range(2)]
        mf = []
        for sl, qb in slots:
            d = vr(Sq(t, sl, tb), 4)
            mf += [(0, d, Qf(qb, s0), (("0" if czero else vr(NEGM(qb), 4)) if s0 == 0 else d)), (1, d, Qf(qb, s0 + 1), d)]
        gs.append(Grp(rd, mf))
    return gs
def qk_full(t): return [g for w in range(2) for g in qk_tile(t + w, w, [(q, q) for q in range(4)])]
def qk_half(t, czero=False, ws=(0, 1)):
    return [g for w in ws for g in qk_tile(t, w, [(2 * w + j, slot_q(t, j)) for j in range(2)], czero)]
def pv_grp(t, db, first=False, va=V_RD):
    m = mode_of(t); mf = []
    for qb in (range(4) if m == "f" else [slot_q(t, 0), slot_q(t, 1)]):
        d = ar(O(qb, db), 4)
        for w in range(2):
            b = P(t + w, qb) if m == "f" else P(t, 2 * w + (qb & 1))
            mf.append((w, d, vr(b, 4), "0" if (first and w == 0) else d))
    return Grp([(va, w * 12288 + db * 1024) for w in range(2)], mf)
def pv_seq(t, first=False):
    if OPT["po"] == 1 and mode_of(t) == "f":
        gs = []
        for d0 in range(0, 12, 2):
            for w in range(2):
                mf = [(e, ar(O(qb, d0 + e), 4), vr(P(t + w, qb), 4), ar(O(qb, d0 + e), 4)) for qb in range(4) for e in range(2)]
                gs.append(Grp([(V_RD, w * 12288 + (d0 + e) * 1024) for e in range(2)], mf))
        return gs
    if OPT["po"] == 2 and mode_of(t) == "f":
        gs = []
        for db in range(12):
            mf = [(w, ar(O(qb, db), 4), vr(P(t + w, qb), 4), ar(O(qb, db), 4)) for w in range(2) for qb in range(4)]
            gs.append(Grp([(V_RD, w * 12288 + db * 1024) for w in range(2)], mf))
        return gs
    return [pv_grp(t, db, first) for db in range(12)]
def pv_unchained(t, first=False):
    gs = []
    for w in range(2):
        for d0 in range(0, 12, 2):
            mf = []
            for j in range(2):
                qb = slot_q(t, j)
                for e in range(2):
                    d = ar(O(qb, d0 + e), 4)
                    mf.append((e, d, vr(P(t, 2 * w + j), 4), "0" if (first and w == 0) else d))
            gs.append(Grp([(V_RD, w * 12288 + (d0 + e) * 1024) for e in range(2)], mf))
    return gs
def rebase(gs, regs, delta):
    op = "v_add_u32" if delta >= 0 else "v_subrev_u32"
    gs[0].reb += [f"{op} v{r}, {abs(delta)}, v{r}" for r in regs]
    return gs
def rd_op(gi, j, g):
    f = 2 * gi + j
    return DS(("fr", f % NFS), f"ds_read_b128 {FR(f)}, v{g.rd[j][0]} offset:{g.rd[j][1]}")

def dma_tile(part, pos, peel=False):
    dm, go, tmp = (S_DMK, S_GOFFK, S_TK) if part == "k" else (S_DMV, S_GOFF, S_TV)
    l = [f"s_mov_b32 m0, s{dm}"]
    for j in range(3):
        l.append(VM(("d" + part, pos % 8), f"buffer_load_dwordx4 v{V_DMA}, s[{S_WS}:{S_WS+3}], s{go} offen offset:{j*1024}{SC1} lds"))
    if peel and pos < 7:
        l += [f"s_add_u32 s{go}, s{go}, {STAGE}", f"s_sub_u32 s{tmp}, s{go}, {8*STAGE}", f"s_min_u32 s{go}, s{go}, s{tmp}"]
    elif peel and pos == 7:
        l += [f"s_mov_b32 s{go}, {8*STAGE + (0 if part == 'k' else 12288)}"]
    else:
        l += [f"s_add_u32 s{go}, s{go}, {STAGE}"]
    if pos % 2 == 0: l += [f"s_add_u32 s{dm}, s{dm}, 12288"]
    else: l += [f"s_add_u32 s{dm}, s{dm}, {2*STAGE - 12288}", f"s_sub_u32 s{tmp}, s{dm}, {RING}", f"s_min_u32 s{dm}, s{dm}, s{tmp}"]
    return l
QOFF = [STAGE, 0, 2 * STAGE, STAGE]
def q_dma(lst):
    l = []
    for i in lst:
        a, b = divmod(i, 6)
        l += [f"s_mov_b32 s{S_QS}, {a*6144}"] * (1 if (b == 0 or i == lst[0]) else 0)
        l += [f"s_add_u32 m0, s{S_QL}, {QOFF[a] + b*1024}",
              VM(("q", a), f"buffer_load_dwordx4 v{VQD+b}, s[{S_Q}:{S_Q+3}], s{S_QS} offen{NTQ} lds")]
    return l
def q_frags(qb):
    l = []
    for s in range(6):
        for h in range(2):
            sp = s + 6 * h
            l.append(DS(("qf", qb), f"ds_read_b64 {Qf(qb,s,h)}, v{VQR[sp&3]} offset:{QOFF[qb] + (sp>>2)*128}"))
    return l
def with_nop(l):
    out = []
    for i, x in enumerate(l):
        out.append(x)
        if isinstance(x, str) and " m0," in x and i + 1 < len(l) and isinstance(l[i + 1], VM): out.append("s_nop 0")
    return out
def rd_step(kind):
    cur, regs = (S_RK, V_RDK) if kind == "q" else (S_RV, [V_RD])
    return [f"s_add_u32 s{S_TMP}, s{cur}, {2*STAGE}", f"s_sub_u32 s{S_RDELTA}, s{S_TMP}, {RING}",
            f"s_min_u32 s{S_TMP}, s{S_TMP}, s{S_RDELTA}", f"s_sub_u32 s{S_RDELTA}, s{S_TMP}, s{cur}", f"s_mov_b32 s{cur}, s{S_TMP}"] + \
           [f"v_add_u32 v{r}, s{S_RDELTA}, v{r}" for r in regs]

def k_ld(h, buf, rs, tag, scal_first=True):
    sc = [VM(tag, f"buffer_load_dwordx2 v[{rs+2*i}:{rs+2*i+1}], v{V_KSC}, s[{srd_}:{srd_+3}], s{S_PKS} offen offset:{192*h}")
          for i, srd_ in enumerate((S_KS, S_KZ))]
    l = []
    for j in range(4):
        so = S_PK0 if j < 2 else S_PK1
        l.append(VM(tag, f"buffer_load_dwordx4 v[{buf+4*j}:{buf+4*j+3}], v{V_KLD}, s[{S_QK}:{S_QK+3}], s{so} offen offset:{(j&1)*1536+384*h}{NTKV}"))
    return sc + l if scal_first else l + sc
def v_ld(h, buf, rs, tag, scal_first=True):
    sc = [VM(tag, f"buffer_load_dwordx2 v[{rs+2*i}:{rs+2*i+1}], off, s[{srd_}:{srd_+3}], s{S_PVS} offset:{8*h}")
          for i, srd_ in enumerate((S_VS, S_VZ))]
    l = []
    for r in range(4):
        so = S_PV0 if h == 0 else S_PV1
        l.append(VM(tag, f"buffer_load_dwordx4 v[{buf+4*r}:{buf+4*r+3}], v{V_VLD}, s[{S_QV}:{S_QV+3}], s{so} offen offset:{r*768}{NTKV}"))
    return sc + l if scal_first else l + sc
def k_cv(h, buf, rs, out):
    l = []
    s0, s1, z0, z1 = V_CT, V_CT + 1, V_CT + 2, V_CT + 3
    for i in range(2):
        l += [f"v_lshlrev_b32 v{s0}, 16, v{rs+i}", f"v_and_b32 v{s1}, s{S_MASK}, v{rs+i}",
              f"v_lshlrev_b32 v{z0}, 16, v{rs+2+i}", f"v_and_b32 v{z1}, s{S_MASK}, v{rs+2+i}",
              f"v_mul_f32 v{s0}, s{S_CS}, v{s0}", f"v_mul_f32 v{s1}, s{S_CS}, v{s1}",
              f"v_mul_f32_e64 v{z0}, -v{z0}, v{s0}", f"v_mul_f32_e64 v{z1}, -v{z1}, v{s1}"]
        for j in range(4):
            a = buf + 4 * j + 2 * i; b = a + 1
            l += [f"v_cvt_f32_i32 v{a}, v{a}", f"v_cvt_f32_i32 v{b}, v{b}",
                  f"v_fma_f32 v{a}, v{a}, v{s0}, v{z0}", f"v_fma_f32 v{b}, v{b}, v{s1}, v{z1}",
                  f"v_cvt_pk_bf16_f32 v{out+4*j+2*h+i}, v{a}, v{b}"]
    return l
def k_st(j, out, tag="kst", STF=STF):
    va = V_KST; g = []
    if j:
        va = V_KA + (j & 1); g.append(f"v_xor_b32 v{va}, {16*j}, v{V_KST}")
    g.append(VM(tag, f"buffer_store_dwordx4 v[{out+4*j}:{out+4*j+3}], v{va}, s[{S_WS}:{S_WS+3}], s{S_PK0} offen offset:{j*768}{STF}"))
    return g
def v_cv(h, buf, rs, out):
    l = []
    s0, s1, z0, z1 = V_CT, V_CT + 1, V_CT + 2, V_CT + 3
    for i in range(2):
        l += [f"v_lshlrev_b32 v{s0}, 16, v{rs+i}", f"v_and_b32 v{s1}, s{S_MASK}, v{rs+i}",
              f"v_lshlrev_b32 v{z0}, 16, v{rs+2+i}", f"v_and_b32 v{z1}, s{S_MASK}, v{rs+2+i}",
              f"v_mul_f32_e64 v{z0}, -v{z0}, v{s0}", f"v_mul_f32_e64 v{z1}, -v{z1}, v{s1}"]
        for e in range(4):
            a = buf + 4 * (2 * i) + e; b = buf + 4 * (2 * i + 1) + e
            l += [f"v_cvt_f32_i32 v{a}, v{a}", f"v_cvt_f32_i32 v{b}, v{b}",
                  f"v_fma_f32 v{a}, v{a}, v{s0}, v{z0}", f"v_fma_f32 v{b}, v{b}, v{s1}, v{z1}"]
    for e, i in [(0, 0), (1, 0), (0, 1), (1, 1), (2, 0), (2, 1), (3, 0), (3, 1)]:
        l.append(f"v_cvt_pk_bf16_f32 v{out+4*e+2*h+i}, v{buf+8*i+e}, v{buf+8*i+4+e}")
    return l
def v_st(e, out, tag="vst", STF=STF):
    so = S_PV0 if e < 2 else S_PV2
    return [VM(tag, f"buffer_store_dwordx4 v[{out+4*e}:{out+4*e+3}], v{V_VST}, s[{S_WS}:{S_WS+3}], s{so} offen offset:{(e&1)*3072}{STF}")]
def k_adv():
    return [f"s_add_u32 s{S_PK0}, s{S_PK0}, {8*STAGE}", f"s_add_u32 s{S_PK1}, s{S_PK1}, {8*STAGE}", f"s_add_u32 s{S_PKS}, s{S_PKS}, {4*384}"]
def v_adv():
    return [f"s_add_u32 s{r}, s{r}, {8*STAGE}" for r in (S_PV0, S_PV1, S_PV2)] + [f"s_add_u32 s{S_PVS}, s{S_PVS}, {8*64}"]
HT = {"ka": (k_ld, k_cv, 0, BX, V_RS[0], BX), "kb": (k_ld, k_cv, 1, BY, V_RS[1], BX),
      "va": (v_ld, v_cv, 0, BZ, V_RS[0], BZ), "vb": (v_ld, v_cv, 1, BY, V_RS[1], BZ)}
def flag_post(first=False):
    return [f"v_add_u32 v{V_FVAL}, 1, v{V_FVAL}"] + [
            VM("flag", f"buffer_store_dword v{V_FVAL}, v{V_FLAG}, s[{S_FLG}:{S_FLG+3}], 0 offen")] * (OPT["l2"] == 1 or (OPT["l2"] == 2 and first)) + [
            VM("flag", f"buffer_store_dword v{V_FVAL}, v{V_FLAG}, s[{S_FLG}:{S_FLG+3}], 0 offen offset:32 sc1")]
def poll_addr():
    return [f"v_bfe_u32 v{V_POLL+1}, v{V_DMA}, 4, 6", f"v_lshlrev_b32 v{V_POLL+1}, 2, v{V_POLL+1}"]
def poll_load():
    return poll_addr() + [VM("poll", f"buffer_load_dword v{V_POLL}, v{V_POLL+1}, s[{S_FLG}:{S_FLG+3}], s{S_FOFF} offen sc1")]
def poll_test():
    return [f"v_subrev_u32 v{V_POLL}, s{S_NEED}, v{V_POLL}", f"v_cmp_lt_u32 vcc, 15, v{V_POLL}", "s_nop 0", f"s_and_b32 s{S_TP}, vcc_lo, 0xff"]
def smem_flags():
    return [f"s_buffer_load_dwordx8 s[{S_PT}:{S_PT+7}], s[{S_FLG}:{S_FLG+3}], s{S_FOFF} glc"]
def smem_reduce():
    return [f"s_sub_u32 s{S_PT+i}, s{S_PT+i}, s{S_NEED}" for i in range(8)] + [f"s_max_u32 s{S_PT}, s{S_PT}, s{S_PT+i}" for i in range(1, 8)]
def smem_test():
    return smem_flags() + ["s_waitcnt lgkmcnt(0)"] + smem_reduce() + [f"s_cmp_lt_u32 s{S_PT}, 16"]
def poll_slow(site):
    l = [f"L_pollslow{site}:"] + ([f"s_add_u32 s{S_TAG+1}, s{S_TAG+1}, {1 << (6 * site)}"] if OPT["stamp"] else [])
    l += [f"s_mov_b32 s{S_TP}, {60 if site == 0 else 200}", f"L_pollsm{site}:"] + smem_test() + [f"s_cbranch_scc1 L_pollok{site}",
          f"s_sub_u32 s{S_TP}, s{S_TP}, 1", f"s_cbranch_scc1 L_pollvec{site}", "s_sleep 1", f"s_branch L_pollsm{site}"]
    l += [f"L_pollvec{site}:"] + poll_addr() + [
            f"s_sub_u32 s{S_BUDGET}, s{S_BUDGET}, 1",
            f"s_cbranch_scc1 L_pollgiveup{site}",
            "s_sleep 2",
            f"buffer_load_dword v{V_POLL}, v{V_POLL+1}, s[{S_FLG}:{S_FLG+3}], s{S_FOFF} offen sc1",
            "s_waitcnt vmcnt(0)"]
    if site == 0 and OPT["l2"]:
        l += [f"s_cmp_lg_u32 s{S_FOFF}, 0", "s_cbranch_scc1 L_nomix",
              f"v_xor_b32 v{V_POLL+1}, s{S_NEED}, v{V_POLL}", f"v_lshrrev_b32 v{V_POLL+1}, 5, v{V_POLL+1}", f"v_add_u32 v{V_POLL+1}, -1, v{V_POLL+1}",
              f"v_cmp_gt_u32 vcc, 31, v{V_POLL+1}", "s_nop 1", f"s_and_b32 s{S_TP}, vcc_lo, 0xff00", "s_cbranch_scc0 L_nomix"]
        l += fin([x for j in range(4) for x in k_st(j, BX)] + [x for e in range(4) for x in v_st(e, 112)])
        l += ["s_waitcnt vmcnt(0)", "s_barrier", f"s_and_b32 s{S_NEED}, s{S_NEED}, 0xfffffc00", f"s_add_u32 s{S_NEED}, s{S_NEED}, {16 << 5}",
              f"v_mov_b32 v{V_FVAL}, s{S_NEED}", f"s_add_u32 s{S_NEED}, s{S_NEED}, 1", f"s_mov_b32 s{S_FOFF}, 32"] + fin(flag_post()) + ["s_branch L_pollvec0", "L_nomix:"]
    l += poll_test() + [
            f"s_cbranch_scc1 L_pollvec{site}",
            f"s_branch L_pollok{site}",
            f"L_pollgiveup{site}:",
            f"s_mov_b32 s{S_BUDGET}, 0",
            f"s_branch L_pollok{site}"]
    return l
def tag_load():
    return [VM("tag", f"buffer_load_dword v{V_FVAL}, off, s[{S_DBG}:{S_DBG+3}], s{S_HOFF} sc1")]
def tag_check():
    return [f"s_cmp_lg_u32 s{S_WAVE}, 0", "s_cbranch_scc1 L_tagdone",
            f"v_readfirstlane_b32 s{S_TAG}, v{V_FVAL}", f"s_mov_b32 s{S_RET}, 100",
            "s_waitcnt lgkmcnt(0)", f"s_and_b32 s{S_OWN}, s{S_OWN}, 0xfffffc00",
            "L_tagretry:", f"s_cmp_eq_u32 s{S_TAG}, s{S_OWN}", f"s_cselect_b32 s{S_TAG}, 0, s{S_TAG}", f"s_cmp_lg_u32 s{S_TAG}, 0", "s_cbranch_scc1 L_tagok",
            f"s_sub_u32 s{S_RET}, s{S_RET}, 1", "s_cbranch_scc1 L_tagslow", "s_sleep 4",
            f"s_buffer_load_dword s{S_TAG}, s[{S_DBG}:{S_DBG+3}], s{S_HOFF} glc", "s_waitcnt lgkmcnt(0)", "s_branch L_tagretry",
            "L_tagok:", f"s_add_u32 s{S_TAG}, s{S_TAG}, s{S_XCC}", f"v_mov_b32 v{V_FVAL}, s{S_TAG}", f"v_mov_b32 v{V_T}, {RING}", DS("w", f"ds_write_b32 v{V_T}, v{V_FVAL}"), "L_tagdone:"]
def tag_get():
    return [f"v_mov_b32 v{V_T}, {RING}", DS("tg", f"ds_read_b32 v{V_T+1}, v{V_T}")]
def tag_use():
    return [f"v_readfirstlane_b32 s{S_NEED}, v{V_T+1}", f"s_add_u32 s{S_NEED}, s{S_NEED}, 1"]
def tag_slow():
    return ["L_tagslow:",
            f"s_sub_u32 s{S_BUDGET}, s{S_BUDGET}, 1",
            "s_cbranch_scc1 L_taggiveup",
            "s_sleep 2",
            f"buffer_load_dword v{V_FVAL}, off, s[{S_DBG}:{S_DBG+3}], s{S_HOFF} sc1",
            "s_waitcnt vmcnt(0)",
            f"v_readfirstlane_b32 s{S_TAG}, v{V_FVAL}", "s_nop 0", f"s_cmp_eq_u32 s{S_TAG}, s{S_OWN}", "s_cbranch_scc1 L_tagslow",
            f"s_cmp_eq_u32 s{S_TAG}, 0", "s_cbranch_scc1 L_tagslow",
            "s_branch L_tagok",
            "L_taggiveup:",
            f"s_mov_b32 s{S_BUDGET}, 0",
            "s_branch L_tagok"]

def text_of(x):
    return "s_waitcnt" if isinstance(x, (W, LG)) else (x.text if isinstance(x, (VM, DS)) else x)
def kind_of(x):
    t = text_of(x)
    if t.endswith(":"): return "label"
    if t.startswith("v_"): return "valu"
    if t.startswith("ds_"): return "ds"
    if t.startswith("buffer_store"): return "store"
    if t.startswith("buffer_"): return "load"
    return "salu"
def cost_of(x):
    k = kind_of(x); t = text_of(x)
    if k == "label": return 0
    if k == "store": return 20 if "x4" in t else (OPT["x2c"] if "x2" in t else 8)
    if k == "load": return 8
    if t.startswith("ds_write"): return 16 if ("b128" in t or "write2" in t) else 8
    if t.startswith(("v_exp", "v_rcp")): return 8
    if t.startswith("s_nop"): return 4 * (int(t.split()[1]) + 1)
    if t.startswith("s_cbranch") or t.startswith("s_branch"): return 12
    if t.startswith("s_barrier"): return 8
    return 4
def gap_time(ops):
    t = 4; prev = None
    for o in ops:
        if o is None: continue
        k = kind_of(o)
        if k == "label": continue
        if k == "salu": t += cost_of(o)
        else: t = max(t, 8) + cost_of(o) + (8 if (k != "valu" and prev == "valu") else 0)
        prev = k
    return t

class Stream:
    def __init__(self, ops, first, last, maxper=99, dense=0):
        self.nb = {}; self.dl = []; l = []
        for o in ops:
            if isinstance(o, tuple):
                if o[0] == "nb": self.nb[len(l)] = o[1]
                else: self.dl.append((len(l), o[1]))
            else: l.append(o)
        ops = l
        self.ops = list(ops); self.first = first; self.last = last; self.maxper = maxper; self.dense = dense
        self.total = sum(cost_of(o) for o in self.ops); self.done = 0; self.i = 0
        self.gate = {}; self.i0 = 0

def pack(NG, A, B, C, T, streams, novm=(), nosalu=(), vmgap=4):
    out = []; over = 0; lastvm = -99
    for g in range(NG):
        a, b, c, tl = list(A[g]), list(B[g]), list(C[g]), list(T[g])
        cnt = {}; inC = set(); blocked = set()
        while True:
            best = None; bl = None; bsec = None
            for st in streams:
                if st.i >= len(st.ops) or g < st.first: continue
                if g < st.nb.get(st.i, 0): continue
                force = g >= st.last or any(st.i < n and g >= dg for n, dg in st.dl)
                if (cnt.get(id(st), 0) >= st.maxper or id(st) in blocked) and not force: continue
                o = st.ops[st.i]; k = kind_of(o); cst = cost_of(o)
                if k == "salu" and g in nosalu:
                    assert not force, (g, text_of(o))
                    continue
                if k in ("load", "store") and (g in novm or g - lastvm < vmgap) and not force: continue
                if k in ("load", "store", "ds"):
                    sec = "b" if id(st) not in inC and id(st) not in blocked else "c"
                    if sec == "c" and not force: continue
                elif k == "salu" and not a and cnt.get(id(st), 0) == 0:
                    sec = "a"
                else: sec = "c"
                tgt = st.total * (g - st.first + 1) / (st.last - st.first + 1)
                lag = tgt - st.done
                if not force:
                    if lag < cst / 2 - OPT["ahead"] and cst: continue
                    trial = (a + [o] if sec == "a" else a) + (b + [o] if sec == "b" else b) + (c + [o] if sec == "c" else c) + tl
                    gt = gap_time(trial)
                    if gt > 16:
                        if g % 2 == 0: continue
                        big = k == "store" or text_of(o).startswith(("ds_write_b128", "ds_write2"))
                        lim = max(20, st.dense) if lag > 24 else 16
                        if big and not (a + b + c + tl): lim = 32
                        if gt > lim: continue
                key = (force, k in ("load", "store"), lag / max(1, (st.last - g + 1)) ** 0.5)
                if best is None or key > bl: best = st; bl = key; bsec = sec
            if best is None: break
            o = best.ops[best.i]
            if bsec == "a": a.append(o)
            elif bsec == "b":
                b.append(o)
            else: c.append(o)
            if bsec == "c" or bsec == "b" and kind_of(o) != "ds" and False: inC.add(id(best))
            if bsec == "c": inC.add(id(best))
            if " m0," in text_of(o): blocked.add(id(best))
            if kind_of(o) in ("load", "store"): lastvm = g
            best.i += 1; best.done += cost_of(o); cnt[id(best)] = cnt.get(id(best), 0) + 1
        ops = a + b + c + tl
        tt = gap_time(ops)
        if tt > 16: over += tt - 16
        out.append(ops)
    for st in streams: assert st.i == len(st.ops)
    return out, over

def pack_dense(NG, A, B, C, T, streams, novm=(), nosalu=(), vmgap=2):
    jobs = []
    for st in streams:
        r = st.first; rel = []
        for i in range(len(st.ops)):
            r = max(r, st.nb.get(i, 0)); rel.append(r)
        for i, o in enumerate(st.ops):
            d = min([st.last] + [dg for n, dg in st.dl if i < n])
            k = kind_of(o)
            jobs.append([rel[i], d, cost_of(o) + (OPT["dx"] if k in ("store", "load") else 0) - (2 if k == "salu" else 0)])
    for g in range(NG): jobs.append([g, g, max(0, gap_time(A[g] + B[g] + C[g] + T[g]) - 8)])
    level = [None] * NG
    while jobs:
        free = [g for g in range(NG) if level[g] is None]
        pts_r = sorted({j[0] for j in jobs}); pts_d = sorted({j[1] for j in jobs})
        best = None
        for a_ in pts_r:
            ws = sorted((j[1], j[2]) for j in jobs if j[0] >= a_)
            w = 0; i = 0
            for b_ in pts_d:
                if b_ < a_: continue
                while i < len(ws) and ws[i][0] <= b_: w += ws[i][1]; i += 1
                n = sum(1 for g in free if a_ <= g <= b_)
                if n and (best is None or w / n > best[0]): best = (w / n, a_, b_)
        dn, a_, b_ = best
        if dn <= 8: break
        for g in free:
            if a_ <= g <= b_: level[g] = dn
        jobs = [j for j in jobs if not (j[0] >= a_ and j[1] <= b_)]
    extra = [2 * (level[g] - 8) if (level[g] is not None and g % 2) else 0 for g in range(NG)]
    return pack_dense1(NG, A, B, C, T, streams, novm, nosalu, vmgap, extra)
def pack_dense1(NG, A, B, C, T, streams, novm, nosalu, vmgap, extra):
    out = []; over = 0; lastvm = -99
    fixed = [gap_time(A[g] + B[g] + C[g] + T[g]) - (8 if not (B[g] + C[g] + T[g]) else 8) for g in range(NG)]
    for g in range(NG):
        a, b, c, tl = list(A[g]), list(B[g]), list(C[g]), list(T[g])
        carry = (carry if g else 0) + extra[g]
        bud = 16 + (carry if g % 2 else 0)
        blocked = set(); inC = set()
        for st in streams: st.i0 = st.i
        while True:
            best = None; bl = None
            cur = gap_time(a + b + c + tl)
            for st in streams:
                if st.i >= len(st.ops) or g < st.first or g < st.nb.get(st.i, 0): continue
                if st.i in st.gate:
                    o_, j_ = st.gate[st.i]
                    if (o_.i0 if (kind_of(st.ops[st.i]) == "store" and g < NG - 1) else o_.i) <= j_: continue
                    if o_.i0 <= j_: inC.add(id(st))
                force = g >= st.last or any(st.i < n and g >= dg for n, dg in st.dl)
                if id(st) in blocked and not force: continue
                o = st.ops[st.i]; k = kind_of(o)
                if k == "salu" and g in nosalu:
                    assert not force
                    continue
                mem = k in ("load", "store", "ds")
                if k in ("load", "store") and (g in novm or g - lastvm < vmgap) and not force: continue
                sec = "b" if (mem and id(st) not in inC) else ("a" if (k == "salu" and not a and id(st) not in inC and id(st) not in blocked and not any(x is st for x in ())) else "c")
                if sec == "a" and any(id(st) == y for y in inC): sec = "c"
                if mem and sec == "c" and not force: continue
                trial = gap_time((a + [o] if sec == "a" else a) + (b + [o] if sec == "b" else b) + (c + [o] if sec == "c" else c) + tl)
                if not force and trial > bud and not (cur < 16 and trial <= bud + 12 and g % 2): continue
                tgt = st.total * (g - st.first + 1) / (st.last - st.first + 1)
                n_, dd = min([(len(st.ops), st.last)] + [(n, dg) for n, dg in st.dl if st.i < n], key=lambda x: x[1])
                need = sum(cost_of(x) for x in st.ops[st.i:n_]) / max(1, dd - g + 1)
                key = (force, mem, need)
                if best is None or key > bl: best = st; bl = key; bsec = sec
            if best is None: break
            o = best.ops[best.i]
            {"a": a, "b": b, "c": c}[bsec].append(o)
            if bsec == "c" or (bsec == "b"):
                if bsec == "c": inC.add(id(best))
                else: usedb = True
            if bsec in ("a", "b"): best._g = g
            if " m0," in text_of(o): blocked.add(id(best))
            if kind_of(o) in ("load", "store"): lastvm = g
            best.i += 1; best.done += cost_of(o)
            if bsec == "b" and not a: a.append(None)
        a = [x for x in a if x is not None]
        ops = a + b + c + tl
        tt = gap_time(ops)
        carry = max(0, carry - max(0, tt - 16)) if extra[g] or g % 2 == 0 else 0
        if tt > 16: over += tt - 16
        out.append(ops)
    for st in streams: assert st.i == len(st.ops)
    return out, over

POLLSITES = []
def gen_seg(name, groups, nxt, sm=(), bars=(), tasks=(), dma=(), extra=(), endops=(), fixed=(), peel=True, vmgap=None):
    starts = []; n = 0
    for g in groups: starts.append(n); n += len(g.mf)
    NG = n
    A = [[] for _ in range(NG)]; B = [[] for _ in range(NG)]; C = [[] for _ in range(NG)]; T = [[] for _ in range(NG)]
    streams = []; novm = set(range(0, NG, 2)); nosalu = set()
    allg = list(groups) + list(nxt)
    assert len(groups) % 3 == 0
    for i, g in enumerate(groups):
        g0 = starts[i]; ln = len(g.mf)
        if i + 2 < len(allg):
            t = allg[i + 2]
            if not (OPT["ab"] & 4 and name.startswith("k") and i % 2): B[g0].append(rd_op(i + 2, 0, t)); B[g0 + ln // 2].append(rd_op(i + 2, 1, t))
            if t.reb:
                assert g0 > 0
                C[g0 - 1] += t.reb
        if i + 1 < len(allg):
            A[g0 + ln - 1].append(LG(("fr", (2 * i + 2) % NFS), ("fr", (2 * i + 3) % NFS)))
    for ops, f, l in sm: streams.append(Stream(ops, f, l))
    streams += list(extra)
    if endops:
        A[NG-4] += endops[:1]; A[NG-2] += [A[NG-1][0]] + list(endops[1:-1]); A[NG-1] = []; T[NG-1] = list(endops[-1:]); nosalu |= {NG-2, NG-1}
    for grp in dma:
        dl = []
        for part, pos in grp[:-2]: dl += dma_tile(part, pos, peel)
        k = max(i for i, x in enumerate(dl) if isinstance(x, VM)) + 1
        lim = NG - 3 if endops else NG - 1
        if grp[-1] + 1 > lim: k = len(dl)
        streams.append(Stream(dl[:k], grp[-2], grp[-1], maxper=2))
        if dl[k:]: streams.append(Stream(dl[k:], grp[-1] + 1, min(lim, grp[-1] + 12), maxper=2))
    bars = [(g, list(tg)) for g, tg in bars]
    for t in tasks:
        k_ = t[0]
        if k_ == "cv":
            _, cv, h, buf, rs, outb = HT[t[1]]
            ops = cv(h, buf, rs, outb)[t[2]:t[3]]
            if t[2] == 0: ops = [W(t[1])] + ops
            streams.append(Stream(ops, t[4], t[5]))
        elif k_ in ("kst", "vst"):
            grp = k_st(t[1], BX) if k_ == "kst" else v_st(t[1], BZ)
            g = t[2]; assert g % 2 == 1 and not B[g] and not A[g], (name, g)
            B[g].append(grp[-1]); novm |= set(range(g - OPT["sb"], g + OPT["sa"] + 1))
            if grp[:-1]: streams.append(Stream(grp[:-1], max(0, g - 5), g - 1))
        elif k_ in ("ld", "ldn"):
            ld, _, h, buf, rs, _o = HT[t[1]]
            adv = {"ka": k_adv(), "va": v_adv()}.get(t[1], []) if k_ == "ld" else []
            ops = ld(h, buf, rs, t[1])
            if len(t) > 4: ops = ops[2:] if t[4] == "raw" else ops[:2]
            streams.append(Stream(adv + ops, t[2], t[3], maxper=1))
        elif k_ == "post":
            bi = t[2] if len(t) > 2 else -1
            bars[bi][1].append(t[1])
            streams.append(Stream(flag_post(), bars[bi][0] + 1, min(NG - 3, bars[bi][0] + 14), maxper=1))
        elif k_ == "pf":
            streams.append(Stream([VM("pf", f"buffer_load_dword v15, v{V_DMA}, s[{S_DBG}:{S_DBG+3}], s{S_HOFF} offen")], t[1], t[2]))
        elif k_ == "pollld": streams.append(Stream(poll_load(), t[1], t[2], maxper=1))
        elif k_ == "pollchk":
            ps = len(POLLSITES); POLLSITES.append(ps)
            g = t[1]; assert g % 4 == 1
            pt = poll_test()
            A[g] += [W("poll")]; T[g] += pt[:2]; novm |= {g, g + 4}
            A[g + 3] += [pt[3]]; A[g + 4] += [f"s_cbranch_scc1 L_pollslow{ps}", f"L_pollok{ps}:"]; nosalu |= {g + 3, g + 4}
            A[g + 5] += [f"s_add_u32 s{S_NEED}, s{S_NEED}, 1"]
        elif k_ == "spollld": A[t[1]] += smem_flags()
        elif k_ == "spollchk":
            ps = len(POLLSITES); POLLSITES.append(ps)
            A[t[1]] += ["s_waitcnt lgkmcnt(0)"]
            streams.append(Stream(smem_reduce(), t[1] + 1, t[2] - 1, maxper=3))
            A[t[2]] += [f"s_cmp_ge_u32 s{S_PT}, 16", f"s_cbranch_scc1 L_pollslow{ps}", f"L_pollok{ps}:", f"s_add_u32 s{S_NEED}, s{S_NEED}, 1"]
        elif k_ == "step": streams.append(Stream(rd_step(t[1]), t[2], t[3], maxper=1))
        elif k_ == "q": streams.append(Stream(q_dma(t[1]), t[2], t[3], maxper=2))
        else: raise Exception(k_)
    for g, tags in bars:
        i = [j for j in range(len(groups)) if starts[j] + len(groups[j].mf) - 1 == g]
        assert i, (name, g)
        if len(groups[i[0]].mf) == 8:
            A[g - 2] += A[g]; A[g] = []
            if tags: A[g - 1] += [W(*tags)]
        elif tags: A[g - 2] += [W(*tags)]
        A[g] += ["s_barrier"]; novm |= {g}
    for g, sec, ops in fixed: {"A": A, "B": B, "C": C, "T": T}[sec][g] += ops
    if endops:
        for st_ in streams: st_.last = min(st_.last, NG - 2)
    m0w = sorted((st.first, st.last) for st in streams if any(" m0," in text_of(o) for o in st.ops))
    assert all(m0w[i][1] < m0w[i + 1][0] for i in range(len(m0w) - 1)), (name, m0w)
    if name in str(OPT["dense"]).split(","): fill, over = pack_dense(NG, A, B, C, T, streams, novm, nosalu, vmgap or OPT["dvg"])
    else: fill, over = pack(NG, A, B, C, T, streams, novm, nosalu, vmgap or OPT["vmgap"])
    if over: print(f"seg {name}: over budget by {over} cycles", file=sys.stderr)
    out = istamp(name)
    g = 0
    for i, gr in enumerate(groups):
        for j, d, b, c in gr.mf:
            if (OPT["pvs"] & 1 and d.startswith("a")) or (OPT["pvs"] & 2 and d.startswith("v")): out.append(f"{MF} {d}, {b}, {FR(2*i+j)}, {c}")
            else: out.append(f"{MF} {d}, {FR(2*i+j)}, {b}, {c}")
            out += fill[g]; g += 1
    return with_nop(out)

GBAR = 79
def seg_groups(it):
    return qk_full(it + 1) if it % 2 else pv_seq(it - 2)
def gen_iter(it, tasks=(), dma=(), name=None, endops=(), peel=False, nxt=None, extra=(), bars=None, groups=None, sm=None, step=True):
    q = it % 2
    smB = softmax_part(it, 1); smA = softmax_part(it + 1, 0)
    if sm is None: sm = ([(smB + [("dl", 57), ("nb", 47)] + smA, 0, 95)] if OPT["flex"] else [(smB, 0, 50), (smA, 52, 95)]) if q else [(smB + smA, 0, 95)]
    need = [("dv", (it - 1) % 8), ("dv", it % 8)] if q else [("dk", (it + 2) % 8), ("dk", (it + 3) % 8)]
    tasks = list(tasks) + ([("step", "p" if q else "q", 30, GBAR - 3)] if step else [])
    return gen_seg(name or f"i{it}", groups or seg_groups(it), nxt if nxt is not None else seg_groups(it + 1)[:2], sm,
                   bars if bars is not None else [(GBAR, need)], tasks, dma, extra, endops, peel=peel)

K_ = lambda *j: tuple(("k", x) for x in j)
V_ = lambda *j: tuple(("v", x) for x in j)
def steady(k):
    ckv, ckk = OPT["ckv"], OPT["ckk"]
    plv, plk = OPT["plv"], OPT["plk"]
    if OPT["bal"]:
        c = [int(x) for x in str(OPT["cut"]).split(",")]
        a1, a2, b1, b2, v1, v2, w1 = c
        return {
            5: ([("cv", "ka", 0, a1, 0, 95), ("pollchk", 1), ("vst", 0, 9), ("vst", 1, 17), ("vst", 2, 25), ("vst", 3, 33), ("post", "vst")], [K_(0, 1) + (41, 74)]),
            6: ([("cv", "ka", a1, a2, 0, 95), ("ld", "kb", 0, 44)], [K_(2, 3) + (0, 90)]),
            7: ([("cv", "ka", a2, 99, 0, 60), ("cv", "kb", 0, b1, 61, 95), ("ld", "va", 11, 70), ("pollld", plv, plv + 8)], [K_(4, 5) + (11, 92)]),
            0: ([("cv", "kb", b1, b2, 0, 95), ("pollchk", ckv)], [V_(0, 1) + (ckv + 7, 74)]),
            1: ([("cv", "kb", b2, 99, 0, 30), ("cv", "va", 0, v1, 31, 95), ("ld", "vb", 32, 80)], [V_(2, 3) + (0, GBAR - 5)]),
            2: ([("cv", "va", v1, v2, 0, 95), ("kst", 0, 1), ("kst", 1, 9), ("kst", 2, 17), ("kst", 3, 25), ("post", "kst")], [K_(6, 7) + (33, 74)]),
            3: ([("cv", "va", v2, 99, 0, 50), ("cv", "vb", 0, w1, 51, 95), ("ld", "ka", 0, 44)], [V_(4, 5) + (0, 90)]),
            4: ([("cv", "vb", w1, 99, 0, 95), ("pollld", plk, plk + 16)] + ([("pf", 80, 92)] if OPT["pf2"] else []), [V_(6, 7) + (0, GBAR - 5)]),
        }[k]
    return {
        1: ([("cv", "va", 0, 22, 0, 95), ("ld", "vb", 0, 44)], [V_(2, 3) + (0, GBAR - 5)]),
        2: ([("cv", "va", 22, 99, 0, 95), ("kst", 0, 1), ("kst", 1, 9), ("kst", 2, 17), ("kst", 3, 25), ("post", "kst")], [K_(6, 7) + (33, 74)]),
        3: ([("cv", "vb", 0, 22, 0, 95), ("ld", "ka", 0, 44)], [V_(4, 5) + (0, GBAR - 5)]),
        4: ([("cv", "vb", 22, 99, 0, 95), ("pollld", plk, plk + 16)] + ([("pf", 80, 92)] if OPT["pf2"] else []), [V_(6, 7) + (0, GBAR - 5)]),
        5: ([("cv", "ka", 0, 16, 0, 95), ("pollchk", 1), ("vst", 0, 9), ("vst", 1, 17), ("vst", 2, 25), ("vst", 3, 33), ("post", "vst")], [K_(0, 1) + (41, 74)]),
        6: ([("cv", "ka", 16, 99, 0, 95), ("ld", "kb", 0, 30)], [K_(2, 3) + (31, 74)]),
        7: ([("cv", "kb", 0, 24, 40, 95), ("ld", "va", 11, 40), ("pollld", plv, plv + 8)], [K_(4, 5) + (41, 90)]),
        0: ([("cv", "kb", 24, 99, 0, 95), ("pollchk", ckv)], [V_(0, 1) + (ckv + 7, ckv + 44)]),
    }[k]

GA = V_RS[0]; TA = V_RS[0] + 1; BA = V_RS[0] + 2
RL = [V_CT, V_CT + 4, NEGM(0), NEGM(1)]
S_EO = 24
def epi_addr():
    return [f"v_bfe_u32 v{TA}, v{V_DMA}, 8, 2", f"v_mul_u32_u24 v{GA}, 1536, v{TA}", f"v_lshlrev_b32 v{BA}, 4, v{TA}",
            f"v_bfe_u32 v{TA}, v{V_DMA}, 4, 4", f"v_lshl_add_u32 v{GA}, v{TA}, 3, v{GA}",
            f"s_lshl_b32 s{S_EO}, s{S_QB}, 2", f"s_add_u32 s{S_EO}, s{S_EO}, s{S_WAVE}", f"s_mul_i32 s{S_EO}, s{S_EO}, {STAGE}",
            f"s_add_u32 s{S_QL}, s{S_EO}, 6144", f"s_add_u32 s{S_QS}, s{S_EO}, 12288", f"s_add_u32 s{S_TAG}, s{S_EO}, 18432"]
S_EQ = [S_EO, S_QL, S_QS, S_TAG]
def epi_l(qs):
    fl = []; t = [V_T, V_T + 1]
    for sw in ("v_permlane16_swap_b32", "v_permlane32_swap_b32"):
        fl += [f"v_mov_b32 v{t[i]}, v{V_L[q]}" for i, q in enumerate(qs)] + ["s_nop 0"]
        fl += [f"{sw} v{V_L[q]}, v{t[i]}" for i, q in enumerate(qs)] + ["s_nop 0"]
        fl += [f"v_add_f32 v{V_L[q]}, v{V_L[q]}, v{t[i]}" for i, q in enumerate(qs)]
    fl += [f"v_rcp_f32 v{t[i]}, v{V_L[q]}" for i, q in enumerate(qs)] + ["s_nop 0"]
    fl += [DS(("rl", q), f"ds_bpermute_b32 v{RL[q]+r}, v{BA}, v{t[i]} offset:{4*r}") for i, q in enumerate(qs) for r in range(4)]
    return fl
class Epi:
    def __init__(self, temps): self.temps = temps; self.n = 0; self.pend = []
    def flush(self, k=99):
        p = self.pend[:k]; self.pend = self.pend[k:]
        return p
    def chunk(self, qb, n, pk=False):
        p = []
        ob = self.temps[self.n % len(self.temps)]; self.n += 1
        for r in range(4):
            o = ob + 4 * r
            p += [f"v_accvgpr_read_b32 v{o+e}, a{O(qb,3*e+n)+r}" for e in range(4)]
            if n == 0 and r == 0: p.append(LG(("rl", qb)))
            rl = RL[qb] + r
            if pk: p += [f"v_pk_mul_f32 v[{o+2*i}:{o+2*i+1}], v[{o+2*i}:{o+2*i+1}], v[{rl&~1}:{(rl&~1)+1}] " + ("op_sel:[0,1] op_sel_hi:[1,1]" if rl & 1 else "op_sel_hi:[1,0]") for i in range(2)]
            else: p += [f"v_mul_f32 v{o+e}, v{o+e}, v{rl}" for e in range(4)]
            p += [f"v_cvt_pk_bf16_f32 v{o+i}, v{o+2*i}, v{o+2*i+1}" for i in range(2)]
            p += self.flush(1)
            self.pend.append(VM("out", f"buffer_store_dwordx2 v[{o}:{o+1}], v{GA}, s[{S_OUT}:{S_OUT+3}], s{S_EQ[qb]} offen offset:{n*128 + r*384}{OF}"))
        return p

def gen_tail():
    sp = softmax_part
    g57 = qk_half(58) + rebase(qk_half(59), V_RDK, A0 - A2)
    g58 = pv_seq(56)
    g59 = rebase(qk_half(60), V_RDK, A1 - A0) + rebase(qk_half(61), V_RDK, A2 - A1)
    g60 = rebase(pv_seq(58), [V_RD], B2 - B1) + rebase(pv_seq(59), [V_RD], B0 - B2)
    g61 = rebase(pv_seq(60), [V_RD], B1 - B0) + rebase(qk_half(62), V_RDK, A0 - A2)
    g62 = rebase(qk_half(63), V_RDK, A1 - A0) + ([] if OPT["f3"] else rebase(pv_seq(61), [V_RD], B2 - B1))
    g63 = []
    for n in range(3):
        if OPT["f3"]: g63 += [pv_grp(61, 3 * e + n, va=VQR[0]) for e in range(4)]
        g63 += [pv_grp(62, 3 * e + n) for e in range(4)] + [pv_grp(63, 3 * e + n, va=V_RD2) for e in range(4)]
    if OPT["f3"]: g63[0].reb += [f"v_add_u32 v{VQR[0]}, {B2 - B1}, v{V_RD}", f"v_mov_b32 v{V_RD2}, v{V_RD}", f"v_subrev_u32 v{V_RD}, {B1 - B0}, v{V_RD}"]
    else: g63[0].reb += [f"v_subrev_u32 v{V_RD2}, {B2 - B1}, v{V_RD}", f"v_subrev_u32 v{V_RD}, {B2 - B0}, v{V_RD}"]
    first57 = g57[:2]
    p = []
    p += gen_seg("S57", g57, g58[:2], [(sp(57, 1) + [("dl", 50), ("nb", 28)] + sp(58, 0), 0, 95)], [(GBAR, [("dv", 0), ("dv", 1)])],
                 [("step", "p", 30, GBAR - 3)], [K_(62, 63) + V_(58, 59) + (0, 90)], peel=False)
    p += gen_seg("S58", g58, g59[:2], [(sp(58, 1) + sp(59, 0), 0, 95), (epi_addr(), 0, 95)], [(GBAR, [("dk", 7), ("dv", 3)])], [], [V_(60, 61) + (0, 60)], peel=False)
    p += gen_seg("S59", g59, g60[:2], [(sp(59, 1) + [("dl", 50), ("nb", 28)] + sp(60, 0), 0, 95)], [(15, [("dv", 5)])], [], [V_(62, 63) + (16, 60)], peel=False)
    p += gen_seg("S60", g60, g61[:2], [(sp(60, 1) + sp(61, 0), 0, 95)], [(GBAR, [("dv", 7)])])
    ep = Epi([BX, BY])
    e01 = [x for qb in (0, 1) for n in range(3) for x in ep.chunk(qb, n, OPT["pk"])] + ep.flush()
    chk = [f"v_max3_f32 v{V_T+2}, v{V_L[0]}, v{V_L[1]}, v{V_L[2]}", f"v_max_f32 v{V_T+2}, v{V_T+2}, v{V_L[3]}",
           f"s_mov_b32 s{S_TMP}, 0x{f32bits(2.0**OPT['thr']):08x}", f"v_cmp_lt_f32 s[{S_PT}:{S_PT+1}], s{S_TMP}, v{V_T+2}"]
    c = [ep.chunk(2, j, OPT["pk"]) + ep.chunk(3, j, OPT["pk"]) + ep.flush() for j in range(2)]
    sm = epi_l((0, 1)) + [("dl", 30)] + sp(61, 1) + [("dl", 93), ("nb", 76)] + sp(62, 0) + [("nb", 98)] + sp(62, 1) + [("nb", 124)] + sp(63, 0) + [("nb", 148)] + sp(63, 1) + [("dl", 205)] + epi_l((2, 3)) + chk
    ee = e01 + [("nb", 228)] + c[0] + [("nb", 260)] + c[1]
    lastsm = 220
    if OPT["f3"]:
        sm = epi_l((0, 1)) + [("dl", 30)] + sp(61, 1) + [("dl", 93), ("nb", 76)] + sp(62, 0) + [("nb", 98)] + sp(62, 1) + [("dl", 157), ("nb", 124)] + sp(63, 0) + [("nb", 148)] + sp(63, 1) + [("dl", 173)] + epi_l((2, 3)) + chk
        ee = e01 + [("dl", OPT["ed"]), ("nb", 196)] + c[0] + [("dl", OPT["ed1"]), ("nb", 244)] + c[1]
        lastsm = 190
    if OPT["sst"]:
        prod = []; ev = []
        for x in ee:
            if isinstance(x, VM): prod.append(x)
            else: ev.append(x)
        es = Stream(ev, 52, 286); ss = Stream(prod, 52, 287)
        cv = [i for i, x in enumerate(es.ops) if text_of(x).startswith("v_cvt_pk")][1::2]
        rd = [i for i, x in enumerate(es.ops) if text_of(x).startswith("v_accvgpr_read")][0::4]
        assert len(cv) == len(prod) == len(rd)
        for k in range(len(prod)):
            ss.gate[k] = (es, cv[k]); ss.nb[k] = max([0] + [gp for i, gp in es.nb.items() if i <= cv[k]])
            if k + 8 < len(prod): es.gate[rd[k + 8]] = (ss, k)
        xs = [es, ss]
    else: xs = [Stream(ee, 52, 287)]
    p += gen_seg("S61", g61 + g62 + g63, [], [(sm, 0, lastsm)], extra=xs,
                 fixed=[(lastsm + 5, "A", [f"s_cmp_lg_u64 s[{S_PT}:{S_PT+1}], 0", "s_cbranch_scc1 L_slow"]), (95, "T", istamp("S62")), (191, "T", istamp("S63"))])
    p += istamp("fin") + ["s_nop 7"] + ep.chunk(2, 2, True) + ep.flush() + ep.chunk(3, 2, True) + ep.flush()
    return first57, p
def slow_epi():
    ep = Epi([64 + 16 * i for i in range(4)])
    seq = epi_l((0, 1)) + epi_l((2, 3))
    for qb in range(4):
        for n in range(3): seq += ep.chunk(qb, n, True)
    return seq + ep.flush()

def kfrag(g):
    return 2 * (g >> 2) + (g & 1), (g >> 1) & 1
def gen_slow():
    KF = 64; VF = 112; SS = 160; PP = 224; M = [240, 241, 242, 243]; KA = [244, 245]; LA = 246; t = V_T
    p = ["L_slow:", "s_waitcnt vmcnt(0) lgkmcnt(0)", "s_nop 15"]
    for i in range(192): p.append(f"v_accvgpr_write_b32 a{i}, 0")
    for q in range(4): p += [f"v_mov_b32 v{V_L[q]}, 0", f"v_mov_b32 v{M[q]}, 0xff7fffff"]
    p += [f"v_subrev_u32 v{KA[0]}, {A1}, v{V_RDK[0]}", f"v_subrev_u32 v{KA[1]}, {A1}, v{V_RDK[1]}", f"v_subrev_u32 v{LA}, {B0}, v{V_RD}",
          f"s_mov_b32 s{S_PT}, 0", "L_slowloop:"]
    for i in range(1, 5): p.append(f"s_add_u32 s{S_PT+i}, s{S_PT}, {[0, 6144, 12288, 16384, 20480][i]}")
    for f in range(12):
        s, tb = kfrag(f)
        p.append(f"buffer_load_dwordx4 v[{KF+4*f}:{KF+4*f+3}], v{KA[s&1]}, s[{S_WS}:{S_WS+3}], s{S_PT+tb} offen offset:{(s>>1)*128} sc1")
    for db in range(12):
        p.append(f"buffer_load_dwordx4 v[{VF+4*db}:{VF+4*db+3}], v{LA}, s[{S_WS}:{S_WS+3}], s{S_PT+2+db//4} offen offset:{(db%4)*1024} sc1")
    p.append("s_waitcnt vmcnt(12)")
    for f in range(12):
        s, tb = kfrag(f)
        for qb in range(4):
            d = vr(SS + 8 * qb + 4 * tb, 4)
            p.append(f"{MF} {d}, v[{KF+4*f}:{KF+4*f+3}], {Qf(qb,s)}, {'0' if s == 0 else d}")
    p.append("s_nop 9")
    for qb in range(4):
        sb = SS + 8 * qb
        p += [f"v_max3_f32 v{t}, v{sb}, v{sb+1}, v{sb+2}", f"v_max3_f32 v{t}, v{t}, v{sb+3}, v{sb+4}",
              f"v_max3_f32 v{t}, v{t}, v{sb+5}, v{sb+6}", f"v_max3_f32 v{t}, v{t}, v{sb+7}, v{M[qb]}"]
        p += xlane("v_max_f32", t)
        p += [f"v_sub_f32 v{t+1}, v{M[qb]}, v{t}", f"v_exp_f32 v{t+1}, v{t+1}", f"v_mov_b32 v{M[qb]}, v{t}"]
        for i in range(8): p.append(f"v_sub_f32 v{sb+i}, v{sb+i}, v{t}")
        for i in range(8): p.append(f"v_exp_f32 v{sb+i}, v{sb+i}")
        p.append(f"v_mul_f32 v{V_L[qb]}, v{V_L[qb]}, v{t+1}")
        for i in range(8): p.append(f"v_add_f32 v{V_L[qb]}, v{V_L[qb]}, v{sb+i}")
        for i in range(4): p.append(f"v_cvt_pk_bf16_f32 v{PP+4*qb+i}, v{sb+2*i}, v{sb+2*i+1}")
        p += [f"ds_bpermute_b32 v{248+r}, v{BA}, v{t+1} offset:{4*r}" for r in range(4)] + ["s_waitcnt lgkmcnt(0)"]
        for i in range(48):
            a = O(qb, 0) + i; tt = t + 2 + (i % 2)
            p += [f"v_accvgpr_read_b32 v{tt}, a{a}", f"v_mul_f32 v{tt}, v{tt}, v{248+i%4}", f"v_accvgpr_write_b32 a{a}, v{tt}"]
    p += ["s_waitcnt vmcnt(0)", "s_nop 1"]
    for db in range(12):
        for qb in range(4):
            d = ar(O(qb, db), 4)
            p.append(f"{MF} {d}, v[{PP+4*qb}:{PP+4*qb+3}], v[{VF+4*db}:{VF+4*db+3}], {d}")
    p += [f"s_add_u32 s{S_PT}, s{S_PT}, {STAGE}", f"s_cmp_lt_u32 s{S_PT}, {HEADBYTES}", "s_nop 7", "s_cbranch_scc1 L_slowloop"]
    e = slow_epi(); resolve(e)
    return p + fin(e) + ["s_branch L_fin"]

def xlane(op, t, u=None):
    u = t + 1 if u is None else u
    l = []
    for sw in ("v_permlane16_swap_b32", "v_permlane32_swap_b32"):
        l += [f"v_mov_b32 v{u}, v{t}", "s_nop 1", f"{sw} v{t}, v{u}", "s_nop 1", f"{op} v{t}, v{t}, v{u}"]
    return l
def rowmax2(t, qs, tq):
    l = []
    ab = [(Sq(t, j, 0), Sq(t, j, 1)) for j in range(2)]
    l += [f"v_max3_f32 v{tq[j]}, v{a}, v{a+1}, v{a+2}" for j, (a, b) in enumerate(ab)]
    l += [f"v_max3_f32 v{tq[j]}, v{tq[j]}, v{a+3}, v{b}" for j, (a, b) in enumerate(ab)]
    l += [f"v_max3_f32 v{tq[j]}, v{tq[j]}, v{b+1}, v{b+2}" for j, (a, b) in enumerate(ab)]
    l += [f"v_max_f32 v{tq[j]}, v{tq[j]}, v{b+3}" for j, (a, b) in enumerate(ab)]
    for sw in ("v_permlane16_swap_b32", "v_permlane32_swap_b32"):
        l += [f"v_mov_b32 v{tq[j]+1}, v{tq[j]}" for j in range(2)] + ["s_nop 0"]
        l += [f"{sw} v{tq[j]}, v{tq[j]+1}" for j in range(2)] + ["s_nop 0"]
        l += [f"v_max_f32 v{tq[j]}, v{tq[j]}, v{tq[j]+1}" for j in range(2)]
    l += [f"v_sub_f32 v{NEGM(qs[j])+i}, 0, v{tq[j]}" for j in range(2) for i in range(4)]
    return l
def addneg(t, sl):
    n = NEGM(slot_q(t, sl))
    return [f"v_add_f32 v{Sq(t,sl,tb)+i}, v{Sq(t,sl,tb)+i}, v{n}" for tb in range(2) for i in range(4)]

def resolve(seq):
    vm = []; ds = []
    for x in seq:
        if isinstance(x, VM): vm.append(x.tag)
        elif isinstance(x, DS): ds.append(x.tag)
        elif isinstance(x, (W, LG)):
            q = vm if isinstance(x, W) else ds
            best = None
            for tag in x.tags:
                n = 0; found = False
                for t in reversed(q):
                    if t == tag: found = True; break
                    n += 1
                if found: best = n if best is None else min(best, n)
            if best is not None:
                x.n = best if getattr(x, "n", None) is None else min(x.n, best)
        else:
            assert not x.startswith(("ds_", "buffer_")) or "UNTRACKED" in x, x
def vm_size(x):
    t = x.text
    if t.startswith("buffer_store"): return 0
    if x.tag == "pre": return 3.0
    if " lds" in t: return 1.0
    if "dwordx4" in t or "dwordx3" in t: return 0.75
    if "dwordx2" in t and "offen" in t: return 0.375
    return 0.125
def pace(seq, cap):
    out = []; q = []; on = False
    for x in seq:
        if isinstance(x, W): q = q[len(q) - min(len(q), x.n):]; on = True
        elif isinstance(x, VM):
            sz = vm_size(x)
            if on and not x.text.startswith("buffer_store") and sum(q) + sz > cap:
                while q and sum(q) + sz > cap: q.pop(0)
                w = W(); w.n = len(q)
                if out and out[-1] == "s_nop 0": out.pop()
                out.append(w)
            q.append(sz)
        out.append(x)
    return out
def fin(seq):
    out = []
    for x in seq:
        if isinstance(x, (W, LG)):
            if OPT["ab"] and getattr(x, "n", None) is None: x.n = 63
            assert getattr(x, "n", None) is not None, x.tags
            out.append(f"s_waitcnt vmcnt({min(x.n, 63)})" if isinstance(x, W) else f"s_waitcnt lgkmcnt({min(x.n, 15)})")
        elif isinstance(x, (VM, DS)): out.append(x.text)
        else: out.append(x.replace(" ;UNTRACKED", ""))
    return out
def groups_of(l):
    out = [[]]
    for x in l:
        out[-1].append(x)
        if isinstance(x, VM): out.append([])
    tail = out.pop()
    if tail: out[-1] += tail
    return out
def sprinkle(code, l):
    gs = groups_of(l); out = []; n = len(code); m = len(gs); j = 0
    for i, x in enumerate(code):
        while j < m and i * m >= j * n: out += with_nop(gs[j]); j += 1
        out.append(x)
    for g in gs[j:]: out += with_nop(g)
    return out
def srd(p, s, lo, hi, off_s, size):
    p += [f"s_add_u32 s{s}, s{lo}, s{off_s}", f"s_addc_u32 s{s+1}, s{hi}, 0", f"s_mov_b32 s{s+2}, {size}", f"s_mov_b32 s{s+3}, 0x20000"]

def gen_main():
    p = []
    p += [f"{NAME}_kernel:", "s_cmp_ge_u32 s2, 256", "s_cbranch_scc1 L_done",
          "s_load_dwordx16 s[40:55], s[0:1], 0", "s_load_dwordx4 s[16:19], s[0:1], 64"]
    if OPT["stamp"]: p += ["s_memtime s[98:99]" if OPT["stamp"] == 6 else "s_memrealtime s[98:99]"]
    p += [f"s_and_b32 s{S_HEAD}, s2, 7", f"s_lshr_b32 s{S_QB}, s2, 3", f"s_lshr_b32 s24, s{S_QB}, 3", f"s_lshl_b32 s{S_HEAD}, s{S_HEAD}, 2",
          f"s_add_u32 s{S_HEAD}, s{S_HEAD}, s24", f"s_and_b32 s{S_QB}, s{S_QB}, 7"]
    p += ["s_getpc_b64 s[60:61]", "L_pc:", f"s_sub_u32 s60, s60, L_pc-{NAME}_kernel", "s_subb_u32 s61, s61, 0",
          f"s_mov_b32 s62, L_slow-{NAME}_kernel", "s_mov_b32 s63, 0x20000",
          "s_lshr_b32 s22, s2, 3", "s_lshl_b32 s22, s22, 12",
          "v_lshlrev_b32 v30, 4, v0",
          VM("pf", "buffer_load_dwordx4 v[128:131], v30, s[60:63], s22 offen")]
    p += ["v_lshrrev_b32 v24, 6, v0",
          "v_and_b32 v25, 63, v0",
          f"v_readfirstlane_b32 s{S_WAVE}, v24",
          f"v_lshlrev_b32 v{V_RD}, 4, v25",
          "v_mul_u32_u24 v26, 43, v25", "v_lshrrev_b32 v26, 10, v26",
          "v_mul_u32_u24 v27, 24, v26",
          "v_sub_u32 v27, v25, v27",
          "v_lshrrev_b32 v28, 1, v24",
          "v_and_b32 v29, 1, v24",
          "v_lshlrev_b32 v30, 4, v29",
          "v_lshl_add_u32 v30, v28, 2, v30",
          "v_add_u32 v30, v30, v26",
          "v_mul_u32_u24 v30, 768, v30",
          "v_lshrrev_b32 v48, 1, v26", "v_lshlrev_b32 v48, 30, v48",
          "v_lshl_add_u32 v30, v27, 4, v30", f"v_or_b32 v{V_KLD}, v30, v48",
          f"v_lshl_or_b32 v{V_KSC}, v27, 3, v48",
          "v_mul_u32_u24 v30, 6144, v24",
          f"v_add3_u32 v{V_VLD}, v30, v{V_RD}, v48"]
    for sd, size in ((S_QK, HEADBYTES), (S_QV, HEADBYTES), (S_KS, 12288), (S_KZ, 12288), (S_VS, 4096), (S_VZ, 4096), (S_FLG, 64)):
        p += [f"s_mov_b32 s{sd+2}, {size}", f"s_mov_b32 s{sd+3}, 0x20000"]
    p += [f"s_mul_i32 s{S_PK0}, s{S_QB}, {STAGE}", f"s_add_u32 s{S_PK1}, s{S_PK0}, 6144", f"s_mov_b32 s{S_PV0}, s{S_PK0}",
          f"s_lshr_b32 s{S_PKS}, s{S_QB}, 1", f"s_mul_i32 s{S_PKS}, s{S_PKS}, 384", f"s_lshl_b32 s{S_PVS}, s{S_QB}, 6",
          f"s_lshl_b32 s24, s{S_WAVE}, 4", f"s_add_u32 s{S_PVS}, s{S_PVS}, s24",
          f"s_mul_i32 s24, s{S_HEAD}, {HEADBYTES}", f"s_mul_i32 s56, s{S_HEAD}, 12288", f"s_lshl_b32 s57, s{S_HEAD}, 12",
          f"s_lshl_b32 s58, s{S_HEAD}, 10", f"s_add_u32 s58, s58, {FLAG_OFF + 96}",
          f"s_or_b32 s{S_RET}, s{S_QB}, s{S_WAVE}"]
    p += ["s_waitcnt lgkmcnt(0)"] + istamp("karg", True)
    def base(sd, lo, off): return [f"s_add_u32 s{sd}, s{lo}, s{off}", f"s_addc_u32 s{sd+1}, s{lo+1}, 0"]
    p += base(S_QK, 42, 24) + base(S_KS, 46, 56) + base(S_KZ, 48, 56)
    kl = [k_ld(0, BX, 32, "k0a"), k_ld(1, BY, 36, "k0b")]; vl = [v_ld(0, 112, 40, "v0a"), v_ld(1, 80, 44, "v0b")]
    for x in kl[1][:2]: x.tag = "k0a"
    for x in vl[1][:2]: x.tag = "v0a"
    if OPT["ksc"]:
        for x in kl[0][2:] + kl[1][2:]: x.tag = "kraw"
        for x in kl[1][:2]: x.tag = "k0b"
        p += kl[0][2:] + kl[1][2:] + kl[0][:2] + kl[1][:2]; kl[1] = []
    else: p += kl[0][2:] + kl[0][:2] + kl[1][:2]
    p += base(S_FLG, 18, 58) + base(S_VS, 50, 57) + base(S_VZ, 52, 57) + base(S_QV, 44, 24)
    p += [f"s_mul_i32 s59, s{S_HEAD}, 786432"] + base(S_OUT, 54, 59) + base(S_Q, 40, 59)
    p += [f"s_cmp_lg_u32 s{S_RET}, 0", "s_cbranch_scc1 L_notleader0", f"s_buffer_load_dwordx16 s[40:55], s[{S_FLG}:{S_FLG+3}], 0 glc", "L_notleader0:"]
    p += kl[1][2:]
    p += [f"s_add_u32 s24, s24, {WSOFF}"] * (1 if WSOFF else 0)
    srd(p, S_WS, 18, 19, 24, HEADBYTES)
    p += [f"s_mov_b32 s{S_Q+2}, 786432", f"s_mov_b32 s{S_Q+3}, 0x20000"]
    p += [f"s_mov_b32 s{S_DBG}, s16", f"s_mov_b32 s{S_DBG+1}, s17", f"s_add_u32 s{S_PV1}, s{S_PK0}, 3072", f"s_add_u32 s{S_PV2}, s{S_PK0}, 6144"]
    p += [f"s_mov_b32 s{S_DBG+2}, 256", f"s_mov_b32 s{S_DBG+3}, 0x20000", f"s_lshl_b32 s{S_HOFF}, s{S_HEAD}, 3"]
    p += [f"s_cmp_lg_u32 s{S_RET}, 0", "s_cbranch_scc1 L_notleader", "s_waitcnt lgkmcnt(0)", f"s_mov_b32 s{S_TP}, 1"]
    for i in range(16):
        p += [f"s_lshr_b32 s{40+i}, s{40+i}, 10", f"s_min_u32 s{40+i}, s{40+i}, 31", f"s_bitset1_b32 s{S_TP}, s{40+i}"]
    p += [f"s_ff0_i32_b32 s{S_TP}, s{S_TP}", f"s_lshl_b32 s{S_TP}, s{S_TP}, 10", f"v_mov_b32 v{V_POLL}, s{S_TP}",
          "s_mov_b64 exec, 1", f"buffer_store_dword v{V_POLL}, off, s[{S_DBG}:{S_DBG+3}], s{S_HOFF} sc1 ;UNTRACKED", "s_mov_b64 exec, -1",
          "L_notleader:"]
    p += [f"s_lshl_b32 s24, s{S_QB}, 2", f"s_add_u32 s24, s24, 32", f"s_buffer_load_dword s{S_OWN}, s[{S_FLG}:{S_FLG+3}], s24 glc",
          ] + ([f"s_getreg_b32 s{S_XCC}, hwreg(HW_REG_XCC_ID, 0, 4)", f"s_lshl_b32 s{S_XCC}, s{S_XCC}, 5", f"s_mov_b32 s{S_FOFF}, 0"] if OPT["l2"] else
          [f"s_mov_b32 s{S_XCC}, 0", f"s_mov_b32 s{S_FOFF}, 32"])
    p += vl[0][2:] + vl[0][:2] + vl[1][:2] + (vl[1][2:] if OPT["greedy"] else []) + istamp("iss", True)
    if OPT["pre"]:
        st = OPT["pre"]
        p += [f"v_mul_u32_u24 v31, {st}, v25", f"v_mul_u32_u24 v30, 6144, v24", "v_add_u32 v31, v30, v31"]
        if st == 128: p += ["v_or_b32 v31, v31, v48"]
        p += [VM("pre", f"buffer_load_dword v132, v31, s[{S_WS}:{S_WS+3}], s{S_PK0} offen" + (" nt" if OPT["prent"] else ""))]
        if st == 64: p += ["v_add_u32 v30, 4096, v31", "s_mov_b64 exec, 0xffffffff", VM("pre", f"buffer_load_dword v133, v30, s[{S_WS}:{S_WS+3}], s{S_PK0} offen nt"), "s_mov_b64 exec, -1"]
    p += [f"s_mov_b32 s{S_OUT+2}, 786432", f"s_mov_b32 s{S_OUT+3}, 0x20000"]
    p += [f"s_lshl_b32 s24, s{S_WAVE}, 8", f"s_add_u32 s{S_HOFF}, s{S_HOFF}, s24"]
    p += ["v_mul_u32_u24 v30, 3072, v24", f"v_add_u32 v{V_DMA}, v30, v{V_RD}"]
    p += ["v_lshl_add_u32 v30, v24, 3, v26",
          "v_mul_u32_u24 v30, 384, v30",
          "v_lshlrev_b32 v31, 2, v29",
          "v_xor_b32 v31, v27, v31",
          "v_lshl_add_u32 v30, v31, 4, v30", f"v_or_b32 v{V_KST}, v30, v48",
          "v_lshlrev_b32 v30, 8, v24",
          "v_add_u32 v30, 12288, v30",
          "v_lshrrev_b32 v31, 4, v25", "v_lshl_add_u32 v30, v31, 10, v30", "v_and_b32 v31, 15, v25",
          "v_lshl_add_u32 v30, v31, 4, v30", f"v_or_b32 v{V_VST}, v30, v48"]
    p += [f"s_lshl_b32 s24, s{S_QB}, 2",
          f"v_lshl_add_u32 v{V_FLAG}, v0, 2, s24", f"v_cmp_lt_u32 vcc, 0, v0", "v_mov_b32 v30, 0x40000000", "s_nop 0",
          f"v_cndmask_b32 v{V_FLAG}, v{V_FLAG}, v30, vcc"]
    p += [f"s_mul_i32 s{S_DMK}, s{S_WAVE}, 3072", f"s_add_u32 s{S_DMK}, s{S_DMK}, 12288", f"s_add_u32 s{S_DMV}, s{S_DMK}, {STAGE}",
          f"s_add_u32 s24, s{S_QB}, 1", "s_and_b32 s24, s24, 7", f"s_mul_i32 s{S_GOFFK}, s24, {STAGE}", f"s_add_u32 s{S_GOFF}, s{S_GOFFK}, 12288",
          f"s_mov_b32 s{S_RK}, {A2}", f"s_mov_b32 s{S_RV}, {B1}", f"v_add_u32 v{V_RD}, {B0}, v{V_RD}",
          f"s_mov_b32 s{S_CS}, 0x{f32bits(CSCALE):08x}", f"s_mov_b32 s{S_MASK}, 0xffff0000",
          f"s_mov_b32 s{S_BUDGET}, 100000"] + ([f"s_mov_b32 s{S_TAG+1}, 0"] if OPT["stamp"] else [])
    p += ["v_and_b32 v26, 15, v25", "v_lshrrev_b32 v27, 4, v25", "v_bfe_u32 v28, v25, 1, 3",
          "v_xor_b32 v29, v27, v28", "v_mul_u32_u24 v30, 384, v26", f"v_lshl_add_u32 v{V_RDK[0]}, v29, 4, v30",
          f"v_xor_b32 v{V_RDK[1]}, 64, v{V_RDK[0]}"]
    p += [f"s_mul_i32 s{S_QL}, s{S_WAVE}, 6144", f"s_add_u32 s{S_QL}, s{S_QL}, {B1}",
          "v_lshrrev_b32 v29, 1, v27", "v_xor_b32 v29, v29, v28", "v_lshl_add_u32 v31, v29, 4, v30",
          "v_and_b32 v29, 1, v27", "v_lshl_add_u32 v31, v29, 3, v31"]
    for kk in range(4):
        p += [f"v_xor_b32 v{VQR[kk]}, {32*kk}, v31", f"v_add_u32 v{VQR[kk]}, s{S_QL}, v{VQR[kk]}"]
    p += [f"s_lshl_b32 s24, s{S_QB}, 2", f"s_add_u32 s24, s24, s{S_WAVE}", f"s_mul_i32 s24, s24, {STAGE}"]
    for b in range(6):
        p += [f"v_add_u32 v26, {64*b}, v25", "v_mul_u32_u24 v27, 2731, v26", "v_lshrrev_b32 v27, 17, v27",
              "v_and_b32 v27, 7, v27", "v_xor_b32 v26, v26, v27", f"v_lshlrev_b32 v{VQD+b}, 4, v26", f"v_add_u32 v{VQD+b}, s24, v{VQD+b}"]
    for q in range(4): p.append(f"v_mov_b32 v{V_L[q]}, 0")
    STF0 = "" if OPT["l2"] else STF
    def own_k(b):
        l = []
        for j in range(4):
            l += k_st(j, b, "kst", STF0)
            va = V_KST if j == 0 else V_KA + (j & 1)
            l += ["s_mov_b64 exec, s[62:63]", DS("w", f"ds_write_b128 v{va}, v[{b+4*j}:{b+4*j+3}] offset:{j*768}"), "s_mov_b64 exec, -1"]
        return l
    def own_v(b):
        l = [x for e in range(4) for x in v_st(e, b, "vst", STF0)]
        l += ["s_mov_b64 exec, s[62:63]"] + [DS("w", f"ds_write_b128 v{V_VST}, v[{b+4*e}:{b+4*e+3}] offset:{STAGE - 12288 + e*3072}") for e in range(4)] + ["s_mov_b64 exec, -1"]
        return l
    p += ["s_mov_b32 s62, -1", "s_mov_b32 s63, 0xffff"]
    qa = OPT["qa"]
    qb_, qc = OPT["qb"], OPT["qc"]
    R = lambda a, b: list(range(a, b))
    if OPT["split"]:
        p += [W("k0a")] + vl[1][2:] + k_cv(0, BX, 32, BX) + [W("k0b")] + istamp("k0b", True) + k_cv(1, BY, 36, BX) + own_k(BX)
        p += tag_load() + with_nop(q_dma(R(0, qa))) + [W("v0a")] + v_cv(0, 112, 40, 112)
        p += [W("tag")] + tag_check() + ["s_waitcnt lgkmcnt(0)", "s_barrier"] + flag_post() + tag_get() + istamp("post", True)
        p += with_nop(q_dma(R(qa, qb_))) + v_cv(1, 80, 44, 112) + own_v(112) + with_nop(q_dma(R(qb_, 12))) + istamp("vst", True)
    elif OPT["greedy"]:
        p += [W("k0a")] + with_nop(q_dma(R(0, 3))) + k_cv(0, BX, 32, BX) + [W("k0b")] + istamp("k0b", True) + with_nop(q_dma(R(3, 6))) + k_cv(1, BY, 36, BX) + own_k(BX)
        p += [W("v0a")] + with_nop(q_dma(R(6, 9))) + v_cv(0, 112, 40, 112) + [W("v0b")] + with_nop(q_dma(R(9, 12))) + v_cv(1, 80, 44, 112) + own_v(112)
        p += tag_load() + with_nop(q_dma(R(12, 18))) + istamp("vst", True)
    else:
        p += [W("k0a")] + vl[1][2:] + k_cv(0, BX, 32, BX) + [W("k0b")] + istamp("k0b", True) + k_cv(1, BY, 36, BX) + own_k(BX)
        p += with_nop(q_dma(R(0, qa))) + istamp("kst", True)
        p += [W("v0a")] + sprinkle(v_cv(0, 112, 40, 112), q_dma(R(qa, qb_))) + [W("v0b")] + v_cv(1, 80, 44, 112) + own_v(112)
        p += tag_load() + with_nop(q_dma(R(qb_, 12))) + istamp("vst", True)
    if not OPT["split"]:
        p += [W("tag")] + tag_check() + istamp("tag", True)
        p += ["s_waitcnt lgkmcnt(0)", "s_barrier"] + flag_post(True) + tag_get() + istamp("post", True)
    if OPT["pf2"]:
        p += [f"s_mov_b32 s{S_DBG}, s60", f"s_mov_b32 s{S_DBG+1}, s61", f"s_mov_b32 s{S_DBG+2}, L_slow-{NAME}_kernel",
              "s_lshr_b32 s24, s2, 3", f"s_mul_i32 s{S_HOFF}, s24, 43", f"s_lshr_b32 s{S_HOFF}, s{S_HOFF}, 7",
              f"s_mul_i32 s{S_RET}, s{S_HOFF}, 3", f"s_sub_u32 s24, s24, s{S_RET}", "s_lshl_b32 s24, s24, 10",
              f"s_mul_i32 s{S_HOFF}, s{S_HOFF}, 12288", f"s_add_u32 s{S_HOFF}, s{S_HOFF}, s24"]
    KF = 144
    for f in range(12):
        s, tb = kfrag(f)
        p.append(DS("kf", f"ds_read_b128 v[{KF+4*f}:{KF+4*f+3}], v{V_RDK[s&1]} offset:{tb*6144 + (s>>1)*128}"))
    def qk0(qb):
        l = []
        for f in sorted(range(12), key=lambda f: kfrag(f)[::-1]):
            s, tb = kfrag(f)
            d = vr(Sq(0, qb, tb), 4)
            l.append(f"{MF} {d}, v[{KF+4*f}:{KF+4*f+3}], {Qf(qb,s)}, {'0' if s == 0 else d}")
        return l
    ps = len(POLLSITES); POLLSITES.append(ps)
    g3n = OPT["g3n"]
    pollchk = ["s_waitcnt lgkmcnt(0)"] + smem_reduce() + [f"s_cmp_ge_u32 s{S_PT}, 16", f"s_cbranch_scc1 L_pollslow{ps}", f"L_pollok{ps}:",
          f"s_add_u32 s{S_NEED}, s{S_NEED}, 1"] + [f"s_mov_b32 s{S_FOFF}, 32"] * (OPT["l2"] == 2) + istamp("poll", True)
    sm00 = rowmax2(0, (0, 1), (V_CT, V_CT + 2)) + addneg(0, 0) + addneg(0, 1) + softmax_part(0, 0)
    qrest = R(12 if OPT["greedy"] == 0 else 18, 18 + g3n)
    if OPT["split"]:
        ps2 = len(POLLSITES); POLLSITES.append(ps2)
        pollchk2 = ["s_waitcnt lgkmcnt(0)"] + smem_reduce() + [f"s_cmp_ge_u32 s{S_PT}, 16", f"s_cbranch_scc1 L_pollslow{ps2}", f"L_pollok{ps2}:",
              f"s_add_u32 s{S_NEED}, s{S_NEED}, 1"] + istamp("pollV", True)
        p += [W(("q", 0))] + q_frags(0) + [LG("tg")] + tag_use() + [LG(("qf", 0))] + smem_flags() + qk0(0) + pollchk
        p += with_nop(dma_tile("k", 1, True)) + k_adv() + v_adv()
        p += [W("vst"), "s_barrier"] + flag_post() + istamp("postV", True)
        p += with_nop(dma_tile("k", 2, True) + dma_tile("k", 3, True))
        p += [W(("q", 1))] + q_frags(1) + with_nop(q_dma(R(12, 15))) + [LG(("qf", 1))] + qk0(1) + ["s_nop 7"]
        g0 = pv_unchained(0, True)[:6]
        p += [rd_op(i, j, g0[i]) for i in range(2) for j in range(2)] + sprinkle(sm00, q_dma(R(15, 18 + g3n))) + smem_flags() + [LG(("fr", 0), ("fr", 1))]
        p += gen_seg("S0", g0, [], tasks=[("q", R(18 + g3n, 24), 0, 22)] if g3n < 6 else [], vmgap=2) + pollchk2
        p += with_nop(dma_tile("v", 1, True))
        g3n = 6
    elif OPT["own1"] == 2:
        p += [W(("q", 0))] + q_frags(0) + [LG("tg")] + tag_use() + with_nop(q_dma(qrest[:3])) + [LG(("qf", 0))] + qk0(0)
        p += [W(("q", 1))] + q_frags(1) + smem_flags() + with_nop(q_dma(qrest[3:])) + [LG(("qf", 1))] + qk0(1) + pollchk
        g0 = pv_unchained(0, True)[:6]
        p += [rd_op(i, j, g0[i]) for i in range(2) for j in range(2)]
        p += sprinkle(sm00, dma_tile("k", 1, True) + dma_tile("k", 2, True) + dma_tile("k", 3, True) + dma_tile("v", 1, True)) + k_adv() + v_adv() + [LG(("fr", 0), ("fr", 1))]
        p += gen_seg("S0", g0, [], tasks=[("q", R(18 + g3n, 24), 0, 22)] if g3n < 6 else [], vmgap=2)
        g3n = 6
    elif OPT["own1"]:
        p += [W(("q", 0))] + q_frags(0) + [LG("tg")] + tag_use() + with_nop(q_dma(qrest[:3])) + [LG(("qf", 0))] + qk0(0)
        p += [W(("q", 1))] + q_frags(1) + with_nop(q_dma(qrest[3:6])) + [LG(("qf", 1))] + qk0(1) + ["s_nop 7"]
        g0 = pv_unchained(0, True)[:6]
        p += [rd_op(i, j, g0[i]) for i in range(2) for j in range(2)] + sprinkle(sm00, q_dma(qrest[6:])) + smem_flags() + [LG(("fr", 0), ("fr", 1))]
        p += gen_seg("S0", g0, []) + pollchk
        p += with_nop(dma_tile("k", 1, True) + dma_tile("k", 2, True) + dma_tile("k", 3, True) + dma_tile("v", 1, True)) + k_adv() + v_adv()
    else:
        p += [W(("q", 0))] + q_frags(0) + [LG("tg")] + tag_use() + [W(("q", 1))] + q_frags(1) + smem_flags()
        p += [LG(("qf", 0))] + with_nop(q_dma(qrest)) + pollchk
        p += with_nop(dma_tile("k", 1, True)) + k_adv() + v_adv()
        p += sprinkle(qk0(0) + qk0(1), dma_tile("k", 2, True)) + ["s_nop 7"]
        p += sprinkle(sm00, dma_tile("k", 3, True) + dma_tile("v", 1, True))
    sp = softmax_part
    g1 = qk_half(0, ws=(1,))
    g2 = rebase(qk_half(1), V_RDK, A1 - A0)
    g3 = pv_unchained(0, True)[6 if OPT["own1"] else 0:]
    g4 = rebase(pv_unchained(1), [V_RD], B1 - B0)
    g5 = rebase(qk_half(2, True), V_RDK, A0 - A1) + rebase(qk_half(3), V_RDK, A1 - A0)
    gi3 = rebase(qk_full(4), V_RDK, A2 - A1)
    gi4 = rebase(pv_seq(2, True), [V_RD], B0 - B1) + rebase(pv_seq(3), [V_RD], B1 - B0)
    p += istamp("pre-dk1", True) + [W(("dk", 1)), "s_barrier"] + [rd_op(i, j, g1[i]) for i in range(2) for j in range(2)]
    p += [LG(("fr", 0), ("fr", 1))]
    p += gen_seg("S1", g1, g2[:2], [], [(15, [("dk", 3)])], [], [V_(2, 3) + (0, 21)], vmgap=2)
    p += gen_seg("S2", g2, g3[:2], [(sp(0, 1), 3, 47)], [(39, [("dv", 3)])] if OPT["own1"] else [], ([("q", R(18 + g3n, 24), 0, 24)] if g3n < 6 else []) + [("ldn", "ka", 25 if g3n < 6 else 0, 47)])
    if OPT["own1"]: p += gen_seg("S3", g3, g4[:2], [(sp(1, 0), 0, 23)], [], [("ldn", "kb", 0, 23)])
    else: p += gen_seg("S3", g3, g4[:2], [(sp(1, 0), 0, 47)], [(15, [("dv", 3)])], [("ldn", "kb", 0, 22), ("ldn", "va", 23, 46, "raw")])
    p += gen_seg("S4", g4, g5[:2], [(sp(1, 1), 0, 21)], [], [("ldn", "va", 0, 30, "raw")] if OPT["own1"] else [], extra=[Stream([W(("q", 2))] + q_frags(2) + [W(("q", 3))] + q_frags(3), 16, 46)])
    p += istamp("pre-S5", True) + ["s_waitcnt lgkmcnt(0)", "s_barrier"]
    p += gen_seg("S5", g5, gi3[:2], [(rowmax2(2, (2, 3), (V_T, V_T + 2)), 27, 45), (addneg(2, 0) + addneg(2, 1) + sp(2, 0) + addneg(2, 2) + addneg(2, 3) + sp(2, 1), 46, 95)],
                 [(GBAR + 8, [("dk", 5)])], [("cv", "ka", 0, 99, 0, 34), ("cv", "kb", 0, 99, 35, 72), ("kst", 0, 73), ("kst", 1, 77), ("kst", 2, 89), ("kst", 3, 93),
                 ("ldn", "va", 36, 60, "sc")], [K_(4, 5) + (1, 24)])
    p += gen_seg("i3", gi3, gi4[:2], [(sp(3, 0) + sp(3, 1), 0, 54), (sp(4, 0), 55, 95)], [(OPT["pb"], []), (GBAR, [])],
                 [("ld", "vb", 0, 22), ("post", "kst", 0), ("cv", "va", 0, 99, 10, 95)], [K_(6, 7) + V_(4, 5) + (24, 90)])
    p += [f"s_mov_b32 s{S_CNT}, 7"]
    p += gen_seg("i4", gi4, seg_groups(5)[:2], [(sp(4, 1) + sp(5, 0), 0, 94)], [(47, []), (GBAR + 8, [("dk", 7)])],
                 [("ld", "ka", 0, 30), ("cv", "vb", 0, 99, 30, 94), ("step", "q", 30, 70), ("pollld", OPT["pl4"], OPT["pl4"] + 8)], [V_(6, 7) + (52, 84)],
                 endops=["s_nop 0", "s_branch L_join"])
    p += [".p2align 6", "L_loop:"]
    pro_ = p
    first57, tail = gen_tail()
    bodyA = []
    for k in (1, 2, 3, 4, 5, 6, 7, 0):
        if k == 5: bodyA.append("L_join:"); jpos = len(bodyA)
        eo = [f"s_sub_u32 s{S_CNT}, s{S_CNT}, 1", f"s_cmp_lg_u32 s{S_CNT}, 0", "s_cbranch_scc1 L_loop"] if k == 0 else ()
        t, d = steady(k)
        if OPT["ab"] & 8: d = []
        if OPT["ab"] & 16: t = [x for x in t if x[0] not in ("cv", "kst", "vst", "ld")]
        bodyA += gen_iter(16 + k, t, d, name=f"k{k}", endops=eo)
    assert OPT["qo"] or [g.rd for g in first57] == [g.rd for g in seg_groups(17)[:2]]
    tailc = tail + ["L_fin:"]
    resolve(pro_ + bodyA[jpos:] + bodyA + bodyA + tailc)
    if OPT["cap"]: pro_ = pace(pro_, OPT["cap"] / 4)
    P_ = Prog()
    P_.extend(fin(pro_))
    a0 = len(P_.ins); P_.extend(fin(bodyA)); a1 = len(P_.ins)
    P_.extend(fin(tailc))
    p = P_
    if OPT["stamp"]:
        p("s_waitcnt vmcnt(0) lgkmcnt(0)")
        p.extend(istamp("end"))
        p("s_waitcnt lgkmcnt(0)")
        p.extend(istamp("end2"))
        p(f"v_writelane_b32 v{V_STAMP}, s{S_TAG+1}, 63")
        p("s_add_u32 s8, s18, 0xfa00000"); p("s_addc_u32 s9, s19, 0"); p("s_mov_b32 s10, 1048576"); p("s_mov_b32 s11, 0x20000")
        p("s_lshl_b32 s24, s2, 2"); p(f"s_add_u32 s24, s24, s{S_WAVE}"); p("s_lshl_b32 s24, s24, 8")
        p(f"v_bfe_u32 v32, v{V_DMA}, 4, 6"); p("v_lshlrev_b32 v32, 2, v32")
        p(f"buffer_store_dword v{V_STAMP}, v32, s[8:11], s24 offen")
        if OPT["stamp"] == 8: STAMPS.sort(key=lambda n: 0)
        open(sys.argv[1] + ".stamps", "w").write("\n".join(order_stamps()))
    if OPT["calx"]:
        p("s_waitcnt vmcnt(0)")
        p("L_cal:")
        p("s_memrealtime s[40:41]")
        p("s_waitcnt lgkmcnt(0)")
        p("s_sub_u32 s40, s40, s100")
        p("s_cmp_lt_u32 s40, 10000")
        p("s_cbranch_scc1 L_cal")
    p("L_done:")
    p("s_endpgm")
    main_end0 = len(p.ins)
    for ps in POLLSITES: p.extend(poll_slow(ps))
    p.extend(tag_slow())
    main_end = len(p.ins)
    p.extend(gen_slow())
    slow_end = len(p.ins)
    ji = [i for i, x in enumerate(p.ins) if x.text == "L_join:"][0]
    lin = p.ins[:a0] + p.ins[ji:a1] + p.ins[a0:main_end0]
    sl = [i for i, x in enumerate(p.ins) if x.text == "L_slowloop:"][0]
    bi = [i for i, x in enumerate(p.ins) if x.text == "s_cbranch_scc1 L_slowloop"][0]
    probs = check_hazards(lin, "main") + check_hazards(p.ins[main_end:bi+1] + p.ins[sl:slow_end], "slow") + check_hazards(p.ins[main_end0:main_end], "aux")
    for x in probs: print(x, file=sys.stderr)
    return p

def kd(name, vgpr, sgpr, accum):
    return f""".amdhsa_kernel {name}
  .amdhsa_next_free_vgpr {vgpr}
  .amdhsa_next_free_sgpr {sgpr}
  .amdhsa_accum_offset {accum}
  .amdhsa_group_segment_fixed_size 0
  .amdhsa_kernarg_size 80
  .amdhsa_user_sgpr_count 2
  .amdhsa_user_sgpr_kernarg_segment_ptr 1
  .amdhsa_system_sgpr_workgroup_id_x 1
.end_amdhsa_kernel
"""
out = HEADER
out += f"; @launch grid=(256,1,1) block=(256,1,1) lds={LDS_BYTES}\n"
out += '.amdgcn_target "amdgcn-amd-amdhsa--gfx950"\n.text\n'
out += f".globl {NAME}_kernel\n.p2align 8\n.type {NAME}_kernel,@function\n" + gen_main().text()
out += '.section .rodata,"a"\n.p2align 6\n' + kd(NAME + "_kernel", 512, 102, 256)
open(sys.argv[1], "w").write(out)
```

```python
import sys, math
from asmlib import *

NAME = "standalone__kv_cache_quant_int4_int2_kv_with_per_channel_or_per_token_scales__prompt"
OPT = dict(stamp=0, vmgap=4, sb=6, sa=6, ahead=8, thr=64, pf2=1, calx="", qa=6, plv=2, plk=10, ckv=1, ckk=1, tden=24, touch=0, w0poll=0, cap=48, qb=6, q3e=1, ksc=0, few=1, qc=15, pb=39, pl4=40, l2=2, k1e=0, greedy=0, g3n=3, pre=0, own1=1, ab=0, pk=0, split=0, prent=1, bal=1, flex=1, w2=0, dense="S61", dx=4, dvg=2, f3=1, pvs=1, qo=0, po=0, x2c=12, sst=1, q0f=1, ed=200, ed1=250, cut="16,42,8,48,18,38,12")
for a in sys.argv[2:]:
    k, v = a.split("="); OPT[k] = int(v) if v.lstrip("-").isdigit() else v
NS = 6
STAGE = 24576
HEADBYTES = 64 * STAGE
RING = NS * STAGE
LDS_BYTES = RING + 128
A0, B0, A1, B1, A2, B2 = [i * STAGE for i in range(6)]
CSCALE = (192.0 ** -0.5) * math.log2(math.e)
HEADER = open("cdna_kernels/" + NAME + ".s.ref").read().split("; Override launch geometry")[0]
MF = "v_mfma_f32_16x16x32_bf16"

V_FVAL = 0; V_RD = 1; V_RDK = [2, 3]; V_DMA = 4; V_L = [5, 6, 7, 8]
V_KLD = 9; V_KSC = 10; V_KST = 11; V_VLD = 12; V_FLAG = 13; V_RD2 = 14
V_T = 16; NTP = 2
V_VST = 20; V_STAMP = 21
V_FR = 24; NFS = 6
V_CT = 48; V_VO = 52; V_RS = [56, 60]; BX = 224; BY = 240; BZ = 144
V_POLL = V_VO; V_KA = V_VO + 2
UNIT = [64, 80, 160, 176]; HI = [96, 112]
VQD = 136; VQR = [22, 23, 142, 143]
def Sq(t, sl, tb): return (UNIT[t % 4] if tb == 0 else HI[t % 2]) + 4 * sl
def P(t, sl): return UNIT[t % 4] + 4 * sl
def NEGM(qb): return 128 + 4 * qb
def O(qb, db): return (qb * 12 + db) * 4
def Qf(qb, s, half=None):
    i = qb * 6 + s
    base, f = (192 + 4 * i, ar) if i < 16 else (192 + 4 * (i - 16), vr)
    return f(base, 4) if half is None else f(base + 2 * half, 2)
def FR(f): return vr(V_FR + 4 * (f % NFS), 4)

S_RDELTA = 3; S_WS = 4; S_Q = 8; S_OUT = 12; S_FLG = 20
S_WAVE = 25; S_DMK = 26; S_GOFF = 27; S_RK = 28; S_TMP = 29; S_RV = 30; S_CNT = 31; S_GOFFK = 32
S_PK0 = 33; S_PK1 = 34; S_PV0 = 35; S_PKS = 36; S_PVS = 37; S_CS = 38; S_RET = 39; S_PV1 = 16; S_PV2 = 17
S_QL = 40; S_QS = 41; S_TAG = 42; S_FOFF = 44; S_XCC = 45; S_OWN = 46
S_PT = 48; S_DMV = 56; S_TK = 57; S_TV = 58; S_TP = 59
S_QK = 64; S_QV = 68; S_KS = 72; S_KZ = 76; S_VS = 80; S_VZ = 84; S_DBG = 88
S_NEED = 92; S_HOFF = 93; S_HEAD = 94; S_QB = 95; S_BUDGET = 96; S_MASK = 97
WSOFF = OPT.get("wsoff", 0) << 20
FLAG_OFF = WSOFF + (49 << 20)
SC1 = {0: " sc1", 1: "", 2: " nt", 3: " sc0", 4: " sc1 nt", 5: " sc0 sc1"}[OPT.get("dmaf", 0)]; NTKV = " nt"; NTQ = " nt"; STF = " sc1"; OF = " sc0 sc1"

STAMPS = []
def istamp(name, force=False):
    if OPT["calx"] == name: return ["s_memrealtime s[100:101]"]
    if OPT["stamp"] not in (6, 8, 9): return []
    if OPT["stamp"] == 8 and name.startswith("k") and not force: return []
    if OPT["few"] and force and name not in ("karg", "k0b", "vst", "tag", "post", "poll", "postV", "pollV", "pre-dk1"): return []
    if OPT["stamp"] != 8 and force: return []
    STAMPS.append(name)
    return ["s_waitcnt lgkmcnt(0)"] * (1 if force else 0) + [f"v_mov_b32_dpp v{V_STAMP}, v{V_STAMP} wave_shr:1 row_mask:0xf bank_mask:0xf", f"v_writelane_b32 v{V_STAMP}, s98, 0",
            ("s_memtime" if OPT["stamp"] == 6 else "s_memrealtime") + " s[98:99]"]

def order_stamps():
    l = list(STAMPS); out = []
    if "S62" in l:
        l.remove("S61"); l.insert(l.index("S62"), "S61")
    for n in l:
        if "." in n: continue
        out.append(n); out += [m for m in l if m.startswith(n + ".")]
    return out
class W:
    def __init__(self, *tags): self.tags = tags
class VM:
    def __init__(self, tag, text): self.tag = tag; self.text = text
class LG:
    def __init__(self, *tags): self.tags = tags
class DS:
    def __init__(self, tag, text): self.tag = tag; self.text = text

def mode_of(t):
    return {0: "a", 1: "a", 2: "b", 3: "b", 58: "a", 59: "a", 60: "a", 61: "b", 62: "b", 63: "b"}.get(t, "f")
def slot_q(t, sl):
    m = mode_of(t)
    return sl if m == "f" else (sl & 1) + (0 if m == "a" else 2)
def softmax_part(t, half):
    flat = []; prev = None
    for gp in range(8):
        sl = 2 * half + gp // 4; pi = gp % 4; l = V_L[slot_q(t, sl)]
        t0 = V_T + 2 * (gp % NTP); t1 = t0 + 1
        src = Sq(t, sl, pi >> 1) + 2 * (pi & 1)
        E = [f"v_exp_f32 v{t0}, v{src}", f"v_exp_f32 v{t1}, v{src+1}"]
        A = [f"v_add_f32 v{l}, v{l}, v{t0}", f"v_add_f32 v{l}, v{l}, v{t1}"]
        C = [f"v_cvt_pk_bf16_f32 v{P(t,sl)+pi}, v{t0}, v{t1}"]
        if 16 <= t < 26:
            if OPT["ab"] & 1: A = []
            if OPT["ab"] & 2: E = [x.replace("v_exp_f32", "v_mov_b32") for x in E]
            if OPT["ab"] & 32: C = []
            if OPT["ab"] & 64: E = []; A = []; C = []
        flat += E if prev is None else E[:1] + prev[0] + E[1:] + prev[1]
        prev = (A, C)
    return flat + prev[0] + prev[1]

class Grp:
    def __init__(self, rd, mf): self.rd = rd; self.mf = mf; self.reb = []
def qk_tile(t, w, slots, czero=False):
    gs = []
    if OPT["qo"] == 1 and len(slots) == 4:
        for s_ in range(6):
            rd = [(V_RDK[s_ & 1], w * 12288 + tb * 6144 + (s_ >> 1) * 128) for tb in range(2)]
            mf = []
            for sl, qb in slots:
                for tb in range(2):
                    d = vr(Sq(t, sl, tb), 4)
                    mf.append((tb, d, Qf(qb, s_), (("0" if czero else vr(NEGM(qb), 4)) if s_ == 0 else d)))
            gs.append(Grp(rd, mf))
        return gs
    for gi in range(6):
        s0 = 2 * (gi >> 1); tb = gi & 1
        rd = [(V_RDK[j], w * 12288 + tb * 6144 + (s0 >> 1) * 128) for j in range(2)]
        mf = []
        for sl, qb in slots:
            d = vr(Sq(t, sl, tb), 4)
            mf += [(0, d, Qf(qb, s0), (("0" if czero else vr(NEGM(qb), 4)) if s0 == 0 else d)), (1, d, Qf(qb, s0 + 1), d)]
        gs.append(Grp(rd, mf))
    return gs
def qk_full(t): return [g for w in range(2) for g in qk_tile(t + w, w, [(q, q) for q in range(4)])]
def qk_half(t, czero=False, ws=(0, 1)):
    return [g for w in ws for g in qk_tile(t, w, [(2 * w + j, slot_q(t, j)) for j in range(2)], czero)]
def pv_grp(t, db, first=False, va=V_RD):
    m = mode_of(t); mf = []
    for qb in (range(4) if m == "f" else [slot_q(t, 0), slot_q(t, 1)]):
        d = ar(O(qb, db), 4)
        for w in range(2):
            b = P(t + w, qb) if m == "f" else P(t, 2 * w + (qb & 1))
            mf.append((w, d, vr(b, 4), "0" if (first and w == 0) else d))
    return Grp([(va, w * 12288 + db * 1024) for w in range(2)], mf)
def pv_seq(t, first=False):
    if OPT["po"] == 1 and mode_of(t) == "f":
        gs = []
        for d0 in range(0, 12, 2):
            for w in range(2):
                mf = [(e, ar(O(qb, d0 + e), 4), vr(P(t + w, qb), 4), ar(O(qb, d0 + e), 4)) for qb in range(4) for e in range(2)]
                gs.append(Grp([(V_RD, w * 12288 + (d0 + e) * 1024) for e in range(2)], mf))
        return gs
    if OPT["po"] == 2 and mode_of(t) == "f":
        gs = []
        for db in range(12):
            mf = [(w, ar(O(qb, db), 4), vr(P(t + w, qb), 4), ar(O(qb, db), 4)) for w in range(2) for qb in range(4)]
            gs.append(Grp([(V_RD, w * 12288 + db * 1024) for w in range(2)], mf))
        return gs
    return [pv_grp(t, db, first) for db in range(12)]
def pv_unchained(t, first=False):
    gs = []
    for w in range(2):
        for d0 in range(0, 12, 2):
            mf = []
            for j in range(2):
                qb = slot_q(t, j)
                for e in range(2):
                    d = ar(O(qb, d0 + e), 4)
                    mf.append((e, d, vr(P(t, 2 * w + j), 4), "0" if (first and w == 0) else d))
            gs.append(Grp([(V_RD, w * 12288 + (d0 + e) * 1024) for e in range(2)], mf))
    return gs
def rebase(gs, regs, delta):
    op = "v_add_u32" if delta >= 0 else "v_subrev_u32"
    gs[0].reb += [f"{op} v{r}, {abs(delta)}, v{r}" for r in regs]
    return gs
def rd_op(gi, j, g):
    f = 2 * gi + j
    return DS(("fr", f % NFS), f"ds_read_b128 {FR(f)}, v{g.rd[j][0]} offset:{g.rd[j][1]}")

def dma_tile(part, pos, peel=False):
    dm, go, tmp = (S_DMK, S_GOFFK, S_TK) if part == "k" else (S_DMV, S_GOFF, S_TV)
    l = [f"s_mov_b32 m0, s{dm}"]
    for j in range(3):
        l.append(VM(("d" + part, pos % 8), f"buffer_load_dwordx4 v{V_DMA}, s[{S_WS}:{S_WS+3}], s{go} offen offset:{j*1024}{SC1} lds"))
    if peel and pos < 7:
        l += [f"s_add_u32 s{go}, s{go}, {STAGE}", f"s_sub_u32 s{tmp}, s{go}, {8*STAGE}", f"s_min_u32 s{go}, s{go}, s{tmp}"]
    elif peel and pos == 7:
        l += [f"s_mov_b32 s{go}, {8*STAGE + (0 if part == 'k' else 12288)}"]
    else:
        l += [f"s_add_u32 s{go}, s{go}, {STAGE}"]
    if pos % 2 == 0: l += [f"s_add_u32 s{dm}, s{dm}, 12288"]
    else: l += [f"s_add_u32 s{dm}, s{dm}, {2*STAGE - 12288}", f"s_sub_u32 s{tmp}, s{dm}, {RING}", f"s_min_u32 s{dm}, s{dm}, s{tmp}"]
    return l
QOFF = [STAGE, 0, 2 * STAGE, STAGE]
def q_dma(lst):
    l = []
    for i in lst:
        a, b = divmod(i, 6)
        l += [f"s_mov_b32 s{S_QS}, {a*6144}"] * (1 if (b == 0 or i == lst[0]) else 0)
        l += [f"s_add_u32 m0, s{S_QL}, {QOFF[a] + b*1024}",
              VM(("q", a), f"buffer_load_dwordx4 v{VQD+b}, s[{S_Q}:{S_Q+3}], s{S_QS} offen{NTQ} lds")]
    return l
def q_frags(qb):
    l = []
    for s in range(6):
        for h in range(2):
            sp = s + 6 * h
            l.append(DS(("qf", qb), f"ds_read_b64 {Qf(qb,s,h)}, v{VQR[sp&3]} offset:{QOFF[qb] + (sp>>2)*128}"))
    return l
def with_nop(l):
    out = []
    for i, x in enumerate(l):
        out.append(x)
        if isinstance(x, str) and " m0," in x and i + 1 < len(l) and isinstance(l[i + 1], VM): out.append("s_nop 0")
    return out
def rd_step(kind):
    cur, regs = (S_RK, V_RDK) if kind == "q" else (S_RV, [V_RD])
    return [f"s_add_u32 s{S_TMP}, s{cur}, {2*STAGE}", f"s_sub_u32 s{S_RDELTA}, s{S_TMP}, {RING}",
            f"s_min_u32 s{S_TMP}, s{S_TMP}, s{S_RDELTA}", f"s_sub_u32 s{S_RDELTA}, s{S_TMP}, s{cur}", f"s_mov_b32 s{cur}, s{S_TMP}"] + \
           [f"v_add_u32 v{r}, s{S_RDELTA}, v{r}" for r in regs]

def k_ld(h, buf, rs, tag, scal_first=True):
    sc = [VM(tag, f"buffer_load_dwordx2 v[{rs+2*i}:{rs+2*i+1}], v{V_KSC}, s[{srd_}:{srd_+3}], s{S_PKS} offen offset:{192*h}")
          for i, srd_ in enumerate((S_KS, S_KZ))]
    l = []
    for j in range(4):
        so = S_PK0 if j < 2 else S_PK1
        l.append(VM(tag, f"buffer_load_dwordx4 v[{buf+4*j}:{buf+4*j+3}], v{V_KLD}, s[{S_QK}:{S_QK+3}], s{so} offen offset:{(j&1)*1536+384*h}{NTKV}"))
    return sc + l if scal_first else l + sc
def v_ld(h, buf, rs, tag, scal_first=True):
    sc = [VM(tag, f"buffer_load_dwordx2 v[{rs+2*i}:{rs+2*i+1}], off, s[{srd_}:{srd_+3}], s{S_PVS} offset:{8*h}")
          for i, srd_ in enumerate((S_VS, S_VZ))]
    l = []
    for r in range(4):
        so = S_PV0 if h == 0 else S_PV1
        l.append(VM(tag, f"buffer_load_dwordx4 v[{buf+4*r}:{buf+4*r+3}], v{V_VLD}, s[{S_QV}:{S_QV+3}], s{so} offen offset:{r*768}{NTKV}"))
    return sc + l if scal_first else l + sc
def k_cv(h, buf, rs, out):
    l = []
    s0, s1, z0, z1 = V_CT, V_CT + 1, V_CT + 2, V_CT + 3
    for i in range(2):
        l += [f"v_lshlrev_b32 v{s0}, 16, v{rs+i}", f"v_and_b32 v{s1}, s{S_MASK}, v{rs+i}",
              f"v_lshlrev_b32 v{z0}, 16, v{rs+2+i}", f"v_and_b32 v{z1}, s{S_MASK}, v{rs+2+i}",
              f"v_mul_f32 v{s0}, s{S_CS}, v{s0}", f"v_mul_f32 v{s1}, s{S_CS}, v{s1}",
              f"v_mul_f32_e64 v{z0}, -v{z0}, v{s0}", f"v_mul_f32_e64 v{z1}, -v{z1}, v{s1}"]
        if OPT.get("nz", 0) & 1: l[-2:] = [f"v_mov_b32 v{z0}, 0", f"v_mov_b32 v{z1}, 0"]
        for j in range(4):
            a = buf + 4 * j + 2 * i; b = a + 1
            l += [f"v_cvt_f32_i32 v{a}, v{a}", f"v_cvt_f32_i32 v{b}, v{b}",
                  f"v_fma_f32 v{a}, v{a}, v{s0}, v{z0}", f"v_fma_f32 v{b}, v{b}, v{s1}, v{z1}",
                  f"v_cvt_pk_bf16_f32 v{out+4*j+2*h+i}, v{a}, v{b}"]
    return l
def k_st(j, out, tag="kst", STF=STF):
    va = V_KST; g = []
    if j:
        va = V_KA + (j & 1); g.append(f"v_xor_b32 v{va}, {16*j}, v{V_KST}")
    g.append(VM(tag, f"buffer_store_dwordx4 v[{out+4*j}:{out+4*j+3}], v{va}, s[{S_WS}:{S_WS+3}], s{S_PK0} offen offset:{j*768}{STF}"))
    return g
def v_cv(h, buf, rs, out):
    l = []
    s0, s1, z0, z1 = V_CT, V_CT + 1, V_CT + 2, V_CT + 3
    for i in range(2):
        l += [f"v_lshlrev_b32 v{s0}, 16, v{rs+i}", f"v_and_b32 v{s1}, s{S_MASK}, v{rs+i}",
              f"v_lshlrev_b32 v{z0}, 16, v{rs+2+i}", f"v_and_b32 v{z1}, s{S_MASK}, v{rs+2+i}",
              f"v_mul_f32_e64 v{z0}, -v{z0}, v{s0}", f"v_mul_f32_e64 v{z1}, -v{z1}, v{s1}"]
        if OPT.get("nz", 0) & 2: l[-2:] = [f"v_mov_b32 v{z0}, 0", f"v_mov_b32 v{z1}, 0"]
        for e in range(4):
            a = buf + 4 * (2 * i) + e; b = buf + 4 * (2 * i + 1) + e
            l += [f"v_cvt_f32_i32 v{a}, v{a}", f"v_cvt_f32_i32 v{b}, v{b}",
                  f"v_fma_f32 v{a}, v{a}, v{s0}, v{z0}", f"v_fma_f32 v{b}, v{b}, v{s1}, v{z1}"]
    for e, i in [(0, 0), (1, 0), (0, 1), (1, 1), (2, 0), (2, 1), (3, 0), (3, 1)]:
        l.append(f"v_cvt_pk_bf16_f32 v{out+4*e+2*h+i}, v{buf+8*i+e}, v{buf+8*i+4+e}")
    return l
def v_st(e, out, tag="vst", STF=STF):
    so = S_PV0 if e < 2 else S_PV2
    return [VM(tag, f"buffer_store_dwordx4 v[{out+4*e}:{out+4*e+3}], v{V_VST}, s[{S_WS}:{S_WS+3}], s{so} offen offset:{(e&1)*3072}{STF}")]
def k_adv():
    return [f"s_add_u32 s{S_PK0}, s{S_PK0}, {8*STAGE}", f"s_add_u32 s{S_PK1}, s{S_PK1}, {8*STAGE}", f"s_add_u32 s{S_PKS}, s{S_PKS}, {4*384}"]
def v_adv():
    return [f"s_add_u32 s{r}, s{r}, {8*STAGE}" for r in (S_PV0, S_PV1, S_PV2)] + [f"s_add_u32 s{S_PVS}, s{S_PVS}, {8*64}"]
HT = {"ka": (k_ld, k_cv, 0, BX, V_RS[0], BX), "kb": (k_ld, k_cv, 1, BY, V_RS[1], BX),
      "va": (v_ld, v_cv, 0, BZ, V_RS[0], BZ), "vb": (v_ld, v_cv, 1, BY, V_RS[1], BZ)}
def flag_post(first=False):
    return [f"v_add_u32 v{V_FVAL}, 1, v{V_FVAL}"] + [
            VM("flag", f"buffer_store_dword v{V_FVAL}, v{V_FLAG}, s[{S_FLG}:{S_FLG+3}], 0 offen")] * (OPT["l2"] == 1 or (OPT["l2"] == 2 and first)) + [
            VM("flag", f"buffer_store_dword v{V_FVAL}, v{V_FLAG}, s[{S_FLG}:{S_FLG+3}], 0 offen offset:32 sc1")]
def poll_addr():
    return [f"v_bfe_u32 v{V_POLL+1}, v{V_DMA}, 4, 6", f"v_lshlrev_b32 v{V_POLL+1}, 2, v{V_POLL+1}"]
def poll_load():
    return poll_addr() + [VM("poll", f"buffer_load_dword v{V_POLL}, v{V_POLL+1}, s[{S_FLG}:{S_FLG+3}], s{S_FOFF} offen sc1")]
def poll_test():
    return [f"v_subrev_u32 v{V_POLL}, s{S_NEED}, v{V_POLL}", f"v_cmp_lt_u32 vcc, 15, v{V_POLL}", "s_nop 0", f"s_and_b32 s{S_TP}, vcc_lo, 0xff"]
def smem_flags():
    return [f"s_buffer_load_dwordx8 s[{S_PT}:{S_PT+7}], s[{S_FLG}:{S_FLG+3}], s{S_FOFF} glc"]
def smem_reduce():
    return [f"s_sub_u32 s{S_PT+i}, s{S_PT+i}, s{S_NEED}" for i in range(8)] + [f"s_max_u32 s{S_PT}, s{S_PT}, s{S_PT+i}" for i in range(1, 8)]
def smem_test():
    return smem_flags() + ["s_waitcnt lgkmcnt(0)"] + smem_reduce() + [f"s_cmp_lt_u32 s{S_PT}, 16"]
def poll_slow(site):
    l = [f"L_pollslow{site}:"] + ([f"s_add_u32 s{S_TAG+1}, s{S_TAG+1}, {1 << (6 * site)}"] if OPT["stamp"] else [])
    l += [f"s_mov_b32 s{S_TP}, {60 if site == 0 else 200}", f"L_pollsm{site}:"] + smem_test() + [f"s_cbranch_scc1 L_pollok{site}",
          f"s_sub_u32 s{S_TP}, s{S_TP}, 1", f"s_cbranch_scc1 L_pollvec{site}", "s_sleep 1", f"s_branch L_pollsm{site}"]
    l += [f"L_pollvec{site}:"] + poll_addr() + [
            f"s_sub_u32 s{S_BUDGET}, s{S_BUDGET}, 1",
            f"s_cbranch_scc1 L_pollgiveup{site}",
            "s_sleep 2",
            f"buffer_load_dword v{V_POLL}, v{V_POLL+1}, s[{S_FLG}:{S_FLG+3}], s{S_FOFF} offen sc1",
            "s_waitcnt vmcnt(0)"]
    if site == 0 and OPT["l2"]:
        l += [f"s_cmp_lg_u32 s{S_FOFF}, 0", "s_cbranch_scc1 L_nomix",
              f"v_xor_b32 v{V_POLL+1}, s{S_NEED}, v{V_POLL}", f"v_lshrrev_b32 v{V_POLL+1}, 5, v{V_POLL+1}", f"v_add_u32 v{V_POLL+1}, -1, v{V_POLL+1}",
              f"v_cmp_gt_u32 vcc, 31, v{V_POLL+1}", "s_nop 1", f"s_and_b32 s{S_TP}, vcc_lo, 0xff00", "s_cbranch_scc0 L_nomix"]
        l += fin([x for j in range(4) for x in k_st(j, BX)] + [x for e in range(4) for x in v_st(e, 112)])
        l += ["s_waitcnt vmcnt(0)", "s_barrier", f"s_and_b32 s{S_NEED}, s{S_NEED}, 0xfffffc00", f"s_add_u32 s{S_NEED}, s{S_NEED}, {16 << 5}",
              f"v_mov_b32 v{V_FVAL}, s{S_NEED}", f"s_add_u32 s{S_NEED}, s{S_NEED}, 1", f"s_mov_b32 s{S_FOFF}, 32"] + fin(flag_post()) + ["s_branch L_pollvec0", "L_nomix:"]
    l += poll_test() + [
            f"s_cbranch_scc1 L_pollvec{site}",
            f"s_branch L_pollok{site}",
            f"L_pollgiveup{site}:",
            f"s_mov_b32 s{S_BUDGET}, 0",
            f"s_branch L_pollok{site}"]
    return l
def tag_load():
    return [VM("tag", f"buffer_load_dword v{V_FVAL}, off, s[{S_DBG}:{S_DBG+3}], s{S_HOFF} sc1")]
def tag_check():
    return [f"s_cmp_lg_u32 s{S_WAVE}, 0", "s_cbranch_scc1 L_tagdone",
            f"v_readfirstlane_b32 s{S_TAG}, v{V_FVAL}", f"s_mov_b32 s{S_RET}, 100",
            "s_waitcnt lgkmcnt(0)", f"s_and_b32 s{S_OWN}, s{S_OWN}, 0xfffffc00",
            "L_tagretry:", f"s_cmp_eq_u32 s{S_TAG}, s{S_OWN}", f"s_cselect_b32 s{S_TAG}, 0, s{S_TAG}", f"s_cmp_lg_u32 s{S_TAG}, 0", "s_cbranch_scc1 L_tagok",
            f"s_sub_u32 s{S_RET}, s{S_RET}, 1", "s_cbranch_scc1 L_tagslow", "s_sleep 4",
            f"s_buffer_load_dword s{S_TAG}, s[{S_DBG}:{S_DBG+3}], s{S_HOFF} glc", "s_waitcnt lgkmcnt(0)", "s_branch L_tagretry",
            "L_tagok:", f"s_add_u32 s{S_TAG}, s{S_TAG}, s{S_XCC}", f"v_mov_b32 v{V_FVAL}, s{S_TAG}", f"v_mov_b32 v{V_T}, {RING}", DS("w", f"ds_write_b32 v{V_T}, v{V_FVAL}"), "L_tagdone:"]
def tag_get():
    return [f"v_mov_b32 v{V_T}, {RING}", DS("tg", f"ds_read_b32 v{V_T+1}, v{V_T}")]
def tag_use():
    return [f"v_readfirstlane_b32 s{S_NEED}, v{V_T+1}", f"s_add_u32 s{S_NEED}, s{S_NEED}, 1"]
def tag_slow():
    return ["L_tagslow:",
            f"s_sub_u32 s{S_BUDGET}, s{S_BUDGET}, 1",
            "s_cbranch_scc1 L_taggiveup",
            "s_sleep 2",
            f"buffer_load_dword v{V_FVAL}, off, s[{S_DBG}:{S_DBG+3}], s{S_HOFF} sc1",
            "s_waitcnt vmcnt(0)",
            f"v_readfirstlane_b32 s{S_TAG}, v{V_FVAL}", "s_nop 0", f"s_cmp_eq_u32 s{S_TAG}, s{S_OWN}", "s_cbranch_scc1 L_tagslow",
            f"s_cmp_eq_u32 s{S_TAG}, 0", "s_cbranch_scc1 L_tagslow",
            "s_branch L_tagok",
            "L_taggiveup:",
            f"s_mov_b32 s{S_BUDGET}, 0",
            "s_branch L_tagok"]

def text_of(x):
    return "s_waitcnt" if isinstance(x, (W, LG)) else (x.text if isinstance(x, (VM, DS)) else x)
def kind_of(x):
    t = text_of(x)
    if t.endswith(":"): return "label"
    if t.startswith("v_"): return "valu"
    if t.startswith("ds_"): return "ds"
    if t.startswith("buffer_store"): return "store"
    if t.startswith("buffer_"): return "load"
    return "salu"
def cost_of(x):
    k = kind_of(x); t = text_of(x)
    if k == "label": return 0
    if k == "store": return 20 if "x4" in t else (OPT["x2c"] if "x2" in t else 8)
    if k == "load": return 8
    if t.startswith("ds_write"): return 16 if ("b128" in t or "write2" in t) else 8
    if t.startswith(("v_exp", "v_rcp")): return 8
    if t.startswith("v_mfma"): return 32
    if t.startswith("s_nop"): return 4 * (int(t.split()[1]) + 1)
    if t.startswith("s_cbranch") or t.startswith("s_branch"): return 12
    if t.startswith("s_barrier"): return 8
    return 4
def gap_time(ops):
    t = 4; prev = None
    for o in ops:
        if o is None: continue
        k = kind_of(o)
        if k == "label": continue
        if k == "salu": t += cost_of(o)
        else: t = max(t, 8) + cost_of(o) + (8 if (k != "valu" and prev == "valu") else 0)
        prev = k
    return t

class Stream:
    def __init__(self, ops, first, last, maxper=99, dense=0):
        self.nb = {}; self.dl = []; l = []
        for o in ops:
            if isinstance(o, tuple):
                if o[0] == "nb": self.nb[len(l)] = o[1]
                else: self.dl.append((len(l), o[1]))
            else: l.append(o)
        ops = l
        self.ops = list(ops); self.first = first; self.last = last; self.maxper = maxper; self.dense = dense
        self.total = sum(cost_of(o) for o in self.ops); self.done = 0; self.i = 0
        self.gate = {}; self.i0 = 0

def pack(NG, A, B, C, T, streams, novm=(), nosalu=(), vmgap=4):
    out = []; over = 0; lastvm = -99
    for g in range(NG):
        a, b, c, tl = list(A[g]), list(B[g]), list(C[g]), list(T[g])
        cnt = {}; inC = set(); blocked = set()
        while True:
            best = None; bl = None; bsec = None
            for st in streams:
                if st.i >= len(st.ops) or g < st.first: continue
                if g < st.nb.get(st.i, 0): continue
                force = g >= st.last or any(st.i < n and g >= dg for n, dg in st.dl)
                if (cnt.get(id(st), 0) >= st.maxper or id(st) in blocked) and not force: continue
                o = st.ops[st.i]; k = kind_of(o); cst = cost_of(o)
                if k == "salu" and g in nosalu:
                    assert not force, (g, text_of(o))
                    continue
                if k in ("load", "store") and (g in novm or g - lastvm < vmgap) and not force: continue
                if k in ("load", "store", "ds"):
                    sec = "b" if id(st) not in inC and id(st) not in blocked else "c"
                    if sec == "c" and not force: continue
                elif k == "salu" and not a and cnt.get(id(st), 0) == 0:
                    sec = "a"
                else: sec = "c"
                tgt = st.total * (g - st.first + 1) / (st.last - st.first + 1)
                lag = tgt - st.done
                if not force:
                    if lag < cst / 2 - OPT["ahead"] and cst: continue
                    trial = (a + [o] if sec == "a" else a) + (b + [o] if sec == "b" else b) + (c + [o] if sec == "c" else c) + tl
                    gt = gap_time(trial)
                    if gt > 16:
                        if g % 2 == 0: continue
                        big = k == "store" or text_of(o).startswith(("ds_write_b128", "ds_write2"))
                        lim = max(20, st.dense) if lag > 24 else 16
                        if big and not (a + b + c + tl): lim = 32
                        if gt > lim: continue
                key = (force, k in ("load", "store"), lag / max(1, (st.last - g + 1)) ** 0.5)
                if best is None or key > bl: best = st; bl = key; bsec = sec
            if best is None: break
            o = best.ops[best.i]
            if bsec == "a": a.append(o)
            elif bsec == "b":
                b.append(o)
            else: c.append(o)
            if bsec == "c" or bsec == "b" and kind_of(o) != "ds" and False: inC.add(id(best))
            if bsec == "c": inC.add(id(best))
            if " m0," in text_of(o): blocked.add(id(best))
            if kind_of(o) in ("load", "store"): lastvm = g
            best.i += 1; best.done += cost_of(o); cnt[id(best)] = cnt.get(id(best), 0) + 1
        ops = a + b + c + tl
        tt = gap_time(ops)
        if tt > 16: over += tt - 16
        out.append(ops)
    for st in streams: assert st.i == len(st.ops)
    return out, over

def pack_dense(NG, A, B, C, T, streams, novm=(), nosalu=(), vmgap=2):
    jobs = []
    for st in streams:
        r = st.first; rel = []
        for i in range(len(st.ops)):
            r = max(r, st.nb.get(i, 0)); rel.append(r)
        for i, o in enumerate(st.ops):
            d = min([st.last] + [dg for n, dg in st.dl if i < n])
            k = kind_of(o)
            jobs.append([rel[i], d, cost_of(o) + (OPT["dx"] if k in ("store", "load") else 0) - (2 if k == "salu" else 0)])
    for g in range(NG): jobs.append([g, g, max(0, gap_time(A[g] + B[g] + C[g] + T[g]) - 8)])
    level = [None] * NG
    while jobs:
        free = [g for g in range(NG) if level[g] is None]
        pts_r = sorted({j[0] for j in jobs}); pts_d = sorted({j[1] for j in jobs})
        best = None
        for a_ in pts_r:
            ws = sorted((j[1], j[2]) for j in jobs if j[0] >= a_)
            w = 0; i = 0
            for b_ in pts_d:
                if b_ < a_: continue
                while i < len(ws) and ws[i][0] <= b_: w += ws[i][1]; i += 1
                n = sum(1 for g in free if a_ <= g <= b_)
                if n and (best is None or w / n > best[0]): best = (w / n, a_, b_)
        dn, a_, b_ = best
        if dn <= 8: break
        for g in free:
            if a_ <= g <= b_: level[g] = dn
        jobs = [j for j in jobs if not (j[0] >= a_ and j[1] <= b_)]
    extra = [2 * (level[g] - 8) if (level[g] is not None and g % 2) else 0 for g in range(NG)]
    return pack_dense1(NG, A, B, C, T, streams, novm, nosalu, vmgap, extra)
def pack_dense1(NG, A, B, C, T, streams, novm, nosalu, vmgap, extra):
    out = []; over = 0; lastvm = -99
    fixed = [gap_time(A[g] + B[g] + C[g] + T[g]) - (8 if not (B[g] + C[g] + T[g]) else 8) for g in range(NG)]
    for g in range(NG):
        a, b, c, tl = list(A[g]), list(B[g]), list(C[g]), list(T[g])
        carry = (carry if g else 0) + extra[g]
        bud = 16 + (carry if g % 2 else 0)
        blocked = set(); inC = set()
        for st in streams: st.i0 = st.i
        while True:
            best = None; bl = None
            cur = gap_time(a + b + c + tl)
            for st in streams:
                if st.i >= len(st.ops) or g < st.first or g < st.nb.get(st.i, 0): continue
                if st.i in st.gate:
                    o_, j_ = st.gate[st.i]
                    if (o_.i0 if (kind_of(st.ops[st.i]) == "store" and g < NG - 1) else o_.i) <= j_: continue
                    if o_.i0 <= j_: inC.add(id(st))
                force = g >= st.last or any(st.i < n and g >= dg for n, dg in st.dl)
                if id(st) in blocked and not force: continue
                o = st.ops[st.i]; k = kind_of(o)
                if k == "salu" and g in nosalu:
                    assert not force
                    continue
                mem = k in ("load", "store", "ds")
                if k in ("load", "store") and (g in novm or g - lastvm < vmgap) and not force: continue
                sec = "b" if (mem and id(st) not in inC) else ("a" if (k == "salu" and not a and id(st) not in inC and id(st) not in blocked and not any(x is st for x in ())) else "c")
                if sec == "a" and any(id(st) == y for y in inC): sec = "c"
                if mem and sec == "c" and not force: continue
                trial = gap_time((a + [o] if sec == "a" else a) + (b + [o] if sec == "b" else b) + (c + [o] if sec == "c" else c) + tl)
                if not force and trial > bud and not (cur < 16 and trial <= bud + 12 and g % 2): continue
                tgt = st.total * (g - st.first + 1) / (st.last - st.first + 1)
                n_, dd = min([(len(st.ops), st.last)] + [(n, dg) for n, dg in st.dl if st.i < n], key=lambda x: x[1])
                need = sum(cost_of(x) for x in st.ops[st.i:n_]) / max(1, dd - g + 1)
                key = (force, mem, need)
                if best is None or key > bl: best = st; bl = key; bsec = sec
            if best is None: break
            o = best.ops[best.i]
            {"a": a, "b": b, "c": c}[bsec].append(o)
            if bsec == "c" or (bsec == "b"):
                if bsec == "c": inC.add(id(best))
                else: usedb = True
            if bsec in ("a", "b"): best._g = g
            if " m0," in text_of(o): blocked.add(id(best))
            if kind_of(o) in ("load", "store"): lastvm = g
            best.i += 1; best.done += cost_of(o)
            if bsec == "b" and not a: a.append(None)
        a = [x for x in a if x is not None]
        ops = a + b + c + tl
        tt = gap_time(ops)
        carry = max(0, carry - max(0, tt - 16)) if extra[g] or g % 2 == 0 else 0
        if tt > 16: over += tt - 16
        out.append(ops)
    for st in streams: assert st.i == len(st.ops)
    return out, over

POLLSITES = []
def gen_seg(name, groups, nxt, sm=(), bars=(), tasks=(), dma=(), extra=(), endops=(), fixed=(), peel=True, vmgap=None):
    starts = []; n = 0
    for g in groups: starts.append(n); n += len(g.mf)
    NG = n
    A = [[] for _ in range(NG)]; B = [[] for _ in range(NG)]; C = [[] for _ in range(NG)]; T = [[] for _ in range(NG)]
    streams = []; novm = set(range(0, NG, 2)); nosalu = set()
    allg = list(groups) + list(nxt)
    assert len(groups) % 3 == 0
    for i, g in enumerate(groups):
        g0 = starts[i]; ln = len(g.mf)
        if i + 2 < len(allg):
            t = allg[i + 2]
            if not (OPT["ab"] & 4 and name.startswith("k") and i % 2): B[g0].append(rd_op(i + 2, 0, t)); B[g0 + ln // 2].append(rd_op(i + 2, 1, t))
            if t.reb:
                assert g0 > 0
                C[g0 - 1] += t.reb
        if i + 1 < len(allg):
            A[g0 + ln - 1].append(LG(("fr", (2 * i + 2) % NFS), ("fr", (2 * i + 3) % NFS)))
    for ops, f, l in sm: streams.append(Stream(ops, f, l))
    streams += list(extra)
    if endops:
        A[NG-4] += endops[:1]; A[NG-2] += [A[NG-1][0]] + list(endops[1:-1]); A[NG-1] = []; T[NG-1] = list(endops[-1:]); nosalu |= {NG-2, NG-1}
    for grp in dma:
        dl = []
        for part, pos in grp[:-2]: dl += dma_tile(part, pos, peel)
        k = max(i for i, x in enumerate(dl) if isinstance(x, VM)) + 1
        lim = NG - 3 if endops else NG - 1
        if grp[-1] + 1 > lim: k = len(dl)
        streams.append(Stream(dl[:k], grp[-2], grp[-1], maxper=2))
        if dl[k:]: streams.append(Stream(dl[k:], grp[-1] + 1, min(lim, grp[-1] + 12), maxper=2))
    bars = [(g, list(tg)) for g, tg in bars]
    for t in tasks:
        k_ = t[0]
        if k_ == "cv":
            _, cv, h, buf, rs, outb = HT[t[1]]
            ops = cv(h, buf, rs, outb)[t[2]:t[3]]
            if t[2] == 0: ops = [W(t[1])] + ops
            streams.append(Stream(ops, t[4], t[5]))
        elif k_ in ("kst", "vst"):
            grp = k_st(t[1], BX) if k_ == "kst" else v_st(t[1], BZ)
            g = t[2]; assert g % 2 == 1 and not B[g] and not A[g], (name, g)
            B[g].append(grp[-1]); novm |= set(range(g - OPT["sb"], g + OPT["sa"] + 1))
            if grp[:-1]: streams.append(Stream(grp[:-1], max(0, g - 5), g - 1))
        elif k_ in ("ld", "ldn"):
            ld, _, h, buf, rs, _o = HT[t[1]]
            adv = {"ka": k_adv(), "va": v_adv()}.get(t[1], []) if k_ == "ld" else []
            ops = ld(h, buf, rs, t[1])
            if len(t) > 4: ops = ops[2:] if t[4] == "raw" else ops[:2]
            streams.append(Stream(adv + ops, t[2], t[3], maxper=1))
        elif k_ == "post":
            bi = t[2] if len(t) > 2 else -1
            bars[bi][1].append(t[1])
            streams.append(Stream(flag_post(), bars[bi][0] + 1, min(NG - 3, bars[bi][0] + 14), maxper=1))
        elif k_ == "pf":
            streams.append(Stream([VM("pf", f"buffer_load_dword v15, v{V_DMA}, s[{S_DBG}:{S_DBG+3}], s{S_HOFF} offen")], t[1], t[2]))
        elif k_ == "pollld": streams.append(Stream(poll_load(), t[1], t[2], maxper=1))
        elif k_ == "pollchk":
            ps = len(POLLSITES); POLLSITES.append(ps)
            g = t[1]; assert g % 4 == 1
            pt = poll_test()
            A[g] += [W("poll")]; T[g] += pt[:2]; novm |= {g, g + 4}
            A[g + 3] += [pt[3]]; A[g + 4] += [f"s_cbranch_scc1 L_pollslow{ps}", f"L_pollok{ps}:"]; nosalu |= {g + 3, g + 4}
            A[g + 5] += [f"s_add_u32 s{S_NEED}, s{S_NEED}, 1"]
        elif k_ == "spollld": A[t[1]] += smem_flags()
        elif k_ == "spollchk":
            ps = len(POLLSITES); POLLSITES.append(ps)
            A[t[1]] += ["s_waitcnt lgkmcnt(0)"]
            streams.append(Stream(smem_reduce(), t[1] + 1, t[2] - 1, maxper=3))
            A[t[2]] += [f"s_cmp_ge_u32 s{S_PT}, 16", f"s_cbranch_scc1 L_pollslow{ps}", f"L_pollok{ps}:", f"s_add_u32 s{S_NEED}, s{S_NEED}, 1"]
        elif k_ == "step": streams.append(Stream(rd_step(t[1]), t[2], t[3], maxper=1))
        elif k_ == "q": streams.append(Stream(q_dma(t[1]), t[2], t[3], maxper=2))
        else: raise Exception(k_)
    for g, tags in bars:
        i = [j for j in range(len(groups)) if starts[j] + len(groups[j].mf) - 1 == g]
        assert i, (name, g)
        if len(groups[i[0]].mf) == 8:
            A[g - 2] += A[g]; A[g] = []
            if tags: A[g - 1] += [W(*tags)]
        elif tags: A[g - 2] += [W(*tags)]
        A[g] += ["s_barrier"]; novm |= {g}
    for g, sec, ops in fixed: {"A": A, "B": B, "C": C, "T": T}[sec][g] += ops
    if endops:
        for st_ in streams: st_.last = min(st_.last, NG - 2)
    m0w = sorted((st.first, st.last) for st in streams if any(" m0," in text_of(o) for o in st.ops))
    assert all(m0w[i][1] < m0w[i + 1][0] for i in range(len(m0w) - 1)), (name, m0w)
    if name in str(OPT["dense"]).split(","): fill, over = pack_dense(NG, A, B, C, T, streams, novm, nosalu, vmgap or OPT["dvg"])
    else: fill, over = pack(NG, A, B, C, T, streams, novm, nosalu, vmgap or OPT["vmgap"])
    if over: print(f"seg {name}: over budget by {over} cycles", file=sys.stderr)
    out = istamp(name)
    g = 0
    for i, gr in enumerate(groups):
        for j, d, b, c in gr.mf:
            if (OPT["pvs"] & 1 and d.startswith("a")) or (OPT["pvs"] & 2 and d.startswith("v")): out.append(f"{MF} {d}, {b}, {FR(2*i+j)}, {c}")
            else: out.append(f"{MF} {d}, {FR(2*i+j)}, {b}, {c}")
            out += fill[g]; g += 1
    return with_nop(out)

GBAR = 79
def seg_groups(it):
    return qk_full(it + 1) if it % 2 else pv_seq(it - 2)
def gen_iter(it, tasks=(), dma=(), name=None, endops=(), peel=False, nxt=None, extra=(), bars=None, groups=None, sm=None, step=True):
    q = it % 2
    smB = softmax_part(it, 1); smA = softmax_part(it + 1, 0)
    if sm is None: sm = ([(smB + [("dl", 57), ("nb", 47)] + smA, 0, 95)] if OPT["flex"] else [(smB, 0, 50), (smA, 52, 95)]) if q else [(smB + smA, 0, 95)]
    need = [("dv", (it - 1) % 8), ("dv", it % 8)] if q else [("dk", (it + 2) % 8), ("dk", (it + 3) % 8)]
    tasks = list(tasks) + ([("step", "p" if q else "q", 30, GBAR - 3)] if step else [])
    return gen_seg(name or f"i{it}", groups or seg_groups(it), nxt if nxt is not None else seg_groups(it + 1)[:2], sm,
                   bars if bars is not None else [(GBAR, need)], tasks, dma, extra, endops, peel=peel)

K_ = lambda *j: tuple(("k", x) for x in j)
V_ = lambda *j: tuple(("v", x) for x in j)
def steady(k):
    ckv, ckk = OPT["ckv"], OPT["ckk"]
    plv, plk = OPT["plv"], OPT["plk"]
    if OPT["bal"]:
        c = [int(x) for x in str(OPT["cut"]).split(",")]
        a1, a2, b1, b2, v1, v2, w1 = c
        return {
            5: ([("cv", "ka", 0, a1, 0, 95), ("pollchk", 1), ("vst", 0, 9), ("vst", 1, 17), ("vst", 2, 25), ("vst", 3, 33), ("post", "vst")], [K_(0, 1) + (41, 74)]),
            6: ([("cv", "ka", a1, a2, 0, 95), ("ld", "kb", 0, 44)], [K_(2, 3) + (0, 90)]),
            7: ([("cv", "ka", a2, 99, 0, 60), ("cv", "kb", 0, b1, 61, 95), ("ld", "va", 11, 70), ("pollld", plv, plv + 8)], [K_(4, 5) + (11, 92)]),
            0: ([("cv", "kb", b1, b2, 0, 95), ("pollchk", ckv)], [V_(0, 1) + (ckv + 7, 74)]),
            1: ([("cv", "kb", b2, 99, 0, 30), ("cv", "va", 0, v1, 31, 95), ("ld", "vb", 32, 80)], [V_(2, 3) + (0, GBAR - 5)]),
            2: ([("cv", "va", v1, v2, 0, 95), ("kst", 0, 1), ("kst", 1, 9), ("kst", 2, 17), ("kst", 3, 25), ("post", "kst")], [K_(6, 7) + (33, 74)]),
            3: ([("cv", "va", v2, 99, 0, 50), ("cv", "vb", 0, w1, 51, 95), ("ld", "ka", 0, 44)], [V_(4, 5) + (0, 90)]),
            4: ([("cv", "vb", w1, 99, 0, 95), ("pollld", plk, plk + 16)] + ([("pf", 80, 92)] if OPT["pf2"] else []), [V_(6, 7) + (0, GBAR - 5)]),
        }[k]
    return {
        1: ([("cv", "va", 0, 22, 0, 95), ("ld", "vb", 0, 44)], [V_(2, 3) + (0, GBAR - 5)]),
        2: ([("cv", "va", 22, 99, 0, 95), ("kst", 0, 1), ("kst", 1, 9), ("kst", 2, 17), ("kst", 3, 25), ("post", "kst")], [K_(6, 7) + (33, 74)]),
        3: ([("cv", "vb", 0, 22, 0, 95), ("ld", "ka", 0, 44)], [V_(4, 5) + (0, GBAR - 5)]),
        4: ([("cv", "vb", 22, 99, 0, 95), ("pollld", plk, plk + 16)] + ([("pf", 80, 92)] if OPT["pf2"] else []), [V_(6, 7) + (0, GBAR - 5)]),
        5: ([("cv", "ka", 0, 16, 0, 95), ("pollchk", 1), ("vst", 0, 9), ("vst", 1, 17), ("vst", 2, 25), ("vst", 3, 33), ("post", "vst")], [K_(0, 1) + (41, 74)]),
        6: ([("cv", "ka", 16, 99, 0, 95), ("ld", "kb", 0, 30)], [K_(2, 3) + (31, 74)]),
        7: ([("cv", "kb", 0, 24, 40, 95), ("ld", "va", 11, 40), ("pollld", plv, plv + 8)], [K_(4, 5) + (41, 90)]),
        0: ([("cv", "kb", 24, 99, 0, 95), ("pollchk", ckv)], [V_(0, 1) + (ckv + 7, ckv + 44)]),
    }[k]

GA = V_RS[0]; TA = V_RS[0] + 1; BA = V_RS[0] + 2
RL = [V_CT, V_CT + 4, NEGM(0), NEGM(1)]
S_EO = 24
def epi_addr():
    return [f"v_bfe_u32 v{TA}, v{V_DMA}, 8, 2", f"v_mul_u32_u24 v{GA}, 1536, v{TA}", f"v_lshlrev_b32 v{BA}, 4, v{TA}",
            f"v_bfe_u32 v{TA}, v{V_DMA}, 4, 4", f"v_lshl_add_u32 v{GA}, v{TA}, 3, v{GA}", f"v_mov_b32 v{TA}, 1.0",
            f"s_lshl_b32 s{S_EO}, s{S_QB}, 2", f"s_add_u32 s{S_EO}, s{S_EO}, s{S_WAVE}", f"s_mul_i32 s{S_EO}, s{S_EO}, {STAGE}",
            f"s_add_u32 s{S_QL}, s{S_EO}, 6144", f"s_add_u32 s{S_QS}, s{S_EO}, 12288", f"s_add_u32 s{S_TAG}, s{S_EO}, 18432"]
S_EQ = [S_EO, S_QL, S_QS, S_TAG]
def epi_l(qs, gap=("s_nop 7", "s_nop 1")):
    fl = [f"v_mfma_f32_16x16x4_f32 v[{RL[q]}:{RL[q]+3}], v{V_L[q]}, v{TA}, 0" for q in qs] + list(gap)
    return fl + [f"v_rcp_f32 v{RL[q]+r}, v{RL[q]+r}" for q in qs for r in range(4)]
class Epi:
    def __init__(self, temps): self.temps = temps; self.n = 0; self.pend = []
    def flush(self, k=99):
        p = self.pend[:k]; self.pend = self.pend[k:]
        return p
    def chunk(self, qb, n, pk=False):
        p = []
        ob = self.temps[self.n % len(self.temps)]; self.n += 1
        for r in range(4):
            o = ob + 4 * r
            p += [f"v_accvgpr_read_b32 v{o+e}, a{O(qb,3*e+n)+r}" for e in range(4)]
            rl = RL[qb] + r
            if pk: p += [f"v_pk_mul_f32 v[{o+2*i}:{o+2*i+1}], v[{o+2*i}:{o+2*i+1}], v[{rl&~1}:{(rl&~1)+1}] " + ("op_sel:[0,1] op_sel_hi:[1,1]" if rl & 1 else "op_sel_hi:[1,0]") for i in range(2)]
            else: p += [f"v_mul_f32 v{o+e}, v{o+e}, v{rl}" for e in range(4)]
            p += [f"v_cvt_pk_bf16_f32 v{o+i}, v{o+2*i}, v{o+2*i+1}" for i in range(2)]
            p += self.flush(1)
            self.pend.append(VM("out", f"buffer_store_dwordx2 v[{o}:{o+1}], v{GA}, s[{S_OUT}:{S_OUT+3}], s{S_EQ[qb]} offen offset:{n*128 + r*384}{OF}"))
        return p

def gen_tail():
    sp = softmax_part
    g57 = qk_half(58) + rebase(qk_half(59), V_RDK, A0 - A2)
    g58 = pv_seq(56)
    g59 = rebase(qk_half(60), V_RDK, A1 - A0) + rebase(qk_half(61), V_RDK, A2 - A1)
    g60 = rebase(pv_seq(58), [V_RD], B2 - B1) + rebase(pv_seq(59), [V_RD], B0 - B2)
    g61 = rebase(pv_seq(60), [V_RD], B1 - B0) + rebase(qk_half(62), V_RDK, A0 - A2)
    g62 = rebase(qk_half(63), V_RDK, A1 - A0) + ([] if OPT["f3"] else rebase(pv_seq(61), [V_RD], B2 - B1))
    g63 = []
    for n in range(3):
        if OPT["f3"]: g63 += [pv_grp(61, 3 * e + n, va=VQR[0]) for e in range(4)]
        g63 += [pv_grp(62, 3 * e + n) for e in range(4)] + [pv_grp(63, 3 * e + n, va=V_RD2) for e in range(4)]
    if OPT["f3"]: g63[0].reb += [f"v_add_u32 v{VQR[0]}, {B2 - B1}, v{V_RD}", f"v_mov_b32 v{V_RD2}, v{V_RD}", f"v_subrev_u32 v{V_RD}, {B1 - B0}, v{V_RD}"]
    else: g63[0].reb += [f"v_subrev_u32 v{V_RD2}, {B2 - B1}, v{V_RD}", f"v_subrev_u32 v{V_RD}, {B2 - B0}, v{V_RD}"]
    first57 = g57[:2]
    p = []
    p += gen_seg("S57", g57, g58[:2], [(sp(57, 1) + [("dl", 50), ("nb", 28)] + sp(58, 0), 0, 95)], [(GBAR, [("dv", 0), ("dv", 1)])],
                 [("step", "p", 30, GBAR - 3)], [K_(62, 63) + V_(58, 59) + (0, 90)], peel=False)
    p += gen_seg("S58", g58, g59[:2], [(sp(58, 1) + sp(59, 0), 0, 95), (epi_addr(), 0, 95)], [(GBAR, [("dk", 7), ("dv", 3)])], [], [V_(60, 61) + (0, 60)], peel=False)
    p += gen_seg("S59", g59, g60[:2], [(sp(59, 1) + [("dl", 50), ("nb", 28)] + sp(60, 0), 0, 95)], [(15, [("dv", 5)])], [], [V_(62, 63) + (16, 60)], peel=False)
    p += gen_seg("S60", g60, g61[:2], [(sp(60, 1) + sp(61, 0), 0, 95)], [(GBAR, [("dv", 7)])])
    ep = Epi([BX, BY])
    e01 = [x for qb in (0, 1) for n in range(3) for x in ep.chunk(qb, n, OPT["pk"])] + ep.flush()
    chk = [f"v_max3_f32 v{V_T+2}, v{V_L[0]}, v{V_L[1]}, v{V_L[2]}", f"v_max_f32 v{V_T+2}, v{V_T+2}, v{V_L[3]}",
           f"s_mov_b32 s{S_TMP}, 0x{f32bits(2.0**OPT['thr']):08x}", f"v_cmp_lt_f32 s[{S_PT}:{S_PT+1}], s{S_TMP}, v{V_T+2}"]
    c = [ep.chunk(2, j, OPT["pk"]) + ep.chunk(3, j, OPT["pk"]) + ep.flush() for j in range(2)]
    sm = sp(61, 1) + epi_l((0, 1), [])[2:] + [("dl", 50), ("nb", 76)] + sp(62, 0) + [("nb", 98)] + sp(62, 1) + [("nb", 124)] + sp(63, 0) + [("nb", 148)] + sp(63, 1) + [("dl", 205)] + chk + [("nb", 214)] + epi_l((2, 3), [])[2:]
    ee = e01 + [("nb", 228)] + c[0] + [("nb", 260)] + c[1]
    lastsm = 220
    if OPT["f3"]:
        sm = sp(61, 1) + epi_l((0, 1), [])[2:] + [("dl", 50), ("nb", 76)] + sp(62, 0) + [("nb", 98)] + sp(62, 1) + [("dl", 157), ("nb", 124)] + sp(63, 0) + [("nb", 148)] + sp(63, 1) + [("dl", 173)] + chk + [("nb", 182)] + epi_l((2, 3), [])[2:]
        ee = e01 + [("dl", OPT["ed"]), ("nb", 196)] + c[0] + [("dl", OPT["ed1"]), ("nb", 244)] + c[1]
        lastsm = 190
    if OPT["sst"]:
        prod = []; ev = []
        for x in ee:
            if isinstance(x, VM): prod.append(x)
            else: ev.append(x)
        es = Stream(ev, 52, 286); ss = Stream(prod, 52, 287)
        cv = [i for i, x in enumerate(es.ops) if text_of(x).startswith("v_cvt_pk")][1::2]
        rd = [i for i, x in enumerate(es.ops) if text_of(x).startswith("v_accvgpr_read")][0::4]
        assert len(cv) == len(prod) == len(rd)
        for k in range(len(prod)):
            ss.gate[k] = (es, cv[k]); ss.nb[k] = max([0] + [gp for i, gp in es.nb.items() if i <= cv[k]])
            if k + 8 < len(prod): es.gate[rd[k + 8]] = (ss, k)
        xs = [es, ss]
    else: xs = [Stream(ee, 52, 287)]
    p += gen_seg("S61", g61 + g62 + g63, [], [(sm, 0, lastsm)], extra=xs,
                 fixed=[(1, "T", epi_l((0, 1))[:1]), (3, "T", epi_l((0, 1))[1:2]), (lastsm - 15, "T", epi_l((2, 3))[:1]), (lastsm - 13, "T", epi_l((2, 3))[1:2]), (lastsm + 5, "A", [f"s_cmp_lg_u64 s[{S_PT}:{S_PT+1}], 0", "s_cbranch_scc1 L_slow"]), (95, "T", istamp("S62")), (191, "T", istamp("S63"))])
    p += istamp("fin") + ["s_nop 7"] + ep.chunk(2, 2, True) + ep.flush() + ep.chunk(3, 2, True) + ep.flush()
    return first57, p
def slow_epi():
    ep = Epi([64 + 16 * i for i in range(4)])
    seq = ["s_nop 1"] + epi_l((0, 1)) + epi_l((2, 3)) + ["s_nop 0"]
    for qb in range(4):
        for n in range(3): seq += ep.chunk(qb, n, True)
    return seq + ep.flush()

def kfrag(g):
    return 2 * (g >> 2) + (g & 1), (g >> 1) & 1
def gen_slow():
    KF = 64; VF = 112; SS = 160; PP = 224; M = [240, 241, 242, 243]; KA = [244, 245]; LA = 246; t = V_T
    p = ["L_slow:", "s_waitcnt vmcnt(0) lgkmcnt(0)", "s_nop 15"]
    for i in range(192): p.append(f"v_accvgpr_write_b32 a{i}, 0")
    for q in range(4): p += [f"v_mov_b32 v{V_L[q]}, 0", f"v_mov_b32 v{M[q]}, 0xff7fffff"]
    p += [f"v_subrev_u32 v{KA[0]}, {A1}, v{V_RDK[0]}", f"v_subrev_u32 v{KA[1]}, {A1}, v{V_RDK[1]}", f"v_subrev_u32 v{LA}, {B0}, v{V_RD}",
          f"s_mov_b32 s{S_PT}, 0", "L_slowloop:"]
    for i in range(1, 5): p.append(f"s_add_u32 s{S_PT+i}, s{S_PT}, {[0, 6144, 12288, 16384, 20480][i]}")
    for f in range(12):
        s, tb = kfrag(f)
        p.append(f"buffer_load_dwordx4 v[{KF+4*f}:{KF+4*f+3}], v{KA[s&1]}, s[{S_WS}:{S_WS+3}], s{S_PT+tb} offen offset:{(s>>1)*128} sc1")
    for db in range(12):
        p.append(f"buffer_load_dwordx4 v[{VF+4*db}:{VF+4*db+3}], v{LA}, s[{S_WS}:{S_WS+3}], s{S_PT+2+db//4} offen offset:{(db%4)*1024} sc1")
    p.append("s_waitcnt vmcnt(12)")
    for f in range(12):
        s, tb = kfrag(f)
        for qb in range(4):
            d = vr(SS + 8 * qb + 4 * tb, 4)
            p.append(f"{MF} {d}, v[{KF+4*f}:{KF+4*f+3}], {Qf(qb,s)}, {'0' if s == 0 else d}")
    p.append("s_nop 9")
    for qb in range(4):
        sb = SS + 8 * qb
        p += [f"v_max3_f32 v{t}, v{sb}, v{sb+1}, v{sb+2}", f"v_max3_f32 v{t}, v{t}, v{sb+3}, v{sb+4}",
              f"v_max3_f32 v{t}, v{t}, v{sb+5}, v{sb+6}", f"v_max3_f32 v{t}, v{t}, v{sb+7}, v{M[qb]}"]
        p += xlane("v_max_f32", t)
        p += [f"v_sub_f32 v{t+1}, v{M[qb]}, v{t}", f"v_exp_f32 v{t+1}, v{t+1}", f"v_mov_b32 v{M[qb]}, v{t}"]
        for i in range(8): p.append(f"v_sub_f32 v{sb+i}, v{sb+i}, v{t}")
        for i in range(8): p.append(f"v_exp_f32 v{sb+i}, v{sb+i}")
        p.append(f"v_mul_f32 v{V_L[qb]}, v{V_L[qb]}, v{t+1}")
        for i in range(8): p.append(f"v_add_f32 v{V_L[qb]}, v{V_L[qb]}, v{sb+i}")
        for i in range(4): p.append(f"v_cvt_pk_bf16_f32 v{PP+4*qb+i}, v{sb+2*i}, v{sb+2*i+1}")
        p += [f"ds_bpermute_b32 v{248+r}, v{BA}, v{t+1} offset:{4*r}" for r in range(4)] + ["s_waitcnt lgkmcnt(0)"]
        for i in range(48):
            a = O(qb, 0) + i; tt = t + 2 + (i % 2)
            p += [f"v_accvgpr_read_b32 v{tt}, a{a}", f"v_mul_f32 v{tt}, v{tt}, v{248+i%4}", f"v_accvgpr_write_b32 a{a}, v{tt}"]
    p += ["s_waitcnt vmcnt(0)", "s_nop 1"]
    for db in range(12):
        for qb in range(4):
            d = ar(O(qb, db), 4)
            p.append(f"{MF} {d}, v[{PP+4*qb}:{PP+4*qb+3}], v[{VF+4*db}:{VF+4*db+3}], {d}")
    p += [f"s_add_u32 s{S_PT}, s{S_PT}, {STAGE}", f"s_cmp_lt_u32 s{S_PT}, {HEADBYTES}", "s_nop 7", "s_cbranch_scc1 L_slowloop"]
    e = slow_epi(); resolve(e)
    return p + fin(e) + ["s_branch L_fin"]

def xlane(op, t, u=None):
    u = t + 1 if u is None else u
    l = []
    for sw in ("v_permlane16_swap_b32", "v_permlane32_swap_b32"):
        l += [f"v_mov_b32 v{u}, v{t}", "s_nop 1", f"{sw} v{t}, v{u}", "s_nop 1", f"{op} v{t}, v{t}, v{u}"]
    return l
def rowmax2(t, qs, tq):
    l = []
    ab = [(Sq(t, j, 0), Sq(t, j, 1)) for j in range(2)]
    l += [f"v_max3_f32 v{tq[j]}, v{a}, v{a+1}, v{a+2}" for j, (a, b) in enumerate(ab)]
    l += [f"v_max3_f32 v{tq[j]}, v{tq[j]}, v{a+3}, v{b}" for j, (a, b) in enumerate(ab)]
    l += [f"v_max3_f32 v{tq[j]}, v{tq[j]}, v{b+1}, v{b+2}" for j, (a, b) in enumerate(ab)]
    l += [f"v_max_f32 v{tq[j]}, v{tq[j]}, v{b+3}" for j, (a, b) in enumerate(ab)]
    for sw in ("v_permlane16_swap_b32", "v_permlane32_swap_b32"):
        l += [f"v_mov_b32 v{tq[j]+1}, v{tq[j]}" for j in range(2)] + ["s_nop 0"]
        l += [f"{sw} v{tq[j]}, v{tq[j]+1}" for j in range(2)] + ["s_nop 0"]
        l += [f"v_max_f32 v{tq[j]}, v{tq[j]}, v{tq[j]+1}" for j in range(2)]
    l += [f"v_sub_f32 v{NEGM(qs[j])+i}, 0, v{tq[j]}" for j in range(2) for i in range(4)]
    return l
def sm_one(t, sl):
    a, b = Sq(t, sl, 0), Sq(t, sl, 1); tq = V_CT; qb = slot_q(t, sl); rs = [r + i for r in (a, b) for i in range(4)]
    l = [f"v_max3_f32 v{tq}, v{a}, v{a+1}, v{a+2}", f"v_max3_f32 v{tq+2}, v{a+3}, v{b}, v{b+1}",
         f"v_max3_f32 v{tq}, v{tq}, v{b+2}, v{b+3}", f"v_max_f32 v{tq}, v{tq}, v{tq+2}"] + xlane("v_max_f32", tq)
    l += [f"v_sub_f32 v{r}, v{r}, v{tq}" for r in rs] + [f"v_exp_f32 v{r}, v{r}" for r in rs] + [f"v_sub_f32 v{NEGM(qb)+i}, 0, v{tq}" for i in range(4)]
    l += [f"v_add_f32 v{V_L[qb]}, v{V_L[qb]}, v{r}" for r in rs] + [f"v_cvt_pk_bf16_f32 v{a+i}, v{rs[2*i]}, v{rs[2*i+1]}" for i in range(4)]
    return l
def addneg(t, sl):
    n = NEGM(slot_q(t, sl))
    return [f"v_add_f32 v{Sq(t,sl,tb)+i}, v{Sq(t,sl,tb)+i}, v{n}" for tb in range(2) for i in range(4)]

def resolve(seq):
    vm = []; ds = []
    for x in seq:
        if isinstance(x, VM): vm.append(x.tag)
        elif isinstance(x, DS): ds.append(x.tag)
        elif isinstance(x, (W, LG)):
            q = vm if isinstance(x, W) else ds
            best = None
            for tag in x.tags:
                n = 0; found = False
                for t in reversed(q):
                    if t == tag: found = True; break
                    n += 1
                if found: best = n if best is None else min(best, n)
            if best is not None:
                x.n = best if getattr(x, "n", None) is None else min(x.n, best)
        else:
            assert not x.startswith(("ds_", "buffer_")) or "UNTRACKED" in x, x
def vm_size(x):
    t = x.text
    if t.startswith("buffer_store"): return 0
    if x.tag == "pre": return 3.0
    if " lds" in t: return 1.0
    if "dwordx4" in t or "dwordx3" in t: return 0.75
    if "dwordx2" in t and "offen" in t: return 0.375
    return 0.125
def pace(seq, cap):
    out = []; q = []; on = False
    for x in seq:
        if isinstance(x, W): q = q[len(q) - min(len(q), x.n):]; on = True
        elif isinstance(x, VM):
            sz = vm_size(x)
            if on and not x.text.startswith("buffer_store") and sum(q) + sz > cap:
                while q and sum(q) + sz > cap: q.pop(0)
                w = W(); w.n = len(q)
                if out and out[-1] == "s_nop 0": out.pop()
                out.append(w)
            q.append(sz)
        out.append(x)
    return out
def fin(seq):
    out = []
    for x in seq:
        if isinstance(x, (W, LG)):
            if OPT["ab"] and getattr(x, "n", None) is None: x.n = 63
            assert getattr(x, "n", None) is not None, x.tags
            out.append(f"s_waitcnt vmcnt({min(x.n, 63)})" if isinstance(x, W) else f"s_waitcnt lgkmcnt({min(x.n, 15)})")
        elif isinstance(x, (VM, DS)): out.append(x.text)
        else: out.append(x.replace(" ;UNTRACKED", ""))
    return out
def groups_of(l):
    out = [[]]
    for x in l:
        out[-1].append(x)
        if isinstance(x, VM): out.append([])
    tail = out.pop()
    if tail: out[-1] += tail
    return out
def sprinkle(code, l):
    gs = groups_of(l); out = []; n = len(code); m = len(gs); j = 0
    for i, x in enumerate(code):
        while j < m and i * m >= j * n: out += with_nop(gs[j]); j += 1
        out.append(x)
    for g in gs[j:]: out += with_nop(g)
    return out
def srd(p, s, lo, hi, off_s, size):
    p += [f"s_add_u32 s{s}, s{lo}, s{off_s}", f"s_addc_u32 s{s+1}, s{hi}, 0", f"s_mov_b32 s{s+2}, {size}", f"s_mov_b32 s{s+3}, 0x20000"]

def gen_main():
    p = []
    p += [f"{NAME}_kernel:", "s_cmp_ge_u32 s2, 256", "s_cbranch_scc1 L_done",
          "s_load_dwordx16 s[40:55], s[0:1], 0", "s_load_dwordx4 s[16:19], s[0:1], 64"]
    if OPT["stamp"]: p += ["s_memtime s[98:99]" if OPT["stamp"] == 6 else "s_memrealtime s[98:99]"]
    p += [f"s_and_b32 s{S_HEAD}, s2, 7", f"s_lshr_b32 s{S_QB}, s2, 3", f"s_lshr_b32 s24, s{S_QB}, 3", f"s_lshl_b32 s{S_HEAD}, s{S_HEAD}, 2",
          f"s_add_u32 s{S_HEAD}, s{S_HEAD}, s24", f"s_and_b32 s{S_QB}, s{S_QB}, 7"]
    p += ["s_getpc_b64 s[60:61]", "L_pc:", f"s_sub_u32 s60, s60, L_pc-{NAME}_kernel", "s_subb_u32 s61, s61, 0",
          f"s_mov_b32 s62, L_slow-{NAME}_kernel", "s_mov_b32 s63, 0x20000",
          "s_lshr_b32 s22, s2, 3", "s_lshl_b32 s22, s22, 12",
          "v_lshlrev_b32 v30, 4, v0",
          VM("pf", "buffer_load_dwordx4 v[128:131], v30, s[60:63], s22 offen")]
    p += ["v_lshrrev_b32 v24, 6, v0",
          "v_and_b32 v25, 63, v0",
          f"v_readfirstlane_b32 s{S_WAVE}, v24",
          f"v_lshlrev_b32 v{V_RD}, 4, v25",
          "v_mul_u32_u24 v26, 43, v25", "v_lshrrev_b32 v26, 10, v26",
          "v_mul_u32_u24 v27, 24, v26",
          "v_sub_u32 v27, v25, v27",
          "v_lshrrev_b32 v28, 1, v24",
          "v_and_b32 v29, 1, v24",
          "v_lshlrev_b32 v30, 4, v29",
          "v_lshl_add_u32 v30, v28, 2, v30",
          "v_add_u32 v30, v30, v26",
          "v_mul_u32_u24 v30, 768, v30",
          "v_lshrrev_b32 v48, 1, v26", "v_lshlrev_b32 v48, 30, v48",
          "v_lshl_add_u32 v30, v27, 4, v30", f"v_or_b32 v{V_KLD}, v30, v48",
          f"v_lshl_or_b32 v{V_KSC}, v27, 3, v48",
          "v_mul_u32_u24 v30, 6144, v24",
          f"v_add3_u32 v{V_VLD}, v30, v{V_RD}, v48"]
    for sd, size in ((S_QK, HEADBYTES), (S_QV, HEADBYTES), (S_KS, 12288), (S_KZ, 12288), (S_VS, 4096), (S_VZ, 4096), (S_FLG, 64)):
        p += [f"s_mov_b32 s{sd+2}, {size}", f"s_mov_b32 s{sd+3}, 0x20000"]
    p += [f"s_mul_i32 s{S_PK0}, s{S_QB}, {STAGE}", f"s_add_u32 s{S_PK1}, s{S_PK0}, 6144", f"s_mov_b32 s{S_PV0}, s{S_PK0}",
          f"s_lshr_b32 s{S_PKS}, s{S_QB}, 1", f"s_mul_i32 s{S_PKS}, s{S_PKS}, 384", f"s_lshl_b32 s{S_PVS}, s{S_QB}, 6",
          f"s_lshl_b32 s24, s{S_WAVE}, 4", f"s_add_u32 s{S_PVS}, s{S_PVS}, s24",
          f"s_mul_i32 s24, s{S_HEAD}, {HEADBYTES}", f"s_mul_i32 s56, s{S_HEAD}, 12288", f"s_lshl_b32 s57, s{S_HEAD}, 12",
          f"s_lshl_b32 s58, s{S_HEAD}, 10", f"s_add_u32 s58, s58, {FLAG_OFF + 96}",
          f"s_or_b32 s{S_RET}, s{S_QB}, s{S_WAVE}"]
    p += ["s_waitcnt lgkmcnt(0)"] + istamp("karg", True)
    def base(sd, lo, off): return [f"s_add_u32 s{sd}, s{lo}, s{off}", f"s_addc_u32 s{sd+1}, s{lo+1}, 0"]
    p += base(S_QK, 42, 24) + base(S_KS, 46, 56) + base(S_KZ, 48, 56)
    kl = [k_ld(0, BX, 32, "k0a"), k_ld(1, BY, 36, "k0b")]; vl = [v_ld(0, 112, 40, "v0a"), v_ld(1, 80, 44, "v0b")]
    for x in kl[1][:2]: x.tag = "k0a"
    for x in vl[1][:2]: x.tag = "v0a"
    if OPT["ksc"]:
        for x in kl[0][2:] + kl[1][2:]: x.tag = "kraw"
        for x in kl[1][:2]: x.tag = "k0b"
        p += kl[0][2:] + kl[1][2:] + kl[0][:2] + kl[1][:2]; kl[1] = []
    else: p += kl[0][2:] + kl[0][:2] + kl[1][:2]
    p += base(S_FLG, 18, 58) + base(S_VS, 50, 57) + base(S_VZ, 52, 57) + base(S_QV, 44, 24)
    p += [f"s_mul_i32 s59, s{S_HEAD}, 786432"] + base(S_OUT, 54, 59) + base(S_Q, 40, 59)
    p += [f"s_cmp_lg_u32 s{S_RET}, 0", "s_cbranch_scc1 L_notleader0", f"s_buffer_load_dwordx16 s[40:55], s[{S_FLG}:{S_FLG+3}], 0 glc", "L_notleader0:"]
    p += kl[1][2:]
    p += [f"s_add_u32 s24, s24, {WSOFF}"] * (1 if WSOFF else 0)
    srd(p, S_WS, 18, 19, 24, HEADBYTES)
    p += [f"s_mov_b32 s{S_Q+2}, 786432", f"s_mov_b32 s{S_Q+3}, 0x20000"]
    p += [f"s_mov_b32 s{S_DBG}, s16", f"s_mov_b32 s{S_DBG+1}, s17", f"s_add_u32 s{S_PV1}, s{S_PK0}, 3072", f"s_add_u32 s{S_PV2}, s{S_PK0}, 6144"]
    p += [f"s_mov_b32 s{S_DBG+2}, 256", f"s_mov_b32 s{S_DBG+3}, 0x20000", f"s_lshl_b32 s{S_HOFF}, s{S_HEAD}, 3"]
    p += [f"s_cmp_lg_u32 s{S_RET}, 0", "s_cbranch_scc1 L_notleader", "s_waitcnt lgkmcnt(0)", f"s_mov_b32 s{S_TP}, 1"]
    for i in range(16):
        p += [f"s_lshr_b32 s{40+i}, s{40+i}, 10", f"s_min_u32 s{40+i}, s{40+i}, 31", f"s_bitset1_b32 s{S_TP}, s{40+i}"]
    p += [f"s_ff0_i32_b32 s{S_TP}, s{S_TP}", f"s_lshl_b32 s{S_TP}, s{S_TP}, 10", f"v_mov_b32 v{V_POLL}, s{S_TP}",
          "s_mov_b64 exec, 1", f"buffer_store_dword v{V_POLL}, off, s[{S_DBG}:{S_DBG+3}], s{S_HOFF} sc1 ;UNTRACKED", "s_mov_b64 exec, -1",
          "L_notleader:"]
    p += [f"s_lshl_b32 s24, s{S_QB}, 2", f"s_add_u32 s24, s24, 32", f"s_buffer_load_dword s{S_OWN}, s[{S_FLG}:{S_FLG+3}], s24 glc",
          ] + ([f"s_getreg_b32 s{S_XCC}, hwreg(HW_REG_XCC_ID, 0, 4)", f"s_lshl_b32 s{S_XCC}, s{S_XCC}, 5", f"s_mov_b32 s{S_FOFF}, 0"] if OPT["l2"] else
          [f"s_mov_b32 s{S_XCC}, 0", f"s_mov_b32 s{S_FOFF}, 32"])
    p += vl[0][2:] + vl[0][:2] + vl[1][:2] + (vl[1][2:] if OPT["greedy"] else []) + istamp("iss", True)
    if OPT["pre"]:
        st = OPT["pre"]
        p += [f"v_mul_u32_u24 v31, {st}, v25", f"v_mul_u32_u24 v30, 6144, v24", "v_add_u32 v31, v30, v31"]
        if st == 128: p += ["v_or_b32 v31, v31, v48"]
        p += [VM("pre", f"buffer_load_dword v132, v31, s[{S_WS}:{S_WS+3}], s{S_PK0} offen" + (" nt" if OPT["prent"] else ""))]
        if st == 64: p += ["v_add_u32 v30, 4096, v31", "s_mov_b64 exec, 0xffffffff", VM("pre", f"buffer_load_dword v133, v30, s[{S_WS}:{S_WS+3}], s{S_PK0} offen nt"), "s_mov_b64 exec, -1"]
    p += [f"s_mov_b32 s{S_OUT+2}, 786432", f"s_mov_b32 s{S_OUT+3}, 0x20000"]
    p += [f"s_lshl_b32 s24, s{S_WAVE}, 8", f"s_add_u32 s{S_HOFF}, s{S_HOFF}, s24"]
    p += ["v_mul_u32_u24 v30, 3072, v24", f"v_add_u32 v{V_DMA}, v30, v{V_RD}"]
    p += ["v_lshl_add_u32 v30, v24, 3, v26",
          "v_mul_u32_u24 v30, 384, v30",
          "v_lshlrev_b32 v31, 2, v29",
          "v_xor_b32 v31, v27, v31",
          "v_lshl_add_u32 v30, v31, 4, v30", f"v_or_b32 v{V_KST}, v30, v48",
          "v_lshlrev_b32 v30, 8, v24",
          "v_add_u32 v30, 12288, v30",
          "v_lshrrev_b32 v31, 4, v25", "v_lshl_add_u32 v30, v31, 10, v30", "v_and_b32 v31, 15, v25",
          "v_lshl_add_u32 v30, v31, 4, v30", f"v_or_b32 v{V_VST}, v30, v48"]
    p += [f"s_lshl_b32 s24, s{S_QB}, 2",
          f"v_lshl_add_u32 v{V_FLAG}, v0, 2, s24", f"v_cmp_lt_u32 vcc, 0, v0", "v_mov_b32 v30, 0x40000000", "s_nop 0",
          f"v_cndmask_b32 v{V_FLAG}, v{V_FLAG}, v30, vcc"]
    p += [f"s_mul_i32 s{S_DMK}, s{S_WAVE}, 3072", f"s_add_u32 s{S_DMK}, s{S_DMK}, 12288", f"s_add_u32 s{S_DMV}, s{S_DMK}, {STAGE}",
          f"s_add_u32 s24, s{S_QB}, 1", "s_and_b32 s24, s24, 7", f"s_mul_i32 s{S_GOFFK}, s24, {STAGE}", f"s_add_u32 s{S_GOFF}, s{S_GOFFK}, 12288",
          f"s_mov_b32 s{S_RK}, {A2}", f"s_mov_b32 s{S_RV}, {B1}", f"v_add_u32 v{V_RD}, {B0}, v{V_RD}",
          f"s_mov_b32 s{S_CS}, 0x{f32bits(CSCALE):08x}", f"s_mov_b32 s{S_MASK}, 0xffff0000",
          f"s_mov_b32 s{S_BUDGET}, 100000"] + ([f"s_mov_b32 s{S_TAG+1}, 0"] if OPT["stamp"] else [])
    p += ["v_and_b32 v26, 15, v25", "v_lshrrev_b32 v27, 4, v25", "v_bfe_u32 v28, v25, 1, 3",
          "v_xor_b32 v29, v27, v28", "v_mul_u32_u24 v30, 384, v26", f"v_lshl_add_u32 v{V_RDK[0]}, v29, 4, v30",
          f"v_xor_b32 v{V_RDK[1]}, 64, v{V_RDK[0]}"]
    p += [f"s_mul_i32 s{S_QL}, s{S_WAVE}, 6144", f"s_add_u32 s{S_QL}, s{S_QL}, {B1}",
          "v_lshrrev_b32 v29, 1, v27", "v_xor_b32 v29, v29, v28", "v_lshl_add_u32 v31, v29, 4, v30",
          "v_and_b32 v29, 1, v27", "v_lshl_add_u32 v31, v29, 3, v31"]
    for kk in range(4):
        p += [f"v_xor_b32 v{VQR[kk]}, {32*kk}, v31", f"v_add_u32 v{VQR[kk]}, s{S_QL}, v{VQR[kk]}"]
    p += [f"s_lshl_b32 s24, s{S_QB}, 2", f"s_add_u32 s24, s24, s{S_WAVE}", f"s_mul_i32 s24, s24, {STAGE}"]
    for b in range(6):
        p += [f"v_add_u32 v26, {64*b}, v25", "v_mul_u32_u24 v27, 2731, v26", "v_lshrrev_b32 v27, 17, v27",
              "v_and_b32 v27, 7, v27", "v_xor_b32 v26, v26, v27", f"v_lshlrev_b32 v{VQD+b}, 4, v26", f"v_add_u32 v{VQD+b}, s24, v{VQD+b}"]
    for q in range(4): p.append(f"v_mov_b32 v{V_L[q]}, 0")
    STF0 = "" if OPT["l2"] else STF
    def own_k(b):
        l = []
        for j in range(4):
            l += k_st(j, b, "kst", STF0)
            va = V_KST if j == 0 else V_KA + (j & 1)
            l += ["s_mov_b64 exec, s[62:63]", DS("w", f"ds_write_b128 v{va}, v[{b+4*j}:{b+4*j+3}] offset:{j*768}"), "s_mov_b64 exec, -1"]
        return l
    def own_v(b):
        l = [x for e in range(4) for x in v_st(e, b, "vst", STF0)]
        l += ["s_mov_b64 exec, s[62:63]"] + [DS("w", f"ds_write_b128 v{V_VST}, v[{b+4*e}:{b+4*e+3}] offset:{STAGE - 12288 + e*3072}") for e in range(4)] + ["s_mov_b64 exec, -1"]
        return l
    p += ["s_mov_b32 s62, -1", "s_mov_b32 s63, 0xffff"]
    qa = OPT["qa"]
    qb_, qc = OPT["qb"], OPT["qc"]
    R = lambda a, b: list(range(a, b))
    if OPT["split"]:
        p += [W("k0a")] + vl[1][2:] + k_cv(0, BX, 32, BX) + [W("k0b")] + istamp("k0b", True) + k_cv(1, BY, 36, BX) + own_k(BX)
        p += tag_load() + with_nop(q_dma(R(0, qa))) + [W("v0a")] + v_cv(0, 112, 40, 112)
        p += [W("tag")] + tag_check() + ["s_waitcnt lgkmcnt(0)", "s_barrier"] + flag_post() + tag_get() + istamp("post", True)
        p += with_nop(q_dma(R(qa, qb_))) + v_cv(1, 80, 44, 112) + own_v(112) + with_nop(q_dma(R(qb_, 12))) + istamp("vst", True)
    elif OPT["greedy"]:
        p += [W("k0a")] + with_nop(q_dma(R(0, 3))) + k_cv(0, BX, 32, BX) + [W("k0b")] + istamp("k0b", True) + with_nop(q_dma(R(3, 6))) + k_cv(1, BY, 36, BX) + own_k(BX)
        p += [W("v0a")] + with_nop(q_dma(R(6, 9))) + v_cv(0, 112, 40, 112) + [W("v0b")] + with_nop(q_dma(R(9, 12))) + v_cv(1, 80, 44, 112) + own_v(112)
        p += tag_load() + with_nop(q_dma(R(12, 18))) + istamp("vst", True)
    else:
        p += [W("k0a")] + vl[1][2:] + k_cv(0, BX, 32, BX) + [W("k0b")] + istamp("k0b", True) + k_cv(1, BY, 36, BX) + own_k(BX)
        p += with_nop(q_dma(R(0, qa))) + istamp("kst", True)
        p += [W("v0a")] + sprinkle(v_cv(0, 112, 40, 112), q_dma(R(qa, qb_))) + [W("v0b")] + v_cv(1, 80, 44, 112) + own_v(112)
        p += tag_load() + with_nop(q_dma(R(qb_, 12))) + istamp("vst", True)
    if not OPT["split"]:
        p += [W("tag")] + tag_check() + istamp("tag", True)
        p += ["s_waitcnt lgkmcnt(0)", "s_barrier"] + flag_post(True) + tag_get() + istamp("post", True)
    if OPT["pf2"]:
        p += [f"s_mov_b32 s{S_DBG}, s60", f"s_mov_b32 s{S_DBG+1}, s61", f"s_mov_b32 s{S_DBG+2}, L_slow-{NAME}_kernel",
              "s_lshr_b32 s24, s2, 3", f"s_mul_i32 s{S_HOFF}, s24, 43", f"s_lshr_b32 s{S_HOFF}, s{S_HOFF}, 7",
              f"s_mul_i32 s{S_RET}, s{S_HOFF}, 3", f"s_sub_u32 s24, s24, s{S_RET}", "s_lshl_b32 s24, s24, 10",
              f"s_mul_i32 s{S_HOFF}, s{S_HOFF}, 12288", f"s_add_u32 s{S_HOFF}, s{S_HOFF}, s24"]
    KF = 144
    for f in range(12):
        s, tb = kfrag(f)
        p.append(DS("kf", f"ds_read_b128 v[{KF+4*f}:{KF+4*f+3}], v{V_RDK[s&1]} offset:{tb*6144 + (s>>1)*128}"))
    def qk0(qb):
        l = []
        for f in sorted(range(12), key=lambda f: kfrag(f)[::-1]):
            s, tb = kfrag(f)
            d = vr(Sq(0, qb, tb), 4)
            l.append(f"{MF} {d}, v[{KF+4*f}:{KF+4*f+3}], {Qf(qb,s)}, {'0' if s == 0 else d}")
        return l
    ps = len(POLLSITES); POLLSITES.append(ps)
    g3n = OPT["g3n"]
    pollchk = ["s_waitcnt lgkmcnt(0)"] + smem_reduce() + [f"s_cmp_ge_u32 s{S_PT}, 16", f"s_cbranch_scc1 L_pollslow{ps}", f"L_pollok{ps}:",
          f"s_add_u32 s{S_NEED}, s{S_NEED}, 1"] + [f"s_mov_b32 s{S_FOFF}, 32"] * (OPT["l2"] == 2) + istamp("poll", True)
    sm00 = rowmax2(0, (0, 1), (V_CT, V_CT + 2)) + addneg(0, 0) + addneg(0, 1) + softmax_part(0, 0)
    qrest = R(12 if OPT["greedy"] == 0 else 18, 18 + g3n)
    if OPT["split"]:
        ps2 = len(POLLSITES); POLLSITES.append(ps2)
        pollchk2 = ["s_waitcnt lgkmcnt(0)"] + smem_reduce() + [f"s_cmp_ge_u32 s{S_PT}, 16", f"s_cbranch_scc1 L_pollslow{ps2}", f"L_pollok{ps2}:",
              f"s_add_u32 s{S_NEED}, s{S_NEED}, 1"] + istamp("pollV", True)
        p += [W(("q", 0))] + q_frags(0) + [LG("tg")] + tag_use() + [LG(("qf", 0))] + smem_flags() + qk0(0) + pollchk
        p += with_nop(dma_tile("k", 1, True)) + k_adv() + v_adv()
        p += [W("vst"), "s_barrier"] + flag_post() + istamp("postV", True)
        p += with_nop(dma_tile("k", 2, True) + dma_tile("k", 3, True))
        p += [W(("q", 1))] + q_frags(1) + with_nop(q_dma(R(12, 15))) + [LG(("qf", 1))] + qk0(1) + ["s_nop 7"]
        g0 = pv_unchained(0, True)[:6]
        p += [rd_op(i, j, g0[i]) for i in range(2) for j in range(2)] + sprinkle(sm00, q_dma(R(15, 18 + g3n))) + smem_flags() + [LG(("fr", 0), ("fr", 1))]
        p += gen_seg("S0", g0, [], tasks=[("q", R(18 + g3n, 24), 0, 22)] if g3n < 6 else [], vmgap=2) + pollchk2
        p += with_nop(dma_tile("v", 1, True))
        g3n = 6
    elif OPT["own1"] == 2:
        p += [W(("q", 0))] + q_frags(0) + [LG("tg")] + tag_use() + with_nop(q_dma(qrest[:3])) + [LG(("qf", 0))] + qk0(0)
        p += [W(("q", 1))] + q_frags(1) + smem_flags() + with_nop(q_dma(qrest[3:])) + [LG(("qf", 1))] + qk0(1) + pollchk
        g0 = pv_unchained(0, True)[:6]
        p += [rd_op(i, j, g0[i]) for i in range(2) for j in range(2)]
        p += sprinkle(sm00, dma_tile("k", 1, True) + dma_tile("k", 2, True) + dma_tile("k", 3, True) + dma_tile("v", 1, True)) + k_adv() + v_adv() + [LG(("fr", 0), ("fr", 1))]
        p += gen_seg("S0", g0, [], tasks=[("q", R(18 + g3n, 24), 0, 22)] if g3n < 6 else [], vmgap=2)
        g3n = 6
    elif OPT["own1"]:
        p += [W(("q", 0))] + q_frags(0) + [LG("tg")] + tag_use() + with_nop(q_dma(qrest[:3])) + [LG(("qf", 0))] + qk0(0)
        if OPT["q0f"]: p += ["s_nop 7"] + sm_one(0, 0); sm00 = sm_one(0, 1)
        p += [W(("q", 1))] + q_frags(1) + with_nop(q_dma(qrest[3:6])) + [LG(("qf", 1))] + qk0(1) + ["s_nop 7"]
        g0 = pv_unchained(0, True)[:6]
        p += [rd_op(i, j, g0[i]) for i in range(2) for j in range(2)] + sprinkle(sm00, q_dma(qrest[6:])) + smem_flags() + [LG(("fr", 0), ("fr", 1))]
        p += gen_seg("S0", g0, []) + pollchk
        p += with_nop(dma_tile("k", 1, True) + dma_tile("k", 2, True) + dma_tile("k", 3, True) + dma_tile("v", 1, True)) + k_adv() + v_adv()
    else:
        p += [W(("q", 0))] + q_frags(0) + [LG("tg")] + tag_use() + [W(("q", 1))] + q_frags(1) + smem_flags()
        p += [LG(("qf", 0))] + with_nop(q_dma(qrest)) + pollchk
        p += with_nop(dma_tile("k", 1, True)) + k_adv() + v_adv()
        p += sprinkle(qk0(0) + qk0(1), dma_tile("k", 2, True)) + ["s_nop 7"]
        p += sprinkle(sm00, dma_tile("k", 3, True) + dma_tile("v", 1, True))
    sp = softmax_part
    g1 = qk_half(0, ws=(1,))
    g2 = rebase(qk_half(1), V_RDK, A1 - A0)
    g3 = pv_unchained(0, True)[6 if OPT["own1"] else 0:]
    g4 = rebase(pv_unchained(1), [V_RD], B1 - B0)
    g5 = rebase(qk_half(2, True), V_RDK, A0 - A1) + rebase(qk_half(3), V_RDK, A1 - A0)
    gi3 = rebase(qk_full(4), V_RDK, A2 - A1)
    gi4 = rebase(pv_seq(2, True), [V_RD], B0 - B1) + rebase(pv_seq(3), [V_RD], B1 - B0)
    p += istamp("pre-dk1", True) + [W(("dk", 1)), "s_barrier"] + [rd_op(i, j, g1[i]) for i in range(2) for j in range(2)]
    p += [LG(("fr", 0), ("fr", 1))]
    p += gen_seg("S1", g1, g2[:2], [], [(15, [("dk", 3)])], [], [V_(2, 3) + (0, 21)], vmgap=2)
    p += gen_seg("S2", g2, g3[:2], [(sp(0, 1), 3, 47)], [(39, [("dv", 3)])] if OPT["own1"] else [], ([("q", R(18 + g3n, 24), 0, 24)] if g3n < 6 else []) + [("ldn", "ka", 25 if g3n < 6 else 0, 47)])
    if OPT["own1"]: p += gen_seg("S3", g3, g4[:2], [(sp(1, 0), 0, 23)], [], [("ldn", "kb", 0, 23)])
    else: p += gen_seg("S3", g3, g4[:2], [(sp(1, 0), 0, 47)], [(15, [("dv", 3)])], [("ldn", "kb", 0, 22), ("ldn", "va", 23, 46, "raw")])
    p += gen_seg("S4", g4, g5[:2], [(sp(1, 1), 0, 21)], [], [("ldn", "va", 0, 30, "raw")] if OPT["own1"] else [], extra=[Stream([W(("q", 2))] + q_frags(2) + [W(("q", 3))] + q_frags(3), 16, 46)])
    p += istamp("pre-S5", True) + ["s_waitcnt lgkmcnt(0)", "s_barrier"]
    p += gen_seg("S5", g5, gi3[:2], [(rowmax2(2, (2, 3), (V_T, V_T + 2)), 27, 45), (addneg(2, 0) + addneg(2, 1) + sp(2, 0) + addneg(2, 2) + addneg(2, 3) + sp(2, 1), 46, 95)],
                 [(GBAR + 8, [("dk", 5)])], [("cv", "ka", 0, 99, 0, 34), ("cv", "kb", 0, 99, 35, 72), ("kst", 0, 73), ("kst", 1, 77), ("kst", 2, 89), ("kst", 3, 93),
                 ("ldn", "va", 36, 60, "sc")], [K_(4, 5) + (1, 24)])
    p += gen_seg("i3", gi3, gi4[:2], [(sp(3, 0) + sp(3, 1), 0, 54), (sp(4, 0), 55, 95)], [(OPT["pb"], []), (GBAR, [])],
                 [("ld", "vb", 0, 22), ("post", "kst", 0), ("cv", "va", 0, 99, 10, 95)], [K_(6, 7) + V_(4, 5) + (24, 90)])
    p += [f"s_mov_b32 s{S_CNT}, 7"]
    p += gen_seg("i4", gi4, seg_groups(5)[:2], [(sp(4, 1) + sp(5, 0), 0, 94)], [(47, []), (GBAR + 8, [("dk", 7)])],
                 [("ld", "ka", 0, 30), ("cv", "vb", 0, 99, 30, 94), ("step", "q", 30, 70), ("pollld", OPT["pl4"], OPT["pl4"] + 8)], [V_(6, 7) + (52, 84)],
                 endops=["s_nop 0", "s_branch L_join"])
    p += [".p2align 6", "L_loop:"]
    pro_ = p
    first57, tail = gen_tail()
    bodyA = []
    for k in (1, 2, 3, 4, 5, 6, 7, 0):
        if k == 5: bodyA.append("L_join:"); jpos = len(bodyA)
        eo = [f"s_sub_u32 s{S_CNT}, s{S_CNT}, 1", f"s_cmp_lg_u32 s{S_CNT}, 0", "s_cbranch_scc1 L_loop"] if k == 0 else ()
        t, d = steady(k)
        if OPT["ab"] & 8: d = []
        if OPT["ab"] & 16: t = [x for x in t if x[0] not in ("cv", "kst", "vst", "ld")]
        bodyA += gen_iter(16 + k, t, d, name=f"k{k}", endops=eo)
    assert OPT["qo"] or [g.rd for g in first57] == [g.rd for g in seg_groups(17)[:2]]
    tailc = tail + ["L_fin:"]
    resolve(pro_ + bodyA[jpos:] + bodyA + bodyA + tailc)
    if OPT["cap"]: pro_ = pace(pro_, OPT["cap"] / 4)
    P_ = Prog()
    P_.extend(fin(pro_))
    a0 = len(P_.ins); P_.extend(fin(bodyA)); a1 = len(P_.ins)
    P_.extend(fin(tailc))
    p = P_
    if OPT["stamp"]:
        p("s_waitcnt vmcnt(0) lgkmcnt(0)")
        p.extend(istamp("end"))
        p("s_waitcnt lgkmcnt(0)")
        p.extend(istamp("end2"))
        p(f"v_writelane_b32 v{V_STAMP}, s{S_TAG+1}, 63")
        p("s_add_u32 s8, s18, 0xfa00000"); p("s_addc_u32 s9, s19, 0"); p("s_mov_b32 s10, 1048576"); p("s_mov_b32 s11, 0x20000")
        p("s_lshl_b32 s24, s2, 2"); p(f"s_add_u32 s24, s24, s{S_WAVE}"); p("s_lshl_b32 s24, s24, 8")
        p(f"v_bfe_u32 v32, v{V_DMA}, 4, 6"); p("v_lshlrev_b32 v32, 2, v32")
        p(f"buffer_store_dword v{V_STAMP}, v32, s[8:11], s24 offen")
        if OPT["stamp"] == 8: STAMPS.sort(key=lambda n: 0)
        open(sys.argv[1] + ".stamps", "w").write("\n".join(order_stamps()))
    if OPT["calx"]:
        p("s_waitcnt vmcnt(0)")
        p("L_cal:")
        p("s_memrealtime s[40:41]")
        p("s_waitcnt lgkmcnt(0)")
        p("s_sub_u32 s40, s40, s100")
        p("s_cmp_lt_u32 s40, 10000")
        p("s_cbranch_scc1 L_cal")
    p("L_done:")
    p("s_endpgm")
    main_end0 = len(p.ins)
    for ps in POLLSITES: p.extend(poll_slow(ps))
    p.extend(tag_slow())
    main_end = len(p.ins)
    p.extend(gen_slow())
    slow_end = len(p.ins)
    ji = [i for i, x in enumerate(p.ins) if x.text == "L_join:"][0]
    lin = p.ins[:a0] + p.ins[ji:a1] + p.ins[a0:main_end0]
    sl = [i for i, x in enumerate(p.ins) if x.text == "L_slowloop:"][0]
    bi = [i for i, x in enumerate(p.ins) if x.text == "s_cbranch_scc1 L_slowloop"][0]
    probs = check_hazards(lin, "main") + check_hazards(p.ins[main_end:bi+1] + p.ins[sl:slow_end], "slow") + check_hazards(p.ins[main_end0:main_end], "aux")
    for x in probs: print(x, file=sys.stderr)
    return p

def kd(name, vgpr, sgpr, accum):
    return f""".amdhsa_kernel {name}
  .amdhsa_next_free_vgpr {vgpr}
  .amdhsa_next_free_sgpr {sgpr}
  .amdhsa_accum_offset {accum}
  .amdhsa_group_segment_fixed_size 0
  .amdhsa_kernarg_size 80
  .amdhsa_user_sgpr_count 2
  .amdhsa_user_sgpr_kernarg_segment_ptr 1
  .amdhsa_system_sgpr_workgroup_id_x 1
.end_amdhsa_kernel
"""
out = HEADER
out += f"; @launch grid=(256,1,1) block=(256,1,1) lds={LDS_BYTES}\n"
out += '.amdgcn_target "amdgcn-amd-amdhsa--gfx950"\n.text\n'
out += f".globl {NAME}_kernel\n.p2align 8\n.type {NAME}_kernel,@function\n" + gen_main().text()
out += '.section .rodata,"a"\n.p2align 6\n' + kd(NAME + "_kernel", 512, 102, 256)
open(sys.argv[1], "w").write(out)
```

```python
import sys, math
from asmlib import *

NAME = "standalone__kv_cache_quant_int4_int2_kv_with_per_channel_or_per_token_scales__prompt"
OPT = dict(stamp=0, vmgap=4, sb=6, sa=6, ahead=8, thr=64, pf2=1, calx="", qa=6, plv=2, plk=10, ckv=1, ckk=1, tden=24, touch=0, w0poll=0, cap=48, qb=6, q3e=1, ksc=0, few=1, qc=15, pb=39, pl4=40, l2=2, k1e=0, greedy=0, g3n=3, pre=0, own1=1, ab=0, pk=0, split=0, prent=1, bal=1, flex=1, w2=0, dense="S61,S5,S2,S3,S4", dx=4, dvg=2, f3=1, pvs=1, qo=0, po=0, x2c=12, sst=1, q0f=1, nb6=1, tv=1, omv=0, ldc=8, ed=200, ed1=250, cut="16,42,8,48,18,38,12")
for a in sys.argv[2:]:
    k, v = a.split("="); OPT[k] = int(v) if v.lstrip("-").isdigit() else v
NS = 6
STAGE = 24576
HEADBYTES = 64 * STAGE
RING = NS * STAGE
LDS_BYTES = RING + 128
A0, B0, A1, B1, A2, B2 = [i * STAGE for i in range(6)]
CSCALE = (192.0 ** -0.5) * math.log2(math.e)
HEADER = open("cdna_kernels/" + NAME + ".s.ref").read().split("; Override launch geometry")[0]
MF = "v_mfma_f32_16x16x32_bf16"

V_FVAL = 0; V_RD = 1; V_RDK = [2, 3]; V_DMA = 4; V_L = [5, 6, 7, 8]
V_KLD = 9; V_KSC = 10; V_KST = 11; V_VLD = 12; V_FLAG = 13; V_RD2 = 14
V_T = 16; NTP = 2
V_VST = 20; V_STAMP = 21
V_FR = 24; NFS = 6
V_CT = 48; V_VO = 52; V_RS = [56, 60]; BX = 224; BY = 240; BZ = 144
V_POLL = V_VO; V_KA = V_VO + 2
UNIT = [64, 80, 160, 176]; HI = [96, 112]
VQD = 136; VQR = [22, 23, 142, 143]
def Sq(t, sl, tb): return (UNIT[t % 4] if tb == 0 else HI[t % 2]) + 4 * sl
def P(t, sl): return UNIT[t % 4] + 4 * sl
def NEGM(qb): return 128 + 4 * qb
def O(qb, db): return (qb * 12 + db) * 4
def Qf(qb, s, half=None):
    i = qb * 6 + s
    base, f = (192 + 4 * i, ar) if i < 16 else (192 + 4 * (i - 16), vr)
    return f(base, 4) if half is None else f(base + 2 * half, 2)
def FR(f): return vr(V_FR + 4 * (f % NFS), 4)

S_RDELTA = 3; S_WS = 4; S_Q = 8; S_OUT = 12; S_FLG = 20
S_WAVE = 25; S_DMK = 26; S_GOFF = 27; S_RK = 28; S_TMP = 29; S_RV = 30; S_CNT = 31; S_GOFFK = 32
S_PK0 = 33; S_PK1 = 34; S_PV0 = 35; S_PKS = 36; S_PVS = 37; S_CS = 38; S_RET = 39; S_PV1 = 16; S_PV2 = 17
S_QL = 40; S_QS = 41; S_TAG = 42; S_FOFF = 44; S_XCC = 45; S_OWN = 46
S_PT = 48; S_DMV = 56; S_TK = 57; S_TV = 58; S_TP = 59
S_QK = 64; S_QV = 68; S_KS = 72; S_KZ = 76; S_VS = 80; S_VZ = 84; S_DBG = 88
S_NEED = 92; S_HOFF = 93; S_HEAD = 94; S_QB = 95; S_BUDGET = 96; S_MASK = 97
WSOFF = OPT.get("wsoff", 0) << 20
FLAG_OFF = WSOFF + (49 << 20)
SC1 = {0: " sc1", 1: "", 2: " nt", 3: " sc0", 4: " sc1 nt", 5: " sc0 sc1"}[OPT.get("dmaf", 0)]; NTKV = " nt"; NTQ = " nt"; STF = " sc1"; OF = " sc0 sc1"

STAMPS = []
def istamp(name, force=False):
    if OPT["calx"] == name: return ["s_memrealtime s[100:101]"]
    if OPT["stamp"] not in (6, 8, 9): return []
    if OPT["stamp"] == 8 and name.startswith("k") and not force: return []
    if OPT["few"] and force and name not in ("karg", "k0b", "vst", "tag", "post", "poll", "postV", "pollV", "pre-dk1"): return []
    if OPT["stamp"] != 8 and force: return []
    STAMPS.append(name)
    return ["s_waitcnt lgkmcnt(0)"] * (1 if force else 0) + [f"v_mov_b32_dpp v{V_STAMP}, v{V_STAMP} wave_shr:1 row_mask:0xf bank_mask:0xf", f"v_writelane_b32 v{V_STAMP}, s98, 0",
            ("s_memtime" if OPT["stamp"] == 6 else "s_memrealtime") + " s[98:99]"]

def order_stamps():
    l = list(STAMPS); out = []
    if "S62" in l:
        l.remove("S61"); l.insert(l.index("S62"), "S61")
    for n in l:
        if "." in n: continue
        out.append(n); out += [m for m in l if m.startswith(n + ".")]
    return out
class W:
    def __init__(self, *tags): self.tags = tags
class VM:
    def __init__(self, tag, text): self.tag = tag; self.text = text
class LG:
    def __init__(self, *tags): self.tags = tags
class DS:
    def __init__(self, tag, text): self.tag = tag; self.text = text

def mode_of(t):
    return {0: "a", 1: "a", 2: "b", 3: "b", 58: "a", 59: "a", 60: "a", 61: "b", 62: "b", 63: "b"}.get(t, "f")
def slot_q(t, sl):
    m = mode_of(t)
    return sl if m == "f" else (sl & 1) + (0 if m == "a" else 2)
def softmax_part(t, half):
    flat = []; prev = None
    for gp in range(8):
        sl = 2 * half + gp // 4; pi = gp % 4; l = V_L[slot_q(t, sl)]
        t0 = V_T + 2 * (gp % NTP); t1 = t0 + 1
        src = Sq(t, sl, pi >> 1) + 2 * (pi & 1)
        E = [f"v_exp_f32 v{t0}, v{src}", f"v_exp_f32 v{t1}, v{src+1}"]
        A = [f"v_add_f32 v{l}, v{l}, v{t0}", f"v_add_f32 v{l}, v{l}, v{t1}"]
        C = [f"v_cvt_pk_bf16_f32 v{P(t,sl)+pi}, v{t0}, v{t1}"]
        if 16 <= t < 26:
            if OPT["ab"] & 1: A = []
            if OPT["ab"] & 2: E = [x.replace("v_exp_f32", "v_mov_b32") for x in E]
            if OPT["ab"] & 32: C = []
            if OPT["ab"] & 64: E = []; A = []; C = []
        flat += E if prev is None else E[:1] + prev[0] + E[1:] + prev[1]
        prev = (A, C)
    return flat + prev[0] + prev[1]

class Grp:
    def __init__(self, rd, mf): self.rd = rd; self.mf = mf; self.reb = []
def qk_tile(t, w, slots, czero=False):
    gs = []
    if OPT["qo"] == 1 and len(slots) == 4:
        for s_ in range(6):
            rd = [(V_RDK[s_ & 1], w * 12288 + tb * 6144 + (s_ >> 1) * 128) for tb in range(2)]
            mf = []
            for sl, qb in slots:
                for tb in range(2):
                    d = vr(Sq(t, sl, tb), 4)
                    mf.append((tb, d, Qf(qb, s_), (("0" if czero else vr(NEGM(qb), 4)) if s_ == 0 else d)))
            gs.append(Grp(rd, mf))
        return gs
    for gi in range(6):
        s0 = 2 * (gi >> 1); tb = gi & 1
        rd = [(V_RDK[j], w * 12288 + tb * 6144 + (s0 >> 1) * 128) for j in range(2)]
        mf = []
        for sl, qb in slots:
            d = vr(Sq(t, sl, tb), 4)
            mf += [(0, d, Qf(qb, s0), (("0" if czero else vr(NEGM(qb), 4)) if s0 == 0 else d)), (1, d, Qf(qb, s0 + 1), d)]
        gs.append(Grp(rd, mf))
    return gs
def qk_full(t): return [g for w in range(2) for g in qk_tile(t + w, w, [(q, q) for q in range(4)])]
def qk_half(t, czero=False, ws=(0, 1)):
    return [g for w in ws for g in qk_tile(t, w, [(2 * w + j, slot_q(t, j)) for j in range(2)], czero)]
def OV(qb, db): return (BY if qb == 2 else BZ) + 4 * (db // 3)
def pv_grp(t, db, first=False, va=V_RD):
    m = mode_of(t); mf = []
    for qb in (range(4) if m == "f" else [slot_q(t, 0), slot_q(t, 1)]):
        d = ar(O(qb, db), 4)
        if OPT["omv"] and t >= 61 and db % 3 == 2: d = " " + vr(OV(qb, db), 4)
        for w in range(2):
            b = P(t + w, qb) if m == "f" else P(t, 2 * w + (qb & 1))
            mf.append((w, d, vr(b, 4), "0" if (first and w == 0) else d))
    return Grp([(va, w * 12288 + db * 1024) for w in range(2)], mf)
def pv_seq(t, first=False):
    if OPT["po"] == 1 and mode_of(t) == "f":
        gs = []
        for d0 in range(0, 12, 2):
            for w in range(2):
                mf = [(e, ar(O(qb, d0 + e), 4), vr(P(t + w, qb), 4), ar(O(qb, d0 + e), 4)) for qb in range(4) for e in range(2)]
                gs.append(Grp([(V_RD, w * 12288 + (d0 + e) * 1024) for e in range(2)], mf))
        return gs
    if OPT["po"] == 2 and mode_of(t) == "f":
        gs = []
        for db in range(12):
            mf = [(w, ar(O(qb, db), 4), vr(P(t + w, qb), 4), ar(O(qb, db), 4)) for w in range(2) for qb in range(4)]
            gs.append(Grp([(V_RD, w * 12288 + db * 1024) for w in range(2)], mf))
        return gs
    return [pv_grp(t, db, first) for db in range(12)]
def pv_unchained(t, first=False):
    gs = []
    for w in range(2):
        for d0 in range(0, 12, 2):
            mf = []
            for j in range(2):
                qb = slot_q(t, j)
                for e in range(2):
                    d = ar(O(qb, d0 + e), 4)
                    mf.append((e, d, vr(P(t, 2 * w + j), 4), "0" if (first and w == 0) else d))
            gs.append(Grp([(V_RD, w * 12288 + (d0 + e) * 1024) for e in range(2)], mf))
    return gs
def rebase(gs, regs, delta):
    op = "v_add_u32" if delta >= 0 else "v_subrev_u32"
    gs[0].reb += [f"{op} v{r}, {abs(delta)}, v{r}" for r in regs]
    return gs
def rd_op(gi, j, g):
    f = 2 * gi + j
    return DS(("fr", f % NFS), f"ds_read_b128 {FR(f)}, v{g.rd[j][0]} offset:{g.rd[j][1]}")

def dma_tile(part, pos, peel=False):
    dm, go, tmp = (S_DMK, S_GOFFK, S_TK) if part == "k" else (S_DMV, S_GOFF, S_TV)
    l = [f"s_mov_b32 m0, s{dm}"]
    for j in range(3):
        l.append(VM(("d" + part, pos % 8), f"buffer_load_dwordx4 v{V_DMA}, s[{S_WS}:{S_WS+3}], s{go} offen offset:{j*1024}{SC1} lds"))
    if peel and pos < 7:
        l += [f"s_add_u32 s{go}, s{go}, {STAGE}", f"s_sub_u32 s{tmp}, s{go}, {8*STAGE}", f"s_min_u32 s{go}, s{go}, s{tmp}"]
    elif peel and pos == 7:
        l += [f"s_mov_b32 s{go}, {8*STAGE + (0 if part == 'k' else 12288)}"]
    else:
        l += [f"s_add_u32 s{go}, s{go}, {STAGE}"]
    if pos % 2 == 0: l += [f"s_add_u32 s{dm}, s{dm}, 12288"]
    else: l += [f"s_add_u32 s{dm}, s{dm}, {2*STAGE - 12288}", f"s_sub_u32 s{tmp}, s{dm}, {RING}", f"s_min_u32 s{dm}, s{dm}, s{tmp}"]
    return l
QOFF = [STAGE, 0, 2 * STAGE, STAGE]
def q_dma(lst):
    l = []
    for i in lst:
        a, b = divmod(i, 6)
        l += [f"s_mov_b32 s{S_QS}, {a*6144}"] * (1 if (b == 0 or i == lst[0]) else 0)
        l += [f"s_add_u32 m0, s{S_QL}, {QOFF[a] + b*1024}",
              VM(("q", a), f"buffer_load_dwordx4 v{VQD+b}, s[{S_Q}:{S_Q+3}], s{S_QS} offen{NTQ} lds")]
    return l
def q_frags(qb):
    l = []
    for s in range(6):
        for h in range(2):
            sp = s + 6 * h
            l.append(DS(("qf", qb), f"ds_read_b64 {Qf(qb,s,h)}, v{VQR[sp&3]} offset:{QOFF[qb] + (sp>>2)*128}"))
    return l
def with_nop(l):
    out = []
    for i, x in enumerate(l):
        out.append(x)
        if isinstance(x, str) and " m0," in x and i + 1 < len(l) and isinstance(l[i + 1], VM): out.append("s_nop 0")
    return out
def rd_step(kind):
    cur, regs = (S_RK, V_RDK) if kind == "q" else (S_RV, [V_RD])
    return [f"s_add_u32 s{S_TMP}, s{cur}, {2*STAGE}", f"s_sub_u32 s{S_RDELTA}, s{S_TMP}, {RING}",
            f"s_min_u32 s{S_TMP}, s{S_TMP}, s{S_RDELTA}", f"s_sub_u32 s{S_RDELTA}, s{S_TMP}, s{cur}", f"s_mov_b32 s{cur}, s{S_TMP}"] + \
           [f"v_add_u32 v{r}, s{S_RDELTA}, v{r}" for r in regs]

def k_ld(h, buf, rs, tag, scal_first=True):
    sc = [VM(tag, f"buffer_load_dwordx2 v[{rs+2*i}:{rs+2*i+1}], v{V_KSC}, s[{srd_}:{srd_+3}], s{S_PKS} offen offset:{192*h}")
          for i, srd_ in enumerate((S_KS, S_KZ))]
    l = []
    for j in range(4):
        so = S_PK0 if j < 2 else S_PK1
        l.append(VM(tag, f"buffer_load_dwordx4 v[{buf+4*j}:{buf+4*j+3}], v{V_KLD}, s[{S_QK}:{S_QK+3}], s{so} offen offset:{(j&1)*1536+384*h}{NTKV}"))
    return sc + l if scal_first else l + sc
def v_ld(h, buf, rs, tag, scal_first=True):
    sc = [VM(tag, f"buffer_load_dwordx2 v[{rs+2*i}:{rs+2*i+1}], off, s[{srd_}:{srd_+3}], s{S_PVS} offset:{8*h}")
          for i, srd_ in enumerate((S_VS, S_VZ))]
    l = []
    for r in range(4):
        so = S_PV0 if h == 0 else S_PV1
        l.append(VM(tag, f"buffer_load_dwordx4 v[{buf+4*r}:{buf+4*r+3}], v{V_VLD}, s[{S_QV}:{S_QV+3}], s{so} offen offset:{r*768}{NTKV}"))
    return sc + l if scal_first else l + sc
def k_cv(h, buf, rs, out):
    l = []
    s0, s1, z0, z1 = V_CT, V_CT + 1, V_CT + 2, V_CT + 3
    for i in range(2):
        l += [f"v_lshlrev_b32 v{s0}, 16, v{rs+i}", f"v_and_b32 v{s1}, s{S_MASK}, v{rs+i}",
              f"v_lshlrev_b32 v{z0}, 16, v{rs+2+i}", f"v_and_b32 v{z1}, s{S_MASK}, v{rs+2+i}",
              f"v_mul_f32 v{s0}, s{S_CS}, v{s0}", f"v_mul_f32 v{s1}, s{S_CS}, v{s1}",
              f"v_mul_f32_e64 v{z0}, -v{z0}, v{s0}", f"v_mul_f32_e64 v{z1}, -v{z1}, v{s1}"]
        if OPT.get("nz", 0) & 1: l[-2:] = [f"v_mov_b32 v{z0}, 0", f"v_mov_b32 v{z1}, 0"]
        for j in range(4):
            a = buf + 4 * j + 2 * i; b = a + 1
            l += [f"v_cvt_f32_i32 v{a}, v{a}", f"v_cvt_f32_i32 v{b}, v{b}",
                  f"v_fma_f32 v{a}, v{a}, v{s0}, v{z0}", f"v_fma_f32 v{b}, v{b}, v{s1}, v{z1}",
                  f"v_cvt_pk_bf16_f32 v{out+4*j+2*h+i}, v{a}, v{b}"]
    return l
def k_st(j, out, tag="kst", STF=STF):
    va = V_KST; g = []
    if j:
        va = V_KA + (j & 1); g.append(f"v_xor_b32 v{va}, {16*j}, v{V_KST}")
    g.append(VM(tag, f"buffer_store_dwordx4 v[{out+4*j}:{out+4*j+3}], v{va}, s[{S_WS}:{S_WS+3}], s{S_PK0} offen offset:{j*768}{STF}"))
    return g
def v_cv(h, buf, rs, out):
    l = []
    s0, s1, z0, z1 = V_CT, V_CT + 1, V_CT + 2, V_CT + 3
    for i in range(2):
        l += [f"v_lshlrev_b32 v{s0}, 16, v{rs+i}", f"v_and_b32 v{s1}, s{S_MASK}, v{rs+i}",
              f"v_lshlrev_b32 v{z0}, 16, v{rs+2+i}", f"v_and_b32 v{z1}, s{S_MASK}, v{rs+2+i}",
              f"v_mul_f32_e64 v{z0}, -v{z0}, v{s0}", f"v_mul_f32_e64 v{z1}, -v{z1}, v{s1}"]
        if OPT.get("nz", 0) & 2: l[-2:] = [f"v_mov_b32 v{z0}, 0", f"v_mov_b32 v{z1}, 0"]
        for e in range(4):
            a = buf + 4 * (2 * i) + e; b = buf + 4 * (2 * i + 1) + e
            l += [f"v_cvt_f32_i32 v{a}, v{a}", f"v_cvt_f32_i32 v{b}, v{b}",
                  f"v_fma_f32 v{a}, v{a}, v{s0}, v{z0}", f"v_fma_f32 v{b}, v{b}, v{s1}, v{z1}"]
    for e, i in [(0, 0), (1, 0), (0, 1), (1, 1), (2, 0), (2, 1), (3, 0), (3, 1)]:
        l.append(f"v_cvt_pk_bf16_f32 v{out+4*e+2*h+i}, v{buf+8*i+e}, v{buf+8*i+4+e}")
    return l
def v_st(e, out, tag="vst", STF=STF):
    so = S_PV0 if e < 2 else S_PV2
    return [VM(tag, f"buffer_store_dwordx4 v[{out+4*e}:{out+4*e+3}], v{V_VST}, s[{S_WS}:{S_WS+3}], s{so} offen offset:{(e&1)*3072}{STF}")]
def k_adv():
    return [f"s_add_u32 s{S_PK0}, s{S_PK0}, {8*STAGE}", f"s_add_u32 s{S_PK1}, s{S_PK1}, {8*STAGE}", f"s_add_u32 s{S_PKS}, s{S_PKS}, {4*384}"]
def v_adv():
    return [f"s_add_u32 s{r}, s{r}, {8*STAGE}" for r in (S_PV0, S_PV1, S_PV2)] + [f"s_add_u32 s{S_PVS}, s{S_PVS}, {8*64}"]
HT = {"ka": (k_ld, k_cv, 0, BX, V_RS[0], BX), "kb": (k_ld, k_cv, 1, BY, V_RS[1], BX),
      "va": (v_ld, v_cv, 0, BZ, V_RS[0], BZ), "vb": (v_ld, v_cv, 1, BY, V_RS[1], BZ)}
def flag_post(first=False):
    return [f"v_add_u32 v{V_FVAL}, 1, v{V_FVAL}"] + [
            VM("flag", f"buffer_store_dword v{V_FVAL}, v{V_FLAG}, s[{S_FLG}:{S_FLG+3}], 0 offen")] * (OPT["l2"] == 1 or (OPT["l2"] == 2 and first)) + [
            VM("flag", f"buffer_store_dword v{V_FVAL}, v{V_FLAG}, s[{S_FLG}:{S_FLG+3}], 0 offen offset:32 sc1")]
def poll_addr():
    return [f"v_bfe_u32 v{V_POLL+1}, v{V_DMA}, 4, 6", f"v_lshlrev_b32 v{V_POLL+1}, 2, v{V_POLL+1}"]
def poll_load():
    return poll_addr() + [VM("poll", f"buffer_load_dword v{V_POLL}, v{V_POLL+1}, s[{S_FLG}:{S_FLG+3}], s{S_FOFF} offen sc1")]
def poll_test():
    return [f"v_subrev_u32 v{V_POLL}, s{S_NEED}, v{V_POLL}", f"v_cmp_lt_u32 vcc, 15, v{V_POLL}", "s_nop 0", f"s_and_b32 s{S_TP}, vcc_lo, 0xff"]
def smem_flags():
    return [f"s_buffer_load_dwordx8 s[{S_PT}:{S_PT+7}], s[{S_FLG}:{S_FLG+3}], s{S_FOFF} glc"]
def smem_reduce():
    return [f"s_sub_u32 s{S_PT+i}, s{S_PT+i}, s{S_NEED}" for i in range(8)] + [f"s_max_u32 s{S_PT}, s{S_PT}, s{S_PT+i}" for i in range(1, 8)]
def smem_test():
    return smem_flags() + ["s_waitcnt lgkmcnt(0)"] + smem_reduce() + [f"s_cmp_lt_u32 s{S_PT}, 16"]
def poll_slow(site):
    l = [f"L_pollslow{site}:"] + ([f"s_add_u32 s{S_TAG+1}, s{S_TAG+1}, {1 << (6 * site)}"] if OPT["stamp"] else [])
    l += [f"s_mov_b32 s{S_TP}, {60 if site == 0 else 200}", f"L_pollsm{site}:"] + smem_test() + [f"s_cbranch_scc1 L_pollok{site}",
          f"s_sub_u32 s{S_TP}, s{S_TP}, 1", f"s_cbranch_scc1 L_pollvec{site}", "s_sleep 1", f"s_branch L_pollsm{site}"]
    l += [f"L_pollvec{site}:"] + poll_addr() + [
            f"s_sub_u32 s{S_BUDGET}, s{S_BUDGET}, 1",
            f"s_cbranch_scc1 L_pollgiveup{site}",
            "s_sleep 2",
            f"buffer_load_dword v{V_POLL}, v{V_POLL+1}, s[{S_FLG}:{S_FLG+3}], s{S_FOFF} offen sc1",
            "s_waitcnt vmcnt(0)"]
    if site == 0 and OPT["l2"]:
        l += [f"s_cmp_lg_u32 s{S_FOFF}, 0", "s_cbranch_scc1 L_nomix",
              f"v_xor_b32 v{V_POLL+1}, s{S_NEED}, v{V_POLL}", f"v_lshrrev_b32 v{V_POLL+1}, 5, v{V_POLL+1}", f"v_add_u32 v{V_POLL+1}, -1, v{V_POLL+1}",
              f"v_cmp_gt_u32 vcc, 31, v{V_POLL+1}", "s_nop 1", f"s_and_b32 s{S_TP}, vcc_lo, 0xff00", "s_cbranch_scc0 L_nomix"]
        l += fin([x for j in range(4) for x in k_st(j, BX)] + [x for e in range(4) for x in v_st(e, 112)])
        l += ["s_waitcnt vmcnt(0)", "s_barrier", f"s_and_b32 s{S_NEED}, s{S_NEED}, 0xfffffc00", f"s_add_u32 s{S_NEED}, s{S_NEED}, {16 << 5}",
              f"v_mov_b32 v{V_FVAL}, s{S_NEED}", f"s_add_u32 s{S_NEED}, s{S_NEED}, 1", f"s_mov_b32 s{S_FOFF}, 32"] + fin(flag_post()) + ["s_branch L_pollvec0", "L_nomix:"]
    l += poll_test() + [
            f"s_cbranch_scc1 L_pollvec{site}",
            f"s_branch L_pollok{site}",
            f"L_pollgiveup{site}:",
            f"s_mov_b32 s{S_BUDGET}, 0",
            f"s_branch L_pollok{site}"]
    return l
def tag_load():
    return [VM("tag", f"buffer_load_dword v{V_FVAL}, off, s[{S_DBG}:{S_DBG+3}], s{S_HOFF} sc1")]
def tag_check():
    return [f"s_cmp_lg_u32 s{S_WAVE}, 0", "s_cbranch_scc1 L_tagdone",
            f"v_readfirstlane_b32 s{S_TAG}, v{V_FVAL}", f"s_mov_b32 s{S_RET}, 100",
            "s_waitcnt lgkmcnt(0)", f"s_and_b32 s{S_OWN}, s{S_OWN}, 0xfffffc00",
            "L_tagretry:", f"s_cmp_eq_u32 s{S_TAG}, s{S_OWN}", f"s_cselect_b32 s{S_TAG}, 0, s{S_TAG}", f"s_cmp_lg_u32 s{S_TAG}, 0", "s_cbranch_scc1 L_tagok",
            f"s_sub_u32 s{S_RET}, s{S_RET}, 1", "s_cbranch_scc1 L_tagslow", "s_sleep 4",
            f"s_buffer_load_dword s{S_TAG}, s[{S_DBG}:{S_DBG+3}], s{S_HOFF} glc", "s_waitcnt lgkmcnt(0)", "s_branch L_tagretry",
            "L_tagok:", f"s_add_u32 s{S_TAG}, s{S_TAG}, s{S_XCC}", f"v_mov_b32 v{V_FVAL}, s{S_TAG}", f"v_mov_b32 v{V_T}, {RING}", DS("w", f"ds_write_b32 v{V_T}, v{V_FVAL}"), "L_tagdone:"]
def tag_get():
    return [f"v_mov_b32 v{V_T}, {RING}", DS("tg", f"ds_read_b32 v{V_T+1}, v{V_T}")]
def tag_use():
    return [f"v_readfirstlane_b32 s{S_NEED}, v{V_T+1}", f"s_add_u32 s{S_NEED}, s{S_NEED}, 1"]
def tag_slow():
    return ["L_tagslow:",
            f"s_sub_u32 s{S_BUDGET}, s{S_BUDGET}, 1",
            "s_cbranch_scc1 L_taggiveup",
            "s_sleep 2",
            f"buffer_load_dword v{V_FVAL}, off, s[{S_DBG}:{S_DBG+3}], s{S_HOFF} sc1",
            "s_waitcnt vmcnt(0)",
            f"v_readfirstlane_b32 s{S_TAG}, v{V_FVAL}", "s_nop 0", f"s_cmp_eq_u32 s{S_TAG}, s{S_OWN}", "s_cbranch_scc1 L_tagslow",
            f"s_cmp_eq_u32 s{S_TAG}, 0", "s_cbranch_scc1 L_tagslow",
            "s_branch L_tagok",
            "L_taggiveup:",
            f"s_mov_b32 s{S_BUDGET}, 0",
            "s_branch L_tagok"]

def text_of(x):
    return "s_waitcnt" if isinstance(x, (W, LG)) else (x.text if isinstance(x, (VM, DS)) else x)
def kind_of(x):
    t = text_of(x)
    if t.endswith(":"): return "label"
    if t.startswith("v_"): return "valu"
    if t.startswith("ds_"): return "ds"
    if t.startswith("buffer_store"): return "store"
    if t.startswith("buffer_"): return "load"
    return "salu"
def cost_of(x):
    k = kind_of(x); t = text_of(x)
    if k == "label": return 0
    if k == "store": return 20 if "x4" in t else (OPT["x2c"] if "x2" in t else 8)
    if k == "load": return OPT["ldc"]
    if t.startswith("ds_write"): return 16 if ("b128" in t or "write2" in t) else 8
    if t.startswith(("v_exp", "v_rcp")): return 8
    if t.startswith("v_mfma"): return 32
    if t.startswith("s_nop"): return 4 * (int(t.split()[1]) + 1)
    if t.startswith("s_cbranch") or t.startswith("s_branch"): return 12
    if t.startswith("s_barrier"): return 8
    return 4
def gap_time(ops):
    t = 4; prev = None
    for o in ops:
        if o is None: continue
        k = kind_of(o)
        if k == "label": continue
        if k == "salu": t += cost_of(o)
        else: t = max(t, 8) + cost_of(o) + (8 if (k != "valu" and prev == "valu") else 0)
        prev = k
    return t

class Stream:
    def __init__(self, ops, first, last, maxper=99, dense=0):
        self.nb = {}; self.dl = []; l = []
        for o in ops:
            if isinstance(o, tuple):
                if o[0] == "nb": self.nb[len(l)] = o[1]
                else: self.dl.append((len(l), o[1]))
            else: l.append(o)
        ops = l
        self.ops = list(ops); self.first = first; self.last = last; self.maxper = maxper; self.dense = dense
        self.total = sum(cost_of(o) for o in self.ops); self.done = 0; self.i = 0
        self.gate = {}; self.i0 = 0

def pack(NG, A, B, C, T, streams, novm=(), nosalu=(), vmgap=4):
    out = []; over = 0; lastvm = -99
    for g in range(NG):
        a, b, c, tl = list(A[g]), list(B[g]), list(C[g]), list(T[g])
        cnt = {}; inC = set(); blocked = set()
        while True:
            best = None; bl = None; bsec = None
            for st in streams:
                if st.i >= len(st.ops) or g < st.first: continue
                if g < st.nb.get(st.i, 0): continue
                force = g >= st.last or any(st.i < n and g >= dg for n, dg in st.dl)
                if (cnt.get(id(st), 0) >= st.maxper or id(st) in blocked) and not force: continue
                o = st.ops[st.i]; k = kind_of(o); cst = cost_of(o)
                if k == "salu" and g in nosalu:
                    assert not force, (g, text_of(o))
                    continue
                if k in ("load", "store") and (g in novm or g - lastvm < vmgap) and not force: continue
                if k in ("load", "store", "ds"):
                    sec = "b" if id(st) not in inC and id(st) not in blocked else "c"
                    if sec == "c" and not force: continue
                elif k == "salu" and not a and cnt.get(id(st), 0) == 0:
                    sec = "a"
                else: sec = "c"
                tgt = st.total * (g - st.first + 1) / (st.last - st.first + 1)
                lag = tgt - st.done
                if not force:
                    if lag < cst / 2 - OPT["ahead"] and cst: continue
                    trial = (a + [o] if sec == "a" else a) + (b + [o] if sec == "b" else b) + (c + [o] if sec == "c" else c) + tl
                    gt = gap_time(trial)
                    if gt > 16:
                        if g % 2 == 0: continue
                        big = k == "store" or text_of(o).startswith(("ds_write_b128", "ds_write2"))
                        lim = max(20, st.dense) if lag > 24 else 16
                        if big and not (a + b + c + tl): lim = 32
                        if gt > lim: continue
                key = (force, k in ("load", "store"), lag / max(1, (st.last - g + 1)) ** 0.5)
                if best is None or key > bl: best = st; bl = key; bsec = sec
            if best is None: break
            o = best.ops[best.i]
            if bsec == "a": a.append(o)
            elif bsec == "b":
                b.append(o)
            else: c.append(o)
            if bsec == "c" or bsec == "b" and kind_of(o) != "ds" and False: inC.add(id(best))
            if bsec == "c": inC.add(id(best))
            if " m0," in text_of(o): blocked.add(id(best))
            if kind_of(o) in ("load", "store"): lastvm = g
            best.i += 1; best.done += cost_of(o); cnt[id(best)] = cnt.get(id(best), 0) + 1
        ops = a + b + c + tl
        tt = gap_time(ops)
        if tt > 16: over += tt - 16
        out.append(ops)
    for st in streams: assert st.i == len(st.ops)
    return out, over

def pack_dense(NG, A, B, C, T, streams, novm=(), nosalu=(), vmgap=2):
    jobs = []
    for st in streams:
        r = st.first; rel = []
        for i in range(len(st.ops)):
            r = max(r, st.nb.get(i, 0)); rel.append(r)
        for i, o in enumerate(st.ops):
            d = min([st.last] + [dg for n, dg in st.dl if i < n])
            k = kind_of(o)
            jobs.append([rel[i], d, cost_of(o) + (OPT["dx"] if k in ("store", "load") else 0) - (2 if k == "salu" else 0)])
    for g in range(NG): jobs.append([g, g, max(0, gap_time(A[g] + B[g] + C[g] + T[g]) - 8)])
    level = [None] * NG
    while jobs:
        free = [g for g in range(NG) if level[g] is None]
        pts_r = sorted({j[0] for j in jobs}); pts_d = sorted({j[1] for j in jobs})
        best = None
        for a_ in pts_r:
            ws = sorted((j[1], j[2]) for j in jobs if j[0] >= a_)
            w = 0; i = 0
            for b_ in pts_d:
                if b_ < a_: continue
                while i < len(ws) and ws[i][0] <= b_: w += ws[i][1]; i += 1
                n = sum(1 for g in free if a_ <= g <= b_)
                if n and (best is None or w / n > best[0]): best = (w / n, a_, b_)
        dn, a_, b_ = best
        if dn <= 8: break
        for g in free:
            if a_ <= g <= b_: level[g] = dn
        jobs = [j for j in jobs if not (j[0] >= a_ and j[1] <= b_)]
    extra = [2 * (level[g] - 8) if (level[g] is not None and g % 2) else 0 for g in range(NG)]
    return pack_dense1(NG, A, B, C, T, streams, novm, nosalu, vmgap, extra)
def pack_dense1(NG, A, B, C, T, streams, novm, nosalu, vmgap, extra):
    out = []; over = 0; lastvm = -99
    fixed = [gap_time(A[g] + B[g] + C[g] + T[g]) - (8 if not (B[g] + C[g] + T[g]) else 8) for g in range(NG)]
    for g in range(NG):
        a, b, c, tl = list(A[g]), list(B[g]), list(C[g]), list(T[g])
        carry = (carry if g else 0) + extra[g]
        bud = 16 + (carry if g % 2 else 0)
        blocked = set(); inC = set()
        for st in streams: st.i0 = st.i
        while True:
            best = None; bl = None
            cur = gap_time(a + b + c + tl)
            for st in streams:
                if st.i >= len(st.ops) or g < st.first or g < st.nb.get(st.i, 0): continue
                if st.i in st.gate:
                    o_, j_ = st.gate[st.i]
                    if (o_.i0 if (kind_of(st.ops[st.i]) == "store" and g < NG - 1) else o_.i) <= j_: continue
                    if o_.i0 <= j_: inC.add(id(st))
                force = g >= st.last or any(st.i < n and g >= dg for n, dg in st.dl)
                if id(st) in blocked and not force: continue
                o = st.ops[st.i]; k = kind_of(o)
                if k == "salu" and g in nosalu:
                    assert not force
                    continue
                mem = k in ("load", "store", "ds")
                if k in ("load", "store") and (g in novm or g - lastvm < vmgap) and not force: continue
                sec = "b" if (mem and id(st) not in inC) else ("a" if (k == "salu" and not a and id(st) not in inC and id(st) not in blocked and not any(x is st for x in ())) else "c")
                if sec == "a" and any(id(st) == y for y in inC): sec = "c"
                if mem and sec == "c" and not force: continue
                trial = gap_time((a + [o] if sec == "a" else a) + (b + [o] if sec == "b" else b) + (c + [o] if sec == "c" else c) + tl)
                if not force and trial > bud and not (cur < 16 and trial <= bud + 12 and g % 2): continue
                tgt = st.total * (g - st.first + 1) / (st.last - st.first + 1)
                n_, dd = min([(len(st.ops), st.last)] + [(n, dg) for n, dg in st.dl if st.i < n], key=lambda x: x[1])
                need = sum(cost_of(x) for x in st.ops[st.i:n_]) / max(1, dd - g + 1)
                key = (force, mem, need)
                if best is None or key > bl: best = st; bl = key; bsec = sec
            if best is None: break
            o = best.ops[best.i]
            {"a": a, "b": b, "c": c}[bsec].append(o)
            if bsec == "c" or (bsec == "b"):
                if bsec == "c": inC.add(id(best))
                else: usedb = True
            if bsec in ("a", "b"): best._g = g
            if " m0," in text_of(o): blocked.add(id(best))
            if kind_of(o) in ("load", "store"): lastvm = g
            best.i += 1; best.done += cost_of(o)
            if bsec == "b" and not a: a.append(None)
        a = [x for x in a if x is not None]
        ops = a + b + c + tl
        tt = gap_time(ops)
        carry = max(0, carry - max(0, tt - 16)) if extra[g] or g % 2 == 0 else 0
        if tt > 16: over += tt - 16
        out.append(ops)
    for st in streams: assert st.i == len(st.ops)
    return out, over

POLLSITES = []
def gen_seg(name, groups, nxt, sm=(), bars=(), tasks=(), dma=(), extra=(), endops=(), fixed=(), peel=True, vmgap=None):
    starts = []; n = 0
    for g in groups: starts.append(n); n += len(g.mf)
    NG = n
    A = [[] for _ in range(NG)]; B = [[] for _ in range(NG)]; C = [[] for _ in range(NG)]; T = [[] for _ in range(NG)]
    streams = []; novm = set(range(0, NG, 2)); nosalu = set()
    allg = list(groups) + list(nxt)
    assert len(groups) % 3 == 0
    for i, g in enumerate(groups):
        g0 = starts[i]; ln = len(g.mf)
        if i + 2 < len(allg):
            t = allg[i + 2]
            if not (OPT["ab"] & 4 and name.startswith("k") and i % 2): B[g0].append(rd_op(i + 2, 0, t)); B[g0 + ln // 2].append(rd_op(i + 2, 1, t))
            if t.reb:
                assert g0 > 0
                C[g0 - 1] += t.reb
        if i + 1 < len(allg):
            A[g0 + ln - 1].append(LG(("fr", (2 * i + 2) % NFS), ("fr", (2 * i + 3) % NFS)))
    for ops, f, l in sm: streams.append(Stream(ops, f, l))
    streams += list(extra)
    if endops:
        A[NG-4] += endops[:1]; A[NG-2] += [A[NG-1][0]] + list(endops[1:-1]); A[NG-1] = []; T[NG-1] = list(endops[-1:]); nosalu |= {NG-2, NG-1}
    for grp in dma:
        dl = []
        for part, pos in grp[:-2]: dl += dma_tile(part, pos, peel)
        k = max(i for i, x in enumerate(dl) if isinstance(x, VM)) + 1
        lim = NG - 3 if endops else NG - 1
        if grp[-1] + 1 > lim: k = len(dl)
        streams.append(Stream(dl[:k], grp[-2], grp[-1], maxper=2))
        if dl[k:]: streams.append(Stream(dl[k:], grp[-1] + 1, min(lim, grp[-1] + 12), maxper=2))
    bars = [(g, list(tg)) for g, tg in bars]
    for t in tasks:
        k_ = t[0]
        if k_ == "cv":
            _, cv, h, buf, rs, outb = HT[t[1]]
            ops = cv(h, buf, rs, outb)[t[2]:t[3]]
            if t[2] == 0: ops = [W(t[1])] + ops
            streams.append(Stream(ops, t[4], t[5]))
        elif k_ in ("kst", "vst"):
            grp = k_st(t[1], BX) if k_ == "kst" else v_st(t[1], BZ)
            g = t[2]; assert g % 2 == 1 and not B[g] and not A[g], (name, g)
            B[g].append(grp[-1]); novm |= set(range(g - OPT["sb"], g + OPT["sa"] + 1))
            if grp[:-1]: streams.append(Stream(grp[:-1], max(0, g - 5), g - 1))
        elif k_ in ("ld", "ldn"):
            ld, _, h, buf, rs, _o = HT[t[1]]
            adv = {"ka": k_adv(), "va": v_adv()}.get(t[1], []) if k_ == "ld" else []
            ops = ld(h, buf, rs, t[1])
            if len(t) > 4: ops = ops[2:] if t[4] == "raw" else ops[:2]
            streams.append(Stream(adv + ops, t[2], t[3], maxper=1))
        elif k_ == "post":
            bi = t[2] if len(t) > 2 else -1
            bars[bi][1].append(t[1])
            streams.append(Stream(flag_post(), bars[bi][0] + 1, min(NG - 3, bars[bi][0] + 14), maxper=1))
        elif k_ == "pf":
            streams.append(Stream([VM("pf", f"buffer_load_dword v15, v{V_DMA}, s[{S_DBG}:{S_DBG+3}], s{S_HOFF} offen")], t[1], t[2]))
        elif k_ == "pollld": streams.append(Stream(poll_load(), t[1], t[2], maxper=1))
        elif k_ == "pollchk":
            ps = len(POLLSITES); POLLSITES.append(ps)
            g = t[1]; assert g % 4 == 1
            pt = poll_test()
            A[g] += [W("poll")]; T[g] += pt[:2]; novm |= {g, g + 4}
            A[g + 3] += [pt[3]]; A[g + 4] += [f"s_cbranch_scc1 L_pollslow{ps}", f"L_pollok{ps}:"]; nosalu |= {g + 3, g + 4}
            A[g + 5] += [f"s_add_u32 s{S_NEED}, s{S_NEED}, 1"]
        elif k_ == "spollld": A[t[1]] += smem_flags()
        elif k_ == "spollchk":
            ps = len(POLLSITES); POLLSITES.append(ps)
            A[t[1]] += ["s_waitcnt lgkmcnt(0)"]
            streams.append(Stream(smem_reduce(), t[1] + 1, t[2] - 1, maxper=3))
            A[t[2]] += [f"s_cmp_ge_u32 s{S_PT}, 16", f"s_cbranch_scc1 L_pollslow{ps}", f"L_pollok{ps}:", f"s_add_u32 s{S_NEED}, s{S_NEED}, 1"]
        elif k_ == "step": streams.append(Stream(rd_step(t[1]), t[2], t[3], maxper=1))
        elif k_ == "q": streams.append(Stream(q_dma(t[1]), t[2], t[3], maxper=2))
        else: raise Exception(k_)
    for g, tags in bars:
        i = [j for j in range(len(groups)) if starts[j] + len(groups[j].mf) - 1 == g]
        assert i, (name, g)
        if len(groups[i[0]].mf) == 8:
            A[g - 2] += A[g]; A[g] = []
            if tags: A[g - 1] += [W(*tags)]
        elif tags: A[g - 2] += [W(*tags)]
        A[g] += ["s_barrier"]; novm |= {g}
    for g, sec, ops in fixed: {"A": A, "B": B, "C": C, "T": T}[sec][g] += ops
    if endops:
        for st_ in streams: st_.last = min(st_.last, NG - 2)
    m0w = sorted((st.first, st.last) for st in streams if any(" m0," in text_of(o) for o in st.ops))
    assert all(m0w[i][1] < m0w[i + 1][0] for i in range(len(m0w) - 1)), (name, m0w)
    if name in str(OPT["dense"]).split(","): fill, over = pack_dense(NG, A, B, C, T, streams, novm, nosalu, vmgap or OPT["dvg"])
    else: fill, over = pack(NG, A, B, C, T, streams, novm, nosalu, vmgap or OPT["vmgap"])
    if over: print(f"seg {name}: over budget by {over} cycles", file=sys.stderr)
    out = istamp(name)
    g = 0
    for i, gr in enumerate(groups):
        for j, d, b, c in gr.mf:
            if (OPT["pvs"] & 1 and d[0] in "a ") or (OPT["pvs"] & 2 and d.startswith("v")): out.append(f"{MF} {d}, {b}, {FR(2*i+j)}, {c}")
            else: out.append(f"{MF} {d}, {FR(2*i+j)}, {b}, {c}")
            out += fill[g]; g += 1
    return with_nop(out)

GBAR = 79
def seg_groups(it):
    return qk_full(it + 1) if it % 2 else pv_seq(it - 2)
def gen_iter(it, tasks=(), dma=(), name=None, endops=(), peel=False, nxt=None, extra=(), bars=None, groups=None, sm=None, step=True):
    q = it % 2
    smB = softmax_part(it, 1); smA = softmax_part(it + 1, 0)
    if sm is None: sm = ([(smB + [("dl", 57), ("nb", 47)] + smA, 0, 95)] if OPT["flex"] else [(smB, 0, 50), (smA, 52, 95)]) if q else [(smB + smA, 0, 95)]
    need = [("dv", (it - 1) % 8), ("dv", it % 8)] if q else [("dk", (it + 2) % 8), ("dk", (it + 3) % 8)]
    tasks = list(tasks) + ([("step", "p" if q else "q", 30, GBAR - 3)] if step else [])
    return gen_seg(name or f"i{it}", groups or seg_groups(it), nxt if nxt is not None else seg_groups(it + 1)[:2], sm,
                   bars if bars is not None else [(GBAR, need)], tasks, dma, extra, endops, peel=peel)

K_ = lambda *j: tuple(("k", x) for x in j)
V_ = lambda *j: tuple(("v", x) for x in j)
def steady(k):
    ckv, ckk = OPT["ckv"], OPT["ckk"]
    plv, plk = OPT["plv"], OPT["plk"]
    if OPT["bal"]:
        c = [int(x) for x in str(OPT["cut"]).split(",")]
        a1, a2, b1, b2, v1, v2, w1 = c
        return {
            5: ([("cv", "ka", 0, a1, 0, 95), ("pollchk", 1), ("vst", 0, 9), ("vst", 1, 17), ("vst", 2, 25), ("vst", 3, 33), ("post", "vst")], [K_(0, 1) + (41, 74)]) if ckk == 1 else
               ([("cv", "ka", 0, a1, 0, 95), ("pollchk", ckk), ("vst", 0, 1), ("vst", 1, 9), ("vst", 2, 17), ("vst", 3, 25), ("post", "vst")], [K_(0, 1) + (ckk + 7, 92)]),
            6: ([("cv", "ka", a1, a2, 0, 95), ("ld", "kb", 0, 44)], [K_(2, 3) + (0, 90)]),
            7: ([("cv", "ka", a2, 99, 0, 60), ("cv", "kb", 0, b1, 61, 95), ("ld", "va", 11, 70), ("pollld", plv, plv + 8)], [K_(4, 5) + (11, 92)]),
            0: ([("cv", "kb", b1, b2, 0, 95), ("pollchk", ckv)], [V_(0, 1) + (ckv + 7, 74)]),
            1: ([("cv", "kb", b2, 99, 0, 30), ("cv", "va", 0, v1, 31, 95), ("ld", "vb", 32, 80)], [V_(2, 3) + (0, GBAR - 5)]),
            2: ([("cv", "va", v1, v2, 0, 95), ("kst", 0, 1), ("kst", 1, 9), ("kst", 2, 17), ("kst", 3, 25), ("post", "kst")], [K_(6, 7) + (33, 74)]),
            3: ([("cv", "va", v2, 99, 0, 50), ("cv", "vb", 0, w1, 51, 95), ("ld", "ka", 0, 44)], [V_(4, 5) + (0, 90)]),
            4: ([("cv", "vb", w1, 99, 0, 95), ("pollld", plk, plk + 16)] + ([("pf", 80, 92)] if OPT["pf2"] else []), [V_(6, 7) + (0, GBAR - 5)]),
        }[k]
    return {
        1: ([("cv", "va", 0, 22, 0, 95), ("ld", "vb", 0, 44)], [V_(2, 3) + (0, GBAR - 5)]),
        2: ([("cv", "va", 22, 99, 0, 95), ("kst", 0, 1), ("kst", 1, 9), ("kst", 2, 17), ("kst", 3, 25), ("post", "kst")], [K_(6, 7) + (33, 74)]),
        3: ([("cv", "vb", 0, 22, 0, 95), ("ld", "ka", 0, 44)], [V_(4, 5) + (0, GBAR - 5)]),
        4: ([("cv", "vb", 22, 99, 0, 95), ("pollld", plk, plk + 16)] + ([("pf", 80, 92)] if OPT["pf2"] else []), [V_(6, 7) + (0, GBAR - 5)]),
        5: ([("cv", "ka", 0, 16, 0, 95), ("pollchk", 1), ("vst", 0, 9), ("vst", 1, 17), ("vst", 2, 25), ("vst", 3, 33), ("post", "vst")], [K_(0, 1) + (41, 74)]),
        6: ([("cv", "ka", 16, 99, 0, 95), ("ld", "kb", 0, 30)], [K_(2, 3) + (31, 74)]),
        7: ([("cv", "kb", 0, 24, 40, 95), ("ld", "va", 11, 40), ("pollld", plv, plv + 8)], [K_(4, 5) + (41, 90)]),
        0: ([("cv", "kb", 24, 99, 0, 95), ("pollchk", ckv)], [V_(0, 1) + (ckv + 7, ckv + 44)]),
    }[k]

GA = V_RS[0]; TA = V_RS[0] + 1; BA = V_RS[0] + 2
RL = [V_CT, V_CT + 4, NEGM(0), NEGM(1)]
S_EO = 24
def epi_addr():
    return [f"v_bfe_u32 v{TA}, v{V_DMA}, 8, 2", f"v_mul_u32_u24 v{GA}, 1536, v{TA}", f"v_lshlrev_b32 v{BA}, 4, v{TA}",
            f"v_bfe_u32 v{TA}, v{V_DMA}, 4, 4", f"v_lshl_add_u32 v{GA}, v{TA}, 3, v{GA}", f"v_mov_b32 v{TA}, 1.0",
            f"s_lshl_b32 s{S_EO}, s{S_QB}, 2", f"s_add_u32 s{S_EO}, s{S_EO}, s{S_WAVE}", f"s_mul_i32 s{S_EO}, s{S_EO}, {STAGE}",
            f"s_add_u32 s{S_QL}, s{S_EO}, 6144", f"s_add_u32 s{S_QS}, s{S_EO}, 12288", f"s_add_u32 s{S_TAG}, s{S_EO}, 18432"]
S_EQ = [S_EO, S_QL, S_QS, S_TAG]
def epi_l(qs, gap=("s_nop 7", "s_nop 1")):
    fl = [f"v_mfma_f32_16x16x4_f32 v[{RL[q]}:{RL[q]+3}], v{V_L[q]}, v{TA}, 0" for q in qs] + list(gap)
    return fl + [f"v_rcp_f32 v{RL[q]+r}, v{RL[q]+r}" for q in qs for r in range(4)]
class Epi:
    def __init__(self, temps): self.temps = temps; self.n = 0; self.pend = []
    def flush(self, k=99):
        p = self.pend[:k]; self.pend = self.pend[k:]
        return p
    def chunk(self, qb, n, pk=False, inv=False):
        p = []
        ob = self.temps[self.n % len(self.temps)]; self.n += 1
        for r in range(4):
            o = ob + 4 * r
            if inv:
                p += [f"v_mul_f32 v{o+e}, v{OV(qb,3*e+n)+r}, v{RL[qb]+r}" for e in range(4)]
                p += [f"v_cvt_pk_bf16_f32 v{o+i}, v{o+2*i}, v{o+2*i+1}" for i in range(2)] + self.flush(1)
                self.pend.append(VM("out", f"buffer_store_dwordx2 v[{o}:{o+1}], v{GA}, s[{S_OUT}:{S_OUT+3}], s{S_EQ[qb]} offen offset:{n*128 + r*384}{OF}"))
                continue
            p += [f"v_accvgpr_read_b32 v{o+e}, a{O(qb,3*e+n)+r}" for e in range(4)]
            rl = RL[qb] + r
            if pk: p += [f"v_pk_mul_f32 v[{o+2*i}:{o+2*i+1}], v[{o+2*i}:{o+2*i+1}], v[{rl&~1}:{(rl&~1)+1}] " + ("op_sel:[0,1] op_sel_hi:[1,1]" if rl & 1 else "op_sel_hi:[1,0]") for i in range(2)]
            else: p += [f"v_mul_f32 v{o+e}, v{o+e}, v{rl}" for e in range(4)]
            p += [f"v_cvt_pk_bf16_f32 v{o+i}, v{o+2*i}, v{o+2*i+1}" for i in range(2)]
            p += self.flush(1)
            self.pend.append(VM("out", f"buffer_store_dwordx2 v[{o}:{o+1}], v{GA}, s[{S_OUT}:{S_OUT+3}], s{S_EQ[qb]} offen offset:{n*128 + r*384}{OF}"))
        return p

def gen_tail():
    sp = softmax_part
    g57 = qk_half(58) + rebase(qk_half(59), V_RDK, A0 - A2)
    g58 = pv_seq(56)
    g59 = rebase(qk_half(60), V_RDK, A1 - A0) + rebase(qk_half(61), V_RDK, A2 - A1)
    g60 = rebase(pv_seq(58), [V_RD], B2 - B1) + rebase(pv_seq(59), [V_RD], B0 - B2)
    g61 = rebase(pv_seq(60), [V_RD], B1 - B0) + rebase(qk_half(62), V_RDK, A0 - A2)
    g62 = rebase(qk_half(63), V_RDK, A1 - A0) + ([] if OPT["f3"] else rebase(pv_seq(61), [V_RD], B2 - B1))
    g63 = []
    for n in range(3):
        if OPT["f3"]: g63 += [pv_grp(61, 3 * e + n, va=VQR[0]) for e in range(4)]
        g63 += [pv_grp(62, 3 * e + n) for e in range(4)] + [pv_grp(63, 3 * e + n, va=V_RD2) for e in range(4)]
    if OPT["f3"]: g63[0].reb += [f"v_add_u32 v{VQR[0]}, {B2 - B1}, v{V_RD}", f"v_mov_b32 v{V_RD2}, v{V_RD}", f"v_subrev_u32 v{V_RD}, {B1 - B0}, v{V_RD}"]
    else: g63[0].reb += [f"v_subrev_u32 v{V_RD2}, {B2 - B1}, v{V_RD}", f"v_subrev_u32 v{V_RD}, {B2 - B0}, v{V_RD}"]
    first57 = g57[:2]
    p = []
    p += gen_seg("S57", g57, g58[:2], [(sp(57, 1) + [("dl", 50), ("nb", 28)] + sp(58, 0), 0, 95)], [(7, [("dk", 5)]), (GBAR, [("dv", 0), ("dv", 1)])],
                 [("step", "p", 30, GBAR - 3)], [(K_(62, 63) + (8, 60)) if OPT["tv"] else (K_(62, 63) + V_(58, 59) + (8, 90))], peel=False)
    p += gen_seg("S58", g58, g59[:2], [(sp(58, 1) + sp(59, 0), 0, 95), (epi_addr(), 0, 95)], [(GBAR, [("dk", 7)] if OPT["tv"] else [("dk", 7), ("dv", 3)])], [],
                 [(V_(58, 59, 60, 61) + (0, 74)) if OPT["tv"] else (V_(60, 61) + (0, 60))], peel=False)
    p += gen_seg("S59", g59, g60[:2], [(sp(59, 1) + [("dl", 50), ("nb", 28)] + sp(60, 0), 0, 95)], [(15, [("dv", 5)])], [], [V_(62, 63) + (16, 60)], peel=False)
    p += gen_seg("S60", g60, g61[:2], [(sp(60, 1) + sp(61, 0), 0, 95)], [(GBAR, [("dv", 7)])])
    ep = Epi([BX] if OPT["omv"] else [BX, BY])
    e01 = [x for qb in (0, 1) for n in range(3) for x in ep.chunk(qb, n, OPT["pk"])] + ep.flush()
    chk = [f"v_max3_f32 v{V_T+2}, v{V_L[0]}, v{V_L[1]}, v{V_L[2]}", f"v_max_f32 v{V_T+2}, v{V_T+2}, v{V_L[3]}",
           f"s_mov_b32 s{S_TMP}, 0x{f32bits(2.0**OPT['thr']):08x}", f"v_cmp_lt_f32 s[{S_PT}:{S_PT+1}], s{S_TMP}, v{V_T+2}"]
    c = [ep.chunk(2, j, OPT["pk"]) + ep.chunk(3, j, OPT["pk"]) + ep.flush() for j in range(2)]
    sm = sp(61, 1) + epi_l((0, 1), [])[2:] + [("dl", 50), ("nb", 76)] + sp(62, 0) + [("nb", 98)] + sp(62, 1) + [("nb", 124)] + sp(63, 0) + [("nb", 148)] + sp(63, 1) + [("dl", 205)] + chk + [("nb", 214)] + epi_l((2, 3), [])[2:]
    ee = e01 + [("nb", 228)] + c[0] + [("nb", 260)] + c[1]
    lastsm = 220
    if OPT["f3"]:
        sm = sp(61, 1) + epi_l((0, 1), [])[2:] + [("dl", 50), ("nb", 76)] + sp(62, 0) + [("nb", 98)] + sp(62, 1) + [("dl", 157), ("nb", 124)] + sp(63, 0) + [("nb", 148)] + sp(63, 1) + [("dl", 173)] + chk + [("nb", 182)] + epi_l((2, 3), [])[2:]
        ee = e01 + [("dl", OPT["ed"]), ("nb", 196)] + c[0] + [("dl", OPT["ed1"]), ("nb", 244)] + c[1]
        lastsm = 190
    if OPT["sst"]:
        prod = []; ev = []
        for x in ee:
            if isinstance(x, VM): prod.append(x)
            else: ev.append(x)
        es = Stream(ev, 52, 286); ss = Stream(prod, 52, 287)
        cv = [i for i, x in enumerate(es.ops) if text_of(x).startswith("v_cvt_pk")][1::2]
        rd = [i for i, x in enumerate(es.ops) if text_of(x).startswith("v_accvgpr_read")][0::4]
        assert len(cv) == len(prod) == len(rd)
        for k in range(len(prod)):
            ss.gate[k] = (es, cv[k]); ss.nb[k] = max([0] + [gp for i, gp in es.nb.items() if i <= cv[k]])
            kk = k + 4 * len(ep.temps)
            if kk < len(prod): es.gate[rd[kk]] = (ss, k)
        xs = [es, ss]
        if OPT["omv"]: xs.append(Stream([f"v_accvgpr_read_b32 v{OV(q, db)+r}, a{O(q, db)+r}" for q in (2, 3) for db in (2, 5, 8, 11) for r in range(4)], 0, 140))
    else: xs = [Stream(ee, 52, 287)]
    p += gen_seg("S61", g61 + g62 + g63, [], [(sm, 0, lastsm)], extra=xs,
                 fixed=[(1, "T", epi_l((0, 1))[:1]), (3, "T", epi_l((0, 1))[1:2]), (lastsm - 15, "T", epi_l((2, 3))[:1]), (lastsm - 13, "T", epi_l((2, 3))[1:2]), (lastsm + 5, "A", [f"s_cmp_lg_u64 s[{S_PT}:{S_PT+1}], 0", "s_cbranch_scc1 L_slow"]), (95, "T", istamp("S62")), (191, "T", istamp("S63"))])
    p += istamp("fin") + ["s_nop 7"]
    if OPT["omv"]: ep.temps = [UNIT[0], UNIT[1]]
    p += ep.chunk(2, 2, True, OPT["omv"]) + ep.flush() + ep.chunk(3, 2, True, OPT["omv"]) + ep.flush()
    return first57, p
def slow_epi():
    ep = Epi([64 + 16 * i for i in range(4)])
    seq = ["s_nop 1"] + epi_l((0, 1)) + epi_l((2, 3)) + ["s_nop 0"]
    for qb in range(4):
        for n in range(3): seq += ep.chunk(qb, n, True)
    return seq + ep.flush()

def kfrag(g):
    return 2 * (g >> 2) + (g & 1), (g >> 1) & 1
def gen_slow():
    KF = 64; VF = 112; SS = 160; PP = 224; M = [240, 241, 242, 243]; KA = [244, 245]; LA = 246; t = V_T
    p = ["L_slow:", "s_waitcnt vmcnt(0) lgkmcnt(0)", "s_nop 15"]
    for i in range(192): p.append(f"v_accvgpr_write_b32 a{i}, 0")
    for q in range(4): p += [f"v_mov_b32 v{V_L[q]}, 0", f"v_mov_b32 v{M[q]}, 0xff7fffff"]
    p += [f"v_subrev_u32 v{KA[0]}, {A1}, v{V_RDK[0]}", f"v_subrev_u32 v{KA[1]}, {A1}, v{V_RDK[1]}", f"v_subrev_u32 v{LA}, {B0}, v{V_RD}",
          f"s_mov_b32 s{S_PT}, 0", "L_slowloop:"]
    for i in range(1, 5): p.append(f"s_add_u32 s{S_PT+i}, s{S_PT}, {[0, 6144, 12288, 16384, 20480][i]}")
    for f in range(12):
        s, tb = kfrag(f)
        p.append(f"buffer_load_dwordx4 v[{KF+4*f}:{KF+4*f+3}], v{KA[s&1]}, s[{S_WS}:{S_WS+3}], s{S_PT+tb} offen offset:{(s>>1)*128} sc1")
    for db in range(12):
        p.append(f"buffer_load_dwordx4 v[{VF+4*db}:{VF+4*db+3}], v{LA}, s[{S_WS}:{S_WS+3}], s{S_PT+2+db//4} offen offset:{(db%4)*1024} sc1")
    p.append("s_waitcnt vmcnt(12)")
    for f in range(12):
        s, tb = kfrag(f)
        for qb in range(4):
            d = vr(SS + 8 * qb + 4 * tb, 4)
            p.append(f"{MF} {d}, v[{KF+4*f}:{KF+4*f+3}], {Qf(qb,s)}, {'0' if s == 0 else d}")
    p.append("s_nop 9")
    for qb in range(4):
        sb = SS + 8 * qb
        p += [f"v_max3_f32 v{t}, v{sb}, v{sb+1}, v{sb+2}", f"v_max3_f32 v{t}, v{t}, v{sb+3}, v{sb+4}",
              f"v_max3_f32 v{t}, v{t}, v{sb+5}, v{sb+6}", f"v_max3_f32 v{t}, v{t}, v{sb+7}, v{M[qb]}"]
        p += xlane("v_max_f32", t)
        p += [f"v_sub_f32 v{t+1}, v{M[qb]}, v{t}", f"v_exp_f32 v{t+1}, v{t+1}", f"v_mov_b32 v{M[qb]}, v{t}"]
        for i in range(8): p.append(f"v_sub_f32 v{sb+i}, v{sb+i}, v{t}")
        for i in range(8): p.append(f"v_exp_f32 v{sb+i}, v{sb+i}")
        p.append(f"v_mul_f32 v{V_L[qb]}, v{V_L[qb]}, v{t+1}")
        for i in range(8): p.append(f"v_add_f32 v{V_L[qb]}, v{V_L[qb]}, v{sb+i}")
        for i in range(4): p.append(f"v_cvt_pk_bf16_f32 v{PP+4*qb+i}, v{sb+2*i}, v{sb+2*i+1}")
        p += [f"ds_bpermute_b32 v{248+r}, v{BA}, v{t+1} offset:{4*r}" for r in range(4)] + ["s_waitcnt lgkmcnt(0)"]
        for i in range(48):
            a = O(qb, 0) + i; tt = t + 2 + (i % 2)
            p += [f"v_accvgpr_read_b32 v{tt}, a{a}", f"v_mul_f32 v{tt}, v{tt}, v{248+i%4}", f"v_accvgpr_write_b32 a{a}, v{tt}"]
    p += ["s_waitcnt vmcnt(0)", "s_nop 1"]
    for db in range(12):
        for qb in range(4):
            d = ar(O(qb, db), 4)
            p.append(f"{MF} {d}, v[{PP+4*qb}:{PP+4*qb+3}], v[{VF+4*db}:{VF+4*db+3}], {d}")
    p += [f"s_add_u32 s{S_PT}, s{S_PT}, {STAGE}", f"s_cmp_lt_u32 s{S_PT}, {HEADBYTES}", "s_nop 7", "s_cbranch_scc1 L_slowloop"]
    e = slow_epi(); resolve(e)
    return p + fin(e) + ["s_branch L_fin"]

def xlane(op, t, u=None):
    u = t + 1 if u is None else u
    l = []
    for sw in ("v_permlane16_swap_b32", "v_permlane32_swap_b32"):
        l += [f"v_mov_b32 v{u}, v{t}", "s_nop 1", f"{sw} v{t}, v{u}", "s_nop 1", f"{op} v{t}, v{t}, v{u}"]
    return l
def rowmax2(t, qs, tq):
    l = []
    ab = [(Sq(t, j, 0), Sq(t, j, 1)) for j in range(2)]
    l += [f"v_max3_f32 v{tq[j]}, v{a}, v{a+1}, v{a+2}" for j, (a, b) in enumerate(ab)]
    l += [f"v_max3_f32 v{tq[j]}, v{tq[j]}, v{a+3}, v{b}" for j, (a, b) in enumerate(ab)]
    l += [f"v_max3_f32 v{tq[j]}, v{tq[j]}, v{b+1}, v{b+2}" for j, (a, b) in enumerate(ab)]
    l += [f"v_max_f32 v{tq[j]}, v{tq[j]}, v{b+3}" for j, (a, b) in enumerate(ab)]
    for sw in ("v_permlane16_swap_b32", "v_permlane32_swap_b32"):
        l += [f"v_mov_b32 v{tq[j]+1}, v{tq[j]}" for j in range(2)] + ["s_nop 0"]
        l += [f"{sw} v{tq[j]}, v{tq[j]+1}" for j in range(2)] + ["s_nop 0"]
        l += [f"v_max_f32 v{tq[j]}, v{tq[j]}, v{tq[j]+1}" for j in range(2)]
    l += [f"v_sub_f32 v{NEGM(qs[j])+i}, 0, v{tq[j]}" for j in range(2) for i in range(4)]
    return l
def sm_one(t, sl):
    a, b = Sq(t, sl, 0), Sq(t, sl, 1); tq = V_CT; qb = slot_q(t, sl); rs = [r + i for r in (a, b) for i in range(4)]
    l = [f"v_max3_f32 v{tq}, v{a}, v{a+1}, v{a+2}", f"v_max3_f32 v{tq+2}, v{a+3}, v{b}, v{b+1}",
         f"v_max3_f32 v{tq}, v{tq}, v{b+2}, v{b+3}", f"v_max_f32 v{tq}, v{tq}, v{tq+2}"] + xlane("v_max_f32", tq)
    l += [f"v_sub_f32 v{r}, v{r}, v{tq}" for r in rs] + [f"v_exp_f32 v{r}, v{r}" for r in rs] + [f"v_sub_f32 v{NEGM(qb)+i}, 0, v{tq}" for i in range(4)]
    l += [f"v_add_f32 v{V_L[qb]}, v{V_L[qb]}, v{r}" for r in rs] + [f"v_cvt_pk_bf16_f32 v{a+i}, v{rs[2*i]}, v{rs[2*i+1]}" for i in range(4)]
    return l
def addneg(t, sl):
    n = NEGM(slot_q(t, sl))
    return [f"v_add_f32 v{Sq(t,sl,tb)+i}, v{Sq(t,sl,tb)+i}, v{n}" for tb in range(2) for i in range(4)]

def resolve(seq):
    vm = []; ds = []
    for x in seq:
        if isinstance(x, VM): vm.append(x.tag)
        elif isinstance(x, DS): ds.append(x.tag)
        elif isinstance(x, (W, LG)):
            q = vm if isinstance(x, W) else ds
            best = None
            for tag in x.tags:
                n = 0; found = False
                for t in reversed(q):
                    if t == tag: found = True; break
                    n += 1
                if found: best = n if best is None else min(best, n)
            if best is not None:
                x.n = best if getattr(x, "n", None) is None else min(x.n, best)
        else:
            assert not x.startswith(("ds_", "buffer_")) or "UNTRACKED" in x, x
def vm_size(x):
    t = x.text
    if t.startswith("buffer_store"): return 0
    if x.tag == "pre": return 3.0
    if " lds" in t: return 1.0
    if "dwordx4" in t or "dwordx3" in t: return 0.75
    if "dwordx2" in t and "offen" in t: return 0.375
    return 0.125
def pace(seq, cap):
    out = []; q = []; on = False
    for x in seq:
        if isinstance(x, W): q = q[len(q) - min(len(q), x.n):]; on = True
        elif isinstance(x, VM):
            sz = vm_size(x)
            if on and not x.text.startswith("buffer_store") and sum(q) + sz > cap:
                while q and sum(q) + sz > cap: q.pop(0)
                w = W(); w.n = len(q)
                if out and out[-1] == "s_nop 0": out.pop()
                out.append(w)
            q.append(sz)
        out.append(x)
    return out
def fin(seq):
    out = []
    for x in seq:
        if isinstance(x, (W, LG)):
            if OPT["ab"] and getattr(x, "n", None) is None: x.n = 63
            assert getattr(x, "n", None) is not None, x.tags
            out.append(f"s_waitcnt vmcnt({min(x.n, 63)})" if isinstance(x, W) else f"s_waitcnt lgkmcnt({min(x.n, 15)})")
        elif isinstance(x, (VM, DS)): out.append(x.text)
        else: out.append(x.replace(" ;UNTRACKED", ""))
    return out
def groups_of(l):
    out = [[]]
    for x in l:
        out[-1].append(x)
        if isinstance(x, VM): out.append([])
    tail = out.pop()
    if tail: out[-1] += tail
    return out
def sprinkle(code, l):
    gs = groups_of(l); out = []; n = len(code); m = len(gs); j = 0
    for i, x in enumerate(code):
        while j < m and i * m >= j * n: out += with_nop(gs[j]); j += 1
        out.append(x)
    for g in gs[j:]: out += with_nop(g)
    return out
def srd(p, s, lo, hi, off_s, size):
    p += [f"s_add_u32 s{s}, s{lo}, s{off_s}", f"s_addc_u32 s{s+1}, s{hi}, 0", f"s_mov_b32 s{s+2}, {size}", f"s_mov_b32 s{s+3}, 0x20000"]

def gen_main():
    p = []
    p += [f"{NAME}_kernel:", "s_cmp_ge_u32 s2, 256", "s_cbranch_scc1 L_done",
          "s_load_dwordx16 s[40:55], s[0:1], 0", "s_load_dwordx4 s[16:19], s[0:1], 64"]
    if OPT["stamp"]: p += ["s_memtime s[98:99]" if OPT["stamp"] == 6 else "s_memrealtime s[98:99]"]
    p += [f"s_and_b32 s{S_HEAD}, s2, 7", f"s_lshr_b32 s{S_QB}, s2, 3", f"s_lshr_b32 s24, s{S_QB}, 3", f"s_lshl_b32 s{S_HEAD}, s{S_HEAD}, 2",
          f"s_add_u32 s{S_HEAD}, s{S_HEAD}, s24", f"s_and_b32 s{S_QB}, s{S_QB}, 7"]
    p += ["s_getpc_b64 s[60:61]", "L_pc:", f"s_sub_u32 s60, s60, L_pc-{NAME}_kernel", "s_subb_u32 s61, s61, 0",
          f"s_mov_b32 s62, L_slow-{NAME}_kernel", "s_mov_b32 s63, 0x20000",
          "s_lshr_b32 s22, s2, 3", "s_lshl_b32 s22, s22, 12",
          "v_lshlrev_b32 v30, 4, v0",
          VM("pf", "buffer_load_dwordx4 v[128:131], v30, s[60:63], s22 offen")]
    p += ["v_lshrrev_b32 v24, 6, v0",
          "v_and_b32 v25, 63, v0",
          f"v_readfirstlane_b32 s{S_WAVE}, v24",
          f"v_lshlrev_b32 v{V_RD}, 4, v25",
          "v_mul_u32_u24 v26, 43, v25", "v_lshrrev_b32 v26, 10, v26",
          "v_mul_u32_u24 v27, 24, v26",
          "v_sub_u32 v27, v25, v27",
          "v_lshrrev_b32 v28, 1, v24",
          "v_and_b32 v29, 1, v24",
          "v_lshlrev_b32 v30, 4, v29",
          "v_lshl_add_u32 v30, v28, 2, v30",
          "v_add_u32 v30, v30, v26",
          "v_mul_u32_u24 v30, 768, v30",
          "v_lshrrev_b32 v48, 1, v26", "v_lshlrev_b32 v48, 30, v48",
          "v_lshl_add_u32 v30, v27, 4, v30", f"v_or_b32 v{V_KLD}, v30, v48",
          f"v_lshl_or_b32 v{V_KSC}, v27, 3, v48",
          "v_mul_u32_u24 v30, 6144, v24",
          f"v_add3_u32 v{V_VLD}, v30, v{V_RD}, v48"]
    for sd, size in ((S_QK, HEADBYTES), (S_QV, HEADBYTES), (S_KS, 12288), (S_KZ, 12288), (S_VS, 4096), (S_VZ, 4096), (S_FLG, 64)):
        p += [f"s_mov_b32 s{sd+2}, {size}", f"s_mov_b32 s{sd+3}, 0x20000"]
    p += [f"s_mul_i32 s{S_PK0}, s{S_QB}, {STAGE}", f"s_add_u32 s{S_PK1}, s{S_PK0}, 6144", f"s_mov_b32 s{S_PV0}, s{S_PK0}",
          f"s_lshr_b32 s{S_PKS}, s{S_QB}, 1", f"s_mul_i32 s{S_PKS}, s{S_PKS}, 384", f"s_lshl_b32 s{S_PVS}, s{S_QB}, 6",
          f"s_lshl_b32 s24, s{S_WAVE}, 4", f"s_add_u32 s{S_PVS}, s{S_PVS}, s24",
          f"s_mul_i32 s24, s{S_HEAD}, {HEADBYTES}", f"s_mul_i32 s56, s{S_HEAD}, 12288", f"s_lshl_b32 s57, s{S_HEAD}, 12",
          f"s_lshl_b32 s58, s{S_HEAD}, 10", f"s_add_u32 s58, s58, {FLAG_OFF + 96}",
          f"s_or_b32 s{S_RET}, s{S_QB}, s{S_WAVE}"]
    p += ["s_waitcnt lgkmcnt(0)"] + istamp("karg", True)
    def base(sd, lo, off): return [f"s_add_u32 s{sd}, s{lo}, s{off}", f"s_addc_u32 s{sd+1}, s{lo+1}, 0"]
    p += base(S_QK, 42, 24) + base(S_KS, 46, 56) + base(S_KZ, 48, 56)
    kl = [k_ld(0, BX, 32, "k0a"), k_ld(1, BY, 36, "k0b")]; vl = [v_ld(0, 112, 40, "v0a"), v_ld(1, 80, 44, "v0b")]
    for x in kl[1][:2]: x.tag = "k0a"
    for x in vl[1][:2]: x.tag = "v0a"
    if OPT["ksc"]:
        for x in kl[0][2:] + kl[1][2:]: x.tag = "kraw"
        for x in kl[1][:2]: x.tag = "k0b"
        p += kl[0][2:] + kl[1][2:] + kl[0][:2] + kl[1][:2]; kl[1] = []
    else: p += kl[0][2:] + kl[0][:2] + kl[1][:2]
    p += base(S_FLG, 18, 58) + base(S_VS, 50, 57) + base(S_VZ, 52, 57) + base(S_QV, 44, 24)
    p += [f"s_mul_i32 s59, s{S_HEAD}, 786432"] + base(S_OUT, 54, 59) + base(S_Q, 40, 59)
    p += [f"s_cmp_lg_u32 s{S_RET}, 0", "s_cbranch_scc1 L_notleader0", f"s_buffer_load_dwordx16 s[40:55], s[{S_FLG}:{S_FLG+3}], 0 glc", "L_notleader0:"]
    p += kl[1][2:]
    p += [f"s_add_u32 s24, s24, {WSOFF}"] * (1 if WSOFF else 0)
    srd(p, S_WS, 18, 19, 24, HEADBYTES)
    p += [f"s_mov_b32 s{S_Q+2}, 786432", f"s_mov_b32 s{S_Q+3}, 0x20000"]
    p += [f"s_mov_b32 s{S_DBG}, s16", f"s_mov_b32 s{S_DBG+1}, s17", f"s_add_u32 s{S_PV1}, s{S_PK0}, 3072", f"s_add_u32 s{S_PV2}, s{S_PK0}, 6144"]
    p += [f"s_mov_b32 s{S_DBG+2}, 256", f"s_mov_b32 s{S_DBG+3}, 0x20000", f"s_lshl_b32 s{S_HOFF}, s{S_HEAD}, 3"]
    p += [f"s_cmp_lg_u32 s{S_RET}, 0", "s_cbranch_scc1 L_notleader", "s_waitcnt lgkmcnt(0)", f"s_mov_b32 s{S_TP}, 1"]
    for i in range(16):
        p += [f"s_lshr_b32 s{40+i}, s{40+i}, 10", f"s_min_u32 s{40+i}, s{40+i}, 31", f"s_bitset1_b32 s{S_TP}, s{40+i}"]
    p += [f"s_ff0_i32_b32 s{S_TP}, s{S_TP}", f"s_lshl_b32 s{S_TP}, s{S_TP}, 10", f"v_mov_b32 v{V_POLL}, s{S_TP}",
          "s_mov_b64 exec, 1", f"buffer_store_dword v{V_POLL}, off, s[{S_DBG}:{S_DBG+3}], s{S_HOFF} sc1 ;UNTRACKED", "s_mov_b64 exec, -1",
          "L_notleader:"]
    p += [f"s_lshl_b32 s24, s{S_QB}, 2", f"s_add_u32 s24, s24, 32", f"s_buffer_load_dword s{S_OWN}, s[{S_FLG}:{S_FLG+3}], s24 glc",
          ] + ([f"s_getreg_b32 s{S_XCC}, hwreg(HW_REG_XCC_ID, 0, 4)", f"s_lshl_b32 s{S_XCC}, s{S_XCC}, 5", f"s_mov_b32 s{S_FOFF}, 0"] if OPT["l2"] else
          [f"s_mov_b32 s{S_XCC}, 0", f"s_mov_b32 s{S_FOFF}, 32"])
    p += vl[0][2:] + vl[0][:2] + vl[1][:2] + (vl[1][2:] if OPT["greedy"] else []) + istamp("iss", True)
    if OPT["pre"]:
        st = OPT["pre"]
        p += [f"v_mul_u32_u24 v31, {st}, v25", f"v_mul_u32_u24 v30, 6144, v24", "v_add_u32 v31, v30, v31"]
        if st == 128: p += ["v_or_b32 v31, v31, v48"]
        p += [VM("pre", f"buffer_load_dword v132, v31, s[{S_WS}:{S_WS+3}], s{S_PK0} offen" + (" nt" if OPT["prent"] else ""))]
        if st == 64: p += ["v_add_u32 v30, 4096, v31", "s_mov_b64 exec, 0xffffffff", VM("pre", f"buffer_load_dword v133, v30, s[{S_WS}:{S_WS+3}], s{S_PK0} offen nt"), "s_mov_b64 exec, -1"]
    p += [f"s_mov_b32 s{S_OUT+2}, 786432", f"s_mov_b32 s{S_OUT+3}, 0x20000"]
    p += [f"s_lshl_b32 s24, s{S_WAVE}, 8", f"s_add_u32 s{S_HOFF}, s{S_HOFF}, s24"]
    p += ["v_mul_u32_u24 v30, 3072, v24", f"v_add_u32 v{V_DMA}, v30, v{V_RD}"]
    p += ["v_lshl_add_u32 v30, v24, 3, v26",
          "v_mul_u32_u24 v30, 384, v30",
          "v_lshlrev_b32 v31, 2, v29",
          "v_xor_b32 v31, v27, v31",
          "v_lshl_add_u32 v30, v31, 4, v30", f"v_or_b32 v{V_KST}, v30, v48",
          "v_lshlrev_b32 v30, 8, v24",
          "v_add_u32 v30, 12288, v30",
          "v_lshrrev_b32 v31, 4, v25", "v_lshl_add_u32 v30, v31, 10, v30", "v_and_b32 v31, 15, v25",
          "v_lshl_add_u32 v30, v31, 4, v30", f"v_or_b32 v{V_VST}, v30, v48"]
    p += [f"s_lshl_b32 s24, s{S_QB}, 2",
          f"v_lshl_add_u32 v{V_FLAG}, v0, 2, s24", f"v_cmp_lt_u32 vcc, 0, v0", "v_mov_b32 v30, 0x40000000", "s_nop 0",
          f"v_cndmask_b32 v{V_FLAG}, v{V_FLAG}, v30, vcc"]
    p += [f"s_mul_i32 s{S_DMK}, s{S_WAVE}, 3072", f"s_add_u32 s{S_DMK}, s{S_DMK}, 12288", f"s_add_u32 s{S_DMV}, s{S_DMK}, {STAGE}",
          f"s_add_u32 s24, s{S_QB}, 1", "s_and_b32 s24, s24, 7", f"s_mul_i32 s{S_GOFFK}, s24, {STAGE}", f"s_add_u32 s{S_GOFF}, s{S_GOFFK}, 12288",
          f"s_mov_b32 s{S_RK}, {A2}", f"s_mov_b32 s{S_RV}, {B1}", f"v_add_u32 v{V_RD}, {B0}, v{V_RD}",
          f"s_mov_b32 s{S_CS}, 0x{f32bits(CSCALE):08x}", f"s_mov_b32 s{S_MASK}, 0xffff0000",
          f"s_mov_b32 s{S_BUDGET}, 100000"] + ([f"s_mov_b32 s{S_TAG+1}, 0"] if OPT["stamp"] else [])
    p += ["v_and_b32 v26, 15, v25", "v_lshrrev_b32 v27, 4, v25", "v_bfe_u32 v28, v25, 1, 3",
          "v_xor_b32 v29, v27, v28", "v_mul_u32_u24 v30, 384, v26", f"v_lshl_add_u32 v{V_RDK[0]}, v29, 4, v30",
          f"v_xor_b32 v{V_RDK[1]}, 64, v{V_RDK[0]}"]
    p += [f"s_mul_i32 s{S_QL}, s{S_WAVE}, 6144", f"s_add_u32 s{S_QL}, s{S_QL}, {B1}",
          "v_lshrrev_b32 v29, 1, v27", "v_xor_b32 v29, v29, v28", "v_lshl_add_u32 v31, v29, 4, v30",
          "v_and_b32 v29, 1, v27", "v_lshl_add_u32 v31, v29, 3, v31"]
    for kk in range(4):
        p += [f"v_xor_b32 v{VQR[kk]}, {32*kk}, v31", f"v_add_u32 v{VQR[kk]}, s{S_QL}, v{VQR[kk]}"]
    p += [f"s_lshl_b32 s24, s{S_QB}, 2", f"s_add_u32 s24, s24, s{S_WAVE}", f"s_mul_i32 s24, s24, {STAGE}"]
    for b in range(6):
        p += [f"v_add_u32 v26, {64*b}, v25", "v_mul_u32_u24 v27, 2731, v26", "v_lshrrev_b32 v27, 17, v27",
              "v_and_b32 v27, 7, v27", "v_xor_b32 v26, v26, v27", f"v_lshlrev_b32 v{VQD+b}, 4, v26", f"v_add_u32 v{VQD+b}, s24, v{VQD+b}"]
    for q in range(4): p.append(f"v_mov_b32 v{V_L[q]}, 0")
    STF0 = "" if OPT["l2"] else STF
    def own_k(b):
        l = []
        for j in range(4):
            l += k_st(j, b, "kst", STF0)
            va = V_KST if j == 0 else V_KA + (j & 1)
            l += ["s_mov_b64 exec, s[62:63]", DS("w", f"ds_write_b128 v{va}, v[{b+4*j}:{b+4*j+3}] offset:{j*768}"), "s_mov_b64 exec, -1"]
        return l
    def own_v(b):
        l = [x for e in range(4) for x in v_st(e, b, "vst", STF0)]
        l += ["s_mov_b64 exec, s[62:63]"] + [DS("w", f"ds_write_b128 v{V_VST}, v[{b+4*e}:{b+4*e+3}] offset:{STAGE - 12288 + e*3072}") for e in range(4)] + ["s_mov_b64 exec, -1"]
        return l
    p += ["s_mov_b32 s62, -1", "s_mov_b32 s63, 0xffff"]
    qa = OPT["qa"]
    qb_, qc = OPT["qb"], OPT["qc"]
    R = lambda a, b: list(range(a, b))
    if OPT["split"]:
        p += [W("k0a")] + vl[1][2:] + k_cv(0, BX, 32, BX) + [W("k0b")] + istamp("k0b", True) + k_cv(1, BY, 36, BX) + own_k(BX)
        p += tag_load() + with_nop(q_dma(R(0, qa))) + [W("v0a")] + v_cv(0, 112, 40, 112)
        p += [W("tag")] + tag_check() + ["s_waitcnt lgkmcnt(0)", "s_barrier"] + flag_post() + tag_get() + istamp("post", True)
        p += with_nop(q_dma(R(qa, qb_))) + v_cv(1, 80, 44, 112) + own_v(112) + with_nop(q_dma(R(qb_, 12))) + istamp("vst", True)
    elif OPT["greedy"]:
        p += [W("k0a")] + with_nop(q_dma(R(0, 3))) + k_cv(0, BX, 32, BX) + [W("k0b")] + istamp("k0b", True) + with_nop(q_dma(R(3, 6))) + k_cv(1, BY, 36, BX) + own_k(BX)
        p += [W("v0a")] + with_nop(q_dma(R(6, 9))) + v_cv(0, 112, 40, 112) + [W("v0b")] + with_nop(q_dma(R(9, 12))) + v_cv(1, 80, 44, 112) + own_v(112)
        p += tag_load() + with_nop(q_dma(R(12, 18))) + istamp("vst", True)
    else:
        p += [W("k0a")] + vl[1][2:] + k_cv(0, BX, 32, BX) + [W("k0b")] + istamp("k0b", True) + k_cv(1, BY, 36, BX) + own_k(BX)
        p += with_nop(q_dma(R(0, qa))) + istamp("kst", True)
        p += [W("v0a")] + sprinkle(v_cv(0, 112, 40, 112), q_dma(R(qa, qb_))) + [W("v0b")] + v_cv(1, 80, 44, 112) + own_v(112)
        p += tag_load() + with_nop(q_dma(R(qb_, 12))) + istamp("vst", True)
    if not OPT["split"]:
        p += [W("tag")] + tag_check() + istamp("tag", True)
        p += ["s_waitcnt lgkmcnt(0)", "s_barrier"] + flag_post(True) + tag_get() + istamp("post", True)
    if OPT["pf2"]:
        p += [f"s_mov_b32 s{S_DBG}, s60", f"s_mov_b32 s{S_DBG+1}, s61", f"s_mov_b32 s{S_DBG+2}, L_slow-{NAME}_kernel",
              "s_lshr_b32 s24, s2, 3", f"s_mul_i32 s{S_HOFF}, s24, 43", f"s_lshr_b32 s{S_HOFF}, s{S_HOFF}, 7",
              f"s_mul_i32 s{S_RET}, s{S_HOFF}, 3", f"s_sub_u32 s24, s24, s{S_RET}", "s_lshl_b32 s24, s24, 10",
              f"s_mul_i32 s{S_HOFF}, s{S_HOFF}, 12288", f"s_add_u32 s{S_HOFF}, s{S_HOFF}, s24"]
    KF = 144
    for f in range(12):
        s, tb = kfrag(f)
        p.append(DS("kf", f"ds_read_b128 v[{KF+4*f}:{KF+4*f+3}], v{V_RDK[s&1]} offset:{tb*6144 + (s>>1)*128}"))
    def qk0(qb):
        l = []
        for f in sorted(range(12), key=lambda f: kfrag(f)[::-1]):
            s, tb = kfrag(f)
            d = vr(Sq(0, qb, tb), 4)
            l.append(f"{MF} {d}, v[{KF+4*f}:{KF+4*f+3}], {Qf(qb,s)}, {'0' if s == 0 else d}")
        return l
    ps = len(POLLSITES); POLLSITES.append(ps)
    g3n = OPT["g3n"]
    pollchk = ["s_waitcnt lgkmcnt(0)"] + smem_reduce() + [f"s_cmp_ge_u32 s{S_PT}, 16", f"s_cbranch_scc1 L_pollslow{ps}", f"L_pollok{ps}:",
          f"s_add_u32 s{S_NEED}, s{S_NEED}, 1"] + [f"s_mov_b32 s{S_FOFF}, 32"] * (OPT["l2"] == 2) + istamp("poll", True)
    sm00 = rowmax2(0, (0, 1), (V_CT, V_CT + 2)) + addneg(0, 0) + addneg(0, 1) + softmax_part(0, 0)
    qrest = R(12 if OPT["greedy"] == 0 else 18, 18 + g3n)
    if OPT["split"]:
        ps2 = len(POLLSITES); POLLSITES.append(ps2)
        pollchk2 = ["s_waitcnt lgkmcnt(0)"] + smem_reduce() + [f"s_cmp_ge_u32 s{S_PT}, 16", f"s_cbranch_scc1 L_pollslow{ps2}", f"L_pollok{ps2}:",
              f"s_add_u32 s{S_NEED}, s{S_NEED}, 1"] + istamp("pollV", True)
        p += [W(("q", 0))] + q_frags(0) + [LG("tg")] + tag_use() + [LG(("qf", 0))] + smem_flags() + qk0(0) + pollchk
        p += with_nop(dma_tile("k", 1, True)) + k_adv() + v_adv()
        p += [W("vst"), "s_barrier"] + flag_post() + istamp("postV", True)
        p += with_nop(dma_tile("k", 2, True) + dma_tile("k", 3, True))
        p += [W(("q", 1))] + q_frags(1) + with_nop(q_dma(R(12, 15))) + [LG(("qf", 1))] + qk0(1) + ["s_nop 7"]
        g0 = pv_unchained(0, True)[:6]
        p += [rd_op(i, j, g0[i]) for i in range(2) for j in range(2)] + sprinkle(sm00, q_dma(R(15, 18 + g3n))) + smem_flags() + [LG(("fr", 0), ("fr", 1))]
        p += gen_seg("S0", g0, [], tasks=[("q", R(18 + g3n, 24), 0, 22)] if g3n < 6 else [], vmgap=2) + pollchk2
        p += with_nop(dma_tile("v", 1, True))
        g3n = 6
    elif OPT["own1"] == 2:
        p += [W(("q", 0))] + q_frags(0) + [LG("tg")] + tag_use() + with_nop(q_dma(qrest[:3])) + [LG(("qf", 0))] + qk0(0)
        p += [W(("q", 1))] + q_frags(1) + smem_flags() + with_nop(q_dma(qrest[3:])) + [LG(("qf", 1))] + qk0(1) + pollchk
        g0 = pv_unchained(0, True)[:6]
        p += [rd_op(i, j, g0[i]) for i in range(2) for j in range(2)]
        p += sprinkle(sm00, dma_tile("k", 1, True) + dma_tile("k", 2, True) + dma_tile("k", 3, True) + dma_tile("v", 1, True)) + k_adv() + v_adv() + [LG(("fr", 0), ("fr", 1))]
        p += gen_seg("S0", g0, [], tasks=[("q", R(18 + g3n, 24), 0, 22)] if g3n < 6 else [], vmgap=2)
        g3n = 6
    elif OPT["own1"]:
        p += [W(("q", 0))] + q_frags(0) + [LG("tg")] + tag_use() + with_nop(q_dma(qrest[:3])) + [LG(("qf", 0))] + qk0(0)
        if OPT["q0f"]: p += ["s_nop 7"] + sm_one(0, 0); sm00 = sm_one(0, 1)
        p += [W(("q", 1))] + q_frags(1) + with_nop(q_dma(qrest[3:6])) + [LG(("qf", 1))] + qk0(1) + ["s_nop 7"]
        g0 = pv_unchained(0, True)[:6]
        p += [rd_op(i, j, g0[i]) for i in range(2) for j in range(2)] + sprinkle(sm00, q_dma(qrest[6:])) + smem_flags() + [LG(("fr", 0), ("fr", 1))]
        p += gen_seg("S0", g0, []) + pollchk
        p += with_nop(dma_tile("k", 1, True) + dma_tile("k", 2, True) + dma_tile("k", 3, True) + dma_tile("v", 1, True)) + k_adv() + v_adv()
    else:
        p += [W(("q", 0))] + q_frags(0) + [LG("tg")] + tag_use() + [W(("q", 1))] + q_frags(1) + smem_flags()
        p += [LG(("qf", 0))] + with_nop(q_dma(qrest)) + pollchk
        p += with_nop(dma_tile("k", 1, True)) + k_adv() + v_adv()
        p += sprinkle(qk0(0) + qk0(1), dma_tile("k", 2, True)) + ["s_nop 7"]
        p += sprinkle(sm00, dma_tile("k", 3, True) + dma_tile("v", 1, True))
    sp = softmax_part
    g1 = qk_half(0, ws=(1,))
    g2 = rebase(qk_half(1), V_RDK, A1 - A0)
    g3 = pv_unchained(0, True)[6 if OPT["own1"] else 0:]
    g4 = rebase(pv_unchained(1), [V_RD], B1 - B0)
    g5 = rebase(qk_half(2, True), V_RDK, A0 - A1) + rebase(qk_half(3), V_RDK, A1 - A0)
    gi3 = rebase(qk_full(4), V_RDK, A2 - A1)
    gi4 = rebase(pv_seq(2, True), [V_RD], B0 - B1) + rebase(pv_seq(3), [V_RD], B1 - B0)
    p += istamp("pre-dk1", True) + [W(("dk", 1)), "s_barrier"] + [rd_op(i, j, g1[i]) for i in range(2) for j in range(2)]
    p += [LG(("fr", 0), ("fr", 1))]
    p += gen_seg("S1", g1, g2[:2], [], [(15, [("dk", 3)])], [], [V_(2, 3) + (0, 21)], vmgap=2)
    p += gen_seg("S2", g2, g3[:2], [(sp(0, 1), 3, 47)], [(39, [("dv", 3)])] if OPT["own1"] else [], ([("q", R(18 + g3n, 24), 0, 24)] if g3n < 6 else []) + [("ldn", "ka", 25 if g3n < 6 else 0, 47)])
    if OPT["own1"]: p += gen_seg("S3", g3, g4[:2], [(sp(1, 0), 0, 23)], [], [("ldn", "kb", 0, 23)])
    else: p += gen_seg("S3", g3, g4[:2], [(sp(1, 0), 0, 47)], [(15, [("dv", 3)])], [("ldn", "kb", 0, 22), ("ldn", "va", 23, 46, "raw")])
    p += gen_seg("S4", g4, g5[:2], [(sp(1, 1), 0, 21)], [], [("ldn", "va", 0, 30, "raw")] if OPT["own1"] else [], extra=[Stream([W(("q", 2))] + q_frags(2) + [W(("q", 3))] + q_frags(3), 16, 46)])
    p += istamp("pre-S5", True) + ["s_waitcnt lgkmcnt(0)", "s_barrier"]
    p += gen_seg("S5", g5, gi3[:2], [(rowmax2(2, (2, 3), (V_T, V_T + 2)), 27, 45), (addneg(2, 0) + addneg(2, 1) + sp(2, 0) + addneg(2, 2) + addneg(2, 3) + sp(2, 1), 46, 95)],
                 [(GBAR + 8, [("dk", 5)])], [("cv", "ka", 0, 99, 0, 34), ("cv", "kb", 0, 99, 35, 72), ("kst", 0, 73), ("kst", 1, 77), ("kst", 2, 89), ("kst", 3, 93),
                 ("ldn", "va", 36, 60, "sc")], [K_(4, 5) + (1, 24)])
    p += gen_seg("i3", gi3, gi4[:2], [(sp(3, 0) + sp(3, 1), 0, 54), (sp(4, 0), 55, 95)], [(OPT["pb"], []), (GBAR, [])],
                 [("ld", "vb", 0, 22), ("post", "kst", 0), ("cv", "va", 0, 99, 10, 95)], [K_(6, 7) + V_(4, 5) + (24, 90)])
    p += [f"s_mov_b32 s{S_CNT}, 7"]
    p += gen_seg("i4", gi4, seg_groups(5)[:2], [(sp(4, 1) + sp(5, 0), 0, 94)], [(47, []), (GBAR + 8, [("dk", 7)])],
                 [("ld", "ka", 0, 30), ("cv", "vb", 0, 99, 30, 94), ("step", "q", 30, 70), ("pollld", OPT["pl4"], OPT["pl4"] + 8)], [V_(6, 7) + (52, 84)],
                 endops=["s_nop 0", "s_branch L_join"])
    p += [".p2align 6"] + ["s_nop 0"] * OPT.get("pad", 0) + ["L_loop:"]
    pro_ = p
    first57, tail = gen_tail()
    bodyA = []
    for k in (1, 2, 3, 4, 5, 6, 7, 0):
        if k == 5: bodyA.append("L_join:"); jpos = len(bodyA)
        eo = [f"s_sub_u32 s{S_CNT}, s{S_CNT}, 1", f"s_cmp_lg_u32 s{S_CNT}, 0", "s_cbranch_scc1 L_loop"] if k == 0 else ()
        t, d = steady(k)
        if OPT["ab"] & 8: d = []
        if OPT["ab"] & 16: t = [x for x in t if x[0] not in ("cv", "kst", "vst", "ld")]
        bars = None
        if OPT["nb6"]:
            dk = lambda *x: [("dk", i) for i in x]; dv = lambda *x: [("dv", i) for i in x]
            bars = {0: [], 4: [], 7: [(GBAR, dv(6, 7) + dk(2, 3))], 3: [(GBAR, dv(2, 3) + dk(6, 7))]}.get(k)
        bodyA += gen_iter(16 + k, t, d, name=f"k{k}", endops=eo, bars=bars)
    assert OPT["qo"] or [g.rd for g in first57] == [g.rd for g in seg_groups(17)[:2]]
    tailc = tail + ["L_fin:"]
    resolve(pro_ + bodyA[jpos:] + bodyA + bodyA + tailc)
    if OPT["cap"]: pro_ = pace(pro_, OPT["cap"] / 4)
    P_ = Prog()
    P_.extend(fin(pro_))
    a0 = len(P_.ins); P_.extend(fin(bodyA)); a1 = len(P_.ins)
    P_.extend(fin(tailc))
    p = P_
    if OPT["stamp"]:
        p("s_waitcnt vmcnt(0) lgkmcnt(0)")
        p.extend(istamp("end"))
        p("s_waitcnt lgkmcnt(0)")
        p.extend(istamp("end2"))
        p(f"v_writelane_b32 v{V_STAMP}, s{S_TAG+1}, 63")
        p("s_add_u32 s8, s18, 0xfa00000"); p("s_addc_u32 s9, s19, 0"); p("s_mov_b32 s10, 1048576"); p("s_mov_b32 s11, 0x20000")
        p("s_lshl_b32 s24, s2, 2"); p(f"s_add_u32 s24, s24, s{S_WAVE}"); p("s_lshl_b32 s24, s24, 8")
        p(f"v_bfe_u32 v32, v{V_DMA}, 4, 6"); p("v_lshlrev_b32 v32, 2, v32")
        p(f"buffer_store_dword v{V_STAMP}, v32, s[8:11], s24 offen")
        if OPT["stamp"] == 8: STAMPS.sort(key=lambda n: 0)
        open(sys.argv[1] + ".stamps", "w").write("\n".join(order_stamps()))
    if OPT["calx"]:
        p("s_waitcnt vmcnt(0)")
        p("L_cal:")
        p("s_memrealtime s[40:41]")
        p("s_waitcnt lgkmcnt(0)")
        p("s_sub_u32 s40, s40, s100")
        p("s_cmp_lt_u32 s40, 10000")
        p("s_cbranch_scc1 L_cal")
    p("L_done:")
    p("s_endpgm")
    main_end0 = len(p.ins)
    for ps in POLLSITES: p.extend(poll_slow(ps))
    p.extend(tag_slow())
    main_end = len(p.ins)
    p.extend(gen_slow())
    slow_end = len(p.ins)
    ji = [i for i, x in enumerate(p.ins) if x.text == "L_join:"][0]
    lin = p.ins[:a0] + p.ins[ji:a1] + p.ins[a0:main_end0]
    sl = [i for i, x in enumerate(p.ins) if x.text == "L_slowloop:"][0]
    bi = [i for i, x in enumerate(p.ins) if x.text == "s_cbranch_scc1 L_slowloop"][0]
    probs = check_hazards(lin, "main") + check_hazards(p.ins[main_end:bi+1] + p.ins[sl:slow_end], "slow") + check_hazards(p.ins[main_end0:main_end], "aux")
    for x in probs: print(x, file=sys.stderr)
    return p

def kd(name, vgpr, sgpr, accum):
    return f""".amdhsa_kernel {name}
  .amdhsa_next_free_vgpr {vgpr}
  .amdhsa_next_free_sgpr {sgpr}
  .amdhsa_accum_offset {accum}
  .amdhsa_group_segment_fixed_size 0
  .amdhsa_kernarg_size 80
  .amdhsa_user_sgpr_count 2
  .amdhsa_user_sgpr_kernarg_segment_ptr 1
  .amdhsa_system_sgpr_workgroup_id_x 1
.end_amdhsa_kernel
"""
out = HEADER
out += f"; @launch grid=(256,1,1) block=(256,1,1) lds={LDS_BYTES}\n"
out += '.amdgcn_target "amdgcn-amd-amdhsa--gfx950"\n.text\n'
out += f".globl {NAME}_kernel\n.p2align 8\n.type {NAME}_kernel,@function\n" + gen_main().text()
out += '.section .rodata,"a"\n.p2align 6\n' + kd(NAME + "_kernel", 512, 102, 256)
open(sys.argv[1], "w").write(out)
```

```python
import sys, math
from asmlib import *

NAME = "standalone__kv_cache_quant_int4_int2_kv_with_per_channel_or_per_token_scales__prompt"
OPT = dict(stamp=0, vmgap=4, sb=6, sa=6, ahead=8, thr=64, pf2=1, calx="", qa=6, plv=2, plk=10, ckv=1, ckk=1, tden=24, touch=0, w0poll=0, cap=48, qb=6, q3e=1, ksc=0, few=1, qc=15, pb=39, pl4=40, l2=3, k1e=0, greedy=0, g3n=3, pre=0, own1=1, ab=0, pk=0, split=0, prent=1, bal=1, flex=1, w2=0, dense="S61,S5,S2,S3,S4", dx=4, dvg=2, f3=1, pvs=1, qo=0, po=0, x2c=12, sst=1, q0f=1, nb6=1, tv=1, omv=0, ldc=8, rs=0, ed=200, ed1=250, cut="16,42,8,48,18,38,12")
for a in sys.argv[2:]:
    k, v = a.split("="); OPT[k] = int(v) if v.lstrip("-").isdigit() else v
NS = 6
STAGE = 24576
HEADBYTES = 64 * STAGE
RING = NS * STAGE
LDS_BYTES = RING + 128
A0, B0, A1, B1, A2, B2 = [i * STAGE for i in range(6)]
CSCALE = (192.0 ** -0.5) * math.log2(math.e)
HEADER = open("cdna_kernels/" + NAME + ".s.ref").read().split("; Override launch geometry")[0]
MF = "v_mfma_f32_16x16x32_bf16"

V_FVAL = 0; V_RD = 1; V_RDK = [2, 3]; V_DMA = 4; V_L = [5, 6, 7, 8]
V_KLD = 9; V_KSC = 10; V_KST = 11; V_VLD = 12; V_FLAG = 13; V_RD2 = 23
V_T = 16; NTP = 2
V_VST = 15; V_STAMP = 14; V_T4 = 20
V_FR = 24; NFS = 6
V_CT = 48; V_VO = 52; V_RS = [56, 60]; BX = 224; BY = 240; BZ = 144
V_POLL = V_VO; V_KA = V_VO + 2
UNIT = [64, 80, 160, 176]; HI = [96, 112]
VQD = 136; VQR = [22, 23, 142, 143]
def Sq(t, sl, tb): return (UNIT[t % 4] if tb == 0 else HI[t % 2]) + 4 * sl
def P(t, sl): return UNIT[t % 4] + 4 * sl
def NEGM(qb): return 128 + 4 * qb
def O(qb, db): return (qb * 12 + db) * 4
def Qf(qb, s, half=None):
    i = qb * 6 + s
    base, f = (192 + 4 * i, ar) if i < 16 else (192 + 4 * (i - 16), vr)
    return f(base, 4) if half is None else f(base + 2 * half, 2)
def FR(f): return vr(V_FR + 4 * (f % NFS), 4)

S_RDELTA = 3; S_WS = 4; S_Q = 8; S_OUT = 12; S_FLG = 20
S_WAVE = 25; S_DMK = 26; S_GOFF = 27; S_RK = 28; S_TMP = 29; S_RV = 30; S_CNT = 31; S_GOFFK = 32
S_PK0 = 33; S_PK1 = 34; S_PV0 = 35; S_PKS = 36; S_PVS = 37; S_CS = 38; S_RET = 39; S_PV1 = 16; S_PV2 = 17
S_QL = 40; S_QS = 41; S_TAG = 42; S_FOFF = 44; S_XCC = 45; S_OWN = 46; S_RC = 46; S_RD = 47
S_PT = 48; S_DMV = 56; S_TK = 57; S_TV = 58; S_TP = 59
S_QK = 64; S_QV = 68; S_KS = 72; S_KZ = 76; S_VS = 80; S_VZ = 84; S_DBG = 88
S_NEED = 92; S_HOFF = 93; S_HEAD = 94; S_QB = 95; S_BUDGET = 96; S_MASK = 97
WSOFF = OPT.get("wsoff", 0) << 20
FLAG_OFF = WSOFF + (49 << 20)
SC1 = {0: " sc1", 1: "", 2: " nt", 3: " sc0", 4: " sc1 nt", 5: " sc0 sc1"}[OPT.get("dmaf", 0)]; NTKV = " nt"; NTQ = " nt"; STF = " sc1"; OF = " sc0 sc1"

STAMPS = []
def istamp(name, force=False):
    if OPT["calx"] == name: return ["s_memrealtime s[100:101]"]
    if OPT["stamp"] not in (6, 8, 9): return []
    if OPT["stamp"] == 8 and name.startswith("k") and not force: return []
    if OPT["few"] and force and name not in ("karg", "k0b", "vst", "tag", "post", "poll", "postV", "pollV", "pre-dk1"): return []
    if OPT["stamp"] != 8 and force: return []
    STAMPS.append(name)
    return ["s_waitcnt lgkmcnt(0)"] * (1 if force else 0) + [f"v_mov_b32_dpp v{V_STAMP}, v{V_STAMP} wave_shr:1 row_mask:0xf bank_mask:0xf", f"v_writelane_b32 v{V_STAMP}, s98, 0",
            ("s_memtime" if OPT["stamp"] == 6 else "s_memrealtime") + " s[98:99]"]

def order_stamps():
    l = list(STAMPS); out = []
    if "S62" in l:
        l.remove("S61"); l.insert(l.index("S62"), "S61")
    for n in l:
        if "." in n: continue
        out.append(n); out += [m for m in l if m.startswith(n + ".")]
    return out
class W:
    def __init__(self, *tags): self.tags = tags
class VM:
    def __init__(self, tag, text): self.tag = tag; self.text = text
class LG:
    def __init__(self, *tags): self.tags = tags
class DS:
    def __init__(self, tag, text): self.tag = tag; self.text = text

def mode_of(t):
    return {0: "a", 1: "a", 2: "b", 3: "b", 58: "a", 59: "a", 60: "a", 61: "b", 62: "b", 63: "b"}.get(t, "f")
def slot_q(t, sl):
    m = mode_of(t)
    return sl if m == "f" else (sl & 1) + (0 if m == "a" else 2)
def softmax_part(t, half):
    flat = []; prev = None
    for gp in range(8):
        sl = 2 * half + gp // 4; pi = gp % 4; l = V_L[slot_q(t, sl)]
        t0 = V_T + 2 * (gp % NTP); t1 = t0 + 1
        src = Sq(t, sl, pi >> 1) + 2 * (pi & 1)
        E = [f"v_exp_f32 v{t0}, v{src}", f"v_exp_f32 v{t1}, v{src+1}"]
        A = [f"v_add_f32 v{l}, v{l}, v{t0}", f"v_add_f32 v{l}, v{l}, v{t1}"]
        C = [f"v_cvt_pk_bf16_f32 v{P(t,sl)+pi}, v{t0}, v{t1}"]
        if 16 <= t < 26:
            if OPT["ab"] & 1: A = []
            if OPT["ab"] & 2: E = [x.replace("v_exp_f32", "v_mov_b32") for x in E]
            if OPT["ab"] & 32: C = []
            if OPT["ab"] & 64: E = []; A = []; C = []
        flat += E if prev is None else E[:1] + prev[0] + E[1:] + prev[1]
        prev = (A, C)
    return flat + prev[0] + prev[1]

class Grp:
    def __init__(self, rd, mf): self.rd = rd; self.mf = mf; self.reb = []
def qk_tile(t, w, slots, czero=False):
    gs = []
    if OPT["qo"] == 1 and len(slots) == 4:
        for s_ in range(6):
            rd = [(V_RDK[s_ & 1], w * 12288 + tb * 6144 + (s_ >> 1) * 128) for tb in range(2)]
            mf = []
            for sl, qb in slots:
                for tb in range(2):
                    d = vr(Sq(t, sl, tb), 4)
                    mf.append((tb, d, Qf(qb, s_), (("0" if czero else vr(NEGM(qb), 4)) if s_ == 0 else d)))
            gs.append(Grp(rd, mf))
        return gs
    for gi in range(6):
        s0 = 2 * (gi >> 1); tb = gi & 1
        rd = [(V_RDK[j], w * 12288 + tb * 6144 + (s0 >> 1) * 128) for j in range(2)]
        mf = []
        for sl, qb in slots:
            d = vr(Sq(t, sl, tb), 4)
            mf += [(0, d, Qf(qb, s0), (("0" if czero else vr(NEGM(qb), 4)) if s0 == 0 else d)), (1, d, Qf(qb, s0 + 1), d)]
        gs.append(Grp(rd, mf))
    return gs
def qk_full(t): return [g for w in range(2) for g in qk_tile(t + w, w, [(q, q) for q in range(4)])]
def qk_half(t, czero=False, ws=(0, 1)):
    return [g for w in ws for g in qk_tile(t, w, [(2 * w + j, slot_q(t, j)) for j in range(2)], czero)]
def OV(qb, db): return (BY if qb == 2 else BZ) + 4 * (db // 3)
def pv_grp(t, db, first=False, va=V_RD):
    m = mode_of(t); mf = []
    for qb in (range(4) if m == "f" else [slot_q(t, 0), slot_q(t, 1)]):
        d = ar(O(qb, db), 4)
        if OPT["omv"] and t >= 61 and db % 3 == 2: d = " " + vr(OV(qb, db), 4)
        for w in range(2):
            b = P(t + w, qb) if m == "f" else P(t, 2 * w + (qb & 1))
            mf.append((w, d, vr(b, 4), "0" if (first and w == 0) else d))
    return Grp([(va, w * 12288 + db * 1024) for w in range(2)], mf)
def pv_seq(t, first=False):
    if OPT["po"] == 1 and mode_of(t) == "f":
        gs = []
        for d0 in range(0, 12, 2):
            for w in range(2):
                mf = [(e, ar(O(qb, d0 + e), 4), vr(P(t + w, qb), 4), ar(O(qb, d0 + e), 4)) for qb in range(4) for e in range(2)]
                gs.append(Grp([(V_RD, w * 12288 + (d0 + e) * 1024) for e in range(2)], mf))
        return gs
    if OPT["po"] == 2 and mode_of(t) == "f":
        gs = []
        for db in range(12):
            mf = [(w, ar(O(qb, db), 4), vr(P(t + w, qb), 4), ar(O(qb, db), 4)) for w in range(2) for qb in range(4)]
            gs.append(Grp([(V_RD, w * 12288 + db * 1024) for w in range(2)], mf))
        return gs
    return [pv_grp(t, db, first) for db in range(12)]
def pv_unchained(t, first=False):
    gs = []
    for w in range(2):
        for d0 in range(0, 12, 2):
            mf = []
            for j in range(2):
                qb = slot_q(t, j)
                for e in range(2):
                    d = ar(O(qb, d0 + e), 4)
                    mf.append((e, d, vr(P(t, 2 * w + j), 4), "0" if (first and w == 0) else d))
            gs.append(Grp([(V_RD, w * 12288 + (d0 + e) * 1024) for e in range(2)], mf))
    return gs
def rebase(gs, regs, delta):
    op = "v_add_u32" if delta >= 0 else "v_subrev_u32"
    gs[0].reb += [f"{op} v{r}, {abs(delta)}, v{r}" for r in regs]
    return gs
def rd_op(gi, j, g):
    f = 2 * gi + j
    return DS(("fr", f % NFS), f"ds_read_b128 {FR(f)}, v{g.rd[j][0]} offset:{g.rd[j][1]}")

def dma_tile(part, pos, peel=False):
    dm, go, tmp = (S_DMK, S_GOFFK, S_TK) if part == "k" else (S_DMV, S_GOFF, S_TV)
    l = [f"s_mov_b32 m0, s{dm}"]
    for j in range(3):
        l.append(VM(("d" + part, pos % 8), f"buffer_load_dwordx4 v{V_DMA}, s[{S_WS}:{S_WS+3}], s{go} offen offset:{j*1024}{SC1} lds"))
    if peel and pos < 7:
        l += [f"s_add_u32 s{go}, s{go}, {STAGE}", f"s_sub_u32 s{tmp}, s{go}, {8*STAGE}", f"s_min_u32 s{go}, s{go}, s{tmp}"]
    elif peel and pos == 7:
        l += [f"s_mov_b32 s{go}, {8*STAGE + (0 if part == 'k' else 12288)}"]
    else:
        l += [f"s_add_u32 s{go}, s{go}, {STAGE}"]
    if pos % 2 == 0: l += [f"s_add_u32 s{dm}, s{dm}, 12288"]
    else: l += [f"s_add_u32 s{dm}, s{dm}, {2*STAGE - 12288}", f"s_sub_u32 s{tmp}, s{dm}, {RING}", f"s_min_u32 s{dm}, s{dm}, s{tmp}"]
    return l
QOFF = [STAGE, 0, 2 * STAGE, STAGE]
def q_dma(lst):
    l = []
    for i in lst:
        a, b = divmod(i, 6)
        l += [f"s_mov_b32 s{S_QS}, {a*6144}"] * (1 if (b == 0 or i == lst[0]) else 0)
        l += [f"s_add_u32 m0, s{S_QL}, {QOFF[a] + b*1024}",
              VM(("q", a), f"buffer_load_dwordx4 v{VQD+b}, s[{S_Q}:{S_Q+3}], s{S_QS} offen{NTQ} lds")]
    return l
def q_frags(qb):
    l = []
    for s in range(6):
        for h in range(2):
            sp = s + 6 * h
            l.append(DS(("qf", qb), f"ds_read_b64 {Qf(qb,s,h)}, v{VQR[sp&3]} offset:{QOFF[qb] + (sp>>2)*128}"))
    return l
def with_nop(l):
    out = []
    for i, x in enumerate(l):
        out.append(x)
        if isinstance(x, str) and " m0," in x and i + 1 < len(l) and isinstance(l[i + 1], VM): out.append("s_nop 0")
    return out
def rd_step(kind):
    cur, regs = (S_RK, V_RDK) if kind == "q" else (S_RV, [V_RD])
    return [f"s_add_u32 s{S_TMP}, s{cur}, {2*STAGE}", f"s_sub_u32 s{S_RDELTA}, s{S_TMP}, {RING}",
            f"s_min_u32 s{S_TMP}, s{S_TMP}, s{S_RDELTA}", f"s_sub_u32 s{S_RDELTA}, s{S_TMP}, s{cur}", f"s_mov_b32 s{cur}, s{S_TMP}"] + \
           [f"v_add_u32 v{r}, s{S_RDELTA}, v{r}" for r in regs]

def k_ld(h, buf, rs, tag, scal_first=True):
    sc = [VM(tag, f"buffer_load_dwordx2 v[{rs+2*i}:{rs+2*i+1}], v{V_KSC}, s[{srd_}:{srd_+3}], s{S_PKS} offen offset:{192*h}")
          for i, srd_ in enumerate((S_KS, S_KZ))]
    l = []
    for j in range(4):
        so = S_PK0 if j < 2 else S_PK1
        l.append(VM(tag, f"buffer_load_dwordx4 v[{buf+4*j}:{buf+4*j+3}], v{V_KLD}, s[{S_QK}:{S_QK+3}], s{so} offen offset:{(j&1)*1536+384*h}{NTKV}"))
    return sc + l if scal_first else l + sc
def v_ld(h, buf, rs, tag, scal_first=True):
    sc = [VM(tag, f"buffer_load_dwordx2 v[{rs+2*i}:{rs+2*i+1}], off, s[{srd_}:{srd_+3}], s{S_PVS} offset:{8*h}")
          for i, srd_ in enumerate((S_VS, S_VZ))]
    l = []
    for r in range(4):
        so = S_PV0 if h == 0 else S_PV1
        l.append(VM(tag, f"buffer_load_dwordx4 v[{buf+4*r}:{buf+4*r+3}], v{V_VLD}, s[{S_QV}:{S_QV+3}], s{so} offen offset:{r*768}{NTKV}"))
    return sc + l if scal_first else l + sc
def k_cv(h, buf, rs, out):
    l = []
    s0, s1, z0, z1 = V_CT, V_CT + 1, V_CT + 2, V_CT + 3
    for i in range(2):
        l += [f"v_lshlrev_b32 v{s0}, 16, v{rs+i}", f"v_and_b32 v{s1}, s{S_MASK}, v{rs+i}",
              f"v_lshlrev_b32 v{z0}, 16, v{rs+2+i}", f"v_and_b32 v{z1}, s{S_MASK}, v{rs+2+i}",
              f"v_mul_f32 v{s0}, s{S_CS}, v{s0}", f"v_mul_f32 v{s1}, s{S_CS}, v{s1}",
              f"v_mul_f32_e64 v{z0}, -v{z0}, v{s0}", f"v_mul_f32_e64 v{z1}, -v{z1}, v{s1}"]
        if OPT.get("nz", 0) & 1: l[-2:] = [f"v_mov_b32 v{z0}, 0", f"v_mov_b32 v{z1}, 0"]
        for j in range(4):
            a = buf + 4 * j + 2 * i; b = a + 1
            l += [f"v_cvt_f32_i32 v{a}, v{a}", f"v_cvt_f32_i32 v{b}, v{b}",
                  f"v_fma_f32 v{a}, v{a}, v{s0}, v{z0}", f"v_fma_f32 v{b}, v{b}, v{s1}, v{z1}",
                  f"v_cvt_pk_bf16_f32 v{out+4*j+2*h+i}, v{a}, v{b}"]
    return l
def k_st(j, out, tag="kst", STF=STF):
    va = V_KST; g = []
    if j:
        va = V_KA + (j & 1); g.append(f"v_xor_b32 v{va}, {16*j}, v{V_KST}")
    g.append(VM(tag, f"buffer_store_dwordx4 v[{out+4*j}:{out+4*j+3}], v{va}, s[{S_WS}:{S_WS+3}], s{S_PK0} offen offset:{j*768}{STF}"))
    return g
def v_cv(h, buf, rs, out):
    l = []
    s0, s1, z0, z1 = V_CT, V_CT + 1, V_CT + 2, V_CT + 3
    for i in range(2):
        l += [f"v_lshlrev_b32 v{s0}, 16, v{rs+i}", f"v_and_b32 v{s1}, s{S_MASK}, v{rs+i}",
              f"v_lshlrev_b32 v{z0}, 16, v{rs+2+i}", f"v_and_b32 v{z1}, s{S_MASK}, v{rs+2+i}",
              f"v_mul_f32_e64 v{z0}, -v{z0}, v{s0}", f"v_mul_f32_e64 v{z1}, -v{z1}, v{s1}"]
        if OPT.get("nz", 0) & 2: l[-2:] = [f"v_mov_b32 v{z0}, 0", f"v_mov_b32 v{z1}, 0"]
        for e in range(4):
            a = buf + 4 * (2 * i) + e; b = buf + 4 * (2 * i + 1) + e
            l += [f"v_cvt_f32_i32 v{a}, v{a}", f"v_cvt_f32_i32 v{b}, v{b}",
                  f"v_fma_f32 v{a}, v{a}, v{s0}, v{z0}", f"v_fma_f32 v{b}, v{b}, v{s1}, v{z1}"]
    for e, i in [(0, 0), (1, 0), (0, 1), (1, 1), (2, 0), (2, 1), (3, 0), (3, 1)]:
        l.append(f"v_cvt_pk_bf16_f32 v{out+4*e+2*h+i}, v{buf+8*i+e}, v{buf+8*i+4+e}")
    return l
def v_st(e, out, tag="vst", STF=STF):
    so = S_PV0 if e < 2 else S_PV2
    return [VM(tag, f"buffer_store_dwordx4 v[{out+4*e}:{out+4*e+3}], v{V_VST}, s[{S_WS}:{S_WS+3}], s{so} offen offset:{(e&1)*3072}{STF}")]
def k_adv():
    return [f"s_add_u32 s{S_PK0}, s{S_PK0}, {8*STAGE}", f"s_add_u32 s{S_PK1}, s{S_PK1}, {8*STAGE}", f"s_add_u32 s{S_PKS}, s{S_PKS}, {4*384}"]
def v_adv():
    return [f"s_add_u32 s{r}, s{r}, {8*STAGE}" for r in (S_PV0, S_PV1, S_PV2)] + [f"s_add_u32 s{S_PVS}, s{S_PVS}, {8*64}"]
HT = {"ka": (k_ld, k_cv, 0, BX, V_RS[0], BX), "kb": (k_ld, k_cv, 1, BY, V_RS[1], BX),
      "va": (v_ld, v_cv, 0, BZ, V_RS[0], BZ), "vb": (v_ld, v_cv, 1, BY, V_RS[1], BZ)}
def flag_post(first=False):
    return [f"v_add_u32 v{V_FVAL}, 1, v{V_FVAL}"] + [
            VM("flag", f"buffer_store_dword v{V_FVAL}, v{V_FLAG}, s[{S_FLG}:{S_FLG+3}], 0 offen")] * (OPT["l2"] == 1 or (OPT["l2"] == 2 and first)) + [
            VM("flag", f"buffer_store_dword v{V_FVAL}, v{V_FLAG}, s[{S_FLG}:{S_FLG+3}], 0 offen offset:32 sc1")]
def poll_addr():
    return [f"v_bfe_u32 v{V_POLL+1}, v{V_DMA}, 4, 6", f"v_lshlrev_b32 v{V_POLL+1}, 2, v{V_POLL+1}"]
def poll_load():
    return poll_addr() + [VM("poll", f"buffer_load_dword v{V_POLL}, v{V_POLL+1}, s[{S_FLG}:{S_FLG+3}], s{S_FOFF} offen sc1")]
def poll_test():
    return [f"v_subrev_u32 v{V_POLL}, s{S_NEED}, v{V_POLL}", f"v_cmp_lt_u32 vcc, 15, v{V_POLL}", "s_nop 0", f"s_and_b32 s{S_TP}, vcc_lo, 0xff"]
def smem_flags():
    return [f"s_buffer_load_dwordx8 s[{S_PT}:{S_PT+7}], s[{S_FLG}:{S_FLG+3}], s{S_FOFF} glc"]
def smem_reduce():
    return [f"s_sub_u32 s{S_PT+i}, s{S_PT+i}, s{S_NEED}" for i in range(8)] + [f"s_max_u32 s{S_PT}, s{S_PT}, s{S_PT+i}" for i in range(1, 8)]
def smem_test():
    return smem_flags() + ["s_waitcnt lgkmcnt(0)"] + smem_reduce() + [f"s_cmp_lt_u32 s{S_PT}, 16"]
def poll_slow(site):
    l = [f"L_pollslow{site}:"] + ([f"s_add_u32 s{S_TAG+1}, s{S_TAG+1}, {1 << (6 * site)}"] if OPT["stamp"] else [])
    l += [f"s_mov_b32 s{S_TP}, {60 if site == 0 else 200}", f"L_pollsm{site}:"] + smem_test() + [f"s_cbranch_scc1 L_pollok{site}",
          f"s_sub_u32 s{S_TP}, s{S_TP}, 1", f"s_cbranch_scc1 L_pollvec{site}", "s_sleep 1", f"s_branch L_pollsm{site}"]
    l += [f"L_pollvec{site}:"] + poll_addr() + [
            f"s_sub_u32 s{S_BUDGET}, s{S_BUDGET}, 1",
            f"s_cbranch_scc1 L_pollgiveup{site}",
            "s_sleep 2",
            f"buffer_load_dword v{V_POLL}, v{V_POLL+1}, s[{S_FLG}:{S_FLG+3}], s{S_FOFF} offen sc1",
            "s_waitcnt vmcnt(0)"]
    if site == 0 and OPT["l2"]:
        l += [f"s_bitcmp1_b32 s{S_NEED}, 9", "s_cbranch_scc1 L_nomix",
              f"v_xor_b32 v{V_POLL+1}, s{S_NEED}, v{V_POLL}", f"v_lshrrev_b32 v{V_POLL+1}, 5, v{V_POLL+1}", f"v_add_u32 v{V_POLL+1}, -1, v{V_POLL+1}",
              f"v_cmp_gt_u32 vcc, 31, v{V_POLL+1}", "s_nop 1", f"s_and_b32 s{S_TP}, vcc_lo, {'0xff' if OPT['l2'] == 3 else '0xff00'}", "s_cbranch_scc0 L_nomix"]
        l += fin([x for j in range(4) for x in k_st(j, BX)] + [x for e in range(4) for x in v_st(e, 112)])
        l += ["s_waitcnt vmcnt(0)", "s_barrier", f"s_and_b32 s{S_NEED}, s{S_NEED}, 0xfffffc00", f"s_add_u32 s{S_NEED}, s{S_NEED}, {16 << 5}",
              f"v_mov_b32 v{V_FVAL}, s{S_NEED}", f"s_add_u32 s{S_NEED}, s{S_NEED}, 1", f"s_mov_b32 s{S_FOFF}, 32"] + fin(flag_post()) + ["s_branch L_pollvec0", "L_nomix:"]
    l += poll_test() + [
            f"s_cbranch_scc1 L_pollvec{site}",
            f"s_branch L_pollok{site}",
            f"L_pollgiveup{site}:",
            f"s_mov_b32 s{S_BUDGET}, 0",
            f"s_branch L_pollok{site}"]
    return l
def tag_load():
    return [VM("tag", f"buffer_load_dword v{V_FVAL}, off, s[{S_DBG}:{S_DBG+3}], s{S_HOFF} sc1")]
def tag_check():
    return [f"s_cmp_lg_u32 s{S_WAVE}, 0", "s_cbranch_scc1 L_tagdone",
            f"v_readfirstlane_b32 s{S_TAG}, v{V_FVAL}", f"s_mov_b32 s{S_RET}, 100",
            "s_waitcnt lgkmcnt(0)", f"s_and_b32 s{S_OWN}, s{S_OWN}, 0xfffffc00",
            "L_tagretry:", f"s_cmp_eq_u32 s{S_TAG}, s{S_OWN}", f"s_cselect_b32 s{S_TAG}, 0, s{S_TAG}", f"s_cmp_lg_u32 s{S_TAG}, 0", "s_cbranch_scc1 L_tagok",
            f"s_sub_u32 s{S_RET}, s{S_RET}, 1", "s_cbranch_scc1 L_tagslow", "s_sleep 4",
            f"s_buffer_load_dword s{S_TAG}, s[{S_DBG}:{S_DBG+3}], s{S_HOFF} glc", "s_waitcnt lgkmcnt(0)", "s_branch L_tagretry",
            "L_tagok:", f"s_add_u32 s{S_TAG}, s{S_TAG}, s{S_XCC}", f"v_mov_b32 v{V_FVAL}, s{S_TAG}", f"v_mov_b32 v{V_T}, {RING}", DS("w", f"ds_write_b32 v{V_T}, v{V_FVAL}"), "L_tagdone:"]
def tag_get():
    return [f"v_mov_b32 v{V_T}, {RING}", DS("tg", f"ds_read_b32 v{V_T+1}, v{V_T}")]
def tag_use():
    return [f"v_readfirstlane_b32 s{S_NEED}, v{V_T+1}", f"s_add_u32 s{S_NEED}, s{S_NEED}, 1"]
def tag_slow():
    return ["L_tagslow:",
            f"s_sub_u32 s{S_BUDGET}, s{S_BUDGET}, 1",
            "s_cbranch_scc1 L_taggiveup",
            "s_sleep 2",
            f"buffer_load_dword v{V_FVAL}, off, s[{S_DBG}:{S_DBG+3}], s{S_HOFF} sc1",
            "s_waitcnt vmcnt(0)",
            f"v_readfirstlane_b32 s{S_TAG}, v{V_FVAL}", "s_nop 0", f"s_cmp_eq_u32 s{S_TAG}, s{S_OWN}", "s_cbranch_scc1 L_tagslow",
            f"s_cmp_eq_u32 s{S_TAG}, 0", "s_cbranch_scc1 L_tagslow",
            "s_branch L_tagok",
            "L_taggiveup:",
            f"s_mov_b32 s{S_BUDGET}, 0",
            "s_branch L_tagok"]

def text_of(x):
    return "s_waitcnt" if isinstance(x, (W, LG)) else (x.text if isinstance(x, (VM, DS)) else x)
def kind_of(x):
    t = text_of(x)
    if t.endswith(":"): return "label"
    if t.startswith("v_"): return "valu"
    if t.startswith("ds_"): return "ds"
    if t.startswith("buffer_store"): return "store"
    if t.startswith("buffer_"): return "load"
    return "salu"
def cost_of(x):
    k = kind_of(x); t = text_of(x)
    if k == "label": return 0
    if k == "store": return 20 if "x4" in t else (OPT["x2c"] if "x2" in t else 8)
    if k == "load": return OPT["ldc"]
    if t.startswith("ds_write"): return 16 if ("b128" in t or "write2" in t) else 8
    if t.startswith(("v_exp", "v_rcp")): return 8
    if t.startswith("v_mfma"): return 32
    if t.startswith("s_nop"): return 4 * (int(t.split()[1]) + 1)
    if t.startswith("s_cbranch") or t.startswith("s_branch"): return 12
    if t.startswith("s_barrier"): return 8
    return 4
def gap_time(ops):
    t = 4; prev = None
    for o in ops:
        if o is None: continue
        k = kind_of(o)
        if k == "label": continue
        if k == "salu": t += cost_of(o)
        else: t = max(t, 8) + cost_of(o) + (8 if (k != "valu" and prev == "valu") else 0)
        prev = k
    return t

class Stream:
    def __init__(self, ops, first, last, maxper=99, dense=0):
        self.nb = {}; self.dl = []; l = []
        for o in ops:
            if isinstance(o, tuple):
                if o[0] == "nb": self.nb[len(l)] = o[1]
                else: self.dl.append((len(l), o[1]))
            else: l.append(o)
        ops = l
        self.ops = list(ops); self.first = first; self.last = last; self.maxper = maxper; self.dense = dense
        self.total = sum(cost_of(o) for o in self.ops); self.done = 0; self.i = 0
        self.gate = {}; self.i0 = 0

def pack(NG, A, B, C, T, streams, novm=(), nosalu=(), vmgap=4):
    out = []; over = 0; lastvm = -99
    for g in range(NG):
        a, b, c, tl = list(A[g]), list(B[g]), list(C[g]), list(T[g])
        cnt = {}; inC = set(); blocked = set()
        while True:
            best = None; bl = None; bsec = None
            for st in streams:
                if st.i >= len(st.ops) or g < st.first: continue
                if g < st.nb.get(st.i, 0): continue
                force = g >= st.last or any(st.i < n and g >= dg for n, dg in st.dl)
                if (cnt.get(id(st), 0) >= st.maxper or id(st) in blocked) and not force: continue
                o = st.ops[st.i]; k = kind_of(o); cst = cost_of(o)
                if k == "salu" and g in nosalu:
                    assert not force, (g, text_of(o))
                    continue
                if k in ("load", "store") and (g in novm or g - lastvm < vmgap) and not force: continue
                if k in ("load", "store", "ds"):
                    sec = "b" if id(st) not in inC and id(st) not in blocked else "c"
                    if sec == "c" and not force: continue
                elif k == "salu" and not a and cnt.get(id(st), 0) == 0:
                    sec = "a"
                else: sec = "c"
                tgt = st.total * (g - st.first + 1) / (st.last - st.first + 1)
                lag = tgt - st.done
                if not force:
                    if lag < cst / 2 - OPT["ahead"] and cst: continue
                    trial = (a + [o] if sec == "a" else a) + (b + [o] if sec == "b" else b) + (c + [o] if sec == "c" else c) + tl
                    gt = gap_time(trial)
                    if gt > 16:
                        if g % 2 == 0: continue
                        big = k == "store" or text_of(o).startswith(("ds_write_b128", "ds_write2"))
                        lim = max(20, st.dense) if lag > 24 else 16
                        if big and not (a + b + c + tl): lim = 32
                        if gt > lim: continue
                key = (force, k in ("load", "store"), lag / max(1, (st.last - g + 1)) ** 0.5)
                if best is None or key > bl: best = st; bl = key; bsec = sec
            if best is None: break
            o = best.ops[best.i]
            if bsec == "a": a.append(o)
            elif bsec == "b":
                b.append(o)
            else: c.append(o)
            if bsec == "c" or bsec == "b" and kind_of(o) != "ds" and False: inC.add(id(best))
            if bsec == "c": inC.add(id(best))
            if " m0," in text_of(o): blocked.add(id(best))
            if kind_of(o) in ("load", "store"): lastvm = g
            best.i += 1; best.done += cost_of(o); cnt[id(best)] = cnt.get(id(best), 0) + 1
        ops = a + b + c + tl
        tt = gap_time(ops)
        if tt > 16: over += tt - 16
        out.append(ops)
    for st in streams: assert st.i == len(st.ops)
    return out, over

def pack_dense(NG, A, B, C, T, streams, novm=(), nosalu=(), vmgap=2):
    jobs = []
    for st in streams:
        r = st.first; rel = []
        for i in range(len(st.ops)):
            r = max(r, st.nb.get(i, 0)); rel.append(r)
        for i, o in enumerate(st.ops):
            d = min([st.last] + [dg for n, dg in st.dl if i < n])
            k = kind_of(o)
            jobs.append([rel[i], d, cost_of(o) + (OPT["dx"] if k in ("store", "load") else 0) - (2 if k == "salu" else 0)])
    for g in range(NG): jobs.append([g, g, max(0, gap_time(A[g] + B[g] + C[g] + T[g]) - 8)])
    level = [None] * NG
    while jobs:
        free = [g for g in range(NG) if level[g] is None]
        pts_r = sorted({j[0] for j in jobs}); pts_d = sorted({j[1] for j in jobs})
        best = None
        for a_ in pts_r:
            ws = sorted((j[1], j[2]) for j in jobs if j[0] >= a_)
            w = 0; i = 0
            for b_ in pts_d:
                if b_ < a_: continue
                while i < len(ws) and ws[i][0] <= b_: w += ws[i][1]; i += 1
                n = sum(1 for g in free if a_ <= g <= b_)
                if n and (best is None or w / n > best[0]): best = (w / n, a_, b_)
        dn, a_, b_ = best
        if dn <= 8: break
        for g in free:
            if a_ <= g <= b_: level[g] = dn
        jobs = [j for j in jobs if not (j[0] >= a_ and j[1] <= b_)]
    extra = [2 * (level[g] - 8) if (level[g] is not None and g % 2) else 0 for g in range(NG)]
    return pack_dense1(NG, A, B, C, T, streams, novm, nosalu, vmgap, extra)
def pack_dense1(NG, A, B, C, T, streams, novm, nosalu, vmgap, extra):
    out = []; over = 0; lastvm = -99
    fixed = [gap_time(A[g] + B[g] + C[g] + T[g]) - (8 if not (B[g] + C[g] + T[g]) else 8) for g in range(NG)]
    for g in range(NG):
        a, b, c, tl = list(A[g]), list(B[g]), list(C[g]), list(T[g])
        carry = (carry if g else 0) + extra[g]
        bud = 16 + (carry if g % 2 else 0)
        blocked = set(); inC = set()
        for st in streams: st.i0 = st.i
        while True:
            best = None; bl = None
            cur = gap_time(a + b + c + tl)
            for st in streams:
                if st.i >= len(st.ops) or g < st.first or g < st.nb.get(st.i, 0): continue
                if st.i in st.gate:
                    o_, j_ = st.gate[st.i]
                    if (o_.i0 if (kind_of(st.ops[st.i]) == "store" and g < NG - 1) else o_.i) <= j_: continue
                    if o_.i0 <= j_: inC.add(id(st))
                force = g >= st.last or any(st.i < n and g >= dg for n, dg in st.dl)
                if id(st) in blocked and not force: continue
                o = st.ops[st.i]; k = kind_of(o)
                if k == "salu" and g in nosalu:
                    assert not force
                    continue
                mem = k in ("load", "store", "ds")
                if k in ("load", "store") and (g in novm or g - lastvm < vmgap) and not force: continue
                sec = "b" if (mem and id(st) not in inC) else ("a" if (k == "salu" and not a and id(st) not in inC and id(st) not in blocked and not any(x is st for x in ())) else "c")
                if sec == "a" and any(id(st) == y for y in inC): sec = "c"
                if mem and sec == "c" and not force: continue
                trial = gap_time((a + [o] if sec == "a" else a) + (b + [o] if sec == "b" else b) + (c + [o] if sec == "c" else c) + tl)
                if not force and trial > bud and not (cur < 16 and trial <= bud + 12 and g % 2): continue
                tgt = st.total * (g - st.first + 1) / (st.last - st.first + 1)
                n_, dd = min([(len(st.ops), st.last)] + [(n, dg) for n, dg in st.dl if st.i < n], key=lambda x: x[1])
                need = sum(cost_of(x) for x in st.ops[st.i:n_]) / max(1, dd - g + 1)
                key = (force, mem, need)
                if best is None or key > bl: best = st; bl = key; bsec = sec
            if best is None: break
            o = best.ops[best.i]
            {"a": a, "b": b, "c": c}[bsec].append(o)
            if bsec == "c" or (bsec == "b"):
                if bsec == "c": inC.add(id(best))
                else: usedb = True
            if bsec in ("a", "b"): best._g = g
            if " m0," in text_of(o): blocked.add(id(best))
            if kind_of(o) in ("load", "store"): lastvm = g
            best.i += 1; best.done += cost_of(o)
            if bsec == "b" and not a: a.append(None)
        a = [x for x in a if x is not None]
        ops = a + b + c + tl
        tt = gap_time(ops)
        carry = max(0, carry - max(0, tt - 16)) if extra[g] or g % 2 == 0 else 0
        if tt > 16: over += tt - 16
        out.append(ops)
    for st in streams: assert st.i == len(st.ops)
    return out, over

POLLSITES = []
def gen_seg(name, groups, nxt, sm=(), bars=(), tasks=(), dma=(), extra=(), endops=(), fixed=(), peel=True, vmgap=None):
    starts = []; n = 0
    for g in groups: starts.append(n); n += len(g.mf)
    NG = n
    A = [[] for _ in range(NG)]; B = [[] for _ in range(NG)]; C = [[] for _ in range(NG)]; T = [[] for _ in range(NG)]
    streams = []; novm = set(range(0, NG, 2)); nosalu = set()
    allg = list(groups) + list(nxt)
    assert len(groups) % 3 == 0
    for i, g in enumerate(groups):
        g0 = starts[i]; ln = len(g.mf)
        if i + 2 < len(allg):
            t = allg[i + 2]
            if not (OPT["ab"] & 4 and name.startswith("k") and i % 2): B[g0].append(rd_op(i + 2, 0, t)); B[g0 + ln // 2].append(rd_op(i + 2, 1, t))
            if t.reb:
                assert g0 > 0
                C[g0 - 1] += t.reb
        if i + 1 < len(allg):
            A[g0 + ln - 1].append(LG(("fr", (2 * i + 2) % NFS), ("fr", (2 * i + 3) % NFS)))
    for ops, f, l in sm: streams.append(Stream(ops, f, l))
    streams += list(extra)
    if endops:
        A[NG-4] += endops[:1]; A[NG-2] += [A[NG-1][0]] + list(endops[1:-1]); A[NG-1] = []; T[NG-1] = list(endops[-1:]); nosalu |= {NG-2, NG-1}
    for grp in dma:
        dl = []
        for part, pos in grp[:-2]: dl += dma_tile(part, pos, peel)
        k = max(i for i, x in enumerate(dl) if isinstance(x, VM)) + 1
        lim = NG - 3 if endops else NG - 1
        if grp[-1] + 1 > lim: k = len(dl)
        streams.append(Stream(dl[:k], grp[-2], grp[-1], maxper=2))
        if dl[k:]: streams.append(Stream(dl[k:], grp[-1] + 1, min(lim, grp[-1] + 12), maxper=2))
    bars = [(g, list(tg)) for g, tg in bars]
    for t in tasks:
        k_ = t[0]
        if k_ == "cv":
            _, cv, h, buf, rs, outb = HT[t[1]]
            ops = cv(h, buf, rs, outb)[t[2]:t[3]]
            if t[2] == 0: ops = [W(t[1])] + ops
            streams.append(Stream(ops, t[4], t[5]))
        elif k_ in ("kst", "vst"):
            grp = k_st(t[1], BX) if k_ == "kst" else v_st(t[1], BZ)
            g = t[2]; assert g % 2 == 1 and not B[g] and not A[g], (name, g)
            B[g].append(grp[-1]); novm |= set(range(g - OPT["sb"], g + OPT["sa"] + 1))
            if grp[:-1]: streams.append(Stream(grp[:-1], max(0, g - 5), g - 1))
        elif k_ in ("ld", "ldn"):
            ld, _, h, buf, rs, _o = HT[t[1]]
            adv = {"ka": k_adv(), "va": v_adv()}.get(t[1], []) if k_ == "ld" else []
            ops = ld(h, buf, rs, t[1])
            if len(t) > 4: ops = ops[2:] if t[4] == "raw" else ops[:2]
            streams.append(Stream(adv + ops, t[2], t[3], maxper=1))
        elif k_ == "post":
            bi = t[2] if len(t) > 2 else -1
            bars[bi][1].append(t[1])
            streams.append(Stream(flag_post(), bars[bi][0] + 1, min(NG - 3, bars[bi][0] + 14), maxper=1))
        elif k_ == "pf":
            streams.append(Stream([VM("pf", f"buffer_load_dword v{V_T4}, v{V_DMA}, s[{S_DBG}:{S_DBG+3}], s{S_HOFF} offen")], t[1], t[2]))
        elif k_ == "rld":
            streams.append(Stream([VM("rs", f"buffer_load_dwordx4 v[{V_T4}:{V_T4+3}], v{V_DMA}, s[{S_WS}:{S_WS+3}], s{S_RC} offen sc1")], t[1], t[2]))
        elif k_ == "rst":
            g = t[1]; assert g % 2 == 1 and not B[g] and not A[g] and not A[g - 1], (name, g)
            A[g - 1].append(W("rs")); B[g].append(VM("rs2", f"buffer_store_dwordx4 v[{V_T4}:{V_T4+3}], v{V_DMA}, s[{S_WS}:{S_WS+3}], s{S_RC} offen sc1"))
            novm |= set(range(g - OPT["sb"], g + OPT["sa"] + 1))
            streams.append(Stream([f"s_add_u32 s{S_RC}, s{S_RC}, s{S_RD}", f"s_sub_u32 s{S_RD}, 1024, s{S_RD}"], g + 1, g + 8, maxper=1))
        elif k_ == "pollld": streams.append(Stream(poll_load(), t[1], t[2], maxper=1))
        elif k_ == "pollchk":
            ps = len(POLLSITES); POLLSITES.append(ps)
            g = t[1]; assert g % 4 == 1
            pt = poll_test()
            A[g] += [W("poll")]; T[g] += pt[:2]; novm |= {g, g + 4}
            A[g + 3] += [pt[3]]; A[g + 4] += [f"s_cbranch_scc1 L_pollslow{ps}", f"L_pollok{ps}:"]; nosalu |= {g + 3, g + 4}
            A[g + 5] += [f"s_add_u32 s{S_NEED}, s{S_NEED}, 1"]
        elif k_ == "spollld": A[t[1]] += smem_flags()
        elif k_ == "spollchk":
            ps = len(POLLSITES); POLLSITES.append(ps)
            A[t[1]] += ["s_waitcnt lgkmcnt(0)"]
            streams.append(Stream(smem_reduce(), t[1] + 1, t[2] - 1, maxper=3))
            A[t[2]] += [f"s_cmp_ge_u32 s{S_PT}, 16", f"s_cbranch_scc1 L_pollslow{ps}", f"L_pollok{ps}:", f"s_add_u32 s{S_NEED}, s{S_NEED}, 1"]
        elif k_ == "step": streams.append(Stream(rd_step(t[1]), t[2], t[3], maxper=1))
        elif k_ == "q": streams.append(Stream(q_dma(t[1]), t[2], t[3], maxper=2))
        else: raise Exception(k_)
    for g, tags in bars:
        i = [j for j in range(len(groups)) if starts[j] + len(groups[j].mf) - 1 == g]
        assert i, (name, g)
        if len(groups[i[0]].mf) == 8:
            A[g - 2] += A[g]; A[g] = []
            if tags: A[g - 1] += [W(*tags)]
        elif tags: A[g - 2] += [W(*tags)]
        A[g] += ["s_barrier"]; novm |= {g}
    for g, sec, ops in fixed: {"A": A, "B": B, "C": C, "T": T}[sec][g] += ops
    if endops:
        for st_ in streams: st_.last = min(st_.last, NG - 2)
    m0w = sorted((st.first, st.last) for st in streams if any(" m0," in text_of(o) for o in st.ops))
    assert all(m0w[i][1] < m0w[i + 1][0] for i in range(len(m0w) - 1)), (name, m0w)
    if name in str(OPT["dense"]).split(","): fill, over = pack_dense(NG, A, B, C, T, streams, novm, nosalu, vmgap or OPT["dvg"])
    else: fill, over = pack(NG, A, B, C, T, streams, novm, nosalu, vmgap or OPT["vmgap"])
    if over: print(f"seg {name}: over budget by {over} cycles", file=sys.stderr)
    out = istamp(name)
    g = 0
    for i, gr in enumerate(groups):
        for j, d, b, c in gr.mf:
            if (OPT["pvs"] & 1 and d[0] in "a ") or (OPT["pvs"] & 2 and d.startswith("v")): out.append(f"{MF} {d}, {b}, {FR(2*i+j)}, {c}")
            else: out.append(f"{MF} {d}, {FR(2*i+j)}, {b}, {c}")
            out += fill[g]; g += 1
    return with_nop(out)

GBAR = 79
def seg_groups(it):
    return qk_full(it + 1) if it % 2 else pv_seq(it - 2)
def gen_iter(it, tasks=(), dma=(), name=None, endops=(), peel=False, nxt=None, extra=(), bars=None, groups=None, sm=None, step=True):
    q = it % 2
    smB = softmax_part(it, 1); smA = softmax_part(it + 1, 0)
    if sm is None: sm = ([(smB + [("dl", 57), ("nb", 47)] + smA, 0, 95)] if OPT["flex"] else [(smB, 0, 50), (smA, 52, 95)]) if q else [(smB + smA, 0, 95)]
    need = [("dv", (it - 1) % 8), ("dv", it % 8)] if q else [("dk", (it + 2) % 8), ("dk", (it + 3) % 8)]
    tasks = list(tasks) + ([("step", "p" if q else "q", 30, GBAR - 3)] if step else [])
    return gen_seg(name or f"i{it}", groups or seg_groups(it), nxt if nxt is not None else seg_groups(it + 1)[:2], sm,
                   bars if bars is not None else [(GBAR, need)], tasks, dma, extra, endops, peel=peel)

K_ = lambda *j: tuple(("k", x) for x in j)
V_ = lambda *j: tuple(("v", x) for x in j)
def steady(k):
    ckv, ckk = OPT["ckv"], OPT["ckk"]
    plv, plk = OPT["plv"], OPT["plk"]
    if OPT["bal"]:
        c = [int(x) for x in str(OPT["cut"]).split(",")]
        a1, a2, b1, b2, v1, v2, w1 = c
        return {
            5: ([("cv", "ka", 0, a1, 0, 95), ("pollchk", 1), ("vst", 0, 9), ("vst", 1, 17), ("vst", 2, 25), ("vst", 3, 33), ("post", "vst")], [K_(0, 1) + (41, 74)]) if ckk == 1 else
               ([("cv", "ka", 0, a1, 0, 95), ("pollchk", ckk), ("vst", 0, 1), ("vst", 1, 9), ("vst", 2, 17), ("vst", 3, 25), ("post", "vst")], [K_(0, 1) + (ckk + 7, 92)]),
            6: ([("cv", "ka", a1, a2, 0, 95), ("ld", "kb", 0, 44)] + [("rld", 70, 92)] * OPT["rs"], [K_(2, 3) + (0, 90)]),
            7: ([("cv", "ka", a2, 99, 0, 60), ("cv", "kb", 0, b1, 61, 95), ("ld", "va", 11, 70), ("pollld", plv, plv + 8)], [K_(4, 5) + (11, 92)]),
            0: ([("cv", "kb", b1, b2, 0, 95), ("pollchk", ckv)] + [("rst", 81)] * OPT["rs"], [V_(0, 1) + (ckv + 7, 74)]),
            1: ([("cv", "kb", b2, 99, 0, 30), ("cv", "va", 0, v1, 31, 95), ("ld", "vb", 32, 80)], [V_(2, 3) + (0, GBAR - 5)]),
            2: ([("cv", "va", v1, v2, 0, 95), ("kst", 0, 1), ("kst", 1, 9), ("kst", 2, 17), ("kst", 3, 25), ("post", "kst")], [K_(6, 7) + (33, 74)]),
            3: ([("cv", "va", v2, 99, 0, 50), ("cv", "vb", 0, w1, 51, 95), ("ld", "ka", 0, 44)], [V_(4, 5) + (0, 90)]),
            4: ([("cv", "vb", w1, 99, 0, 95), ("pollld", plk, plk + 16)] + ([("pf", 80, 92)] if OPT["pf2"] else []), [V_(6, 7) + (0, GBAR - 5)]),
        }[k]
    return {
        1: ([("cv", "va", 0, 22, 0, 95), ("ld", "vb", 0, 44)], [V_(2, 3) + (0, GBAR - 5)]),
        2: ([("cv", "va", 22, 99, 0, 95), ("kst", 0, 1), ("kst", 1, 9), ("kst", 2, 17), ("kst", 3, 25), ("post", "kst")], [K_(6, 7) + (33, 74)]),
        3: ([("cv", "vb", 0, 22, 0, 95), ("ld", "ka", 0, 44)], [V_(4, 5) + (0, GBAR - 5)]),
        4: ([("cv", "vb", 22, 99, 0, 95), ("pollld", plk, plk + 16)] + ([("pf", 80, 92)] if OPT["pf2"] else []), [V_(6, 7) + (0, GBAR - 5)]),
        5: ([("cv", "ka", 0, 16, 0, 95), ("pollchk", 1), ("vst", 0, 9), ("vst", 1, 17), ("vst", 2, 25), ("vst", 3, 33), ("post", "vst")], [K_(0, 1) + (41, 74)]),
        6: ([("cv", "ka", 16, 99, 0, 95), ("ld", "kb", 0, 30)], [K_(2, 3) + (31, 74)]),
        7: ([("cv", "kb", 0, 24, 40, 95), ("ld", "va", 11, 40), ("pollld", plv, plv + 8)], [K_(4, 5) + (41, 90)]),
        0: ([("cv", "kb", 24, 99, 0, 95), ("pollchk", ckv)], [V_(0, 1) + (ckv + 7, ckv + 44)]),
    }[k]

GA = V_RS[0]; TA = V_RS[0] + 1; BA = V_RS[0] + 2
RL = [V_CT, V_CT + 4, NEGM(0), NEGM(1)]
S_EO = 24
def epi_addr():
    return [f"v_bfe_u32 v{TA}, v{V_DMA}, 8, 2", f"v_mul_u32_u24 v{GA}, 1536, v{TA}", f"v_lshlrev_b32 v{BA}, 4, v{TA}",
            f"v_bfe_u32 v{TA}, v{V_DMA}, 4, 4", f"v_lshl_add_u32 v{GA}, v{TA}, 3, v{GA}", f"v_mov_b32 v{TA}, 1.0",
            f"s_lshl_b32 s{S_EO}, s{S_QB}, 2", f"s_add_u32 s{S_EO}, s{S_EO}, s{S_WAVE}", f"s_mul_i32 s{S_EO}, s{S_EO}, {STAGE}",
            f"s_add_u32 s{S_QL}, s{S_EO}, 6144", f"s_add_u32 s{S_QS}, s{S_EO}, 12288", f"s_add_u32 s{S_TAG}, s{S_EO}, 18432"]
S_EQ = [S_EO, S_QL, S_QS, S_TAG]
def epi_l(qs, gap=("s_nop 7", "s_nop 1")):
    fl = [f"v_mfma_f32_16x16x4_f32 v[{RL[q]}:{RL[q]+3}], v{V_L[q]}, v{TA}, 0" for q in qs] + list(gap)
    return fl + [f"v_rcp_f32 v{RL[q]+r}, v{RL[q]+r}" for q in qs for r in range(4)]
class Epi:
    def __init__(self, temps): self.temps = temps; self.n = 0; self.pend = []
    def flush(self, k=99):
        p = self.pend[:k]; self.pend = self.pend[k:]
        return p
    def chunk(self, qb, n, pk=False, inv=False):
        p = []
        ob = self.temps[self.n % len(self.temps)]; self.n += 1
        for r in range(4):
            o = ob + 4 * r
            if inv:
                p += [f"v_mul_f32 v{o+e}, v{OV(qb,3*e+n)+r}, v{RL[qb]+r}" for e in range(4)]
                p += [f"v_cvt_pk_bf16_f32 v{o+i}, v{o+2*i}, v{o+2*i+1}" for i in range(2)] + self.flush(1)
                self.pend.append(VM("out", f"buffer_store_dwordx2 v[{o}:{o+1}], v{GA}, s[{S_OUT}:{S_OUT+3}], s{S_EQ[qb]} offen offset:{n*128 + r*384}{OF}"))
                continue
            p += [f"v_accvgpr_read_b32 v{o+e}, a{O(qb,3*e+n)+r}" for e in range(4)]
            rl = RL[qb] + r
            if pk: p += [f"v_pk_mul_f32 v[{o+2*i}:{o+2*i+1}], v[{o+2*i}:{o+2*i+1}], v[{rl&~1}:{(rl&~1)+1}] " + ("op_sel:[0,1] op_sel_hi:[1,1]" if rl & 1 else "op_sel_hi:[1,0]") for i in range(2)]
            else: p += [f"v_mul_f32 v{o+e}, v{o+e}, v{rl}" for e in range(4)]
            p += [f"v_cvt_pk_bf16_f32 v{o+i}, v{o+2*i}, v{o+2*i+1}" for i in range(2)]
            p += self.flush(1)
            self.pend.append(VM("out", f"buffer_store_dwordx2 v[{o}:{o+1}], v{GA}, s[{S_OUT}:{S_OUT+3}], s{S_EQ[qb]} offen offset:{n*128 + r*384}{OF}"))
        return p

def gen_tail():
    sp = softmax_part
    g57 = qk_half(58) + rebase(qk_half(59), V_RDK, A0 - A2)
    g58 = pv_seq(56)
    g59 = rebase(qk_half(60), V_RDK, A1 - A0) + rebase(qk_half(61), V_RDK, A2 - A1)
    g60 = rebase(pv_seq(58), [V_RD], B2 - B1) + rebase(pv_seq(59), [V_RD], B0 - B2)
    g61 = rebase(pv_seq(60), [V_RD], B1 - B0) + rebase(qk_half(62), V_RDK, A0 - A2)
    g62 = rebase(qk_half(63), V_RDK, A1 - A0) + ([] if OPT["f3"] else rebase(pv_seq(61), [V_RD], B2 - B1))
    g63 = []
    for n in range(3):
        if OPT["f3"]: g63 += [pv_grp(61, 3 * e + n, va=VQR[0]) for e in range(4)]
        g63 += [pv_grp(62, 3 * e + n) for e in range(4)] + [pv_grp(63, 3 * e + n, va=V_RD2) for e in range(4)]
    if OPT["f3"]: g63[0].reb += [f"v_add_u32 v{VQR[0]}, {B2 - B1}, v{V_RD}", f"v_mov_b32 v{V_RD2}, v{V_RD}", f"v_subrev_u32 v{V_RD}, {B1 - B0}, v{V_RD}"]
    else: g63[0].reb += [f"v_subrev_u32 v{V_RD2}, {B2 - B1}, v{V_RD}", f"v_subrev_u32 v{V_RD}, {B2 - B0}, v{V_RD}"]
    first57 = g57[:2]
    p = []
    p += gen_seg("S57", g57, g58[:2], [(sp(57, 1) + [("dl", 50), ("nb", 28)] + sp(58, 0), 0, 95)], [(7, [("dk", 5)]), (GBAR, [("dv", 0), ("dv", 1)])],
                 [("step", "p", 30, GBAR - 3)], [(K_(62, 63) + (8, 60)) if OPT["tv"] else (K_(62, 63) + V_(58, 59) + (8, 90))], peel=False)
    p += gen_seg("S58", g58, g59[:2], [(sp(58, 1) + sp(59, 0), 0, 95), (epi_addr(), 0, 95)], [(GBAR, [("dk", 7)] if OPT["tv"] else [("dk", 7), ("dv", 3)])], [],
                 [(V_(58, 59, 60, 61) + (0, 74)) if OPT["tv"] else (V_(60, 61) + (0, 60))], peel=False)
    p += gen_seg("S59", g59, g60[:2], [(sp(59, 1) + [("dl", 50), ("nb", 28)] + sp(60, 0), 0, 95)], [(15, [("dv", 5)])], [], [V_(62, 63) + (16, 60)], peel=False)
    p += gen_seg("S60", g60, g61[:2], [(sp(60, 1) + sp(61, 0), 0, 95)], [(GBAR, [("dv", 7)])])
    ep = Epi([BX] if OPT["omv"] else [BX, BY])
    e01 = [x for qb in (0, 1) for n in range(3) for x in ep.chunk(qb, n, OPT["pk"])] + ep.flush()
    chk = [f"v_max3_f32 v{V_T+2}, v{V_L[0]}, v{V_L[1]}, v{V_L[2]}", f"v_max_f32 v{V_T+2}, v{V_T+2}, v{V_L[3]}",
           f"s_mov_b32 s{S_TMP}, 0x{f32bits(2.0**OPT['thr']):08x}", f"v_cmp_lt_f32 s[{S_PT}:{S_PT+1}], s{S_TMP}, v{V_T+2}"]
    c = [ep.chunk(2, j, OPT["pk"]) + ep.chunk(3, j, OPT["pk"]) + ep.flush() for j in range(2)]
    sm = sp(61, 1) + epi_l((0, 1), [])[2:] + [("dl", 50), ("nb", 76)] + sp(62, 0) + [("nb", 98)] + sp(62, 1) + [("nb", 124)] + sp(63, 0) + [("nb", 148)] + sp(63, 1) + [("dl", 205)] + chk + [("nb", 214)] + epi_l((2, 3), [])[2:]
    ee = e01 + [("nb", 228)] + c[0] + [("nb", 260)] + c[1]
    lastsm = 220
    if OPT["f3"]:
        sm = sp(61, 1) + epi_l((0, 1), [])[2:] + [("dl", 50), ("nb", 76)] + sp(62, 0) + [("nb", 98)] + sp(62, 1) + [("dl", 157), ("nb", 124)] + sp(63, 0) + [("nb", 148)] + sp(63, 1) + [("dl", 173)] + chk + [("nb", 182)] + epi_l((2, 3), [])[2:]
        ee = e01 + [("dl", OPT["ed"]), ("nb", 196)] + c[0] + [("dl", OPT["ed1"]), ("nb", 244)] + c[1]
        lastsm = 190
    if OPT["sst"]:
        prod = []; ev = []
        for x in ee:
            if isinstance(x, VM): prod.append(x)
            else: ev.append(x)
        es = Stream(ev, 52, 286); ss = Stream(prod, 52, 287)
        cv = [i for i, x in enumerate(es.ops) if text_of(x).startswith("v_cvt_pk")][1::2]
        rd = [i for i, x in enumerate(es.ops) if text_of(x).startswith("v_accvgpr_read")][0::4]
        assert len(cv) == len(prod) == len(rd)
        for k in range(len(prod)):
            ss.gate[k] = (es, cv[k]); ss.nb[k] = max([0] + [gp for i, gp in es.nb.items() if i <= cv[k]])
            kk = k + 4 * len(ep.temps)
            if kk < len(prod): es.gate[rd[kk]] = (ss, k)
        xs = [es, ss]
        if OPT["omv"]: xs.append(Stream([f"v_accvgpr_read_b32 v{OV(q, db)+r}, a{O(q, db)+r}" for q in (2, 3) for db in (2, 5, 8, 11) for r in range(4)], 0, 140))
    else: xs = [Stream(ee, 52, 287)]
    p += gen_seg("S61", g61 + g62 + g63, [], [(sm, 0, lastsm)], extra=xs,
                 fixed=[(1, "T", epi_l((0, 1))[:1]), (3, "T", epi_l((0, 1))[1:2]), (lastsm - 15, "T", epi_l((2, 3))[:1]), (lastsm - 13, "T", epi_l((2, 3))[1:2]), (lastsm + 5, "A", [f"s_cmp_lg_u64 s[{S_PT}:{S_PT+1}], 0", "s_cbranch_scc1 L_slow"]), (95, "T", istamp("S62")), (191, "T", istamp("S63"))])
    p += istamp("fin") + ["s_nop 7"]
    if OPT["omv"]: ep.temps = [UNIT[0], UNIT[1]]
    p += ep.chunk(2, 2, True, OPT["omv"]) + ep.flush() + ep.chunk(3, 2, True, OPT["omv"]) + ep.flush()
    return first57, p
def slow_epi():
    ep = Epi([64 + 16 * i for i in range(4)])
    seq = ["s_nop 1"] + epi_l((0, 1)) + epi_l((2, 3)) + ["s_nop 0"]
    for qb in range(4):
        for n in range(3): seq += ep.chunk(qb, n, True)
    return seq + ep.flush()

def kfrag(g):
    return 2 * (g >> 2) + (g & 1), (g >> 1) & 1
def gen_slow():
    KF = 64; VF = 112; SS = 160; PP = 224; M = [240, 241, 242, 243]; KA = [244, 245]; LA = 246; t = V_T
    p = ["L_slow:", "s_waitcnt vmcnt(0) lgkmcnt(0)", "s_nop 15"]
    for i in range(192): p.append(f"v_accvgpr_write_b32 a{i}, 0")
    for q in range(4): p += [f"v_mov_b32 v{V_L[q]}, 0", f"v_mov_b32 v{M[q]}, 0xff7fffff"]
    p += [f"v_subrev_u32 v{KA[0]}, {A1}, v{V_RDK[0]}", f"v_subrev_u32 v{KA[1]}, {A1}, v{V_RDK[1]}", f"v_subrev_u32 v{LA}, {B0}, v{V_RD}",
          f"s_mov_b32 s{S_PT}, 0", "L_slowloop:"]
    for i in range(1, 5): p.append(f"s_add_u32 s{S_PT+i}, s{S_PT}, {[0, 6144, 12288, 16384, 20480][i]}")
    for f in range(12):
        s, tb = kfrag(f)
        p.append(f"buffer_load_dwordx4 v[{KF+4*f}:{KF+4*f+3}], v{KA[s&1]}, s[{S_WS}:{S_WS+3}], s{S_PT+tb} offen offset:{(s>>1)*128} sc1")
    for db in range(12):
        p.append(f"buffer_load_dwordx4 v[{VF+4*db}:{VF+4*db+3}], v{LA}, s[{S_WS}:{S_WS+3}], s{S_PT+2+db//4} offen offset:{(db%4)*1024} sc1")
    p.append("s_waitcnt vmcnt(12)")
    for f in range(12):
        s, tb = kfrag(f)
        for qb in range(4):
            d = vr(SS + 8 * qb + 4 * tb, 4)
            p.append(f"{MF} {d}, v[{KF+4*f}:{KF+4*f+3}], {Qf(qb,s)}, {'0' if s == 0 else d}")
    p.append("s_nop 9")
    for qb in range(4):
        sb = SS + 8 * qb
        p += [f"v_max3_f32 v{t}, v{sb}, v{sb+1}, v{sb+2}", f"v_max3_f32 v{t}, v{t}, v{sb+3}, v{sb+4}",
              f"v_max3_f32 v{t}, v{t}, v{sb+5}, v{sb+6}", f"v_max3_f32 v{t}, v{t}, v{sb+7}, v{M[qb]}"]
        p += xlane("v_max_f32", t)
        p += [f"v_sub_f32 v{t+1}, v{M[qb]}, v{t}", f"v_exp_f32 v{t+1}, v{t+1}", f"v_mov_b32 v{M[qb]}, v{t}"]
        for i in range(8): p.append(f"v_sub_f32 v{sb+i}, v{sb+i}, v{t}")
        for i in range(8): p.append(f"v_exp_f32 v{sb+i}, v{sb+i}")
        p.append(f"v_mul_f32 v{V_L[qb]}, v{V_L[qb]}, v{t+1}")
        for i in range(8): p.append(f"v_add_f32 v{V_L[qb]}, v{V_L[qb]}, v{sb+i}")
        for i in range(4): p.append(f"v_cvt_pk_bf16_f32 v{PP+4*qb+i}, v{sb+2*i}, v{sb+2*i+1}")
        p += [f"ds_bpermute_b32 v{248+r}, v{BA}, v{t+1} offset:{4*r}" for r in range(4)] + ["s_waitcnt lgkmcnt(0)"]
        for i in range(48):
            a = O(qb, 0) + i; tt = t + 2 + (i % 2)
            p += [f"v_accvgpr_read_b32 v{tt}, a{a}", f"v_mul_f32 v{tt}, v{tt}, v{248+i%4}", f"v_accvgpr_write_b32 a{a}, v{tt}"]
    p += ["s_waitcnt vmcnt(0)", "s_nop 1"]
    for db in range(12):
        for qb in range(4):
            d = ar(O(qb, db), 4)
            p.append(f"{MF} {d}, v[{PP+4*qb}:{PP+4*qb+3}], v[{VF+4*db}:{VF+4*db+3}], {d}")
    p += [f"s_add_u32 s{S_PT}, s{S_PT}, {STAGE}", f"s_cmp_lt_u32 s{S_PT}, {HEADBYTES}", "s_nop 7", "s_cbranch_scc1 L_slowloop"]
    e = slow_epi(); resolve(e)
    return p + fin(e) + ["s_branch L_fin"]

def xlane(op, t, u=None):
    u = t + 1 if u is None else u
    l = []
    for sw in ("v_permlane16_swap_b32", "v_permlane32_swap_b32"):
        l += [f"v_mov_b32 v{u}, v{t}", "s_nop 1", f"{sw} v{t}, v{u}", "s_nop 1", f"{op} v{t}, v{t}, v{u}"]
    return l
def rowmax2(t, qs, tq):
    l = []
    ab = [(Sq(t, j, 0), Sq(t, j, 1)) for j in range(2)]
    l += [f"v_max3_f32 v{tq[j]}, v{a}, v{a+1}, v{a+2}" for j, (a, b) in enumerate(ab)]
    l += [f"v_max3_f32 v{tq[j]}, v{tq[j]}, v{a+3}, v{b}" for j, (a, b) in enumerate(ab)]
    l += [f"v_max3_f32 v{tq[j]}, v{tq[j]}, v{b+1}, v{b+2}" for j, (a, b) in enumerate(ab)]
    l += [f"v_max_f32 v{tq[j]}, v{tq[j]}, v{b+3}" for j, (a, b) in enumerate(ab)]
    for sw in ("v_permlane16_swap_b32", "v_permlane32_swap_b32"):
        l += [f"v_mov_b32 v{tq[j]+1}, v{tq[j]}" for j in range(2)] + ["s_nop 0"]
        l += [f"{sw} v{tq[j]}, v{tq[j]+1}" for j in range(2)] + ["s_nop 0"]
        l += [f"v_max_f32 v{tq[j]}, v{tq[j]}, v{tq[j]+1}" for j in range(2)]
    l += [f"v_sub_f32 v{NEGM(qs[j])+i}, 0, v{tq[j]}" for j in range(2) for i in range(4)]
    return l
def sm_one(t, sl):
    a, b = Sq(t, sl, 0), Sq(t, sl, 1); tq = V_CT; qb = slot_q(t, sl); rs = [r + i for r in (a, b) for i in range(4)]
    l = [f"v_max3_f32 v{tq}, v{a}, v{a+1}, v{a+2}", f"v_max3_f32 v{tq+2}, v{a+3}, v{b}, v{b+1}",
         f"v_max3_f32 v{tq}, v{tq}, v{b+2}, v{b+3}", f"v_max_f32 v{tq}, v{tq}, v{tq+2}"] + xlane("v_max_f32", tq)
    l += [f"v_sub_f32 v{r}, v{r}, v{tq}" for r in rs] + [f"v_exp_f32 v{r}, v{r}" for r in rs] + [f"v_sub_f32 v{NEGM(qb)+i}, 0, v{tq}" for i in range(4)]
    l += [f"v_add_f32 v{V_L[qb]}, v{V_L[qb]}, v{r}" for r in rs] + [f"v_cvt_pk_bf16_f32 v{a+i}, v{rs[2*i]}, v{rs[2*i+1]}" for i in range(4)]
    return l
def addneg(t, sl):
    n = NEGM(slot_q(t, sl))
    return [f"v_add_f32 v{Sq(t,sl,tb)+i}, v{Sq(t,sl,tb)+i}, v{n}" for tb in range(2) for i in range(4)]

def resolve(seq):
    vm = []; ds = []
    for x in seq:
        if isinstance(x, VM): vm.append(x.tag)
        elif isinstance(x, DS): ds.append(x.tag)
        elif isinstance(x, (W, LG)):
            q = vm if isinstance(x, W) else ds
            best = None
            for tag in x.tags:
                n = 0; found = False
                for t in reversed(q):
                    if t == tag: found = True; break
                    n += 1
                if found: best = n if best is None else min(best, n)
            if best is not None:
                x.n = best if getattr(x, "n", None) is None else min(x.n, best)
        else:
            assert not x.startswith(("ds_", "buffer_")) or "UNTRACKED" in x, x
def vm_size(x):
    t = x.text
    if t.startswith("buffer_store"): return 0
    if x.tag == "pre": return 3.0
    if " lds" in t: return 1.0
    if "dwordx4" in t or "dwordx3" in t: return 0.75
    if "dwordx2" in t and "offen" in t: return 0.375
    return 0.125
def pace(seq, cap):
    out = []; q = []; on = False
    for x in seq:
        if isinstance(x, W): q = q[len(q) - min(len(q), x.n):]; on = True
        elif isinstance(x, VM):
            sz = vm_size(x)
            if on and not x.text.startswith("buffer_store") and sum(q) + sz > cap:
                while q and sum(q) + sz > cap: q.pop(0)
                w = W(); w.n = len(q)
                if out and out[-1] == "s_nop 0": out.pop()
                out.append(w)
            q.append(sz)
        out.append(x)
    return out
def fin(seq):
    out = []
    for x in seq:
        if isinstance(x, (W, LG)):
            if OPT["ab"] and getattr(x, "n", None) is None: x.n = 63
            assert getattr(x, "n", None) is not None, x.tags
            out.append(f"s_waitcnt vmcnt({min(x.n, 63)})" if isinstance(x, W) else f"s_waitcnt lgkmcnt({min(x.n, 15)})")
        elif isinstance(x, (VM, DS)): out.append(x.text)
        else: out.append(x.replace(" ;UNTRACKED", ""))
    return out
def groups_of(l):
    out = [[]]
    for x in l:
        out[-1].append(x)
        if isinstance(x, VM): out.append([])
    tail = out.pop()
    if tail: out[-1] += tail
    return out
def sprinkle(code, l):
    gs = groups_of(l); out = []; n = len(code); m = len(gs); j = 0
    for i, x in enumerate(code):
        while j < m and i * m >= j * n: out += with_nop(gs[j]); j += 1
        out.append(x)
    for g in gs[j:]: out += with_nop(g)
    return out
def srd(p, s, lo, hi, off_s, size):
    p += [f"s_add_u32 s{s}, s{lo}, s{off_s}", f"s_addc_u32 s{s+1}, s{hi}, 0", f"s_mov_b32 s{s+2}, {size}", f"s_mov_b32 s{s+3}, 0x20000"]

def gen_main():
    p = []
    p += [f"{NAME}_kernel:", "s_cmp_ge_u32 s2, 256", "s_cbranch_scc1 L_done",
          "s_load_dwordx16 s[40:55], s[0:1], 0", "s_load_dwordx4 s[16:19], s[0:1], 64"]
    if OPT["stamp"]: p += ["s_memtime s[98:99]" if OPT["stamp"] == 6 else "s_memrealtime s[98:99]"]
    p += [f"s_and_b32 s{S_HEAD}, s2, 7", f"s_lshr_b32 s{S_QB}, s2, 3", f"s_lshr_b32 s24, s{S_QB}, 3", f"s_lshl_b32 s{S_HEAD}, s{S_HEAD}, 2",
          f"s_add_u32 s{S_HEAD}, s{S_HEAD}, s24", f"s_and_b32 s{S_QB}, s{S_QB}, 7"]
    p += ["s_getpc_b64 s[60:61]", "L_pc:", f"s_sub_u32 s60, s60, L_pc-{NAME}_kernel", "s_subb_u32 s61, s61, 0",
          f"s_mov_b32 s62, L_slow-{NAME}_kernel", "s_mov_b32 s63, 0x20000",
          "s_lshr_b32 s22, s2, 3", "s_lshl_b32 s22, s22, 12",
          "v_lshlrev_b32 v30, 4, v0",
          VM("pf", "buffer_load_dwordx4 v[128:131], v30, s[60:63], s22 offen")]
    p += ["v_lshrrev_b32 v24, 6, v0",
          "v_and_b32 v25, 63, v0",
          f"v_readfirstlane_b32 s{S_WAVE}, v24",
          f"v_lshlrev_b32 v{V_RD}, 4, v25",
          "v_mul_u32_u24 v26, 43, v25", "v_lshrrev_b32 v26, 10, v26",
          "v_mul_u32_u24 v27, 24, v26",
          "v_sub_u32 v27, v25, v27",
          "v_lshrrev_b32 v28, 1, v24",
          "v_and_b32 v29, 1, v24",
          "v_lshlrev_b32 v30, 4, v29",
          "v_lshl_add_u32 v30, v28, 2, v30",
          "v_add_u32 v30, v30, v26",
          "v_mul_u32_u24 v30, 768, v30",
          "v_lshrrev_b32 v48, 1, v26", "v_lshlrev_b32 v48, 30, v48",
          "v_lshl_add_u32 v30, v27, 4, v30", f"v_or_b32 v{V_KLD}, v30, v48",
          f"v_lshl_or_b32 v{V_KSC}, v27, 3, v48",
          "v_mul_u32_u24 v30, 6144, v24",
          f"v_add3_u32 v{V_VLD}, v30, v{V_RD}, v48"]
    for sd, size in ((S_QK, HEADBYTES), (S_QV, HEADBYTES), (S_KS, 12288), (S_KZ, 12288), (S_VS, 4096), (S_VZ, 4096), (S_FLG, 64)):
        p += [f"s_mov_b32 s{sd+2}, {size}", f"s_mov_b32 s{sd+3}, 0x20000"]
    p += [f"s_mul_i32 s{S_PK0}, s{S_QB}, {STAGE}", f"s_add_u32 s{S_PK1}, s{S_PK0}, 6144", f"s_mov_b32 s{S_PV0}, s{S_PK0}",
          f"s_lshr_b32 s{S_PKS}, s{S_QB}, 1", f"s_mul_i32 s{S_PKS}, s{S_PKS}, 384", f"s_lshl_b32 s{S_PVS}, s{S_QB}, 6",
          f"s_lshl_b32 s24, s{S_WAVE}, 4", f"s_add_u32 s{S_PVS}, s{S_PVS}, s24",
          f"s_mul_i32 s24, s{S_HEAD}, {HEADBYTES}", f"s_mul_i32 s56, s{S_HEAD}, 12288", f"s_lshl_b32 s57, s{S_HEAD}, 12",
          f"s_lshl_b32 s58, s{S_HEAD}, 10", f"s_add_u32 s58, s58, {FLAG_OFF + 96}",
          f"s_or_b32 s{S_RET}, s{S_QB}, s{S_WAVE}"]
    p += ["s_waitcnt lgkmcnt(0)"] + istamp("karg", True)
    def base(sd, lo, off): return [f"s_add_u32 s{sd}, s{lo}, s{off}", f"s_addc_u32 s{sd+1}, s{lo+1}, 0"]
    p += base(S_QK, 42, 24) + base(S_KS, 46, 56) + base(S_KZ, 48, 56)
    kl = [k_ld(0, BX, 32, "k0a"), k_ld(1, BY, 36, "k0b")]; vl = [v_ld(0, 112, 40, "v0a"), v_ld(1, 80, 44, "v0b")]
    for x in kl[1][:2]: x.tag = "k0a"
    for x in vl[1][:2]: x.tag = "v0a"
    if OPT["ksc"]:
        for x in kl[0][2:] + kl[1][2:]: x.tag = "kraw"
        for x in kl[1][:2]: x.tag = "k0b"
        p += kl[0][2:] + kl[1][2:] + kl[0][:2] + kl[1][:2]; kl[1] = []
    else: p += kl[0][2:] + kl[0][:2] + kl[1][:2]
    p += base(S_FLG, 18, 58) + base(S_VS, 50, 57) + base(S_VZ, 52, 57) + base(S_QV, 44, 24)
    p += [f"s_mul_i32 s59, s{S_HEAD}, 786432"] + base(S_OUT, 54, 59) + base(S_Q, 40, 59)
    p += [f"s_cmp_lg_u32 s{S_RET}, 0", "s_cbranch_scc1 L_notleader0", f"s_buffer_load_dwordx16 s[40:55], s[{S_FLG}:{S_FLG+3}], 0 glc", "L_notleader0:"]
    p += kl[1][2:]
    p += [f"s_add_u32 s24, s24, {WSOFF}"] * (1 if WSOFF else 0)
    srd(p, S_WS, 18, 19, 24, HEADBYTES)
    p += [f"s_mov_b32 s{S_Q+2}, 786432", f"s_mov_b32 s{S_Q+3}, 0x20000"]
    p += [f"s_mov_b32 s{S_DBG}, s16", f"s_mov_b32 s{S_DBG+1}, s17", f"s_add_u32 s{S_PV1}, s{S_PK0}, 3072", f"s_add_u32 s{S_PV2}, s{S_PK0}, 6144"]
    p += [f"s_mov_b32 s{S_DBG+2}, 256", f"s_mov_b32 s{S_DBG+3}, 0x20000", f"s_lshl_b32 s{S_HOFF}, s{S_HEAD}, 3"]
    p += [f"s_cmp_lg_u32 s{S_RET}, 0", "s_cbranch_scc1 L_notleader", "s_waitcnt lgkmcnt(0)", f"s_mov_b32 s{S_TP}, 1"]
    for i in range(16):
        p += [f"s_lshr_b32 s{40+i}, s{40+i}, 10", f"s_min_u32 s{40+i}, s{40+i}, 31", f"s_bitset1_b32 s{S_TP}, s{40+i}"]
    p += [f"s_ff0_i32_b32 s{S_TP}, s{S_TP}", f"s_lshl_b32 s{S_TP}, s{S_TP}, 10", f"v_mov_b32 v{V_POLL}, s{S_TP}",
          "s_mov_b64 exec, 1", f"buffer_store_dword v{V_POLL}, off, s[{S_DBG}:{S_DBG+3}], s{S_HOFF} sc1 ;UNTRACKED", "s_mov_b64 exec, -1",
          "L_notleader:"]
    p += [f"s_lshl_b32 s24, s{S_QB}, 2", f"s_add_u32 s24, s24, 32", f"s_buffer_load_dword s{S_OWN}, s[{S_FLG}:{S_FLG+3}], s24 glc",
          ] + ([f"s_getreg_b32 s{S_XCC}, hwreg(HW_REG_XCC_ID, 0, 4)", f"s_lshl_b32 s{S_XCC}, s{S_XCC}, 5", f"s_mov_b32 s{S_FOFF}, {32 if OPT['l2'] == 3 else 0}"] if OPT["l2"] else
          [f"s_mov_b32 s{S_XCC}, 0", f"s_mov_b32 s{S_FOFF}, 32"])
    p += vl[0][2:] + vl[0][:2] + vl[1][:2] + (vl[1][2:] if OPT["greedy"] else []) + istamp("iss", True)
    if OPT["pre"]:
        st = OPT["pre"]
        p += [f"v_mul_u32_u24 v31, {st}, v25", f"v_mul_u32_u24 v30, 6144, v24", "v_add_u32 v31, v30, v31"]
        if st == 128: p += ["v_or_b32 v31, v31, v48"]
        p += [VM("pre", f"buffer_load_dword v132, v31, s[{S_WS}:{S_WS+3}], s{S_PK0} offen" + (" nt" if OPT["prent"] else ""))]
        if st == 64: p += ["v_add_u32 v30, 4096, v31", "s_mov_b64 exec, 0xffffffff", VM("pre", f"buffer_load_dword v133, v30, s[{S_WS}:{S_WS+3}], s{S_PK0} offen nt"), "s_mov_b64 exec, -1"]
    p += [f"s_mov_b32 s{S_OUT+2}, 786432", f"s_mov_b32 s{S_OUT+3}, 0x20000"]
    p += [f"s_lshl_b32 s24, s{S_WAVE}, 8", f"s_add_u32 s{S_HOFF}, s{S_HOFF}, s24"]
    p += ["v_mul_u32_u24 v30, 3072, v24", f"v_add_u32 v{V_DMA}, v30, v{V_RD}"]
    p += ["v_lshl_add_u32 v30, v24, 3, v26",
          "v_mul_u32_u24 v30, 384, v30",
          "v_lshlrev_b32 v31, 2, v29",
          "v_xor_b32 v31, v27, v31",
          "v_lshl_add_u32 v30, v31, 4, v30", f"v_or_b32 v{V_KST}, v30, v48",
          "v_lshlrev_b32 v30, 8, v24",
          "v_add_u32 v30, 12288, v30",
          "v_lshrrev_b32 v31, 4, v25", "v_lshl_add_u32 v30, v31, 10, v30", "v_and_b32 v31, 15, v25",
          "v_lshl_add_u32 v30, v31, 4, v30", f"v_or_b32 v{V_VST}, v30, v48"]
    p += [f"s_lshl_b32 s24, s{S_QB}, 2",
          f"v_lshl_add_u32 v{V_FLAG}, v0, 2, s24", f"v_cmp_lt_u32 vcc, 0, v0", "v_mov_b32 v30, 0x40000000", "s_nop 0",
          f"v_cndmask_b32 v{V_FLAG}, v{V_FLAG}, v30, vcc"]
    p += [f"s_mul_i32 s{S_DMK}, s{S_WAVE}, 3072", f"s_add_u32 s{S_DMK}, s{S_DMK}, 12288", f"s_add_u32 s{S_DMV}, s{S_DMK}, {STAGE}",
          f"s_add_u32 s24, s{S_QB}, 1", "s_and_b32 s24, s24, 7", f"s_mul_i32 s{S_GOFFK}, s24, {STAGE}", f"s_add_u32 s{S_GOFF}, s{S_GOFFK}, 12288",
          f"s_mov_b32 s{S_RK}, {A2}", f"s_mov_b32 s{S_RV}, {B1}", f"v_add_u32 v{V_RD}, {B0}, v{V_RD}",
          f"s_mov_b32 s{S_CS}, 0x{f32bits(CSCALE):08x}", f"s_mov_b32 s{S_MASK}, 0xffff0000",
          f"s_mov_b32 s{S_BUDGET}, 100000"] + ([f"s_mov_b32 s{S_TAG+1}, 0"] if OPT["stamp"] else [])
    p += ["v_and_b32 v26, 15, v25", "v_lshrrev_b32 v27, 4, v25", "v_bfe_u32 v28, v25, 1, 3",
          "v_xor_b32 v29, v27, v28", "v_mul_u32_u24 v30, 384, v26", f"v_lshl_add_u32 v{V_RDK[0]}, v29, 4, v30",
          f"v_xor_b32 v{V_RDK[1]}, 64, v{V_RDK[0]}"]
    p += [f"s_mul_i32 s{S_QL}, s{S_WAVE}, 6144", f"s_add_u32 s{S_QL}, s{S_QL}, {B1}",
          "v_lshrrev_b32 v29, 1, v27", "v_xor_b32 v29, v29, v28", "v_lshl_add_u32 v31, v29, 4, v30",
          "v_and_b32 v29, 1, v27", "v_lshl_add_u32 v31, v29, 3, v31"]
    for kk in range(4):
        p += [f"v_xor_b32 v{VQR[kk]}, {32*kk}, v31", f"v_add_u32 v{VQR[kk]}, s{S_QL}, v{VQR[kk]}"]
    p += [f"s_lshl_b32 s24, s{S_QB}, 2", f"s_add_u32 s24, s24, s{S_WAVE}", f"s_mul_i32 s24, s24, {STAGE}"]
    for b in range(6):
        p += [f"v_add_u32 v26, {64*b}, v25", "v_mul_u32_u24 v27, 2731, v26", "v_lshrrev_b32 v27, 17, v27",
              "v_and_b32 v27, 7, v27", "v_xor_b32 v26, v26, v27", f"v_lshlrev_b32 v{VQD+b}, 4, v26", f"v_add_u32 v{VQD+b}, s24, v{VQD+b}"]
    for q in range(4): p.append(f"v_mov_b32 v{V_L[q]}, 0")
    STF0 = "" if OPT["l2"] else STF
    def own_k(b):
        l = []
        for j in range(4):
            l += k_st(j, b, "kst", STF0)
            va = V_KST if j == 0 else V_KA + (j & 1)
            l += ["s_mov_b64 exec, s[62:63]", DS("w", f"ds_write_b128 v{va}, v[{b+4*j}:{b+4*j+3}] offset:{j*768}"), "s_mov_b64 exec, -1"]
        return l
    def own_v(b):
        l = [x for e in range(4) for x in v_st(e, b, "vst", STF0)]
        l += ["s_mov_b64 exec, s[62:63]"] + [DS("w", f"ds_write_b128 v{V_VST}, v[{b+4*e}:{b+4*e+3}] offset:{STAGE - 12288 + e*3072}") for e in range(4)] + ["s_mov_b64 exec, -1"]
        return l
    p += ["s_mov_b32 s62, -1", "s_mov_b32 s63, 0xffff"]
    qa = OPT["qa"]
    qb_, qc = OPT["qb"], OPT["qc"]
    R = lambda a, b: list(range(a, b))
    if OPT["split"]:
        p += [W("k0a")] + vl[1][2:] + k_cv(0, BX, 32, BX) + [W("k0b")] + istamp("k0b", True) + k_cv(1, BY, 36, BX) + own_k(BX)
        p += tag_load() + with_nop(q_dma(R(0, qa))) + [W("v0a")] + v_cv(0, 112, 40, 112)
        p += [W("tag")] + tag_check() + ["s_waitcnt lgkmcnt(0)", "s_barrier"] + flag_post() + tag_get() + istamp("post", True)
        p += with_nop(q_dma(R(qa, qb_))) + v_cv(1, 80, 44, 112) + own_v(112) + with_nop(q_dma(R(qb_, 12))) + istamp("vst", True)
    elif OPT["greedy"]:
        p += [W("k0a")] + with_nop(q_dma(R(0, 3))) + k_cv(0, BX, 32, BX) + [W("k0b")] + istamp("k0b", True) + with_nop(q_dma(R(3, 6))) + k_cv(1, BY, 36, BX) + own_k(BX)
        p += [W("v0a")] + with_nop(q_dma(R(6, 9))) + v_cv(0, 112, 40, 112) + [W("v0b")] + with_nop(q_dma(R(9, 12))) + v_cv(1, 80, 44, 112) + own_v(112)
        p += tag_load() + with_nop(q_dma(R(12, 18))) + istamp("vst", True)
    else:
        p += [W("k0a")] + vl[1][2:] + k_cv(0, BX, 32, BX) + [W("k0b")] + istamp("k0b", True) + k_cv(1, BY, 36, BX) + own_k(BX)
        p += with_nop(q_dma(R(0, qa))) + istamp("kst", True)
        p += [W("v0a")] + sprinkle(v_cv(0, 112, 40, 112), q_dma(R(qa, qb_))) + [W("v0b")] + v_cv(1, 80, 44, 112) + own_v(112)
        p += tag_load() + with_nop(q_dma(R(qb_, 12))) + istamp("vst", True)
    if not OPT["split"]:
        p += [W("tag")] + tag_check() + istamp("tag", True)
        p += ["s_waitcnt lgkmcnt(0)", "s_barrier"] + flag_post(True) + tag_get() + istamp("post", True)
    if OPT["pf2"]:
        p += [f"s_mov_b32 s{S_DBG}, s60", f"s_mov_b32 s{S_DBG+1}, s61", f"s_mov_b32 s{S_DBG+2}, L_slow-{NAME}_kernel",
              "s_lshr_b32 s24, s2, 3", f"s_mul_i32 s{S_HOFF}, s24, 43", f"s_lshr_b32 s{S_HOFF}, s{S_HOFF}, 7",
              f"s_mul_i32 s{S_RET}, s{S_HOFF}, 3", f"s_sub_u32 s24, s24, s{S_RET}", "s_lshl_b32 s24, s24, 10",
              f"s_mul_i32 s{S_HOFF}, s{S_HOFF}, 12288", f"s_add_u32 s{S_HOFF}, s{S_HOFF}, s24"]
    KF = 144
    for f in range(12):
        s, tb = kfrag(f)
        p.append(DS("kf", f"ds_read_b128 v[{KF+4*f}:{KF+4*f+3}], v{V_RDK[s&1]} offset:{tb*6144 + (s>>1)*128}"))
    def qk0(qb):
        l = []
        for f in sorted(range(12), key=lambda f: kfrag(f)[::-1]):
            s, tb = kfrag(f)
            d = vr(Sq(0, qb, tb), 4)
            l.append(f"{MF} {d}, v[{KF+4*f}:{KF+4*f+3}], {Qf(qb,s)}, {'0' if s == 0 else d}")
        return l
    ps = len(POLLSITES); POLLSITES.append(ps)
    g3n = OPT["g3n"]
    pollchk = ["s_waitcnt lgkmcnt(0)"] + smem_reduce() + [f"s_cmp_ge_u32 s{S_PT}, 16", f"s_cbranch_scc1 L_pollslow{ps}", f"L_pollok{ps}:",
          f"s_add_u32 s{S_NEED}, s{S_NEED}, 1"] + [f"s_mov_b32 s{S_FOFF}, 32"] * (OPT["l2"] == 2) + istamp("poll", True)
    sm00 = rowmax2(0, (0, 1), (V_CT, V_CT + 2)) + addneg(0, 0) + addneg(0, 1) + softmax_part(0, 0)
    qrest = R(12 if OPT["greedy"] == 0 else 18, 18 + g3n)
    if OPT["split"]:
        ps2 = len(POLLSITES); POLLSITES.append(ps2)
        pollchk2 = ["s_waitcnt lgkmcnt(0)"] + smem_reduce() + [f"s_cmp_ge_u32 s{S_PT}, 16", f"s_cbranch_scc1 L_pollslow{ps2}", f"L_pollok{ps2}:",
              f"s_add_u32 s{S_NEED}, s{S_NEED}, 1"] + istamp("pollV", True)
        p += [W(("q", 0))] + q_frags(0) + [LG("tg")] + tag_use() + [LG(("qf", 0))] + smem_flags() + qk0(0) + pollchk
        p += with_nop(dma_tile("k", 1, True)) + k_adv() + v_adv()
        p += [W("vst"), "s_barrier"] + flag_post() + istamp("postV", True)
        p += with_nop(dma_tile("k", 2, True) + dma_tile("k", 3, True))
        p += [W(("q", 1))] + q_frags(1) + with_nop(q_dma(R(12, 15))) + [LG(("qf", 1))] + qk0(1) + ["s_nop 7"]
        g0 = pv_unchained(0, True)[:6]
        p += [rd_op(i, j, g0[i]) for i in range(2) for j in range(2)] + sprinkle(sm00, q_dma(R(15, 18 + g3n))) + smem_flags() + [LG(("fr", 0), ("fr", 1))]
        p += gen_seg("S0", g0, [], tasks=[("q", R(18 + g3n, 24), 0, 22)] if g3n < 6 else [], vmgap=2) + pollchk2
        p += with_nop(dma_tile("v", 1, True))
        g3n = 6
    elif OPT["own1"] == 2:
        p += [W(("q", 0))] + q_frags(0) + [LG("tg")] + tag_use() + with_nop(q_dma(qrest[:3])) + [LG(("qf", 0))] + qk0(0)
        p += [W(("q", 1))] + q_frags(1) + smem_flags() + with_nop(q_dma(qrest[3:])) + [LG(("qf", 1))] + qk0(1) + pollchk
        g0 = pv_unchained(0, True)[:6]
        p += [rd_op(i, j, g0[i]) for i in range(2) for j in range(2)]
        p += sprinkle(sm00, dma_tile("k", 1, True) + dma_tile("k", 2, True) + dma_tile("k", 3, True) + dma_tile("v", 1, True)) + k_adv() + v_adv() + [LG(("fr", 0), ("fr", 1))]
        p += gen_seg("S0", g0, [], tasks=[("q", R(18 + g3n, 24), 0, 22)] if g3n < 6 else [], vmgap=2)
        g3n = 6
    elif OPT["own1"]:
        p += [W(("q", 0))] + q_frags(0) + [LG("tg")] + tag_use() + with_nop(q_dma(qrest[:3])) + [LG(("qf", 0))] + qk0(0)
        if OPT["q0f"]: p += ["s_nop 7"] + sm_one(0, 0); sm00 = sm_one(0, 1)
        p += [W(("q", 1))] + q_frags(1) + with_nop(q_dma(qrest[3:6])) + [LG(("qf", 1))] + qk0(1) + ["s_nop 7"]
        g0 = pv_unchained(0, True)[:6]
        p += [rd_op(i, j, g0[i]) for i in range(2) for j in range(2)] + sprinkle(sm00, q_dma(qrest[6:])) + smem_flags() + [LG(("fr", 0), ("fr", 1))]
        p += gen_seg("S0", g0, []) + pollchk
        p += with_nop(dma_tile("k", 1, True) + dma_tile("k", 2, True) + dma_tile("k", 3, True) + dma_tile("v", 1, True)) + k_adv() + v_adv()
    else:
        p += [W(("q", 0))] + q_frags(0) + [LG("tg")] + tag_use() + [W(("q", 1))] + q_frags(1) + smem_flags()
        p += [LG(("qf", 0))] + with_nop(q_dma(qrest)) + pollchk
        p += with_nop(dma_tile("k", 1, True)) + k_adv() + v_adv()
        p += sprinkle(qk0(0) + qk0(1), dma_tile("k", 2, True)) + ["s_nop 7"]
        p += sprinkle(sm00, dma_tile("k", 3, True) + dma_tile("v", 1, True))
    sp = softmax_part
    g1 = qk_half(0, ws=(1,))
    g2 = rebase(qk_half(1), V_RDK, A1 - A0)
    g3 = pv_unchained(0, True)[6 if OPT["own1"] else 0:]
    g4 = rebase(pv_unchained(1), [V_RD], B1 - B0)
    g5 = rebase(qk_half(2, True), V_RDK, A0 - A1) + rebase(qk_half(3), V_RDK, A1 - A0)
    gi3 = rebase(qk_full(4), V_RDK, A2 - A1)
    gi4 = rebase(pv_seq(2, True), [V_RD], B0 - B1) + rebase(pv_seq(3), [V_RD], B1 - B0)
    p += istamp("pre-dk1", True) + [W(("dk", 1)), "s_barrier"] + [rd_op(i, j, g1[i]) for i in range(2) for j in range(2)]
    p += [LG(("fr", 0), ("fr", 1))]
    p += gen_seg("S1", g1, g2[:2], [], [(15, [("dk", 3)])], [], [V_(2, 3) + (0, 21)], vmgap=2)
    p += gen_seg("S2", g2, g3[:2], [(sp(0, 1), 3, 47)], [(39, [("dv", 3)])] if OPT["own1"] else [], ([("q", R(18 + g3n, 24), 0, 24)] if g3n < 6 else []) + [("ldn", "ka", 25 if g3n < 6 else 0, 47)])
    if OPT["own1"]: p += gen_seg("S3", g3, g4[:2], [(sp(1, 0), 0, 23)], [], [("ldn", "kb", 0, 23)])
    else: p += gen_seg("S3", g3, g4[:2], [(sp(1, 0), 0, 47)], [(15, [("dv", 3)])], [("ldn", "kb", 0, 22), ("ldn", "va", 23, 46, "raw")])
    p += gen_seg("S4", g4, g5[:2], [(sp(1, 1), 0, 21)], [], [("ldn", "va", 0, 30, "raw")] if OPT["own1"] else [], extra=[Stream([W(("q", 2))] + q_frags(2) + [W(("q", 3))] + q_frags(3), 16, 46)])
    p += istamp("pre-S5", True) + ["s_waitcnt lgkmcnt(0)", "s_barrier"]
    p += gen_seg("S5", g5, gi3[:2], [(rowmax2(2, (2, 3), (V_T, V_T + 2)), 27, 45), (addneg(2, 0) + addneg(2, 1) + sp(2, 0) + addneg(2, 2) + addneg(2, 3) + sp(2, 1), 46, 95)],
                 [(GBAR + 8, [("dk", 5)])], [("cv", "ka", 0, 99, 0, 34), ("cv", "kb", 0, 99, 35, 72), ("kst", 0, 73), ("kst", 1, 77), ("kst", 2, 89), ("kst", 3, 93),
                 ("ldn", "va", 36, 60, "sc")], [K_(4, 5) + (1, 24)])
    p += gen_seg("i3", gi3, gi4[:2], [(sp(3, 0) + sp(3, 1), 0, 54), (sp(4, 0), 55, 95)], [(OPT["pb"], []), (GBAR, [])],
                 [("ld", "vb", 0, 22), ("post", "kst", 0), ("cv", "va", 0, 99, 10, 95)], [K_(6, 7) + V_(4, 5) + (24, 90)])
    p += [f"s_mov_b32 s{S_CNT}, 7", f"s_mul_i32 s{S_RC}, s{S_QB}, {STAGE}", f"s_mov_b32 s{S_RD}, 12288"]
    p += gen_seg("i4", gi4, seg_groups(5)[:2], [(sp(4, 1) + sp(5, 0), 0, 94)], [(47, []), (GBAR + 8, [("dk", 7)])],
                 [("ld", "ka", 0, 30), ("cv", "vb", 0, 99, 30, 94), ("step", "q", 30, 70), ("pollld", OPT["pl4"], OPT["pl4"] + 8)], [V_(6, 7) + (52, 84)],
                 endops=["s_nop 0", "s_branch L_join"])
    p += [".p2align 6"] + ["s_nop 0"] * OPT.get("pad", 0) + ["L_loop:"]
    pro_ = p
    first57, tail = gen_tail()
    bodyA = []
    for k in (1, 2, 3, 4, 5, 6, 7, 0):
        if k == 5: bodyA.append("L_join:"); jpos = len(bodyA)
        eo = [f"s_sub_u32 s{S_CNT}, s{S_CNT}, 1", f"s_cmp_lg_u32 s{S_CNT}, 0", "s_cbranch_scc1 L_loop"] if k == 0 else ()
        t, d = steady(k)
        if OPT["ab"] & 8: d = []
        if OPT["ab"] & 16: t = [x for x in t if x[0] not in ("cv", "kst", "vst", "ld")]
        bars = None
        if OPT["nb6"]:
            dk = lambda *x: [("dk", i) for i in x]; dv = lambda *x: [("dv", i) for i in x]
            bars = {0: [], 4: [], 7: [(GBAR, dv(6, 7) + dk(2, 3))], 3: [(GBAR, dv(2, 3) + dk(6, 7))]}.get(k)
        bodyA += gen_iter(16 + k, t, d, name=f"k{k}", endops=eo, bars=bars)
    assert OPT["qo"] or [g.rd for g in first57] == [g.rd for g in seg_groups(17)[:2]]
    tailc = tail + ["L_fin:"]
    resolve(pro_ + bodyA[jpos:] + bodyA + bodyA + tailc)
    if OPT["cap"]: pro_ = pace(pro_, OPT["cap"] / 4)
    P_ = Prog()
    P_.extend(fin(pro_))
    a0 = len(P_.ins); P_.extend(fin(bodyA)); a1 = len(P_.ins)
    P_.extend(fin(tailc))
    p = P_
    if OPT["stamp"]:
        p("s_waitcnt vmcnt(0) lgkmcnt(0)")
        p.extend(istamp("end"))
        p("s_waitcnt lgkmcnt(0)")
        p.extend(istamp("end2"))
        p(f"v_writelane_b32 v{V_STAMP}, s{S_TAG+1}, 63")
        p("s_add_u32 s8, s18, 0xfa00000"); p("s_addc_u32 s9, s19, 0"); p("s_mov_b32 s10, 1048576"); p("s_mov_b32 s11, 0x20000")
        p("s_lshl_b32 s24, s2, 2"); p(f"s_add_u32 s24, s24, s{S_WAVE}"); p("s_lshl_b32 s24, s24, 8")
        p(f"v_bfe_u32 v32, v{V_DMA}, 4, 6"); p("v_lshlrev_b32 v32, 2, v32")
        p(f"buffer_store_dword v{V_STAMP}, v32, s[8:11], s24 offen")
        if OPT["stamp"] == 8: STAMPS.sort(key=lambda n: 0)
        open(sys.argv[1] + ".stamps", "w").write("\n".join(order_stamps()))
    if OPT["calx"]:
        p("s_waitcnt vmcnt(0)")
        p("L_cal:")
        p("s_memrealtime s[40:41]")
        p("s_waitcnt lgkmcnt(0)")
        p("s_sub_u32 s40, s40, s100")
        p("s_cmp_lt_u32 s40, 10000")
        p("s_cbranch_scc1 L_cal")
    p("L_done:")
    p("s_endpgm")
    main_end0 = len(p.ins)
    for ps in POLLSITES: p.extend(poll_slow(ps))
    p.extend(tag_slow())
    main_end = len(p.ins)
    p.extend(gen_slow())
    slow_end = len(p.ins)
    ji = [i for i, x in enumerate(p.ins) if x.text == "L_join:"][0]
    lin = p.ins[:a0] + p.ins[ji:a1] + p.ins[a0:main_end0]
    sl = [i for i, x in enumerate(p.ins) if x.text == "L_slowloop:"][0]
    bi = [i for i, x in enumerate(p.ins) if x.text == "s_cbranch_scc1 L_slowloop"][0]
    probs = check_hazards(lin, "main") + check_hazards(p.ins[main_end:bi+1] + p.ins[sl:slow_end], "slow") + check_hazards(p.ins[main_end0:main_end], "aux")
    for x in probs: print(x, file=sys.stderr)
    return p

def kd(name, vgpr, sgpr, accum):
    return f""".amdhsa_kernel {name}
  .amdhsa_next_free_vgpr {vgpr}
  .amdhsa_next_free_sgpr {sgpr}
  .amdhsa_accum_offset {accum}
  .amdhsa_group_segment_fixed_size 0
  .amdhsa_kernarg_size 80
  .amdhsa_user_sgpr_count 2
  .amdhsa_user_sgpr_kernarg_segment_ptr 1
  .amdhsa_system_sgpr_workgroup_id_x 1
.end_amdhsa_kernel
"""
out = HEADER
out += f"; @launch grid=(256,1,1) block=(256,1,1) lds={LDS_BYTES}\n"
out += '.amdgcn_target "amdgcn-amd-amdhsa--gfx950"\n.text\n'
out += f".globl {NAME}_kernel\n.p2align 8\n.type {NAME}_kernel,@function\n" + gen_main().text()
out += '.section .rodata,"a"\n.p2align 6\n' + kd(NAME + "_kernel", 512, 102, 256)
open(sys.argv[1], "w").write(out)
```

```python
import sys, math
from asmlib import *

NAME = "standalone__kv_cache_quant_int4_int2_kv_with_per_channel_or_per_token_scales__prompt"
OPT = dict(stamp=0, vmgap=4, sb=6, sa=6, ahead=8, thr=64, pf2=1, calx="", qa=6, plv=2, plk=10, ckv=1, ckk=1, tden=24, touch=0, w0poll=0, cap=48, qb=6, q3e=1, ksc=0, few=1, qc=15, pb=39, pl4=40, l2=3, k1e=0, greedy=0, g3n=3, pre=0, own1=1, ab=0, pk=0, split=0, prent=1, bal=1, flex=1, w2=0, dense="S61,S5,S2,S3,S4", dx=4, dvg=2, f3=1, pvs=1, qo=0, po=0, x2c=12, sst=1, q0f=1, nb6=1, tv=1, omv=0, ldc=8, rs=0, scnt=0, pfnt=0, ed=200, ed1=250, cut="16,42,8,48,18,38,12")
for a in sys.argv[2:]:
    k, v = a.split("="); OPT[k] = int(v) if v.lstrip("-").isdigit() else v
NS = 6
STAGE = 24576
HEADBYTES = 64 * STAGE
RING = NS * STAGE
LDS_BYTES = RING + 128
A0, B0, A1, B1, A2, B2 = [i * STAGE for i in range(6)]
CSCALE = (192.0 ** -0.5) * math.log2(math.e)
HEADER = open("cdna_kernels/" + NAME + ".s.ref").read().split("; Override launch geometry")[0]
MF = "v_mfma_f32_16x16x32_bf16"

V_FVAL = 0; V_RD = 1; V_RDK = [2, 3]; V_DMA = 4; V_L = [5, 6, 7, 8]
V_KLD = 9; V_KSC = 10; V_KST = 11; V_VLD = 12; V_FLAG = 13; V_RD2 = 23
V_T = 16; NTP = 2
V_VST = 15; V_STAMP = 14; V_T4 = 20
V_FR = 24; NFS = 6
V_CT = 48; V_VO = 52; V_RS = [56, 60]; BX = 224; BY = 240; BZ = 144
V_POLL = V_VO; V_KA = V_VO + 2
UNIT = [64, 80, 160, 176]; HI = [96, 112]
VQD = 136; VQR = [22, 23, 142, 143]
def Sq(t, sl, tb): return (UNIT[t % 4] if tb == 0 else HI[t % 2]) + 4 * sl
def P(t, sl): return UNIT[t % 4] + 4 * sl
def NEGM(qb): return 128 + 4 * qb
def O(qb, db): return (qb * 12 + db) * 4
def Qf(qb, s, half=None):
    i = qb * 6 + s
    base, f = (192 + 4 * i, ar) if i < 16 else (192 + 4 * (i - 16), vr)
    return f(base, 4) if half is None else f(base + 2 * half, 2)
def FR(f): return vr(V_FR + 4 * (f % NFS), 4)

S_RDELTA = 3; S_WS = 4; S_Q = 8; S_OUT = 12; S_FLG = 20
S_WAVE = 25; S_DMK = 26; S_GOFF = 27; S_RK = 28; S_TMP = 29; S_RV = 30; S_CNT = 31; S_GOFFK = 32
S_PK0 = 33; S_PK1 = 34; S_PV0 = 35; S_PKS = 36; S_PVS = 37; S_CS = 38; S_RET = 39; S_PV1 = 16; S_PV2 = 17
S_QL = 40; S_QS = 41; S_TAG = 42; S_FOFF = 44; S_XCC = 45; S_OWN = 46; S_RC = 46; S_RD = 47
S_PT = 48; S_DMV = 56; S_TK = 57; S_TV = 58; S_TP = 59
S_QK = 64; S_QV = 68; S_KS = 72; S_KZ = 76; S_VS = 80; S_VZ = 84; S_DBG = 88
S_NEED = 92; S_HOFF = 93; S_HEAD = 94; S_QB = 95; S_BUDGET = 96; S_MASK = 97
WSOFF = OPT.get("wsoff", 0) << 20
FLAG_OFF = WSOFF + (49 << 20)
SC1 = {0: " sc1", 1: "", 2: " nt", 3: " sc0", 4: " sc1 nt", 5: " sc0 sc1"}[OPT.get("dmaf", 0)]; NTKV = " nt"; NTQ = " nt"; STF = " sc1"; OF = " sc0 sc1"

STAMPS = []
def istamp(name, force=False):
    if OPT["calx"] == name: return ["s_memrealtime s[100:101]"]
    if OPT["stamp"] not in (6, 8, 9): return []
    if OPT["stamp"] == 8 and name.startswith("k") and not force: return []
    if OPT["few"] and force and name not in ("karg", "k0b", "vst", "tag", "post", "poll", "postV", "pollV", "pre-dk1"): return []
    if OPT["stamp"] != 8 and force: return []
    STAMPS.append(name)
    return ["s_waitcnt lgkmcnt(0)"] * (1 if force else 0) + [f"v_mov_b32_dpp v{V_STAMP}, v{V_STAMP} wave_shr:1 row_mask:0xf bank_mask:0xf", f"v_writelane_b32 v{V_STAMP}, s98, 0",
            ("s_memtime" if OPT["stamp"] == 6 else "s_memrealtime") + " s[98:99]"]

def order_stamps():
    l = list(STAMPS); out = []
    if "S62" in l:
        l.remove("S61"); l.insert(l.index("S62"), "S61")
    for n in l:
        if "." in n: continue
        out.append(n); out += [m for m in l if m.startswith(n + ".")]
    return out
class W:
    def __init__(self, *tags): self.tags = tags
class VM:
    def __init__(self, tag, text): self.tag = tag; self.text = text
class LG:
    def __init__(self, *tags): self.tags = tags
class DS:
    def __init__(self, tag, text): self.tag = tag; self.text = text

def mode_of(t):
    return {0: "a", 1: "a", 2: "b", 3: "b", 58: "a", 59: "a", 60: "a", 61: "b", 62: "b", 63: "b"}.get(t, "f")
def slot_q(t, sl):
    m = mode_of(t)
    return sl if m == "f" else (sl & 1) + (0 if m == "a" else 2)
def softmax_part(t, half):
    flat = []; prev = None
    for gp in range(8):
        sl = 2 * half + gp // 4; pi = gp % 4; l = V_L[slot_q(t, sl)]
        t0 = V_T + 2 * (gp % NTP); t1 = t0 + 1
        src = Sq(t, sl, pi >> 1) + 2 * (pi & 1)
        E = [f"v_exp_f32 v{t0}, v{src}", f"v_exp_f32 v{t1}, v{src+1}"]
        A = [f"v_add_f32 v{l}, v{l}, v{t0}", f"v_add_f32 v{l}, v{l}, v{t1}"]
        C = [f"v_cvt_pk_bf16_f32 v{P(t,sl)+pi}, v{t0}, v{t1}"]
        if 16 <= t < 26:
            if OPT["ab"] & 1: A = []
            if OPT["ab"] & 2: E = [x.replace("v_exp_f32", "v_mov_b32") for x in E]
            if OPT["ab"] & 32: C = []
            if OPT["ab"] & 64: E = []; A = []; C = []
        flat += E if prev is None else E[:1] + prev[0] + E[1:] + prev[1]
        prev = (A, C)
    return flat + prev[0] + prev[1]

class Grp:
    def __init__(self, rd, mf): self.rd = rd; self.mf = mf; self.reb = []
def qk_tile(t, w, slots, czero=False):
    gs = []
    if OPT["qo"] == 1 and len(slots) == 4:
        for s_ in range(6):
            rd = [(V_RDK[s_ & 1], w * 12288 + tb * 6144 + (s_ >> 1) * 128) for tb in range(2)]
            mf = []
            for sl, qb in slots:
                for tb in range(2):
                    d = vr(Sq(t, sl, tb), 4)
                    mf.append((tb, d, Qf(qb, s_), (("0" if czero else vr(NEGM(qb), 4)) if s_ == 0 else d)))
            gs.append(Grp(rd, mf))
        return gs
    for gi in range(6):
        s0 = 2 * (gi >> 1); tb = gi & 1
        rd = [(V_RDK[j], w * 12288 + tb * 6144 + (s0 >> 1) * 128) for j in range(2)]
        mf = []
        for sl, qb in slots:
            d = vr(Sq(t, sl, tb), 4)
            mf += [(0, d, Qf(qb, s0), (("0" if czero else vr(NEGM(qb), 4)) if s0 == 0 else d)), (1, d, Qf(qb, s0 + 1), d)]
        gs.append(Grp(rd, mf))
    return gs
def qk_full(t): return [g for w in range(2) for g in qk_tile(t + w, w, [(q, q) for q in range(4)])]
def qk_half(t, czero=False, ws=(0, 1)):
    return [g for w in ws for g in qk_tile(t, w, [(2 * w + j, slot_q(t, j)) for j in range(2)], czero)]
def OV(qb, db): return (BY if qb == 2 else BZ) + 4 * (db // 3)
def pv_grp(t, db, first=False, va=V_RD):
    m = mode_of(t); mf = []
    for qb in (range(4) if m == "f" else [slot_q(t, 0), slot_q(t, 1)]):
        d = ar(O(qb, db), 4)
        if OPT["omv"] and t >= 61 and db % 3 == 2: d = " " + vr(OV(qb, db), 4)
        for w in range(2):
            b = P(t + w, qb) if m == "f" else P(t, 2 * w + (qb & 1))
            mf.append((w, d, vr(b, 4), "0" if (first and w == 0) else d))
    return Grp([(va, w * 12288 + db * 1024) for w in range(2)], mf)
def pv_seq(t, first=False):
    if OPT["po"] == 1 and mode_of(t) == "f":
        gs = []
        for d0 in range(0, 12, 2):
            for w in range(2):
                mf = [(e, ar(O(qb, d0 + e), 4), vr(P(t + w, qb), 4), ar(O(qb, d0 + e), 4)) for qb in range(4) for e in range(2)]
                gs.append(Grp([(V_RD, w * 12288 + (d0 + e) * 1024) for e in range(2)], mf))
        return gs
    if OPT["po"] == 2 and mode_of(t) == "f":
        gs = []
        for db in range(12):
            mf = [(w, ar(O(qb, db), 4), vr(P(t + w, qb), 4), ar(O(qb, db), 4)) for w in range(2) for qb in range(4)]
            gs.append(Grp([(V_RD, w * 12288 + db * 1024) for w in range(2)], mf))
        return gs
    return [pv_grp(t, db, first) for db in range(12)]
def pv_unchained(t, first=False):
    gs = []
    for w in range(2):
        for d0 in range(0, 12, 2):
            mf = []
            for j in range(2):
                qb = slot_q(t, j)
                for e in range(2):
                    d = ar(O(qb, d0 + e), 4)
                    mf.append((e, d, vr(P(t, 2 * w + j), 4), "0" if (first and w == 0) else d))
            gs.append(Grp([(V_RD, w * 12288 + (d0 + e) * 1024) for e in range(2)], mf))
    return gs
def rebase(gs, regs, delta):
    op = "v_add_u32" if delta >= 0 else "v_subrev_u32"
    gs[0].reb += [f"{op} v{r}, {abs(delta)}, v{r}" for r in regs]
    return gs
def rd_op(gi, j, g):
    f = 2 * gi + j
    return DS(("fr", f % NFS), f"ds_read_b128 {FR(f)}, v{g.rd[j][0]} offset:{g.rd[j][1]}")

def dma_tile(part, pos, peel=False):
    dm, go, tmp = (S_DMK, S_GOFFK, S_TK) if part == "k" else (S_DMV, S_GOFF, S_TV)
    l = [f"s_mov_b32 m0, s{dm}"]
    for j in range(3):
        l.append(VM(("d" + part, pos % 8), f"buffer_load_dwordx4 v{V_DMA}, s[{S_WS}:{S_WS+3}], s{go} offen offset:{j*1024}{SC1} lds"))
    if peel and pos < 7:
        l += [f"s_add_u32 s{go}, s{go}, {STAGE}", f"s_sub_u32 s{tmp}, s{go}, {8*STAGE}", f"s_min_u32 s{go}, s{go}, s{tmp}"]
    elif peel and pos == 7:
        l += [f"s_mov_b32 s{go}, {8*STAGE + (0 if part == 'k' else 12288)}"]
    else:
        l += [f"s_add_u32 s{go}, s{go}, {STAGE}"]
    if pos % 2 == 0: l += [f"s_add_u32 s{dm}, s{dm}, 12288"]
    else: l += [f"s_add_u32 s{dm}, s{dm}, {2*STAGE - 12288}", f"s_sub_u32 s{tmp}, s{dm}, {RING}", f"s_min_u32 s{dm}, s{dm}, s{tmp}"]
    return l
QOFF = [STAGE, 0, 2 * STAGE, STAGE]
def q_dma(lst):
    l = []
    for i in lst:
        a, b = divmod(i, 6)
        l += [f"s_mov_b32 s{S_QS}, {a*6144}"] * (1 if (b == 0 or i == lst[0]) else 0)
        l += [f"s_add_u32 m0, s{S_QL}, {QOFF[a] + b*1024}",
              VM(("q", a), f"buffer_load_dwordx4 v{VQD+b}, s[{S_Q}:{S_Q+3}], s{S_QS} offen{NTQ} lds")]
    return l
def q_frags(qb):
    l = []
    for s in range(6):
        for h in range(2):
            sp = s + 6 * h
            l.append(DS(("qf", qb), f"ds_read_b64 {Qf(qb,s,h)}, v{VQR[sp&3]} offset:{QOFF[qb] + (sp>>2)*128}"))
    return l
def with_nop(l):
    out = []
    for i, x in enumerate(l):
        out.append(x)
        if isinstance(x, str) and " m0," in x and i + 1 < len(l) and isinstance(l[i + 1], VM): out.append("s_nop 0")
    return out
def rd_step(kind):
    cur, regs = (S_RK, V_RDK) if kind == "q" else (S_RV, [V_RD])
    return [f"s_add_u32 s{S_TMP}, s{cur}, {2*STAGE}", f"s_sub_u32 s{S_RDELTA}, s{S_TMP}, {RING}",
            f"s_min_u32 s{S_TMP}, s{S_TMP}, s{S_RDELTA}", f"s_sub_u32 s{S_RDELTA}, s{S_TMP}, s{cur}", f"s_mov_b32 s{cur}, s{S_TMP}"] + \
           [f"v_add_u32 v{r}, s{S_RDELTA}, v{r}" for r in regs]

def k_ld(h, buf, rs, tag, scal_first=True):
    sc = [VM(tag, f"buffer_load_dwordx2 v[{rs+2*i}:{rs+2*i+1}], v{V_KSC}, s[{srd_}:{srd_+3}], s{S_PKS} offen offset:{192*h}" + (" nt" if OPT["scnt"] else ""))
          for i, srd_ in enumerate((S_KS, S_KZ))]
    l = []
    for j in range(4):
        so = S_PK0 if j < 2 else S_PK1
        l.append(VM(tag, f"buffer_load_dwordx4 v[{buf+4*j}:{buf+4*j+3}], v{V_KLD}, s[{S_QK}:{S_QK+3}], s{so} offen offset:{(j&1)*1536+384*h}{NTKV}"))
    return sc + l if scal_first else l + sc
def v_ld(h, buf, rs, tag, scal_first=True):
    sc = [VM(tag, f"buffer_load_dwordx2 v[{rs+2*i}:{rs+2*i+1}], off, s[{srd_}:{srd_+3}], s{S_PVS} offset:{8*h}" + (" nt" if OPT["scnt"] else ""))
          for i, srd_ in enumerate((S_VS, S_VZ))]
    l = []
    for r in range(4):
        so = S_PV0 if h == 0 else S_PV1
        l.append(VM(tag, f"buffer_load_dwordx4 v[{buf+4*r}:{buf+4*r+3}], v{V_VLD}, s[{S_QV}:{S_QV+3}], s{so} offen offset:{r*768}{NTKV}"))
    return sc + l if scal_first else l + sc
def k_cv(h, buf, rs, out):
    l = []
    s0, s1, z0, z1 = V_CT, V_CT + 1, V_CT + 2, V_CT + 3
    for i in range(2):
        l += [f"v_lshlrev_b32 v{s0}, 16, v{rs+i}", f"v_and_b32 v{s1}, s{S_MASK}, v{rs+i}",
              f"v_lshlrev_b32 v{z0}, 16, v{rs+2+i}", f"v_and_b32 v{z1}, s{S_MASK}, v{rs+2+i}",
              f"v_mul_f32 v{s0}, s{S_CS}, v{s0}", f"v_mul_f32 v{s1}, s{S_CS}, v{s1}",
              f"v_mul_f32_e64 v{z0}, -v{z0}, v{s0}", f"v_mul_f32_e64 v{z1}, -v{z1}, v{s1}"]
        if OPT.get("nz", 0) & 1: l[-2:] = [f"v_mov_b32 v{z0}, 0", f"v_mov_b32 v{z1}, 0"]
        for j in range(4):
            a = buf + 4 * j + 2 * i; b = a + 1
            l += [f"v_cvt_f32_i32 v{a}, v{a}", f"v_cvt_f32_i32 v{b}, v{b}",
                  f"v_fma_f32 v{a}, v{a}, v{s0}, v{z0}", f"v_fma_f32 v{b}, v{b}, v{s1}, v{z1}",
                  f"v_cvt_pk_bf16_f32 v{out+4*j+2*h+i}, v{a}, v{b}"]
    return l
def k_st(j, out, tag="kst", STF=STF):
    va = V_KST; g = []
    if j:
        va = V_KA + (j & 1); g.append(f"v_xor_b32 v{va}, {16*j}, v{V_KST}")
    g.append(VM(tag, f"buffer_store_dwordx4 v[{out+4*j}:{out+4*j+3}], v{va}, s[{S_WS}:{S_WS+3}], s{S_PK0} offen offset:{j*768}{STF}"))
    return g
def v_cv(h, buf, rs, out):
    l = []
    s0, s1, z0, z1 = V_CT, V_CT + 1, V_CT + 2, V_CT + 3
    for i in range(2):
        l += [f"v_lshlrev_b32 v{s0}, 16, v{rs+i}", f"v_and_b32 v{s1}, s{S_MASK}, v{rs+i}",
              f"v_lshlrev_b32 v{z0}, 16, v{rs+2+i}", f"v_and_b32 v{z1}, s{S_MASK}, v{rs+2+i}",
              f"v_mul_f32_e64 v{z0}, -v{z0}, v{s0}", f"v_mul_f32_e64 v{z1}, -v{z1}, v{s1}"]
        if OPT.get("nz", 0) & 2: l[-2:] = [f"v_mov_b32 v{z0}, 0", f"v_mov_b32 v{z1}, 0"]
        for e in range(4):
            a = buf + 4 * (2 * i) + e; b = buf + 4 * (2 * i + 1) + e
            l += [f"v_cvt_f32_i32 v{a}, v{a}", f"v_cvt_f32_i32 v{b}, v{b}",
                  f"v_fma_f32 v{a}, v{a}, v{s0}, v{z0}", f"v_fma_f32 v{b}, v{b}, v{s1}, v{z1}"]
    for e, i in [(0, 0), (1, 0), (0, 1), (1, 1), (2, 0), (2, 1), (3, 0), (3, 1)]:
        l.append(f"v_cvt_pk_bf16_f32 v{out+4*e+2*h+i}, v{buf+8*i+e}, v{buf+8*i+4+e}")
    return l
def v_st(e, out, tag="vst", STF=STF):
    so = S_PV0 if e < 2 else S_PV2
    return [VM(tag, f"buffer_store_dwordx4 v[{out+4*e}:{out+4*e+3}], v{V_VST}, s[{S_WS}:{S_WS+3}], s{so} offen offset:{(e&1)*3072}{STF}")]
def k_adv():
    return [f"s_add_u32 s{S_PK0}, s{S_PK0}, {8*STAGE}", f"s_add_u32 s{S_PK1}, s{S_PK1}, {8*STAGE}", f"s_add_u32 s{S_PKS}, s{S_PKS}, {4*384}"]
def v_adv():
    return [f"s_add_u32 s{r}, s{r}, {8*STAGE}" for r in (S_PV0, S_PV1, S_PV2)] + [f"s_add_u32 s{S_PVS}, s{S_PVS}, {8*64}"]
HT = {"ka": (k_ld, k_cv, 0, BX, V_RS[0], BX), "kb": (k_ld, k_cv, 1, BY, V_RS[1], BX),
      "va": (v_ld, v_cv, 0, BZ, V_RS[0], BZ), "vb": (v_ld, v_cv, 1, BY, V_RS[1], BZ)}
def flag_post(first=False):
    return [f"v_add_u32 v{V_FVAL}, 1, v{V_FVAL}"] + [
            VM("flag", f"buffer_store_dword v{V_FVAL}, v{V_FLAG}, s[{S_FLG}:{S_FLG+3}], 0 offen")] * (OPT["l2"] == 1 or (OPT["l2"] == 2 and first)) + [
            VM("flag", f"buffer_store_dword v{V_FVAL}, v{V_FLAG}, s[{S_FLG}:{S_FLG+3}], 0 offen offset:32 sc1")]
def poll_addr():
    return [f"v_bfe_u32 v{V_POLL+1}, v{V_DMA}, 4, 6", f"v_lshlrev_b32 v{V_POLL+1}, 2, v{V_POLL+1}"]
def poll_load():
    return poll_addr() + [VM("poll", f"buffer_load_dword v{V_POLL}, v{V_POLL+1}, s[{S_FLG}:{S_FLG+3}], s{S_FOFF} offen sc1")]
def poll_test():
    return [f"v_subrev_u32 v{V_POLL}, s{S_NEED}, v{V_POLL}", f"v_cmp_lt_u32 vcc, 15, v{V_POLL}", "s_nop 0", f"s_and_b32 s{S_TP}, vcc_lo, 0xff"]
def smem_flags():
    return [f"s_buffer_load_dwordx8 s[{S_PT}:{S_PT+7}], s[{S_FLG}:{S_FLG+3}], s{S_FOFF} glc"]
def smem_reduce():
    return [f"s_sub_u32 s{S_PT+i}, s{S_PT+i}, s{S_NEED}" for i in range(8)] + [f"s_max_u32 s{S_PT}, s{S_PT}, s{S_PT+i}" for i in range(1, 8)]
def smem_test():
    return smem_flags() + ["s_waitcnt lgkmcnt(0)"] + smem_reduce() + [f"s_cmp_lt_u32 s{S_PT}, 16"]
def poll_slow(site):
    l = [f"L_pollslow{site}:"] + ([f"s_add_u32 s{S_TAG+1}, s{S_TAG+1}, {1 << (6 * site)}"] if OPT["stamp"] else [])
    l += [f"s_mov_b32 s{S_TP}, {60 if site == 0 else 200}", f"L_pollsm{site}:"] + smem_test() + [f"s_cbranch_scc1 L_pollok{site}",
          f"s_sub_u32 s{S_TP}, s{S_TP}, 1", f"s_cbranch_scc1 L_pollvec{site}", "s_sleep 1", f"s_branch L_pollsm{site}"]
    l += [f"L_pollvec{site}:"] + poll_addr() + [
            f"s_sub_u32 s{S_BUDGET}, s{S_BUDGET}, 1",
            f"s_cbranch_scc1 L_pollgiveup{site}",
            "s_sleep 2",
            f"buffer_load_dword v{V_POLL}, v{V_POLL+1}, s[{S_FLG}:{S_FLG+3}], s{S_FOFF} offen sc1",
            "s_waitcnt vmcnt(0)"]
    if site == 0 and OPT["l2"]:
        l += [f"s_bitcmp1_b32 s{S_NEED}, 9", "s_cbranch_scc1 L_nomix",
              f"v_xor_b32 v{V_POLL+1}, s{S_NEED}, v{V_POLL}", f"v_lshrrev_b32 v{V_POLL+1}, 5, v{V_POLL+1}", f"v_add_u32 v{V_POLL+1}, -1, v{V_POLL+1}",
              f"v_cmp_gt_u32 vcc, 31, v{V_POLL+1}", "s_nop 1", f"s_and_b32 s{S_TP}, vcc_lo, {'0xff' if OPT['l2'] == 3 else '0xff00'}", "s_cbranch_scc0 L_nomix"]
        l += fin([x for j in range(4) for x in k_st(j, BX)] + [x for e in range(4) for x in v_st(e, 112)])
        l += ["s_waitcnt vmcnt(0)", "s_barrier", f"s_and_b32 s{S_NEED}, s{S_NEED}, 0xfffffc00", f"s_add_u32 s{S_NEED}, s{S_NEED}, {16 << 5}",
              f"v_mov_b32 v{V_FVAL}, s{S_NEED}", f"s_add_u32 s{S_NEED}, s{S_NEED}, 1", f"s_mov_b32 s{S_FOFF}, 32"] + fin(flag_post()) + ["s_branch L_pollvec0", "L_nomix:"]
    l += poll_test() + [
            f"s_cbranch_scc1 L_pollvec{site}",
            f"s_branch L_pollok{site}",
            f"L_pollgiveup{site}:",
            f"s_mov_b32 s{S_BUDGET}, 0",
            f"s_branch L_pollok{site}"]
    return l
def tag_load():
    return [VM("tag", f"buffer_load_dword v{V_FVAL}, off, s[{S_DBG}:{S_DBG+3}], s{S_HOFF} sc1")]
def tag_check():
    return [f"s_cmp_lg_u32 s{S_WAVE}, 0", "s_cbranch_scc1 L_tagdone",
            f"v_readfirstlane_b32 s{S_TAG}, v{V_FVAL}", f"s_mov_b32 s{S_RET}, 100",
            "s_waitcnt lgkmcnt(0)", f"s_and_b32 s{S_OWN}, s{S_OWN}, 0xfffffc00",
            "L_tagretry:", f"s_cmp_eq_u32 s{S_TAG}, s{S_OWN}", f"s_cselect_b32 s{S_TAG}, 0, s{S_TAG}", f"s_cmp_lg_u32 s{S_TAG}, 0", "s_cbranch_scc1 L_tagok",
            f"s_sub_u32 s{S_RET}, s{S_RET}, 1", "s_cbranch_scc1 L_tagslow", "s_sleep 4",
            f"s_buffer_load_dword s{S_TAG}, s[{S_DBG}:{S_DBG+3}], s{S_HOFF} glc", "s_waitcnt lgkmcnt(0)", "s_branch L_tagretry",
            "L_tagok:", f"s_add_u32 s{S_TAG}, s{S_TAG}, s{S_XCC}", f"v_mov_b32 v{V_FVAL}, s{S_TAG}", f"v_mov_b32 v{V_T}, {RING}", DS("w", f"ds_write_b32 v{V_T}, v{V_FVAL}"), "L_tagdone:"]
def tag_get():
    return [f"v_mov_b32 v{V_T}, {RING}", DS("tg", f"ds_read_b32 v{V_T+1}, v{V_T}")]
def tag_use():
    return [f"v_readfirstlane_b32 s{S_NEED}, v{V_T+1}", f"s_add_u32 s{S_NEED}, s{S_NEED}, 1"]
def tag_slow():
    return ["L_tagslow:",
            f"s_sub_u32 s{S_BUDGET}, s{S_BUDGET}, 1",
            "s_cbranch_scc1 L_taggiveup",
            "s_sleep 2",
            f"buffer_load_dword v{V_FVAL}, off, s[{S_DBG}:{S_DBG+3}], s{S_HOFF} sc1",
            "s_waitcnt vmcnt(0)",
            f"v_readfirstlane_b32 s{S_TAG}, v{V_FVAL}", "s_nop 0", f"s_cmp_eq_u32 s{S_TAG}, s{S_OWN}", "s_cbranch_scc1 L_tagslow",
            f"s_cmp_eq_u32 s{S_TAG}, 0", "s_cbranch_scc1 L_tagslow",
            "s_branch L_tagok",
            "L_taggiveup:",
            f"s_mov_b32 s{S_BUDGET}, 0",
            "s_branch L_tagok"]

def text_of(x):
    return "s_waitcnt" if isinstance(x, (W, LG)) else (x.text if isinstance(x, (VM, DS)) else x)
def kind_of(x):
    t = text_of(x)
    if t.endswith(":"): return "label"
    if t.startswith("v_"): return "valu"
    if t.startswith("ds_"): return "ds"
    if t.startswith("buffer_store"): return "store"
    if t.startswith("buffer_"): return "load"
    return "salu"
def cost_of(x):
    k = kind_of(x); t = text_of(x)
    if k == "label": return 0
    if k == "store": return 20 if "x4" in t else (OPT["x2c"] if "x2" in t else 8)
    if k == "load": return OPT["ldc"]
    if t.startswith("ds_write"): return 16 if ("b128" in t or "write2" in t) else 8
    if t.startswith(("v_exp", "v_rcp")): return 8
    if t.startswith("v_mfma"): return 32
    if t.startswith("s_nop"): return 4 * (int(t.split()[1]) + 1)
    if t.startswith("s_cbranch") or t.startswith("s_branch"): return 12
    if t.startswith("s_barrier"): return 8
    return 4
def gap_time(ops):
    t = 4; prev = None
    for o in ops:
        if o is None: continue
        k = kind_of(o)
        if k == "label": continue
        if k == "salu": t += cost_of(o)
        else: t = max(t, 8) + cost_of(o) + (8 if (k != "valu" and prev == "valu") else 0)
        prev = k
    return t

class Stream:
    def __init__(self, ops, first, last, maxper=99, dense=0):
        self.nb = {}; self.dl = []; l = []
        for o in ops:
            if isinstance(o, tuple):
                if o[0] == "nb": self.nb[len(l)] = o[1]
                else: self.dl.append((len(l), o[1]))
            else: l.append(o)
        ops = l
        self.ops = list(ops); self.first = first; self.last = last; self.maxper = maxper; self.dense = dense
        self.total = sum(cost_of(o) for o in self.ops); self.done = 0; self.i = 0
        self.gate = {}; self.i0 = 0

def pack(NG, A, B, C, T, streams, novm=(), nosalu=(), vmgap=4):
    out = []; over = 0; lastvm = -99
    for g in range(NG):
        a, b, c, tl = list(A[g]), list(B[g]), list(C[g]), list(T[g])
        cnt = {}; inC = set(); blocked = set()
        while True:
            best = None; bl = None; bsec = None
            for st in streams:
                if st.i >= len(st.ops) or g < st.first: continue
                if g < st.nb.get(st.i, 0): continue
                force = g >= st.last or any(st.i < n and g >= dg for n, dg in st.dl)
                if (cnt.get(id(st), 0) >= st.maxper or id(st) in blocked) and not force: continue
                o = st.ops[st.i]; k = kind_of(o); cst = cost_of(o)
                if k == "salu" and g in nosalu:
                    assert not force, (g, text_of(o))
                    continue
                if k in ("load", "store") and (g in novm or g - lastvm < vmgap) and not force: continue
                if k in ("load", "store", "ds"):
                    sec = "b" if id(st) not in inC and id(st) not in blocked else "c"
                    if sec == "c" and not force: continue
                elif k == "salu" and not a and cnt.get(id(st), 0) == 0:
                    sec = "a"
                else: sec = "c"
                tgt = st.total * (g - st.first + 1) / (st.last - st.first + 1)
                lag = tgt - st.done
                if not force:
                    if lag < cst / 2 - OPT["ahead"] and cst: continue
                    trial = (a + [o] if sec == "a" else a) + (b + [o] if sec == "b" else b) + (c + [o] if sec == "c" else c) + tl
                    gt = gap_time(trial)
                    if gt > 16:
                        if g % 2 == 0: continue
                        big = k == "store" or text_of(o).startswith(("ds_write_b128", "ds_write2"))
                        lim = max(20, st.dense) if lag > 24 else 16
                        if big and not (a + b + c + tl): lim = 32
                        if gt > lim: continue
                key = (force, k in ("load", "store"), lag / max(1, (st.last - g + 1)) ** 0.5)
                if best is None or key > bl: best = st; bl = key; bsec = sec
            if best is None: break
            o = best.ops[best.i]
            if bsec == "a": a.append(o)
            elif bsec == "b":
                b.append(o)
            else: c.append(o)
            if bsec == "c" or bsec == "b" and kind_of(o) != "ds" and False: inC.add(id(best))
            if bsec == "c": inC.add(id(best))
            if " m0," in text_of(o): blocked.add(id(best))
            if kind_of(o) in ("load", "store"): lastvm = g
            best.i += 1; best.done += cost_of(o); cnt[id(best)] = cnt.get(id(best), 0) + 1
        ops = a + b + c + tl
        tt = gap_time(ops)
        if tt > 16: over += tt - 16
        out.append(ops)
    for st in streams: assert st.i == len(st.ops)
    return out, over

def pack_dense(NG, A, B, C, T, streams, novm=(), nosalu=(), vmgap=2):
    jobs = []
    for st in streams:
        r = st.first; rel = []
        for i in range(len(st.ops)):
            r = max(r, st.nb.get(i, 0)); rel.append(r)
        for i, o in enumerate(st.ops):
            d = min([st.last] + [dg for n, dg in st.dl if i < n])
            k = kind_of(o)
            jobs.append([rel[i], d, cost_of(o) + (OPT["dx"] if k in ("store", "load") else 0) - (2 if k == "salu" else 0)])
    for g in range(NG): jobs.append([g, g, max(0, gap_time(A[g] + B[g] + C[g] + T[g]) - 8)])
    level = [None] * NG
    while jobs:
        free = [g for g in range(NG) if level[g] is None]
        pts_r = sorted({j[0] for j in jobs}); pts_d = sorted({j[1] for j in jobs})
        best = None
        for a_ in pts_r:
            ws = sorted((j[1], j[2]) for j in jobs if j[0] >= a_)
            w = 0; i = 0
            for b_ in pts_d:
                if b_ < a_: continue
                while i < len(ws) and ws[i][0] <= b_: w += ws[i][1]; i += 1
                n = sum(1 for g in free if a_ <= g <= b_)
                if n and (best is None or w / n > best[0]): best = (w / n, a_, b_)
        dn, a_, b_ = best
        if dn <= 8: break
        for g in free:
            if a_ <= g <= b_: level[g] = dn
        jobs = [j for j in jobs if not (j[0] >= a_ and j[1] <= b_)]
    extra = [2 * (level[g] - 8) if (level[g] is not None and g % 2) else 0 for g in range(NG)]
    return pack_dense1(NG, A, B, C, T, streams, novm, nosalu, vmgap, extra)
def pack_dense1(NG, A, B, C, T, streams, novm, nosalu, vmgap, extra):
    out = []; over = 0; lastvm = -99
    fixed = [gap_time(A[g] + B[g] + C[g] + T[g]) - (8 if not (B[g] + C[g] + T[g]) else 8) for g in range(NG)]
    for g in range(NG):
        a, b, c, tl = list(A[g]), list(B[g]), list(C[g]), list(T[g])
        carry = (carry if g else 0) + extra[g]
        bud = 16 + (carry if g % 2 else 0)
        blocked = set(); inC = set()
        for st in streams: st.i0 = st.i
        while True:
            best = None; bl = None
            cur = gap_time(a + b + c + tl)
            for st in streams:
                if st.i >= len(st.ops) or g < st.first or g < st.nb.get(st.i, 0): continue
                if st.i in st.gate:
                    o_, j_ = st.gate[st.i]
                    if (o_.i0 if (kind_of(st.ops[st.i]) == "store" and g < NG - 1) else o_.i) <= j_: continue
                    if o_.i0 <= j_: inC.add(id(st))
                force = g >= st.last or any(st.i < n and g >= dg for n, dg in st.dl)
                if id(st) in blocked and not force: continue
                o = st.ops[st.i]; k = kind_of(o)
                if k == "salu" and g in nosalu:
                    assert not force
                    continue
                mem = k in ("load", "store", "ds")
                if k in ("load", "store") and (g in novm or g - lastvm < vmgap) and not force: continue
                sec = "b" if (mem and id(st) not in inC) else ("a" if (k == "salu" and not a and id(st) not in inC and id(st) not in blocked and not any(x is st for x in ())) else "c")
                if sec == "a" and any(id(st) == y for y in inC): sec = "c"
                if mem and sec == "c" and not force: continue
                trial = gap_time((a + [o] if sec == "a" else a) + (b + [o] if sec == "b" else b) + (c + [o] if sec == "c" else c) + tl)
                if not force and trial > bud and not (cur < 16 and trial <= bud + 12 and g % 2): continue
                tgt = st.total * (g - st.first + 1) / (st.last - st.first + 1)
                n_, dd = min([(len(st.ops), st.last)] + [(n, dg) for n, dg in st.dl if st.i < n], key=lambda x: x[1])
                need = sum(cost_of(x) for x in st.ops[st.i:n_]) / max(1, dd - g + 1)
                key = (force, mem, need)
                if best is None or key > bl: best = st; bl = key; bsec = sec
            if best is None: break
            o = best.ops[best.i]
            {"a": a, "b": b, "c": c}[bsec].append(o)
            if bsec == "c" or (bsec == "b"):
                if bsec == "c": inC.add(id(best))
                else: usedb = True
            if bsec in ("a", "b"): best._g = g
            if " m0," in text_of(o): blocked.add(id(best))
            if kind_of(o) in ("load", "store"): lastvm = g
            best.i += 1; best.done += cost_of(o)
            if bsec == "b" and not a: a.append(None)
        a = [x for x in a if x is not None]
        ops = a + b + c + tl
        tt = gap_time(ops)
        carry = max(0, carry - max(0, tt - 16)) if extra[g] or g % 2 == 0 else 0
        if tt > 16: over += tt - 16
        out.append(ops)
    for st in streams: assert st.i == len(st.ops)
    return out, over

POLLSITES = []
def gen_seg(name, groups, nxt, sm=(), bars=(), tasks=(), dma=(), extra=(), endops=(), fixed=(), peel=True, vmgap=None):
    starts = []; n = 0
    for g in groups: starts.append(n); n += len(g.mf)
    NG = n
    A = [[] for _ in range(NG)]; B = [[] for _ in range(NG)]; C = [[] for _ in range(NG)]; T = [[] for _ in range(NG)]
    streams = []; novm = set(range(0, NG, 2)); nosalu = set()
    allg = list(groups) + list(nxt)
    assert len(groups) % 3 == 0
    for i, g in enumerate(groups):
        g0 = starts[i]; ln = len(g.mf)
        if i + 2 < len(allg):
            t = allg[i + 2]
            if not (OPT["ab"] & 4 and name.startswith("k") and i % 2): B[g0].append(rd_op(i + 2, 0, t)); B[g0 + ln // 2].append(rd_op(i + 2, 1, t))
            if t.reb:
                assert g0 > 0
                C[g0 - 1] += t.reb
        if i + 1 < len(allg):
            A[g0 + ln - 1].append(LG(("fr", (2 * i + 2) % NFS), ("fr", (2 * i + 3) % NFS)))
    for ops, f, l in sm: streams.append(Stream(ops, f, l))
    streams += list(extra)
    if endops:
        A[NG-4] += endops[:1]; A[NG-2] += [A[NG-1][0]] + list(endops[1:-1]); A[NG-1] = []; T[NG-1] = list(endops[-1:]); nosalu |= {NG-2, NG-1}
    for grp in dma:
        dl = []
        for part, pos in grp[:-2]: dl += dma_tile(part, pos, peel)
        k = max(i for i, x in enumerate(dl) if isinstance(x, VM)) + 1
        lim = NG - 3 if endops else NG - 1
        if grp[-1] + 1 > lim: k = len(dl)
        streams.append(Stream(dl[:k], grp[-2], grp[-1], maxper=2))
        if dl[k:]: streams.append(Stream(dl[k:], grp[-1] + 1, min(lim, grp[-1] + 12), maxper=2))
    bars = [(g, list(tg)) for g, tg in bars]
    for t in tasks:
        k_ = t[0]
        if k_ == "cv":
            _, cv, h, buf, rs, outb = HT[t[1]]
            ops = cv(h, buf, rs, outb)[t[2]:t[3]]
            if t[2] == 0: ops = [W(t[1])] + ops
            streams.append(Stream(ops, t[4], t[5]))
        elif k_ in ("kst", "vst"):
            grp = k_st(t[1], BX) if k_ == "kst" else v_st(t[1], BZ)
            g = t[2]; assert g % 2 == 1 and not B[g] and not A[g], (name, g)
            B[g].append(grp[-1]); novm |= set(range(g - OPT["sb"], g + OPT["sa"] + 1))
            if grp[:-1]: streams.append(Stream(grp[:-1], max(0, g - 5), g - 1))
        elif k_ in ("ld", "ldn"):
            ld, _, h, buf, rs, _o = HT[t[1]]
            adv = {"ka": k_adv(), "va": v_adv()}.get(t[1], []) if k_ == "ld" else []
            ops = ld(h, buf, rs, t[1])
            if len(t) > 4: ops = ops[2:] if t[4] == "raw" else ops[:2]
            streams.append(Stream(adv + ops, t[2], t[3], maxper=1))
        elif k_ == "post":
            bi = t[2] if len(t) > 2 else -1
            bars[bi][1].append(t[1])
            streams.append(Stream(flag_post(), bars[bi][0] + 1, min(NG - 3, bars[bi][0] + 14), maxper=1))
        elif k_ == "pf":
            streams.append(Stream([VM("pf", f"buffer_load_dword v{V_T4}, v{V_DMA}, s[{S_DBG}:{S_DBG+3}], s{S_HOFF} offen")], t[1], t[2]))
        elif k_ == "rld":
            streams.append(Stream([VM("rs", f"buffer_load_dwordx4 v[{V_T4}:{V_T4+3}], v{V_DMA}, s[{S_WS}:{S_WS+3}], s{S_RC} offen sc1")], t[1], t[2]))
        elif k_ == "rst":
            g = t[1]; assert g % 2 == 1 and not B[g] and not A[g] and not A[g - 1], (name, g)
            A[g - 1].append(W("rs")); B[g].append(VM("rs2", f"buffer_store_dwordx4 v[{V_T4}:{V_T4+3}], v{V_DMA}, s[{S_WS}:{S_WS+3}], s{S_RC} offen sc1"))
            novm |= set(range(g - OPT["sb"], g + OPT["sa"] + 1))
            streams.append(Stream([f"s_add_u32 s{S_RC}, s{S_RC}, s{S_RD}", f"s_sub_u32 s{S_RD}, 1024, s{S_RD}"], g + 1, g + 8, maxper=1))
        elif k_ == "pollld": streams.append(Stream(poll_load(), t[1], t[2], maxper=1))
        elif k_ == "pollchk":
            ps = len(POLLSITES); POLLSITES.append(ps)
            g = t[1]; assert g % 4 == 1
            pt = poll_test()
            A[g] += [W("poll")]; T[g] += pt[:2]; novm |= {g, g + 4}
            A[g + 3] += [pt[3]]; A[g + 4] += [f"s_cbranch_scc1 L_pollslow{ps}", f"L_pollok{ps}:"]; nosalu |= {g + 3, g + 4}
            A[g + 5] += [f"s_add_u32 s{S_NEED}, s{S_NEED}, 1"]
        elif k_ == "spollld": A[t[1]] += smem_flags()
        elif k_ == "spollchk":
            ps = len(POLLSITES); POLLSITES.append(ps)
            A[t[1]] += ["s_waitcnt lgkmcnt(0)"]
            streams.append(Stream(smem_reduce(), t[1] + 1, t[2] - 1, maxper=3))
            A[t[2]] += [f"s_cmp_ge_u32 s{S_PT}, 16", f"s_cbranch_scc1 L_pollslow{ps}", f"L_pollok{ps}:", f"s_add_u32 s{S_NEED}, s{S_NEED}, 1"]
        elif k_ == "step": streams.append(Stream(rd_step(t[1]), t[2], t[3], maxper=1))
        elif k_ == "q": streams.append(Stream(q_dma(t[1]), t[2], t[3], maxper=2))
        else: raise Exception(k_)
    for g, tags in bars:
        i = [j for j in range(len(groups)) if starts[j] + len(groups[j].mf) - 1 == g]
        assert i, (name, g)
        if len(groups[i[0]].mf) == 8:
            A[g - 2] += A[g]; A[g] = []
            if tags: A[g - 1] += [W(*tags)]
        elif tags: A[g - 2] += [W(*tags)]
        A[g] += ["s_barrier"]; novm |= {g}
    for g, sec, ops in fixed: {"A": A, "B": B, "C": C, "T": T}[sec][g] += ops
    if endops:
        for st_ in streams: st_.last = min(st_.last, NG - 2)
    m0w = sorted((st.first, st.last) for st in streams if any(" m0," in text_of(o) for o in st.ops))
    assert all(m0w[i][1] < m0w[i + 1][0] for i in range(len(m0w) - 1)), (name, m0w)
    if name in str(OPT["dense"]).split(","): fill, over = pack_dense(NG, A, B, C, T, streams, novm, nosalu, vmgap or OPT["dvg"])
    else: fill, over = pack(NG, A, B, C, T, streams, novm, nosalu, vmgap or OPT["vmgap"])
    if over: print(f"seg {name}: over budget by {over} cycles", file=sys.stderr)
    out = istamp(name)
    g = 0
    for i, gr in enumerate(groups):
        for j, d, b, c in gr.mf:
            if (OPT["pvs"] & 1 and d[0] in "a ") or (OPT["pvs"] & 2 and d.startswith("v")): out.append(f"{MF} {d}, {b}, {FR(2*i+j)}, {c}")
            else: out.append(f"{MF} {d}, {FR(2*i+j)}, {b}, {c}")
            out += fill[g]; g += 1
    return with_nop(out)

GBAR = 79
def seg_groups(it):
    return qk_full(it + 1) if it % 2 else pv_seq(it - 2)
def gen_iter(it, tasks=(), dma=(), name=None, endops=(), peel=False, nxt=None, extra=(), bars=None, groups=None, sm=None, step=True):
    q = it % 2
    smB = softmax_part(it, 1); smA = softmax_part(it + 1, 0)
    if sm is None: sm = ([(smB + [("dl", 57), ("nb", 47)] + smA, 0, 95)] if OPT["flex"] else [(smB, 0, 50), (smA, 52, 95)]) if q else [(smB + smA, 0, 95)]
    need = [("dv", (it - 1) % 8), ("dv", it % 8)] if q else [("dk", (it + 2) % 8), ("dk", (it + 3) % 8)]
    tasks = list(tasks) + ([("step", "p" if q else "q", 30, GBAR - 3)] if step else [])
    return gen_seg(name or f"i{it}", groups or seg_groups(it), nxt if nxt is not None else seg_groups(it + 1)[:2], sm,
                   bars if bars is not None else [(GBAR, need)], tasks, dma, extra, endops, peel=peel)

K_ = lambda *j: tuple(("k", x) for x in j)
V_ = lambda *j: tuple(("v", x) for x in j)
def steady(k):
    ckv, ckk = OPT["ckv"], OPT["ckk"]
    plv, plk = OPT["plv"], OPT["plk"]
    if OPT["bal"]:
        c = [int(x) for x in str(OPT["cut"]).split(",")]
        a1, a2, b1, b2, v1, v2, w1 = c
        return {
            5: ([("cv", "ka", 0, a1, 0, 95), ("pollchk", 1), ("vst", 0, 9), ("vst", 1, 17), ("vst", 2, 25), ("vst", 3, 33), ("post", "vst")], [K_(0, 1) + (41, 74)]) if ckk == 1 else
               ([("cv", "ka", 0, a1, 0, 95), ("pollchk", ckk), ("vst", 0, 1), ("vst", 1, 9), ("vst", 2, 17), ("vst", 3, 25), ("post", "vst")], [K_(0, 1) + (ckk + 7, 92)]),
            6: ([("cv", "ka", a1, a2, 0, 95), ("ld", "kb", 0, 44)] + [("rld", 70, 92)] * OPT["rs"], [K_(2, 3) + (0, 90)]),
            7: ([("cv", "ka", a2, 99, 0, 60), ("cv", "kb", 0, b1, 61, 95), ("ld", "va", 11, 70), ("pollld", plv, plv + 8)], [K_(4, 5) + (11, 92)]),
            0: ([("cv", "kb", b1, b2, 0, 95), ("pollchk", ckv)] + [("rst", 81)] * OPT["rs"], [V_(0, 1) + (ckv + 7, 74)]),
            1: ([("cv", "kb", b2, 99, 0, 30), ("cv", "va", 0, v1, 31, 95), ("ld", "vb", 32, 80)], [V_(2, 3) + (0, GBAR - 5)]),
            2: ([("cv", "va", v1, v2, 0, 95), ("kst", 0, 1), ("kst", 1, 9), ("kst", 2, 17), ("kst", 3, 25), ("post", "kst")], [K_(6, 7) + (33, 74)]),
            3: ([("cv", "va", v2, 99, 0, 50), ("cv", "vb", 0, w1, 51, 95), ("ld", "ka", 0, 44)], [V_(4, 5) + (0, 90)]),
            4: ([("cv", "vb", w1, 99, 0, 95), ("pollld", plk, plk + 16)] + ([("pf", 80, 92)] if OPT["pf2"] else []), [V_(6, 7) + (0, GBAR - 5)]),
        }[k]
    return {
        1: ([("cv", "va", 0, 22, 0, 95), ("ld", "vb", 0, 44)], [V_(2, 3) + (0, GBAR - 5)]),
        2: ([("cv", "va", 22, 99, 0, 95), ("kst", 0, 1), ("kst", 1, 9), ("kst", 2, 17), ("kst", 3, 25), ("post", "kst")], [K_(6, 7) + (33, 74)]),
        3: ([("cv", "vb", 0, 22, 0, 95), ("ld", "ka", 0, 44)], [V_(4, 5) + (0, GBAR - 5)]),
        4: ([("cv", "vb", 22, 99, 0, 95), ("pollld", plk, plk + 16)] + ([("pf", 80, 92)] if OPT["pf2"] else []), [V_(6, 7) + (0, GBAR - 5)]),
        5: ([("cv", "ka", 0, 16, 0, 95), ("pollchk", 1), ("vst", 0, 9), ("vst", 1, 17), ("vst", 2, 25), ("vst", 3, 33), ("post", "vst")], [K_(0, 1) + (41, 74)]),
        6: ([("cv", "ka", 16, 99, 0, 95), ("ld", "kb", 0, 30)], [K_(2, 3) + (31, 74)]),
        7: ([("cv", "kb", 0, 24, 40, 95), ("ld", "va", 11, 40), ("pollld", plv, plv + 8)], [K_(4, 5) + (41, 90)]),
        0: ([("cv", "kb", 24, 99, 0, 95), ("pollchk", ckv)], [V_(0, 1) + (ckv + 7, ckv + 44)]),
    }[k]

GA = V_RS[0]; TA = V_RS[0] + 1; BA = V_RS[0] + 2
RL = [V_CT, V_CT + 4, NEGM(0), NEGM(1)]
S_EO = 24
def epi_addr():
    return [f"v_bfe_u32 v{TA}, v{V_DMA}, 8, 2", f"v_mul_u32_u24 v{GA}, 1536, v{TA}", f"v_lshlrev_b32 v{BA}, 4, v{TA}",
            f"v_bfe_u32 v{TA}, v{V_DMA}, 4, 4", f"v_lshl_add_u32 v{GA}, v{TA}, 3, v{GA}", f"v_mov_b32 v{TA}, 1.0",
            f"s_lshl_b32 s{S_EO}, s{S_QB}, 2", f"s_add_u32 s{S_EO}, s{S_EO}, s{S_WAVE}", f"s_mul_i32 s{S_EO}, s{S_EO}, {STAGE}",
            f"s_add_u32 s{S_QL}, s{S_EO}, 6144", f"s_add_u32 s{S_QS}, s{S_EO}, 12288", f"s_add_u32 s{S_TAG}, s{S_EO}, 18432"]
S_EQ = [S_EO, S_QL, S_QS, S_TAG]
def epi_l(qs, gap=("s_nop 7", "s_nop 1")):
    fl = [f"v_mfma_f32_16x16x4_f32 v[{RL[q]}:{RL[q]+3}], v{V_L[q]}, v{TA}, 0" for q in qs] + list(gap)
    return fl + [f"v_rcp_f32 v{RL[q]+r}, v{RL[q]+r}" for q in qs for r in range(4)]
class Epi:
    def __init__(self, temps): self.temps = temps; self.n = 0; self.pend = []
    def flush(self, k=99):
        p = self.pend[:k]; self.pend = self.pend[k:]
        return p
    def chunk(self, qb, n, pk=False, inv=False):
        p = []
        ob = self.temps[self.n % len(self.temps)]; self.n += 1
        for r in range(4):
            o = ob + 4 * r
            if inv:
                p += [f"v_mul_f32 v{o+e}, v{OV(qb,3*e+n)+r}, v{RL[qb]+r}" for e in range(4)]
                p += [f"v_cvt_pk_bf16_f32 v{o+i}, v{o+2*i}, v{o+2*i+1}" for i in range(2)] + self.flush(1)
                self.pend.append(VM("out", f"buffer_store_dwordx2 v[{o}:{o+1}], v{GA}, s[{S_OUT}:{S_OUT+3}], s{S_EQ[qb]} offen offset:{n*128 + r*384}{OF}"))
                continue
            p += [f"v_accvgpr_read_b32 v{o+e}, a{O(qb,3*e+n)+r}" for e in range(4)]
            rl = RL[qb] + r
            if pk: p += [f"v_pk_mul_f32 v[{o+2*i}:{o+2*i+1}], v[{o+2*i}:{o+2*i+1}], v[{rl&~1}:{(rl&~1)+1}] " + ("op_sel:[0,1] op_sel_hi:[1,1]" if rl & 1 else "op_sel_hi:[1,0]") for i in range(2)]
            else: p += [f"v_mul_f32 v{o+e}, v{o+e}, v{rl}" for e in range(4)]
            p += [f"v_cvt_pk_bf16_f32 v{o+i}, v{o+2*i}, v{o+2*i+1}" for i in range(2)]
            p += self.flush(1)
            self.pend.append(VM("out", f"buffer_store_dwordx2 v[{o}:{o+1}], v{GA}, s[{S_OUT}:{S_OUT+3}], s{S_EQ[qb]} offen offset:{n*128 + r*384}{OF}"))
        return p

def gen_tail():
    sp = softmax_part
    g57 = qk_half(58) + rebase(qk_half(59), V_RDK, A0 - A2)
    g58 = pv_seq(56)
    g59 = rebase(qk_half(60), V_RDK, A1 - A0) + rebase(qk_half(61), V_RDK, A2 - A1)
    g60 = rebase(pv_seq(58), [V_RD], B2 - B1) + rebase(pv_seq(59), [V_RD], B0 - B2)
    g61 = rebase(pv_seq(60), [V_RD], B1 - B0) + rebase(qk_half(62), V_RDK, A0 - A2)
    g62 = rebase(qk_half(63), V_RDK, A1 - A0) + ([] if OPT["f3"] else rebase(pv_seq(61), [V_RD], B2 - B1))
    g63 = []
    for n in range(3):
        if OPT["f3"]: g63 += [pv_grp(61, 3 * e + n, va=VQR[0]) for e in range(4)]
        g63 += [pv_grp(62, 3 * e + n) for e in range(4)] + [pv_grp(63, 3 * e + n, va=V_RD2) for e in range(4)]
    if OPT["f3"]: g63[0].reb += [f"v_add_u32 v{VQR[0]}, {B2 - B1}, v{V_RD}", f"v_mov_b32 v{V_RD2}, v{V_RD}", f"v_subrev_u32 v{V_RD}, {B1 - B0}, v{V_RD}"]
    else: g63[0].reb += [f"v_subrev_u32 v{V_RD2}, {B2 - B1}, v{V_RD}", f"v_subrev_u32 v{V_RD}, {B2 - B0}, v{V_RD}"]
    first57 = g57[:2]
    p = []
    p += gen_seg("S57", g57, g58[:2], [(sp(57, 1) + [("dl", 50), ("nb", 28)] + sp(58, 0), 0, 95)], [(7, [("dk", 5)]), (GBAR, [("dv", 0), ("dv", 1)])],
                 [("step", "p", 30, GBAR - 3)], [(K_(62, 63) + (8, 60)) if OPT["tv"] else (K_(62, 63) + V_(58, 59) + (8, 90))], peel=False)
    p += gen_seg("S58", g58, g59[:2], [(sp(58, 1) + sp(59, 0), 0, 95), (epi_addr(), 0, 95)], [(GBAR, [("dk", 7)] if OPT["tv"] else [("dk", 7), ("dv", 3)])], [],
                 [(V_(58, 59, 60, 61) + (0, 74)) if OPT["tv"] else (V_(60, 61) + (0, 60))], peel=False)
    p += gen_seg("S59", g59, g60[:2], [(sp(59, 1) + [("dl", 50), ("nb", 28)] + sp(60, 0), 0, 95)], [(15, [("dv", 5)])], [], [V_(62, 63) + (16, 60)], peel=False)
    p += gen_seg("S60", g60, g61[:2], [(sp(60, 1) + sp(61, 0), 0, 95)], [(GBAR, [("dv", 7)])])
    ep = Epi([BX] if OPT["omv"] else [BX, BY])
    e01 = [x for qb in (0, 1) for n in range(3) for x in ep.chunk(qb, n, OPT["pk"])] + ep.flush()
    chk = [f"v_max3_f32 v{V_T+2}, v{V_L[0]}, v{V_L[1]}, v{V_L[2]}", f"v_max_f32 v{V_T+2}, v{V_T+2}, v{V_L[3]}",
           f"s_mov_b32 s{S_TMP}, 0x{f32bits(2.0**OPT['thr']):08x}", f"v_cmp_lt_f32 s[{S_PT}:{S_PT+1}], s{S_TMP}, v{V_T+2}"]
    c = [ep.chunk(2, j, OPT["pk"]) + ep.chunk(3, j, OPT["pk"]) + ep.flush() for j in range(2)]
    sm = sp(61, 1) + epi_l((0, 1), [])[2:] + [("dl", 50), ("nb", 76)] + sp(62, 0) + [("nb", 98)] + sp(62, 1) + [("nb", 124)] + sp(63, 0) + [("nb", 148)] + sp(63, 1) + [("dl", 205)] + chk + [("nb", 214)] + epi_l((2, 3), [])[2:]
    ee = e01 + [("nb", 228)] + c[0] + [("nb", 260)] + c[1]
    lastsm = 220
    if OPT["f3"]:
        sm = sp(61, 1) + epi_l((0, 1), [])[2:] + [("dl", 50), ("nb", 76)] + sp(62, 0) + [("nb", 98)] + sp(62, 1) + [("dl", 157), ("nb", 124)] + sp(63, 0) + [("nb", 148)] + sp(63, 1) + [("dl", 173)] + chk + [("nb", 182)] + epi_l((2, 3), [])[2:]
        ee = e01 + [("dl", OPT["ed"]), ("nb", 196)] + c[0] + [("dl", OPT["ed1"]), ("nb", 244)] + c[1]
        lastsm = 190
    if OPT["sst"]:
        prod = []; ev = []
        for x in ee:
            if isinstance(x, VM): prod.append(x)
            else: ev.append(x)
        es = Stream(ev, 52, 286); ss = Stream(prod, 52, 287)
        cv = [i for i, x in enumerate(es.ops) if text_of(x).startswith("v_cvt_pk")][1::2]
        rd = [i for i, x in enumerate(es.ops) if text_of(x).startswith("v_accvgpr_read")][0::4]
        assert len(cv) == len(prod) == len(rd)
        for k in range(len(prod)):
            ss.gate[k] = (es, cv[k]); ss.nb[k] = max([0] + [gp for i, gp in es.nb.items() if i <= cv[k]])
            kk = k + 4 * len(ep.temps)
            if kk < len(prod): es.gate[rd[kk]] = (ss, k)
        xs = [es, ss]
        if OPT["omv"]: xs.append(Stream([f"v_accvgpr_read_b32 v{OV(q, db)+r}, a{O(q, db)+r}" for q in (2, 3) for db in (2, 5, 8, 11) for r in range(4)], 0, 140))
    else: xs = [Stream(ee, 52, 287)]
    p += gen_seg("S61", g61 + g62 + g63, [], [(sm, 0, lastsm)], extra=xs,
                 fixed=[(1, "T", epi_l((0, 1))[:1]), (3, "T", epi_l((0, 1))[1:2]), (lastsm - 15, "T", epi_l((2, 3))[:1]), (lastsm - 13, "T", epi_l((2, 3))[1:2]), (lastsm + 5, "A", [f"s_cmp_lg_u64 s[{S_PT}:{S_PT+1}], 0", "s_cbranch_scc1 L_slow"]), (95, "T", istamp("S62")), (191, "T", istamp("S63"))])
    p += istamp("fin") + ["s_nop 7"]
    if OPT["omv"]: ep.temps = [UNIT[0], UNIT[1]]
    p += ep.chunk(2, 2, True, OPT["omv"]) + ep.flush() + ep.chunk(3, 2, True, OPT["omv"]) + ep.flush()
    return first57, p
def slow_epi():
    ep = Epi([64 + 16 * i for i in range(4)])
    seq = ["s_nop 1"] + epi_l((0, 1)) + epi_l((2, 3)) + ["s_nop 0"]
    for qb in range(4):
        for n in range(3): seq += ep.chunk(qb, n, True)
    return seq + ep.flush()

def kfrag(g):
    return 2 * (g >> 2) + (g & 1), (g >> 1) & 1
def gen_slow():
    KF = 64; VF = 112; SS = 160; PP = 224; M = [240, 241, 242, 243]; KA = [244, 245]; LA = 246; t = V_T
    p = ["L_slow:", "s_waitcnt vmcnt(0) lgkmcnt(0)", "s_nop 15"]
    for i in range(192): p.append(f"v_accvgpr_write_b32 a{i}, 0")
    for q in range(4): p += [f"v_mov_b32 v{V_L[q]}, 0", f"v_mov_b32 v{M[q]}, 0xff7fffff"]
    p += [f"v_subrev_u32 v{KA[0]}, {A1}, v{V_RDK[0]}", f"v_subrev_u32 v{KA[1]}, {A1}, v{V_RDK[1]}", f"v_subrev_u32 v{LA}, {B0}, v{V_RD}",
          f"s_mov_b32 s{S_PT}, 0", "L_slowloop:"]
    for i in range(1, 5): p.append(f"s_add_u32 s{S_PT+i}, s{S_PT}, {[0, 6144, 12288, 16384, 20480][i]}")
    for f in range(12):
        s, tb = kfrag(f)
        p.append(f"buffer_load_dwordx4 v[{KF+4*f}:{KF+4*f+3}], v{KA[s&1]}, s[{S_WS}:{S_WS+3}], s{S_PT+tb} offen offset:{(s>>1)*128} sc1")
    for db in range(12):
        p.append(f"buffer_load_dwordx4 v[{VF+4*db}:{VF+4*db+3}], v{LA}, s[{S_WS}:{S_WS+3}], s{S_PT+2+db//4} offen offset:{(db%4)*1024} sc1")
    p.append("s_waitcnt vmcnt(12)")
    for f in range(12):
        s, tb = kfrag(f)
        for qb in range(4):
            d = vr(SS + 8 * qb + 4 * tb, 4)
            p.append(f"{MF} {d}, v[{KF+4*f}:{KF+4*f+3}], {Qf(qb,s)}, {'0' if s == 0 else d}")
    p.append("s_nop 9")
    for qb in range(4):
        sb = SS + 8 * qb
        p += [f"v_max3_f32 v{t}, v{sb}, v{sb+1}, v{sb+2}", f"v_max3_f32 v{t}, v{t}, v{sb+3}, v{sb+4}",
              f"v_max3_f32 v{t}, v{t}, v{sb+5}, v{sb+6}", f"v_max3_f32 v{t}, v{t}, v{sb+7}, v{M[qb]}"]
        p += xlane("v_max_f32", t)
        p += [f"v_sub_f32 v{t+1}, v{M[qb]}, v{t}", f"v_exp_f32 v{t+1}, v{t+1}", f"v_mov_b32 v{M[qb]}, v{t}"]
        for i in range(8): p.append(f"v_sub_f32 v{sb+i}, v{sb+i}, v{t}")
        for i in range(8): p.append(f"v_exp_f32 v{sb+i}, v{sb+i}")
        p.append(f"v_mul_f32 v{V_L[qb]}, v{V_L[qb]}, v{t+1}")
        for i in range(8): p.append(f"v_add_f32 v{V_L[qb]}, v{V_L[qb]}, v{sb+i}")
        for i in range(4): p.append(f"v_cvt_pk_bf16_f32 v{PP+4*qb+i}, v{sb+2*i}, v{sb+2*i+1}")
        p += [f"ds_bpermute_b32 v{248+r}, v{BA}, v{t+1} offset:{4*r}" for r in range(4)] + ["s_waitcnt lgkmcnt(0)"]
        for i in range(48):
            a = O(qb, 0) + i; tt = t + 2 + (i % 2)
            p += [f"v_accvgpr_read_b32 v{tt}, a{a}", f"v_mul_f32 v{tt}, v{tt}, v{248+i%4}", f"v_accvgpr_write_b32 a{a}, v{tt}"]
    p += ["s_waitcnt vmcnt(0)", "s_nop 1"]
    for db in range(12):
        for qb in range(4):
            d = ar(O(qb, db), 4)
            p.append(f"{MF} {d}, v[{PP+4*qb}:{PP+4*qb+3}], v[{VF+4*db}:{VF+4*db+3}], {d}")
    p += [f"s_add_u32 s{S_PT}, s{S_PT}, {STAGE}", f"s_cmp_lt_u32 s{S_PT}, {HEADBYTES}", "s_nop 7", "s_cbranch_scc1 L_slowloop"]
    e = slow_epi(); resolve(e)
    return p + fin(e) + ["s_branch L_fin"]

def xlane(op, t, u=None):
    u = t + 1 if u is None else u
    l = []
    for sw in ("v_permlane16_swap_b32", "v_permlane32_swap_b32"):
        l += [f"v_mov_b32 v{u}, v{t}", "s_nop 1", f"{sw} v{t}, v{u}", "s_nop 1", f"{op} v{t}, v{t}, v{u}"]
    return l
def rowmax2(t, qs, tq):
    l = []
    ab = [(Sq(t, j, 0), Sq(t, j, 1)) for j in range(2)]
    l += [f"v_max3_f32 v{tq[j]}, v{a}, v{a+1}, v{a+2}" for j, (a, b) in enumerate(ab)]
    l += [f"v_max3_f32 v{tq[j]}, v{tq[j]}, v{a+3}, v{b}" for j, (a, b) in enumerate(ab)]
    l += [f"v_max3_f32 v{tq[j]}, v{tq[j]}, v{b+1}, v{b+2}" for j, (a, b) in enumerate(ab)]
    l += [f"v_max_f32 v{tq[j]}, v{tq[j]}, v{b+3}" for j, (a, b) in enumerate(ab)]
    for sw in ("v_permlane16_swap_b32", "v_permlane32_swap_b32"):
        l += [f"v_mov_b32 v{tq[j]+1}, v{tq[j]}" for j in range(2)] + ["s_nop 0"]
        l += [f"{sw} v{tq[j]}, v{tq[j]+1}" for j in range(2)] + ["s_nop 0"]
        l += [f"v_max_f32 v{tq[j]}, v{tq[j]}, v{tq[j]+1}" for j in range(2)]
    l += [f"v_sub_f32 v{NEGM(qs[j])+i}, 0, v{tq[j]}" for j in range(2) for i in range(4)]
    return l
def sm_one(t, sl):
    a, b = Sq(t, sl, 0), Sq(t, sl, 1); tq = V_CT; qb = slot_q(t, sl); rs = [r + i for r in (a, b) for i in range(4)]
    l = [f"v_max3_f32 v{tq}, v{a}, v{a+1}, v{a+2}", f"v_max3_f32 v{tq+2}, v{a+3}, v{b}, v{b+1}",
         f"v_max3_f32 v{tq}, v{tq}, v{b+2}, v{b+3}", f"v_max_f32 v{tq}, v{tq}, v{tq+2}"] + xlane("v_max_f32", tq)
    l += [f"v_sub_f32 v{r}, v{r}, v{tq}" for r in rs] + [f"v_exp_f32 v{r}, v{r}" for r in rs] + [f"v_sub_f32 v{NEGM(qb)+i}, 0, v{tq}" for i in range(4)]
    l += [f"v_add_f32 v{V_L[qb]}, v{V_L[qb]}, v{r}" for r in rs] + [f"v_cvt_pk_bf16_f32 v{a+i}, v{rs[2*i]}, v{rs[2*i+1]}" for i in range(4)]
    return l
def addneg(t, sl):
    n = NEGM(slot_q(t, sl))
    return [f"v_add_f32 v{Sq(t,sl,tb)+i}, v{Sq(t,sl,tb)+i}, v{n}" for tb in range(2) for i in range(4)]

def resolve(seq):
    vm = []; ds = []
    for x in seq:
        if isinstance(x, VM): vm.append(x.tag)
        elif isinstance(x, DS): ds.append(x.tag)
        elif isinstance(x, (W, LG)):
            q = vm if isinstance(x, W) else ds
            best = None
            for tag in x.tags:
                n = 0; found = False
                for t in reversed(q):
                    if t == tag: found = True; break
                    n += 1
                if found: best = n if best is None else min(best, n)
            if best is not None:
                x.n = best if getattr(x, "n", None) is None else min(x.n, best)
        else:
            assert not x.startswith(("ds_", "buffer_")) or "UNTRACKED" in x, x
def vm_size(x):
    t = x.text
    if t.startswith("buffer_store"): return 0
    if x.tag == "pre": return 3.0
    if " lds" in t: return 1.0
    if "dwordx4" in t or "dwordx3" in t: return 0.75
    if "dwordx2" in t and "offen" in t: return 0.375
    return 0.125
def pace(seq, cap):
    out = []; q = []; on = False
    for x in seq:
        if isinstance(x, W): q = q[len(q) - min(len(q), x.n):]; on = True
        elif isinstance(x, VM):
            sz = vm_size(x)
            if on and not x.text.startswith("buffer_store") and sum(q) + sz > cap:
                while q and sum(q) + sz > cap: q.pop(0)
                w = W(); w.n = len(q)
                if out and out[-1] == "s_nop 0": out.pop()
                out.append(w)
            q.append(sz)
        out.append(x)
    return out
def fin(seq):
    out = []
    for x in seq:
        if isinstance(x, (W, LG)):
            if OPT["ab"] and getattr(x, "n", None) is None: x.n = 63
            assert getattr(x, "n", None) is not None, x.tags
            out.append(f"s_waitcnt vmcnt({min(x.n, 63)})" if isinstance(x, W) else f"s_waitcnt lgkmcnt({min(x.n, 15)})")
        elif isinstance(x, (VM, DS)): out.append(x.text)
        else: out.append(x.replace(" ;UNTRACKED", ""))
    return out
def groups_of(l):
    out = [[]]
    for x in l:
        out[-1].append(x)
        if isinstance(x, VM): out.append([])
    tail = out.pop()
    if tail: out[-1] += tail
    return out
def sprinkle(code, l):
    gs = groups_of(l); out = []; n = len(code); m = len(gs); j = 0
    for i, x in enumerate(code):
        while j < m and i * m >= j * n: out += with_nop(gs[j]); j += 1
        out.append(x)
    for g in gs[j:]: out += with_nop(g)
    return out
def srd(p, s, lo, hi, off_s, size):
    p += [f"s_add_u32 s{s}, s{lo}, s{off_s}", f"s_addc_u32 s{s+1}, s{hi}, 0", f"s_mov_b32 s{s+2}, {size}", f"s_mov_b32 s{s+3}, 0x20000"]

def gen_main():
    p = []
    p += [f"{NAME}_kernel:", "s_cmp_ge_u32 s2, 256", "s_cbranch_scc1 L_done",
          "s_load_dwordx16 s[40:55], s[0:1], 0", "s_load_dwordx4 s[16:19], s[0:1], 64"]
    if OPT["stamp"]: p += ["s_memtime s[98:99]" if OPT["stamp"] == 6 else "s_memrealtime s[98:99]"]
    p += [f"s_and_b32 s{S_HEAD}, s2, 7", f"s_lshr_b32 s{S_QB}, s2, 3", f"s_lshr_b32 s24, s{S_QB}, 3", f"s_lshl_b32 s{S_HEAD}, s{S_HEAD}, 2",
          f"s_add_u32 s{S_HEAD}, s{S_HEAD}, s24", f"s_and_b32 s{S_QB}, s{S_QB}, 7"]
    p += ["s_getpc_b64 s[60:61]", "L_pc:", f"s_sub_u32 s60, s60, L_pc-{NAME}_kernel", "s_subb_u32 s61, s61, 0",
          f"s_mov_b32 s62, L_slow-{NAME}_kernel", "s_mov_b32 s63, 0x20000",
          "s_lshr_b32 s22, s2, 3", "s_lshl_b32 s22, s22, 12",
          "v_lshlrev_b32 v30, 4, v0",
          VM("pf", "buffer_load_dwordx4 v[128:131], v30, s[60:63], s22 offen" + (" nt" if OPT["pfnt"] else ""))]
    p += ["v_lshrrev_b32 v24, 6, v0",
          "v_and_b32 v25, 63, v0",
          f"v_readfirstlane_b32 s{S_WAVE}, v24",
          f"v_lshlrev_b32 v{V_RD}, 4, v25",
          "v_mul_u32_u24 v26, 43, v25", "v_lshrrev_b32 v26, 10, v26",
          "v_mul_u32_u24 v27, 24, v26",
          "v_sub_u32 v27, v25, v27",
          "v_lshrrev_b32 v28, 1, v24",
          "v_and_b32 v29, 1, v24",
          "v_lshlrev_b32 v30, 4, v29",
          "v_lshl_add_u32 v30, v28, 2, v30",
          "v_add_u32 v30, v30, v26",
          "v_mul_u32_u24 v30, 768, v30",
          "v_lshrrev_b32 v48, 1, v26", "v_lshlrev_b32 v48, 30, v48",
          "v_lshl_add_u32 v30, v27, 4, v30", f"v_or_b32 v{V_KLD}, v30, v48",
          f"v_lshl_or_b32 v{V_KSC}, v27, 3, v48",
          "v_mul_u32_u24 v30, 6144, v24",
          f"v_add3_u32 v{V_VLD}, v30, v{V_RD}, v48"]
    for sd, size in ((S_QK, HEADBYTES), (S_QV, HEADBYTES), (S_KS, 12288), (S_KZ, 12288), (S_VS, 4096), (S_VZ, 4096), (S_FLG, 64)):
        p += [f"s_mov_b32 s{sd+2}, {size}", f"s_mov_b32 s{sd+3}, 0x20000"]
    p += [f"s_mul_i32 s{S_PK0}, s{S_QB}, {STAGE}", f"s_add_u32 s{S_PK1}, s{S_PK0}, 6144", f"s_mov_b32 s{S_PV0}, s{S_PK0}",
          f"s_lshr_b32 s{S_PKS}, s{S_QB}, 1", f"s_mul_i32 s{S_PKS}, s{S_PKS}, 384", f"s_lshl_b32 s{S_PVS}, s{S_QB}, 6",
          f"s_lshl_b32 s24, s{S_WAVE}, 4", f"s_add_u32 s{S_PVS}, s{S_PVS}, s24",
          f"s_mul_i32 s24, s{S_HEAD}, {HEADBYTES}", f"s_mul_i32 s56, s{S_HEAD}, 12288", f"s_lshl_b32 s57, s{S_HEAD}, 12",
          f"s_lshl_b32 s58, s{S_HEAD}, 10", f"s_add_u32 s58, s58, {FLAG_OFF + 96}",
          f"s_or_b32 s{S_RET}, s{S_QB}, s{S_WAVE}"]
    p += ["s_waitcnt lgkmcnt(0)"] + istamp("karg", True)
    def base(sd, lo, off): return [f"s_add_u32 s{sd}, s{lo}, s{off}", f"s_addc_u32 s{sd+1}, s{lo+1}, 0"]
    p += base(S_QK, 42, 24) + base(S_KS, 46, 56) + base(S_KZ, 48, 56)
    kl = [k_ld(0, BX, 32, "k0a"), k_ld(1, BY, 36, "k0b")]; vl = [v_ld(0, 112, 40, "v0a"), v_ld(1, 80, 44, "v0b")]
    for x in kl[1][:2]: x.tag = "k0a"
    for x in vl[1][:2]: x.tag = "v0a"
    if OPT["ksc"]:
        for x in kl[0][2:] + kl[1][2:]: x.tag = "kraw"
        for x in kl[1][:2]: x.tag = "k0b"
        p += kl[0][2:] + kl[1][2:] + kl[0][:2] + kl[1][:2]; kl[1] = []
    else: p += kl[0][2:] + kl[0][:2] + kl[1][:2]
    p += base(S_FLG, 18, 58) + base(S_VS, 50, 57) + base(S_VZ, 52, 57) + base(S_QV, 44, 24)
    p += [f"s_mul_i32 s59, s{S_HEAD}, 786432"] + base(S_OUT, 54, 59) + base(S_Q, 40, 59)
    p += [f"s_cmp_lg_u32 s{S_RET}, 0", "s_cbranch_scc1 L_notleader0", f"s_buffer_load_dwordx16 s[40:55], s[{S_FLG}:{S_FLG+3}], 0 glc", "L_notleader0:"]
    p += kl[1][2:]
    p += [f"s_add_u32 s24, s24, {WSOFF}"] * (1 if WSOFF else 0)
    srd(p, S_WS, 18, 19, 24, HEADBYTES)
    p += [f"s_mov_b32 s{S_Q+2}, 786432", f"s_mov_b32 s{S_Q+3}, 0x20000"]
    p += [f"s_mov_b32 s{S_DBG}, s16", f"s_mov_b32 s{S_DBG+1}, s17", f"s_add_u32 s{S_PV1}, s{S_PK0}, 3072", f"s_add_u32 s{S_PV2}, s{S_PK0}, 6144"]
    p += [f"s_mov_b32 s{S_DBG+2}, 256", f"s_mov_b32 s{S_DBG+3}, 0x20000", f"s_lshl_b32 s{S_HOFF}, s{S_HEAD}, 3"]
    p += [f"s_cmp_lg_u32 s{S_RET}, 0", "s_cbranch_scc1 L_notleader", "s_waitcnt lgkmcnt(0)", f"s_mov_b32 s{S_TP}, 1"]
    for i in range(16):
        p += [f"s_lshr_b32 s{40+i}, s{40+i}, 10", f"s_min_u32 s{40+i}, s{40+i}, 31", f"s_bitset1_b32 s{S_TP}, s{40+i}"]
    p += [f"s_ff0_i32_b32 s{S_TP}, s{S_TP}", f"s_lshl_b32 s{S_TP}, s{S_TP}, 10", f"v_mov_b32 v{V_POLL}, s{S_TP}",
          "s_mov_b64 exec, 1", f"buffer_store_dword v{V_POLL}, off, s[{S_DBG}:{S_DBG+3}], s{S_HOFF} sc1 ;UNTRACKED", "s_mov_b64 exec, -1",
          "L_notleader:"]
    p += [f"s_lshl_b32 s24, s{S_QB}, 2", f"s_add_u32 s24, s24, 32", f"s_buffer_load_dword s{S_OWN}, s[{S_FLG}:{S_FLG+3}], s24 glc",
          ] + ([f"s_getreg_b32 s{S_XCC}, hwreg(HW_REG_XCC_ID, 0, 4)", f"s_lshl_b32 s{S_XCC}, s{S_XCC}, 5", f"s_mov_b32 s{S_FOFF}, {32 if OPT['l2'] == 3 else 0}"] if OPT["l2"] else
          [f"s_mov_b32 s{S_XCC}, 0", f"s_mov_b32 s{S_FOFF}, 32"])
    p += vl[0][2:] + vl[0][:2] + vl[1][:2] + (vl[1][2:] if OPT["greedy"] else []) + istamp("iss", True)
    if OPT["pre"]:
        st = OPT["pre"]
        p += [f"v_mul_u32_u24 v31, {st}, v25", f"v_mul_u32_u24 v30, 6144, v24", "v_add_u32 v31, v30, v31"]
        if st == 128: p += ["v_or_b32 v31, v31, v48"]
        p += [VM("pre", f"buffer_load_dword v132, v31, s[{S_WS}:{S_WS+3}], s{S_PK0} offen" + (" nt" if OPT["prent"] else ""))]
        if st == 64: p += ["v_add_u32 v30, 4096, v31", "s_mov_b64 exec, 0xffffffff", VM("pre", f"buffer_load_dword v133, v30, s[{S_WS}:{S_WS+3}], s{S_PK0} offen nt"), "s_mov_b64 exec, -1"]
    p += [f"s_mov_b32 s{S_OUT+2}, 786432", f"s_mov_b32 s{S_OUT+3}, 0x20000"]
    p += [f"s_lshl_b32 s24, s{S_WAVE}, 8", f"s_add_u32 s{S_HOFF}, s{S_HOFF}, s24"]
    p += ["v_mul_u32_u24 v30, 3072, v24", f"v_add_u32 v{V_DMA}, v30, v{V_RD}"]
    p += ["v_lshl_add_u32 v30, v24, 3, v26",
          "v_mul_u32_u24 v30, 384, v30",
          "v_lshlrev_b32 v31, 2, v29",
          "v_xor_b32 v31, v27, v31",
          "v_lshl_add_u32 v30, v31, 4, v30", f"v_or_b32 v{V_KST}, v30, v48",
          "v_lshlrev_b32 v30, 8, v24",
          "v_add_u32 v30, 12288, v30",
          "v_lshrrev_b32 v31, 4, v25", "v_lshl_add_u32 v30, v31, 10, v30", "v_and_b32 v31, 15, v25",
          "v_lshl_add_u32 v30, v31, 4, v30", f"v_or_b32 v{V_VST}, v30, v48"]
    p += [f"s_lshl_b32 s24, s{S_QB}, 2",
          f"v_lshl_add_u32 v{V_FLAG}, v0, 2, s24", f"v_cmp_lt_u32 vcc, 0, v0", "v_mov_b32 v30, 0x40000000", "s_nop 0",
          f"v_cndmask_b32 v{V_FLAG}, v{V_FLAG}, v30, vcc"]
    p += [f"s_mul_i32 s{S_DMK}, s{S_WAVE}, 3072", f"s_add_u32 s{S_DMK}, s{S_DMK}, 12288", f"s_add_u32 s{S_DMV}, s{S_DMK}, {STAGE}",
          f"s_add_u32 s24, s{S_QB}, 1", "s_and_b32 s24, s24, 7", f"s_mul_i32 s{S_GOFFK}, s24, {STAGE}", f"s_add_u32 s{S_GOFF}, s{S_GOFFK}, 12288",
          f"s_mov_b32 s{S_RK}, {A2}", f"s_mov_b32 s{S_RV}, {B1}", f"v_add_u32 v{V_RD}, {B0}, v{V_RD}",
          f"s_mov_b32 s{S_CS}, 0x{f32bits(CSCALE):08x}", f"s_mov_b32 s{S_MASK}, 0xffff0000",
          f"s_mov_b32 s{S_BUDGET}, 100000"] + ([f"s_mov_b32 s{S_TAG+1}, 0"] if OPT["stamp"] else [])
    p += ["v_and_b32 v26, 15, v25", "v_lshrrev_b32 v27, 4, v25", "v_bfe_u32 v28, v25, 1, 3",
          "v_xor_b32 v29, v27, v28", "v_mul_u32_u24 v30, 384, v26", f"v_lshl_add_u32 v{V_RDK[0]}, v29, 4, v30",
          f"v_xor_b32 v{V_RDK[1]}, 64, v{V_RDK[0]}"]
    p += [f"s_mul_i32 s{S_QL}, s{S_WAVE}, 6144", f"s_add_u32 s{S_QL}, s{S_QL}, {B1}",
          "v_lshrrev_b32 v29, 1, v27", "v_xor_b32 v29, v29, v28", "v_lshl_add_u32 v31, v29, 4, v30",
          "v_and_b32 v29, 1, v27", "v_lshl_add_u32 v31, v29, 3, v31"]
    for kk in range(4):
        p += [f"v_xor_b32 v{VQR[kk]}, {32*kk}, v31", f"v_add_u32 v{VQR[kk]}, s{S_QL}, v{VQR[kk]}"]
    p += [f"s_lshl_b32 s24, s{S_QB}, 2", f"s_add_u32 s24, s24, s{S_WAVE}", f"s_mul_i32 s24, s24, {STAGE}"]
    for b in range(6):
        p += [f"v_add_u32 v26, {64*b}, v25", "v_mul_u32_u24 v27, 2731, v26", "v_lshrrev_b32 v27, 17, v27",
              "v_and_b32 v27, 7, v27", "v_xor_b32 v26, v26, v27", f"v_lshlrev_b32 v{VQD+b}, 4, v26", f"v_add_u32 v{VQD+b}, s24, v{VQD+b}"]
    for q in range(4): p.append(f"v_mov_b32 v{V_L[q]}, 0")
    STF0 = "" if OPT["l2"] else STF
    def own_k(b):
        l = []
        for j in range(4):
            l += k_st(j, b, "kst", STF0)
            va = V_KST if j == 0 else V_KA + (j & 1)
            l += ["s_mov_b64 exec, s[62:63]", DS("w", f"ds_write_b128 v{va}, v[{b+4*j}:{b+4*j+3}] offset:{j*768}"), "s_mov_b64 exec, -1"]
        return l
    def own_v(b):
        l = [x for e in range(4) for x in v_st(e, b, "vst", STF0)]
        l += ["s_mov_b64 exec, s[62:63]"] + [DS("w", f"ds_write_b128 v{V_VST}, v[{b+4*e}:{b+4*e+3}] offset:{STAGE - 12288 + e*3072}") for e in range(4)] + ["s_mov_b64 exec, -1"]
        return l
    p += ["s_mov_b32 s62, -1", "s_mov_b32 s63, 0xffff"]
    qa = OPT["qa"]
    qb_, qc = OPT["qb"], OPT["qc"]
    R = lambda a, b: list(range(a, b))
    if OPT["split"]:
        p += [W("k0a")] + vl[1][2:] + k_cv(0, BX, 32, BX) + [W("k0b")] + istamp("k0b", True) + k_cv(1, BY, 36, BX) + own_k(BX)
        p += tag_load() + with_nop(q_dma(R(0, qa))) + [W("v0a")] + v_cv(0, 112, 40, 112)
        p += [W("tag")] + tag_check() + ["s_waitcnt lgkmcnt(0)", "s_barrier"] + flag_post() + tag_get() + istamp("post", True)
        p += with_nop(q_dma(R(qa, qb_))) + v_cv(1, 80, 44, 112) + own_v(112) + with_nop(q_dma(R(qb_, 12))) + istamp("vst", True)
    elif OPT["greedy"]:
        p += [W("k0a")] + with_nop(q_dma(R(0, 3))) + k_cv(0, BX, 32, BX) + [W("k0b")] + istamp("k0b", True) + with_nop(q_dma(R(3, 6))) + k_cv(1, BY, 36, BX) + own_k(BX)
        p += [W("v0a")] + with_nop(q_dma(R(6, 9))) + v_cv(0, 112, 40, 112) + [W("v0b")] + with_nop(q_dma(R(9, 12))) + v_cv(1, 80, 44, 112) + own_v(112)
        p += tag_load() + with_nop(q_dma(R(12, 18))) + istamp("vst", True)
    else:
        p += [W("k0a")] + vl[1][2:] + k_cv(0, BX, 32, BX) + [W("k0b")] + istamp("k0b", True) + k_cv(1, BY, 36, BX) + own_k(BX)
        p += with_nop(q_dma(R(0, qa))) + istamp("kst", True)
        p += [W("v0a")] + sprinkle(v_cv(0, 112, 40, 112), q_dma(R(qa, qb_))) + [W("v0b")] + v_cv(1, 80, 44, 112) + own_v(112)
        p += tag_load() + with_nop(q_dma(R(qb_, 12))) + istamp("vst", True)
    if not OPT["split"]:
        p += [W("tag")] + tag_check() + istamp("tag", True)
        p += ["s_waitcnt lgkmcnt(0)", "s_barrier"] + flag_post(True) + tag_get() + istamp("post", True)
    if OPT["pf2"]:
        p += [f"s_mov_b32 s{S_DBG}, s60", f"s_mov_b32 s{S_DBG+1}, s61", f"s_mov_b32 s{S_DBG+2}, L_slow-{NAME}_kernel",
              "s_lshr_b32 s24, s2, 3", f"s_mul_i32 s{S_HOFF}, s24, 43", f"s_lshr_b32 s{S_HOFF}, s{S_HOFF}, 7",
              f"s_mul_i32 s{S_RET}, s{S_HOFF}, 3", f"s_sub_u32 s24, s24, s{S_RET}", "s_lshl_b32 s24, s24, 10",
              f"s_mul_i32 s{S_HOFF}, s{S_HOFF}, 12288", f"s_add_u32 s{S_HOFF}, s{S_HOFF}, s24"]
    KF = 144
    for f in range(12):
        s, tb = kfrag(f)
        p.append(DS("kf", f"ds_read_b128 v[{KF+4*f}:{KF+4*f+3}], v{V_RDK[s&1]} offset:{tb*6144 + (s>>1)*128}"))
    def qk0(qb):
        l = []
        for f in sorted(range(12), key=lambda f: kfrag(f)[::-1]):
            s, tb = kfrag(f)
            d = vr(Sq(0, qb, tb), 4)
            l.append(f"{MF} {d}, v[{KF+4*f}:{KF+4*f+3}], {Qf(qb,s)}, {'0' if s == 0 else d}")
        return l
    ps = len(POLLSITES); POLLSITES.append(ps)
    g3n = OPT["g3n"]
    pollchk = ["s_waitcnt lgkmcnt(0)"] + smem_reduce() + [f"s_cmp_ge_u32 s{S_PT}, 16", f"s_cbranch_scc1 L_pollslow{ps}", f"L_pollok{ps}:",
          f"s_add_u32 s{S_NEED}, s{S_NEED}, 1"] + [f"s_mov_b32 s{S_FOFF}, 32"] * (OPT["l2"] == 2) + istamp("poll", True)
    sm00 = rowmax2(0, (0, 1), (V_CT, V_CT + 2)) + addneg(0, 0) + addneg(0, 1) + softmax_part(0, 0)
    qrest = R(12 if OPT["greedy"] == 0 else 18, 18 + g3n)
    if OPT["split"]:
        ps2 = len(POLLSITES); POLLSITES.append(ps2)
        pollchk2 = ["s_waitcnt lgkmcnt(0)"] + smem_reduce() + [f"s_cmp_ge_u32 s{S_PT}, 16", f"s_cbranch_scc1 L_pollslow{ps2}", f"L_pollok{ps2}:",
              f"s_add_u32 s{S_NEED}, s{S_NEED}, 1"] + istamp("pollV", True)
        p += [W(("q", 0))] + q_frags(0) + [LG("tg")] + tag_use() + [LG(("qf", 0))] + smem_flags() + qk0(0) + pollchk
        p += with_nop(dma_tile("k", 1, True)) + k_adv() + v_adv()
        p += [W("vst"), "s_barrier"] + flag_post() + istamp("postV", True)
        p += with_nop(dma_tile("k", 2, True) + dma_tile("k", 3, True))
        p += [W(("q", 1))] + q_frags(1) + with_nop(q_dma(R(12, 15))) + [LG(("qf", 1))] + qk0(1) + ["s_nop 7"]
        g0 = pv_unchained(0, True)[:6]
        p += [rd_op(i, j, g0[i]) for i in range(2) for j in range(2)] + sprinkle(sm00, q_dma(R(15, 18 + g3n))) + smem_flags() + [LG(("fr", 0), ("fr", 1))]
        p += gen_seg("S0", g0, [], tasks=[("q", R(18 + g3n, 24), 0, 22)] if g3n < 6 else [], vmgap=2) + pollchk2
        p += with_nop(dma_tile("v", 1, True))
        g3n = 6
    elif OPT["own1"] == 2:
        p += [W(("q", 0))] + q_frags(0) + [LG("tg")] + tag_use() + with_nop(q_dma(qrest[:3])) + [LG(("qf", 0))] + qk0(0)
        p += [W(("q", 1))] + q_frags(1) + smem_flags() + with_nop(q_dma(qrest[3:])) + [LG(("qf", 1))] + qk0(1) + pollchk
        g0 = pv_unchained(0, True)[:6]
        p += [rd_op(i, j, g0[i]) for i in range(2) for j in range(2)]
        p += sprinkle(sm00, dma_tile("k", 1, True) + dma_tile("k", 2, True) + dma_tile("k", 3, True) + dma_tile("v", 1, True)) + k_adv() + v_adv() + [LG(("fr", 0), ("fr", 1))]
        p += gen_seg("S0", g0, [], tasks=[("q", R(18 + g3n, 24), 0, 22)] if g3n < 6 else [], vmgap=2)
        g3n = 6
    elif OPT["own1"]:
        p += [W(("q", 0))] + q_frags(0) + [LG("tg")] + tag_use() + with_nop(q_dma(qrest[:3])) + [LG(("qf", 0))] + qk0(0)
        if OPT["q0f"]: p += ["s_nop 7"] + sm_one(0, 0); sm00 = sm_one(0, 1)
        p += [W(("q", 1))] + q_frags(1) + with_nop(q_dma(qrest[3:6])) + [LG(("qf", 1))] + qk0(1) + ["s_nop 7"]
        g0 = pv_unchained(0, True)[:6]
        p += [rd_op(i, j, g0[i]) for i in range(2) for j in range(2)] + sprinkle(sm00, q_dma(qrest[6:])) + smem_flags() + [LG(("fr", 0), ("fr", 1))]
        p += gen_seg("S0", g0, []) + pollchk
        p += with_nop(dma_tile("k", 1, True) + dma_tile("k", 2, True) + dma_tile("k", 3, True) + dma_tile("v", 1, True)) + k_adv() + v_adv()
    else:
        p += [W(("q", 0))] + q_frags(0) + [LG("tg")] + tag_use() + [W(("q", 1))] + q_frags(1) + smem_flags()
        p += [LG(("qf", 0))] + with_nop(q_dma(qrest)) + pollchk
        p += with_nop(dma_tile("k", 1, True)) + k_adv() + v_adv()
        p += sprinkle(qk0(0) + qk0(1), dma_tile("k", 2, True)) + ["s_nop 7"]
        p += sprinkle(sm00, dma_tile("k", 3, True) + dma_tile("v", 1, True))
    sp = softmax_part
    g1 = qk_half(0, ws=(1,))
    g2 = rebase(qk_half(1), V_RDK, A1 - A0)
    g3 = pv_unchained(0, True)[6 if OPT["own1"] else 0:]
    g4 = rebase(pv_unchained(1), [V_RD], B1 - B0)
    g5 = rebase(qk_half(2, True), V_RDK, A0 - A1) + rebase(qk_half(3), V_RDK, A1 - A0)
    gi3 = rebase(qk_full(4), V_RDK, A2 - A1)
    gi4 = rebase(pv_seq(2, True), [V_RD], B0 - B1) + rebase(pv_seq(3), [V_RD], B1 - B0)
    p += istamp("pre-dk1", True) + [W(("dk", 1)), "s_barrier"] + [rd_op(i, j, g1[i]) for i in range(2) for j in range(2)]
    p += [LG(("fr", 0), ("fr", 1))]
    p += gen_seg("S1", g1, g2[:2], [], [(15, [("dk", 3)])], [], [V_(2, 3) + (0, 21)], vmgap=2)
    p += gen_seg("S2", g2, g3[:2], [(sp(0, 1), 3, 47)], [(39, [("dv", 3)])] if OPT["own1"] else [], ([("q", R(18 + g3n, 24), 0, 24)] if g3n < 6 else []) + [("ldn", "ka", 25 if g3n < 6 else 0, 47)])
    if OPT["own1"]: p += gen_seg("S3", g3, g4[:2], [(sp(1, 0), 0, 23)], [], [("ldn", "kb", 0, 23)])
    else: p += gen_seg("S3", g3, g4[:2], [(sp(1, 0), 0, 47)], [(15, [("dv", 3)])], [("ldn", "kb", 0, 22), ("ldn", "va", 23, 46, "raw")])
    p += gen_seg("S4", g4, g5[:2], [(sp(1, 1), 0, 21)], [], [("ldn", "va", 0, 30, "raw")] if OPT["own1"] else [], extra=[Stream([W(("q", 2))] + q_frags(2) + [W(("q", 3))] + q_frags(3), 16, 46)])
    p += istamp("pre-S5", True) + ["s_waitcnt lgkmcnt(0)", "s_barrier"]
    p += gen_seg("S5", g5, gi3[:2], [(rowmax2(2, (2, 3), (V_T, V_T + 2)), 27, 45), (addneg(2, 0) + addneg(2, 1) + sp(2, 0) + addneg(2, 2) + addneg(2, 3) + sp(2, 1), 46, 95)],
                 [(GBAR + 8, [("dk", 5)])], [("cv", "ka", 0, 99, 0, 34), ("cv", "kb", 0, 99, 35, 72), ("kst", 0, 73), ("kst", 1, 77), ("kst", 2, 89), ("kst", 3, 93),
                 ("ldn", "va", 36, 60, "sc")], [K_(4, 5) + (1, 24)])
    p += gen_seg("i3", gi3, gi4[:2], [(sp(3, 0) + sp(3, 1), 0, 54), (sp(4, 0), 55, 95)], [(OPT["pb"], []), (GBAR, [])],
                 [("ld", "vb", 0, 22), ("post", "kst", 0), ("cv", "va", 0, 99, 10, 95)], [K_(6, 7) + V_(4, 5) + (24, 90)])
    p += [f"s_mov_b32 s{S_CNT}, 7", f"s_mul_i32 s{S_RC}, s{S_QB}, {STAGE}", f"s_mov_b32 s{S_RD}, 12288"]
    p += gen_seg("i4", gi4, seg_groups(5)[:2], [(sp(4, 1) + sp(5, 0), 0, 94)], [(47, []), (GBAR + 8, [("dk", 7)])],
                 [("ld", "ka", 0, 30), ("cv", "vb", 0, 99, 30, 94), ("step", "q", 30, 70), ("pollld", OPT["pl4"], OPT["pl4"] + 8)], [V_(6, 7) + (52, 84)],
                 endops=["s_nop 0", "s_branch L_join"])
    p += [".p2align 6"] + ["s_nop 0"] * OPT.get("pad", 0) + ["L_loop:"]
    pro_ = p
    first57, tail = gen_tail()
    bodyA = []
    for k in (1, 2, 3, 4, 5, 6, 7, 0):
        if k == 5: bodyA.append("L_join:"); jpos = len(bodyA)
        eo = [f"s_sub_u32 s{S_CNT}, s{S_CNT}, 1", f"s_cmp_lg_u32 s{S_CNT}, 0", "s_cbranch_scc1 L_loop"] if k == 0 else ()
        t, d = steady(k)
        if OPT["ab"] & 8: d = []
        if OPT["ab"] & 16: t = [x for x in t if x[0] not in ("cv", "kst", "vst", "ld")]
        bars = None
        if OPT["nb6"]:
            dk = lambda *x: [("dk", i) for i in x]; dv = lambda *x: [("dv", i) for i in x]
            bars = {0: [], 4: [], 7: [(GBAR, dv(6, 7) + dk(2, 3))], 3: [(GBAR, dv(2, 3) + dk(6, 7))]}.get(k)
        bodyA += gen_iter(16 + k, t, d, name=f"k{k}", endops=eo, bars=bars)
    assert OPT["qo"] or [g.rd for g in first57] == [g.rd for g in seg_groups(17)[:2]]
    tailc = tail + ["L_fin:"]
    resolve(pro_ + bodyA[jpos:] + bodyA + bodyA + tailc)
    if OPT["cap"]: pro_ = pace(pro_, OPT["cap"] / 4)
    P_ = Prog()
    P_.extend(fin(pro_))
    a0 = len(P_.ins); P_.extend(fin(bodyA)); a1 = len(P_.ins)
    P_.extend(fin(tailc))
    p = P_
    if OPT["stamp"]:
        p("s_waitcnt vmcnt(0) lgkmcnt(0)")
        p.extend(istamp("end"))
        p("s_waitcnt lgkmcnt(0)")
        p.extend(istamp("end2"))
        p(f"v_writelane_b32 v{V_STAMP}, s{S_TAG+1}, 63")
        p("s_add_u32 s8, s18, 0xfa00000"); p("s_addc_u32 s9, s19, 0"); p("s_mov_b32 s10, 1048576"); p("s_mov_b32 s11, 0x20000")
        p("s_lshl_b32 s24, s2, 2"); p(f"s_add_u32 s24, s24, s{S_WAVE}"); p("s_lshl_b32 s24, s24, 8")
        p(f"v_bfe_u32 v32, v{V_DMA}, 4, 6"); p("v_lshlrev_b32 v32, 2, v32")
        p(f"buffer_store_dword v{V_STAMP}, v32, s[8:11], s24 offen")
        if OPT["stamp"] == 8: STAMPS.sort(key=lambda n: 0)
        open(sys.argv[1] + ".stamps", "w").write("\n".join(order_stamps()))
    if OPT["calx"]:
        p("s_waitcnt vmcnt(0)")
        p("L_cal:")
        p("s_memrealtime s[40:41]")
        p("s_waitcnt lgkmcnt(0)")
        p("s_sub_u32 s40, s40, s100")
        p("s_cmp_lt_u32 s40, 10000")
        p("s_cbranch_scc1 L_cal")
    p("L_done:")
    p("s_endpgm")
    main_end0 = len(p.ins)
    for ps in POLLSITES: p.extend(poll_slow(ps))
    p.extend(tag_slow())
    main_end = len(p.ins)
    p.extend(gen_slow())
    slow_end = len(p.ins)
    ji = [i for i, x in enumerate(p.ins) if x.text == "L_join:"][0]
    lin = p.ins[:a0] + p.ins[ji:a1] + p.ins[a0:main_end0]
    sl = [i for i, x in enumerate(p.ins) if x.text == "L_slowloop:"][0]
    bi = [i for i, x in enumerate(p.ins) if x.text == "s_cbranch_scc1 L_slowloop"][0]
    probs = check_hazards(lin, "main") + check_hazards(p.ins[main_end:bi+1] + p.ins[sl:slow_end], "slow") + check_hazards(p.ins[main_end0:main_end], "aux")
    for x in probs: print(x, file=sys.stderr)
    return p

def kd(name, vgpr, sgpr, accum):
    return f""".amdhsa_kernel {name}
  .amdhsa_next_free_vgpr {vgpr}
  .amdhsa_next_free_sgpr {sgpr}
  .amdhsa_accum_offset {accum}
  .amdhsa_group_segment_fixed_size 0
  .amdhsa_kernarg_size 80
  .amdhsa_user_sgpr_count 2
  .amdhsa_user_sgpr_kernarg_segment_ptr 1
  .amdhsa_system_sgpr_workgroup_id_x 1
.end_amdhsa_kernel
"""
out = HEADER
out += f"; @launch grid=(256,1,1) block=(256,1,1) lds={LDS_BYTES}\n"
out += '.amdgcn_target "amdgcn-amd-amdhsa--gfx950"\n.text\n'
out += f".globl {NAME}_kernel\n.p2align 8\n.type {NAME}_kernel,@function\n" + gen_main().text()
out += '.section .rodata,"a"\n.p2align 6\n' + kd(NAME + "_kernel", 512, 102, 256)
open(sys.argv[1], "w").write(out)
```

```python
import sys, math
from asmlib import *

NAME = "standalone__kv_cache_quant_int4_int2_kv_with_per_channel_or_per_token_scales__prompt"
OPT = dict(stamp=0, vmgap=4, sb=6, sa=6, ahead=8, thr=64, pf2=1, calx="", qa=6, plv=2, plk=10, ckv=1, ckk=1, tden=24, touch=0, w0poll=0, cap=48, qb=6, q3e=1, ksc=0, few=1, qc=15, pb=39, pl4=40, l2=3, k1e=0, greedy=0, g3n=3, pre=0, own1=1, ab=0, pk=0, split=0, prent=1, bal=1, flex=1, w2=0, dense="S61,S5,S2,S3,S4", dx=4, dvg=2, f3=1, pvs=1, qo=0, po=0, x2c=12, sst=1, q0f=1, nb6=1, tv=1, omv=0, ldc=8, rs=0, scnt=0, iw=2, pfnt=0, ed=200, ed1=250, cut="16,42,8,48,18,38,12")
for a in sys.argv[2:]:
    k, v = a.split("="); OPT[k] = int(v) if v.lstrip("-").isdigit() else v
NS = 6
STAGE = 24576
HEADBYTES = 64 * STAGE
RING = NS * STAGE
LDS_BYTES = RING + 128
A0, B0, A1, B1, A2, B2 = [i * STAGE for i in range(6)]
CSCALE = (192.0 ** -0.5) * math.log2(math.e)
HEADER = open("cdna_kernels/" + NAME + ".s.ref").read().split("; Override launch geometry")[0]
MF = "v_mfma_f32_16x16x32_bf16"

V_FVAL = 0; V_RD = 1; V_RDK = [2, 3]; V_DMA = 4; V_L = [5, 6, 7, 8]
V_KLD = 9; V_KSC = 10; V_KST = 11; V_VLD = 12; V_FLAG = 13; V_RD2 = 23
V_T = 16; NTP = 2
V_VST = 15; V_STAMP = 14; V_T4 = 20
V_FR = 24; NFS = 6
V_CT = 48; V_VO = 52; V_RS = [56, 60]; BX = 224; BY = 240; BZ = 144
V_POLL = V_VO; V_KA = V_VO + 2
UNIT = [64, 80, 160, 176]; HI = [96, 112]
VQD = 136; VQR = [22, 23, 142, 143]
def Sq(t, sl, tb): return (UNIT[t % 4] if tb == 0 else HI[t % 2]) + 4 * sl
def P(t, sl): return UNIT[t % 4] + 4 * sl
def NEGM(qb): return 128 + 4 * qb
def O(qb, db): return (qb * 12 + db) * 4
def Qf(qb, s, half=None):
    i = qb * 6 + s
    base, f = (192 + 4 * i, ar) if i < 16 else (192 + 4 * (i - 16), vr)
    return f(base, 4) if half is None else f(base + 2 * half, 2)
def FR(f): return vr(V_FR + 4 * (f % NFS), 4)

S_RDELTA = 3; S_WS = 4; S_Q = 8; S_OUT = 12; S_FLG = 20
S_WAVE = 25; S_DMK = 26; S_GOFF = 27; S_RK = 28; S_TMP = 29; S_RV = 30; S_CNT = 31; S_GOFFK = 32
S_PK0 = 33; S_PK1 = 34; S_PV0 = 35; S_PKS = 36; S_PVS = 37; S_CS = 38; S_RET = 39; S_PV1 = 16; S_PV2 = 17
S_QL = 40; S_QS = 41; S_TAG = 42; S_FOFF = 44; S_XCC = 45; S_OWN = 46; S_RC = 46; S_RD = 47
S_PT = 48; S_DMV = 56; S_TK = 57; S_TV = 58; S_TP = 59
S_QK = 64; S_QV = 68; S_KS = 72; S_KZ = 76; S_VS = 80; S_VZ = 84; S_DBG = 88
S_NEED = 92; S_HOFF = 93; S_HEAD = 94; S_QB = 95; S_BUDGET = 96; S_MASK = 97
WSOFF = OPT.get("wsoff", 0) << 20
FLAG_OFF = WSOFF + (49 << 20)
SC1 = {0: " sc1", 1: "", 2: " nt", 3: " sc0", 4: " sc1 nt", 5: " sc0 sc1"}[OPT.get("dmaf", 0)]; NTKV = " nt"; NTQ = " nt"; STF = " sc1"; OF = " sc0 sc1"

STAMPS = []
def istamp(name, force=False):
    if OPT["calx"] == name: return ["s_memrealtime s[100:101]"]
    if OPT["stamp"] not in (6, 8, 9): return []
    if OPT["stamp"] == 8 and name.startswith("k") and not force: return []
    if OPT["few"] and force and name not in ("karg", "k0b", "vst", "tag", "post", "poll", "postV", "pollV", "pre-dk1"): return []
    if OPT["stamp"] != 8 and force: return []
    STAMPS.append(name)
    return ["s_waitcnt lgkmcnt(0)"] * (1 if force else 0) + [f"v_mov_b32_dpp v{V_STAMP}, v{V_STAMP} wave_shr:1 row_mask:0xf bank_mask:0xf", f"v_writelane_b32 v{V_STAMP}, s98, 0",
            ("s_memtime" if OPT["stamp"] == 6 else "s_memrealtime") + " s[98:99]"]

def order_stamps():
    l = list(STAMPS); out = []
    if "S62" in l:
        l.remove("S61"); l.insert(l.index("S62"), "S61")
    for n in l:
        if "." in n: continue
        out.append(n); out += [m for m in l if m.startswith(n + ".")]
    return out
class W:
    def __init__(self, *tags): self.tags = tags
class VM:
    def __init__(self, tag, text): self.tag = tag; self.text = text
class LG:
    def __init__(self, *tags): self.tags = tags
class DS:
    def __init__(self, tag, text): self.tag = tag; self.text = text

def mode_of(t):
    return {0: "a", 1: "a", 2: "b", 3: "b", 58: "a", 59: "a", 60: "a", 61: "b", 62: "b", 63: "b"}.get(t, "f")
def slot_q(t, sl):
    m = mode_of(t)
    return sl if m == "f" else (sl & 1) + (0 if m == "a" else 2)
def softmax_part(t, half):
    flat = []; prev = None
    for gp in range(8):
        sl = 2 * half + gp // 4; pi = gp % 4; l = V_L[slot_q(t, sl)]
        t0 = V_T + 2 * (gp % NTP); t1 = t0 + 1
        src = Sq(t, sl, pi >> 1) + 2 * (pi & 1)
        E = [f"v_exp_f32 v{t0}, v{src}", f"v_exp_f32 v{t1}, v{src+1}"]
        A = [f"v_add_f32 v{l}, v{l}, v{t0}", f"v_add_f32 v{l}, v{l}, v{t1}"]
        C = [f"v_cvt_pk_bf16_f32 v{P(t,sl)+pi}, v{t0}, v{t1}"]
        if 16 <= t < 26:
            if OPT["ab"] & 1: A = []
            if OPT["ab"] & 2: E = [x.replace("v_exp_f32", "v_mov_b32") for x in E]
            if OPT["ab"] & 32: C = []
            if OPT["ab"] & 64: E = []; A = []; C = []
        flat += E if prev is None else E[:1] + prev[0] + E[1:] + prev[1]
        prev = (A, C)
    return flat + prev[0] + prev[1]

class Grp:
    def __init__(self, rd, mf): self.rd = rd; self.mf = mf; self.reb = []
def qk_tile(t, w, slots, czero=False):
    gs = []
    if OPT["qo"] == 1 and len(slots) == 4:
        for s_ in range(6):
            rd = [(V_RDK[s_ & 1], w * 12288 + tb * 6144 + (s_ >> 1) * 128) for tb in range(2)]
            mf = []
            for sl, qb in slots:
                for tb in range(2):
                    d = vr(Sq(t, sl, tb), 4)
                    mf.append((tb, d, Qf(qb, s_), (("0" if czero else vr(NEGM(qb), 4)) if s_ == 0 else d)))
            gs.append(Grp(rd, mf))
        return gs
    for gi in range(6):
        s0 = 2 * (gi >> 1); tb = gi & 1
        rd = [(V_RDK[j], w * 12288 + tb * 6144 + (s0 >> 1) * 128) for j in range(2)]
        mf = []
        for sl, qb in slots:
            d = vr(Sq(t, sl, tb), 4)
            mf += [(0, d, Qf(qb, s0), (("0" if czero else vr(NEGM(qb), 4)) if s0 == 0 else d)), (1, d, Qf(qb, s0 + 1), d)]
        gs.append(Grp(rd, mf))
    return gs
def qk_full(t): return [g for w in range(2) for g in qk_tile(t + w, w, [(q, q) for q in range(4)])]
def qk_half(t, czero=False, ws=(0, 1)):
    return [g for w in ws for g in qk_tile(t, w, [(2 * w + j, slot_q(t, j)) for j in range(2)], czero)]
def OV(qb, db): return (BY if qb == 2 else BZ) + 4 * (db // 3)
def pv_grp(t, db, first=False, va=V_RD):
    m = mode_of(t); mf = []
    for qb in (range(4) if m == "f" else [slot_q(t, 0), slot_q(t, 1)]):
        d = ar(O(qb, db), 4)
        if OPT["omv"] and t >= 61 and db % 3 == 2: d = " " + vr(OV(qb, db), 4)
        for w in range(2):
            b = P(t + w, qb) if m == "f" else P(t, 2 * w + (qb & 1))
            mf.append((w, d, vr(b, 4), "0" if (first and w == 0) else d))
    return Grp([(va, w * 12288 + db * 1024) for w in range(2)], mf)
def pv_seq(t, first=False):
    if OPT["po"] == 1 and mode_of(t) == "f":
        gs = []
        for d0 in range(0, 12, 2):
            for w in range(2):
                mf = [(e, ar(O(qb, d0 + e), 4), vr(P(t + w, qb), 4), ar(O(qb, d0 + e), 4)) for qb in range(4) for e in range(2)]
                gs.append(Grp([(V_RD, w * 12288 + (d0 + e) * 1024) for e in range(2)], mf))
        return gs
    if OPT["po"] == 2 and mode_of(t) == "f":
        gs = []
        for db in range(12):
            mf = [(w, ar(O(qb, db), 4), vr(P(t + w, qb), 4), ar(O(qb, db), 4)) for w in range(2) for qb in range(4)]
            gs.append(Grp([(V_RD, w * 12288 + db * 1024) for w in range(2)], mf))
        return gs
    return [pv_grp(t, db, first) for db in range(12)]
def pv_unchained(t, first=False):
    gs = []
    for w in range(2):
        for d0 in range(0, 12, 2):
            mf = []
            for j in range(2):
                qb = slot_q(t, j)
                for e in range(2):
                    d = ar(O(qb, d0 + e), 4)
                    mf.append((e, d, vr(P(t, 2 * w + j), 4), "0" if (first and w == 0) else d))
            gs.append(Grp([(V_RD, w * 12288 + (d0 + e) * 1024) for e in range(2)], mf))
    return gs
def rebase(gs, regs, delta):
    op = "v_add_u32" if delta >= 0 else "v_subrev_u32"
    gs[0].reb += [f"{op} v{r}, {abs(delta)}, v{r}" for r in regs]
    return gs
def rd_op(gi, j, g):
    f = 2 * gi + j
    return DS(("fr", f % NFS), f"ds_read_b128 {FR(f)}, v{g.rd[j][0]} offset:{g.rd[j][1]}")

def dma_tile(part, pos, peel=False):
    dm, go, tmp = (S_DMK, S_GOFFK, S_TK) if part == "k" else (S_DMV, S_GOFF, S_TV)
    l = [f"s_mov_b32 m0, s{dm}"]
    for j in range(3):
        l.append(VM(("d" + part, pos % 8), f"buffer_load_dwordx4 v{V_DMA}, s[{S_WS}:{S_WS+3}], s{go} offen offset:{j*1024}{SC1} lds"))
    if peel and pos < 7:
        l += [f"s_add_u32 s{go}, s{go}, {STAGE}", f"s_sub_u32 s{tmp}, s{go}, {8*STAGE}", f"s_min_u32 s{go}, s{go}, s{tmp}"]
    elif peel and pos == 7:
        l += [f"s_mov_b32 s{go}, {8*STAGE + (0 if part == 'k' else 12288)}"]
    else:
        l += [f"s_add_u32 s{go}, s{go}, {STAGE}"]
    if pos % 2 == 0: l += [f"s_add_u32 s{dm}, s{dm}, 12288"]
    else: l += [f"s_add_u32 s{dm}, s{dm}, {2*STAGE - 12288}", f"s_sub_u32 s{tmp}, s{dm}, {RING}", f"s_min_u32 s{dm}, s{dm}, s{tmp}"]
    return l
QOFF = [STAGE, 0, 2 * STAGE, STAGE]
def q_dma(lst):
    l = []
    for i in lst:
        a, b = divmod(i, 6)
        l += [f"s_mov_b32 s{S_QS}, {a*6144}"] * (1 if (b == 0 or i == lst[0]) else 0)
        l += [f"s_add_u32 m0, s{S_QL}, {QOFF[a] + b*1024}",
              VM(("q", a), f"buffer_load_dwordx4 v{VQD+b}, s[{S_Q}:{S_Q+3}], s{S_QS} offen{NTQ} lds")]
    return l
def q_frags(qb):
    l = []
    for s in range(6):
        for h in range(2):
            sp = s + 6 * h
            l.append(DS(("qf", qb), f"ds_read_b64 {Qf(qb,s,h)}, v{VQR[sp&3]} offset:{QOFF[qb] + (sp>>2)*128}"))
    return l
def with_nop(l):
    out = []
    for i, x in enumerate(l):
        out.append(x)
        if isinstance(x, str) and " m0," in x and i + 1 < len(l) and isinstance(l[i + 1], VM): out.append("s_nop 0")
    return out
def rd_step(kind):
    cur, regs = (S_RK, V_RDK) if kind == "q" else (S_RV, [V_RD])
    return [f"s_add_u32 s{S_TMP}, s{cur}, {2*STAGE}", f"s_sub_u32 s{S_RDELTA}, s{S_TMP}, {RING}",
            f"s_min_u32 s{S_TMP}, s{S_TMP}, s{S_RDELTA}", f"s_sub_u32 s{S_RDELTA}, s{S_TMP}, s{cur}", f"s_mov_b32 s{cur}, s{S_TMP}"] + \
           [f"v_add_u32 v{r}, s{S_RDELTA}, v{r}" for r in regs]

def k_ld(h, buf, rs, tag, scal_first=True):
    sc = [VM(tag, f"buffer_load_dwordx2 v[{rs+2*i}:{rs+2*i+1}], v{V_KSC}, s[{srd_}:{srd_+3}], s{S_PKS} offen offset:{192*h}" + (" nt" if OPT["scnt"] else ""))
          for i, srd_ in enumerate((S_KS, S_KZ))]
    l = []
    for j in range(4):
        so = S_PK0 if j < 2 else S_PK1
        l.append(VM(tag, f"buffer_load_dwordx4 v[{buf+4*j}:{buf+4*j+3}], v{V_KLD}, s[{S_QK}:{S_QK+3}], s{so} offen offset:{(j&1)*1536+384*h}{NTKV}"))
    return sc + l if scal_first else l + sc
def v_ld(h, buf, rs, tag, scal_first=True):
    sc = [VM(tag, f"buffer_load_dwordx2 v[{rs+2*i}:{rs+2*i+1}], off, s[{srd_}:{srd_+3}], s{S_PVS} offset:{8*h}" + (" nt" if OPT["scnt"] else ""))
          for i, srd_ in enumerate((S_VS, S_VZ))]
    l = []
    for r in range(4):
        so = S_PV0 if h == 0 else S_PV1
        l.append(VM(tag, f"buffer_load_dwordx4 v[{buf+4*r}:{buf+4*r+3}], v{V_VLD}, s[{S_QV}:{S_QV+3}], s{so} offen offset:{r*768}{NTKV}"))
    return sc + l if scal_first else l + sc
def k_cv(h, buf, rs, out):
    l = []
    s0, s1, z0, z1 = V_CT, V_CT + 1, V_CT + 2, V_CT + 3
    for i in range(2):
        l += [f"v_lshlrev_b32 v{s0}, 16, v{rs+i}", f"v_and_b32 v{s1}, s{S_MASK}, v{rs+i}",
              f"v_lshlrev_b32 v{z0}, 16, v{rs+2+i}", f"v_and_b32 v{z1}, s{S_MASK}, v{rs+2+i}",
              f"v_mul_f32 v{s0}, s{S_CS}, v{s0}", f"v_mul_f32 v{s1}, s{S_CS}, v{s1}",
              f"v_mul_f32_e64 v{z0}, -v{z0}, v{s0}", f"v_mul_f32_e64 v{z1}, -v{z1}, v{s1}"]
        if OPT.get("nz", 0) & 1: l[-2:] = [f"v_mov_b32 v{z0}, 0", f"v_mov_b32 v{z1}, 0"]
        for j in range(4):
            a = buf + 4 * j + 2 * i; b = a + 1
            l += [f"v_cvt_f32_i32 v{a}, v{a}", f"v_cvt_f32_i32 v{b}, v{b}",
                  f"v_fma_f32 v{a}, v{a}, v{s0}, v{z0}", f"v_fma_f32 v{b}, v{b}, v{s1}, v{z1}",
                  f"v_cvt_pk_bf16_f32 v{out+4*j+2*h+i}, v{a}, v{b}"]
    return l
def k_st(j, out, tag="kst", STF=STF):
    va = V_KST; g = []
    if j:
        va = V_KA + (j & 1); g.append(f"v_xor_b32 v{va}, {16*j}, v{V_KST}")
    g.append(VM(tag, f"buffer_store_dwordx4 v[{out+4*j}:{out+4*j+3}], v{va}, s[{S_WS}:{S_WS+3}], s{S_PK0} offen offset:{j*768}{STF}"))
    return g
def v_cv(h, buf, rs, out):
    l = []
    s0, s1, z0, z1 = V_CT, V_CT + 1, V_CT + 2, V_CT + 3
    for i in range(2):
        l += [f"v_lshlrev_b32 v{s0}, 16, v{rs+i}", f"v_and_b32 v{s1}, s{S_MASK}, v{rs+i}",
              f"v_lshlrev_b32 v{z0}, 16, v{rs+2+i}", f"v_and_b32 v{z1}, s{S_MASK}, v{rs+2+i}",
              f"v_mul_f32_e64 v{z0}, -v{z0}, v{s0}", f"v_mul_f32_e64 v{z1}, -v{z1}, v{s1}"]
        if OPT.get("nz", 0) & 2: l[-2:] = [f"v_mov_b32 v{z0}, 0", f"v_mov_b32 v{z1}, 0"]
        for e in range(4):
            a = buf + 4 * (2 * i) + e; b = buf + 4 * (2 * i + 1) + e
            l += [f"v_cvt_f32_i32 v{a}, v{a}", f"v_cvt_f32_i32 v{b}, v{b}",
                  f"v_fma_f32 v{a}, v{a}, v{s0}, v{z0}", f"v_fma_f32 v{b}, v{b}, v{s1}, v{z1}"]
    for e, i in [(0, 0), (1, 0), (0, 1), (1, 1), (2, 0), (2, 1), (3, 0), (3, 1)]:
        l.append(f"v_cvt_pk_bf16_f32 v{out+4*e+2*h+i}, v{buf+8*i+e}, v{buf+8*i+4+e}")
    return l
def v_st(e, out, tag="vst", STF=STF):
    so = S_PV0 if e < 2 else S_PV2
    return [VM(tag, f"buffer_store_dwordx4 v[{out+4*e}:{out+4*e+3}], v{V_VST}, s[{S_WS}:{S_WS+3}], s{so} offen offset:{(e&1)*3072}{STF}")]
def k_adv():
    return [f"s_add_u32 s{S_PK0}, s{S_PK0}, {8*STAGE}", f"s_add_u32 s{S_PK1}, s{S_PK1}, {8*STAGE}", f"s_add_u32 s{S_PKS}, s{S_PKS}, {4*384}"]
def v_adv():
    return [f"s_add_u32 s{r}, s{r}, {8*STAGE}" for r in (S_PV0, S_PV1, S_PV2)] + [f"s_add_u32 s{S_PVS}, s{S_PVS}, {8*64}"]
HT = {"ka": (k_ld, k_cv, 0, BX, V_RS[0], BX), "kb": (k_ld, k_cv, 1, BY, V_RS[1], BX),
      "va": (v_ld, v_cv, 0, BZ, V_RS[0], BZ), "vb": (v_ld, v_cv, 1, BY, V_RS[1], BZ)}
def flag_post(first=False):
    return [f"v_add_u32 v{V_FVAL}, 1, v{V_FVAL}"] + [
            VM("flag", f"buffer_store_dword v{V_FVAL}, v{V_FLAG}, s[{S_FLG}:{S_FLG+3}], 0 offen")] * (OPT["l2"] == 1 or (OPT["l2"] == 2 and first)) + [
            VM("flag", f"buffer_store_dword v{V_FVAL}, v{V_FLAG}, s[{S_FLG}:{S_FLG+3}], 0 offen offset:32 sc1")]
def poll_addr():
    return [f"v_bfe_u32 v{V_POLL+1}, v{V_DMA}, 4, 6", f"v_lshlrev_b32 v{V_POLL+1}, 2, v{V_POLL+1}"]
def poll_load():
    return poll_addr() + [VM("poll", f"buffer_load_dword v{V_POLL}, v{V_POLL+1}, s[{S_FLG}:{S_FLG+3}], s{S_FOFF} offen sc1")]
def poll_test():
    return [f"v_subrev_u32 v{V_POLL}, s{S_NEED}, v{V_POLL}", f"v_cmp_lt_u32 vcc, 15, v{V_POLL}", "s_nop 0", f"s_and_b32 s{S_TP}, vcc_lo, 0xff"]
def smem_flags():
    return [f"s_buffer_load_dwordx8 s[{S_PT}:{S_PT+7}], s[{S_FLG}:{S_FLG+3}], s{S_FOFF} glc"]
def smem_reduce():
    return [f"s_sub_u32 s{S_PT+i}, s{S_PT+i}, s{S_NEED}" for i in range(8)] + [f"s_max_u32 s{S_PT}, s{S_PT}, s{S_PT+i}" for i in range(1, 8)]
def smem_test():
    return smem_flags() + ["s_waitcnt lgkmcnt(0)"] + smem_reduce() + [f"s_cmp_lt_u32 s{S_PT}, 16"]
def poll_slow(site):
    l = [f"L_pollslow{site}:"] + ([f"s_add_u32 s{S_TAG+1}, s{S_TAG+1}, {1 << (6 * site)}"] if OPT["stamp"] else [])
    l += [f"s_mov_b32 s{S_TP}, {60 if site == 0 else 200}", f"L_pollsm{site}:"] + smem_test() + [f"s_cbranch_scc1 L_pollok{site}",
          f"s_sub_u32 s{S_TP}, s{S_TP}, 1", f"s_cbranch_scc1 L_pollvec{site}", "s_sleep 1", f"s_branch L_pollsm{site}"]
    l += [f"L_pollvec{site}:"] + poll_addr() + [
            f"s_sub_u32 s{S_BUDGET}, s{S_BUDGET}, 1",
            f"s_cbranch_scc1 L_pollgiveup{site}",
            "s_sleep 2",
            f"buffer_load_dword v{V_POLL}, v{V_POLL+1}, s[{S_FLG}:{S_FLG+3}], s{S_FOFF} offen sc1",
            "s_waitcnt vmcnt(0)"]
    if site == 0 and OPT["l2"]:
        l += [f"s_bitcmp1_b32 s{S_NEED}, 9", "s_cbranch_scc1 L_nomix",
              f"v_xor_b32 v{V_POLL+1}, s{S_NEED}, v{V_POLL}", f"v_lshrrev_b32 v{V_POLL+1}, 5, v{V_POLL+1}", f"v_add_u32 v{V_POLL+1}, -1, v{V_POLL+1}",
              f"v_cmp_gt_u32 vcc, 31, v{V_POLL+1}", "s_nop 1", f"s_and_b32 s{S_TP}, vcc_lo, {'0xff' if OPT['l2'] == 3 else '0xff00'}", "s_cbranch_scc0 L_nomix"]
        l += fin([x for j in range(4) for x in k_st(j, BX)] + [x for e in range(4) for x in v_st(e, 112)])
        l += ["s_waitcnt vmcnt(0)", "s_barrier", f"s_and_b32 s{S_NEED}, s{S_NEED}, 0xfffffc00", f"s_add_u32 s{S_NEED}, s{S_NEED}, {16 << 5}",
              f"v_mov_b32 v{V_FVAL}, s{S_NEED}", f"s_add_u32 s{S_NEED}, s{S_NEED}, 1", f"s_mov_b32 s{S_FOFF}, 32"] + fin(flag_post()) + ["s_branch L_pollvec0", "L_nomix:"]
    l += poll_test() + [
            f"s_cbranch_scc1 L_pollvec{site}",
            f"s_branch L_pollok{site}",
            f"L_pollgiveup{site}:",
            f"s_mov_b32 s{S_BUDGET}, 0",
            f"s_branch L_pollok{site}"]
    return l
def tag_load():
    return [VM("tag", f"buffer_load_dword v{V_FVAL}, off, s[{S_DBG}:{S_DBG+3}], s{S_HOFF} sc1")]
def tag_check():
    return [f"s_cmp_lg_u32 s{S_WAVE}, 0", "s_cbranch_scc1 L_tagdone",
            f"v_readfirstlane_b32 s{S_TAG}, v{V_FVAL}", f"s_mov_b32 s{S_RET}, 100",
            "s_waitcnt lgkmcnt(0)", f"s_and_b32 s{S_OWN}, s{S_OWN}, 0xfffffc00",
            "L_tagretry:", f"s_cmp_eq_u32 s{S_TAG}, s{S_OWN}", f"s_cselect_b32 s{S_TAG}, 0, s{S_TAG}", f"s_cmp_lg_u32 s{S_TAG}, 0", "s_cbranch_scc1 L_tagok",
            f"s_sub_u32 s{S_RET}, s{S_RET}, 1", "s_cbranch_scc1 L_tagslow", "s_sleep 4",
            f"s_buffer_load_dword s{S_TAG}, s[{S_DBG}:{S_DBG+3}], s{S_HOFF} glc", "s_waitcnt lgkmcnt(0)", "s_branch L_tagretry",
            "L_tagok:", f"s_add_u32 s{S_TAG}, s{S_TAG}, s{S_XCC}", f"v_mov_b32 v{V_FVAL}, s{S_TAG}", f"v_mov_b32 v{V_T}, {RING}", DS("w", f"ds_write_b32 v{V_T}, v{V_FVAL}"), "L_tagdone:"]
def tag_get():
    return [f"v_mov_b32 v{V_T}, {RING}", DS("tg", f"ds_read_b32 v{V_T+1}, v{V_T}")]
def tag_use():
    return [f"v_readfirstlane_b32 s{S_NEED}, v{V_T+1}", f"s_add_u32 s{S_NEED}, s{S_NEED}, 1"]
def tag_slow():
    return ["L_tagslow:",
            f"s_sub_u32 s{S_BUDGET}, s{S_BUDGET}, 1",
            "s_cbranch_scc1 L_taggiveup",
            "s_sleep 2",
            f"buffer_load_dword v{V_FVAL}, off, s[{S_DBG}:{S_DBG+3}], s{S_HOFF} sc1",
            "s_waitcnt vmcnt(0)",
            f"v_readfirstlane_b32 s{S_TAG}, v{V_FVAL}", "s_nop 0", f"s_cmp_eq_u32 s{S_TAG}, s{S_OWN}", "s_cbranch_scc1 L_tagslow",
            f"s_cmp_eq_u32 s{S_TAG}, 0", "s_cbranch_scc1 L_tagslow",
            "s_branch L_tagok",
            "L_taggiveup:",
            f"s_mov_b32 s{S_BUDGET}, 0",
            "s_branch L_tagok"]

def text_of(x):
    return "s_waitcnt" if isinstance(x, (W, LG)) else (x.text if isinstance(x, (VM, DS)) else x)
def kind_of(x):
    t = text_of(x)
    if t.endswith(":"): return "label"
    if t.startswith("v_"): return "valu"
    if t.startswith("ds_"): return "ds"
    if t.startswith("buffer_store"): return "store"
    if t.startswith("buffer_"): return "load"
    return "salu"
def cost_of(x):
    k = kind_of(x); t = text_of(x)
    if k == "label": return 0
    if k == "store": return 20 if "x4" in t else (OPT["x2c"] if "x2" in t else 8)
    if k == "load": return OPT["ldc"]
    if t.startswith("ds_write"): return 16 if ("b128" in t or "write2" in t) else 8
    if t.startswith(("v_exp", "v_rcp")): return 8
    if t.startswith("v_mfma"): return 32
    if t.startswith("s_nop"): return 4 * (int(t.split()[1]) + 1)
    if t.startswith("s_cbranch") or t.startswith("s_branch"): return 12
    if t.startswith("s_barrier"): return 8
    return 4
def gap_time(ops):
    t = 4; prev = None
    for o in ops:
        if o is None: continue
        k = kind_of(o)
        if k == "label": continue
        if k == "salu": t += cost_of(o)
        else: t = max(t, 8) + cost_of(o) + (8 if (k != "valu" and prev == "valu") else 0)
        prev = k
    return t

class Stream:
    def __init__(self, ops, first, last, maxper=99, dense=0):
        self.nb = {}; self.dl = []; l = []
        for o in ops:
            if isinstance(o, tuple):
                if o[0] == "nb": self.nb[len(l)] = o[1]
                else: self.dl.append((len(l), o[1]))
            else: l.append(o)
        ops = l
        self.ops = list(ops); self.first = first; self.last = last; self.maxper = maxper; self.dense = dense
        self.total = sum(cost_of(o) for o in self.ops); self.done = 0; self.i = 0
        self.gate = {}; self.i0 = 0

def pack(NG, A, B, C, T, streams, novm=(), nosalu=(), vmgap=4):
    out = []; over = 0; lastvm = -99
    for g in range(NG):
        a, b, c, tl = list(A[g]), list(B[g]), list(C[g]), list(T[g])
        cnt = {}; inC = set(); blocked = set()
        while True:
            best = None; bl = None; bsec = None
            for st in streams:
                if st.i >= len(st.ops) or g < st.first: continue
                if g < st.nb.get(st.i, 0): continue
                force = g >= st.last or any(st.i < n and g >= dg for n, dg in st.dl)
                if (cnt.get(id(st), 0) >= st.maxper or id(st) in blocked) and not force: continue
                o = st.ops[st.i]; k = kind_of(o); cst = cost_of(o)
                if k == "salu" and g in nosalu:
                    assert not force, (g, text_of(o))
                    continue
                if k in ("load", "store") and (g in novm or g - lastvm < vmgap) and not force: continue
                if k in ("load", "store", "ds"):
                    sec = "b" if id(st) not in inC and id(st) not in blocked else "c"
                    if sec == "c" and not force: continue
                elif k == "salu" and not a and cnt.get(id(st), 0) == 0:
                    sec = "a"
                else: sec = "c"
                tgt = st.total * (g - st.first + 1) / (st.last - st.first + 1)
                lag = tgt - st.done
                if not force:
                    if lag < cst / 2 - OPT["ahead"] and cst: continue
                    trial = (a + [o] if sec == "a" else a) + (b + [o] if sec == "b" else b) + (c + [o] if sec == "c" else c) + tl
                    gt = gap_time(trial)
                    if gt > 16:
                        if g % 2 == 0: continue
                        big = k == "store" or text_of(o).startswith(("ds_write_b128", "ds_write2"))
                        lim = max(20, st.dense) if lag > 24 else 16
                        if big and not (a + b + c + tl): lim = 32
                        if gt > lim: continue
                key = (force, k in ("load", "store"), lag / max(1, (st.last - g + 1)) ** 0.5)
                if best is None or key > bl: best = st; bl = key; bsec = sec
            if best is None: break
            o = best.ops[best.i]
            if bsec == "a": a.append(o)
            elif bsec == "b":
                b.append(o)
            else: c.append(o)
            if bsec == "c" or bsec == "b" and kind_of(o) != "ds" and False: inC.add(id(best))
            if bsec == "c": inC.add(id(best))
            if " m0," in text_of(o): blocked.add(id(best))
            if kind_of(o) in ("load", "store"): lastvm = g
            best.i += 1; best.done += cost_of(o); cnt[id(best)] = cnt.get(id(best), 0) + 1
        ops = a + b + c + tl
        tt = gap_time(ops)
        if tt > 16: over += tt - 16
        out.append(ops)
    for st in streams: assert st.i == len(st.ops)
    return out, over

def pack_dense(NG, A, B, C, T, streams, novm=(), nosalu=(), vmgap=2):
    jobs = []
    for st in streams:
        r = st.first; rel = []
        for i in range(len(st.ops)):
            r = max(r, st.nb.get(i, 0)); rel.append(r)
        for i, o in enumerate(st.ops):
            d = min([st.last] + [dg for n, dg in st.dl if i < n])
            k = kind_of(o)
            jobs.append([rel[i], d, cost_of(o) + (OPT["dx"] if k in ("store", "load") else 0) - (2 if k == "salu" else 0)])
    for g in range(NG): jobs.append([g, g, max(0, gap_time(A[g] + B[g] + C[g] + T[g]) - 8)])
    level = [None] * NG
    while jobs:
        free = [g for g in range(NG) if level[g] is None]
        pts_r = sorted({j[0] for j in jobs}); pts_d = sorted({j[1] for j in jobs})
        best = None
        for a_ in pts_r:
            ws = sorted((j[1], j[2]) for j in jobs if j[0] >= a_)
            w = 0; i = 0
            for b_ in pts_d:
                if b_ < a_: continue
                while i < len(ws) and ws[i][0] <= b_: w += ws[i][1]; i += 1
                n = sum(1 for g in free if a_ <= g <= b_)
                if n and (best is None or w / n > best[0]): best = (w / n, a_, b_)
        dn, a_, b_ = best
        if dn <= 8: break
        for g in free:
            if a_ <= g <= b_: level[g] = dn
        jobs = [j for j in jobs if not (j[0] >= a_ and j[1] <= b_)]
    extra = [2 * (level[g] - 8) if (level[g] is not None and g % 2) else 0 for g in range(NG)]
    return pack_dense1(NG, A, B, C, T, streams, novm, nosalu, vmgap, extra)
def pack_dense1(NG, A, B, C, T, streams, novm, nosalu, vmgap, extra):
    out = []; over = 0; lastvm = -99
    fixed = [gap_time(A[g] + B[g] + C[g] + T[g]) - (8 if not (B[g] + C[g] + T[g]) else 8) for g in range(NG)]
    for g in range(NG):
        a, b, c, tl = list(A[g]), list(B[g]), list(C[g]), list(T[g])
        carry = (carry if g else 0) + extra[g]
        bud = 16 + (carry if g % 2 else 0)
        blocked = set(); inC = set()
        for st in streams: st.i0 = st.i
        while True:
            best = None; bl = None
            cur = gap_time(a + b + c + tl)
            for st in streams:
                if st.i >= len(st.ops) or g < st.first or g < st.nb.get(st.i, 0): continue
                if st.i in st.gate:
                    o_, j_ = st.gate[st.i]
                    if (o_.i0 if (kind_of(st.ops[st.i]) == "store" and g < NG - 1) else o_.i) <= j_: continue
                    if o_.i0 <= j_: inC.add(id(st))
                force = g >= st.last or any(st.i < n and g >= dg for n, dg in st.dl)
                if id(st) in blocked and not force: continue
                o = st.ops[st.i]; k = kind_of(o)
                if k == "salu" and g in nosalu:
                    assert not force
                    continue
                mem = k in ("load", "store", "ds")
                if k in ("load", "store") and (g in novm or g - lastvm < vmgap) and not force: continue
                sec = "b" if (mem and id(st) not in inC) else ("a" if (k == "salu" and not a and id(st) not in inC and id(st) not in blocked and not any(x is st for x in ())) else "c")
                if sec == "a" and any(id(st) == y for y in inC): sec = "c"
                if mem and sec == "c" and not force: continue
                trial = gap_time((a + [o] if sec == "a" else a) + (b + [o] if sec == "b" else b) + (c + [o] if sec == "c" else c) + tl)
                if not force and trial > bud and not (cur < 16 and trial <= bud + 12 and g % 2): continue
                tgt = st.total * (g - st.first + 1) / (st.last - st.first + 1)
                n_, dd = min([(len(st.ops), st.last)] + [(n, dg) for n, dg in st.dl if st.i < n], key=lambda x: x[1])
                need = sum(cost_of(x) for x in st.ops[st.i:n_]) / max(1, dd - g + 1)
                key = (force, mem, need)
                if best is None or key > bl: best = st; bl = key; bsec = sec
            if best is None: break
            o = best.ops[best.i]
            {"a": a, "b": b, "c": c}[bsec].append(o)
            if bsec == "c" or (bsec == "b"):
                if bsec == "c": inC.add(id(best))
                else: usedb = True
            if bsec in ("a", "b"): best._g = g
            if " m0," in text_of(o): blocked.add(id(best))
            if kind_of(o) in ("load", "store"): lastvm = g
            best.i += 1; best.done += cost_of(o)
            if bsec == "b" and not a: a.append(None)
        a = [x for x in a if x is not None]
        ops = a + b + c + tl
        tt = gap_time(ops)
        carry = max(0, carry - max(0, tt - 16)) if extra[g] or g % 2 == 0 else 0
        if tt > 16: over += tt - 16
        out.append(ops)
    for st in streams: assert st.i == len(st.ops)
    return out, over

POLLSITES = []
def gen_seg(name, groups, nxt, sm=(), bars=(), tasks=(), dma=(), extra=(), endops=(), fixed=(), peel=True, vmgap=None):
    starts = []; n = 0
    for g in groups: starts.append(n); n += len(g.mf)
    NG = n
    A = [[] for _ in range(NG)]; B = [[] for _ in range(NG)]; C = [[] for _ in range(NG)]; T = [[] for _ in range(NG)]
    streams = []; novm = set(range(0, NG, 2)); nosalu = set()
    allg = list(groups) + list(nxt)
    assert len(groups) % 3 == 0
    for i, g in enumerate(groups):
        g0 = starts[i]; ln = len(g.mf)
        if i + 2 < len(allg):
            t = allg[i + 2]
            if not (OPT["ab"] & 4 and name.startswith("k") and i % 2): B[g0].append(rd_op(i + 2, 0, t)); B[g0 + ln // 2].append(rd_op(i + 2, 1, t))
            if t.reb:
                assert g0 > 0
                C[g0 - 1] += t.reb
        if i + 1 < len(allg):
            A[g0 + ln - 1].append(LG(("fr", (2 * i + 2) % NFS), ("fr", (2 * i + 3) % NFS)))
    for ops, f, l in sm: streams.append(Stream(ops, f, l))
    streams += list(extra)
    if endops:
        A[NG-4] += endops[:1]; A[NG-2] += [A[NG-1][0]] + list(endops[1:-1]); A[NG-1] = []; T[NG-1] = list(endops[-1:]); nosalu |= {NG-2, NG-1}
    for grp in dma:
        dl = []
        for part, pos in grp[:-2]: dl += dma_tile(part, pos, peel)
        k = max(i for i, x in enumerate(dl) if isinstance(x, VM)) + 1
        lim = NG - 3 if endops else NG - 1
        if grp[-1] + 1 > lim: k = len(dl)
        streams.append(Stream(dl[:k], grp[-2], grp[-1], maxper=2))
        if dl[k:]: streams.append(Stream(dl[k:], grp[-1] + 1, min(lim, grp[-1] + 12), maxper=2))
    bars = [(g, list(tg)) for g, tg in bars]
    for t in tasks:
        k_ = t[0]
        if k_ == "cv":
            _, cv, h, buf, rs, outb = HT[t[1]]
            ops = cv(h, buf, rs, outb)[t[2]:t[3]]
            if t[2] == 0: ops = [W(t[1])] + ops
            streams.append(Stream(ops, t[4], t[5]))
        elif k_ in ("kst", "vst"):
            grp = k_st(t[1], BX) if k_ == "kst" else v_st(t[1], BZ)
            g = t[2]; assert g % 2 == 1 and not B[g] and not A[g], (name, g)
            B[g].append(grp[-1]); novm |= set(range(g - OPT["sb"], g + OPT["sa"] + 1))
            if grp[:-1]: streams.append(Stream(grp[:-1], max(0, g - 5), g - 1))
        elif k_ in ("ld", "ldn"):
            ld, _, h, buf, rs, _o = HT[t[1]]
            adv = {"ka": k_adv(), "va": v_adv()}.get(t[1], []) if k_ == "ld" else []
            ops = ld(h, buf, rs, t[1])
            if len(t) > 4: ops = ops[2:] if t[4] == "raw" else ops[:2]
            streams.append(Stream(adv + ops, t[2], t[3], maxper=1))
        elif k_ == "post":
            bi = t[2] if len(t) > 2 else -1
            bars[bi][1].append(t[1])
            streams.append(Stream(flag_post(), bars[bi][0] + 1, min(NG - 3, bars[bi][0] + 14), maxper=1))
        elif k_ == "pf":
            streams.append(Stream([VM("pf", f"buffer_load_dword v{V_T4}, v{V_DMA}, s[{S_DBG}:{S_DBG+3}], s{S_HOFF} offen")], t[1], t[2]))
        elif k_ == "rld":
            streams.append(Stream([VM("rs", f"buffer_load_dwordx4 v[{V_T4}:{V_T4+3}], v{V_DMA}, s[{S_WS}:{S_WS+3}], s{S_RC} offen sc1")], t[1], t[2]))
        elif k_ == "rst":
            g = t[1]; assert g % 2 == 1 and not B[g] and not A[g] and not A[g - 1], (name, g)
            A[g - 1].append(W("rs")); B[g].append(VM("rs2", f"buffer_store_dwordx4 v[{V_T4}:{V_T4+3}], v{V_DMA}, s[{S_WS}:{S_WS+3}], s{S_RC} offen sc1"))
            novm |= set(range(g - OPT["sb"], g + OPT["sa"] + 1))
            streams.append(Stream([f"s_add_u32 s{S_RC}, s{S_RC}, s{S_RD}", f"s_sub_u32 s{S_RD}, 1024, s{S_RD}"], g + 1, g + 8, maxper=1))
        elif k_ == "pollld": streams.append(Stream(poll_load(), t[1], t[2], maxper=1))
        elif k_ == "pollchk":
            ps = len(POLLSITES); POLLSITES.append(ps)
            g = t[1]; assert g % 4 == 1
            pt = poll_test()
            A[g] += [W("poll")]; T[g] += pt[:2]; novm |= {g, g + 4}
            A[g + 3] += [pt[3]]; A[g + 4] += [f"s_cbranch_scc1 L_pollslow{ps}", f"L_pollok{ps}:"]; nosalu |= {g + 3, g + 4}
            A[g + 5] += [f"s_add_u32 s{S_NEED}, s{S_NEED}, 1"]
        elif k_ == "spollld": A[t[1]] += smem_flags()
        elif k_ == "spollchk":
            ps = len(POLLSITES); POLLSITES.append(ps)
            A[t[1]] += ["s_waitcnt lgkmcnt(0)"]
            streams.append(Stream(smem_reduce(), t[1] + 1, t[2] - 1, maxper=3))
            A[t[2]] += [f"s_cmp_ge_u32 s{S_PT}, 16", f"s_cbranch_scc1 L_pollslow{ps}", f"L_pollok{ps}:", f"s_add_u32 s{S_NEED}, s{S_NEED}, 1"]
        elif k_ == "step": streams.append(Stream(rd_step(t[1]), t[2], t[3], maxper=1))
        elif k_ == "q": streams.append(Stream(q_dma(t[1]), t[2], t[3], maxper=2))
        else: raise Exception(k_)
    for g, tags in bars:
        i = [j for j in range(len(groups)) if starts[j] + len(groups[j].mf) - 1 == g]
        assert i, (name, g)
        if len(groups[i[0]].mf) == 8:
            A[g - 2] += A[g]; A[g] = []
            if tags: A[g - 1] += [W(*tags)]
        elif tags: A[g - 2] += [W(*tags)]
        A[g] += ["s_barrier"]; novm |= {g}
    for g, sec, ops in fixed: {"A": A, "B": B, "C": C, "T": T}[sec][g] += ops
    if endops:
        for st_ in streams: st_.last = min(st_.last, NG - 2)
    m0w = sorted((st.first, st.last) for st in streams if any(" m0," in text_of(o) for o in st.ops))
    assert all(m0w[i][1] < m0w[i + 1][0] for i in range(len(m0w) - 1)), (name, m0w)
    if name in str(OPT["dense"]).split(","): fill, over = pack_dense(NG, A, B, C, T, streams, novm, nosalu, vmgap or OPT["dvg"])
    else: fill, over = pack(NG, A, B, C, T, streams, novm, nosalu, vmgap or OPT["vmgap"])
    if over: print(f"seg {name}: over budget by {over} cycles", file=sys.stderr)
    out = istamp(name)
    g = 0
    for i, gr in enumerate(groups):
        for j, d, b, c in gr.mf:
            if (OPT["pvs"] & 1 and d[0] in "a ") or (OPT["pvs"] & 2 and d.startswith("v")): out.append(f"{MF} {d}, {b}, {FR(2*i+j)}, {c}")
            else: out.append(f"{MF} {d}, {FR(2*i+j)}, {b}, {c}")
            out += fill[g]; g += 1
    return with_nop(out)

GBAR = 79
def seg_groups(it):
    return qk_full(it + 1) if it % 2 else pv_seq(it - 2)
def gen_iter(it, tasks=(), dma=(), name=None, endops=(), peel=False, nxt=None, extra=(), bars=None, groups=None, sm=None, step=True):
    q = it % 2
    smB = softmax_part(it, 1); smA = softmax_part(it + 1, 0)
    if sm is None: sm = ([(smB + [("dl", 57), ("nb", 47)] + smA, 0, 95)] if OPT["flex"] else [(smB, 0, 50), (smA, 52, 95)]) if q else [(smB + smA, 0, 95)]
    need = [("dv", (it - 1) % 8), ("dv", it % 8)] if q else [("dk", (it + 2) % 8), ("dk", (it + 3) % 8)]
    tasks = list(tasks) + ([("step", "p" if q else "q", 30, GBAR - 3)] if step else [])
    return gen_seg(name or f"i{it}", groups or seg_groups(it), nxt if nxt is not None else seg_groups(it + 1)[:2], sm,
                   bars if bars is not None else [(GBAR, need)], tasks, dma, extra, endops, peel=peel)

K_ = lambda *j: tuple(("k", x) for x in j)
V_ = lambda *j: tuple(("v", x) for x in j)
def steady(k):
    ckv, ckk = OPT["ckv"], OPT["ckk"]
    plv, plk = OPT["plv"], OPT["plk"]
    if OPT["bal"]:
        c = [int(x) for x in str(OPT["cut"]).split(",")]
        a1, a2, b1, b2, v1, v2, w1 = c
        return {
            5: ([("cv", "ka", 0, a1, 0, 95), ("pollchk", 1), ("vst", 0, 9), ("vst", 1, 17), ("vst", 2, 25), ("vst", 3, 33), ("post", "vst")], [K_(0, 1) + (41, 74)]) if ckk == 1 else
               ([("cv", "ka", 0, a1, 0, 95), ("pollchk", ckk), ("vst", 0, 1), ("vst", 1, 9), ("vst", 2, 17), ("vst", 3, 25), ("post", "vst")], [K_(0, 1) + (ckk + 7, 92)]),
            6: ([("cv", "ka", a1, a2, 0, 95), ("ld", "kb", 0, 44)] + [("rld", 70, 92)] * OPT["rs"], [K_(2, 3) + (0, 90)]),
            7: ([("cv", "ka", a2, 99, 0, 60), ("cv", "kb", 0, b1, 61, 95), ("ld", "va", 11, 70), ("pollld", plv, plv + 8)], [K_(4, 5) + (11, 92)]),
            0: ([("cv", "kb", b1, b2, 0, 95), ("pollchk", ckv)] + [("rst", 81)] * OPT["rs"], [V_(0, 1) + (ckv + 7, 74)]),
            1: ([("cv", "kb", b2, 99, 0, 30), ("cv", "va", 0, v1, 31, 95), ("ld", "vb", 32, 80)], [V_(2, 3) + (0, GBAR - 5)]),
            2: ([("cv", "va", v1, v2, 0, 95), ("kst", 0, 1), ("kst", 1, 9), ("kst", 2, 17), ("kst", 3, 25), ("post", "kst")], [K_(6, 7) + (33, 74)]),
            3: ([("cv", "va", v2, 99, 0, 50), ("cv", "vb", 0, w1, 51, 95), ("ld", "ka", 0, 44)], [V_(4, 5) + (0, 90)]),
            4: ([("cv", "vb", w1, 99, 0, 95), ("pollld", plk, plk + 16)] + ([("pf", 80, 92)] if OPT["pf2"] else []), [V_(6, 7) + (0, GBAR - 5)]),
        }[k]
    return {
        1: ([("cv", "va", 0, 22, 0, 95), ("ld", "vb", 0, 44)], [V_(2, 3) + (0, GBAR - 5)]),
        2: ([("cv", "va", 22, 99, 0, 95), ("kst", 0, 1), ("kst", 1, 9), ("kst", 2, 17), ("kst", 3, 25), ("post", "kst")], [K_(6, 7) + (33, 74)]),
        3: ([("cv", "vb", 0, 22, 0, 95), ("ld", "ka", 0, 44)], [V_(4, 5) + (0, GBAR - 5)]),
        4: ([("cv", "vb", 22, 99, 0, 95), ("pollld", plk, plk + 16)] + ([("pf", 80, 92)] if OPT["pf2"] else []), [V_(6, 7) + (0, GBAR - 5)]),
        5: ([("cv", "ka", 0, 16, 0, 95), ("pollchk", 1), ("vst", 0, 9), ("vst", 1, 17), ("vst", 2, 25), ("vst", 3, 33), ("post", "vst")], [K_(0, 1) + (41, 74)]),
        6: ([("cv", "ka", 16, 99, 0, 95), ("ld", "kb", 0, 30)], [K_(2, 3) + (31, 74)]),
        7: ([("cv", "kb", 0, 24, 40, 95), ("ld", "va", 11, 40), ("pollld", plv, plv + 8)], [K_(4, 5) + (41, 90)]),
        0: ([("cv", "kb", 24, 99, 0, 95), ("pollchk", ckv)], [V_(0, 1) + (ckv + 7, ckv + 44)]),
    }[k]

GA = V_RS[0]; TA = V_RS[0] + 1; BA = V_RS[0] + 2
RL = [V_CT, V_CT + 4, NEGM(0), NEGM(1)]
S_EO = 24
def epi_addr():
    return [f"v_bfe_u32 v{TA}, v{V_DMA}, 8, 2", f"v_mul_u32_u24 v{GA}, 1536, v{TA}", f"v_lshlrev_b32 v{BA}, 4, v{TA}",
            f"v_bfe_u32 v{TA}, v{V_DMA}, 4, 4", f"v_lshl_add_u32 v{GA}, v{TA}, 3, v{GA}", f"v_mov_b32 v{TA}, 1.0",
            f"s_lshl_b32 s{S_EO}, s{S_QB}, 2", f"s_add_u32 s{S_EO}, s{S_EO}, s{S_WAVE}", f"s_mul_i32 s{S_EO}, s{S_EO}, {STAGE}",
            f"s_add_u32 s{S_QL}, s{S_EO}, 6144", f"s_add_u32 s{S_QS}, s{S_EO}, 12288", f"s_add_u32 s{S_TAG}, s{S_EO}, 18432"]
S_EQ = [S_EO, S_QL, S_QS, S_TAG]
def epi_l(qs, gap=("s_nop 7", "s_nop 1")):
    fl = [f"v_mfma_f32_16x16x4_f32 v[{RL[q]}:{RL[q]+3}], v{V_L[q]}, v{TA}, 0" for q in qs] + list(gap)
    return fl + [f"v_rcp_f32 v{RL[q]+r}, v{RL[q]+r}" for q in qs for r in range(4)]
class Epi:
    def __init__(self, temps): self.temps = temps; self.n = 0; self.pend = []
    def flush(self, k=99):
        p = self.pend[:k]; self.pend = self.pend[k:]
        return p
    def chunk(self, qb, n, pk=False, inv=False):
        p = []
        ob = self.temps[self.n % len(self.temps)]; self.n += 1
        for r in range(4):
            o = ob + 4 * r
            if inv:
                p += [f"v_mul_f32 v{o+e}, v{OV(qb,3*e+n)+r}, v{RL[qb]+r}" for e in range(4)]
                p += [f"v_cvt_pk_bf16_f32 v{o+i}, v{o+2*i}, v{o+2*i+1}" for i in range(2)] + self.flush(1)
                self.pend.append(VM("out", f"buffer_store_dwordx2 v[{o}:{o+1}], v{GA}, s[{S_OUT}:{S_OUT+3}], s{S_EQ[qb]} offen offset:{n*128 + r*384}{OF}"))
                continue
            p += [f"v_accvgpr_read_b32 v{o+e}, a{O(qb,3*e+n)+r}" for e in range(4)]
            rl = RL[qb] + r
            if pk: p += [f"v_pk_mul_f32 v[{o+2*i}:{o+2*i+1}], v[{o+2*i}:{o+2*i+1}], v[{rl&~1}:{(rl&~1)+1}] " + ("op_sel:[0,1] op_sel_hi:[1,1]" if rl & 1 else "op_sel_hi:[1,0]") for i in range(2)]
            else: p += [f"v_mul_f32 v{o+e}, v{o+e}, v{rl}" for e in range(4)]
            p += [f"v_cvt_pk_bf16_f32 v{o+i}, v{o+2*i}, v{o+2*i+1}" for i in range(2)]
            p += self.flush(1)
            self.pend.append(VM("out", f"buffer_store_dwordx2 v[{o}:{o+1}], v{GA}, s[{S_OUT}:{S_OUT+3}], s{S_EQ[qb]} offen offset:{n*128 + r*384}{OF}"))
        return p

def gen_tail():
    sp = softmax_part
    g57 = qk_half(58) + rebase(qk_half(59), V_RDK, A0 - A2)
    g58 = pv_seq(56)
    g59 = rebase(qk_half(60), V_RDK, A1 - A0) + rebase(qk_half(61), V_RDK, A2 - A1)
    g60 = rebase(pv_seq(58), [V_RD], B2 - B1) + rebase(pv_seq(59), [V_RD], B0 - B2)
    g61 = rebase(pv_seq(60), [V_RD], B1 - B0) + rebase(qk_half(62), V_RDK, A0 - A2)
    g62 = rebase(qk_half(63), V_RDK, A1 - A0) + ([] if OPT["f3"] else rebase(pv_seq(61), [V_RD], B2 - B1))
    g63 = []
    for n in range(3):
        if OPT["f3"]: g63 += [pv_grp(61, 3 * e + n, va=VQR[0]) for e in range(4)]
        g63 += [pv_grp(62, 3 * e + n) for e in range(4)] + [pv_grp(63, 3 * e + n, va=V_RD2) for e in range(4)]
    if OPT["f3"]: g63[0].reb += [f"v_add_u32 v{VQR[0]}, {B2 - B1}, v{V_RD}", f"v_mov_b32 v{V_RD2}, v{V_RD}", f"v_subrev_u32 v{V_RD}, {B1 - B0}, v{V_RD}"]
    else: g63[0].reb += [f"v_subrev_u32 v{V_RD2}, {B2 - B1}, v{V_RD}", f"v_subrev_u32 v{V_RD}, {B2 - B0}, v{V_RD}"]
    first57 = g57[:2]
    p = []
    p += gen_seg("S57", g57, g58[:2], [(sp(57, 1) + [("dl", 50), ("nb", 28)] + sp(58, 0), 0, 95)], [(7, [("dk", 5)]), (GBAR, [("dv", 0), ("dv", 1)])],
                 [("step", "p", 30, GBAR - 3)], [(K_(62, 63) + (8, 60)) if OPT["tv"] else (K_(62, 63) + V_(58, 59) + (8, 90))], peel=False)
    p += gen_seg("S58", g58, g59[:2], [(sp(58, 1) + sp(59, 0), 0, 95), (epi_addr(), 0, 95)], [(GBAR, [("dk", 7)] if OPT["tv"] else [("dk", 7), ("dv", 3)])], [],
                 [(V_(58, 59, 60, 61) + (0, 74)) if OPT["tv"] else (V_(60, 61) + (0, 60))], peel=False)
    p += gen_seg("S59", g59, g60[:2], [(sp(59, 1) + [("dl", 50), ("nb", 28)] + sp(60, 0), 0, 95)], [(15, [("dv", 5)])], [], [V_(62, 63) + (16, 60)], peel=False)
    p += gen_seg("S60", g60, g61[:2], [(sp(60, 1) + sp(61, 0), 0, 95)], [(GBAR, [("dv", 7)])])
    ep = Epi([BX] if OPT["omv"] else [BX, BY])
    e01 = [x for qb in (0, 1) for n in range(3) for x in ep.chunk(qb, n, OPT["pk"])] + ep.flush()
    chk = [f"v_max3_f32 v{V_T+2}, v{V_L[0]}, v{V_L[1]}, v{V_L[2]}", f"v_max_f32 v{V_T+2}, v{V_T+2}, v{V_L[3]}",
           f"s_mov_b32 s{S_TMP}, 0x{f32bits(2.0**OPT['thr']):08x}", f"v_cmp_lt_f32 s[{S_PT}:{S_PT+1}], s{S_TMP}, v{V_T+2}"]
    c = [ep.chunk(2, j, OPT["pk"]) + ep.chunk(3, j, OPT["pk"]) + ep.flush() for j in range(2)]
    sm = sp(61, 1) + epi_l((0, 1), [])[2:] + [("dl", 50), ("nb", 76)] + sp(62, 0) + [("nb", 98)] + sp(62, 1) + [("nb", 124)] + sp(63, 0) + [("nb", 148)] + sp(63, 1) + [("dl", 205)] + chk + [("nb", 214)] + epi_l((2, 3), [])[2:]
    ee = e01 + [("nb", 228)] + c[0] + [("nb", 260)] + c[1]
    lastsm = 220
    if OPT["f3"]:
        sm = sp(61, 1) + epi_l((0, 1), [])[2:] + [("dl", 50), ("nb", 76)] + sp(62, 0) + [("nb", 98)] + sp(62, 1) + [("dl", 157), ("nb", 124)] + sp(63, 0) + [("nb", 148)] + sp(63, 1) + [("dl", 173)] + chk + [("nb", 182)] + epi_l((2, 3), [])[2:]
        ee = e01 + [("dl", OPT["ed"]), ("nb", 196)] + c[0] + [("dl", OPT["ed1"]), ("nb", 244)] + c[1]
        lastsm = 190
    if OPT["sst"]:
        prod = []; ev = []
        for x in ee:
            if isinstance(x, VM): prod.append(x)
            else: ev.append(x)
        es = Stream(ev, 52, 286); ss = Stream(prod, 52, 287)
        cv = [i for i, x in enumerate(es.ops) if text_of(x).startswith("v_cvt_pk")][1::2]
        rd = [i for i, x in enumerate(es.ops) if text_of(x).startswith("v_accvgpr_read")][0::4]
        assert len(cv) == len(prod) == len(rd)
        for k in range(len(prod)):
            ss.gate[k] = (es, cv[k]); ss.nb[k] = max([0] + [gp for i, gp in es.nb.items() if i <= cv[k]])
            kk = k + 4 * len(ep.temps)
            if kk < len(prod): es.gate[rd[kk]] = (ss, k)
        xs = [es, ss]
        if OPT["omv"]: xs.append(Stream([f"v_accvgpr_read_b32 v{OV(q, db)+r}, a{O(q, db)+r}" for q in (2, 3) for db in (2, 5, 8, 11) for r in range(4)], 0, 140))
    else: xs = [Stream(ee, 52, 287)]
    p += gen_seg("S61", g61 + g62 + g63, [], [(sm, 0, lastsm)], extra=xs,
                 fixed=[(1, "T", epi_l((0, 1))[:1]), (3, "T", epi_l((0, 1))[1:2]), (lastsm - 15, "T", epi_l((2, 3))[:1]), (lastsm - 13, "T", epi_l((2, 3))[1:2]), (lastsm + 5, "A", [f"s_cmp_lg_u64 s[{S_PT}:{S_PT+1}], 0", "s_cbranch_scc1 L_slow"]), (95, "T", istamp("S62")), (191, "T", istamp("S63"))])
    p += istamp("fin") + ["s_nop 7"]
    if OPT["omv"]: ep.temps = [UNIT[0], UNIT[1]]
    p += ep.chunk(2, 2, True, OPT["omv"]) + ep.flush() + ep.chunk(3, 2, True, OPT["omv"]) + ep.flush()
    return first57, p
def slow_epi():
    ep = Epi([64 + 16 * i for i in range(4)])
    seq = ["s_nop 1"] + epi_l((0, 1)) + epi_l((2, 3)) + ["s_nop 0"]
    for qb in range(4):
        for n in range(3): seq += ep.chunk(qb, n, True)
    return seq + ep.flush()

def kfrag(g):
    return 2 * (g >> 2) + (g & 1), (g >> 1) & 1
def gen_slow():
    KF = 64; VF = 112; SS = 160; PP = 224; M = [240, 241, 242, 243]; KA = [244, 245]; LA = 246; t = V_T
    p = ["L_slow:", "s_waitcnt vmcnt(0) lgkmcnt(0)", "s_nop 15"]
    for i in range(192): p.append(f"v_accvgpr_write_b32 a{i}, 0")
    for q in range(4): p += [f"v_mov_b32 v{V_L[q]}, 0", f"v_mov_b32 v{M[q]}, 0xff7fffff"]
    p += [f"v_subrev_u32 v{KA[0]}, {A1}, v{V_RDK[0]}", f"v_subrev_u32 v{KA[1]}, {A1}, v{V_RDK[1]}", f"v_subrev_u32 v{LA}, {B0}, v{V_RD}",
          f"s_mov_b32 s{S_PT}, 0", "L_slowloop:"]
    for i in range(1, 5): p.append(f"s_add_u32 s{S_PT+i}, s{S_PT}, {[0, 6144, 12288, 16384, 20480][i]}")
    for f in range(12):
        s, tb = kfrag(f)
        p.append(f"buffer_load_dwordx4 v[{KF+4*f}:{KF+4*f+3}], v{KA[s&1]}, s[{S_WS}:{S_WS+3}], s{S_PT+tb} offen offset:{(s>>1)*128} sc1")
    for db in range(12):
        p.append(f"buffer_load_dwordx4 v[{VF+4*db}:{VF+4*db+3}], v{LA}, s[{S_WS}:{S_WS+3}], s{S_PT+2+db//4} offen offset:{(db%4)*1024} sc1")
    p.append("s_waitcnt vmcnt(12)")
    for f in range(12):
        s, tb = kfrag(f)
        for qb in range(4):
            d = vr(SS + 8 * qb + 4 * tb, 4)
            p.append(f"{MF} {d}, v[{KF+4*f}:{KF+4*f+3}], {Qf(qb,s)}, {'0' if s == 0 else d}")
    p.append("s_nop 9")
    for qb in range(4):
        sb = SS + 8 * qb
        p += [f"v_max3_f32 v{t}, v{sb}, v{sb+1}, v{sb+2}", f"v_max3_f32 v{t}, v{t}, v{sb+3}, v{sb+4}",
              f"v_max3_f32 v{t}, v{t}, v{sb+5}, v{sb+6}", f"v_max3_f32 v{t}, v{t}, v{sb+7}, v{M[qb]}"]
        p += xlane("v_max_f32", t)
        p += [f"v_sub_f32 v{t+1}, v{M[qb]}, v{t}", f"v_exp_f32 v{t+1}, v{t+1}", f"v_mov_b32 v{M[qb]}, v{t}"]
        for i in range(8): p.append(f"v_sub_f32 v{sb+i}, v{sb+i}, v{t}")
        for i in range(8): p.append(f"v_exp_f32 v{sb+i}, v{sb+i}")
        p.append(f"v_mul_f32 v{V_L[qb]}, v{V_L[qb]}, v{t+1}")
        for i in range(8): p.append(f"v_add_f32 v{V_L[qb]}, v{V_L[qb]}, v{sb+i}")
        for i in range(4): p.append(f"v_cvt_pk_bf16_f32 v{PP+4*qb+i}, v{sb+2*i}, v{sb+2*i+1}")
        p += [f"ds_bpermute_b32 v{248+r}, v{BA}, v{t+1} offset:{4*r}" for r in range(4)] + ["s_waitcnt lgkmcnt(0)"]
        for i in range(48):
            a = O(qb, 0) + i; tt = t + 2 + (i % 2)
            p += [f"v_accvgpr_read_b32 v{tt}, a{a}", f"v_mul_f32 v{tt}, v{tt}, v{248+i%4}", f"v_accvgpr_write_b32 a{a}, v{tt}"]
    p += ["s_waitcnt vmcnt(0)", "s_nop 1"]
    for db in range(12):
        for qb in range(4):
            d = ar(O(qb, db), 4)
            p.append(f"{MF} {d}, v[{PP+4*qb}:{PP+4*qb+3}], v[{VF+4*db}:{VF+4*db+3}], {d}")
    p += [f"s_add_u32 s{S_PT}, s{S_PT}, {STAGE}", f"s_cmp_lt_u32 s{S_PT}, {HEADBYTES}", "s_nop 7", "s_cbranch_scc1 L_slowloop"]
    e = slow_epi(); resolve(e)
    return p + fin(e) + ["s_branch L_fin"]

def xlane(op, t, u=None):
    u = t + 1 if u is None else u
    l = []
    for sw in ("v_permlane16_swap_b32", "v_permlane32_swap_b32"):
        l += [f"v_mov_b32 v{u}, v{t}", "s_nop 1", f"{sw} v{t}, v{u}", "s_nop 1", f"{op} v{t}, v{t}, v{u}"]
    return l
def rowmax2(t, qs, tq):
    l = []
    ab = [(Sq(t, j, 0), Sq(t, j, 1)) for j in range(2)]
    l += [f"v_max3_f32 v{tq[j]}, v{a}, v{a+1}, v{a+2}" for j, (a, b) in enumerate(ab)]
    l += [f"v_max3_f32 v{tq[j]}, v{tq[j]}, v{a+3}, v{b}" for j, (a, b) in enumerate(ab)]
    l += [f"v_max3_f32 v{tq[j]}, v{tq[j]}, v{b+1}, v{b+2}" for j, (a, b) in enumerate(ab)]
    l += [f"v_max_f32 v{tq[j]}, v{tq[j]}, v{b+3}" for j, (a, b) in enumerate(ab)]
    for sw in ("v_permlane16_swap_b32", "v_permlane32_swap_b32"):
        l += [f"v_mov_b32 v{tq[j]+1}, v{tq[j]}" for j in range(2)] + ["s_nop 0"]
        l += [f"{sw} v{tq[j]}, v{tq[j]+1}" for j in range(2)] + ["s_nop 0"]
        l += [f"v_max_f32 v{tq[j]}, v{tq[j]}, v{tq[j]+1}" for j in range(2)]
    l += [f"v_sub_f32 v{NEGM(qs[j])+i}, 0, v{tq[j]}" for j in range(2) for i in range(4)]
    return l
def sm_one(t, sl):
    a, b = Sq(t, sl, 0), Sq(t, sl, 1); tq = V_CT; qb = slot_q(t, sl); rs = [r + i for r in (a, b) for i in range(4)]
    l = [f"v_max3_f32 v{tq}, v{a}, v{a+1}, v{a+2}", f"v_max3_f32 v{tq+2}, v{a+3}, v{b}, v{b+1}",
         f"v_max3_f32 v{tq}, v{tq}, v{b+2}, v{b+3}", f"v_max_f32 v{tq}, v{tq}, v{tq+2}"] + xlane("v_max_f32", tq)
    l += [f"v_sub_f32 v{r}, v{r}, v{tq}" for r in rs] + [f"v_exp_f32 v{r}, v{r}" for r in rs] + [f"v_sub_f32 v{NEGM(qb)+i}, 0, v{tq}" for i in range(4)]
    l += [f"v_add_f32 v{V_L[qb]}, v{V_L[qb]}, v{r}" for r in rs] + [f"v_cvt_pk_bf16_f32 v{a+i}, v{rs[2*i]}, v{rs[2*i+1]}" for i in range(4)]
    return l
def addneg(t, sl):
    n = NEGM(slot_q(t, sl))
    return [f"v_add_f32 v{Sq(t,sl,tb)+i}, v{Sq(t,sl,tb)+i}, v{n}" for tb in range(2) for i in range(4)]

def resolve(seq):
    vm = []; ds = []
    for x in seq:
        if isinstance(x, VM): vm.append(x.tag)
        elif isinstance(x, DS): ds.append(x.tag)
        elif isinstance(x, (W, LG)):
            q = vm if isinstance(x, W) else ds
            best = None
            for tag in x.tags:
                n = 0; found = False
                for t in reversed(q):
                    if t == tag: found = True; break
                    n += 1
                if found: best = n if best is None else min(best, n)
            if best is not None:
                x.n = best if getattr(x, "n", None) is None else min(x.n, best)
        else:
            assert not x.startswith(("ds_", "buffer_")) or "UNTRACKED" in x, x
def vm_size(x):
    t = x.text
    if t.startswith("buffer_store"): return 0
    if x.tag == "pre": return 3.0
    if " lds" in t: return 1.0
    if "dwordx4" in t or "dwordx3" in t: return 0.75
    if "dwordx2" in t and "offen" in t: return 0.375
    return 0.125
def pace(seq, cap):
    out = []; q = []; on = False
    for x in seq:
        if isinstance(x, W): q = q[len(q) - min(len(q), x.n):]; on = True
        elif isinstance(x, VM):
            sz = vm_size(x)
            if on and not x.text.startswith("buffer_store") and sum(q) + sz > cap:
                while q and sum(q) + sz > cap: q.pop(0)
                w = W(); w.n = len(q)
                if out and out[-1] == "s_nop 0": out.pop()
                out.append(w)
            q.append(sz)
        out.append(x)
    return out
def fin(seq):
    out = []
    for x in seq:
        if isinstance(x, (W, LG)):
            if OPT["ab"] and getattr(x, "n", None) is None: x.n = 63
            assert getattr(x, "n", None) is not None, x.tags
            out.append(f"s_waitcnt vmcnt({min(x.n, 63)})" if isinstance(x, W) else f"s_waitcnt lgkmcnt({min(x.n, 15)})")
        elif isinstance(x, (VM, DS)): out.append(x.text)
        else: out.append(x.replace(" ;UNTRACKED", ""))
    return out
def groups_of(l):
    out = [[]]
    for x in l:
        out[-1].append(x)
        if isinstance(x, VM): out.append([])
    tail = out.pop()
    if tail: out[-1] += tail
    return out
def sprinkle(code, l):
    gs = groups_of(l); out = []; n = len(code); m = len(gs); j = 0
    for i, x in enumerate(code):
        while j < m and i * m >= j * n: out += with_nop(gs[j]); j += 1
        out.append(x)
    for g in gs[j:]: out += with_nop(g)
    return out
def srd(p, s, lo, hi, off_s, size):
    p += [f"s_add_u32 s{s}, s{lo}, s{off_s}", f"s_addc_u32 s{s+1}, s{hi}, 0", f"s_mov_b32 s{s+2}, {size}", f"s_mov_b32 s{s+3}, 0x20000"]

def gen_main():
    p = []
    p += [f"{NAME}_kernel:", "s_cmp_ge_u32 s2, 256", "s_cbranch_scc1 L_done",
          "s_load_dwordx16 s[40:55], s[0:1], 0", "s_load_dwordx4 s[16:19], s[0:1], 64"]
    if OPT["stamp"]: p += ["s_memtime s[98:99]" if OPT["stamp"] == 6 else "s_memrealtime s[98:99]"]
    p += [f"s_and_b32 s{S_HEAD}, s2, 7", f"s_lshr_b32 s{S_QB}, s2, 3", f"s_lshr_b32 s24, s{S_QB}, 3", f"s_lshl_b32 s{S_HEAD}, s{S_HEAD}, 2",
          f"s_add_u32 s{S_HEAD}, s{S_HEAD}, s24", f"s_and_b32 s{S_QB}, s{S_QB}, 7"]
    p += ["s_getpc_b64 s[60:61]", "L_pc:", f"s_sub_u32 s60, s60, L_pc-{NAME}_kernel", "s_subb_u32 s61, s61, 0",
          f"s_mov_b32 s62, L_slow-{NAME}_kernel", "s_mov_b32 s63, 0x20000",
          "s_lshr_b32 s22, s2, 3", "s_lshl_b32 s22, s22, 12",
          "v_lshlrev_b32 v30, 4, v0",
          VM("pf", "buffer_load_dwordx4 v[128:131], v30, s[60:63], s22 offen" + (" nt" if OPT["pfnt"] else ""))]
    p += ["v_lshrrev_b32 v24, 6, v0",
          "v_and_b32 v25, 63, v0",
          f"v_readfirstlane_b32 s{S_WAVE}, v24",
          f"v_lshlrev_b32 v{V_RD}, 4, v25",
          "v_mul_u32_u24 v26, 43, v25", "v_lshrrev_b32 v26, 10, v26",
          "v_mul_u32_u24 v27, 24, v26",
          "v_sub_u32 v27, v25, v27",
          "v_lshrrev_b32 v28, 1, v24",
          "v_and_b32 v29, 1, v24",
          "v_lshlrev_b32 v30, 4, v29",
          "v_lshl_add_u32 v30, v28, 2, v30",
          "v_add_u32 v30, v30, v26",
          "v_mul_u32_u24 v30, 768, v30",
          "v_lshrrev_b32 v48, 1, v26", "v_lshlrev_b32 v48, 30, v48",
          "v_lshl_add_u32 v30, v27, 4, v30", f"v_or_b32 v{V_KLD}, v30, v48",
          f"v_lshl_or_b32 v{V_KSC}, v27, 3, v48",
          "v_mul_u32_u24 v30, 6144, v24",
          f"v_add3_u32 v{V_VLD}, v30, v{V_RD}, v48"]
    for sd, size in ((S_QK, HEADBYTES), (S_QV, HEADBYTES), (S_KS, 12288), (S_KZ, 12288), (S_VS, 4096), (S_VZ, 4096), (S_FLG, 64)):
        p += [f"s_mov_b32 s{sd+2}, {size}", f"s_mov_b32 s{sd+3}, 0x20000"]
    p += [f"s_mul_i32 s{S_PK0}, s{S_QB}, {STAGE}", f"s_add_u32 s{S_PK1}, s{S_PK0}, 6144", f"s_mov_b32 s{S_PV0}, s{S_PK0}",
          f"s_lshr_b32 s{S_PKS}, s{S_QB}, 1", f"s_mul_i32 s{S_PKS}, s{S_PKS}, 384", f"s_lshl_b32 s{S_PVS}, s{S_QB}, 6",
          f"s_lshl_b32 s24, s{S_WAVE}, 4", f"s_add_u32 s{S_PVS}, s{S_PVS}, s24",
          f"s_mul_i32 s24, s{S_HEAD}, {HEADBYTES}", f"s_mul_i32 s56, s{S_HEAD}, 12288", f"s_lshl_b32 s57, s{S_HEAD}, 12",
          f"s_lshl_b32 s58, s{S_HEAD}, 10", f"s_add_u32 s58, s58, {FLAG_OFF + 96}",
          f"s_or_b32 s{S_RET}, s{S_QB}, s{S_WAVE}"]
    p += ["s_waitcnt lgkmcnt(0)"] + istamp("karg", True)
    def base(sd, lo, off): return [f"s_add_u32 s{sd}, s{lo}, s{off}", f"s_addc_u32 s{sd+1}, s{lo+1}, 0"]
    p += base(S_QK, 42, 24) + base(S_KS, 46, 56) + base(S_KZ, 48, 56)
    kl = [k_ld(0, BX, 32, "k0a"), k_ld(1, BY, 36, "k0b")]; vl = [v_ld(0, 112, 40, "v0a"), v_ld(1, 80, 44, "v0b")]
    for x in kl[1][:2]: x.tag = "k0a"
    for x in vl[1][:2]: x.tag = "v0a"
    if OPT["ksc"]:
        for x in kl[0][2:] + kl[1][2:]: x.tag = "kraw"
        for x in kl[1][:2]: x.tag = "k0b"
        p += kl[0][2:] + kl[1][2:] + kl[0][:2] + kl[1][:2]; kl[1] = []
    else: p += kl[0][2:] + kl[0][:2] + kl[1][:2]
    p += base(S_FLG, 18, 58) + base(S_VS, 50, 57) + base(S_VZ, 52, 57) + base(S_QV, 44, 24)
    p += [f"s_mul_i32 s59, s{S_HEAD}, 786432"] + base(S_OUT, 54, 59) + base(S_Q, 40, 59)
    p += [f"s_cmp_lg_u32 s{S_RET}, 0", "s_cbranch_scc1 L_notleader0", f"s_buffer_load_dwordx16 s[40:55], s[{S_FLG}:{S_FLG+3}], 0 glc", "L_notleader0:"]
    p += kl[1][2:]
    p += [f"s_add_u32 s24, s24, {WSOFF}"] * (1 if WSOFF else 0)
    srd(p, S_WS, 18, 19, 24, HEADBYTES)
    p += [f"s_mov_b32 s{S_Q+2}, 786432", f"s_mov_b32 s{S_Q+3}, 0x20000"]
    p += [f"s_mov_b32 s{S_DBG}, s16", f"s_mov_b32 s{S_DBG+1}, s17", f"s_add_u32 s{S_PV1}, s{S_PK0}, 3072", f"s_add_u32 s{S_PV2}, s{S_PK0}, 6144"]
    p += [f"s_mov_b32 s{S_DBG+2}, 256", f"s_mov_b32 s{S_DBG+3}, 0x20000", f"s_lshl_b32 s{S_HOFF}, s{S_HEAD}, 3"]
    p += [f"s_cmp_lg_u32 s{S_RET}, 0", "s_cbranch_scc1 L_notleader", "s_waitcnt lgkmcnt(0)", f"s_mov_b32 s{S_TP}, 1"]
    for i in range(16):
        p += [f"s_lshr_b32 s{40+i}, s{40+i}, 10", f"s_min_u32 s{40+i}, s{40+i}, 31", f"s_bitset1_b32 s{S_TP}, s{40+i}"]
    p += [f"s_ff0_i32_b32 s{S_TP}, s{S_TP}", f"s_lshl_b32 s{S_TP}, s{S_TP}, 10", f"v_mov_b32 v{V_POLL}, s{S_TP}",
          "s_mov_b64 exec, 1", f"buffer_store_dword v{V_POLL}, off, s[{S_DBG}:{S_DBG+3}], s{S_HOFF} sc1 ;UNTRACKED", "s_mov_b64 exec, -1",
          "L_notleader:"]
    p += [f"s_lshl_b32 s24, s{S_QB}, 2", f"s_add_u32 s24, s24, 32", f"s_buffer_load_dword s{S_OWN}, s[{S_FLG}:{S_FLG+3}], s24 glc",
          ] + ([f"s_getreg_b32 s{S_XCC}, hwreg(HW_REG_XCC_ID, 0, 4)", f"s_lshl_b32 s{S_XCC}, s{S_XCC}, 5", f"s_mov_b32 s{S_FOFF}, {32 if OPT['l2'] == 3 else 0}"] if OPT["l2"] else
          [f"s_mov_b32 s{S_XCC}, 0", f"s_mov_b32 s{S_FOFF}, 32"])
    p += vl[0][2:] + vl[0][:2] + vl[1][:2] + (vl[1][2:] if OPT["greedy"] else []) + istamp("iss", True)
    if OPT["pre"]:
        st = OPT["pre"]
        p += [f"v_mul_u32_u24 v31, {st}, v25", f"v_mul_u32_u24 v30, 6144, v24", "v_add_u32 v31, v30, v31"]
        if st == 128: p += ["v_or_b32 v31, v31, v48"]
        p += [VM("pre", f"buffer_load_dword v132, v31, s[{S_WS}:{S_WS+3}], s{S_PK0} offen" + (" nt" if OPT["prent"] else ""))]
        if st == 64: p += ["v_add_u32 v30, 4096, v31", "s_mov_b64 exec, 0xffffffff", VM("pre", f"buffer_load_dword v133, v30, s[{S_WS}:{S_WS+3}], s{S_PK0} offen nt"), "s_mov_b64 exec, -1"]
    p += [f"s_mov_b32 s{S_OUT+2}, 786432", f"s_mov_b32 s{S_OUT+3}, 0x20000"]
    p += [f"s_lshl_b32 s24, s{S_WAVE}, 8", f"s_add_u32 s{S_HOFF}, s{S_HOFF}, s24"]
    p += ["v_mul_u32_u24 v30, 3072, v24", f"v_add_u32 v{V_DMA}, v30, v{V_RD}"]
    p += ["v_lshl_add_u32 v30, v24, 3, v26",
          "v_mul_u32_u24 v30, 384, v30",
          "v_lshlrev_b32 v31, 2, v29",
          "v_xor_b32 v31, v27, v31",
          "v_lshl_add_u32 v30, v31, 4, v30", f"v_or_b32 v{V_KST}, v30, v48",
          "v_lshlrev_b32 v30, 8, v24",
          "v_add_u32 v30, 12288, v30",
          "v_lshrrev_b32 v31, 4, v25", "v_lshl_add_u32 v30, v31, 10, v30", "v_and_b32 v31, 15, v25",
          "v_lshl_add_u32 v30, v31, 4, v30", f"v_or_b32 v{V_VST}, v30, v48"]
    p += [f"s_lshl_b32 s24, s{S_QB}, 2",
          f"v_lshl_add_u32 v{V_FLAG}, v0, 2, s24", f"v_cmp_lt_u32 vcc, 0, v0", "v_mov_b32 v30, 0x40000000", "s_nop 0",
          f"v_cndmask_b32 v{V_FLAG}, v{V_FLAG}, v30, vcc"]
    p += [f"s_mul_i32 s{S_DMK}, s{S_WAVE}, 3072", f"s_add_u32 s{S_DMK}, s{S_DMK}, 12288", f"s_add_u32 s{S_DMV}, s{S_DMK}, {STAGE}",
          f"s_add_u32 s24, s{S_QB}, 1", "s_and_b32 s24, s24, 7", f"s_mul_i32 s{S_GOFFK}, s24, {STAGE}", f"s_add_u32 s{S_GOFF}, s{S_GOFFK}, 12288",
          f"s_mov_b32 s{S_RK}, {A2}", f"s_mov_b32 s{S_RV}, {B1}", f"v_add_u32 v{V_RD}, {B0}, v{V_RD}",
          f"s_mov_b32 s{S_CS}, 0x{f32bits(CSCALE):08x}", f"s_mov_b32 s{S_MASK}, 0xffff0000",
          f"s_mov_b32 s{S_BUDGET}, 100000"] + ([f"s_mov_b32 s{S_TAG+1}, 0"] if OPT["stamp"] else [])
    p += ["v_and_b32 v26, 15, v25", "v_lshrrev_b32 v27, 4, v25", "v_bfe_u32 v28, v25, 1, 3",
          "v_xor_b32 v29, v27, v28", "v_mul_u32_u24 v30, 384, v26", f"v_lshl_add_u32 v{V_RDK[0]}, v29, 4, v30",
          f"v_xor_b32 v{V_RDK[1]}, 64, v{V_RDK[0]}"]
    p += [f"s_mul_i32 s{S_QL}, s{S_WAVE}, 6144", f"s_add_u32 s{S_QL}, s{S_QL}, {B1}",
          "v_lshrrev_b32 v29, 1, v27", "v_xor_b32 v29, v29, v28", "v_lshl_add_u32 v31, v29, 4, v30",
          "v_and_b32 v29, 1, v27", "v_lshl_add_u32 v31, v29, 3, v31"]
    for kk in range(4):
        p += [f"v_xor_b32 v{VQR[kk]}, {32*kk}, v31", f"v_add_u32 v{VQR[kk]}, s{S_QL}, v{VQR[kk]}"]
    p += [f"s_lshl_b32 s24, s{S_QB}, 2", f"s_add_u32 s24, s24, s{S_WAVE}", f"s_mul_i32 s24, s24, {STAGE}"]
    for b in range(6):
        p += [f"v_add_u32 v26, {64*b}, v25", "v_mul_u32_u24 v27, 2731, v26", "v_lshrrev_b32 v27, 17, v27",
              "v_and_b32 v27, 7, v27", "v_xor_b32 v26, v26, v27", f"v_lshlrev_b32 v{VQD+b}, 4, v26", f"v_add_u32 v{VQD+b}, s24, v{VQD+b}"]
    for q in range(4): p.append(f"v_mov_b32 v{V_L[q]}, 0")
    STF0 = "" if OPT["l2"] else STF
    def own_k(b):
        l = []
        for j in range(4):
            l += k_st(j, b, "kst", STF0)
            va = V_KST if j == 0 else V_KA + (j & 1)
            l += ["s_mov_b64 exec, s[62:63]", DS("w", f"ds_write_b128 v{va}, v[{b+4*j}:{b+4*j+3}] offset:{j*768}"), "s_mov_b64 exec, -1"]
        return l
    def own_v(b):
        l = [x for e in range(4) for x in v_st(e, b, "vst", STF0)]
        l += ["s_mov_b64 exec, s[62:63]"] + [DS("w", f"ds_write_b128 v{V_VST}, v[{b+4*e}:{b+4*e+3}] offset:{STAGE - 12288 + e*3072}") for e in range(4)] + ["s_mov_b64 exec, -1"]
        return l
    p += ["s_mov_b32 s62, -1", "s_mov_b32 s63, 0xffff"]
    qa = OPT["qa"]
    qb_, qc = OPT["qb"], OPT["qc"]
    R = lambda a, b: list(range(a, b))
    if OPT["split"]:
        p += [W("k0a")] + vl[1][2:] + k_cv(0, BX, 32, BX) + [W("k0b")] + istamp("k0b", True) + k_cv(1, BY, 36, BX) + own_k(BX)
        p += tag_load() + with_nop(q_dma(R(0, qa))) + [W("v0a")] + v_cv(0, 112, 40, 112)
        p += [W("tag")] + tag_check() + ["s_waitcnt lgkmcnt(0)", "s_barrier"] + flag_post() + tag_get() + istamp("post", True)
        p += with_nop(q_dma(R(qa, qb_))) + v_cv(1, 80, 44, 112) + own_v(112) + with_nop(q_dma(R(qb_, 12))) + istamp("vst", True)
    elif OPT["greedy"]:
        p += [W("k0a")] + with_nop(q_dma(R(0, 3))) + k_cv(0, BX, 32, BX) + [W("k0b")] + istamp("k0b", True) + with_nop(q_dma(R(3, 6))) + k_cv(1, BY, 36, BX) + own_k(BX)
        p += [W("v0a")] + with_nop(q_dma(R(6, 9))) + v_cv(0, 112, 40, 112) + [W("v0b")] + with_nop(q_dma(R(9, 12))) + v_cv(1, 80, 44, 112) + own_v(112)
        p += tag_load() + with_nop(q_dma(R(12, 18))) + istamp("vst", True)
    else:
        p += [W("k0a")] + vl[1][2:] + k_cv(0, BX, 32, BX) + [W("k0b")] + istamp("k0b", True) + k_cv(1, BY, 36, BX) + own_k(BX)
        p += with_nop(q_dma(R(0, qa))) + istamp("kst", True)
        p += [W("v0a")] + sprinkle(v_cv(0, 112, 40, 112), q_dma(R(qa, qb_))) + [W("v0b")] + v_cv(1, 80, 44, 112) + own_v(112)
        p += tag_load() + with_nop(q_dma(R(qb_, 12))) + istamp("vst", True)
    if not OPT["split"]:
        if OPT["iw"]:
            p += ["s_mov_b64 exec, 0"] + [x for w in range(3) for x in (f"s_cmp_eq_u32 s{S_WAVE}, {w}", f"s_cbranch_scc1 L_iw{w}")] + ["s_branch L_iw3", "L_iwret:", "s_mov_b64 exec, -1"]
        p += [W("tag")] + tag_check() + istamp("tag", True)
        p += ["s_waitcnt lgkmcnt(0)", "s_barrier"] + flag_post(True) + tag_get() + istamp("post", True)
    if OPT["pf2"]:
        p += [f"s_mov_b32 s{S_DBG}, s60", f"s_mov_b32 s{S_DBG+1}, s61", f"s_mov_b32 s{S_DBG+2}, L_slow-{NAME}_kernel",
              "s_lshr_b32 s24, s2, 3", f"s_mul_i32 s{S_HOFF}, s24, 43", f"s_lshr_b32 s{S_HOFF}, s{S_HOFF}, 7",
              f"s_mul_i32 s{S_RET}, s{S_HOFF}, 3", f"s_sub_u32 s24, s24, s{S_RET}", "s_lshl_b32 s24, s24, 10",
              f"s_mul_i32 s{S_HOFF}, s{S_HOFF}, 12288", f"s_add_u32 s{S_HOFF}, s{S_HOFF}, s24"]
    KF = 144
    for f in range(12):
        s, tb = kfrag(f)
        p.append(DS("kf", f"ds_read_b128 v[{KF+4*f}:{KF+4*f+3}], v{V_RDK[s&1]} offset:{tb*6144 + (s>>1)*128}"))
    def qk0(qb):
        l = []
        for f in sorted(range(12), key=lambda f: kfrag(f)[::-1]):
            s, tb = kfrag(f)
            d = vr(Sq(0, qb, tb), 4)
            l.append(f"{MF} {d}, v[{KF+4*f}:{KF+4*f+3}], {Qf(qb,s)}, {'0' if s == 0 else d}")
        return l
    ps = len(POLLSITES); POLLSITES.append(ps)
    g3n = OPT["g3n"]
    pollchk = ["s_waitcnt lgkmcnt(0)"] + smem_reduce() + [f"s_cmp_ge_u32 s{S_PT}, 16", f"s_cbranch_scc1 L_pollslow{ps}", f"L_pollok{ps}:",
          f"s_add_u32 s{S_NEED}, s{S_NEED}, 1"] + [f"s_mov_b32 s{S_FOFF}, 32"] * (OPT["l2"] == 2) + istamp("poll", True)
    sm00 = rowmax2(0, (0, 1), (V_CT, V_CT + 2)) + addneg(0, 0) + addneg(0, 1) + softmax_part(0, 0)
    qrest = R(12 if OPT["greedy"] == 0 else 18, 18 + g3n)
    if OPT["split"]:
        ps2 = len(POLLSITES); POLLSITES.append(ps2)
        pollchk2 = ["s_waitcnt lgkmcnt(0)"] + smem_reduce() + [f"s_cmp_ge_u32 s{S_PT}, 16", f"s_cbranch_scc1 L_pollslow{ps2}", f"L_pollok{ps2}:",
              f"s_add_u32 s{S_NEED}, s{S_NEED}, 1"] + istamp("pollV", True)
        p += [W(("q", 0))] + q_frags(0) + [LG("tg")] + tag_use() + [LG(("qf", 0))] + smem_flags() + qk0(0) + pollchk
        p += with_nop(dma_tile("k", 1, True)) + k_adv() + v_adv()
        p += [W("vst"), "s_barrier"] + flag_post() + istamp("postV", True)
        p += with_nop(dma_tile("k", 2, True) + dma_tile("k", 3, True))
        p += [W(("q", 1))] + q_frags(1) + with_nop(q_dma(R(12, 15))) + [LG(("qf", 1))] + qk0(1) + ["s_nop 7"]
        g0 = pv_unchained(0, True)[:6]
        p += [rd_op(i, j, g0[i]) for i in range(2) for j in range(2)] + sprinkle(sm00, q_dma(R(15, 18 + g3n))) + smem_flags() + [LG(("fr", 0), ("fr", 1))]
        p += gen_seg("S0", g0, [], tasks=[("q", R(18 + g3n, 24), 0, 22)] if g3n < 6 else [], vmgap=2) + pollchk2
        p += with_nop(dma_tile("v", 1, True))
        g3n = 6
    elif OPT["own1"] == 2:
        p += [W(("q", 0))] + q_frags(0) + [LG("tg")] + tag_use() + with_nop(q_dma(qrest[:3])) + [LG(("qf", 0))] + qk0(0)
        p += [W(("q", 1))] + q_frags(1) + smem_flags() + with_nop(q_dma(qrest[3:])) + [LG(("qf", 1))] + qk0(1) + pollchk
        g0 = pv_unchained(0, True)[:6]
        p += [rd_op(i, j, g0[i]) for i in range(2) for j in range(2)]
        p += sprinkle(sm00, dma_tile("k", 1, True) + dma_tile("k", 2, True) + dma_tile("k", 3, True) + dma_tile("v", 1, True)) + k_adv() + v_adv() + [LG(("fr", 0), ("fr", 1))]
        p += gen_seg("S0", g0, [], tasks=[("q", R(18 + g3n, 24), 0, 22)] if g3n < 6 else [], vmgap=2)
        g3n = 6
    elif OPT["own1"]:
        p += [W(("q", 0))] + q_frags(0) + [LG("tg")] + tag_use() + with_nop(q_dma(qrest[:3])) + [LG(("qf", 0))] + qk0(0)
        if OPT["q0f"]: p += ["s_nop 7"] + sm_one(0, 0); sm00 = sm_one(0, 1)
        p += [W(("q", 1))] + q_frags(1) + with_nop(q_dma(qrest[3:6])) + [LG(("qf", 1))] + qk0(1) + ["s_nop 7"]
        g0 = pv_unchained(0, True)[:6]
        p += [rd_op(i, j, g0[i]) for i in range(2) for j in range(2)] + sprinkle(sm00, q_dma(qrest[6:])) + smem_flags() + [LG(("fr", 0), ("fr", 1))]
        p += gen_seg("S0", g0, []) + pollchk
        p += with_nop(dma_tile("k", 1, True) + dma_tile("k", 2, True) + dma_tile("k", 3, True) + dma_tile("v", 1, True)) + k_adv() + v_adv()
    else:
        p += [W(("q", 0))] + q_frags(0) + [LG("tg")] + tag_use() + [W(("q", 1))] + q_frags(1) + smem_flags()
        p += [LG(("qf", 0))] + with_nop(q_dma(qrest)) + pollchk
        p += with_nop(dma_tile("k", 1, True)) + k_adv() + v_adv()
        p += sprinkle(qk0(0) + qk0(1), dma_tile("k", 2, True)) + ["s_nop 7"]
        p += sprinkle(sm00, dma_tile("k", 3, True) + dma_tile("v", 1, True))
    sp = softmax_part
    g1 = qk_half(0, ws=(1,))
    g2 = rebase(qk_half(1), V_RDK, A1 - A0)
    g3 = pv_unchained(0, True)[6 if OPT["own1"] else 0:]
    g4 = rebase(pv_unchained(1), [V_RD], B1 - B0)
    g5 = rebase(qk_half(2, True), V_RDK, A0 - A1) + rebase(qk_half(3), V_RDK, A1 - A0)
    gi3 = rebase(qk_full(4), V_RDK, A2 - A1)
    gi4 = rebase(pv_seq(2, True), [V_RD], B0 - B1) + rebase(pv_seq(3), [V_RD], B1 - B0)
    p += istamp("pre-dk1", True) + [W(("dk", 1)), "s_barrier"] + [rd_op(i, j, g1[i]) for i in range(2) for j in range(2)]
    p += [LG(("fr", 0), ("fr", 1))]
    p += gen_seg("S1", g1, g2[:2], [], [(15, [("dk", 3)])], [], [V_(2, 3) + (0, 21)], vmgap=2)
    p += gen_seg("S2", g2, g3[:2], [(sp(0, 1), 3, 47)], [(39, [("dv", 3)])] if OPT["own1"] else [], ([("q", R(18 + g3n, 24), 0, 24)] if g3n < 6 else []) + [("ldn", "ka", 25 if g3n < 6 else 0, 47)])
    if OPT["own1"]: p += gen_seg("S3", g3, g4[:2], [(sp(1, 0), 0, 23)], [], [("ldn", "kb", 0, 23)])
    else: p += gen_seg("S3", g3, g4[:2], [(sp(1, 0), 0, 47)], [(15, [("dv", 3)])], [("ldn", "kb", 0, 22), ("ldn", "va", 23, 46, "raw")])
    p += gen_seg("S4", g4, g5[:2], [(sp(1, 1), 0, 21)], [], [("ldn", "va", 0, 30, "raw")] if OPT["own1"] else [], extra=[Stream([W(("q", 2))] + q_frags(2) + [W(("q", 3))] + q_frags(3), 16, 46)])
    p += istamp("pre-S5", True) + ["s_waitcnt lgkmcnt(0)", "s_barrier"]
    p += gen_seg("S5", g5, gi3[:2], [(rowmax2(2, (2, 3), (V_T, V_T + 2)), 27, 45), (addneg(2, 0) + addneg(2, 1) + sp(2, 0) + addneg(2, 2) + addneg(2, 3) + sp(2, 1), 46, 95)],
                 [(GBAR + 8, [("dk", 5)])], [("cv", "ka", 0, 99, 0, 34), ("cv", "kb", 0, 99, 35, 72), ("kst", 0, 73), ("kst", 1, 77), ("kst", 2, 89), ("kst", 3, 93),
                 ("ldn", "va", 36, 60, "sc")], [K_(4, 5) + (1, 24)])
    p += gen_seg("i3", gi3, gi4[:2], [(sp(3, 0) + sp(3, 1), 0, 54), (sp(4, 0), 55, 95)], [(OPT["pb"], []), (GBAR, [])],
                 [("ld", "vb", 0, 22), ("post", "kst", 0), ("cv", "va", 0, 99, 10, 95)], [K_(6, 7) + V_(4, 5) + (24, 90)])
    p += [f"s_mov_b32 s{S_CNT}, 7", f"s_mul_i32 s{S_RC}, s{S_QB}, {STAGE}", f"s_mov_b32 s{S_RD}, 12288"]
    p += gen_seg("i4", gi4, seg_groups(5)[:2], [(sp(4, 1) + sp(5, 0), 0, 94)], [(47, []), (GBAR + 8, [("dk", 7)])],
                 [("ld", "ka", 0, 30), ("cv", "vb", 0, 99, 30, 94), ("step", "q", 30, 70), ("pollld", OPT["pl4"], OPT["pl4"] + 8)], [V_(6, 7) + (52, 84)],
                 endops=["s_nop 0", "s_branch L_join"])
    p += [".p2align 6"] + ["s_nop 0"] * OPT.get("pad", 0) + ["L_loop:"]
    pro_ = p
    first57, tail = gen_tail()
    bodyA = []
    for k in (1, 2, 3, 4, 5, 6, 7, 0):
        if k == 5: bodyA.append("L_join:"); jpos = len(bodyA)
        eo = [f"s_sub_u32 s{S_CNT}, s{S_CNT}, 1", f"s_cmp_lg_u32 s{S_CNT}, 0", "s_cbranch_scc1 L_loop"] if k == 0 else ()
        t, d = steady(k)
        if OPT["ab"] & 8: d = []
        if OPT["ab"] & 16: t = [x for x in t if x[0] not in ("cv", "kst", "vst", "ld")]
        bars = None
        if OPT["nb6"]:
            dk = lambda *x: [("dk", i) for i in x]; dv = lambda *x: [("dv", i) for i in x]
            bars = {0: [], 4: [], 7: [(GBAR, dv(6, 7) + dk(2, 3))], 3: [(GBAR, dv(2, 3) + dk(6, 7))]}.get(k)
        bodyA += gen_iter(16 + k, t, d, name=f"k{k}", endops=eo, bars=bars)
    assert OPT["qo"] or [g.rd for g in first57] == [g.rd for g in seg_groups(17)[:2]]
    tailc = tail + ["L_fin:"]
    resolve(pro_ + bodyA[jpos:] + bodyA + bodyA + tailc)
    if OPT["cap"]: pro_ = pace(pro_, OPT["cap"] / 4)
    P_ = Prog()
    P_.extend(fin(pro_))
    a0 = len(P_.ins); P_.extend(fin(bodyA)); a1 = len(P_.ins)
    P_.extend(fin(tailc))
    p = P_
    if OPT["stamp"]:
        p("s_waitcnt vmcnt(0) lgkmcnt(0)")
        p.extend(istamp("end"))
        p("s_waitcnt lgkmcnt(0)")
        p.extend(istamp("end2"))
        p(f"v_writelane_b32 v{V_STAMP}, s{S_TAG+1}, 63")
        p("s_add_u32 s8, s18, 0xfa00000"); p("s_addc_u32 s9, s19, 0"); p("s_mov_b32 s10, 1048576"); p("s_mov_b32 s11, 0x20000")
        p("s_lshl_b32 s24, s2, 2"); p(f"s_add_u32 s24, s24, s{S_WAVE}"); p("s_lshl_b32 s24, s24, 8")
        p(f"v_bfe_u32 v32, v{V_DMA}, 4, 6"); p("v_lshlrev_b32 v32, 2, v32")
        p(f"buffer_store_dword v{V_STAMP}, v32, s[8:11], s24 offen")
        if OPT["stamp"] == 8: STAMPS.sort(key=lambda n: 0)
        open(sys.argv[1] + ".stamps", "w").write("\n".join(order_stamps()))
    if OPT["calx"]:
        p("s_waitcnt vmcnt(0)")
        p("L_cal:")
        p("s_memrealtime s[40:41]")
        p("s_waitcnt lgkmcnt(0)")
        p("s_sub_u32 s40, s40, s100")
        p("s_cmp_lt_u32 s40, 10000")
        p("s_cbranch_scc1 L_cal")
    p("L_done:")
    p("s_endpgm")
    main_end0 = len(p.ins)
    for ps in POLLSITES: p.extend(poll_slow(ps))
    p.extend(tag_slow())
    main_end = len(p.ins)
    p.extend(gen_slow())
    slow_end = len(p.ins)
    ji = [i for i, x in enumerate(p.ins) if x.text == "L_join:"][0]
    lin = p.ins[:a0] + p.ins[ji:a1] + p.ins[a0:main_end0]
    sl = [i for i, x in enumerate(p.ins) if x.text == "L_slowloop:"][0]
    bi = [i for i, x in enumerate(p.ins) if x.text == "s_cbranch_scc1 L_slowloop"][0]
    probs = check_hazards(lin, "main") + check_hazards(p.ins[main_end:bi+1] + p.ins[sl:slow_end], "slow") + check_hazards(p.ins[main_end0:main_end], "aux")
    for x in probs: print(x, file=sys.stderr)
    return p

def kd(name, vgpr, sgpr, accum):
    return f""".amdhsa_kernel {name}
  .amdhsa_next_free_vgpr {vgpr}
  .amdhsa_next_free_sgpr {sgpr}
  .amdhsa_accum_offset {accum}
  .amdhsa_group_segment_fixed_size 0
  .amdhsa_kernarg_size 80
  .amdhsa_user_sgpr_count 2
  .amdhsa_user_sgpr_kernarg_segment_ptr 1
  .amdhsa_system_sgpr_workgroup_id_x 1
.end_amdhsa_kernel
"""
def build_text(body):
    o = HEADER + f"; @launch grid=(256,1,1) block=(256,1,1) lds={LDS_BYTES}\n" + '.amdgcn_target "amdgcn-amd-amdhsa--gfx950"\n.text\n'
    o += f".globl {NAME}_kernel\n.p2align 8\n.type {NAME}_kernel,@function\n" + body
    return o + '.section .rodata,"a"\n.p2align 6\n' + kd(NAME + "_kernel", 512, 102, 256)
def addresses(lines):
    import subprocess, types, ctypes
    _o = ctypes.CDLL
    class F:
        def __getattr__(s, n):
            x = types.SimpleNamespace(); object.__setattr__(s, n, x); return x
    ctypes.CDLL = lambda n, *a, **k: (F() if "amdhip" in n else _o(n, *a, **k))
    sys.path.insert(0, "cdna_kernels")
    import cdna_launch as cl
    t = []
    for i, l in enumerate(lines):
        if l.strip().startswith("v_"): t.append(f"L_adr{i}:")
        t.append(l)
    open("_a.s", "w").write(cl.with_harness_metadata(build_text("\n".join(t) + "\n"), NAME + "_kernel", 10, launch_lists=True))
    subprocess.run([cl.ROCM_CLANG, "-x", "assembler", "-target", "amdgcn-amd-amdhsa", "-mcpu=gfx950", "_a.s", "-o", "_a.co"], check=True)
    r = subprocess.run(["llvm-objdump", "-t", "_a.co"], capture_output=True, text=True).stdout
    return {int(x.split()[-1][5:]): int(x.split()[0], 16) for x in r.split("\n") if "L_adr" in x}
def add_stubs(text):
    base = text.rstrip("\n").split("\n")
    lo = base.index("L_iwret:"); hi = base.index("L_fin:"); l0 = base.index("L_loop:")
    l1 = max(i for i, l in enumerate(base) if l.strip() == "s_cbranch_scc1 L_loop")
    pos = []
    for it in range(6):
        lines = []; idx = []
        chains = [[k for k in range(len(pos)) if k % 4 == w] for w in range(4)]
        nxt = {}
        for w in range(4):
            for a, b in zip(chains[w], chains[w][1:] + [None]): nxt[a] = f"L_pg{b}" if b is not None else "L_iwret"
        for i, l in enumerate(base):
            idx.append(len(lines)); lines.append(l)
            if i in pos:
                k = pos.index(i)
                lines += ([f"L_iw{k}:"] if k < 4 else []) + [f"L_pg{k}:", f"    s_cbranch_execz {nxt[k]}"]
        if len(pos) < 4: lines += [x for w in range(len(pos), 4) for x in (f"L_iw{w}:", "    s_branch L_iwret")]
        ad = addresses(lines); inv = {j: i for i, j in enumerate(idx)}
        first = min(i for i, l in enumerate(base) if l.strip().startswith("v_mfma") and "a[0:3]" in l)
        mf = sorted((a, inv[j]) for j, a in ad.items() if lo < inv[j] < hi and (inv[j] < first or base[inv[j]].strip().startswith("v_mfma")))
        new = [min(i for a, i in mf if i > base.index("L_join:"))]
        pg = mf[0][0] >> 12
        for a, i in mf:
            if (a + 8) >> 12 > pg:
                pg = (a + 8) >> 12
                if OPT["iw"] == 2 or not (l0 < i < l1): new.append(i)
        new = sorted(set(new))
        if new == pos: break
        pos = new
    print("page stubs:", len(pos), file=sys.stderr)
    return "\n".join(lines) + "\n"
out = HEADER
out += f"; @launch grid=(256,1,1) block=(256,1,1) lds={LDS_BYTES}\n"
out += '.amdgcn_target "amdgcn-amd-amdhsa--gfx950"\n.text\n'
body_ = gen_main().text()
if OPT["iw"]: body_ = add_stubs(body_)
out += f".globl {NAME}_kernel\n.p2align 8\n.type {NAME}_kernel,@function\n" + body_
out += '.section .rodata,"a"\n.p2align 6\n' + kd(NAME + "_kernel", 512, 102, 256)
open(sys.argv[1], "w").write(out)
```

```python
import sys, math
from asmlib import *

NAME = "standalone__kv_cache_quant_int4_int2_kv_with_per_channel_or_per_token_scales__prompt"
OPT = dict(stamp=0, vmgap=4, sb=6, sa=6, ahead=8, thr=64, pf2=1, calx="", qa=6, plv=2, plk=10, ckv=1, ckk=1, tden=24, touch=0, w0poll=0, cap=48, qb=6, q3e=1, ksc=0, few=1, qc=15, pb=39, pl4=40, l2=3, k1e=0, greedy=0, g3n=3, pre=0, own1=1, ab=0, pk=0, split=0, prent=1, bal=1, flex=1, w2=0, dense="S61,S5,S2,S3,S4", dx=4, dvg=2, f3=1, pvs=1, qo=0, po=0, x2c=12, sst=1, q0f=1, nb6=1, tv=1, omv=0, ldc=8, rs=0, scnt=0, iw=2, pfnt=0, v64=1, lastp=1, lmf=1, ed=200, ed1=250, cut="20,44,4,40,8,28,8")
for a in sys.argv[2:]:
    k, v = a.split("="); OPT[k] = int(v) if v.lstrip("-").isdigit() else v
NS = 6
STAGE = 24576
HEADBYTES = 64 * STAGE
RING = NS * STAGE
LDS_BYTES = RING + 128
A0, B0, A1, B1, A2, B2 = [i * STAGE for i in range(6)]
CSCALE = (192.0 ** -0.5) * math.log2(math.e)
HEADER = open("cdna_kernels/" + NAME + ".s.ref").read().split("; Override launch geometry")[0]
MF = "v_mfma_f32_16x16x32_bf16"
V64 = OPT["v64"]; NVE = 3 if V64 else 4
NCH = 2 if V64 else 3
def chunk_dbs(n): return list(range(6 * n, 6 * n + 6)) if V64 else [3 * e + n for e in range(4)]

V_FVAL = 0; V_RD = 1; V_RDK = [2, 3]; V_DMA = 4; V_L = [5, 6, 7, 8]
V_KLD = 9; V_KSC = 10; V_KST = 11; V_VLD = 12; V_FLAG = 13; V_RD2 = 59; V_RD3 = 60
V_T = 16; NTP = 2
V_VST = 15; V_STAMP = 14; V_T4 = 20
V_FR = 24; NFS = 6
V_CT = 48; V_VO = 52; V_RS = [56, 60]; BX = 224; BY = 240; BZ = 144
V_POLL = V_VO; V_KA = V_VO + 2
UNIT = [64, 80, 160, 176]; HI = [96, 112]
VQD = 136; VQR = [22, 23, 142, 143]
def Sq(t, sl, tb): return (UNIT[t % 4] if tb == 0 else HI[t % 2]) + 4 * sl
def P(t, sl): return UNIT[t % 4] + 4 * sl
def NEGM(qb): return 128 + 4 * qb
def O(qb, db): return (qb * 12 + db) * 4
def Qf(qb, s, half=None):
    i = qb * 6 + s
    base, f = (192 + 4 * i, ar) if i < 16 else (192 + 4 * (i - 16), vr)
    return f(base, 4) if half is None else f(base + 2 * half, 2)
def FR(f): return vr(V_FR + 4 * (f % NFS), 4)

S_RDELTA = 3; S_WS = 4; S_Q = 8; S_OUT = 12; S_FLG = 20
S_WAVE = 25; S_DMK = 26; S_GOFF = 27; S_RK = 28; S_TMP = 29; S_RV = 30; S_CNT = 31; S_GOFFK = 32
S_PK0 = 33; S_PK1 = 34; S_PV0 = 35; S_PKS = 36; S_PVS = 37; S_CS = 38; S_RET = 39; S_PV1 = 16; S_PV2 = 17
S_QL = 40; S_QS = 41; S_TAG = 42; S_FOFF = 44; S_XCC = 45; S_OWN = 46; S_RC = 46; S_RD = 47
S_PT = 48; S_DMV = 56; S_TK = 57; S_TV = 58; S_TP = 59
S_QK = 64; S_QV = 68; S_KS = 72; S_KZ = 76; S_VS = 80; S_VZ = 84; S_DBG = 88
S_NEED = 92; S_HOFF = 93; S_HEAD = 94; S_QB = 95; S_BUDGET = 96; S_MASK = 97
WSOFF = OPT.get("wsoff", 0) << 20
FLAG_OFF = WSOFF + (49 << 20)
SC1 = {0: " sc1", 1: "", 2: " nt", 3: " sc0", 4: " sc1 nt", 5: " sc0 sc1"}[OPT.get("dmaf", 0)]; NTKV = " nt"; NTQ = " nt"; STF = " sc1"; OF = " sc0 sc1"

STAMPS = []
def istamp(name, force=False):
    if OPT["calx"] == name: return ["s_memrealtime s[100:101]"]
    if OPT["stamp"] not in (6, 8, 9): return []
    if OPT["stamp"] == 8 and name.startswith(("k", "z")) and not force: return []
    if OPT["few"] and force and name not in ("karg", "k0b", "vst", "tag", "post", "poll", "postV", "pollV", "pre-dk1"): return []
    if OPT["stamp"] != 8 and force: return []
    STAMPS.append(name)
    return ["s_waitcnt lgkmcnt(0)"] * (1 if force else 0) + [f"v_mov_b32_dpp v{V_STAMP}, v{V_STAMP} wave_shr:1 row_mask:0xf bank_mask:0xf", f"v_writelane_b32 v{V_STAMP}, s98, 0",
            ("s_memtime" if OPT["stamp"] == 6 else "s_memrealtime") + " s[98:99]"]

def order_stamps():
    l = list(STAMPS); out = []
    if "S62" in l:
        l.remove("S61"); l.insert(l.index("S62"), "S61")
    for n in l:
        if "." in n: continue
        out.append(n); out += [m for m in l if m.startswith(n + ".")]
    return out
class W:
    def __init__(self, *tags): self.tags = tags
class VM:
    def __init__(self, tag, text): self.tag = tag; self.text = text
class LG:
    def __init__(self, *tags): self.tags = tags
class DS:
    def __init__(self, tag, text): self.tag = tag; self.text = text

def mode_of(t):
    return {0: "a", 1: "a", 2: "b", 3: "b", 58: "a", 59: "a", 60: "a", 61: "b", 62: "b", 63: "b"}.get(t, "f")
def slot_q(t, sl):
    m = mode_of(t)
    return sl if m == "f" else (sl & 1) + (0 if m == "a" else 2)
ONES = 20
def softmax_part(t, half, lm=False):
    if lm:
        l = [x for x in softmax_part(t, half) if not x.startswith("v_add")]
        out = []
        for x in l:
            out.append(x)
        k = [i for i, x in enumerate(out) if x.startswith("v_cvt_pk")][3]
        mm = lambda sl: f"{MF} v[{RL[slot_q(t, sl)]}:{RL[slot_q(t, sl)]+3}], v[{P(t, sl)}:{P(t, sl)+3}], v[{ONES}:{ONES+3}], " + ("0" if (t, half) == (61, 1) else f"v[{RL[slot_q(t, sl)]}:{RL[slot_q(t, sl)]+3}]")
        return out[:k + 3] + [mm(2 * half)] + out[k + 3:] + ["s_nop 1", mm(2 * half + 1)]
    flat = []; prev = None
    for gp in range(8):
        sl = 2 * half + gp // 4; pi = gp % 4; l = V_L[slot_q(t, sl)]
        t0 = V_T + 2 * (gp % NTP); t1 = t0 + 1
        src = Sq(t, sl, pi >> 1) + 2 * (pi & 1)
        E = [f"v_exp_f32 v{t0}, v{src}", f"v_exp_f32 v{t1}, v{src+1}"]
        A = [f"v_add_f32 v{l}, v{l}, v{t0}", f"v_add_f32 v{l}, v{l}, v{t1}"]
        C = [f"v_cvt_pk_bf16_f32 v{P(t,sl)+pi}, v{t0}, v{t1}"]
        if 16 <= t < 26:
            if OPT["ab"] & 1: A = []
            if OPT["ab"] & 2: E = [x.replace("v_exp_f32", "v_mov_b32") for x in E]
            if OPT["ab"] & 32: C = []
            if OPT["ab"] & 64: E = []; A = []; C = []
        flat += E if prev is None else E[:1] + prev[0] + E[1:] + prev[1]
        prev = (A, C)
    return flat + prev[0] + prev[1]

class Grp:
    def __init__(self, rd, mf): self.rd = rd; self.mf = mf; self.reb = []
def qk_tile(t, w, slots, czero=False):
    gs = []
    if OPT["qo"] == 1 and len(slots) == 4:
        for s_ in range(6):
            rd = [(V_RDK[s_ & 1], w * 12288 + tb * 6144 + (s_ >> 1) * 128) for tb in range(2)]
            mf = []
            for sl, qb in slots:
                for tb in range(2):
                    d = vr(Sq(t, sl, tb), 4)
                    mf.append((tb, d, Qf(qb, s_), (("0" if czero else vr(NEGM(qb), 4)) if s_ == 0 else d)))
            gs.append(Grp(rd, mf))
        return gs
    for gi in range(6):
        s0 = 2 * (gi >> 1); tb = gi & 1
        rd = [(V_RDK[j], w * 12288 + tb * 6144 + (s0 >> 1) * 128) for j in range(2)]
        mf = []
        for sl, qb in slots:
            d = vr(Sq(t, sl, tb), 4)
            mf += [(0, d, Qf(qb, s0), (("0" if czero else vr(NEGM(qb), 4)) if s0 == 0 else d)), (1, d, Qf(qb, s0 + 1), d)]
        gs.append(Grp(rd, mf))
    return gs
def qk_full(t): return [g for w in range(2) for g in qk_tile(t + w, w, [(q, q) for q in range(4)])]
def qk_half(t, czero=False, ws=(0, 1)):
    return [g for w in ws for g in qk_tile(t, w, [(2 * w + j, slot_q(t, j)) for j in range(2)], czero)]
def OV(qb, db): return (BY if qb == 2 else BZ) + 4 * (db // 3)
def pv_grp(t, db, first=False, va=V_RD):
    m = mode_of(t); mf = []
    for qb in (range(4) if m == "f" else [slot_q(t, 0), slot_q(t, 1)]):
        d = ar(O(qb, db), 4)
        if OPT["omv"] and t >= 61 and db % 3 == 2: d = " " + vr(OV(qb, db), 4)
        for w in range(2):
            b = P(t + w, qb) if m == "f" else P(t, 2 * w + (qb & 1))
            mf.append((w, d, vr(b, 4), "0" if (first and w == 0) else d))
    return Grp([(va, w * 12288 + db * 1024) for w in range(2)], mf)
def pv_seq(t, first=False):
    if OPT["po"] == 1 and mode_of(t) == "f":
        gs = []
        for d0 in range(0, 12, 2):
            for w in range(2):
                mf = [(e, ar(O(qb, d0 + e), 4), vr(P(t + w, qb), 4), ar(O(qb, d0 + e), 4)) for qb in range(4) for e in range(2)]
                gs.append(Grp([(V_RD, w * 12288 + (d0 + e) * 1024) for e in range(2)], mf))
        return gs
    if OPT["po"] == 2 and mode_of(t) == "f":
        gs = []
        for db in range(12):
            mf = [(w, ar(O(qb, db), 4), vr(P(t + w, qb), 4), ar(O(qb, db), 4)) for w in range(2) for qb in range(4)]
            gs.append(Grp([(V_RD, w * 12288 + db * 1024) for w in range(2)], mf))
        return gs
    return [pv_grp(t, db, first) for db in range(12)]
def pv_unchained(t, first=False):
    gs = []
    for w in range(2):
        for d0 in range(0, 12, 2):
            mf = []
            for j in range(2):
                qb = slot_q(t, j)
                for e in range(2):
                    d = ar(O(qb, d0 + e), 4)
                    mf.append((e, d, vr(P(t, 2 * w + j), 4), "0" if (first and w == 0) else d))
            gs.append(Grp([(V_RD, w * 12288 + (d0 + e) * 1024) for e in range(2)], mf))
    return gs
def rebase(gs, regs, delta):
    op = "v_add_u32" if delta >= 0 else "v_subrev_u32"
    gs[0].reb += [f"{op} v{r}, {abs(delta)}, v{r}" for r in regs]
    return gs
def rd_op(gi, j, g):
    f = 2 * gi + j
    return DS(("fr", f % NFS), f"ds_read_b128 {FR(f)}, v{g.rd[j][0]} offset:{g.rd[j][1]}")

def dma_tile(part, pos, peel=False):
    dm, go, tmp = (S_DMK, S_GOFFK, S_TK) if part == "k" else (S_DMV, S_GOFF, S_TV)
    l = [f"s_mov_b32 m0, s{dm}"]
    for j in range(3):
        l.append(VM(("d" + part, pos % 8), f"buffer_load_dwordx4 v{V_DMA}, s[{S_WS}:{S_WS+3}], s{go} offen offset:{j*1024}{SC1} lds"))
    if peel and pos < 7:
        l += [f"s_add_u32 s{go}, s{go}, {STAGE}", f"s_sub_u32 s{tmp}, s{go}, {8*STAGE}", f"s_min_u32 s{go}, s{go}, s{tmp}"]
    elif peel and pos == 7:
        l += [f"s_mov_b32 s{go}, {8*STAGE + (0 if part == 'k' else 12288)}"]
    else:
        l += [f"s_add_u32 s{go}, s{go}, {STAGE}"]
    if pos % 2 == 0: l += [f"s_add_u32 s{dm}, s{dm}, 12288"]
    else: l += [f"s_add_u32 s{dm}, s{dm}, {2*STAGE - 12288}", f"s_sub_u32 s{tmp}, s{dm}, {RING}", f"s_min_u32 s{dm}, s{dm}, s{tmp}"]
    return l
QOFF = [STAGE, 0, 2 * STAGE, STAGE]
def q_dma(lst):
    l = []
    for i in lst:
        a, b = divmod(i, 6)
        l += [f"s_mov_b32 s{S_QS}, {a*6144}"] * (1 if (b == 0 or i == lst[0]) else 0)
        l += [f"s_add_u32 m0, s{S_QL}, {QOFF[a] + b*1024}",
              VM(("q", a), f"buffer_load_dwordx4 v{VQD+b}, s[{S_Q}:{S_Q+3}], s{S_QS} offen{NTQ} lds")]
    return l
def q_frags(qb):
    l = []
    for s in range(6):
        for h in range(2):
            sp = s + 6 * h
            l.append(DS(("qf", qb), f"ds_read_b64 {Qf(qb,s,h)}, v{VQR[sp&3]} offset:{QOFF[qb] + (sp>>2)*128}"))
    return l
def with_nop(l):
    out = []
    for i, x in enumerate(l):
        out.append(x)
        if isinstance(x, str) and " m0," in x and i + 1 < len(l) and isinstance(l[i + 1], VM): out.append("s_nop 0")
    return out
def rd_step(kind):
    cur, regs = (S_RK, V_RDK) if kind == "q" else (S_RV, [V_RD])
    return [f"s_add_u32 s{S_TMP}, s{cur}, {2*STAGE}", f"s_sub_u32 s{S_RDELTA}, s{S_TMP}, {RING}",
            f"s_min_u32 s{S_TMP}, s{S_TMP}, s{S_RDELTA}", f"s_sub_u32 s{S_RDELTA}, s{S_TMP}, s{cur}", f"s_mov_b32 s{cur}, s{S_TMP}"] + \
           [f"v_add_u32 v{r}, s{S_RDELTA}, v{r}" for r in regs]

def k_ld(h, buf, rs, tag, scal_first=True):
    sc = [VM(tag, f"buffer_load_dwordx2 v[{rs+2*i}:{rs+2*i+1}], v{V_KSC}, s[{srd_}:{srd_+3}], s{S_PKS} offen offset:{192*h}" + (" nt" if OPT["scnt"] else ""))
          for i, srd_ in enumerate((S_KS, S_KZ))]
    l = []
    for j in range(4):
        so = S_PK0 if j < 2 else S_PK1
        l.append(VM(tag, f"buffer_load_dwordx4 v[{buf+4*j}:{buf+4*j+3}], v{V_KLD}, s[{S_QK}:{S_QK+3}], s{so} offen offset:{(j&1)*1536+384*h}{NTKV}"))
    return sc + l if scal_first else l + sc
def v_ld(h, buf, rs, tag, scal_first=True):
    sc = [VM(tag, f"buffer_load_dwordx2 v[{rs+2*i}:{rs+2*i+1}], off, s[{srd_}:{srd_+3}], s{S_PVS} offset:{8*h}" + (" nt" if OPT["scnt"] else ""))
          for i, srd_ in enumerate((S_VS, S_VZ))]
    l = []
    for r in range(4):
        so = S_PV0 if h == 0 else S_PV1
        l.append(VM(tag, f"buffer_load_dwordx{NVE} v[{buf+4*r}:{buf+4*r+NVE-1}], v{V_VLD}, s[{S_QV}:{S_QV+3}], s{so} offen offset:{r*768}{NTKV}"))
    return sc + l if scal_first else l + sc
def k_cv(h, buf, rs, out):
    l = []
    s0, s1, z0, z1 = V_CT, V_CT + 1, V_CT + 2, V_CT + 3
    for i in range(2):
        l += [f"v_lshlrev_b32 v{s0}, 16, v{rs+i}", f"v_and_b32 v{s1}, s{S_MASK}, v{rs+i}",
              f"v_lshlrev_b32 v{z0}, 16, v{rs+2+i}", f"v_and_b32 v{z1}, s{S_MASK}, v{rs+2+i}",
              f"v_mul_f32 v{s0}, s{S_CS}, v{s0}", f"v_mul_f32 v{s1}, s{S_CS}, v{s1}",
              f"v_mul_f32_e64 v{z0}, -v{z0}, v{s0}", f"v_mul_f32_e64 v{z1}, -v{z1}, v{s1}"]
        if OPT.get("nz", 0) & 1: l[-2:] = [f"v_mov_b32 v{z0}, 0", f"v_mov_b32 v{z1}, 0"]
        for j in range(4):
            a = buf + 4 * j + 2 * i; b = a + 1
            l += [f"v_cvt_f32_i32 v{a}, v{a}", f"v_cvt_f32_i32 v{b}, v{b}",
                  f"v_fma_f32 v{a}, v{a}, v{s0}, v{z0}", f"v_fma_f32 v{b}, v{b}, v{s1}, v{z1}",
                  f"v_cvt_pk_bf16_f32 v{out+4*j+2*h+i}, v{a}, v{b}"]
    return l
def k_st(j, out, tag="kst", STF=STF):
    va = V_KST; g = []
    if j:
        va = V_KA + (j & 1); g.append(f"v_xor_b32 v{va}, {16*j}, v{V_KST}")
    g.append(VM(tag, f"buffer_store_dwordx4 v[{out+4*j}:{out+4*j+3}], v{va}, s[{S_WS}:{S_WS+3}], s{S_PK0} offen offset:{j*768}{STF}"))
    return g
def v_cv(h, buf, rs, out):
    l = []
    s0, s1, z0, z1 = V_CT, V_CT + 1, V_CT + 2, V_CT + 3
    for i in range(2):
        l += [f"v_lshlrev_b32 v{s0}, 16, v{rs+i}", f"v_and_b32 v{s1}, s{S_MASK}, v{rs+i}",
              f"v_lshlrev_b32 v{z0}, 16, v{rs+2+i}", f"v_and_b32 v{z1}, s{S_MASK}, v{rs+2+i}",
              f"v_mul_f32_e64 v{z0}, -v{z0}, v{s0}", f"v_mul_f32_e64 v{z1}, -v{z1}, v{s1}"]
        if OPT.get("nz", 0) & 2: l[-2:] = [f"v_mov_b32 v{z0}, 0", f"v_mov_b32 v{z1}, 0"]
        for e in range(NVE):
            a = buf + 4 * (2 * i) + e; b = buf + 4 * (2 * i + 1) + e
            l += [f"v_cvt_f32_i32 v{a}, v{a}", f"v_cvt_f32_i32 v{b}, v{b}",
                  f"v_fma_f32 v{a}, v{a}, v{s0}, v{z0}", f"v_fma_f32 v{b}, v{b}, v{s1}, v{z1}"]
    for e, i in [(0, 0), (1, 0), (0, 1), (1, 1), (2, 0), (2, 1), (3, 0), (3, 1)][:2 * NVE]:
        l.append(f"v_cvt_pk_bf16_f32 v{out+4*e+2*h+i}, v{buf+8*i+e}, v{buf+8*i+4+e}")
    return l
def v_st(e, out, tag="vst", STF=STF):
    so = S_PV0 if (e < 2 or V64) else S_PV2
    return [VM(tag, f"buffer_store_dwordx4 v[{out+4*e}:{out+4*e+3}], v{V_VST}, s[{S_WS}:{S_WS+3}], s{so} offen offset:{e*1024 if V64 else (e&1)*3072}{STF}")]
def k_adv():
    return [f"s_add_u32 s{S_PK0}, s{S_PK0}, {8*STAGE}", f"s_add_u32 s{S_PK1}, s{S_PK1}, {8*STAGE}", f"s_add_u32 s{S_PKS}, s{S_PKS}, {4*384}"]
def v_adv():
    return [f"s_add_u32 s{r}, s{r}, {8*STAGE}" for r in (S_PV0, S_PV1, S_PV2)] + [f"s_add_u32 s{S_PVS}, s{S_PVS}, {8*64}"]
HT = {"ka": (k_ld, k_cv, 0, BX, V_RS[0], BX), "kb": (k_ld, k_cv, 1, BY, V_RS[1], BX),
      "va": (v_ld, v_cv, 0, BZ, V_RS[0], BZ), "vb": (v_ld, v_cv, 1, BY, V_RS[1], BZ)}
def flag_post(first=False):
    return [f"v_add_u32 v{V_FVAL}, 1, v{V_FVAL}"] + [
            VM("flag", f"buffer_store_dword v{V_FVAL}, v{V_FLAG}, s[{S_FLG}:{S_FLG+3}], 0 offen")] * (OPT["l2"] == 1 or (OPT["l2"] == 2 and first)) + [
            VM("flag", f"buffer_store_dword v{V_FVAL}, v{V_FLAG}, s[{S_FLG}:{S_FLG+3}], 0 offen offset:32 sc1")]
def poll_addr():
    return [f"v_bfe_u32 v{V_POLL+1}, v{V_DMA}, 4, 6", f"v_lshlrev_b32 v{V_POLL+1}, 2, v{V_POLL+1}"]
def poll_load():
    return poll_addr() + [VM("poll", f"buffer_load_dword v{V_POLL}, v{V_POLL+1}, s[{S_FLG}:{S_FLG+3}], s{S_FOFF} offen sc1")]
def poll_test():
    return [f"v_subrev_u32 v{V_POLL}, s{S_NEED}, v{V_POLL}", f"v_cmp_lt_u32 vcc, 15, v{V_POLL}", "s_nop 0", f"s_and_b32 s{S_TP}, vcc_lo, 0xff"]
def smem_flags():
    return [f"s_buffer_load_dwordx8 s[{S_PT}:{S_PT+7}], s[{S_FLG}:{S_FLG+3}], s{S_FOFF} glc"]
def smem_reduce():
    return [f"s_sub_u32 s{S_PT+i}, s{S_PT+i}, s{S_NEED}" for i in range(8)] + [f"s_max_u32 s{S_PT}, s{S_PT}, s{S_PT+i}" for i in range(1, 8)]
def smem_test():
    return smem_flags() + ["s_waitcnt lgkmcnt(0)"] + smem_reduce() + [f"s_cmp_lt_u32 s{S_PT}, 16"]
def poll_slow(site):
    l = [f"L_pollslow{site}:"] + ([f"s_add_u32 s{S_TAG+1}, s{S_TAG+1}, {1 << (6 * site)}"] if OPT["stamp"] else [])
    l += [f"s_mov_b32 s{S_TP}, {60 if site == 0 else 200}", f"L_pollsm{site}:"] + smem_test() + [f"s_cbranch_scc1 L_pollok{site}",
          f"s_sub_u32 s{S_TP}, s{S_TP}, 1", f"s_cbranch_scc1 L_pollvec{site}", "s_sleep 1", f"s_branch L_pollsm{site}"]
    l += [f"L_pollvec{site}:"] + poll_addr() + [
            f"s_sub_u32 s{S_BUDGET}, s{S_BUDGET}, 1",
            f"s_cbranch_scc1 L_pollgiveup{site}",
            "s_sleep 2",
            f"buffer_load_dword v{V_POLL}, v{V_POLL+1}, s[{S_FLG}:{S_FLG+3}], s{S_FOFF} offen sc1",
            "s_waitcnt vmcnt(0)"]
    if site == 0 and OPT["l2"]:
        l += [f"s_bitcmp1_b32 s{S_NEED}, 9", "s_cbranch_scc1 L_nomix",
              f"v_xor_b32 v{V_POLL+1}, s{S_NEED}, v{V_POLL}", f"v_lshrrev_b32 v{V_POLL+1}, 5, v{V_POLL+1}", f"v_add_u32 v{V_POLL+1}, -1, v{V_POLL+1}",
              f"v_cmp_gt_u32 vcc, 31, v{V_POLL+1}", "s_nop 1", f"s_and_b32 s{S_TP}, vcc_lo, {'0xff' if OPT['l2'] == 3 else '0xff00'}", "s_cbranch_scc0 L_nomix"]
        l += fin([x for j in range(4) for x in k_st(j, BX)] + [x for e in range(NVE) for x in v_st(e, 112)])
        l += ["s_waitcnt vmcnt(0)", "s_barrier", f"s_and_b32 s{S_NEED}, s{S_NEED}, 0xfffffc00", f"s_add_u32 s{S_NEED}, s{S_NEED}, {16 << 5}",
              f"v_mov_b32 v{V_FVAL}, s{S_NEED}", f"s_add_u32 s{S_NEED}, s{S_NEED}, 1", f"s_mov_b32 s{S_FOFF}, 32"] + fin(flag_post()) + ["s_branch L_pollvec0", "L_nomix:"]
    l += poll_test() + [
            f"s_cbranch_scc1 L_pollvec{site}",
            f"s_branch L_pollok{site}",
            f"L_pollgiveup{site}:",
            f"s_mov_b32 s{S_BUDGET}, 0",
            f"s_branch L_pollok{site}"]
    return l
def tag_load():
    return [VM("tag", f"buffer_load_dword v{V_FVAL}, off, s[{S_DBG}:{S_DBG+3}], s{S_HOFF} sc1")]
def tag_check():
    return [f"s_cmp_lg_u32 s{S_WAVE}, 0", "s_cbranch_scc1 L_tagdone",
            f"v_readfirstlane_b32 s{S_TAG}, v{V_FVAL}", f"s_mov_b32 s{S_RET}, 100",
            "s_waitcnt lgkmcnt(0)", f"s_and_b32 s{S_OWN}, s{S_OWN}, 0xfffffc00",
            "L_tagretry:", f"s_cmp_eq_u32 s{S_TAG}, s{S_OWN}", f"s_cselect_b32 s{S_TAG}, 0, s{S_TAG}", f"s_cmp_lg_u32 s{S_TAG}, 0", "s_cbranch_scc1 L_tagok",
            f"s_sub_u32 s{S_RET}, s{S_RET}, 1", "s_cbranch_scc1 L_tagslow", "s_sleep 4",
            f"s_buffer_load_dword s{S_TAG}, s[{S_DBG}:{S_DBG+3}], s{S_HOFF} glc", "s_waitcnt lgkmcnt(0)", "s_branch L_tagretry",
            "L_tagok:", f"s_add_u32 s{S_TAG}, s{S_TAG}, s{S_XCC}", f"v_mov_b32 v{V_FVAL}, s{S_TAG}", f"v_mov_b32 v{V_T}, {RING}", DS("w", f"ds_write_b32 v{V_T}, v{V_FVAL}"), "L_tagdone:"]
def tag_get():
    return [f"v_mov_b32 v{V_T}, {RING}", DS("tg", f"ds_read_b32 v{V_T+1}, v{V_T}")]
def tag_use():
    return [f"v_readfirstlane_b32 s{S_NEED}, v{V_T+1}", f"s_add_u32 s{S_NEED}, s{S_NEED}, 1"]
def tag_slow():
    return ["L_tagslow:",
            f"s_sub_u32 s{S_BUDGET}, s{S_BUDGET}, 1",
            "s_cbranch_scc1 L_taggiveup",
            "s_sleep 2",
            f"buffer_load_dword v{V_FVAL}, off, s[{S_DBG}:{S_DBG+3}], s{S_HOFF} sc1",
            "s_waitcnt vmcnt(0)",
            f"v_readfirstlane_b32 s{S_TAG}, v{V_FVAL}", "s_nop 0", f"s_cmp_eq_u32 s{S_TAG}, s{S_OWN}", "s_cbranch_scc1 L_tagslow",
            f"s_cmp_eq_u32 s{S_TAG}, 0", "s_cbranch_scc1 L_tagslow",
            "s_branch L_tagok",
            "L_taggiveup:",
            f"s_mov_b32 s{S_BUDGET}, 0",
            "s_branch L_tagok"]

def text_of(x):
    return "s_waitcnt" if isinstance(x, (W, LG)) else (x.text if isinstance(x, (VM, DS)) else x)
def kind_of(x):
    t = text_of(x)
    if t.endswith(":"): return "label"
    if t.startswith("v_"): return "valu"
    if t.startswith("ds_"): return "ds"
    if t.startswith("buffer_store"): return "store"
    if t.startswith("buffer_"): return "load"
    return "salu"
def cost_of(x):
    k = kind_of(x); t = text_of(x)
    if k == "label": return 0
    if k == "store": return 20 if "x4" in t else (OPT["x2c"] if "x2" in t else 16 if "x3" in t else 8)
    if k == "load": return OPT["ldc"]
    if t.startswith("ds_write"): return 16 if ("b128" in t or "write2" in t) else 8
    if t.startswith(("v_exp", "v_rcp")): return 8
    if t.startswith("v_mfma"): return 32 if "x4_f32" in t else 8
    if t.startswith("s_nop"): return 4 * (int(t.split()[1]) + 1)
    if t.startswith("s_cbranch") or t.startswith("s_branch"): return 12
    if t.startswith("s_barrier"): return 8
    return 4
def gap_time(ops):
    t = 4; prev = None
    for o in ops:
        if o is None: continue
        k = kind_of(o)
        if k == "label": continue
        if k == "salu": t += cost_of(o)
        else: t = max(t, 8) + cost_of(o) + (8 if (k != "valu" and prev == "valu") else 0)
        prev = k
    return t

class Stream:
    def __init__(self, ops, first, last, maxper=99, dense=0):
        self.nb = {}; self.dl = []; l = []
        for o in ops:
            if isinstance(o, tuple):
                if o[0] == "nb": self.nb[len(l)] = o[1]
                else: self.dl.append((len(l), o[1]))
            else: l.append(o)
        ops = l
        self.ops = list(ops); self.first = first; self.last = last; self.maxper = maxper; self.dense = dense
        self.total = sum(cost_of(o) for o in self.ops); self.done = 0; self.i = 0
        self.gate = {}; self.i0 = 0

def pack(NG, A, B, C, T, streams, novm=(), nosalu=(), vmgap=4):
    out = []; over = 0; lastvm = -99
    for g in range(NG):
        a, b, c, tl = list(A[g]), list(B[g]), list(C[g]), list(T[g])
        cnt = {}; inC = set(); blocked = set()
        while True:
            best = None; bl = None; bsec = None
            for st in streams:
                if st.i >= len(st.ops) or g < st.first: continue
                if g < st.nb.get(st.i, 0): continue
                force = g >= st.last or any(st.i < n and g >= dg for n, dg in st.dl)
                if (cnt.get(id(st), 0) >= st.maxper or id(st) in blocked) and not force: continue
                o = st.ops[st.i]; k = kind_of(o); cst = cost_of(o)
                if k == "salu" and g in nosalu:
                    assert not force, (g, text_of(o))
                    continue
                if k in ("load", "store") and (g in novm or g - lastvm < vmgap) and not force: continue
                if k in ("load", "store", "ds"):
                    sec = "b" if id(st) not in inC and id(st) not in blocked else "c"
                    if sec == "c" and not force: continue
                elif k == "salu" and not a and cnt.get(id(st), 0) == 0:
                    sec = "a"
                else: sec = "c"
                tgt = st.total * (g - st.first + 1) / (st.last - st.first + 1)
                lag = tgt - st.done
                if not force:
                    if lag < cst / 2 - OPT["ahead"] and cst: continue
                    trial = (a + [o] if sec == "a" else a) + (b + [o] if sec == "b" else b) + (c + [o] if sec == "c" else c) + tl
                    gt = gap_time(trial)
                    if gt > 16:
                        if g % 2 == 0: continue
                        big = k == "store" or text_of(o).startswith(("ds_write_b128", "ds_write2"))
                        lim = max(20, st.dense) if lag > 24 else 16
                        if big and not (a + b + c + tl): lim = 32
                        if gt > lim: continue
                key = (force, k in ("load", "store"), lag / max(1, (st.last - g + 1)) ** 0.5)
                if best is None or key > bl: best = st; bl = key; bsec = sec
            if best is None: break
            o = best.ops[best.i]
            if bsec == "a": a.append(o)
            elif bsec == "b":
                b.append(o)
            else: c.append(o)
            if bsec == "c" or bsec == "b" and kind_of(o) != "ds" and False: inC.add(id(best))
            if bsec == "c": inC.add(id(best))
            if " m0," in text_of(o): blocked.add(id(best))
            if kind_of(o) in ("load", "store"): lastvm = g
            best.i += 1; best.done += cost_of(o); cnt[id(best)] = cnt.get(id(best), 0) + 1
        ops = a + b + c + tl
        tt = gap_time(ops)
        if tt > 16: over += tt - 16
        out.append(ops)
    for st in streams: assert st.i == len(st.ops)
    return out, over

def pack_dense(NG, A, B, C, T, streams, novm=(), nosalu=(), vmgap=2):
    jobs = []
    for st in streams:
        r = st.first; rel = []
        for i in range(len(st.ops)):
            r = max(r, st.nb.get(i, 0)); rel.append(r)
        for i, o in enumerate(st.ops):
            d = min([st.last] + [dg for n, dg in st.dl if i < n])
            k = kind_of(o)
            jobs.append([rel[i], d, cost_of(o) + (OPT["dx"] if k in ("store", "load") else 0) - (2 if k == "salu" else 0)])
    for g in range(NG): jobs.append([g, g, max(0, gap_time(A[g] + B[g] + C[g] + T[g]) - 8)])
    level = [None] * NG
    while jobs:
        free = [g for g in range(NG) if level[g] is None]
        pts_r = sorted({j[0] for j in jobs}); pts_d = sorted({j[1] for j in jobs})
        best = None
        for a_ in pts_r:
            ws = sorted((j[1], j[2]) for j in jobs if j[0] >= a_)
            w = 0; i = 0
            for b_ in pts_d:
                if b_ < a_: continue
                while i < len(ws) and ws[i][0] <= b_: w += ws[i][1]; i += 1
                n = sum(1 for g in free if a_ <= g <= b_)
                if n and (best is None or w / n > best[0]): best = (w / n, a_, b_)
        dn, a_, b_ = best
        if dn <= 8: break
        for g in free:
            if a_ <= g <= b_: level[g] = dn
        jobs = [j for j in jobs if not (j[0] >= a_ and j[1] <= b_)]
    extra = [2 * (level[g] - 8) if (level[g] is not None and g % 2) else 0 for g in range(NG)]
    return pack_dense1(NG, A, B, C, T, streams, novm, nosalu, vmgap, extra)
def pack_dense1(NG, A, B, C, T, streams, novm, nosalu, vmgap, extra):
    out = []; over = 0; lastvm = -99
    fixed = [gap_time(A[g] + B[g] + C[g] + T[g]) - (8 if not (B[g] + C[g] + T[g]) else 8) for g in range(NG)]
    for g in range(NG):
        a, b, c, tl = list(A[g]), list(B[g]), list(C[g]), list(T[g])
        carry = (carry if g else 0) + extra[g]
        bud = 16 + (carry if g % 2 else 0)
        blocked = set(); inC = set()
        for st in streams: st.i0 = st.i
        while True:
            best = None; bl = None
            cur = gap_time(a + b + c + tl)
            for st in streams:
                if st.i >= len(st.ops) or g < st.first or g < st.nb.get(st.i, 0): continue
                if st.i in st.gate:
                    o_, j_ = st.gate[st.i]
                    if (o_.i0 if (kind_of(st.ops[st.i]) == "store" and g < NG - 1) else o_.i) <= j_: continue
                    if o_.i0 <= j_: inC.add(id(st))
                force = g >= st.last or any(st.i < n and g >= dg for n, dg in st.dl)
                if id(st) in blocked and not force: continue
                o = st.ops[st.i]; k = kind_of(o)
                if k == "salu" and g in nosalu:
                    assert not force
                    continue
                mem = k in ("load", "store", "ds")
                if k in ("load", "store") and (g in novm or g - lastvm < vmgap) and not force: continue
                sec = "b" if (mem and id(st) not in inC) else ("a" if (k == "salu" and not a and id(st) not in inC and id(st) not in blocked and not any(x is st for x in ())) else "c")
                if sec == "a" and any(id(st) == y for y in inC): sec = "c"
                if mem and sec == "c" and not force: continue
                trial = gap_time((a + [o] if sec == "a" else a) + (b + [o] if sec == "b" else b) + (c + [o] if sec == "c" else c) + tl)
                if not force and trial > bud and not (cur < 16 and trial <= bud + 12 and g % 2): continue
                tgt = st.total * (g - st.first + 1) / (st.last - st.first + 1)
                n_, dd = min([(len(st.ops), st.last)] + [(n, dg) for n, dg in st.dl if st.i < n], key=lambda x: x[1])
                need = sum(cost_of(x) for x in st.ops[st.i:n_]) / max(1, dd - g + 1)
                key = (force, mem, need)
                if best is None or key > bl: best = st; bl = key; bsec = sec
            if best is None: break
            o = best.ops[best.i]
            {"a": a, "b": b, "c": c}[bsec].append(o)
            if bsec == "c" or (bsec == "b"):
                if bsec == "c": inC.add(id(best))
                else: usedb = True
            if bsec in ("a", "b"): best._g = g
            if " m0," in text_of(o): blocked.add(id(best))
            if kind_of(o) in ("load", "store"): lastvm = g
            best.i += 1; best.done += cost_of(o)
            if bsec == "b" and not a: a.append(None)
        a = [x for x in a if x is not None]
        ops = a + b + c + tl
        tt = gap_time(ops)
        carry = max(0, carry - max(0, tt - 16)) if extra[g] or g % 2 == 0 else 0
        if tt > 16: over += tt - 16
        out.append(ops)
    for st in streams: assert st.i == len(st.ops)
    return out, over

POLLSITES = []
def gen_seg(name, groups, nxt, sm=(), bars=(), tasks=(), dma=(), extra=(), endops=(), fixed=(), peel=True, vmgap=None):
    starts = []; n = 0
    for g in groups: starts.append(n); n += len(g.mf)
    NG = n
    A = [[] for _ in range(NG)]; B = [[] for _ in range(NG)]; C = [[] for _ in range(NG)]; T = [[] for _ in range(NG)]
    streams = []; novm = set(range(0, NG, 2)); nosalu = set()
    allg = list(groups) + list(nxt)
    assert len(groups) % 3 == 0
    for i, g in enumerate(groups):
        g0 = starts[i]; ln = len(g.mf)
        if i + 2 < len(allg):
            t = allg[i + 2]
            if not (OPT["ab"] & 4 and name.startswith("k") and i % 2): B[g0].append(rd_op(i + 2, 0, t)); B[g0 + ln // 2].append(rd_op(i + 2, 1, t))
            if t.reb:
                assert g0 > 0
                C[g0 - 1] += t.reb
        if i + 1 < len(allg):
            A[g0 + ln - 1].append(LG(("fr", (2 * i + 2) % NFS), ("fr", (2 * i + 3) % NFS)))
    for ops, f, l in sm: streams.append(Stream(ops, f, l))
    streams += list(extra)
    if endops:
        A[NG-4] += endops[:1]; A[NG-2] += [A[NG-1][0]] + list(endops[1:-1]); A[NG-1] = []; T[NG-1] = list(endops[-1:]); nosalu |= {NG-2, NG-1}
    for grp in dma:
        dl = []
        for part, pos in grp[:-2]: dl += dma_tile(part, pos, peel)
        k = max(i for i, x in enumerate(dl) if isinstance(x, VM)) + 1
        lim = NG - 3 if endops else NG - 1
        if grp[-1] + 1 > lim: k = len(dl)
        streams.append(Stream(dl[:k], grp[-2], grp[-1], maxper=2))
        if dl[k:]: streams.append(Stream(dl[k:], grp[-1] + 1, min(lim, grp[-1] + 12), maxper=2))
    bars = [(g, list(tg)) for g, tg in bars]
    for t in tasks:
        k_ = t[0]
        if k_ == "vst" and t[1] >= NVE: continue
        if k_ == "cv":
            _, cv, h, buf, rs, outb = HT[t[1]]
            ops = cv(h, buf, rs, outb)[t[2]:t[3]]
            if t[2] == 0: ops = [W(t[1])] + ops
            streams.append(Stream(ops, t[4], t[5]))
        elif k_ in ("kst", "vst"):
            grp = k_st(t[1], BX) if k_ == "kst" else v_st(t[1], BZ)
            g = t[2]; assert g % 2 == 1 and not B[g] and not A[g], (name, g)
            B[g].append(grp[-1]); novm |= set(range(g - OPT["sb"], g + OPT["sa"] + 1))
            if grp[:-1]: streams.append(Stream(grp[:-1], max(0, g - 5), g - 1))
        elif k_ in ("ld", "ldn"):
            ld, _, h, buf, rs, _o = HT[t[1]]
            adv = {"ka": k_adv(), "va": v_adv()}.get(t[1], []) if k_ == "ld" else []
            ops = ld(h, buf, rs, t[1])
            if len(t) > 4: ops = ops[2:] if t[4] == "raw" else ops[:2]
            streams.append(Stream(adv + ops, t[2], t[3], maxper=1))
        elif k_ == "post":
            bi = t[2] if len(t) > 2 else -1
            bars[bi][1].append(t[1])
            streams.append(Stream(flag_post(), bars[bi][0] + 1, min(NG - 3, bars[bi][0] + 14), maxper=1))
        elif k_ == "pf":
            streams.append(Stream([VM("pf", f"buffer_load_dword v{V_T4}, v{V_DMA}, s[{S_DBG}:{S_DBG+3}], s{S_HOFF} offen")], t[1], t[2]))
        elif k_ == "rld":
            streams.append(Stream([VM("rs", f"buffer_load_dwordx4 v[{V_T4}:{V_T4+3}], v{V_DMA}, s[{S_WS}:{S_WS+3}], s{S_RC} offen sc1")], t[1], t[2]))
        elif k_ == "rst":
            g = t[1]; assert g % 2 == 1 and not B[g] and not A[g] and not A[g - 1], (name, g)
            A[g - 1].append(W("rs")); B[g].append(VM("rs2", f"buffer_store_dwordx4 v[{V_T4}:{V_T4+3}], v{V_DMA}, s[{S_WS}:{S_WS+3}], s{S_RC} offen sc1"))
            novm |= set(range(g - OPT["sb"], g + OPT["sa"] + 1))
            streams.append(Stream([f"s_add_u32 s{S_RC}, s{S_RC}, s{S_RD}", f"s_sub_u32 s{S_RD}, 1024, s{S_RD}"], g + 1, g + 8, maxper=1))
        elif k_ == "pollld": streams.append(Stream(poll_load(), t[1], t[2], maxper=1))
        elif k_ == "pollchk":
            ps = len(POLLSITES); POLLSITES.append(ps)
            g = t[1]; assert g % 4 == 1
            pt = poll_test()
            A[g] += [W("poll")]; T[g] += pt[:2]; novm |= {g, g + 4}
            A[g + 3] += [pt[3]]; A[g + 4] += [f"s_cbranch_scc1 L_pollslow{ps}", f"L_pollok{ps}:"]; nosalu |= {g + 3, g + 4}
            A[g + 5] += [f"s_add_u32 s{S_NEED}, s{S_NEED}, 1"]
        elif k_ == "spollld": A[t[1]] += smem_flags()
        elif k_ == "spollchk":
            ps = len(POLLSITES); POLLSITES.append(ps)
            A[t[1]] += ["s_waitcnt lgkmcnt(0)"]
            streams.append(Stream(smem_reduce(), t[1] + 1, t[2] - 1, maxper=3))
            A[t[2]] += [f"s_cmp_ge_u32 s{S_PT}, 16", f"s_cbranch_scc1 L_pollslow{ps}", f"L_pollok{ps}:", f"s_add_u32 s{S_NEED}, s{S_NEED}, 1"]
        elif k_ == "step": streams.append(Stream(rd_step(t[1]), t[2], t[3], maxper=1))
        elif k_ == "q": streams.append(Stream(q_dma(t[1]), t[2], t[3], maxper=2))
        else: raise Exception(k_)
    for g, tags in bars:
        i = [j for j in range(len(groups)) if starts[j] + len(groups[j].mf) - 1 == g]
        assert i, (name, g)
        if len(groups[i[0]].mf) == 8:
            A[g - 2] += A[g]; A[g] = []
            if tags: A[g - 1] += [W(*tags)]
        elif tags: A[g - 2] += [W(*tags)]
        A[g] += ["s_barrier"]; novm |= {g}
    for g, sec, ops in fixed: {"A": A, "B": B, "C": C, "T": T}[sec][g] += ops
    if endops:
        for st_ in streams: st_.last = min(st_.last, NG - 2)
    m0w = sorted((st.first, st.last) for st in streams if any(" m0," in text_of(o) for o in st.ops))
    assert all(m0w[i][1] < m0w[i + 1][0] for i in range(len(m0w) - 1)), (name, m0w)
    if name in str(OPT["dense"]).split(","): fill, over = pack_dense(NG, A, B, C, T, streams, novm, nosalu, vmgap or OPT["dvg"])
    else: fill, over = pack(NG, A, B, C, T, streams, novm, nosalu, vmgap or OPT["vmgap"])
    if over: print(f"seg {name}: over budget by {over} cycles", file=sys.stderr)
    out = istamp(name)
    g = 0
    for i, gr in enumerate(groups):
        for j, d, b, c in gr.mf:
            if (OPT["pvs"] & 1 and d[0] in "a ") or (OPT["pvs"] & 2 and d.startswith("v")): out.append(f"{MF} {d}, {b}, {FR(2*i+j)}, {c}")
            else: out.append(f"{MF} {d}, {FR(2*i+j)}, {b}, {c}")
            out += fill[g]; g += 1
    return with_nop(out)

GBAR = 79
def seg_groups(it):
    return qk_full(it + 1) if it % 2 else pv_seq(it - 2)
def gen_iter(it, tasks=(), dma=(), name=None, endops=(), peel=False, nxt=None, extra=(), bars=None, groups=None, sm=None, step=True):
    q = it % 2
    smB = softmax_part(it, 1); smA = softmax_part(it + 1, 0)
    if sm is None: sm = ([(smB + [("dl", 57), ("nb", 47)] + smA, 0, 95)] if OPT["flex"] else [(smB, 0, 50), (smA, 52, 95)]) if q else [(smB + smA, 0, 95)]
    need = [("dv", (it - 1) % 8), ("dv", it % 8)] if q else [("dk", (it + 2) % 8), ("dk", (it + 3) % 8)]
    tasks = list(tasks) + ([("step", "p" if q else "q", 30, GBAR - 3)] if step else [])
    return gen_seg(name or f"i{it}", groups or seg_groups(it), nxt if nxt is not None else seg_groups(it + 1)[:2], sm,
                   bars if bars is not None else [(GBAR, need)], tasks, dma, extra, endops, peel=peel)

K_ = lambda *j: tuple(("k", x) for x in j)
V_ = lambda *j: tuple(("v", x) for x in j)
def steady(k):
    ckv, ckk = OPT["ckv"], OPT["ckk"]
    plv, plk = OPT["plv"], OPT["plk"]
    if OPT["bal"]:
        c = [int(x) for x in str(OPT["cut"]).split(",")]
        a1, a2, b1, b2, v1, v2, w1 = c
        return {
            5: ([("cv", "ka", 0, a1, 0, 95), ("pollchk", 1), ("vst", 0, 9), ("vst", 1, 17), ("vst", 2, 25), ("vst", 3, 33), ("post", "vst")], [K_(0, 1) + (41, 74)]) if ckk == 1 else
               ([("cv", "ka", 0, a1, 0, 95), ("pollchk", ckk), ("vst", 0, 1), ("vst", 1, 9), ("vst", 2, 17), ("vst", 3, 25), ("post", "vst")], [K_(0, 1) + (ckk + 7, 92)]),
            6: ([("cv", "ka", a1, a2, 0, 95), ("ld", "kb", 0, 44)] + [("rld", 70, 92)] * OPT["rs"], [K_(2, 3) + (0, 90)]),
            7: ([("cv", "ka", a2, 99, 0, 60), ("cv", "kb", 0, b1, 61, 95), ("ld", "va", 11, 70), ("pollld", plv, plv + 8)], [K_(4, 5) + (11, 92)]),
            0: ([("cv", "kb", b1, b2, 0, 95), ("pollchk", ckv)] + [("rst", 81)] * OPT["rs"], [V_(0, 1) + (ckv + 7, 74)]),
            1: ([("cv", "kb", b2, 99, 0, 30), ("cv", "va", 0, v1, 31, 95), ("ld", "vb", 32, 80)], [V_(2, 3) + (0, GBAR - 5)]),
            2: ([("cv", "va", v1, v2, 0, 95), ("kst", 0, 1), ("kst", 1, 9), ("kst", 2, 17), ("kst", 3, 25), ("post", "kst")], [K_(6, 7) + (33, 74)]),
            3: ([("cv", "va", v2, 99, 0, 50), ("cv", "vb", 0, w1, 51, 95), ("ld", "ka", 0, 44)], [V_(4, 5) + (0, 90)]),
            4: ([("cv", "vb", w1, 99, 0, 95), ("pollld", plk, plk + 16)] + ([("pf", 80, 92)] if OPT["pf2"] else []), [V_(6, 7) + (0, GBAR - 5)]),
        }[k]
    return {
        1: ([("cv", "va", 0, 22, 0, 95), ("ld", "vb", 0, 44)], [V_(2, 3) + (0, GBAR - 5)]),
        2: ([("cv", "va", 22, 99, 0, 95), ("kst", 0, 1), ("kst", 1, 9), ("kst", 2, 17), ("kst", 3, 25), ("post", "kst")], [K_(6, 7) + (33, 74)]),
        3: ([("cv", "vb", 0, 22, 0, 95), ("ld", "ka", 0, 44)], [V_(4, 5) + (0, GBAR - 5)]),
        4: ([("cv", "vb", 22, 99, 0, 95), ("pollld", plk, plk + 16)] + ([("pf", 80, 92)] if OPT["pf2"] else []), [V_(6, 7) + (0, GBAR - 5)]),
        5: ([("cv", "ka", 0, 16, 0, 95), ("pollchk", 1), ("vst", 0, 9), ("vst", 1, 17), ("vst", 2, 25), ("vst", 3, 33), ("post", "vst")], [K_(0, 1) + (41, 74)]),
        6: ([("cv", "ka", 16, 99, 0, 95), ("ld", "kb", 0, 30)], [K_(2, 3) + (31, 74)]),
        7: ([("cv", "kb", 0, 24, 40, 95), ("ld", "va", 11, 40), ("pollld", plv, plv + 8)], [K_(4, 5) + (41, 90)]),
        0: ([("cv", "kb", 24, 99, 0, 95), ("pollchk", ckv)], [V_(0, 1) + (ckv + 7, ckv + 44)]),
    }[k]

GA = V_RS[0]; TA = V_RS[0] + 1; BA = V_RS[0] + 2
RL = [V_CT, V_CT + 4, NEGM(0), NEGM(1)]
S_EO = 24
def epi_addr():
    return [f"v_bfe_u32 v{TA}, v{V_DMA}, 8, 2", f"v_mul_u32_u24 v{GA}, 1536, v{TA}", f"v_lshlrev_b32 v{BA}, 4, v{TA}",
            f"v_bfe_u32 v{TA}, v{V_DMA}, 4, 4", f"v_mul_u32_u24 v{TA}, {12 if V64 else 8}, v{TA}", f"v_add_u32 v{GA}, v{GA}, v{TA}", f"v_mov_b32 v{TA}, 1.0"] + [f"v_mov_b32 v{ONES+i}, 0x3f803f80" for i in range(4 * OPT["lmf"])] + [
            f"s_lshl_b32 s{S_EO}, s{S_QB}, 2", f"s_add_u32 s{S_EO}, s{S_EO}, s{S_WAVE}", f"s_mul_i32 s{S_EO}, s{S_EO}, {STAGE}",
            f"s_add_u32 s{S_QL}, s{S_EO}, 6144", f"s_add_u32 s{S_QS}, s{S_EO}, 12288", f"s_add_u32 s{S_TAG}, s{S_EO}, 18432"]
S_EQ = [S_EO, S_QL, S_QS, S_TAG]
def epi_l(qs, gap=("s_nop 7", "s_nop 1"), acc=False):
    fl = [f"v_mfma_f32_16x16x4_f32 v[{RL[q]}:{RL[q]+3}], v{V_L[q]}, v{TA}, " + (f"v[{RL[q]}:{RL[q]+3}]" if acc else "0") for q in qs] + list(gap)
    return fl + [f"v_rcp_f32 v{RL[q]+r}, v{RL[q]+r}" for q in qs for r in range(4)]
class Epi:
    def __init__(self, temps): self.temps = temps; self.n = 0; self.pend = []
    def flush(self, k=99):
        p = self.pend[:k]; self.pend = self.pend[k:]
        return p
    def chunk(self, qb, n, pk=False, inv=False):
        p = []
        if V64:
            for r in range(4):
                o = self.temps[self.n % len(self.temps)]; self.n += 1; rl = RL[qb] + r
                p += [f"v_accvgpr_read_b32 v{o+e}, a{O(qb,6*n+e)+r}" for e in range(6)]
                if pk: p += [f"v_pk_mul_f32 v[{o+2*i}:{o+2*i+1}], v[{o+2*i}:{o+2*i+1}], v[{rl&~1}:{(rl&~1)+1}] " + ("op_sel:[0,1] op_sel_hi:[1,1]" if rl & 1 else "op_sel_hi:[1,0]") for i in range(3)]
                else: p += [f"v_mul_f32 v{o+e}, v{o+e}, v{rl}" for e in range(6)]
                p += [f"v_cvt_pk_bf16_f32 v{o+i}, v{o+2*i}, v{o+2*i+1}" for i in range(3)] + self.flush(1)
                self.pend.append(VM("out", f"buffer_store_dwordx3 v[{o}:{o+2}], v{GA}, s[{S_OUT}:{S_OUT+3}], s{S_EQ[qb]} offen offset:{n*192 + r*384}{OF}"))
            return p
        ob = self.temps[self.n % len(self.temps)]; self.n += 1
        for r in range(4):
            o = ob + 4 * r
            if inv:
                p += [f"v_mul_f32 v{o+e}, v{OV(qb,3*e+n)+r}, v{RL[qb]+r}" for e in range(4)]
                p += [f"v_cvt_pk_bf16_f32 v{o+i}, v{o+2*i}, v{o+2*i+1}" for i in range(2)] + self.flush(1)
                self.pend.append(VM("out", f"buffer_store_dwordx2 v[{o}:{o+1}], v{GA}, s[{S_OUT}:{S_OUT+3}], s{S_EQ[qb]} offen offset:{n*128 + r*384}{OF}"))
                continue
            p += [f"v_accvgpr_read_b32 v{o+e}, a{O(qb,3*e+n)+r}" for e in range(4)]
            rl = RL[qb] + r
            if pk: p += [f"v_pk_mul_f32 v[{o+2*i}:{o+2*i+1}], v[{o+2*i}:{o+2*i+1}], v[{rl&~1}:{(rl&~1)+1}] " + ("op_sel:[0,1] op_sel_hi:[1,1]" if rl & 1 else "op_sel_hi:[1,0]") for i in range(2)]
            else: p += [f"v_mul_f32 v{o+e}, v{o+e}, v{rl}" for e in range(4)]
            p += [f"v_cvt_pk_bf16_f32 v{o+i}, v{o+2*i}, v{o+2*i+1}" for i in range(2)]
            p += self.flush(1)
            self.pend.append(VM("out", f"buffer_store_dwordx2 v[{o}:{o+1}], v{GA}, s[{S_OUT}:{S_OUT+3}], s{S_EQ[qb]} offen offset:{n*128 + r*384}{OF}"))
        return p

def gen_tail():
    sp = softmax_part
    g57 = qk_half(58) + rebase(qk_half(59), V_RDK, A0 - A2)
    g58 = pv_seq(56)
    g59 = rebase(qk_half(60), V_RDK, A1 - A0) + rebase(qk_half(61), V_RDK, A2 - A1)
    g60 = rebase(pv_seq(58), [V_RD], B2 - B1) + rebase(pv_seq(59), [V_RD], B0 - B2)
    g61 = rebase(pv_seq(60), [V_RD], B1 - B0) + rebase(qk_half(62), V_RDK, A0 - A2)
    g62 = rebase(qk_half(63), V_RDK, A1 - A0) + ([] if OPT["f3"] else rebase(pv_seq(61), [V_RD], B2 - B1))
    g63 = []
    for dbs in ([chunk_dbs(0), [6, 7, 8], [9, 10, 11]] if V64 else [chunk_dbs(n) for n in range(3)]):
        if OPT["f3"]: g63 += [pv_grp(61, db, va=V_RD3) for db in dbs]
        g63 += [pv_grp(62, db) for db in dbs] + [pv_grp(63, db, va=V_RD2) for db in dbs]
    if OPT["f3"]: g63[0].reb += [f"v_add_u32 v{V_RD3}, {B2 - B1}, v{V_RD}", f"v_mov_b32 v{V_RD2}, v{V_RD}", f"v_subrev_u32 v{V_RD}, {B1 - B0}, v{V_RD}"]
    else: g63[0].reb += [f"v_subrev_u32 v{V_RD2}, {B2 - B1}, v{V_RD}", f"v_subrev_u32 v{V_RD}, {B2 - B0}, v{V_RD}"]
    first57 = g57[:2]
    p = []
    p += gen_seg("S57", g57, g58[:2], [(sp(57, 1) + [("dl", 50), ("nb", 28)] + sp(58, 0), 0, 95)], [(7, [("dk", 5)]), (GBAR, [("dv", 0), ("dv", 1)])],
                 [("step", "p", 30, GBAR - 3)], [(K_(62, 63) + (8, 60)) if OPT["tv"] else (K_(62, 63) + V_(58, 59) + (8, 90))], peel=False)
    p += gen_seg("S58", g58, g59[:2], [(sp(58, 1) + sp(59, 0), 0, 95), (epi_addr(), 0, 95)], [(GBAR, [("dk", 7)] if OPT["tv"] else [("dk", 7), ("dv", 3)])], [],
                 [(V_(58, 59, 60, 61) + (0, 74)) if OPT["tv"] else (V_(60, 61) + (0, 60))], peel=False)
    p += gen_seg("S59", g59, g60[:2], [(sp(59, 1) + [("dl", 50), ("nb", 28)] + sp(60, 0), 0, 95)], [(15, [("dv", 5)])], [], [V_(62, 63) + (16, 60)], peel=False)
    p += gen_seg("S60", g60, g61[:2], [(sp(60, 1) + sp(61, 0), 0, 95)], [(GBAR, [("dv", 7)])])
    ep = Epi([BX + 6 * i for i in range(5)] if V64 else [BX] if OPT["omv"] else [BX, BY])
    e01 = [x for qb in (0, 1) for n in range(NCH) for x in ep.chunk(qb, n, OPT["pk"])] + ep.flush()
    chk = [f"v_max3_f32 v{V_T+2}, v{V_L[0]}, v{V_L[1]}, v{V_L[2]}", f"v_max_f32 v{V_T+2}, v{V_T+2}, v{V_L[3]}",
           f"s_mov_b32 s{S_TMP}, 0x{f32bits(2.0**OPT['thr']):08x}", f"v_cmp_lt_f32 s[{S_PT}:{S_PT+1}], s{S_TMP}, v{V_T+2}"]
    c = [ep.chunk(2, j, OPT["pk"]) + ep.chunk(3, j, OPT["pk"]) + ep.flush() for j in range(NCH - 1)] + [[]]
    sm = sp(61, 1) + epi_l((0, 1), [])[2:] + [("dl", 50), ("nb", 76)] + sp(62, 0) + [("nb", 98)] + sp(62, 1) + [("nb", 124)] + sp(63, 0) + [("nb", 148)] + sp(63, 1) + [("dl", 205)] + chk + [("nb", 214)] + epi_l((2, 3), [])[2:]
    ee = e01 + [("nb", 228)] + c[0] + [("nb", 260)] + c[1]
    lastsm = 220
    if OPT["f3"]:
        sm = sp(61, 1) + epi_l((0, 1), [])[2:] + [("dl", 50), ("nb", 76)] + sp(62, 0) + [("nb", 98)] + sp(62, 1) + [("dl", 157), ("nb", 124)] + sp(63, 0) + [("nb", 148)] + sp(63, 1) + [("dl", 173)] + chk + [("nb", 182)] + epi_l((2, 3), [])[2:]
        ee = e01 + [("dl", OPT["ed"]), ("nb", 196)] + c[0] + [("dl", OPT["ed1"]), ("nb", 244)] + c[1]
        lastsm = 190
        if V64:
            lm = OPT["lmf"]
            sm = sp(61, 1, lm) + epi_l((0, 1), [])[2:] + [("dl", 50), ("nb", 76)] + sp(62, 0, lm) + [("nb", 98)] + sp(62, 1, lm) + [("dl", 165), ("nb", 124)] + sp(63, 0, lm) + [("nb", 148)] + sp(63, 1, lm) + [("dl", 187 if lm else 189)]
            if lm:
                chk = [f"v_max3_f32 v{V_T+2}, v{V_L[0]}, v{V_L[1]}, v{RL[2]}"] + [f"v_max3_f32 v{V_T+2}, v{V_T+2}, v{a_}, v{a_+1}" for a_ in (RL[2] + 1, RL[2] + 3, RL[3] + 1)] + [f"v_max_f32 v{V_T+2}, v{V_T+2}, v{RL[3]+3}"] + chk[2:]
                sm += [("nb", 198)] + chk + epi_l((2, 3), [])[2:]
            else: sm += chk + [("nb", 198)] + epi_l((2, 3), [])[2:]
            ee = e01 + [("dl", OPT["ed"] + 20), ("nb", 220)] + c[0]
            lastsm = 206
    if OPT["sst"]:
        prod = []; ev = []
        for x in ee:
            if isinstance(x, VM): prod.append(x)
            else: ev.append(x)
        es = Stream(ev, 52, 286); ss = Stream(prod, 52, 287)
        cv = [i for i, x in enumerate(es.ops) if text_of(x).startswith("v_cvt_pk")][(2 if V64 else 1)::(3 if V64 else 2)]
        rd = [i for i, x in enumerate(es.ops) if text_of(x).startswith("v_accvgpr_read")][0::(6 if V64 else 4)]
        assert len(cv) == len(prod) == len(rd)
        for k in range(len(prod)):
            ss.gate[k] = (es, cv[k]); ss.nb[k] = max([0] + [gp for i, gp in es.nb.items() if i <= cv[k]])
            kk = k + (1 if V64 else 4) * len(ep.temps)
            if kk < len(prod): es.gate[rd[kk]] = (ss, k)
        xs = [es, ss]
        LT = [96, 102, 108, 114, 120, 64, 70, 144]
        if V64: xs.append(Stream([x for q in (2, 3) for r in range(4) for x in [f"v_accvgpr_read_b32 v{LT[4*(q-2)+r]+e}, a{O(q,6+e)+r}" for e in range(3)] +
                                  [f"v_mul_f32 v{LT[4*(q-2)+r]+e}, v{LT[4*(q-2)+r]+e}, v{RL[q]+r}" for e in range(3)]], 256, 287))
        if OPT["omv"]: xs.append(Stream([f"v_accvgpr_read_b32 v{OV(q, db)+r}, a{O(q, db)+r}" for q in (2, 3) for db in (2, 5, 8, 11) for r in range(4)], 0, 140))
    else: xs = [Stream(ee, 52, 287)]
    p += gen_seg("S61", g61 + g62 + g63, [], [(sm, 0, lastsm)], extra=xs,
                 fixed=[(1, "T", epi_l((0, 1))[:1]), (3, "T", epi_l((0, 1))[1:2]), (lastsm - 15, "T", epi_l((2, 3), acc=V64 and OPT["lmf"])[:1]), (lastsm - 13, "T", epi_l((2, 3), acc=V64 and OPT["lmf"])[1:2]), (lastsm + 5, "A", [f"s_cmp_lg_u64 s[{S_PT}:{S_PT+1}], 0", "s_cbranch_scc1 L_slow"]), (95, "T", istamp("S62")), (191, "T", istamp("S63"))])
    p += istamp("fin") + ["s_nop 7"]
    if OPT["omv"]: ep.temps = [UNIT[0], UNIT[1]]
    if V64:
        for q in (2, 3):
            for r in range(4):
                o = LT[4 * (q - 2) + r]
                p += [f"v_accvgpr_read_b32 v{o+e}, a{O(q,6+e)+r}" for e in range(3, 6)] + [f"v_cvt_pk_bf16_f32 v{o}, v{o}, v{o+1}"]
                p += [f"v_mul_f32 v{o+e}, v{o+e}, v{RL[q]+r}" for e in range(3, 6)] + [f"v_cvt_pk_bf16_f32 v{o+i}, v{o+2*i}, v{o+2*i+1}" for i in (1, 2)]
                p += [VM("out", f"buffer_store_dwordx3 v[{o}:{o+2}], v{GA}, s[{S_OUT}:{S_OUT+3}], s{S_EQ[q]} offen offset:{192 + r*384}{OF}")]
        return first57, p
    p += ep.chunk(2, NCH - 1, True, OPT["omv"]) + ep.flush() + ep.chunk(3, NCH - 1, True, OPT["omv"]) + ep.flush()
    return first57, p
def slow_epi():
    ep = Epi([64 + 6 * i for i in range(8)] if V64 else [64 + 16 * i for i in range(4)])
    seq = ["s_nop 1"] + epi_l((0, 1)) + epi_l((2, 3)) + ["s_nop 0"]
    for qb in range(4):
        for n in range(NCH): seq += ep.chunk(qb, n, True)
    return seq + ep.flush()

def kfrag(g):
    return 2 * (g >> 2) + (g & 1), (g >> 1) & 1
def gen_slow():
    KF = 64; VF = 112; SS = 160; PP = 224; M = [240, 241, 242, 243]; KA = [244, 245]; LA = 246; t = V_T
    p = ["L_slow:", "s_waitcnt vmcnt(0) lgkmcnt(0)", "s_nop 15"]
    for i in range(192): p.append(f"v_accvgpr_write_b32 a{i}, 0")
    for q in range(4): p += [f"v_mov_b32 v{V_L[q]}, 0", f"v_mov_b32 v{M[q]}, 0xff7fffff"]
    p += [f"v_subrev_u32 v{KA[0]}, {A1}, v{V_RDK[0]}", f"v_subrev_u32 v{KA[1]}, {A1}, v{V_RDK[1]}", f"v_subrev_u32 v{LA}, {B0}, v{V_RD}",
          f"s_mov_b32 s{S_PT}, 0", "L_slowloop:"]
    for i in range(1, 5): p.append(f"s_add_u32 s{S_PT+i}, s{S_PT}, {[0, 6144, 12288, 16384, 20480][i]}")
    for f in range(12):
        s, tb = kfrag(f)
        p.append(f"buffer_load_dwordx4 v[{KF+4*f}:{KF+4*f+3}], v{KA[s&1]}, s[{S_WS}:{S_WS+3}], s{S_PT+tb} offen offset:{(s>>1)*128} sc1")
    for db in range(12):
        p.append(f"buffer_load_dwordx4 v[{VF+4*db}:{VF+4*db+3}], v{LA}, s[{S_WS}:{S_WS+3}], s{S_PT+2+db//4} offen offset:{(db%4)*1024} sc1")
    p.append("s_waitcnt vmcnt(12)")
    for f in range(12):
        s, tb = kfrag(f)
        for qb in range(4):
            d = vr(SS + 8 * qb + 4 * tb, 4)
            p.append(f"{MF} {d}, v[{KF+4*f}:{KF+4*f+3}], {Qf(qb,s)}, {'0' if s == 0 else d}")
    p.append("s_nop 9")
    for qb in range(4):
        sb = SS + 8 * qb
        p += [f"v_max3_f32 v{t}, v{sb}, v{sb+1}, v{sb+2}", f"v_max3_f32 v{t}, v{t}, v{sb+3}, v{sb+4}",
              f"v_max3_f32 v{t}, v{t}, v{sb+5}, v{sb+6}", f"v_max3_f32 v{t}, v{t}, v{sb+7}, v{M[qb]}"]
        p += xlane("v_max_f32", t)
        p += [f"v_sub_f32 v{t+1}, v{M[qb]}, v{t}", f"v_exp_f32 v{t+1}, v{t+1}", f"v_mov_b32 v{M[qb]}, v{t}"]
        for i in range(8): p.append(f"v_sub_f32 v{sb+i}, v{sb+i}, v{t}")
        for i in range(8): p.append(f"v_exp_f32 v{sb+i}, v{sb+i}")
        p.append(f"v_mul_f32 v{V_L[qb]}, v{V_L[qb]}, v{t+1}")
        for i in range(8): p.append(f"v_add_f32 v{V_L[qb]}, v{V_L[qb]}, v{sb+i}")
        for i in range(4): p.append(f"v_cvt_pk_bf16_f32 v{PP+4*qb+i}, v{sb+2*i}, v{sb+2*i+1}")
        p += [f"ds_bpermute_b32 v{248+r}, v{BA}, v{t+1} offset:{4*r}" for r in range(4)] + ["s_waitcnt lgkmcnt(0)"]
        for i in range(48):
            a = O(qb, 0) + i; tt = t + 2 + (i % 2)
            p += [f"v_accvgpr_read_b32 v{tt}, a{a}", f"v_mul_f32 v{tt}, v{tt}, v{248+i%4}", f"v_accvgpr_write_b32 a{a}, v{tt}"]
    p += ["s_waitcnt vmcnt(0)", "s_nop 1"]
    for db in range(12):
        for qb in range(4):
            d = ar(O(qb, db), 4)
            p.append(f"{MF} {d}, v[{PP+4*qb}:{PP+4*qb+3}], v[{VF+4*db}:{VF+4*db+3}], {d}")
    p += [f"s_add_u32 s{S_PT}, s{S_PT}, {STAGE}", f"s_cmp_lt_u32 s{S_PT}, {HEADBYTES}", "s_nop 7", "s_cbranch_scc1 L_slowloop"]
    e = slow_epi(); resolve(e)
    return p + fin(e) + ["s_branch L_fin"]

def xlane(op, t, u=None):
    u = t + 1 if u is None else u
    l = []
    for sw in ("v_permlane16_swap_b32", "v_permlane32_swap_b32"):
        l += [f"v_mov_b32 v{u}, v{t}", "s_nop 1", f"{sw} v{t}, v{u}", "s_nop 1", f"{op} v{t}, v{t}, v{u}"]
    return l
def rowmax2(t, qs, tq):
    l = []
    ab = [(Sq(t, j, 0), Sq(t, j, 1)) for j in range(2)]
    l += [f"v_max3_f32 v{tq[j]}, v{a}, v{a+1}, v{a+2}" for j, (a, b) in enumerate(ab)]
    l += [f"v_max3_f32 v{tq[j]}, v{tq[j]}, v{a+3}, v{b}" for j, (a, b) in enumerate(ab)]
    l += [f"v_max3_f32 v{tq[j]}, v{tq[j]}, v{b+1}, v{b+2}" for j, (a, b) in enumerate(ab)]
    l += [f"v_max_f32 v{tq[j]}, v{tq[j]}, v{b+3}" for j, (a, b) in enumerate(ab)]
    for sw in ("v_permlane16_swap_b32", "v_permlane32_swap_b32"):
        l += [f"v_mov_b32 v{tq[j]+1}, v{tq[j]}" for j in range(2)] + ["s_nop 0"]
        l += [f"{sw} v{tq[j]}, v{tq[j]+1}" for j in range(2)] + ["s_nop 0"]
        l += [f"v_max_f32 v{tq[j]}, v{tq[j]}, v{tq[j]+1}" for j in range(2)]
    l += [f"v_sub_f32 v{NEGM(qs[j])+i}, 0, v{tq[j]}" for j in range(2) for i in range(4)]
    return l
def sm_one(t, sl):
    a, b = Sq(t, sl, 0), Sq(t, sl, 1); tq = V_CT; qb = slot_q(t, sl); rs = [r + i for r in (a, b) for i in range(4)]
    l = [f"v_max3_f32 v{tq}, v{a}, v{a+1}, v{a+2}", f"v_max3_f32 v{tq+2}, v{a+3}, v{b}, v{b+1}",
         f"v_max3_f32 v{tq}, v{tq}, v{b+2}, v{b+3}", f"v_max_f32 v{tq}, v{tq}, v{tq+2}"] + xlane("v_max_f32", tq)
    l += [f"v_sub_f32 v{r}, v{r}, v{tq}" for r in rs] + [f"v_exp_f32 v{r}, v{r}" for r in rs] + [f"v_sub_f32 v{NEGM(qb)+i}, 0, v{tq}" for i in range(4)]
    l += [f"v_add_f32 v{V_L[qb]}, v{V_L[qb]}, v{r}" for r in rs] + [f"v_cvt_pk_bf16_f32 v{a+i}, v{rs[2*i]}, v{rs[2*i+1]}" for i in range(4)]
    return l
def addneg(t, sl):
    n = NEGM(slot_q(t, sl))
    return [f"v_add_f32 v{Sq(t,sl,tb)+i}, v{Sq(t,sl,tb)+i}, v{n}" for tb in range(2) for i in range(4)]

def resolve(seq):
    vm = []; ds = []
    for x in seq:
        if isinstance(x, VM): vm.append(x.tag)
        elif isinstance(x, DS): ds.append(x.tag)
        elif isinstance(x, (W, LG)):
            q = vm if isinstance(x, W) else ds
            best = None
            for tag in x.tags:
                n = 0; found = False
                for t in reversed(q):
                    if t == tag: found = True; break
                    n += 1
                if found: best = n if best is None else min(best, n)
            if best is not None:
                x.n = best if getattr(x, "n", None) is None else min(x.n, best)
        else:
            assert not x.startswith(("ds_", "buffer_")) or "UNTRACKED" in x, x
def vm_size(x):
    t = x.text
    if t.startswith("buffer_store"): return 0
    if x.tag == "pre": return 3.0
    if " lds" in t: return 1.0
    if "dwordx4" in t or "dwordx3" in t: return 0.75
    if "dwordx2" in t and "offen" in t: return 0.375
    return 0.125
def pace(seq, cap):
    out = []; q = []; on = False
    for x in seq:
        if isinstance(x, W): q = q[len(q) - min(len(q), x.n):]; on = True
        elif isinstance(x, VM):
            sz = vm_size(x)
            if on and not x.text.startswith("buffer_store") and sum(q) + sz > cap:
                while q and sum(q) + sz > cap: q.pop(0)
                w = W(); w.n = len(q)
                if out and out[-1] == "s_nop 0": out.pop()
                out.append(w)
            q.append(sz)
        out.append(x)
    return out
def fin(seq):
    out = []
    for x in seq:
        if isinstance(x, (W, LG)):
            if OPT["ab"] and getattr(x, "n", None) is None: x.n = 63
            assert getattr(x, "n", None) is not None, x.tags
            out.append(f"s_waitcnt vmcnt({min(x.n, 63)})" if isinstance(x, W) else f"s_waitcnt lgkmcnt({min(x.n, 15)})")
        elif isinstance(x, (VM, DS)): out.append(x.text)
        else: out.append(x.replace(" ;UNTRACKED", ""))
    return out
def groups_of(l):
    out = [[]]
    for x in l:
        out[-1].append(x)
        if isinstance(x, VM): out.append([])
    tail = out.pop()
    if tail: out[-1] += tail
    return out
def sprinkle(code, l):
    gs = groups_of(l); out = []; n = len(code); m = len(gs); j = 0
    for i, x in enumerate(code):
        while j < m and i * m >= j * n: out += with_nop(gs[j]); j += 1
        out.append(x)
    for g in gs[j:]: out += with_nop(g)
    return out
def srd(p, s, lo, hi, off_s, size):
    p += [f"s_add_u32 s{s}, s{lo}, s{off_s}", f"s_addc_u32 s{s+1}, s{hi}, 0", f"s_mov_b32 s{s+2}, {size}", f"s_mov_b32 s{s+3}, 0x20000"]

def gen_main():
    p = []
    p += [f"{NAME}_kernel:", "s_cmp_ge_u32 s2, 256", "s_cbranch_scc1 L_done",
          "s_load_dwordx16 s[40:55], s[0:1], 0", "s_load_dwordx4 s[16:19], s[0:1], 64"]
    if OPT["stamp"]: p += ["s_memtime s[98:99]" if OPT["stamp"] == 6 else "s_memrealtime s[98:99]"]
    p += [f"s_and_b32 s{S_HEAD}, s2, 7", f"s_lshr_b32 s{S_QB}, s2, 3", f"s_lshr_b32 s24, s{S_QB}, 3", f"s_lshl_b32 s{S_HEAD}, s{S_HEAD}, 2",
          f"s_add_u32 s{S_HEAD}, s{S_HEAD}, s24", f"s_and_b32 s{S_QB}, s{S_QB}, 7"]
    p += ["s_getpc_b64 s[60:61]", "L_pc:", f"s_sub_u32 s60, s60, L_pc-{NAME}_kernel", "s_subb_u32 s61, s61, 0",
          f"s_mov_b32 s62, L_slow-{NAME}_kernel", "s_mov_b32 s63, 0x20000",
          "s_lshr_b32 s22, s2, 3", "s_lshl_b32 s22, s22, 12",
          "v_lshlrev_b32 v30, 4, v0",
          VM("pf", "buffer_load_dwordx4 v[128:131], v30, s[60:63], s22 offen" + (" nt" if OPT["pfnt"] else ""))]
    p += ["v_lshrrev_b32 v24, 6, v0",
          "v_and_b32 v25, 63, v0",
          f"v_readfirstlane_b32 s{S_WAVE}, v24",
          f"v_lshlrev_b32 v{V_RD}, 4, v25",
          "v_mul_u32_u24 v26, 43, v25", "v_lshrrev_b32 v26, 10, v26",
          "v_mul_u32_u24 v27, 24, v26",
          "v_sub_u32 v27, v25, v27",
          "v_lshrrev_b32 v28, 1, v24",
          "v_and_b32 v29, 1, v24",
          "v_lshlrev_b32 v30, 4, v29",
          "v_lshl_add_u32 v30, v28, 2, v30",
          "v_add_u32 v30, v30, v26",
          "v_mul_u32_u24 v30, 768, v30",
          "v_lshrrev_b32 v48, 1, v26", "v_lshlrev_b32 v48, 30, v48",
          "v_lshl_add_u32 v30, v27, 4, v30", f"v_or_b32 v{V_KLD}, v30, v48",
          f"v_lshl_or_b32 v{V_KSC}, v27, 3, v48",
          "v_mul_u32_u24 v30, 6144, v24",
          ] + (["v_mul_u32_u24 v31, 12, v25", f"v_add_u32 v{V_VLD}, v30, v31"] if V64 else [f"v_add3_u32 v{V_VLD}, v30, v{V_RD}, v48"])
    for sd, size in ((S_QK, HEADBYTES), (S_QV, HEADBYTES), (S_KS, 12288), (S_KZ, 12288), (S_VS, 4096), (S_VZ, 4096), (S_FLG, 64)):
        p += [f"s_mov_b32 s{sd+2}, {size}", f"s_mov_b32 s{sd+3}, 0x20000"]
    p += [f"s_mul_i32 s{S_PK0}, s{S_QB}, {STAGE}", f"s_add_u32 s{S_PK1}, s{S_PK0}, 6144", f"s_mov_b32 s{S_PV0}, s{S_PK0}",
          f"s_lshr_b32 s{S_PKS}, s{S_QB}, 1", f"s_mul_i32 s{S_PKS}, s{S_PKS}, 384", f"s_lshl_b32 s{S_PVS}, s{S_QB}, 6",
          f"s_lshl_b32 s24, s{S_WAVE}, 4", f"s_add_u32 s{S_PVS}, s{S_PVS}, s24",
          f"s_mul_i32 s24, s{S_HEAD}, {HEADBYTES}", f"s_mul_i32 s56, s{S_HEAD}, 12288", f"s_lshl_b32 s57, s{S_HEAD}, 12",
          f"s_lshl_b32 s58, s{S_HEAD}, 10", f"s_add_u32 s58, s58, {FLAG_OFF + 96}",
          f"s_or_b32 s{S_RET}, s{S_QB}, s{S_WAVE}"]
    p += ["s_waitcnt lgkmcnt(0)"] + istamp("karg", True)
    def base(sd, lo, off): return [f"s_add_u32 s{sd}, s{lo}, s{off}", f"s_addc_u32 s{sd+1}, s{lo+1}, 0"]
    p += base(S_QK, 42, 24) + base(S_KS, 46, 56) + base(S_KZ, 48, 56)
    kl = [k_ld(0, BX, 32, "k0a"), k_ld(1, BY, 36, "k0b")]; vl = [v_ld(0, 112, 40, "v0a"), v_ld(1, 80, 44, "v0b")]
    for x in kl[1][:2]: x.tag = "k0a"
    for x in vl[1][:2]: x.tag = "v0a"
    if OPT["ksc"]:
        for x in kl[0][2:] + kl[1][2:]: x.tag = "kraw"
        for x in kl[1][:2]: x.tag = "k0b"
        p += kl[0][2:] + kl[1][2:] + kl[0][:2] + kl[1][:2]; kl[1] = []
    else: p += kl[0][2:] + kl[0][:2] + kl[1][:2]
    p += base(S_FLG, 18, 58) + base(S_VS, 50, 57) + base(S_VZ, 52, 57) + base(S_QV, 44, 24)
    p += [f"s_mul_i32 s59, s{S_HEAD}, 786432"] + base(S_OUT, 54, 59) + base(S_Q, 40, 59)
    p += [f"s_cmp_lg_u32 s{S_RET}, 0", "s_cbranch_scc1 L_notleader0", f"s_buffer_load_dwordx16 s[40:55], s[{S_FLG}:{S_FLG+3}], 0 glc", "L_notleader0:"]
    p += kl[1][2:]
    p += [f"s_add_u32 s24, s24, {WSOFF}"] * (1 if WSOFF else 0)
    srd(p, S_WS, 18, 19, 24, HEADBYTES)
    p += [f"s_mov_b32 s{S_Q+2}, 786432", f"s_mov_b32 s{S_Q+3}, 0x20000"]
    p += [f"s_mov_b32 s{S_DBG}, s16", f"s_mov_b32 s{S_DBG+1}, s17", f"s_add_u32 s{S_PV1}, s{S_PK0}, 3072", f"s_add_u32 s{S_PV2}, s{S_PK0}, 6144"]
    p += [f"s_mov_b32 s{S_DBG+2}, 256", f"s_mov_b32 s{S_DBG+3}, 0x20000", f"s_lshl_b32 s{S_HOFF}, s{S_HEAD}, 3"]
    p += [f"s_cmp_lg_u32 s{S_RET}, 0", "s_cbranch_scc1 L_notleader", "s_waitcnt lgkmcnt(0)", f"s_mov_b32 s{S_TP}, 1"]
    for i in range(16):
        p += [f"s_lshr_b32 s{40+i}, s{40+i}, 10", f"s_min_u32 s{40+i}, s{40+i}, 31", f"s_bitset1_b32 s{S_TP}, s{40+i}"]
    p += [f"s_ff0_i32_b32 s{S_TP}, s{S_TP}", f"s_lshl_b32 s{S_TP}, s{S_TP}, 10", f"v_mov_b32 v{V_POLL}, s{S_TP}",
          "s_mov_b64 exec, 1", f"buffer_store_dword v{V_POLL}, off, s[{S_DBG}:{S_DBG+3}], s{S_HOFF} sc1 ;UNTRACKED", "s_mov_b64 exec, -1",
          "L_notleader:"]
    p += [f"s_lshl_b32 s24, s{S_QB}, 2", f"s_add_u32 s24, s24, 32", f"s_buffer_load_dword s{S_OWN}, s[{S_FLG}:{S_FLG+3}], s24 glc",
          ] + ([f"s_getreg_b32 s{S_XCC}, hwreg(HW_REG_XCC_ID, 0, 4)", f"s_lshl_b32 s{S_XCC}, s{S_XCC}, 5", f"s_mov_b32 s{S_FOFF}, {32 if OPT['l2'] == 3 else 0}"] if OPT["l2"] else
          [f"s_mov_b32 s{S_XCC}, 0", f"s_mov_b32 s{S_FOFF}, 32"])
    p += vl[0][2:] + vl[0][:2] + vl[1][:2] + (vl[1][2:] if OPT["greedy"] else []) + istamp("iss", True)
    if OPT["pre"]:
        st = OPT["pre"]
        p += [f"v_mul_u32_u24 v31, {st}, v25", f"v_mul_u32_u24 v30, 6144, v24", "v_add_u32 v31, v30, v31"]
        if st == 128: p += ["v_or_b32 v31, v31, v48"]
        p += [VM("pre", f"buffer_load_dword v132, v31, s[{S_WS}:{S_WS+3}], s{S_PK0} offen" + (" nt" if OPT["prent"] else ""))]
        if st == 64: p += ["v_add_u32 v30, 4096, v31", "s_mov_b64 exec, 0xffffffff", VM("pre", f"buffer_load_dword v133, v30, s[{S_WS}:{S_WS+3}], s{S_PK0} offen nt"), "s_mov_b64 exec, -1"]
    p += [f"s_mov_b32 s{S_OUT+2}, 786432", f"s_mov_b32 s{S_OUT+3}, 0x20000"]
    p += [f"s_lshl_b32 s24, s{S_WAVE}, 8", f"s_add_u32 s{S_HOFF}, s{S_HOFF}, s24"]
    p += ["v_mul_u32_u24 v30, 3072, v24", f"v_add_u32 v{V_DMA}, v30, v{V_RD}"]
    p += ["v_lshl_add_u32 v30, v24, 3, v26",
          "v_mul_u32_u24 v30, 384, v30",
          "v_lshlrev_b32 v31, 2, v29",
          "v_xor_b32 v31, v27, v31",
          "v_lshl_add_u32 v30, v31, 4, v30", f"v_or_b32 v{V_KST}, v30, v48",
          "v_lshlrev_b32 v30, 8, v24",
          "v_add_u32 v30, 12288, v30",
          ] + (["v_lshrrev_b32 v31, 5, v25", "v_mul_u32_u24 v31, 6144, v31", "v_add_u32 v30, v30, v31", "v_and_b32 v31, 1, v25", "v_mul_u32_u24 v31, 3072, v31", "v_add_u32 v30, v30, v31",
          "v_bfe_u32 v31, v25, 1, 4", f"v_lshl_add_u32 v{V_VST}, v31, 4, v30"] if V64 else
          ["v_lshrrev_b32 v31, 4, v25", "v_lshl_add_u32 v30, v31, 10, v30", "v_and_b32 v31, 15, v25",
          "v_lshl_add_u32 v30, v31, 4, v30", f"v_or_b32 v{V_VST}, v30, v48"])
    p += [f"s_lshl_b32 s24, s{S_QB}, 2",
          f"v_lshl_add_u32 v{V_FLAG}, v0, 2, s24", f"v_cmp_lt_u32 vcc, 0, v0", "v_mov_b32 v30, 0x40000000", "s_nop 0",
          f"v_cndmask_b32 v{V_FLAG}, v{V_FLAG}, v30, vcc"]
    p += [f"s_mul_i32 s{S_DMK}, s{S_WAVE}, 3072", f"s_add_u32 s{S_DMK}, s{S_DMK}, 12288", f"s_add_u32 s{S_DMV}, s{S_DMK}, {STAGE}",
          f"s_add_u32 s24, s{S_QB}, 1", "s_and_b32 s24, s24, 7", f"s_mul_i32 s{S_GOFFK}, s24, {STAGE}", f"s_add_u32 s{S_GOFF}, s{S_GOFFK}, 12288",
          f"s_mov_b32 s{S_RK}, {A2}", f"s_mov_b32 s{S_RV}, {B1}", f"v_add_u32 v{V_RD}, {B0}, v{V_RD}",
          f"s_mov_b32 s{S_CS}, 0x{f32bits(CSCALE):08x}", f"s_mov_b32 s{S_MASK}, 0xffff0000",
          f"s_mov_b32 s{S_BUDGET}, 100000"] + ([f"s_mov_b32 s{S_TAG+1}, 0"] if OPT["stamp"] else [])
    p += ["v_and_b32 v26, 15, v25", "v_lshrrev_b32 v27, 4, v25", "v_bfe_u32 v28, v25, 1, 3",
          "v_xor_b32 v29, v27, v28", "v_mul_u32_u24 v30, 384, v26", f"v_lshl_add_u32 v{V_RDK[0]}, v29, 4, v30",
          f"v_xor_b32 v{V_RDK[1]}, 64, v{V_RDK[0]}"]
    p += [f"s_mul_i32 s{S_QL}, s{S_WAVE}, 6144", f"s_add_u32 s{S_QL}, s{S_QL}, {B1}",
          "v_lshrrev_b32 v29, 1, v27", "v_xor_b32 v29, v29, v28", "v_lshl_add_u32 v31, v29, 4, v30",
          "v_and_b32 v29, 1, v27", "v_lshl_add_u32 v31, v29, 3, v31"]
    for kk in range(4):
        p += [f"v_xor_b32 v{VQR[kk]}, {32*kk}, v31", f"v_add_u32 v{VQR[kk]}, s{S_QL}, v{VQR[kk]}"]
    p += [f"s_lshl_b32 s24, s{S_QB}, 2", f"s_add_u32 s24, s24, s{S_WAVE}", f"s_mul_i32 s24, s24, {STAGE}"]
    for b in range(6):
        p += [f"v_add_u32 v26, {64*b}, v25", "v_mul_u32_u24 v27, 2731, v26", "v_lshrrev_b32 v27, 17, v27",
              "v_and_b32 v27, 7, v27", "v_xor_b32 v26, v26, v27", f"v_lshlrev_b32 v{VQD+b}, 4, v26", f"v_add_u32 v{VQD+b}, s24, v{VQD+b}"]
    for q in range(4): p.append(f"v_mov_b32 v{V_L[q]}, 0")
    STF0 = "" if OPT["l2"] else STF
    def own_k(b):
        l = []
        for j in range(4):
            l += k_st(j, b, "kst", STF0)
            va = V_KST if j == 0 else V_KA + (j & 1)
            l += ["s_mov_b64 exec, s[62:63]", DS("w", f"ds_write_b128 v{va}, v[{b+4*j}:{b+4*j+3}] offset:{j*768}"), "s_mov_b64 exec, -1"]
        return l
    def own_v(b):
        l = [x for e in range(NVE) for x in v_st(e, b, "vst", STF0)]
        if V64: return l + [DS("w", f"ds_write_b128 v{V_VST}, v[{b+4*e}:{b+4*e+3}] offset:{STAGE - 12288 + e*1024}") for e in range(3)]
        l += ["s_mov_b64 exec, s[62:63]"] + [DS("w", f"ds_write_b128 v{V_VST}, v[{b+4*e}:{b+4*e+3}] offset:{STAGE - 12288 + e*3072}") for e in range(4)] + ["s_mov_b64 exec, -1"]
        return l
    p += ["s_mov_b32 s62, -1", "s_mov_b32 s63, 0xffff"]
    qa = OPT["qa"]
    qb_, qc = OPT["qb"], OPT["qc"]
    R = lambda a, b: list(range(a, b))
    if OPT["split"]:
        p += [W("k0a")] + vl[1][2:] + k_cv(0, BX, 32, BX) + [W("k0b")] + istamp("k0b", True) + k_cv(1, BY, 36, BX) + own_k(BX)
        p += tag_load() + with_nop(q_dma(R(0, qa))) + [W("v0a")] + v_cv(0, 112, 40, 112)
        p += [W("tag")] + tag_check() + ["s_waitcnt lgkmcnt(0)", "s_barrier"] + flag_post() + tag_get() + istamp("post", True)
        p += with_nop(q_dma(R(qa, qb_))) + v_cv(1, 80, 44, 112) + own_v(112) + with_nop(q_dma(R(qb_, 12))) + istamp("vst", True)
    elif OPT["greedy"]:
        p += [W("k0a")] + with_nop(q_dma(R(0, 3))) + k_cv(0, BX, 32, BX) + [W("k0b")] + istamp("k0b", True) + with_nop(q_dma(R(3, 6))) + k_cv(1, BY, 36, BX) + own_k(BX)
        p += [W("v0a")] + with_nop(q_dma(R(6, 9))) + v_cv(0, 112, 40, 112) + [W("v0b")] + with_nop(q_dma(R(9, 12))) + v_cv(1, 80, 44, 112) + own_v(112)
        p += tag_load() + with_nop(q_dma(R(12, 18))) + istamp("vst", True)
    else:
        p += [W("k0a")] + vl[1][2:] + k_cv(0, BX, 32, BX) + [W("k0b")] + istamp("k0b", True) + k_cv(1, BY, 36, BX) + own_k(BX)
        p += with_nop(q_dma(R(0, qa))) + istamp("kst", True)
        p += [W("v0a")] + sprinkle(v_cv(0, 112, 40, 112), q_dma(R(qa, qb_))) + [W("v0b")] + v_cv(1, 80, 44, 112) + own_v(112)
        p += tag_load() + with_nop(q_dma(R(qb_, 12))) + istamp("vst", True)
    if not OPT["split"]:
        if OPT["iw"]:
            p += ["s_mov_b64 exec, 0"] + [x for w in range(3) for x in (f"s_cmp_eq_u32 s{S_WAVE}, {w}", f"s_cbranch_scc1 L_iw{w}")] + ["s_branch L_iw3", "L_iwret:", "s_mov_b64 exec, -1"]
        p += [W("tag")] + tag_check() + istamp("tag", True)
        p += ["s_waitcnt lgkmcnt(0)", "s_barrier"] + flag_post(True) + tag_get() + istamp("post", True)
    if OPT["pf2"]:
        p += [f"s_mov_b32 s{S_DBG}, s60", f"s_mov_b32 s{S_DBG+1}, s61", f"s_mov_b32 s{S_DBG+2}, L_slow-{NAME}_kernel",
              "s_lshr_b32 s24, s2, 3", f"s_mul_i32 s{S_HOFF}, s24, 43", f"s_lshr_b32 s{S_HOFF}, s{S_HOFF}, 7",
              f"s_mul_i32 s{S_RET}, s{S_HOFF}, 3", f"s_sub_u32 s24, s24, s{S_RET}", "s_lshl_b32 s24, s24, 10",
              f"s_mul_i32 s{S_HOFF}, s{S_HOFF}, 12288", f"s_add_u32 s{S_HOFF}, s{S_HOFF}, s24"]
    KF = 144
    for f in range(12):
        s, tb = kfrag(f)
        p.append(DS("kf", f"ds_read_b128 v[{KF+4*f}:{KF+4*f+3}], v{V_RDK[s&1]} offset:{tb*6144 + (s>>1)*128}"))
    def qk0(qb):
        l = []
        for f in sorted(range(12), key=lambda f: kfrag(f)[::-1]):
            s, tb = kfrag(f)
            d = vr(Sq(0, qb, tb), 4)
            l.append(f"{MF} {d}, v[{KF+4*f}:{KF+4*f+3}], {Qf(qb,s)}, {'0' if s == 0 else d}")
        return l
    ps = len(POLLSITES); POLLSITES.append(ps)
    g3n = OPT["g3n"]
    pollchk = ["s_waitcnt lgkmcnt(0)"] + smem_reduce() + [f"s_cmp_ge_u32 s{S_PT}, 16", f"s_cbranch_scc1 L_pollslow{ps}", f"L_pollok{ps}:",
          f"s_add_u32 s{S_NEED}, s{S_NEED}, 1"] + [f"s_mov_b32 s{S_FOFF}, 32"] * (OPT["l2"] == 2) + istamp("poll", True)
    sm00 = rowmax2(0, (0, 1), (V_CT, V_CT + 2)) + addneg(0, 0) + addneg(0, 1) + softmax_part(0, 0)
    qrest = R(12 if OPT["greedy"] == 0 else 18, 18 + g3n)
    if OPT["split"]:
        ps2 = len(POLLSITES); POLLSITES.append(ps2)
        pollchk2 = ["s_waitcnt lgkmcnt(0)"] + smem_reduce() + [f"s_cmp_ge_u32 s{S_PT}, 16", f"s_cbranch_scc1 L_pollslow{ps2}", f"L_pollok{ps2}:",
              f"s_add_u32 s{S_NEED}, s{S_NEED}, 1"] + istamp("pollV", True)
        p += [W(("q", 0))] + q_frags(0) + [LG("tg")] + tag_use() + [LG(("qf", 0))] + smem_flags() + qk0(0) + pollchk
        p += with_nop(dma_tile("k", 1, True)) + k_adv() + v_adv()
        p += [W("vst"), "s_barrier"] + flag_post() + istamp("postV", True)
        p += with_nop(dma_tile("k", 2, True) + dma_tile("k", 3, True))
        p += [W(("q", 1))] + q_frags(1) + with_nop(q_dma(R(12, 15))) + [LG(("qf", 1))] + qk0(1) + ["s_nop 7"]
        g0 = pv_unchained(0, True)[:6]
        p += [rd_op(i, j, g0[i]) for i in range(2) for j in range(2)] + sprinkle(sm00, q_dma(R(15, 18 + g3n))) + smem_flags() + [LG(("fr", 0), ("fr", 1))]
        p += gen_seg("S0", g0, [], tasks=[("q", R(18 + g3n, 24), 0, 22)] if g3n < 6 else [], vmgap=2) + pollchk2
        p += with_nop(dma_tile("v", 1, True))
        g3n = 6
    elif OPT["own1"] == 2:
        p += [W(("q", 0))] + q_frags(0) + [LG("tg")] + tag_use() + with_nop(q_dma(qrest[:3])) + [LG(("qf", 0))] + qk0(0)
        p += [W(("q", 1))] + q_frags(1) + smem_flags() + with_nop(q_dma(qrest[3:])) + [LG(("qf", 1))] + qk0(1) + pollchk
        g0 = pv_unchained(0, True)[:6]
        p += [rd_op(i, j, g0[i]) for i in range(2) for j in range(2)]
        p += sprinkle(sm00, dma_tile("k", 1, True) + dma_tile("k", 2, True) + dma_tile("k", 3, True) + dma_tile("v", 1, True)) + k_adv() + v_adv() + [LG(("fr", 0), ("fr", 1))]
        p += gen_seg("S0", g0, [], tasks=[("q", R(18 + g3n, 24), 0, 22)] if g3n < 6 else [], vmgap=2)
        g3n = 6
    elif OPT["own1"]:
        p += [W(("q", 0))] + q_frags(0) + [LG("tg")] + tag_use() + with_nop(q_dma(qrest[:3])) + [LG(("qf", 0))] + qk0(0)
        if OPT["q0f"]: p += ["s_nop 7"] + sm_one(0, 0); sm00 = sm_one(0, 1)
        p += [W(("q", 1))] + q_frags(1) + with_nop(q_dma(qrest[3:6])) + [LG(("qf", 1))] + qk0(1) + ["s_nop 7"]
        g0 = pv_unchained(0, True)[:6]
        p += [rd_op(i, j, g0[i]) for i in range(2) for j in range(2)] + sprinkle(sm00, q_dma(qrest[6:])) + smem_flags() + [LG(("fr", 0), ("fr", 1))]
        p += gen_seg("S0", g0, []) + pollchk
        p += with_nop(dma_tile("k", 1, True) + dma_tile("k", 2, True) + dma_tile("k", 3, True) + dma_tile("v", 1, True)) + k_adv() + v_adv()
    else:
        p += [W(("q", 0))] + q_frags(0) + [LG("tg")] + tag_use() + [W(("q", 1))] + q_frags(1) + smem_flags()
        p += [LG(("qf", 0))] + with_nop(q_dma(qrest)) + pollchk
        p += with_nop(dma_tile("k", 1, True)) + k_adv() + v_adv()
        p += sprinkle(qk0(0) + qk0(1), dma_tile("k", 2, True)) + ["s_nop 7"]
        p += sprinkle(sm00, dma_tile("k", 3, True) + dma_tile("v", 1, True))
    sp = softmax_part
    g1 = qk_half(0, ws=(1,))
    g2 = rebase(qk_half(1), V_RDK, A1 - A0)
    g3 = pv_unchained(0, True)[6 if OPT["own1"] else 0:]
    g4 = rebase(pv_unchained(1), [V_RD], B1 - B0)
    g5 = rebase(qk_half(2, True), V_RDK, A0 - A1) + rebase(qk_half(3), V_RDK, A1 - A0)
    gi3 = rebase(qk_full(4), V_RDK, A2 - A1)
    gi4 = rebase(pv_seq(2, True), [V_RD], B0 - B1) + rebase(pv_seq(3), [V_RD], B1 - B0)
    p += istamp("pre-dk1", True) + [W(("dk", 1)), "s_barrier"] + [rd_op(i, j, g1[i]) for i in range(2) for j in range(2)]
    p += [LG(("fr", 0), ("fr", 1))]
    p += gen_seg("S1", g1, g2[:2], [], [(15, [("dk", 3)])], [], [V_(2, 3) + (0, 21)], vmgap=2)
    p += gen_seg("S2", g2, g3[:2], [(sp(0, 1), 3, 47)], [(39, [("dv", 3)])] if OPT["own1"] else [], ([("q", R(18 + g3n, 24), 0, 24)] if g3n < 6 else []) + [("ldn", "ka", 25 if g3n < 6 else 0, 47)])
    if OPT["own1"]: p += gen_seg("S3", g3, g4[:2], [(sp(1, 0), 0, 23)], [], [("ldn", "kb", 0, 23)])
    else: p += gen_seg("S3", g3, g4[:2], [(sp(1, 0), 0, 47)], [(15, [("dv", 3)])], [("ldn", "kb", 0, 22), ("ldn", "va", 23, 46, "raw")])
    p += gen_seg("S4", g4, g5[:2], [(sp(1, 1), 0, 21)], [], [("ldn", "va", 0, 30, "raw")] if OPT["own1"] else [], extra=[Stream([W(("q", 2))] + q_frags(2) + [W(("q", 3))] + q_frags(3), 16, 46)])
    p += istamp("pre-S5", True) + ["s_waitcnt lgkmcnt(0)", "s_barrier"]
    p += gen_seg("S5", g5, gi3[:2], [(rowmax2(2, (2, 3), (V_T, V_T + 2)), 27, 45), (addneg(2, 0) + addneg(2, 1) + sp(2, 0) + addneg(2, 2) + addneg(2, 3) + sp(2, 1), 46, 95)],
                 [(GBAR + 8, [("dk", 5)])], [("cv", "ka", 0, 99, 0, 34), ("cv", "kb", 0, 99, 35, 72), ("kst", 0, 73), ("kst", 1, 77), ("kst", 2, 89), ("kst", 3, 93),
                 ("ldn", "va", 36, 60, "sc")], [K_(4, 5) + (1, 24)])
    p += gen_seg("i3", gi3, gi4[:2], [(sp(3, 0) + sp(3, 1), 0, 54), (sp(4, 0), 55, 95)], [(OPT["pb"], []), (GBAR, [])],
                 [("ld", "vb", 0, 22), ("post", "kst", 0), ("cv", "va", 0, 99, 10, 95)], [K_(6, 7) + V_(4, 5) + (24, 90)])
    p += [f"s_mov_b32 s{S_CNT}, {7 - OPT['lastp']}", f"s_mul_i32 s{S_RC}, s{S_QB}, {STAGE}", f"s_mov_b32 s{S_RD}, 12288"]
    p += gen_seg("i4", gi4, seg_groups(5)[:2], [(sp(4, 1) + sp(5, 0), 0, 94)], [(47, []), (GBAR + 8, [("dk", 7)])],
                 [("ld", "ka", 0, 30), ("cv", "vb", 0, 99, 30, 94), ("step", "q", 30, 70), ("pollld", OPT["pl4"], OPT["pl4"] + 8)], [V_(6, 7) + (52, 84)],
                 endops=["s_nop 0", "s_branch L_join"])
    p += [".p2align 6"] + ["s_nop 0"] * OPT.get("pad", 0) + ["L_loop:"]
    pro_ = p
    first57, tail = gen_tail()
    bodyA = []
    for k in (1, 2, 3, 4, 5, 6, 7, 0):
        if k == 5: bodyA.append("L_join:"); jpos = len(bodyA)
        eo = [f"s_sub_u32 s{S_CNT}, s{S_CNT}, 1", f"s_cmp_lg_u32 s{S_CNT}, 0", "s_cbranch_scc1 L_loop"] if k == 0 else ()
        t, d = steady(k)
        if OPT["ab"] & 8: d = []
        if OPT["ab"] & 16: t = [x for x in t if x[0] not in ("cv", "kst", "vst", "ld")]
        if OPT["ab"] & 128: t = [x for x in t if x[0] not in ("cv",)]
        if OPT["ab"] & 256: t = [x for x in t if x[0] not in ("kst", "vst")]
        if OPT["ab"] & 512: t = [x for x in t if x[0] not in ("ld",)]
        bars = None
        if OPT["nb6"]:
            dk = lambda *x: [("dk", i) for i in x]; dv = lambda *x: [("dv", i) for i in x]
            bars = {0: [], 4: [], 7: [(GBAR, dv(6, 7) + dk(2, 3))], 3: [(GBAR, dv(2, 3) + dk(6, 7))]}.get(k)
        bodyA += gen_iter(16 + k, t, d, name=f"k{k}", endops=eo, bars=bars)
    lastt = []
    if OPT["lastp"]:
        for k in (1, 2, 3, 4, 5, 6, 7, 0):
            t, d = steady(k)
            t = [x for x in t if not ((x[0] in ("ld", "cv") and x[1] == "ka") or (x[0] in ("ld", "cv") and x[1] == "kb" and k != 1) or x[:2] == ("ld", "va") or x[0] == "pf")]
            dk = lambda *x: [("dk", i) for i in x]; dv = lambda *x: [("dv", i) for i in x]
            bars = {0: [], 4: [], 7: [(GBAR, dv(6, 7) + dk(2, 3))], 3: [(GBAR, dv(2, 3) + dk(6, 7))]}.get(k) if OPT["nb6"] else None
            lastt += gen_iter(16 + k, t, d, name=f"z{k}", bars=bars)
    tail = lastt + tail
    assert OPT["qo"] or [g.rd for g in first57] == [g.rd for g in seg_groups(17)[:2]]
    tailc = tail + ["L_fin:"]
    resolve(pro_ + bodyA[jpos:] + bodyA + bodyA + tailc)
    if OPT["cap"]: pro_ = pace(pro_, OPT["cap"] / 4)
    P_ = Prog()
    P_.extend(fin(pro_))
    a0 = len(P_.ins); P_.extend(fin(bodyA)); a1 = len(P_.ins)
    P_.extend(fin(tailc))
    p = P_
    if OPT["stamp"]:
        p("s_waitcnt vmcnt(0) lgkmcnt(0)")
        p.extend(istamp("end"))
        p("s_waitcnt lgkmcnt(0)")
        p.extend(istamp("end2"))
        p(f"v_writelane_b32 v{V_STAMP}, s{S_TAG+1}, 63")
        p("s_add_u32 s8, s18, 0xfa00000"); p("s_addc_u32 s9, s19, 0"); p("s_mov_b32 s10, 1048576"); p("s_mov_b32 s11, 0x20000")
        p("s_lshl_b32 s24, s2, 2"); p(f"s_add_u32 s24, s24, s{S_WAVE}"); p("s_lshl_b32 s24, s24, 8")
        p(f"v_bfe_u32 v32, v{V_DMA}, 4, 6"); p("v_lshlrev_b32 v32, 2, v32")
        p(f"buffer_store_dword v{V_STAMP}, v32, s[8:11], s24 offen")
        if OPT["stamp"] == 8: STAMPS.sort(key=lambda n: 0)
        open(sys.argv[1] + ".stamps", "w").write("\n".join(order_stamps()))
    if OPT["calx"]:
        p("s_waitcnt vmcnt(0)")
        p("L_cal:")
        p("s_memrealtime s[40:41]")
        p("s_waitcnt lgkmcnt(0)")
        p("s_sub_u32 s40, s40, s100")
        p("s_cmp_lt_u32 s40, 10000")
        p("s_cbranch_scc1 L_cal")
    p("L_done:")
    p("s_endpgm")
    main_end0 = len(p.ins)
    for ps in POLLSITES: p.extend(poll_slow(ps))
    p.extend(tag_slow())
    main_end = len(p.ins)
    p.extend(gen_slow())
    slow_end = len(p.ins)
    ji = [i for i, x in enumerate(p.ins) if x.text == "L_join:"][0]
    lin = p.ins[:a0] + p.ins[ji:a1] + p.ins[a0:main_end0]
    sl = [i for i, x in enumerate(p.ins) if x.text == "L_slowloop:"][0]
    bi = [i for i, x in enumerate(p.ins) if x.text == "s_cbranch_scc1 L_slowloop"][0]
    probs = check_hazards(lin, "main") + check_hazards(p.ins[main_end:bi+1] + p.ins[sl:slow_end], "slow") + check_hazards(p.ins[main_end0:main_end], "aux")
    for x in probs: print(x, file=sys.stderr)
    return p

def kd(name, vgpr, sgpr, accum):
    return f""".amdhsa_kernel {name}
  .amdhsa_next_free_vgpr {vgpr}
  .amdhsa_next_free_sgpr {sgpr}
  .amdhsa_accum_offset {accum}
  .amdhsa_group_segment_fixed_size 0
  .amdhsa_kernarg_size 80
  .amdhsa_user_sgpr_count 2
  .amdhsa_user_sgpr_kernarg_segment_ptr 1
  .amdhsa_system_sgpr_workgroup_id_x 1
.end_amdhsa_kernel
"""
def build_text(body):
    o = HEADER + f"; @launch grid=(256,1,1) block=(256,1,1) lds={LDS_BYTES}\n" + '.amdgcn_target "amdgcn-amd-amdhsa--gfx950"\n.text\n'
    o += f".globl {NAME}_kernel\n.p2align 8\n.type {NAME}_kernel,@function\n" + body
    return o + '.section .rodata,"a"\n.p2align 6\n' + kd(NAME + "_kernel", 512, 102, 256)
def addresses(lines):
    import subprocess, types, ctypes
    _o = ctypes.CDLL
    class F:
        def __getattr__(s, n):
            x = types.SimpleNamespace(); object.__setattr__(s, n, x); return x
    ctypes.CDLL = lambda n, *a, **k: (F() if "amdhip" in n else _o(n, *a, **k))
    sys.path.insert(0, "cdna_kernels")
    import cdna_launch as cl
    t = []
    for i, l in enumerate(lines):
        if l.strip().startswith("v_"): t.append(f"L_adr{i}:")
        t.append(l)
    open("_a.s", "w").write(cl.with_harness_metadata(build_text("\n".join(t) + "\n"), NAME + "_kernel", 10, launch_lists=True))
    subprocess.run([cl.ROCM_CLANG, "-x", "assembler", "-target", "amdgcn-amd-amdhsa", "-mcpu=gfx950", "_a.s", "-o", "_a.co"], check=True)
    r = subprocess.run(["llvm-objdump", "-t", "_a.co"], capture_output=True, text=True).stdout
    return {int(x.split()[-1][5:]): int(x.split()[0], 16) for x in r.split("\n") if "L_adr" in x}
def add_stubs(text):
    base = text.rstrip("\n").split("\n")
    lo = base.index("L_iwret:"); hi = base.index("L_fin:"); l0 = base.index("L_loop:")
    l1 = max(i for i, l in enumerate(base) if l.strip() == "s_cbranch_scc1 L_loop")
    pos = []
    for it in range(6):
        lines = []; idx = []
        chains = [[k for k in range(len(pos)) if k % 4 == w] for w in range(4)]
        nxt = {}
        for w in range(4):
            for a, b in zip(chains[w], chains[w][1:] + [None]): nxt[a] = f"L_pg{b}" if b is not None else "L_iwret"
        for i, l in enumerate(base):
            idx.append(len(lines)); lines.append(l)
            if i in pos:
                k = pos.index(i)
                lines += ([f"L_iw{k}:"] if k < 4 else []) + [f"L_pg{k}:", f"    s_cbranch_execz {nxt[k]}"]
        if len(pos) < 4: lines += [x for w in range(len(pos), 4) for x in (f"L_iw{w}:", "    s_branch L_iwret")]
        ad = addresses(lines); inv = {j: i for i, j in enumerate(idx)}
        first = min(i for i, l in enumerate(base) if l.strip().startswith("v_mfma") and "a[0:3]" in l)
        mf = sorted((a, inv[j]) for j, a in ad.items() if lo < inv[j] < hi and (inv[j] < first or base[inv[j]].strip().startswith("v_mfma")))
        new = [min(i for a, i in mf if i > base.index("L_join:"))]
        pg = mf[0][0] >> 12
        for a, i in mf:
            if (a + 8) >> 12 > pg:
                pg = (a + 8) >> 12
                if OPT["iw"] == 2 or not (l0 < i < l1): new.append(i)
        new = sorted(set(new))
        if new == pos: break
        pos = new
    print("page stubs:", len(pos), file=sys.stderr)
    return "\n".join(lines) + "\n"
out = HEADER
out += f"; @launch grid=(256,1,1) block=(256,1,1) lds={LDS_BYTES}\n"
out += '.amdgcn_target "amdgcn-amd-amdhsa--gfx950"\n.text\n'
body_ = gen_main().text()
if OPT["iw"]: body_ = add_stubs(body_)
out += f".globl {NAME}_kernel\n.p2align 8\n.type {NAME}_kernel,@function\n" + body_
out += '.section .rodata,"a"\n.p2align 6\n' + kd(NAME + "_kernel", 512, 102, 256)
open(sys.argv[1], "w").write(out)
```

```python
import sys, math
from asmlib import *

NAME = "standalone__kv_cache_quant_int4_int2_kv_with_per_channel_or_per_token_scales__prompt"
OPT = dict(stamp=0, vmgap=4, sb=6, sa=6, ahead=8, thr=64, pf2=1, calx="", qa=6, plv=2, plk=10, ckv=1, ckk=1, tden=24, touch=0, w0poll=0, cap=48, qb=6, q3e=1, ksc=0, few=1, qc=15, pb=39, pl4=40, l2=3, k1e=0, greedy=0, g3n=3, pre=0, own1=1, ab=0, pk=0, split=0, prent=1, bal=1, flex=1, w2=0, dense="S61,S5,S2,S3,S4", dx=4, dvg=2, f3=1, pvs=1, qo=0, po=0, x2c=12, sst=1, q0f=1, nb6=1, tv=1, omv=0, ldc=8, rs=0, scnt=0, iw=2, pfnt=0, v64=1, lastp=1, lmf=1, fs=1, pq=2, fa=20, k1s=2, fb=99, qe=18, qf=0, ed=200, ed1=250, cut="20,44,4,40,8,28,8")
for a in sys.argv[2:]:
    k, v = a.split("="); OPT[k] = int(v) if v.lstrip("-").isdigit() else v
NS = 6
STAGE = 24576
HEADBYTES = 64 * STAGE
RING = NS * STAGE
LDS_BYTES = RING + 128
A0, B0, A1, B1, A2, B2 = [i * STAGE for i in range(6)]
CSCALE = (192.0 ** -0.5) * math.log2(math.e)
HEADER = open("cdna_kernels/" + NAME + ".s.ref").read().split("; Override launch geometry")[0]
MF = "v_mfma_f32_16x16x32_bf16"
V64 = OPT["v64"]; NVE = 3 if V64 else 4
NCH = 2 if V64 else 3
def chunk_dbs(n): return list(range(6 * n, 6 * n + 6)) if V64 else [3 * e + n for e in range(4)]

V_FVAL = 0; V_RD = 1; V_RDK = [2, 3]; V_DMA = 4; V_L = [5, 6, 7, 8]
V_KLD = 9; V_KSC = 10; V_KST = 11; V_VLD = 12; V_FLAG = 13; V_RD2 = 59; V_RD3 = 60
V_T = 16; NTP = 2
V_VST = 15; V_STAMP = 14; V_T4 = 20
V_FR = 24; NFS = 6
V_CT = 48; V_VO = 52; V_RS = [56, 60]; BX = 224; BY = 240; BZ = 144
V_POLL = V_VO; V_KA = V_VO + 2
UNIT = [64, 80, 160, 176]; HI = [96, 112]
VQD = 136; VQR = [22, 23, 142, 143]
def Sq(t, sl, tb): return (UNIT[t % 4] if tb == 0 else HI[t % 2]) + 4 * sl
def P(t, sl): return UNIT[t % 4] + 4 * sl
def NEGM(qb): return 128 + 4 * qb
def O(qb, db): return (qb * 12 + db) * 4
def Qf(qb, s, half=None):
    i = qb * 6 + s
    base, f = (192 + 4 * i, ar) if i < 16 else (192 + 4 * (i - 16), vr)
    return f(base, 4) if half is None else f(base + 2 * half, 2)
def FR(f): return vr(V_FR + 4 * (f % NFS), 4)

S_RDELTA = 3; S_WS = 4; S_Q = 8; S_OUT = 12; S_FLG = 20
S_WAVE = 25; S_DMK = 26; S_GOFF = 27; S_RK = 28; S_TMP = 29; S_RV = 30; S_CNT = 31; S_GOFFK = 32
S_PK0 = 33; S_PK1 = 34; S_PV0 = 35; S_PKS = 36; S_PVS = 37; S_CS = 38; S_RET = 39; S_PV1 = 16; S_PV2 = 17
S_QL = 40; S_QS = 41; S_TAG = 42; S_FOFF = 44; S_XCC = 45; S_OWN = 46; S_RC = 46; S_RD = 47
S_PT = 48; S_DMV = 56; S_TK = 57; S_TV = 58; S_TP = 59
S_QK = 64; S_QV = 68; S_KS = 72; S_KZ = 76; S_VS = 80; S_VZ = 84; S_DBG = 88
S_NEED = 92; S_HOFF = 93; S_HEAD = 94; S_QB = 95; S_BUDGET = 96; S_MASK = 97
WSOFF = OPT.get("wsoff", 0) << 20
FLAG_OFF = WSOFF + (49 << 20)
SC1 = {0: " sc1", 1: "", 2: " nt", 3: " sc0", 4: " sc1 nt", 5: " sc0 sc1"}[OPT.get("dmaf", 0)]; NTKV = " nt"; NTQ = " nt"; STF = " sc1"; OF = " sc0 sc1"

STAMPS = []
def istamp(name, force=False):
    if OPT["calx"] == name: return ["s_memrealtime s[100:101]"]
    if OPT["stamp"] not in (6, 8, 9): return []
    if OPT["stamp"] == 8 and name.startswith(("k", "z")) and not force: return []
    if OPT["few"] and force and name not in ("karg", "k0b", "vst", "tag", "post", "poll", "postV", "pollV", "pre-dk1"): return []
    if OPT["stamp"] != 8 and force: return []
    STAMPS.append(name)
    return ["s_waitcnt lgkmcnt(0)"] * (1 if force else 0) + [f"v_mov_b32_dpp v{V_STAMP}, v{V_STAMP} wave_shr:1 row_mask:0xf bank_mask:0xf", f"v_writelane_b32 v{V_STAMP}, s98, 0",
            ("s_memtime" if OPT["stamp"] == 6 else "s_memrealtime") + " s[98:99]"]

def order_stamps():
    l = list(STAMPS); out = []
    if "S62" in l:
        l.remove("S61"); l.insert(l.index("S62"), "S61")
    for n in l:
        if "." in n: continue
        out.append(n); out += [m for m in l if m.startswith(n + ".")]
    return out
class W:
    def __init__(self, *tags): self.tags = tags
class VM:
    def __init__(self, tag, text): self.tag = tag; self.text = text
class LG:
    def __init__(self, *tags): self.tags = tags
class DS:
    def __init__(self, tag, text): self.tag = tag; self.text = text

def mode_of(t):
    if OPT["fs"] and t < 4: return "f"
    return {0: "a", 1: "a", 2: "b", 3: "b", 58: "a", 59: "a", 60: "a", 61: "b", 62: "b", 63: "b"}.get(t, "f")
def slot_q(t, sl):
    m = mode_of(t)
    return sl if m == "f" else (sl & 1) + (0 if m == "a" else 2)
ONES = 20
def softmax_part(t, half, lm=False):
    if lm:
        l = [x for x in softmax_part(t, half) if not x.startswith("v_add")]
        out = []
        for x in l:
            out.append(x)
        k = [i for i, x in enumerate(out) if x.startswith("v_cvt_pk")][3]
        mm = lambda sl: f"{MF} v[{RL[slot_q(t, sl)]}:{RL[slot_q(t, sl)]+3}], v[{P(t, sl)}:{P(t, sl)+3}], v[{ONES}:{ONES+3}], " + ("0" if (t, half) == (61, 1) else f"v[{RL[slot_q(t, sl)]}:{RL[slot_q(t, sl)]+3}]")
        return out[:k + 3] + [mm(2 * half)] + out[k + 3:] + ["s_nop 1", mm(2 * half + 1)]
    flat = []; prev = None
    for gp in range(8):
        sl = 2 * half + gp // 4; pi = gp % 4; l = V_L[slot_q(t, sl)]
        t0 = V_T + 2 * (gp % NTP); t1 = t0 + 1
        src = Sq(t, sl, pi >> 1) + 2 * (pi & 1)
        E = [f"v_exp_f32 v{t0}, v{src}", f"v_exp_f32 v{t1}, v{src+1}"]
        A = [f"v_add_f32 v{l}, v{l}, v{t0}", f"v_add_f32 v{l}, v{l}, v{t1}"]
        C = [f"v_cvt_pk_bf16_f32 v{P(t,sl)+pi}, v{t0}, v{t1}"]
        if 16 <= t < 26:
            if OPT["ab"] & 1: A = []
            if OPT["ab"] & 2: E = [x.replace("v_exp_f32", "v_mov_b32") for x in E]
            if OPT["ab"] & 32: C = []
            if OPT["ab"] & 64: E = []; A = []; C = []
        flat += E if prev is None else E[:1] + prev[0] + E[1:] + prev[1]
        prev = (A, C)
    return flat + prev[0] + prev[1]

class Grp:
    def __init__(self, rd, mf): self.rd = rd; self.mf = mf; self.reb = []
def qk_tile(t, w, slots, czero=False):
    gs = []
    if OPT["qo"] == 1 and len(slots) == 4:
        for s_ in range(6):
            rd = [(V_RDK[s_ & 1], w * 12288 + tb * 6144 + (s_ >> 1) * 128) for tb in range(2)]
            mf = []
            for sl, qb in slots:
                for tb in range(2):
                    d = vr(Sq(t, sl, tb), 4)
                    mf.append((tb, d, Qf(qb, s_), (("0" if czero else vr(NEGM(qb), 4)) if s_ == 0 else d)))
            gs.append(Grp(rd, mf))
        return gs
    for gi in range(6):
        s0 = 2 * (gi >> 1); tb = gi & 1
        rd = [(V_RDK[j], w * 12288 + tb * 6144 + (s0 >> 1) * 128) for j in range(2)]
        mf = []
        for sl, qb in slots:
            d = vr(Sq(t, sl, tb), 4)
            mf += [(0, d, Qf(qb, s0), (("0" if czero else vr(NEGM(qb), 4)) if s0 == 0 else d)), (1, d, Qf(qb, s0 + 1), d)]
        gs.append(Grp(rd, mf))
    return gs
def qk_full(t): return [g for w in range(2) for g in qk_tile(t + w, w, [(q, q) for q in range(4)])]
def qk_half(t, czero=False, ws=(0, 1)):
    return [g for w in ws for g in qk_tile(t, w, [(2 * w + j, slot_q(t, j)) for j in range(2)], czero)]
def OV(qb, db): return (BY if qb == 2 else BZ) + 4 * (db // 3)
def pv_grp(t, db, first=False, va=V_RD):
    m = mode_of(t); mf = []
    for qb in (range(4) if m == "f" else [slot_q(t, 0), slot_q(t, 1)]):
        d = ar(O(qb, db), 4)
        if OPT["omv"] and t >= 61 and db % 3 == 2: d = " " + vr(OV(qb, db), 4)
        for w in range(2):
            b = P(t + w, qb) if m == "f" else P(t, 2 * w + (qb & 1))
            mf.append((w, d, vr(b, 4), "0" if (first and w == 0) else d))
    return Grp([(va, w * 12288 + db * 1024) for w in range(2)], mf)
def pv_seq(t, first=False):
    if OPT["po"] == 1 and mode_of(t) == "f":
        gs = []
        for d0 in range(0, 12, 2):
            for w in range(2):
                mf = [(e, ar(O(qb, d0 + e), 4), vr(P(t + w, qb), 4), ar(O(qb, d0 + e), 4)) for qb in range(4) for e in range(2)]
                gs.append(Grp([(V_RD, w * 12288 + (d0 + e) * 1024) for e in range(2)], mf))
        return gs
    if OPT["po"] == 2 and mode_of(t) == "f":
        gs = []
        for db in range(12):
            mf = [(w, ar(O(qb, db), 4), vr(P(t + w, qb), 4), ar(O(qb, db), 4)) for w in range(2) for qb in range(4)]
            gs.append(Grp([(V_RD, w * 12288 + db * 1024) for w in range(2)], mf))
        return gs
    return [pv_grp(t, db, first) for db in range(12)]
def pv_unchained(t, first=False):
    gs = []
    for w in range(2):
        for d0 in range(0, 12, 2):
            mf = []
            for j in range(2):
                qb = slot_q(t, j)
                for e in range(2):
                    d = ar(O(qb, d0 + e), 4)
                    mf.append((e, d, vr(P(t, 2 * w + j), 4), "0" if (first and w == 0) else d))
            gs.append(Grp([(V_RD, w * 12288 + (d0 + e) * 1024) for e in range(2)], mf))
    return gs
def rebase(gs, regs, delta):
    op = "v_add_u32" if delta >= 0 else "v_subrev_u32"
    gs[0].reb += [f"{op} v{r}, {abs(delta)}, v{r}" for r in regs]
    return gs
def rd_op(gi, j, g):
    f = 2 * gi + j
    return DS(("fr", f % NFS), f"ds_read_b128 {FR(f)}, v{g.rd[j][0]} offset:{g.rd[j][1]}")

def dma_tile(part, pos, peel=False):
    dm, go, tmp = (S_DMK, S_GOFFK, S_TK) if part == "k" else (S_DMV, S_GOFF, S_TV)
    l = [f"s_mov_b32 m0, s{dm}"]
    for j in range(3):
        l.append(VM(("d" + part, pos % 8), f"buffer_load_dwordx4 v{V_DMA}, s[{S_WS}:{S_WS+3}], s{go} offen offset:{j*1024}{SC1} lds"))
    if peel and pos < 7:
        l += [f"s_add_u32 s{go}, s{go}, {STAGE}", f"s_sub_u32 s{tmp}, s{go}, {8*STAGE}", f"s_min_u32 s{go}, s{go}, s{tmp}"]
    elif peel and pos == 7:
        l += [f"s_mov_b32 s{go}, {8*STAGE + (0 if part == 'k' else 12288)}"]
    else:
        l += [f"s_add_u32 s{go}, s{go}, {STAGE}"]
    if pos % 2 == 0: l += [f"s_add_u32 s{dm}, s{dm}, 12288"]
    else: l += [f"s_add_u32 s{dm}, s{dm}, {2*STAGE - 12288}", f"s_sub_u32 s{tmp}, s{dm}, {RING}", f"s_min_u32 s{dm}, s{dm}, s{tmp}"]
    return l
QOFF = [STAGE, 0, 2 * STAGE, STAGE]
def q_dma(lst):
    l = []
    if not lst: return l
    for i in lst:
        a, b = divmod(i, 6)
        l += [f"s_mov_b32 s{S_QS}, {a*6144}"] * (1 if (b == 0 or i == lst[0]) else 0)
        l += [f"s_add_u32 m0, s{S_QL}, {QOFF[a] + b*1024}",
              VM(("q", a), f"buffer_load_dwordx4 v{VQD+b}, s[{S_Q}:{S_Q+3}], s{S_QS} offen{NTQ} lds")]
    return l
def q_frags(qb):
    l = []
    for s in range(6):
        for h in range(2):
            sp = s + 6 * h
            l.append(DS(("qf", qb), f"ds_read_b64 {Qf(qb,s,h)}, v{VQR[sp&3]} offset:{QOFF[qb] + (sp>>2)*128}"))
    return l
def with_nop(l):
    out = []
    for i, x in enumerate(l):
        out.append(x)
        if isinstance(x, str) and " m0," in x and i + 1 < len(l) and isinstance(l[i + 1], VM): out.append("s_nop 0")
    return out
def rd_step(kind):
    cur, regs = (S_RK, V_RDK) if kind == "q" else (S_RV, [V_RD])
    return [f"s_add_u32 s{S_TMP}, s{cur}, {2*STAGE}", f"s_sub_u32 s{S_RDELTA}, s{S_TMP}, {RING}",
            f"s_min_u32 s{S_TMP}, s{S_TMP}, s{S_RDELTA}", f"s_sub_u32 s{S_RDELTA}, s{S_TMP}, s{cur}", f"s_mov_b32 s{cur}, s{S_TMP}"] + \
           [f"v_add_u32 v{r}, s{S_RDELTA}, v{r}" for r in regs]

def k_ld(h, buf, rs, tag, scal_first=True):
    sc = [VM(tag, f"buffer_load_dwordx2 v[{rs+2*i}:{rs+2*i+1}], v{V_KSC}, s[{srd_}:{srd_+3}], s{S_PKS} offen offset:{192*h}" + (" nt" if OPT["scnt"] else ""))
          for i, srd_ in enumerate((S_KS, S_KZ))]
    l = []
    for j in range(4):
        so = S_PK0 if j < 2 else S_PK1
        l.append(VM(tag, f"buffer_load_dwordx4 v[{buf+4*j}:{buf+4*j+3}], v{V_KLD}, s[{S_QK}:{S_QK+3}], s{so} offen offset:{(j&1)*1536+384*h}{NTKV}"))
    return sc + l if scal_first else l + sc
def v_ld(h, buf, rs, tag, scal_first=True):
    sc = [VM(tag, f"buffer_load_dwordx2 v[{rs+2*i}:{rs+2*i+1}], off, s[{srd_}:{srd_+3}], s{S_PVS} offset:{8*h}" + (" nt" if OPT["scnt"] else ""))
          for i, srd_ in enumerate((S_VS, S_VZ))]
    l = []
    for r in range(4):
        so = S_PV0 if h == 0 else S_PV1
        l.append(VM(tag, f"buffer_load_dwordx{NVE} v[{buf+4*r}:{buf+4*r+NVE-1}], v{V_VLD}, s[{S_QV}:{S_QV+3}], s{so} offen offset:{r*768}{NTKV}"))
    return sc + l if scal_first else l + sc
def k_cv(h, buf, rs, out):
    l = []
    s0, s1, z0, z1 = V_CT, V_CT + 1, V_CT + 2, V_CT + 3
    for i in range(2):
        l += [f"v_lshlrev_b32 v{s0}, 16, v{rs+i}", f"v_and_b32 v{s1}, s{S_MASK}, v{rs+i}",
              f"v_lshlrev_b32 v{z0}, 16, v{rs+2+i}", f"v_and_b32 v{z1}, s{S_MASK}, v{rs+2+i}",
              f"v_mul_f32 v{s0}, s{S_CS}, v{s0}", f"v_mul_f32 v{s1}, s{S_CS}, v{s1}",
              f"v_mul_f32_e64 v{z0}, -v{z0}, v{s0}", f"v_mul_f32_e64 v{z1}, -v{z1}, v{s1}"]
        if OPT.get("nz", 0) & 1: l[-2:] = [f"v_mov_b32 v{z0}, 0", f"v_mov_b32 v{z1}, 0"]
        for j in range(4):
            a = buf + 4 * j + 2 * i; b = a + 1
            l += [f"v_cvt_f32_i32 v{a}, v{a}", f"v_cvt_f32_i32 v{b}, v{b}",
                  f"v_fma_f32 v{a}, v{a}, v{s0}, v{z0}", f"v_fma_f32 v{b}, v{b}, v{s1}, v{z1}",
                  f"v_cvt_pk_bf16_f32 v{out+4*j+2*h+i}, v{a}, v{b}"]
    return l
def k_st(j, out, tag="kst", STF=STF):
    va = V_KST; g = []
    if j:
        va = V_KA + (j & 1); g.append(f"v_xor_b32 v{va}, {16*j}, v{V_KST}")
    g.append(VM(tag, f"buffer_store_dwordx4 v[{out+4*j}:{out+4*j+3}], v{va}, s[{S_WS}:{S_WS+3}], s{S_PK0} offen offset:{j*768}{STF}"))
    return g
def v_cv(h, buf, rs, out):
    l = []
    s0, s1, z0, z1 = V_CT, V_CT + 1, V_CT + 2, V_CT + 3
    for i in range(2):
        l += [f"v_lshlrev_b32 v{s0}, 16, v{rs+i}", f"v_and_b32 v{s1}, s{S_MASK}, v{rs+i}",
              f"v_lshlrev_b32 v{z0}, 16, v{rs+2+i}", f"v_and_b32 v{z1}, s{S_MASK}, v{rs+2+i}",
              f"v_mul_f32_e64 v{z0}, -v{z0}, v{s0}", f"v_mul_f32_e64 v{z1}, -v{z1}, v{s1}"]
        if OPT.get("nz", 0) & 2: l[-2:] = [f"v_mov_b32 v{z0}, 0", f"v_mov_b32 v{z1}, 0"]
        for e in range(NVE):
            a = buf + 4 * (2 * i) + e; b = buf + 4 * (2 * i + 1) + e
            l += [f"v_cvt_f32_i32 v{a}, v{a}", f"v_cvt_f32_i32 v{b}, v{b}",
                  f"v_fma_f32 v{a}, v{a}, v{s0}, v{z0}", f"v_fma_f32 v{b}, v{b}, v{s1}, v{z1}"]
    for e, i in [(0, 0), (1, 0), (0, 1), (1, 1), (2, 0), (2, 1), (3, 0), (3, 1)][:2 * NVE]:
        l.append(f"v_cvt_pk_bf16_f32 v{out+4*e+2*h+i}, v{buf+8*i+e}, v{buf+8*i+4+e}")
    return l
def v_st(e, out, tag="vst", STF=STF):
    so = S_PV0 if (e < 2 or V64) else S_PV2
    return [VM(tag, f"buffer_store_dwordx4 v[{out+4*e}:{out+4*e+3}], v{V_VST}, s[{S_WS}:{S_WS+3}], s{so} offen offset:{e*1024 if V64 else (e&1)*3072}{STF}")]
def k_adv():
    return [f"s_add_u32 s{S_PK0}, s{S_PK0}, {8*STAGE}", f"s_add_u32 s{S_PK1}, s{S_PK1}, {8*STAGE}", f"s_add_u32 s{S_PKS}, s{S_PKS}, {4*384}"]
def v_adv():
    return [f"s_add_u32 s{r}, s{r}, {8*STAGE}" for r in (S_PV0, S_PV1, S_PV2)] + [f"s_add_u32 s{S_PVS}, s{S_PVS}, {8*64}"]
HT = {"ka": (k_ld, k_cv, 0, BX, V_RS[0], BX), "kb": (k_ld, k_cv, 1, BY, V_RS[1], BX),
      "va": (v_ld, v_cv, 0, BZ, V_RS[0], BZ), "vb": (v_ld, v_cv, 1, BY, V_RS[1], BZ)}
def flag_post(first=False):
    return [f"v_add_u32 v{V_FVAL}, 1, v{V_FVAL}"] + [
            VM("flag", f"buffer_store_dword v{V_FVAL}, v{V_FLAG}, s[{S_FLG}:{S_FLG+3}], 0 offen")] * (OPT["l2"] == 1 or (OPT["l2"] == 2 and first)) + [
            VM("flag", f"buffer_store_dword v{V_FVAL}, v{V_FLAG}, s[{S_FLG}:{S_FLG+3}], 0 offen offset:32 sc1")]
def poll_addr():
    return [f"v_bfe_u32 v{V_POLL+1}, v{V_DMA}, 4, 6", f"v_lshlrev_b32 v{V_POLL+1}, 2, v{V_POLL+1}"]
def poll_load():
    return poll_addr() + [VM("poll", f"buffer_load_dword v{V_POLL}, v{V_POLL+1}, s[{S_FLG}:{S_FLG+3}], s{S_FOFF} offen sc1")]
def poll_test():
    return [f"v_subrev_u32 v{V_POLL}, s{S_NEED}, v{V_POLL}", f"v_cmp_lt_u32 vcc, 15, v{V_POLL}", "s_nop 0", f"s_and_b32 s{S_TP}, vcc_lo, 0xff"]
def smem_flags():
    return [f"s_buffer_load_dwordx8 s[{S_PT}:{S_PT+7}], s[{S_FLG}:{S_FLG+3}], s{S_FOFF} glc"]
def smem_reduce():
    return [f"s_sub_u32 s{S_PT+i}, s{S_PT+i}, s{S_NEED}" for i in range(8)] + [f"s_max_u32 s{S_PT}, s{S_PT}, s{S_PT+i}" for i in range(1, 8)]
def smem_test():
    return smem_flags() + ["s_waitcnt lgkmcnt(0)"] + smem_reduce() + [f"s_cmp_lt_u32 s{S_PT}, 16"]
def poll_slow(site):
    l = [f"L_pollslow{site}:"] + ([f"s_add_u32 s{S_TAG+1}, s{S_TAG+1}, {1 << (6 * site)}"] if OPT["stamp"] else [])
    l += [f"s_mov_b32 s{S_TP}, {60 if site == 0 else 200}", f"L_pollsm{site}:"] + smem_test() + [f"s_cbranch_scc1 L_pollok{site}",
          f"s_sub_u32 s{S_TP}, s{S_TP}, 1", f"s_cbranch_scc1 L_pollvec{site}", "s_sleep 1", f"s_branch L_pollsm{site}"]
    l += [f"L_pollvec{site}:"] + poll_addr() + [
            f"s_sub_u32 s{S_BUDGET}, s{S_BUDGET}, 1",
            f"s_cbranch_scc1 L_pollgiveup{site}",
            "s_sleep 2",
            f"buffer_load_dword v{V_POLL}, v{V_POLL+1}, s[{S_FLG}:{S_FLG+3}], s{S_FOFF} offen sc1",
            "s_waitcnt vmcnt(0)"]
    if site == 0 and OPT["l2"]:
        l += [f"s_bitcmp1_b32 s{S_NEED}, 9", "s_cbranch_scc1 L_nomix",
              f"v_xor_b32 v{V_POLL+1}, s{S_NEED}, v{V_POLL}", f"v_lshrrev_b32 v{V_POLL+1}, 5, v{V_POLL+1}", f"v_add_u32 v{V_POLL+1}, -1, v{V_POLL+1}",
              f"v_cmp_gt_u32 vcc, 31, v{V_POLL+1}", "s_nop 1", f"s_and_b32 s{S_TP}, vcc_lo, {'0xff' if OPT['l2'] == 3 else '0xff00'}", "s_cbranch_scc0 L_nomix"]
        l += fin([x for j in range(4) for x in k_st(j, BX)] + [x for e in range(NVE) for x in v_st(e, 112)])
        l += ["s_waitcnt vmcnt(0)", "s_barrier", f"s_and_b32 s{S_NEED}, s{S_NEED}, 0xfffffc00", f"s_add_u32 s{S_NEED}, s{S_NEED}, {16 << 5}",
              f"v_mov_b32 v{V_FVAL}, s{S_NEED}", f"s_add_u32 s{S_NEED}, s{S_NEED}, 1", f"s_mov_b32 s{S_FOFF}, 32"] + fin(flag_post()) + ["s_branch L_pollvec0", "L_nomix:"]
    l += poll_test() + [
            f"s_cbranch_scc1 L_pollvec{site}",
            f"s_branch L_pollok{site}",
            f"L_pollgiveup{site}:",
            f"s_mov_b32 s{S_BUDGET}, 0",
            f"s_branch L_pollok{site}"]
    return l
def tag_load():
    return [VM("tag", f"buffer_load_dword v{V_FVAL}, off, s[{S_DBG}:{S_DBG+3}], s{S_HOFF} sc1")]
def tag_check():
    return [f"s_cmp_lg_u32 s{S_WAVE}, 0", "s_cbranch_scc1 L_tagdone",
            f"v_readfirstlane_b32 s{S_TAG}, v{V_FVAL}", f"s_mov_b32 s{S_RET}, 100",
            "s_waitcnt lgkmcnt(0)", f"s_and_b32 s{S_OWN}, s{S_OWN}, 0xfffffc00",
            "L_tagretry:", f"s_cmp_eq_u32 s{S_TAG}, s{S_OWN}", f"s_cselect_b32 s{S_TAG}, 0, s{S_TAG}", f"s_cmp_lg_u32 s{S_TAG}, 0", "s_cbranch_scc1 L_tagok",
            f"s_sub_u32 s{S_RET}, s{S_RET}, 1", "s_cbranch_scc1 L_tagslow", "s_sleep 4",
            f"s_buffer_load_dword s{S_TAG}, s[{S_DBG}:{S_DBG+3}], s{S_HOFF} glc", "s_waitcnt lgkmcnt(0)", "s_branch L_tagretry",
            "L_tagok:", f"s_add_u32 s{S_TAG}, s{S_TAG}, s{S_XCC}", f"v_mov_b32 v{V_FVAL}, s{S_TAG}", f"v_mov_b32 v{V_T}, {RING}", DS("w", f"ds_write_b32 v{V_T}, v{V_FVAL}"), "L_tagdone:"]
def tag_get():
    return [f"v_mov_b32 v{V_T}, {RING}", DS("tg", f"ds_read_b32 v{V_T+1}, v{V_T}")]
def tag_use():
    return [f"v_readfirstlane_b32 s{S_NEED}, v{V_T+1}", f"s_add_u32 s{S_NEED}, s{S_NEED}, 1"]
def tag_slow():
    return ["L_tagslow:",
            f"s_sub_u32 s{S_BUDGET}, s{S_BUDGET}, 1",
            "s_cbranch_scc1 L_taggiveup",
            "s_sleep 2",
            f"buffer_load_dword v{V_FVAL}, off, s[{S_DBG}:{S_DBG+3}], s{S_HOFF} sc1",
            "s_waitcnt vmcnt(0)",
            f"v_readfirstlane_b32 s{S_TAG}, v{V_FVAL}", "s_nop 0", f"s_cmp_eq_u32 s{S_TAG}, s{S_OWN}", "s_cbranch_scc1 L_tagslow",
            f"s_cmp_eq_u32 s{S_TAG}, 0", "s_cbranch_scc1 L_tagslow",
            "s_branch L_tagok",
            "L_taggiveup:",
            f"s_mov_b32 s{S_BUDGET}, 0",
            "s_branch L_tagok"]

def text_of(x):
    return "s_waitcnt" if isinstance(x, (W, LG)) else (x.text if isinstance(x, (VM, DS)) else x)
def kind_of(x):
    t = text_of(x)
    if t.endswith(":"): return "label"
    if t.startswith("v_"): return "valu"
    if t.startswith("ds_"): return "ds"
    if t.startswith("buffer_store"): return "store"
    if t.startswith("buffer_"): return "load"
    return "salu"
def cost_of(x):
    k = kind_of(x); t = text_of(x)
    if k == "label": return 0
    if k == "store": return 20 if "x4" in t else (OPT["x2c"] if "x2" in t else 16 if "x3" in t else 8)
    if k == "load": return OPT["ldc"]
    if t.startswith("ds_write"): return 16 if ("b128" in t or "write2" in t) else 8
    if t.startswith(("v_exp", "v_rcp")): return 8
    if t.startswith("v_mfma"): return 32 if "x4_f32" in t else 8
    if t.startswith("s_nop"): return 4 * (int(t.split()[1]) + 1)
    if t.startswith("s_cbranch") or t.startswith("s_branch"): return 12
    if t.startswith("s_barrier"): return 8
    return 4
def gap_time(ops):
    t = 4; prev = None
    for o in ops:
        if o is None: continue
        k = kind_of(o)
        if k == "label": continue
        if k == "salu": t += cost_of(o)
        else: t = max(t, 8) + cost_of(o) + (8 if (k != "valu" and prev == "valu") else 0)
        prev = k
    return t

class Stream:
    def __init__(self, ops, first, last, maxper=99, dense=0):
        self.nb = {}; self.dl = []; l = []
        for o in ops:
            if isinstance(o, tuple):
                if o[0] == "nb": self.nb[len(l)] = o[1]
                else: self.dl.append((len(l), o[1]))
            else: l.append(o)
        ops = l
        self.ops = list(ops); self.first = first; self.last = last; self.maxper = maxper; self.dense = dense
        self.total = sum(cost_of(o) for o in self.ops); self.done = 0; self.i = 0
        self.gate = {}; self.i0 = 0

def pack(NG, A, B, C, T, streams, novm=(), nosalu=(), vmgap=4):
    out = []; over = 0; lastvm = -99
    for g in range(NG):
        a, b, c, tl = list(A[g]), list(B[g]), list(C[g]), list(T[g])
        cnt = {}; inC = set(); blocked = set()
        while True:
            best = None; bl = None; bsec = None
            for st in streams:
                if st.i >= len(st.ops) or g < st.first: continue
                if g < st.nb.get(st.i, 0): continue
                force = g >= st.last or any(st.i < n and g >= dg for n, dg in st.dl)
                if (cnt.get(id(st), 0) >= st.maxper or id(st) in blocked) and not force: continue
                o = st.ops[st.i]; k = kind_of(o); cst = cost_of(o)
                if k == "salu" and g in nosalu:
                    assert not force, (g, text_of(o))
                    continue
                if k in ("load", "store") and (g in novm or g - lastvm < vmgap) and not force: continue
                if k in ("load", "store", "ds"):
                    sec = "b" if id(st) not in inC and id(st) not in blocked else "c"
                    if sec == "c" and not force: continue
                elif k == "salu" and not a and cnt.get(id(st), 0) == 0:
                    sec = "a"
                else: sec = "c"
                tgt = st.total * (g - st.first + 1) / (st.last - st.first + 1)
                lag = tgt - st.done
                if not force:
                    if lag < cst / 2 - OPT["ahead"] and cst: continue
                    trial = (a + [o] if sec == "a" else a) + (b + [o] if sec == "b" else b) + (c + [o] if sec == "c" else c) + tl
                    gt = gap_time(trial)
                    if gt > 16:
                        if g % 2 == 0: continue
                        big = k == "store" or text_of(o).startswith(("ds_write_b128", "ds_write2"))
                        lim = max(20, st.dense) if lag > 24 else 16
                        if big and not (a + b + c + tl): lim = 32
                        if gt > lim: continue
                key = (force, k in ("load", "store"), lag / max(1, (st.last - g + 1)) ** 0.5)
                if best is None or key > bl: best = st; bl = key; bsec = sec
            if best is None: break
            o = best.ops[best.i]
            if bsec == "a": a.append(o)
            elif bsec == "b":
                b.append(o)
            else: c.append(o)
            if bsec == "c" or bsec == "b" and kind_of(o) != "ds" and False: inC.add(id(best))
            if bsec == "c": inC.add(id(best))
            if " m0," in text_of(o): blocked.add(id(best))
            if kind_of(o) in ("load", "store"): lastvm = g
            best.i += 1; best.done += cost_of(o); cnt[id(best)] = cnt.get(id(best), 0) + 1
        ops = a + b + c + tl
        tt = gap_time(ops)
        if tt > 16: over += tt - 16
        out.append(ops)
    for st in streams: assert st.i == len(st.ops)
    return out, over

def pack_dense(NG, A, B, C, T, streams, novm=(), nosalu=(), vmgap=2):
    jobs = []
    for st in streams:
        r = st.first; rel = []
        for i in range(len(st.ops)):
            r = max(r, st.nb.get(i, 0)); rel.append(r)
        for i, o in enumerate(st.ops):
            d = min([st.last] + [dg for n, dg in st.dl if i < n])
            k = kind_of(o)
            jobs.append([rel[i], d, cost_of(o) + (OPT["dx"] if k in ("store", "load") else 0) - (2 if k == "salu" else 0)])
    for g in range(NG): jobs.append([g, g, max(0, gap_time(A[g] + B[g] + C[g] + T[g]) - 8)])
    level = [None] * NG
    while jobs:
        free = [g for g in range(NG) if level[g] is None]
        pts_r = sorted({j[0] for j in jobs}); pts_d = sorted({j[1] for j in jobs})
        best = None
        for a_ in pts_r:
            ws = sorted((j[1], j[2]) for j in jobs if j[0] >= a_)
            w = 0; i = 0
            for b_ in pts_d:
                if b_ < a_: continue
                while i < len(ws) and ws[i][0] <= b_: w += ws[i][1]; i += 1
                n = sum(1 for g in free if a_ <= g <= b_)
                if n and (best is None or w / n > best[0]): best = (w / n, a_, b_)
        dn, a_, b_ = best
        if dn <= 8: break
        for g in free:
            if a_ <= g <= b_: level[g] = dn
        jobs = [j for j in jobs if not (j[0] >= a_ and j[1] <= b_)]
    extra = [2 * (level[g] - 8) if (level[g] is not None and g % 2) else 0 for g in range(NG)]
    return pack_dense1(NG, A, B, C, T, streams, novm, nosalu, vmgap, extra)
def pack_dense1(NG, A, B, C, T, streams, novm, nosalu, vmgap, extra):
    out = []; over = 0; lastvm = -99
    fixed = [gap_time(A[g] + B[g] + C[g] + T[g]) - (8 if not (B[g] + C[g] + T[g]) else 8) for g in range(NG)]
    for g in range(NG):
        a, b, c, tl = list(A[g]), list(B[g]), list(C[g]), list(T[g])
        carry = (carry if g else 0) + extra[g]
        bud = 16 + (carry if g % 2 else 0)
        blocked = set(); inC = set()
        for st in streams: st.i0 = st.i
        while True:
            best = None; bl = None
            cur = gap_time(a + b + c + tl)
            for st in streams:
                if st.i >= len(st.ops) or g < st.first or g < st.nb.get(st.i, 0): continue
                if st.i in st.gate:
                    o_, j_ = st.gate[st.i]
                    if (o_.i0 if (kind_of(st.ops[st.i]) == "store" and g < NG - 1) else o_.i) <= j_: continue
                    if o_.i0 <= j_: inC.add(id(st))
                force = g >= st.last or any(st.i < n and g >= dg for n, dg in st.dl)
                if id(st) in blocked and not force: continue
                o = st.ops[st.i]; k = kind_of(o)
                if k == "salu" and g in nosalu:
                    assert not force
                    continue
                mem = k in ("load", "store", "ds")
                if k in ("load", "store") and (g in novm or g - lastvm < vmgap) and not force: continue
                sec = "b" if (mem and id(st) not in inC) else ("a" if (k == "salu" and not a and id(st) not in inC and id(st) not in blocked and not any(x is st for x in ())) else "c")
                if sec == "a" and any(id(st) == y for y in inC): sec = "c"
                if mem and sec == "c" and not force: continue
                trial = gap_time((a + [o] if sec == "a" else a) + (b + [o] if sec == "b" else b) + (c + [o] if sec == "c" else c) + tl)
                if not force and trial > bud and not (cur < 16 and trial <= bud + 12 and g % 2): continue
                tgt = st.total * (g - st.first + 1) / (st.last - st.first + 1)
                n_, dd = min([(len(st.ops), st.last)] + [(n, dg) for n, dg in st.dl if st.i < n], key=lambda x: x[1])
                need = sum(cost_of(x) for x in st.ops[st.i:n_]) / max(1, dd - g + 1)
                key = (force, mem, need)
                if best is None or key > bl: best = st; bl = key; bsec = sec
            if best is None: break
            o = best.ops[best.i]
            {"a": a, "b": b, "c": c}[bsec].append(o)
            if bsec == "c" or (bsec == "b"):
                if bsec == "c": inC.add(id(best))
                else: usedb = True
            if bsec in ("a", "b"): best._g = g
            if " m0," in text_of(o): blocked.add(id(best))
            if kind_of(o) in ("load", "store"): lastvm = g
            best.i += 1; best.done += cost_of(o)
            if bsec == "b" and not a: a.append(None)
        a = [x for x in a if x is not None]
        ops = a + b + c + tl
        tt = gap_time(ops)
        carry = max(0, carry - max(0, tt - 16)) if extra[g] or g % 2 == 0 else 0
        if tt > 16: over += tt - 16
        out.append(ops)
    for st in streams: assert st.i == len(st.ops)
    return out, over

POLLSITES = []
def gen_seg(name, groups, nxt, sm=(), bars=(), tasks=(), dma=(), extra=(), endops=(), fixed=(), peel=True, vmgap=None):
    starts = []; n = 0
    for g in groups: starts.append(n); n += len(g.mf)
    NG = n
    A = [[] for _ in range(NG)]; B = [[] for _ in range(NG)]; C = [[] for _ in range(NG)]; T = [[] for _ in range(NG)]
    streams = []; novm = set(range(0, NG, 2)); nosalu = set()
    allg = list(groups) + list(nxt)
    assert len(groups) % 3 == 0
    for i, g in enumerate(groups):
        g0 = starts[i]; ln = len(g.mf)
        if i + 2 < len(allg):
            t = allg[i + 2]
            if not (OPT["ab"] & 4 and name.startswith("k") and i % 2): B[g0].append(rd_op(i + 2, 0, t)); B[g0 + ln // 2].append(rd_op(i + 2, 1, t))
            if t.reb:
                assert g0 > 0
                C[g0 - 1] += t.reb
        if i + 1 < len(allg):
            A[g0 + ln - 1].append(LG(("fr", (2 * i + 2) % NFS), ("fr", (2 * i + 3) % NFS)))
    for ops, f, l in sm: streams.append(Stream(ops, f, l))
    streams += list(extra)
    if endops:
        A[NG-4] += endops[:1]; A[NG-2] += [A[NG-1][0]] + list(endops[1:-1]); A[NG-1] = []; T[NG-1] = list(endops[-1:]); nosalu |= {NG-2, NG-1}
    for grp in dma:
        dl = []
        for part, pos in grp[:-2]: dl += dma_tile(part, pos, peel)
        k = max(i for i, x in enumerate(dl) if isinstance(x, VM)) + 1
        lim = NG - 3 if endops else NG - 1
        if grp[-1] + 1 > lim: k = len(dl)
        streams.append(Stream(dl[:k], grp[-2], grp[-1], maxper=2))
        if dl[k:]: streams.append(Stream(dl[k:], grp[-1] + 1, min(lim, grp[-1] + 12), maxper=2))
    bars = [(g, list(tg)) for g, tg in bars]
    for t in tasks:
        k_ = t[0]
        if k_ == "vst" and t[1] >= NVE: continue
        if k_ == "cv":
            _, cv, h, buf, rs, outb = HT[t[1]]
            ops = cv(h, buf, rs, outb)[t[2]:t[3]]
            if t[2] == 0: ops = [W(t[1])] + ops
            streams.append(Stream(ops, t[4], t[5]))
        elif k_ in ("kst", "vst"):
            grp = k_st(t[1], BX) if k_ == "kst" else v_st(t[1], BZ)
            g = t[2]; assert not B[g] and not A[g], (name, g)
            B[g].append(grp[-1]); novm |= set(range(g - OPT["sb"], g + OPT["sa"] + 1))
            if grp[:-1]: streams.append(Stream(grp[:-1], max(0, g - 5), g - 1))
        elif k_ in ("ld", "ldn"):
            ld, _, h, buf, rs, _o = HT[t[1]]
            adv = {"ka": k_adv(), "va": v_adv()}.get(t[1], []) if k_ == "ld" else []
            ops = ld(h, buf, rs, t[1])
            if len(t) > 4: ops = ops[2:] if t[4] == "raw" else ops[:2]
            streams.append(Stream(adv + ops, t[2], t[3], maxper=1))
        elif k_ == "post":
            bi = t[2] if len(t) > 2 else -1
            bars[bi][1].append(t[1])
            streams.append(Stream(flag_post(), bars[bi][0] + 1, min(NG - 3, bars[bi][0] + 14), maxper=1))
        elif k_ == "pf":
            streams.append(Stream([VM("pf", f"buffer_load_dword v{V_T4}, v{V_DMA}, s[{S_DBG}:{S_DBG+3}], s{S_HOFF} offen")], t[1], t[2]))
        elif k_ == "rld":
            streams.append(Stream([VM("rs", f"buffer_load_dwordx4 v[{V_T4}:{V_T4+3}], v{V_DMA}, s[{S_WS}:{S_WS+3}], s{S_RC} offen sc1")], t[1], t[2]))
        elif k_ == "rst":
            g = t[1]; assert g % 2 == 1 and not B[g] and not A[g] and not A[g - 1], (name, g)
            A[g - 1].append(W("rs")); B[g].append(VM("rs2", f"buffer_store_dwordx4 v[{V_T4}:{V_T4+3}], v{V_DMA}, s[{S_WS}:{S_WS+3}], s{S_RC} offen sc1"))
            novm |= set(range(g - OPT["sb"], g + OPT["sa"] + 1))
            streams.append(Stream([f"s_add_u32 s{S_RC}, s{S_RC}, s{S_RD}", f"s_sub_u32 s{S_RD}, 1024, s{S_RD}"], g + 1, g + 8, maxper=1))
        elif k_ == "pollld": streams.append(Stream(poll_load(), t[1], t[2], maxper=1))
        elif k_ == "pollchk":
            ps = len(POLLSITES); POLLSITES.append(ps)
            g = t[1]; assert g % 4 == 1
            pt = poll_test()
            A[g] += [W("poll")]; T[g] += pt[:2]; novm |= {g, g + 4}
            A[g + 3] += [pt[3]]; A[g + 4] += [f"s_cbranch_scc1 L_pollslow{ps}", f"L_pollok{ps}:"]; nosalu |= {g + 3, g + 4}
            A[g + 5] += [f"s_add_u32 s{S_NEED}, s{S_NEED}, 1"]
        elif k_ == "spollld": A[t[1]] += smem_flags()
        elif k_ == "spollchk":
            ps = len(POLLSITES); POLLSITES.append(ps)
            A[t[1]] += ["s_waitcnt lgkmcnt(0)"]
            streams.append(Stream(smem_reduce(), t[1] + 1, t[2] - 1, maxper=3))
            A[t[2]] += [f"s_cmp_ge_u32 s{S_PT}, 16", f"s_cbranch_scc1 L_pollslow{ps}", f"L_pollok{ps}:", f"s_add_u32 s{S_NEED}, s{S_NEED}, 1"]
        elif k_ == "step": streams.append(Stream(rd_step(t[1]), t[2], t[3], maxper=1))
        elif k_ == "q": streams.append(Stream(q_dma(t[1]), t[2], t[3], maxper=2))
        else: raise Exception(k_)
    for g, tags in bars:
        i = [j for j in range(len(groups)) if starts[j] + len(groups[j].mf) - 1 == g]
        assert i, (name, g)
        if len(groups[i[0]].mf) == 8:
            A[g - 2] += A[g]; A[g] = []
            if tags: A[g - 1] += [W(*tags)]
        elif tags: A[g - 2] += [W(*tags)]
        A[g] += ["s_barrier"]; novm |= {g}
    for g, sec, ops in fixed: {"A": A, "B": B, "C": C, "T": T}[sec][g] += ops
    if endops:
        for st_ in streams: st_.last = min(st_.last, NG - 2)
    m0w = sorted((st.first, st.last) for st in streams if any(" m0," in text_of(o) for o in st.ops))
    assert all(m0w[i][1] < m0w[i + 1][0] for i in range(len(m0w) - 1)), (name, m0w)
    if name in str(OPT["dense"]).split(","): fill, over = pack_dense(NG, A, B, C, T, streams, novm, nosalu, vmgap or OPT["dvg"])
    else: fill, over = pack(NG, A, B, C, T, streams, novm, nosalu, vmgap or OPT["vmgap"])
    if over: print(f"seg {name}: over budget by {over} cycles", file=sys.stderr)
    out = istamp(name)
    g = 0
    for i, gr in enumerate(groups):
        for j, d, b, c in gr.mf:
            if (OPT["pvs"] & 1 and d[0] in "a ") or (OPT["pvs"] & 2 and d.startswith("v")): out.append(f"{MF} {d}, {b}, {FR(2*i+j)}, {c}")
            else: out.append(f"{MF} {d}, {FR(2*i+j)}, {b}, {c}")
            out += fill[g]; g += 1
    return with_nop(out)

GBAR = 79
def seg_groups(it):
    return qk_full(it + 1) if it % 2 else pv_seq(it - 2)
def gen_iter(it, tasks=(), dma=(), name=None, endops=(), peel=False, nxt=None, extra=(), bars=None, groups=None, sm=None, step=True):
    q = it % 2
    smB = softmax_part(it, 1); smA = softmax_part(it + 1, 0)
    if sm is None: sm = ([(smB + [("dl", 57), ("nb", 47)] + smA, 0, 95)] if OPT["flex"] else [(smB, 0, 50), (smA, 52, 95)]) if q else [(smB + smA, 0, 95)]
    need = [("dv", (it - 1) % 8), ("dv", it % 8)] if q else [("dk", (it + 2) % 8), ("dk", (it + 3) % 8)]
    tasks = list(tasks) + ([("step", "p" if q else "q", 30, GBAR - 3)] if step else [])
    return gen_seg(name or f"i{it}", groups or seg_groups(it), nxt if nxt is not None else seg_groups(it + 1)[:2], sm,
                   bars if bars is not None else [(GBAR, need)], tasks, dma, extra, endops, peel=peel)

K_ = lambda *j: tuple(("k", x) for x in j)
V_ = lambda *j: tuple(("v", x) for x in j)
def steady(k):
    ckv, ckk = OPT["ckv"], OPT["ckk"]
    plv, plk = OPT["plv"], OPT["plk"]
    if OPT["bal"]:
        c = [int(x) for x in str(OPT["cut"]).split(",")]
        a1, a2, b1, b2, v1, v2, w1 = c
        return {
            5: ([("cv", "ka", 0, a1, 0, 95), ("pollchk", 1), ("vst", 0, 9), ("vst", 1, 17), ("vst", 2, 25), ("vst", 3, 33), ("post", "vst")], [K_(0, 1) + (41, 74)]) if ckk == 1 else
               ([("cv", "ka", 0, a1, 0, 95), ("pollchk", ckk), ("vst", 0, 1), ("vst", 1, 9), ("vst", 2, 17), ("vst", 3, 25), ("post", "vst")], [K_(0, 1) + (ckk + 7, 92)]),
            6: ([("cv", "ka", a1, a2, 0, 95), ("ld", "kb", 0, 44)] + [("rld", 70, 92)] * OPT["rs"], [K_(2, 3) + (0, 90)]),
            7: ([("cv", "ka", a2, 99, 0, 60), ("cv", "kb", 0, b1, 61, 95), ("ld", "va", 11, 70), ("pollld", plv, plv + 8)], [K_(4, 5) + (11, 92)]),
            0: ([("cv", "kb", b1, b2, 0, 95), ("pollchk", ckv)] + [("rst", 81)] * OPT["rs"], [V_(0, 1) + (ckv + 7, 74)]),
            1: ([("cv", "kb", b2, 99, 0, 30), ("cv", "va", 0, v1, 31, 95), ("ld", "vb", 32, 80)], [V_(2, 3) + (0, GBAR - 5)]),
            2: ([("cv", "va", v1, v2, 0, 95), ("kst", 0, 1), ("kst", 1, 9), ("kst", 2, 17), ("kst", 3, 25), ("post", "kst")], [K_(6, 7) + (33, 74)]),
            3: ([("cv", "va", v2, 99, 0, 50), ("cv", "vb", 0, w1, 51, 95), ("ld", "ka", 0, 44)], [V_(4, 5) + (0, 90)]),
            4: ([("cv", "vb", w1, 99, 0, 95), ("pollld", plk, plk + 16)] + ([("pf", 80, 92)] if OPT["pf2"] else []), [V_(6, 7) + (0, GBAR - 5)]),
        }[k]
    return {
        1: ([("cv", "va", 0, 22, 0, 95), ("ld", "vb", 0, 44)], [V_(2, 3) + (0, GBAR - 5)]),
        2: ([("cv", "va", 22, 99, 0, 95), ("kst", 0, 1), ("kst", 1, 9), ("kst", 2, 17), ("kst", 3, 25), ("post", "kst")], [K_(6, 7) + (33, 74)]),
        3: ([("cv", "vb", 0, 22, 0, 95), ("ld", "ka", 0, 44)], [V_(4, 5) + (0, GBAR - 5)]),
        4: ([("cv", "vb", 22, 99, 0, 95), ("pollld", plk, plk + 16)] + ([("pf", 80, 92)] if OPT["pf2"] else []), [V_(6, 7) + (0, GBAR - 5)]),
        5: ([("cv", "ka", 0, 16, 0, 95), ("pollchk", 1), ("vst", 0, 9), ("vst", 1, 17), ("vst", 2, 25), ("vst", 3, 33), ("post", "vst")], [K_(0, 1) + (41, 74)]),
        6: ([("cv", "ka", 16, 99, 0, 95), ("ld", "kb", 0, 30)], [K_(2, 3) + (31, 74)]),
        7: ([("cv", "kb", 0, 24, 40, 95), ("ld", "va", 11, 40), ("pollld", plv, plv + 8)], [K_(4, 5) + (41, 90)]),
        0: ([("cv", "kb", 24, 99, 0, 95), ("pollchk", ckv)], [V_(0, 1) + (ckv + 7, ckv + 44)]),
    }[k]

GA = V_RS[0]; TA = V_RS[0] + 1; BA = V_RS[0] + 2
RL = [V_CT, V_CT + 4, NEGM(0), NEGM(1)]
S_EO = 24
def epi_addr():
    return [f"v_bfe_u32 v{TA}, v{V_DMA}, 8, 2", f"v_mul_u32_u24 v{GA}, 1536, v{TA}", f"v_lshlrev_b32 v{BA}, 4, v{TA}",
            f"v_bfe_u32 v{TA}, v{V_DMA}, 4, 4", f"v_mul_u32_u24 v{TA}, {12 if V64 else 8}, v{TA}", f"v_add_u32 v{GA}, v{GA}, v{TA}", f"v_mov_b32 v{TA}, 1.0"] + [f"v_mov_b32 v{ONES+i}, 0x3f803f80" for i in range(4 * OPT["lmf"])] + [
            f"s_lshl_b32 s{S_EO}, s{S_QB}, 2", f"s_add_u32 s{S_EO}, s{S_EO}, s{S_WAVE}", f"s_mul_i32 s{S_EO}, s{S_EO}, {STAGE}",
            f"s_add_u32 s{S_QL}, s{S_EO}, 6144", f"s_add_u32 s{S_QS}, s{S_EO}, 12288", f"s_add_u32 s{S_TAG}, s{S_EO}, 18432"]
S_EQ = [S_EO, S_QL, S_QS, S_TAG]
def epi_l(qs, gap=("s_nop 7", "s_nop 1"), acc=False):
    fl = [f"v_mfma_f32_16x16x4_f32 v[{RL[q]}:{RL[q]+3}], v{V_L[q]}, v{TA}, " + (f"v[{RL[q]}:{RL[q]+3}]" if acc else "0") for q in qs] + list(gap)
    return fl + [f"v_rcp_f32 v{RL[q]+r}, v{RL[q]+r}" for q in qs for r in range(4)]
class Epi:
    def __init__(self, temps): self.temps = temps; self.n = 0; self.pend = []
    def flush(self, k=99):
        p = self.pend[:k]; self.pend = self.pend[k:]
        return p
    def chunk(self, qb, n, pk=False, inv=False):
        p = []
        if V64:
            for r in range(4):
                o = self.temps[self.n % len(self.temps)]; self.n += 1; rl = RL[qb] + r
                p += [f"v_accvgpr_read_b32 v{o+e}, a{O(qb,6*n+e)+r}" for e in range(6)]
                if pk: p += [f"v_pk_mul_f32 v[{o+2*i}:{o+2*i+1}], v[{o+2*i}:{o+2*i+1}], v[{rl&~1}:{(rl&~1)+1}] " + ("op_sel:[0,1] op_sel_hi:[1,1]" if rl & 1 else "op_sel_hi:[1,0]") for i in range(3)]
                else: p += [f"v_mul_f32 v{o+e}, v{o+e}, v{rl}" for e in range(6)]
                p += [f"v_cvt_pk_bf16_f32 v{o+i}, v{o+2*i}, v{o+2*i+1}" for i in range(3)] + self.flush(1)
                self.pend.append(VM("out", f"buffer_store_dwordx3 v[{o}:{o+2}], v{GA}, s[{S_OUT}:{S_OUT+3}], s{S_EQ[qb]} offen offset:{n*192 + r*384}{OF}"))
            return p
        ob = self.temps[self.n % len(self.temps)]; self.n += 1
        for r in range(4):
            o = ob + 4 * r
            if inv:
                p += [f"v_mul_f32 v{o+e}, v{OV(qb,3*e+n)+r}, v{RL[qb]+r}" for e in range(4)]
                p += [f"v_cvt_pk_bf16_f32 v{o+i}, v{o+2*i}, v{o+2*i+1}" for i in range(2)] + self.flush(1)
                self.pend.append(VM("out", f"buffer_store_dwordx2 v[{o}:{o+1}], v{GA}, s[{S_OUT}:{S_OUT+3}], s{S_EQ[qb]} offen offset:{n*128 + r*384}{OF}"))
                continue
            p += [f"v_accvgpr_read_b32 v{o+e}, a{O(qb,3*e+n)+r}" for e in range(4)]
            rl = RL[qb] + r
            if pk: p += [f"v_pk_mul_f32 v[{o+2*i}:{o+2*i+1}], v[{o+2*i}:{o+2*i+1}], v[{rl&~1}:{(rl&~1)+1}] " + ("op_sel:[0,1] op_sel_hi:[1,1]" if rl & 1 else "op_sel_hi:[1,0]") for i in range(2)]
            else: p += [f"v_mul_f32 v{o+e}, v{o+e}, v{rl}" for e in range(4)]
            p += [f"v_cvt_pk_bf16_f32 v{o+i}, v{o+2*i}, v{o+2*i+1}" for i in range(2)]
            p += self.flush(1)
            self.pend.append(VM("out", f"buffer_store_dwordx2 v[{o}:{o+1}], v{GA}, s[{S_OUT}:{S_OUT+3}], s{S_EQ[qb]} offen offset:{n*128 + r*384}{OF}"))
        return p

def gen_tail():
    sp = softmax_part
    g57 = qk_half(58) + rebase(qk_half(59), V_RDK, A0 - A2)
    g58 = pv_seq(56)
    g59 = rebase(qk_half(60), V_RDK, A1 - A0) + rebase(qk_half(61), V_RDK, A2 - A1)
    g60 = rebase(pv_seq(58), [V_RD], B2 - B1) + rebase(pv_seq(59), [V_RD], B0 - B2)
    g61 = rebase(pv_seq(60), [V_RD], B1 - B0) + rebase(qk_half(62), V_RDK, A0 - A2)
    g62 = rebase(qk_half(63), V_RDK, A1 - A0) + ([] if OPT["f3"] else rebase(pv_seq(61), [V_RD], B2 - B1))
    g63 = []
    for dbs in ([chunk_dbs(0), [6, 7, 8], [9, 10, 11]] if V64 else [chunk_dbs(n) for n in range(3)]):
        if OPT["f3"]: g63 += [pv_grp(61, db, va=V_RD3) for db in dbs]
        g63 += [pv_grp(62, db) for db in dbs] + [pv_grp(63, db, va=V_RD2) for db in dbs]
    if OPT["f3"]: g63[0].reb += [f"v_add_u32 v{V_RD3}, {B2 - B1}, v{V_RD}", f"v_mov_b32 v{V_RD2}, v{V_RD}", f"v_subrev_u32 v{V_RD}, {B1 - B0}, v{V_RD}"]
    else: g63[0].reb += [f"v_subrev_u32 v{V_RD2}, {B2 - B1}, v{V_RD}", f"v_subrev_u32 v{V_RD}, {B2 - B0}, v{V_RD}"]
    first57 = g57[:2]
    p = []
    p += gen_seg("S57", g57, g58[:2], [(sp(57, 1) + [("dl", 50), ("nb", 28)] + sp(58, 0), 0, 95)], [(7, [("dk", 5)]), (GBAR, [("dv", 0), ("dv", 1)])],
                 [("step", "p", 30, GBAR - 3)], [(K_(62, 63) + (8, 60)) if OPT["tv"] else (K_(62, 63) + V_(58, 59) + (8, 90))], peel=False)
    p += gen_seg("S58", g58, g59[:2], [(sp(58, 1) + sp(59, 0), 0, 95), (epi_addr(), 0, 95)], [(GBAR, [("dk", 7)] if OPT["tv"] else [("dk", 7), ("dv", 3)])], [],
                 [(V_(58, 59, 60, 61) + (0, 74)) if OPT["tv"] else (V_(60, 61) + (0, 60))], peel=False)
    p += gen_seg("S59", g59, g60[:2], [(sp(59, 1) + [("dl", 50), ("nb", 28)] + sp(60, 0), 0, 95)], [(15, [("dv", 5)])], [], [V_(62, 63) + (16, 60)], peel=False)
    p += gen_seg("S60", g60, g61[:2], [(sp(60, 1) + sp(61, 0), 0, 95)], [(GBAR, [("dv", 7)])])
    ep = Epi([BX + 6 * i for i in range(5)] if V64 else [BX] if OPT["omv"] else [BX, BY])
    e01 = [x for qb in (0, 1) for n in range(NCH) for x in ep.chunk(qb, n, OPT["pk"])] + ep.flush()
    chk = [f"v_max3_f32 v{V_T+2}, v{V_L[0]}, v{V_L[1]}, v{V_L[2]}", f"v_max_f32 v{V_T+2}, v{V_T+2}, v{V_L[3]}",
           f"s_mov_b32 s{S_TMP}, 0x{f32bits(2.0**OPT['thr']):08x}", f"v_cmp_lt_f32 s[{S_PT}:{S_PT+1}], s{S_TMP}, v{V_T+2}"]
    c = [ep.chunk(2, j, OPT["pk"]) + ep.chunk(3, j, OPT["pk"]) + ep.flush() for j in range(NCH - 1)] + [[]]
    sm = sp(61, 1) + epi_l((0, 1), [])[2:] + [("dl", 50), ("nb", 76)] + sp(62, 0) + [("nb", 98)] + sp(62, 1) + [("nb", 124)] + sp(63, 0) + [("nb", 148)] + sp(63, 1) + [("dl", 205)] + chk + [("nb", 214)] + epi_l((2, 3), [])[2:]
    ee = e01 + [("nb", 228)] + c[0] + [("nb", 260)] + c[1]
    lastsm = 220
    if OPT["f3"]:
        sm = sp(61, 1) + epi_l((0, 1), [])[2:] + [("dl", 50), ("nb", 76)] + sp(62, 0) + [("nb", 98)] + sp(62, 1) + [("dl", 157), ("nb", 124)] + sp(63, 0) + [("nb", 148)] + sp(63, 1) + [("dl", 173)] + chk + [("nb", 182)] + epi_l((2, 3), [])[2:]
        ee = e01 + [("dl", OPT["ed"]), ("nb", 196)] + c[0] + [("dl", OPT["ed1"]), ("nb", 244)] + c[1]
        lastsm = 190
        if V64:
            lm = OPT["lmf"]
            sm = sp(61, 1, lm) + epi_l((0, 1), [])[2:] + [("dl", 50), ("nb", 76)] + sp(62, 0, lm) + [("nb", 98)] + sp(62, 1, lm) + [("dl", 165), ("nb", 124)] + sp(63, 0, lm) + [("nb", 148)] + sp(63, 1, lm) + [("dl", 187 if lm else 189)]
            if lm:
                chk = [f"v_max3_f32 v{V_T+2}, v{V_L[0]}, v{V_L[1]}, v{RL[2]}"] + [f"v_max3_f32 v{V_T+2}, v{V_T+2}, v{a_}, v{a_+1}" for a_ in (RL[2] + 1, RL[2] + 3, RL[3] + 1)] + [f"v_max_f32 v{V_T+2}, v{V_T+2}, v{RL[3]+3}"] + chk[2:]
                sm += [("nb", 198)] + chk + epi_l((2, 3), [])[2:]
            else: sm += chk + [("nb", 198)] + epi_l((2, 3), [])[2:]
            ee = e01 + [("dl", OPT["ed"] + 20), ("nb", 220)] + c[0]
            lastsm = 206
    if OPT["sst"]:
        prod = []; ev = []
        for x in ee:
            if isinstance(x, VM): prod.append(x)
            else: ev.append(x)
        es = Stream(ev, 52, 286); ss = Stream(prod, 52, 287)
        cv = [i for i, x in enumerate(es.ops) if text_of(x).startswith("v_cvt_pk")][(2 if V64 else 1)::(3 if V64 else 2)]
        rd = [i for i, x in enumerate(es.ops) if text_of(x).startswith("v_accvgpr_read")][0::(6 if V64 else 4)]
        assert len(cv) == len(prod) == len(rd)
        for k in range(len(prod)):
            ss.gate[k] = (es, cv[k]); ss.nb[k] = max([0] + [gp for i, gp in es.nb.items() if i <= cv[k]])
            kk = k + (1 if V64 else 4) * len(ep.temps)
            if kk < len(prod): es.gate[rd[kk]] = (ss, k)
        xs = [es, ss]
        LT = [96, 102, 108, 114, 120, 64, 70, 144]
        if V64: xs.append(Stream([x for q in (2, 3) for r in range(4) for x in [f"v_accvgpr_read_b32 v{LT[4*(q-2)+r]+e}, a{O(q,6+e)+r}" for e in range(3)] +
                                  [f"v_mul_f32 v{LT[4*(q-2)+r]+e}, v{LT[4*(q-2)+r]+e}, v{RL[q]+r}" for e in range(3)]], 256, 287))
        if OPT["omv"]: xs.append(Stream([f"v_accvgpr_read_b32 v{OV(q, db)+r}, a{O(q, db)+r}" for q in (2, 3) for db in (2, 5, 8, 11) for r in range(4)], 0, 140))
    else: xs = [Stream(ee, 52, 287)]
    p += gen_seg("S61", g61 + g62 + g63, [], [(sm, 0, lastsm)], extra=xs,
                 fixed=[(1, "T", epi_l((0, 1))[:1]), (3, "T", epi_l((0, 1))[1:2]), (lastsm - 15, "T", epi_l((2, 3), acc=V64 and OPT["lmf"])[:1]), (lastsm - 13, "T", epi_l((2, 3), acc=V64 and OPT["lmf"])[1:2]), (lastsm + 5, "A", [f"s_cmp_lg_u64 s[{S_PT}:{S_PT+1}], 0", "s_cbranch_scc1 L_slow"]), (95, "T", istamp("S62")), (191, "T", istamp("S63"))])
    p += istamp("fin") + ["s_nop 7"]
    if OPT["omv"]: ep.temps = [UNIT[0], UNIT[1]]
    if V64:
        for q in (2, 3):
            for r in range(4):
                o = LT[4 * (q - 2) + r]
                p += [f"v_accvgpr_read_b32 v{o+e}, a{O(q,6+e)+r}" for e in range(3, 6)] + [f"v_cvt_pk_bf16_f32 v{o}, v{o}, v{o+1}"]
                p += [f"v_mul_f32 v{o+e}, v{o+e}, v{RL[q]+r}" for e in range(3, 6)] + [f"v_cvt_pk_bf16_f32 v{o+i}, v{o+2*i}, v{o+2*i+1}" for i in (1, 2)]
                p += [VM("out", f"buffer_store_dwordx3 v[{o}:{o+2}], v{GA}, s[{S_OUT}:{S_OUT+3}], s{S_EQ[q]} offen offset:{192 + r*384}{OF}")]
        return first57, p
    p += ep.chunk(2, NCH - 1, True, OPT["omv"]) + ep.flush() + ep.chunk(3, NCH - 1, True, OPT["omv"]) + ep.flush()
    return first57, p
def slow_epi():
    ep = Epi([64 + 6 * i for i in range(8)] if V64 else [64 + 16 * i for i in range(4)])
    seq = ["s_nop 1"] + epi_l((0, 1)) + epi_l((2, 3)) + ["s_nop 0"]
    for qb in range(4):
        for n in range(NCH): seq += ep.chunk(qb, n, True)
    return seq + ep.flush()

def kfrag(g):
    return 2 * (g >> 2) + (g & 1), (g >> 1) & 1
def gen_slow():
    KF = 64; VF = 112; SS = 160; PP = 224; M = [240, 241, 242, 243]; KA = [244, 245]; LA = 246; t = V_T
    p = ["L_slow:", "s_waitcnt vmcnt(0) lgkmcnt(0)", "s_nop 15"]
    for i in range(192): p.append(f"v_accvgpr_write_b32 a{i}, 0")
    for q in range(4): p += [f"v_mov_b32 v{V_L[q]}, 0", f"v_mov_b32 v{M[q]}, 0xff7fffff"]
    p += [f"v_subrev_u32 v{KA[0]}, {A1}, v{V_RDK[0]}", f"v_subrev_u32 v{KA[1]}, {A1}, v{V_RDK[1]}", f"v_subrev_u32 v{LA}, {B0}, v{V_RD}",
          f"s_mov_b32 s{S_PT}, 0", "L_slowloop:"]
    for i in range(1, 5): p.append(f"s_add_u32 s{S_PT+i}, s{S_PT}, {[0, 6144, 12288, 16384, 20480][i]}")
    for f in range(12):
        s, tb = kfrag(f)
        p.append(f"buffer_load_dwordx4 v[{KF+4*f}:{KF+4*f+3}], v{KA[s&1]}, s[{S_WS}:{S_WS+3}], s{S_PT+tb} offen offset:{(s>>1)*128} sc1")
    for db in range(12):
        p.append(f"buffer_load_dwordx4 v[{VF+4*db}:{VF+4*db+3}], v{LA}, s[{S_WS}:{S_WS+3}], s{S_PT+2+db//4} offen offset:{(db%4)*1024} sc1")
    p.append("s_waitcnt vmcnt(12)")
    for f in range(12):
        s, tb = kfrag(f)
        for qb in range(4):
            d = vr(SS + 8 * qb + 4 * tb, 4)
            p.append(f"{MF} {d}, v[{KF+4*f}:{KF+4*f+3}], {Qf(qb,s)}, {'0' if s == 0 else d}")
    p.append("s_nop 9")
    for qb in range(4):
        sb = SS + 8 * qb
        p += [f"v_max3_f32 v{t}, v{sb}, v{sb+1}, v{sb+2}", f"v_max3_f32 v{t}, v{t}, v{sb+3}, v{sb+4}",
              f"v_max3_f32 v{t}, v{t}, v{sb+5}, v{sb+6}", f"v_max3_f32 v{t}, v{t}, v{sb+7}, v{M[qb]}"]
        p += xlane("v_max_f32", t)
        p += [f"v_sub_f32 v{t+1}, v{M[qb]}, v{t}", f"v_exp_f32 v{t+1}, v{t+1}", f"v_mov_b32 v{M[qb]}, v{t}"]
        for i in range(8): p.append(f"v_sub_f32 v{sb+i}, v{sb+i}, v{t}")
        for i in range(8): p.append(f"v_exp_f32 v{sb+i}, v{sb+i}")
        p.append(f"v_mul_f32 v{V_L[qb]}, v{V_L[qb]}, v{t+1}")
        for i in range(8): p.append(f"v_add_f32 v{V_L[qb]}, v{V_L[qb]}, v{sb+i}")
        for i in range(4): p.append(f"v_cvt_pk_bf16_f32 v{PP+4*qb+i}, v{sb+2*i}, v{sb+2*i+1}")
        p += [f"ds_bpermute_b32 v{248+r}, v{BA}, v{t+1} offset:{4*r}" for r in range(4)] + ["s_waitcnt lgkmcnt(0)"]
        for i in range(48):
            a = O(qb, 0) + i; tt = t + 2 + (i % 2)
            p += [f"v_accvgpr_read_b32 v{tt}, a{a}", f"v_mul_f32 v{tt}, v{tt}, v{248+i%4}", f"v_accvgpr_write_b32 a{a}, v{tt}"]
    p += ["s_waitcnt vmcnt(0)", "s_nop 1"]
    for db in range(12):
        for qb in range(4):
            d = ar(O(qb, db), 4)
            p.append(f"{MF} {d}, v[{PP+4*qb}:{PP+4*qb+3}], v[{VF+4*db}:{VF+4*db+3}], {d}")
    p += [f"s_add_u32 s{S_PT}, s{S_PT}, {STAGE}", f"s_cmp_lt_u32 s{S_PT}, {HEADBYTES}", "s_nop 7", "s_cbranch_scc1 L_slowloop"]
    e = slow_epi(); resolve(e)
    return p + fin(e) + ["s_branch L_fin"]

def xlane(op, t, u=None):
    u = t + 1 if u is None else u
    l = []
    for sw in ("v_permlane16_swap_b32", "v_permlane32_swap_b32"):
        l += [f"v_mov_b32 v{u}, v{t}", "s_nop 1", f"{sw} v{t}, v{u}", "s_nop 1", f"{op} v{t}, v{t}, v{u}"]
    return l
def rowmax2(t, qs, tq):
    l = []
    ab = [(Sq(t, j, 0), Sq(t, j, 1)) for j in range(2)]
    l += [f"v_max3_f32 v{tq[j]}, v{a}, v{a+1}, v{a+2}" for j, (a, b) in enumerate(ab)]
    l += [f"v_max3_f32 v{tq[j]}, v{tq[j]}, v{a+3}, v{b}" for j, (a, b) in enumerate(ab)]
    l += [f"v_max3_f32 v{tq[j]}, v{tq[j]}, v{b+1}, v{b+2}" for j, (a, b) in enumerate(ab)]
    l += [f"v_max_f32 v{tq[j]}, v{tq[j]}, v{b+3}" for j, (a, b) in enumerate(ab)]
    for sw in ("v_permlane16_swap_b32", "v_permlane32_swap_b32"):
        l += [f"v_mov_b32 v{tq[j]+1}, v{tq[j]}" for j in range(2)] + ["s_nop 0"]
        l += [f"{sw} v{tq[j]}, v{tq[j]+1}" for j in range(2)] + ["s_nop 0"]
        l += [f"v_max_f32 v{tq[j]}, v{tq[j]}, v{tq[j]+1}" for j in range(2)]
    l += [f"v_sub_f32 v{NEGM(qs[j])+i}, 0, v{tq[j]}" for j in range(2) for i in range(4)]
    return l
def sm_one(t, sl):
    a, b = Sq(t, sl, 0), Sq(t, sl, 1); tq = V_CT; qb = slot_q(t, sl); rs = [r + i for r in (a, b) for i in range(4)]
    l = [f"v_max3_f32 v{tq}, v{a}, v{a+1}, v{a+2}", f"v_max3_f32 v{tq+2}, v{a+3}, v{b}, v{b+1}",
         f"v_max3_f32 v{tq}, v{tq}, v{b+2}, v{b+3}", f"v_max_f32 v{tq}, v{tq}, v{tq+2}"] + xlane("v_max_f32", tq)
    l += [f"v_sub_f32 v{r}, v{r}, v{tq}" for r in rs] + [f"v_exp_f32 v{r}, v{r}" for r in rs] + [f"v_sub_f32 v{NEGM(qb)+i}, 0, v{tq}" for i in range(4)]
    l += [f"v_add_f32 v{V_L[qb]}, v{V_L[qb]}, v{r}" for r in rs] + [f"v_cvt_pk_bf16_f32 v{a+i}, v{rs[2*i]}, v{rs[2*i+1]}" for i in range(4)]
    return l
def addneg(t, sl):
    n = NEGM(slot_q(t, sl))
    return [f"v_add_f32 v{Sq(t,sl,tb)+i}, v{Sq(t,sl,tb)+i}, v{n}" for tb in range(2) for i in range(4)]

def resolve(seq):
    vm = []; ds = []
    for x in seq:
        if isinstance(x, VM): vm.append(x.tag)
        elif isinstance(x, DS): ds.append(x.tag)
        elif isinstance(x, (W, LG)):
            q = vm if isinstance(x, W) else ds
            best = None
            for tag in x.tags:
                n = 0; found = False
                for t in reversed(q):
                    if t == tag: found = True; break
                    n += 1
                if found: best = n if best is None else min(best, n)
            if best is not None:
                x.n = best if getattr(x, "n", None) is None else min(x.n, best)
        else:
            assert not x.startswith(("ds_", "buffer_")) or "UNTRACKED" in x, x
def vm_size(x):
    t = x.text
    if t.startswith("buffer_store"): return 0
    if x.tag == "pre": return 3.0
    if " lds" in t: return 1.0
    if "dwordx4" in t or "dwordx3" in t: return 0.75
    if "dwordx2" in t and "offen" in t: return 0.375
    return 0.125
def pace(seq, cap):
    out = []; q = []; on = False
    for x in seq:
        if isinstance(x, W): q = q[len(q) - min(len(q), x.n):]; on = True
        elif isinstance(x, VM):
            sz = vm_size(x)
            if on and not x.text.startswith("buffer_store") and sum(q) + sz > cap:
                while q and sum(q) + sz > cap: q.pop(0)
                w = W(); w.n = len(q)
                if out and out[-1] == "s_nop 0": out.pop()
                out.append(w)
            q.append(sz)
        out.append(x)
    return out
def fin(seq):
    out = []
    for x in seq:
        if isinstance(x, (W, LG)):
            if OPT["ab"] and getattr(x, "n", None) is None: x.n = 63
            assert getattr(x, "n", None) is not None, x.tags
            out.append(f"s_waitcnt vmcnt({min(x.n, 63)})" if isinstance(x, W) else f"s_waitcnt lgkmcnt({min(x.n, 15)})")
        elif isinstance(x, (VM, DS)): out.append(x.text)
        else: out.append(x.replace(" ;UNTRACKED", ""))
    return out
def groups_of(l):
    out = [[]]
    for x in l:
        out[-1].append(x)
        if isinstance(x, VM): out.append([])
    tail = out.pop()
    if tail: out[-1] += tail
    return out
def sprinkle(code, l):
    if not l: return list(code)
    gs = groups_of(l); out = []; n = len(code); m = len(gs); j = 0
    for i, x in enumerate(code):
        while j < m and i * m >= j * n: out += with_nop(gs[j]); j += 1
        out.append(x)
    for g in gs[j:]: out += with_nop(g)
    return out
def srd(p, s, lo, hi, off_s, size):
    p += [f"s_add_u32 s{s}, s{lo}, s{off_s}", f"s_addc_u32 s{s+1}, s{hi}, 0", f"s_mov_b32 s{s+2}, {size}", f"s_mov_b32 s{s+3}, 0x20000"]

def gen_main():
    p = []
    p += [f"{NAME}_kernel:", "s_cmp_ge_u32 s2, 256", "s_cbranch_scc1 L_done",
          "s_load_dwordx16 s[40:55], s[0:1], 0", "s_load_dwordx4 s[16:19], s[0:1], 64"]
    if OPT["stamp"]: p += ["s_memtime s[98:99]" if OPT["stamp"] == 6 else "s_memrealtime s[98:99]"]
    p += [f"s_and_b32 s{S_HEAD}, s2, 7", f"s_lshr_b32 s{S_QB}, s2, 3", f"s_lshr_b32 s24, s{S_QB}, 3", f"s_lshl_b32 s{S_HEAD}, s{S_HEAD}, 2",
          f"s_add_u32 s{S_HEAD}, s{S_HEAD}, s24", f"s_and_b32 s{S_QB}, s{S_QB}, 7"]
    p += ["s_getpc_b64 s[60:61]", "L_pc:", f"s_sub_u32 s60, s60, L_pc-{NAME}_kernel", "s_subb_u32 s61, s61, 0",
          f"s_mov_b32 s62, L_slow-{NAME}_kernel", "s_mov_b32 s63, 0x20000",
          "s_lshr_b32 s22, s2, 3", "s_lshl_b32 s22, s22, 12",
          "v_lshlrev_b32 v30, 4, v0",
          VM("pf", "buffer_load_dwordx4 v[128:131], v30, s[60:63], s22 offen" + (" nt" if OPT["pfnt"] else ""))]
    p += ["v_lshrrev_b32 v24, 6, v0",
          "v_and_b32 v25, 63, v0",
          f"v_readfirstlane_b32 s{S_WAVE}, v24",
          f"v_lshlrev_b32 v{V_RD}, 4, v25",
          "v_mul_u32_u24 v26, 43, v25", "v_lshrrev_b32 v26, 10, v26",
          "v_mul_u32_u24 v27, 24, v26",
          "v_sub_u32 v27, v25, v27",
          "v_lshrrev_b32 v28, 1, v24",
          "v_and_b32 v29, 1, v24",
          "v_lshlrev_b32 v30, 4, v29",
          "v_lshl_add_u32 v30, v28, 2, v30",
          "v_add_u32 v30, v30, v26",
          "v_mul_u32_u24 v30, 768, v30",
          "v_lshrrev_b32 v48, 1, v26", "v_lshlrev_b32 v48, 30, v48",
          "v_lshl_add_u32 v30, v27, 4, v30", f"v_or_b32 v{V_KLD}, v30, v48",
          f"v_lshl_or_b32 v{V_KSC}, v27, 3, v48",
          "v_mul_u32_u24 v30, 6144, v24",
          ] + (["v_mul_u32_u24 v31, 12, v25", f"v_add_u32 v{V_VLD}, v30, v31"] if V64 else [f"v_add3_u32 v{V_VLD}, v30, v{V_RD}, v48"])
    for sd, size in ((S_QK, HEADBYTES), (S_QV, HEADBYTES), (S_KS, 12288), (S_KZ, 12288), (S_VS, 4096), (S_VZ, 4096), (S_FLG, 64)):
        p += [f"s_mov_b32 s{sd+2}, {size}", f"s_mov_b32 s{sd+3}, 0x20000"]
    p += [f"s_mul_i32 s{S_PK0}, s{S_QB}, {STAGE}", f"s_add_u32 s{S_PK1}, s{S_PK0}, 6144", f"s_mov_b32 s{S_PV0}, s{S_PK0}",
          f"s_lshr_b32 s{S_PKS}, s{S_QB}, 1", f"s_mul_i32 s{S_PKS}, s{S_PKS}, 384", f"s_lshl_b32 s{S_PVS}, s{S_QB}, 6",
          f"s_lshl_b32 s24, s{S_WAVE}, 4", f"s_add_u32 s{S_PVS}, s{S_PVS}, s24",
          f"s_mul_i32 s24, s{S_HEAD}, {HEADBYTES}", f"s_mul_i32 s56, s{S_HEAD}, 12288", f"s_lshl_b32 s57, s{S_HEAD}, 12",
          f"s_lshl_b32 s58, s{S_HEAD}, 10", f"s_add_u32 s58, s58, {FLAG_OFF + 96}",
          f"s_or_b32 s{S_RET}, s{S_QB}, s{S_WAVE}"]
    p += ["s_waitcnt lgkmcnt(0)"] + istamp("karg", True)
    def base(sd, lo, off): return [f"s_add_u32 s{sd}, s{lo}, s{off}", f"s_addc_u32 s{sd+1}, s{lo+1}, 0"]
    p += base(S_QK, 42, 24) + base(S_KS, 46, 56) + base(S_KZ, 48, 56)
    kl = [k_ld(0, BX, 32, "k0a"), k_ld(1, BY, 36, "k0b")]; vl = [v_ld(0, 112, 40, "v0a"), v_ld(1, 80, 44, "v0b")]
    for x in kl[1][:2]: x.tag = "k0a"
    for x in vl[1][:2]: x.tag = "v0a"
    if OPT["ksc"]:
        for x in kl[0][2:] + kl[1][2:]: x.tag = "kraw"
        for x in kl[1][:2]: x.tag = "k0b"
        p += kl[0][2:] + kl[1][2:] + kl[0][:2] + kl[1][:2]; kl[1] = []
    else: p += kl[0][2:] + kl[0][:2] + kl[1][:2]
    p += base(S_FLG, 18, 58) + base(S_VS, 50, 57) + base(S_VZ, 52, 57) + base(S_QV, 44, 24)
    p += [f"s_mul_i32 s59, s{S_HEAD}, 786432"] + base(S_OUT, 54, 59) + base(S_Q, 40, 59)
    p += [f"s_cmp_lg_u32 s{S_RET}, 0", "s_cbranch_scc1 L_notleader0", f"s_buffer_load_dwordx16 s[40:55], s[{S_FLG}:{S_FLG+3}], 0 glc", "L_notleader0:"]
    p += kl[1][2:]
    p += [f"s_add_u32 s24, s24, {WSOFF}"] * (1 if WSOFF else 0)
    srd(p, S_WS, 18, 19, 24, HEADBYTES)
    p += [f"s_mov_b32 s{S_Q+2}, 786432", f"s_mov_b32 s{S_Q+3}, 0x20000"]
    p += [f"s_mov_b32 s{S_DBG}, s16", f"s_mov_b32 s{S_DBG+1}, s17", f"s_add_u32 s{S_PV1}, s{S_PK0}, 3072", f"s_add_u32 s{S_PV2}, s{S_PK0}, 6144"]
    p += [f"s_mov_b32 s{S_DBG+2}, 256", f"s_mov_b32 s{S_DBG+3}, 0x20000", f"s_lshl_b32 s{S_HOFF}, s{S_HEAD}, 3"]
    p += [f"s_cmp_lg_u32 s{S_RET}, 0", "s_cbranch_scc1 L_notleader", "s_waitcnt lgkmcnt(0)", f"s_mov_b32 s{S_TP}, 1"]
    for i in range(16):
        p += [f"s_lshr_b32 s{40+i}, s{40+i}, 10", f"s_min_u32 s{40+i}, s{40+i}, 31", f"s_bitset1_b32 s{S_TP}, s{40+i}"]
    p += [f"s_ff0_i32_b32 s{S_TP}, s{S_TP}", f"s_lshl_b32 s{S_TP}, s{S_TP}, 10", f"v_mov_b32 v{V_POLL}, s{S_TP}",
          "s_mov_b64 exec, 1", f"buffer_store_dword v{V_POLL}, off, s[{S_DBG}:{S_DBG+3}], s{S_HOFF} sc1 ;UNTRACKED", "s_mov_b64 exec, -1",
          "L_notleader:"]
    p += [f"s_lshl_b32 s24, s{S_QB}, 2", f"s_add_u32 s24, s24, 32", f"s_buffer_load_dword s{S_OWN}, s[{S_FLG}:{S_FLG+3}], s24 glc",
          ] + ([f"s_getreg_b32 s{S_XCC}, hwreg(HW_REG_XCC_ID, 0, 4)", f"s_lshl_b32 s{S_XCC}, s{S_XCC}, 5", f"s_mov_b32 s{S_FOFF}, {32 if OPT['l2'] == 3 else 0}"] if OPT["l2"] else
          [f"s_mov_b32 s{S_XCC}, 0", f"s_mov_b32 s{S_FOFF}, 32"])
    p += vl[0][2:] + vl[0][:2] + vl[1][:2] + (vl[1][2:] if OPT["greedy"] else []) + istamp("iss", True)
    if OPT["pre"]:
        st = OPT["pre"]
        p += [f"v_mul_u32_u24 v31, {st}, v25", f"v_mul_u32_u24 v30, 6144, v24", "v_add_u32 v31, v30, v31"]
        if st == 128: p += ["v_or_b32 v31, v31, v48"]
        p += [VM("pre", f"buffer_load_dword v132, v31, s[{S_WS}:{S_WS+3}], s{S_PK0} offen" + (" nt" if OPT["prent"] else ""))]
        if st == 64: p += ["v_add_u32 v30, 4096, v31", "s_mov_b64 exec, 0xffffffff", VM("pre", f"buffer_load_dword v133, v30, s[{S_WS}:{S_WS+3}], s{S_PK0} offen nt"), "s_mov_b64 exec, -1"]
    p += [f"s_mov_b32 s{S_OUT+2}, 786432", f"s_mov_b32 s{S_OUT+3}, 0x20000"]
    p += [f"s_lshl_b32 s24, s{S_WAVE}, 8", f"s_add_u32 s{S_HOFF}, s{S_HOFF}, s24"]
    p += ["v_mul_u32_u24 v30, 3072, v24", f"v_add_u32 v{V_DMA}, v30, v{V_RD}"]
    p += ["v_lshl_add_u32 v30, v24, 3, v26",
          "v_mul_u32_u24 v30, 384, v30",
          "v_lshlrev_b32 v31, 2, v29",
          "v_xor_b32 v31, v27, v31",
          "v_lshl_add_u32 v30, v31, 4, v30", f"v_or_b32 v{V_KST}, v30, v48",
          "v_lshlrev_b32 v30, 8, v24",
          "v_add_u32 v30, 12288, v30",
          ] + (["v_lshrrev_b32 v31, 5, v25", "v_mul_u32_u24 v31, 6144, v31", "v_add_u32 v30, v30, v31", "v_and_b32 v31, 1, v25", "v_mul_u32_u24 v31, 3072, v31", "v_add_u32 v30, v30, v31",
          "v_bfe_u32 v31, v25, 1, 4", f"v_lshl_add_u32 v{V_VST}, v31, 4, v30"] if V64 else
          ["v_lshrrev_b32 v31, 4, v25", "v_lshl_add_u32 v30, v31, 10, v30", "v_and_b32 v31, 15, v25",
          "v_lshl_add_u32 v30, v31, 4, v30", f"v_or_b32 v{V_VST}, v30, v48"])
    p += [f"s_lshl_b32 s24, s{S_QB}, 2",
          f"v_lshl_add_u32 v{V_FLAG}, v0, 2, s24", f"v_cmp_lt_u32 vcc, 0, v0", "v_mov_b32 v30, 0x40000000", "s_nop 0",
          f"v_cndmask_b32 v{V_FLAG}, v{V_FLAG}, v30, vcc"]
    p += [f"s_mul_i32 s{S_DMK}, s{S_WAVE}, 3072", f"s_add_u32 s{S_DMK}, s{S_DMK}, 12288", f"s_add_u32 s{S_DMV}, s{S_DMK}, {STAGE}",
          f"s_add_u32 s24, s{S_QB}, 1", "s_and_b32 s24, s24, 7", f"s_mul_i32 s{S_GOFFK}, s24, {STAGE}", f"s_add_u32 s{S_GOFF}, s{S_GOFFK}, 12288",
          f"s_mov_b32 s{S_RK}, {A2}", f"s_mov_b32 s{S_RV}, {B1}", f"v_add_u32 v{V_RD}, {B0}, v{V_RD}",
          f"s_mov_b32 s{S_CS}, 0x{f32bits(CSCALE):08x}", f"s_mov_b32 s{S_MASK}, 0xffff0000",
          f"s_mov_b32 s{S_BUDGET}, 100000"] + ([f"s_mov_b32 s{S_TAG+1}, 0"] if OPT["stamp"] else [])
    p += ["v_and_b32 v26, 15, v25", "v_lshrrev_b32 v27, 4, v25", "v_bfe_u32 v28, v25, 1, 3",
          "v_xor_b32 v29, v27, v28", "v_mul_u32_u24 v30, 384, v26", f"v_lshl_add_u32 v{V_RDK[0]}, v29, 4, v30",
          f"v_xor_b32 v{V_RDK[1]}, 64, v{V_RDK[0]}"]
    p += [f"s_mul_i32 s{S_QL}, s{S_WAVE}, 6144", f"s_add_u32 s{S_QL}, s{S_QL}, {B1}",
          "v_lshrrev_b32 v29, 1, v27", "v_xor_b32 v29, v29, v28", "v_lshl_add_u32 v31, v29, 4, v30",
          "v_and_b32 v29, 1, v27", "v_lshl_add_u32 v31, v29, 3, v31"]
    for kk in range(4):
        p += [f"v_xor_b32 v{VQR[kk]}, {32*kk}, v31", f"v_add_u32 v{VQR[kk]}, s{S_QL}, v{VQR[kk]}"]
    p += [f"s_lshl_b32 s24, s{S_QB}, 2", f"s_add_u32 s24, s24, s{S_WAVE}", f"s_mul_i32 s24, s24, {STAGE}"]
    for b in range(6):
        p += [f"v_add_u32 v26, {64*b}, v25", "v_mul_u32_u24 v27, 2731, v26", "v_lshrrev_b32 v27, 17, v27",
              "v_and_b32 v27, 7, v27", "v_xor_b32 v26, v26, v27", f"v_lshlrev_b32 v{VQD+b}, 4, v26", f"v_add_u32 v{VQD+b}, s24, v{VQD+b}"]
    for q in range(4): p.append(f"v_mov_b32 v{V_L[q]}, 0")
    STF0 = "" if OPT["l2"] else STF
    def own_k(b):
        l = []
        for j in range(4):
            l += k_st(j, b, "kst", STF0)
            va = V_KST if j == 0 else V_KA + (j & 1)
            l += ["s_mov_b64 exec, s[62:63]", DS("w", f"ds_write_b128 v{va}, v[{b+4*j}:{b+4*j+3}] offset:{j*768}"), "s_mov_b64 exec, -1"]
        return l
    def own_v(b):
        l = [x for e in range(NVE) for x in v_st(e, b, "vst", STF0)]
        if V64: return l + [DS("w", f"ds_write_b128 v{V_VST}, v[{b+4*e}:{b+4*e+3}] offset:{STAGE - 12288 + e*1024}") for e in range(3)]
        l += ["s_mov_b64 exec, s[62:63]"] + [DS("w", f"ds_write_b128 v{V_VST}, v[{b+4*e}:{b+4*e+3}] offset:{STAGE - 12288 + e*3072}") for e in range(4)] + ["s_mov_b64 exec, -1"]
        return l
    p += ["s_mov_b32 s62, -1", "s_mov_b32 s63, 0xffff"]
    qa = OPT["qa"]
    qb_, qc = OPT["qb"], OPT["qc"]
    R = lambda a, b: list(range(a, b))
    if OPT["split"]:
        p += [W("k0a")] + vl[1][2:] + k_cv(0, BX, 32, BX) + [W("k0b")] + istamp("k0b", True) + k_cv(1, BY, 36, BX) + own_k(BX)
        p += tag_load() + with_nop(q_dma(R(0, qa))) + [W("v0a")] + v_cv(0, 112, 40, 112)
        p += [W("tag")] + tag_check() + ["s_waitcnt lgkmcnt(0)", "s_barrier"] + flag_post() + tag_get() + istamp("post", True)
        p += with_nop(q_dma(R(qa, qb_))) + v_cv(1, 80, 44, 112) + own_v(112) + with_nop(q_dma(R(qb_, 12))) + istamp("vst", True)
    elif OPT["greedy"]:
        p += [W("k0a")] + with_nop(q_dma(R(0, 3))) + k_cv(0, BX, 32, BX) + [W("k0b")] + istamp("k0b", True) + with_nop(q_dma(R(3, 6))) + k_cv(1, BY, 36, BX) + own_k(BX)
        p += [W("v0a")] + with_nop(q_dma(R(6, 9))) + v_cv(0, 112, 40, 112) + [W("v0b")] + with_nop(q_dma(R(9, 12))) + v_cv(1, 80, 44, 112) + own_v(112)
        p += tag_load() + with_nop(q_dma(R(12, 18))) + istamp("vst", True)
    else:
        p += [W("k0a")] + vl[1][2:] + k_cv(0, BX, 32, BX) + [W("k0b")] + istamp("k0b", True) + k_cv(1, BY, 36, BX) + own_k(BX)
        p += with_nop(q_dma(R(0, qa))) + istamp("kst", True)
        p += [W("v0a")] + sprinkle(v_cv(0, 112, 40, 112), q_dma(R(qa, qb_))) + [W("v0b")] + v_cv(1, 80, 44, 112) + own_v(112)
        p += tag_load() + with_nop(q_dma(R(qb_, OPT["qe"]))) + istamp("vst", True)
    if not OPT["split"]:
        if OPT["iw"]:
            p += ["s_mov_b64 exec, 0"] + [x for w in range(3) for x in (f"s_cmp_eq_u32 s{S_WAVE}, {w}", f"s_cbranch_scc1 L_iw{w}")] + ["s_branch L_iw3", "L_iwret:", "s_mov_b64 exec, -1"]
        p += [W("tag")] + tag_check() + istamp("tag", True)
        p += ["s_waitcnt lgkmcnt(0)", "s_barrier"] + flag_post(True) + tag_get() + istamp("post", True)
    if OPT["pf2"]:
        p += [f"s_mov_b32 s{S_DBG}, s60", f"s_mov_b32 s{S_DBG+1}, s61", f"s_mov_b32 s{S_DBG+2}, L_slow-{NAME}_kernel",
              "s_lshr_b32 s24, s2, 3", f"s_mul_i32 s{S_HOFF}, s24, 43", f"s_lshr_b32 s{S_HOFF}, s{S_HOFF}, 7",
              f"s_mul_i32 s{S_RET}, s{S_HOFF}, 3", f"s_sub_u32 s24, s24, s{S_RET}", "s_lshl_b32 s24, s24, 10",
              f"s_mul_i32 s{S_HOFF}, s{S_HOFF}, 12288", f"s_add_u32 s{S_HOFF}, s{S_HOFF}, s24"]
    KF = 144
    for f in range(12):
        s, tb = kfrag(f)
        p.append(DS("kf", f"ds_read_b128 v[{KF+4*f}:{KF+4*f+3}], v{V_RDK[s&1]} offset:{tb*6144 + (s>>1)*128}"))
    def qk0(qb):
        l = []
        for f in sorted(range(12), key=lambda f: kfrag(f)[::-1]):
            s, tb = kfrag(f)
            d = vr(Sq(0, qb, tb), 4)
            l.append(f"{MF} {d}, v[{KF+4*f}:{KF+4*f+3}], {Qf(qb,s)}, {'0' if s == 0 else d}")
        return l
    ps = len(POLLSITES); POLLSITES.append(ps)
    g3n = OPT["g3n"]
    pollchk = ["s_waitcnt lgkmcnt(0)"] + smem_reduce() + [f"s_cmp_ge_u32 s{S_PT}, 16", f"s_cbranch_scc1 L_pollslow{ps}", f"L_pollok{ps}:",
          f"s_add_u32 s{S_NEED}, s{S_NEED}, 1"] + [f"s_mov_b32 s{S_FOFF}, 32"] * (OPT["l2"] == 2) + istamp("poll", True)
    sm00 = rowmax2(0, (0, 1), (V_CT, V_CT + 2)) + addneg(0, 0) + addneg(0, 1) + softmax_part(0, 0)
    qrest = R(OPT["qe"] if OPT["greedy"] == 0 else 18, 18 + g3n)
    if OPT["fs"]:
        hand = with_nop(dma_tile("k", 1, True) + dma_tile("k", 2, True) + dma_tile("k", 3, True) + dma_tile("v", 1, True)) + k_adv() + v_adv()
        for qb in range(4):
            if qb == 3:
                g0 = []
                for d0 in range(0, 12, 2):
                    g0.append(Grp([(V_RD, (d0 + e) * 1024) for e in range(2)], [(e, ar(O(q, d0 + e), 4), vr(P(0, q), 4), "0") for q in range(3) for e in range(2)]))
                p += [rd_op(i, j, g0[i]) for i in range(2) for j in range(2)] + [LG(("fr", 0), ("fr", 1))]
                p += gen_seg("S0", g0, [], tasks=[("ldn", "ka", 0, 16), ("ldn", "kb", 17, 35)][:OPT["k1s"]], vmgap=2)
            p += [W(("q", qb))] + q_frags(qb) + ([LG("tg")] + tag_use() if qb == 0 else []) + (smem_flags() if qb == OPT["pq"] else []) + [LG(("qf", qb))]
            if qb < 2: p += with_nop(q_dma(R(18 + 3 * qb, 21 + 3 * qb)))
            p += qk0(qb) + (pollchk + hand if qb == OPT["pq"] else ["s_nop 7"]) + sm_one(0, qb)
        sp = softmax_part
        g1 = qk_tile(1, 1, [(q, q) for q in range(4)])
        gi1 = rebase(qk_full(2), V_RDK, A1 - A0)
        gi2 = [Grp([(V_RD, w * 12288 + db * 1024) for w in range(2)],
                   [(0, ar(O(3, db), 4), vr(P(0, 3), 4), "0")] + [(1, ar(O(q, db), 4), vr(P(1, q), 4), ar(O(q, db), 4)) for q in (3, 0, 1, 2)]) for db in range(12)]
        gi3 = rebase(qk_full(4), V_RDK, A2 - A1)
        gi4 = rebase(pv_seq(2), [V_RD], B1 - B0)
        p += istamp("pre-dk1", True) + [W(("dk", 1)), "s_barrier"] + [rd_op(i, j, g1[i]) for i in range(2) for j in range(2)] + [LG(("fr", 0), ("fr", 1))]
        p += gen_seg("S1", g1, gi1[:2], [], [(31, [("dk", 3)])], [("ldn", "ka", 0, 14), ("ldn", "kb", 15, 30)][OPT["k1s"]:] +
                     ([("cv", "ka", 0, 99, OPT["fb"], 47)] if OPT["k1s"] and OPT["fb"] < 47 else []), [K_(4, 5) + (32, 46)], vmgap=2)
        p += gen_seg("S5", gi1, gi2[:2], [(sp(1, 0) + sp(1, 1) + [("dl", 54), ("nb", 47)] + sp(2, 0), 2, 95)], [(GBAR, [("dv", 1)])],
                     ([("cv", "kb", 0, 99, OPT["fa"], 95), ("ldn", "va", 20, 40)] if (OPT["k1s"] and OPT["fb"] < 47) else
                      [("cv", "ka", 0, 99, OPT["fa"], 60), ("cv", "kb", 0, 99, 61, 95), ("ldn", "va", 20, 40, "raw"), ("ldn", "va", 62, 76, "sc")]), [V_(2, 3) + (0, 18)])
        p += gen_seg("i2", gi2, gi3[:2], [(sp(2, 1) + sp(3, 0), 0, 59)], [(49, [("dk", 5)])],
                     [("kst", 0, 1), ("kst", 1, 11), ("kst", 2, 21), ("kst", 3, 31), ("ld", "vb", 34, 59)], [], vmgap=2)
        p += gen_seg("i3", gi3, gi4[:2], [(sp(3, 1) + [("dl", 57), ("nb", 47)] + sp(4, 0), 0, 95)], [(15, []), (GBAR, [("dv", 3)])],
                     [("post", "kst", 0), ("cv", "va", 0, 99, 0, 95)], [K_(6, 7) + V_(4, 5) + (18, 90)])
        p += [f"s_mov_b32 s{S_CNT}, {7 - OPT['lastp']}"]
        p += gen_seg("i4", gi4, seg_groups(5)[:2], [(sp(4, 1) + sp(5, 0), 0, 94)], [(GBAR, [("dk", 7)])],
                     [("ld", "ka", 0, 30), ("cv", "vb", 0, 99, 20, 94), ("step", "q", 30, 70), ("pollld", OPT["pl4"], OPT["pl4"] + 8)], [V_(6, 7) + (32, 74)],
                     endops=["s_nop 0", "s_branch L_join"])
    elif OPT["split"]:
        ps2 = len(POLLSITES); POLLSITES.append(ps2)
        pollchk2 = ["s_waitcnt lgkmcnt(0)"] + smem_reduce() + [f"s_cmp_ge_u32 s{S_PT}, 16", f"s_cbranch_scc1 L_pollslow{ps2}", f"L_pollok{ps2}:",
              f"s_add_u32 s{S_NEED}, s{S_NEED}, 1"] + istamp("pollV", True)
        p += [W(("q", 0))] + q_frags(0) + [LG("tg")] + tag_use() + [LG(("qf", 0))] + smem_flags() + qk0(0) + pollchk
        p += with_nop(dma_tile("k", 1, True)) + k_adv() + v_adv()
        p += [W("vst"), "s_barrier"] + flag_post() + istamp("postV", True)
        p += with_nop(dma_tile("k", 2, True) + dma_tile("k", 3, True))
        p += [W(("q", 1))] + q_frags(1) + with_nop(q_dma(R(12, 15))) + [LG(("qf", 1))] + qk0(1) + ["s_nop 7"]
        g0 = pv_unchained(0, True)[:6]
        p += [rd_op(i, j, g0[i]) for i in range(2) for j in range(2)] + sprinkle(sm00, q_dma(R(15, 18 + g3n))) + smem_flags() + [LG(("fr", 0), ("fr", 1))]
        p += gen_seg("S0", g0, [], tasks=[("q", R(18 + g3n, 24), 0, 22)] if g3n < 6 else [], vmgap=2) + pollchk2
        p += with_nop(dma_tile("v", 1, True))
        g3n = 6
    elif OPT["own1"] == 2:
        p += [W(("q", 0))] + q_frags(0) + [LG("tg")] + tag_use() + with_nop(q_dma(qrest[:3])) + [LG(("qf", 0))] + qk0(0)
        p += [W(("q", 1))] + q_frags(1) + smem_flags() + with_nop(q_dma(qrest[3:])) + [LG(("qf", 1))] + qk0(1) + pollchk
        g0 = pv_unchained(0, True)[:6]
        p += [rd_op(i, j, g0[i]) for i in range(2) for j in range(2)]
        p += sprinkle(sm00, dma_tile("k", 1, True) + dma_tile("k", 2, True) + dma_tile("k", 3, True) + dma_tile("v", 1, True)) + k_adv() + v_adv() + [LG(("fr", 0), ("fr", 1))]
        p += gen_seg("S0", g0, [], tasks=[("q", R(18 + g3n, 24), 0, 22)] if g3n < 6 else [], vmgap=2)
        g3n = 6
    elif OPT["own1"]:
        pre0 = [x for x in qrest[:3] if x < 18]; post0 = [x for x in qrest[:3] if x >= 18]
        p += [W(("q", 0))] + q_frags(0) + [LG("tg")] + tag_use() + with_nop(q_dma(pre0)) + [LG(("qf", 0))] + with_nop(q_dma(post0)) + qk0(0)
        if OPT["q0f"]: p += ["s_nop 7"] + sm_one(0, 0); sm00 = sm_one(0, 1)
        p += [W(("q", 1))] + q_frags(1) + with_nop(q_dma(qrest[3:6])) + [LG(("qf", 1))] + qk0(1) + ["s_nop 7"]
        g0 = pv_unchained(0, True)[:6]
        p += [rd_op(i, j, g0[i]) for i in range(2) for j in range(2)] + sprinkle(sm00, q_dma(qrest[6:])) + smem_flags() + [LG(("fr", 0), ("fr", 1))]
        p += gen_seg("S0", g0, []) + pollchk
        p += with_nop(dma_tile("k", 1, True) + dma_tile("k", 2, True) + dma_tile("k", 3, True) + dma_tile("v", 1, True)) + k_adv() + v_adv()
        if OPT["qf"]: p += with_nop(q_dma(R(18 + g3n, 24))); g3n = 6
    else:
        p += [W(("q", 0))] + q_frags(0) + [LG("tg")] + tag_use() + [W(("q", 1))] + q_frags(1) + smem_flags()
        p += [LG(("qf", 0))] + with_nop(q_dma(qrest)) + pollchk
        p += with_nop(dma_tile("k", 1, True)) + k_adv() + v_adv()
        p += sprinkle(qk0(0) + qk0(1), dma_tile("k", 2, True)) + ["s_nop 7"]
        p += sprinkle(sm00, dma_tile("k", 3, True) + dma_tile("v", 1, True))
    if not OPT["fs"]:
        sp = softmax_part
        g1 = qk_half(0, ws=(1,))
        g2 = rebase(qk_half(1), V_RDK, A1 - A0)
        g3 = pv_unchained(0, True)[6 if OPT["own1"] else 0:]
        g4 = rebase(pv_unchained(1), [V_RD], B1 - B0)
        g5 = rebase(qk_half(2, True), V_RDK, A0 - A1) + rebase(qk_half(3), V_RDK, A1 - A0)
        gi3 = rebase(qk_full(4), V_RDK, A2 - A1)
        gi4 = rebase(pv_seq(2, True), [V_RD], B0 - B1) + rebase(pv_seq(3), [V_RD], B1 - B0)
        p += istamp("pre-dk1", True) + [W(("dk", 1)), "s_barrier"] + [rd_op(i, j, g1[i]) for i in range(2) for j in range(2)]
        p += [LG(("fr", 0), ("fr", 1))]
        p += gen_seg("S1", g1, g2[:2], [], [(15, [("dk", 3)])], [], [V_(2, 3) + (0, 21)], vmgap=2)
        p += gen_seg("S2", g2, g3[:2], [(sp(0, 1), 3, 47)], [(39, [("dv", 3)])] if OPT["own1"] else [], ([("q", R(18 + g3n, 24), 0, 24)] if g3n < 6 else []) + [("ldn", "ka", 25 if g3n < 6 else 0, 47)])
        if OPT["own1"]: p += gen_seg("S3", g3, g4[:2], [(sp(1, 0), 0, 23)], [], [("ldn", "kb", 0, 23)])
        else: p += gen_seg("S3", g3, g4[:2], [(sp(1, 0), 0, 47)], [(15, [("dv", 3)])], [("ldn", "kb", 0, 22), ("ldn", "va", 23, 46, "raw")])
        p += gen_seg("S4", g4, g5[:2], [(sp(1, 1), 0, 21)], [], [("ldn", "va", 0, 30, "raw")] if OPT["own1"] else [], extra=[Stream([W(("q", 2))] + q_frags(2) + [W(("q", 3))] + q_frags(3), 16, 46)])
        p += istamp("pre-S5", True) + ["s_waitcnt lgkmcnt(0)", "s_barrier"]
        p += gen_seg("S5", g5, gi3[:2], [(rowmax2(2, (2, 3), (V_T, V_T + 2)), 27, 45), (addneg(2, 0) + addneg(2, 1) + sp(2, 0) + addneg(2, 2) + addneg(2, 3) + sp(2, 1), 46, 95)],
                     [(GBAR + 8, [("dk", 5)])], [("cv", "ka", 0, 99, 0, 34), ("cv", "kb", 0, 99, 35, 72), ("kst", 0, 73), ("kst", 1, 77), ("kst", 2, 89), ("kst", 3, 93),
                     ("ldn", "va", 36, 60, "sc")], [K_(4, 5) + (1, 24)])
        p += gen_seg("i3", gi3, gi4[:2], [(sp(3, 0) + sp(3, 1), 0, 54), (sp(4, 0), 55, 95)], [(OPT["pb"], []), (GBAR, [])],
                     [("ld", "vb", 0, 22), ("post", "kst", 0), ("cv", "va", 0, 99, 10, 95)], [K_(6, 7) + V_(4, 5) + (24, 90)])
        p += [f"s_mov_b32 s{S_CNT}, {7 - OPT['lastp']}", f"s_mul_i32 s{S_RC}, s{S_QB}, {STAGE}", f"s_mov_b32 s{S_RD}, 12288"]
        p += gen_seg("i4", gi4, seg_groups(5)[:2], [(sp(4, 1) + sp(5, 0), 0, 94)], [(47, []), (GBAR + 8, [("dk", 7)])],
                     [("ld", "ka", 0, 30), ("cv", "vb", 0, 99, 30, 94), ("step", "q", 30, 70), ("pollld", OPT["pl4"], OPT["pl4"] + 8)], [V_(6, 7) + (52, 84)],
                     endops=["s_nop 0", "s_branch L_join"])
    p += [".p2align 6"] + ["s_nop 0"] * OPT.get("pad", 0) + ["L_loop:"]
    pro_ = p
    first57, tail = gen_tail()
    bodyA = []
    for k in (1, 2, 3, 4, 5, 6, 7, 0):
        if k == 5: bodyA.append("L_join:"); jpos = len(bodyA)
        eo = [f"s_sub_u32 s{S_CNT}, s{S_CNT}, 1", f"s_cmp_lg_u32 s{S_CNT}, 0", "s_cbranch_scc1 L_loop"] if k == 0 else ()
        t, d = steady(k)
        if OPT["ab"] & 8: d = []
        if OPT["ab"] & 16: t = [x for x in t if x[0] not in ("cv", "kst", "vst", "ld")]
        if OPT["ab"] & 128: t = [x for x in t if x[0] not in ("cv",)]
        if OPT["ab"] & 256: t = [x for x in t if x[0] not in ("kst", "vst")]
        if OPT["ab"] & 512: t = [x for x in t if x[0] not in ("ld",)]
        bars = None
        if OPT["nb6"]:
            dk = lambda *x: [("dk", i) for i in x]; dv = lambda *x: [("dv", i) for i in x]
            bars = {0: [], 4: [], 7: [(GBAR, dv(6, 7) + dk(2, 3))], 3: [(GBAR, dv(2, 3) + dk(6, 7))]}.get(k)
        bodyA += gen_iter(16 + k, t, d, name=f"k{k}", endops=eo, bars=bars)
    lastt = []
    if OPT["lastp"]:
        for k in (1, 2, 3, 4, 5, 6, 7, 0):
            t, d = steady(k)
            t = [x for x in t if not ((x[0] in ("ld", "cv") and x[1] == "ka") or (x[0] in ("ld", "cv") and x[1] == "kb" and k != 1) or x[:2] == ("ld", "va") or x[0] == "pf")]
            dk = lambda *x: [("dk", i) for i in x]; dv = lambda *x: [("dv", i) for i in x]
            bars = {0: [], 4: [], 7: [(GBAR, dv(6, 7) + dk(2, 3))], 3: [(GBAR, dv(2, 3) + dk(6, 7))]}.get(k) if OPT["nb6"] else None
            lastt += gen_iter(16 + k, t, d, name=f"z{k}", bars=bars)
    tail = lastt + tail
    assert OPT["qo"] or [g.rd for g in first57] == [g.rd for g in seg_groups(17)[:2]]
    tailc = tail + ["L_fin:"]
    resolve(pro_ + bodyA[jpos:] + bodyA + bodyA + tailc)
    if OPT["cap"]: pro_ = pace(pro_, OPT["cap"] / 4)
    P_ = Prog()
    P_.extend(fin(pro_))
    a0 = len(P_.ins); P_.extend(fin(bodyA)); a1 = len(P_.ins)
    P_.extend(fin(tailc))
    p = P_
    if OPT["stamp"]:
        p("s_waitcnt vmcnt(0) lgkmcnt(0)")
        p.extend(istamp("end"))
        p("s_waitcnt lgkmcnt(0)")
        p.extend(istamp("end2"))
        p(f"v_writelane_b32 v{V_STAMP}, s{S_TAG+1}, 63")
        p("s_add_u32 s8, s18, 0xfa00000"); p("s_addc_u32 s9, s19, 0"); p("s_mov_b32 s10, 1048576"); p("s_mov_b32 s11, 0x20000")
        p("s_lshl_b32 s24, s2, 2"); p(f"s_add_u32 s24, s24, s{S_WAVE}"); p("s_lshl_b32 s24, s24, 8")
        p(f"v_bfe_u32 v32, v{V_DMA}, 4, 6"); p("v_lshlrev_b32 v32, 2, v32")
        p(f"buffer_store_dword v{V_STAMP}, v32, s[8:11], s24 offen")
        if OPT["stamp"] == 8: STAMPS.sort(key=lambda n: 0)
        open(sys.argv[1] + ".stamps", "w").write("\n".join(order_stamps()))
    if OPT["calx"]:
        p("s_waitcnt vmcnt(0)")
        p("L_cal:")
        p("s_memrealtime s[40:41]")
        p("s_waitcnt lgkmcnt(0)")
        p("s_sub_u32 s40, s40, s100")
        p("s_cmp_lt_u32 s40, 10000")
        p("s_cbranch_scc1 L_cal")
    p("L_done:")
    p("s_endpgm")
    main_end0 = len(p.ins)
    for ps in POLLSITES: p.extend(poll_slow(ps))
    p.extend(tag_slow())
    main_end = len(p.ins)
    p.extend(gen_slow())
    slow_end = len(p.ins)
    ji = [i for i, x in enumerate(p.ins) if x.text == "L_join:"][0]
    lin = p.ins[:a0] + p.ins[ji:a1] + p.ins[a0:main_end0]
    sl = [i for i, x in enumerate(p.ins) if x.text == "L_slowloop:"][0]
    bi = [i for i, x in enumerate(p.ins) if x.text == "s_cbranch_scc1 L_slowloop"][0]
    probs = check_hazards(lin, "main") + check_hazards(p.ins[main_end:bi+1] + p.ins[sl:slow_end], "slow") + check_hazards(p.ins[main_end0:main_end], "aux")
    for x in probs: print(x, file=sys.stderr)
    return p

def kd(name, vgpr, sgpr, accum):
    return f""".amdhsa_kernel {name}
  .amdhsa_next_free_vgpr {vgpr}
  .amdhsa_next_free_sgpr {sgpr}
  .amdhsa_accum_offset {accum}
  .amdhsa_group_segment_fixed_size 0
  .amdhsa_kernarg_size 80
  .amdhsa_user_sgpr_count 2
  .amdhsa_user_sgpr_kernarg_segment_ptr 1
  .amdhsa_system_sgpr_workgroup_id_x 1
.end_amdhsa_kernel
"""
def build_text(body):
    o = HEADER + f"; @launch grid=(256,1,1) block=(256,1,1) lds={LDS_BYTES}\n" + '.amdgcn_target "amdgcn-amd-amdhsa--gfx950"\n.text\n'
    o += f".globl {NAME}_kernel\n.p2align 8\n.type {NAME}_kernel,@function\n" + body
    return o + '.section .rodata,"a"\n.p2align 6\n' + kd(NAME + "_kernel", 512, 102, 256)
def addresses(lines):
    import subprocess, types, ctypes
    _o = ctypes.CDLL
    class F:
        def __getattr__(s, n):
            x = types.SimpleNamespace(); object.__setattr__(s, n, x); return x
    ctypes.CDLL = lambda n, *a, **k: (F() if "amdhip" in n else _o(n, *a, **k))
    sys.path.insert(0, "cdna_kernels")
    import cdna_launch as cl
    t = []
    for i, l in enumerate(lines):
        if l.strip().startswith("v_"): t.append(f"L_adr{i}:")
        t.append(l)
    open("_a.s", "w").write(cl.with_harness_metadata(build_text("\n".join(t) + "\n"), NAME + "_kernel", 10, launch_lists=True))
    subprocess.run([cl.ROCM_CLANG, "-x", "assembler", "-target", "amdgcn-amd-amdhsa", "-mcpu=gfx950", "_a.s", "-o", "_a.co"], check=True)
    r = subprocess.run(["llvm-objdump", "-t", "_a.co"], capture_output=True, text=True).stdout
    return {int(x.split()[-1][5:]): int(x.split()[0], 16) for x in r.split("\n") if "L_adr" in x}
def add_stubs(text):
    base = text.rstrip("\n").split("\n")
    lo = base.index("L_iwret:"); hi = base.index("L_fin:"); l0 = base.index("L_loop:")
    l1 = max(i for i, l in enumerate(base) if l.strip() == "s_cbranch_scc1 L_loop")
    pos = []
    for it in range(6):
        lines = []; idx = []
        chains = [[k for k in range(len(pos)) if k % 4 == w] for w in range(4)]
        nxt = {}
        for w in range(4):
            for a, b in zip(chains[w], chains[w][1:] + [None]): nxt[a] = f"L_pg{b}" if b is not None else "L_iwret"
        for i, l in enumerate(base):
            idx.append(len(lines)); lines.append(l)
            if i in pos:
                k = pos.index(i)
                lines += ([f"L_iw{k}:"] if k < 4 else []) + [f"L_pg{k}:", f"    s_cbranch_execz {nxt[k]}"]
        if len(pos) < 4: lines += [x for w in range(len(pos), 4) for x in (f"L_iw{w}:", "    s_branch L_iwret")]
        ad = addresses(lines); inv = {j: i for i, j in enumerate(idx)}
        first = min(i for i, l in enumerate(base) if l.strip().startswith("v_mfma") and "a[0:3]" in l)
        mf = sorted((a, inv[j]) for j, a in ad.items() if lo < inv[j] < hi and (inv[j] < first or base[inv[j]].strip().startswith("v_mfma")))
        new = [min(i for a, i in mf if i > base.index("L_join:"))]
        pg = mf[0][0] >> 12
        for a, i in mf:
            if (a + 8) >> 12 > pg:
                pg = (a + 8) >> 12
                if OPT["iw"] == 2 or not (l0 < i < l1): new.append(i)
        new = sorted(set(new))
        if new == pos: break
        pos = new
    print("page stubs:", len(pos), file=sys.stderr)
    return "\n".join(lines) + "\n"
out = HEADER
out += f"; @launch grid=(256,1,1) block=(256,1,1) lds={LDS_BYTES}\n"
out += '.amdgcn_target "amdgcn-amd-amdhsa--gfx950"\n.text\n'
body_ = gen_main().text()
if OPT["iw"]: body_ = add_stubs(body_)
out += f".globl {NAME}_kernel\n.p2align 8\n.type {NAME}_kernel,@function\n" + body_
out += '.section .rodata,"a"\n.p2align 6\n' + kd(NAME + "_kernel", 512, 102, 256)
open(sys.argv[1], "w").write(out)
```

```python
import sys, math
from asmlib import *

NAME = "standalone__kv_cache_quant_int4_int2_kv_with_per_channel_or_per_token_scales__prompt"
OPT = dict(stamp=0, vmgap=4, sb=6, sa=6, ahead=8, thr=64, pf2=0, calx="", qa=6, plv=2, plk=10, ckv=1, ckk=1, tden=24, touch=0, w0poll=0, cap=48, qb=6, q3e=1, ksc=0, few=1, qc=15, pb=39, pl4=40, l2=3, k1e=0, greedy=0, g3n=3, pre=0, own1=1, ab=0, pk=0, split=0, prent=1, bal=1, flex=1, w2=0, dense="S61,S5,S2,S3,S4", dx=4, dvg=2, f3=1, pvs=1, qo=0, po=0, x2c=12, sst=1, q0f=1, nb6=1, tv=1, omv=0, ldc=8, rs=0, scnt=0, iw=2, pfnt=0, v64=1, lastp=1, lmf=1, fs=1, pq=2, fa=20, k1s=2, fb=99, pa=1, twop=0, llag=24, qe=18, qf=0, ed=200, ed1=250, cut="22,46,6,42,10,30,10")
for a in sys.argv[2:]:
    k, v = a.split("="); OPT[k] = int(v) if v.lstrip("-").isdigit() else v
NS = 6
STAGE = 24576
HEADBYTES = 64 * STAGE
RING = NS * STAGE
LDS_BYTES = RING + 128
A0, B0, A1, B1, A2, B2 = [i * STAGE for i in range(6)]
CSCALE = (192.0 ** -0.5) * math.log2(math.e)
HEADER = open("cdna_kernels/" + NAME + ".s.ref").read().split("; Override launch geometry")[0]
MF = "v_mfma_f32_16x16x32_bf16"
V64 = OPT["v64"]; NVE = 3 if V64 else 4
NCH = 2 if V64 else 3
def chunk_dbs(n): return list(range(6 * n, 6 * n + 6)) if V64 else [3 * e + n for e in range(4)]

V_FVAL = 0; V_RD = 1; V_RDK = [2, 3]; V_DMA = 4; V_L = [5, 6, 7, 8]
V_KLD = 9; V_KSC = 10; V_KST = 11; V_VLD = 12; V_FLAG = 13; V_RD2 = 59; V_RD3 = 60
V_T = 16; NTP = 2
V_VST = 15; V_STAMP = 14; V_T4 = 20
V_FR = 24; NFS = 6
V_CT = 48; V_VO = 52; V_RS = [56, 60]; BX = 224; BY = 240; BZ = 144
V_POLL = V_VO; V_KA = V_VO + 2
UNIT = [64, 80, 160, 176]; HI = [96, 112]
VQD = 136; VQR = [22, 23, 142, 143]
def Sq(t, sl, tb): return (UNIT[t % 4] if tb == 0 else HI[t % 2]) + 4 * sl
def P(t, sl): return UNIT[t % 4] + 4 * sl
def NEGM(qb): return 128 + 4 * qb
def O(qb, db): return (qb * 12 + db) * 4
def Qf(qb, s, half=None):
    i = qb * 6 + s
    base, f = (192 + 4 * i, ar) if i < 16 else (192 + 4 * (i - 16), vr)
    return f(base, 4) if half is None else f(base + 2 * half, 2)
def FR(f): return vr(V_FR + 4 * (f % NFS), 4)

S_RDELTA = 3; S_WS = 4; S_Q = 8; S_OUT = 12; S_FLG = 20
S_WAVE = 25; S_DMK = 26; S_GOFF = 27; S_RK = 28; S_TMP = 29; S_RV = 30; S_CNT = 31; S_GOFFK = 32
S_PK0 = 33; S_PK1 = 34; S_PV0 = 35; S_PKS = 36; S_PVS = 37; S_CS = 38; S_RET = 39; S_PV1 = 16; S_PV2 = 17
S_QL = 40; S_QS = 41; S_TAG = 42; S_FOFF = 44; S_XCC = 45; S_OWN = 46; S_RC = 46; S_RD = 47
S_PT = 48; S_DMV = 56; S_TK = 57; S_TV = 58; S_TP = 59
S_QK = 64; S_QV = 68; S_KS = 72; S_KZ = 76; S_VS = 80; S_VZ = 84; S_DBG = 88
S_NEED = 92; S_HOFF = 93; S_HEAD = 94; S_QB = 95; S_BUDGET = 96; S_MASK = 97
WSOFF = OPT.get("wsoff", 0) << 20
FLAG_OFF = WSOFF + (49 << 20)
SC1 = {0: " sc1", 1: "", 2: " nt", 3: " sc0", 4: " sc1 nt", 5: " sc0 sc1"}[OPT.get("dmaf", 0)]; NTKV = " nt"; NTQ = " nt"; STF = " sc1"; OF = " sc0 sc1"

STAMPS = []
def istamp(name, force=False):
    if OPT["calx"] == name: return ["s_memrealtime s[100:101]"]
    if OPT["stamp"] not in (6, 8, 9): return []
    if OPT["stamp"] == 8 and name.startswith(("k", "z")) and not force: return []
    if OPT["few"] and force and name not in ("karg", "k0b", "vst", "tag", "post", "poll", "postV", "pollV", "pre-dk1"): return []
    if OPT["stamp"] != 8 and force: return []
    STAMPS.append(name)
    return ["s_waitcnt lgkmcnt(0)"] * (1 if force else 0) + [f"v_mov_b32_dpp v{V_STAMP}, v{V_STAMP} wave_shr:1 row_mask:0xf bank_mask:0xf", f"v_writelane_b32 v{V_STAMP}, s98, 0",
            ("s_memtime" if OPT["stamp"] == 6 else "s_memrealtime") + " s[98:99]"]

def order_stamps():
    l = list(STAMPS); out = []
    if "S62" in l:
        l.remove("S61"); l.insert(l.index("S62"), "S61")
    for n in l:
        if "." in n: continue
        out.append(n); out += [m for m in l if m.startswith(n + ".")]
    return out
class W:
    def __init__(self, *tags): self.tags = tags
class VM:
    def __init__(self, tag, text): self.tag = tag; self.text = text
class LG:
    def __init__(self, *tags): self.tags = tags
class DS:
    def __init__(self, tag, text): self.tag = tag; self.text = text

def mode_of(t):
    if OPT["fs"] and t < 4: return "f"
    return {0: "a", 1: "a", 2: "b", 3: "b", 58: "a", 59: "a", 60: "a", 61: "b", 62: "b", 63: "b"}.get(t, "f")
def slot_q(t, sl):
    m = mode_of(t)
    return sl if m == "f" else (sl & 1) + (0 if m == "a" else 2)
ONES = 20
def softmax_part(t, half, lm=False):
    if lm:
        l = [x for x in softmax_part(t, half) if not x.startswith("v_add")]
        out = []
        for x in l:
            out.append(x)
        k = [i for i, x in enumerate(out) if x.startswith("v_cvt_pk")][3]
        mm = lambda sl: f"{MF} v[{RL[slot_q(t, sl)]}:{RL[slot_q(t, sl)]+3}], v[{P(t, sl)}:{P(t, sl)+3}], v[{ONES}:{ONES+3}], " + ("0" if (t, half) == (61, 1) else f"v[{RL[slot_q(t, sl)]}:{RL[slot_q(t, sl)]+3}]")
        return out[:k + 3] + [mm(2 * half)] + out[k + 3:] + ["s_nop 1", mm(2 * half + 1)]
    flat = []; prev = None
    for gp in range(8):
        sl = 2 * half + gp // 4; pi = gp % 4; l = V_L[slot_q(t, sl)]
        t0 = V_T + 2 * (gp % NTP); t1 = t0 + 1
        src = Sq(t, sl, pi >> 1) + 2 * (pi & 1)
        E = [f"v_exp_f32 v{t0}, v{src}", f"v_exp_f32 v{t1}, v{src+1}"]
        A = [f"v_add_f32 v{l}, v{l}, v{t0}", f"v_add_f32 v{l}, v{l}, v{t1}"]
        C = [f"v_cvt_pk_bf16_f32 v{P(t,sl)+pi}, v{t0}, v{t1}"]
        if 16 <= t < 26:
            if OPT["ab"] & 1: A = []
            if OPT["ab"] & 2: E = [x.replace("v_exp_f32", "v_mov_b32") for x in E]
            if OPT["ab"] & 32: C = []
            if OPT["ab"] & 64: E = []; A = []; C = []
        flat += E if prev is None else E[:1] + prev[0] + E[1:] + prev[1]
        prev = (A, C)
    return flat + prev[0] + prev[1]

class Grp:
    def __init__(self, rd, mf): self.rd = rd; self.mf = mf; self.reb = []
def qk_tile(t, w, slots, czero=False):
    gs = []
    if OPT["qo"] == 1 and len(slots) == 4:
        for s_ in range(6):
            rd = [(V_RDK[s_ & 1], w * 12288 + tb * 6144 + (s_ >> 1) * 128) for tb in range(2)]
            mf = []
            for sl, qb in slots:
                for tb in range(2):
                    d = vr(Sq(t, sl, tb), 4)
                    mf.append((tb, d, Qf(qb, s_), (("0" if czero else vr(NEGM(qb), 4)) if s_ == 0 else d)))
            gs.append(Grp(rd, mf))
        return gs
    for gi in range(6):
        s0 = 2 * (gi >> 1); tb = gi & 1
        rd = [(V_RDK[j], w * 12288 + tb * 6144 + (s0 >> 1) * 128) for j in range(2)]
        mf = []
        for sl, qb in slots:
            d = vr(Sq(t, sl, tb), 4)
            mf += [(0, d, Qf(qb, s0), (("0" if czero else vr(NEGM(qb), 4)) if s0 == 0 else d)), (1, d, Qf(qb, s0 + 1), d)]
        gs.append(Grp(rd, mf))
    return gs
def qk_full(t): return [g for w in range(2) for g in qk_tile(t + w, w, [(q, q) for q in range(4)])]
def qk_half(t, czero=False, ws=(0, 1)):
    return [g for w in ws for g in qk_tile(t, w, [(2 * w + j, slot_q(t, j)) for j in range(2)], czero)]
def OV(qb, db): return (BY if qb == 2 else BZ) + 4 * (db // 3)
def pv_grp(t, db, first=False, va=V_RD):
    m = mode_of(t); mf = []
    for qb in (range(4) if m == "f" else [slot_q(t, 0), slot_q(t, 1)]):
        d = ar(O(qb, db), 4)
        if OPT["omv"] and t >= 61 and db % 3 == 2: d = " " + vr(OV(qb, db), 4)
        for w in range(2):
            b = P(t + w, qb) if m == "f" else P(t, 2 * w + (qb & 1))
            mf.append((w, d, vr(b, 4), "0" if (first and w == 0) else d))
    return Grp([(va, w * 12288 + db * 1024) for w in range(2)], mf)
def pv_seq(t, first=False):
    if OPT["po"] == 1 and mode_of(t) == "f":
        gs = []
        for d0 in range(0, 12, 2):
            for w in range(2):
                mf = [(e, ar(O(qb, d0 + e), 4), vr(P(t + w, qb), 4), ar(O(qb, d0 + e), 4)) for qb in range(4) for e in range(2)]
                gs.append(Grp([(V_RD, w * 12288 + (d0 + e) * 1024) for e in range(2)], mf))
        return gs
    if OPT["po"] == 2 and mode_of(t) == "f":
        gs = []
        for db in range(12):
            mf = [(w, ar(O(qb, db), 4), vr(P(t + w, qb), 4), ar(O(qb, db), 4)) for w in range(2) for qb in range(4)]
            gs.append(Grp([(V_RD, w * 12288 + db * 1024) for w in range(2)], mf))
        return gs
    return [pv_grp(t, db, first) for db in range(12)]
def pv_unchained(t, first=False):
    gs = []
    for w in range(2):
        for d0 in range(0, 12, 2):
            mf = []
            for j in range(2):
                qb = slot_q(t, j)
                for e in range(2):
                    d = ar(O(qb, d0 + e), 4)
                    mf.append((e, d, vr(P(t, 2 * w + j), 4), "0" if (first and w == 0) else d))
            gs.append(Grp([(V_RD, w * 12288 + (d0 + e) * 1024) for e in range(2)], mf))
    return gs
def rebase(gs, regs, delta):
    op = "v_add_u32" if delta >= 0 else "v_subrev_u32"
    gs[0].reb += [f"{op} v{r}, {abs(delta)}, v{r}" for r in regs]
    return gs
def rd_op(gi, j, g):
    f = 2 * gi + j
    return DS(("fr", f % NFS), f"ds_read_b128 {FR(f)}, v{g.rd[j][0]} offset:{g.rd[j][1]}")

def dma_tile(part, pos, peel=False):
    dm, go, tmp = (S_DMK, S_GOFFK, S_TK) if part == "k" else (S_DMV, S_GOFF, S_TV)
    l = [f"s_mov_b32 m0, s{dm}"]
    for j in range(3):
        l.append(VM(("d" + part, pos % 8), f"buffer_load_dwordx4 v{V_DMA}, s[{S_WS}:{S_WS+3}], s{go} offen offset:{j*1024}{SC1} lds"))
    if peel and pos < 7:
        l += [f"s_add_u32 s{go}, s{go}, {STAGE}", f"s_sub_u32 s{tmp}, s{go}, {8*STAGE}", f"s_min_u32 s{go}, s{go}, s{tmp}"]
    elif peel and pos == 7:
        l += [f"s_mov_b32 s{go}, {8*STAGE + (0 if part == 'k' else 12288)}"]
    else:
        l += [f"s_add_u32 s{go}, s{go}, {STAGE}"]
    if pos % 2 == 0: l += [f"s_add_u32 s{dm}, s{dm}, 12288"]
    else: l += [f"s_add_u32 s{dm}, s{dm}, {2*STAGE - 12288}", f"s_sub_u32 s{tmp}, s{dm}, {RING}", f"s_min_u32 s{dm}, s{dm}, s{tmp}"]
    return l
QOFF = [STAGE, 0, 2 * STAGE, STAGE]
def q_dma(lst):
    l = []
    if not lst: return l
    for i in lst:
        a, b = divmod(i, 6)
        l += [f"s_mov_b32 s{S_QS}, {a*6144}"] * (1 if (b == 0 or i == lst[0]) else 0)
        l += [f"s_add_u32 m0, s{S_QL}, {QOFF[a] + b*1024}",
              VM(("q", a), f"buffer_load_dwordx4 v{VQD+b}, s[{S_Q}:{S_Q+3}], s{S_QS} offen{NTQ} lds")]
    return l
def q_frags(qb):
    l = []
    for s in range(6):
        for h in range(2):
            sp = s + 6 * h
            l.append(DS(("qf", qb), f"ds_read_b64 {Qf(qb,s,h)}, v{VQR[sp&3]} offset:{QOFF[qb] + (sp>>2)*128}"))
    return l
def with_nop(l):
    out = []
    for i, x in enumerate(l):
        out.append(x)
        if isinstance(x, str) and " m0," in x and i + 1 < len(l) and isinstance(l[i + 1], VM): out.append("s_nop 0")
    return out
def rd_step(kind):
    cur, regs = (S_RK, V_RDK) if kind == "q" else (S_RV, [V_RD])
    return [f"s_add_u32 s{S_TMP}, s{cur}, {2*STAGE}", f"s_sub_u32 s{S_RDELTA}, s{S_TMP}, {RING}",
            f"s_min_u32 s{S_TMP}, s{S_TMP}, s{S_RDELTA}", f"s_sub_u32 s{S_RDELTA}, s{S_TMP}, s{cur}", f"s_mov_b32 s{cur}, s{S_TMP}"] + \
           [f"v_add_u32 v{r}, s{S_RDELTA}, v{r}" for r in regs]

def k_ld(h, buf, rs, tag, scal_first=True):
    sc = [VM(tag, f"buffer_load_dwordx2 v[{rs+2*i}:{rs+2*i+1}], v{V_KSC}, s[{srd_}:{srd_+3}], s{S_PKS} offen offset:{192*h}" + (" nt" if OPT["scnt"] else ""))
          for i, srd_ in enumerate((S_KS, S_KZ))]
    l = []
    for j in range(4):
        so = S_PK0 if j < 2 else S_PK1
        l.append(VM(tag, f"buffer_load_dwordx4 v[{buf+4*j}:{buf+4*j+3}], v{V_KLD}, s[{S_QK}:{S_QK+3}], s{so} offen offset:{(j&1)*1536+384*h}{NTKV}"))
    return sc + l if scal_first else l + sc
def v_ld(h, buf, rs, tag, scal_first=True):
    sc = [VM(tag, f"buffer_load_dwordx2 v[{rs+2*i}:{rs+2*i+1}], off, s[{srd_}:{srd_+3}], s{S_PVS} offset:{8*h}" + (" nt" if OPT["scnt"] else ""))
          for i, srd_ in enumerate((S_VS, S_VZ))]
    l = []
    for r in range(4):
        so = S_PV0 if h == 0 else S_PV1
        l.append(VM(tag, f"buffer_load_dwordx{NVE} v[{buf+4*r}:{buf+4*r+NVE-1}], v{V_VLD}, s[{S_QV}:{S_QV+3}], s{so} offen offset:{r*768}{NTKV}"))
    return sc + l if scal_first else l + sc
def k_cv(h, buf, rs, out):
    l = []
    s0, s1, z0, z1 = V_CT, V_CT + 1, V_CT + 2, V_CT + 3
    for i in range(2):
        l += [f"v_lshlrev_b32 v{s0}, 16, v{rs+i}", f"v_and_b32 v{s1}, s{S_MASK}, v{rs+i}",
              f"v_lshlrev_b32 v{z0}, 16, v{rs+2+i}", f"v_and_b32 v{z1}, s{S_MASK}, v{rs+2+i}",
              f"v_mul_f32 v{s0}, s{S_CS}, v{s0}", f"v_mul_f32 v{s1}, s{S_CS}, v{s1}",
              f"v_mul_f32_e64 v{z0}, -v{z0}, v{s0}", f"v_mul_f32_e64 v{z1}, -v{z1}, v{s1}"]
        if OPT.get("nz", 0) & 1: l[-2:] = [f"v_mov_b32 v{z0}, 0", f"v_mov_b32 v{z1}, 0"]
        for j in range(4):
            a = buf + 4 * j + 2 * i; b = a + 1
            l += [f"v_cvt_f32_i32 v{a}, v{a}", f"v_cvt_f32_i32 v{b}, v{b}",
                  f"v_fma_f32 v{a}, v{a}, v{s0}, v{z0}", f"v_fma_f32 v{b}, v{b}, v{s1}, v{z1}",
                  f"v_cvt_pk_bf16_f32 v{out+4*j+2*h+i}, v{a}, v{b}"]
    return l
def k_st(j, out, tag="kst", STF=STF, pre=False):
    va = V_KST; g = []
    if j and pre: va = V_T4 + j
    elif j:
        va = V_KA + (j & 1); g.append(f"v_xor_b32 v{va}, {16*j}, v{V_KST}")
    g.append(VM(tag, f"buffer_store_dwordx4 v[{out+4*j}:{out+4*j+3}], v{va}, s[{S_WS}:{S_WS+3}], s{S_PK0} offen offset:{j*768}{STF}"))
    return g
def v_cv(h, buf, rs, out):
    l = []
    s0, s1, z0, z1 = V_CT, V_CT + 1, V_CT + 2, V_CT + 3
    for i in range(2):
        l += [f"v_lshlrev_b32 v{s0}, 16, v{rs+i}", f"v_and_b32 v{s1}, s{S_MASK}, v{rs+i}",
              f"v_lshlrev_b32 v{z0}, 16, v{rs+2+i}", f"v_and_b32 v{z1}, s{S_MASK}, v{rs+2+i}",
              f"v_mul_f32_e64 v{z0}, -v{z0}, v{s0}", f"v_mul_f32_e64 v{z1}, -v{z1}, v{s1}"]
        if OPT.get("nz", 0) & 2: l[-2:] = [f"v_mov_b32 v{z0}, 0", f"v_mov_b32 v{z1}, 0"]
        for e in range(NVE):
            a = buf + 4 * (2 * i) + e; b = buf + 4 * (2 * i + 1) + e
            l += [f"v_cvt_f32_i32 v{a}, v{a}", f"v_cvt_f32_i32 v{b}, v{b}",
                  f"v_fma_f32 v{a}, v{a}, v{s0}, v{z0}", f"v_fma_f32 v{b}, v{b}, v{s1}, v{z1}"]
    for e, i in [(0, 0), (1, 0), (0, 1), (1, 1), (2, 0), (2, 1), (3, 0), (3, 1)][:2 * NVE]:
        l.append(f"v_cvt_pk_bf16_f32 v{out+4*e+2*h+i}, v{buf+8*i+e}, v{buf+8*i+4+e}")
    return l
def v_st(e, out, tag="vst", STF=STF):
    so = S_PV0 if (e < 2 or V64) else S_PV2
    return [VM(tag, f"buffer_store_dwordx4 v[{out+4*e}:{out+4*e+3}], v{V_VST}, s[{S_WS}:{S_WS+3}], s{so} offen offset:{e*1024 if V64 else (e&1)*3072}{STF}")]
def k_adv():
    return [f"s_add_u32 s{S_PK0}, s{S_PK0}, {8*STAGE}", f"s_add_u32 s{S_PK1}, s{S_PK1}, {8*STAGE}", f"s_add_u32 s{S_PKS}, s{S_PKS}, {4*384}"]
def v_adv():
    return [f"s_add_u32 s{r}, s{r}, {8*STAGE}" for r in (S_PV0, S_PV1, S_PV2)] + [f"s_add_u32 s{S_PVS}, s{S_PVS}, {8*64}"]
HT = {"ka": (k_ld, k_cv, 0, BX, V_RS[0], BX), "kb": (k_ld, k_cv, 1, BY, V_RS[1], BX),
      "va": (v_ld, v_cv, 0, BZ, V_RS[0], BZ), "vb": (v_ld, v_cv, 1, BY, V_RS[1], BZ)}
def flag_post(first=False):
    return [f"v_add_u32 v{V_FVAL}, 1, v{V_FVAL}"] + [
            VM("flag", f"buffer_store_dword v{V_FVAL}, v{V_FLAG}, s[{S_FLG}:{S_FLG+3}], 0 offen")] * (OPT["l2"] == 1 or (OPT["l2"] == 2 and first)) + [
            VM("flag", f"buffer_store_dword v{V_FVAL}, v{V_FLAG}, s[{S_FLG}:{S_FLG+3}], 0 offen offset:32 sc1")]
def poll_addr():
    return [f"v_bfe_u32 v{V_POLL+1}, v{V_DMA}, 4, 6", f"v_lshlrev_b32 v{V_POLL+1}, 2, v{V_POLL+1}"]
def poll_load():
    if OPT["pa"]: return [VM("poll", f"buffer_load_dword v{V_POLL}, v{V_T4}, s[{S_FLG}:{S_FLG+3}], s{S_FOFF} offen sc1")]
    return poll_addr() + [VM("poll", f"buffer_load_dword v{V_POLL}, v{V_POLL+1}, s[{S_FLG}:{S_FLG+3}], s{S_FOFF} offen sc1")]
def poll_test():
    return [f"v_subrev_u32 v{V_POLL}, s{S_NEED}, v{V_POLL}", f"v_cmp_lt_u32 vcc, 15, v{V_POLL}", "s_nop 0", f"s_and_b32 s{S_TP}, vcc_lo, 0xff"]
def smem_flags():
    return [f"s_buffer_load_dwordx8 s[{S_PT}:{S_PT+7}], s[{S_FLG}:{S_FLG+3}], s{S_FOFF} glc"]
def smem_reduce():
    return [f"s_sub_u32 s{S_PT+i}, s{S_PT+i}, s{S_NEED}" for i in range(8)] + [f"s_max_u32 s{S_PT}, s{S_PT}, s{S_PT+i}" for i in range(1, 8)]
def smem_test():
    return smem_flags() + ["s_waitcnt lgkmcnt(0)"] + smem_reduce() + [f"s_cmp_lt_u32 s{S_PT}, 16"]
def poll_slow(site):
    l = [f"L_pollslow{site}:"] + ([f"s_add_u32 s{S_TAG+1}, s{S_TAG+1}, {1 << (6 * site)}"] if OPT["stamp"] else [])
    l += [f"s_mov_b32 s{S_TP}, {60 if site == 0 else 200}", f"L_pollsm{site}:"] + smem_test() + [f"s_cbranch_scc1 L_pollok{site}",
          f"s_sub_u32 s{S_TP}, s{S_TP}, 1", f"s_cbranch_scc1 L_pollvec{site}", "s_sleep 1", f"s_branch L_pollsm{site}"]
    l += [f"L_pollvec{site}:"] + poll_addr() + [
            f"s_sub_u32 s{S_BUDGET}, s{S_BUDGET}, 1",
            f"s_cbranch_scc1 L_pollgiveup{site}",
            "s_sleep 2",
            f"buffer_load_dword v{V_POLL}, v{V_POLL+1}, s[{S_FLG}:{S_FLG+3}], s{S_FOFF} offen sc1",
            "s_waitcnt vmcnt(0)"]
    if site == 0 and OPT["l2"]:
        l += [f"s_bitcmp1_b32 s{S_NEED}, 9", "s_cbranch_scc1 L_nomix",
              f"v_xor_b32 v{V_POLL+1}, s{S_NEED}, v{V_POLL}", f"v_lshrrev_b32 v{V_POLL+1}, 5, v{V_POLL+1}", f"v_add_u32 v{V_POLL+1}, -1, v{V_POLL+1}",
              f"v_cmp_gt_u32 vcc, 31, v{V_POLL+1}", "s_nop 1", f"s_and_b32 s{S_TP}, vcc_lo, {'0xff' if OPT['l2'] == 3 else '0xff00'}", "s_cbranch_scc0 L_nomix"]
        l += fin([x for j in range(4) for x in k_st(j, BX)] + [x for e in range(NVE) for x in v_st(e, 112)])
        l += ["s_waitcnt vmcnt(0)", "s_barrier", f"s_and_b32 s{S_NEED}, s{S_NEED}, 0xfffffc00", f"s_add_u32 s{S_NEED}, s{S_NEED}, {16 << 5}",
              f"v_mov_b32 v{V_FVAL}, s{S_NEED}", f"s_add_u32 s{S_NEED}, s{S_NEED}, 1", f"s_mov_b32 s{S_FOFF}, 32"] + fin(flag_post()) + ["s_branch L_pollvec0", "L_nomix:"]
    l += poll_test() + [
            f"s_cbranch_scc1 L_pollvec{site}",
            f"s_branch L_pollok{site}",
            f"L_pollgiveup{site}:",
            f"s_mov_b32 s{S_BUDGET}, 0",
            f"s_branch L_pollok{site}"]
    return l
def tag_load():
    return [VM("tag", f"buffer_load_dword v{V_FVAL}, off, s[{S_DBG}:{S_DBG+3}], s{S_HOFF} sc1")]
def tag_check():
    return [f"s_cmp_lg_u32 s{S_WAVE}, 0", "s_cbranch_scc1 L_tagdone",
            f"v_readfirstlane_b32 s{S_TAG}, v{V_FVAL}", f"s_mov_b32 s{S_RET}, 100",
            "s_waitcnt lgkmcnt(0)", f"s_and_b32 s{S_OWN}, s{S_OWN}, 0xfffffc00",
            "L_tagretry:", f"s_cmp_eq_u32 s{S_TAG}, s{S_OWN}", f"s_cselect_b32 s{S_TAG}, 0, s{S_TAG}", f"s_cmp_lg_u32 s{S_TAG}, 0", "s_cbranch_scc1 L_tagok",
            f"s_sub_u32 s{S_RET}, s{S_RET}, 1", "s_cbranch_scc1 L_tagslow", "s_sleep 4",
            f"s_buffer_load_dword s{S_TAG}, s[{S_DBG}:{S_DBG+3}], s{S_HOFF} glc", "s_waitcnt lgkmcnt(0)", "s_branch L_tagretry",
            "L_tagok:", f"s_add_u32 s{S_TAG}, s{S_TAG}, s{S_XCC}", f"v_mov_b32 v{V_FVAL}, s{S_TAG}", f"v_mov_b32 v{V_T}, {RING}", DS("w", f"ds_write_b32 v{V_T}, v{V_FVAL}"), "L_tagdone:"]
def tag_get():
    return [f"v_mov_b32 v{V_T}, {RING}", DS("tg", f"ds_read_b32 v{V_T+1}, v{V_T}")]
def tag_use():
    return [f"v_readfirstlane_b32 s{S_NEED}, v{V_T+1}", f"s_add_u32 s{S_NEED}, s{S_NEED}, 1"]
def tag_slow():
    return ["L_tagslow:",
            f"s_sub_u32 s{S_BUDGET}, s{S_BUDGET}, 1",
            "s_cbranch_scc1 L_taggiveup",
            "s_sleep 2",
            f"buffer_load_dword v{V_FVAL}, off, s[{S_DBG}:{S_DBG+3}], s{S_HOFF} sc1",
            "s_waitcnt vmcnt(0)",
            f"v_readfirstlane_b32 s{S_TAG}, v{V_FVAL}", "s_nop 0", f"s_cmp_eq_u32 s{S_TAG}, s{S_OWN}", "s_cbranch_scc1 L_tagslow",
            f"s_cmp_eq_u32 s{S_TAG}, 0", "s_cbranch_scc1 L_tagslow",
            "s_branch L_tagok",
            "L_taggiveup:",
            f"s_mov_b32 s{S_BUDGET}, 0",
            "s_branch L_tagok"]

def text_of(x):
    return "s_waitcnt" if isinstance(x, (W, LG)) else (x.text if isinstance(x, (VM, DS)) else x)
def kind_of(x):
    t = text_of(x)
    if t.endswith(":"): return "label"
    if t.startswith("v_"): return "valu"
    if t.startswith("ds_"): return "ds"
    if t.startswith("buffer_store"): return "store"
    if t.startswith("buffer_"): return "load"
    return "salu"
def cost_of(x):
    k = kind_of(x); t = text_of(x)
    if k == "label": return 0
    if k == "store": return 20 if "x4" in t else (OPT["x2c"] if "x2" in t else 16 if "x3" in t else 8)
    if k == "load": return OPT["ldc"]
    if t.startswith("ds_write"): return 16 if ("b128" in t or "write2" in t) else 8
    if t.startswith(("v_exp", "v_rcp")): return 8
    if t.startswith("v_mfma"): return 32 if "x4_f32" in t else 8
    if t.startswith("s_nop"): return 4 * (int(t.split()[1]) + 1)
    if t.startswith("s_cbranch") or t.startswith("s_branch"): return 12
    if t.startswith("s_barrier"): return 8
    return 4
def gap_time(ops):
    t = 4; prev = None
    for o in ops:
        if o is None: continue
        k = kind_of(o)
        if k == "label": continue
        if k == "salu": t += cost_of(o)
        else: t = max(t, 8) + cost_of(o) + (8 if (k != "valu" and prev == "valu") else 0)
        prev = k
    return t

class Stream:
    def __init__(self, ops, first, last, maxper=99, dense=0):
        self.nb = {}; self.dl = []; l = []
        for o in ops:
            if isinstance(o, tuple):
                if o[0] == "nb": self.nb[len(l)] = o[1]
                else: self.dl.append((len(l), o[1]))
            else: l.append(o)
        ops = l
        self.ops = list(ops); self.first = first; self.last = last; self.maxper = maxper; self.dense = dense
        self.total = sum(cost_of(o) for o in self.ops); self.done = 0; self.i = 0
        self.gate = {}; self.i0 = 0

def pack(NG, A, B, C, T, streams, novm=(), nosalu=(), vmgap=4, light=()):
    out = []; over = 0; lastvm = -99
    for g in range(NG):
        a, b, c, tl = list(A[g]), list(B[g]), list(C[g]), list(T[g])
        cnt = {}; inC = set(); blocked = set()
        while True:
            best = None; bl = None; bsec = None
            for st in streams:
                if st.i >= len(st.ops) or g < st.first: continue
                if g < st.nb.get(st.i, 0): continue
                force = g >= st.last or any(st.i < n and g >= dg for n, dg in st.dl)
                if (cnt.get(id(st), 0) >= st.maxper or id(st) in blocked) and not force: continue
                o = st.ops[st.i]; k = kind_of(o); cst = cost_of(o)
                if k == "salu" and g in nosalu:
                    assert not force, (g, text_of(o))
                    continue
                if k in ("load", "store") and (g in novm or g - lastvm < vmgap) and not force: continue
                if k in ("load", "store", "ds"):
                    sec = "b" if id(st) not in inC and id(st) not in blocked else "c"
                    if sec == "c" and not force: continue
                elif k == "salu" and not a and cnt.get(id(st), 0) == 0:
                    sec = "a"
                else: sec = "c"
                tgt = st.total * (g - st.first + 1) / (st.last - st.first + 1)
                lag = tgt - st.done
                if not force:
                    if lag < cst / 2 - OPT["ahead"] and cst: continue
                    trial = (a + [o] if sec == "a" else a) + (b + [o] if sec == "b" else b) + (c + [o] if sec == "c" else c) + tl
                    gt = gap_time(trial)
                    if g in light and gt > 12 and k != "salu" and lag < OPT["llag"]: continue
                    if gt > 16:
                        if g % 2 == 0: continue
                        big = k == "store" or text_of(o).startswith(("ds_write_b128", "ds_write2"))
                        lim = max(20, st.dense) if lag > 24 else 16
                        if big and not (a + b + c + tl): lim = 32
                        if gt > lim: continue
                key = (force, k in ("load", "store"), lag / max(1, (st.last - g + 1)) ** 0.5)
                if best is None or key > bl: best = st; bl = key; bsec = sec
            if best is None: break
            o = best.ops[best.i]
            if bsec == "a": a.append(o)
            elif bsec == "b":
                b.append(o)
            else: c.append(o)
            if bsec == "c" or bsec == "b" and kind_of(o) != "ds" and False: inC.add(id(best))
            if bsec == "c": inC.add(id(best))
            if " m0," in text_of(o): blocked.add(id(best))
            if kind_of(o) in ("load", "store"): lastvm = g
            best.i += 1; best.done += cost_of(o); cnt[id(best)] = cnt.get(id(best), 0) + 1
        ops = a + b + c + tl
        tt = gap_time(ops)
        if tt > 16: over += tt - 16
        out.append(ops)
    for st in streams: assert st.i == len(st.ops)
    return out, over

def pack_dense(NG, A, B, C, T, streams, novm=(), nosalu=(), vmgap=2):
    jobs = []
    for st in streams:
        r = st.first; rel = []
        for i in range(len(st.ops)):
            r = max(r, st.nb.get(i, 0)); rel.append(r)
        for i, o in enumerate(st.ops):
            d = min([st.last] + [dg for n, dg in st.dl if i < n])
            k = kind_of(o)
            jobs.append([rel[i], d, cost_of(o) + (OPT["dx"] if k in ("store", "load") else 0) - (2 if k == "salu" else 0)])
    for g in range(NG): jobs.append([g, g, max(0, gap_time(A[g] + B[g] + C[g] + T[g]) - 8)])
    level = [None] * NG
    while jobs:
        free = [g for g in range(NG) if level[g] is None]
        pts_r = sorted({j[0] for j in jobs}); pts_d = sorted({j[1] for j in jobs})
        best = None
        for a_ in pts_r:
            ws = sorted((j[1], j[2]) for j in jobs if j[0] >= a_)
            w = 0; i = 0
            for b_ in pts_d:
                if b_ < a_: continue
                while i < len(ws) and ws[i][0] <= b_: w += ws[i][1]; i += 1
                n = sum(1 for g in free if a_ <= g <= b_)
                if n and (best is None or w / n > best[0]): best = (w / n, a_, b_)
        dn, a_, b_ = best
        if dn <= 8: break
        for g in free:
            if a_ <= g <= b_: level[g] = dn
        jobs = [j for j in jobs if not (j[0] >= a_ and j[1] <= b_)]
    extra = [2 * (level[g] - 8) if (level[g] is not None and g % 2) else 0 for g in range(NG)]
    return pack_dense1(NG, A, B, C, T, streams, novm, nosalu, vmgap, extra)
def pack_dense1(NG, A, B, C, T, streams, novm, nosalu, vmgap, extra):
    out = []; over = 0; lastvm = -99
    fixed = [gap_time(A[g] + B[g] + C[g] + T[g]) - (8 if not (B[g] + C[g] + T[g]) else 8) for g in range(NG)]
    for g in range(NG):
        a, b, c, tl = list(A[g]), list(B[g]), list(C[g]), list(T[g])
        carry = (carry if g else 0) + extra[g]
        bud = 16 + (carry if g % 2 else 0)
        blocked = set(); inC = set()
        for st in streams: st.i0 = st.i
        while True:
            best = None; bl = None
            cur = gap_time(a + b + c + tl)
            for st in streams:
                if st.i >= len(st.ops) or g < st.first or g < st.nb.get(st.i, 0): continue
                if st.i in st.gate:
                    o_, j_ = st.gate[st.i]
                    if (o_.i0 if (kind_of(st.ops[st.i]) == "store" and g < NG - 1) else o_.i) <= j_: continue
                    if o_.i0 <= j_: inC.add(id(st))
                force = g >= st.last or any(st.i < n and g >= dg for n, dg in st.dl)
                if id(st) in blocked and not force: continue
                o = st.ops[st.i]; k = kind_of(o)
                if k == "salu" and g in nosalu:
                    assert not force
                    continue
                mem = k in ("load", "store", "ds")
                if k in ("load", "store") and (g in novm or g - lastvm < vmgap) and not force: continue
                sec = "b" if (mem and id(st) not in inC) else ("a" if (k == "salu" and not a and id(st) not in inC and id(st) not in blocked and not any(x is st for x in ())) else "c")
                if sec == "a" and any(id(st) == y for y in inC): sec = "c"
                if mem and sec == "c" and not force: continue
                trial = gap_time((a + [o] if sec == "a" else a) + (b + [o] if sec == "b" else b) + (c + [o] if sec == "c" else c) + tl)
                if not force and trial > bud and not (cur < 16 and trial <= bud + 12 and g % 2): continue
                tgt = st.total * (g - st.first + 1) / (st.last - st.first + 1)
                n_, dd = min([(len(st.ops), st.last)] + [(n, dg) for n, dg in st.dl if st.i < n], key=lambda x: x[1])
                need = sum(cost_of(x) for x in st.ops[st.i:n_]) / max(1, dd - g + 1)
                key = (force, mem, need)
                if best is None or key > bl: best = st; bl = key; bsec = sec
            if best is None: break
            o = best.ops[best.i]
            {"a": a, "b": b, "c": c}[bsec].append(o)
            if bsec == "c" or (bsec == "b"):
                if bsec == "c": inC.add(id(best))
                else: usedb = True
            if bsec in ("a", "b"): best._g = g
            if " m0," in text_of(o): blocked.add(id(best))
            if kind_of(o) in ("load", "store"): lastvm = g
            best.i += 1; best.done += cost_of(o)
            if bsec == "b" and not a: a.append(None)
        a = [x for x in a if x is not None]
        ops = a + b + c + tl
        tt = gap_time(ops)
        carry = max(0, carry - max(0, tt - 16)) if extra[g] or g % 2 == 0 else 0
        if tt > 16: over += tt - 16
        out.append(ops)
    for st in streams: assert st.i == len(st.ops)
    return out, over

POLLSITES = []
def gen_seg(name, groups, nxt, sm=(), bars=(), tasks=(), dma=(), extra=(), endops=(), fixed=(), peel=True, vmgap=None):
    starts = []; n = 0
    for g in groups: starts.append(n); n += len(g.mf)
    NG = n
    A = [[] for _ in range(NG)]; B = [[] for _ in range(NG)]; C = [[] for _ in range(NG)]; T = [[] for _ in range(NG)]
    streams = []; novm = set(range(0, NG, 2)); nosalu = set()
    allg = list(groups) + list(nxt)
    assert len(groups) % 3 == 0
    for i, g in enumerate(groups):
        g0 = starts[i]; ln = len(g.mf)
        if i + 2 < len(allg):
            t = allg[i + 2]
            if not (OPT["ab"] & 4 and name.startswith("k") and i % 2): B[g0].append(rd_op(i + 2, 0, t)); B[g0 + ln // 2].append(rd_op(i + 2, 1, t))
            if t.reb:
                assert g0 > 0
                C[g0 - 1] += t.reb
        if i + 1 < len(allg):
            A[g0 + ln - 1].append(LG(("fr", (2 * i + 2) % NFS), ("fr", (2 * i + 3) % NFS)))
    for ops, f, l in sm: streams.append(Stream(ops, f, l))
    streams += list(extra)
    if endops:
        A[NG-4] += endops[:1]; A[NG-2] += [A[NG-1][0]] + list(endops[1:-1]); A[NG-1] = []; T[NG-1] = list(endops[-1:]); nosalu |= {NG-2, NG-1}
    for grp in dma:
        dl = []
        for part, pos in grp[:-2]: dl += dma_tile(part, pos, peel)
        k = max(i for i, x in enumerate(dl) if isinstance(x, VM)) + 1
        lim = NG - 3 if endops else NG - 1
        if grp[-1] + 1 > lim: k = len(dl)
        streams.append(Stream(dl[:k], grp[-2], grp[-1], maxper=2))
        if dl[k:]: streams.append(Stream(dl[k:], grp[-1] + 1, min(lim, grp[-1] + 12), maxper=2))
    bars = [(g, list(tg)) for g, tg in bars]
    for t in tasks:
        k_ = t[0]
        if k_ == "vst" and t[1] >= NVE: continue
        if k_ == "cv":
            _, cv, h, buf, rs, outb = HT[t[1]]
            ops = cv(h, buf, rs, outb)[t[2]:t[3]]
            if t[2] == 0: ops = [W(t[1])] + ops
            streams.append(Stream(ops, t[4], t[5]))
        elif k_ in ("kst", "vst"):
            grp = k_st(t[1], BX, pre=OPT["pa"]) if k_ == "kst" else v_st(t[1], BZ)
            g = t[2]; assert not B[g] and not A[g], (name, g)
            B[g].append(grp[-1]); novm |= set(range(g - OPT["sb"], g + OPT["sa"] + 1))
            if grp[:-1]: streams.append(Stream(grp[:-1], max(0, g - 5), g - 1))
        elif k_ in ("ld", "ldn"):
            ld, _, h, buf, rs, _o = HT[t[1]]
            adv = {"ka": k_adv(), "va": v_adv()}.get(t[1], []) if k_ == "ld" else []
            ops = ld(h, buf, rs, t[1])
            if len(t) > 4: ops = ops[2:] if t[4] == "raw" else ops[:2]
            streams.append(Stream(adv + ops, t[2], t[3], maxper=1))
        elif k_ == "post":
            bi = t[2] if len(t) > 2 else -1
            bars[bi][1].append(t[1])
            streams.append(Stream(flag_post(), bars[bi][0] + 1, min(NG - 3, bars[bi][0] + 14), maxper=1))
        elif k_ == "pf":
            streams.append(Stream([VM("pf", f"buffer_load_dword v{V_T4}, v{V_DMA}, s[{S_DBG}:{S_DBG+3}], s{S_HOFF} offen")], t[1], t[2]))
        elif k_ == "rld":
            streams.append(Stream([VM("rs", f"buffer_load_dwordx4 v[{V_T4}:{V_T4+3}], v{V_DMA}, s[{S_WS}:{S_WS+3}], s{S_RC} offen sc1")], t[1], t[2]))
        elif k_ == "rst":
            g = t[1]; assert g % 2 == 1 and not B[g] and not A[g] and not A[g - 1], (name, g)
            A[g - 1].append(W("rs")); B[g].append(VM("rs2", f"buffer_store_dwordx4 v[{V_T4}:{V_T4+3}], v{V_DMA}, s[{S_WS}:{S_WS+3}], s{S_RC} offen sc1"))
            novm |= set(range(g - OPT["sb"], g + OPT["sa"] + 1))
            streams.append(Stream([f"s_add_u32 s{S_RC}, s{S_RC}, s{S_RD}", f"s_sub_u32 s{S_RD}, 1024, s{S_RD}"], g + 1, g + 8, maxper=1))
        elif k_ == "pollld": streams.append(Stream(poll_load(), t[1], t[2], maxper=1))
        elif k_ == "pollchk":
            ps = len(POLLSITES); POLLSITES.append(ps)
            g = t[1]; assert g % 4 == 1
            pt = poll_test()
            A[g] += [W("poll")]; T[g] += pt[:2]; novm |= {g, g + 4}
            A[g + 3] += [pt[3]]; A[g + 4] += [f"s_cbranch_scc1 L_pollslow{ps}", f"L_pollok{ps}:"]; nosalu |= {g + 3, g + 4}
            A[g + 5] += [f"s_add_u32 s{S_NEED}, s{S_NEED}, 1"]
        elif k_ == "spollld": A[t[1]] += smem_flags()
        elif k_ == "spollchk":
            ps = len(POLLSITES); POLLSITES.append(ps)
            A[t[1]] += ["s_waitcnt lgkmcnt(0)"]
            streams.append(Stream(smem_reduce(), t[1] + 1, t[2] - 1, maxper=3))
            A[t[2]] += [f"s_cmp_ge_u32 s{S_PT}, 16", f"s_cbranch_scc1 L_pollslow{ps}", f"L_pollok{ps}:", f"s_add_u32 s{S_NEED}, s{S_NEED}, 1"]
        elif k_ == "step": streams.append(Stream(rd_step(t[1]), t[2], t[3], maxper=1))
        elif k_ == "q": streams.append(Stream(q_dma(t[1]), t[2], t[3], maxper=2))
        else: raise Exception(k_)
    for g, tags in bars:
        i = [j for j in range(len(groups)) if starts[j] + len(groups[j].mf) - 1 == g]
        assert i, (name, g)
        if len(groups[i[0]].mf) == 8:
            A[g - 2] += A[g]; A[g] = []
            if tags: A[g - 1] += [W(*tags)]
        elif tags: A[g - 2] += [W(*tags)]
        A[g] += ["s_barrier"]; novm |= {g}
    for g, sec, ops in fixed: {"A": A, "B": B, "C": C, "T": T}[sec][g] += ops
    if endops:
        for st_ in streams: st_.last = min(st_.last, NG - 2)
    m0w = sorted((st.first, st.last) for st in streams if any(" m0," in text_of(o) for o in st.ops))
    assert all(m0w[i][1] < m0w[i + 1][0] for i in range(len(m0w) - 1)), (name, m0w)
    if name in str(OPT["dense"]).split(","): fill, over = pack_dense(NG, A, B, C, T, streams, novm, nosalu, vmgap or OPT["dvg"])
    else:
        fill, over = pack(NG, A, B, C, T, streams, novm, nosalu, vmgap or OPT["vmgap"])
        if OPT["twop"] and name[0] in "kz":
            vg = {g for g in range(NG) if any(kind_of(o) in ("load", "store") for o in fill[g])}
            for st_ in streams: st_.i = 0; st_.done = 0
            fill, over = pack(NG, A, B, C, T, streams, set(novm) | (set(range(NG)) - vg), nosalu, vmgap or OPT["vmgap"], {g - 1 for g in vg})
    if over: print(f"seg {name}: over budget by {over} cycles", file=sys.stderr)
    out = istamp(name)
    g = 0
    for i, gr in enumerate(groups):
        for j, d, b, c in gr.mf:
            if (OPT["pvs"] & 1 and d[0] in "a ") or (OPT["pvs"] & 2 and d.startswith("v")): out.append(f"{MF} {d}, {b}, {FR(2*i+j)}, {c}")
            else: out.append(f"{MF} {d}, {FR(2*i+j)}, {b}, {c}")
            out += fill[g]; g += 1
    return with_nop(out)

GBAR = 79
def seg_groups(it):
    return qk_full(it + 1) if it % 2 else pv_seq(it - 2)
def gen_iter(it, tasks=(), dma=(), name=None, endops=(), peel=False, nxt=None, extra=(), bars=None, groups=None, sm=None, step=True):
    q = it % 2
    smB = softmax_part(it, 1); smA = softmax_part(it + 1, 0)
    if sm is None: sm = ([(smB + [("dl", 57), ("nb", 47)] + smA, 0, 95)] if OPT["flex"] else [(smB, 0, 50), (smA, 52, 95)]) if q else [(smB + smA, 0, 95)]
    need = [("dv", (it - 1) % 8), ("dv", it % 8)] if q else [("dk", (it + 2) % 8), ("dk", (it + 3) % 8)]
    tasks = list(tasks) + ([("step", "p" if q else "q", 30, GBAR - 3)] if step else [])
    return gen_seg(name or f"i{it}", groups or seg_groups(it), nxt if nxt is not None else seg_groups(it + 1)[:2], sm,
                   bars if bars is not None else [(GBAR, need)], tasks, dma, extra, endops, peel=peel)

K_ = lambda *j: tuple(("k", x) for x in j)
V_ = lambda *j: tuple(("v", x) for x in j)
def steady(k):
    ckv, ckk = OPT["ckv"], OPT["ckk"]
    plv, plk = OPT["plv"], OPT["plk"]
    if OPT["bal"]:
        c = [int(x) for x in str(OPT["cut"]).split(",")]
        a1, a2, b1, b2, v1, v2, w1 = c
        return {
            5: ([("cv", "ka", 0, a1, 0, 95), ("pollchk", 1), ("vst", 0, 9), ("vst", 1, 17), ("vst", 2, 25), ("vst", 3, 33), ("post", "vst")], [K_(0, 1) + (41, 74)]) if ckk == 1 else
               ([("cv", "ka", 0, a1, 0, 95), ("pollchk", ckk), ("vst", 0, 1), ("vst", 1, 9), ("vst", 2, 17), ("vst", 3, 25), ("post", "vst")], [K_(0, 1) + (ckk + 7, 92)]),
            6: ([("cv", "ka", a1, a2, 0, 95), ("ld", "kb", 0, 44)] + [("rld", 70, 92)] * OPT["rs"], [K_(2, 3) + (0, 90)]),
            7: ([("cv", "ka", a2, 99, 0, 60), ("cv", "kb", 0, b1, 61, 95), ("ld", "va", 11, 70), ("pollld", plv, plv + 8)], [K_(4, 5) + (11, 92)]),
            0: ([("cv", "kb", b1, b2, 0, 95), ("pollchk", ckv)] + [("rst", 81)] * OPT["rs"], [V_(0, 1) + (ckv + 7, 74)]),
            1: ([("cv", "kb", b2, 99, 0, 30), ("cv", "va", 0, v1, 31, 95), ("ld", "vb", 32, 80)], [V_(2, 3) + (0, GBAR - 5)]),
            2: ([("cv", "va", v1, v2, 0, 95), ("kst", 0, 1), ("kst", 1, 9), ("kst", 2, 17), ("kst", 3, 25), ("post", "kst")], [K_(6, 7) + (33, 74)]),
            3: ([("cv", "va", v2, 99, 0, 50), ("cv", "vb", 0, w1, 51, 95), ("ld", "ka", 0, 44)], [V_(4, 5) + (0, 90)]),
            4: ([("cv", "vb", w1, 99, 0, 95), ("pollld", plk, plk + 16)] + ([("pf", 80, 92)] if OPT["pf2"] else []), [V_(6, 7) + (0, GBAR - 5)]),
        }[k]
    return {
        1: ([("cv", "va", 0, 22, 0, 95), ("ld", "vb", 0, 44)], [V_(2, 3) + (0, GBAR - 5)]),
        2: ([("cv", "va", 22, 99, 0, 95), ("kst", 0, 1), ("kst", 1, 9), ("kst", 2, 17), ("kst", 3, 25), ("post", "kst")], [K_(6, 7) + (33, 74)]),
        3: ([("cv", "vb", 0, 22, 0, 95), ("ld", "ka", 0, 44)], [V_(4, 5) + (0, GBAR - 5)]),
        4: ([("cv", "vb", 22, 99, 0, 95), ("pollld", plk, plk + 16)] + ([("pf", 80, 92)] if OPT["pf2"] else []), [V_(6, 7) + (0, GBAR - 5)]),
        5: ([("cv", "ka", 0, 16, 0, 95), ("pollchk", 1), ("vst", 0, 9), ("vst", 1, 17), ("vst", 2, 25), ("vst", 3, 33), ("post", "vst")], [K_(0, 1) + (41, 74)]),
        6: ([("cv", "ka", 16, 99, 0, 95), ("ld", "kb", 0, 30)], [K_(2, 3) + (31, 74)]),
        7: ([("cv", "kb", 0, 24, 40, 95), ("ld", "va", 11, 40), ("pollld", plv, plv + 8)], [K_(4, 5) + (41, 90)]),
        0: ([("cv", "kb", 24, 99, 0, 95), ("pollchk", ckv)], [V_(0, 1) + (ckv + 7, ckv + 44)]),
    }[k]

GA = V_RS[0]; TA = V_RS[0] + 1; BA = V_RS[0] + 2
RL = [V_CT, V_CT + 4, NEGM(0), NEGM(1)]
S_EO = 24
def epi_addr():
    return [f"v_bfe_u32 v{TA}, v{V_DMA}, 8, 2", f"v_mul_u32_u24 v{GA}, 1536, v{TA}", f"v_lshlrev_b32 v{BA}, 4, v{TA}",
            f"v_bfe_u32 v{TA}, v{V_DMA}, 4, 4", f"v_mul_u32_u24 v{TA}, {12 if V64 else 8}, v{TA}", f"v_add_u32 v{GA}, v{GA}, v{TA}", f"v_mov_b32 v{TA}, 1.0"] + [f"v_mov_b32 v{ONES+i}, 0x3f803f80" for i in range(4 * OPT["lmf"])] + [
            f"s_lshl_b32 s{S_EO}, s{S_QB}, 2", f"s_add_u32 s{S_EO}, s{S_EO}, s{S_WAVE}", f"s_mul_i32 s{S_EO}, s{S_EO}, {STAGE}",
            f"s_add_u32 s{S_QL}, s{S_EO}, 6144", f"s_add_u32 s{S_QS}, s{S_EO}, 12288", f"s_add_u32 s{S_TAG}, s{S_EO}, 18432"]
S_EQ = [S_EO, S_QL, S_QS, S_TAG]
def epi_l(qs, gap=("s_nop 7", "s_nop 1"), acc=False):
    fl = [f"v_mfma_f32_16x16x4_f32 v[{RL[q]}:{RL[q]+3}], v{V_L[q]}, v{TA}, " + (f"v[{RL[q]}:{RL[q]+3}]" if acc else "0") for q in qs] + list(gap)
    return fl + [f"v_rcp_f32 v{RL[q]+r}, v{RL[q]+r}" for q in qs for r in range(4)]
class Epi:
    def __init__(self, temps): self.temps = temps; self.n = 0; self.pend = []
    def flush(self, k=99):
        p = self.pend[:k]; self.pend = self.pend[k:]
        return p
    def chunk(self, qb, n, pk=False, inv=False):
        p = []
        if V64:
            for r in range(4):
                o = self.temps[self.n % len(self.temps)]; self.n += 1; rl = RL[qb] + r
                p += [f"v_accvgpr_read_b32 v{o+e}, a{O(qb,6*n+e)+r}" for e in range(6)]
                if pk: p += [f"v_pk_mul_f32 v[{o+2*i}:{o+2*i+1}], v[{o+2*i}:{o+2*i+1}], v[{rl&~1}:{(rl&~1)+1}] " + ("op_sel:[0,1] op_sel_hi:[1,1]" if rl & 1 else "op_sel_hi:[1,0]") for i in range(3)]
                else: p += [f"v_mul_f32 v{o+e}, v{o+e}, v{rl}" for e in range(6)]
                p += [f"v_cvt_pk_bf16_f32 v{o+i}, v{o+2*i}, v{o+2*i+1}" for i in range(3)] + self.flush(1)
                self.pend.append(VM("out", f"buffer_store_dwordx3 v[{o}:{o+2}], v{GA}, s[{S_OUT}:{S_OUT+3}], s{S_EQ[qb]} offen offset:{n*192 + r*384}{OF}"))
            return p
        ob = self.temps[self.n % len(self.temps)]; self.n += 1
        for r in range(4):
            o = ob + 4 * r
            if inv:
                p += [f"v_mul_f32 v{o+e}, v{OV(qb,3*e+n)+r}, v{RL[qb]+r}" for e in range(4)]
                p += [f"v_cvt_pk_bf16_f32 v{o+i}, v{o+2*i}, v{o+2*i+1}" for i in range(2)] + self.flush(1)
                self.pend.append(VM("out", f"buffer_store_dwordx2 v[{o}:{o+1}], v{GA}, s[{S_OUT}:{S_OUT+3}], s{S_EQ[qb]} offen offset:{n*128 + r*384}{OF}"))
                continue
            p += [f"v_accvgpr_read_b32 v{o+e}, a{O(qb,3*e+n)+r}" for e in range(4)]
            rl = RL[qb] + r
            if pk: p += [f"v_pk_mul_f32 v[{o+2*i}:{o+2*i+1}], v[{o+2*i}:{o+2*i+1}], v[{rl&~1}:{(rl&~1)+1}] " + ("op_sel:[0,1] op_sel_hi:[1,1]" if rl & 1 else "op_sel_hi:[1,0]") for i in range(2)]
            else: p += [f"v_mul_f32 v{o+e}, v{o+e}, v{rl}" for e in range(4)]
            p += [f"v_cvt_pk_bf16_f32 v{o+i}, v{o+2*i}, v{o+2*i+1}" for i in range(2)]
            p += self.flush(1)
            self.pend.append(VM("out", f"buffer_store_dwordx2 v[{o}:{o+1}], v{GA}, s[{S_OUT}:{S_OUT+3}], s{S_EQ[qb]} offen offset:{n*128 + r*384}{OF}"))
        return p

def gen_tail():
    sp = softmax_part
    g57 = qk_half(58) + rebase(qk_half(59), V_RDK, A0 - A2)
    g58 = pv_seq(56)
    g59 = rebase(qk_half(60), V_RDK, A1 - A0) + rebase(qk_half(61), V_RDK, A2 - A1)
    g60 = rebase(pv_seq(58), [V_RD], B2 - B1) + rebase(pv_seq(59), [V_RD], B0 - B2)
    g61 = rebase(pv_seq(60), [V_RD], B1 - B0) + rebase(qk_half(62), V_RDK, A0 - A2)
    g62 = rebase(qk_half(63), V_RDK, A1 - A0) + ([] if OPT["f3"] else rebase(pv_seq(61), [V_RD], B2 - B1))
    g63 = []
    for dbs in ([chunk_dbs(0), [6, 7, 8], [9, 10, 11]] if V64 else [chunk_dbs(n) for n in range(3)]):
        if OPT["f3"]: g63 += [pv_grp(61, db, va=V_RD3) for db in dbs]
        g63 += [pv_grp(62, db) for db in dbs] + [pv_grp(63, db, va=V_RD2) for db in dbs]
    if OPT["f3"]: g63[0].reb += [f"v_add_u32 v{V_RD3}, {B2 - B1}, v{V_RD}", f"v_mov_b32 v{V_RD2}, v{V_RD}", f"v_subrev_u32 v{V_RD}, {B1 - B0}, v{V_RD}"]
    else: g63[0].reb += [f"v_subrev_u32 v{V_RD2}, {B2 - B1}, v{V_RD}", f"v_subrev_u32 v{V_RD}, {B2 - B0}, v{V_RD}"]
    first57 = g57[:2]
    p = []
    p += gen_seg("S57", g57, g58[:2], [(sp(57, 1) + [("dl", 50), ("nb", 28)] + sp(58, 0), 0, 95)], [(7, [("dk", 5)]), (GBAR, [("dv", 0), ("dv", 1)])],
                 [("step", "p", 30, GBAR - 3)], [(K_(62, 63) + (8, 60)) if OPT["tv"] else (K_(62, 63) + V_(58, 59) + (8, 90))], peel=False)
    p += gen_seg("S58", g58, g59[:2], [(sp(58, 1) + sp(59, 0), 0, 95), (epi_addr(), 0, 95)], [(GBAR, [("dk", 7)] if OPT["tv"] else [("dk", 7), ("dv", 3)])], [],
                 [(V_(58, 59, 60, 61) + (0, 74)) if OPT["tv"] else (V_(60, 61) + (0, 60))], peel=False)
    p += gen_seg("S59", g59, g60[:2], [(sp(59, 1) + [("dl", 50), ("nb", 28)] + sp(60, 0), 0, 95)], [(15, [("dv", 5)])], [], [V_(62, 63) + (16, 60)], peel=False)
    p += gen_seg("S60", g60, g61[:2], [(sp(60, 1) + sp(61, 0), 0, 95)], [(GBAR, [("dv", 7)])])
    ep = Epi([BX + 6 * i for i in range(5)] if V64 else [BX] if OPT["omv"] else [BX, BY])
    e01 = [x for qb in (0, 1) for n in range(NCH) for x in ep.chunk(qb, n, OPT["pk"])] + ep.flush()
    chk = [f"v_max3_f32 v{V_T+2}, v{V_L[0]}, v{V_L[1]}, v{V_L[2]}", f"v_max_f32 v{V_T+2}, v{V_T+2}, v{V_L[3]}",
           f"s_mov_b32 s{S_TMP}, 0x{f32bits(2.0**OPT['thr']):08x}", f"v_cmp_lt_f32 s[{S_PT}:{S_PT+1}], s{S_TMP}, v{V_T+2}"]
    c = [ep.chunk(2, j, OPT["pk"]) + ep.chunk(3, j, OPT["pk"]) + ep.flush() for j in range(NCH - 1)] + [[]]
    sm = sp(61, 1) + epi_l((0, 1), [])[2:] + [("dl", 50), ("nb", 76)] + sp(62, 0) + [("nb", 98)] + sp(62, 1) + [("nb", 124)] + sp(63, 0) + [("nb", 148)] + sp(63, 1) + [("dl", 205)] + chk + [("nb", 214)] + epi_l((2, 3), [])[2:]
    ee = e01 + [("nb", 228)] + c[0] + [("nb", 260)] + c[1]
    lastsm = 220
    if OPT["f3"]:
        sm = sp(61, 1) + epi_l((0, 1), [])[2:] + [("dl", 50), ("nb", 76)] + sp(62, 0) + [("nb", 98)] + sp(62, 1) + [("dl", 157), ("nb", 124)] + sp(63, 0) + [("nb", 148)] + sp(63, 1) + [("dl", 173)] + chk + [("nb", 182)] + epi_l((2, 3), [])[2:]
        ee = e01 + [("dl", OPT["ed"]), ("nb", 196)] + c[0] + [("dl", OPT["ed1"]), ("nb", 244)] + c[1]
        lastsm = 190
        if V64:
            lm = OPT["lmf"]
            sm = sp(61, 1, lm) + epi_l((0, 1), [])[2:] + [("dl", 50), ("nb", 76)] + sp(62, 0, lm) + [("nb", 98)] + sp(62, 1, lm) + [("dl", 165), ("nb", 124)] + sp(63, 0, lm) + [("nb", 148)] + sp(63, 1, lm) + [("dl", 187 if lm else 189)]
            if lm:
                chk = [f"v_max3_f32 v{V_T+2}, v{V_L[0]}, v{V_L[1]}, v{RL[2]}"] + [f"v_max3_f32 v{V_T+2}, v{V_T+2}, v{a_}, v{a_+1}" for a_ in (RL[2] + 1, RL[2] + 3, RL[3] + 1)] + [f"v_max_f32 v{V_T+2}, v{V_T+2}, v{RL[3]+3}"] + chk[2:]
                sm += [("nb", 198)] + chk + epi_l((2, 3), [])[2:]
            else: sm += chk + [("nb", 198)] + epi_l((2, 3), [])[2:]
            ee = e01 + [("dl", OPT["ed"] + 20), ("nb", 220)] + c[0]
            lastsm = 206
    if OPT["sst"]:
        prod = []; ev = []
        for x in ee:
            if isinstance(x, VM): prod.append(x)
            else: ev.append(x)
        es = Stream(ev, 52, 286); ss = Stream(prod, 52, 287)
        cv = [i for i, x in enumerate(es.ops) if text_of(x).startswith("v_cvt_pk")][(2 if V64 else 1)::(3 if V64 else 2)]
        rd = [i for i, x in enumerate(es.ops) if text_of(x).startswith("v_accvgpr_read")][0::(6 if V64 else 4)]
        assert len(cv) == len(prod) == len(rd)
        for k in range(len(prod)):
            ss.gate[k] = (es, cv[k]); ss.nb[k] = max([0] + [gp for i, gp in es.nb.items() if i <= cv[k]])
            kk = k + (1 if V64 else 4) * len(ep.temps)
            if kk < len(prod): es.gate[rd[kk]] = (ss, k)
        xs = [es, ss]
        LT = [96, 102, 108, 114, 120, 64, 70, 144]
        if V64: xs.append(Stream([x for q in (2, 3) for r in range(4) for x in [f"v_accvgpr_read_b32 v{LT[4*(q-2)+r]+e}, a{O(q,6+e)+r}" for e in range(3)] +
                                  [f"v_mul_f32 v{LT[4*(q-2)+r]+e}, v{LT[4*(q-2)+r]+e}, v{RL[q]+r}" for e in range(3)]], 256, 287))
        if OPT["omv"]: xs.append(Stream([f"v_accvgpr_read_b32 v{OV(q, db)+r}, a{O(q, db)+r}" for q in (2, 3) for db in (2, 5, 8, 11) for r in range(4)], 0, 140))
    else: xs = [Stream(ee, 52, 287)]
    p += gen_seg("S61", g61 + g62 + g63, [], [(sm, 0, lastsm)], extra=xs,
                 fixed=[(1, "T", epi_l((0, 1))[:1]), (3, "T", epi_l((0, 1))[1:2]), (lastsm - 15, "T", epi_l((2, 3), acc=V64 and OPT["lmf"])[:1]), (lastsm - 13, "T", epi_l((2, 3), acc=V64 and OPT["lmf"])[1:2]), (lastsm + 5, "A", [f"s_cmp_lg_u64 s[{S_PT}:{S_PT+1}], 0", "s_cbranch_scc1 L_slow"]), (95, "T", istamp("S62")), (191, "T", istamp("S63"))])
    p += istamp("fin") + ["s_nop 7"]
    if OPT["omv"]: ep.temps = [UNIT[0], UNIT[1]]
    if V64:
        for q in (2, 3):
            for r in range(4):
                o = LT[4 * (q - 2) + r]
                p += [f"v_accvgpr_read_b32 v{o+e}, a{O(q,6+e)+r}" for e in range(3, 6)] + [f"v_cvt_pk_bf16_f32 v{o}, v{o}, v{o+1}"]
                p += [f"v_mul_f32 v{o+e}, v{o+e}, v{RL[q]+r}" for e in range(3, 6)] + [f"v_cvt_pk_bf16_f32 v{o+i}, v{o+2*i}, v{o+2*i+1}" for i in (1, 2)]
                p += [VM("out", f"buffer_store_dwordx3 v[{o}:{o+2}], v{GA}, s[{S_OUT}:{S_OUT+3}], s{S_EQ[q]} offen offset:{192 + r*384}{OF}")]
        return first57, p
    p += ep.chunk(2, NCH - 1, True, OPT["omv"]) + ep.flush() + ep.chunk(3, NCH - 1, True, OPT["omv"]) + ep.flush()
    return first57, p
def slow_epi():
    ep = Epi([64 + 6 * i for i in range(8)] if V64 else [64 + 16 * i for i in range(4)])
    seq = ["s_nop 1"] + epi_l((0, 1)) + epi_l((2, 3)) + ["s_nop 0"]
    for qb in range(4):
        for n in range(NCH): seq += ep.chunk(qb, n, True)
    return seq + ep.flush()

def kfrag(g):
    return 2 * (g >> 2) + (g & 1), (g >> 1) & 1
def gen_slow():
    KF = 64; VF = 112; SS = 160; PP = 224; M = [240, 241, 242, 243]; KA = [244, 245]; LA = 246; t = V_T
    p = ["L_slow:", "s_waitcnt vmcnt(0) lgkmcnt(0)", "s_nop 15"]
    for i in range(192): p.append(f"v_accvgpr_write_b32 a{i}, 0")
    for q in range(4): p += [f"v_mov_b32 v{V_L[q]}, 0", f"v_mov_b32 v{M[q]}, 0xff7fffff"]
    p += [f"v_subrev_u32 v{KA[0]}, {A1}, v{V_RDK[0]}", f"v_subrev_u32 v{KA[1]}, {A1}, v{V_RDK[1]}", f"v_subrev_u32 v{LA}, {B0}, v{V_RD}",
          f"s_mov_b32 s{S_PT}, 0", "L_slowloop:"]
    for i in range(1, 5): p.append(f"s_add_u32 s{S_PT+i}, s{S_PT}, {[0, 6144, 12288, 16384, 20480][i]}")
    for f in range(12):
        s, tb = kfrag(f)
        p.append(f"buffer_load_dwordx4 v[{KF+4*f}:{KF+4*f+3}], v{KA[s&1]}, s[{S_WS}:{S_WS+3}], s{S_PT+tb} offen offset:{(s>>1)*128} sc1")
    for db in range(12):
        p.append(f"buffer_load_dwordx4 v[{VF+4*db}:{VF+4*db+3}], v{LA}, s[{S_WS}:{S_WS+3}], s{S_PT+2+db//4} offen offset:{(db%4)*1024} sc1")
    p.append("s_waitcnt vmcnt(12)")
    for f in range(12):
        s, tb = kfrag(f)
        for qb in range(4):
            d = vr(SS + 8 * qb + 4 * tb, 4)
            p.append(f"{MF} {d}, v[{KF+4*f}:{KF+4*f+3}], {Qf(qb,s)}, {'0' if s == 0 else d}")
    p.append("s_nop 9")
    for qb in range(4):
        sb = SS + 8 * qb
        p += [f"v_max3_f32 v{t}, v{sb}, v{sb+1}, v{sb+2}", f"v_max3_f32 v{t}, v{t}, v{sb+3}, v{sb+4}",
              f"v_max3_f32 v{t}, v{t}, v{sb+5}, v{sb+6}", f"v_max3_f32 v{t}, v{t}, v{sb+7}, v{M[qb]}"]
        p += xlane("v_max_f32", t)
        p += [f"v_sub_f32 v{t+1}, v{M[qb]}, v{t}", f"v_exp_f32 v{t+1}, v{t+1}", f"v_mov_b32 v{M[qb]}, v{t}"]
        for i in range(8): p.append(f"v_sub_f32 v{sb+i}, v{sb+i}, v{t}")
        for i in range(8): p.append(f"v_exp_f32 v{sb+i}, v{sb+i}")
        p.append(f"v_mul_f32 v{V_L[qb]}, v{V_L[qb]}, v{t+1}")
        for i in range(8): p.append(f"v_add_f32 v{V_L[qb]}, v{V_L[qb]}, v{sb+i}")
        for i in range(4): p.append(f"v_cvt_pk_bf16_f32 v{PP+4*qb+i}, v{sb+2*i}, v{sb+2*i+1}")
        p += [f"ds_bpermute_b32 v{248+r}, v{BA}, v{t+1} offset:{4*r}" for r in range(4)] + ["s_waitcnt lgkmcnt(0)"]
        for i in range(48):
            a = O(qb, 0) + i; tt = t + 2 + (i % 2)
            p += [f"v_accvgpr_read_b32 v{tt}, a{a}", f"v_mul_f32 v{tt}, v{tt}, v{248+i%4}", f"v_accvgpr_write_b32 a{a}, v{tt}"]
    p += ["s_waitcnt vmcnt(0)", "s_nop 1"]
    for db in range(12):
        for qb in range(4):
            d = ar(O(qb, db), 4)
            p.append(f"{MF} {d}, v[{PP+4*qb}:{PP+4*qb+3}], v[{VF+4*db}:{VF+4*db+3}], {d}")
    p += [f"s_add_u32 s{S_PT}, s{S_PT}, {STAGE}", f"s_cmp_lt_u32 s{S_PT}, {HEADBYTES}", "s_nop 7", "s_cbranch_scc1 L_slowloop"]
    e = slow_epi(); resolve(e)
    return p + fin(e) + ["s_branch L_fin"]

def xlane(op, t, u=None):
    u = t + 1 if u is None else u
    l = []
    for sw in ("v_permlane16_swap_b32", "v_permlane32_swap_b32"):
        l += [f"v_mov_b32 v{u}, v{t}", "s_nop 1", f"{sw} v{t}, v{u}", "s_nop 1", f"{op} v{t}, v{t}, v{u}"]
    return l
def rowmax2(t, qs, tq):
    l = []
    ab = [(Sq(t, j, 0), Sq(t, j, 1)) for j in range(2)]
    l += [f"v_max3_f32 v{tq[j]}, v{a}, v{a+1}, v{a+2}" for j, (a, b) in enumerate(ab)]
    l += [f"v_max3_f32 v{tq[j]}, v{tq[j]}, v{a+3}, v{b}" for j, (a, b) in enumerate(ab)]
    l += [f"v_max3_f32 v{tq[j]}, v{tq[j]}, v{b+1}, v{b+2}" for j, (a, b) in enumerate(ab)]
    l += [f"v_max_f32 v{tq[j]}, v{tq[j]}, v{b+3}" for j, (a, b) in enumerate(ab)]
    for sw in ("v_permlane16_swap_b32", "v_permlane32_swap_b32"):
        l += [f"v_mov_b32 v{tq[j]+1}, v{tq[j]}" for j in range(2)] + ["s_nop 0"]
        l += [f"{sw} v{tq[j]}, v{tq[j]+1}" for j in range(2)] + ["s_nop 0"]
        l += [f"v_max_f32 v{tq[j]}, v{tq[j]}, v{tq[j]+1}" for j in range(2)]
    l += [f"v_sub_f32 v{NEGM(qs[j])+i}, 0, v{tq[j]}" for j in range(2) for i in range(4)]
    return l
def sm_one(t, sl):
    a, b = Sq(t, sl, 0), Sq(t, sl, 1); tq = V_CT; qb = slot_q(t, sl); rs = [r + i for r in (a, b) for i in range(4)]
    l = [f"v_max3_f32 v{tq}, v{a}, v{a+1}, v{a+2}", f"v_max3_f32 v{tq+2}, v{a+3}, v{b}, v{b+1}",
         f"v_max3_f32 v{tq}, v{tq}, v{b+2}, v{b+3}", f"v_max_f32 v{tq}, v{tq}, v{tq+2}"] + xlane("v_max_f32", tq)
    l += [f"v_sub_f32 v{r}, v{r}, v{tq}" for r in rs] + [f"v_exp_f32 v{r}, v{r}" for r in rs] + [f"v_sub_f32 v{NEGM(qb)+i}, 0, v{tq}" for i in range(4)]
    l += [f"v_add_f32 v{V_L[qb]}, v{V_L[qb]}, v{r}" for r in rs] + [f"v_cvt_pk_bf16_f32 v{a+i}, v{rs[2*i]}, v{rs[2*i+1]}" for i in range(4)]
    return l
def addneg(t, sl):
    n = NEGM(slot_q(t, sl))
    return [f"v_add_f32 v{Sq(t,sl,tb)+i}, v{Sq(t,sl,tb)+i}, v{n}" for tb in range(2) for i in range(4)]

def resolve(seq):
    vm = []; ds = []
    for x in seq:
        if isinstance(x, VM): vm.append(x.tag)
        elif isinstance(x, DS): ds.append(x.tag)
        elif isinstance(x, (W, LG)):
            q = vm if isinstance(x, W) else ds
            best = None
            for tag in x.tags:
                n = 0; found = False
                for t in reversed(q):
                    if t == tag: found = True; break
                    n += 1
                if found: best = n if best is None else min(best, n)
            if best is not None:
                x.n = best if getattr(x, "n", None) is None else min(x.n, best)
        else:
            assert not x.startswith(("ds_", "buffer_")) or "UNTRACKED" in x, x
def vm_size(x):
    t = x.text
    if t.startswith("buffer_store"): return 0
    if x.tag == "pre": return 3.0
    if " lds" in t: return 1.0
    if "dwordx4" in t or "dwordx3" in t: return 0.75
    if "dwordx2" in t and "offen" in t: return 0.375
    return 0.125
def pace(seq, cap):
    out = []; q = []; on = False
    for x in seq:
        if isinstance(x, W): q = q[len(q) - min(len(q), x.n):]; on = True
        elif isinstance(x, VM):
            sz = vm_size(x)
            if on and not x.text.startswith("buffer_store") and sum(q) + sz > cap:
                while q and sum(q) + sz > cap: q.pop(0)
                w = W(); w.n = len(q)
                if out and out[-1] == "s_nop 0": out.pop()
                out.append(w)
            q.append(sz)
        out.append(x)
    return out
def fin(seq):
    out = []
    for x in seq:
        if isinstance(x, (W, LG)):
            if OPT["ab"] and getattr(x, "n", None) is None: x.n = 63
            assert getattr(x, "n", None) is not None, x.tags
            out.append(f"s_waitcnt vmcnt({min(x.n, 63)})" if isinstance(x, W) else f"s_waitcnt lgkmcnt({min(x.n, 15)})")
        elif isinstance(x, (VM, DS)): out.append(x.text)
        else: out.append(x.replace(" ;UNTRACKED", ""))
    return out
def groups_of(l):
    out = [[]]
    for x in l:
        out[-1].append(x)
        if isinstance(x, VM): out.append([])
    tail = out.pop()
    if tail: out[-1] += tail
    return out
def sprinkle(code, l):
    if not l: return list(code)
    gs = groups_of(l); out = []; n = len(code); m = len(gs); j = 0
    for i, x in enumerate(code):
        while j < m and i * m >= j * n: out += with_nop(gs[j]); j += 1
        out.append(x)
    for g in gs[j:]: out += with_nop(g)
    return out
def srd(p, s, lo, hi, off_s, size):
    p += [f"s_add_u32 s{s}, s{lo}, s{off_s}", f"s_addc_u32 s{s+1}, s{hi}, 0", f"s_mov_b32 s{s+2}, {size}", f"s_mov_b32 s{s+3}, 0x20000"]

def gen_main():
    p = []
    p += [f"{NAME}_kernel:", "s_cmp_ge_u32 s2, 256", "s_cbranch_scc1 L_done",
          "s_load_dwordx16 s[40:55], s[0:1], 0", "s_load_dwordx4 s[16:19], s[0:1], 64"]
    if OPT["stamp"]: p += ["s_memtime s[98:99]" if OPT["stamp"] == 6 else "s_memrealtime s[98:99]"]
    p += [f"s_and_b32 s{S_HEAD}, s2, 7", f"s_lshr_b32 s{S_QB}, s2, 3", f"s_lshr_b32 s24, s{S_QB}, 3", f"s_lshl_b32 s{S_HEAD}, s{S_HEAD}, 2",
          f"s_add_u32 s{S_HEAD}, s{S_HEAD}, s24", f"s_and_b32 s{S_QB}, s{S_QB}, 7"]
    p += ["s_getpc_b64 s[60:61]", "L_pc:", f"s_sub_u32 s60, s60, L_pc-{NAME}_kernel", "s_subb_u32 s61, s61, 0",
          f"s_mov_b32 s62, L_slow-{NAME}_kernel", "s_mov_b32 s63, 0x20000",
          "s_lshr_b32 s22, s2, 3", "s_lshl_b32 s22, s22, 12",
          "v_lshlrev_b32 v30, 4, v0",
          VM("pf", "buffer_load_dwordx4 v[128:131], v30, s[60:63], s22 offen" + (" nt" if OPT["pfnt"] else ""))]
    p += ["v_lshrrev_b32 v24, 6, v0",
          "v_and_b32 v25, 63, v0",
          f"v_readfirstlane_b32 s{S_WAVE}, v24",
          f"v_lshlrev_b32 v{V_RD}, 4, v25",
          "v_mul_u32_u24 v26, 43, v25", "v_lshrrev_b32 v26, 10, v26",
          "v_mul_u32_u24 v27, 24, v26",
          "v_sub_u32 v27, v25, v27",
          "v_lshrrev_b32 v28, 1, v24",
          "v_and_b32 v29, 1, v24",
          "v_lshlrev_b32 v30, 4, v29",
          "v_lshl_add_u32 v30, v28, 2, v30",
          "v_add_u32 v30, v30, v26",
          "v_mul_u32_u24 v30, 768, v30",
          "v_lshrrev_b32 v48, 1, v26", "v_lshlrev_b32 v48, 30, v48",
          "v_lshl_add_u32 v30, v27, 4, v30", f"v_or_b32 v{V_KLD}, v30, v48",
          f"v_lshl_or_b32 v{V_KSC}, v27, 3, v48",
          "v_mul_u32_u24 v30, 6144, v24",
          ] + (["v_mul_u32_u24 v31, 12, v25", f"v_add_u32 v{V_VLD}, v30, v31"] if V64 else [f"v_add3_u32 v{V_VLD}, v30, v{V_RD}, v48"])
    for sd, size in ((S_QK, HEADBYTES), (S_QV, HEADBYTES), (S_KS, 12288), (S_KZ, 12288), (S_VS, 4096), (S_VZ, 4096), (S_FLG, 64)):
        p += [f"s_mov_b32 s{sd+2}, {size}", f"s_mov_b32 s{sd+3}, 0x20000"]
    p += [f"s_mul_i32 s{S_PK0}, s{S_QB}, {STAGE}", f"s_add_u32 s{S_PK1}, s{S_PK0}, 6144", f"s_mov_b32 s{S_PV0}, s{S_PK0}",
          f"s_lshr_b32 s{S_PKS}, s{S_QB}, 1", f"s_mul_i32 s{S_PKS}, s{S_PKS}, 384", f"s_lshl_b32 s{S_PVS}, s{S_QB}, 6",
          f"s_lshl_b32 s24, s{S_WAVE}, 4", f"s_add_u32 s{S_PVS}, s{S_PVS}, s24",
          f"s_mul_i32 s24, s{S_HEAD}, {HEADBYTES}", f"s_mul_i32 s56, s{S_HEAD}, 12288", f"s_lshl_b32 s57, s{S_HEAD}, 12",
          f"s_lshl_b32 s58, s{S_HEAD}, 10", f"s_add_u32 s58, s58, {FLAG_OFF + 96}",
          f"s_or_b32 s{S_RET}, s{S_QB}, s{S_WAVE}"]
    p += ["s_waitcnt lgkmcnt(0)"] + istamp("karg", True)
    def base(sd, lo, off): return [f"s_add_u32 s{sd}, s{lo}, s{off}", f"s_addc_u32 s{sd+1}, s{lo+1}, 0"]
    p += base(S_QK, 42, 24) + base(S_KS, 46, 56) + base(S_KZ, 48, 56)
    kl = [k_ld(0, BX, 32, "k0a"), k_ld(1, BY, 36, "k0b")]; vl = [v_ld(0, 112, 40, "v0a"), v_ld(1, 80, 44, "v0b")]
    for x in kl[1][:2]: x.tag = "k0a"
    for x in vl[1][:2]: x.tag = "v0a"
    if OPT["ksc"]:
        for x in kl[0][2:] + kl[1][2:]: x.tag = "kraw"
        for x in kl[1][:2]: x.tag = "k0b"
        p += kl[0][2:] + kl[1][2:] + kl[0][:2] + kl[1][:2]; kl[1] = []
    else: p += kl[0][2:] + kl[0][:2] + kl[1][:2]
    p += base(S_FLG, 18, 58) + base(S_VS, 50, 57) + base(S_VZ, 52, 57) + base(S_QV, 44, 24)
    p += [f"s_mul_i32 s59, s{S_HEAD}, 786432"] + base(S_OUT, 54, 59) + base(S_Q, 40, 59)
    p += [f"s_cmp_lg_u32 s{S_RET}, 0", "s_cbranch_scc1 L_notleader0", f"s_buffer_load_dwordx16 s[40:55], s[{S_FLG}:{S_FLG+3}], 0 glc", "L_notleader0:"]
    p += kl[1][2:]
    p += [f"s_add_u32 s24, s24, {WSOFF}"] * (1 if WSOFF else 0)
    srd(p, S_WS, 18, 19, 24, HEADBYTES)
    p += [f"s_mov_b32 s{S_Q+2}, 786432", f"s_mov_b32 s{S_Q+3}, 0x20000"]
    p += [f"s_mov_b32 s{S_DBG}, s16", f"s_mov_b32 s{S_DBG+1}, s17", f"s_add_u32 s{S_PV1}, s{S_PK0}, 3072", f"s_add_u32 s{S_PV2}, s{S_PK0}, 6144"]
    p += [f"s_mov_b32 s{S_DBG+2}, 256", f"s_mov_b32 s{S_DBG+3}, 0x20000", f"s_lshl_b32 s{S_HOFF}, s{S_HEAD}, 3"]
    p += [f"s_cmp_lg_u32 s{S_RET}, 0", "s_cbranch_scc1 L_notleader", "s_waitcnt lgkmcnt(0)", f"s_mov_b32 s{S_TP}, 1"]
    for i in range(16):
        p += [f"s_lshr_b32 s{40+i}, s{40+i}, 10", f"s_min_u32 s{40+i}, s{40+i}, 31", f"s_bitset1_b32 s{S_TP}, s{40+i}"]
    p += [f"s_ff0_i32_b32 s{S_TP}, s{S_TP}", f"s_lshl_b32 s{S_TP}, s{S_TP}, 10", f"v_mov_b32 v{V_POLL}, s{S_TP}",
          "s_mov_b64 exec, 1", f"buffer_store_dword v{V_POLL}, off, s[{S_DBG}:{S_DBG+3}], s{S_HOFF} sc1 ;UNTRACKED", "s_mov_b64 exec, -1",
          "L_notleader:"]
    p += [f"s_lshl_b32 s24, s{S_QB}, 2", f"s_add_u32 s24, s24, 32", f"s_buffer_load_dword s{S_OWN}, s[{S_FLG}:{S_FLG+3}], s24 glc",
          ] + ([f"s_getreg_b32 s{S_XCC}, hwreg(HW_REG_XCC_ID, 0, 4)", f"s_lshl_b32 s{S_XCC}, s{S_XCC}, 5", f"s_mov_b32 s{S_FOFF}, {32 if OPT['l2'] == 3 else 0}"] if OPT["l2"] else
          [f"s_mov_b32 s{S_XCC}, 0", f"s_mov_b32 s{S_FOFF}, 32"])
    p += vl[0][2:] + vl[0][:2] + vl[1][:2] + (vl[1][2:] if OPT["greedy"] else []) + istamp("iss", True)
    if OPT["pre"]:
        st = OPT["pre"]
        p += [f"v_mul_u32_u24 v31, {st}, v25", f"v_mul_u32_u24 v30, 6144, v24", "v_add_u32 v31, v30, v31"]
        if st == 128: p += ["v_or_b32 v31, v31, v48"]
        p += [VM("pre", f"buffer_load_dword v132, v31, s[{S_WS}:{S_WS+3}], s{S_PK0} offen" + (" nt" if OPT["prent"] else ""))]
        if st == 64: p += ["v_add_u32 v30, 4096, v31", "s_mov_b64 exec, 0xffffffff", VM("pre", f"buffer_load_dword v133, v30, s[{S_WS}:{S_WS+3}], s{S_PK0} offen nt"), "s_mov_b64 exec, -1"]
    p += [f"s_mov_b32 s{S_OUT+2}, 786432", f"s_mov_b32 s{S_OUT+3}, 0x20000"]
    p += [f"s_lshl_b32 s24, s{S_WAVE}, 8", f"s_add_u32 s{S_HOFF}, s{S_HOFF}, s24"]
    p += ["v_mul_u32_u24 v30, 3072, v24", f"v_add_u32 v{V_DMA}, v30, v{V_RD}"]
    p += ["v_lshl_add_u32 v30, v24, 3, v26",
          "v_mul_u32_u24 v30, 384, v30",
          "v_lshlrev_b32 v31, 2, v29",
          "v_xor_b32 v31, v27, v31",
          "v_lshl_add_u32 v30, v31, 4, v30", f"v_or_b32 v{V_KST}, v30, v48",
          "v_lshlrev_b32 v30, 8, v24",
          "v_add_u32 v30, 12288, v30",
          ] + (["v_lshrrev_b32 v31, 5, v25", "v_mul_u32_u24 v31, 6144, v31", "v_add_u32 v30, v30, v31", "v_and_b32 v31, 1, v25", "v_mul_u32_u24 v31, 3072, v31", "v_add_u32 v30, v30, v31",
          "v_bfe_u32 v31, v25, 1, 4", f"v_lshl_add_u32 v{V_VST}, v31, 4, v30"] if V64 else
          ["v_lshrrev_b32 v31, 4, v25", "v_lshl_add_u32 v30, v31, 10, v30", "v_and_b32 v31, 15, v25",
          "v_lshl_add_u32 v30, v31, 4, v30", f"v_or_b32 v{V_VST}, v30, v48"])
    p += [f"s_lshl_b32 s24, s{S_QB}, 2",
          f"v_lshl_add_u32 v{V_FLAG}, v0, 2, s24", f"v_cmp_lt_u32 vcc, 0, v0", "v_mov_b32 v30, 0x40000000", "s_nop 0",
          f"v_cndmask_b32 v{V_FLAG}, v{V_FLAG}, v30, vcc"]
    p += [f"s_mul_i32 s{S_DMK}, s{S_WAVE}, 3072", f"s_add_u32 s{S_DMK}, s{S_DMK}, 12288", f"s_add_u32 s{S_DMV}, s{S_DMK}, {STAGE}",
          f"s_add_u32 s24, s{S_QB}, 1", "s_and_b32 s24, s24, 7", f"s_mul_i32 s{S_GOFFK}, s24, {STAGE}", f"s_add_u32 s{S_GOFF}, s{S_GOFFK}, 12288",
          f"s_mov_b32 s{S_RK}, {A2}", f"s_mov_b32 s{S_RV}, {B1}", f"v_add_u32 v{V_RD}, {B0}, v{V_RD}",
          f"s_mov_b32 s{S_CS}, 0x{f32bits(CSCALE):08x}", f"s_mov_b32 s{S_MASK}, 0xffff0000",
          f"s_mov_b32 s{S_BUDGET}, 100000"] + ([f"s_mov_b32 s{S_TAG+1}, 0"] if OPT["stamp"] else [])
    p += ["v_and_b32 v26, 15, v25", "v_lshrrev_b32 v27, 4, v25", "v_bfe_u32 v28, v25, 1, 3",
          "v_xor_b32 v29, v27, v28", "v_mul_u32_u24 v30, 384, v26", f"v_lshl_add_u32 v{V_RDK[0]}, v29, 4, v30",
          f"v_xor_b32 v{V_RDK[1]}, 64, v{V_RDK[0]}"]
    p += [f"s_mul_i32 s{S_QL}, s{S_WAVE}, 6144", f"s_add_u32 s{S_QL}, s{S_QL}, {B1}",
          "v_lshrrev_b32 v29, 1, v27", "v_xor_b32 v29, v29, v28", "v_lshl_add_u32 v31, v29, 4, v30",
          "v_and_b32 v29, 1, v27", "v_lshl_add_u32 v31, v29, 3, v31"]
    for kk in range(4):
        p += [f"v_xor_b32 v{VQR[kk]}, {32*kk}, v31", f"v_add_u32 v{VQR[kk]}, s{S_QL}, v{VQR[kk]}"]
    p += [f"s_lshl_b32 s24, s{S_QB}, 2", f"s_add_u32 s24, s24, s{S_WAVE}", f"s_mul_i32 s24, s24, {STAGE}"]
    for b in range(6):
        p += [f"v_add_u32 v26, {64*b}, v25", "v_mul_u32_u24 v27, 2731, v26", "v_lshrrev_b32 v27, 17, v27",
              "v_and_b32 v27, 7, v27", "v_xor_b32 v26, v26, v27", f"v_lshlrev_b32 v{VQD+b}, 4, v26", f"v_add_u32 v{VQD+b}, s24, v{VQD+b}"]
    for q in range(4): p.append(f"v_mov_b32 v{V_L[q]}, 0")
    STF0 = "" if OPT["l2"] else STF
    def own_k(b):
        l = []
        for j in range(4):
            l += k_st(j, b, "kst", STF0)
            va = V_KST if j == 0 else V_KA + (j & 1)
            l += ["s_mov_b64 exec, s[62:63]", DS("w", f"ds_write_b128 v{va}, v[{b+4*j}:{b+4*j+3}] offset:{j*768}"), "s_mov_b64 exec, -1"]
        return l
    def own_v(b):
        l = [x for e in range(NVE) for x in v_st(e, b, "vst", STF0)]
        if V64: return l + [DS("w", f"ds_write_b128 v{V_VST}, v[{b+4*e}:{b+4*e+3}] offset:{STAGE - 12288 + e*1024}") for e in range(3)]
        l += ["s_mov_b64 exec, s[62:63]"] + [DS("w", f"ds_write_b128 v{V_VST}, v[{b+4*e}:{b+4*e+3}] offset:{STAGE - 12288 + e*3072}") for e in range(4)] + ["s_mov_b64 exec, -1"]
        return l
    p += ["s_mov_b32 s62, -1", "s_mov_b32 s63, 0xffff"]
    qa = OPT["qa"]
    qb_, qc = OPT["qb"], OPT["qc"]
    R = lambda a, b: list(range(a, b))
    if OPT["split"]:
        p += [W("k0a")] + vl[1][2:] + k_cv(0, BX, 32, BX) + [W("k0b")] + istamp("k0b", True) + k_cv(1, BY, 36, BX) + own_k(BX)
        p += tag_load() + with_nop(q_dma(R(0, qa))) + [W("v0a")] + v_cv(0, 112, 40, 112)
        p += [W("tag")] + tag_check() + ["s_waitcnt lgkmcnt(0)", "s_barrier"] + flag_post() + tag_get() + istamp("post", True)
        p += with_nop(q_dma(R(qa, qb_))) + v_cv(1, 80, 44, 112) + own_v(112) + with_nop(q_dma(R(qb_, 12))) + istamp("vst", True)
    elif OPT["greedy"]:
        p += [W("k0a")] + with_nop(q_dma(R(0, 3))) + k_cv(0, BX, 32, BX) + [W("k0b")] + istamp("k0b", True) + with_nop(q_dma(R(3, 6))) + k_cv(1, BY, 36, BX) + own_k(BX)
        p += [W("v0a")] + with_nop(q_dma(R(6, 9))) + v_cv(0, 112, 40, 112) + [W("v0b")] + with_nop(q_dma(R(9, 12))) + v_cv(1, 80, 44, 112) + own_v(112)
        p += tag_load() + with_nop(q_dma(R(12, 18))) + istamp("vst", True)
    else:
        p += [W("k0a")] + vl[1][2:] + k_cv(0, BX, 32, BX) + [W("k0b")] + istamp("k0b", True) + k_cv(1, BY, 36, BX) + own_k(BX)
        p += with_nop(q_dma(R(0, qa))) + istamp("kst", True)
        p += [W("v0a")] + sprinkle(v_cv(0, 112, 40, 112), q_dma(R(qa, qb_))) + [W("v0b")] + v_cv(1, 80, 44, 112) + own_v(112)
        p += tag_load() + with_nop(q_dma(R(qb_, OPT["qe"]))) + istamp("vst", True)
    if not OPT["split"]:
        if OPT["iw"]:
            p += ["s_mov_b64 exec, 0"] + [x for w in range(3) for x in (f"s_cmp_eq_u32 s{S_WAVE}, {w}", f"s_cbranch_scc1 L_iw{w}")] + ["s_branch L_iw3", "L_iwret:", "s_mov_b64 exec, -1"]
        p += [W("tag")] + tag_check() + istamp("tag", True)
        p += ["s_waitcnt lgkmcnt(0)", "s_barrier"] + flag_post(True) + tag_get() + istamp("post", True)
    if OPT["pf2"]:
        p += [f"s_mov_b32 s{S_DBG}, s60", f"s_mov_b32 s{S_DBG+1}, s61", f"s_mov_b32 s{S_DBG+2}, L_slow-{NAME}_kernel",
              "s_lshr_b32 s24, s2, 3", f"s_mul_i32 s{S_HOFF}, s24, 43", f"s_lshr_b32 s{S_HOFF}, s{S_HOFF}, 7",
              f"s_mul_i32 s{S_RET}, s{S_HOFF}, 3", f"s_sub_u32 s24, s24, s{S_RET}", "s_lshl_b32 s24, s24, 10",
              f"s_mul_i32 s{S_HOFF}, s{S_HOFF}, 12288", f"s_add_u32 s{S_HOFF}, s{S_HOFF}, s24"]
    KF = 144
    for f in range(12):
        s, tb = kfrag(f)
        p.append(DS("kf", f"ds_read_b128 v[{KF+4*f}:{KF+4*f+3}], v{V_RDK[s&1]} offset:{tb*6144 + (s>>1)*128}"))
    def qk0(qb):
        l = []
        for f in sorted(range(12), key=lambda f: kfrag(f)[::-1]):
            s, tb = kfrag(f)
            d = vr(Sq(0, qb, tb), 4)
            l.append(f"{MF} {d}, v[{KF+4*f}:{KF+4*f+3}], {Qf(qb,s)}, {'0' if s == 0 else d}")
        return l
    ps = len(POLLSITES); POLLSITES.append(ps)
    g3n = OPT["g3n"]
    pollchk = ["s_waitcnt lgkmcnt(0)"] + smem_reduce() + [f"s_cmp_ge_u32 s{S_PT}, 16", f"s_cbranch_scc1 L_pollslow{ps}", f"L_pollok{ps}:",
          f"s_add_u32 s{S_NEED}, s{S_NEED}, 1"] + [f"s_mov_b32 s{S_FOFF}, 32"] * (OPT["l2"] == 2) + istamp("poll", True)
    sm00 = rowmax2(0, (0, 1), (V_CT, V_CT + 2)) + addneg(0, 0) + addneg(0, 1) + softmax_part(0, 0)
    qrest = R(OPT["qe"] if OPT["greedy"] == 0 else 18, 18 + g3n)
    if OPT["fs"]:
        hand = with_nop(dma_tile("k", 1, True) + dma_tile("k", 2, True) + dma_tile("k", 3, True) + dma_tile("v", 1, True)) + k_adv() + v_adv()
        for qb in range(4):
            if qb == 3:
                g0 = []
                for d0 in range(0, 12, 2):
                    g0.append(Grp([(V_RD, (d0 + e) * 1024) for e in range(2)], [(e, ar(O(q, d0 + e), 4), vr(P(0, q), 4), "0") for q in range(3) for e in range(2)]))
                p += [rd_op(i, j, g0[i]) for i in range(2) for j in range(2)] + [LG(("fr", 0), ("fr", 1))]
                p += gen_seg("S0", g0, [], tasks=[("ldn", "ka", 0, 16), ("ldn", "kb", 17, 35)][:OPT["k1s"]], vmgap=2)
            p += [W(("q", qb))] + q_frags(qb) + ([LG("tg")] + tag_use() if qb == 0 else []) + (smem_flags() if qb == OPT["pq"] else []) + [LG(("qf", qb))]
            if qb < 2: p += with_nop(q_dma(R(18 + 3 * qb, 21 + 3 * qb)))
            p += qk0(qb) + (pollchk + hand if qb == OPT["pq"] else ["s_nop 7"]) + sm_one(0, qb)
        sp = softmax_part
        g1 = qk_tile(1, 1, [(q, q) for q in range(4)])
        gi1 = rebase(qk_full(2), V_RDK, A1 - A0)
        gi2 = [Grp([(V_RD, w * 12288 + db * 1024) for w in range(2)],
                   [(0, ar(O(3, db), 4), vr(P(0, 3), 4), "0")] + [(1, ar(O(q, db), 4), vr(P(1, q), 4), ar(O(q, db), 4)) for q in (3, 0, 1, 2)]) for db in range(12)]
        gi3 = rebase(qk_full(4), V_RDK, A2 - A1)
        gi4 = rebase(pv_seq(2), [V_RD], B1 - B0)
        p += istamp("pre-dk1", True) + [W(("dk", 1)), "s_barrier"] + [rd_op(i, j, g1[i]) for i in range(2) for j in range(2)] + [LG(("fr", 0), ("fr", 1))]
        pa = [f"v_bfe_u32 v{V_T4}, v{V_DMA}, 4, 6", f"v_lshlrev_b32 v{V_T4}, 2, v{V_T4}"] + [f"v_xor_b32 v{V_T4+j}, {16*j}, v{V_KST}" for j in (1, 2, 3)]
        p += gen_seg("S1", g1, gi1[:2], [(pa, 0, 30)] if OPT["pa"] else [], [(31, [("dk", 3)])], [("ldn", "ka", 0, 14), ("ldn", "kb", 15, 30)][OPT["k1s"]:] +
                     ([("cv", "ka", 0, 99, OPT["fb"], 47)] if OPT["k1s"] and OPT["fb"] < 47 else []), [K_(4, 5) + (32, 46)], vmgap=2)
        p += gen_seg("S5", gi1, gi2[:2], [(sp(1, 0) + sp(1, 1) + [("dl", 54), ("nb", 47)] + sp(2, 0), 2, 95)], [(GBAR, [("dv", 1)])],
                     ([("cv", "kb", 0, 99, OPT["fa"], 95), ("ldn", "va", 20, 40)] if (OPT["k1s"] and OPT["fb"] < 47) else
                      [("cv", "ka", 0, 99, OPT["fa"], 60), ("cv", "kb", 0, 99, 61, 95), ("ldn", "va", 20, 40, "raw"), ("ldn", "va", 62, 76, "sc")]), [V_(2, 3) + (0, 18)])
        p += gen_seg("i2", gi2, gi3[:2], [(sp(2, 1) + sp(3, 0), 0, 59)], [(49, [("dk", 5)])],
                     [("kst", 0, 1), ("kst", 1, 11), ("kst", 2, 21), ("kst", 3, 31), ("ld", "vb", 34, 59)], [], vmgap=2)
        p += gen_seg("i3", gi3, gi4[:2], [(sp(3, 1) + [("dl", 57), ("nb", 47)] + sp(4, 0), 0, 95)], [(15, []), (GBAR, [("dv", 3)])],
                     [("post", "kst", 0), ("cv", "va", 0, 99, 0, 95)], [K_(6, 7) + V_(4, 5) + (18, 90)])
        p += [f"s_mov_b32 s{S_CNT}, {7 - OPT['lastp']}"]
        p += gen_seg("i4", gi4, seg_groups(5)[:2], [(sp(4, 1) + sp(5, 0), 0, 94)], [(GBAR, [("dk", 7)])],
                     [("ld", "ka", 0, 30), ("cv", "vb", 0, 99, 20, 94), ("step", "q", 30, 70), ("pollld", OPT["pl4"], OPT["pl4"] + 8)], [V_(6, 7) + (32, 74)],
                     endops=["s_nop 0", "s_branch L_join"])
    elif OPT["split"]:
        ps2 = len(POLLSITES); POLLSITES.append(ps2)
        pollchk2 = ["s_waitcnt lgkmcnt(0)"] + smem_reduce() + [f"s_cmp_ge_u32 s{S_PT}, 16", f"s_cbranch_scc1 L_pollslow{ps2}", f"L_pollok{ps2}:",
              f"s_add_u32 s{S_NEED}, s{S_NEED}, 1"] + istamp("pollV", True)
        p += [W(("q", 0))] + q_frags(0) + [LG("tg")] + tag_use() + [LG(("qf", 0))] + smem_flags() + qk0(0) + pollchk
        p += with_nop(dma_tile("k", 1, True)) + k_adv() + v_adv()
        p += [W("vst"), "s_barrier"] + flag_post() + istamp("postV", True)
        p += with_nop(dma_tile("k", 2, True) + dma_tile("k", 3, True))
        p += [W(("q", 1))] + q_frags(1) + with_nop(q_dma(R(12, 15))) + [LG(("qf", 1))] + qk0(1) + ["s_nop 7"]
        g0 = pv_unchained(0, True)[:6]
        p += [rd_op(i, j, g0[i]) for i in range(2) for j in range(2)] + sprinkle(sm00, q_dma(R(15, 18 + g3n))) + smem_flags() + [LG(("fr", 0), ("fr", 1))]
        p += gen_seg("S0", g0, [], tasks=[("q", R(18 + g3n, 24), 0, 22)] if g3n < 6 else [], vmgap=2) + pollchk2
        p += with_nop(dma_tile("v", 1, True))
        g3n = 6
    elif OPT["own1"] == 2:
        p += [W(("q", 0))] + q_frags(0) + [LG("tg")] + tag_use() + with_nop(q_dma(qrest[:3])) + [LG(("qf", 0))] + qk0(0)
        p += [W(("q", 1))] + q_frags(1) + smem_flags() + with_nop(q_dma(qrest[3:])) + [LG(("qf", 1))] + qk0(1) + pollchk
        g0 = pv_unchained(0, True)[:6]
        p += [rd_op(i, j, g0[i]) for i in range(2) for j in range(2)]
        p += sprinkle(sm00, dma_tile("k", 1, True) + dma_tile("k", 2, True) + dma_tile("k", 3, True) + dma_tile("v", 1, True)) + k_adv() + v_adv() + [LG(("fr", 0), ("fr", 1))]
        p += gen_seg("S0", g0, [], tasks=[("q", R(18 + g3n, 24), 0, 22)] if g3n < 6 else [], vmgap=2)
        g3n = 6
    elif OPT["own1"]:
        pre0 = [x for x in qrest[:3] if x < 18]; post0 = [x for x in qrest[:3] if x >= 18]
        p += [W(("q", 0))] + q_frags(0) + [LG("tg")] + tag_use() + with_nop(q_dma(pre0)) + [LG(("qf", 0))] + with_nop(q_dma(post0)) + qk0(0)
        if OPT["q0f"]: p += ["s_nop 7"] + sm_one(0, 0); sm00 = sm_one(0, 1)
        p += [W(("q", 1))] + q_frags(1) + with_nop(q_dma(qrest[3:6])) + [LG(("qf", 1))] + qk0(1) + ["s_nop 7"]
        g0 = pv_unchained(0, True)[:6]
        p += [rd_op(i, j, g0[i]) for i in range(2) for j in range(2)] + sprinkle(sm00, q_dma(qrest[6:])) + smem_flags() + [LG(("fr", 0), ("fr", 1))]
        p += gen_seg("S0", g0, []) + pollchk
        p += with_nop(dma_tile("k", 1, True) + dma_tile("k", 2, True) + dma_tile("k", 3, True) + dma_tile("v", 1, True)) + k_adv() + v_adv()
        if OPT["qf"]: p += with_nop(q_dma(R(18 + g3n, 24))); g3n = 6
    else:
        p += [W(("q", 0))] + q_frags(0) + [LG("tg")] + tag_use() + [W(("q", 1))] + q_frags(1) + smem_flags()
        p += [LG(("qf", 0))] + with_nop(q_dma(qrest)) + pollchk
        p += with_nop(dma_tile("k", 1, True)) + k_adv() + v_adv()
        p += sprinkle(qk0(0) + qk0(1), dma_tile("k", 2, True)) + ["s_nop 7"]
        p += sprinkle(sm00, dma_tile("k", 3, True) + dma_tile("v", 1, True))
    if not OPT["fs"]:
        sp = softmax_part
        g1 = qk_half(0, ws=(1,))
        g2 = rebase(qk_half(1), V_RDK, A1 - A0)
        g3 = pv_unchained(0, True)[6 if OPT["own1"] else 0:]
        g4 = rebase(pv_unchained(1), [V_RD], B1 - B0)
        g5 = rebase(qk_half(2, True), V_RDK, A0 - A1) + rebase(qk_half(3), V_RDK, A1 - A0)
        gi3 = rebase(qk_full(4), V_RDK, A2 - A1)
        gi4 = rebase(pv_seq(2, True), [V_RD], B0 - B1) + rebase(pv_seq(3), [V_RD], B1 - B0)
        p += istamp("pre-dk1", True) + [W(("dk", 1)), "s_barrier"] + [rd_op(i, j, g1[i]) for i in range(2) for j in range(2)]
        p += [LG(("fr", 0), ("fr", 1))]
        p += gen_seg("S1", g1, g2[:2], [], [(15, [("dk", 3)])], [], [V_(2, 3) + (0, 21)], vmgap=2)
        p += gen_seg("S2", g2, g3[:2], [(sp(0, 1), 3, 47)], [(39, [("dv", 3)])] if OPT["own1"] else [], ([("q", R(18 + g3n, 24), 0, 24)] if g3n < 6 else []) + [("ldn", "ka", 25 if g3n < 6 else 0, 47)])
        if OPT["own1"]: p += gen_seg("S3", g3, g4[:2], [(sp(1, 0), 0, 23)], [], [("ldn", "kb", 0, 23)])
        else: p += gen_seg("S3", g3, g4[:2], [(sp(1, 0), 0, 47)], [(15, [("dv", 3)])], [("ldn", "kb", 0, 22), ("ldn", "va", 23, 46, "raw")])
        p += gen_seg("S4", g4, g5[:2], [(sp(1, 1), 0, 21)], [], [("ldn", "va", 0, 30, "raw")] if OPT["own1"] else [], extra=[Stream([W(("q", 2))] + q_frags(2) + [W(("q", 3))] + q_frags(3), 16, 46)])
        p += istamp("pre-S5", True) + ["s_waitcnt lgkmcnt(0)", "s_barrier"]
        p += gen_seg("S5", g5, gi3[:2], [(rowmax2(2, (2, 3), (V_T, V_T + 2)), 27, 45), (addneg(2, 0) + addneg(2, 1) + sp(2, 0) + addneg(2, 2) + addneg(2, 3) + sp(2, 1), 46, 95)],
                     [(GBAR + 8, [("dk", 5)])], [("cv", "ka", 0, 99, 0, 34), ("cv", "kb", 0, 99, 35, 72), ("kst", 0, 73), ("kst", 1, 77), ("kst", 2, 89), ("kst", 3, 93),
                     ("ldn", "va", 36, 60, "sc")], [K_(4, 5) + (1, 24)])
        p += gen_seg("i3", gi3, gi4[:2], [(sp(3, 0) + sp(3, 1), 0, 54), (sp(4, 0), 55, 95)], [(OPT["pb"], []), (GBAR, [])],
                     [("ld", "vb", 0, 22), ("post", "kst", 0), ("cv", "va", 0, 99, 10, 95)], [K_(6, 7) + V_(4, 5) + (24, 90)])
        p += [f"s_mov_b32 s{S_CNT}, {7 - OPT['lastp']}", f"s_mul_i32 s{S_RC}, s{S_QB}, {STAGE}", f"s_mov_b32 s{S_RD}, 12288"]
        p += gen_seg("i4", gi4, seg_groups(5)[:2], [(sp(4, 1) + sp(5, 0), 0, 94)], [(47, []), (GBAR + 8, [("dk", 7)])],
                     [("ld", "ka", 0, 30), ("cv", "vb", 0, 99, 30, 94), ("step", "q", 30, 70), ("pollld", OPT["pl4"], OPT["pl4"] + 8)], [V_(6, 7) + (52, 84)],
                     endops=["s_nop 0", "s_branch L_join"])
    p += [".p2align 6"] + ["s_nop 0"] * OPT.get("pad", 0) + ["L_loop:"]
    pro_ = p
    first57, tail = gen_tail()
    bodyA = []
    for k in (1, 2, 3, 4, 5, 6, 7, 0):
        if k == 5: bodyA.append("L_join:"); jpos = len(bodyA)
        eo = [f"s_sub_u32 s{S_CNT}, s{S_CNT}, 1", f"s_cmp_lg_u32 s{S_CNT}, 0", "s_cbranch_scc1 L_loop"] if k == 0 else ()
        t, d = steady(k)
        if OPT["ab"] & 8: d = []
        if OPT["ab"] & 16: t = [x for x in t if x[0] not in ("cv", "kst", "vst", "ld")]
        if OPT["ab"] & 128: t = [x for x in t if x[0] not in ("cv",)]
        if OPT["ab"] & 256: t = [x for x in t if x[0] not in ("kst", "vst")]
        if OPT["ab"] & 512: t = [x for x in t if x[0] not in ("ld",)]
        bars = None
        if OPT["nb6"]:
            dk = lambda *x: [("dk", i) for i in x]; dv = lambda *x: [("dv", i) for i in x]
            bars = {0: [], 4: [], 7: [(GBAR, dv(6, 7) + dk(2, 3))], 3: [(GBAR, dv(2, 3) + dk(6, 7))]}.get(k)
        bodyA += gen_iter(16 + k, t, d, name=f"k{k}", endops=eo, bars=bars)
    lastt = []
    if OPT["lastp"]:
        for k in (1, 2, 3, 4, 5, 6, 7, 0):
            t, d = steady(k)
            t = [x for x in t if not ((x[0] in ("ld", "cv") and x[1] == "ka") or (x[0] in ("ld", "cv") and x[1] == "kb" and k != 1) or x[:2] == ("ld", "va") or x[0] == "pf")]
            dk = lambda *x: [("dk", i) for i in x]; dv = lambda *x: [("dv", i) for i in x]
            bars = {0: [], 4: [], 7: [(GBAR, dv(6, 7) + dk(2, 3))], 3: [(GBAR, dv(2, 3) + dk(6, 7))]}.get(k) if OPT["nb6"] else None
            lastt += gen_iter(16 + k, t, d, name=f"z{k}", bars=bars)
    tail = lastt + tail
    assert OPT["qo"] or [g.rd for g in first57] == [g.rd for g in seg_groups(17)[:2]]
    tailc = tail + ["L_fin:"]
    resolve(pro_ + bodyA[jpos:] + bodyA + bodyA + tailc)
    if OPT["cap"]: pro_ = pace(pro_, OPT["cap"] / 4)
    P_ = Prog()
    P_.extend(fin(pro_))
    a0 = len(P_.ins); P_.extend(fin(bodyA)); a1 = len(P_.ins)
    P_.extend(fin(tailc))
    p = P_
    if OPT["stamp"]:
        p("s_waitcnt vmcnt(0) lgkmcnt(0)")
        p.extend(istamp("end"))
        p("s_waitcnt lgkmcnt(0)")
        p.extend(istamp("end2"))
        p(f"v_writelane_b32 v{V_STAMP}, s{S_TAG+1}, 63")
        p("s_add_u32 s8, s18, 0xfa00000"); p("s_addc_u32 s9, s19, 0"); p("s_mov_b32 s10, 1048576"); p("s_mov_b32 s11, 0x20000")
        p("s_lshl_b32 s24, s2, 2"); p(f"s_add_u32 s24, s24, s{S_WAVE}"); p("s_lshl_b32 s24, s24, 8")
        p(f"v_bfe_u32 v32, v{V_DMA}, 4, 6"); p("v_lshlrev_b32 v32, 2, v32")
        p(f"buffer_store_dword v{V_STAMP}, v32, s[8:11], s24 offen")
        if OPT["stamp"] == 8: STAMPS.sort(key=lambda n: 0)
        open(sys.argv[1] + ".stamps", "w").write("\n".join(order_stamps()))
    if OPT["calx"]:
        p("s_waitcnt vmcnt(0)")
        p("L_cal:")
        p("s_memrealtime s[40:41]")
        p("s_waitcnt lgkmcnt(0)")
        p("s_sub_u32 s40, s40, s100")
        p("s_cmp_lt_u32 s40, 10000")
        p("s_cbranch_scc1 L_cal")
    p("L_done:")
    p("s_endpgm")
    main_end0 = len(p.ins)
    for ps in POLLSITES: p.extend(poll_slow(ps))
    p.extend(tag_slow())
    main_end = len(p.ins)
    p.extend(gen_slow())
    slow_end = len(p.ins)
    ji = [i for i, x in enumerate(p.ins) if x.text == "L_join:"][0]
    lin = p.ins[:a0] + p.ins[ji:a1] + p.ins[a0:main_end0]
    sl = [i for i, x in enumerate(p.ins) if x.text == "L_slowloop:"][0]
    bi = [i for i, x in enumerate(p.ins) if x.text == "s_cbranch_scc1 L_slowloop"][0]
    probs = check_hazards(lin, "main") + check_hazards(p.ins[main_end:bi+1] + p.ins[sl:slow_end], "slow") + check_hazards(p.ins[main_end0:main_end], "aux")
    for x in probs: print(x, file=sys.stderr)
    return p

def kd(name, vgpr, sgpr, accum):
    return f""".amdhsa_kernel {name}
  .amdhsa_next_free_vgpr {vgpr}
  .amdhsa_next_free_sgpr {sgpr}
  .amdhsa_accum_offset {accum}
  .amdhsa_group_segment_fixed_size 0
  .amdhsa_kernarg_size 80
  .amdhsa_user_sgpr_count 2
  .amdhsa_user_sgpr_kernarg_segment_ptr 1
  .amdhsa_system_sgpr_workgroup_id_x 1
.end_amdhsa_kernel
"""
def build_text(body):
    o = HEADER + f"; @launch grid=(256,1,1) block=(256,1,1) lds={LDS_BYTES}\n" + '.amdgcn_target "amdgcn-amd-amdhsa--gfx950"\n.text\n'
    o += f".globl {NAME}_kernel\n.p2align 8\n.type {NAME}_kernel,@function\n" + body
    return o + '.section .rodata,"a"\n.p2align 6\n' + kd(NAME + "_kernel", 512, 102, 256)
def addresses(lines):
    import subprocess, types, ctypes
    _o = ctypes.CDLL
    class F:
        def __getattr__(s, n):
            x = types.SimpleNamespace(); object.__setattr__(s, n, x); return x
    ctypes.CDLL = lambda n, *a, **k: (F() if "amdhip" in n else _o(n, *a, **k))
    sys.path.insert(0, "cdna_kernels")
    import cdna_launch as cl
    t = []
    for i, l in enumerate(lines):
        if l.strip().startswith("v_"): t.append(f"L_adr{i}:")
        t.append(l)
    open("_a.s", "w").write(cl.with_harness_metadata(build_text("\n".join(t) + "\n"), NAME + "_kernel", 10, launch_lists=True))
    subprocess.run([cl.ROCM_CLANG, "-x", "assembler", "-target", "amdgcn-amd-amdhsa", "-mcpu=gfx950", "_a.s", "-o", "_a.co"], check=True)
    r = subprocess.run(["llvm-objdump", "-t", "_a.co"], capture_output=True, text=True).stdout
    return {int(x.split()[-1][5:]): int(x.split()[0], 16) for x in r.split("\n") if "L_adr" in x}
def add_stubs(text):
    base = text.rstrip("\n").split("\n")
    lo = base.index("L_iwret:"); hi = base.index("L_fin:"); l0 = base.index("L_loop:")
    l1 = max(i for i, l in enumerate(base) if l.strip() == "s_cbranch_scc1 L_loop")
    pos = []
    for it in range(6):
        lines = []; idx = []
        chains = [[k for k in range(len(pos)) if k % 4 == w] for w in range(4)]
        nxt = {}
        for w in range(4):
            for a, b in zip(chains[w], chains[w][1:] + [None]): nxt[a] = f"L_pg{b}" if b is not None else "L_iwret"
        for i, l in enumerate(base):
            idx.append(len(lines)); lines.append(l)
            if i in pos:
                k = pos.index(i)
                lines += ([f"L_iw{k}:"] if k < 4 else []) + [f"L_pg{k}:", f"    s_cbranch_execz {nxt[k]}"]
        if len(pos) < 4: lines += [x for w in range(len(pos), 4) for x in (f"L_iw{w}:", "    s_branch L_iwret")]
        ad = addresses(lines); inv = {j: i for i, j in enumerate(idx)}
        first = min(i for i, l in enumerate(base) if l.strip().startswith("v_mfma") and "a[0:3]" in l)
        mf = sorted((a, inv[j]) for j, a in ad.items() if lo < inv[j] < hi and (inv[j] < first or base[inv[j]].strip().startswith("v_mfma")))
        new = [min(i for a, i in mf if i > base.index("L_join:"))]
        pg = mf[0][0] >> 12
        for a, i in mf:
            if (a + 8) >> 12 > pg:
                pg = (a + 8) >> 12
                if OPT["iw"] == 2 or not (l0 < i < l1): new.append(i)
        new = sorted(set(new))
        if new == pos: break
        pos = new
    print("page stubs:", len(pos), file=sys.stderr)
    return "\n".join(lines) + "\n"
out = HEADER
out += f"; @launch grid=(256,1,1) block=(256,1,1) lds={LDS_BYTES}\n"
out += '.amdgcn_target "amdgcn-amd-amdhsa--gfx950"\n.text\n'
body_ = gen_main().text()
if OPT["iw"]: body_ = add_stubs(body_)
out += f".globl {NAME}_kernel\n.p2align 8\n.type {NAME}_kernel,@function\n" + body_
out += '.section .rodata,"a"\n.p2align 6\n' + kd(NAME + "_kernel", 512, 102, 256)
open(sys.argv[1], "w").write(out)
```

```python
import sys, math
from asmlib import *

NAME = "standalone__kv_cache_quant_int4_int2_kv_with_per_channel_or_per_token_scales__prompt"
OPT = dict(stamp=0, vmgap=4, sb=6, sa=6, ahead=8, thr=64, pf2=0, calx="", qa=6, plv=2, plk=10, ckv=1, ckk=1, tden=24, touch=0, w0poll=0, cap=48, qb=6, q3e=1, ksc=0, few=1, qc=15, pb=39, pl4=40, l2=3, k1e=0, greedy=0, g3n=3, pre=0, own1=1, ab=0, pk=0, split=0, prent=1, bal=1, flex=1, w2=0, dense="S61,S5,S2,S3,S4", dx=4, dvg=2, f3=1, pvs=1, qo=0, po=0, x2c=12, sst=1, q0f=1, nb6=1, tv=1, omv=0, ldc=8, rs=0, scnt=0, iw=2, pfnt=0, v64=1, lastp=1, lmf=1, fs=1, pq=2, fa=20, k1s=2, fb=99, pa=1, twop=0, llag=24, w5=40, lva=70, qe=18, qf=0, ed=200, ed1=250, cut="22,46,6,42,10,30,10")
for a in sys.argv[2:]:
    k, v = a.split("="); OPT[k] = int(v) if v.lstrip("-").isdigit() else v
NS = 6
STAGE = 24576
HEADBYTES = 64 * STAGE
RING = NS * STAGE
LDS_BYTES = RING + 128
A0, B0, A1, B1, A2, B2 = [i * STAGE for i in range(6)]
CSCALE = (192.0 ** -0.5) * math.log2(math.e)
HEADER = open("cdna_kernels/" + NAME + ".s.ref").read().split("; Override launch geometry")[0]
MF = "v_mfma_f32_16x16x32_bf16"
V64 = OPT["v64"]; NVE = 3 if V64 else 4
NCH = 2 if V64 else 3
def chunk_dbs(n): return list(range(6 * n, 6 * n + 6)) if V64 else [3 * e + n for e in range(4)]

V_FVAL = 0; V_RD = 1; V_RDK = [2, 3]; V_DMA = 4; V_L = [5, 6, 7, 8]
V_KLD = 9; V_KSC = 10; V_KST = 11; V_VLD = 12; V_FLAG = 13; V_RD2 = 59; V_RD3 = 60
V_T = 16; NTP = 2
V_VST = 15; V_STAMP = 14; V_T4 = 20
V_FR = 24; NFS = 6
V_CT = 48; V_VO = 52; V_RS = [56, 60]; BX = 224; BY = 240; BZ = 144
V_POLL = V_VO; V_KA = V_VO + 2
UNIT = [64, 80, 160, 176]; HI = [96, 112]
VQD = 136; VQR = [22, 23, 142, 143]
def Sq(t, sl, tb): return (UNIT[t % 4] if tb == 0 else HI[t % 2]) + 4 * sl
def P(t, sl): return UNIT[t % 4] + 4 * sl
def NEGM(qb): return 128 + 4 * qb
def O(qb, db): return (qb * 12 + db) * 4
def Qf(qb, s, half=None):
    i = qb * 6 + s
    base, f = (192 + 4 * i, ar) if i < 16 else (192 + 4 * (i - 16), vr)
    return f(base, 4) if half is None else f(base + 2 * half, 2)
def FR(f): return vr(V_FR + 4 * (f % NFS), 4)

S_RDELTA = 3; S_WS = 4; S_Q = 8; S_OUT = 12; S_FLG = 20
S_WAVE = 25; S_DMK = 26; S_GOFF = 27; S_RK = 28; S_TMP = 29; S_RV = 30; S_CNT = 31; S_GOFFK = 32
S_PK0 = 33; S_PK1 = 34; S_PV0 = 35; S_PKS = 36; S_PVS = 37; S_CS = 38; S_RET = 39; S_PV1 = 16; S_PV2 = 17
S_QL = 40; S_QS = 41; S_TAG = 42; S_FOFF = 44; S_XCC = 45; S_OWN = 46; S_RC = 46; S_RD = 47
S_PT = 48; S_DMV = 56; S_TK = 57; S_TV = 58; S_TP = 59
S_QK = 64; S_QV = 68; S_KS = 72; S_KZ = 76; S_VS = 80; S_VZ = 84; S_DBG = 88
S_NEED = 92; S_HOFF = 93; S_HEAD = 94; S_QB = 95; S_BUDGET = 96; S_MASK = 97
WSOFF = OPT.get("wsoff", 0) << 20
FLAG_OFF = WSOFF + (49 << 20)
SC1 = {0: " sc1", 1: "", 2: " nt", 3: " sc0", 4: " sc1 nt", 5: " sc0 sc1"}[OPT.get("dmaf", 0)]; NTKV = " nt"; NTQ = " nt"; STF = " sc1"; OF = {0: " sc0 sc1", 1: " sc1", 2: " sc1 nt", 3: " sc0 sc1 nt"}[OPT.get("of", 0)]

STAMPS = []
def istamp(name, force=False):
    if OPT["calx"] == name: return ["s_memrealtime s[100:101]"]
    if OPT["stamp"] not in (6, 8, 9): return []
    if OPT["stamp"] == 8 and name.startswith(("k", "z")) and not force: return []
    if OPT["few"] and force and name not in ("karg", "k0b", "vst", "tag", "post", "poll", "postV", "pollV", "pre-dk1"): return []
    if OPT["stamp"] != 8 and force: return []
    STAMPS.append(name)
    return ["s_waitcnt lgkmcnt(0)"] * (1 if force else 0) + [f"v_mov_b32_dpp v{V_STAMP}, v{V_STAMP} wave_shr:1 row_mask:0xf bank_mask:0xf", f"v_writelane_b32 v{V_STAMP}, s98, 0",
            ("s_memtime" if OPT["stamp"] == 6 else "s_memrealtime") + " s[98:99]"]

def order_stamps():
    l = list(STAMPS); out = []
    if "S62" in l:
        l.remove("S61"); l.insert(l.index("S62"), "S61")
    for n in l:
        if "." in n: continue
        out.append(n); out += [m for m in l if m.startswith(n + ".")]
    return out
class W:
    def __init__(self, *tags): self.tags = tags
class VM:
    def __init__(self, tag, text): self.tag = tag; self.text = text
class LG:
    def __init__(self, *tags): self.tags = tags
class DS:
    def __init__(self, tag, text): self.tag = tag; self.text = text

def mode_of(t):
    if OPT["fs"] and t < 4: return "f"
    return {0: "a", 1: "a", 2: "b", 3: "b", 58: "a", 59: "a", 60: "a", 61: "b", 62: "b", 63: "b"}.get(t, "f")
def slot_q(t, sl):
    m = mode_of(t)
    return sl if m == "f" else (sl & 1) + (0 if m == "a" else 2)
ONES = 20
def softmax_part(t, half, lm=False):
    if lm:
        l = [x for x in softmax_part(t, half) if not x.startswith("v_add")]
        out = []
        for x in l:
            out.append(x)
        k = [i for i, x in enumerate(out) if x.startswith("v_cvt_pk")][3]
        mm = lambda sl: f"{MF} v[{RL[slot_q(t, sl)]}:{RL[slot_q(t, sl)]+3}], v[{P(t, sl)}:{P(t, sl)+3}], v[{ONES}:{ONES+3}], " + ("0" if (t, half) == (61, 1) else f"v[{RL[slot_q(t, sl)]}:{RL[slot_q(t, sl)]+3}]")
        return out[:k + 3] + [mm(2 * half)] + out[k + 3:] + ["s_nop 1", mm(2 * half + 1)]
    flat = []; prev = None
    for gp in range(8):
        sl = 2 * half + gp // 4; pi = gp % 4; l = V_L[slot_q(t, sl)]
        t0 = V_T + 2 * (gp % NTP); t1 = t0 + 1
        src = Sq(t, sl, pi >> 1) + 2 * (pi & 1)
        E = [f"v_exp_f32 v{t0}, v{src}", f"v_exp_f32 v{t1}, v{src+1}"]
        A = [f"v_add_f32 v{l}, v{l}, v{t0}", f"v_add_f32 v{l}, v{l}, v{t1}"]
        C = [f"v_cvt_pk_bf16_f32 v{P(t,sl)+pi}, v{t0}, v{t1}"]
        if 16 <= t < 26:
            if OPT["ab"] & 1: A = []
            if OPT["ab"] & 2: E = [x.replace("v_exp_f32", "v_mov_b32") for x in E]
            if OPT["ab"] & 32: C = []
            if OPT["ab"] & 64: E = []; A = []; C = []
        flat += E if prev is None else E[:1] + prev[0] + E[1:] + prev[1]
        prev = (A, C)
    return flat + prev[0] + prev[1]

class Grp:
    def __init__(self, rd, mf): self.rd = rd; self.mf = mf; self.reb = []
def qk_tile(t, w, slots, czero=False):
    gs = []
    if OPT["qo"] == 1 and len(slots) == 4:
        for s_ in range(6):
            rd = [(V_RDK[s_ & 1], w * 12288 + tb * 6144 + (s_ >> 1) * 128) for tb in range(2)]
            mf = []
            for sl, qb in slots:
                for tb in range(2):
                    d = vr(Sq(t, sl, tb), 4)
                    mf.append((tb, d, Qf(qb, s_), (("0" if czero else vr(NEGM(qb), 4)) if s_ == 0 else d)))
            gs.append(Grp(rd, mf))
        return gs
    for gi in range(6):
        s0 = 2 * (gi >> 1); tb = gi & 1
        rd = [(V_RDK[j], w * 12288 + tb * 6144 + (s0 >> 1) * 128) for j in range(2)]
        mf = []
        for sl, qb in slots:
            d = vr(Sq(t, sl, tb), 4)
            mf += [(0, d, Qf(qb, s0), (("0" if czero else vr(NEGM(qb), 4)) if s0 == 0 else d)), (1, d, Qf(qb, s0 + 1), d)]
        gs.append(Grp(rd, mf))
    return gs
def qk_full(t): return [g for w in range(2) for g in qk_tile(t + w, w, [(q, q) for q in range(4)])]
def qk_half(t, czero=False, ws=(0, 1)):
    return [g for w in ws for g in qk_tile(t, w, [(2 * w + j, slot_q(t, j)) for j in range(2)], czero)]
def OV(qb, db): return (BY if qb == 2 else BZ) + 4 * (db // 3)
def pv_grp(t, db, first=False, va=V_RD):
    m = mode_of(t); mf = []
    for qb in (range(4) if m == "f" else [slot_q(t, 0), slot_q(t, 1)]):
        d = ar(O(qb, db), 4)
        if OPT["omv"] and t >= 61 and db % 3 == 2: d = " " + vr(OV(qb, db), 4)
        for w in range(2):
            b = P(t + w, qb) if m == "f" else P(t, 2 * w + (qb & 1))
            mf.append((w, d, vr(b, 4), "0" if (first and w == 0) else d))
    return Grp([(va, w * 12288 + db * 1024) for w in range(2)], mf)
def pv_seq(t, first=False):
    if OPT["po"] == 1 and mode_of(t) == "f":
        gs = []
        for d0 in range(0, 12, 2):
            for w in range(2):
                mf = [(e, ar(O(qb, d0 + e), 4), vr(P(t + w, qb), 4), ar(O(qb, d0 + e), 4)) for qb in range(4) for e in range(2)]
                gs.append(Grp([(V_RD, w * 12288 + (d0 + e) * 1024) for e in range(2)], mf))
        return gs
    if OPT["po"] == 2 and mode_of(t) == "f":
        gs = []
        for db in range(12):
            mf = [(w, ar(O(qb, db), 4), vr(P(t + w, qb), 4), ar(O(qb, db), 4)) for w in range(2) for qb in range(4)]
            gs.append(Grp([(V_RD, w * 12288 + db * 1024) for w in range(2)], mf))
        return gs
    return [pv_grp(t, db, first) for db in range(12)]
def pv_unchained(t, first=False):
    gs = []
    for w in range(2):
        for d0 in range(0, 12, 2):
            mf = []
            for j in range(2):
                qb = slot_q(t, j)
                for e in range(2):
                    d = ar(O(qb, d0 + e), 4)
                    mf.append((e, d, vr(P(t, 2 * w + j), 4), "0" if (first and w == 0) else d))
            gs.append(Grp([(V_RD, w * 12288 + (d0 + e) * 1024) for e in range(2)], mf))
    return gs
def rebase(gs, regs, delta):
    op = "v_add_u32" if delta >= 0 else "v_subrev_u32"
    gs[0].reb += [f"{op} v{r}, {abs(delta)}, v{r}" for r in regs]
    return gs
def rd_op(gi, j, g):
    f = 2 * gi + j
    return DS(("fr", f % NFS), f"ds_read_b128 {FR(f)}, v{g.rd[j][0]} offset:{g.rd[j][1]}")

def dma_tile(part, pos, peel=False):
    dm, go, tmp = (S_DMK, S_GOFFK, S_TK) if part == "k" else (S_DMV, S_GOFF, S_TV)
    l = [f"s_mov_b32 m0, s{dm}"]
    for j in range(3):
        l.append(VM(("d" + part, pos % 8), f"buffer_load_dwordx4 v{V_DMA}, s[{S_WS}:{S_WS+3}], s{go} offen offset:{j*1024}{SC1} lds"))
    if peel and pos < 7:
        l += [f"s_add_u32 s{go}, s{go}, {STAGE}", f"s_sub_u32 s{tmp}, s{go}, {8*STAGE}", f"s_min_u32 s{go}, s{go}, s{tmp}"]
    elif peel and pos == 7:
        l += [f"s_mov_b32 s{go}, {8*STAGE + (0 if part == 'k' else 12288)}"]
    else:
        l += [f"s_add_u32 s{go}, s{go}, {STAGE}"]
    if pos % 2 == 0: l += [f"s_add_u32 s{dm}, s{dm}, 12288"]
    else: l += [f"s_add_u32 s{dm}, s{dm}, {2*STAGE - 12288}", f"s_sub_u32 s{tmp}, s{dm}, {RING}", f"s_min_u32 s{dm}, s{dm}, s{tmp}"]
    return l
QOFF = [STAGE, 0, 2 * STAGE, STAGE]
def q_dma(lst):
    l = []
    if not lst: return l
    for i in lst:
        a, b = divmod(i, 6)
        l += [f"s_mov_b32 s{S_QS}, {a*6144}"] * (1 if (b == 0 or i == lst[0]) else 0)
        l += [f"s_add_u32 m0, s{S_QL}, {QOFF[a] + b*1024}",
              VM(("q", a), f"buffer_load_dwordx4 v{VQD+b}, s[{S_Q}:{S_Q+3}], s{S_QS} offen{NTQ} lds")]
    return l
def q_frags(qb):
    l = []
    for s in range(6):
        for h in range(2):
            sp = s + 6 * h
            l.append(DS(("qf", qb), f"ds_read_b64 {Qf(qb,s,h)}, v{VQR[sp&3]} offset:{QOFF[qb] + (sp>>2)*128}"))
    return l
def with_nop(l):
    out = []
    for i, x in enumerate(l):
        out.append(x)
        if isinstance(x, str) and " m0," in x and i + 1 < len(l) and isinstance(l[i + 1], VM): out.append("s_nop 0")
    return out
def rd_step(kind):
    cur, regs = (S_RK, V_RDK) if kind == "q" else (S_RV, [V_RD])
    return [f"s_add_u32 s{S_TMP}, s{cur}, {2*STAGE}", f"s_sub_u32 s{S_RDELTA}, s{S_TMP}, {RING}",
            f"s_min_u32 s{S_TMP}, s{S_TMP}, s{S_RDELTA}", f"s_sub_u32 s{S_RDELTA}, s{S_TMP}, s{cur}", f"s_mov_b32 s{cur}, s{S_TMP}"] + \
           [f"v_add_u32 v{r}, s{S_RDELTA}, v{r}" for r in regs]

def k_ld(h, buf, rs, tag, scal_first=True):
    sc = [VM(tag, f"buffer_load_dwordx2 v[{rs+2*i}:{rs+2*i+1}], v{V_KSC}, s[{srd_}:{srd_+3}], s{S_PKS} offen offset:{192*h}" + (" nt" if OPT["scnt"] else ""))
          for i, srd_ in enumerate((S_KS, S_KZ))]
    l = []
    for j in range(4):
        so = S_PK0 if j < 2 else S_PK1
        l.append(VM(tag, f"buffer_load_dwordx4 v[{buf+4*j}:{buf+4*j+3}], v{V_KLD}, s[{S_QK}:{S_QK+3}], s{so} offen offset:{(j&1)*1536+384*h}{NTKV}"))
    return sc + l if scal_first else l + sc
def v_ld(h, buf, rs, tag, scal_first=True):
    sc = [VM(tag, f"buffer_load_dwordx2 v[{rs+2*i}:{rs+2*i+1}], off, s[{srd_}:{srd_+3}], s{S_PVS} offset:{8*h}" + (" nt" if OPT["scnt"] else ""))
          for i, srd_ in enumerate((S_VS, S_VZ))]
    l = []
    for r in range(4):
        so = S_PV0 if h == 0 else S_PV1
        l.append(VM(tag, f"buffer_load_dwordx{NVE} v[{buf+4*r}:{buf+4*r+NVE-1}], v{V_VLD}, s[{S_QV}:{S_QV+3}], s{so} offen offset:{r*768}{NTKV}"))
    return sc + l if scal_first else l + sc
def k_cv(h, buf, rs, out):
    l = []
    s0, s1, z0, z1 = V_CT, V_CT + 1, V_CT + 2, V_CT + 3
    for i in range(2):
        l += [f"v_lshlrev_b32 v{s0}, 16, v{rs+i}", f"v_and_b32 v{s1}, s{S_MASK}, v{rs+i}",
              f"v_lshlrev_b32 v{z0}, 16, v{rs+2+i}", f"v_and_b32 v{z1}, s{S_MASK}, v{rs+2+i}",
              f"v_mul_f32 v{s0}, s{S_CS}, v{s0}", f"v_mul_f32 v{s1}, s{S_CS}, v{s1}",
              f"v_mul_f32_e64 v{z0}, -v{z0}, v{s0}", f"v_mul_f32_e64 v{z1}, -v{z1}, v{s1}"]
        if OPT.get("nz", 0) & 1: l[-2:] = [f"v_mov_b32 v{z0}, 0", f"v_mov_b32 v{z1}, 0"]
        for j in range(4):
            a = buf + 4 * j + 2 * i; b = a + 1
            l += [f"v_cvt_f32_i32 v{a}, v{a}", f"v_cvt_f32_i32 v{b}, v{b}",
                  f"v_fma_f32 v{a}, v{a}, v{s0}, v{z0}", f"v_fma_f32 v{b}, v{b}, v{s1}, v{z1}",
                  f"v_cvt_pk_bf16_f32 v{out+4*j+2*h+i}, v{a}, v{b}"]
    return l
def k_st(j, out, tag="kst", STF=STF, pre=False):
    va = V_KST; g = []
    if j and pre: va = V_T4 + j
    elif j:
        va = V_KA + (j & 1); g.append(f"v_xor_b32 v{va}, {16*j}, v{V_KST}")
    g.append(VM(tag, f"buffer_store_dwordx4 v[{out+4*j}:{out+4*j+3}], v{va}, s[{S_WS}:{S_WS+3}], s{S_PK0} offen offset:{j*768}{STF}"))
    return g
def v_cv(h, buf, rs, out):
    l = []
    s0, s1, z0, z1 = V_CT, V_CT + 1, V_CT + 2, V_CT + 3
    for i in range(2):
        l += [f"v_lshlrev_b32 v{s0}, 16, v{rs+i}", f"v_and_b32 v{s1}, s{S_MASK}, v{rs+i}",
              f"v_lshlrev_b32 v{z0}, 16, v{rs+2+i}", f"v_and_b32 v{z1}, s{S_MASK}, v{rs+2+i}",
              f"v_mul_f32_e64 v{z0}, -v{z0}, v{s0}", f"v_mul_f32_e64 v{z1}, -v{z1}, v{s1}"]
        if OPT.get("nz", 0) & 2: l[-2:] = [f"v_mov_b32 v{z0}, 0", f"v_mov_b32 v{z1}, 0"]
        for e in range(NVE):
            a = buf + 4 * (2 * i) + e; b = buf + 4 * (2 * i + 1) + e
            l += [f"v_cvt_f32_i32 v{a}, v{a}", f"v_cvt_f32_i32 v{b}, v{b}",
                  f"v_fma_f32 v{a}, v{a}, v{s0}, v{z0}", f"v_fma_f32 v{b}, v{b}, v{s1}, v{z1}"]
    for e, i in [(0, 0), (1, 0), (0, 1), (1, 1), (2, 0), (2, 1), (3, 0), (3, 1)][:2 * NVE]:
        l.append(f"v_cvt_pk_bf16_f32 v{out+4*e+2*h+i}, v{buf+8*i+e}, v{buf+8*i+4+e}")
    return l
def v_st(e, out, tag="vst", STF=STF):
    so = S_PV0 if (e < 2 or V64) else S_PV2
    return [VM(tag, f"buffer_store_dwordx4 v[{out+4*e}:{out+4*e+3}], v{V_VST}, s[{S_WS}:{S_WS+3}], s{so} offen offset:{e*1024 if V64 else (e&1)*3072}{STF}")]
def k_adv():
    return [f"s_add_u32 s{S_PK0}, s{S_PK0}, {8*STAGE}", f"s_add_u32 s{S_PK1}, s{S_PK1}, {8*STAGE}", f"s_add_u32 s{S_PKS}, s{S_PKS}, {4*384}"]
def v_adv():
    return [f"s_add_u32 s{r}, s{r}, {8*STAGE}" for r in (S_PV0, S_PV1, S_PV2)] + [f"s_add_u32 s{S_PVS}, s{S_PVS}, {8*64}"]
HT = {"ka": (k_ld, k_cv, 0, BX, V_RS[0], BX), "kb": (k_ld, k_cv, 1, BY, V_RS[1], BX),
      "va": (v_ld, v_cv, 0, BZ, V_RS[0], BZ), "vb": (v_ld, v_cv, 1, BY, V_RS[1], BZ)}
def flag_post(first=False):
    return [f"v_add_u32 v{V_FVAL}, 1, v{V_FVAL}"] + [
            VM("flag", f"buffer_store_dword v{V_FVAL}, v{V_FLAG}, s[{S_FLG}:{S_FLG+3}], 0 offen")] * (OPT["l2"] == 1 or (OPT["l2"] == 2 and first)) + [
            VM("flag", f"buffer_store_dword v{V_FVAL}, v{V_FLAG}, s[{S_FLG}:{S_FLG+3}], 0 offen offset:32 sc1")]
def poll_addr():
    return [f"v_bfe_u32 v{V_POLL+1}, v{V_DMA}, 4, 6", f"v_lshlrev_b32 v{V_POLL+1}, 2, v{V_POLL+1}"]
def poll_load():
    if OPT["pa"]: return [VM("poll", f"buffer_load_dword v{V_POLL}, v{V_T4}, s[{S_FLG}:{S_FLG+3}], s{S_FOFF} offen sc1")]
    return poll_addr() + [VM("poll", f"buffer_load_dword v{V_POLL}, v{V_POLL+1}, s[{S_FLG}:{S_FLG+3}], s{S_FOFF} offen sc1")]
def poll_test():
    return [f"v_subrev_u32 v{V_POLL}, s{S_NEED}, v{V_POLL}", f"v_cmp_lt_u32 vcc, 15, v{V_POLL}", "s_nop 0", f"s_and_b32 s{S_TP}, vcc_lo, 0xff"]
def smem_flags():
    return [f"s_buffer_load_dwordx8 s[{S_PT}:{S_PT+7}], s[{S_FLG}:{S_FLG+3}], s{S_FOFF} glc"]
def smem_reduce():
    return [f"s_sub_u32 s{S_PT+i}, s{S_PT+i}, s{S_NEED}" for i in range(8)] + [f"s_max_u32 s{S_PT}, s{S_PT}, s{S_PT+i}" for i in range(1, 8)]
def smem_test():
    return smem_flags() + ["s_waitcnt lgkmcnt(0)"] + smem_reduce() + [f"s_cmp_lt_u32 s{S_PT}, 16"]
def poll_slow(site):
    l = [f"L_pollslow{site}:"] + ([f"s_add_u32 s{S_TAG+1}, s{S_TAG+1}, {1 << (6 * site)}"] if OPT["stamp"] else [])
    l += [f"s_mov_b32 s{S_TP}, {60 if site == 0 else 200}", f"L_pollsm{site}:"] + smem_test() + [f"s_cbranch_scc1 L_pollok{site}",
          f"s_sub_u32 s{S_TP}, s{S_TP}, 1", f"s_cbranch_scc1 L_pollvec{site}", "s_sleep 1", f"s_branch L_pollsm{site}"]
    l += [f"L_pollvec{site}:"] + poll_addr() + [
            f"s_sub_u32 s{S_BUDGET}, s{S_BUDGET}, 1",
            f"s_cbranch_scc1 L_pollgiveup{site}",
            "s_sleep 2",
            f"buffer_load_dword v{V_POLL}, v{V_POLL+1}, s[{S_FLG}:{S_FLG+3}], s{S_FOFF} offen sc1",
            "s_waitcnt vmcnt(0)"]
    if site == 0 and OPT["l2"]:
        l += [f"s_bitcmp1_b32 s{S_NEED}, 9", "s_cbranch_scc1 L_nomix",
              f"v_xor_b32 v{V_POLL+1}, s{S_NEED}, v{V_POLL}", f"v_lshrrev_b32 v{V_POLL+1}, 5, v{V_POLL+1}", f"v_add_u32 v{V_POLL+1}, -1, v{V_POLL+1}",
              f"v_cmp_gt_u32 vcc, 31, v{V_POLL+1}", "s_nop 1", f"s_and_b32 s{S_TP}, vcc_lo, {'0xff' if OPT['l2'] == 3 else '0xff00'}", "s_cbranch_scc0 L_nomix"]
        l += fin([x for j in range(4) for x in k_st(j, BX)] + [x for e in range(NVE) for x in v_st(e, 112)])
        l += ["s_waitcnt vmcnt(0)", "s_barrier", f"s_and_b32 s{S_NEED}, s{S_NEED}, 0xfffffc00", f"s_add_u32 s{S_NEED}, s{S_NEED}, {16 << 5}",
              f"v_mov_b32 v{V_FVAL}, s{S_NEED}", f"s_add_u32 s{S_NEED}, s{S_NEED}, 1", f"s_mov_b32 s{S_FOFF}, 32"] + fin(flag_post()) + ["s_branch L_pollvec0", "L_nomix:"]
    l += poll_test() + [
            f"s_cbranch_scc1 L_pollvec{site}",
            f"s_branch L_pollok{site}",
            f"L_pollgiveup{site}:",
            f"s_mov_b32 s{S_BUDGET}, 0",
            f"s_branch L_pollok{site}"]
    return l
def tag_load():
    return [VM("tag", f"buffer_load_dword v{V_FVAL}, off, s[{S_DBG}:{S_DBG+3}], s{S_HOFF} sc1")]
def tag_check():
    return [f"s_cmp_lg_u32 s{S_WAVE}, 0", "s_cbranch_scc1 L_tagdone",
            f"v_readfirstlane_b32 s{S_TAG}, v{V_FVAL}", f"s_mov_b32 s{S_RET}, 100",
            "s_waitcnt lgkmcnt(0)", f"s_and_b32 s{S_OWN}, s{S_OWN}, 0xfffffc00",
            "L_tagretry:", f"s_cmp_eq_u32 s{S_TAG}, s{S_OWN}", f"s_cselect_b32 s{S_TAG}, 0, s{S_TAG}", f"s_cmp_lg_u32 s{S_TAG}, 0", "s_cbranch_scc1 L_tagok",
            f"s_sub_u32 s{S_RET}, s{S_RET}, 1", "s_cbranch_scc1 L_tagslow", "s_sleep 4",
            f"s_buffer_load_dword s{S_TAG}, s[{S_DBG}:{S_DBG+3}], s{S_HOFF} glc", "s_waitcnt lgkmcnt(0)", "s_branch L_tagretry",
            "L_tagok:", f"s_add_u32 s{S_TAG}, s{S_TAG}, s{S_XCC}", f"v_mov_b32 v{V_FVAL}, s{S_TAG}", f"v_mov_b32 v{V_T}, {RING}", DS("w", f"ds_write_b32 v{V_T}, v{V_FVAL}"), "L_tagdone:"]
def tag_get():
    return [f"v_mov_b32 v{V_T}, {RING}", DS("tg", f"ds_read_b32 v{V_T+1}, v{V_T}")]
def tag_use():
    return [f"v_readfirstlane_b32 s{S_NEED}, v{V_T+1}", f"s_add_u32 s{S_NEED}, s{S_NEED}, 1"]
def tag_slow():
    return ["L_tagslow:",
            f"s_sub_u32 s{S_BUDGET}, s{S_BUDGET}, 1",
            "s_cbranch_scc1 L_taggiveup",
            "s_sleep 2",
            f"buffer_load_dword v{V_FVAL}, off, s[{S_DBG}:{S_DBG+3}], s{S_HOFF} sc1",
            "s_waitcnt vmcnt(0)",
            f"v_readfirstlane_b32 s{S_TAG}, v{V_FVAL}", "s_nop 0", f"s_cmp_eq_u32 s{S_TAG}, s{S_OWN}", "s_cbranch_scc1 L_tagslow",
            f"s_cmp_eq_u32 s{S_TAG}, 0", "s_cbranch_scc1 L_tagslow",
            "s_branch L_tagok",
            "L_taggiveup:",
            f"s_mov_b32 s{S_BUDGET}, 0",
            "s_branch L_tagok"]

def text_of(x):
    return "s_waitcnt" if isinstance(x, (W, LG)) else (x.text if isinstance(x, (VM, DS)) else x)
def kind_of(x):
    t = text_of(x)
    if t.endswith(":"): return "label"
    if t.startswith("v_"): return "valu"
    if t.startswith("ds_"): return "ds"
    if t.startswith("buffer_store"): return "store"
    if t.startswith("buffer_"): return "load"
    return "salu"
def cost_of(x):
    k = kind_of(x); t = text_of(x)
    if k == "label": return 0
    if k == "store": return 20 if "x4" in t else (OPT["x2c"] if "x2" in t else 16 if "x3" in t else 8)
    if k == "load": return OPT["ldc"]
    if t.startswith("ds_write"): return 16 if ("b128" in t or "write2" in t) else 8
    if t.startswith(("v_exp", "v_rcp")): return 8
    if t.startswith("v_mfma"): return 32 if "x4_f32" in t else 8
    if t.startswith("s_nop"): return 4 * (int(t.split()[1]) + 1)
    if t.startswith("s_cbranch") or t.startswith("s_branch"): return 12
    if t.startswith("s_barrier"): return 8
    return 4
def gap_time(ops):
    t = 4; prev = None
    for o in ops:
        if o is None: continue
        k = kind_of(o)
        if k == "label": continue
        if k == "salu": t += cost_of(o)
        else: t = max(t, 8) + cost_of(o) + (8 if (k != "valu" and prev == "valu") else 0)
        prev = k
    return t

class Stream:
    def __init__(self, ops, first, last, maxper=99, dense=0):
        self.nb = {}; self.dl = []; l = []
        for o in ops:
            if isinstance(o, tuple):
                if o[0] == "nb": self.nb[len(l)] = o[1]
                else: self.dl.append((len(l), o[1]))
            else: l.append(o)
        ops = l
        self.ops = list(ops); self.first = first; self.last = last; self.maxper = maxper; self.dense = dense
        self.total = sum(cost_of(o) for o in self.ops); self.done = 0; self.i = 0
        self.gate = {}; self.i0 = 0

def pack(NG, A, B, C, T, streams, novm=(), nosalu=(), vmgap=4, light=()):
    out = []; over = 0; lastvm = -99
    for g in range(NG):
        a, b, c, tl = list(A[g]), list(B[g]), list(C[g]), list(T[g])
        cnt = {}; inC = set(); blocked = set()
        while True:
            best = None; bl = None; bsec = None
            for st in streams:
                if st.i >= len(st.ops) or g < st.first: continue
                if g < st.nb.get(st.i, 0): continue
                force = g >= st.last or any(st.i < n and g >= dg for n, dg in st.dl)
                if (cnt.get(id(st), 0) >= st.maxper or id(st) in blocked) and not force: continue
                o = st.ops[st.i]; k = kind_of(o); cst = cost_of(o)
                if k == "salu" and g in nosalu:
                    assert not force, (g, text_of(o))
                    continue
                if k in ("load", "store") and (g in novm or g - lastvm < vmgap) and not force: continue
                if k in ("load", "store", "ds"):
                    sec = "b" if id(st) not in inC and id(st) not in blocked else "c"
                    if sec == "c" and not force: continue
                elif k == "salu" and not a and cnt.get(id(st), 0) == 0:
                    sec = "a"
                else: sec = "c"
                tgt = st.total * (g - st.first + 1) / (st.last - st.first + 1)
                lag = tgt - st.done
                if not force:
                    if lag < cst / 2 - OPT["ahead"] and cst: continue
                    trial = (a + [o] if sec == "a" else a) + (b + [o] if sec == "b" else b) + (c + [o] if sec == "c" else c) + tl
                    gt = gap_time(trial)
                    if g in light and gt > 12 and k != "salu" and lag < OPT["llag"]: continue
                    if gt > 16:
                        if g % 2 == 0: continue
                        big = k == "store" or text_of(o).startswith(("ds_write_b128", "ds_write2"))
                        lim = max(20, st.dense) if lag > 24 else 16
                        if big and not (a + b + c + tl): lim = 32
                        if gt > lim: continue
                key = (force, k in ("load", "store"), lag / max(1, (st.last - g + 1)) ** 0.5)
                if best is None or key > bl: best = st; bl = key; bsec = sec
            if best is None: break
            o = best.ops[best.i]
            if bsec == "a": a.append(o)
            elif bsec == "b":
                b.append(o)
            else: c.append(o)
            if bsec == "c" or bsec == "b" and kind_of(o) != "ds" and False: inC.add(id(best))
            if bsec == "c": inC.add(id(best))
            if " m0," in text_of(o): blocked.add(id(best))
            if kind_of(o) in ("load", "store"): lastvm = g
            best.i += 1; best.done += cost_of(o); cnt[id(best)] = cnt.get(id(best), 0) + 1
        ops = a + b + c + tl
        tt = gap_time(ops)
        if tt > 16: over += tt - 16
        out.append(ops)
    for st in streams: assert st.i == len(st.ops)
    return out, over

def pack_dense(NG, A, B, C, T, streams, novm=(), nosalu=(), vmgap=2):
    jobs = []
    for st in streams:
        r = st.first; rel = []
        for i in range(len(st.ops)):
            r = max(r, st.nb.get(i, 0)); rel.append(r)
        for i, o in enumerate(st.ops):
            d = min([st.last] + [dg for n, dg in st.dl if i < n])
            k = kind_of(o)
            jobs.append([rel[i], d, cost_of(o) + (OPT["dx"] if k in ("store", "load") else 0) - (2 if k == "salu" else 0)])
    for g in range(NG): jobs.append([g, g, max(0, gap_time(A[g] + B[g] + C[g] + T[g]) - 8)])
    level = [None] * NG
    while jobs:
        free = [g for g in range(NG) if level[g] is None]
        pts_r = sorted({j[0] for j in jobs}); pts_d = sorted({j[1] for j in jobs})
        best = None
        for a_ in pts_r:
            ws = sorted((j[1], j[2]) for j in jobs if j[0] >= a_)
            w = 0; i = 0
            for b_ in pts_d:
                if b_ < a_: continue
                while i < len(ws) and ws[i][0] <= b_: w += ws[i][1]; i += 1
                n = sum(1 for g in free if a_ <= g <= b_)
                if n and (best is None or w / n > best[0]): best = (w / n, a_, b_)
        dn, a_, b_ = best
        if dn <= 8: break
        for g in free:
            if a_ <= g <= b_: level[g] = dn
        jobs = [j for j in jobs if not (j[0] >= a_ and j[1] <= b_)]
    extra = [2 * (level[g] - 8) if (level[g] is not None and g % 2) else 0 for g in range(NG)]
    return pack_dense1(NG, A, B, C, T, streams, novm, nosalu, vmgap, extra)
def pack_dense1(NG, A, B, C, T, streams, novm, nosalu, vmgap, extra):
    out = []; over = 0; lastvm = -99
    fixed = [gap_time(A[g] + B[g] + C[g] + T[g]) - (8 if not (B[g] + C[g] + T[g]) else 8) for g in range(NG)]
    for g in range(NG):
        a, b, c, tl = list(A[g]), list(B[g]), list(C[g]), list(T[g])
        carry = (carry if g else 0) + extra[g]
        bud = 16 + (carry if g % 2 else 0)
        blocked = set(); inC = set()
        for st in streams: st.i0 = st.i
        while True:
            best = None; bl = None
            cur = gap_time(a + b + c + tl)
            for st in streams:
                if st.i >= len(st.ops) or g < st.first or g < st.nb.get(st.i, 0): continue
                if st.i in st.gate:
                    o_, j_ = st.gate[st.i]
                    if (o_.i0 if (kind_of(st.ops[st.i]) == "store" and g < NG - 1) else o_.i) <= j_: continue
                    if o_.i0 <= j_: inC.add(id(st))
                force = g >= st.last or any(st.i < n and g >= dg for n, dg in st.dl)
                if id(st) in blocked and not force: continue
                o = st.ops[st.i]; k = kind_of(o)
                if k == "salu" and g in nosalu:
                    assert not force
                    continue
                mem = k in ("load", "store", "ds")
                if k in ("load", "store") and (g in novm or g - lastvm < vmgap) and not force: continue
                sec = "b" if (mem and id(st) not in inC) else ("a" if (k == "salu" and not a and id(st) not in inC and id(st) not in blocked and not any(x is st for x in ())) else "c")
                if sec == "a" and any(id(st) == y for y in inC): sec = "c"
                if mem and sec == "c" and not force: continue
                trial = gap_time((a + [o] if sec == "a" else a) + (b + [o] if sec == "b" else b) + (c + [o] if sec == "c" else c) + tl)
                if not force and trial > bud and not (cur < 16 and trial <= bud + 12 and g % 2): continue
                tgt = st.total * (g - st.first + 1) / (st.last - st.first + 1)
                n_, dd = min([(len(st.ops), st.last)] + [(n, dg) for n, dg in st.dl if st.i < n], key=lambda x: x[1])
                need = sum(cost_of(x) for x in st.ops[st.i:n_]) / max(1, dd - g + 1)
                key = (force, mem, need)
                if best is None or key > bl: best = st; bl = key; bsec = sec
            if best is None: break
            o = best.ops[best.i]
            {"a": a, "b": b, "c": c}[bsec].append(o)
            if bsec == "c" or (bsec == "b"):
                if bsec == "c": inC.add(id(best))
                else: usedb = True
            if bsec in ("a", "b"): best._g = g
            if " m0," in text_of(o): blocked.add(id(best))
            if kind_of(o) in ("load", "store"): lastvm = g
            best.i += 1; best.done += cost_of(o)
            if bsec == "b" and not a: a.append(None)
        a = [x for x in a if x is not None]
        ops = a + b + c + tl
        tt = gap_time(ops)
        carry = max(0, carry - max(0, tt - 16)) if extra[g] or g % 2 == 0 else 0
        if tt > 16: over += tt - 16
        out.append(ops)
    for st in streams: assert st.i == len(st.ops)
    return out, over

POLLSITES = []
def gen_seg(name, groups, nxt, sm=(), bars=(), tasks=(), dma=(), extra=(), endops=(), fixed=(), peel=True, vmgap=None):
    starts = []; n = 0
    for g in groups: starts.append(n); n += len(g.mf)
    NG = n
    A = [[] for _ in range(NG)]; B = [[] for _ in range(NG)]; C = [[] for _ in range(NG)]; T = [[] for _ in range(NG)]
    streams = []; novm = set(range(0, NG, 2)); nosalu = set()
    allg = list(groups) + list(nxt)
    assert len(groups) % 3 == 0
    for i, g in enumerate(groups):
        g0 = starts[i]; ln = len(g.mf)
        if i + 2 < len(allg):
            t = allg[i + 2]
            if not (OPT["ab"] & 4 and name.startswith("k") and i % 2): B[g0].append(rd_op(i + 2, 0, t)); B[g0 + ln // 2].append(rd_op(i + 2, 1, t))
            if t.reb:
                assert g0 > 0
                C[g0 - 1] += t.reb
        if i + 1 < len(allg):
            A[g0 + ln - 1].append(LG(("fr", (2 * i + 2) % NFS), ("fr", (2 * i + 3) % NFS)))
    for ops, f, l in sm: streams.append(Stream(ops, f, l))
    streams += list(extra)
    if endops:
        A[NG-4] += endops[:1]; A[NG-2] += [A[NG-1][0]] + list(endops[1:-1]); A[NG-1] = []; T[NG-1] = list(endops[-1:]); nosalu |= {NG-2, NG-1}
    for grp in dma:
        dl = []
        for part, pos in grp[:-2]: dl += dma_tile(part, pos, peel)
        k = max(i for i, x in enumerate(dl) if isinstance(x, VM)) + 1
        lim = NG - 3 if endops else NG - 1
        if grp[-1] + 1 > lim: k = len(dl)
        streams.append(Stream(dl[:k], grp[-2], grp[-1], maxper=2))
        if dl[k:]: streams.append(Stream(dl[k:], grp[-1] + 1, min(lim, grp[-1] + 12), maxper=2))
    bars = [(g, list(tg)) for g, tg in bars]
    for t in tasks:
        k_ = t[0]
        if k_ == "vst" and t[1] >= NVE: continue
        if k_ == "cv":
            _, cv, h, buf, rs, outb = HT[t[1]]
            ops = cv(h, buf, rs, outb)[t[2]:t[3]]
            if t[2] == 0: ops = [W(t[1])] + ops
            streams.append(Stream(ops, t[4], t[5]))
        elif k_ in ("kst", "vst"):
            grp = k_st(t[1], BX, pre=OPT["pa"]) if k_ == "kst" else v_st(t[1], BZ)
            g = t[2]; assert not B[g] and not A[g], (name, g)
            B[g].append(grp[-1]); novm |= set(range(g - OPT["sb"], g + OPT["sa"] + 1))
            if grp[:-1]: streams.append(Stream(grp[:-1], max(0, g - 5), g - 1))
        elif k_ in ("ld", "ldn"):
            ld, _, h, buf, rs, _o = HT[t[1]]
            adv = {"ka": k_adv(), "va": v_adv()}.get(t[1], []) if k_ == "ld" else []
            ops = ld(h, buf, rs, t[1])
            if len(t) > 4: ops = ops[2:] if t[4] == "raw" else ops[:2]
            streams.append(Stream(adv + ops, t[2], t[3], maxper=1))
        elif k_ == "post":
            bi = t[2] if len(t) > 2 else -1
            bars[bi][1].append(t[1])
            streams.append(Stream(flag_post(), bars[bi][0] + 1, min(NG - 3, bars[bi][0] + 14), maxper=1))
        elif k_ == "pf":
            streams.append(Stream([VM("pf", f"buffer_load_dword v{V_T4}, v{V_DMA}, s[{S_DBG}:{S_DBG+3}], s{S_HOFF} offen")], t[1], t[2]))
        elif k_ == "rld":
            streams.append(Stream([VM("rs", f"buffer_load_dwordx4 v[{V_T4}:{V_T4+3}], v{V_DMA}, s[{S_WS}:{S_WS+3}], s{S_RC} offen sc1")], t[1], t[2]))
        elif k_ == "rst":
            g = t[1]; assert g % 2 == 1 and not B[g] and not A[g] and not A[g - 1], (name, g)
            A[g - 1].append(W("rs")); B[g].append(VM("rs2", f"buffer_store_dwordx4 v[{V_T4}:{V_T4+3}], v{V_DMA}, s[{S_WS}:{S_WS+3}], s{S_RC} offen sc1"))
            novm |= set(range(g - OPT["sb"], g + OPT["sa"] + 1))
            streams.append(Stream([f"s_add_u32 s{S_RC}, s{S_RC}, s{S_RD}", f"s_sub_u32 s{S_RD}, 1024, s{S_RD}"], g + 1, g + 8, maxper=1))
        elif k_ == "pollld": streams.append(Stream(poll_load(), t[1], t[2], maxper=1))
        elif k_ == "pollchk":
            ps = len(POLLSITES); POLLSITES.append(ps)
            g = t[1]; assert g % 4 == 1
            pt = poll_test()
            A[g] += [W("poll")]; T[g] += pt[:2]; novm |= {g, g + 4}
            A[g + 3] += [pt[3]]; A[g + 4] += [f"s_cbranch_scc1 L_pollslow{ps}", f"L_pollok{ps}:"]; nosalu |= {g + 3, g + 4}
            A[g + 5] += [f"s_add_u32 s{S_NEED}, s{S_NEED}, 1"]
        elif k_ == "spollld": A[t[1]] += smem_flags()
        elif k_ == "spollchk":
            ps = len(POLLSITES); POLLSITES.append(ps)
            A[t[1]] += ["s_waitcnt lgkmcnt(0)"]
            streams.append(Stream(smem_reduce(), t[1] + 1, t[2] - 1, maxper=3))
            A[t[2]] += [f"s_cmp_ge_u32 s{S_PT}, 16", f"s_cbranch_scc1 L_pollslow{ps}", f"L_pollok{ps}:", f"s_add_u32 s{S_NEED}, s{S_NEED}, 1"]
        elif k_ == "step": streams.append(Stream(rd_step(t[1]), t[2], t[3], maxper=1))
        elif k_ == "q": streams.append(Stream(q_dma(t[1]), t[2], t[3], maxper=2))
        else: raise Exception(k_)
    for g, tags in bars:
        i = [j for j in range(len(groups)) if starts[j] + len(groups[j].mf) - 1 == g]
        assert i, (name, g)
        if len(groups[i[0]].mf) == 8:
            A[g - 2] += A[g]; A[g] = []
            if tags: A[g - 1] += [W(*tags)]
        elif tags: A[g - 2] += [W(*tags)]
        A[g] += ["s_barrier"]; novm |= {g}
    for g, sec, ops in fixed: {"A": A, "B": B, "C": C, "T": T}[sec][g] += ops
    if endops:
        for st_ in streams: st_.last = min(st_.last, NG - 2)
    m0w = sorted((st.first, st.last) for st in streams if any(" m0," in text_of(o) for o in st.ops))
    assert all(m0w[i][1] < m0w[i + 1][0] for i in range(len(m0w) - 1)), (name, m0w)
    if name in str(OPT["dense"]).split(","): fill, over = pack_dense(NG, A, B, C, T, streams, novm, nosalu, vmgap or OPT["dvg"])
    else:
        fill, over = pack(NG, A, B, C, T, streams, novm, nosalu, vmgap or OPT["vmgap"])
        if OPT["twop"] and name[0] in "kz":
            vg = {g for g in range(NG) if any(kind_of(o) in ("load", "store") for o in fill[g])}
            for st_ in streams: st_.i = 0; st_.done = 0
            fill, over = pack(NG, A, B, C, T, streams, set(novm) | (set(range(NG)) - vg), nosalu, vmgap or OPT["vmgap"], {g - 1 for g in vg})
    if over: print(f"seg {name}: over budget by {over} cycles", file=sys.stderr)
    out = istamp(name)
    g = 0
    for i, gr in enumerate(groups):
        for j, d, b, c in gr.mf:
            if (OPT["pvs"] & 1 and d[0] in "a ") or (OPT["pvs"] & 2 and d.startswith("v")): out.append(f"{MF} {d}, {b}, {FR(2*i+j)}, {c}")
            else: out.append(f"{MF} {d}, {FR(2*i+j)}, {b}, {c}")
            out += fill[g]; g += 1
    return with_nop(out)

GBAR = 79
def seg_groups(it):
    return qk_full(it + 1) if it % 2 else pv_seq(it - 2)
def gen_iter(it, tasks=(), dma=(), name=None, endops=(), peel=False, nxt=None, extra=(), bars=None, groups=None, sm=None, step=True):
    q = it % 2
    smB = softmax_part(it, 1); smA = softmax_part(it + 1, 0)
    if sm is None: sm = ([(smB + [("dl", 57), ("nb", 47)] + smA, 0, 95)] if OPT["flex"] else [(smB, 0, 50), (smA, 52, 95)]) if q else [(smB + smA, 0, 95)]
    need = [("dv", (it - 1) % 8), ("dv", it % 8)] if q else [("dk", (it + 2) % 8), ("dk", (it + 3) % 8)]
    tasks = list(tasks) + ([("step", "p" if q else "q", 30, GBAR - 3)] if step else [])
    return gen_seg(name or f"i{it}", groups or seg_groups(it), nxt if nxt is not None else seg_groups(it + 1)[:2], sm,
                   bars if bars is not None else [(GBAR, need)], tasks, dma, extra, endops, peel=peel)

K_ = lambda *j: tuple(("k", x) for x in j)
V_ = lambda *j: tuple(("v", x) for x in j)
def steady(k):
    ckv, ckk = OPT["ckv"], OPT["ckk"]
    plv, plk = OPT["plv"], OPT["plk"]
    if OPT["bal"]:
        c = [int(x) for x in str(OPT["cut"]).split(",")]
        a1, a2, b1, b2, v1, v2, w1 = c
        return {
            5: ([("cv", "ka", 0, a1, OPT["w5"], 95), ("pollchk", 1), ("vst", 0, 9), ("vst", 1, 17), ("vst", 2, 25), ("vst", 3, 33), ("post", "vst")], [K_(0, 1) + (41, 74)]) if ckk == 1 else
               ([("cv", "ka", 0, a1, 0, 95), ("pollchk", ckk), ("vst", 0, 1), ("vst", 1, 9), ("vst", 2, 17), ("vst", 3, 25), ("post", "vst")], [K_(0, 1) + (ckk + 7, 92)]),
            6: ([("cv", "ka", a1, a2, 0, 95), ("ld", "kb", 0, 44)] + [("rld", 70, 92)] * OPT["rs"], [K_(2, 3) + (0, 90)]),
            7: ([("cv", "ka", a2, 99, 0, 60 if b1 < 12 else 44), ("cv", "kb", 0, b1, 61 if b1 < 12 else 45, 95), ("ld", "va", 11, OPT["lva"]), ("pollld", plv, plv + 8)], [K_(4, 5) + (11, 92)]),
            0: ([("cv", "kb", b1, b2, 0, 95), ("pollchk", ckv)] + [("rst", 81)] * OPT["rs"], [V_(0, 1) + (ckv + 7, 74)]),
            1: ([("cv", "kb", b2, 99, 0, 30), ("cv", "va", 0, v1, 31, 95), ("ld", "vb", 32, 80)], [V_(2, 3) + (0, GBAR - 5)]) if b2 < 56 else
               ([("cv", "va", 0, v1, 20, 95), ("ld", "vb", 0, 40)], [V_(2, 3) + (0, 90)]),
            2: ([("cv", "va", v1, v2, 0, 95), ("kst", 0, 1), ("kst", 1, 9), ("kst", 2, 17), ("kst", 3, 25), ("post", "kst")], [K_(6, 7) + (33, 74)]),
            3: ([("cv", "va", v2, 99, 0, 50), ("cv", "vb", 0, w1, 51, 95), ("ld", "ka", 0, 44)], [V_(4, 5) + (0, 90)]),
            4: ([("cv", "vb", w1, 99, 0, 95), ("pollld", plk, plk + 16)] + ([("pf", 80, 92)] if OPT["pf2"] else []), [V_(6, 7) + (0, GBAR - 5)]),
        }[k]
    return {
        1: ([("cv", "va", 0, 22, 0, 95), ("ld", "vb", 0, 44)], [V_(2, 3) + (0, GBAR - 5)]),
        2: ([("cv", "va", 22, 99, 0, 95), ("kst", 0, 1), ("kst", 1, 9), ("kst", 2, 17), ("kst", 3, 25), ("post", "kst")], [K_(6, 7) + (33, 74)]),
        3: ([("cv", "vb", 0, 22, 0, 95), ("ld", "ka", 0, 44)], [V_(4, 5) + (0, GBAR - 5)]),
        4: ([("cv", "vb", 22, 99, 0, 95), ("pollld", plk, plk + 16)] + ([("pf", 80, 92)] if OPT["pf2"] else []), [V_(6, 7) + (0, GBAR - 5)]),
        5: ([("cv", "ka", 0, 16, 0, 95), ("pollchk", 1), ("vst", 0, 9), ("vst", 1, 17), ("vst", 2, 25), ("vst", 3, 33), ("post", "vst")], [K_(0, 1) + (41, 74)]),
        6: ([("cv", "ka", 16, 99, 0, 95), ("ld", "kb", 0, 30)], [K_(2, 3) + (31, 74)]),
        7: ([("cv", "kb", 0, 24, 40, 95), ("ld", "va", 11, 40), ("pollld", plv, plv + 8)], [K_(4, 5) + (41, 90)]),
        0: ([("cv", "kb", 24, 99, 0, 95), ("pollchk", ckv)], [V_(0, 1) + (ckv + 7, ckv + 44)]),
    }[k]

GA = V_RS[0]; TA = V_RS[0] + 1; BA = V_RS[0] + 2
RL = [V_CT, V_CT + 4, NEGM(0), NEGM(1)]
S_EO = 24
def epi_addr():
    return [f"v_bfe_u32 v{TA}, v{V_DMA}, 8, 2", f"v_mul_u32_u24 v{GA}, 1536, v{TA}", f"v_lshlrev_b32 v{BA}, 4, v{TA}",
            f"v_bfe_u32 v{TA}, v{V_DMA}, 4, 4", f"v_mul_u32_u24 v{TA}, {12 if V64 else 8}, v{TA}", f"v_add_u32 v{GA}, v{GA}, v{TA}", f"v_mov_b32 v{TA}, 1.0"] + [f"v_mov_b32 v{ONES+i}, 0x3f803f80" for i in range(4 * OPT["lmf"])] + [
            f"s_lshl_b32 s{S_EO}, s{S_QB}, 2", f"s_add_u32 s{S_EO}, s{S_EO}, s{S_WAVE}", f"s_mul_i32 s{S_EO}, s{S_EO}, {STAGE}",
            f"s_add_u32 s{S_QL}, s{S_EO}, 6144", f"s_add_u32 s{S_QS}, s{S_EO}, 12288", f"s_add_u32 s{S_TAG}, s{S_EO}, 18432"]
S_EQ = [S_EO, S_QL, S_QS, S_TAG]
def epi_l(qs, gap=("s_nop 7", "s_nop 1"), acc=False):
    fl = [f"v_mfma_f32_16x16x4_f32 v[{RL[q]}:{RL[q]+3}], v{V_L[q]}, v{TA}, " + (f"v[{RL[q]}:{RL[q]+3}]" if acc else "0") for q in qs] + list(gap)
    return fl + [f"v_rcp_f32 v{RL[q]+r}, v{RL[q]+r}" for q in qs for r in range(4)]
class Epi:
    def __init__(self, temps): self.temps = temps; self.n = 0; self.pend = []
    def flush(self, k=99):
        p = self.pend[:k]; self.pend = self.pend[k:]
        return p
    def chunk(self, qb, n, pk=False, inv=False):
        p = []
        if V64:
            for r in range(4):
                o = self.temps[self.n % len(self.temps)]; self.n += 1; rl = RL[qb] + r
                p += [f"v_accvgpr_read_b32 v{o+e}, a{O(qb,6*n+e)+r}" for e in range(6)]
                if pk: p += [f"v_pk_mul_f32 v[{o+2*i}:{o+2*i+1}], v[{o+2*i}:{o+2*i+1}], v[{rl&~1}:{(rl&~1)+1}] " + ("op_sel:[0,1] op_sel_hi:[1,1]" if rl & 1 else "op_sel_hi:[1,0]") for i in range(3)]
                else: p += [f"v_mul_f32 v{o+e}, v{o+e}, v{rl}" for e in range(6)]
                p += [f"v_cvt_pk_bf16_f32 v{o+i}, v{o+2*i}, v{o+2*i+1}" for i in range(3)] + self.flush(1)
                self.pend.append(VM("out", f"buffer_store_dwordx3 v[{o}:{o+2}], v{GA}, s[{S_OUT}:{S_OUT+3}], s{S_EQ[qb]} offen offset:{n*192 + r*384}{OF}"))
            return p
        ob = self.temps[self.n % len(self.temps)]; self.n += 1
        for r in range(4):
            o = ob + 4 * r
            if inv:
                p += [f"v_mul_f32 v{o+e}, v{OV(qb,3*e+n)+r}, v{RL[qb]+r}" for e in range(4)]
                p += [f"v_cvt_pk_bf16_f32 v{o+i}, v{o+2*i}, v{o+2*i+1}" for i in range(2)] + self.flush(1)
                self.pend.append(VM("out", f"buffer_store_dwordx2 v[{o}:{o+1}], v{GA}, s[{S_OUT}:{S_OUT+3}], s{S_EQ[qb]} offen offset:{n*128 + r*384}{OF}"))
                continue
            p += [f"v_accvgpr_read_b32 v{o+e}, a{O(qb,3*e+n)+r}" for e in range(4)]
            rl = RL[qb] + r
            if pk: p += [f"v_pk_mul_f32 v[{o+2*i}:{o+2*i+1}], v[{o+2*i}:{o+2*i+1}], v[{rl&~1}:{(rl&~1)+1}] " + ("op_sel:[0,1] op_sel_hi:[1,1]" if rl & 1 else "op_sel_hi:[1,0]") for i in range(2)]
            else: p += [f"v_mul_f32 v{o+e}, v{o+e}, v{rl}" for e in range(4)]
            p += [f"v_cvt_pk_bf16_f32 v{o+i}, v{o+2*i}, v{o+2*i+1}" for i in range(2)]
            p += self.flush(1)
            self.pend.append(VM("out", f"buffer_store_dwordx2 v[{o}:{o+1}], v{GA}, s[{S_OUT}:{S_OUT+3}], s{S_EQ[qb]} offen offset:{n*128 + r*384}{OF}"))
        return p

def gen_tail():
    sp = softmax_part
    g57 = qk_half(58) + rebase(qk_half(59), V_RDK, A0 - A2)
    g58 = pv_seq(56)
    g59 = rebase(qk_half(60), V_RDK, A1 - A0) + rebase(qk_half(61), V_RDK, A2 - A1)
    g60 = rebase(pv_seq(58), [V_RD], B2 - B1) + rebase(pv_seq(59), [V_RD], B0 - B2)
    g61 = rebase(pv_seq(60), [V_RD], B1 - B0) + rebase(qk_half(62), V_RDK, A0 - A2)
    g62 = rebase(qk_half(63), V_RDK, A1 - A0) + ([] if OPT["f3"] else rebase(pv_seq(61), [V_RD], B2 - B1))
    g63 = []
    for dbs in ([chunk_dbs(0), [6, 7, 8], [9, 10, 11]] if V64 else [chunk_dbs(n) for n in range(3)]):
        if OPT["f3"]: g63 += [pv_grp(61, db, va=V_RD3) for db in dbs]
        g63 += [pv_grp(62, db) for db in dbs] + [pv_grp(63, db, va=V_RD2) for db in dbs]
    if OPT["f3"]: g63[0].reb += [f"v_add_u32 v{V_RD3}, {B2 - B1}, v{V_RD}", f"v_mov_b32 v{V_RD2}, v{V_RD}", f"v_subrev_u32 v{V_RD}, {B1 - B0}, v{V_RD}"]
    else: g63[0].reb += [f"v_subrev_u32 v{V_RD2}, {B2 - B1}, v{V_RD}", f"v_subrev_u32 v{V_RD}, {B2 - B0}, v{V_RD}"]
    first57 = g57[:2]
    p = []
    p += gen_seg("S57", g57, g58[:2], [(sp(57, 1) + [("dl", 50), ("nb", 28)] + sp(58, 0), 0, 95)], [(7, [("dk", 5)]), (GBAR, [("dv", 0), ("dv", 1)])],
                 [("step", "p", 30, GBAR - 3)], [(K_(62, 63) + (8, 60)) if OPT["tv"] else (K_(62, 63) + V_(58, 59) + (8, 90))], peel=False)
    p += gen_seg("S58", g58, g59[:2], [(sp(58, 1) + sp(59, 0), 0, 95), (epi_addr(), 0, 95)], [(GBAR, [("dk", 7)] if OPT["tv"] else [("dk", 7), ("dv", 3)])], [],
                 [(V_(58, 59, 60, 61) + (0, 74)) if OPT["tv"] else (V_(60, 61) + (0, 60))], peel=False)
    p += gen_seg("S59", g59, g60[:2], [(sp(59, 1) + [("dl", 50), ("nb", 28)] + sp(60, 0), 0, 95)], [(15, [("dv", 5)])], [], [V_(62, 63) + (16, 60)], peel=False)
    p += gen_seg("S60", g60, g61[:2], [(sp(60, 1) + sp(61, 0), 0, 95)], [(GBAR, [("dv", 7)])])
    ep = Epi([BX + 6 * i for i in range(5)] if V64 else [BX] if OPT["omv"] else [BX, BY])
    e01 = [x for qb in (0, 1) for n in range(NCH) for x in ep.chunk(qb, n, OPT["pk"])] + ep.flush()
    chk = [f"v_max3_f32 v{V_T+2}, v{V_L[0]}, v{V_L[1]}, v{V_L[2]}", f"v_max_f32 v{V_T+2}, v{V_T+2}, v{V_L[3]}",
           f"s_mov_b32 s{S_TMP}, 0x{f32bits(2.0**OPT['thr']):08x}", f"v_cmp_lt_f32 s[{S_PT}:{S_PT+1}], s{S_TMP}, v{V_T+2}"]
    c = [ep.chunk(2, j, OPT["pk"]) + ep.chunk(3, j, OPT["pk"]) + ep.flush() for j in range(NCH - 1)] + [[]]
    sm = sp(61, 1) + epi_l((0, 1), [])[2:] + [("dl", 50), ("nb", 76)] + sp(62, 0) + [("nb", 98)] + sp(62, 1) + [("nb", 124)] + sp(63, 0) + [("nb", 148)] + sp(63, 1) + [("dl", 205)] + chk + [("nb", 214)] + epi_l((2, 3), [])[2:]
    ee = e01 + [("nb", 228)] + c[0] + [("nb", 260)] + c[1]
    lastsm = 220
    if OPT["f3"]:
        sm = sp(61, 1) + epi_l((0, 1), [])[2:] + [("dl", 50), ("nb", 76)] + sp(62, 0) + [("nb", 98)] + sp(62, 1) + [("dl", 157), ("nb", 124)] + sp(63, 0) + [("nb", 148)] + sp(63, 1) + [("dl", 173)] + chk + [("nb", 182)] + epi_l((2, 3), [])[2:]
        ee = e01 + [("dl", OPT["ed"]), ("nb", 196)] + c[0] + [("dl", OPT["ed1"]), ("nb", 244)] + c[1]
        lastsm = 190
        if V64:
            lm = OPT["lmf"]
            sm = sp(61, 1, lm) + epi_l((0, 1), [])[2:] + [("dl", 50), ("nb", 76)] + sp(62, 0, lm) + [("nb", 98)] + sp(62, 1, lm) + [("dl", 165), ("nb", 124)] + sp(63, 0, lm) + [("nb", 148)] + sp(63, 1, lm) + [("dl", 187 if lm else 189)]
            if lm:
                chk = [f"v_max3_f32 v{V_T+2}, v{V_L[0]}, v{V_L[1]}, v{RL[2]}"] + [f"v_max3_f32 v{V_T+2}, v{V_T+2}, v{a_}, v{a_+1}" for a_ in (RL[2] + 1, RL[2] + 3, RL[3] + 1)] + [f"v_max_f32 v{V_T+2}, v{V_T+2}, v{RL[3]+3}"] + chk[2:]
                sm += [("nb", 198)] + chk + epi_l((2, 3), [])[2:]
            else: sm += chk + [("nb", 198)] + epi_l((2, 3), [])[2:]
            ee = e01 + [("dl", OPT["ed"] + 20), ("nb", 220)] + c[0]
            lastsm = 206
    if OPT["sst"]:
        prod = []; ev = []
        for x in ee:
            if isinstance(x, VM): prod.append(x)
            else: ev.append(x)
        es = Stream(ev, 52, 286); ss = Stream(prod, 52, 287)
        cv = [i for i, x in enumerate(es.ops) if text_of(x).startswith("v_cvt_pk")][(2 if V64 else 1)::(3 if V64 else 2)]
        rd = [i for i, x in enumerate(es.ops) if text_of(x).startswith("v_accvgpr_read")][0::(6 if V64 else 4)]
        assert len(cv) == len(prod) == len(rd)
        for k in range(len(prod)):
            ss.gate[k] = (es, cv[k]); ss.nb[k] = max([0] + [gp for i, gp in es.nb.items() if i <= cv[k]])
            kk = k + (1 if V64 else 4) * len(ep.temps)
            if kk < len(prod): es.gate[rd[kk]] = (ss, k)
        xs = [es, ss]
        LT = [96, 102, 108, 114, 120, 64, 70, 144]
        if V64: xs.append(Stream([x for q in (2, 3) for r in range(4) for x in [f"v_accvgpr_read_b32 v{LT[4*(q-2)+r]+e}, a{O(q,6+e)+r}" for e in range(3)] +
                                  [f"v_mul_f32 v{LT[4*(q-2)+r]+e}, v{LT[4*(q-2)+r]+e}, v{RL[q]+r}" for e in range(3)]], 256, 287))
        if OPT["omv"]: xs.append(Stream([f"v_accvgpr_read_b32 v{OV(q, db)+r}, a{O(q, db)+r}" for q in (2, 3) for db in (2, 5, 8, 11) for r in range(4)], 0, 140))
    else: xs = [Stream(ee, 52, 287)]
    p += gen_seg("S61", g61 + g62 + g63, [], [(sm, 0, lastsm)], extra=xs,
                 fixed=[(1, "T", epi_l((0, 1))[:1]), (3, "T", epi_l((0, 1))[1:2]), (lastsm - 15, "T", epi_l((2, 3), acc=V64 and OPT["lmf"])[:1]), (lastsm - 13, "T", epi_l((2, 3), acc=V64 and OPT["lmf"])[1:2]), (lastsm + 5, "A", [f"s_cmp_lg_u64 s[{S_PT}:{S_PT+1}], 0", "s_cbranch_scc1 L_slow"]), (95, "T", istamp("S62")), (191, "T", istamp("S63"))])
    p += istamp("fin") + ["s_nop 7"]
    if OPT["omv"]: ep.temps = [UNIT[0], UNIT[1]]
    if V64:
        for q in (2, 3):
            for r in range(4):
                o = LT[4 * (q - 2) + r]
                p += [f"v_accvgpr_read_b32 v{o+e}, a{O(q,6+e)+r}" for e in range(3, 6)] + [f"v_cvt_pk_bf16_f32 v{o}, v{o}, v{o+1}"]
                p += [f"v_mul_f32 v{o+e}, v{o+e}, v{RL[q]+r}" for e in range(3, 6)] + [f"v_cvt_pk_bf16_f32 v{o+i}, v{o+2*i}, v{o+2*i+1}" for i in (1, 2)]
                p += [VM("out", f"buffer_store_dwordx3 v[{o}:{o+2}], v{GA}, s[{S_OUT}:{S_OUT+3}], s{S_EQ[q]} offen offset:{192 + r*384}{OF}")]
        return first57, p
    p += ep.chunk(2, NCH - 1, True, OPT["omv"]) + ep.flush() + ep.chunk(3, NCH - 1, True, OPT["omv"]) + ep.flush()
    return first57, p
def slow_epi():
    ep = Epi([64 + 6 * i for i in range(8)] if V64 else [64 + 16 * i for i in range(4)])
    seq = ["s_nop 1"] + epi_l((0, 1)) + epi_l((2, 3)) + ["s_nop 0"]
    for qb in range(4):
        for n in range(NCH): seq += ep.chunk(qb, n, True)
    return seq + ep.flush()

def kfrag(g):
    return 2 * (g >> 2) + (g & 1), (g >> 1) & 1
def gen_slow():
    KF = 64; VF = 112; SS = 160; PP = 224; M = [240, 241, 242, 243]; KA = [244, 245]; LA = 246; t = V_T
    p = ["L_slow:", "s_waitcnt vmcnt(0) lgkmcnt(0)", "s_nop 15"]
    for i in range(192): p.append(f"v_accvgpr_write_b32 a{i}, 0")
    for q in range(4): p += [f"v_mov_b32 v{V_L[q]}, 0", f"v_mov_b32 v{M[q]}, 0xff7fffff"]
    p += [f"v_subrev_u32 v{KA[0]}, {A1}, v{V_RDK[0]}", f"v_subrev_u32 v{KA[1]}, {A1}, v{V_RDK[1]}", f"v_subrev_u32 v{LA}, {B0}, v{V_RD}",
          f"s_mov_b32 s{S_PT}, 0", "L_slowloop:"]
    for i in range(1, 5): p.append(f"s_add_u32 s{S_PT+i}, s{S_PT}, {[0, 6144, 12288, 16384, 20480][i]}")
    for f in range(12):
        s, tb = kfrag(f)
        p.append(f"buffer_load_dwordx4 v[{KF+4*f}:{KF+4*f+3}], v{KA[s&1]}, s[{S_WS}:{S_WS+3}], s{S_PT+tb} offen offset:{(s>>1)*128} sc1")
    for db in range(12):
        p.append(f"buffer_load_dwordx4 v[{VF+4*db}:{VF+4*db+3}], v{LA}, s[{S_WS}:{S_WS+3}], s{S_PT+2+db//4} offen offset:{(db%4)*1024} sc1")
    p.append("s_waitcnt vmcnt(12)")
    for f in range(12):
        s, tb = kfrag(f)
        for qb in range(4):
            d = vr(SS + 8 * qb + 4 * tb, 4)
            p.append(f"{MF} {d}, v[{KF+4*f}:{KF+4*f+3}], {Qf(qb,s)}, {'0' if s == 0 else d}")
    p.append("s_nop 9")
    for qb in range(4):
        sb = SS + 8 * qb
        p += [f"v_max3_f32 v{t}, v{sb}, v{sb+1}, v{sb+2}", f"v_max3_f32 v{t}, v{t}, v{sb+3}, v{sb+4}",
              f"v_max3_f32 v{t}, v{t}, v{sb+5}, v{sb+6}", f"v_max3_f32 v{t}, v{t}, v{sb+7}, v{M[qb]}"]
        p += xlane("v_max_f32", t)
        p += [f"v_sub_f32 v{t+1}, v{M[qb]}, v{t}", f"v_exp_f32 v{t+1}, v{t+1}", f"v_mov_b32 v{M[qb]}, v{t}"]
        for i in range(8): p.append(f"v_sub_f32 v{sb+i}, v{sb+i}, v{t}")
        for i in range(8): p.append(f"v_exp_f32 v{sb+i}, v{sb+i}")
        p.append(f"v_mul_f32 v{V_L[qb]}, v{V_L[qb]}, v{t+1}")
        for i in range(8): p.append(f"v_add_f32 v{V_L[qb]}, v{V_L[qb]}, v{sb+i}")
        for i in range(4): p.append(f"v_cvt_pk_bf16_f32 v{PP+4*qb+i}, v{sb+2*i}, v{sb+2*i+1}")
        p += [f"ds_bpermute_b32 v{248+r}, v{BA}, v{t+1} offset:{4*r}" for r in range(4)] + ["s_waitcnt lgkmcnt(0)"]
        for i in range(48):
            a = O(qb, 0) + i; tt = t + 2 + (i % 2)
            p += [f"v_accvgpr_read_b32 v{tt}, a{a}", f"v_mul_f32 v{tt}, v{tt}, v{248+i%4}", f"v_accvgpr_write_b32 a{a}, v{tt}"]
    p += ["s_waitcnt vmcnt(0)", "s_nop 1"]
    for db in range(12):
        for qb in range(4):
            d = ar(O(qb, db), 4)
            p.append(f"{MF} {d}, v[{PP+4*qb}:{PP+4*qb+3}], v[{VF+4*db}:{VF+4*db+3}], {d}")
    p += [f"s_add_u32 s{S_PT}, s{S_PT}, {STAGE}", f"s_cmp_lt_u32 s{S_PT}, {HEADBYTES}", "s_nop 7", "s_cbranch_scc1 L_slowloop"]
    e = slow_epi(); resolve(e)
    return p + fin(e) + ["s_branch L_fin"]

def xlane(op, t, u=None):
    u = t + 1 if u is None else u
    l = []
    for sw in ("v_permlane16_swap_b32", "v_permlane32_swap_b32"):
        l += [f"v_mov_b32 v{u}, v{t}", "s_nop 1", f"{sw} v{t}, v{u}", "s_nop 1", f"{op} v{t}, v{t}, v{u}"]
    return l
def rowmax2(t, qs, tq):
    l = []
    ab = [(Sq(t, j, 0), Sq(t, j, 1)) for j in range(2)]
    l += [f"v_max3_f32 v{tq[j]}, v{a}, v{a+1}, v{a+2}" for j, (a, b) in enumerate(ab)]
    l += [f"v_max3_f32 v{tq[j]}, v{tq[j]}, v{a+3}, v{b}" for j, (a, b) in enumerate(ab)]
    l += [f"v_max3_f32 v{tq[j]}, v{tq[j]}, v{b+1}, v{b+2}" for j, (a, b) in enumerate(ab)]
    l += [f"v_max_f32 v{tq[j]}, v{tq[j]}, v{b+3}" for j, (a, b) in enumerate(ab)]
    for sw in ("v_permlane16_swap_b32", "v_permlane32_swap_b32"):
        l += [f"v_mov_b32 v{tq[j]+1}, v{tq[j]}" for j in range(2)] + ["s_nop 0"]
        l += [f"{sw} v{tq[j]}, v{tq[j]+1}" for j in range(2)] + ["s_nop 0"]
        l += [f"v_max_f32 v{tq[j]}, v{tq[j]}, v{tq[j]+1}" for j in range(2)]
    l += [f"v_sub_f32 v{NEGM(qs[j])+i}, 0, v{tq[j]}" for j in range(2) for i in range(4)]
    return l
def sm_one(t, sl):
    a, b = Sq(t, sl, 0), Sq(t, sl, 1); tq = V_CT; qb = slot_q(t, sl); rs = [r + i for r in (a, b) for i in range(4)]
    l = [f"v_max3_f32 v{tq}, v{a}, v{a+1}, v{a+2}", f"v_max3_f32 v{tq+2}, v{a+3}, v{b}, v{b+1}",
         f"v_max3_f32 v{tq}, v{tq}, v{b+2}, v{b+3}", f"v_max_f32 v{tq}, v{tq}, v{tq+2}"] + xlane("v_max_f32", tq)
    l += [f"v_sub_f32 v{r}, v{r}, v{tq}" for r in rs] + [f"v_exp_f32 v{r}, v{r}" for r in rs] + [f"v_sub_f32 v{NEGM(qb)+i}, 0, v{tq}" for i in range(4)]
    l += [f"v_add_f32 v{V_L[qb]}, v{V_L[qb]}, v{r}" for r in rs] + [f"v_cvt_pk_bf16_f32 v{a+i}, v{rs[2*i]}, v{rs[2*i+1]}" for i in range(4)]
    return l
def addneg(t, sl):
    n = NEGM(slot_q(t, sl))
    return [f"v_add_f32 v{Sq(t,sl,tb)+i}, v{Sq(t,sl,tb)+i}, v{n}" for tb in range(2) for i in range(4)]

def resolve(seq):
    vm = []; ds = []
    for x in seq:
        if isinstance(x, VM): vm.append(x.tag)
        elif isinstance(x, DS): ds.append(x.tag)
        elif isinstance(x, (W, LG)):
            q = vm if isinstance(x, W) else ds
            best = None
            for tag in x.tags:
                n = 0; found = False
                for t in reversed(q):
                    if t == tag: found = True; break
                    n += 1
                if found: best = n if best is None else min(best, n)
            if best is not None:
                x.n = best if getattr(x, "n", None) is None else min(x.n, best)
        else:
            assert not x.startswith(("ds_", "buffer_")) or "UNTRACKED" in x, x
def vm_size(x):
    t = x.text
    if t.startswith("buffer_store"): return 0
    if x.tag == "pre": return 3.0
    if " lds" in t: return 1.0
    if "dwordx4" in t or "dwordx3" in t: return 0.75
    if "dwordx2" in t and "offen" in t: return 0.375
    return 0.125
def pace(seq, cap):
    out = []; q = []; on = False
    for x in seq:
        if isinstance(x, W): q = q[len(q) - min(len(q), x.n):]; on = True
        elif isinstance(x, VM):
            sz = vm_size(x)
            if on and not x.text.startswith("buffer_store") and sum(q) + sz > cap:
                while q and sum(q) + sz > cap: q.pop(0)
                w = W(); w.n = len(q)
                if out and out[-1] == "s_nop 0": out.pop()
                out.append(w)
            q.append(sz)
        out.append(x)
    return out
def fin(seq):
    out = []
    for x in seq:
        if isinstance(x, (W, LG)):
            if OPT["ab"] and getattr(x, "n", None) is None: x.n = 63
            assert getattr(x, "n", None) is not None, x.tags
            out.append(f"s_waitcnt vmcnt({min(x.n, 63)})" if isinstance(x, W) else f"s_waitcnt lgkmcnt({min(x.n, 15)})")
        elif isinstance(x, (VM, DS)): out.append(x.text)
        else: out.append(x.replace(" ;UNTRACKED", ""))
    return out
def groups_of(l):
    out = [[]]
    for x in l:
        out[-1].append(x)
        if isinstance(x, VM): out.append([])
    tail = out.pop()
    if tail: out[-1] += tail
    return out
def sprinkle(code, l):
    if not l: return list(code)
    gs = groups_of(l); out = []; n = len(code); m = len(gs); j = 0
    for i, x in enumerate(code):
        while j < m and i * m >= j * n: out += with_nop(gs[j]); j += 1
        out.append(x)
    for g in gs[j:]: out += with_nop(g)
    return out
def srd(p, s, lo, hi, off_s, size):
    p += [f"s_add_u32 s{s}, s{lo}, s{off_s}", f"s_addc_u32 s{s+1}, s{hi}, 0", f"s_mov_b32 s{s+2}, {size}", f"s_mov_b32 s{s+3}, 0x20000"]

def gen_main():
    p = []
    p += [f"{NAME}_kernel:", "s_cmp_ge_u32 s2, 256", "s_cbranch_scc1 L_done",
          "s_load_dwordx16 s[40:55], s[0:1], 0", "s_load_dwordx4 s[16:19], s[0:1], 64"]
    if OPT["stamp"]: p += ["s_memtime s[98:99]" if OPT["stamp"] == 6 else "s_memrealtime s[98:99]"]
    p += [f"s_and_b32 s{S_HEAD}, s2, 7", f"s_lshr_b32 s{S_QB}, s2, 3", f"s_lshr_b32 s24, s{S_QB}, 3", f"s_lshl_b32 s{S_HEAD}, s{S_HEAD}, 2",
          f"s_add_u32 s{S_HEAD}, s{S_HEAD}, s24", f"s_and_b32 s{S_QB}, s{S_QB}, 7"]
    p += ["s_getpc_b64 s[60:61]", "L_pc:", f"s_sub_u32 s60, s60, L_pc-{NAME}_kernel", "s_subb_u32 s61, s61, 0",
          f"s_mov_b32 s62, L_slow-{NAME}_kernel", "s_mov_b32 s63, 0x20000",
          "s_lshr_b32 s22, s2, 3", "s_lshl_b32 s22, s22, 12",
          "v_lshlrev_b32 v30, 4, v0",
          VM("pf", "buffer_load_dwordx4 v[128:131], v30, s[60:63], s22 offen" + (" nt" if OPT["pfnt"] else ""))]
    p += ["v_lshrrev_b32 v24, 6, v0",
          "v_and_b32 v25, 63, v0",
          f"v_readfirstlane_b32 s{S_WAVE}, v24",
          f"v_lshlrev_b32 v{V_RD}, 4, v25",
          "v_mul_u32_u24 v26, 43, v25", "v_lshrrev_b32 v26, 10, v26",
          "v_mul_u32_u24 v27, 24, v26",
          "v_sub_u32 v27, v25, v27",
          "v_lshrrev_b32 v28, 1, v24",
          "v_and_b32 v29, 1, v24",
          "v_lshlrev_b32 v30, 4, v29",
          "v_lshl_add_u32 v30, v28, 2, v30",
          "v_add_u32 v30, v30, v26",
          "v_mul_u32_u24 v30, 768, v30",
          "v_lshrrev_b32 v48, 1, v26", "v_lshlrev_b32 v48, 30, v48",
          "v_lshl_add_u32 v30, v27, 4, v30", f"v_or_b32 v{V_KLD}, v30, v48",
          f"v_lshl_or_b32 v{V_KSC}, v27, 3, v48",
          "v_mul_u32_u24 v30, 6144, v24",
          ] + (["v_mul_u32_u24 v31, 12, v25", f"v_add_u32 v{V_VLD}, v30, v31"] if V64 else [f"v_add3_u32 v{V_VLD}, v30, v{V_RD}, v48"])
    for sd, size in ((S_QK, HEADBYTES), (S_QV, HEADBYTES), (S_KS, 12288), (S_KZ, 12288), (S_VS, 4096), (S_VZ, 4096), (S_FLG, 64)):
        p += [f"s_mov_b32 s{sd+2}, {size}", f"s_mov_b32 s{sd+3}, 0x20000"]
    p += [f"s_mul_i32 s{S_PK0}, s{S_QB}, {STAGE}", f"s_add_u32 s{S_PK1}, s{S_PK0}, 6144", f"s_mov_b32 s{S_PV0}, s{S_PK0}",
          f"s_lshr_b32 s{S_PKS}, s{S_QB}, 1", f"s_mul_i32 s{S_PKS}, s{S_PKS}, 384", f"s_lshl_b32 s{S_PVS}, s{S_QB}, 6",
          f"s_lshl_b32 s24, s{S_WAVE}, 4", f"s_add_u32 s{S_PVS}, s{S_PVS}, s24",
          f"s_mul_i32 s24, s{S_HEAD}, {HEADBYTES}", f"s_mul_i32 s56, s{S_HEAD}, 12288", f"s_lshl_b32 s57, s{S_HEAD}, 12",
          f"s_lshl_b32 s58, s{S_HEAD}, 10", f"s_add_u32 s58, s58, {FLAG_OFF + 96}",
          f"s_or_b32 s{S_RET}, s{S_QB}, s{S_WAVE}"]
    p += ["s_waitcnt lgkmcnt(0)"] + istamp("karg", True)
    def base(sd, lo, off): return [f"s_add_u32 s{sd}, s{lo}, s{off}", f"s_addc_u32 s{sd+1}, s{lo+1}, 0"]
    p += base(S_QK, 42, 24) + base(S_KS, 46, 56) + base(S_KZ, 48, 56)
    kl = [k_ld(0, BX, 32, "k0a"), k_ld(1, BY, 36, "k0b")]; vl = [v_ld(0, 112, 40, "v0a"), v_ld(1, 80, 44, "v0b")]
    for x in kl[1][:2]: x.tag = "k0a"
    for x in vl[1][:2]: x.tag = "v0a"
    if OPT["ksc"]:
        for x in kl[0][2:] + kl[1][2:]: x.tag = "kraw"
        for x in kl[1][:2]: x.tag = "k0b"
        p += kl[0][2:] + kl[1][2:] + kl[0][:2] + kl[1][:2]; kl[1] = []
    else: p += kl[0][2:] + kl[0][:2] + kl[1][:2]
    p += base(S_FLG, 18, 58) + base(S_VS, 50, 57) + base(S_VZ, 52, 57) + base(S_QV, 44, 24)
    p += [f"s_mul_i32 s59, s{S_HEAD}, 786432"] + base(S_OUT, 54, 59) + base(S_Q, 40, 59)
    p += [f"s_cmp_lg_u32 s{S_RET}, 0", "s_cbranch_scc1 L_notleader0", f"s_buffer_load_dwordx16 s[40:55], s[{S_FLG}:{S_FLG+3}], 0 glc", "L_notleader0:"]
    p += kl[1][2:]
    p += [f"s_add_u32 s24, s24, {WSOFF}"] * (1 if WSOFF else 0)
    srd(p, S_WS, 18, 19, 24, HEADBYTES)
    p += [f"s_mov_b32 s{S_Q+2}, 786432", f"s_mov_b32 s{S_Q+3}, 0x20000"]
    p += [f"s_mov_b32 s{S_DBG}, s16", f"s_mov_b32 s{S_DBG+1}, s17", f"s_add_u32 s{S_PV1}, s{S_PK0}, 3072", f"s_add_u32 s{S_PV2}, s{S_PK0}, 6144"]
    p += [f"s_mov_b32 s{S_DBG+2}, 256", f"s_mov_b32 s{S_DBG+3}, 0x20000", f"s_lshl_b32 s{S_HOFF}, s{S_HEAD}, 3"]
    p += [f"s_cmp_lg_u32 s{S_RET}, 0", "s_cbranch_scc1 L_notleader", "s_waitcnt lgkmcnt(0)", f"s_mov_b32 s{S_TP}, 1"]
    for i in range(16):
        p += [f"s_lshr_b32 s{40+i}, s{40+i}, 10", f"s_min_u32 s{40+i}, s{40+i}, 31", f"s_bitset1_b32 s{S_TP}, s{40+i}"]
    p += [f"s_ff0_i32_b32 s{S_TP}, s{S_TP}", f"s_lshl_b32 s{S_TP}, s{S_TP}, 10", f"v_mov_b32 v{V_POLL}, s{S_TP}",
          "s_mov_b64 exec, 1", f"buffer_store_dword v{V_POLL}, off, s[{S_DBG}:{S_DBG+3}], s{S_HOFF} sc1 ;UNTRACKED", "s_mov_b64 exec, -1",
          "L_notleader:"]
    p += [f"s_lshl_b32 s24, s{S_QB}, 2", f"s_add_u32 s24, s24, 32", f"s_buffer_load_dword s{S_OWN}, s[{S_FLG}:{S_FLG+3}], s24 glc",
          ] + ([f"s_getreg_b32 s{S_XCC}, hwreg(HW_REG_XCC_ID, 0, 4)", f"s_lshl_b32 s{S_XCC}, s{S_XCC}, 5", f"s_mov_b32 s{S_FOFF}, {32 if OPT['l2'] == 3 else 0}"] if OPT["l2"] else
          [f"s_mov_b32 s{S_XCC}, 0", f"s_mov_b32 s{S_FOFF}, 32"])
    p += vl[0][2:] + vl[0][:2] + vl[1][:2] + (vl[1][2:] if OPT["greedy"] else []) + istamp("iss", True)
    if OPT["pre"]:
        st = OPT["pre"]
        p += [f"v_mul_u32_u24 v31, {st}, v25", f"v_mul_u32_u24 v30, 6144, v24", "v_add_u32 v31, v30, v31"]
        if st == 128: p += ["v_or_b32 v31, v31, v48"]
        p += [VM("pre", f"buffer_load_dword v132, v31, s[{S_WS}:{S_WS+3}], s{S_PK0} offen" + (" nt" if OPT["prent"] else ""))]
        if st == 64: p += ["v_add_u32 v30, 4096, v31", "s_mov_b64 exec, 0xffffffff", VM("pre", f"buffer_load_dword v133, v30, s[{S_WS}:{S_WS+3}], s{S_PK0} offen nt"), "s_mov_b64 exec, -1"]
    p += [f"s_mov_b32 s{S_OUT+2}, 786432", f"s_mov_b32 s{S_OUT+3}, 0x20000"]
    p += [f"s_lshl_b32 s24, s{S_WAVE}, 8", f"s_add_u32 s{S_HOFF}, s{S_HOFF}, s24"]
    p += ["v_mul_u32_u24 v30, 3072, v24", f"v_add_u32 v{V_DMA}, v30, v{V_RD}"]
    p += ["v_lshl_add_u32 v30, v24, 3, v26",
          "v_mul_u32_u24 v30, 384, v30",
          "v_lshlrev_b32 v31, 2, v29",
          "v_xor_b32 v31, v27, v31",
          "v_lshl_add_u32 v30, v31, 4, v30", f"v_or_b32 v{V_KST}, v30, v48",
          "v_lshlrev_b32 v30, 8, v24",
          "v_add_u32 v30, 12288, v30",
          ] + (["v_lshrrev_b32 v31, 5, v25", "v_mul_u32_u24 v31, 6144, v31", "v_add_u32 v30, v30, v31", "v_and_b32 v31, 1, v25", "v_mul_u32_u24 v31, 3072, v31", "v_add_u32 v30, v30, v31",
          "v_bfe_u32 v31, v25, 1, 4", f"v_lshl_add_u32 v{V_VST}, v31, 4, v30"] if V64 else
          ["v_lshrrev_b32 v31, 4, v25", "v_lshl_add_u32 v30, v31, 10, v30", "v_and_b32 v31, 15, v25",
          "v_lshl_add_u32 v30, v31, 4, v30", f"v_or_b32 v{V_VST}, v30, v48"])
    p += [f"s_lshl_b32 s24, s{S_QB}, 2",
          f"v_lshl_add_u32 v{V_FLAG}, v0, 2, s24", f"v_cmp_lt_u32 vcc, 0, v0", "v_mov_b32 v30, 0x40000000", "s_nop 0",
          f"v_cndmask_b32 v{V_FLAG}, v{V_FLAG}, v30, vcc"]
    p += [f"s_mul_i32 s{S_DMK}, s{S_WAVE}, 3072", f"s_add_u32 s{S_DMK}, s{S_DMK}, 12288", f"s_add_u32 s{S_DMV}, s{S_DMK}, {STAGE}",
          f"s_add_u32 s24, s{S_QB}, 1", "s_and_b32 s24, s24, 7", f"s_mul_i32 s{S_GOFFK}, s24, {STAGE}", f"s_add_u32 s{S_GOFF}, s{S_GOFFK}, 12288",
          f"s_mov_b32 s{S_RK}, {A2}", f"s_mov_b32 s{S_RV}, {B1}", f"v_add_u32 v{V_RD}, {B0}, v{V_RD}",
          f"s_mov_b32 s{S_CS}, 0x{f32bits(CSCALE):08x}", f"s_mov_b32 s{S_MASK}, 0xffff0000",
          f"s_mov_b32 s{S_BUDGET}, 100000"] + ([f"s_mov_b32 s{S_TAG+1}, 0"] if OPT["stamp"] else [])
    p += ["v_and_b32 v26, 15, v25", "v_lshrrev_b32 v27, 4, v25", "v_bfe_u32 v28, v25, 1, 3",
          "v_xor_b32 v29, v27, v28", "v_mul_u32_u24 v30, 384, v26", f"v_lshl_add_u32 v{V_RDK[0]}, v29, 4, v30",
          f"v_xor_b32 v{V_RDK[1]}, 64, v{V_RDK[0]}"]
    p += [f"s_mul_i32 s{S_QL}, s{S_WAVE}, 6144", f"s_add_u32 s{S_QL}, s{S_QL}, {B1}",
          "v_lshrrev_b32 v29, 1, v27", "v_xor_b32 v29, v29, v28", "v_lshl_add_u32 v31, v29, 4, v30",
          "v_and_b32 v29, 1, v27", "v_lshl_add_u32 v31, v29, 3, v31"]
    for kk in range(4):
        p += [f"v_xor_b32 v{VQR[kk]}, {32*kk}, v31", f"v_add_u32 v{VQR[kk]}, s{S_QL}, v{VQR[kk]}"]
    p += [f"s_lshl_b32 s24, s{S_QB}, 2", f"s_add_u32 s24, s24, s{S_WAVE}", f"s_mul_i32 s24, s24, {STAGE}"]
    for b in range(6):
        p += [f"v_add_u32 v26, {64*b}, v25", "v_mul_u32_u24 v27, 2731, v26", "v_lshrrev_b32 v27, 17, v27",
              "v_and_b32 v27, 7, v27", "v_xor_b32 v26, v26, v27", f"v_lshlrev_b32 v{VQD+b}, 4, v26", f"v_add_u32 v{VQD+b}, s24, v{VQD+b}"]
    for q in range(4): p.append(f"v_mov_b32 v{V_L[q]}, 0")
    STF0 = "" if OPT["l2"] else STF
    def own_k(b):
        l = []
        for j in range(4):
            l += k_st(j, b, "kst", STF0)
            va = V_KST if j == 0 else V_KA + (j & 1)
            l += ["s_mov_b64 exec, s[62:63]", DS("w", f"ds_write_b128 v{va}, v[{b+4*j}:{b+4*j+3}] offset:{j*768}"), "s_mov_b64 exec, -1"]
        return l
    def own_v(b):
        l = [x for e in range(NVE) for x in v_st(e, b, "vst", STF0)]
        if V64: return l + [DS("w", f"ds_write_b128 v{V_VST}, v[{b+4*e}:{b+4*e+3}] offset:{STAGE - 12288 + e*1024}") for e in range(3)]
        l += ["s_mov_b64 exec, s[62:63]"] + [DS("w", f"ds_write_b128 v{V_VST}, v[{b+4*e}:{b+4*e+3}] offset:{STAGE - 12288 + e*3072}") for e in range(4)] + ["s_mov_b64 exec, -1"]
        return l
    p += ["s_mov_b32 s62, -1", "s_mov_b32 s63, 0xffff"]
    qa = OPT["qa"]
    qb_, qc = OPT["qb"], OPT["qc"]
    R = lambda a, b: list(range(a, b))
    if OPT["split"]:
        p += [W("k0a")] + vl[1][2:] + k_cv(0, BX, 32, BX) + [W("k0b")] + istamp("k0b", True) + k_cv(1, BY, 36, BX) + own_k(BX)
        p += tag_load() + with_nop(q_dma(R(0, qa))) + [W("v0a")] + v_cv(0, 112, 40, 112)
        p += [W("tag")] + tag_check() + ["s_waitcnt lgkmcnt(0)", "s_barrier"] + flag_post() + tag_get() + istamp("post", True)
        p += with_nop(q_dma(R(qa, qb_))) + v_cv(1, 80, 44, 112) + own_v(112) + with_nop(q_dma(R(qb_, 12))) + istamp("vst", True)
    elif OPT["greedy"]:
        p += [W("k0a")] + with_nop(q_dma(R(0, 3))) + k_cv(0, BX, 32, BX) + [W("k0b")] + istamp("k0b", True) + with_nop(q_dma(R(3, 6))) + k_cv(1, BY, 36, BX) + own_k(BX)
        p += [W("v0a")] + with_nop(q_dma(R(6, 9))) + v_cv(0, 112, 40, 112) + [W("v0b")] + with_nop(q_dma(R(9, 12))) + v_cv(1, 80, 44, 112) + own_v(112)
        p += tag_load() + with_nop(q_dma(R(12, 18))) + istamp("vst", True)
    else:
        p += [W("k0a")] + vl[1][2:] + k_cv(0, BX, 32, BX) + [W("k0b")] + istamp("k0b", True) + k_cv(1, BY, 36, BX) + own_k(BX)
        p += with_nop(q_dma(R(0, qa))) + istamp("kst", True)
        p += [W("v0a")] + sprinkle(v_cv(0, 112, 40, 112), q_dma(R(qa, qb_))) + [W("v0b")] + v_cv(1, 80, 44, 112) + own_v(112)
        p += tag_load() + with_nop(q_dma(R(qb_, OPT["qe"]))) + istamp("vst", True)
    if not OPT["split"]:
        if OPT["iw"]:
            p += ["s_mov_b64 exec, 0"] + [x for w in range(3) for x in (f"s_cmp_eq_u32 s{S_WAVE}, {w}", f"s_cbranch_scc1 L_iw{w}")] + ["s_branch L_iw3", "L_iwret:", "s_mov_b64 exec, -1"]
        p += [W("tag")] + tag_check() + istamp("tag", True)
        p += ["s_waitcnt lgkmcnt(0)", "s_barrier"] + flag_post(True) + tag_get() + istamp("post", True)
    if OPT["pf2"]:
        p += [f"s_mov_b32 s{S_DBG}, s60", f"s_mov_b32 s{S_DBG+1}, s61", f"s_mov_b32 s{S_DBG+2}, L_slow-{NAME}_kernel",
              "s_lshr_b32 s24, s2, 3", f"s_mul_i32 s{S_HOFF}, s24, 43", f"s_lshr_b32 s{S_HOFF}, s{S_HOFF}, 7",
              f"s_mul_i32 s{S_RET}, s{S_HOFF}, 3", f"s_sub_u32 s24, s24, s{S_RET}", "s_lshl_b32 s24, s24, 10",
              f"s_mul_i32 s{S_HOFF}, s{S_HOFF}, 12288", f"s_add_u32 s{S_HOFF}, s{S_HOFF}, s24"]
    KF = 144
    for f in range(12):
        s, tb = kfrag(f)
        p.append(DS("kf", f"ds_read_b128 v[{KF+4*f}:{KF+4*f+3}], v{V_RDK[s&1]} offset:{tb*6144 + (s>>1)*128}"))
    def qk0(qb):
        l = []
        for f in sorted(range(12), key=lambda f: kfrag(f)[::-1]):
            s, tb = kfrag(f)
            d = vr(Sq(0, qb, tb), 4)
            l.append(f"{MF} {d}, v[{KF+4*f}:{KF+4*f+3}], {Qf(qb,s)}, {'0' if s == 0 else d}")
        return l
    ps = len(POLLSITES); POLLSITES.append(ps)
    g3n = OPT["g3n"]
    pollchk = ["s_waitcnt lgkmcnt(0)"] + smem_reduce() + [f"s_cmp_ge_u32 s{S_PT}, 16", f"s_cbranch_scc1 L_pollslow{ps}", f"L_pollok{ps}:",
          f"s_add_u32 s{S_NEED}, s{S_NEED}, 1"] + [f"s_mov_b32 s{S_FOFF}, 32"] * (OPT["l2"] == 2) + istamp("poll", True)
    sm00 = rowmax2(0, (0, 1), (V_CT, V_CT + 2)) + addneg(0, 0) + addneg(0, 1) + softmax_part(0, 0)
    qrest = R(OPT["qe"] if OPT["greedy"] == 0 else 18, 18 + g3n)
    if OPT["fs"]:
        hand = with_nop(dma_tile("k", 1, True) + dma_tile("k", 2, True) + dma_tile("k", 3, True) + dma_tile("v", 1, True)) + k_adv() + v_adv()
        for qb in range(4):
            if qb == 3:
                g0 = []
                for d0 in range(0, 12, 2):
                    g0.append(Grp([(V_RD, (d0 + e) * 1024) for e in range(2)], [(e, ar(O(q, d0 + e), 4), vr(P(0, q), 4), "0") for q in range(3) for e in range(2)]))
                p += [rd_op(i, j, g0[i]) for i in range(2) for j in range(2)] + [LG(("fr", 0), ("fr", 1))]
                p += gen_seg("S0", g0, [], tasks=[("ldn", "ka", 0, 16), ("ldn", "kb", 17, 35)][:OPT["k1s"]], vmgap=2)
            p += [W(("q", qb))] + q_frags(qb) + ([LG("tg")] + tag_use() if qb == 0 else []) + (smem_flags() if qb == OPT["pq"] else []) + [LG(("qf", qb))]
            if qb < 2: p += with_nop(q_dma(R(18 + 3 * qb, 21 + 3 * qb)))
            p += qk0(qb) + (pollchk + hand if qb == OPT["pq"] else ["s_nop 7"]) + sm_one(0, qb)
        sp = softmax_part
        g1 = qk_tile(1, 1, [(q, q) for q in range(4)])
        gi1 = rebase(qk_full(2), V_RDK, A1 - A0)
        gi2 = [Grp([(V_RD, w * 12288 + db * 1024) for w in range(2)],
                   [(0, ar(O(3, db), 4), vr(P(0, 3), 4), "0")] + [(1, ar(O(q, db), 4), vr(P(1, q), 4), ar(O(q, db), 4)) for q in (3, 0, 1, 2)]) for db in range(12)]
        gi3 = rebase(qk_full(4), V_RDK, A2 - A1)
        gi4 = rebase(pv_seq(2), [V_RD], B1 - B0)
        p += istamp("pre-dk1", True) + [W(("dk", 1)), "s_barrier"] + [rd_op(i, j, g1[i]) for i in range(2) for j in range(2)] + [LG(("fr", 0), ("fr", 1))]
        pa = [f"v_bfe_u32 v{V_T4}, v{V_DMA}, 4, 6", f"v_lshlrev_b32 v{V_T4}, 2, v{V_T4}"] + [f"v_xor_b32 v{V_T4+j}, {16*j}, v{V_KST}" for j in (1, 2, 3)]
        p += gen_seg("S1", g1, gi1[:2], [(pa, 0, 30)] if OPT["pa"] else [], [(31, [("dk", 3)])], [("ldn", "ka", 0, 14), ("ldn", "kb", 15, 30)][OPT["k1s"]:] +
                     ([("cv", "ka", 0, 99, OPT["fb"], 47)] if OPT["k1s"] and OPT["fb"] < 47 else []), [K_(4, 5) + (32, 46)], vmgap=2)
        p += gen_seg("S5", gi1, gi2[:2], [(sp(1, 0) + sp(1, 1) + [("dl", 54), ("nb", 47)] + sp(2, 0), 2, 95)], [(GBAR, [("dv", 1)])],
                     ([("cv", "kb", 0, 99, OPT["fa"], 95), ("ldn", "va", 20, 40)] if (OPT["k1s"] and OPT["fb"] < 47) else
                      [("cv", "ka", 0, 99, OPT["fa"], 60), ("cv", "kb", 0, 99, 61, 95), ("ldn", "va", 20, 40, "raw"), ("ldn", "va", 62, 76, "sc")]), [V_(2, 3) + (0, 18)])
        p += gen_seg("i2", gi2, gi3[:2], [(sp(2, 1) + sp(3, 0), 0, 59)], [(49, [("dk", 5)])],
                     [("kst", 0, 1), ("kst", 1, 11), ("kst", 2, 21), ("kst", 3, 31), ("ld", "vb", 34, 59)], [], vmgap=2)
        p += gen_seg("i3", gi3, gi4[:2], [(sp(3, 1) + [("dl", 57), ("nb", 47)] + sp(4, 0), 0, 95)], [(15, []), (GBAR, [("dv", 3)])],
                     [("post", "kst", 0), ("cv", "va", 0, 99, 0, 95)], [K_(6, 7) + V_(4, 5) + (18, 90)])
        p += [f"s_mov_b32 s{S_CNT}, {7 - OPT['lastp']}"]
        p += gen_seg("i4", gi4, seg_groups(5)[:2], [(sp(4, 1) + sp(5, 0), 0, 94)], [(GBAR, [("dk", 7)])],
                     [("ld", "ka", 0, 30), ("cv", "vb", 0, 99, 20, 94), ("step", "q", 30, 70), ("pollld", OPT["pl4"], OPT["pl4"] + 8)], [V_(6, 7) + (32, 74)],
                     endops=["s_nop 0", "s_branch L_join"])
    elif OPT["split"]:
        ps2 = len(POLLSITES); POLLSITES.append(ps2)
        pollchk2 = ["s_waitcnt lgkmcnt(0)"] + smem_reduce() + [f"s_cmp_ge_u32 s{S_PT}, 16", f"s_cbranch_scc1 L_pollslow{ps2}", f"L_pollok{ps2}:",
              f"s_add_u32 s{S_NEED}, s{S_NEED}, 1"] + istamp("pollV", True)
        p += [W(("q", 0))] + q_frags(0) + [LG("tg")] + tag_use() + [LG(("qf", 0))] + smem_flags() + qk0(0) + pollchk
        p += with_nop(dma_tile("k", 1, True)) + k_adv() + v_adv()
        p += [W("vst"), "s_barrier"] + flag_post() + istamp("postV", True)
        p += with_nop(dma_tile("k", 2, True) + dma_tile("k", 3, True))
        p += [W(("q", 1))] + q_frags(1) + with_nop(q_dma(R(12, 15))) + [LG(("qf", 1))] + qk0(1) + ["s_nop 7"]
        g0 = pv_unchained(0, True)[:6]
        p += [rd_op(i, j, g0[i]) for i in range(2) for j in range(2)] + sprinkle(sm00, q_dma(R(15, 18 + g3n))) + smem_flags() + [LG(("fr", 0), ("fr", 1))]
        p += gen_seg("S0", g0, [], tasks=[("q", R(18 + g3n, 24), 0, 22)] if g3n < 6 else [], vmgap=2) + pollchk2
        p += with_nop(dma_tile("v", 1, True))
        g3n = 6
    elif OPT["own1"] == 2:
        p += [W(("q", 0))] + q_frags(0) + [LG("tg")] + tag_use() + with_nop(q_dma(qrest[:3])) + [LG(("qf", 0))] + qk0(0)
        p += [W(("q", 1))] + q_frags(1) + smem_flags() + with_nop(q_dma(qrest[3:])) + [LG(("qf", 1))] + qk0(1) + pollchk
        g0 = pv_unchained(0, True)[:6]
        p += [rd_op(i, j, g0[i]) for i in range(2) for j in range(2)]
        p += sprinkle(sm00, dma_tile("k", 1, True) + dma_tile("k", 2, True) + dma_tile("k", 3, True) + dma_tile("v", 1, True)) + k_adv() + v_adv() + [LG(("fr", 0), ("fr", 1))]
        p += gen_seg("S0", g0, [], tasks=[("q", R(18 + g3n, 24), 0, 22)] if g3n < 6 else [], vmgap=2)
        g3n = 6
    elif OPT["own1"]:
        pre0 = [x for x in qrest[:3] if x < 18]; post0 = [x for x in qrest[:3] if x >= 18]
        p += [W(("q", 0))] + q_frags(0) + [LG("tg")] + tag_use() + with_nop(q_dma(pre0)) + [LG(("qf", 0))] + with_nop(q_dma(post0)) + qk0(0)
        if OPT["q0f"]: p += ["s_nop 7"] + sm_one(0, 0); sm00 = sm_one(0, 1)
        p += [W(("q", 1))] + q_frags(1) + with_nop(q_dma(qrest[3:6])) + [LG(("qf", 1))] + qk0(1) + ["s_nop 7"]
        g0 = pv_unchained(0, True)[:6]
        p += [rd_op(i, j, g0[i]) for i in range(2) for j in range(2)] + sprinkle(sm00, q_dma(qrest[6:])) + smem_flags() + [LG(("fr", 0), ("fr", 1))]
        p += gen_seg("S0", g0, []) + pollchk
        p += with_nop(dma_tile("k", 1, True) + dma_tile("k", 2, True) + dma_tile("k", 3, True) + dma_tile("v", 1, True)) + k_adv() + v_adv()
        if OPT["qf"]: p += with_nop(q_dma(R(18 + g3n, 24))); g3n = 6
    else:
        p += [W(("q", 0))] + q_frags(0) + [LG("tg")] + tag_use() + [W(("q", 1))] + q_frags(1) + smem_flags()
        p += [LG(("qf", 0))] + with_nop(q_dma(qrest)) + pollchk
        p += with_nop(dma_tile("k", 1, True)) + k_adv() + v_adv()
        p += sprinkle(qk0(0) + qk0(1), dma_tile("k", 2, True)) + ["s_nop 7"]
        p += sprinkle(sm00, dma_tile("k", 3, True) + dma_tile("v", 1, True))
    if not OPT["fs"]:
        sp = softmax_part
        g1 = qk_half(0, ws=(1,))
        g2 = rebase(qk_half(1), V_RDK, A1 - A0)
        g3 = pv_unchained(0, True)[6 if OPT["own1"] else 0:]
        g4 = rebase(pv_unchained(1), [V_RD], B1 - B0)
        g5 = rebase(qk_half(2, True), V_RDK, A0 - A1) + rebase(qk_half(3), V_RDK, A1 - A0)
        gi3 = rebase(qk_full(4), V_RDK, A2 - A1)
        gi4 = rebase(pv_seq(2, True), [V_RD], B0 - B1) + rebase(pv_seq(3), [V_RD], B1 - B0)
        p += istamp("pre-dk1", True) + [W(("dk", 1)), "s_barrier"] + [rd_op(i, j, g1[i]) for i in range(2) for j in range(2)]
        p += [LG(("fr", 0), ("fr", 1))]
        p += gen_seg("S1", g1, g2[:2], [], [(15, [("dk", 3)])], [], [V_(2, 3) + (0, 21)], vmgap=2)
        p += gen_seg("S2", g2, g3[:2], [(sp(0, 1), 3, 47)], [(39, [("dv", 3)])] if OPT["own1"] else [], ([("q", R(18 + g3n, 24), 0, 24)] if g3n < 6 else []) + [("ldn", "ka", 25 if g3n < 6 else 0, 47)])
        if OPT["own1"]: p += gen_seg("S3", g3, g4[:2], [(sp(1, 0), 0, 23)], [], [("ldn", "kb", 0, 23)])
        else: p += gen_seg("S3", g3, g4[:2], [(sp(1, 0), 0, 47)], [(15, [("dv", 3)])], [("ldn", "kb", 0, 22), ("ldn", "va", 23, 46, "raw")])
        p += gen_seg("S4", g4, g5[:2], [(sp(1, 1), 0, 21)], [], [("ldn", "va", 0, 30, "raw")] if OPT["own1"] else [], extra=[Stream([W(("q", 2))] + q_frags(2) + [W(("q", 3))] + q_frags(3), 16, 46)])
        p += istamp("pre-S5", True) + ["s_waitcnt lgkmcnt(0)", "s_barrier"]
        p += gen_seg("S5", g5, gi3[:2], [(rowmax2(2, (2, 3), (V_T, V_T + 2)), 27, 45), (addneg(2, 0) + addneg(2, 1) + sp(2, 0) + addneg(2, 2) + addneg(2, 3) + sp(2, 1), 46, 95)],
                     [(GBAR + 8, [("dk", 5)])], [("cv", "ka", 0, 99, 0, 34), ("cv", "kb", 0, 99, 35, 72), ("kst", 0, 73), ("kst", 1, 77), ("kst", 2, 89), ("kst", 3, 93),
                     ("ldn", "va", 36, 60, "sc")], [K_(4, 5) + (1, 24)])
        p += gen_seg("i3", gi3, gi4[:2], [(sp(3, 0) + sp(3, 1), 0, 54), (sp(4, 0), 55, 95)], [(OPT["pb"], []), (GBAR, [])],
                     [("ld", "vb", 0, 22), ("post", "kst", 0), ("cv", "va", 0, 99, 10, 95)], [K_(6, 7) + V_(4, 5) + (24, 90)])
        p += [f"s_mov_b32 s{S_CNT}, {7 - OPT['lastp']}", f"s_mul_i32 s{S_RC}, s{S_QB}, {STAGE}", f"s_mov_b32 s{S_RD}, 12288"]
        p += gen_seg("i4", gi4, seg_groups(5)[:2], [(sp(4, 1) + sp(5, 0), 0, 94)], [(47, []), (GBAR + 8, [("dk", 7)])],
                     [("ld", "ka", 0, 30), ("cv", "vb", 0, 99, 30, 94), ("step", "q", 30, 70), ("pollld", OPT["pl4"], OPT["pl4"] + 8)], [V_(6, 7) + (52, 84)],
                     endops=["s_nop 0", "s_branch L_join"])
    p += [".p2align 6"] + ["s_nop 0"] * OPT.get("pad", 0) + ["L_loop:"]
    pro_ = p
    first57, tail = gen_tail()
    bodyA = []
    for k in (1, 2, 3, 4, 5, 6, 7, 0):
        if k == 5: bodyA.append("L_join:"); jpos = len(bodyA)
        eo = [f"s_sub_u32 s{S_CNT}, s{S_CNT}, 1", f"s_cmp_lg_u32 s{S_CNT}, 0", "s_cbranch_scc1 L_loop"] if k == 0 else ()
        t, d = steady(k)
        if OPT["ab"] & 8: d = []
        if OPT["ab"] & 16: t = [x for x in t if x[0] not in ("cv", "kst", "vst", "ld")]
        if OPT["ab"] & 128: t = [x for x in t if x[0] not in ("cv",)]
        if OPT["ab"] & 256: t = [x for x in t if x[0] not in ("kst", "vst")]
        if OPT["ab"] & 512: t = [x for x in t if x[0] not in ("ld",)]
        bars = None
        if OPT["nb6"]:
            dk = lambda *x: [("dk", i) for i in x]; dv = lambda *x: [("dv", i) for i in x]
            bars = {0: [], 4: [], 7: [(GBAR, dv(6, 7) + dk(2, 3))], 3: [(GBAR, dv(2, 3) + dk(6, 7))]}.get(k)
        bodyA += gen_iter(16 + k, t, d, name=f"k{k}", endops=eo, bars=bars)
    lastt = []
    if OPT["lastp"]:
        for k in (1, 2, 3, 4, 5, 6, 7, 0):
            t, d = steady(k)
            t = [x for x in t if not ((x[0] in ("ld", "cv") and x[1] == "ka") or (x[0] in ("ld", "cv") and x[1] == "kb" and k != 1) or x[:2] == ("ld", "va") or x[0] == "pf")]
            dk = lambda *x: [("dk", i) for i in x]; dv = lambda *x: [("dv", i) for i in x]
            bars = {0: [], 4: [], 7: [(GBAR, dv(6, 7) + dk(2, 3))], 3: [(GBAR, dv(2, 3) + dk(6, 7))]}.get(k) if OPT["nb6"] else None
            lastt += gen_iter(16 + k, t, d, name=f"z{k}", bars=bars)
    tail = lastt + tail
    assert OPT["qo"] or [g.rd for g in first57] == [g.rd for g in seg_groups(17)[:2]]
    tailc = tail + ["L_fin:"]
    resolve(pro_ + bodyA[jpos:] + bodyA + bodyA + tailc)
    if OPT["cap"]: pro_ = pace(pro_, OPT["cap"] / 4)
    P_ = Prog()
    P_.extend(fin(pro_))
    a0 = len(P_.ins); P_.extend(fin(bodyA)); a1 = len(P_.ins)
    P_.extend(fin(tailc))
    p = P_
    if OPT["stamp"]:
        p("s_waitcnt vmcnt(0) lgkmcnt(0)")
        p.extend(istamp("end"))
        p("s_waitcnt lgkmcnt(0)")
        p.extend(istamp("end2"))
        p(f"v_writelane_b32 v{V_STAMP}, s{S_TAG+1}, 63")
        p("s_add_u32 s8, s18, 0xfa00000"); p("s_addc_u32 s9, s19, 0"); p("s_mov_b32 s10, 1048576"); p("s_mov_b32 s11, 0x20000")
        p("s_lshl_b32 s24, s2, 2"); p(f"s_add_u32 s24, s24, s{S_WAVE}"); p("s_lshl_b32 s24, s24, 8")
        p(f"v_bfe_u32 v32, v{V_DMA}, 4, 6"); p("v_lshlrev_b32 v32, 2, v32")
        p(f"buffer_store_dword v{V_STAMP}, v32, s[8:11], s24 offen")
        if OPT["stamp"] == 8: STAMPS.sort(key=lambda n: 0)
        open(sys.argv[1] + ".stamps", "w").write("\n".join(order_stamps()))
    if OPT["calx"]:
        p("s_waitcnt vmcnt(0)")
        p("L_cal:")
        p("s_memrealtime s[40:41]")
        p("s_waitcnt lgkmcnt(0)")
        p("s_sub_u32 s40, s40, s100")
        p("s_cmp_lt_u32 s40, 10000")
        p("s_cbranch_scc1 L_cal")
    p("L_done:")
    p("s_endpgm")
    main_end0 = len(p.ins)
    for ps in POLLSITES: p.extend(poll_slow(ps))
    p.extend(tag_slow())
    main_end = len(p.ins)
    p.extend(gen_slow())
    slow_end = len(p.ins)
    ji = [i for i, x in enumerate(p.ins) if x.text == "L_join:"][0]
    lin = p.ins[:a0] + p.ins[ji:a1] + p.ins[a0:main_end0]
    sl = [i for i, x in enumerate(p.ins) if x.text == "L_slowloop:"][0]
    bi = [i for i, x in enumerate(p.ins) if x.text == "s_cbranch_scc1 L_slowloop"][0]
    probs = check_hazards(lin, "main") + check_hazards(p.ins[main_end:bi+1] + p.ins[sl:slow_end], "slow") + check_hazards(p.ins[main_end0:main_end], "aux")
    for x in probs: print(x, file=sys.stderr)
    return p

def kd(name, vgpr, sgpr, accum):
    return f""".amdhsa_kernel {name}
  .amdhsa_next_free_vgpr {vgpr}
  .amdhsa_next_free_sgpr {sgpr}
  .amdhsa_accum_offset {accum}
  .amdhsa_group_segment_fixed_size 0
  .amdhsa_kernarg_size 80
  .amdhsa_user_sgpr_count 2
  .amdhsa_user_sgpr_kernarg_segment_ptr 1
  .amdhsa_system_sgpr_workgroup_id_x 1
.end_amdhsa_kernel
"""
def build_text(body):
    o = HEADER + f"; @launch grid=(256,1,1) block=(256,1,1) lds={LDS_BYTES}\n" + '.amdgcn_target "amdgcn-amd-amdhsa--gfx950"\n.text\n'
    o += f".globl {NAME}_kernel\n.p2align 8\n.type {NAME}_kernel,@function\n" + body
    return o + '.section .rodata,"a"\n.p2align 6\n' + kd(NAME + "_kernel", 512, 102, 256)
def addresses(lines):
    import subprocess, types, ctypes
    _o = ctypes.CDLL
    class F:
        def __getattr__(s, n):
            x = types.SimpleNamespace(); object.__setattr__(s, n, x); return x
    ctypes.CDLL = lambda n, *a, **k: (F() if "amdhip" in n else _o(n, *a, **k))
    sys.path.insert(0, "cdna_kernels")
    import cdna_launch as cl
    t = []
    for i, l in enumerate(lines):
        if l.strip().startswith("v_"): t.append(f"L_adr{i}:")
        t.append(l)
    open("_a.s", "w").write(cl.with_harness_metadata(build_text("\n".join(t) + "\n"), NAME + "_kernel", 10, launch_lists=True))
    subprocess.run([cl.ROCM_CLANG, "-x", "assembler", "-target", "amdgcn-amd-amdhsa", "-mcpu=gfx950", "_a.s", "-o", "_a.co"], check=True)
    r = subprocess.run(["llvm-objdump", "-t", "_a.co"], capture_output=True, text=True).stdout
    return {int(x.split()[-1][5:]): int(x.split()[0], 16) for x in r.split("\n") if "L_adr" in x}
def add_stubs(text):
    base = text.rstrip("\n").split("\n")
    lo = base.index("L_iwret:"); hi = base.index("L_fin:"); l0 = base.index("L_loop:")
    l1 = max(i for i, l in enumerate(base) if l.strip() == "s_cbranch_scc1 L_loop")
    pos = []
    for it in range(6):
        lines = []; idx = []
        chains = [[k for k in range(len(pos)) if k % 4 == w] for w in range(4)]
        nxt = {}
        for w in range(4):
            for a, b in zip(chains[w], chains[w][1:] + [None]): nxt[a] = f"L_pg{b}" if b is not None else "L_iwret"
        for i, l in enumerate(base):
            idx.append(len(lines)); lines.append(l)
            if i in pos:
                k = pos.index(i)
                lines += ([f"L_iw{k}:"] if k < 4 else []) + [f"L_pg{k}:", f"    s_cbranch_execz {nxt[k]}"]
        if len(pos) < 4: lines += [x for w in range(len(pos), 4) for x in (f"L_iw{w}:", "    s_branch L_iwret")]
        ad = addresses(lines); inv = {j: i for i, j in enumerate(idx)}
        first = min(i for i, l in enumerate(base) if l.strip().startswith("v_mfma") and "a[0:3]" in l)
        mf = sorted((a, inv[j]) for j, a in ad.items() if lo < inv[j] < hi and (inv[j] < first or base[inv[j]].strip().startswith("v_mfma")))
        new = [min(i for a, i in mf if i > base.index("L_join:"))]
        pg = mf[0][0] >> 12
        for a, i in mf:
            if (a + 8) >> 12 > pg:
                pg = (a + 8) >> 12
                if OPT["iw"] == 2 or not (l0 < i < l1): new.append(i)
        new = sorted(set(new))
        if new == pos: break
        pos = new
    print("page stubs:", len(pos), file=sys.stderr)
    return "\n".join(lines) + "\n"
out = HEADER
out += f"; @launch grid=(256,1,1) block=(256,1,1) lds={LDS_BYTES}\n"
out += '.amdgcn_target "amdgcn-amd-amdhsa--gfx950"\n.text\n'
body_ = gen_main().text()
if OPT["iw"]: body_ = add_stubs(body_)
out += f".globl {NAME}_kernel\n.p2align 8\n.type {NAME}_kernel,@function\n" + body_
out += '.section .rodata,"a"\n.p2align 6\n' + kd(NAME + "_kernel", 512, 102, 256)
open(sys.argv[1], "w").write(out)
```

```python
import sys, math
from asmlib import *

NAME = "standalone__kv_cache_quant_int4_int2_kv_with_per_channel_or_per_token_scales__prompt"
OPT = dict(stamp=0, vmgap=4, sb=6, sa=6, ahead=8, thr=64, pf2=0, calx="", qa=6, plv=2, plk=10, ckv=1, ckk=1, tden=24, touch=0, w0poll=0, cap=48, qb=6, q3e=1, ksc=0, few=1, qc=15, pb=39, pl4=40, l2=3, k1e=0, greedy=0, g3n=3, pre=0, own1=1, ab=0, pk=0, split=0, prent=1, bal=1, flex=1, w2=0, dense="S61,S5,S2,S3,S4", dx=4, dvg=2, f3=1, pvs=1, qo=0, po=0, x2c=12, sst=1, q0f=1, nb6=1, tv=1, omv=0, ldc=8, rs=0, scnt=0, iw=2, pfnt=0, v64=1, lastp=1, lmf=1, fs=1, pq=2, fa=20, k1s=0, fb=99, pa=1, twop=0, llag=24, w5=40, z0=1, q3b=0, fp=1, fpa=14, eb=0, lva=70, qe=12, qf=0, ed=200, ed1=250, cut="22,46,6,42,10,30,10")
for a in sys.argv[2:]:
    k, v = a.split("="); OPT[k] = int(v) if v.lstrip("-").isdigit() else v
NS = 6
STAGE = 24576
HEADBYTES = 64 * STAGE
RING = NS * STAGE
LDS_BYTES = RING + 128
A0, B0, A1, B1, A2, B2 = [i * STAGE for i in range(6)]
CSCALE = (192.0 ** -0.5) * math.log2(math.e)
HEADER = open("cdna_kernels/" + NAME + ".s.ref").read().split("; Override launch geometry")[0]
MF = "v_mfma_f32_16x16x32_bf16"
V64 = OPT["v64"]; NVE = 3 if V64 else 4
NCH = 2 if V64 else 3
def chunk_dbs(n): return list(range(6 * n, 6 * n + 6)) if V64 else [3 * e + n for e in range(4)]

V_FVAL = 0; V_RD = 1; V_RDK = [2, 3]; V_DMA = 4; V_L = [5, 6, 7, 8]
V_KLD = 9; V_KSC = 10; V_KST = 11; V_VLD = 12; V_FLAG = 13; V_RD2 = 59; V_RD3 = 60
V_T = 16; NTP = 2
V_VST = 15; V_STAMP = 14; V_T4 = 20
V_FR = 24; NFS = 6
V_CT = 48; V_VO = 52; V_RS = [56, 60]; BX = 224; BY = 240; BZ = 144
V_POLL = V_VO; V_KA = V_VO + 2
UNIT = [64, 80, 160, 176]; HI = [96, 112]
VQD = 136; VQR = [22, 23, 142, 143]
def Sq(t, sl, tb): return (UNIT[t % 4] if tb == 0 else HI[t % 2]) + 4 * sl
def P(t, sl): return UNIT[t % 4] + 4 * sl
def NEGM(qb): return 128 + 4 * qb
def O(qb, db): return (qb * 12 + db) * 4
def Qf(qb, s, half=None):
    i = qb * 6 + s
    base, f = (192 + 4 * i, ar) if i < 16 else (192 + 4 * (i - 16), vr)
    return f(base, 4) if half is None else f(base + 2 * half, 2)
def FR(f): return vr(V_FR + 4 * (f % NFS), 4)

S_RDELTA = 3; S_WS = 4; S_Q = 8; S_OUT = 12; S_FLG = 20
S_WAVE = 25; S_DMK = 26; S_GOFF = 27; S_RK = 28; S_TMP = 29; S_RV = 30; S_CNT = 31; S_GOFFK = 32
S_PK0 = 33; S_PK1 = 34; S_PV0 = 35; S_PKS = 36; S_PVS = 37; S_CS = 38; S_RET = 39; S_PV1 = 16; S_PV2 = 17
S_QL = 40; S_QS = 41; S_TAG = 42; S_FOFF = 44; S_XCC = 45; S_OWN = 46; S_RC = 46; S_RD = 47
S_PT = 48; S_DMV = 56; S_TK = 57; S_TV = 58; S_TP = 59
S_QK = 64; S_QV = 68; S_KS = 72; S_KZ = 76; S_VS = 80; S_VZ = 84; S_DBG = 88
S_NEED = 92; S_HOFF = 93; S_HEAD = 94; S_QB = 95; S_BUDGET = 96; S_MASK = 97
WSOFF = OPT.get("wsoff", 0) << 20
FLAG_OFF = WSOFF + (49 << 20)
SC1 = {0: " sc1", 1: "", 2: " nt", 3: " sc0", 4: " sc1 nt", 5: " sc0 sc1"}[OPT.get("dmaf", 0)]; NTKV = " nt"; NTQ = " nt"; STF = " sc1" if not OPT.get("stp") else ""; OF = {0: " sc0 sc1", 1: " sc1", 2: " sc1 nt", 3: " sc0 sc1 nt"}[OPT.get("of", 0)]

STAMPS = []
def istamp(name, force=False):
    if OPT["calx"] == name: return ["s_memrealtime s[100:101]"]
    if OPT["stamp"] not in (6, 8, 9): return []
    if OPT["stamp"] == 8 and name.startswith(("k", "z")) and not force: return []
    if OPT["few"] and force and name not in ("karg", "k0b", "vst", "tag", "post", "poll", "postV", "pollV", "pre-dk1"): return []
    if OPT["stamp"] != 8 and force: return []
    STAMPS.append(name)
    return ["s_waitcnt lgkmcnt(0)"] * (1 if force else 0) + [f"v_mov_b32_dpp v{V_STAMP}, v{V_STAMP} wave_shr:1 row_mask:0xf bank_mask:0xf", f"v_writelane_b32 v{V_STAMP}, s98, 0",
            ("s_memtime" if OPT["stamp"] == 6 else "s_memrealtime") + " s[98:99]"]

def order_stamps():
    l = list(STAMPS); out = []
    if "S62" in l:
        l.remove("S61"); l.insert(l.index("S62"), "S61")
    for n in l:
        if "." in n: continue
        out.append(n); out += [m for m in l if m.startswith(n + ".")]
    return out
class W:
    def __init__(self, *tags): self.tags = tags
class VM:
    def __init__(self, tag, text): self.tag = tag; self.text = text
class LG:
    def __init__(self, *tags): self.tags = tags
class DS:
    def __init__(self, tag, text): self.tag = tag; self.text = text

def mode_of(t):
    if OPT["fs"] and t < 4: return "f"
    return {0: "a", 1: "a", 2: "b", 3: "b", 58: "a", 59: "a", 60: "a", 61: "b", 62: "b", 63: "b"}.get(t, "f")
def slot_q(t, sl):
    m = mode_of(t)
    return sl if m == "f" else (sl & 1) + (0 if m == "a" else 2)
ONES = 20
def softmax_part(t, half, lm=False):
    if lm:
        l = [x for x in softmax_part(t, half) if not x.startswith("v_add")]
        out = []
        for x in l:
            out.append(x)
        k = [i for i, x in enumerate(out) if x.startswith("v_cvt_pk")][3]
        mm = lambda sl: f"{MF} v[{RL[slot_q(t, sl)]}:{RL[slot_q(t, sl)]+3}], v[{P(t, sl)}:{P(t, sl)+3}], v[{ONES}:{ONES+3}], " + ("0" if (t, half) == (61, 1) else f"v[{RL[slot_q(t, sl)]}:{RL[slot_q(t, sl)]+3}]")
        return out[:k + 3] + [mm(2 * half)] + out[k + 3:] + ["s_nop 1", mm(2 * half + 1)]
    flat = []; prev = None
    for gp in range(8):
        sl = 2 * half + gp // 4; pi = gp % 4; l = V_L[slot_q(t, sl)]
        t0 = V_T + 2 * (gp % NTP); t1 = t0 + 1
        src = Sq(t, sl, pi >> 1) + 2 * (pi & 1)
        E = [f"v_exp_f32 v{t0}, v{src}", f"v_exp_f32 v{t1}, v{src+1}"]
        A = [f"v_add_f32 v{l}, v{l}, v{t0}", f"v_add_f32 v{l}, v{l}, v{t1}"]
        C = [f"v_cvt_pk_bf16_f32 v{P(t,sl)+pi}, v{t0}, v{t1}"]
        if 16 <= t < 26:
            if OPT["ab"] & 1: A = []
            if OPT["ab"] & 2: E = [x.replace("v_exp_f32", "v_mov_b32") for x in E]
            if OPT["ab"] & 32: C = []
            if OPT["ab"] & 64: E = []; A = []; C = []
        flat += E if prev is None else E[:1] + prev[0] + E[1:] + prev[1]
        prev = (A, C)
    return flat + prev[0] + prev[1]

class Grp:
    def __init__(self, rd, mf): self.rd = rd; self.mf = mf; self.reb = []
def qk_tile(t, w, slots, czero=False):
    gs = []
    if OPT["qo"] == 1 and len(slots) == 4:
        for s_ in range(6):
            rd = [(V_RDK[s_ & 1], w * 12288 + tb * 6144 + (s_ >> 1) * 128) for tb in range(2)]
            mf = []
            for sl, qb in slots:
                for tb in range(2):
                    d = vr(Sq(t, sl, tb), 4)
                    mf.append((tb, d, Qf(qb, s_), (("0" if czero else vr(NEGM(qb), 4)) if s_ == 0 else d)))
            gs.append(Grp(rd, mf))
        return gs
    for gi in range(6):
        s0 = 2 * (gi >> 1); tb = gi & 1
        rd = [(V_RDK[j], w * 12288 + tb * 6144 + (s0 >> 1) * 128) for j in range(2)]
        mf = []
        for sl, qb in slots:
            d = vr(Sq(t, sl, tb), 4)
            mf += [(0, d, Qf(qb, s0), (("0" if czero else vr(NEGM(qb), 4)) if s0 == 0 else d)), (1, d, Qf(qb, s0 + 1), d)]
        gs.append(Grp(rd, mf))
    return gs
def qk_full(t): return [g for w in range(2) for g in qk_tile(t + w, w, [(q, q) for q in range(4)])]
def qk_half(t, czero=False, ws=(0, 1)):
    return [g for w in ws for g in qk_tile(t, w, [(2 * w + j, slot_q(t, j)) for j in range(2)], czero)]
def OV(qb, db): return (BY if qb == 2 else BZ) + 4 * (db // 3)
def pv_grp(t, db, first=False, va=V_RD):
    m = mode_of(t); mf = []
    for qb in (range(4) if m == "f" else [slot_q(t, 0), slot_q(t, 1)]):
        d = ar(O(qb, db), 4)
        if OPT["omv"] and t >= 61 and db % 3 == 2: d = " " + vr(OV(qb, db), 4)
        for w in range(2):
            b = P(t + w, qb) if m == "f" else P(t, 2 * w + (qb & 1))
            mf.append((w, d, vr(b, 4), "0" if (first and w == 0) else d))
    return Grp([(va, w * 12288 + db * 1024) for w in range(2)], mf)
def pv_seq(t, first=False):
    if OPT["po"] == 1 and mode_of(t) == "f":
        gs = []
        for d0 in range(0, 12, 2):
            for w in range(2):
                mf = [(e, ar(O(qb, d0 + e), 4), vr(P(t + w, qb), 4), ar(O(qb, d0 + e), 4)) for qb in range(4) for e in range(2)]
                gs.append(Grp([(V_RD, w * 12288 + (d0 + e) * 1024) for e in range(2)], mf))
        return gs
    if OPT["po"] == 2 and mode_of(t) == "f":
        gs = []
        for db in range(12):
            mf = [(w, ar(O(qb, db), 4), vr(P(t + w, qb), 4), ar(O(qb, db), 4)) for w in range(2) for qb in range(4)]
            gs.append(Grp([(V_RD, w * 12288 + db * 1024) for w in range(2)], mf))
        return gs
    return [pv_grp(t, db, first) for db in range(12)]
def pv_unchained(t, first=False):
    gs = []
    for w in range(2):
        for d0 in range(0, 12, 2):
            mf = []
            for j in range(2):
                qb = slot_q(t, j)
                for e in range(2):
                    d = ar(O(qb, d0 + e), 4)
                    mf.append((e, d, vr(P(t, 2 * w + j), 4), "0" if (first and w == 0) else d))
            gs.append(Grp([(V_RD, w * 12288 + (d0 + e) * 1024) for e in range(2)], mf))
    return gs
def rebase(gs, regs, delta):
    op = "v_add_u32" if delta >= 0 else "v_subrev_u32"
    gs[0].reb += [f"{op} v{r}, {abs(delta)}, v{r}" for r in regs]
    return gs
def rd_op(gi, j, g):
    f = 2 * gi + j
    return DS(("fr", f % NFS), f"ds_read_b128 {FR(f)}, v{g.rd[j][0]} offset:{g.rd[j][1]}")

def dma_tile(part, pos, peel=False):
    dm, go, tmp = (S_DMK, S_GOFFK, S_TK) if part == "k" else (S_DMV, S_GOFF, S_TV)
    l = [f"s_mov_b32 m0, s{dm}"]
    for j in range(3):
        l.append(VM(("d" + part, pos % 8), f"buffer_load_dwordx4 v{V_DMA}, s[{S_WS}:{S_WS+3}], s{go} offen offset:{j*1024}{SC1} lds"))
    if peel and pos < 7:
        l += [f"s_add_u32 s{go}, s{go}, {STAGE}", f"s_sub_u32 s{tmp}, s{go}, {8*STAGE}", f"s_min_u32 s{go}, s{go}, s{tmp}"]
    elif peel and pos == 7:
        l += [f"s_mov_b32 s{go}, {8*STAGE + (0 if part == 'k' else 12288)}"]
    else:
        l += [f"s_add_u32 s{go}, s{go}, {STAGE}"]
    if pos % 2 == 0: l += [f"s_add_u32 s{dm}, s{dm}, 12288"]
    else: l += [f"s_add_u32 s{dm}, s{dm}, {2*STAGE - 12288}", f"s_sub_u32 s{tmp}, s{dm}, {RING}", f"s_min_u32 s{dm}, s{dm}, s{tmp}"]
    return l
QOFF = [STAGE, 0, 2 * STAGE, STAGE]
def q_dma(lst):
    l = []
    if not lst: return l
    for i in lst:
        a, b = divmod(i, 6)
        l += [f"s_mov_b32 s{S_QS}, {a*6144}"] * (1 if (b == 0 or i == lst[0]) else 0)
        l += [f"s_add_u32 m0, s{S_QL}, {QOFF[a] + b*1024}",
              VM(("q", a), f"buffer_load_dwordx4 v{VQD+b}, s[{S_Q}:{S_Q+3}], s{S_QS} offen{NTQ} lds")]
    return l
def q_frags(qb):
    l = []
    for s in range(6):
        for h in range(2):
            sp = s + 6 * h
            l.append(DS(("qf", qb), f"ds_read_b64 {Qf(qb,s,h)}, v{VQR[sp&3]} offset:{QOFF[qb] + (sp>>2)*128}"))
    return l
def with_nop(l):
    out = []
    for i, x in enumerate(l):
        out.append(x)
        if isinstance(x, str) and " m0," in x and i + 1 < len(l) and isinstance(l[i + 1], VM): out.append("s_nop 0")
    return out
def rd_step(kind):
    cur, regs = (S_RK, V_RDK) if kind == "q" else (S_RV, [V_RD])
    return [f"s_add_u32 s{S_TMP}, s{cur}, {2*STAGE}", f"s_sub_u32 s{S_RDELTA}, s{S_TMP}, {RING}",
            f"s_min_u32 s{S_TMP}, s{S_TMP}, s{S_RDELTA}", f"s_sub_u32 s{S_RDELTA}, s{S_TMP}, s{cur}", f"s_mov_b32 s{cur}, s{S_TMP}"] + \
           [f"v_add_u32 v{r}, s{S_RDELTA}, v{r}" for r in regs]

def k_ld(h, buf, rs, tag, scal_first=True):
    sc = [VM(tag, f"buffer_load_dwordx2 v[{rs+2*i}:{rs+2*i+1}], v{V_KSC}, s[{srd_}:{srd_+3}], s{S_PKS} offen offset:{192*h}" + (" nt" if OPT["scnt"] else ""))
          for i, srd_ in enumerate((S_KS, S_KZ))]
    l = []
    for j in range(4):
        so = S_PK0 if j < 2 else S_PK1
        l.append(VM(tag, f"buffer_load_dwordx4 v[{buf+4*j}:{buf+4*j+3}], v{V_KLD}, s[{S_QK}:{S_QK+3}], s{so} offen offset:{(j&1)*1536+384*h}{NTKV}"))
    return sc + l if scal_first else l + sc
def v_ld(h, buf, rs, tag, scal_first=True):
    sc = [VM(tag, f"buffer_load_dwordx2 v[{rs+2*i}:{rs+2*i+1}], off, s[{srd_}:{srd_+3}], s{S_PVS} offset:{8*h}" + (" nt" if OPT["scnt"] else ""))
          for i, srd_ in enumerate((S_VS, S_VZ))]
    l = []
    for r in range(4):
        so = S_PV0 if h == 0 else S_PV1
        l.append(VM(tag, f"buffer_load_dwordx{NVE} v[{buf+4*r}:{buf+4*r+NVE-1}], v{V_VLD}, s[{S_QV}:{S_QV+3}], s{so} offen offset:{r*768}{NTKV}"))
    return sc + l if scal_first else l + sc
def k_cv(h, buf, rs, out):
    l = []
    s0, s1, z0, z1 = V_CT, V_CT + 1, V_CT + 2, V_CT + 3
    for i in range(2):
        l += [f"v_lshlrev_b32 v{s0}, 16, v{rs+i}", f"v_and_b32 v{s1}, s{S_MASK}, v{rs+i}",
              f"v_lshlrev_b32 v{z0}, 16, v{rs+2+i}", f"v_and_b32 v{z1}, s{S_MASK}, v{rs+2+i}",
              f"v_mul_f32 v{s0}, s{S_CS}, v{s0}", f"v_mul_f32 v{s1}, s{S_CS}, v{s1}",
              f"v_mul_f32_e64 v{z0}, -v{z0}, v{s0}", f"v_mul_f32_e64 v{z1}, -v{z1}, v{s1}"]
        if OPT.get("nz", 0) & 1: l[-2:] = [f"v_mov_b32 v{z0}, 0", f"v_mov_b32 v{z1}, 0"]
        for j in range(4):
            a = buf + 4 * j + 2 * i; b = a + 1
            l += [f"v_cvt_f32_i32 v{a}, v{a}", f"v_cvt_f32_i32 v{b}, v{b}",
                  f"v_fma_f32 v{a}, v{a}, v{s0}, v{z0}", f"v_fma_f32 v{b}, v{b}, v{s1}, v{z1}",
                  f"v_cvt_pk_bf16_f32 v{out+4*j+2*h+i}, v{a}, v{b}"]
    return l
def k_st(j, out, tag="kst", STF=STF, pre=False):
    va = V_KST; g = []
    if j and pre: va = V_T4 + j
    elif j:
        va = V_KA + (j & 1); g.append(f"v_xor_b32 v{va}, {16*j}, v{V_KST}")
    g.append(VM(tag, f"buffer_store_dwordx4 v[{out+4*j}:{out+4*j+3}], v{va}, s[{S_WS}:{S_WS+3}], s{S_PK0} offen offset:{j*768}{STF}"))
    return g
def v_cv(h, buf, rs, out):
    l = []
    s0, s1, z0, z1 = V_CT, V_CT + 1, V_CT + 2, V_CT + 3
    for i in range(2):
        l += [f"v_lshlrev_b32 v{s0}, 16, v{rs+i}", f"v_and_b32 v{s1}, s{S_MASK}, v{rs+i}",
              f"v_lshlrev_b32 v{z0}, 16, v{rs+2+i}", f"v_and_b32 v{z1}, s{S_MASK}, v{rs+2+i}",
              f"v_mul_f32_e64 v{z0}, -v{z0}, v{s0}", f"v_mul_f32_e64 v{z1}, -v{z1}, v{s1}"]
        if OPT.get("nz", 0) & 2: l[-2:] = [f"v_mov_b32 v{z0}, 0", f"v_mov_b32 v{z1}, 0"]
        for e in range(NVE):
            a = buf + 4 * (2 * i) + e; b = buf + 4 * (2 * i + 1) + e
            l += [f"v_cvt_f32_i32 v{a}, v{a}", f"v_cvt_f32_i32 v{b}, v{b}",
                  f"v_fma_f32 v{a}, v{a}, v{s0}, v{z0}", f"v_fma_f32 v{b}, v{b}, v{s1}, v{z1}"]
    for e, i in [(0, 0), (1, 0), (0, 1), (1, 1), (2, 0), (2, 1), (3, 0), (3, 1)][:2 * NVE]:
        l.append(f"v_cvt_pk_bf16_f32 v{out+4*e+2*h+i}, v{buf+8*i+e}, v{buf+8*i+4+e}")
    return l
def v_st(e, out, tag="vst", STF=STF):
    so = S_PV0 if (e < 2 or V64) else S_PV2
    return [VM(tag, f"buffer_store_dwordx4 v[{out+4*e}:{out+4*e+3}], v{V_VST}, s[{S_WS}:{S_WS+3}], s{so} offen offset:{e*1024 if V64 else (e&1)*3072}{STF}")]
def k_adv():
    return [f"s_add_u32 s{S_PK0}, s{S_PK0}, {8*STAGE}", f"s_add_u32 s{S_PK1}, s{S_PK1}, {8*STAGE}", f"s_add_u32 s{S_PKS}, s{S_PKS}, {4*384}"]
def v_adv():
    return [f"s_add_u32 s{r}, s{r}, {8*STAGE}" for r in (S_PV0, S_PV1, S_PV2)] + [f"s_add_u32 s{S_PVS}, s{S_PVS}, {8*64}"]
HT = {"ka": (k_ld, k_cv, 0, BX, V_RS[0], BX), "kb": (k_ld, k_cv, 1, BY, V_RS[1], BX),
      "va": (v_ld, v_cv, 0, BZ, V_RS[0], BZ), "vb": (v_ld, v_cv, 1, BY, V_RS[1], BZ)}
def flag_post(first=False):
    return [f"v_add_u32 v{V_FVAL}, 1, v{V_FVAL}"] + [
            VM("flag", f"buffer_store_dword v{V_FVAL}, v{V_FLAG}, s[{S_FLG}:{S_FLG+3}], 0 offen")] * (OPT["l2"] == 1 or (OPT["l2"] == 2 and first)) + [
            VM("flag", f"buffer_store_dword v{V_FVAL}, v{V_FLAG}, s[{S_FLG}:{S_FLG+3}], 0 offen offset:32 sc1")]
def poll_addr():
    return [f"v_bfe_u32 v{V_POLL+1}, v{V_DMA}, 4, 6", f"v_lshlrev_b32 v{V_POLL+1}, 2, v{V_POLL+1}"]
def poll_load():
    if OPT["pa"]: return [VM("poll", f"buffer_load_dword v{V_POLL}, v{V_T4}, s[{S_FLG}:{S_FLG+3}], s{S_FOFF} offen sc1")]
    return poll_addr() + [VM("poll", f"buffer_load_dword v{V_POLL}, v{V_POLL+1}, s[{S_FLG}:{S_FLG+3}], s{S_FOFF} offen sc1")]
def poll_test():
    return [f"v_subrev_u32 v{V_POLL}, s{S_NEED}, v{V_POLL}", f"v_cmp_lt_u32 vcc, 15, v{V_POLL}", "s_nop 0", f"s_and_b32 s{S_TP}, vcc_lo, 0xff"]
def smem_flags():
    return [f"s_buffer_load_dwordx8 s[{S_PT}:{S_PT+7}], s[{S_FLG}:{S_FLG+3}], s{S_FOFF} glc"]
def smem_reduce():
    return [f"s_sub_u32 s{S_PT+i}, s{S_PT+i}, s{S_NEED}" for i in range(8)] + [f"s_max_u32 s{S_PT}, s{S_PT}, s{S_PT+i}" for i in range(1, 8)]
def smem_test():
    return smem_flags() + ["s_waitcnt lgkmcnt(0)"] + smem_reduce() + [f"s_cmp_lt_u32 s{S_PT}, 16"]
def diag(site):
    if not OPT.get("diag"): return []
    return [f"s_lshl_b32 s{S_TP}, s2, 8", f"s_add_u32 s{S_TP}, s{S_TP}, {site << 4}", f"s_add_u32 s{S_TP}, s{S_TP}, s{S_WAVE}", f"s_lshl_b32 s{S_BUDGET}, s{S_NEED}, 16", f"s_add_u32 s{S_TP}, s{S_TP}, s{S_BUDGET}",
            f"v_mov_b32 v{V_POLL+1}, s{S_TP}", f"buffer_store_dword v{V_POLL+1}, off, s[{S_DBG}:{S_DBG+3}], 0 offset:{4 + 8 * site} sc1",
            f"buffer_store_dword v{V_POLL}, v{V_T4}, s[{S_DBG}:{S_DBG+3}], 0 offen offset:192 sc1"]
def poll_slow(site):
    l = [f"L_pollslow{site}:"] + ([f"s_add_u32 s{S_TAG+1}, s{S_TAG+1}, {1 << (6 * site)}"] if OPT["stamp"] else [])
    l += [f"s_mov_b32 s{S_TP}, {60 if site == 0 else 200}", f"L_pollsm{site}:"] + smem_test() + [f"s_cbranch_scc1 L_pollok{site}",
          f"s_sub_u32 s{S_TP}, s{S_TP}, 1", f"s_cbranch_scc1 L_pollvec{site}", "s_sleep 1", f"s_branch L_pollsm{site}"]
    l += [f"L_pollvec{site}:"] + poll_addr() + [
            f"s_sub_u32 s{S_BUDGET}, s{S_BUDGET}, 1",
            f"s_cbranch_scc1 L_pollgiveup{site}",
            "s_sleep 2",
            f"buffer_load_dword v{V_POLL}, v{V_POLL+1}, s[{S_FLG}:{S_FLG+3}], s{S_FOFF} offen sc1",
            "s_waitcnt vmcnt(0)"]
    if site == 0 and OPT["l2"]:
        l += [f"s_bitcmp1_b32 s{S_NEED}, 9", "s_cbranch_scc1 L_nomix",
              f"v_xor_b32 v{V_POLL+1}, s{S_NEED}, v{V_POLL}", f"v_lshrrev_b32 v{V_POLL+1}, 5, v{V_POLL+1}", f"v_add_u32 v{V_POLL+1}, -1, v{V_POLL+1}",
              f"v_cmp_gt_u32 vcc, 31, v{V_POLL+1}", "s_nop 1", f"s_and_b32 s{S_TP}, vcc_lo, {'0xff' if OPT['l2'] == 3 else '0xff00'}", "s_cbranch_scc0 L_nomix"]
        l += fin([x for j in range(4) for x in k_st(j, BX)] + [x for e in range(NVE) for x in v_st(e, 112)])
        l += ["s_waitcnt vmcnt(0)", "s_barrier", f"s_and_b32 s{S_NEED}, s{S_NEED}, 0xfffffc00", f"s_add_u32 s{S_NEED}, s{S_NEED}, {16 << 5}",
              f"v_mov_b32 v{V_FVAL}, s{S_NEED}", f"s_add_u32 s{S_NEED}, s{S_NEED}, 1", f"s_mov_b32 s{S_FOFF}, 32"] + fin(flag_post()) + ["s_branch L_pollvec0", "L_nomix:"]
    l += poll_test() + [
            f"s_cbranch_scc1 L_pollvec{site}",
            f"s_branch L_pollok{site}",
            f"L_pollgiveup{site}:"] + diag(site) + [
            f"s_mov_b32 s{S_BUDGET}, 0",
            f"s_branch L_pollok{site}"]
    return l
def tag_load():
    return [VM("tag", f"buffer_load_dword v{V_FVAL}, off, s[{S_DBG}:{S_DBG+3}], s{S_HOFF} sc1")]
def tag_check():
    return [f"s_cmp_lg_u32 s{S_WAVE}, 0", "s_cbranch_scc1 L_tagdone",
            f"v_readfirstlane_b32 s{S_TAG}, v{V_FVAL}", f"s_mov_b32 s{S_RET}, 100",
            "s_waitcnt lgkmcnt(0)"] + ([f"s_mov_b32 s101, s{S_OWN}", f"s_mov_b32 s100, s{S_TAG}"] if OPT["stamp"] else []) + [f"s_and_b32 s{S_OWN}, s{S_OWN}, 0xfffffc00",
            "L_tagretry:", f"s_cmp_eq_u32 s{S_TAG}, s{S_OWN}", f"s_cselect_b32 s{S_TAG}, 0, s{S_TAG}", f"s_cmp_lg_u32 s{S_TAG}, 0", "s_cbranch_scc1 L_tagok",
            f"s_sub_u32 s{S_RET}, s{S_RET}, 1", "s_cbranch_scc1 L_tagslow", "s_sleep 4",
            f"s_buffer_load_dword s{S_TAG}, s[{S_DBG}:{S_DBG+3}], s{S_HOFF} glc", "s_waitcnt lgkmcnt(0)", "s_branch L_tagretry",
            "L_tagok:", f"s_add_u32 s{S_TAG}, s{S_TAG}, s{S_XCC}", f"v_mov_b32 v{V_FVAL}, s{S_TAG}", f"v_mov_b32 v{V_T}, {RING}", DS("w", f"ds_write_b32 v{V_T}, v{V_FVAL}"), "L_tagdone:"]
def tag_get():
    return [f"v_mov_b32 v{V_T}, {RING}", DS("tg", f"ds_read_b32 v{V_T+1}, v{V_T}")]
def tag_use():
    return [f"v_readfirstlane_b32 s{S_NEED}, v{V_T+1}", f"s_add_u32 s{S_NEED}, s{S_NEED}, 1"]
def tag_slow():
    return ["L_tagslow:",
            f"s_sub_u32 s{S_BUDGET}, s{S_BUDGET}, 1",
            "s_cbranch_scc1 L_taggiveup",
            "s_sleep 2",
            f"buffer_load_dword v{V_FVAL}, off, s[{S_DBG}:{S_DBG+3}], s{S_HOFF} sc1",
            "s_waitcnt vmcnt(0)",
            f"v_readfirstlane_b32 s{S_TAG}, v{V_FVAL}", "s_nop 0", f"s_cmp_eq_u32 s{S_TAG}, s{S_OWN}", "s_cbranch_scc1 L_tagslow",
            f"s_cmp_eq_u32 s{S_TAG}, 0", "s_cbranch_scc1 L_tagslow",
            "s_branch L_tagok",
            "L_taggiveup:"] + diag(15) + [
            f"s_mov_b32 s{S_BUDGET}, 0",
            "s_branch L_tagok"]

def text_of(x):
    return "s_waitcnt" if isinstance(x, (W, LG)) else (x.text if isinstance(x, (VM, DS)) else x)
def kind_of(x):
    t = text_of(x)
    if t.endswith(":"): return "label"
    if t.startswith("v_"): return "valu"
    if t.startswith("ds_"): return "ds"
    if t.startswith("buffer_store"): return "store"
    if t.startswith("buffer_"): return "load"
    return "salu"
def cost_of(x):
    k = kind_of(x); t = text_of(x)
    if k == "label": return 0
    if k == "store": return 20 if "x4" in t else (OPT["x2c"] if "x2" in t else 16 if "x3" in t else 8)
    if k == "load": return OPT["ldc"]
    if t.startswith("ds_write"): return 16 if ("b128" in t or "write2" in t) else 8
    if t.startswith(("v_exp", "v_rcp")): return 8
    if t.startswith("v_mfma"): return 32 if "x4_f32" in t else 8
    if t.startswith("s_nop"): return 4 * (int(t.split()[1]) + 1)
    if t.startswith("s_cbranch") or t.startswith("s_branch"): return 12
    if t.startswith("s_barrier"): return 8
    return 4
def gap_time(ops):
    t = 4; prev = None
    for o in ops:
        if o is None: continue
        k = kind_of(o)
        if k == "label": continue
        if k == "salu": t += cost_of(o)
        else: t = max(t, 8) + cost_of(o) + (8 if (k != "valu" and prev == "valu") else 0)
        prev = k
    return t

class Stream:
    def __init__(self, ops, first, last, maxper=99, dense=0):
        self.nb = {}; self.dl = []; l = []
        for o in ops:
            if isinstance(o, tuple):
                if o[0] == "nb": self.nb[len(l)] = o[1]
                else: self.dl.append((len(l), o[1]))
            else: l.append(o)
        ops = l
        self.ops = list(ops); self.first = first; self.last = last; self.maxper = maxper; self.dense = dense
        self.total = sum(cost_of(o) for o in self.ops); self.done = 0; self.i = 0
        self.gate = {}; self.i0 = 0

def pack(NG, A, B, C, T, streams, novm=(), nosalu=(), vmgap=4, light=()):
    out = []; over = 0; lastvm = -99
    for g in range(NG):
        a, b, c, tl = list(A[g]), list(B[g]), list(C[g]), list(T[g])
        cnt = {}; inC = set(); blocked = set()
        while True:
            best = None; bl = None; bsec = None
            for st in streams:
                if st.i >= len(st.ops) or g < st.first: continue
                if g < st.nb.get(st.i, 0): continue
                force = g >= st.last or any(st.i < n and g >= dg for n, dg in st.dl)
                if (cnt.get(id(st), 0) >= st.maxper or id(st) in blocked) and not force: continue
                o = st.ops[st.i]; k = kind_of(o); cst = cost_of(o)
                if k == "salu" and g in nosalu:
                    assert not force, (g, text_of(o))
                    continue
                if k in ("load", "store") and (g in novm or g - lastvm < vmgap) and not force: continue
                if k in ("load", "store", "ds"):
                    sec = "b" if id(st) not in inC and id(st) not in blocked else "c"
                    if sec == "c" and not force: continue
                elif k == "salu" and not a and cnt.get(id(st), 0) == 0:
                    sec = "a"
                else: sec = "c"
                tgt = st.total * (g - st.first + 1) / (st.last - st.first + 1)
                lag = tgt - st.done
                if not force:
                    if lag < cst / 2 - OPT["ahead"] and cst: continue
                    trial = (a + [o] if sec == "a" else a) + (b + [o] if sec == "b" else b) + (c + [o] if sec == "c" else c) + tl
                    gt = gap_time(trial)
                    if g in light and gt > 12 and k != "salu" and lag < OPT["llag"]: continue
                    if gt > 16:
                        if g % 2 == 0: continue
                        big = k == "store" or text_of(o).startswith(("ds_write_b128", "ds_write2"))
                        lim = max(20, st.dense) if lag > 24 else 16
                        if big and not (a + b + c + tl): lim = 32
                        if gt > lim: continue
                key = (force, k in ("load", "store"), lag / max(1, (st.last - g + 1)) ** 0.5)
                if best is None or key > bl: best = st; bl = key; bsec = sec
            if best is None: break
            o = best.ops[best.i]
            if bsec == "a": a.append(o)
            elif bsec == "b":
                b.append(o)
            else: c.append(o)
            if bsec == "c" or bsec == "b" and kind_of(o) != "ds" and False: inC.add(id(best))
            if bsec == "c": inC.add(id(best))
            if " m0," in text_of(o): blocked.add(id(best))
            if kind_of(o) in ("load", "store"): lastvm = g
            best.i += 1; best.done += cost_of(o); cnt[id(best)] = cnt.get(id(best), 0) + 1
        ops = a + b + c + tl
        tt = gap_time(ops)
        if tt > 16: over += tt - 16
        out.append(ops)
    for st in streams: assert st.i == len(st.ops)
    return out, over

def pack_dense(NG, A, B, C, T, streams, novm=(), nosalu=(), vmgap=2):
    jobs = []
    for st in streams:
        r = st.first; rel = []
        for i in range(len(st.ops)):
            r = max(r, st.nb.get(i, 0)); rel.append(r)
        for i, o in enumerate(st.ops):
            d = min([st.last] + [dg for n, dg in st.dl if i < n])
            k = kind_of(o)
            jobs.append([rel[i], d, cost_of(o) + (OPT["dx"] if k in ("store", "load") else 0) - (2 if k == "salu" else 0)])
    for g in range(NG): jobs.append([g, g, max(0, gap_time(A[g] + B[g] + C[g] + T[g]) - 8)])
    level = [None] * NG
    while jobs:
        free = [g for g in range(NG) if level[g] is None]
        pts_r = sorted({j[0] for j in jobs}); pts_d = sorted({j[1] for j in jobs})
        best = None
        for a_ in pts_r:
            ws = sorted((j[1], j[2]) for j in jobs if j[0] >= a_)
            w = 0; i = 0
            for b_ in pts_d:
                if b_ < a_: continue
                while i < len(ws) and ws[i][0] <= b_: w += ws[i][1]; i += 1
                n = sum(1 for g in free if a_ <= g <= b_)
                if n and (best is None or w / n > best[0]): best = (w / n, a_, b_)
        dn, a_, b_ = best
        if dn <= 8: break
        for g in free:
            if a_ <= g <= b_: level[g] = dn
        jobs = [j for j in jobs if not (j[0] >= a_ and j[1] <= b_)]
    extra = [2 * (level[g] - 8) if (level[g] is not None and g % 2) else 0 for g in range(NG)]
    return pack_dense1(NG, A, B, C, T, streams, novm, nosalu, vmgap, extra)
def pack_dense1(NG, A, B, C, T, streams, novm, nosalu, vmgap, extra):
    out = []; over = 0; lastvm = -99
    fixed = [gap_time(A[g] + B[g] + C[g] + T[g]) - (8 if not (B[g] + C[g] + T[g]) else 8) for g in range(NG)]
    for g in range(NG):
        a, b, c, tl = list(A[g]), list(B[g]), list(C[g]), list(T[g])
        carry = (carry if g else 0) + extra[g]
        bud = 16 + (carry if g % 2 else 0)
        blocked = set(); inC = set()
        for st in streams: st.i0 = st.i
        while True:
            best = None; bl = None
            cur = gap_time(a + b + c + tl)
            for st in streams:
                if st.i >= len(st.ops) or g < st.first or g < st.nb.get(st.i, 0): continue
                if st.i in st.gate:
                    o_, j_ = st.gate[st.i]
                    if (o_.i0 if (kind_of(st.ops[st.i]) == "store" and g < NG - 1) else o_.i) <= j_: continue
                    if o_.i0 <= j_: inC.add(id(st))
                force = g >= st.last or any(st.i < n and g >= dg for n, dg in st.dl)
                if id(st) in blocked and not force: continue
                o = st.ops[st.i]; k = kind_of(o)
                if k == "salu" and g in nosalu:
                    assert not force
                    continue
                mem = k in ("load", "store", "ds")
                if k in ("load", "store") and (g in novm or g - lastvm < vmgap) and not force: continue
                sec = "b" if (mem and id(st) not in inC) else ("a" if (k == "salu" and not a and id(st) not in inC and id(st) not in blocked and not any(x is st for x in ())) else "c")
                if sec == "a" and any(id(st) == y for y in inC): sec = "c"
                if mem and sec == "c" and not force: continue
                trial = gap_time((a + [o] if sec == "a" else a) + (b + [o] if sec == "b" else b) + (c + [o] if sec == "c" else c) + tl)
                if not force and trial > bud and not (cur < 16 and trial <= bud + 12 and g % 2): continue
                tgt = st.total * (g - st.first + 1) / (st.last - st.first + 1)
                n_, dd = min([(len(st.ops), st.last)] + [(n, dg) for n, dg in st.dl if st.i < n], key=lambda x: x[1])
                need = sum(cost_of(x) for x in st.ops[st.i:n_]) / max(1, dd - g + 1)
                key = (force, mem, need)
                if best is None or key > bl: best = st; bl = key; bsec = sec
            if best is None: break
            o = best.ops[best.i]
            {"a": a, "b": b, "c": c}[bsec].append(o)
            if bsec == "c" or (bsec == "b"):
                if bsec == "c": inC.add(id(best))
                else: usedb = True
            if bsec in ("a", "b"): best._g = g
            if " m0," in text_of(o): blocked.add(id(best))
            if kind_of(o) in ("load", "store"): lastvm = g
            best.i += 1; best.done += cost_of(o)
            if bsec == "b" and not a: a.append(None)
        a = [x for x in a if x is not None]
        ops = a + b + c + tl
        tt = gap_time(ops)
        carry = max(0, carry - max(0, tt - 16)) if extra[g] or g % 2 == 0 else 0
        if tt > 16: over += tt - 16
        out.append(ops)
    for st in streams: assert st.i == len(st.ops)
    return out, over

POLLSITES = []
def gen_seg(name, groups, nxt, sm=(), bars=(), tasks=(), dma=(), extra=(), endops=(), fixed=(), peel=True, vmgap=None):
    starts = []; n = 0
    for g in groups: starts.append(n); n += len(g.mf)
    NG = n
    A = [[] for _ in range(NG)]; B = [[] for _ in range(NG)]; C = [[] for _ in range(NG)]; T = [[] for _ in range(NG)]
    streams = []; novm = set(range(0, NG, 2)); nosalu = set()
    allg = list(groups) + list(nxt)
    assert len(groups) % 3 == 0
    for i, g in enumerate(groups):
        g0 = starts[i]; ln = len(g.mf)
        if i + 2 < len(allg):
            t = allg[i + 2]
            if not (OPT["ab"] & 4 and name.startswith("k") and i % 2): B[g0].append(rd_op(i + 2, 0, t)); B[g0 + ln // 2].append(rd_op(i + 2, 1, t))
            if t.reb:
                assert g0 > 0
                C[g0 - 1] += t.reb
        if i + 1 < len(allg):
            A[g0 + ln - 1].append(LG(("fr", (2 * i + 2) % NFS), ("fr", (2 * i + 3) % NFS)))
    for ops, f, l in sm: streams.append(Stream(ops, f, l))
    streams += list(extra)
    if endops:
        A[NG-4] += endops[:1]; A[NG-2] += [A[NG-1][0]] + list(endops[1:-1]); A[NG-1] = []; T[NG-1] = list(endops[-1:]); nosalu |= {NG-2, NG-1}
    for grp in dma:
        dl = []
        for part, pos in grp[:-2]: dl += dma_tile(part, pos, peel)
        k = max(i for i, x in enumerate(dl) if isinstance(x, VM)) + 1
        lim = NG - 3 if endops else NG - 1
        if grp[-1] + 1 > lim: k = len(dl)
        streams.append(Stream(dl[:k], grp[-2], grp[-1], maxper=2))
        if dl[k:]: streams.append(Stream(dl[k:], grp[-1] + 1, min(lim, grp[-1] + 12), maxper=2))
    bars = [(g, list(tg)) for g, tg in bars]
    for t in tasks:
        k_ = t[0]
        if k_ == "vst" and t[1] >= NVE: continue
        if k_ == "cv":
            _, cv, h, buf, rs, outb = HT[t[1]]
            ops = cv(h, buf, rs, outb)[t[2]:t[3]]
            if t[2] == 0: ops = [W(t[1])] + ops
            streams.append(Stream(ops, t[4], t[5]))
        elif k_ in ("kst", "vst"):
            grp = k_st(t[1], BX, pre=OPT["pa"]) if k_ == "kst" else v_st(t[1], BZ)
            g = t[2]; assert not B[g] and not A[g], (name, g)
            B[g].append(grp[-1]); novm |= set(range(g - OPT["sb"], g + OPT["sa"] + 1))
            if grp[:-1]: streams.append(Stream(grp[:-1], max(0, g - 5), g - 1))
        elif k_ in ("ld", "ldn"):
            ld, _, h, buf, rs, _o = HT[t[1]]
            adv = {"ka": k_adv(), "va": v_adv()}.get(t[1], []) if k_ == "ld" else []
            ops = ld(h, buf, rs, t[1])
            if len(t) > 4: ops = ops[2:] if t[4] == "raw" else ops[:2]
            streams.append(Stream(adv + ops, t[2], t[3], maxper=1))
        elif k_ == "post":
            bi = t[2] if len(t) > 2 else -1
            bars[bi][1].append(t[1])
            streams.append(Stream(flag_post(), bars[bi][0] + 1, min(NG - 3, bars[bi][0] + 14), maxper=1))
        elif k_ == "pf":
            streams.append(Stream([VM("pf", f"buffer_load_dword v{V_T4}, v{V_DMA}, s[{S_DBG}:{S_DBG+3}], s{S_HOFF} offen")], t[1], t[2]))
        elif k_ == "rld":
            streams.append(Stream([VM("rs", f"buffer_load_dwordx4 v[{V_T4}:{V_T4+3}], v{V_DMA}, s[{S_WS}:{S_WS+3}], s{S_RC} offen sc1")], t[1], t[2]))
        elif k_ == "rst":
            g = t[1]; assert g % 2 == 1 and not B[g] and not A[g] and not A[g - 1], (name, g)
            A[g - 1].append(W("rs")); B[g].append(VM("rs2", f"buffer_store_dwordx4 v[{V_T4}:{V_T4+3}], v{V_DMA}, s[{S_WS}:{S_WS+3}], s{S_RC} offen sc1"))
            novm |= set(range(g - OPT["sb"], g + OPT["sa"] + 1))
            streams.append(Stream([f"s_add_u32 s{S_RC}, s{S_RC}, s{S_RD}", f"s_sub_u32 s{S_RD}, 1024, s{S_RD}"], g + 1, g + 8, maxper=1))
        elif k_ == "pollld": streams.append(Stream(poll_load(), t[1], t[2], maxper=1))
        elif k_ == "pollchk":
            ps = len(POLLSITES); POLLSITES.append(ps)
            g = t[1]; assert g % 4 == 1
            pt = poll_test()
            A[g] += [W("poll")]; T[g] += pt[:2]; novm |= {g, g + 4}
            A[g + 3] += [pt[3]]; A[g + 4] += [f"s_cbranch_scc1 L_pollslow{ps}", f"L_pollok{ps}:"]; nosalu |= {g + 3, g + 4}
            A[g + 5] += [f"s_add_u32 s{S_NEED}, s{S_NEED}, 1"]
        elif k_ == "spollld": A[t[1]] += smem_flags()
        elif k_ == "spollchk":
            ps = len(POLLSITES); POLLSITES.append(ps)
            A[t[1]] += ["s_waitcnt lgkmcnt(0)"]
            streams.append(Stream(smem_reduce(), t[1] + 1, t[2] - 1, maxper=3))
            A[t[2]] += [f"s_cmp_ge_u32 s{S_PT}, 16", f"s_cbranch_scc1 L_pollslow{ps}", f"L_pollok{ps}:", f"s_add_u32 s{S_NEED}, s{S_NEED}, 1"]
        elif k_ == "step": streams.append(Stream(rd_step(t[1]), t[2], t[3], maxper=1))
        elif k_ == "q": streams.append(Stream(q_dma(t[1]), t[2], t[3], maxper=2))
        else: raise Exception(k_)
    for g, tags in bars:
        i = [j for j in range(len(groups)) if starts[j] + len(groups[j].mf) - 1 == g]
        assert i, (name, g)
        if len(groups[i[0]].mf) == 8:
            A[g - 2] += A[g]; A[g] = []
            if tags: A[g - 1] += [W(*tags)]
        elif tags: A[g - 2] += [W(*tags)]
        A[g] += ["s_barrier"]; novm |= {g}
    for g, sec, ops in fixed: {"A": A, "B": B, "C": C, "T": T}[sec][g] += ops
    if endops:
        for st_ in streams: st_.last = min(st_.last, NG - 2)
    m0w = sorted((st.first, st.last) for st in streams if any(" m0," in text_of(o) for o in st.ops))
    assert all(m0w[i][1] < m0w[i + 1][0] for i in range(len(m0w) - 1)), (name, m0w)
    if name in str(OPT["dense"]).split(","): fill, over = pack_dense(NG, A, B, C, T, streams, novm, nosalu, vmgap or OPT["dvg"])
    else:
        fill, over = pack(NG, A, B, C, T, streams, novm, nosalu, vmgap or OPT["vmgap"])
        if OPT["twop"] and name[0] in "kz":
            vg = {g for g in range(NG) if any(kind_of(o) in ("load", "store") for o in fill[g])}
            for st_ in streams: st_.i = 0; st_.done = 0
            fill, over = pack(NG, A, B, C, T, streams, set(novm) | (set(range(NG)) - vg), nosalu, vmgap or OPT["vmgap"], {g - 1 for g in vg})
    if over: print(f"seg {name}: over budget by {over} cycles", file=sys.stderr)
    out = istamp(name)
    g = 0
    for i, gr in enumerate(groups):
        for j, d, b, c in gr.mf:
            if (OPT["pvs"] & 1 and d[0] in "a ") or (OPT["pvs"] & 2 and d.startswith("v")): out.append(f"{MF} {d}, {b}, {FR(2*i+j)}, {c}")
            else: out.append(f"{MF} {d}, {FR(2*i+j)}, {b}, {c}")
            out += fill[g]; g += 1
    return with_nop(out)

GBAR = 79
def seg_groups(it):
    return qk_full(it + 1) if it % 2 else pv_seq(it - 2)
def gen_iter(it, tasks=(), dma=(), name=None, endops=(), peel=False, nxt=None, extra=(), bars=None, groups=None, sm=None, step=True):
    q = it % 2
    smB = softmax_part(it, 1); smA = softmax_part(it + 1, 0)
    if sm is None: sm = ([(smB + [("dl", 57), ("nb", 47)] + smA, 0, 95)] if OPT["flex"] else [(smB, 0, 50), (smA, 52, 95)]) if q else [(smB + smA, 0, 95)]
    need = [("dv", (it - 1) % 8), ("dv", it % 8)] if q else [("dk", (it + 2) % 8), ("dk", (it + 3) % 8)]
    tasks = list(tasks) + ([("step", "p" if q else "q", 30, GBAR - 3)] if step else [])
    return gen_seg(name or f"i{it}", groups or seg_groups(it), nxt if nxt is not None else seg_groups(it + 1)[:2], sm,
                   bars if bars is not None else [(GBAR, need)], tasks, dma, extra, endops, peel=peel)

K_ = lambda *j: tuple(("k", x) for x in j)
V_ = lambda *j: tuple(("v", x) for x in j)
def steady(k):
    ckv, ckk = OPT["ckv"], OPT["ckk"]
    plv, plk = OPT["plv"], OPT["plk"]
    if OPT["bal"]:
        c = [int(x) for x in str(OPT["cut"]).split(",")]
        a1, a2, b1, b2, v1, v2, w1 = c
        return {
            5: ([("cv", "ka", 0, a1, OPT["w5"], 95), ("pollchk", 1), ("vst", 0, 9), ("vst", 1, 17), ("vst", 2, 25), ("vst", 3, 33), ("post", "vst")], [K_(0, 1) + (41, 74)]) if ckk == 1 else
               ([("cv", "ka", 0, a1, 0, 95), ("pollchk", ckk), ("vst", 0, 1), ("vst", 1, 9), ("vst", 2, 17), ("vst", 3, 25), ("post", "vst")], [K_(0, 1) + (ckk + 7, 92)]),
            6: ([("cv", "ka", a1, a2, 0, 95), ("ld", "kb", 0, 44)] + [("rld", 70, 92)] * OPT["rs"], [K_(2, 3) + (0, 90)]),
            7: ([("cv", "ka", a2, 99, 0, 60 if b1 < 12 else 44), ("cv", "kb", 0, b1, 61 if b1 < 12 else 45, 95), ("ld", "va", 11, OPT["lva"]), ("pollld", plv, plv + 8)], [K_(4, 5) + (11, 92)]),
            0: ([("cv", "kb", b1, b2, 0, 95), ("pollchk", ckv)] + [("rst", 81)] * OPT["rs"], [V_(0, 1) + (ckv + 7, 74)]),
            1: ([("cv", "kb", b2, 99, 0, 30), ("cv", "va", 0, v1, 31, 95), ("ld", "vb", 32, 80)], [V_(2, 3) + (0, GBAR - 5)]) if b2 < 56 else
               ([("cv", "va", 0, v1, 20, 95), ("ld", "vb", 0, 40)], [V_(2, 3) + (0, 90)]),
            2: ([("cv", "va", v1, v2, 0, 95), ("kst", 0, 1), ("kst", 1, 9), ("kst", 2, 17), ("kst", 3, 25), ("post", "kst")], [K_(6, 7) + (33, 74)]),
            3: ([("cv", "va", v2, 99, 0, 50), ("cv", "vb", 0, w1, 51, 95), ("ld", "ka", 0, 44)], [V_(4, 5) + (0, 90)]),
            4: ([("cv", "vb", w1, 99, 0, 95), ("pollld", plk, plk + 16)] + ([("pf", 80, 92)] if OPT["pf2"] else []), [V_(6, 7) + (0, GBAR - 5)]),
        }[k]
    return {
        1: ([("cv", "va", 0, 22, 0, 95), ("ld", "vb", 0, 44)], [V_(2, 3) + (0, GBAR - 5)]),
        2: ([("cv", "va", 22, 99, 0, 95), ("kst", 0, 1), ("kst", 1, 9), ("kst", 2, 17), ("kst", 3, 25), ("post", "kst")], [K_(6, 7) + (33, 74)]),
        3: ([("cv", "vb", 0, 22, 0, 95), ("ld", "ka", 0, 44)], [V_(4, 5) + (0, GBAR - 5)]),
        4: ([("cv", "vb", 22, 99, 0, 95), ("pollld", plk, plk + 16)] + ([("pf", 80, 92)] if OPT["pf2"] else []), [V_(6, 7) + (0, GBAR - 5)]),
        5: ([("cv", "ka", 0, 16, 0, 95), ("pollchk", 1), ("vst", 0, 9), ("vst", 1, 17), ("vst", 2, 25), ("vst", 3, 33), ("post", "vst")], [K_(0, 1) + (41, 74)]),
        6: ([("cv", "ka", 16, 99, 0, 95), ("ld", "kb", 0, 30)], [K_(2, 3) + (31, 74)]),
        7: ([("cv", "kb", 0, 24, 40, 95), ("ld", "va", 11, 40), ("pollld", plv, plv + 8)], [K_(4, 5) + (41, 90)]),
        0: ([("cv", "kb", 24, 99, 0, 95), ("pollchk", ckv)], [V_(0, 1) + (ckv + 7, ckv + 44)]),
    }[k]

GA = V_RS[0]; TA = V_RS[0] + 1; BA = V_RS[0] + 2
RL = [V_CT, V_CT + 4, NEGM(0), NEGM(1)]
S_EO = 24
def epi_addr():
    return [f"v_bfe_u32 v{TA}, v{V_DMA}, 8, 2", f"v_mul_u32_u24 v{GA}, 1536, v{TA}", f"v_lshlrev_b32 v{BA}, 4, v{TA}",
            f"v_bfe_u32 v{TA}, v{V_DMA}, 4, 4", f"v_mul_u32_u24 v{TA}, {12 if V64 else 8}, v{TA}", f"v_add_u32 v{GA}, v{GA}, v{TA}", f"v_mov_b32 v{TA}, 1.0"] + [f"v_mov_b32 v{ONES+i}, 0x3f803f80" for i in range(4 * OPT["lmf"])] + [
            f"s_lshl_b32 s{S_EO}, s{S_QB}, 2", f"s_add_u32 s{S_EO}, s{S_EO}, s{S_WAVE}", f"s_mul_i32 s{S_EO}, s{S_EO}, {STAGE}",
            f"s_add_u32 s{S_QL}, s{S_EO}, 6144", f"s_add_u32 s{S_QS}, s{S_EO}, 12288", f"s_add_u32 s{S_TAG}, s{S_EO}, 18432"]
S_EQ = [S_EO, S_QL, S_QS, S_TAG]
def epi_l(qs, gap=("s_nop 7", "s_nop 1"), acc=False):
    fl = [f"v_mfma_f32_16x16x4_f32 v[{RL[q]}:{RL[q]+3}], v{V_L[q]}, v{TA}, " + (f"v[{RL[q]}:{RL[q]+3}]" if acc else "0") for q in qs] + list(gap)
    return fl + [f"v_rcp_f32 v{RL[q]+r}, v{RL[q]+r}" for q in qs for r in range(4)]
class Epi:
    def __init__(self, temps): self.temps = temps; self.n = 0; self.pend = []
    def flush(self, k=99):
        p = self.pend[:k]; self.pend = self.pend[k:]
        return p
    def chunk(self, qb, n, pk=False, inv=False):
        p = []
        if V64:
            for r in range(4):
                o = self.temps[self.n % len(self.temps)]; self.n += 1; rl = RL[qb] + r
                p += [f"v_accvgpr_read_b32 v{o+e}, a{O(qb,6*n+e)+r}" for e in range(6)]
                if pk: p += [f"v_pk_mul_f32 v[{o+2*i}:{o+2*i+1}], v[{o+2*i}:{o+2*i+1}], v[{rl&~1}:{(rl&~1)+1}] " + ("op_sel:[0,1] op_sel_hi:[1,1]" if rl & 1 else "op_sel_hi:[1,0]") for i in range(3)]
                else: p += [f"v_mul_f32 v{o+e}, v{o+e}, v{rl}" for e in range(6)]
                p += [f"v_cvt_pk_bf16_f32 v{o+i}, v{o+2*i}, v{o+2*i+1}" for i in range(3)] + self.flush(1)
                self.pend.append(VM("out", f"buffer_store_dwordx3 v[{o}:{o+2}], v{GA}, s[{S_OUT}:{S_OUT+3}], s{S_EQ[qb]} offen offset:{n*192 + r*384}{OF}"))
            return p
        ob = self.temps[self.n % len(self.temps)]; self.n += 1
        for r in range(4):
            o = ob + 4 * r
            if inv:
                p += [f"v_mul_f32 v{o+e}, v{OV(qb,3*e+n)+r}, v{RL[qb]+r}" for e in range(4)]
                p += [f"v_cvt_pk_bf16_f32 v{o+i}, v{o+2*i}, v{o+2*i+1}" for i in range(2)] + self.flush(1)
                self.pend.append(VM("out", f"buffer_store_dwordx2 v[{o}:{o+1}], v{GA}, s[{S_OUT}:{S_OUT+3}], s{S_EQ[qb]} offen offset:{n*128 + r*384}{OF}"))
                continue
            p += [f"v_accvgpr_read_b32 v{o+e}, a{O(qb,3*e+n)+r}" for e in range(4)]
            rl = RL[qb] + r
            if pk: p += [f"v_pk_mul_f32 v[{o+2*i}:{o+2*i+1}], v[{o+2*i}:{o+2*i+1}], v[{rl&~1}:{(rl&~1)+1}] " + ("op_sel:[0,1] op_sel_hi:[1,1]" if rl & 1 else "op_sel_hi:[1,0]") for i in range(2)]
            else: p += [f"v_mul_f32 v{o+e}, v{o+e}, v{rl}" for e in range(4)]
            p += [f"v_cvt_pk_bf16_f32 v{o+i}, v{o+2*i}, v{o+2*i+1}" for i in range(2)]
            p += self.flush(1)
            self.pend.append(VM("out", f"buffer_store_dwordx2 v[{o}:{o+1}], v{GA}, s[{S_OUT}:{S_OUT+3}], s{S_EQ[qb]} offen offset:{n*128 + r*384}{OF}"))
        return p

def gen_tail():
    sp = softmax_part
    g57 = qk_half(58) + rebase(qk_half(59), V_RDK, A0 - A2)
    g58 = pv_seq(56)
    g59 = rebase(qk_half(60), V_RDK, A1 - A0) + rebase(qk_half(61), V_RDK, A2 - A1)
    g60 = rebase(pv_seq(58), [V_RD], B2 - B1) + rebase(pv_seq(59), [V_RD], B0 - B2)
    g61 = rebase(pv_seq(60), [V_RD], B1 - B0) + rebase(qk_half(62), V_RDK, A0 - A2)
    g62 = rebase(qk_half(63), V_RDK, A1 - A0) + ([] if OPT["f3"] else rebase(pv_seq(61), [V_RD], B2 - B1))
    g63 = []
    for dbs in ([chunk_dbs(0), [6, 7, 8], [9, 10, 11]] if V64 else [chunk_dbs(n) for n in range(3)]):
        if OPT["f3"]: g63 += [pv_grp(61, db, va=V_RD3) for db in dbs]
        g63 += [pv_grp(62, db) for db in dbs] + [pv_grp(63, db, va=V_RD2) for db in dbs]
    if OPT["f3"]: g63[0].reb += [f"v_add_u32 v{V_RD3}, {B2 - B1}, v{V_RD}", f"v_mov_b32 v{V_RD2}, v{V_RD}", f"v_subrev_u32 v{V_RD}, {B1 - B0}, v{V_RD}"]
    else: g63[0].reb += [f"v_subrev_u32 v{V_RD2}, {B2 - B1}, v{V_RD}", f"v_subrev_u32 v{V_RD}, {B2 - B0}, v{V_RD}"]
    first57 = g57[:2]
    Z0 = OPT["z0"] and OPT["lastp"]
    p = []
    p += gen_seg("S57", g57, g58[:2], [(sp(57, 1) + [("dl", 50), ("nb", 28)] + sp(58, 0), 0, 95)], [(7, [("dk", 5)])] * (1 - Z0) + [(GBAR, [("dv", 0), ("dv", 1)])],
                 [("step", "p", 30, GBAR - 3)], [] if Z0 else [(K_(62, 63) + (8, 60)) if OPT["tv"] else (K_(62, 63) + V_(58, 59) + (8, 90))], peel=False)
    p += gen_seg("S58", g58, g59[:2], [(sp(58, 1) + sp(59, 0), 0, 95), (epi_addr(), 0, 95)], [(GBAR, [("dk", 7)] if OPT["tv"] else [("dk", 7), ("dv", 3)])], [],
                 [(V_(58, 59, 60, 61) + (0, 74)) if OPT["tv"] else (V_(60, 61) + (0, 60))], peel=False)
    p += gen_seg("S59", g59, g60[:2], [(sp(59, 1) + [("dl", 50), ("nb", 28)] + sp(60, 0), 0, 95)], [(15, [("dv", 5)])], [], [V_(62, 63) + (16, 60)], peel=False)
    p += gen_seg("S60", g60, g61[:2], [(sp(60, 1) + sp(61, 0), 0, 95)], [(GBAR, [("dv", 7)])])
    ep = Epi([BX + 6 * i for i in range(5)] if V64 else [BX] if OPT["omv"] else [BX, BY])
    e01 = [x for qb in (0, 1) for n in range(NCH) for x in ep.chunk(qb, n, OPT["pk"])] + ep.flush()
    chk = [f"v_max3_f32 v{V_T+2}, v{V_L[0]}, v{V_L[1]}, v{V_L[2]}", f"v_max_f32 v{V_T+2}, v{V_T+2}, v{V_L[3]}",
           f"s_mov_b32 s{S_TMP}, 0x{f32bits(2.0**OPT['thr']):08x}", f"v_cmp_lt_f32 s[{S_PT}:{S_PT+1}], s{S_TMP}, v{V_T+2}"]
    c = [ep.chunk(2, j, OPT["pk"]) + ep.chunk(3, j, OPT["pk"]) + ep.flush() for j in range(NCH - 1)] + [[]]
    sm = sp(61, 1) + epi_l((0, 1), [])[2:] + [("dl", 50), ("nb", 76)] + sp(62, 0) + [("nb", 98)] + sp(62, 1) + [("nb", 124)] + sp(63, 0) + [("nb", 148)] + sp(63, 1) + [("dl", 205)] + chk + [("nb", 214)] + epi_l((2, 3), [])[2:]
    ee = e01 + [("nb", 228)] + c[0] + [("nb", 260)] + c[1]
    lastsm = 220
    if OPT["f3"]:
        sm = sp(61, 1) + epi_l((0, 1), [])[2:] + [("dl", 50), ("nb", 76)] + sp(62, 0) + [("nb", 98)] + sp(62, 1) + [("dl", 157), ("nb", 124)] + sp(63, 0) + [("nb", 148)] + sp(63, 1) + [("dl", 173)] + chk + [("nb", 182)] + epi_l((2, 3), [])[2:]
        ee = e01 + [("dl", OPT["ed"]), ("nb", 196)] + c[0] + [("dl", OPT["ed1"]), ("nb", 244)] + c[1]
        lastsm = 190
        if V64:
            lm = OPT["lmf"]
            sm = sp(61, 1, lm) + epi_l((0, 1), [])[2:] + [("dl", 50), ("nb", 76)] + sp(62, 0, lm) + [("nb", 98)] + sp(62, 1, lm) + [("dl", 165), ("nb", 124)] + sp(63, 0, lm) + [("nb", 148)] + sp(63, 1, lm) + [("dl", 187 if lm else 189)]
            if lm:
                chk = [f"v_max3_f32 v{V_T+2}, v{V_L[0]}, v{V_L[1]}, v{RL[2]}"] + [f"v_max3_f32 v{V_T+2}, v{V_T+2}, v{a_}, v{a_+1}" for a_ in (RL[2] + 1, RL[2] + 3, RL[3] + 1)] + [f"v_max_f32 v{V_T+2}, v{V_T+2}, v{RL[3]+3}"] + chk[2:]
                sm += [("nb", 198)] + chk + epi_l((2, 3), [])[2:]
            else: sm += chk + [("nb", 198)] + epi_l((2, 3), [])[2:]
            ee = e01 + [("dl", OPT["ed"] + 20), ("nb", 220)] + c[0]
            lastsm = 206
    if OPT["sst"]:
        prod = []; ev = []
        for x in ee:
            if isinstance(x, VM): prod.append(x)
            else: ev.append(x)
        es = Stream(ev, 52, 286); ss = Stream(prod, 52, 287)
        cv = [i for i, x in enumerate(es.ops) if text_of(x).startswith("v_cvt_pk")][(2 if V64 else 1)::(3 if V64 else 2)]
        rd = [i for i, x in enumerate(es.ops) if text_of(x).startswith("v_accvgpr_read")][0::(6 if V64 else 4)]
        assert len(cv) == len(prod) == len(rd)
        for k in range(len(prod)):
            ss.gate[k] = (es, cv[k]); ss.nb[k] = max([0] + [gp for i, gp in es.nb.items() if i <= cv[k]])
            kk = k + (1 if V64 else 4) * len(ep.temps)
            if kk < len(prod): es.gate[rd[kk]] = (ss, k)
        xs = [es, ss]
        LT = [96, 102, 108, 114, 120, 64, 70, 144]
        if V64: xs.append(Stream([x for q in (2, 3) for r in range(4) for x in [f"v_accvgpr_read_b32 v{LT[4*(q-2)+r]+e}, a{O(q,6+e)+r}" for e in range(3)] +
                                  [f"v_mul_f32 v{LT[4*(q-2)+r]+e}, v{LT[4*(q-2)+r]+e}, v{RL[q]+r}" for e in range(3)]], 256, 287))
        if OPT["omv"]: xs.append(Stream([f"v_accvgpr_read_b32 v{OV(q, db)+r}, a{O(q, db)+r}" for q in (2, 3) for db in (2, 5, 8, 11) for r in range(4)], 0, 140))
    else: xs = [Stream(ee, 52, 287)]
    p += gen_seg("S61", g61 + g62 + g63, [], [(sm, 0, lastsm)], extra=xs,
                 fixed=[(1, "T", epi_l((0, 1))[:1]), (3, "T", epi_l((0, 1))[1:2]), (lastsm - 15, "T", epi_l((2, 3), acc=V64 and OPT["lmf"])[:1]), (lastsm - 13, "T", epi_l((2, 3), acc=V64 and OPT["lmf"])[1:2]), (lastsm + 5, "A", [f"s_cmp_lg_u64 s[{S_PT}:{S_PT+1}], 0", "s_cbranch_scc1 L_slow"]), (95, "T", istamp("S62")), (191, "T", istamp("S63"))])
    p += istamp("fin") + ["s_nop 7"]
    if OPT["omv"]: ep.temps = [UNIT[0], UNIT[1]]
    if V64:
        for q in (2, 3):
            for r in range(4):
                o = LT[4 * (q - 2) + r]
                p += [f"v_accvgpr_read_b32 v{o+e}, a{O(q,6+e)+r}" for e in range(3, 6)] + [f"v_cvt_pk_bf16_f32 v{o}, v{o}, v{o+1}"]
                p += [f"v_mul_f32 v{o+e}, v{o+e}, v{RL[q]+r}" for e in range(3, 6)] + [f"v_cvt_pk_bf16_f32 v{o+i}, v{o+2*i}, v{o+2*i+1}" for i in (1, 2)]
                p += [VM("out", f"buffer_store_dwordx3 v[{o}:{o+2}], v{GA}, s[{S_OUT}:{S_OUT+3}], s{S_EQ[q]} offen offset:{192 + r*384}{OF}")]
        return first57, p
    p += ep.chunk(2, NCH - 1, True, OPT["omv"]) + ep.flush() + ep.chunk(3, NCH - 1, True, OPT["omv"]) + ep.flush()
    return first57, p
def slow_epi():
    ep = Epi([64 + 6 * i for i in range(8)] if V64 else [64 + 16 * i for i in range(4)])
    seq = ["s_nop 1"] + epi_l((0, 1)) + epi_l((2, 3)) + ["s_nop 0"]
    for qb in range(4):
        for n in range(NCH): seq += ep.chunk(qb, n, True)
    return seq + ep.flush()

def kfrag(g):
    return 2 * (g >> 2) + (g & 1), (g >> 1) & 1
def gen_slow():
    KF = 64; VF = 112; SS = 160; PP = 224; M = [240, 241, 242, 243]; KA = [244, 245]; LA = 246; t = V_T
    p = ["L_slow:", "s_waitcnt vmcnt(0) lgkmcnt(0)", "s_nop 15"]
    for i in range(192): p.append(f"v_accvgpr_write_b32 a{i}, 0")
    for q in range(4): p += [f"v_mov_b32 v{V_L[q]}, 0", f"v_mov_b32 v{M[q]}, 0xff7fffff"]
    p += [f"v_subrev_u32 v{KA[0]}, {A1}, v{V_RDK[0]}", f"v_subrev_u32 v{KA[1]}, {A1}, v{V_RDK[1]}", f"v_subrev_u32 v{LA}, {B0}, v{V_RD}",
          f"s_mov_b32 s{S_PT}, 0", "L_slowloop:"]
    for i in range(1, 5): p.append(f"s_add_u32 s{S_PT+i}, s{S_PT}, {[0, 6144, 12288, 16384, 20480][i]}")
    for f in range(12):
        s, tb = kfrag(f)
        p.append(f"buffer_load_dwordx4 v[{KF+4*f}:{KF+4*f+3}], v{KA[s&1]}, s[{S_WS}:{S_WS+3}], s{S_PT+tb} offen offset:{(s>>1)*128} sc1")
    for db in range(12):
        p.append(f"buffer_load_dwordx4 v[{VF+4*db}:{VF+4*db+3}], v{LA}, s[{S_WS}:{S_WS+3}], s{S_PT+2+db//4} offen offset:{(db%4)*1024} sc1")
    p.append("s_waitcnt vmcnt(12)")
    for f in range(12):
        s, tb = kfrag(f)
        for qb in range(4):
            d = vr(SS + 8 * qb + 4 * tb, 4)
            p.append(f"{MF} {d}, v[{KF+4*f}:{KF+4*f+3}], {Qf(qb,s)}, {'0' if s == 0 else d}")
    p.append("s_nop 9")
    for qb in range(4):
        sb = SS + 8 * qb
        p += [f"v_max3_f32 v{t}, v{sb}, v{sb+1}, v{sb+2}", f"v_max3_f32 v{t}, v{t}, v{sb+3}, v{sb+4}",
              f"v_max3_f32 v{t}, v{t}, v{sb+5}, v{sb+6}", f"v_max3_f32 v{t}, v{t}, v{sb+7}, v{M[qb]}"]
        p += xlane("v_max_f32", t)
        p += [f"v_sub_f32 v{t+1}, v{M[qb]}, v{t}", f"v_exp_f32 v{t+1}, v{t+1}", f"v_mov_b32 v{M[qb]}, v{t}"]
        for i in range(8): p.append(f"v_sub_f32 v{sb+i}, v{sb+i}, v{t}")
        for i in range(8): p.append(f"v_exp_f32 v{sb+i}, v{sb+i}")
        p.append(f"v_mul_f32 v{V_L[qb]}, v{V_L[qb]}, v{t+1}")
        for i in range(8): p.append(f"v_add_f32 v{V_L[qb]}, v{V_L[qb]}, v{sb+i}")
        for i in range(4): p.append(f"v_cvt_pk_bf16_f32 v{PP+4*qb+i}, v{sb+2*i}, v{sb+2*i+1}")
        p += [f"ds_bpermute_b32 v{248+r}, v{BA}, v{t+1} offset:{4*r}" for r in range(4)] + ["s_waitcnt lgkmcnt(0)"]
        for i in range(48):
            a = O(qb, 0) + i; tt = t + 2 + (i % 2)
            p += [f"v_accvgpr_read_b32 v{tt}, a{a}", f"v_mul_f32 v{tt}, v{tt}, v{248+i%4}", f"v_accvgpr_write_b32 a{a}, v{tt}"]
    p += ["s_waitcnt vmcnt(0)", "s_nop 1"]
    for db in range(12):
        for qb in range(4):
            d = ar(O(qb, db), 4)
            p.append(f"{MF} {d}, v[{PP+4*qb}:{PP+4*qb+3}], v[{VF+4*db}:{VF+4*db+3}], {d}")
    p += [f"s_add_u32 s{S_PT}, s{S_PT}, {STAGE}", f"s_cmp_lt_u32 s{S_PT}, {HEADBYTES}", "s_nop 7", "s_cbranch_scc1 L_slowloop"]
    e = slow_epi(); resolve(e)
    return p + fin(e) + ["s_branch L_fin"]

def xlane(op, t, u=None):
    u = t + 1 if u is None else u
    l = []
    for sw in ("v_permlane16_swap_b32", "v_permlane32_swap_b32"):
        l += [f"v_mov_b32 v{u}, v{t}", "s_nop 1", f"{sw} v{t}, v{u}", "s_nop 1", f"{op} v{t}, v{t}, v{u}"]
    return l
def rowmax2(t, qs, tq):
    l = []
    ab = [(Sq(t, j, 0), Sq(t, j, 1)) for j in range(2)]
    l += [f"v_max3_f32 v{tq[j]}, v{a}, v{a+1}, v{a+2}" for j, (a, b) in enumerate(ab)]
    l += [f"v_max3_f32 v{tq[j]}, v{tq[j]}, v{a+3}, v{b}" for j, (a, b) in enumerate(ab)]
    l += [f"v_max3_f32 v{tq[j]}, v{tq[j]}, v{b+1}, v{b+2}" for j, (a, b) in enumerate(ab)]
    l += [f"v_max_f32 v{tq[j]}, v{tq[j]}, v{b+3}" for j, (a, b) in enumerate(ab)]
    for sw in ("v_permlane16_swap_b32", "v_permlane32_swap_b32"):
        l += [f"v_mov_b32 v{tq[j]+1}, v{tq[j]}" for j in range(2)] + ["s_nop 0"]
        l += [f"{sw} v{tq[j]}, v{tq[j]+1}" for j in range(2)] + ["s_nop 0"]
        l += [f"v_max_f32 v{tq[j]}, v{tq[j]}, v{tq[j]+1}" for j in range(2)]
    l += [f"v_sub_f32 v{NEGM(qs[j])+i}, 0, v{tq[j]}" for j in range(2) for i in range(4)]
    return l
def sm_one(t, sl):
    a, b = Sq(t, sl, 0), Sq(t, sl, 1); tq = V_CT; qb = slot_q(t, sl); rs = [r + i for r in (a, b) for i in range(4)]
    l = [f"v_max3_f32 v{tq}, v{a}, v{a+1}, v{a+2}", f"v_max3_f32 v{tq+2}, v{a+3}, v{b}, v{b+1}",
         f"v_max3_f32 v{tq}, v{tq}, v{b+2}, v{b+3}", f"v_max_f32 v{tq}, v{tq}, v{tq+2}"] + xlane("v_max_f32", tq)
    l += [f"v_sub_f32 v{r}, v{r}, v{tq}" for r in rs] + [f"v_exp_f32 v{r}, v{r}" for r in rs] + [f"v_sub_f32 v{NEGM(qb)+i}, 0, v{tq}" for i in range(4)]
    l += [f"v_add_f32 v{V_L[qb]}, v{V_L[qb]}, v{r}" for r in rs] + [f"v_cvt_pk_bf16_f32 v{a+i}, v{rs[2*i]}, v{rs[2*i+1]}" for i in range(4)]
    return l
def addneg(t, sl):
    n = NEGM(slot_q(t, sl))
    return [f"v_add_f32 v{Sq(t,sl,tb)+i}, v{Sq(t,sl,tb)+i}, v{n}" for tb in range(2) for i in range(4)]

def resolve(seq):
    vm = []; ds = []
    for x in seq:
        if isinstance(x, VM): vm.append(x.tag)
        elif isinstance(x, DS): ds.append(x.tag)
        elif isinstance(x, (W, LG)):
            q = vm if isinstance(x, W) else ds
            best = None
            for tag in x.tags:
                n = 0; found = False
                for t in reversed(q):
                    if t == tag: found = True; break
                    n += 1
                if found: best = n if best is None else min(best, n)
            if best is not None:
                x.n = best if getattr(x, "n", None) is None else min(x.n, best)
        else:
            assert not x.startswith(("ds_", "buffer_")) or "UNTRACKED" in x, x
def vm_size(x):
    t = x.text
    if t.startswith("buffer_store"): return 0
    if x.tag == "pre": return 3.0
    if " lds" in t: return 1.0
    if "dwordx4" in t or "dwordx3" in t: return 0.75
    if "dwordx2" in t and "offen" in t: return 0.375
    return 0.125
def pace(seq, cap):
    out = []; q = []; on = False
    for x in seq:
        if isinstance(x, W): q = q[len(q) - min(len(q), x.n):]; on = True
        elif isinstance(x, VM):
            sz = vm_size(x)
            if on and not x.text.startswith("buffer_store") and sum(q) + sz > cap:
                while q and sum(q) + sz > cap: q.pop(0)
                w = W(); w.n = len(q)
                if out and out[-1] == "s_nop 0": out.pop()
                out.append(w)
            q.append(sz)
        out.append(x)
    return out
def fin(seq):
    out = []
    for x in seq:
        if isinstance(x, (W, LG)):
            if OPT["ab"] and getattr(x, "n", None) is None: x.n = 63
            assert getattr(x, "n", None) is not None, x.tags
            out.append(f"s_waitcnt vmcnt({min(x.n, 63)})" if isinstance(x, W) else f"s_waitcnt lgkmcnt({min(x.n, 15)})")
        elif isinstance(x, (VM, DS)): out.append(x.text)
        else: out.append(x.replace(" ;UNTRACKED", ""))
    return out
def groups_of(l):
    out = [[]]
    for x in l:
        out[-1].append(x)
        if isinstance(x, VM): out.append([])
    tail = out.pop()
    if tail: out[-1] += tail
    return out
def sprinkle(code, l):
    if not l: return list(code)
    gs = groups_of(l); out = []; n = len(code); m = len(gs); j = 0
    for i, x in enumerate(code):
        while j < m and i * m >= j * n: out += with_nop(gs[j]); j += 1
        out.append(x)
    for g in gs[j:]: out += with_nop(g)
    return out
def srd(p, s, lo, hi, off_s, size):
    p += [f"s_add_u32 s{s}, s{lo}, s{off_s}", f"s_addc_u32 s{s+1}, s{hi}, 0", f"s_mov_b32 s{s+2}, {size}", f"s_mov_b32 s{s+3}, 0x20000"]

def gen_main():
    p = []
    p += [f"{NAME}_kernel:", "s_cmp_ge_u32 s2, 256", "s_cbranch_scc1 L_done",
          "s_load_dwordx16 s[40:55], s[0:1], 0", "s_load_dwordx4 s[16:19], s[0:1], 64"]
    if OPT["stamp"]: p += ["s_memtime s[98:99]" if OPT["stamp"] == 6 else "s_memrealtime s[98:99]"]
    p += [f"s_and_b32 s{S_HEAD}, s2, 7", f"s_lshr_b32 s{S_QB}, s2, 3", f"s_lshr_b32 s24, s{S_QB}, 3", f"s_lshl_b32 s{S_HEAD}, s{S_HEAD}, 2",
          f"s_add_u32 s{S_HEAD}, s{S_HEAD}, s24", f"s_and_b32 s{S_QB}, s{S_QB}, 7"]
    p += ["s_getpc_b64 s[60:61]", "L_pc:", f"s_sub_u32 s60, s60, L_pc-{NAME}_kernel", "s_subb_u32 s61, s61, 0",
          f"s_mov_b32 s62, L_slow-{NAME}_kernel", "s_mov_b32 s63, 0x20000",
          "s_lshr_b32 s22, s2, 3", "s_lshl_b32 s22, s22, 12",
          "v_lshlrev_b32 v30, 4, v0",
          VM("pf", "buffer_load_dwordx4 v[128:131], v30, s[60:63], s22 offen" + (" nt" if OPT["pfnt"] else ""))]
    p += ["v_lshrrev_b32 v24, 6, v0",
          "v_and_b32 v25, 63, v0",
          f"v_readfirstlane_b32 s{S_WAVE}, v24",
          f"v_lshlrev_b32 v{V_RD}, 4, v25",
          "v_mul_u32_u24 v26, 43, v25", "v_lshrrev_b32 v26, 10, v26",
          "v_mul_u32_u24 v27, 24, v26",
          "v_sub_u32 v27, v25, v27",
          "v_lshrrev_b32 v28, 1, v24",
          "v_and_b32 v29, 1, v24",
          "v_lshlrev_b32 v30, 4, v29",
          "v_lshl_add_u32 v30, v28, 2, v30",
          "v_add_u32 v30, v30, v26",
          "v_mul_u32_u24 v30, 768, v30",
          "v_lshrrev_b32 v48, 1, v26", "v_lshlrev_b32 v48, 30, v48",
          "v_lshl_add_u32 v30, v27, 4, v30", f"v_or_b32 v{V_KLD}, v30, v48",
          f"v_lshl_or_b32 v{V_KSC}, v27, 3, v48",
          "v_mul_u32_u24 v30, 6144, v24",
          ] + (["v_mul_u32_u24 v31, 12, v25", f"v_add_u32 v{V_VLD}, v30, v31"] if V64 else [f"v_add3_u32 v{V_VLD}, v30, v{V_RD}, v48"])
    for sd, size in ((S_QK, HEADBYTES), (S_QV, HEADBYTES), (S_KS, 12288), (S_KZ, 12288), (S_VS, 4096), (S_VZ, 4096), (S_FLG, 64)):
        p += [f"s_mov_b32 s{sd+2}, {size}", f"s_mov_b32 s{sd+3}, 0x20000"]
    p += [f"s_mul_i32 s{S_PK0}, s{S_QB}, {STAGE}", f"s_add_u32 s{S_PK1}, s{S_PK0}, 6144", f"s_mov_b32 s{S_PV0}, s{S_PK0}",
          f"s_lshr_b32 s{S_PKS}, s{S_QB}, 1", f"s_mul_i32 s{S_PKS}, s{S_PKS}, 384", f"s_lshl_b32 s{S_PVS}, s{S_QB}, 6",
          f"s_lshl_b32 s24, s{S_WAVE}, 4", f"s_add_u32 s{S_PVS}, s{S_PVS}, s24",
          f"s_mul_i32 s24, s{S_HEAD}, {HEADBYTES}", f"s_mul_i32 s56, s{S_HEAD}, 12288", f"s_lshl_b32 s57, s{S_HEAD}, 12",
          f"s_lshl_b32 s58, s{S_HEAD}, 10", f"s_add_u32 s58, s58, {FLAG_OFF + 96}",
          f"s_or_b32 s{S_RET}, s{S_QB}, s{S_WAVE}"]
    p += ["s_waitcnt lgkmcnt(0)"] + istamp("karg", True)
    def base(sd, lo, off): return [f"s_add_u32 s{sd}, s{lo}, s{off}", f"s_addc_u32 s{sd+1}, s{lo+1}, 0"]
    p += base(S_QK, 42, 24) + base(S_KS, 46, 56) + base(S_KZ, 48, 56)
    kl = [k_ld(0, BX, 32, "k0a"), k_ld(1, BY, 36, "k0b")]; vl = [v_ld(0, 112, 40, "v0a"), v_ld(1, 80, 44, "v0b")]
    for x in kl[1][:2]: x.tag = "k0a"
    for x in vl[1][:2]: x.tag = "v0a"
    if OPT["ksc"]:
        for x in kl[0][2:] + kl[1][2:]: x.tag = "kraw"
        for x in kl[1][:2]: x.tag = "k0b"
        p += kl[0][2:] + kl[1][2:] + kl[0][:2] + kl[1][:2]; kl[1] = []
    else: p += kl[0][2:] + kl[0][:2] + kl[1][:2]
    p += base(S_FLG, 18, 58) + base(S_VS, 50, 57) + base(S_VZ, 52, 57) + base(S_QV, 44, 24)
    p += [f"s_mul_i32 s59, s{S_HEAD}, 786432"] + base(S_OUT, 54, 59) + base(S_Q, 40, 59)
    p += [f"s_cmp_lg_u32 s{S_RET}, 0", "s_cbranch_scc1 L_notleader0", f"s_buffer_load_dwordx16 s[40:55], s[{S_FLG}:{S_FLG+3}], 0 glc", "L_notleader0:"]
    p += kl[1][2:]
    p += [f"s_add_u32 s24, s24, {WSOFF}"] * (1 if WSOFF else 0)
    srd(p, S_WS, 18, 19, 24, HEADBYTES)
    p += [f"s_mov_b32 s{S_Q+2}, 786432", f"s_mov_b32 s{S_Q+3}, 0x20000"]
    p += [f"s_mov_b32 s{S_DBG}, s16", f"s_mov_b32 s{S_DBG+1}, s17", f"s_add_u32 s{S_PV1}, s{S_PK0}, 3072", f"s_add_u32 s{S_PV2}, s{S_PK0}, 6144"]
    p += [f"s_mov_b32 s{S_DBG+2}, 256", f"s_mov_b32 s{S_DBG+3}, 0x20000", f"s_lshl_b32 s{S_HOFF}, s{S_HEAD}, 3"]
    p += [f"s_cmp_lg_u32 s{S_RET}, 0", "s_cbranch_scc1 L_notleader", "s_waitcnt lgkmcnt(0)", f"s_mov_b32 s{S_TP}, 1"]
    for i in range(16):
        p += [f"s_lshr_b32 s{40+i}, s{40+i}, 10", f"s_min_u32 s{40+i}, s{40+i}, 31", f"s_bitset1_b32 s{S_TP}, s{40+i}"]
    p += [f"s_ff0_i32_b32 s{S_TP}, s{S_TP}", f"s_lshl_b32 s{S_TP}, s{S_TP}, 10", f"v_mov_b32 v{V_POLL}, s{S_TP}",
          "s_mov_b64 exec, 1", f"buffer_store_dword v{V_POLL}, off, s[{S_DBG}:{S_DBG+3}], s{S_HOFF} sc1 ;UNTRACKED", "s_mov_b64 exec, -1",
          "L_notleader:"]
    p += [f"s_lshl_b32 s24, s{S_QB}, 2", f"s_add_u32 s24, s24, 32", f"s_buffer_load_dword s{S_OWN}, s[{S_FLG}:{S_FLG+3}], s24 glc",
          ] + ([f"s_getreg_b32 s{S_XCC}, hwreg(HW_REG_XCC_ID, 0, 4)", f"s_lshl_b32 s{S_XCC}, s{S_XCC}, 5", f"s_mov_b32 s{S_FOFF}, {32 if OPT['l2'] == 3 else 0}"] if OPT["l2"] else
          [f"s_mov_b32 s{S_XCC}, 0", f"s_mov_b32 s{S_FOFF}, 32"])
    p += vl[0][2:] + vl[0][:2] + vl[1][:2] + (vl[1][2:] if OPT["greedy"] else []) + istamp("iss", True)
    if OPT["pre"]:
        st = OPT["pre"]
        p += [f"v_mul_u32_u24 v31, {st}, v25", f"v_mul_u32_u24 v30, 6144, v24", "v_add_u32 v31, v30, v31"]
        if st == 128: p += ["v_or_b32 v31, v31, v48"]
        p += [VM("pre", f"buffer_load_dword v132, v31, s[{S_WS}:{S_WS+3}], s{S_PK0} offen" + (" nt" if OPT["prent"] else ""))]
        if st == 64: p += ["v_add_u32 v30, 4096, v31", "s_mov_b64 exec, 0xffffffff", VM("pre", f"buffer_load_dword v133, v30, s[{S_WS}:{S_WS+3}], s{S_PK0} offen nt"), "s_mov_b64 exec, -1"]
    p += [f"s_mov_b32 s{S_OUT+2}, 786432", f"s_mov_b32 s{S_OUT+3}, 0x20000"]
    p += [f"s_lshl_b32 s24, s{S_WAVE}, 8", f"s_add_u32 s{S_HOFF}, s{S_HOFF}, s24"]
    p += ["v_mul_u32_u24 v30, 3072, v24", f"v_add_u32 v{V_DMA}, v30, v{V_RD}"]
    p += ["v_lshl_add_u32 v30, v24, 3, v26",
          "v_mul_u32_u24 v30, 384, v30",
          "v_lshlrev_b32 v31, 2, v29",
          "v_xor_b32 v31, v27, v31",
          "v_lshl_add_u32 v30, v31, 4, v30", f"v_or_b32 v{V_KST}, v30, v48",
          "v_lshlrev_b32 v30, 8, v24",
          "v_add_u32 v30, 12288, v30",
          ] + (["v_lshrrev_b32 v31, 5, v25", "v_mul_u32_u24 v31, 6144, v31", "v_add_u32 v30, v30, v31", "v_and_b32 v31, 1, v25", "v_mul_u32_u24 v31, 3072, v31", "v_add_u32 v30, v30, v31",
          "v_bfe_u32 v31, v25, 1, 4", f"v_lshl_add_u32 v{V_VST}, v31, 4, v30"] if V64 else
          ["v_lshrrev_b32 v31, 4, v25", "v_lshl_add_u32 v30, v31, 10, v30", "v_and_b32 v31, 15, v25",
          "v_lshl_add_u32 v30, v31, 4, v30", f"v_or_b32 v{V_VST}, v30, v48"])
    p += [f"s_lshl_b32 s24, s{S_QB}, 2",
          f"v_lshl_add_u32 v{V_FLAG}, v0, 2, s24", f"v_cmp_lt_u32 vcc, 0, v0", "v_mov_b32 v30, 0x40000000", "s_nop 0",
          f"v_cndmask_b32 v{V_FLAG}, v{V_FLAG}, v30, vcc"]
    p += [f"s_mul_i32 s{S_DMK}, s{S_WAVE}, 3072", f"s_add_u32 s{S_DMK}, s{S_DMK}, 12288", f"s_add_u32 s{S_DMV}, s{S_DMK}, {STAGE}",
          f"s_add_u32 s24, s{S_QB}, 1", "s_and_b32 s24, s24, 7", f"s_mul_i32 s{S_GOFFK}, s24, {STAGE}", f"s_add_u32 s{S_GOFF}, s{S_GOFFK}, 12288",
          f"s_mov_b32 s{S_RK}, {A2}", f"s_mov_b32 s{S_RV}, {B1}", f"v_add_u32 v{V_RD}, {B0}, v{V_RD}",
          f"s_mov_b32 s{S_CS}, 0x{f32bits(CSCALE):08x}", f"s_mov_b32 s{S_MASK}, 0xffff0000",
          f"s_mov_b32 s{S_BUDGET}, 100000"] + ([f"s_mov_b32 s{S_TAG+1}, 0"] if OPT["stamp"] else [])
    p += ["v_and_b32 v26, 15, v25", "v_lshrrev_b32 v27, 4, v25", "v_bfe_u32 v28, v25, 1, 3",
          "v_xor_b32 v29, v27, v28", "v_mul_u32_u24 v30, 384, v26", f"v_lshl_add_u32 v{V_RDK[0]}, v29, 4, v30",
          f"v_xor_b32 v{V_RDK[1]}, 64, v{V_RDK[0]}"]
    p += [f"s_mul_i32 s{S_QL}, s{S_WAVE}, 6144", f"s_add_u32 s{S_QL}, s{S_QL}, {B1}",
          "v_lshrrev_b32 v29, 1, v27", "v_xor_b32 v29, v29, v28", "v_lshl_add_u32 v31, v29, 4, v30",
          "v_and_b32 v29, 1, v27", "v_lshl_add_u32 v31, v29, 3, v31"]
    for kk in range(4):
        p += [f"v_xor_b32 v{VQR[kk]}, {32*kk}, v31", f"v_add_u32 v{VQR[kk]}, s{S_QL}, v{VQR[kk]}"]
    p += [f"s_lshl_b32 s24, s{S_QB}, 2", f"s_add_u32 s24, s24, s{S_WAVE}", f"s_mul_i32 s24, s24, {STAGE}"]
    for b in range(6):
        p += [f"v_add_u32 v26, {64*b}, v25", "v_mul_u32_u24 v27, 2731, v26", "v_lshrrev_b32 v27, 17, v27",
              "v_and_b32 v27, 7, v27", "v_xor_b32 v26, v26, v27", f"v_lshlrev_b32 v{VQD+b}, 4, v26", f"v_add_u32 v{VQD+b}, s24, v{VQD+b}"]
    for q in range(4): p.append(f"v_mov_b32 v{V_L[q]}, 0")
    KF = 144
    def kf_reads(): return [DS("kf", f"ds_read_b128 v[{KF+4*f}:{KF+4*f+3}], v{V_RDK[kfrag(f)[0]&1]} offset:{kfrag(f)[1]*6144 + (kfrag(f)[0]>>1)*128}") for f in range(12)]
    def qk0(qb):
        l = []
        for f in sorted(range(12), key=lambda f: kfrag(f)[::-1]):
            s, tb = kfrag(f)
            d = vr(Sq(0, qb, tb), 4)
            l.append(f"{MF} {d}, v[{KF+4*f}:{KF+4*f+3}], {Qf(qb,s)}, {'0' if s == 0 else d}")
        return l
    STF0 = "" if OPT["l2"] else STF
    def own_k(b):
        l = []
        for j in range(4):
            l += k_st(j, b, "kst", STF0)
            va = V_KST if j == 0 else V_KA + (j & 1)
            l += ["s_mov_b64 exec, s[62:63]", DS("w", f"ds_write_b128 v{va}, v[{b+4*j}:{b+4*j+3}] offset:{j*768}"), "s_mov_b64 exec, -1"]
        return l
    def own_v(b):
        l = [x for e in range(NVE) for x in v_st(e, b, "vst", STF0)]
        if V64: return l + [DS("w", f"ds_write_b128 v{V_VST}, v[{b+4*e}:{b+4*e+3}] offset:{STAGE - 12288 + e*1024}") for e in range(3)]
        l += ["s_mov_b64 exec, s[62:63]"] + [DS("w", f"ds_write_b128 v{V_VST}, v[{b+4*e}:{b+4*e+3}] offset:{STAGE - 12288 + e*3072}") for e in range(4)] + ["s_mov_b64 exec, -1"]
        return l
    p += ["s_mov_b32 s62, -1", "s_mov_b32 s63, 0xffff"]
    qa = OPT["qa"]
    qb_, qc = OPT["qb"], OPT["qc"]
    R = lambda a, b: list(range(a, b))
    if OPT["split"]:
        p += [W("k0a")] + vl[1][2:] + k_cv(0, BX, 32, BX) + [W("k0b")] + istamp("k0b", True) + k_cv(1, BY, 36, BX) + own_k(BX)
        p += tag_load() + with_nop(q_dma(R(0, qa))) + [W("v0a")] + v_cv(0, 112, 40, 112)
        p += [W("tag")] + tag_check() + ["s_waitcnt lgkmcnt(0)", "s_barrier"] + flag_post() + tag_get() + istamp("post", True)
        p += with_nop(q_dma(R(qa, qb_))) + v_cv(1, 80, 44, 112) + own_v(112) + with_nop(q_dma(R(qb_, 12))) + istamp("vst", True)
    elif OPT["greedy"]:
        p += [W("k0a")] + with_nop(q_dma(R(0, 3))) + k_cv(0, BX, 32, BX) + [W("k0b")] + istamp("k0b", True) + with_nop(q_dma(R(3, 6))) + k_cv(1, BY, 36, BX) + own_k(BX)
        p += [W("v0a")] + with_nop(q_dma(R(6, 9))) + v_cv(0, 112, 40, 112) + [W("v0b")] + with_nop(q_dma(R(9, 12))) + v_cv(1, 80, 44, 112) + own_v(112)
        p += tag_load() + with_nop(q_dma(R(12, 18))) + istamp("vst", True)
    else:
        p += [W("k0a")] + vl[1][2:] + k_cv(0, BX, 32, BX) + [W("k0b")] + istamp("k0b", True) + k_cv(1, BY, 36, BX) + own_k(BX)
        p += with_nop(q_dma(R(0, qa))) + istamp("kst", True)
        p += [W("v0a")] + sprinkle(v_cv(0, 112, 40, 112), q_dma(R(qa, qb_))) + [W("v0b")] + v_cv(1, 80, 44, 112) + ([LG("w")] if OPT["eb"] else []) + own_v(112)
        p += tag_load() + with_nop(q_dma(R(qb_, OPT["qe"]))) + istamp("vst", True)
        if OPT["eb"]: p += ["s_barrier"] + kf_reads() + [W(("q", 0))] + q_frags(0) + [LG(("qf", 0))] + qk0(0) + ["s_nop 7"] + sm_one(0, 0)
        if OPT["q3b"]: p += [W(("q", 0))] + q_frags(0) + [LG(("qf", 0))] + with_nop(q_dma(R(18, 18 + OPT["q3b"])))
    if not OPT["split"]:
        if OPT["iw"]:
            p += ["s_mov_b64 exec, 0"] + [x for w in range(3) for x in (f"s_cmp_eq_u32 s{S_WAVE}, {w}", f"s_cbranch_scc1 L_iw{w}")] + ["s_branch L_iw3", "L_iwret:", "s_mov_b64 exec, -1"]
        p += [W("tag")] + tag_check() + istamp("tag", True)
        p += ["s_waitcnt lgkmcnt(0)", "s_barrier"] + flag_post(True) + tag_get() + istamp("post", True)
    if OPT["pf2"]:
        p += [f"s_mov_b32 s{S_DBG}, s60", f"s_mov_b32 s{S_DBG+1}, s61", f"s_mov_b32 s{S_DBG+2}, L_slow-{NAME}_kernel",
              "s_lshr_b32 s24, s2, 3", f"s_mul_i32 s{S_HOFF}, s24, 43", f"s_lshr_b32 s{S_HOFF}, s{S_HOFF}, 7",
              f"s_mul_i32 s{S_RET}, s{S_HOFF}, 3", f"s_sub_u32 s24, s24, s{S_RET}", "s_lshl_b32 s24, s24, 10",
              f"s_mul_i32 s{S_HOFF}, s{S_HOFF}, 12288", f"s_add_u32 s{S_HOFF}, s{S_HOFF}, s24"]
    if not OPT["eb"]: p += kf_reads()
    ps = len(POLLSITES); POLLSITES.append(ps)
    g3n = OPT["g3n"]
    pollchk = ["s_waitcnt lgkmcnt(0)"] + smem_reduce() + [f"s_cmp_ge_u32 s{S_PT}, 16", f"s_cbranch_scc1 L_pollslow{ps}", f"L_pollok{ps}:",
          f"s_add_u32 s{S_NEED}, s{S_NEED}, 1"] + [f"s_mov_b32 s{S_FOFF}, 32"] * (OPT["l2"] == 2) + istamp("poll", True)
    sm00 = rowmax2(0, (0, 1), (V_CT, V_CT + 2)) + addneg(0, 0) + addneg(0, 1) + softmax_part(0, 0)
    qrest = R(OPT["qe"] if OPT["greedy"] == 0 else 18, 18 + g3n)
    if OPT["fs"]:
        hand = with_nop(dma_tile("k", 1, True) + dma_tile("k", 2, True) + dma_tile("k", 3, True) + dma_tile("v", 1, True)) + k_adv() + v_adv()
        def inter(mf, fill):
            out = []; fill = list(fill)
            for m in mf:
                out.append(m); cur = []
                while fill and gap_time(cur + [fill[0]]) <= 20: cur.append(fill.pop(0))
                out += cur
            return out + fill
        NPV0 = 3; rest3 = []
        p += with_nop(q_dma(R(OPT["qe"], 18)))
        if OPT["fp"]:
            NPV0 = 2; a_ = OPT["fpa"]
            if OPT["eb"]: p += [LG("tg")] + tag_use() + with_nop(q_dma(R(18, 21)))
            else: p += [W(("q", 0))] + q_frags(0) + [LG("tg")] + tag_use() + [LG(("qf", 0))] + with_nop(q_dma(R(18, 21))) + qk0(0)
            for qb in (1, 2):
                sm = [] if (qb == 1 and OPT["eb"]) else sm_one(0, qb - 1)
                p += [W(("q", qb))] + q_frags(qb) + (smem_flags() if qb == 2 else with_nop(q_dma(R(21, 24)))) + sm[:a_] + [LG(("qf", qb))] + inter(qk0(qb), sm[a_:])
            g0 = [Grp([(V_RD, (d0 + e) * 1024) for e in range(2)], [(e, ar(O(q, d0 + e), 4), vr(P(0, q), 4), "0") for q in range(2) for e in range(2)]) for d0 in range(0, 12, 2)]
            p += [rd_op(i, j, g0[i]) for i in range(2) for j in range(2)] + pollchk + hand
            p += gen_seg("S0", g0, [], [(sm_one(0, 2), 0, 23)], tasks=[("ldn", "ka", 0, 10), ("ldn", "kb", 11, 23)][:OPT["k1s"]], vmgap=2)
            sm3 = sm_one(0, 3); k3 = [i for i, x in enumerate(sm3) if x.startswith("v_sub_f32")][0]
            neg = [x for x in sm3 if x.startswith(f"v_sub_f32 v{NEGM(3)}") or (", 0, v" in x and x.startswith("v_sub"))]
            p += [W(("q", 3))] + q_frags(3) + [LG(("qf", 3))] + qk0(3) + ["s_nop 7"] + sm3[:k3] + neg
            rest3 = [x for x in sm3[k3:] if x not in neg]
        else:
            for qb in range(4):
                if qb == 3:
                    g0 = []
                    for d0 in range(0, 12, 2):
                        g0.append(Grp([(V_RD, (d0 + e) * 1024) for e in range(2)], [(e, ar(O(q, d0 + e), 4), vr(P(0, q), 4), "0") for q in range(3) for e in range(2)]))
                    p += [rd_op(i, j, g0[i]) for i in range(2) for j in range(2)] + [LG(("fr", 0), ("fr", 1))]
                    p += gen_seg("S0", g0, [], tasks=[("ldn", "ka", 0, 16), ("ldn", "kb", 17, 35)][:OPT["k1s"]], vmgap=2)
                if qb == 0 and OPT["q3b"]: p += [LG("kf")] + tag_use()
                else: p += [W(("q", qb))] + q_frags(qb) + ([LG("tg")] + tag_use() if qb == 0 else []) + (smem_flags() if qb == OPT["pq"] else []) + [LG(("qf", qb))]
                if qb < 2: p += with_nop(q_dma([x for x in R(18 + 3 * qb, 21 + 3 * qb) if x >= 18 + OPT["q3b"]]))
                p += qk0(qb) + (pollchk + hand if qb == OPT["pq"] else ["s_nop 7"]) + sm_one(0, qb)
        sp = softmax_part
        g1 = qk_tile(1, 1, [(q, q) for q in range(4)])
        gi1 = rebase(qk_full(2), V_RDK, A1 - A0)
        gi2 = [Grp([(V_RD, w * 12288 + db * 1024) for w in range(2)],
                   [x for q in range(3, NPV0 - 1, -1) for x in ((0, ar(O(q, db), 4), vr(P(0, q), 4), "0"), (1, ar(O(q, db), 4), vr(P(1, q), 4), ar(O(q, db), 4)))] +
                   [(1, ar(O(q, db), 4), vr(P(1, q), 4), ar(O(q, db), 4)) for q in range(NPV0)]) for db in range(12)]
        L2_ = len(gi2[0].mf)
        gi3 = rebase(qk_full(4), V_RDK, A2 - A1)
        gi4 = rebase(pv_seq(2), [V_RD], B1 - B0)
        p += istamp("pre-dk1", True) + [W(("dk", 1)), "s_barrier"] + [rd_op(i, j, g1[i]) for i in range(2) for j in range(2)] + [LG(("fr", 0), ("fr", 1))]
        pa = [f"v_bfe_u32 v{V_T4}, v{V_DMA}, 4, 6", f"v_lshlrev_b32 v{V_T4}, 2, v{V_T4}"] + [f"v_xor_b32 v{V_T4+j}, {16*j}, v{V_KST}" for j in (1, 2, 3)]
        p += gen_seg("S1", g1, gi1[:2], [(rest3 + (pa if OPT["pa"] else []), 0, 40)], [(31, [("dk", 3)])], [("ldn", "ka", 0, 14), ("ldn", "kb", 15, 30)][OPT["k1s"]:] +
                     ([("cv", "ka", 0, 99, OPT["fb"], 47)] if OPT["k1s"] and OPT["fb"] < 47 else []), [K_(4, 5) + (32, 46)], vmgap=2)
        p += gen_seg("S5", gi1, gi2[:2], [(sp(1, 0) + sp(1, 1) + [("dl", 54), ("nb", 47)] + sp(2, 0), 2, 95)], [(GBAR, [("dv", 1)])],
                     ([("cv", "kb", 0, 99, OPT["fa"], 95), ("ldn", "va", 20, 40)] if (OPT["k1s"] and OPT["fb"] < 47) else
                      [("cv", "ka", 0, 99, OPT["fa"], 60), ("cv", "kb", 0, 99, 61, 95), ("ldn", "va", 20, 40, "raw"), ("ldn", "va", 62, 76, "sc")]), [V_(2, 3) + (0, 18)])
        p += gen_seg("i2", gi2, gi3[:2], [(sp(2, 1) + sp(3, 0), 0, 12 * L2_ - 1)], [(10 * L2_ - 1, [("dk", 5)])],
                     [("kst", j, 2 * L2_ * j + 1) for j in range(4)] + [("ld", "vb", 6 * L2_ + 4, 12 * L2_ - 1)], [], vmgap=2)
        p += gen_seg("i3", gi3, gi4[:2], [(sp(3, 1) + [("dl", 57), ("nb", 47)] + sp(4, 0), 0, 95)], [(15, []), (GBAR, [("dv", 3)])],
                     [("post", "kst", 0), ("cv", "va", 0, 99, 0, 95)], [K_(6, 7) + V_(4, 5) + (18, 90)])
        p += [f"s_mov_b32 s{S_CNT}, {7 - OPT['lastp']}"]
        p += gen_seg("i4", gi4, seg_groups(5)[:2], [(sp(4, 1) + sp(5, 0), 0, 94)], [(GBAR, [("dk", 7)])],
                     [("ld", "ka", 0, 30), ("cv", "vb", 0, 99, 20, 94), ("step", "q", 30, 70), ("pollld", OPT["pl4"], OPT["pl4"] + 8)], [V_(6, 7) + (32, 74)],
                     endops=["s_nop 0", "s_branch L_join"])
    elif OPT["split"]:
        ps2 = len(POLLSITES); POLLSITES.append(ps2)
        pollchk2 = ["s_waitcnt lgkmcnt(0)"] + smem_reduce() + [f"s_cmp_ge_u32 s{S_PT}, 16", f"s_cbranch_scc1 L_pollslow{ps2}", f"L_pollok{ps2}:",
              f"s_add_u32 s{S_NEED}, s{S_NEED}, 1"] + istamp("pollV", True)
        p += [W(("q", 0))] + q_frags(0) + [LG("tg")] + tag_use() + [LG(("qf", 0))] + smem_flags() + qk0(0) + pollchk
        p += with_nop(dma_tile("k", 1, True)) + k_adv() + v_adv()
        p += [W("vst"), "s_barrier"] + flag_post() + istamp("postV", True)
        p += with_nop(dma_tile("k", 2, True) + dma_tile("k", 3, True))
        p += [W(("q", 1))] + q_frags(1) + with_nop(q_dma(R(12, 15))) + [LG(("qf", 1))] + qk0(1) + ["s_nop 7"]
        g0 = pv_unchained(0, True)[:6]
        p += [rd_op(i, j, g0[i]) for i in range(2) for j in range(2)] + sprinkle(sm00, q_dma(R(15, 18 + g3n))) + smem_flags() + [LG(("fr", 0), ("fr", 1))]
        p += gen_seg("S0", g0, [], tasks=[("q", R(18 + g3n, 24), 0, 22)] if g3n < 6 else [], vmgap=2) + pollchk2
        p += with_nop(dma_tile("v", 1, True))
        g3n = 6
    elif OPT["own1"] == 2:
        p += [W(("q", 0))] + q_frags(0) + [LG("tg")] + tag_use() + with_nop(q_dma(qrest[:3])) + [LG(("qf", 0))] + qk0(0)
        p += [W(("q", 1))] + q_frags(1) + smem_flags() + with_nop(q_dma(qrest[3:])) + [LG(("qf", 1))] + qk0(1) + pollchk
        g0 = pv_unchained(0, True)[:6]
        p += [rd_op(i, j, g0[i]) for i in range(2) for j in range(2)]
        p += sprinkle(sm00, dma_tile("k", 1, True) + dma_tile("k", 2, True) + dma_tile("k", 3, True) + dma_tile("v", 1, True)) + k_adv() + v_adv() + [LG(("fr", 0), ("fr", 1))]
        p += gen_seg("S0", g0, [], tasks=[("q", R(18 + g3n, 24), 0, 22)] if g3n < 6 else [], vmgap=2)
        g3n = 6
    elif OPT["own1"]:
        pre0 = [x for x in qrest[:3] if x < 18]; post0 = [x for x in qrest[:3] if x >= 18]
        p += [W(("q", 0))] + q_frags(0) + [LG("tg")] + tag_use() + with_nop(q_dma(pre0)) + [LG(("qf", 0))] + with_nop(q_dma(post0)) + qk0(0)
        if OPT["q0f"]: p += ["s_nop 7"] + sm_one(0, 0); sm00 = sm_one(0, 1)
        p += [W(("q", 1))] + q_frags(1) + with_nop(q_dma(qrest[3:6])) + [LG(("qf", 1))] + qk0(1) + ["s_nop 7"]
        g0 = pv_unchained(0, True)[:6]
        p += [rd_op(i, j, g0[i]) for i in range(2) for j in range(2)] + sprinkle(sm00, q_dma(qrest[6:])) + smem_flags() + [LG(("fr", 0), ("fr", 1))]
        p += gen_seg("S0", g0, []) + pollchk
        p += with_nop(dma_tile("k", 1, True) + dma_tile("k", 2, True) + dma_tile("k", 3, True) + dma_tile("v", 1, True)) + k_adv() + v_adv()
        if OPT["qf"]: p += with_nop(q_dma(R(18 + g3n, 24))); g3n = 6
    else:
        p += [W(("q", 0))] + q_frags(0) + [LG("tg")] + tag_use() + [W(("q", 1))] + q_frags(1) + smem_flags()
        p += [LG(("qf", 0))] + with_nop(q_dma(qrest)) + pollchk
        p += with_nop(dma_tile("k", 1, True)) + k_adv() + v_adv()
        p += sprinkle(qk0(0) + qk0(1), dma_tile("k", 2, True)) + ["s_nop 7"]
        p += sprinkle(sm00, dma_tile("k", 3, True) + dma_tile("v", 1, True))
    if not OPT["fs"]:
        sp = softmax_part
        g1 = qk_half(0, ws=(1,))
        g2 = rebase(qk_half(1), V_RDK, A1 - A0)
        g3 = pv_unchained(0, True)[6 if OPT["own1"] else 0:]
        g4 = rebase(pv_unchained(1), [V_RD], B1 - B0)
        g5 = rebase(qk_half(2, True), V_RDK, A0 - A1) + rebase(qk_half(3), V_RDK, A1 - A0)
        gi3 = rebase(qk_full(4), V_RDK, A2 - A1)
        gi4 = rebase(pv_seq(2, True), [V_RD], B0 - B1) + rebase(pv_seq(3), [V_RD], B1 - B0)
        p += istamp("pre-dk1", True) + [W(("dk", 1)), "s_barrier"] + [rd_op(i, j, g1[i]) for i in range(2) for j in range(2)]
        p += [LG(("fr", 0), ("fr", 1))]
        p += gen_seg("S1", g1, g2[:2], [], [(15, [("dk", 3)])], [], [V_(2, 3) + (0, 21)], vmgap=2)
        p += gen_seg("S2", g2, g3[:2], [(sp(0, 1), 3, 47)], [(39, [("dv", 3)])] if OPT["own1"] else [], ([("q", R(18 + g3n, 24), 0, 24)] if g3n < 6 else []) + [("ldn", "ka", 25 if g3n < 6 else 0, 47)])
        if OPT["own1"]: p += gen_seg("S3", g3, g4[:2], [(sp(1, 0), 0, 23)], [], [("ldn", "kb", 0, 23)])
        else: p += gen_seg("S3", g3, g4[:2], [(sp(1, 0), 0, 47)], [(15, [("dv", 3)])], [("ldn", "kb", 0, 22), ("ldn", "va", 23, 46, "raw")])
        p += gen_seg("S4", g4, g5[:2], [(sp(1, 1), 0, 21)], [], [("ldn", "va", 0, 30, "raw")] if OPT["own1"] else [], extra=[Stream([W(("q", 2))] + q_frags(2) + [W(("q", 3))] + q_frags(3), 16, 46)])
        p += istamp("pre-S5", True) + ["s_waitcnt lgkmcnt(0)", "s_barrier"]
        p += gen_seg("S5", g5, gi3[:2], [(rowmax2(2, (2, 3), (V_T, V_T + 2)), 27, 45), (addneg(2, 0) + addneg(2, 1) + sp(2, 0) + addneg(2, 2) + addneg(2, 3) + sp(2, 1), 46, 95)],
                     [(GBAR + 8, [("dk", 5)])], [("cv", "ka", 0, 99, 0, 34), ("cv", "kb", 0, 99, 35, 72), ("kst", 0, 73), ("kst", 1, 77), ("kst", 2, 89), ("kst", 3, 93),
                     ("ldn", "va", 36, 60, "sc")], [K_(4, 5) + (1, 24)])
        p += gen_seg("i3", gi3, gi4[:2], [(sp(3, 0) + sp(3, 1), 0, 54), (sp(4, 0), 55, 95)], [(OPT["pb"], []), (GBAR, [])],
                     [("ld", "vb", 0, 22), ("post", "kst", 0), ("cv", "va", 0, 99, 10, 95)], [K_(6, 7) + V_(4, 5) + (24, 90)])
        p += [f"s_mov_b32 s{S_CNT}, {7 - OPT['lastp']}", f"s_mul_i32 s{S_RC}, s{S_QB}, {STAGE}", f"s_mov_b32 s{S_RD}, 12288"]
        p += gen_seg("i4", gi4, seg_groups(5)[:2], [(sp(4, 1) + sp(5, 0), 0, 94)], [(47, []), (GBAR + 8, [("dk", 7)])],
                     [("ld", "ka", 0, 30), ("cv", "vb", 0, 99, 30, 94), ("step", "q", 30, 70), ("pollld", OPT["pl4"], OPT["pl4"] + 8)], [V_(6, 7) + (52, 84)],
                     endops=["s_nop 0", "s_branch L_join"])
    p += [".p2align 6"] + ["s_nop 0"] * OPT.get("pad", 0) + ["L_loop:"]
    pro_ = p
    first57, tail = gen_tail()
    bodyA = []
    for k in (1, 2, 3, 4, 5, 6, 7, 0):
        if k == 5: bodyA.append("L_join:"); jpos = len(bodyA)
        eo = [f"s_sub_u32 s{S_CNT}, s{S_CNT}, 1", f"s_cmp_lg_u32 s{S_CNT}, 0", "s_cbranch_scc1 L_loop"] if k == 0 else ()
        t, d = steady(k)
        if OPT["ab"] & 8: d = []
        if OPT["ab"] & 16: t = [x for x in t if x[0] not in ("cv", "kst", "vst", "ld")]
        if OPT["ab"] & 128: t = [x for x in t if x[0] not in ("cv",)]
        if OPT["ab"] & 256: t = [x for x in t if x[0] not in ("kst", "vst")]
        if OPT["ab"] & 512: t = [x for x in t if x[0] not in ("ld",)]
        bars = None
        if OPT["nb6"]:
            dk = lambda *x: [("dk", i) for i in x]; dv = lambda *x: [("dv", i) for i in x]
            bars = {0: [], 4: [], 7: [(GBAR, dv(6, 7) + dk(2, 3))], 3: [(GBAR, dv(2, 3) + dk(6, 7))]}.get(k)
        bodyA += gen_iter(16 + k, t, d, name=f"k{k}", endops=eo, bars=bars)
    lastt = []
    if OPT["lastp"]:
        for k in (1, 2, 3, 4, 5, 6, 7, 0):
            t, d = steady(k)
            t = [x for x in t if not ((x[0] in ("ld", "cv") and x[1] == "ka") or (x[0] in ("ld", "cv") and x[1] == "kb" and k != 1) or x[:2] == ("ld", "va") or x[0] == "pf")]
            dk = lambda *x: [("dk", i) for i in x]; dv = lambda *x: [("dv", i) for i in x]
            bars = {0: [], 4: [], 7: [(GBAR, dv(6, 7) + dk(2, 3))], 3: [(GBAR, dv(2, 3) + dk(6, 7))]}.get(k) if OPT["nb6"] else None
            if k == 0 and OPT["z0"]: bars = [(15, dk(5))]; d = [V_(0, 1) + K_(6, 7) + (16, 90)]
            lastt += gen_iter(16 + k, t, d, name=f"z{k}", bars=bars)
    tail = lastt + tail
    assert OPT["qo"] or [g.rd for g in first57] == [g.rd for g in seg_groups(17)[:2]]
    tailc = tail + ["L_fin:"]
    resolve(pro_ + bodyA[jpos:] + bodyA + bodyA + tailc)
    if OPT["cap"]: pro_ = pace(pro_, OPT["cap"] / 4)
    P_ = Prog()
    P_.extend(fin(pro_))
    a0 = len(P_.ins); P_.extend(fin(bodyA)); a1 = len(P_.ins)
    P_.extend(fin(tailc))
    p = P_
    if OPT["stamp"]:
        p("s_waitcnt vmcnt(0) lgkmcnt(0)")
        p.extend(istamp("end"))
        p("s_waitcnt lgkmcnt(0)")
        p.extend(istamp("end2"))
        p(f"v_writelane_b32 v{V_STAMP}, s{S_TAG+1}, 63")
        p(f"v_writelane_b32 v{V_STAMP}, s{S_BUDGET}, 62"); p(f"v_writelane_b32 v{V_STAMP}, s{S_NEED}, 61"); p(f"v_writelane_b32 v{V_STAMP}, s101, 60"); p(f"v_writelane_b32 v{V_STAMP}, s100, 59")
        p("s_add_u32 s8, s18, 0xfa00000"); p("s_addc_u32 s9, s19, 0"); p("s_mov_b32 s10, 1048576"); p("s_mov_b32 s11, 0x20000")
        p("s_lshl_b32 s24, s2, 2"); p(f"s_add_u32 s24, s24, s{S_WAVE}"); p("s_lshl_b32 s24, s24, 8")
        p(f"v_bfe_u32 v32, v{V_DMA}, 4, 6"); p("v_lshlrev_b32 v32, 2, v32")
        p(f"buffer_store_dword v{V_STAMP}, v32, s[8:11], s24 offen")
        if OPT["stamp"] == 8: STAMPS.sort(key=lambda n: 0)
        open(sys.argv[1] + ".stamps", "w").write("\n".join(order_stamps()))
    if OPT["calx"]:
        p("s_waitcnt vmcnt(0)")
        p("L_cal:")
        p("s_memrealtime s[40:41]")
        p("s_waitcnt lgkmcnt(0)")
        p("s_sub_u32 s40, s40, s100")
        p("s_cmp_lt_u32 s40, 10000")
        p("s_cbranch_scc1 L_cal")
    p("L_done:")
    p("s_endpgm")
    main_end0 = len(p.ins)
    for ps in POLLSITES: p.extend(poll_slow(ps))
    p.extend(tag_slow())
    main_end = len(p.ins)
    p.extend(gen_slow())
    slow_end = len(p.ins)
    ji = [i for i, x in enumerate(p.ins) if x.text == "L_join:"][0]
    lin = p.ins[:a0] + p.ins[ji:a1] + p.ins[a0:main_end0]
    sl = [i for i, x in enumerate(p.ins) if x.text == "L_slowloop:"][0]
    bi = [i for i, x in enumerate(p.ins) if x.text == "s_cbranch_scc1 L_slowloop"][0]
    probs = check_hazards(lin, "main") + check_hazards(p.ins[main_end:bi+1] + p.ins[sl:slow_end], "slow") + check_hazards(p.ins[main_end0:main_end], "aux")
    for x in probs: print(x, file=sys.stderr)
    return p

def kd(name, vgpr, sgpr, accum):
    return f""".amdhsa_kernel {name}
  .amdhsa_next_free_vgpr {vgpr}
  .amdhsa_next_free_sgpr {sgpr}
  .amdhsa_accum_offset {accum}
  .amdhsa_group_segment_fixed_size 0
  .amdhsa_kernarg_size 80
  .amdhsa_user_sgpr_count 2
  .amdhsa_user_sgpr_kernarg_segment_ptr 1
  .amdhsa_system_sgpr_workgroup_id_x 1
.end_amdhsa_kernel
"""
def build_text(body):
    o = HEADER + f"; @launch grid=(256,1,1) block=(256,1,1) lds={LDS_BYTES}\n" + '.amdgcn_target "amdgcn-amd-amdhsa--gfx950"\n.text\n'
    o += f".globl {NAME}_kernel\n.p2align 8\n.type {NAME}_kernel,@function\n" + body
    return o + '.section .rodata,"a"\n.p2align 6\n' + kd(NAME + "_kernel", 512, 102, 256)
def addresses(lines):
    import subprocess, types, ctypes
    _o = ctypes.CDLL
    class F:
        def __getattr__(s, n):
            x = types.SimpleNamespace(); object.__setattr__(s, n, x); return x
    ctypes.CDLL = lambda n, *a, **k: (F() if "amdhip" in n else _o(n, *a, **k))
    sys.path.insert(0, "cdna_kernels")
    import cdna_launch as cl
    t = []
    for i, l in enumerate(lines):
        if l.strip().startswith("v_"): t.append(f"L_adr{i}:")
        t.append(l)
    open("_a.s", "w").write(cl.with_harness_metadata(build_text("\n".join(t) + "\n"), NAME + "_kernel", 10, launch_lists=True))
    subprocess.run([cl.ROCM_CLANG, "-x", "assembler", "-target", "amdgcn-amd-amdhsa", "-mcpu=gfx950", "_a.s", "-o", "_a.co"], check=True)
    r = subprocess.run(["llvm-objdump", "-t", "_a.co"], capture_output=True, text=True).stdout
    return {int(x.split()[-1][5:]): int(x.split()[0], 16) for x in r.split("\n") if "L_adr" in x}
def add_stubs(text):
    base = text.rstrip("\n").split("\n")
    lo = base.index("L_iwret:"); hi = base.index("L_fin:"); l0 = base.index("L_loop:")
    l1 = max(i for i, l in enumerate(base) if l.strip() == "s_cbranch_scc1 L_loop")
    pos = []
    for it in range(6):
        lines = []; idx = []
        chains = [[k for k in range(len(pos)) if k % 4 == w] for w in range(4)]
        nxt = {}
        for w in range(4):
            for a, b in zip(chains[w], chains[w][1:] + [None]): nxt[a] = f"L_pg{b}" if b is not None else "L_iwret"
        for i, l in enumerate(base):
            idx.append(len(lines)); lines.append(l)
            if i in pos:
                k = pos.index(i)
                lines += ([f"L_iw{k}:"] if k < 4 else []) + [f"L_pg{k}:", f"    s_cbranch_execz {nxt[k]}"]
        if len(pos) < 4: lines += [x for w in range(len(pos), 4) for x in (f"L_iw{w}:", "    s_branch L_iwret")]
        ad = addresses(lines); inv = {j: i for i, j in enumerate(idx)}
        first = min(i for i, l in enumerate(base) if l.strip().startswith("v_mfma") and "a[0:3]" in l)
        mf = sorted((a, inv[j]) for j, a in ad.items() if lo < inv[j] < hi and (inv[j] < first or base[inv[j]].strip().startswith("v_mfma")))
        new = [min(i for a, i in mf if i > base.index("L_join:"))]
        pg = mf[0][0] >> 12
        for a, i in mf:
            if (a + 8) >> 12 > pg:
                pg = (a + 8) >> 12
                if OPT["iw"] == 2 or not (l0 < i < l1): new.append(i)
        new = sorted(set(new))
        if new == pos: break
        pos = new
    print("page stubs:", len(pos), file=sys.stderr)
    return "\n".join(lines) + "\n"
out = HEADER
out += f"; @launch grid=(256,1,1) block=(256,1,1) lds={LDS_BYTES}\n"
out += '.amdgcn_target "amdgcn-amd-amdhsa--gfx950"\n.text\n'
body_ = gen_main().text()
if OPT["iw"]: body_ = add_stubs(body_)
out += f".globl {NAME}_kernel\n.p2align 8\n.type {NAME}_kernel,@function\n" + body_
out += '.section .rodata,"a"\n.p2align 6\n' + kd(NAME + "_kernel", 512, 102, 256)
open(sys.argv[1], "w").write(out)
```

```python
import sys, math
from asmlib import *

NAME = "standalone__kv_cache_quant_int4_int2_kv_with_per_channel_or_per_token_scales__prompt"
OPT = dict(stamp=0, vmgap=4, sb=6, sa=6, ahead=8, thr=64, pf2=0, calx="", qa=6, plv=2, plk=10, ckv=1, ckk=1, tden=24, touch=0, w0poll=0, cap=48, qb=6, q3e=1, ksc=0, few=1, qc=15, pb=39, pl4=40, l2=3, k1e=0, greedy=0, g3n=3, pre=0, own1=1, ab=0, pk=0, split=0, prent=1, bal=1, flex=1, w2=0, dense="S61,S5,S2,S3,S4", dx=4, dvg=2, f3=1, pvs=1, qo=0, po=0, x2c=12, sst=1, q0f=1, nb6=1, tv=1, omv=0, ldc=8, rs=0, scnt=0, iw=2, pfnt=0, v64=1, lastp=1, lmf=1, fs=1, pq=2, fa=20, k1s=0, fb=99, pa=1, twop=0, llag=24, w5=40, z0=1, q3b=0, fp=1, fpa=14, eb=0, bm=1, lva=70, qe=12, qf=0, ed=200, ed1=250, cut="22,46,6,42,10,30,10")
for a in sys.argv[2:]:
    k, v = a.split("="); OPT[k] = int(v) if v.lstrip("-").isdigit() else v
NS = 6
STAGE = 24576
HEADBYTES = 64 * STAGE
RING = NS * STAGE
LDS_BYTES = RING + 128
A0, B0, A1, B1, A2, B2 = [i * STAGE for i in range(6)]
CSCALE = (192.0 ** -0.5) * math.log2(math.e)
HEADER = open("cdna_kernels/" + NAME + ".s.ref").read().split("; Override launch geometry")[0]
MF = "v_mfma_f32_16x16x32_bf16"
V64 = OPT["v64"]; NVE = 3 if V64 else 4
NCH = 2 if V64 else 3
def chunk_dbs(n): return list(range(6 * n, 6 * n + 6)) if V64 else [3 * e + n for e in range(4)]

V_FVAL = 0; V_RD = 1; V_RDK = [2, 3]; V_DMA = 4; V_L = [5, 6, 7, 8]
V_KLD = 9; V_KSC = 10; V_KST = 11; V_VLD = 12; V_FLAG = 13; V_RD2 = 59; V_RD3 = 60
V_T = 16; NTP = 2
V_VST = 15; V_STAMP = 14; V_T4 = 20
V_FR = 24; NFS = 6
V_CT = 48; V_VO = 52; V_RS = [56, 60]; BX = 224; BY = 240; BZ = 144
V_POLL = V_VO; V_KA = V_VO + 2
UNIT = [64, 80, 160, 176]; HI = [96, 112]
VQD = 136; VQR = [22, 23, 142, 143]
def Sq(t, sl, tb): return (UNIT[t % 4] if tb == 0 else HI[t % 2]) + 4 * sl
def P(t, sl): return UNIT[t % 4] + 4 * sl
def NEGM(qb): return 128 + 4 * qb
def O(qb, db): return (qb * 12 + db) * 4
def Qf(qb, s, half=None):
    i = qb * 6 + s
    base, f = (192 + 4 * i, ar) if i < 16 else (192 + 4 * (i - 16), vr)
    return f(base, 4) if half is None else f(base + 2 * half, 2)
def FR(f): return vr(V_FR + 4 * (f % NFS), 4)

S_RDELTA = 3; S_WS = 4; S_Q = 8; S_OUT = 12; S_FLG = 20
S_WAVE = 25; S_DMK = 26; S_GOFF = 27; S_RK = 28; S_TMP = 29; S_RV = 30; S_CNT = 31; S_GOFFK = 32
S_PK0 = 33; S_PK1 = 34; S_PV0 = 35; S_PKS = 36; S_PVS = 37; S_CS = 38; S_RET = 39; S_PV1 = 16; S_PV2 = 17
S_QL = 40; S_QS = 41; S_TAG = 42; S_FOFF = 44; S_XCC = 45; S_OWN = 46; S_RC = 46; S_RD = 47
S_PT = 48; S_DMV = 56; S_TK = 57; S_TV = 58; S_TP = 59
S_QK = 64; S_QV = 68; S_KS = 72; S_KZ = 76; S_VS = 80; S_VZ = 84; S_DBG = 88
S_NEED = 92; S_HOFF = 93; S_HEAD = 94; S_QB = 95; S_BUDGET = 96; S_MASK = 97
WSOFF = OPT.get("wsoff", 0) << 20
FLAG_OFF = WSOFF + (49 << 20)
SC1 = {0: " sc1", 1: "", 2: " nt", 3: " sc0", 4: " sc1 nt", 5: " sc0 sc1"}[OPT.get("dmaf", 0)]; NTKV = " nt"; NTQ = " nt"; STF = " sc1" if not OPT.get("stp") else ""; OF = {0: " sc0 sc1", 1: " sc1", 2: " sc1 nt", 3: " sc0 sc1 nt"}[OPT.get("of", 0)]

STAMPS = []
def istamp(name, force=False):
    if OPT["calx"] == name: return ["s_memrealtime s[100:101]"]
    if OPT["stamp"] not in (6, 8, 9): return []
    if OPT["stamp"] == 8 and name.startswith(("k", "z")) and not force: return []
    if OPT["few"] and force and name not in ("karg", "k0b", "vst", "tag", "post", "poll", "postV", "pollV", "pre-dk1"): return []
    if OPT["stamp"] != 8 and force: return []
    STAMPS.append(name)
    return ["s_waitcnt lgkmcnt(0)"] * (1 if force else 0) + [f"v_mov_b32_dpp v{V_STAMP}, v{V_STAMP} wave_shr:1 row_mask:0xf bank_mask:0xf", f"v_writelane_b32 v{V_STAMP}, s98, 0",
            ("s_memtime" if OPT["stamp"] == 6 else "s_memrealtime") + " s[98:99]"]

def order_stamps():
    l = list(STAMPS); out = []
    if "S62" in l:
        l.remove("S61"); l.insert(l.index("S62"), "S61")
    for n in l:
        if "." in n: continue
        out.append(n); out += [m for m in l if m.startswith(n + ".")]
    return out
class W:
    def __init__(self, *tags): self.tags = tags
class VM:
    def __init__(self, tag, text): self.tag = tag; self.text = text
class LG:
    def __init__(self, *tags): self.tags = tags
class DS:
    def __init__(self, tag, text): self.tag = tag; self.text = text

def mode_of(t):
    if OPT["fs"] and t < 4: return "f"
    return {0: "a", 1: "a", 2: "b", 3: "b", 58: "a", 59: "a", 60: "a", 61: "b", 62: "b", 63: "b"}.get(t, "f")
def slot_q(t, sl):
    m = mode_of(t)
    return sl if m == "f" else (sl & 1) + (0 if m == "a" else 2)
ONES = 20
def softmax_part(t, half, lm=False):
    if lm:
        l = [x for x in softmax_part(t, half) if not x.startswith("v_add")]
        out = []
        for x in l:
            out.append(x)
        k = [i for i, x in enumerate(out) if x.startswith("v_cvt_pk")][3]
        mm = lambda sl: f"{MF} v[{RL[slot_q(t, sl)]}:{RL[slot_q(t, sl)]+3}], v[{P(t, sl)}:{P(t, sl)+3}], v[{ONES}:{ONES+3}], " + ("0" if (t, half) == (61, 1) else f"v[{RL[slot_q(t, sl)]}:{RL[slot_q(t, sl)]+3}]")
        return out[:k + 3] + [mm(2 * half)] + out[k + 3:] + ["s_nop 1", mm(2 * half + 1)]
    flat = []; prev = None
    for gp in range(8):
        sl = 2 * half + gp // 4; pi = gp % 4; l = V_L[slot_q(t, sl)]
        t0 = V_T + 2 * (gp % NTP); t1 = t0 + 1
        src = Sq(t, sl, pi >> 1) + 2 * (pi & 1)
        E = [f"v_exp_f32 v{t0}, v{src}", f"v_exp_f32 v{t1}, v{src+1}"]
        A = [f"v_add_f32 v{l}, v{l}, v{t0}", f"v_add_f32 v{l}, v{l}, v{t1}"]
        C = [f"v_cvt_pk_bf16_f32 v{P(t,sl)+pi}, v{t0}, v{t1}"]
        if 16 <= t < 26:
            if OPT["ab"] & 1: A = []
            if OPT["ab"] & 2: E = [x.replace("v_exp_f32", "v_mov_b32") for x in E]
            if OPT["ab"] & 32: C = []
            if OPT["ab"] & 64: E = []; A = []; C = []
        flat += E if prev is None else E[:1] + prev[0] + E[1:] + prev[1]
        prev = (A, C)
    return flat + prev[0] + prev[1]

class Grp:
    def __init__(self, rd, mf): self.rd = rd; self.mf = mf; self.reb = []
def qk_tile(t, w, slots, czero=False):
    gs = []
    if OPT["qo"] == 1 and len(slots) == 4:
        for s_ in range(6):
            rd = [(V_RDK[s_ & 1], w * 12288 + tb * 6144 + (s_ >> 1) * 128) for tb in range(2)]
            mf = []
            for sl, qb in slots:
                for tb in range(2):
                    d = vr(Sq(t, sl, tb), 4)
                    mf.append((tb, d, Qf(qb, s_), (("0" if czero else vr(NEGM(qb), 4)) if s_ == 0 else d)))
            gs.append(Grp(rd, mf))
        return gs
    for gi in range(6):
        s0 = 2 * (gi >> 1); tb = gi & 1
        rd = [(V_RDK[j], w * 12288 + tb * 6144 + (s0 >> 1) * 128) for j in range(2)]
        mf = []
        for sl, qb in slots:
            d = vr(Sq(t, sl, tb), 4)
            mf += [(0, d, Qf(qb, s0), (("0" if czero else vr(NEGM(qb), 4)) if s0 == 0 else d)), (1, d, Qf(qb, s0 + 1), d)]
        gs.append(Grp(rd, mf))
    return gs
def qk_full(t): return [g for w in range(2) for g in qk_tile(t + w, w, [(q, q) for q in range(4)])]
def qk_half(t, czero=False, ws=(0, 1)):
    return [g for w in ws for g in qk_tile(t, w, [(2 * w + j, slot_q(t, j)) for j in range(2)], czero)]
def OV(qb, db): return (BY if qb == 2 else BZ) + 4 * (db // 3)
def pv_grp(t, db, first=False, va=V_RD):
    m = mode_of(t); mf = []
    for qb in (range(4) if m == "f" else [slot_q(t, 0), slot_q(t, 1)]):
        d = ar(O(qb, db), 4)
        if OPT["omv"] and t >= 61 and db % 3 == 2: d = " " + vr(OV(qb, db), 4)
        for w in range(2):
            b = P(t + w, qb) if m == "f" else P(t, 2 * w + (qb & 1))
            mf.append((w, d, vr(b, 4), "0" if (first and w == 0) else d))
    return Grp([(va, w * 12288 + db * 1024) for w in range(2)], mf)
def pv_seq(t, first=False):
    if OPT["po"] == 1 and mode_of(t) == "f":
        gs = []
        for d0 in range(0, 12, 2):
            for w in range(2):
                mf = [(e, ar(O(qb, d0 + e), 4), vr(P(t + w, qb), 4), ar(O(qb, d0 + e), 4)) for qb in range(4) for e in range(2)]
                gs.append(Grp([(V_RD, w * 12288 + (d0 + e) * 1024) for e in range(2)], mf))
        return gs
    if OPT["po"] == 2 and mode_of(t) == "f":
        gs = []
        for db in range(12):
            mf = [(w, ar(O(qb, db), 4), vr(P(t + w, qb), 4), ar(O(qb, db), 4)) for w in range(2) for qb in range(4)]
            gs.append(Grp([(V_RD, w * 12288 + db * 1024) for w in range(2)], mf))
        return gs
    return [pv_grp(t, db, first) for db in range(12)]
def pv_unchained(t, first=False):
    gs = []
    for w in range(2):
        for d0 in range(0, 12, 2):
            mf = []
            for j in range(2):
                qb = slot_q(t, j)
                for e in range(2):
                    d = ar(O(qb, d0 + e), 4)
                    mf.append((e, d, vr(P(t, 2 * w + j), 4), "0" if (first and w == 0) else d))
            gs.append(Grp([(V_RD, w * 12288 + (d0 + e) * 1024) for e in range(2)], mf))
    return gs
def rebase(gs, regs, delta):
    op = "v_add_u32" if delta >= 0 else "v_subrev_u32"
    gs[0].reb += [f"{op} v{r}, {abs(delta)}, v{r}" for r in regs]
    return gs
def rd_op(gi, j, g):
    f = 2 * gi + j
    return DS(("fr", f % NFS), f"ds_read_b128 {FR(f)}, v{g.rd[j][0]} offset:{g.rd[j][1]}")

def dma_tile(part, pos, peel=False):
    dm, go, tmp = (S_DMK, S_GOFFK, S_TK) if part == "k" else (S_DMV, S_GOFF, S_TV)
    l = [f"s_mov_b32 m0, s{dm}"]
    for j in range(3):
        l.append(VM(("d" + part, pos % 8), f"buffer_load_dwordx4 v{V_DMA}, s[{S_WS}:{S_WS+3}], s{go} offen offset:{j*1024}{SC1} lds"))
    if peel and pos < 7:
        l += [f"s_add_u32 s{go}, s{go}, {STAGE}", f"s_sub_u32 s{tmp}, s{go}, {8*STAGE}", f"s_min_u32 s{go}, s{go}, s{tmp}"]
    elif peel and pos == 7:
        l += [f"s_mov_b32 s{go}, {8*STAGE + (0 if part == 'k' else 12288)}"]
    else:
        l += [f"s_add_u32 s{go}, s{go}, {STAGE}"]
    if pos % 2 == 0: l += [f"s_add_u32 s{dm}, s{dm}, 12288"]
    else: l += [f"s_add_u32 s{dm}, s{dm}, {2*STAGE - 12288}", f"s_sub_u32 s{tmp}, s{dm}, {RING}", f"s_min_u32 s{dm}, s{dm}, s{tmp}"]
    return l
QOFF = [STAGE, 0, 2 * STAGE, STAGE]
def q_dma(lst):
    l = []
    if not lst: return l
    for i in lst:
        a, b = divmod(i, 6)
        l += [f"s_mov_b32 s{S_QS}, {a*6144}"] * (1 if (b == 0 or i == lst[0]) else 0)
        l += [f"s_add_u32 m0, s{S_QL}, {QOFF[a] + b*1024}",
              VM(("q", a), f"buffer_load_dwordx4 v{VQD+b}, s[{S_Q}:{S_Q+3}], s{S_QS} offen{NTQ} lds")]
    return l
def q_frags(qb):
    l = []
    for s in range(6):
        for h in range(2):
            sp = s + 6 * h
            l.append(DS(("qf", qb), f"ds_read_b64 {Qf(qb,s,h)}, v{VQR[sp&3]} offset:{QOFF[qb] + (sp>>2)*128}"))
    return l
def with_nop(l):
    out = []
    for i, x in enumerate(l):
        out.append(x)
        if isinstance(x, str) and " m0," in x and i + 1 < len(l) and isinstance(l[i + 1], VM): out.append("s_nop 0")
    return out
def rd_step(kind):
    cur, regs = (S_RK, V_RDK) if kind == "q" else (S_RV, [V_RD])
    return [f"s_add_u32 s{S_TMP}, s{cur}, {2*STAGE}", f"s_sub_u32 s{S_RDELTA}, s{S_TMP}, {RING}",
            f"s_min_u32 s{S_TMP}, s{S_TMP}, s{S_RDELTA}", f"s_sub_u32 s{S_RDELTA}, s{S_TMP}, s{cur}", f"s_mov_b32 s{cur}, s{S_TMP}"] + \
           [f"v_add_u32 v{r}, s{S_RDELTA}, v{r}" for r in regs]

def k_ld(h, buf, rs, tag, scal_first=True):
    sc = [VM(tag, f"buffer_load_dwordx2 v[{rs+2*i}:{rs+2*i+1}], v{V_KSC}, s[{srd_}:{srd_+3}], s{S_PKS} offen offset:{192*h}" + (" nt" if OPT["scnt"] else ""))
          for i, srd_ in enumerate((S_KS, S_KZ))]
    l = []
    for j in range(4):
        so = S_PK0 if j < 2 else S_PK1
        l.append(VM(tag, f"buffer_load_dwordx4 v[{buf+4*j}:{buf+4*j+3}], v{V_KLD}, s[{S_QK}:{S_QK+3}], s{so} offen offset:{(j&1)*1536+384*h}{NTKV}"))
    return sc + l if scal_first else l + sc
def v_ld(h, buf, rs, tag, scal_first=True):
    sc = [VM(tag, f"buffer_load_dwordx2 v[{rs+2*i}:{rs+2*i+1}], off, s[{srd_}:{srd_+3}], s{S_PVS} offset:{8*h}" + (" nt" if OPT["scnt"] else ""))
          for i, srd_ in enumerate((S_VS, S_VZ))]
    l = []
    for r in range(4):
        so = S_PV0 if h == 0 else S_PV1
        l.append(VM(tag, f"buffer_load_dwordx{NVE} v[{buf+4*r}:{buf+4*r+NVE-1}], v{V_VLD}, s[{S_QV}:{S_QV+3}], s{so} offen offset:{r*768}{NTKV}"))
    return sc + l if scal_first else l + sc
def k_cv(h, buf, rs, out):
    l = []
    s0, s1, z0, z1 = V_CT, V_CT + 1, V_CT + 2, V_CT + 3
    for i in range(2):
        l += [f"v_lshlrev_b32 v{s0}, 16, v{rs+i}", f"v_and_b32 v{s1}, s{S_MASK}, v{rs+i}",
              f"v_lshlrev_b32 v{z0}, 16, v{rs+2+i}", f"v_and_b32 v{z1}, s{S_MASK}, v{rs+2+i}",
              f"v_mul_f32 v{s0}, s{S_CS}, v{s0}", f"v_mul_f32 v{s1}, s{S_CS}, v{s1}",
              f"v_mul_f32_e64 v{z0}, -v{z0}, v{s0}", f"v_mul_f32_e64 v{z1}, -v{z1}, v{s1}"]
        if OPT.get("nz", 0) & 1: l[-2:] = [f"v_mov_b32 v{z0}, 0", f"v_mov_b32 v{z1}, 0"]
        for j in range(4):
            a = buf + 4 * j + 2 * i; b = a + 1
            l += [f"v_cvt_f32_i32 v{a}, v{a}", f"v_cvt_f32_i32 v{b}, v{b}",
                  f"v_fma_f32 v{a}, v{a}, v{s0}, v{z0}", f"v_fma_f32 v{b}, v{b}, v{s1}, v{z1}",
                  f"v_cvt_pk_bf16_f32 v{out+4*j+2*h+i}, v{a}, v{b}"]
    return l
def k_st(j, out, tag="kst", STF=STF, pre=False):
    va = V_KST; g = []
    if j and pre: va = V_T4 + j
    elif j:
        va = V_KA + (j & 1); g.append(f"v_xor_b32 v{va}, {16*j}, v{V_KST}")
    g.append(VM(tag, f"buffer_store_dwordx4 v[{out+4*j}:{out+4*j+3}], v{va}, s[{S_WS}:{S_WS+3}], s{S_PK0} offen offset:{j*768}{STF}"))
    return g
def v_cv(h, buf, rs, out):
    l = []
    s0, s1, z0, z1 = V_CT, V_CT + 1, V_CT + 2, V_CT + 3
    for i in range(2):
        l += [f"v_lshlrev_b32 v{s0}, 16, v{rs+i}", f"v_and_b32 v{s1}, s{S_MASK}, v{rs+i}",
              f"v_lshlrev_b32 v{z0}, 16, v{rs+2+i}", f"v_and_b32 v{z1}, s{S_MASK}, v{rs+2+i}",
              f"v_mul_f32_e64 v{z0}, -v{z0}, v{s0}", f"v_mul_f32_e64 v{z1}, -v{z1}, v{s1}"]
        if OPT.get("nz", 0) & 2: l[-2:] = [f"v_mov_b32 v{z0}, 0", f"v_mov_b32 v{z1}, 0"]
        for e in range(NVE):
            a = buf + 4 * (2 * i) + e; b = buf + 4 * (2 * i + 1) + e
            l += [f"v_cvt_f32_i32 v{a}, v{a}", f"v_cvt_f32_i32 v{b}, v{b}",
                  f"v_fma_f32 v{a}, v{a}, v{s0}, v{z0}", f"v_fma_f32 v{b}, v{b}, v{s1}, v{z1}"]
    for e, i in [(0, 0), (1, 0), (0, 1), (1, 1), (2, 0), (2, 1), (3, 0), (3, 1)][:2 * NVE]:
        l.append(f"v_cvt_pk_bf16_f32 v{out+4*e+2*h+i}, v{buf+8*i+e}, v{buf+8*i+4+e}")
    return l
def v_st(e, out, tag="vst", STF=STF):
    so = S_PV0 if (e < 2 or V64) else S_PV2
    return [VM(tag, f"buffer_store_dwordx4 v[{out+4*e}:{out+4*e+3}], v{V_VST}, s[{S_WS}:{S_WS+3}], s{so} offen offset:{e*1024 if V64 else (e&1)*3072}{STF}")]
def k_adv():
    return [f"s_add_u32 s{S_PK0}, s{S_PK0}, {8*STAGE}", f"s_add_u32 s{S_PK1}, s{S_PK1}, {8*STAGE}", f"s_add_u32 s{S_PKS}, s{S_PKS}, {4*384}"]
def v_adv():
    return [f"s_add_u32 s{r}, s{r}, {8*STAGE}" for r in (S_PV0, S_PV1, S_PV2)] + [f"s_add_u32 s{S_PVS}, s{S_PVS}, {8*64}"]
HT = {"ka": (k_ld, k_cv, 0, BX, V_RS[0], BX), "kb": (k_ld, k_cv, 1, BY, V_RS[1], BX),
      "va": (v_ld, v_cv, 0, BZ, V_RS[0], BZ), "vb": (v_ld, v_cv, 1, BY, V_RS[1], BZ),
      "wa": (v_ld, v_cv, 0, BX, V_RS[0], BX), "wb": (v_ld, v_cv, 1, BY, V_RS[1], BX)}
def flag_post(first=False):
    return [f"v_add_u32 v{V_FVAL}, 1, v{V_FVAL}"] + [
            VM("flag", f"buffer_store_dword v{V_FVAL}, v{V_FLAG}, s[{S_FLG}:{S_FLG+3}], 0 offen")] * (OPT["l2"] == 1 or (OPT["l2"] == 2 and first)) + [
            VM("flag", f"buffer_store_dword v{V_FVAL}, v{V_FLAG}, s[{S_FLG}:{S_FLG+3}], 0 offen offset:32 sc1")]
def poll_addr():
    return [f"v_bfe_u32 v{V_POLL+1}, v{V_DMA}, 4, 6", f"v_lshlrev_b32 v{V_POLL+1}, 2, v{V_POLL+1}"]
def poll_load():
    if OPT["pa"]: return [VM("poll", f"buffer_load_dword v{V_POLL}, v{V_T4}, s[{S_FLG}:{S_FLG+3}], s{S_FOFF} offen sc1")]
    return poll_addr() + [VM("poll", f"buffer_load_dword v{V_POLL}, v{V_POLL+1}, s[{S_FLG}:{S_FLG+3}], s{S_FOFF} offen sc1")]
def poll_test():
    return [f"v_subrev_u32 v{V_POLL}, s{S_NEED}, v{V_POLL}", f"v_cmp_lt_u32 vcc, 15, v{V_POLL}", "s_nop 0", f"s_and_b32 s{S_TP}, vcc_lo, 0xff"]
def smem_flags():
    return [f"s_buffer_load_dwordx8 s[{S_PT}:{S_PT+7}], s[{S_FLG}:{S_FLG+3}], s{S_FOFF} glc"]
def smem_reduce():
    return [f"s_sub_u32 s{S_PT+i}, s{S_PT+i}, s{S_NEED}" for i in range(8)] + [f"s_max_u32 s{S_PT}, s{S_PT}, s{S_PT+i}" for i in range(1, 8)]
def smem_test():
    return smem_flags() + ["s_waitcnt lgkmcnt(0)"] + smem_reduce() + [f"s_cmp_lt_u32 s{S_PT}, 16"]
def diag(site):
    if not OPT.get("diag"): return []
    return [f"s_lshl_b32 s{S_TP}, s2, 8", f"s_add_u32 s{S_TP}, s{S_TP}, {site << 4}", f"s_add_u32 s{S_TP}, s{S_TP}, s{S_WAVE}", f"s_lshl_b32 s{S_BUDGET}, s{S_NEED}, 16", f"s_add_u32 s{S_TP}, s{S_TP}, s{S_BUDGET}",
            f"v_mov_b32 v{V_POLL+1}, s{S_TP}", f"buffer_store_dword v{V_POLL+1}, off, s[{S_DBG}:{S_DBG+3}], 0 offset:{4 + 8 * site} sc1",
            f"buffer_store_dword v{V_POLL}, v{V_T4}, s[{S_DBG}:{S_DBG+3}], 0 offen offset:192 sc1"]
def poll_slow(site):
    l = [f"L_pollslow{site}:"] + ([f"s_add_u32 s{S_TAG+1}, s{S_TAG+1}, {1 << (6 * site)}"] if OPT["stamp"] else [])
    l += [f"s_mov_b32 s{S_TP}, {60 if site == 0 else 200}", f"L_pollsm{site}:"] + smem_test() + [f"s_cbranch_scc1 L_pollok{site}",
          f"s_sub_u32 s{S_TP}, s{S_TP}, 1", f"s_cbranch_scc1 L_pollvec{site}", "s_sleep 1", f"s_branch L_pollsm{site}"]
    l += [f"L_pollvec{site}:"] + poll_addr() + [
            f"s_sub_u32 s{S_BUDGET}, s{S_BUDGET}, 1",
            f"s_cbranch_scc1 L_pollgiveup{site}",
            "s_sleep 2",
            f"buffer_load_dword v{V_POLL}, v{V_POLL+1}, s[{S_FLG}:{S_FLG+3}], s{S_FOFF} offen sc1",
            "s_waitcnt vmcnt(0)"]
    if site == 0 and OPT["l2"]:
        l += [f"s_bitcmp1_b32 s{S_NEED}, 9", "s_cbranch_scc1 L_nomix",
              f"v_xor_b32 v{V_POLL+1}, s{S_NEED}, v{V_POLL}", f"v_lshrrev_b32 v{V_POLL+1}, 5, v{V_POLL+1}", f"v_add_u32 v{V_POLL+1}, -1, v{V_POLL+1}",
              f"v_cmp_gt_u32 vcc, 31, v{V_POLL+1}", "s_nop 1", f"s_and_b32 s{S_TP}, vcc_lo, {'0xff' if OPT['l2'] == 3 else '0xff00'}", "s_cbranch_scc0 L_nomix"]
        l += fin([x for j in range(4) for x in k_st(j, BX)] + [x for e in range(NVE) for x in v_st(e, 112)])
        l += ["s_waitcnt vmcnt(0)", "s_barrier", f"s_and_b32 s{S_NEED}, s{S_NEED}, 0xfffffc00", f"s_add_u32 s{S_NEED}, s{S_NEED}, {16 << 5}",
              f"v_mov_b32 v{V_FVAL}, s{S_NEED}", f"s_add_u32 s{S_NEED}, s{S_NEED}, 1", f"s_mov_b32 s{S_FOFF}, 32"] + fin(flag_post()) + ["s_branch L_pollvec0", "L_nomix:"]
    l += poll_test() + [
            f"s_cbranch_scc1 L_pollvec{site}",
            f"s_branch L_pollok{site}",
            f"L_pollgiveup{site}:"] + diag(site) + [
            f"s_mov_b32 s{S_BUDGET}, 0",
            f"s_branch L_pollok{site}"]
    return l
def tag_load():
    return [VM("tag", f"buffer_load_dword v{V_FVAL}, off, s[{S_DBG}:{S_DBG+3}], s{S_HOFF} sc1")]
def tag_check():
    return [f"s_cmp_lg_u32 s{S_WAVE}, 0", "s_cbranch_scc1 L_tagdone",
            f"v_readfirstlane_b32 s{S_TAG}, v{V_FVAL}", f"s_mov_b32 s{S_RET}, 100",
            "s_waitcnt lgkmcnt(0)"] + ([f"s_mov_b32 s101, s{S_OWN}", f"s_mov_b32 s100, s{S_TAG}"] if OPT["stamp"] else []) + [f"s_and_b32 s{S_OWN}, s{S_OWN}, 0xfffffc00",
            "L_tagretry:", f"s_cmp_eq_u32 s{S_TAG}, s{S_OWN}", f"s_cselect_b32 s{S_TAG}, 0, s{S_TAG}", f"s_cmp_lg_u32 s{S_TAG}, 0", "s_cbranch_scc1 L_tagok",
            f"s_sub_u32 s{S_RET}, s{S_RET}, 1", "s_cbranch_scc1 L_tagslow", "s_sleep 4",
            f"s_buffer_load_dword s{S_TAG}, s[{S_DBG}:{S_DBG+3}], s{S_HOFF} glc", "s_waitcnt lgkmcnt(0)", "s_branch L_tagretry",
            "L_tagok:", f"s_add_u32 s{S_TAG}, s{S_TAG}, s{S_XCC}", f"v_mov_b32 v{V_FVAL}, s{S_TAG}", f"v_mov_b32 v{V_T}, {RING}", DS("w", f"ds_write_b32 v{V_T}, v{V_FVAL}"), "L_tagdone:"]
def tag_get():
    return [f"v_mov_b32 v{V_T}, {RING}", DS("tg", f"ds_read_b32 v{V_T+1}, v{V_T}")]
def tag_use():
    return [f"v_readfirstlane_b32 s{S_NEED}, v{V_T+1}", f"s_add_u32 s{S_NEED}, s{S_NEED}, 1"]
def tag_slow():
    return ["L_tagslow:",
            f"s_sub_u32 s{S_BUDGET}, s{S_BUDGET}, 1",
            "s_cbranch_scc1 L_taggiveup",
            "s_sleep 2",
            f"buffer_load_dword v{V_FVAL}, off, s[{S_DBG}:{S_DBG+3}], s{S_HOFF} sc1",
            "s_waitcnt vmcnt(0)",
            f"v_readfirstlane_b32 s{S_TAG}, v{V_FVAL}", "s_nop 0", f"s_cmp_eq_u32 s{S_TAG}, s{S_OWN}", "s_cbranch_scc1 L_tagslow",
            f"s_cmp_eq_u32 s{S_TAG}, 0", "s_cbranch_scc1 L_tagslow",
            "s_branch L_tagok",
            "L_taggiveup:"] + diag(15) + [
            f"s_mov_b32 s{S_BUDGET}, 0",
            "s_branch L_tagok"]

def text_of(x):
    return "s_waitcnt" if isinstance(x, (W, LG)) else (x.text if isinstance(x, (VM, DS)) else x)
def kind_of(x):
    t = text_of(x)
    if t.endswith(":"): return "label"
    if t.startswith("v_"): return "valu"
    if t.startswith("ds_"): return "ds"
    if t.startswith("buffer_store"): return "store"
    if t.startswith("buffer_"): return "load"
    return "salu"
def cost_of(x):
    k = kind_of(x); t = text_of(x)
    if k == "label": return 0
    if k == "store": return 20 if "x4" in t else (OPT["x2c"] if "x2" in t else 16 if "x3" in t else 8)
    if k == "load": return OPT["ldc"]
    if t.startswith("ds_write"): return 16 if ("b128" in t or "write2" in t) else 8
    if t.startswith(("v_exp", "v_rcp")): return 8
    if t.startswith("v_mfma"): return 32 if "x4_f32" in t else 8
    if t.startswith("s_nop"): return 4 * (int(t.split()[1]) + 1)
    if t.startswith("s_cbranch") or t.startswith("s_branch"): return 12
    if t.startswith("s_barrier"): return 8
    return 4
def gap_time(ops):
    t = 4; prev = None
    for o in ops:
        if o is None: continue
        k = kind_of(o)
        if k == "label": continue
        if k == "salu": t += cost_of(o)
        else: t = max(t, 8) + cost_of(o) + (8 if (k != "valu" and prev == "valu") else 0)
        prev = k
    return t

class Stream:
    def __init__(self, ops, first, last, maxper=99, dense=0):
        self.nb = {}; self.dl = []; l = []
        for o in ops:
            if isinstance(o, tuple):
                if o[0] == "nb": self.nb[len(l)] = o[1]
                else: self.dl.append((len(l), o[1]))
            else: l.append(o)
        ops = l
        self.ops = list(ops); self.first = first; self.last = last; self.maxper = maxper; self.dense = dense
        self.total = sum(cost_of(o) for o in self.ops); self.done = 0; self.i = 0
        self.gate = {}; self.i0 = 0

def pack(NG, A, B, C, T, streams, novm=(), nosalu=(), vmgap=4, light=(), noval=()):
    out = []; over = 0; lastvm = -99
    for g in range(NG):
        a, b, c, tl = list(A[g]), list(B[g]), list(C[g]), list(T[g])
        cnt = {}; inC = set(); blocked = set()
        while True:
            best = None; bl = None; bsec = None
            for st in streams:
                if st.i >= len(st.ops) or g < st.first: continue
                if g < st.nb.get(st.i, 0): continue
                force = g >= st.last or any(st.i < n and g >= dg for n, dg in st.dl)
                if (cnt.get(id(st), 0) >= st.maxper or id(st) in blocked) and not force: continue
                o = st.ops[st.i]; k = kind_of(o); cst = cost_of(o)
                if k == "salu" and g in nosalu:
                    assert not force, (g, text_of(o))
                    continue
                if k in ("load", "store") and (g in novm or g - lastvm < vmgap) and not force: continue
                if k in ("load", "store", "ds"):
                    sec = "b" if id(st) not in inC and id(st) not in blocked else "c"
                    if sec == "c" and not force: continue
                elif k == "salu" and not a and cnt.get(id(st), 0) == 0:
                    sec = "a"
                else: sec = "c"
                tgt = st.total * (g - st.first + 1) / (st.last - st.first + 1)
                lag = tgt - st.done
                if not force:
                    if g in noval: continue
                    if lag < cst / 2 - OPT["ahead"] and cst: continue
                    trial = (a + [o] if sec == "a" else a) + (b + [o] if sec == "b" else b) + (c + [o] if sec == "c" else c) + tl
                    gt = gap_time(trial)
                    if g in light and gt > 12 and k != "salu" and lag < OPT["llag"]: continue
                    if gt > 16:
                        if g % 2 == 0: continue
                        big = k == "store" or text_of(o).startswith(("ds_write_b128", "ds_write2"))
                        lim = max(20, st.dense) if lag > 24 else 16
                        if big and not (a + b + c + tl): lim = 32
                        if gt > lim: continue
                key = (force, k in ("load", "store"), lag / max(1, (st.last - g + 1)) ** 0.5)
                if best is None or key > bl: best = st; bl = key; bsec = sec
            if best is None: break
            o = best.ops[best.i]
            if bsec == "a": a.append(o)
            elif bsec == "b":
                b.append(o)
            else: c.append(o)
            if bsec == "c" or bsec == "b" and kind_of(o) != "ds" and False: inC.add(id(best))
            if bsec == "c": inC.add(id(best))
            if " m0," in text_of(o): blocked.add(id(best))
            if kind_of(o) in ("load", "store"): lastvm = g
            best.i += 1; best.done += cost_of(o); cnt[id(best)] = cnt.get(id(best), 0) + 1
        ops = a + b + c + tl
        tt = gap_time(ops)
        if tt > 16: over += tt - 16
        out.append(ops)
    for st in streams: assert st.i == len(st.ops)
    return out, over

def pack_dense(NG, A, B, C, T, streams, novm=(), nosalu=(), vmgap=2):
    jobs = []
    for st in streams:
        r = st.first; rel = []
        for i in range(len(st.ops)):
            r = max(r, st.nb.get(i, 0)); rel.append(r)
        for i, o in enumerate(st.ops):
            d = min([st.last] + [dg for n, dg in st.dl if i < n])
            k = kind_of(o)
            jobs.append([rel[i], d, cost_of(o) + (OPT["dx"] if k in ("store", "load") else 0) - (2 if k == "salu" else 0)])
    for g in range(NG): jobs.append([g, g, max(0, gap_time(A[g] + B[g] + C[g] + T[g]) - 8)])
    level = [None] * NG
    while jobs:
        free = [g for g in range(NG) if level[g] is None]
        pts_r = sorted({j[0] for j in jobs}); pts_d = sorted({j[1] for j in jobs})
        best = None
        for a_ in pts_r:
            ws = sorted((j[1], j[2]) for j in jobs if j[0] >= a_)
            w = 0; i = 0
            for b_ in pts_d:
                if b_ < a_: continue
                while i < len(ws) and ws[i][0] <= b_: w += ws[i][1]; i += 1
                n = sum(1 for g in free if a_ <= g <= b_)
                if n and (best is None or w / n > best[0]): best = (w / n, a_, b_)
        dn, a_, b_ = best
        if dn <= 8: break
        for g in free:
            if a_ <= g <= b_: level[g] = dn
        jobs = [j for j in jobs if not (j[0] >= a_ and j[1] <= b_)]
    extra = [2 * (level[g] - 8) if (level[g] is not None and g % 2) else 0 for g in range(NG)]
    return pack_dense1(NG, A, B, C, T, streams, novm, nosalu, vmgap, extra)
def pack_dense1(NG, A, B, C, T, streams, novm, nosalu, vmgap, extra):
    out = []; over = 0; lastvm = -99
    fixed = [gap_time(A[g] + B[g] + C[g] + T[g]) - (8 if not (B[g] + C[g] + T[g]) else 8) for g in range(NG)]
    for g in range(NG):
        a, b, c, tl = list(A[g]), list(B[g]), list(C[g]), list(T[g])
        carry = (carry if g else 0) + extra[g]
        bud = 16 + (carry if g % 2 else 0)
        blocked = set(); inC = set()
        for st in streams: st.i0 = st.i
        while True:
            best = None; bl = None
            cur = gap_time(a + b + c + tl)
            for st in streams:
                if st.i >= len(st.ops) or g < st.first or g < st.nb.get(st.i, 0): continue
                if st.i in st.gate:
                    o_, j_ = st.gate[st.i]
                    if (o_.i0 if (kind_of(st.ops[st.i]) == "store" and g < NG - 1) else o_.i) <= j_: continue
                    if o_.i0 <= j_: inC.add(id(st))
                force = g >= st.last or any(st.i < n and g >= dg for n, dg in st.dl)
                if id(st) in blocked and not force: continue
                o = st.ops[st.i]; k = kind_of(o)
                if k == "salu" and g in nosalu:
                    assert not force
                    continue
                mem = k in ("load", "store", "ds")
                if k in ("load", "store") and (g in novm or g - lastvm < vmgap) and not force: continue
                sec = "b" if (mem and id(st) not in inC) else ("a" if (k == "salu" and not a and id(st) not in inC and id(st) not in blocked and not any(x is st for x in ())) else "c")
                if sec == "a" and any(id(st) == y for y in inC): sec = "c"
                if mem and sec == "c" and not force: continue
                trial = gap_time((a + [o] if sec == "a" else a) + (b + [o] if sec == "b" else b) + (c + [o] if sec == "c" else c) + tl)
                if not force and trial > bud and not (cur < 16 and trial <= bud + 12 and g % 2): continue
                tgt = st.total * (g - st.first + 1) / (st.last - st.first + 1)
                n_, dd = min([(len(st.ops), st.last)] + [(n, dg) for n, dg in st.dl if st.i < n], key=lambda x: x[1])
                need = sum(cost_of(x) for x in st.ops[st.i:n_]) / max(1, dd - g + 1)
                key = (force, mem, need)
                if best is None or key > bl: best = st; bl = key; bsec = sec
            if best is None: break
            o = best.ops[best.i]
            {"a": a, "b": b, "c": c}[bsec].append(o)
            if bsec == "c" or (bsec == "b"):
                if bsec == "c": inC.add(id(best))
                else: usedb = True
            if bsec in ("a", "b"): best._g = g
            if " m0," in text_of(o): blocked.add(id(best))
            if kind_of(o) in ("load", "store"): lastvm = g
            best.i += 1; best.done += cost_of(o)
            if bsec == "b" and not a: a.append(None)
        a = [x for x in a if x is not None]
        ops = a + b + c + tl
        tt = gap_time(ops)
        carry = max(0, carry - max(0, tt - 16)) if extra[g] or g % 2 == 0 else 0
        if tt > 16: over += tt - 16
        out.append(ops)
    for st in streams: assert st.i == len(st.ops)
    return out, over

POLLSITES = []
def gen_seg(name, groups, nxt, sm=(), bars=(), tasks=(), dma=(), extra=(), endops=(), fixed=(), peel=True, vmgap=None):
    starts = []; n = 0
    for g in groups: starts.append(n); n += len(g.mf)
    NG = n
    A = [[] for _ in range(NG)]; B = [[] for _ in range(NG)]; C = [[] for _ in range(NG)]; T = [[] for _ in range(NG)]
    streams = []; novm = set(range(0, NG, 2)); nosalu = set()
    allg = list(groups) + list(nxt)
    assert len(groups) % 3 == 0
    for i, g in enumerate(groups):
        g0 = starts[i]; ln = len(g.mf)
        if i + 2 < len(allg):
            t = allg[i + 2]
            if not (OPT["ab"] & 4 and name.startswith("k") and i % 2): B[g0].append(rd_op(i + 2, 0, t)); B[g0 + ln // 2].append(rd_op(i + 2, 1, t))
            if t.reb:
                assert g0 > 0
                C[g0 - 1] += t.reb
        if i + 1 < len(allg):
            A[g0 + ln - 1].append(LG(("fr", (2 * i + 2) % NFS), ("fr", (2 * i + 3) % NFS)))
    for ops, f, l in sm: streams.append(Stream(ops, f, l))
    streams += list(extra)
    if endops:
        A[NG-4] += endops[:1]; A[NG-2] += [A[NG-1][0]] + list(endops[1:-1]); A[NG-1] = []; T[NG-1] = list(endops[-1:]); nosalu |= {NG-2, NG-1}
    for grp in dma:
        dl = []
        for part, pos in grp[:-2]: dl += dma_tile(part, pos, peel)
        k = max(i for i, x in enumerate(dl) if isinstance(x, VM)) + 1
        lim = NG - 3 if endops else NG - 1
        if grp[-1] + 1 > lim: k = len(dl)
        streams.append(Stream(dl[:k], grp[-2], grp[-1], maxper=2))
        if dl[k:]: streams.append(Stream(dl[k:], grp[-1] + 1, min(lim, grp[-1] + 12), maxper=2))
    bars = [(g, list(tg)) for g, tg in bars]
    for t in tasks:
        k_ = t[0]
        if k_ == "vst" and t[1] >= NVE: continue
        if k_ == "cv":
            _, cv, h, buf, rs, outb = HT[t[1]]
            ops = cv(h, buf, rs, outb)[t[2]:t[3]]
            if t[2] == 0: ops = [W(t[1])] + ops
            streams.append(Stream(ops, t[4], t[5]))
        elif k_ in ("kst", "vst", "wst"):
            grp = k_st(t[1], BX, pre=OPT["pa"]) if k_ == "kst" else v_st(t[1], BZ) if k_ == "vst" else v_st(t[1], BX, "wst")
            g = t[2]; assert not B[g] and not A[g], (name, g)
            B[g].append(grp[-1]); novm |= set(range(g - OPT["sb"], g + OPT["sa"] + 1))
            if grp[:-1]: streams.append(Stream(grp[:-1], max(0, g - 5), g - 1))
        elif k_ in ("ld", "ldn"):
            ld, _, h, buf, rs, _o = HT[t[1]]
            adv = {"ka": k_adv(), "va": v_adv()}.get(t[1], []) if k_ == "ld" else []
            ops = ld(h, buf, rs, t[1])
            if len(t) > 4: ops = ops[2:] if t[4] == "raw" else ops[:2]
            streams.append(Stream(adv + ops, t[2], t[3], maxper=1))
        elif k_ == "post":
            bi = t[2] if len(t) > 2 else -1
            bars[bi][1].append(t[1])
            streams.append(Stream(flag_post(), bars[bi][0] + 1, min(NG - 3, bars[bi][0] + 14), maxper=1))
        elif k_ == "pf":
            streams.append(Stream([VM("pf", f"buffer_load_dword v{V_T4}, v{V_DMA}, s[{S_DBG}:{S_DBG+3}], s{S_HOFF} offen")], t[1], t[2]))
        elif k_ == "rld":
            streams.append(Stream([VM("rs", f"buffer_load_dwordx4 v[{V_T4}:{V_T4+3}], v{V_DMA}, s[{S_WS}:{S_WS+3}], s{S_RC} offen sc1")], t[1], t[2]))
        elif k_ == "rst":
            g = t[1]; assert g % 2 == 1 and not B[g] and not A[g] and not A[g - 1], (name, g)
            A[g - 1].append(W("rs")); B[g].append(VM("rs2", f"buffer_store_dwordx4 v[{V_T4}:{V_T4+3}], v{V_DMA}, s[{S_WS}:{S_WS+3}], s{S_RC} offen sc1"))
            novm |= set(range(g - OPT["sb"], g + OPT["sa"] + 1))
            streams.append(Stream([f"s_add_u32 s{S_RC}, s{S_RC}, s{S_RD}", f"s_sub_u32 s{S_RD}, 1024, s{S_RD}"], g + 1, g + 8, maxper=1))
        elif k_ == "pollld": streams.append(Stream(poll_load(), t[1], t[2], maxper=1))
        elif k_ == "pollchk":
            ps = len(POLLSITES); POLLSITES.append(ps)
            g = t[1]; assert g % 4 == 1
            pt = poll_test()
            A[g] += [W("poll")]; T[g] += pt[:2]; novm |= {g, g + 4}
            A[g + 3] += [pt[3]]; A[g + 4] += [f"s_cbranch_scc1 L_pollslow{ps}", f"L_pollok{ps}:"]; nosalu |= {g + 3, g + 4}
            A[g + 5] += [f"s_add_u32 s{S_NEED}, s{S_NEED}, 1"]
        elif k_ == "spollld": A[t[1]] += smem_flags()
        elif k_ == "spollchk":
            ps = len(POLLSITES); POLLSITES.append(ps)
            A[t[1]] += ["s_waitcnt lgkmcnt(0)"]
            streams.append(Stream(smem_reduce(), t[1] + 1, t[2] - 1, maxper=3))
            A[t[2]] += [f"s_cmp_ge_u32 s{S_PT}, 16", f"s_cbranch_scc1 L_pollslow{ps}", f"L_pollok{ps}:", f"s_add_u32 s{S_NEED}, s{S_NEED}, 1"]
        elif k_ == "step": streams.append(Stream(rd_step(t[1]), t[2], t[3], maxper=1))
        elif k_ == "q": streams.append(Stream(q_dma(t[1]), t[2], t[3], maxper=2))
        else: raise Exception(k_)
    noval = set()
    for g, tags in bars:
        i = [j for j in range(len(groups)) if starts[j] + len(groups[j].mf) - 1 == g]
        assert i, (name, g)
        if len(groups[i[0]].mf) == 8 and OPT["bm"] >= 4:
            A[g - 2] += A[g] + ([W(*tags)] if tags else []); A[g] = []
            A[g - 1] += ["s_barrier"]; novm |= {g - 2, g - 1}; noval |= {g - 1} | ({g - 2} if OPT["bm"] == 5 else set())
            continue
        if len(groups[i[0]].mf) == 8:
            A[g - 2] += A[g]; A[g] = []
            if tags: A[g - 1] += [W(*tags)]
            noval |= {0: set(), 1: {g}, 2: {g - 1, g}, 3: {g - 1}}[OPT["bm"]]
        elif tags: A[g - 2] += [W(*tags)]
        A[g] += ["s_barrier"]; novm |= {g}
    for g, sec, ops in fixed: {"A": A, "B": B, "C": C, "T": T}[sec][g] += ops
    if endops:
        for st_ in streams: st_.last = min(st_.last, NG - 2)
    m0w = sorted((st.first, st.last) for st in streams if any(" m0," in text_of(o) for o in st.ops))
    assert all(m0w[i][1] < m0w[i + 1][0] for i in range(len(m0w) - 1)), (name, m0w)
    if name in str(OPT["dense"]).split(","): fill, over = pack_dense(NG, A, B, C, T, streams, novm, nosalu, vmgap or OPT["dvg"])
    else:
        fill, over = pack(NG, A, B, C, T, streams, novm, nosalu, vmgap or OPT["vmgap"], (), noval)
        if OPT["twop"] and name[0] in "kz":
            vg = {g for g in range(NG) if any(kind_of(o) in ("load", "store") for o in fill[g])}
            for st_ in streams: st_.i = 0; st_.done = 0
            fill, over = pack(NG, A, B, C, T, streams, set(novm) | (set(range(NG)) - vg), nosalu, vmgap or OPT["vmgap"], {g - 1 for g in vg})
    if over: print(f"seg {name}: over budget by {over} cycles", file=sys.stderr)
    out = istamp(name)
    g = 0
    for i, gr in enumerate(groups):
        for j, d, b, c in gr.mf:
            if (OPT["pvs"] & 1 and d[0] in "a ") or (OPT["pvs"] & 2 and d.startswith("v")): out.append(f"{MF} {d}, {b}, {FR(2*i+j)}, {c}")
            else: out.append(f"{MF} {d}, {FR(2*i+j)}, {b}, {c}")
            out += fill[g]; g += 1
    return with_nop(out)

GBAR = 79
def seg_groups(it):
    return qk_full(it + 1) if it % 2 else pv_seq(it - 2)
def gen_iter(it, tasks=(), dma=(), name=None, endops=(), peel=False, nxt=None, extra=(), bars=None, groups=None, sm=None, step=True):
    q = it % 2
    smB = softmax_part(it, 1); smA = softmax_part(it + 1, 0)
    if sm is None: sm = ([(smB + [("dl", 57), ("nb", 47)] + smA, 0, 95)] if OPT["flex"] else [(smB, 0, 50), (smA, 52, 95)]) if q else [(smB + smA, 0, 95)]
    need = [("dv", (it - 1) % 8), ("dv", it % 8)] if q else [("dk", (it + 2) % 8), ("dk", (it + 3) % 8)]
    tasks = list(tasks) + ([("step", "p" if q else "q", 30, GBAR - 3)] if step else [])
    return gen_seg(name or f"i{it}", groups or seg_groups(it), nxt if nxt is not None else seg_groups(it + 1)[:2], sm,
                   bars if bars is not None else [(GBAR, need)], tasks, dma, extra, endops, peel=peel)

K_ = lambda *j: tuple(("k", x) for x in j)
V_ = lambda *j: tuple(("v", x) for x in j)
def steady(k):
    ckv, ckk = OPT["ckv"], OPT["ckk"]
    plv, plk = OPT["plv"], OPT["plk"]
    if OPT.get("p15"):
        return {
            5: ([("cv", "wb", 0, 99, 30, 95), ("pollchk", 1), ("post", "vst")], [K_(0, 1) + (8, 74)]),
            6: ([("wst", 0, 1), ("wst", 1, 9), ("wst", 2, 17), ("post", "wst"), ("ld", "ka", 26, 60), ("ld", "kb", 61, 95)], [K_(2, 3) + (26, 90)]),
            7: ([("cv", "ka", 0, 30, 45, 95), ("pollld", plv, plv + 8)], [K_(4, 5) + (11, 92)]),
            0: ([("cv", "ka", 30, 99, 0, 50), ("cv", "kb", 0, 20, 51, 95), ("pollchk", ckv), ("ld", "va", 52, 95)], [V_(0, 1) + (ckv + 7, 74)]),
            1: ([("cv", "kb", 20, 99, 0, 95)], [V_(2, 3) + (0, GBAR - 5)]),
            2: ([("cv", "va", 0, 99, 10, 95), ("kst", 0, 1), ("kst", 1, 9), ("kst", 2, 17), ("kst", 3, 25), ("post", "kst"), ("ld", "vb", 33, 60)], [K_(6, 7) + (33, 74)]),
            3: ([("cv", "vb", 0, 99, 50, 95), ("ldn", "wa", 0, 44)], [V_(4, 5) + (0, 90)]),
            4: ([("vst", 0, 1), ("vst", 1, 9), ("vst", 2, 17), ("cv", "wa", 0, 99, 30, 95), ("ld", "wb", 25, 50), ("pollld", 52, 60)], [V_(6, 7) + (25, GBAR - 5)]),
        }[k]
    if OPT["bal"]:
        c = [int(x) for x in str(OPT["cut"]).split(",")]
        a1, a2, b1, b2, v1, v2, w1 = c
        return {
            5: ([("cv", "ka", 0, a1, OPT["w5"], 95), ("pollchk", 1), ("vst", 0, 9), ("vst", 1, 17), ("vst", 2, 25), ("vst", 3, 33), ("post", "vst")], [K_(0, 1) + (41, 74)]) if ckk == 1 else
               ([("cv", "ka", 0, a1, 0, 95), ("pollchk", ckk), ("vst", 0, 1), ("vst", 1, 9), ("vst", 2, 17), ("vst", 3, 25), ("post", "vst")], [K_(0, 1) + (ckk + 7, 92)]),
            6: ([("cv", "ka", a1, a2, 0, 95), ("ld", "kb", 0, 44)] + [("rld", 70, 92)] * OPT["rs"], [K_(2, 3) + (0, 90)]),
            7: ([("cv", "ka", a2, 99, 0, 60 if b1 < 12 else 44), ("cv", "kb", 0, b1, 61 if b1 < 12 else 45, 95), ("ld", "va", 11, OPT["lva"]), ("pollld", plv, plv + 8)], [K_(4, 5) + (11, 92)]),
            0: ([("cv", "kb", b1, b2, 0, 95), ("pollchk", ckv)] + [("rst", 81)] * OPT["rs"], [V_(0, 1) + (ckv + 7, 74)]),
            1: ([("cv", "kb", b2, 99, 0, 30), ("cv", "va", 0, v1, 31, 95), ("ld", "vb", 32, 80)], [V_(2, 3) + (0, GBAR - 5)]) if b2 < 56 else
               ([("cv", "va", 0, v1, 20, 95), ("ld", "vb", 0, 40)], [V_(2, 3) + (0, 90)]),
            2: ([("cv", "va", v1, v2, 0, 95), ("kst", 0, 1), ("kst", 1, 9), ("kst", 2, 17), ("kst", 3, 25), ("post", "kst")], [K_(6, 7) + (33, 74)]),
            3: ([("cv", "va", v2, 99, 0, 50), ("cv", "vb", 0, w1, 51, 95), ("ld", "ka", 0, 44)], [V_(4, 5) + (0, 90)]),
            4: ([("cv", "vb", w1, 99, 0, 95), ("pollld", plk, plk + 16)] + ([("pf", 80, 92)] if OPT["pf2"] else []), [V_(6, 7) + (0, GBAR - 5)]),
        }[k]
    return {
        1: ([("cv", "va", 0, 22, 0, 95), ("ld", "vb", 0, 44)], [V_(2, 3) + (0, GBAR - 5)]),
        2: ([("cv", "va", 22, 99, 0, 95), ("kst", 0, 1), ("kst", 1, 9), ("kst", 2, 17), ("kst", 3, 25), ("post", "kst")], [K_(6, 7) + (33, 74)]),
        3: ([("cv", "vb", 0, 22, 0, 95), ("ld", "ka", 0, 44)], [V_(4, 5) + (0, GBAR - 5)]),
        4: ([("cv", "vb", 22, 99, 0, 95), ("pollld", plk, plk + 16)] + ([("pf", 80, 92)] if OPT["pf2"] else []), [V_(6, 7) + (0, GBAR - 5)]),
        5: ([("cv", "ka", 0, 16, 0, 95), ("pollchk", 1), ("vst", 0, 9), ("vst", 1, 17), ("vst", 2, 25), ("vst", 3, 33), ("post", "vst")], [K_(0, 1) + (41, 74)]),
        6: ([("cv", "ka", 16, 99, 0, 95), ("ld", "kb", 0, 30)], [K_(2, 3) + (31, 74)]),
        7: ([("cv", "kb", 0, 24, 40, 95), ("ld", "va", 11, 40), ("pollld", plv, plv + 8)], [K_(4, 5) + (41, 90)]),
        0: ([("cv", "kb", 24, 99, 0, 95), ("pollchk", ckv)], [V_(0, 1) + (ckv + 7, ckv + 44)]),
    }[k]

GA = V_RS[0]; TA = V_RS[0] + 1; BA = V_RS[0] + 2
RL = [V_CT, V_CT + 4, NEGM(0), NEGM(1)]
S_EO = 24
def epi_addr():
    return [f"v_bfe_u32 v{TA}, v{V_DMA}, 8, 2", f"v_mul_u32_u24 v{GA}, 1536, v{TA}", f"v_lshlrev_b32 v{BA}, 4, v{TA}",
            f"v_bfe_u32 v{TA}, v{V_DMA}, 4, 4", f"v_mul_u32_u24 v{TA}, {12 if V64 else 8}, v{TA}", f"v_add_u32 v{GA}, v{GA}, v{TA}", f"v_mov_b32 v{TA}, 1.0"] + [f"v_mov_b32 v{ONES+i}, 0x3f803f80" for i in range(4 * OPT["lmf"])] + [
            f"s_lshl_b32 s{S_EO}, s{S_QB}, 2", f"s_add_u32 s{S_EO}, s{S_EO}, s{S_WAVE}", f"s_mul_i32 s{S_EO}, s{S_EO}, {STAGE}",
            f"s_add_u32 s{S_QL}, s{S_EO}, 6144", f"s_add_u32 s{S_QS}, s{S_EO}, 12288", f"s_add_u32 s{S_TAG}, s{S_EO}, 18432"]
S_EQ = [S_EO, S_QL, S_QS, S_TAG]
def epi_l(qs, gap=("s_nop 7", "s_nop 1"), acc=False):
    fl = [f"v_mfma_f32_16x16x4_f32 v[{RL[q]}:{RL[q]+3}], v{V_L[q]}, v{TA}, " + (f"v[{RL[q]}:{RL[q]+3}]" if acc else "0") for q in qs] + list(gap)
    return fl + [f"v_rcp_f32 v{RL[q]+r}, v{RL[q]+r}" for q in qs for r in range(4)]
class Epi:
    def __init__(self, temps): self.temps = temps; self.n = 0; self.pend = []
    def flush(self, k=99):
        p = self.pend[:k]; self.pend = self.pend[k:]
        return p
    def chunk(self, qb, n, pk=False, inv=False):
        p = []
        if V64:
            for r in range(4):
                o = self.temps[self.n % len(self.temps)]; self.n += 1; rl = RL[qb] + r
                p += [f"v_accvgpr_read_b32 v{o+e}, a{O(qb,6*n+e)+r}" for e in range(6)]
                if pk: p += [f"v_pk_mul_f32 v[{o+2*i}:{o+2*i+1}], v[{o+2*i}:{o+2*i+1}], v[{rl&~1}:{(rl&~1)+1}] " + ("op_sel:[0,1] op_sel_hi:[1,1]" if rl & 1 else "op_sel_hi:[1,0]") for i in range(3)]
                else: p += [f"v_mul_f32 v{o+e}, v{o+e}, v{rl}" for e in range(6)]
                p += [f"v_cvt_pk_bf16_f32 v{o+i}, v{o+2*i}, v{o+2*i+1}" for i in range(3)] + self.flush(1)
                self.pend.append(VM("out", f"buffer_store_dwordx3 v[{o}:{o+2}], v{GA}, s[{S_OUT}:{S_OUT+3}], s{S_EQ[qb]} offen offset:{n*192 + r*384}{OF}"))
            return p
        ob = self.temps[self.n % len(self.temps)]; self.n += 1
        for r in range(4):
            o = ob + 4 * r
            if inv:
                p += [f"v_mul_f32 v{o+e}, v{OV(qb,3*e+n)+r}, v{RL[qb]+r}" for e in range(4)]
                p += [f"v_cvt_pk_bf16_f32 v{o+i}, v{o+2*i}, v{o+2*i+1}" for i in range(2)] + self.flush(1)
                self.pend.append(VM("out", f"buffer_store_dwordx2 v[{o}:{o+1}], v{GA}, s[{S_OUT}:{S_OUT+3}], s{S_EQ[qb]} offen offset:{n*128 + r*384}{OF}"))
                continue
            p += [f"v_accvgpr_read_b32 v{o+e}, a{O(qb,3*e+n)+r}" for e in range(4)]
            rl = RL[qb] + r
            if pk: p += [f"v_pk_mul_f32 v[{o+2*i}:{o+2*i+1}], v[{o+2*i}:{o+2*i+1}], v[{rl&~1}:{(rl&~1)+1}] " + ("op_sel:[0,1] op_sel_hi:[1,1]" if rl & 1 else "op_sel_hi:[1,0]") for i in range(2)]
            else: p += [f"v_mul_f32 v{o+e}, v{o+e}, v{rl}" for e in range(4)]
            p += [f"v_cvt_pk_bf16_f32 v{o+i}, v{o+2*i}, v{o+2*i+1}" for i in range(2)]
            p += self.flush(1)
            self.pend.append(VM("out", f"buffer_store_dwordx2 v[{o}:{o+1}], v{GA}, s[{S_OUT}:{S_OUT+3}], s{S_EQ[qb]} offen offset:{n*128 + r*384}{OF}"))
        return p

def gen_tail():
    sp = softmax_part
    g57 = qk_half(58) + rebase(qk_half(59), V_RDK, A0 - A2)
    g58 = pv_seq(56)
    g59 = rebase(qk_half(60), V_RDK, A1 - A0) + rebase(qk_half(61), V_RDK, A2 - A1)
    g60 = rebase(pv_seq(58), [V_RD], B2 - B1) + rebase(pv_seq(59), [V_RD], B0 - B2)
    g61 = rebase(pv_seq(60), [V_RD], B1 - B0) + rebase(qk_half(62), V_RDK, A0 - A2)
    g62 = rebase(qk_half(63), V_RDK, A1 - A0) + ([] if OPT["f3"] else rebase(pv_seq(61), [V_RD], B2 - B1))
    g63 = []
    for dbs in ([chunk_dbs(0), [6, 7, 8], [9, 10, 11]] if V64 else [chunk_dbs(n) for n in range(3)]):
        if OPT["f3"]: g63 += [pv_grp(61, db, va=V_RD3) for db in dbs]
        g63 += [pv_grp(62, db) for db in dbs] + [pv_grp(63, db, va=V_RD2) for db in dbs]
    if OPT["f3"]: g63[0].reb += [f"v_add_u32 v{V_RD3}, {B2 - B1}, v{V_RD}", f"v_mov_b32 v{V_RD2}, v{V_RD}", f"v_subrev_u32 v{V_RD}, {B1 - B0}, v{V_RD}"]
    else: g63[0].reb += [f"v_subrev_u32 v{V_RD2}, {B2 - B1}, v{V_RD}", f"v_subrev_u32 v{V_RD}, {B2 - B0}, v{V_RD}"]
    first57 = g57[:2]
    Z0 = OPT["z0"] and OPT["lastp"]
    p = []
    p += gen_seg("S57", g57, g58[:2], [(sp(57, 1) + [("dl", 50), ("nb", 28)] + sp(58, 0), 0, 95)], [(7, [("dk", 5)])] * (1 - Z0) + [(GBAR, [("dv", 0), ("dv", 1)])],
                 [("step", "p", 30, GBAR - 3)], [] if Z0 else [(K_(62, 63) + (8, 60)) if OPT["tv"] else (K_(62, 63) + V_(58, 59) + (8, 90))], peel=False)
    p += gen_seg("S58", g58, g59[:2], [(sp(58, 1) + sp(59, 0), 0, 95), (epi_addr(), 0, 95)], [(GBAR, [("dk", 7)] if OPT["tv"] else [("dk", 7), ("dv", 3)])], [],
                 [(V_(58, 59, 60, 61) + (0, 74)) if OPT["tv"] else (V_(60, 61) + (0, 60))], peel=False)
    p += gen_seg("S59", g59, g60[:2], [(sp(59, 1) + [("dl", 50), ("nb", 28)] + sp(60, 0), 0, 95)], [(15, [("dv", 5)])], [], [V_(62, 63) + (16, 60)], peel=False)
    p += gen_seg("S60", g60, g61[:2], [(sp(60, 1) + sp(61, 0), 0, 95)], [(GBAR, [("dv", 7)])])
    ep = Epi([BX + 6 * i for i in range(5)] if V64 else [BX] if OPT["omv"] else [BX, BY])
    e01 = [x for qb in (0, 1) for n in range(NCH) for x in ep.chunk(qb, n, OPT["pk"])] + ep.flush()
    chk = [f"v_max3_f32 v{V_T+2}, v{V_L[0]}, v{V_L[1]}, v{V_L[2]}", f"v_max_f32 v{V_T+2}, v{V_T+2}, v{V_L[3]}",
           f"s_mov_b32 s{S_TMP}, 0x{f32bits(2.0**OPT['thr']):08x}", f"v_cmp_lt_f32 s[{S_PT}:{S_PT+1}], s{S_TMP}, v{V_T+2}"]
    c = [ep.chunk(2, j, OPT["pk"]) + ep.chunk(3, j, OPT["pk"]) + ep.flush() for j in range(NCH - 1)] + [[]]
    sm = sp(61, 1) + epi_l((0, 1), [])[2:] + [("dl", 50), ("nb", 76)] + sp(62, 0) + [("nb", 98)] + sp(62, 1) + [("nb", 124)] + sp(63, 0) + [("nb", 148)] + sp(63, 1) + [("dl", 205)] + chk + [("nb", 214)] + epi_l((2, 3), [])[2:]
    ee = e01 + [("nb", 228)] + c[0] + [("nb", 260)] + c[1]
    lastsm = 220
    if OPT["f3"]:
        sm = sp(61, 1) + epi_l((0, 1), [])[2:] + [("dl", 50), ("nb", 76)] + sp(62, 0) + [("nb", 98)] + sp(62, 1) + [("dl", 157), ("nb", 124)] + sp(63, 0) + [("nb", 148)] + sp(63, 1) + [("dl", 173)] + chk + [("nb", 182)] + epi_l((2, 3), [])[2:]
        ee = e01 + [("dl", OPT["ed"]), ("nb", 196)] + c[0] + [("dl", OPT["ed1"]), ("nb", 244)] + c[1]
        lastsm = 190
        if V64:
            lm = OPT["lmf"]
            sm = sp(61, 1, lm) + epi_l((0, 1), [])[2:] + [("dl", 50), ("nb", 76)] + sp(62, 0, lm) + [("nb", 98)] + sp(62, 1, lm) + [("dl", 165), ("nb", 124)] + sp(63, 0, lm) + [("nb", 148)] + sp(63, 1, lm) + [("dl", 187 if lm else 189)]
            if lm:
                chk = [f"v_max3_f32 v{V_T+2}, v{V_L[0]}, v{V_L[1]}, v{RL[2]}"] + [f"v_max3_f32 v{V_T+2}, v{V_T+2}, v{a_}, v{a_+1}" for a_ in (RL[2] + 1, RL[2] + 3, RL[3] + 1)] + [f"v_max_f32 v{V_T+2}, v{V_T+2}, v{RL[3]+3}"] + chk[2:]
                sm += [("nb", 198)] + chk + epi_l((2, 3), [])[2:]
            else: sm += chk + [("nb", 198)] + epi_l((2, 3), [])[2:]
            ee = e01 + [("dl", OPT["ed"] + 20), ("nb", 220)] + c[0]
            lastsm = 206
    if OPT["sst"]:
        prod = []; ev = []
        for x in ee:
            if isinstance(x, VM): prod.append(x)
            else: ev.append(x)
        es = Stream(ev, 52, 286); ss = Stream(prod, 52, 287)
        cv = [i for i, x in enumerate(es.ops) if text_of(x).startswith("v_cvt_pk")][(2 if V64 else 1)::(3 if V64 else 2)]
        rd = [i for i, x in enumerate(es.ops) if text_of(x).startswith("v_accvgpr_read")][0::(6 if V64 else 4)]
        assert len(cv) == len(prod) == len(rd)
        for k in range(len(prod)):
            ss.gate[k] = (es, cv[k]); ss.nb[k] = max([0] + [gp for i, gp in es.nb.items() if i <= cv[k]])
            kk = k + (1 if V64 else 4) * len(ep.temps)
            if kk < len(prod): es.gate[rd[kk]] = (ss, k)
        xs = [es, ss]
        LT = [96, 102, 108, 114, 120, 64, 70, 144]
        if V64: xs.append(Stream([x for q in (2, 3) for r in range(4) for x in [f"v_accvgpr_read_b32 v{LT[4*(q-2)+r]+e}, a{O(q,6+e)+r}" for e in range(3)] +
                                  [f"v_mul_f32 v{LT[4*(q-2)+r]+e}, v{LT[4*(q-2)+r]+e}, v{RL[q]+r}" for e in range(3)]], 256, 287))
        if OPT["omv"]: xs.append(Stream([f"v_accvgpr_read_b32 v{OV(q, db)+r}, a{O(q, db)+r}" for q in (2, 3) for db in (2, 5, 8, 11) for r in range(4)], 0, 140))
    else: xs = [Stream(ee, 52, 287)]
    p += gen_seg("S61", g61 + g62 + g63, [], [(sm, 0, lastsm)], extra=xs,
                 fixed=[(1, "T", epi_l((0, 1))[:1]), (3, "T", epi_l((0, 1))[1:2]), (lastsm - 15, "T", epi_l((2, 3), acc=V64 and OPT["lmf"])[:1]), (lastsm - 13, "T", epi_l((2, 3), acc=V64 and OPT["lmf"])[1:2]), (lastsm + 5, "A", [f"s_cmp_lg_u64 s[{S_PT}:{S_PT+1}], 0", "s_cbranch_scc1 L_slow"]), (95, "T", istamp("S62")), (191, "T", istamp("S63"))])
    p += istamp("fin") + ["s_nop 7"]
    if OPT["omv"]: ep.temps = [UNIT[0], UNIT[1]]
    if V64:
        for q in (2, 3):
            for r in range(4):
                o = LT[4 * (q - 2) + r]
                p += [f"v_accvgpr_read_b32 v{o+e}, a{O(q,6+e)+r}" for e in range(3, 6)] + [f"v_cvt_pk_bf16_f32 v{o}, v{o}, v{o+1}"]
                p += [f"v_mul_f32 v{o+e}, v{o+e}, v{RL[q]+r}" for e in range(3, 6)] + [f"v_cvt_pk_bf16_f32 v{o+i}, v{o+2*i}, v{o+2*i+1}" for i in (1, 2)]
                p += [VM("out", f"buffer_store_dwordx3 v[{o}:{o+2}], v{GA}, s[{S_OUT}:{S_OUT+3}], s{S_EQ[q]} offen offset:{192 + r*384}{OF}")]
        return first57, p
    p += ep.chunk(2, NCH - 1, True, OPT["omv"]) + ep.flush() + ep.chunk(3, NCH - 1, True, OPT["omv"]) + ep.flush()
    return first57, p
def slow_epi():
    ep = Epi([64 + 6 * i for i in range(8)] if V64 else [64 + 16 * i for i in range(4)])
    seq = ["s_nop 1"] + epi_l((0, 1)) + epi_l((2, 3)) + ["s_nop 0"]
    for qb in range(4):
        for n in range(NCH): seq += ep.chunk(qb, n, True)
    return seq + ep.flush()

def kfrag(g):
    return 2 * (g >> 2) + (g & 1), (g >> 1) & 1
def gen_slow():
    KF = 64; VF = 112; SS = 160; PP = 224; M = [240, 241, 242, 243]; KA = [244, 245]; LA = 246; t = V_T
    p = ["L_slow:", "s_waitcnt vmcnt(0) lgkmcnt(0)", "s_nop 15"]
    for i in range(192): p.append(f"v_accvgpr_write_b32 a{i}, 0")
    for q in range(4): p += [f"v_mov_b32 v{V_L[q]}, 0", f"v_mov_b32 v{M[q]}, 0xff7fffff"]
    p += [f"v_subrev_u32 v{KA[0]}, {A1}, v{V_RDK[0]}", f"v_subrev_u32 v{KA[1]}, {A1}, v{V_RDK[1]}", f"v_subrev_u32 v{LA}, {B0}, v{V_RD}",
          f"s_mov_b32 s{S_PT}, 0", "L_slowloop:"]
    for i in range(1, 5): p.append(f"s_add_u32 s{S_PT+i}, s{S_PT}, {[0, 6144, 12288, 16384, 20480][i]}")
    for f in range(12):
        s, tb = kfrag(f)
        p.append(f"buffer_load_dwordx4 v[{KF+4*f}:{KF+4*f+3}], v{KA[s&1]}, s[{S_WS}:{S_WS+3}], s{S_PT+tb} offen offset:{(s>>1)*128} sc1")
    for db in range(12):
        p.append(f"buffer_load_dwordx4 v[{VF+4*db}:{VF+4*db+3}], v{LA}, s[{S_WS}:{S_WS+3}], s{S_PT+2+db//4} offen offset:{(db%4)*1024} sc1")
    p.append("s_waitcnt vmcnt(12)")
    for f in range(12):
        s, tb = kfrag(f)
        for qb in range(4):
            d = vr(SS + 8 * qb + 4 * tb, 4)
            p.append(f"{MF} {d}, v[{KF+4*f}:{KF+4*f+3}], {Qf(qb,s)}, {'0' if s == 0 else d}")
    p.append("s_nop 9")
    for qb in range(4):
        sb = SS + 8 * qb
        p += [f"v_max3_f32 v{t}, v{sb}, v{sb+1}, v{sb+2}", f"v_max3_f32 v{t}, v{t}, v{sb+3}, v{sb+4}",
              f"v_max3_f32 v{t}, v{t}, v{sb+5}, v{sb+6}", f"v_max3_f32 v{t}, v{t}, v{sb+7}, v{M[qb]}"]
        p += xlane("v_max_f32", t)
        p += [f"v_sub_f32 v{t+1}, v{M[qb]}, v{t}", f"v_exp_f32 v{t+1}, v{t+1}", f"v_mov_b32 v{M[qb]}, v{t}"]
        for i in range(8): p.append(f"v_sub_f32 v{sb+i}, v{sb+i}, v{t}")
        for i in range(8): p.append(f"v_exp_f32 v{sb+i}, v{sb+i}")
        p.append(f"v_mul_f32 v{V_L[qb]}, v{V_L[qb]}, v{t+1}")
        for i in range(8): p.append(f"v_add_f32 v{V_L[qb]}, v{V_L[qb]}, v{sb+i}")
        for i in range(4): p.append(f"v_cvt_pk_bf16_f32 v{PP+4*qb+i}, v{sb+2*i}, v{sb+2*i+1}")
        p += [f"ds_bpermute_b32 v{248+r}, v{BA}, v{t+1} offset:{4*r}" for r in range(4)] + ["s_waitcnt lgkmcnt(0)"]
        for i in range(48):
            a = O(qb, 0) + i; tt = t + 2 + (i % 2)
            p += [f"v_accvgpr_read_b32 v{tt}, a{a}", f"v_mul_f32 v{tt}, v{tt}, v{248+i%4}", f"v_accvgpr_write_b32 a{a}, v{tt}"]
    p += ["s_waitcnt vmcnt(0)", "s_nop 1"]
    for db in range(12):
        for qb in range(4):
            d = ar(O(qb, db), 4)
            p.append(f"{MF} {d}, v[{PP+4*qb}:{PP+4*qb+3}], v[{VF+4*db}:{VF+4*db+3}], {d}")
    p += [f"s_add_u32 s{S_PT}, s{S_PT}, {STAGE}", f"s_cmp_lt_u32 s{S_PT}, {HEADBYTES}", "s_nop 7", "s_cbranch_scc1 L_slowloop"]
    e = slow_epi(); resolve(e)
    return p + fin(e) + ["s_branch L_fin"]

def xlane(op, t, u=None):
    u = t + 1 if u is None else u
    l = []
    for sw in ("v_permlane16_swap_b32", "v_permlane32_swap_b32"):
        l += [f"v_mov_b32 v{u}, v{t}", "s_nop 1", f"{sw} v{t}, v{u}", "s_nop 1", f"{op} v{t}, v{t}, v{u}"]
    return l
def rowmax2(t, qs, tq):
    l = []
    ab = [(Sq(t, j, 0), Sq(t, j, 1)) for j in range(2)]
    l += [f"v_max3_f32 v{tq[j]}, v{a}, v{a+1}, v{a+2}" for j, (a, b) in enumerate(ab)]
    l += [f"v_max3_f32 v{tq[j]}, v{tq[j]}, v{a+3}, v{b}" for j, (a, b) in enumerate(ab)]
    l += [f"v_max3_f32 v{tq[j]}, v{tq[j]}, v{b+1}, v{b+2}" for j, (a, b) in enumerate(ab)]
    l += [f"v_max_f32 v{tq[j]}, v{tq[j]}, v{b+3}" for j, (a, b) in enumerate(ab)]
    for sw in ("v_permlane16_swap_b32", "v_permlane32_swap_b32"):
        l += [f"v_mov_b32 v{tq[j]+1}, v{tq[j]}" for j in range(2)] + ["s_nop 0"]
        l += [f"{sw} v{tq[j]}, v{tq[j]+1}" for j in range(2)] + ["s_nop 0"]
        l += [f"v_max_f32 v{tq[j]}, v{tq[j]}, v{tq[j]+1}" for j in range(2)]
    l += [f"v_sub_f32 v{NEGM(qs[j])+i}, 0, v{tq[j]}" for j in range(2) for i in range(4)]
    return l
def sm_one(t, sl):
    a, b = Sq(t, sl, 0), Sq(t, sl, 1); tq = V_CT; qb = slot_q(t, sl); rs = [r + i for r in (a, b) for i in range(4)]
    l = [f"v_max3_f32 v{tq}, v{a}, v{a+1}, v{a+2}", f"v_max3_f32 v{tq+2}, v{a+3}, v{b}, v{b+1}",
         f"v_max3_f32 v{tq}, v{tq}, v{b+2}, v{b+3}", f"v_max_f32 v{tq}, v{tq}, v{tq+2}"] + xlane("v_max_f32", tq)
    l += [f"v_sub_f32 v{r}, v{r}, v{tq}" for r in rs] + [f"v_exp_f32 v{r}, v{r}" for r in rs] + [f"v_sub_f32 v{NEGM(qb)+i}, 0, v{tq}" for i in range(4)]
    l += [f"v_add_f32 v{V_L[qb]}, v{V_L[qb]}, v{r}" for r in rs] + [f"v_cvt_pk_bf16_f32 v{a+i}, v{rs[2*i]}, v{rs[2*i+1]}" for i in range(4)]
    return l
def addneg(t, sl):
    n = NEGM(slot_q(t, sl))
    return [f"v_add_f32 v{Sq(t,sl,tb)+i}, v{Sq(t,sl,tb)+i}, v{n}" for tb in range(2) for i in range(4)]

def resolve(seq):
    vm = []; ds = []
    for x in seq:
        if isinstance(x, VM): vm.append(x.tag)
        elif isinstance(x, DS): ds.append(x.tag)
        elif isinstance(x, (W, LG)):
            q = vm if isinstance(x, W) else ds
            best = None
            for tag in x.tags:
                n = 0; found = False
                for t in reversed(q):
                    if t == tag: found = True; break
                    n += 1
                if found: best = n if best is None else min(best, n)
            if best is not None:
                x.n = best if getattr(x, "n", None) is None else min(x.n, best)
        else:
            assert not x.startswith(("ds_", "buffer_")) or "UNTRACKED" in x, x
def vm_size(x):
    t = x.text
    if t.startswith("buffer_store"): return 0
    if x.tag == "pre": return 3.0
    if " lds" in t: return 1.0
    if "dwordx4" in t or "dwordx3" in t: return 0.75
    if "dwordx2" in t and "offen" in t: return 0.375
    return 0.125
def pace(seq, cap):
    out = []; q = []; on = False
    for x in seq:
        if isinstance(x, W): q = q[len(q) - min(len(q), x.n):]; on = True
        elif isinstance(x, VM):
            sz = vm_size(x)
            if on and not x.text.startswith("buffer_store") and sum(q) + sz > cap:
                while q and sum(q) + sz > cap: q.pop(0)
                w = W(); w.n = len(q)
                if out and out[-1] == "s_nop 0": out.pop()
                out.append(w)
            q.append(sz)
        out.append(x)
    return out
def fin(seq):
    out = []
    for x in seq:
        if isinstance(x, (W, LG)):
            if OPT["ab"] and getattr(x, "n", None) is None: x.n = 63
            assert getattr(x, "n", None) is not None, x.tags
            out.append(f"s_waitcnt vmcnt({min(x.n, 63)})" if isinstance(x, W) else f"s_waitcnt lgkmcnt({min(x.n, 15)})")
        elif isinstance(x, (VM, DS)): out.append(x.text)
        else: out.append(x.replace(" ;UNTRACKED", ""))
    return out
def groups_of(l):
    out = [[]]
    for x in l:
        out[-1].append(x)
        if isinstance(x, VM): out.append([])
    tail = out.pop()
    if tail: out[-1] += tail
    return out
def sprinkle(code, l):
    if not l: return list(code)
    gs = groups_of(l); out = []; n = len(code); m = len(gs); j = 0
    for i, x in enumerate(code):
        while j < m and i * m >= j * n: out += with_nop(gs[j]); j += 1
        out.append(x)
    for g in gs[j:]: out += with_nop(g)
    return out
def srd(p, s, lo, hi, off_s, size):
    p += [f"s_add_u32 s{s}, s{lo}, s{off_s}", f"s_addc_u32 s{s+1}, s{hi}, 0", f"s_mov_b32 s{s+2}, {size}", f"s_mov_b32 s{s+3}, 0x20000"]

def gen_main():
    p = []
    p += [f"{NAME}_kernel:", "s_cmp_ge_u32 s2, 256", "s_cbranch_scc1 L_done",
          "s_load_dwordx16 s[40:55], s[0:1], 0", "s_load_dwordx4 s[16:19], s[0:1], 64"]
    if OPT["stamp"]: p += ["s_memtime s[98:99]" if OPT["stamp"] == 6 else "s_memrealtime s[98:99]"]
    p += [f"s_and_b32 s{S_HEAD}, s2, 7", f"s_lshr_b32 s{S_QB}, s2, 3", f"s_lshr_b32 s24, s{S_QB}, 3", f"s_lshl_b32 s{S_HEAD}, s{S_HEAD}, 2",
          f"s_add_u32 s{S_HEAD}, s{S_HEAD}, s24", f"s_and_b32 s{S_QB}, s{S_QB}, 7"]
    p += ["s_getpc_b64 s[60:61]", "L_pc:", f"s_sub_u32 s60, s60, L_pc-{NAME}_kernel", "s_subb_u32 s61, s61, 0",
          f"s_mov_b32 s62, L_slow-{NAME}_kernel", "s_mov_b32 s63, 0x20000",
          "s_lshr_b32 s22, s2, 3", "s_lshl_b32 s22, s22, 12",
          "v_lshlrev_b32 v30, 4, v0",
          VM("pf", "buffer_load_dwordx4 v[128:131], v30, s[60:63], s22 offen" + (" nt" if OPT["pfnt"] else ""))]
    p += ["v_lshrrev_b32 v24, 6, v0",
          "v_and_b32 v25, 63, v0",
          f"v_readfirstlane_b32 s{S_WAVE}, v24",
          f"v_lshlrev_b32 v{V_RD}, 4, v25",
          "v_mul_u32_u24 v26, 43, v25", "v_lshrrev_b32 v26, 10, v26",
          "v_mul_u32_u24 v27, 24, v26",
          "v_sub_u32 v27, v25, v27",
          "v_lshrrev_b32 v28, 1, v24",
          "v_and_b32 v29, 1, v24",
          "v_lshlrev_b32 v30, 4, v29",
          "v_lshl_add_u32 v30, v28, 2, v30",
          "v_add_u32 v30, v30, v26",
          "v_mul_u32_u24 v30, 768, v30",
          "v_lshrrev_b32 v48, 1, v26", "v_lshlrev_b32 v48, 30, v48",
          "v_lshl_add_u32 v30, v27, 4, v30", f"v_or_b32 v{V_KLD}, v30, v48",
          f"v_lshl_or_b32 v{V_KSC}, v27, 3, v48",
          "v_mul_u32_u24 v30, 6144, v24",
          ] + (["v_mul_u32_u24 v31, 12, v25", f"v_add_u32 v{V_VLD}, v30, v31"] if V64 else [f"v_add3_u32 v{V_VLD}, v30, v{V_RD}, v48"])
    for sd, size in ((S_QK, HEADBYTES), (S_QV, HEADBYTES), (S_KS, 12288), (S_KZ, 12288), (S_VS, 4096), (S_VZ, 4096), (S_FLG, 64)):
        p += [f"s_mov_b32 s{sd+2}, {size}", f"s_mov_b32 s{sd+3}, 0x20000"]
    p += [f"s_mul_i32 s{S_PK0}, s{S_QB}, {STAGE}", f"s_add_u32 s{S_PK1}, s{S_PK0}, 6144", f"s_mov_b32 s{S_PV0}, s{S_PK0}",
          f"s_lshr_b32 s{S_PKS}, s{S_QB}, 1", f"s_mul_i32 s{S_PKS}, s{S_PKS}, 384", f"s_lshl_b32 s{S_PVS}, s{S_QB}, 6",
          f"s_lshl_b32 s24, s{S_WAVE}, 4", f"s_add_u32 s{S_PVS}, s{S_PVS}, s24",
          f"s_mul_i32 s24, s{S_HEAD}, {HEADBYTES}", f"s_mul_i32 s56, s{S_HEAD}, 12288", f"s_lshl_b32 s57, s{S_HEAD}, 12",
          f"s_lshl_b32 s58, s{S_HEAD}, 10", f"s_add_u32 s58, s58, {FLAG_OFF + 96}",
          f"s_or_b32 s{S_RET}, s{S_QB}, s{S_WAVE}"]
    p += ["s_waitcnt lgkmcnt(0)"] + istamp("karg", True)
    def base(sd, lo, off): return [f"s_add_u32 s{sd}, s{lo}, s{off}", f"s_addc_u32 s{sd+1}, s{lo+1}, 0"]
    p += base(S_QK, 42, 24) + base(S_KS, 46, 56) + base(S_KZ, 48, 56)
    kl = [k_ld(0, BX, 32, "k0a"), k_ld(1, BY, 36, "k0b")]; vl = [v_ld(0, 112, 40, "v0a"), v_ld(1, 80, 44, "v0b")]
    for x in kl[1][:2]: x.tag = "k0a"
    for x in vl[1][:2]: x.tag = "v0a"
    if OPT["ksc"]:
        for x in kl[0][2:] + kl[1][2:]: x.tag = "kraw"
        for x in kl[1][:2]: x.tag = "k0b"
        p += kl[0][2:] + kl[1][2:] + kl[0][:2] + kl[1][:2]; kl[1] = []
    else: p += kl[0][2:] + kl[0][:2] + kl[1][:2]
    p += base(S_FLG, 18, 58) + base(S_VS, 50, 57) + base(S_VZ, 52, 57) + base(S_QV, 44, 24)
    p += [f"s_mul_i32 s59, s{S_HEAD}, 786432"] + base(S_OUT, 54, 59) + base(S_Q, 40, 59)
    p += [f"s_cmp_lg_u32 s{S_RET}, 0", "s_cbranch_scc1 L_notleader0", f"s_buffer_load_dwordx16 s[40:55], s[{S_FLG}:{S_FLG+3}], 0 glc", "L_notleader0:"]
    p += kl[1][2:]
    p += [f"s_add_u32 s24, s24, {WSOFF}"] * (1 if WSOFF else 0)
    srd(p, S_WS, 18, 19, 24, HEADBYTES)
    p += [f"s_mov_b32 s{S_Q+2}, 786432", f"s_mov_b32 s{S_Q+3}, 0x20000"]
    p += [f"s_mov_b32 s{S_DBG}, s16", f"s_mov_b32 s{S_DBG+1}, s17", f"s_add_u32 s{S_PV1}, s{S_PK0}, 3072", f"s_add_u32 s{S_PV2}, s{S_PK0}, 6144"]
    p += [f"s_mov_b32 s{S_DBG+2}, 256", f"s_mov_b32 s{S_DBG+3}, 0x20000", f"s_lshl_b32 s{S_HOFF}, s{S_HEAD}, 3"]
    p += [f"s_cmp_lg_u32 s{S_RET}, 0", "s_cbranch_scc1 L_notleader", "s_waitcnt lgkmcnt(0)", f"s_mov_b32 s{S_TP}, 1"]
    for i in range(16):
        p += [f"s_lshr_b32 s{40+i}, s{40+i}, 10", f"s_min_u32 s{40+i}, s{40+i}, 31", f"s_bitset1_b32 s{S_TP}, s{40+i}"]
    p += [f"s_ff0_i32_b32 s{S_TP}, s{S_TP}", f"s_lshl_b32 s{S_TP}, s{S_TP}, 10", f"v_mov_b32 v{V_POLL}, s{S_TP}",
          "s_mov_b64 exec, 1", f"buffer_store_dword v{V_POLL}, off, s[{S_DBG}:{S_DBG+3}], s{S_HOFF} sc1 ;UNTRACKED", "s_mov_b64 exec, -1",
          "L_notleader:"]
    p += [f"s_lshl_b32 s24, s{S_QB}, 2", f"s_add_u32 s24, s24, 32", f"s_buffer_load_dword s{S_OWN}, s[{S_FLG}:{S_FLG+3}], s24 glc",
          ] + ([f"s_getreg_b32 s{S_XCC}, hwreg(HW_REG_XCC_ID, 0, 4)", f"s_lshl_b32 s{S_XCC}, s{S_XCC}, 5", f"s_mov_b32 s{S_FOFF}, {32 if OPT['l2'] == 3 else 0}"] if OPT["l2"] else
          [f"s_mov_b32 s{S_XCC}, 0", f"s_mov_b32 s{S_FOFF}, 32"])
    p += vl[0][2:] + vl[0][:2] + vl[1][:2] + (vl[1][2:] if OPT["greedy"] else []) + istamp("iss", True)
    if OPT["pre"]:
        st = OPT["pre"]
        p += [f"v_mul_u32_u24 v31, {st}, v25", f"v_mul_u32_u24 v30, 6144, v24", "v_add_u32 v31, v30, v31"]
        if st == 128: p += ["v_or_b32 v31, v31, v48"]
        p += [VM("pre", f"buffer_load_dword v132, v31, s[{S_WS}:{S_WS+3}], s{S_PK0} offen" + (" nt" if OPT["prent"] else ""))]
        if st == 64: p += ["v_add_u32 v30, 4096, v31", "s_mov_b64 exec, 0xffffffff", VM("pre", f"buffer_load_dword v133, v30, s[{S_WS}:{S_WS+3}], s{S_PK0} offen nt"), "s_mov_b64 exec, -1"]
    p += [f"s_mov_b32 s{S_OUT+2}, 786432", f"s_mov_b32 s{S_OUT+3}, 0x20000"]
    p += [f"s_lshl_b32 s24, s{S_WAVE}, 8", f"s_add_u32 s{S_HOFF}, s{S_HOFF}, s24"]
    p += ["v_mul_u32_u24 v30, 3072, v24", f"v_add_u32 v{V_DMA}, v30, v{V_RD}"]
    p += ["v_lshl_add_u32 v30, v24, 3, v26",
          "v_mul_u32_u24 v30, 384, v30",
          "v_lshlrev_b32 v31, 2, v29",
          "v_xor_b32 v31, v27, v31",
          "v_lshl_add_u32 v30, v31, 4, v30", f"v_or_b32 v{V_KST}, v30, v48",
          "v_lshlrev_b32 v30, 8, v24",
          "v_add_u32 v30, 12288, v30",
          ] + (["v_lshrrev_b32 v31, 5, v25", "v_mul_u32_u24 v31, 6144, v31", "v_add_u32 v30, v30, v31", "v_and_b32 v31, 1, v25", "v_mul_u32_u24 v31, 3072, v31", "v_add_u32 v30, v30, v31",
          "v_bfe_u32 v31, v25, 1, 4", f"v_lshl_add_u32 v{V_VST}, v31, 4, v30"] if V64 else
          ["v_lshrrev_b32 v31, 4, v25", "v_lshl_add_u32 v30, v31, 10, v30", "v_and_b32 v31, 15, v25",
          "v_lshl_add_u32 v30, v31, 4, v30", f"v_or_b32 v{V_VST}, v30, v48"])
    p += [f"s_lshl_b32 s24, s{S_QB}, 2",
          f"v_lshl_add_u32 v{V_FLAG}, v0, 2, s24", f"v_cmp_lt_u32 vcc, 0, v0", "v_mov_b32 v30, 0x40000000", "s_nop 0",
          f"v_cndmask_b32 v{V_FLAG}, v{V_FLAG}, v30, vcc"]
    p += [f"s_mul_i32 s{S_DMK}, s{S_WAVE}, 3072", f"s_add_u32 s{S_DMK}, s{S_DMK}, 12288", f"s_add_u32 s{S_DMV}, s{S_DMK}, {STAGE}",
          f"s_add_u32 s24, s{S_QB}, 1", "s_and_b32 s24, s24, 7", f"s_mul_i32 s{S_GOFFK}, s24, {STAGE}", f"s_add_u32 s{S_GOFF}, s{S_GOFFK}, 12288",
          f"s_mov_b32 s{S_RK}, {A2}", f"s_mov_b32 s{S_RV}, {B1}", f"v_add_u32 v{V_RD}, {B0}, v{V_RD}",
          f"s_mov_b32 s{S_CS}, 0x{f32bits(CSCALE):08x}", f"s_mov_b32 s{S_MASK}, 0xffff0000",
          f"s_mov_b32 s{S_BUDGET}, 100000"] + ([f"s_mov_b32 s{S_TAG+1}, 0"] if OPT["stamp"] else [])
    p += ["v_and_b32 v26, 15, v25", "v_lshrrev_b32 v27, 4, v25", "v_bfe_u32 v28, v25, 1, 3",
          "v_xor_b32 v29, v27, v28", "v_mul_u32_u24 v30, 384, v26", f"v_lshl_add_u32 v{V_RDK[0]}, v29, 4, v30",
          f"v_xor_b32 v{V_RDK[1]}, 64, v{V_RDK[0]}"]
    p += [f"s_mul_i32 s{S_QL}, s{S_WAVE}, 6144", f"s_add_u32 s{S_QL}, s{S_QL}, {B1}",
          "v_lshrrev_b32 v29, 1, v27", "v_xor_b32 v29, v29, v28", "v_lshl_add_u32 v31, v29, 4, v30",
          "v_and_b32 v29, 1, v27", "v_lshl_add_u32 v31, v29, 3, v31"]
    for kk in range(4):
        p += [f"v_xor_b32 v{VQR[kk]}, {32*kk}, v31", f"v_add_u32 v{VQR[kk]}, s{S_QL}, v{VQR[kk]}"]
    p += [f"s_lshl_b32 s24, s{S_QB}, 2", f"s_add_u32 s24, s24, s{S_WAVE}", f"s_mul_i32 s24, s24, {STAGE}"]
    for b in range(6):
        p += [f"v_add_u32 v26, {64*b}, v25", "v_mul_u32_u24 v27, 2731, v26", "v_lshrrev_b32 v27, 17, v27",
              "v_and_b32 v27, 7, v27", "v_xor_b32 v26, v26, v27", f"v_lshlrev_b32 v{VQD+b}, 4, v26", f"v_add_u32 v{VQD+b}, s24, v{VQD+b}"]
    for q in range(4): p.append(f"v_mov_b32 v{V_L[q]}, 0")
    KF = 144
    def kf_reads(): return [DS("kf", f"ds_read_b128 v[{KF+4*f}:{KF+4*f+3}], v{V_RDK[kfrag(f)[0]&1]} offset:{kfrag(f)[1]*6144 + (kfrag(f)[0]>>1)*128}") for f in range(12)]
    def qk0(qb):
        l = []
        for f in sorted(range(12), key=lambda f: kfrag(f)[::-1]):
            s, tb = kfrag(f)
            d = vr(Sq(0, qb, tb), 4)
            l.append(f"{MF} {d}, v[{KF+4*f}:{KF+4*f+3}], {Qf(qb,s)}, {'0' if s == 0 else d}")
        return l
    STF0 = "" if OPT["l2"] else STF
    def own_k(b):
        l = []
        for j in range(4):
            l += k_st(j, b, "kst", STF0)
            va = V_KST if j == 0 else V_KA + (j & 1)
            l += ["s_mov_b64 exec, s[62:63]", DS("w", f"ds_write_b128 v{va}, v[{b+4*j}:{b+4*j+3}] offset:{j*768}"), "s_mov_b64 exec, -1"]
        return l
    def own_v(b):
        l = [x for e in range(NVE) for x in v_st(e, b, "vst", STF0)]
        if V64: return l + [DS("w", f"ds_write_b128 v{V_VST}, v[{b+4*e}:{b+4*e+3}] offset:{STAGE - 12288 + e*1024}") for e in range(3)]
        l += ["s_mov_b64 exec, s[62:63]"] + [DS("w", f"ds_write_b128 v{V_VST}, v[{b+4*e}:{b+4*e+3}] offset:{STAGE - 12288 + e*3072}") for e in range(4)] + ["s_mov_b64 exec, -1"]
        return l
    p += ["s_mov_b32 s62, -1", "s_mov_b32 s63, 0xffff"]
    qa = OPT["qa"]
    qb_, qc = OPT["qb"], OPT["qc"]
    R = lambda a, b: list(range(a, b))
    if OPT["split"]:
        p += [W("k0a")] + vl[1][2:] + k_cv(0, BX, 32, BX) + [W("k0b")] + istamp("k0b", True) + k_cv(1, BY, 36, BX) + own_k(BX)
        p += tag_load() + with_nop(q_dma(R(0, qa))) + [W("v0a")] + v_cv(0, 112, 40, 112)
        p += [W("tag")] + tag_check() + ["s_waitcnt lgkmcnt(0)", "s_barrier"] + flag_post() + tag_get() + istamp("post", True)
        p += with_nop(q_dma(R(qa, qb_))) + v_cv(1, 80, 44, 112) + own_v(112) + with_nop(q_dma(R(qb_, 12))) + istamp("vst", True)
    elif OPT["greedy"]:
        p += [W("k0a")] + with_nop(q_dma(R(0, 3))) + k_cv(0, BX, 32, BX) + [W("k0b")] + istamp("k0b", True) + with_nop(q_dma(R(3, 6))) + k_cv(1, BY, 36, BX) + own_k(BX)
        p += [W("v0a")] + with_nop(q_dma(R(6, 9))) + v_cv(0, 112, 40, 112) + [W("v0b")] + with_nop(q_dma(R(9, 12))) + v_cv(1, 80, 44, 112) + own_v(112)
        p += tag_load() + with_nop(q_dma(R(12, 18))) + istamp("vst", True)
    else:
        p += [W("k0a")] + vl[1][2:] + k_cv(0, BX, 32, BX) + [W("k0b")] + istamp("k0b", True) + k_cv(1, BY, 36, BX) + own_k(BX)
        p += with_nop(q_dma(R(0, qa))) + istamp("kst", True)
        p += [W("v0a")] + sprinkle(v_cv(0, 112, 40, 112), q_dma(R(qa, qb_))) + [W("v0b")] + v_cv(1, 80, 44, 112) + ([LG("w")] if OPT["eb"] else []) + own_v(112)
        p += tag_load() + with_nop(q_dma(R(qb_, OPT["qe"]))) + istamp("vst", True)
        if OPT["eb"]: p += ["s_barrier"] + kf_reads() + [W(("q", 0))] + q_frags(0) + [LG(("qf", 0))] + qk0(0) + ["s_nop 7"] + sm_one(0, 0)
        if OPT["q3b"]: p += [W(("q", 0))] + q_frags(0) + [LG(("qf", 0))] + with_nop(q_dma(R(18, 18 + OPT["q3b"])))
    if not OPT["split"]:
        if OPT["iw"]:
            p += ["s_mov_b64 exec, 0"] + [x for w in range(3) for x in (f"s_cmp_eq_u32 s{S_WAVE}, {w}", f"s_cbranch_scc1 L_iw{w}")] + ["s_branch L_iw3", "L_iwret:", "s_mov_b64 exec, -1"]
        p += [W("tag")] + tag_check() + istamp("tag", True)
        p += ["s_waitcnt lgkmcnt(0)", "s_barrier"] + flag_post(True) + tag_get() + istamp("post", True)
    if OPT["pf2"]:
        p += [f"s_mov_b32 s{S_DBG}, s60", f"s_mov_b32 s{S_DBG+1}, s61", f"s_mov_b32 s{S_DBG+2}, L_slow-{NAME}_kernel",
              "s_lshr_b32 s24, s2, 3", f"s_mul_i32 s{S_HOFF}, s24, 43", f"s_lshr_b32 s{S_HOFF}, s{S_HOFF}, 7",
              f"s_mul_i32 s{S_RET}, s{S_HOFF}, 3", f"s_sub_u32 s24, s24, s{S_RET}", "s_lshl_b32 s24, s24, 10",
              f"s_mul_i32 s{S_HOFF}, s{S_HOFF}, 12288", f"s_add_u32 s{S_HOFF}, s{S_HOFF}, s24"]
    if not OPT["eb"]: p += kf_reads()
    ps = len(POLLSITES); POLLSITES.append(ps)
    g3n = OPT["g3n"]
    pollchk = ["s_waitcnt lgkmcnt(0)"] + smem_reduce() + [f"s_cmp_ge_u32 s{S_PT}, 16", f"s_cbranch_scc1 L_pollslow{ps}", f"L_pollok{ps}:",
          f"s_add_u32 s{S_NEED}, s{S_NEED}, 1"] + [f"s_mov_b32 s{S_FOFF}, 32"] * (OPT["l2"] == 2) + istamp("poll", True)
    sm00 = rowmax2(0, (0, 1), (V_CT, V_CT + 2)) + addneg(0, 0) + addneg(0, 1) + softmax_part(0, 0)
    qrest = R(OPT["qe"] if OPT["greedy"] == 0 else 18, 18 + g3n)
    if OPT["fs"]:
        hand = with_nop(dma_tile("k", 1, True) + dma_tile("k", 2, True) + dma_tile("k", 3, True) + dma_tile("v", 1, True)) + k_adv() + v_adv()
        def inter(mf, fill):
            out = []; fill = list(fill)
            for m in mf:
                out.append(m); cur = []
                while fill and gap_time(cur + [fill[0]]) <= 20: cur.append(fill.pop(0))
                out += cur
            return out + fill
        NPV0 = 3; rest3 = []
        p += with_nop(q_dma(R(OPT["qe"], 18)))
        if OPT["fp"]:
            NPV0 = 2; a_ = OPT["fpa"]
            if OPT["eb"]: p += [LG("tg")] + tag_use() + with_nop(q_dma(R(18, 21)))
            else: p += [W(("q", 0))] + q_frags(0) + [LG("tg")] + tag_use() + [LG(("qf", 0))] + with_nop(q_dma(R(18, 21))) + qk0(0)
            for qb in (1, 2):
                sm = [] if (qb == 1 and OPT["eb"]) else sm_one(0, qb - 1)
                p += [W(("q", qb))] + q_frags(qb) + (smem_flags() if qb == 2 else with_nop(q_dma(R(21, 24)))) + sm[:a_] + [LG(("qf", qb))] + inter(qk0(qb), sm[a_:])
            g0 = [Grp([(V_RD, (d0 + e) * 1024) for e in range(2)], [(e, ar(O(q, d0 + e), 4), vr(P(0, q), 4), "0") for q in range(2) for e in range(2)]) for d0 in range(0, 12, 2)]
            p += [rd_op(i, j, g0[i]) for i in range(2) for j in range(2)] + pollchk + hand
            p += gen_seg("S0", g0, [], [(sm_one(0, 2), 0, 23)], tasks=[("ldn", "ka", 0, 10), ("ldn", "kb", 11, 23)][:OPT["k1s"]], vmgap=2)
            sm3 = sm_one(0, 3); k3 = [i for i, x in enumerate(sm3) if x.startswith("v_sub_f32")][0]
            neg = [x for x in sm3 if x.startswith(f"v_sub_f32 v{NEGM(3)}") or (", 0, v" in x and x.startswith("v_sub"))]
            p += [W(("q", 3))] + q_frags(3) + [LG(("qf", 3))] + qk0(3) + ["s_nop 7"] + sm3[:k3] + neg
            rest3 = [x for x in sm3[k3:] if x not in neg]
        else:
            for qb in range(4):
                if qb == 3:
                    g0 = []
                    for d0 in range(0, 12, 2):
                        g0.append(Grp([(V_RD, (d0 + e) * 1024) for e in range(2)], [(e, ar(O(q, d0 + e), 4), vr(P(0, q), 4), "0") for q in range(3) for e in range(2)]))
                    p += [rd_op(i, j, g0[i]) for i in range(2) for j in range(2)] + [LG(("fr", 0), ("fr", 1))]
                    p += gen_seg("S0", g0, [], tasks=[("ldn", "ka", 0, 16), ("ldn", "kb", 17, 35)][:OPT["k1s"]], vmgap=2)
                if qb == 0 and OPT["q3b"]: p += [LG("kf")] + tag_use()
                else: p += [W(("q", qb))] + q_frags(qb) + ([LG("tg")] + tag_use() if qb == 0 else []) + (smem_flags() if qb == OPT["pq"] else []) + [LG(("qf", qb))]
                if qb < 2: p += with_nop(q_dma([x for x in R(18 + 3 * qb, 21 + 3 * qb) if x >= 18 + OPT["q3b"]]))
                p += qk0(qb) + (pollchk + hand if qb == OPT["pq"] else ["s_nop 7"]) + sm_one(0, qb)
        sp = softmax_part
        g1 = qk_tile(1, 1, [(q, q) for q in range(4)])
        gi1 = rebase(qk_full(2), V_RDK, A1 - A0)
        gi2 = [Grp([(V_RD, w * 12288 + db * 1024) for w in range(2)],
                   [x for q in range(3, NPV0 - 1, -1) for x in ((0, ar(O(q, db), 4), vr(P(0, q), 4), "0"), (1, ar(O(q, db), 4), vr(P(1, q), 4), ar(O(q, db), 4)))] +
                   [(1, ar(O(q, db), 4), vr(P(1, q), 4), ar(O(q, db), 4)) for q in range(NPV0)]) for db in range(12)]
        L2_ = len(gi2[0].mf)
        gi3 = rebase(qk_full(4), V_RDK, A2 - A1)
        gi4 = rebase(pv_seq(2), [V_RD], B1 - B0)
        p += istamp("pre-dk1", True) + [W(("dk", 1)), "s_barrier"] + [rd_op(i, j, g1[i]) for i in range(2) for j in range(2)] + [LG(("fr", 0), ("fr", 1))]
        pa = [f"v_bfe_u32 v{V_T4}, v{V_DMA}, 4, 6", f"v_lshlrev_b32 v{V_T4}, 2, v{V_T4}"] + [f"v_xor_b32 v{V_T4+j}, {16*j}, v{V_KST}" for j in (1, 2, 3)]
        p += gen_seg("S1", g1, gi1[:2], [(rest3 + (pa if OPT["pa"] else []), 0, 40)], [(31, [("dk", 3)])], [("ldn", "ka", 0, 14), ("ldn", "kb", 15, 30)][OPT["k1s"]:] +
                     ([("cv", "ka", 0, 99, OPT["fb"], 47)] if OPT["k1s"] and OPT["fb"] < 47 else []), [K_(4, 5) + (32, 46)], vmgap=2)
        p += gen_seg("S5", gi1, gi2[:2], [(sp(1, 0) + sp(1, 1) + [("dl", 54), ("nb", 47)] + sp(2, 0), 2, 95)], [(GBAR, [("dv", 1)])],
                     ([("cv", "kb", 0, 99, OPT["fa"], 95), ("ldn", "va", 20, 40)] if (OPT["k1s"] and OPT["fb"] < 47) else
                      [("cv", "ka", 0, 99, OPT["fa"], 60), ("cv", "kb", 0, 99, 61, 95), ("ldn", "va", 20, 40, "raw"), ("ldn", "va", 62, 76, "sc")]), [V_(2, 3) + (0, 18)])
        p += gen_seg("i2", gi2, gi3[:2], [(sp(2, 1) + sp(3, 0), 0, 12 * L2_ - 1)], [(10 * L2_ - 1, [("dk", 5)])],
                     [("kst", j, 2 * L2_ * j + 1) for j in range(4)] + [("ld", "vb", 6 * L2_ + 4, 12 * L2_ - 1)], [], vmgap=2)
        p += gen_seg("i3", gi3, gi4[:2], [(sp(3, 1) + [("dl", 57), ("nb", 47)] + sp(4, 0), 0, 95)], [(15, []), (GBAR, [("dv", 3)])],
                     [("post", "kst", 0), ("cv", "va", 0, 99, 0, 95)], [K_(6, 7) + V_(4, 5) + (18, 90)])
        p += [f"s_mov_b32 s{S_CNT}, {7 - OPT['lastp']}"]
        p += gen_seg("i4", gi4, seg_groups(5)[:2], [(sp(4, 1) + sp(5, 0), 0, 94)], [(GBAR, [("dk", 7)])],
                     [("ld", "ka", 0, 30), ("cv", "vb", 0, 99, 20, 94), ("step", "q", 30, 70), ("pollld", OPT["pl4"], OPT["pl4"] + 8)], [V_(6, 7) + (32, 74)],
                     endops=["s_nop 0", "s_branch L_join"])
    elif OPT["split"]:
        ps2 = len(POLLSITES); POLLSITES.append(ps2)
        pollchk2 = ["s_waitcnt lgkmcnt(0)"] + smem_reduce() + [f"s_cmp_ge_u32 s{S_PT}, 16", f"s_cbranch_scc1 L_pollslow{ps2}", f"L_pollok{ps2}:",
              f"s_add_u32 s{S_NEED}, s{S_NEED}, 1"] + istamp("pollV", True)
        p += [W(("q", 0))] + q_frags(0) + [LG("tg")] + tag_use() + [LG(("qf", 0))] + smem_flags() + qk0(0) + pollchk
        p += with_nop(dma_tile("k", 1, True)) + k_adv() + v_adv()
        p += [W("vst"), "s_barrier"] + flag_post() + istamp("postV", True)
        p += with_nop(dma_tile("k", 2, True) + dma_tile("k", 3, True))
        p += [W(("q", 1))] + q_frags(1) + with_nop(q_dma(R(12, 15))) + [LG(("qf", 1))] + qk0(1) + ["s_nop 7"]
        g0 = pv_unchained(0, True)[:6]
        p += [rd_op(i, j, g0[i]) for i in range(2) for j in range(2)] + sprinkle(sm00, q_dma(R(15, 18 + g3n))) + smem_flags() + [LG(("fr", 0), ("fr", 1))]
        p += gen_seg("S0", g0, [], tasks=[("q", R(18 + g3n, 24), 0, 22)] if g3n < 6 else [], vmgap=2) + pollchk2
        p += with_nop(dma_tile("v", 1, True))
        g3n = 6
    elif OPT["own1"] == 2:
        p += [W(("q", 0))] + q_frags(0) + [LG("tg")] + tag_use() + with_nop(q_dma(qrest[:3])) + [LG(("qf", 0))] + qk0(0)
        p += [W(("q", 1))] + q_frags(1) + smem_flags() + with_nop(q_dma(qrest[3:])) + [LG(("qf", 1))] + qk0(1) + pollchk
        g0 = pv_unchained(0, True)[:6]
        p += [rd_op(i, j, g0[i]) for i in range(2) for j in range(2)]
        p += sprinkle(sm00, dma_tile("k", 1, True) + dma_tile("k", 2, True) + dma_tile("k", 3, True) + dma_tile("v", 1, True)) + k_adv() + v_adv() + [LG(("fr", 0), ("fr", 1))]
        p += gen_seg("S0", g0, [], tasks=[("q", R(18 + g3n, 24), 0, 22)] if g3n < 6 else [], vmgap=2)
        g3n = 6
    elif OPT["own1"]:
        pre0 = [x for x in qrest[:3] if x < 18]; post0 = [x for x in qrest[:3] if x >= 18]
        p += [W(("q", 0))] + q_frags(0) + [LG("tg")] + tag_use() + with_nop(q_dma(pre0)) + [LG(("qf", 0))] + with_nop(q_dma(post0)) + qk0(0)
        if OPT["q0f"]: p += ["s_nop 7"] + sm_one(0, 0); sm00 = sm_one(0, 1)
        p += [W(("q", 1))] + q_frags(1) + with_nop(q_dma(qrest[3:6])) + [LG(("qf", 1))] + qk0(1) + ["s_nop 7"]
        g0 = pv_unchained(0, True)[:6]
        p += [rd_op(i, j, g0[i]) for i in range(2) for j in range(2)] + sprinkle(sm00, q_dma(qrest[6:])) + smem_flags() + [LG(("fr", 0), ("fr", 1))]
        p += gen_seg("S0", g0, []) + pollchk
        p += with_nop(dma_tile("k", 1, True) + dma_tile("k", 2, True) + dma_tile("k", 3, True) + dma_tile("v", 1, True)) + k_adv() + v_adv()
        if OPT["qf"]: p += with_nop(q_dma(R(18 + g3n, 24))); g3n = 6
    else:
        p += [W(("q", 0))] + q_frags(0) + [LG("tg")] + tag_use() + [W(("q", 1))] + q_frags(1) + smem_flags()
        p += [LG(("qf", 0))] + with_nop(q_dma(qrest)) + pollchk
        p += with_nop(dma_tile("k", 1, True)) + k_adv() + v_adv()
        p += sprinkle(qk0(0) + qk0(1), dma_tile("k", 2, True)) + ["s_nop 7"]
        p += sprinkle(sm00, dma_tile("k", 3, True) + dma_tile("v", 1, True))
    if not OPT["fs"]:
        sp = softmax_part
        g1 = qk_half(0, ws=(1,))
        g2 = rebase(qk_half(1), V_RDK, A1 - A0)
        g3 = pv_unchained(0, True)[6 if OPT["own1"] else 0:]
        g4 = rebase(pv_unchained(1), [V_RD], B1 - B0)
        g5 = rebase(qk_half(2, True), V_RDK, A0 - A1) + rebase(qk_half(3), V_RDK, A1 - A0)
        gi3 = rebase(qk_full(4), V_RDK, A2 - A1)
        gi4 = rebase(pv_seq(2, True), [V_RD], B0 - B1) + rebase(pv_seq(3), [V_RD], B1 - B0)
        p += istamp("pre-dk1", True) + [W(("dk", 1)), "s_barrier"] + [rd_op(i, j, g1[i]) for i in range(2) for j in range(2)]
        p += [LG(("fr", 0), ("fr", 1))]
        p += gen_seg("S1", g1, g2[:2], [], [(15, [("dk", 3)])], [], [V_(2, 3) + (0, 21)], vmgap=2)
        p += gen_seg("S2", g2, g3[:2], [(sp(0, 1), 3, 47)], [(39, [("dv", 3)])] if OPT["own1"] else [], ([("q", R(18 + g3n, 24), 0, 24)] if g3n < 6 else []) + [("ldn", "ka", 25 if g3n < 6 else 0, 47)])
        if OPT["own1"]: p += gen_seg("S3", g3, g4[:2], [(sp(1, 0), 0, 23)], [], [("ldn", "kb", 0, 23)])
        else: p += gen_seg("S3", g3, g4[:2], [(sp(1, 0), 0, 47)], [(15, [("dv", 3)])], [("ldn", "kb", 0, 22), ("ldn", "va", 23, 46, "raw")])
        p += gen_seg("S4", g4, g5[:2], [(sp(1, 1), 0, 21)], [], [("ldn", "va", 0, 30, "raw")] if OPT["own1"] else [], extra=[Stream([W(("q", 2))] + q_frags(2) + [W(("q", 3))] + q_frags(3), 16, 46)])
        p += istamp("pre-S5", True) + ["s_waitcnt lgkmcnt(0)", "s_barrier"]
        p += gen_seg("S5", g5, gi3[:2], [(rowmax2(2, (2, 3), (V_T, V_T + 2)), 27, 45), (addneg(2, 0) + addneg(2, 1) + sp(2, 0) + addneg(2, 2) + addneg(2, 3) + sp(2, 1), 46, 95)],
                     [(GBAR + 8, [("dk", 5)])], [("cv", "ka", 0, 99, 0, 34), ("cv", "kb", 0, 99, 35, 72), ("kst", 0, 73), ("kst", 1, 77), ("kst", 2, 89), ("kst", 3, 93),
                     ("ldn", "va", 36, 60, "sc")], [K_(4, 5) + (1, 24)])
        p += gen_seg("i3", gi3, gi4[:2], [(sp(3, 0) + sp(3, 1), 0, 54), (sp(4, 0), 55, 95)], [(OPT["pb"], []), (GBAR, [])],
                     [("ld", "vb", 0, 22), ("post", "kst", 0), ("cv", "va", 0, 99, 10, 95)], [K_(6, 7) + V_(4, 5) + (24, 90)])
        p += [f"s_mov_b32 s{S_CNT}, {7 - OPT['lastp']}", f"s_mul_i32 s{S_RC}, s{S_QB}, {STAGE}", f"s_mov_b32 s{S_RD}, 12288"]
        p += gen_seg("i4", gi4, seg_groups(5)[:2], [(sp(4, 1) + sp(5, 0), 0, 94)], [(47, []), (GBAR + 8, [("dk", 7)])],
                     [("ld", "ka", 0, 30), ("cv", "vb", 0, 99, 30, 94), ("step", "q", 30, 70), ("pollld", OPT["pl4"], OPT["pl4"] + 8)], [V_(6, 7) + (52, 84)],
                     endops=["s_nop 0", "s_branch L_join"])
    p += [".p2align 6"] + ["s_nop 0"] * OPT.get("pad", 0) + ["L_loop:"]
    pro_ = p
    first57, tail = gen_tail()
    bodyA = []
    for k in (1, 2, 3, 4, 5, 6, 7, 0):
        if k == 5: bodyA.append("L_join:"); jpos = len(bodyA)
        eo = [f"s_sub_u32 s{S_CNT}, s{S_CNT}, 1", f"s_cmp_lg_u32 s{S_CNT}, 0", "s_cbranch_scc1 L_loop"] if k == 0 else ()
        t, d = steady(k)
        if OPT["ab"] & 8: d = []
        if OPT["ab"] & 16: t = [x for x in t if x[0] not in ("cv", "kst", "vst", "ld")]
        if OPT["ab"] & 1024: t = [x for x in t if not (x[0] in ("cv", "ld") and x[1] in ("va", "vb")) and x[0] != "vst"]
        if OPT["ab"] & 128: t = [x for x in t if x[0] not in ("cv",)]
        if OPT["ab"] & 256: t = [x for x in t if x[0] not in ("kst", "vst")]
        if OPT["ab"] & 512: t = [x for x in t if x[0] not in ("ld",)]
        bars = None
        if OPT["nb6"]:
            dk = lambda *x: [("dk", i) for i in x]; dv = lambda *x: [("dv", i) for i in x]
            bars = {0: [], 4: [], 7: [(GBAR, dv(6, 7) + dk(2, 3))], 3: [(GBAR, dv(2, 3) + dk(6, 7))]}.get(k)
        bodyA += gen_iter(16 + k, t, d, name=f"k{k}", endops=eo, bars=bars)
    lastt = []
    if OPT["lastp"]:
        for k in (1, 2, 3, 4, 5, 6, 7, 0):
            t, d = steady(k)
            t = [x for x in t if not ((x[0] in ("ld", "cv") and x[1] == "ka") or (x[0] in ("ld", "cv") and x[1] == "kb" and k != 1) or x[:2] == ("ld", "va") or x[0] == "pf")]
            dk = lambda *x: [("dk", i) for i in x]; dv = lambda *x: [("dv", i) for i in x]
            bars = {0: [], 4: [], 7: [(GBAR, dv(6, 7) + dk(2, 3))], 3: [(GBAR, dv(2, 3) + dk(6, 7))]}.get(k) if OPT["nb6"] else None
            if k == 0 and OPT["z0"]: bars = [(15, dk(5))]; d = [V_(0, 1) + K_(6, 7) + (16, 90)]
            lastt += gen_iter(16 + k, t, d, name=f"z{k}", bars=bars)
    tail = lastt + tail
    assert OPT["qo"] or [g.rd for g in first57] == [g.rd for g in seg_groups(17)[:2]]
    tailc = tail + ["L_fin:"]
    resolve(pro_ + bodyA[jpos:] + bodyA + bodyA + tailc)
    if OPT["cap"]: pro_ = pace(pro_, OPT["cap"] / 4)
    P_ = Prog()
    P_.extend(fin(pro_))
    a0 = len(P_.ins); P_.extend(fin(bodyA)); a1 = len(P_.ins)
    P_.extend(fin(tailc))
    p = P_
    if OPT["stamp"]:
        p("s_waitcnt vmcnt(0) lgkmcnt(0)")
        p.extend(istamp("end"))
        p("s_waitcnt lgkmcnt(0)")
        p.extend(istamp("end2"))
        p(f"v_writelane_b32 v{V_STAMP}, s{S_TAG+1}, 63")
        p(f"v_writelane_b32 v{V_STAMP}, s{S_BUDGET}, 62"); p(f"v_writelane_b32 v{V_STAMP}, s{S_NEED}, 61"); p(f"v_writelane_b32 v{V_STAMP}, s101, 60"); p(f"v_writelane_b32 v{V_STAMP}, s100, 59")
        p("s_add_u32 s8, s18, 0xfa00000"); p("s_addc_u32 s9, s19, 0"); p("s_mov_b32 s10, 1048576"); p("s_mov_b32 s11, 0x20000")
        p("s_lshl_b32 s24, s2, 2"); p(f"s_add_u32 s24, s24, s{S_WAVE}"); p("s_lshl_b32 s24, s24, 8")
        p(f"v_bfe_u32 v32, v{V_DMA}, 4, 6"); p("v_lshlrev_b32 v32, 2, v32")
        p(f"buffer_store_dword v{V_STAMP}, v32, s[8:11], s24 offen")
        if OPT["stamp"] == 8: STAMPS.sort(key=lambda n: 0)
        open(sys.argv[1] + ".stamps", "w").write("\n".join(order_stamps()))
    if OPT["calx"]:
        p("s_waitcnt vmcnt(0)")
        p("L_cal:")
        p("s_memrealtime s[40:41]")
        p("s_waitcnt lgkmcnt(0)")
        p("s_sub_u32 s40, s40, s100")
        p("s_cmp_lt_u32 s40, 10000")
        p("s_cbranch_scc1 L_cal")
    p("L_done:")
    p("s_endpgm")
    main_end0 = len(p.ins)
    for ps in POLLSITES: p.extend(poll_slow(ps))
    p.extend(tag_slow())
    main_end = len(p.ins)
    p.extend(gen_slow())
    slow_end = len(p.ins)
    ji = [i for i, x in enumerate(p.ins) if x.text == "L_join:"][0]
    lin = p.ins[:a0] + p.ins[ji:a1] + p.ins[a0:main_end0]
    sl = [i for i, x in enumerate(p.ins) if x.text == "L_slowloop:"][0]
    bi = [i for i, x in enumerate(p.ins) if x.text == "s_cbranch_scc1 L_slowloop"][0]
    probs = check_hazards(lin, "main") + check_hazards(p.ins[main_end:bi+1] + p.ins[sl:slow_end], "slow") + check_hazards(p.ins[main_end0:main_end], "aux")
    for x in probs: print(x, file=sys.stderr)
    return p

def kd(name, vgpr, sgpr, accum):
    return f""".amdhsa_kernel {name}
  .amdhsa_next_free_vgpr {vgpr}
  .amdhsa_next_free_sgpr {sgpr}
  .amdhsa_accum_offset {accum}
  .amdhsa_group_segment_fixed_size 0
  .amdhsa_kernarg_size 80
  .amdhsa_user_sgpr_count 2
  .amdhsa_user_sgpr_kernarg_segment_ptr 1
  .amdhsa_system_sgpr_workgroup_id_x 1
.end_amdhsa_kernel
"""
def build_text(body):
    o = HEADER + f"; @launch grid=(256,1,1) block=(256,1,1) lds={LDS_BYTES}\n" + '.amdgcn_target "amdgcn-amd-amdhsa--gfx950"\n.text\n'
    o += f".globl {NAME}_kernel\n.p2align 8\n.type {NAME}_kernel,@function\n" + body
    return o + '.section .rodata,"a"\n.p2align 6\n' + kd(NAME + "_kernel", 512, 102, 256)
def addresses(lines):
    import subprocess, types, ctypes
    _o = ctypes.CDLL
    class F:
        def __getattr__(s, n):
            x = types.SimpleNamespace(); object.__setattr__(s, n, x); return x
    ctypes.CDLL = lambda n, *a, **k: (F() if "amdhip" in n else _o(n, *a, **k))
    sys.path.insert(0, "cdna_kernels")
    import cdna_launch as cl
    t = []
    for i, l in enumerate(lines):
        if l.strip().startswith("v_"): t.append(f"L_adr{i}:")
        t.append(l)
    open("_a.s", "w").write(cl.with_harness_metadata(build_text("\n".join(t) + "\n"), NAME + "_kernel", 10, launch_lists=True))
    subprocess.run([cl.ROCM_CLANG, "-x", "assembler", "-target", "amdgcn-amd-amdhsa", "-mcpu=gfx950", "_a.s", "-o", "_a.co"], check=True)
    r = subprocess.run(["llvm-objdump", "-t", "_a.co"], capture_output=True, text=True).stdout
    return {int(x.split()[-1][5:]): int(x.split()[0], 16) for x in r.split("\n") if "L_adr" in x}
def add_stubs(text):
    base = text.rstrip("\n").split("\n")
    lo = base.index("L_iwret:"); hi = base.index("L_fin:"); l0 = base.index("L_loop:")
    l1 = max(i for i, l in enumerate(base) if l.strip() == "s_cbranch_scc1 L_loop")
    pos = []
    for it in range(6):
        lines = []; idx = []
        chains = [[k for k in range(len(pos)) if k % 4 == w] for w in range(4)]
        nxt = {}
        for w in range(4):
            for a, b in zip(chains[w], chains[w][1:] + [None]): nxt[a] = f"L_pg{b}" if b is not None else "L_iwret"
        for i, l in enumerate(base):
            idx.append(len(lines)); lines.append(l)
            if i in pos:
                k = pos.index(i)
                lines += ([f"L_iw{k}:"] if k < 4 else []) + [f"L_pg{k}:", f"    s_cbranch_execz {nxt[k]}"]
        if len(pos) < 4: lines += [x for w in range(len(pos), 4) for x in (f"L_iw{w}:", "    s_branch L_iwret")]
        ad = addresses(lines); inv = {j: i for i, j in enumerate(idx)}
        first = min(i for i, l in enumerate(base) if l.strip().startswith("v_mfma") and "a[0:3]" in l)
        mf = sorted((a, inv[j]) for j, a in ad.items() if lo < inv[j] < hi and (inv[j] < first or base[inv[j]].strip().startswith("v_mfma")))
        new = [min(i for a, i in mf if i > base.index("L_join:"))]
        pg = mf[0][0] >> 12
        for a, i in mf:
            if (a + 8) >> 12 > pg:
                pg = (a + 8) >> 12
                if OPT["iw"] == 2 or not (l0 < i < l1): new.append(i)
        new = sorted(set(new))
        if new == pos: break
        pos = new
    print("page stubs:", len(pos), file=sys.stderr)
    return "\n".join(lines) + "\n"
out = HEADER
out += f"; @launch grid=(256,1,1) block=(256,1,1) lds={LDS_BYTES}\n"
out += '.amdgcn_target "amdgcn-amd-amdhsa--gfx950"\n.text\n'
body_ = gen_main().text()
if OPT["iw"]: body_ = add_stubs(body_)
out += f".globl {NAME}_kernel\n.p2align 8\n.type {NAME}_kernel,@function\n" + body_
out += '.section .rodata,"a"\n.p2align 6\n' + kd(NAME + "_kernel", 512, 102, 256)
open(sys.argv[1], "w").write(out)
```

```python
import sys, math
from asmlib import *

NAME = "standalone__kv_cache_quant_int4_int2_kv_with_per_channel_or_per_token_scales__prompt"
OPT = dict(stamp=0, vmgap=4, sb=6, sa=6, ahead=8, thr=64, pf2=0, calx="", qa=6, plv=2, plk=10, ckv=1, ckk=1, tden=24, touch=0, w0poll=0, cap=48, qb=6, q3e=1, ksc=0, few=1, qc=15, pb=39, pl4=40, l2=3, k1e=0, greedy=0, g3n=3, pre=0, own1=1, ab=0, pk=0, split=0, prent=1, bal=1, flex=1, w2=0, dense="S61,S5,S2,S3,S4", dx=4, dvg=2, f3=1, pvs=1, qo=0, po=0, x2c=12, sst=1, q0f=1, nb6=1, tv=1, omv=0, ldc=8, rs=0, scnt=0, iw=2, pfnt=0, v64=1, lastp=1, lmf=1, fs=1, pq=2, fa=20, k1s=0, fb=99, pa=1, twop=0, llag=24, w5=40, z0=1, q3b=0, fp=1, fpa=14, eb=0, bm=1, snk=3, om0=0, lva=70, qe=12, qf=0, ed=200, ed1=250, cut="22,46,6,42,10,30,10")
for a in sys.argv[2:]:
    k, v = a.split("="); OPT[k] = int(v) if v.lstrip("-").isdigit() else v
NS = 6
STAGE = 24576
HEADBYTES = 64 * STAGE
RING = NS * STAGE
LDS_BYTES = RING + 128
A0, B0, A1, B1, A2, B2 = [i * STAGE for i in range(6)]
CSCALE = (192.0 ** -0.5) * math.log2(math.e)
HEADER = open("cdna_kernels/" + NAME + ".s.ref").read().split("; Override launch geometry")[0]
MF = "v_mfma_f32_16x16x32_bf16"
V64 = OPT["v64"]; NVE = 3 if V64 else 4
NCH = 2 if V64 else 3
def chunk_dbs(n): return list(range(6 * n, 6 * n + 6)) if V64 else [3 * e + n for e in range(4)]

V_FVAL = 0; V_RD = 1; V_RDK = [2, 3]; V_DMA = 4; V_L = [5, 6, 7, 8]
V_KLD = 9; V_KSC = 10; V_KST = 11; V_VLD = 12; V_FLAG = 13; V_RD2 = 59; V_RD3 = 60
V_T = 16; NTP = 2
V_VST = 15; V_STAMP = 14; V_T4 = 20
V_FR = 24; NFS = 6
V_CT = 48; V_VO = 52; V_RS = [56, 60]; BX = 224; BY = 240; BZ = 144
V_POLL = V_VO; V_KA = V_VO + 2
UNIT = [64, 80, 160, 176]; HI = [96, 112]
VQD = 136; VQR = [22, 23, 142, 143]
def Sq(t, sl, tb): return (UNIT[t % 4] if tb == 0 else HI[t % 2]) + 4 * sl
def P(t, sl): return UNIT[t % 4] + 4 * sl
def NEGM(qb): return 128 + 4 * qb
def O(qb, db): return (qb * 12 + db) * 4
def Qf(qb, s, half=None):
    i = qb * 6 + s
    base, f = (192 + 4 * i, ar) if i < 16 else (192 + 4 * (i - 16), vr)
    return f(base, 4) if half is None else f(base + 2 * half, 2)
def FR(f): return vr(V_FR + 4 * (f % NFS), 4)

S_RDELTA = 3; S_WS = 4; S_Q = 8; S_OUT = 12; S_FLG = 20
S_WAVE = 25; S_DMK = 26; S_GOFF = 27; S_RK = 28; S_TMP = 29; S_RV = 30; S_CNT = 31; S_GOFFK = 32
S_PK0 = 33; S_PK1 = 34; S_PV0 = 35; S_PKS = 36; S_PVS = 37; S_CS = 38; S_RET = 39; S_PV1 = 16; S_PV2 = 17
S_QL = 40; S_QS = 41; S_TAG = 42; S_FOFF = 44; S_XCC = 45; S_OWN = 46; S_RC = 46; S_RD = 47
S_PT = 48; S_DMV = 56; S_TK = 57; S_TV = 58; S_TP = 59
S_QK = 64; S_QV = 68; S_KS = 72; S_KZ = 76; S_VS = 80; S_VZ = 84; S_DBG = 88
S_NEED = 92; S_HOFF = 93; S_HEAD = 94; S_QB = 95; S_BUDGET = 96; S_MASK = 97
WSOFF = OPT.get("wsoff", 0) << 20
FLAG_OFF = WSOFF + (49 << 20)
SC1 = {0: " sc1", 1: "", 2: " nt", 3: " sc0", 4: " sc1 nt", 5: " sc0 sc1"}[OPT.get("dmaf", 0)]; NTKV = " nt"; NTQ = " nt"; STF = " sc1" if not OPT.get("stp") else ""; OF = {0: " sc0 sc1", 1: " sc1", 2: " sc1 nt", 3: " sc0 sc1 nt"}[OPT.get("of", 0)]

STAMPS = []
def istamp(name, force=False):
    if OPT["calx"] == name: return ["s_memrealtime s[100:101]"]
    if OPT["stamp"] not in (6, 8, 9): return []
    if OPT["stamp"] == 8 and name.startswith(("k", "z")) and not force: return []
    if OPT["few"] and force and name not in ("karg", "k0b", "vst", "tag", "post", "poll", "postV", "pollV", "pre-dk1"): return []
    if OPT["stamp"] != 8 and force: return []
    STAMPS.append(name)
    return ["s_waitcnt lgkmcnt(0)"] * (1 if force else 0) + [f"v_mov_b32_dpp v{V_STAMP}, v{V_STAMP} wave_shr:1 row_mask:0xf bank_mask:0xf", f"v_writelane_b32 v{V_STAMP}, s98, 0",
            ("s_memtime" if OPT["stamp"] == 6 else "s_memrealtime") + " s[98:99]"]

def order_stamps():
    l = list(STAMPS); out = []
    if "S62" in l:
        l.remove("S61"); l.insert(l.index("S62"), "S61")
    for n in l:
        if "." in n: continue
        out.append(n); out += [m for m in l if m.startswith(n + ".")]
    return out
class W:
    def __init__(self, *tags): self.tags = tags
class VM:
    def __init__(self, tag, text): self.tag = tag; self.text = text
class LG:
    def __init__(self, *tags): self.tags = tags
class DS:
    def __init__(self, tag, text): self.tag = tag; self.text = text

def mode_of(t):
    if OPT["fs"] and t < 4: return "f"
    return {0: "a", 1: "a", 2: "b", 3: "b", 58: "a", 59: "a", 60: "a", 61: "b", 62: "b", 63: "b"}.get(t, "f")
def slot_q(t, sl):
    m = mode_of(t)
    return sl if m == "f" else (sl & 1) + (0 if m == "a" else 2)
ONES = 20
def softmax_part(t, half, lm=False):
    if lm:
        l = [x for x in softmax_part(t, half) if not x.startswith("v_add")]
        out = []
        for x in l:
            out.append(x)
        k = [i for i, x in enumerate(out) if x.startswith("v_cvt_pk")][3]
        mm = lambda sl: f"{MF} v[{RL[slot_q(t, sl)]}:{RL[slot_q(t, sl)]+3}], v[{P(t, sl)}:{P(t, sl)+3}], v[{ONES}:{ONES+3}], " + ("0" if (t, half) == (61, 1) else f"v[{RL[slot_q(t, sl)]}:{RL[slot_q(t, sl)]+3}]")
        return out[:k + 3] + [mm(2 * half)] + out[k + 3:] + ["s_nop 1", mm(2 * half + 1)]
    flat = []; prev = None
    for gp in range(8):
        sl = 2 * half + gp // 4; pi = gp % 4; l = V_L[slot_q(t, sl)]
        t0 = V_T + 2 * (gp % NTP); t1 = t0 + 1
        src = Sq(t, sl, pi >> 1) + 2 * (pi & 1)
        E = [f"v_exp_f32 v{t0}, v{src}", f"v_exp_f32 v{t1}, v{src+1}"]
        A = [f"v_add_f32 v{l}, v{l}, v{t0}", f"v_add_f32 v{l}, v{l}, v{t1}"]
        C = [f"v_cvt_pk_bf16_f32 v{P(t,sl)+pi}, v{t0}, v{t1}"]
        if 16 <= t < 26:
            if OPT["ab"] & 1: A = []
            if OPT["ab"] & 2: E = [x.replace("v_exp_f32", "v_mov_b32") for x in E]
            if OPT["ab"] & 32: C = []
            if OPT["ab"] & 64: E = []; A = []; C = []
        flat += E if prev is None else E[:1] + prev[0] + E[1:] + prev[1]
        prev = (A, C)
    return flat + prev[0] + prev[1]

class Grp:
    def __init__(self, rd, mf): self.rd = rd; self.mf = mf; self.reb = []
def qk_tile(t, w, slots, czero=False):
    gs = []
    if OPT["qo"] == 1 and len(slots) == 4:
        for s_ in range(6):
            rd = [(V_RDK[s_ & 1], w * 12288 + tb * 6144 + (s_ >> 1) * 128) for tb in range(2)]
            mf = []
            for sl, qb in slots:
                for tb in range(2):
                    d = vr(Sq(t, sl, tb), 4)
                    mf.append((tb, d, Qf(qb, s_), (("0" if czero else vr(NEGM(qb), 4)) if s_ == 0 else d)))
            gs.append(Grp(rd, mf))
        return gs
    for gi in range(6):
        s0 = 2 * (gi >> 1); tb = gi & 1
        rd = [(V_RDK[j], w * 12288 + tb * 6144 + (s0 >> 1) * 128) for j in range(2)]
        mf = []
        for sl, qb in slots:
            d = vr(Sq(t, sl, tb), 4)
            x = qb & 1 if OPT.get("snk", 0) & 2 else 0
            mf += [(x, d, Qf(qb, s0 + x), (("0" if czero else vr(NEGM(qb), 4)) if s0 == 0 else d)), (1 - x, d, Qf(qb, s0 + 1 - x), d)]
        gs.append(Grp(rd, mf))
    return gs
def qk_full(t): return [g for w in range(2) for g in qk_tile(t + w, w, [(q, q) for q in range(4)])]
def qk_half(t, czero=False, ws=(0, 1)):
    return [g for w in ws for g in qk_tile(t, w, [(2 * w + j, slot_q(t, j)) for j in range(2)], czero)]
def OV(qb, db): return (BY if qb == 2 else BZ) + 4 * (db // 3)
OM = [False]
def O0(db): return (BX + 4 * db) if db < 8 else (BZ + 4 * (db - 8))
def pv_grp(t, db, first=False, va=V_RD):
    m = mode_of(t); mf = []
    for qb in (range(4) if m == "f" else [slot_q(t, 0), slot_q(t, 1)]):
        d = ar(O(qb, db), 4)
        if OPT["omv"] and t >= 61 and db % 3 == 2: d = " " + vr(OV(qb, db), 4)
        if OPT["om0"] and qb == 0 and (t >= 56 or OM[0]): d = " " + vr(O0(db), 4)
        for w0 in range(2):
            w = w0 ^ (qb & 1 if OPT.get("snk", 0) & 1 else 0)
            b = P(t + w, qb) if m == "f" else P(t, 2 * w + (qb & 1))
            mf.append((w, d, vr(b, 4), "0" if (first and w0 == 0) else d))
    return Grp([(va, w * 12288 + db * 1024) for w in range(2)], mf)
def pv_seq(t, first=False):
    if OPT["po"] == 1 and mode_of(t) == "f":
        gs = []
        for d0 in range(0, 12, 2):
            for w in range(2):
                mf = [(e, ar(O(qb, d0 + e), 4), vr(P(t + w, qb), 4), ar(O(qb, d0 + e), 4)) for qb in range(4) for e in range(2)]
                gs.append(Grp([(V_RD, w * 12288 + (d0 + e) * 1024) for e in range(2)], mf))
        return gs
    if OPT["po"] == 2 and mode_of(t) == "f":
        gs = []
        for db in range(12):
            mf = [(w, ar(O(qb, db), 4), vr(P(t + w, qb), 4), ar(O(qb, db), 4)) for w in range(2) for qb in range(4)]
            gs.append(Grp([(V_RD, w * 12288 + db * 1024) for w in range(2)], mf))
        return gs
    return [pv_grp(t, db, first) for db in range(12)]
def pv_unchained(t, first=False):
    gs = []
    for w in range(2):
        for d0 in range(0, 12, 2):
            mf = []
            for j in range(2):
                qb = slot_q(t, j)
                for e in range(2):
                    d = ar(O(qb, d0 + e), 4)
                    mf.append((e, d, vr(P(t, 2 * w + j), 4), "0" if (first and w == 0) else d))
            gs.append(Grp([(V_RD, w * 12288 + (d0 + e) * 1024) for e in range(2)], mf))
    return gs
def rebase(gs, regs, delta):
    op = "v_add_u32" if delta >= 0 else "v_subrev_u32"
    gs[0].reb += [f"{op} v{r}, {abs(delta)}, v{r}" for r in regs]
    return gs
def rd_op(gi, j, g):
    f = 2 * gi + j
    return DS(("fr", f % NFS), f"ds_read_b128 {FR(f)}, v{g.rd[j][0]} offset:{g.rd[j][1]}")

def dma_tile(part, pos, peel=False):
    dm, go, tmp = (S_DMK, S_GOFFK, S_TK) if part == "k" else (S_DMV, S_GOFF, S_TV)
    l = [f"s_mov_b32 m0, s{dm}"]
    for j in range(3):
        l.append(VM(("d" + part, pos % 8), f"buffer_load_dwordx4 v{V_DMA}, s[{S_WS}:{S_WS+3}], s{go} offen offset:{j*1024}{SC1} lds"))
    if peel and pos < 7:
        l += [f"s_add_u32 s{go}, s{go}, {STAGE}", f"s_sub_u32 s{tmp}, s{go}, {8*STAGE}", f"s_min_u32 s{go}, s{go}, s{tmp}"]
    elif peel and pos == 7:
        l += [f"s_mov_b32 s{go}, {8*STAGE + (0 if part == 'k' else 12288)}"]
    else:
        l += [f"s_add_u32 s{go}, s{go}, {STAGE}"]
    if pos % 2 == 0: l += [f"s_add_u32 s{dm}, s{dm}, 12288"]
    else: l += [f"s_add_u32 s{dm}, s{dm}, {2*STAGE - 12288}", f"s_sub_u32 s{tmp}, s{dm}, {RING}", f"s_min_u32 s{dm}, s{dm}, s{tmp}"]
    return l
QOFF = [STAGE, 0, 2 * STAGE, STAGE]
def q_dma(lst):
    l = []
    if not lst: return l
    for i in lst:
        a, b = divmod(i, 6)
        l += [f"s_mov_b32 s{S_QS}, {a*6144}"] * (1 if (b == 0 or i == lst[0]) else 0)
        l += [f"s_add_u32 m0, s{S_QL}, {QOFF[a] + b*1024}",
              VM(("q", a), f"buffer_load_dwordx4 v{VQD+b}, s[{S_Q}:{S_Q+3}], s{S_QS} offen{NTQ} lds")]
    return l
def q_frags(qb):
    l = []
    for s in range(6):
        for h in range(2):
            sp = s + 6 * h
            l.append(DS(("qf", qb), f"ds_read_b64 {Qf(qb,s,h)}, v{VQR[sp&3]} offset:{QOFF[qb] + (sp>>2)*128}"))
    return l
def with_nop(l):
    out = []
    for i, x in enumerate(l):
        out.append(x)
        if isinstance(x, str) and " m0," in x and i + 1 < len(l) and isinstance(l[i + 1], VM): out.append("s_nop 0")
    return out
def rd_step(kind):
    cur, regs = (S_RK, V_RDK) if kind == "q" else (S_RV, [V_RD])
    return [f"s_add_u32 s{S_TMP}, s{cur}, {2*STAGE}", f"s_sub_u32 s{S_RDELTA}, s{S_TMP}, {RING}",
            f"s_min_u32 s{S_TMP}, s{S_TMP}, s{S_RDELTA}", f"s_sub_u32 s{S_RDELTA}, s{S_TMP}, s{cur}", f"s_mov_b32 s{cur}, s{S_TMP}"] + \
           [f"v_add_u32 v{r}, s{S_RDELTA}, v{r}" for r in regs]

def k_ld(h, buf, rs, tag, scal_first=True):
    sc = [VM(tag, f"buffer_load_dwordx2 v[{rs+2*i}:{rs+2*i+1}], v{V_KSC}, s[{srd_}:{srd_+3}], s{S_PKS} offen offset:{192*h}" + (" nt" if OPT["scnt"] else ""))
          for i, srd_ in enumerate((S_KS, S_KZ))]
    l = []
    for j in range(4):
        so = S_PK0 if j < 2 else S_PK1
        l.append(VM(tag, f"buffer_load_dwordx4 v[{buf+4*j}:{buf+4*j+3}], v{V_KLD}, s[{S_QK}:{S_QK+3}], s{so} offen offset:{(j&1)*1536+384*h}{NTKV}"))
    return sc + l if scal_first else l + sc
def v_ld(h, buf, rs, tag, scal_first=True):
    sc = [VM(tag, f"buffer_load_dwordx2 v[{rs+2*i}:{rs+2*i+1}], off, s[{srd_}:{srd_+3}], s{S_PVS} offset:{8*h}" + (" nt" if OPT["scnt"] else ""))
          for i, srd_ in enumerate((S_VS, S_VZ))]
    l = []
    for r in range(4):
        so = S_PV0 if h == 0 else S_PV1
        l.append(VM(tag, f"buffer_load_dwordx{NVE} v[{buf+4*r}:{buf+4*r+NVE-1}], v{V_VLD}, s[{S_QV}:{S_QV+3}], s{so} offen offset:{r*768}{NTKV}"))
    return sc + l if scal_first else l + sc
def k_cv(h, buf, rs, out):
    l = []
    s0, s1, z0, z1 = V_CT, V_CT + 1, V_CT + 2, V_CT + 3
    for i in range(2):
        l += [f"v_lshlrev_b32 v{s0}, 16, v{rs+i}", f"v_and_b32 v{s1}, s{S_MASK}, v{rs+i}",
              f"v_lshlrev_b32 v{z0}, 16, v{rs+2+i}", f"v_and_b32 v{z1}, s{S_MASK}, v{rs+2+i}",
              f"v_mul_f32 v{s0}, s{S_CS}, v{s0}", f"v_mul_f32 v{s1}, s{S_CS}, v{s1}",
              f"v_mul_f32_e64 v{z0}, -v{z0}, v{s0}", f"v_mul_f32_e64 v{z1}, -v{z1}, v{s1}"]
        if OPT.get("nz", 0) & 1: l[-2:] = [f"v_mov_b32 v{z0}, 0", f"v_mov_b32 v{z1}, 0"]
        for j in range(4):
            a = buf + 4 * j + 2 * i; b = a + 1
            l += [f"v_cvt_f32_i32 v{a}, v{a}", f"v_cvt_f32_i32 v{b}, v{b}",
                  f"v_fma_f32 v{a}, v{a}, v{s0}, v{z0}", f"v_fma_f32 v{b}, v{b}, v{s1}, v{z1}",
                  f"v_cvt_pk_bf16_f32 v{out+4*j+2*h+i}, v{a}, v{b}"]
    return l
def k_st(j, out, tag="kst", STF=STF, pre=False):
    va = V_KST; g = []
    if j and pre: va = V_T4 + j
    elif j:
        va = V_KA + (j & 1); g.append(f"v_xor_b32 v{va}, {16*j}, v{V_KST}")
    g.append(VM(tag, f"buffer_store_dwordx4 v[{out+4*j}:{out+4*j+3}], v{va}, s[{S_WS}:{S_WS+3}], s{S_PK0} offen offset:{j*768}{STF}"))
    return g
def v_cv(h, buf, rs, out):
    l = []
    s0, s1, z0, z1 = V_CT, V_CT + 1, V_CT + 2, V_CT + 3
    for i in range(2):
        l += [f"v_lshlrev_b32 v{s0}, 16, v{rs+i}", f"v_and_b32 v{s1}, s{S_MASK}, v{rs+i}",
              f"v_lshlrev_b32 v{z0}, 16, v{rs+2+i}", f"v_and_b32 v{z1}, s{S_MASK}, v{rs+2+i}",
              f"v_mul_f32_e64 v{z0}, -v{z0}, v{s0}", f"v_mul_f32_e64 v{z1}, -v{z1}, v{s1}"]
        if OPT.get("nz", 0) & 2: l[-2:] = [f"v_mov_b32 v{z0}, 0", f"v_mov_b32 v{z1}, 0"]
        for e in range(NVE):
            a = buf + 4 * (2 * i) + e; b = buf + 4 * (2 * i + 1) + e
            l += [f"v_cvt_f32_i32 v{a}, v{a}", f"v_cvt_f32_i32 v{b}, v{b}",
                  f"v_fma_f32 v{a}, v{a}, v{s0}, v{z0}", f"v_fma_f32 v{b}, v{b}, v{s1}, v{z1}"]
    for e, i in [(0, 0), (1, 0), (0, 1), (1, 1), (2, 0), (2, 1), (3, 0), (3, 1)][:2 * NVE]:
        l.append(f"v_cvt_pk_bf16_f32 v{out+4*e+2*h+i}, v{buf+8*i+e}, v{buf+8*i+4+e}")
    return l
def v_st(e, out, tag="vst", STF=STF):
    so = S_PV0 if (e < 2 or V64) else S_PV2
    return [VM(tag, f"buffer_store_dwordx4 v[{out+4*e}:{out+4*e+3}], v{V_VST}, s[{S_WS}:{S_WS+3}], s{so} offen offset:{e*1024 if V64 else (e&1)*3072}{STF}")]
def k_adv():
    return [f"s_add_u32 s{S_PK0}, s{S_PK0}, {8*STAGE}", f"s_add_u32 s{S_PK1}, s{S_PK1}, {8*STAGE}", f"s_add_u32 s{S_PKS}, s{S_PKS}, {4*384}"]
def v_adv():
    return [f"s_add_u32 s{r}, s{r}, {8*STAGE}" for r in (S_PV0, S_PV1, S_PV2)] + [f"s_add_u32 s{S_PVS}, s{S_PVS}, {8*64}"]
HT = {"ka": (k_ld, k_cv, 0, BX, V_RS[0], BX), "kb": (k_ld, k_cv, 1, BY, V_RS[1], BX),
      "va": (v_ld, v_cv, 0, BZ, V_RS[0], BZ), "vb": (v_ld, v_cv, 1, BY, V_RS[1], BZ),
      "wa": (v_ld, v_cv, 0, BX, V_RS[0], BX), "wb": (v_ld, v_cv, 1, BY, V_RS[1], BX)}
def flag_post(first=False):
    return [f"v_add_u32 v{V_FVAL}, 1, v{V_FVAL}"] + [
            VM("flag", f"buffer_store_dword v{V_FVAL}, v{V_FLAG}, s[{S_FLG}:{S_FLG+3}], 0 offen")] * (OPT["l2"] == 1 or (OPT["l2"] == 2 and first)) + [
            VM("flag", f"buffer_store_dword v{V_FVAL}, v{V_FLAG}, s[{S_FLG}:{S_FLG+3}], 0 offen offset:32 sc1")]
def poll_addr():
    return [f"v_bfe_u32 v{V_POLL+1}, v{V_DMA}, 4, 6", f"v_lshlrev_b32 v{V_POLL+1}, 2, v{V_POLL+1}"]
def poll_load():
    if OPT["pa"]: return [VM("poll", f"buffer_load_dword v{V_POLL}, v{V_T4}, s[{S_FLG}:{S_FLG+3}], s{S_FOFF} offen sc1")]
    return poll_addr() + [VM("poll", f"buffer_load_dword v{V_POLL}, v{V_POLL+1}, s[{S_FLG}:{S_FLG+3}], s{S_FOFF} offen sc1")]
def poll_test():
    return [f"v_subrev_u32 v{V_POLL}, s{S_NEED}, v{V_POLL}", f"v_cmp_lt_u32 vcc, 15, v{V_POLL}", "s_nop 0", f"s_and_b32 s{S_TP}, vcc_lo, 0xff"]
def smem_flags():
    return [f"s_buffer_load_dwordx8 s[{S_PT}:{S_PT+7}], s[{S_FLG}:{S_FLG+3}], s{S_FOFF} glc"]
def smem_reduce():
    return [f"s_sub_u32 s{S_PT+i}, s{S_PT+i}, s{S_NEED}" for i in range(8)] + [f"s_max_u32 s{S_PT}, s{S_PT}, s{S_PT+i}" for i in range(1, 8)]
def smem_test():
    return smem_flags() + ["s_waitcnt lgkmcnt(0)"] + smem_reduce() + [f"s_cmp_lt_u32 s{S_PT}, 16"]
def diag(site):
    if not OPT.get("diag"): return []
    return [f"s_lshl_b32 s{S_TP}, s2, 8", f"s_add_u32 s{S_TP}, s{S_TP}, {site << 4}", f"s_add_u32 s{S_TP}, s{S_TP}, s{S_WAVE}", f"s_lshl_b32 s{S_BUDGET}, s{S_NEED}, 16", f"s_add_u32 s{S_TP}, s{S_TP}, s{S_BUDGET}",
            f"v_mov_b32 v{V_POLL+1}, s{S_TP}", f"buffer_store_dword v{V_POLL+1}, off, s[{S_DBG}:{S_DBG+3}], 0 offset:{4 + 8 * site} sc1",
            f"buffer_store_dword v{V_POLL}, v{V_T4}, s[{S_DBG}:{S_DBG+3}], 0 offen offset:192 sc1"]
def poll_slow(site):
    l = [f"L_pollslow{site}:"] + ([f"s_add_u32 s{S_TAG+1}, s{S_TAG+1}, {1 << (6 * site)}"] if OPT["stamp"] else [])
    l += [f"s_mov_b32 s{S_TP}, {60 if site == 0 else 200}", f"L_pollsm{site}:"] + smem_test() + [f"s_cbranch_scc1 L_pollok{site}",
          f"s_sub_u32 s{S_TP}, s{S_TP}, 1", f"s_cbranch_scc1 L_pollvec{site}", "s_sleep 1", f"s_branch L_pollsm{site}"]
    l += [f"L_pollvec{site}:"] + poll_addr() + [
            f"s_sub_u32 s{S_BUDGET}, s{S_BUDGET}, 1",
            f"s_cbranch_scc1 L_pollgiveup{site}",
            "s_sleep 2",
            f"buffer_load_dword v{V_POLL}, v{V_POLL+1}, s[{S_FLG}:{S_FLG+3}], s{S_FOFF} offen sc1",
            "s_waitcnt vmcnt(0)"]
    if site == 0 and OPT["l2"]:
        l += [f"s_bitcmp1_b32 s{S_NEED}, 9", "s_cbranch_scc1 L_nomix",
              f"v_xor_b32 v{V_POLL+1}, s{S_NEED}, v{V_POLL}", f"v_lshrrev_b32 v{V_POLL+1}, 5, v{V_POLL+1}", f"v_add_u32 v{V_POLL+1}, -1, v{V_POLL+1}",
              f"v_cmp_gt_u32 vcc, 31, v{V_POLL+1}", "s_nop 1", f"s_and_b32 s{S_TP}, vcc_lo, {'0xff' if OPT['l2'] == 3 else '0xff00'}", "s_cbranch_scc0 L_nomix"]
        l += fin([x for j in range(4) for x in k_st(j, BX)] + [x for e in range(NVE) for x in v_st(e, 112)])
        l += ["s_waitcnt vmcnt(0)", "s_barrier", f"s_and_b32 s{S_NEED}, s{S_NEED}, 0xfffffc00", f"s_add_u32 s{S_NEED}, s{S_NEED}, {16 << 5}",
              f"v_mov_b32 v{V_FVAL}, s{S_NEED}", f"s_add_u32 s{S_NEED}, s{S_NEED}, 1", f"s_mov_b32 s{S_FOFF}, 32"] + fin(flag_post()) + ["s_branch L_pollvec0", "L_nomix:"]
    l += poll_test() + [
            f"s_cbranch_scc1 L_pollvec{site}",
            f"s_branch L_pollok{site}",
            f"L_pollgiveup{site}:"] + diag(site) + [
            f"s_mov_b32 s{S_BUDGET}, 0",
            f"s_branch L_pollok{site}"]
    return l
def tag_load():
    return [VM("tag", f"buffer_load_dword v{V_FVAL}, off, s[{S_DBG}:{S_DBG+3}], s{S_HOFF} sc1")]
def tag_check():
    return [f"s_cmp_lg_u32 s{S_WAVE}, 0", "s_cbranch_scc1 L_tagdone",
            f"v_readfirstlane_b32 s{S_TAG}, v{V_FVAL}", f"s_mov_b32 s{S_RET}, 100",
            "s_waitcnt lgkmcnt(0)"] + ([f"s_mov_b32 s101, s{S_OWN}", f"s_mov_b32 s100, s{S_TAG}"] if OPT["stamp"] else []) + [f"s_and_b32 s{S_OWN}, s{S_OWN}, 0xfffffc00",
            "L_tagretry:", f"s_cmp_eq_u32 s{S_TAG}, s{S_OWN}", f"s_cselect_b32 s{S_TAG}, 0, s{S_TAG}", f"s_cmp_lg_u32 s{S_TAG}, 0", "s_cbranch_scc1 L_tagok",
            f"s_sub_u32 s{S_RET}, s{S_RET}, 1", "s_cbranch_scc1 L_tagslow", "s_sleep 4",
            f"s_buffer_load_dword s{S_TAG}, s[{S_DBG}:{S_DBG+3}], s{S_HOFF} glc", "s_waitcnt lgkmcnt(0)", "s_branch L_tagretry",
            "L_tagok:", f"s_add_u32 s{S_TAG}, s{S_TAG}, s{S_XCC}", f"v_mov_b32 v{V_FVAL}, s{S_TAG}", f"v_mov_b32 v{V_T}, {RING}", DS("w", f"ds_write_b32 v{V_T}, v{V_FVAL}"), "L_tagdone:"]
def tag_get():
    return [f"v_mov_b32 v{V_T}, {RING}", DS("tg", f"ds_read_b32 v{V_T+1}, v{V_T}")]
def tag_use():
    return [f"v_readfirstlane_b32 s{S_NEED}, v{V_T+1}", f"s_add_u32 s{S_NEED}, s{S_NEED}, 1"]
def tag_slow():
    return ["L_tagslow:",
            f"s_sub_u32 s{S_BUDGET}, s{S_BUDGET}, 1",
            "s_cbranch_scc1 L_taggiveup",
            "s_sleep 2",
            f"buffer_load_dword v{V_FVAL}, off, s[{S_DBG}:{S_DBG+3}], s{S_HOFF} sc1",
            "s_waitcnt vmcnt(0)",
            f"v_readfirstlane_b32 s{S_TAG}, v{V_FVAL}", "s_nop 0", f"s_cmp_eq_u32 s{S_TAG}, s{S_OWN}", "s_cbranch_scc1 L_tagslow",
            f"s_cmp_eq_u32 s{S_TAG}, 0", "s_cbranch_scc1 L_tagslow",
            "s_branch L_tagok",
            "L_taggiveup:"] + diag(15) + [
            f"s_mov_b32 s{S_BUDGET}, 0",
            "s_branch L_tagok"]

def text_of(x):
    return "s_waitcnt" if isinstance(x, (W, LG)) else (x.text if isinstance(x, (VM, DS)) else x)
def kind_of(x):
    t = text_of(x)
    if t.endswith(":"): return "label"
    if t.startswith("v_"): return "valu"
    if t.startswith("ds_"): return "ds"
    if t.startswith("buffer_store"): return "store"
    if t.startswith("buffer_"): return "load"
    return "salu"
def cost_of(x):
    k = kind_of(x); t = text_of(x)
    if k == "label": return 0
    if k == "store": return 20 if "x4" in t else (OPT["x2c"] if "x2" in t else 16 if "x3" in t else 8)
    if k == "load": return OPT["ldc"]
    if t.startswith("ds_write"): return 16 if ("b128" in t or "write2" in t) else 8
    if t.startswith(("v_exp", "v_rcp")): return 8
    if t.startswith("v_mfma"): return 32 if "x4_f32" in t else 8
    if t.startswith("s_nop"): return 4 * (int(t.split()[1]) + 1)
    if t.startswith("s_cbranch") or t.startswith("s_branch"): return 12
    if t.startswith("s_barrier"): return 8
    return 4
def gap_time(ops):
    t = 4; prev = None
    for o in ops:
        if o is None: continue
        k = kind_of(o)
        if k == "label": continue
        if k == "salu": t += cost_of(o)
        else: t = max(t, 8) + cost_of(o) + (8 if (k != "valu" and prev == "valu") else 0)
        prev = k
    return t

class Stream:
    def __init__(self, ops, first, last, maxper=99, dense=0):
        self.nb = {}; self.dl = []; l = []
        for o in ops:
            if isinstance(o, tuple):
                if o[0] == "nb": self.nb[len(l)] = o[1]
                else: self.dl.append((len(l), o[1]))
            else: l.append(o)
        ops = l
        self.ops = list(ops); self.first = first; self.last = last; self.maxper = maxper; self.dense = dense
        self.total = sum(cost_of(o) for o in self.ops); self.done = 0; self.i = 0
        self.gate = {}; self.i0 = 0

def pack(NG, A, B, C, T, streams, novm=(), nosalu=(), vmgap=4, light=(), noval=()):
    out = []; over = 0; lastvm = -99
    for g in range(NG):
        a, b, c, tl = list(A[g]), list(B[g]), list(C[g]), list(T[g])
        cnt = {}; inC = set(); blocked = set()
        while True:
            best = None; bl = None; bsec = None
            for st in streams:
                if st.i >= len(st.ops) or g < st.first: continue
                if g < st.nb.get(st.i, 0): continue
                force = g >= st.last or any(st.i < n and g >= dg for n, dg in st.dl)
                if (cnt.get(id(st), 0) >= st.maxper or id(st) in blocked) and not force: continue
                o = st.ops[st.i]; k = kind_of(o); cst = cost_of(o)
                if k == "salu" and g in nosalu:
                    assert not force, (g, text_of(o))
                    continue
                if k in ("load", "store") and (g in novm or g - lastvm < vmgap) and not force: continue
                if k in ("load", "store", "ds"):
                    sec = "b" if id(st) not in inC and id(st) not in blocked else "c"
                    if sec == "c" and not force: continue
                elif k == "salu" and not a and cnt.get(id(st), 0) == 0:
                    sec = "a"
                else: sec = "c"
                tgt = st.total * (g - st.first + 1) / (st.last - st.first + 1)
                lag = tgt - st.done
                if not force:
                    if g in noval: continue
                    if lag < cst / 2 - OPT["ahead"] and cst: continue
                    trial = (a + [o] if sec == "a" else a) + (b + [o] if sec == "b" else b) + (c + [o] if sec == "c" else c) + tl
                    gt = gap_time(trial)
                    if g in light and gt > 12 and k != "salu" and lag < OPT["llag"]: continue
                    if gt > 16:
                        if g % 2 == 0: continue
                        big = k == "store" or text_of(o).startswith(("ds_write_b128", "ds_write2"))
                        lim = max(20, st.dense) if lag > 24 else 16
                        if big and not (a + b + c + tl): lim = 32
                        if gt > lim: continue
                key = (force, k in ("load", "store"), lag / max(1, (st.last - g + 1)) ** 0.5)
                if best is None or key > bl: best = st; bl = key; bsec = sec
            if best is None: break
            o = best.ops[best.i]
            if bsec == "a": a.append(o)
            elif bsec == "b":
                b.append(o)
            else: c.append(o)
            if bsec == "c" or bsec == "b" and kind_of(o) != "ds" and False: inC.add(id(best))
            if bsec == "c": inC.add(id(best))
            if " m0," in text_of(o): blocked.add(id(best))
            if kind_of(o) in ("load", "store"): lastvm = g
            best.i += 1; best.done += cost_of(o); cnt[id(best)] = cnt.get(id(best), 0) + 1
        ops = a + b + c + tl
        tt = gap_time(ops)
        if tt > 16: over += tt - 16
        out.append(ops)
    for st in streams: assert st.i == len(st.ops)
    return out, over

def pack_dense(NG, A, B, C, T, streams, novm=(), nosalu=(), vmgap=2):
    jobs = []
    for st in streams:
        r = st.first; rel = []
        for i in range(len(st.ops)):
            r = max(r, st.nb.get(i, 0)); rel.append(r)
        for i, o in enumerate(st.ops):
            d = min([st.last] + [dg for n, dg in st.dl if i < n])
            k = kind_of(o)
            jobs.append([rel[i], d, cost_of(o) + (OPT["dx"] if k in ("store", "load") else 0) - (2 if k == "salu" else 0)])
    for g in range(NG): jobs.append([g, g, max(0, gap_time(A[g] + B[g] + C[g] + T[g]) - 8)])
    level = [None] * NG
    while jobs:
        free = [g for g in range(NG) if level[g] is None]
        pts_r = sorted({j[0] for j in jobs}); pts_d = sorted({j[1] for j in jobs})
        best = None
        for a_ in pts_r:
            ws = sorted((j[1], j[2]) for j in jobs if j[0] >= a_)
            w = 0; i = 0
            for b_ in pts_d:
                if b_ < a_: continue
                while i < len(ws) and ws[i][0] <= b_: w += ws[i][1]; i += 1
                n = sum(1 for g in free if a_ <= g <= b_)
                if n and (best is None or w / n > best[0]): best = (w / n, a_, b_)
        dn, a_, b_ = best
        if dn <= 8: break
        for g in free:
            if a_ <= g <= b_: level[g] = dn
        jobs = [j for j in jobs if not (j[0] >= a_ and j[1] <= b_)]
    extra = [2 * (level[g] - 8) if (level[g] is not None and g % 2) else 0 for g in range(NG)]
    return pack_dense1(NG, A, B, C, T, streams, novm, nosalu, vmgap, extra)
def pack_dense1(NG, A, B, C, T, streams, novm, nosalu, vmgap, extra):
    out = []; over = 0; lastvm = -99
    fixed = [gap_time(A[g] + B[g] + C[g] + T[g]) - (8 if not (B[g] + C[g] + T[g]) else 8) for g in range(NG)]
    for g in range(NG):
        a, b, c, tl = list(A[g]), list(B[g]), list(C[g]), list(T[g])
        carry = (carry if g else 0) + extra[g]
        bud = 16 + (carry if g % 2 else 0)
        blocked = set(); inC = set()
        for st in streams: st.i0 = st.i
        while True:
            best = None; bl = None
            cur = gap_time(a + b + c + tl)
            for st in streams:
                if st.i >= len(st.ops) or g < st.first or g < st.nb.get(st.i, 0): continue
                if st.i in st.gate:
                    o_, j_ = st.gate[st.i]
                    if (o_.i0 if (kind_of(st.ops[st.i]) == "store" and g < NG - 1) else o_.i) <= j_: continue
                    if o_.i0 <= j_: inC.add(id(st))
                force = g >= st.last or any(st.i < n and g >= dg for n, dg in st.dl)
                if id(st) in blocked and not force: continue
                o = st.ops[st.i]; k = kind_of(o)
                if k == "salu" and g in nosalu:
                    assert not force
                    continue
                mem = k in ("load", "store", "ds")
                if k in ("load", "store") and (g in novm or g - lastvm < vmgap) and not force: continue
                sec = "b" if (mem and id(st) not in inC) else ("a" if (k == "salu" and not a and id(st) not in inC and id(st) not in blocked and not any(x is st for x in ())) else "c")
                if sec == "a" and any(id(st) == y for y in inC): sec = "c"
                if mem and sec == "c" and not force: continue
                trial = gap_time((a + [o] if sec == "a" else a) + (b + [o] if sec == "b" else b) + (c + [o] if sec == "c" else c) + tl)
                if not force and trial > bud and not (cur < 16 and trial <= bud + 12 and g % 2): continue
                tgt = st.total * (g - st.first + 1) / (st.last - st.first + 1)
                n_, dd = min([(len(st.ops), st.last)] + [(n, dg) for n, dg in st.dl if st.i < n], key=lambda x: x[1])
                need = sum(cost_of(x) for x in st.ops[st.i:n_]) / max(1, dd - g + 1)
                key = (force, mem, need)
                if best is None or key > bl: best = st; bl = key; bsec = sec
            if best is None: break
            o = best.ops[best.i]
            {"a": a, "b": b, "c": c}[bsec].append(o)
            if bsec == "c" or (bsec == "b"):
                if bsec == "c": inC.add(id(best))
                else: usedb = True
            if bsec in ("a", "b"): best._g = g
            if " m0," in text_of(o): blocked.add(id(best))
            if kind_of(o) in ("load", "store"): lastvm = g
            best.i += 1; best.done += cost_of(o)
            if bsec == "b" and not a: a.append(None)
        a = [x for x in a if x is not None]
        ops = a + b + c + tl
        tt = gap_time(ops)
        carry = max(0, carry - max(0, tt - 16)) if extra[g] or g % 2 == 0 else 0
        if tt > 16: over += tt - 16
        out.append(ops)
    for st in streams: assert st.i == len(st.ops)
    return out, over

POLLSITES = []
def gen_seg(name, groups, nxt, sm=(), bars=(), tasks=(), dma=(), extra=(), endops=(), fixed=(), peel=True, vmgap=None):
    starts = []; n = 0
    for g in groups: starts.append(n); n += len(g.mf)
    NG = n
    A = [[] for _ in range(NG)]; B = [[] for _ in range(NG)]; C = [[] for _ in range(NG)]; T = [[] for _ in range(NG)]
    streams = []; novm = set(range(0, NG, 2)); nosalu = set()
    allg = list(groups) + list(nxt)
    assert len(groups) % 3 == 0
    for i, g in enumerate(groups):
        g0 = starts[i]; ln = len(g.mf)
        if i + 2 < len(allg):
            t = allg[i + 2]
            if not (OPT["ab"] & 4 and name.startswith("k") and i % 2): B[g0].append(rd_op(i + 2, 0, t)); B[g0 + ln // 2].append(rd_op(i + 2, 1, t))
            if t.reb:
                assert g0 > 0
                C[g0 - 1] += t.reb
        if i + 1 < len(allg):
            A[g0 + ln - 1].append(LG(("fr", (2 * i + 2) % NFS), ("fr", (2 * i + 3) % NFS)))
    for ops, f, l in sm: streams.append(Stream(ops, f, l))
    streams += list(extra)
    if endops:
        A[NG-4] += endops[:1]; A[NG-2] += [A[NG-1][0]] + list(endops[1:-1]); A[NG-1] = []; T[NG-1] = list(endops[-1:]); nosalu |= {NG-2, NG-1}
    for grp in dma:
        dl = []
        for part, pos in grp[:-2]: dl += dma_tile(part, pos, peel)
        k = max(i for i, x in enumerate(dl) if isinstance(x, VM)) + 1
        lim = NG - 3 if endops else NG - 1
        if grp[-1] + 1 > lim: k = len(dl)
        streams.append(Stream(dl[:k], grp[-2], grp[-1], maxper=2))
        if dl[k:]: streams.append(Stream(dl[k:], grp[-1] + 1, min(lim, grp[-1] + 12), maxper=2))
    bars = [(g, list(tg)) for g, tg in bars]
    for t in tasks:
        k_ = t[0]
        if k_ == "vst" and t[1] >= NVE: continue
        if k_ == "cv":
            _, cv, h, buf, rs, outb = HT[t[1]]
            ops = cv(h, buf, rs, outb)[t[2]:t[3]]
            if t[2] == 0: ops = [W(t[1])] + ops
            streams.append(Stream(ops, t[4], t[5]))
        elif k_ in ("kst", "vst", "wst"):
            grp = k_st(t[1], BX, pre=OPT["pa"]) if k_ == "kst" else v_st(t[1], BZ) if k_ == "vst" else v_st(t[1], BX, "wst")
            g = t[2]; assert not B[g] and not A[g], (name, g)
            B[g].append(grp[-1]); novm |= set(range(g - OPT["sb"], g + OPT["sa"] + 1))
            if grp[:-1]: streams.append(Stream(grp[:-1], max(0, g - 5), g - 1))
        elif k_ in ("ld", "ldn"):
            ld, _, h, buf, rs, _o = HT[t[1]]
            adv = {"ka": k_adv(), "va": v_adv()}.get(t[1], []) if k_ == "ld" else []
            ops = ld(h, buf, rs, t[1])
            if len(t) > 4: ops = ops[2:] if t[4] == "raw" else ops[:2]
            streams.append(Stream(adv + ops, t[2], t[3], maxper=1))
        elif k_ == "post":
            bi = t[2] if len(t) > 2 else -1
            bars[bi][1].append(t[1])
            streams.append(Stream(flag_post(), bars[bi][0] + 1, min(NG - 3, bars[bi][0] + 14), maxper=1))
        elif k_ == "pf":
            streams.append(Stream([VM("pf", f"buffer_load_dword v{V_T4}, v{V_DMA}, s[{S_DBG}:{S_DBG+3}], s{S_HOFF} offen")], t[1], t[2]))
        elif k_ == "rld":
            streams.append(Stream([VM("rs", f"buffer_load_dwordx4 v[{V_T4}:{V_T4+3}], v{V_DMA}, s[{S_WS}:{S_WS+3}], s{S_RC} offen sc1")], t[1], t[2]))
        elif k_ == "rst":
            g = t[1]; assert g % 2 == 1 and not B[g] and not A[g] and not A[g - 1], (name, g)
            A[g - 1].append(W("rs")); B[g].append(VM("rs2", f"buffer_store_dwordx4 v[{V_T4}:{V_T4+3}], v{V_DMA}, s[{S_WS}:{S_WS+3}], s{S_RC} offen sc1"))
            novm |= set(range(g - OPT["sb"], g + OPT["sa"] + 1))
            streams.append(Stream([f"s_add_u32 s{S_RC}, s{S_RC}, s{S_RD}", f"s_sub_u32 s{S_RD}, 1024, s{S_RD}"], g + 1, g + 8, maxper=1))
        elif k_ == "pollld": streams.append(Stream(poll_load(), t[1], t[2], maxper=1))
        elif k_ == "pollchk":
            ps = len(POLLSITES); POLLSITES.append(ps)
            g = t[1]; assert g % 4 == 1
            pt = poll_test()
            A[g] += [W("poll")]; T[g] += pt[:2]; novm |= {g, g + 4}
            A[g + 3] += [pt[3]]; A[g + 4] += [f"s_cbranch_scc1 L_pollslow{ps}", f"L_pollok{ps}:"]; nosalu |= {g + 3, g + 4}
            A[g + 5] += [f"s_add_u32 s{S_NEED}, s{S_NEED}, 1"]
        elif k_ == "spollld": A[t[1]] += smem_flags()
        elif k_ == "spollchk":
            ps = len(POLLSITES); POLLSITES.append(ps)
            A[t[1]] += ["s_waitcnt lgkmcnt(0)"]
            streams.append(Stream(smem_reduce(), t[1] + 1, t[2] - 1, maxper=3))
            A[t[2]] += [f"s_cmp_ge_u32 s{S_PT}, 16", f"s_cbranch_scc1 L_pollslow{ps}", f"L_pollok{ps}:", f"s_add_u32 s{S_NEED}, s{S_NEED}, 1"]
        elif k_ == "step": streams.append(Stream(rd_step(t[1]), t[2], t[3], maxper=1))
        elif k_ == "q": streams.append(Stream(q_dma(t[1]), t[2], t[3], maxper=2))
        else: raise Exception(k_)
    noval = set()
    for g, tags in bars:
        i = [j for j in range(len(groups)) if starts[j] + len(groups[j].mf) - 1 == g]
        assert i, (name, g)
        if len(groups[i[0]].mf) == 8 and OPT["bm"] >= 4:
            A[g - 2] += A[g] + ([W(*tags)] if tags else []); A[g] = []
            A[g - 1] += ["s_barrier"]; novm |= {g - 2, g - 1}; noval |= {g - 1} | ({g - 2} if OPT["bm"] == 5 else set())
            continue
        if len(groups[i[0]].mf) == 8:
            A[g - 2] += A[g]; A[g] = []
            if tags: A[g - 1] += [W(*tags)]
            noval |= {0: set(), 1: {g}, 2: {g - 1, g}, 3: {g - 1}}[OPT["bm"]]
        elif tags: A[g - 2] += [W(*tags)]
        A[g] += ["s_barrier"]; novm |= {g}
    for g, sec, ops in fixed: {"A": A, "B": B, "C": C, "T": T}[sec][g] += ops
    if endops:
        for st_ in streams: st_.last = min(st_.last, NG - 2)
    m0w = sorted((st.first, st.last) for st in streams if any(" m0," in text_of(o) for o in st.ops))
    assert all(m0w[i][1] < m0w[i + 1][0] for i in range(len(m0w) - 1)), (name, m0w)
    if name in str(OPT["dense"]).split(","): fill, over = pack_dense(NG, A, B, C, T, streams, novm, nosalu, vmgap or OPT["dvg"])
    else:
        fill, over = pack(NG, A, B, C, T, streams, novm, nosalu, vmgap or OPT["vmgap"], (), noval)
        if OPT["twop"] and name[0] in "kz":
            vg = {g for g in range(NG) if any(kind_of(o) in ("load", "store") for o in fill[g])}
            for st_ in streams: st_.i = 0; st_.done = 0
            fill, over = pack(NG, A, B, C, T, streams, set(novm) | (set(range(NG)) - vg), nosalu, vmgap or OPT["vmgap"], {g - 1 for g in vg})
    if over: print(f"seg {name}: over budget by {over} cycles", file=sys.stderr)
    out = istamp(name)
    g = 0
    for i, gr in enumerate(groups):
        for j, d, b, c in gr.mf:
            if (OPT["pvs"] & 1 and d[0] in "a ") or (OPT["pvs"] & 2 and d.startswith("v")): out.append(f"{MF} {d}, {b}, {FR(2*i+j)}, {c}")
            else: out.append(f"{MF} {d}, {FR(2*i+j)}, {b}, {c}")
            out += fill[g]; g += 1
    return with_nop(out)

GBAR = 79
def seg_groups(it):
    return qk_full(it + 1) if it % 2 else pv_seq(it - 2)
def gen_iter(it, tasks=(), dma=(), name=None, endops=(), peel=False, nxt=None, extra=(), bars=None, groups=None, sm=None, step=True):
    q = it % 2
    smB = softmax_part(it, 1); smA = softmax_part(it + 1, 0)
    if sm is None: sm = ([(smB + [("dl", 57), ("nb", 47)] + smA, 0, 95)] if OPT["flex"] else [(smB, 0, 50), (smA, 52, 95)]) if q else [(smB + smA, 0, 95)]
    need = [("dv", (it - 1) % 8), ("dv", it % 8)] if q else [("dk", (it + 2) % 8), ("dk", (it + 3) % 8)]
    tasks = list(tasks) + ([("step", "p" if q else "q", 30, GBAR - 3)] if step else [])
    return gen_seg(name or f"i{it}", groups or seg_groups(it), nxt if nxt is not None else seg_groups(it + 1)[:2], sm,
                   bars if bars is not None else [(GBAR, need)], tasks, dma, extra, endops, peel=peel)

K_ = lambda *j: tuple(("k", x) for x in j)
V_ = lambda *j: tuple(("v", x) for x in j)
def steady(k):
    ckv, ckk = OPT["ckv"], OPT["ckk"]
    plv, plk = OPT["plv"], OPT["plk"]
    if OPT.get("p15"):
        return {
            5: ([("cv", "wb", 0, 99, 30, 95), ("pollchk", 1), ("post", "vst")], [K_(0, 1) + (8, 74)]),
            6: ([("wst", 0, 1), ("wst", 1, 9), ("wst", 2, 17), ("post", "wst"), ("ld", "ka", 26, 60), ("ld", "kb", 61, 95)], [K_(2, 3) + (26, 90)]),
            7: ([("cv", "ka", 0, 30, 45, 95), ("pollld", plv, plv + 8)], [K_(4, 5) + (11, 92)]),
            0: ([("cv", "ka", 30, 99, 0, 50), ("cv", "kb", 0, 20, 51, 95), ("pollchk", ckv), ("ld", "va", 52, 95)], [V_(0, 1) + (ckv + 7, 74)]),
            1: ([("cv", "kb", 20, 99, 0, 95)], [V_(2, 3) + (0, GBAR - 5)]),
            2: ([("cv", "va", 0, 99, 10, 95), ("kst", 0, 1), ("kst", 1, 9), ("kst", 2, 17), ("kst", 3, 25), ("post", "kst"), ("ld", "vb", 33, 60)], [K_(6, 7) + (33, 74)]),
            3: ([("cv", "vb", 0, 99, 50, 95), ("ldn", "wa", 0, 44)], [V_(4, 5) + (0, 90)]),
            4: ([("vst", 0, 1), ("vst", 1, 9), ("vst", 2, 17), ("cv", "wa", 0, 99, 30, 95), ("ld", "wb", 25, 50), ("pollld", 52, 60)], [V_(6, 7) + (25, GBAR - 5)]),
        }[k]
    if OPT["bal"]:
        c = [int(x) for x in str(OPT["cut"]).split(",")]
        a1, a2, b1, b2, v1, v2, w1 = c
        return {
            5: ([("cv", "ka", 0, a1, OPT["w5"], 95), ("pollchk", 1), ("vst", 0, 9), ("vst", 1, 17), ("vst", 2, 25), ("vst", 3, 33), ("post", "vst")], [K_(0, 1) + (41, 74)]) if ckk == 1 else
               ([("cv", "ka", 0, a1, 0, 95), ("pollchk", ckk), ("vst", 0, 1), ("vst", 1, 9), ("vst", 2, 17), ("vst", 3, 25), ("post", "vst")], [K_(0, 1) + (ckk + 7, 92)]),
            6: ([("cv", "ka", a1, a2, 0, 95), ("ld", "kb", 0, 44)] + [("rld", 70, 92)] * OPT["rs"], [K_(2, 3) + (0, 90)]),
            7: ([("cv", "ka", a2, 99, 0, 60 if b1 < 12 else 44), ("cv", "kb", 0, b1, 61 if b1 < 12 else 45, 95), ("ld", "va", 11, OPT["lva"]), ("pollld", plv, plv + 8)], [K_(4, 5) + (11, 92)]),
            0: ([("cv", "kb", b1, b2, 0, 95), ("pollchk", ckv)] + [("rst", 81)] * OPT["rs"], [V_(0, 1) + (ckv + 7, 74)]),
            1: ([("cv", "kb", b2, 99, 0, 30), ("cv", "va", 0, v1, 31, 95), ("ld", "vb", 32, 80)], [V_(2, 3) + (0, GBAR - 5)]) if b2 < 56 else
               ([("cv", "va", 0, v1, 20, 95), ("ld", "vb", 0, 40)], [V_(2, 3) + (0, 90)]),
            2: ([("cv", "va", v1, v2, 0, 95), ("kst", 0, 1), ("kst", 1, 9), ("kst", 2, 17), ("kst", 3, 25), ("post", "kst")], [K_(6, 7) + (33, 74)]),
            3: ([("cv", "va", v2, 99, 0, 50), ("cv", "vb", 0, w1, 51, 95), ("ld", "ka", 0, 44)], [V_(4, 5) + (0, 90)]),
            4: ([("cv", "vb", w1, 99, 0, 95), ("pollld", plk, plk + 16)] + ([("pf", 80, 92)] if OPT["pf2"] else []), [V_(6, 7) + (0, GBAR - 5)]),
        }[k]
    return {
        1: ([("cv", "va", 0, 22, 0, 95), ("ld", "vb", 0, 44)], [V_(2, 3) + (0, GBAR - 5)]),
        2: ([("cv", "va", 22, 99, 0, 95), ("kst", 0, 1), ("kst", 1, 9), ("kst", 2, 17), ("kst", 3, 25), ("post", "kst")], [K_(6, 7) + (33, 74)]),
        3: ([("cv", "vb", 0, 22, 0, 95), ("ld", "ka", 0, 44)], [V_(4, 5) + (0, GBAR - 5)]),
        4: ([("cv", "vb", 22, 99, 0, 95), ("pollld", plk, plk + 16)] + ([("pf", 80, 92)] if OPT["pf2"] else []), [V_(6, 7) + (0, GBAR - 5)]),
        5: ([("cv", "ka", 0, 16, 0, 95), ("pollchk", 1), ("vst", 0, 9), ("vst", 1, 17), ("vst", 2, 25), ("vst", 3, 33), ("post", "vst")], [K_(0, 1) + (41, 74)]),
        6: ([("cv", "ka", 16, 99, 0, 95), ("ld", "kb", 0, 30)], [K_(2, 3) + (31, 74)]),
        7: ([("cv", "kb", 0, 24, 40, 95), ("ld", "va", 11, 40), ("pollld", plv, plv + 8)], [K_(4, 5) + (41, 90)]),
        0: ([("cv", "kb", 24, 99, 0, 95), ("pollchk", ckv)], [V_(0, 1) + (ckv + 7, ckv + 44)]),
    }[k]

GA = V_RS[0]; TA = V_RS[0] + 1; BA = V_RS[0] + 2
RL = [V_CT, V_CT + 4, NEGM(0), NEGM(1)]
S_EO = 24
def epi_addr():
    return [f"v_bfe_u32 v{TA}, v{V_DMA}, 8, 2", f"v_mul_u32_u24 v{GA}, 1536, v{TA}", f"v_lshlrev_b32 v{BA}, 4, v{TA}",
            f"v_bfe_u32 v{TA}, v{V_DMA}, 4, 4", f"v_mul_u32_u24 v{TA}, {12 if V64 else 8}, v{TA}", f"v_add_u32 v{GA}, v{GA}, v{TA}", f"v_mov_b32 v{TA}, 1.0"] + [f"v_mov_b32 v{ONES+i}, 0x3f803f80" for i in range(4 * OPT["lmf"])] + [
            f"s_lshl_b32 s{S_EO}, s{S_QB}, 2", f"s_add_u32 s{S_EO}, s{S_EO}, s{S_WAVE}", f"s_mul_i32 s{S_EO}, s{S_EO}, {STAGE}",
            f"s_add_u32 s{S_QL}, s{S_EO}, 6144", f"s_add_u32 s{S_QS}, s{S_EO}, 12288", f"s_add_u32 s{S_TAG}, s{S_EO}, 18432"]
S_EQ = [S_EO, S_QL, S_QS, S_TAG]
def epi_l(qs, gap=("s_nop 7", "s_nop 1"), acc=False):
    fl = [f"v_mfma_f32_16x16x4_f32 v[{RL[q]}:{RL[q]+3}], v{V_L[q]}, v{TA}, " + (f"v[{RL[q]}:{RL[q]+3}]" if acc else "0") for q in qs] + list(gap)
    return fl + [f"v_rcp_f32 v{RL[q]+r}, v{RL[q]+r}" for q in qs for r in range(4)]
class Epi:
    def __init__(self, temps): self.temps = temps; self.n = 0; self.pend = []
    def flush(self, k=99):
        p = self.pend[:k]; self.pend = self.pend[k:]
        return p
    def chunk(self, qb, n, pk=False, inv=False):
        p = []
        if V64:
            for r in range(4):
                o = self.temps[self.n % len(self.temps)]; self.n += 1; rl = RL[qb] + r
                if inv:
                    p += [f"v_mul_f32 v{o+e}, v{O0(6*n+e)+r}, v{rl}" for e in range(6)] + [f"v_cvt_pk_bf16_f32 v{o+i}, v{o+2*i}, v{o+2*i+1}" for i in range(3)] + self.flush(1)
                    self.pend.append(VM("out", f"buffer_store_dwordx3 v[{o}:{o+2}], v{GA}, s[{S_OUT}:{S_OUT+3}], s{S_EQ[qb]} offen offset:{n*192 + r*384}{OF}"))
                    continue
                p += [f"v_accvgpr_read_b32 v{o+e}, a{O(qb,6*n+e)+r}" for e in range(6)]
                if pk: p += [f"v_pk_mul_f32 v[{o+2*i}:{o+2*i+1}], v[{o+2*i}:{o+2*i+1}], v[{rl&~1}:{(rl&~1)+1}] " + ("op_sel:[0,1] op_sel_hi:[1,1]" if rl & 1 else "op_sel_hi:[1,0]") for i in range(3)]
                else: p += [f"v_mul_f32 v{o+e}, v{o+e}, v{rl}" for e in range(6)]
                p += [f"v_cvt_pk_bf16_f32 v{o+i}, v{o+2*i}, v{o+2*i+1}" for i in range(3)] + self.flush(1)
                self.pend.append(VM("out", f"buffer_store_dwordx3 v[{o}:{o+2}], v{GA}, s[{S_OUT}:{S_OUT+3}], s{S_EQ[qb]} offen offset:{n*192 + r*384}{OF}"))
            return p
        ob = self.temps[self.n % len(self.temps)]; self.n += 1
        for r in range(4):
            o = ob + 4 * r
            if inv:
                p += [f"v_mul_f32 v{o+e}, v{OV(qb,3*e+n)+r}, v{RL[qb]+r}" for e in range(4)]
                p += [f"v_cvt_pk_bf16_f32 v{o+i}, v{o+2*i}, v{o+2*i+1}" for i in range(2)] + self.flush(1)
                self.pend.append(VM("out", f"buffer_store_dwordx2 v[{o}:{o+1}], v{GA}, s[{S_OUT}:{S_OUT+3}], s{S_EQ[qb]} offen offset:{n*128 + r*384}{OF}"))
                continue
            p += [f"v_accvgpr_read_b32 v{o+e}, a{O(qb,3*e+n)+r}" for e in range(4)]
            rl = RL[qb] + r
            if pk: p += [f"v_pk_mul_f32 v[{o+2*i}:{o+2*i+1}], v[{o+2*i}:{o+2*i+1}], v[{rl&~1}:{(rl&~1)+1}] " + ("op_sel:[0,1] op_sel_hi:[1,1]" if rl & 1 else "op_sel_hi:[1,0]") for i in range(2)]
            else: p += [f"v_mul_f32 v{o+e}, v{o+e}, v{rl}" for e in range(4)]
            p += [f"v_cvt_pk_bf16_f32 v{o+i}, v{o+2*i}, v{o+2*i+1}" for i in range(2)]
            p += self.flush(1)
            self.pend.append(VM("out", f"buffer_store_dwordx2 v[{o}:{o+1}], v{GA}, s[{S_OUT}:{S_OUT+3}], s{S_EQ[qb]} offen offset:{n*128 + r*384}{OF}"))
        return p

def gen_tail():
    sp = softmax_part
    g57 = qk_half(58) + rebase(qk_half(59), V_RDK, A0 - A2)
    g58 = pv_seq(56)
    g59 = rebase(qk_half(60), V_RDK, A1 - A0) + rebase(qk_half(61), V_RDK, A2 - A1)
    g60 = rebase(pv_seq(58), [V_RD], B2 - B1) + rebase(pv_seq(59), [V_RD], B0 - B2)
    g61 = rebase(pv_seq(60), [V_RD], B1 - B0) + rebase(qk_half(62), V_RDK, A0 - A2)
    g62 = rebase(qk_half(63), V_RDK, A1 - A0) + ([] if OPT["f3"] else rebase(pv_seq(61), [V_RD], B2 - B1))
    g63 = []
    for dbs in ([chunk_dbs(0), [6, 7, 8], [9, 10, 11]] if V64 else [chunk_dbs(n) for n in range(3)]):
        if OPT["f3"]: g63 += [pv_grp(61, db, va=V_RD3) for db in dbs]
        g63 += [pv_grp(62, db) for db in dbs] + [pv_grp(63, db, va=V_RD2) for db in dbs]
    if OPT["f3"]: g63[0].reb += [f"v_add_u32 v{V_RD3}, {B2 - B1}, v{V_RD}", f"v_mov_b32 v{V_RD2}, v{V_RD}", f"v_subrev_u32 v{V_RD}, {B1 - B0}, v{V_RD}"]
    else: g63[0].reb += [f"v_subrev_u32 v{V_RD2}, {B2 - B1}, v{V_RD}", f"v_subrev_u32 v{V_RD}, {B2 - B0}, v{V_RD}"]
    first57 = g57[:2]
    Z0 = OPT["z0"] and OPT["lastp"]
    p = []
    p += gen_seg("S57", g57, g58[:2], [(sp(57, 1) + [("dl", 50), ("nb", 28)] + sp(58, 0), 0, 95)], [(7, [("dk", 5)])] * (1 - Z0) + [(GBAR, [("dv", 0), ("dv", 1)])],
                 [("step", "p", 30, GBAR - 3)], [] if Z0 else [(K_(62, 63) + (8, 60)) if OPT["tv"] else (K_(62, 63) + V_(58, 59) + (8, 90))], peel=False)
    p += gen_seg("S58", g58, g59[:2], [(sp(58, 1) + sp(59, 0), 0, 95), (epi_addr(), 0, 95)], [(GBAR, [("dk", 7)] if OPT["tv"] else [("dk", 7), ("dv", 3)])], [],
                 [(V_(58, 59, 60, 61) + (0, 74)) if OPT["tv"] else (V_(60, 61) + (0, 60))], peel=False)
    p += gen_seg("S59", g59, g60[:2], [(sp(59, 1) + [("dl", 50), ("nb", 28)] + sp(60, 0), 0, 95)], [(15, [("dv", 5)])], [], [V_(62, 63) + (16, 60)], peel=False)
    p += gen_seg("S60", g60, g61[:2], [(sp(60, 1) + sp(61, 0), 0, 95)], [(GBAR, [("dv", 7)])])
    ep = Epi([BX + 6 * i for i in range(5)] if V64 else [BX] if OPT["omv"] else [BX, BY])
    if OPT["om0"]:
        t5 = ep.temps; ep.temps = [UNIT[0], UNIT[0] + 6]
        e01 = [x for n in range(NCH) for x in ep.chunk(0, n, False, True)]
        ep.temps = t5; ep.n = 0
        e01 += [x for n in range(NCH) for x in ep.chunk(1, n)] + ep.flush()
    else: e01 = [x for qb in (0, 1) for n in range(NCH) for x in ep.chunk(qb, n, OPT["pk"])] + ep.flush()
    chk = [f"v_max3_f32 v{V_T+2}, v{V_L[0]}, v{V_L[1]}, v{V_L[2]}", f"v_max_f32 v{V_T+2}, v{V_T+2}, v{V_L[3]}",
           f"s_mov_b32 s{S_TMP}, 0x{f32bits(2.0**OPT['thr']):08x}", f"v_cmp_lt_f32 s[{S_PT}:{S_PT+1}], s{S_TMP}, v{V_T+2}"]
    c = [ep.chunk(2, j, OPT["pk"]) + ep.chunk(3, j, OPT["pk"]) + ep.flush() for j in range(NCH - 1)] + [[]]
    sm = sp(61, 1) + epi_l((0, 1), [])[2:] + [("dl", 50), ("nb", 76)] + sp(62, 0) + [("nb", 98)] + sp(62, 1) + [("nb", 124)] + sp(63, 0) + [("nb", 148)] + sp(63, 1) + [("dl", 205)] + chk + [("nb", 214)] + epi_l((2, 3), [])[2:]
    ee = e01 + [("nb", 228)] + c[0] + [("nb", 260)] + c[1]
    lastsm = 220
    if OPT["f3"]:
        sm = sp(61, 1) + epi_l((0, 1), [])[2:] + [("dl", 50), ("nb", 76)] + sp(62, 0) + [("nb", 98)] + sp(62, 1) + [("dl", 157), ("nb", 124)] + sp(63, 0) + [("nb", 148)] + sp(63, 1) + [("dl", 173)] + chk + [("nb", 182)] + epi_l((2, 3), [])[2:]
        ee = e01 + [("dl", OPT["ed"]), ("nb", 196)] + c[0] + [("dl", OPT["ed1"]), ("nb", 244)] + c[1]
        lastsm = 190
        if V64:
            lm = OPT["lmf"]
            sm = sp(61, 1, lm) + epi_l((0, 1), [])[2:] + [("dl", 50), ("nb", 76)] + sp(62, 0, lm) + [("nb", 98)] + sp(62, 1, lm) + [("dl", 165), ("nb", 124)] + sp(63, 0, lm) + [("nb", 148)] + sp(63, 1, lm) + [("dl", 187 if lm else 189)]
            if lm:
                chk = [f"v_max3_f32 v{V_T+2}, v{V_L[0]}, v{V_L[1]}, v{RL[2]}"] + [f"v_max3_f32 v{V_T+2}, v{V_T+2}, v{a_}, v{a_+1}" for a_ in (RL[2] + 1, RL[2] + 3, RL[3] + 1)] + [f"v_max_f32 v{V_T+2}, v{V_T+2}, v{RL[3]+3}"] + chk[2:]
                sm += [("nb", 198)] + chk + epi_l((2, 3), [])[2:]
            else: sm += chk + [("nb", 198)] + epi_l((2, 3), [])[2:]
            ee = e01 + [("dl", OPT["ed"] + 20), ("nb", 220)] + c[0]
            lastsm = 206
    if OPT["sst"]:
        prod = []; ev = []
        for x in ee:
            if isinstance(x, VM): prod.append(x)
            else: ev.append(x)
        es = Stream(ev, 52, 286); ss = Stream(prod, 52, 287)
        cv = [i for i, x in enumerate(es.ops) if text_of(x).startswith("v_cvt_pk")][(2 if V64 else 1)::(3 if V64 else 2)]
        rd = [i for i, x in enumerate(es.ops) if text_of(x).startswith("v_accvgpr_read")][0::(6 if V64 else 4)]
        if OPT["om0"]: rd = [0] + [c_ + 1 for c_ in cv[:-1]]
        assert len(cv) == len(prod) == len(rd)
        for k in range(len(prod)):
            ss.gate[k] = (es, cv[k]); ss.nb[k] = max([0] + [gp for i, gp in es.nb.items() if i <= cv[k]])
            kk = k + (1 if V64 else 4) * len(ep.temps)
            if OPT["om0"] and k < 8: kk = k + 2 if k < 6 else len(prod)
            if kk < len(prod): es.gate[rd[kk]] = (ss, k)
        xs = [es, ss]
        LT = [96, 102, 108, 114, 120, 64, 70, 144]
        if V64: xs.append(Stream([x for q in (2, 3) for r in range(4) for x in [f"v_accvgpr_read_b32 v{LT[4*(q-2)+r]+e}, a{O(q,6+e)+r}" for e in range(3)] +
                                  [f"v_mul_f32 v{LT[4*(q-2)+r]+e}, v{LT[4*(q-2)+r]+e}, v{RL[q]+r}" for e in range(3)]], 256, 287))
        if OPT["omv"]: xs.append(Stream([f"v_accvgpr_read_b32 v{OV(q, db)+r}, a{O(q, db)+r}" for q in (2, 3) for db in (2, 5, 8, 11) for r in range(4)], 0, 140))
    else: xs = [Stream(ee, 52, 287)]
    p += gen_seg("S61", g61 + g62 + g63, [], [(sm, 0, lastsm)], extra=xs,
                 fixed=[(1, "T", epi_l((0, 1))[:1]), (3, "T", epi_l((0, 1))[1:2]), (lastsm - 15, "T", epi_l((2, 3), acc=V64 and OPT["lmf"])[:1]), (lastsm - 13, "T", epi_l((2, 3), acc=V64 and OPT["lmf"])[1:2]), (lastsm + 5, "A", [f"s_cmp_lg_u64 s[{S_PT}:{S_PT+1}], 0", "s_cbranch_scc1 L_slow"]), (95, "T", istamp("S62")), (191, "T", istamp("S63"))])
    p += istamp("fin") + ["s_nop 7"]
    if OPT["omv"]: ep.temps = [UNIT[0], UNIT[1]]
    if V64:
        for q in (2, 3):
            for r in range(4):
                o = LT[4 * (q - 2) + r]
                p += [f"v_accvgpr_read_b32 v{o+e}, a{O(q,6+e)+r}" for e in range(3, 6)] + [f"v_cvt_pk_bf16_f32 v{o}, v{o}, v{o+1}"]
                p += [f"v_mul_f32 v{o+e}, v{o+e}, v{RL[q]+r}" for e in range(3, 6)] + [f"v_cvt_pk_bf16_f32 v{o+i}, v{o+2*i}, v{o+2*i+1}" for i in (1, 2)]
                p += [VM("out", f"buffer_store_dwordx3 v[{o}:{o+2}], v{GA}, s[{S_OUT}:{S_OUT+3}], s{S_EQ[q]} offen offset:{192 + r*384}{OF}")]
        return first57, p
    p += ep.chunk(2, NCH - 1, True, OPT["omv"]) + ep.flush() + ep.chunk(3, NCH - 1, True, OPT["omv"]) + ep.flush()
    return first57, p
def slow_epi():
    ep = Epi([64 + 6 * i for i in range(8)] if V64 else [64 + 16 * i for i in range(4)])
    seq = ["s_nop 1"] + epi_l((0, 1)) + epi_l((2, 3)) + ["s_nop 0"]
    for qb in range(4):
        for n in range(NCH): seq += ep.chunk(qb, n, True)
    return seq + ep.flush()

def kfrag(g):
    return 2 * (g >> 2) + (g & 1), (g >> 1) & 1
def gen_slow():
    KF = 64; VF = 112; SS = 160; PP = 224; M = [240, 241, 242, 243]; KA = [244, 245]; LA = 246; t = V_T
    p = ["L_slow:", "s_waitcnt vmcnt(0) lgkmcnt(0)", "s_nop 15"]
    for i in range(192): p.append(f"v_accvgpr_write_b32 a{i}, 0")
    for q in range(4): p += [f"v_mov_b32 v{V_L[q]}, 0", f"v_mov_b32 v{M[q]}, 0xff7fffff"]
    p += [f"v_subrev_u32 v{KA[0]}, {A1}, v{V_RDK[0]}", f"v_subrev_u32 v{KA[1]}, {A1}, v{V_RDK[1]}", f"v_subrev_u32 v{LA}, {B0}, v{V_RD}",
          f"s_mov_b32 s{S_PT}, 0", "L_slowloop:"]
    for i in range(1, 5): p.append(f"s_add_u32 s{S_PT+i}, s{S_PT}, {[0, 6144, 12288, 16384, 20480][i]}")
    for f in range(12):
        s, tb = kfrag(f)
        p.append(f"buffer_load_dwordx4 v[{KF+4*f}:{KF+4*f+3}], v{KA[s&1]}, s[{S_WS}:{S_WS+3}], s{S_PT+tb} offen offset:{(s>>1)*128} sc1")
    for db in range(12):
        p.append(f"buffer_load_dwordx4 v[{VF+4*db}:{VF+4*db+3}], v{LA}, s[{S_WS}:{S_WS+3}], s{S_PT+2+db//4} offen offset:{(db%4)*1024} sc1")
    p.append("s_waitcnt vmcnt(12)")
    for f in range(12):
        s, tb = kfrag(f)
        for qb in range(4):
            d = vr(SS + 8 * qb + 4 * tb, 4)
            p.append(f"{MF} {d}, v[{KF+4*f}:{KF+4*f+3}], {Qf(qb,s)}, {'0' if s == 0 else d}")
    p.append("s_nop 9")
    for qb in range(4):
        sb = SS + 8 * qb
        p += [f"v_max3_f32 v{t}, v{sb}, v{sb+1}, v{sb+2}", f"v_max3_f32 v{t}, v{t}, v{sb+3}, v{sb+4}",
              f"v_max3_f32 v{t}, v{t}, v{sb+5}, v{sb+6}", f"v_max3_f32 v{t}, v{t}, v{sb+7}, v{M[qb]}"]
        p += xlane("v_max_f32", t)
        p += [f"v_sub_f32 v{t+1}, v{M[qb]}, v{t}", f"v_exp_f32 v{t+1}, v{t+1}", f"v_mov_b32 v{M[qb]}, v{t}"]
        for i in range(8): p.append(f"v_sub_f32 v{sb+i}, v{sb+i}, v{t}")
        for i in range(8): p.append(f"v_exp_f32 v{sb+i}, v{sb+i}")
        p.append(f"v_mul_f32 v{V_L[qb]}, v{V_L[qb]}, v{t+1}")
        for i in range(8): p.append(f"v_add_f32 v{V_L[qb]}, v{V_L[qb]}, v{sb+i}")
        for i in range(4): p.append(f"v_cvt_pk_bf16_f32 v{PP+4*qb+i}, v{sb+2*i}, v{sb+2*i+1}")
        p += [f"ds_bpermute_b32 v{248+r}, v{BA}, v{t+1} offset:{4*r}" for r in range(4)] + ["s_waitcnt lgkmcnt(0)"]
        for i in range(48):
            a = O(qb, 0) + i; tt = t + 2 + (i % 2)
            p += [f"v_accvgpr_read_b32 v{tt}, a{a}", f"v_mul_f32 v{tt}, v{tt}, v{248+i%4}", f"v_accvgpr_write_b32 a{a}, v{tt}"]
    p += ["s_waitcnt vmcnt(0)", "s_nop 1"]
    for db in range(12):
        for qb in range(4):
            d = ar(O(qb, db), 4)
            p.append(f"{MF} {d}, v[{PP+4*qb}:{PP+4*qb+3}], v[{VF+4*db}:{VF+4*db+3}], {d}")
    p += [f"s_add_u32 s{S_PT}, s{S_PT}, {STAGE}", f"s_cmp_lt_u32 s{S_PT}, {HEADBYTES}", "s_nop 7", "s_cbranch_scc1 L_slowloop"]
    e = slow_epi(); resolve(e)
    return p + fin(e) + ["s_branch L_fin"]

def xlane(op, t, u=None):
    u = t + 1 if u is None else u
    l = []
    for sw in ("v_permlane16_swap_b32", "v_permlane32_swap_b32"):
        l += [f"v_mov_b32 v{u}, v{t}", "s_nop 1", f"{sw} v{t}, v{u}", "s_nop 1", f"{op} v{t}, v{t}, v{u}"]
    return l
def rowmax2(t, qs, tq):
    l = []
    ab = [(Sq(t, j, 0), Sq(t, j, 1)) for j in range(2)]
    l += [f"v_max3_f32 v{tq[j]}, v{a}, v{a+1}, v{a+2}" for j, (a, b) in enumerate(ab)]
    l += [f"v_max3_f32 v{tq[j]}, v{tq[j]}, v{a+3}, v{b}" for j, (a, b) in enumerate(ab)]
    l += [f"v_max3_f32 v{tq[j]}, v{tq[j]}, v{b+1}, v{b+2}" for j, (a, b) in enumerate(ab)]
    l += [f"v_max_f32 v{tq[j]}, v{tq[j]}, v{b+3}" for j, (a, b) in enumerate(ab)]
    for sw in ("v_permlane16_swap_b32", "v_permlane32_swap_b32"):
        l += [f"v_mov_b32 v{tq[j]+1}, v{tq[j]}" for j in range(2)] + ["s_nop 0"]
        l += [f"{sw} v{tq[j]}, v{tq[j]+1}" for j in range(2)] + ["s_nop 0"]
        l += [f"v_max_f32 v{tq[j]}, v{tq[j]}, v{tq[j]+1}" for j in range(2)]
    l += [f"v_sub_f32 v{NEGM(qs[j])+i}, 0, v{tq[j]}" for j in range(2) for i in range(4)]
    return l
def sm_one(t, sl):
    a, b = Sq(t, sl, 0), Sq(t, sl, 1); tq = V_CT; qb = slot_q(t, sl); rs = [r + i for r in (a, b) for i in range(4)]
    l = [f"v_max3_f32 v{tq}, v{a}, v{a+1}, v{a+2}", f"v_max3_f32 v{tq+2}, v{a+3}, v{b}, v{b+1}",
         f"v_max3_f32 v{tq}, v{tq}, v{b+2}, v{b+3}", f"v_max_f32 v{tq}, v{tq}, v{tq+2}"] + xlane("v_max_f32", tq)
    l += [f"v_sub_f32 v{r}, v{r}, v{tq}" for r in rs] + [f"v_exp_f32 v{r}, v{r}" for r in rs] + [f"v_sub_f32 v{NEGM(qb)+i}, 0, v{tq}" for i in range(4)]
    l += [f"v_add_f32 v{V_L[qb]}, v{V_L[qb]}, v{r}" for r in rs] + [f"v_cvt_pk_bf16_f32 v{a+i}, v{rs[2*i]}, v{rs[2*i+1]}" for i in range(4)]
    return l
def addneg(t, sl):
    n = NEGM(slot_q(t, sl))
    return [f"v_add_f32 v{Sq(t,sl,tb)+i}, v{Sq(t,sl,tb)+i}, v{n}" for tb in range(2) for i in range(4)]

def resolve(seq):
    vm = []; ds = []
    for x in seq:
        if isinstance(x, VM): vm.append(x.tag)
        elif isinstance(x, DS): ds.append(x.tag)
        elif isinstance(x, (W, LG)):
            q = vm if isinstance(x, W) else ds
            best = None
            for tag in x.tags:
                n = 0; found = False
                for t in reversed(q):
                    if t == tag: found = True; break
                    n += 1
                if found: best = n if best is None else min(best, n)
            if best is not None:
                x.n = best if getattr(x, "n", None) is None else min(x.n, best)
        else:
            assert not x.startswith(("ds_", "buffer_")) or "UNTRACKED" in x, x
def vm_size(x):
    t = x.text
    if t.startswith("buffer_store"): return 0
    if x.tag == "pre": return 3.0
    if " lds" in t: return 1.0
    if "dwordx4" in t or "dwordx3" in t: return 0.75
    if "dwordx2" in t and "offen" in t: return 0.375
    return 0.125
def pace(seq, cap):
    out = []; q = []; on = False
    for x in seq:
        if isinstance(x, W): q = q[len(q) - min(len(q), x.n):]; on = True
        elif isinstance(x, VM):
            sz = vm_size(x)
            if on and not x.text.startswith("buffer_store") and sum(q) + sz > cap:
                while q and sum(q) + sz > cap: q.pop(0)
                w = W(); w.n = len(q)
                if out and out[-1] == "s_nop 0": out.pop()
                out.append(w)
            q.append(sz)
        out.append(x)
    return out
def fin(seq):
    out = []
    for x in seq:
        if isinstance(x, (W, LG)):
            if OPT["ab"] and getattr(x, "n", None) is None: x.n = 63
            assert getattr(x, "n", None) is not None, x.tags
            out.append(f"s_waitcnt vmcnt({min(x.n, 63)})" if isinstance(x, W) else f"s_waitcnt lgkmcnt({min(x.n, 15)})")
        elif isinstance(x, (VM, DS)): out.append(x.text)
        else: out.append(x.replace(" ;UNTRACKED", ""))
    return out
def groups_of(l):
    out = [[]]
    for x in l:
        out[-1].append(x)
        if isinstance(x, VM): out.append([])
    tail = out.pop()
    if tail: out[-1] += tail
    return out
def sprinkle(code, l):
    if not l: return list(code)
    gs = groups_of(l); out = []; n = len(code); m = len(gs); j = 0
    for i, x in enumerate(code):
        while j < m and i * m >= j * n: out += with_nop(gs[j]); j += 1
        out.append(x)
    for g in gs[j:]: out += with_nop(g)
    return out
def srd(p, s, lo, hi, off_s, size):
    p += [f"s_add_u32 s{s}, s{lo}, s{off_s}", f"s_addc_u32 s{s+1}, s{hi}, 0", f"s_mov_b32 s{s+2}, {size}", f"s_mov_b32 s{s+3}, 0x20000"]

def gen_main():
    p = []
    p += [f"{NAME}_kernel:", "s_cmp_ge_u32 s2, 256", "s_cbranch_scc1 L_done",
          "s_load_dwordx16 s[40:55], s[0:1], 0", "s_load_dwordx4 s[16:19], s[0:1], 64"]
    if OPT["stamp"]: p += ["s_memtime s[98:99]" if OPT["stamp"] == 6 else "s_memrealtime s[98:99]"]
    p += [f"s_and_b32 s{S_HEAD}, s2, 7", f"s_lshr_b32 s{S_QB}, s2, 3", f"s_lshr_b32 s24, s{S_QB}, 3", f"s_lshl_b32 s{S_HEAD}, s{S_HEAD}, 2",
          f"s_add_u32 s{S_HEAD}, s{S_HEAD}, s24", f"s_and_b32 s{S_QB}, s{S_QB}, 7"]
    p += ["s_getpc_b64 s[60:61]", "L_pc:", f"s_sub_u32 s60, s60, L_pc-{NAME}_kernel", "s_subb_u32 s61, s61, 0",
          f"s_mov_b32 s62, L_slow-{NAME}_kernel", "s_mov_b32 s63, 0x20000",
          "s_lshr_b32 s22, s2, 3", "s_lshl_b32 s22, s22, 12",
          "v_lshlrev_b32 v30, 4, v0",
          VM("pf", "buffer_load_dwordx4 v[128:131], v30, s[60:63], s22 offen" + (" nt" if OPT["pfnt"] else ""))]
    p += ["v_lshrrev_b32 v24, 6, v0",
          "v_and_b32 v25, 63, v0",
          f"v_readfirstlane_b32 s{S_WAVE}, v24",
          f"v_lshlrev_b32 v{V_RD}, 4, v25",
          "v_mul_u32_u24 v26, 43, v25", "v_lshrrev_b32 v26, 10, v26",
          "v_mul_u32_u24 v27, 24, v26",
          "v_sub_u32 v27, v25, v27",
          "v_lshrrev_b32 v28, 1, v24",
          "v_and_b32 v29, 1, v24",
          "v_lshlrev_b32 v30, 4, v29",
          "v_lshl_add_u32 v30, v28, 2, v30",
          "v_add_u32 v30, v30, v26",
          "v_mul_u32_u24 v30, 768, v30",
          "v_lshrrev_b32 v48, 1, v26", "v_lshlrev_b32 v48, 30, v48",
          "v_lshl_add_u32 v30, v27, 4, v30", f"v_or_b32 v{V_KLD}, v30, v48",
          f"v_lshl_or_b32 v{V_KSC}, v27, 3, v48",
          "v_mul_u32_u24 v30, 6144, v24",
          ] + (["v_mul_u32_u24 v31, 12, v25", f"v_add_u32 v{V_VLD}, v30, v31"] if V64 else [f"v_add3_u32 v{V_VLD}, v30, v{V_RD}, v48"])
    for sd, size in ((S_QK, HEADBYTES), (S_QV, HEADBYTES), (S_KS, 12288), (S_KZ, 12288), (S_VS, 4096), (S_VZ, 4096), (S_FLG, 64)):
        p += [f"s_mov_b32 s{sd+2}, {size}", f"s_mov_b32 s{sd+3}, 0x20000"]
    p += [f"s_mul_i32 s{S_PK0}, s{S_QB}, {STAGE}", f"s_add_u32 s{S_PK1}, s{S_PK0}, 6144", f"s_mov_b32 s{S_PV0}, s{S_PK0}",
          f"s_lshr_b32 s{S_PKS}, s{S_QB}, 1", f"s_mul_i32 s{S_PKS}, s{S_PKS}, 384", f"s_lshl_b32 s{S_PVS}, s{S_QB}, 6",
          f"s_lshl_b32 s24, s{S_WAVE}, 4", f"s_add_u32 s{S_PVS}, s{S_PVS}, s24",
          f"s_mul_i32 s24, s{S_HEAD}, {HEADBYTES}", f"s_mul_i32 s56, s{S_HEAD}, 12288", f"s_lshl_b32 s57, s{S_HEAD}, 12",
          f"s_lshl_b32 s58, s{S_HEAD}, 10", f"s_add_u32 s58, s58, {FLAG_OFF + 96}",
          f"s_or_b32 s{S_RET}, s{S_QB}, s{S_WAVE}"]
    p += ["s_waitcnt lgkmcnt(0)"] + istamp("karg", True)
    def base(sd, lo, off): return [f"s_add_u32 s{sd}, s{lo}, s{off}", f"s_addc_u32 s{sd+1}, s{lo+1}, 0"]
    p += base(S_QK, 42, 24) + base(S_KS, 46, 56) + base(S_KZ, 48, 56)
    kl = [k_ld(0, BX, 32, "k0a"), k_ld(1, BY, 36, "k0b")]; vl = [v_ld(0, 112, 40, "v0a"), v_ld(1, 80, 44, "v0b")]
    for x in kl[1][:2]: x.tag = "k0a"
    for x in vl[1][:2]: x.tag = "v0a"
    if OPT["ksc"]:
        for x in kl[0][2:] + kl[1][2:]: x.tag = "kraw"
        for x in kl[1][:2]: x.tag = "k0b"
        p += kl[0][2:] + kl[1][2:] + kl[0][:2] + kl[1][:2]; kl[1] = []
    else: p += kl[0][2:] + kl[0][:2] + kl[1][:2]
    p += base(S_FLG, 18, 58) + base(S_VS, 50, 57) + base(S_VZ, 52, 57) + base(S_QV, 44, 24)
    p += [f"s_mul_i32 s59, s{S_HEAD}, 786432"] + base(S_OUT, 54, 59) + base(S_Q, 40, 59)
    p += [f"s_cmp_lg_u32 s{S_RET}, 0", "s_cbranch_scc1 L_notleader0", f"s_buffer_load_dwordx16 s[40:55], s[{S_FLG}:{S_FLG+3}], 0 glc", "L_notleader0:"]
    p += kl[1][2:]
    p += [f"s_add_u32 s24, s24, {WSOFF}"] * (1 if WSOFF else 0)
    srd(p, S_WS, 18, 19, 24, HEADBYTES)
    p += [f"s_mov_b32 s{S_Q+2}, 786432", f"s_mov_b32 s{S_Q+3}, 0x20000"]
    p += [f"s_mov_b32 s{S_DBG}, s16", f"s_mov_b32 s{S_DBG+1}, s17", f"s_add_u32 s{S_PV1}, s{S_PK0}, 3072", f"s_add_u32 s{S_PV2}, s{S_PK0}, 6144"]
    p += [f"s_mov_b32 s{S_DBG+2}, 256", f"s_mov_b32 s{S_DBG+3}, 0x20000", f"s_lshl_b32 s{S_HOFF}, s{S_HEAD}, 3"]
    p += [f"s_cmp_lg_u32 s{S_RET}, 0", "s_cbranch_scc1 L_notleader", "s_waitcnt lgkmcnt(0)", f"s_mov_b32 s{S_TP}, 1"]
    for i in range(16):
        p += [f"s_lshr_b32 s{40+i}, s{40+i}, 10", f"s_min_u32 s{40+i}, s{40+i}, 31", f"s_bitset1_b32 s{S_TP}, s{40+i}"]
    p += [f"s_ff0_i32_b32 s{S_TP}, s{S_TP}", f"s_lshl_b32 s{S_TP}, s{S_TP}, 10", f"v_mov_b32 v{V_POLL}, s{S_TP}",
          "s_mov_b64 exec, 1", f"buffer_store_dword v{V_POLL}, off, s[{S_DBG}:{S_DBG+3}], s{S_HOFF} sc1 ;UNTRACKED", "s_mov_b64 exec, -1",
          "L_notleader:"]
    p += [f"s_lshl_b32 s24, s{S_QB}, 2", f"s_add_u32 s24, s24, 32", f"s_buffer_load_dword s{S_OWN}, s[{S_FLG}:{S_FLG+3}], s24 glc",
          ] + ([f"s_getreg_b32 s{S_XCC}, hwreg(HW_REG_XCC_ID, 0, 4)", f"s_lshl_b32 s{S_XCC}, s{S_XCC}, 5", f"s_mov_b32 s{S_FOFF}, {32 if OPT['l2'] == 3 else 0}"] if OPT["l2"] else
          [f"s_mov_b32 s{S_XCC}, 0", f"s_mov_b32 s{S_FOFF}, 32"])
    p += vl[0][2:] + vl[0][:2] + vl[1][:2] + (vl[1][2:] if OPT["greedy"] else []) + istamp("iss", True)
    if OPT["pre"]:
        st = OPT["pre"]
        p += [f"v_mul_u32_u24 v31, {st}, v25", f"v_mul_u32_u24 v30, 6144, v24", "v_add_u32 v31, v30, v31"]
        if st == 128: p += ["v_or_b32 v31, v31, v48"]
        p += [VM("pre", f"buffer_load_dword v132, v31, s[{S_WS}:{S_WS+3}], s{S_PK0} offen" + (" nt" if OPT["prent"] else ""))]
        if st == 64: p += ["v_add_u32 v30, 4096, v31", "s_mov_b64 exec, 0xffffffff", VM("pre", f"buffer_load_dword v133, v30, s[{S_WS}:{S_WS+3}], s{S_PK0} offen nt"), "s_mov_b64 exec, -1"]
    p += [f"s_mov_b32 s{S_OUT+2}, 786432", f"s_mov_b32 s{S_OUT+3}, 0x20000"]
    p += [f"s_lshl_b32 s24, s{S_WAVE}, 8", f"s_add_u32 s{S_HOFF}, s{S_HOFF}, s24"]
    p += ["v_mul_u32_u24 v30, 3072, v24", f"v_add_u32 v{V_DMA}, v30, v{V_RD}"]
    p += ["v_lshl_add_u32 v30, v24, 3, v26",
          "v_mul_u32_u24 v30, 384, v30",
          "v_lshlrev_b32 v31, 2, v29",
          "v_xor_b32 v31, v27, v31",
          "v_lshl_add_u32 v30, v31, 4, v30", f"v_or_b32 v{V_KST}, v30, v48",
          "v_lshlrev_b32 v30, 8, v24",
          "v_add_u32 v30, 12288, v30",
          ] + (["v_lshrrev_b32 v31, 5, v25", "v_mul_u32_u24 v31, 6144, v31", "v_add_u32 v30, v30, v31", "v_and_b32 v31, 1, v25", "v_mul_u32_u24 v31, 3072, v31", "v_add_u32 v30, v30, v31",
          "v_bfe_u32 v31, v25, 1, 4", f"v_lshl_add_u32 v{V_VST}, v31, 4, v30"] if V64 else
          ["v_lshrrev_b32 v31, 4, v25", "v_lshl_add_u32 v30, v31, 10, v30", "v_and_b32 v31, 15, v25",
          "v_lshl_add_u32 v30, v31, 4, v30", f"v_or_b32 v{V_VST}, v30, v48"])
    p += [f"s_lshl_b32 s24, s{S_QB}, 2",
          f"v_lshl_add_u32 v{V_FLAG}, v0, 2, s24", f"v_cmp_lt_u32 vcc, 0, v0", "v_mov_b32 v30, 0x40000000", "s_nop 0",
          f"v_cndmask_b32 v{V_FLAG}, v{V_FLAG}, v30, vcc"]
    p += [f"s_mul_i32 s{S_DMK}, s{S_WAVE}, 3072", f"s_add_u32 s{S_DMK}, s{S_DMK}, 12288", f"s_add_u32 s{S_DMV}, s{S_DMK}, {STAGE}",
          f"s_add_u32 s24, s{S_QB}, 1", "s_and_b32 s24, s24, 7", f"s_mul_i32 s{S_GOFFK}, s24, {STAGE}", f"s_add_u32 s{S_GOFF}, s{S_GOFFK}, 12288",
          f"s_mov_b32 s{S_RK}, {A2}", f"s_mov_b32 s{S_RV}, {B1}", f"v_add_u32 v{V_RD}, {B0}, v{V_RD}",
          f"s_mov_b32 s{S_CS}, 0x{f32bits(CSCALE):08x}", f"s_mov_b32 s{S_MASK}, 0xffff0000",
          f"s_mov_b32 s{S_BUDGET}, 100000"] + ([f"s_mov_b32 s{S_TAG+1}, 0"] if OPT["stamp"] else [])
    p += ["v_and_b32 v26, 15, v25", "v_lshrrev_b32 v27, 4, v25", "v_bfe_u32 v28, v25, 1, 3",
          "v_xor_b32 v29, v27, v28", "v_mul_u32_u24 v30, 384, v26", f"v_lshl_add_u32 v{V_RDK[0]}, v29, 4, v30",
          f"v_xor_b32 v{V_RDK[1]}, 64, v{V_RDK[0]}"]
    p += [f"s_mul_i32 s{S_QL}, s{S_WAVE}, 6144", f"s_add_u32 s{S_QL}, s{S_QL}, {B1}",
          "v_lshrrev_b32 v29, 1, v27", "v_xor_b32 v29, v29, v28", "v_lshl_add_u32 v31, v29, 4, v30",
          "v_and_b32 v29, 1, v27", "v_lshl_add_u32 v31, v29, 3, v31"]
    for kk in range(4):
        p += [f"v_xor_b32 v{VQR[kk]}, {32*kk}, v31", f"v_add_u32 v{VQR[kk]}, s{S_QL}, v{VQR[kk]}"]
    p += [f"s_lshl_b32 s24, s{S_QB}, 2", f"s_add_u32 s24, s24, s{S_WAVE}", f"s_mul_i32 s24, s24, {STAGE}"]
    for b in range(6):
        p += [f"v_add_u32 v26, {64*b}, v25", "v_mul_u32_u24 v27, 2731, v26", "v_lshrrev_b32 v27, 17, v27",
              "v_and_b32 v27, 7, v27", "v_xor_b32 v26, v26, v27", f"v_lshlrev_b32 v{VQD+b}, 4, v26", f"v_add_u32 v{VQD+b}, s24, v{VQD+b}"]
    for q in range(4): p.append(f"v_mov_b32 v{V_L[q]}, 0")
    KF = 144
    def kf_reads(): return [DS("kf", f"ds_read_b128 v[{KF+4*f}:{KF+4*f+3}], v{V_RDK[kfrag(f)[0]&1]} offset:{kfrag(f)[1]*6144 + (kfrag(f)[0]>>1)*128}") for f in range(12)]
    def qk0(qb):
        l = []
        for f in sorted(range(12), key=lambda f: kfrag(f)[::-1]):
            s, tb = kfrag(f)
            d = vr(Sq(0, qb, tb), 4)
            l.append(f"{MF} {d}, v[{KF+4*f}:{KF+4*f+3}], {Qf(qb,s)}, {'0' if s == 0 else d}")
        return l
    STF0 = "" if OPT["l2"] else STF
    def own_k(b):
        l = []
        for j in range(4):
            l += k_st(j, b, "kst", STF0)
            va = V_KST if j == 0 else V_KA + (j & 1)
            l += ["s_mov_b64 exec, s[62:63]", DS("w", f"ds_write_b128 v{va}, v[{b+4*j}:{b+4*j+3}] offset:{j*768}"), "s_mov_b64 exec, -1"]
        return l
    def own_v(b):
        l = [x for e in range(NVE) for x in v_st(e, b, "vst", STF0)]
        if V64: return l + [DS("w", f"ds_write_b128 v{V_VST}, v[{b+4*e}:{b+4*e+3}] offset:{STAGE - 12288 + e*1024}") for e in range(3)]
        l += ["s_mov_b64 exec, s[62:63]"] + [DS("w", f"ds_write_b128 v{V_VST}, v[{b+4*e}:{b+4*e+3}] offset:{STAGE - 12288 + e*3072}") for e in range(4)] + ["s_mov_b64 exec, -1"]
        return l
    p += ["s_mov_b32 s62, -1", "s_mov_b32 s63, 0xffff"]
    qa = OPT["qa"]
    qb_, qc = OPT["qb"], OPT["qc"]
    R = lambda a, b: list(range(a, b))
    if OPT["split"]:
        p += [W("k0a")] + vl[1][2:] + k_cv(0, BX, 32, BX) + [W("k0b")] + istamp("k0b", True) + k_cv(1, BY, 36, BX) + own_k(BX)
        p += tag_load() + with_nop(q_dma(R(0, qa))) + [W("v0a")] + v_cv(0, 112, 40, 112)
        p += [W("tag")] + tag_check() + ["s_waitcnt lgkmcnt(0)", "s_barrier"] + flag_post() + tag_get() + istamp("post", True)
        p += with_nop(q_dma(R(qa, qb_))) + v_cv(1, 80, 44, 112) + own_v(112) + with_nop(q_dma(R(qb_, 12))) + istamp("vst", True)
    elif OPT["greedy"]:
        p += [W("k0a")] + with_nop(q_dma(R(0, 3))) + k_cv(0, BX, 32, BX) + [W("k0b")] + istamp("k0b", True) + with_nop(q_dma(R(3, 6))) + k_cv(1, BY, 36, BX) + own_k(BX)
        p += [W("v0a")] + with_nop(q_dma(R(6, 9))) + v_cv(0, 112, 40, 112) + [W("v0b")] + with_nop(q_dma(R(9, 12))) + v_cv(1, 80, 44, 112) + own_v(112)
        p += tag_load() + with_nop(q_dma(R(12, 18))) + istamp("vst", True)
    else:
        p += [W("k0a")] + vl[1][2:] + k_cv(0, BX, 32, BX) + [W("k0b")] + istamp("k0b", True) + k_cv(1, BY, 36, BX) + own_k(BX)
        p += with_nop(q_dma(R(0, qa))) + istamp("kst", True)
        p += [W("v0a")] + sprinkle(v_cv(0, 112, 40, 112), q_dma(R(qa, qb_))) + [W("v0b")] + v_cv(1, 80, 44, 112) + ([LG("w")] if OPT["eb"] else []) + own_v(112)
        p += tag_load() + with_nop(q_dma(R(qb_, OPT["qe"]))) + istamp("vst", True)
        if OPT["eb"]: p += ["s_barrier"] + kf_reads() + [W(("q", 0))] + q_frags(0) + [LG(("qf", 0))] + qk0(0) + ["s_nop 7"] + sm_one(0, 0)
        if OPT["q3b"]: p += [W(("q", 0))] + q_frags(0) + [LG(("qf", 0))] + with_nop(q_dma(R(18, 18 + OPT["q3b"])))
    if not OPT["split"]:
        if OPT["iw"]:
            p += ["s_mov_b64 exec, 0"] + [x for w in range(3) for x in (f"s_cmp_eq_u32 s{S_WAVE}, {w}", f"s_cbranch_scc1 L_iw{w}")] + ["s_branch L_iw3", "L_iwret:", "s_mov_b64 exec, -1"]
        p += [W("tag")] + tag_check() + istamp("tag", True)
        p += ["s_waitcnt lgkmcnt(0)", "s_barrier"] + flag_post(True) + tag_get() + istamp("post", True)
    if OPT["pf2"]:
        p += [f"s_mov_b32 s{S_DBG}, s60", f"s_mov_b32 s{S_DBG+1}, s61", f"s_mov_b32 s{S_DBG+2}, L_slow-{NAME}_kernel",
              "s_lshr_b32 s24, s2, 3", f"s_mul_i32 s{S_HOFF}, s24, 43", f"s_lshr_b32 s{S_HOFF}, s{S_HOFF}, 7",
              f"s_mul_i32 s{S_RET}, s{S_HOFF}, 3", f"s_sub_u32 s24, s24, s{S_RET}", "s_lshl_b32 s24, s24, 10",
              f"s_mul_i32 s{S_HOFF}, s{S_HOFF}, 12288", f"s_add_u32 s{S_HOFF}, s{S_HOFF}, s24"]
    if not OPT["eb"]: p += kf_reads()
    ps = len(POLLSITES); POLLSITES.append(ps)
    g3n = OPT["g3n"]
    pollchk = ["s_waitcnt lgkmcnt(0)"] + smem_reduce() + [f"s_cmp_ge_u32 s{S_PT}, 16", f"s_cbranch_scc1 L_pollslow{ps}", f"L_pollok{ps}:",
          f"s_add_u32 s{S_NEED}, s{S_NEED}, 1"] + [f"s_mov_b32 s{S_FOFF}, 32"] * (OPT["l2"] == 2) + istamp("poll", True)
    sm00 = rowmax2(0, (0, 1), (V_CT, V_CT + 2)) + addneg(0, 0) + addneg(0, 1) + softmax_part(0, 0)
    qrest = R(OPT["qe"] if OPT["greedy"] == 0 else 18, 18 + g3n)
    if OPT["fs"]:
        hand = with_nop(dma_tile("k", 1, True) + dma_tile("k", 2, True) + dma_tile("k", 3, True) + dma_tile("v", 1, True)) + k_adv() + v_adv()
        def inter(mf, fill):
            out = []; fill = list(fill)
            for m in mf:
                out.append(m); cur = []
                while fill and gap_time(cur + [fill[0]]) <= 20: cur.append(fill.pop(0))
                out += cur
            return out + fill
        NPV0 = 3; rest3 = []
        p += with_nop(q_dma(R(OPT["qe"], 18)))
        if OPT["fp"]:
            NPV0 = 2; a_ = OPT["fpa"]
            if OPT["eb"]: p += [LG("tg")] + tag_use() + with_nop(q_dma(R(18, 21)))
            else: p += [W(("q", 0))] + q_frags(0) + [LG("tg")] + tag_use() + [LG(("qf", 0))] + with_nop(q_dma(R(18, 21))) + qk0(0)
            for qb in (1, 2):
                sm = [] if (qb == 1 and OPT["eb"]) else sm_one(0, qb - 1)
                p += [W(("q", qb))] + q_frags(qb) + (smem_flags() if qb == 2 else with_nop(q_dma(R(21, 24)))) + sm[:a_] + [LG(("qf", qb))] + inter(qk0(qb), sm[a_:])
            g0 = [Grp([(V_RD, (d0 + e) * 1024) for e in range(2)], [(e, ar(O(q, d0 + e), 4), vr(P(0, q), 4), "0") for q in range(2) for e in range(2)]) for d0 in range(0, 12, 2)]
            p += [rd_op(i, j, g0[i]) for i in range(2) for j in range(2)] + pollchk + hand
            p += gen_seg("S0", g0, [], [(sm_one(0, 2), 0, 23)], tasks=[("ldn", "ka", 0, 10), ("ldn", "kb", 11, 23)][:OPT["k1s"]], vmgap=2)
            sm3 = sm_one(0, 3); k3 = [i for i, x in enumerate(sm3) if x.startswith("v_sub_f32")][0]
            neg = [x for x in sm3 if x.startswith(f"v_sub_f32 v{NEGM(3)}") or (", 0, v" in x and x.startswith("v_sub"))]
            p += [W(("q", 3))] + q_frags(3) + [LG(("qf", 3))] + qk0(3) + ["s_nop 7"] + sm3[:k3] + neg
            rest3 = [x for x in sm3[k3:] if x not in neg]
        else:
            for qb in range(4):
                if qb == 3:
                    g0 = []
                    for d0 in range(0, 12, 2):
                        g0.append(Grp([(V_RD, (d0 + e) * 1024) for e in range(2)], [(e, ar(O(q, d0 + e), 4), vr(P(0, q), 4), "0") for q in range(3) for e in range(2)]))
                    p += [rd_op(i, j, g0[i]) for i in range(2) for j in range(2)] + [LG(("fr", 0), ("fr", 1))]
                    p += gen_seg("S0", g0, [], tasks=[("ldn", "ka", 0, 16), ("ldn", "kb", 17, 35)][:OPT["k1s"]], vmgap=2)
                if qb == 0 and OPT["q3b"]: p += [LG("kf")] + tag_use()
                else: p += [W(("q", qb))] + q_frags(qb) + ([LG("tg")] + tag_use() if qb == 0 else []) + (smem_flags() if qb == OPT["pq"] else []) + [LG(("qf", qb))]
                if qb < 2: p += with_nop(q_dma([x for x in R(18 + 3 * qb, 21 + 3 * qb) if x >= 18 + OPT["q3b"]]))
                p += qk0(qb) + (pollchk + hand if qb == OPT["pq"] else ["s_nop 7"]) + sm_one(0, qb)
        sp = softmax_part
        g1 = qk_tile(1, 1, [(q, q) for q in range(4)])
        gi1 = rebase(qk_full(2), V_RDK, A1 - A0)
        gi2 = [Grp([(V_RD, w * 12288 + db * 1024) for w in range(2)],
                   [x for q in range(3, NPV0 - 1, -1) for x in ((0, ar(O(q, db), 4), vr(P(0, q), 4), "0"), (1, ar(O(q, db), 4), vr(P(1, q), 4), ar(O(q, db), 4)))] +
                   [(1, ar(O(q, db), 4), vr(P(1, q), 4), ar(O(q, db), 4)) for q in range(NPV0)]) for db in range(12)]
        L2_ = len(gi2[0].mf)
        gi3 = rebase(qk_full(4), V_RDK, A2 - A1)
        gi4 = rebase(pv_seq(2), [V_RD], B1 - B0)
        p += istamp("pre-dk1", True) + [W(("dk", 1)), "s_barrier"] + [rd_op(i, j, g1[i]) for i in range(2) for j in range(2)] + [LG(("fr", 0), ("fr", 1))]
        pa = [f"v_bfe_u32 v{V_T4}, v{V_DMA}, 4, 6", f"v_lshlrev_b32 v{V_T4}, 2, v{V_T4}"] + [f"v_xor_b32 v{V_T4+j}, {16*j}, v{V_KST}" for j in (1, 2, 3)]
        p += gen_seg("S1", g1, gi1[:2], [(rest3 + (pa if OPT["pa"] else []), 0, 40)], [(31, [("dk", 3)])], [("ldn", "ka", 0, 14), ("ldn", "kb", 15, 30)][OPT["k1s"]:] +
                     ([("cv", "ka", 0, 99, OPT["fb"], 47)] if OPT["k1s"] and OPT["fb"] < 47 else []), [K_(4, 5) + (32, 46)], vmgap=2)
        p += gen_seg("S5", gi1, gi2[:2], [(sp(1, 0) + sp(1, 1) + [("dl", 54), ("nb", 47)] + sp(2, 0), 2, 95)], [(GBAR, [("dv", 1)])],
                     ([("cv", "kb", 0, 99, OPT["fa"], 95), ("ldn", "va", 20, 40)] if (OPT["k1s"] and OPT["fb"] < 47) else
                      [("cv", "ka", 0, 99, OPT["fa"], 60), ("cv", "kb", 0, 99, 61, 95), ("ldn", "va", 20, 40, "raw"), ("ldn", "va", 62, 76, "sc")]), [V_(2, 3) + (0, 18)])
        p += gen_seg("i2", gi2, gi3[:2], [(sp(2, 1) + sp(3, 0), 0, 12 * L2_ - 1)], [(10 * L2_ - 1, [("dk", 5)])],
                     [("kst", j, 2 * L2_ * j + 1) for j in range(4)] + [("ld", "vb", 6 * L2_ + 4, 12 * L2_ - 1)], [], vmgap=2)
        p += gen_seg("i3", gi3, gi4[:2], [(sp(3, 1) + [("dl", 57), ("nb", 47)] + sp(4, 0), 0, 95)], [(15, []), (GBAR, [("dv", 3)])],
                     [("post", "kst", 0), ("cv", "va", 0, 99, 0, 95)], [K_(6, 7) + V_(4, 5) + (18, 90)])
        p += [f"s_mov_b32 s{S_CNT}, {7 - OPT['lastp']}"]
        p += gen_seg("i4", gi4, seg_groups(5)[:2], [(sp(4, 1) + sp(5, 0), 0, 94)], [(GBAR, [("dk", 7)])],
                     [("ld", "ka", 0, 30), ("cv", "vb", 0, 99, 20, 94), ("step", "q", 30, 70), ("pollld", OPT["pl4"], OPT["pl4"] + 8)], [V_(6, 7) + (32, 74)],
                     endops=["s_nop 0", "s_branch L_join"])
    elif OPT["split"]:
        ps2 = len(POLLSITES); POLLSITES.append(ps2)
        pollchk2 = ["s_waitcnt lgkmcnt(0)"] + smem_reduce() + [f"s_cmp_ge_u32 s{S_PT}, 16", f"s_cbranch_scc1 L_pollslow{ps2}", f"L_pollok{ps2}:",
              f"s_add_u32 s{S_NEED}, s{S_NEED}, 1"] + istamp("pollV", True)
        p += [W(("q", 0))] + q_frags(0) + [LG("tg")] + tag_use() + [LG(("qf", 0))] + smem_flags() + qk0(0) + pollchk
        p += with_nop(dma_tile("k", 1, True)) + k_adv() + v_adv()
        p += [W("vst"), "s_barrier"] + flag_post() + istamp("postV", True)
        p += with_nop(dma_tile("k", 2, True) + dma_tile("k", 3, True))
        p += [W(("q", 1))] + q_frags(1) + with_nop(q_dma(R(12, 15))) + [LG(("qf", 1))] + qk0(1) + ["s_nop 7"]
        g0 = pv_unchained(0, True)[:6]
        p += [rd_op(i, j, g0[i]) for i in range(2) for j in range(2)] + sprinkle(sm00, q_dma(R(15, 18 + g3n))) + smem_flags() + [LG(("fr", 0), ("fr", 1))]
        p += gen_seg("S0", g0, [], tasks=[("q", R(18 + g3n, 24), 0, 22)] if g3n < 6 else [], vmgap=2) + pollchk2
        p += with_nop(dma_tile("v", 1, True))
        g3n = 6
    elif OPT["own1"] == 2:
        p += [W(("q", 0))] + q_frags(0) + [LG("tg")] + tag_use() + with_nop(q_dma(qrest[:3])) + [LG(("qf", 0))] + qk0(0)
        p += [W(("q", 1))] + q_frags(1) + smem_flags() + with_nop(q_dma(qrest[3:])) + [LG(("qf", 1))] + qk0(1) + pollchk
        g0 = pv_unchained(0, True)[:6]
        p += [rd_op(i, j, g0[i]) for i in range(2) for j in range(2)]
        p += sprinkle(sm00, dma_tile("k", 1, True) + dma_tile("k", 2, True) + dma_tile("k", 3, True) + dma_tile("v", 1, True)) + k_adv() + v_adv() + [LG(("fr", 0), ("fr", 1))]
        p += gen_seg("S0", g0, [], tasks=[("q", R(18 + g3n, 24), 0, 22)] if g3n < 6 else [], vmgap=2)
        g3n = 6
    elif OPT["own1"]:
        pre0 = [x for x in qrest[:3] if x < 18]; post0 = [x for x in qrest[:3] if x >= 18]
        p += [W(("q", 0))] + q_frags(0) + [LG("tg")] + tag_use() + with_nop(q_dma(pre0)) + [LG(("qf", 0))] + with_nop(q_dma(post0)) + qk0(0)
        if OPT["q0f"]: p += ["s_nop 7"] + sm_one(0, 0); sm00 = sm_one(0, 1)
        p += [W(("q", 1))] + q_frags(1) + with_nop(q_dma(qrest[3:6])) + [LG(("qf", 1))] + qk0(1) + ["s_nop 7"]
        g0 = pv_unchained(0, True)[:6]
        p += [rd_op(i, j, g0[i]) for i in range(2) for j in range(2)] + sprinkle(sm00, q_dma(qrest[6:])) + smem_flags() + [LG(("fr", 0), ("fr", 1))]
        p += gen_seg("S0", g0, []) + pollchk
        p += with_nop(dma_tile("k", 1, True) + dma_tile("k", 2, True) + dma_tile("k", 3, True) + dma_tile("v", 1, True)) + k_adv() + v_adv()
        if OPT["qf"]: p += with_nop(q_dma(R(18 + g3n, 24))); g3n = 6
    else:
        p += [W(("q", 0))] + q_frags(0) + [LG("tg")] + tag_use() + [W(("q", 1))] + q_frags(1) + smem_flags()
        p += [LG(("qf", 0))] + with_nop(q_dma(qrest)) + pollchk
        p += with_nop(dma_tile("k", 1, True)) + k_adv() + v_adv()
        p += sprinkle(qk0(0) + qk0(1), dma_tile("k", 2, True)) + ["s_nop 7"]
        p += sprinkle(sm00, dma_tile("k", 3, True) + dma_tile("v", 1, True))
    if not OPT["fs"]:
        sp = softmax_part
        g1 = qk_half(0, ws=(1,))
        g2 = rebase(qk_half(1), V_RDK, A1 - A0)
        g3 = pv_unchained(0, True)[6 if OPT["own1"] else 0:]
        g4 = rebase(pv_unchained(1), [V_RD], B1 - B0)
        g5 = rebase(qk_half(2, True), V_RDK, A0 - A1) + rebase(qk_half(3), V_RDK, A1 - A0)
        gi3 = rebase(qk_full(4), V_RDK, A2 - A1)
        gi4 = rebase(pv_seq(2, True), [V_RD], B0 - B1) + rebase(pv_seq(3), [V_RD], B1 - B0)
        p += istamp("pre-dk1", True) + [W(("dk", 1)), "s_barrier"] + [rd_op(i, j, g1[i]) for i in range(2) for j in range(2)]
        p += [LG(("fr", 0), ("fr", 1))]
        p += gen_seg("S1", g1, g2[:2], [], [(15, [("dk", 3)])], [], [V_(2, 3) + (0, 21)], vmgap=2)
        p += gen_seg("S2", g2, g3[:2], [(sp(0, 1), 3, 47)], [(39, [("dv", 3)])] if OPT["own1"] else [], ([("q", R(18 + g3n, 24), 0, 24)] if g3n < 6 else []) + [("ldn", "ka", 25 if g3n < 6 else 0, 47)])
        if OPT["own1"]: p += gen_seg("S3", g3, g4[:2], [(sp(1, 0), 0, 23)], [], [("ldn", "kb", 0, 23)])
        else: p += gen_seg("S3", g3, g4[:2], [(sp(1, 0), 0, 47)], [(15, [("dv", 3)])], [("ldn", "kb", 0, 22), ("ldn", "va", 23, 46, "raw")])
        p += gen_seg("S4", g4, g5[:2], [(sp(1, 1), 0, 21)], [], [("ldn", "va", 0, 30, "raw")] if OPT["own1"] else [], extra=[Stream([W(("q", 2))] + q_frags(2) + [W(("q", 3))] + q_frags(3), 16, 46)])
        p += istamp("pre-S5", True) + ["s_waitcnt lgkmcnt(0)", "s_barrier"]
        p += gen_seg("S5", g5, gi3[:2], [(rowmax2(2, (2, 3), (V_T, V_T + 2)), 27, 45), (addneg(2, 0) + addneg(2, 1) + sp(2, 0) + addneg(2, 2) + addneg(2, 3) + sp(2, 1), 46, 95)],
                     [(GBAR + 8, [("dk", 5)])], [("cv", "ka", 0, 99, 0, 34), ("cv", "kb", 0, 99, 35, 72), ("kst", 0, 73), ("kst", 1, 77), ("kst", 2, 89), ("kst", 3, 93),
                     ("ldn", "va", 36, 60, "sc")], [K_(4, 5) + (1, 24)])
        p += gen_seg("i3", gi3, gi4[:2], [(sp(3, 0) + sp(3, 1), 0, 54), (sp(4, 0), 55, 95)], [(OPT["pb"], []), (GBAR, [])],
                     [("ld", "vb", 0, 22), ("post", "kst", 0), ("cv", "va", 0, 99, 10, 95)], [K_(6, 7) + V_(4, 5) + (24, 90)])
        p += [f"s_mov_b32 s{S_CNT}, {7 - OPT['lastp']}", f"s_mul_i32 s{S_RC}, s{S_QB}, {STAGE}", f"s_mov_b32 s{S_RD}, 12288"]
        p += gen_seg("i4", gi4, seg_groups(5)[:2], [(sp(4, 1) + sp(5, 0), 0, 94)], [(47, []), (GBAR + 8, [("dk", 7)])],
                     [("ld", "ka", 0, 30), ("cv", "vb", 0, 99, 30, 94), ("step", "q", 30, 70), ("pollld", OPT["pl4"], OPT["pl4"] + 8)], [V_(6, 7) + (52, 84)],
                     endops=["s_nop 0", "s_branch L_join"])
    p += [".p2align 6"] + ["s_nop 0"] * OPT.get("pad", 0) + ["L_loop:"]
    pro_ = p
    first57, tail = gen_tail()
    bodyA = []
    for k in (1, 2, 3, 4, 5, 6, 7, 0):
        if k == 5: bodyA.append("L_join:"); jpos = len(bodyA)
        eo = [f"s_sub_u32 s{S_CNT}, s{S_CNT}, 1", f"s_cmp_lg_u32 s{S_CNT}, 0", "s_cbranch_scc1 L_loop"] if k == 0 else ()
        t, d = steady(k)
        if OPT["ab"] & 8: d = []
        if OPT["ab"] & 16: t = [x for x in t if x[0] not in ("cv", "kst", "vst", "ld")]
        if OPT["ab"] & 1024: t = [x for x in t if not (x[0] in ("cv", "ld") and x[1] in ("va", "vb")) and x[0] != "vst"]
        if OPT["ab"] & 128: t = [x for x in t if x[0] not in ("cv",)]
        if OPT["ab"] & 256: t = [x for x in t if x[0] not in ("kst", "vst")]
        if OPT["ab"] & 512: t = [x for x in t if x[0] not in ("ld",)]
        bars = None
        if OPT["nb6"]:
            dk = lambda *x: [("dk", i) for i in x]; dv = lambda *x: [("dv", i) for i in x]
            bars = {0: [], 4: [], 7: [(GBAR, dv(6, 7) + dk(2, 3))], 3: [(GBAR, dv(2, 3) + dk(6, 7))]}.get(k)
        bodyA += gen_iter(16 + k, t, d, name=f"k{k}", endops=eo, bars=bars)
    lastt = []
    if OPT["lastp"]:
        for k in (1, 2, 3, 4, 5, 6, 7, 0):
            t, d = steady(k)
            t = [x for x in t if not ((x[0] in ("ld", "cv") and x[1] == "ka") or (x[0] in ("ld", "cv") and x[1] == "kb" and k != 1) or x[:2] == ("ld", "va") or x[0] == "pf")]
            dk = lambda *x: [("dk", i) for i in x]; dv = lambda *x: [("dv", i) for i in x]
            bars = {0: [], 4: [], 7: [(GBAR, dv(6, 7) + dk(2, 3))], 3: [(GBAR, dv(2, 3) + dk(6, 7))]}.get(k) if OPT["nb6"] else None
            if k == 0 and OPT["z0"]: bars = [(15, dk(5))]; d = [V_(0, 1) + K_(6, 7) + (16, 90)]
            ex = [Stream([f"v_accvgpr_read_b32 v{O0(db)+r}, a{O(0, db)+r}" for db in range(12) for r in range(4)], 4, 95)] if (k == 7 and OPT["om0"]) else []
            OM[0] = k == 0
            lastt += gen_iter(16 + k, t, d, name=f"z{k}", bars=bars, extra=ex)
            OM[0] = False
    tail = lastt + tail
    assert OPT["qo"] or [g.rd for g in first57] == [g.rd for g in seg_groups(17)[:2]]
    tailc = tail + ["L_fin:"]
    resolve(pro_ + bodyA[jpos:] + bodyA + bodyA + tailc)
    if OPT["cap"]: pro_ = pace(pro_, OPT["cap"] / 4)
    P_ = Prog()
    P_.extend(fin(pro_))
    a0 = len(P_.ins); P_.extend(fin(bodyA)); a1 = len(P_.ins)
    P_.extend(fin(tailc))
    p = P_
    if OPT["stamp"]:
        p("s_waitcnt vmcnt(0) lgkmcnt(0)")
        p.extend(istamp("end"))
        p("s_waitcnt lgkmcnt(0)")
        p.extend(istamp("end2"))
        p(f"v_writelane_b32 v{V_STAMP}, s{S_TAG+1}, 63")
        p(f"v_writelane_b32 v{V_STAMP}, s{S_BUDGET}, 62"); p(f"v_writelane_b32 v{V_STAMP}, s{S_NEED}, 61"); p(f"v_writelane_b32 v{V_STAMP}, s101, 60"); p(f"v_writelane_b32 v{V_STAMP}, s100, 59")
        p("s_add_u32 s8, s18, 0xfa00000"); p("s_addc_u32 s9, s19, 0"); p("s_mov_b32 s10, 1048576"); p("s_mov_b32 s11, 0x20000")
        p("s_lshl_b32 s24, s2, 2"); p(f"s_add_u32 s24, s24, s{S_WAVE}"); p("s_lshl_b32 s24, s24, 8")
        p(f"v_bfe_u32 v32, v{V_DMA}, 4, 6"); p("v_lshlrev_b32 v32, 2, v32")
        p(f"buffer_store_dword v{V_STAMP}, v32, s[8:11], s24 offen")
        if OPT["stamp"] == 8: STAMPS.sort(key=lambda n: 0)
        open(sys.argv[1] + ".stamps", "w").write("\n".join(order_stamps()))
    if OPT["calx"]:
        p("s_waitcnt vmcnt(0)")
        p("L_cal:")
        p("s_memrealtime s[40:41]")
        p("s_waitcnt lgkmcnt(0)")
        p("s_sub_u32 s40, s40, s100")
        p("s_cmp_lt_u32 s40, 10000")
        p("s_cbranch_scc1 L_cal")
    p("L_done:")
    p("s_endpgm")
    main_end0 = len(p.ins)
    for ps in POLLSITES: p.extend(poll_slow(ps))
    p.extend(tag_slow())
    main_end = len(p.ins)
    p.extend(gen_slow())
    slow_end = len(p.ins)
    ji = [i for i, x in enumerate(p.ins) if x.text == "L_join:"][0]
    lin = p.ins[:a0] + p.ins[ji:a1] + p.ins[a0:main_end0]
    sl = [i for i, x in enumerate(p.ins) if x.text == "L_slowloop:"][0]
    bi = [i for i, x in enumerate(p.ins) if x.text == "s_cbranch_scc1 L_slowloop"][0]
    probs = check_hazards(lin, "main") + check_hazards(p.ins[main_end:bi+1] + p.ins[sl:slow_end], "slow") + check_hazards(p.ins[main_end0:main_end], "aux")
    for x in probs: print(x, file=sys.stderr)
    return p

def kd(name, vgpr, sgpr, accum):
    return f""".amdhsa_kernel {name}
  .amdhsa_next_free_vgpr {vgpr}
  .amdhsa_next_free_sgpr {sgpr}
  .amdhsa_accum_offset {accum}
  .amdhsa_group_segment_fixed_size 0
  .amdhsa_kernarg_size 80
  .amdhsa_user_sgpr_count 2
  .amdhsa_user_sgpr_kernarg_segment_ptr 1
  .amdhsa_system_sgpr_workgroup_id_x 1
.end_amdhsa_kernel
"""
def build_text(body):
    o = HEADER + f"; @launch grid=(256,1,1) block=(256,1,1) lds={LDS_BYTES}\n" + '.amdgcn_target "amdgcn-amd-amdhsa--gfx950"\n.text\n'
    o += f".globl {NAME}_kernel\n.p2align 8\n.type {NAME}_kernel,@function\n" + body
    return o + '.section .rodata,"a"\n.p2align 6\n' + kd(NAME + "_kernel", 512, 102, 256)
def addresses(lines):
    import subprocess, types, ctypes
    _o = ctypes.CDLL
    class F:
        def __getattr__(s, n):
            x = types.SimpleNamespace(); object.__setattr__(s, n, x); return x
    ctypes.CDLL = lambda n, *a, **k: (F() if "amdhip" in n else _o(n, *a, **k))
    sys.path.insert(0, "cdna_kernels")
    import cdna_launch as cl
    t = []
    for i, l in enumerate(lines):
        if l.strip().startswith("v_"): t.append(f"L_adr{i}:")
        t.append(l)
    open("_a.s", "w").write(cl.with_harness_metadata(build_text("\n".join(t) + "\n"), NAME + "_kernel", 10, launch_lists=True))
    subprocess.run([cl.ROCM_CLANG, "-x", "assembler", "-target", "amdgcn-amd-amdhsa", "-mcpu=gfx950", "_a.s", "-o", "_a.co"], check=True)
    r = subprocess.run(["llvm-objdump", "-t", "_a.co"], capture_output=True, text=True).stdout
    return {int(x.split()[-1][5:]): int(x.split()[0], 16) for x in r.split("\n") if "L_adr" in x}
def add_stubs(text):
    base = text.rstrip("\n").split("\n")
    lo = base.index("L_iwret:"); hi = base.index("L_fin:"); l0 = base.index("L_loop:")
    l1 = max(i for i, l in enumerate(base) if l.strip() == "s_cbranch_scc1 L_loop")
    pos = []
    for it in range(6):
        lines = []; idx = []
        chains = [[k for k in range(len(pos)) if k % 4 == w] for w in range(4)]
        nxt = {}
        for w in range(4):
            for a, b in zip(chains[w], chains[w][1:] + [None]): nxt[a] = f"L_pg{b}" if b is not None else "L_iwret"
        for i, l in enumerate(base):
            idx.append(len(lines)); lines.append(l)
            if i in pos:
                k = pos.index(i)
                lines += ([f"L_iw{k}:"] if k < 4 else []) + [f"L_pg{k}:", f"    s_cbranch_execz {nxt[k]}"]
        if len(pos) < 4: lines += [x for w in range(len(pos), 4) for x in (f"L_iw{w}:", "    s_branch L_iwret")]
        ad = addresses(lines); inv = {j: i for i, j in enumerate(idx)}
        first = min(i for i, l in enumerate(base) if l.strip().startswith("v_mfma") and "a[0:3]" in l)
        mf = sorted((a, inv[j]) for j, a in ad.items() if lo < inv[j] < hi and (inv[j] < first or base[inv[j]].strip().startswith("v_mfma")))
        new = [min(i for a, i in mf if i > base.index("L_join:"))]
        pg = mf[0][0] >> 12
        for a, i in mf:
            if (a + 8) >> 12 > pg:
                pg = (a + 8) >> 12
                if OPT["iw"] == 2 or not (l0 < i < l1): new.append(i)
        new = sorted(set(new))
        if new == pos: break
        pos = new
    print("page stubs:", len(pos), file=sys.stderr)
    return "\n".join(lines) + "\n"
out = HEADER
out += f"; @launch grid=(256,1,1) block=(256,1,1) lds={LDS_BYTES}\n"
out += '.amdgcn_target "amdgcn-amd-amdhsa--gfx950"\n.text\n'
body_ = gen_main().text()
if OPT["iw"]: body_ = add_stubs(body_)
out += f".globl {NAME}_kernel\n.p2align 8\n.type {NAME}_kernel,@function\n" + body_
out += '.section .rodata,"a"\n.p2align 6\n' + kd(NAME + "_kernel", 512, 102, 256)
open(sys.argv[1], "w").write(out)
```

```python
import sys, math
from asmlib import *

NAME = "standalone__kv_cache_quant_int4_int2_kv_with_per_channel_or_per_token_scales__prompt"
OPT = dict(stamp=0, vmgap=4, sb=6, sa=6, ahead=8, thr=64, pf2=0, calx="", qa=6, plv=2, plk=10, ckv=1, ckk=1, tden=24, touch=0, w0poll=0, cap=48, qb=6, q3e=1, ksc=0, few=1, qc=15, pb=39, pl4=40, l2=3, k1e=0, greedy=0, g3n=3, pre=0, own1=1, ab=0, pk=0, split=0, prent=1, bal=1, flex=1, w2=0, dense="S61,S5,S2,S3,S4", dx=4, dvg=2, f3=1, pvs=1, qo=0, po=0, x2c=12, sst=1, q0f=1, nb6=1, tv=1, omv=0, ldc=8, rs=0, scnt=0, iw=2, pfnt=0, v64=1, lastp=1, lmf=1, fs=1, pq=2, fa=20, k1s=0, fb=99, pa=1, twop=0, llag=24, w5=40, z0=1, q3b=0, fp=1, fpa=14, eb=0, bm=1, snk=3, cap2=20, cap2e=0, cap2p=1, om0=0, lva=70, qe=15, qf=0, ed=200, ed1=250, cut="22,46,6,42,10,30,10")
for a in sys.argv[2:]:
    k, v = a.split("="); OPT[k] = int(v) if v.lstrip("-").isdigit() else v
NS = 6
STAGE = 24576
HEADBYTES = 64 * STAGE
RING = NS * STAGE
LDS_BYTES = RING + 128
A0, B0, A1, B1, A2, B2 = [i * STAGE for i in range(6)]
CSCALE = (192.0 ** -0.5) * math.log2(math.e)
HEADER = open("cdna_kernels/" + NAME + ".s.ref").read().split("; Override launch geometry")[0]
MF = "v_mfma_f32_16x16x32_bf16"
V64 = OPT["v64"]; NVE = 3 if V64 else 4
NCH = 2 if V64 else 3
def chunk_dbs(n): return list(range(6 * n, 6 * n + 6)) if V64 else [3 * e + n for e in range(4)]

V_FVAL = 0; V_RD = 1; V_RDK = [2, 3]; V_DMA = 4; V_L = [5, 6, 7, 8]
V_KLD = 9; V_KSC = 10; V_KST = 11; V_VLD = 12; V_FLAG = 13; V_RD2 = 59; V_RD3 = 60
V_T = 16; NTP = 2
V_VST = 15; V_STAMP = 14; V_T4 = 20
V_FR = 24; NFS = 6
V_CT = 48; V_VO = 52; V_RS = [56, 60]; BX = 224; BY = 240; BZ = 144
V_POLL = V_VO; V_KA = V_VO + 2
UNIT = [64, 80, 160, 176]; HI = [96, 112]
VQD = 136; VQR = [22, 23, 142, 143]
def Sq(t, sl, tb): return (UNIT[t % 4] if tb == 0 else HI[t % 2]) + 4 * sl
def P(t, sl): return UNIT[t % 4] + 4 * sl
def NEGM(qb): return 128 + 4 * qb
def O(qb, db): return (qb * 12 + db) * 4
def Qf(qb, s, half=None):
    i = qb * 6 + s
    base, f = (192 + 4 * i, ar) if i < 16 else (192 + 4 * (i - 16), vr)
    return f(base, 4) if half is None else f(base + 2 * half, 2)
def FR(f): return vr(V_FR + 4 * (f % NFS), 4)

S_RDELTA = 3; S_WS = 4; S_Q = 8; S_OUT = 12; S_FLG = 20
S_WAVE = 25; S_DMK = 26; S_GOFF = 27; S_RK = 28; S_TMP = 29; S_RV = 30; S_CNT = 31; S_GOFFK = 32
S_PK0 = 33; S_PK1 = 34; S_PV0 = 35; S_PKS = 36; S_PVS = 37; S_CS = 38; S_RET = 39; S_PV1 = 16; S_PV2 = 17
S_QL = 40; S_QS = 41; S_TAG = 42; S_FOFF = 44; S_XCC = 45; S_OWN = 46; S_RC = 46; S_RD = 47
S_PT = 48; S_DMV = 56; S_TK = 57; S_TV = 58; S_TP = 59
S_QK = 64; S_QV = 68; S_KS = 72; S_KZ = 76; S_VS = 80; S_VZ = 84; S_DBG = 88
S_NEED = 92; S_HOFF = 93; S_HEAD = 94; S_QB = 95; S_BUDGET = 96; S_MASK = 97
WSOFF = OPT.get("wsoff", 0) << 20
FLAG_OFF = WSOFF + (49 << 20)
SC1 = {0: " sc1", 1: "", 2: " nt", 3: " sc0", 4: " sc1 nt", 5: " sc0 sc1"}[OPT.get("dmaf", 0)]; NTKV = " nt"; NTQ = " nt"; STF = " sc1" if not OPT.get("stp") else ""; OF = {0: " sc0 sc1", 1: " sc1", 2: " sc1 nt", 3: " sc0 sc1 nt"}[OPT.get("of", 0)]

STAMPS = []
def istamp(name, force=False):
    if OPT["calx"] == name: return ["s_memrealtime s[100:101]"]
    if OPT["stamp"] not in (6, 8, 9): return []
    if OPT["stamp"] == 8 and name.startswith(("k", "z")) and not force: return []
    if OPT["few"] and force and name not in ("karg", "k0b", "vst", "tag", "post", "poll", "postV", "pollV", "pre-dk1"): return []
    if OPT["stamp"] != 8 and force: return []
    STAMPS.append(name)
    return ["s_waitcnt lgkmcnt(0)"] * (1 if force else 0) + [f"v_mov_b32_dpp v{V_STAMP}, v{V_STAMP} wave_shr:1 row_mask:0xf bank_mask:0xf", f"v_writelane_b32 v{V_STAMP}, s98, 0",
            ("s_memtime" if OPT["stamp"] == 6 else "s_memrealtime") + " s[98:99]"]

def order_stamps():
    l = list(STAMPS); out = []
    if "S62" in l:
        l.remove("S61"); l.insert(l.index("S62"), "S61")
    for n in l:
        if "." in n: continue
        out.append(n); out += [m for m in l if m.startswith(n + ".")]
    return out
class W:
    def __init__(self, *tags): self.tags = tags
class VM:
    def __init__(self, tag, text): self.tag = tag; self.text = text
class LG:
    def __init__(self, *tags): self.tags = tags
class DS:
    def __init__(self, tag, text): self.tag = tag; self.text = text

def mode_of(t):
    if OPT["fs"] and t < 4: return "f"
    return {0: "a", 1: "a", 2: "b", 3: "b", 58: "a", 59: "a", 60: "a", 61: "b", 62: "b", 63: "b"}.get(t, "f")
def slot_q(t, sl):
    m = mode_of(t)
    return sl if m == "f" else (sl & 1) + (0 if m == "a" else 2)
ONES = 20
def softmax_part(t, half, lm=False):
    if lm:
        l = [x for x in softmax_part(t, half) if not x.startswith("v_add")]
        out = []
        for x in l:
            out.append(x)
        k = [i for i, x in enumerate(out) if x.startswith("v_cvt_pk")][3]
        mm = lambda sl: f"{MF} v[{RL[slot_q(t, sl)]}:{RL[slot_q(t, sl)]+3}], v[{P(t, sl)}:{P(t, sl)+3}], v[{ONES}:{ONES+3}], " + ("0" if (t, half) == (61, 1) else f"v[{RL[slot_q(t, sl)]}:{RL[slot_q(t, sl)]+3}]")
        return out[:k + 3] + [mm(2 * half)] + out[k + 3:] + ["s_nop 1", mm(2 * half + 1)]
    flat = []; prev = None
    for gp in range(8):
        sl = 2 * half + gp // 4; pi = gp % 4; l = V_L[slot_q(t, sl)]
        t0 = V_T + 2 * (gp % NTP); t1 = t0 + 1
        src = Sq(t, sl, pi >> 1) + 2 * (pi & 1)
        E = [f"v_exp_f32 v{t0}, v{src}", f"v_exp_f32 v{t1}, v{src+1}"]
        A = [f"v_add_f32 v{l}, v{l}, v{t0}", f"v_add_f32 v{l}, v{l}, v{t1}"]
        C = [f"v_cvt_pk_bf16_f32 v{P(t,sl)+pi}, v{t0}, v{t1}"]
        if 16 <= t < 26:
            if OPT["ab"] & 1: A = []
            if OPT["ab"] & 2: E = [x.replace("v_exp_f32", "v_mov_b32") for x in E]
            if OPT["ab"] & 32: C = []
            if OPT["ab"] & 64: E = []; A = []; C = []
        flat += E if prev is None else E[:1] + prev[0] + E[1:] + prev[1]
        prev = (A, C)
    return flat + prev[0] + prev[1]

class Grp:
    def __init__(self, rd, mf): self.rd = rd; self.mf = mf; self.reb = []
def qk_tile(t, w, slots, czero=False):
    gs = []
    if OPT["qo"] == 1 and len(slots) == 4:
        for s_ in range(6):
            rd = [(V_RDK[s_ & 1], w * 12288 + tb * 6144 + (s_ >> 1) * 128) for tb in range(2)]
            mf = []
            for sl, qb in slots:
                for tb in range(2):
                    d = vr(Sq(t, sl, tb), 4)
                    mf.append((tb, d, Qf(qb, s_), (("0" if czero else vr(NEGM(qb), 4)) if s_ == 0 else d)))
            gs.append(Grp(rd, mf))
        return gs
    for gi in range(6):
        s0 = 2 * (gi >> 1); tb = gi & 1
        rd = [(V_RDK[j], w * 12288 + tb * 6144 + (s0 >> 1) * 128) for j in range(2)]
        mf = []
        for sl, qb in slots:
            d = vr(Sq(t, sl, tb), 4)
            x = qb & 1 if OPT.get("snk", 0) & 2 else 0
            mf += [(x, d, Qf(qb, s0 + x), (("0" if czero else vr(NEGM(qb), 4)) if s0 == 0 else d)), (1 - x, d, Qf(qb, s0 + 1 - x), d)]
        gs.append(Grp(rd, mf))
    return gs
def qk_full(t): return [g for w in range(2) for g in qk_tile(t + w, w, [(q, q) for q in range(4)])]
def qk_half(t, czero=False, ws=(0, 1)):
    return [g for w in ws for g in qk_tile(t, w, [(2 * w + j, slot_q(t, j)) for j in range(2)], czero)]
def OV(qb, db): return (BY if qb == 2 else BZ) + 4 * (db // 3)
OM = [False]
def O0(db): return (BX + 4 * db) if db < 8 else (BZ + 4 * (db - 8))
def pv_grp(t, db, first=False, va=V_RD):
    m = mode_of(t); mf = []
    for qb in (range(4) if m == "f" else [slot_q(t, 0), slot_q(t, 1)]):
        d = ar(O(qb, db), 4)
        if OPT["omv"] and t >= 61 and db % 3 == 2: d = " " + vr(OV(qb, db), 4)
        if OPT["om0"] and qb == 0 and (t >= 56 or OM[0]): d = " " + vr(O0(db), 4)
        for w0 in range(2):
            w = w0 ^ (qb & 1 if OPT.get("snk", 0) & 1 else 0)
            b = P(t + w, qb) if m == "f" else P(t, 2 * w + (qb & 1))
            mf.append((w, d, vr(b, 4), "0" if (first and w0 == 0) else d))
    return Grp([(va, w * 12288 + db * 1024) for w in range(2)], mf)
def pv_seq(t, first=False):
    if OPT["po"] == 1 and mode_of(t) == "f":
        gs = []
        for d0 in range(0, 12, 2):
            for w in range(2):
                mf = [(e, ar(O(qb, d0 + e), 4), vr(P(t + w, qb), 4), ar(O(qb, d0 + e), 4)) for qb in range(4) for e in range(2)]
                gs.append(Grp([(V_RD, w * 12288 + (d0 + e) * 1024) for e in range(2)], mf))
        return gs
    if OPT["po"] == 2 and mode_of(t) == "f":
        gs = []
        for db in range(12):
            mf = [(w, ar(O(qb, db), 4), vr(P(t + w, qb), 4), ar(O(qb, db), 4)) for w in range(2) for qb in range(4)]
            gs.append(Grp([(V_RD, w * 12288 + db * 1024) for w in range(2)], mf))
        return gs
    return [pv_grp(t, db, first) for db in range(12)]
def pv_unchained(t, first=False):
    gs = []
    for w in range(2):
        for d0 in range(0, 12, 2):
            mf = []
            for j in range(2):
                qb = slot_q(t, j)
                for e in range(2):
                    d = ar(O(qb, d0 + e), 4)
                    mf.append((e, d, vr(P(t, 2 * w + j), 4), "0" if (first and w == 0) else d))
            gs.append(Grp([(V_RD, w * 12288 + (d0 + e) * 1024) for e in range(2)], mf))
    return gs
def rebase(gs, regs, delta):
    op = "v_add_u32" if delta >= 0 else "v_subrev_u32"
    gs[0].reb += [f"{op} v{r}, {abs(delta)}, v{r}" for r in regs]
    return gs
def rd_op(gi, j, g):
    f = 2 * gi + j
    return DS(("fr", f % NFS), f"ds_read_b128 {FR(f)}, v{g.rd[j][0]} offset:{g.rd[j][1]}")

def dma_tile(part, pos, peel=False):
    dm, go, tmp = (S_DMK, S_GOFFK, S_TK) if part == "k" else (S_DMV, S_GOFF, S_TV)
    l = [f"s_mov_b32 m0, s{dm}"]
    for j in range(3):
        l.append(VM(("d" + part, pos % 8), f"buffer_load_dwordx4 v{V_DMA}, s[{S_WS}:{S_WS+3}], s{go} offen offset:{j*1024}{SC1} lds"))
    if peel and pos < 7:
        l += [f"s_add_u32 s{go}, s{go}, {STAGE}", f"s_sub_u32 s{tmp}, s{go}, {8*STAGE}", f"s_min_u32 s{go}, s{go}, s{tmp}"]
    elif peel and pos == 7:
        l += [f"s_mov_b32 s{go}, {8*STAGE + (0 if part == 'k' else 12288)}"]
    else:
        l += [f"s_add_u32 s{go}, s{go}, {STAGE}"]
    if pos % 2 == 0: l += [f"s_add_u32 s{dm}, s{dm}, 12288"]
    else: l += [f"s_add_u32 s{dm}, s{dm}, {2*STAGE - 12288}", f"s_sub_u32 s{tmp}, s{dm}, {RING}", f"s_min_u32 s{dm}, s{dm}, s{tmp}"]
    return l
QOFF = [STAGE, 0, 2 * STAGE, STAGE]
def q_dma(lst):
    l = []
    if not lst: return l
    for i in lst:
        a, b = divmod(i, 6)
        l += [f"s_mov_b32 s{S_QS}, {a*6144}"] * (1 if (b == 0 or i == lst[0]) else 0)
        l += [f"s_add_u32 m0, s{S_QL}, {QOFF[a] + b*1024}",
              VM(("q", a), f"buffer_load_dwordx4 v{VQD+b}, s[{S_Q}:{S_Q+3}], s{S_QS} offen{NTQ} lds")]
    return l
def q_frags(qb):
    l = []
    for s in range(6):
        for h in range(2):
            sp = s + 6 * h
            l.append(DS(("qf", qb), f"ds_read_b64 {Qf(qb,s,h)}, v{VQR[sp&3]} offset:{QOFF[qb] + (sp>>2)*128}"))
    return l
def with_nop(l):
    out = []
    for i, x in enumerate(l):
        out.append(x)
        if isinstance(x, str) and " m0," in x and i + 1 < len(l) and isinstance(l[i + 1], VM): out.append("s_nop 0")
    return out
def rd_step(kind):
    cur, regs = (S_RK, V_RDK) if kind == "q" else (S_RV, [V_RD])
    return [f"s_add_u32 s{S_TMP}, s{cur}, {2*STAGE}", f"s_sub_u32 s{S_RDELTA}, s{S_TMP}, {RING}",
            f"s_min_u32 s{S_TMP}, s{S_TMP}, s{S_RDELTA}", f"s_sub_u32 s{S_RDELTA}, s{S_TMP}, s{cur}", f"s_mov_b32 s{cur}, s{S_TMP}"] + \
           [f"v_add_u32 v{r}, s{S_RDELTA}, v{r}" for r in regs]

def k_ld(h, buf, rs, tag, scal_first=True):
    sc = [VM(tag, f"buffer_load_dwordx2 v[{rs+2*i}:{rs+2*i+1}], v{V_KSC}, s[{srd_}:{srd_+3}], s{S_PKS} offen offset:{192*h}" + (" nt" if OPT["scnt"] else ""))
          for i, srd_ in enumerate((S_KS, S_KZ))]
    l = []
    for j in range(4):
        so = S_PK0 if j < 2 else S_PK1
        l.append(VM(tag, f"buffer_load_dwordx4 v[{buf+4*j}:{buf+4*j+3}], v{V_KLD}, s[{S_QK}:{S_QK+3}], s{so} offen offset:{(j&1)*1536+384*h}{NTKV}"))
    return sc + l if scal_first else l + sc
def v_ld(h, buf, rs, tag, scal_first=True):
    sc = [VM(tag, f"buffer_load_dwordx2 v[{rs+2*i}:{rs+2*i+1}], off, s[{srd_}:{srd_+3}], s{S_PVS} offset:{8*h}" + (" nt" if OPT["scnt"] else ""))
          for i, srd_ in enumerate((S_VS, S_VZ))]
    l = []
    for r in range(4):
        so = S_PV0 if h == 0 else S_PV1
        l.append(VM(tag, f"buffer_load_dwordx{NVE} v[{buf+4*r}:{buf+4*r+NVE-1}], v{V_VLD}, s[{S_QV}:{S_QV+3}], s{so} offen offset:{r*768}{NTKV}"))
    return sc + l if scal_first else l + sc
def k_cv(h, buf, rs, out):
    l = []
    s0, s1, z0, z1 = V_CT, V_CT + 1, V_CT + 2, V_CT + 3
    for i in range(2):
        l += [f"v_lshlrev_b32 v{s0}, 16, v{rs+i}", f"v_and_b32 v{s1}, s{S_MASK}, v{rs+i}",
              f"v_lshlrev_b32 v{z0}, 16, v{rs+2+i}", f"v_and_b32 v{z1}, s{S_MASK}, v{rs+2+i}",
              f"v_mul_f32 v{s0}, s{S_CS}, v{s0}", f"v_mul_f32 v{s1}, s{S_CS}, v{s1}",
              f"v_mul_f32_e64 v{z0}, -v{z0}, v{s0}", f"v_mul_f32_e64 v{z1}, -v{z1}, v{s1}"]
        if OPT.get("nz", 0) & 1: l[-2:] = [f"v_mov_b32 v{z0}, 0", f"v_mov_b32 v{z1}, 0"]
        for j in range(4):
            a = buf + 4 * j + 2 * i; b = a + 1
            l += [f"v_cvt_f32_i32 v{a}, v{a}", f"v_cvt_f32_i32 v{b}, v{b}",
                  f"v_fma_f32 v{a}, v{a}, v{s0}, v{z0}", f"v_fma_f32 v{b}, v{b}, v{s1}, v{z1}",
                  f"v_cvt_pk_bf16_f32 v{out+4*j+2*h+i}, v{a}, v{b}"]
    return l
def k_st(j, out, tag="kst", STF=STF, pre=False):
    va = V_KST; g = []
    if j and pre: va = V_T4 + j
    elif j:
        va = V_KA + (j & 1); g.append(f"v_xor_b32 v{va}, {16*j}, v{V_KST}")
    g.append(VM(tag, f"buffer_store_dwordx4 v[{out+4*j}:{out+4*j+3}], v{va}, s[{S_WS}:{S_WS+3}], s{S_PK0} offen offset:{j*768}{STF}"))
    return g
def v_cv(h, buf, rs, out):
    l = []
    s0, s1, z0, z1 = V_CT, V_CT + 1, V_CT + 2, V_CT + 3
    for i in range(2):
        l += [f"v_lshlrev_b32 v{s0}, 16, v{rs+i}", f"v_and_b32 v{s1}, s{S_MASK}, v{rs+i}",
              f"v_lshlrev_b32 v{z0}, 16, v{rs+2+i}", f"v_and_b32 v{z1}, s{S_MASK}, v{rs+2+i}",
              f"v_mul_f32_e64 v{z0}, -v{z0}, v{s0}", f"v_mul_f32_e64 v{z1}, -v{z1}, v{s1}"]
        if OPT.get("nz", 0) & 2: l[-2:] = [f"v_mov_b32 v{z0}, 0", f"v_mov_b32 v{z1}, 0"]
        for e in range(NVE):
            a = buf + 4 * (2 * i) + e; b = buf + 4 * (2 * i + 1) + e
            l += [f"v_cvt_f32_i32 v{a}, v{a}", f"v_cvt_f32_i32 v{b}, v{b}",
                  f"v_fma_f32 v{a}, v{a}, v{s0}, v{z0}", f"v_fma_f32 v{b}, v{b}, v{s1}, v{z1}"]
    for e, i in [(0, 0), (1, 0), (0, 1), (1, 1), (2, 0), (2, 1), (3, 0), (3, 1)][:2 * NVE]:
        l.append(f"v_cvt_pk_bf16_f32 v{out+4*e+2*h+i}, v{buf+8*i+e}, v{buf+8*i+4+e}")
    return l
def v_st(e, out, tag="vst", STF=STF):
    so = S_PV0 if (e < 2 or V64) else S_PV2
    return [VM(tag, f"buffer_store_dwordx4 v[{out+4*e}:{out+4*e+3}], v{V_VST}, s[{S_WS}:{S_WS+3}], s{so} offen offset:{e*1024 if V64 else (e&1)*3072}{STF}")]
def k_adv():
    return [f"s_add_u32 s{S_PK0}, s{S_PK0}, {8*STAGE}", f"s_add_u32 s{S_PK1}, s{S_PK1}, {8*STAGE}", f"s_add_u32 s{S_PKS}, s{S_PKS}, {4*384}"]
def v_adv():
    return [f"s_add_u32 s{r}, s{r}, {8*STAGE}" for r in (S_PV0, S_PV1, S_PV2)] + [f"s_add_u32 s{S_PVS}, s{S_PVS}, {8*64}"]
HT = {"ka": (k_ld, k_cv, 0, BX, V_RS[0], BX), "kb": (k_ld, k_cv, 1, BY, V_RS[1], BX),
      "va": (v_ld, v_cv, 0, BZ, V_RS[0], BZ), "vb": (v_ld, v_cv, 1, BY, V_RS[1], BZ),
      "wa": (v_ld, v_cv, 0, BX, V_RS[0], BX), "wb": (v_ld, v_cv, 1, BY, V_RS[1], BX)}
def flag_post(first=False):
    return [f"v_add_u32 v{V_FVAL}, 1, v{V_FVAL}"] + [
            VM("flag", f"buffer_store_dword v{V_FVAL}, v{V_FLAG}, s[{S_FLG}:{S_FLG+3}], 0 offen")] * (OPT["l2"] == 1 or (OPT["l2"] == 2 and first)) + [
            VM("flag", f"buffer_store_dword v{V_FVAL}, v{V_FLAG}, s[{S_FLG}:{S_FLG+3}], 0 offen offset:32 sc1")]
def poll_addr():
    return [f"v_bfe_u32 v{V_POLL+1}, v{V_DMA}, 4, 6", f"v_lshlrev_b32 v{V_POLL+1}, 2, v{V_POLL+1}"]
def poll_load():
    if OPT["pa"]: return [VM("poll", f"buffer_load_dword v{V_POLL}, v{V_T4}, s[{S_FLG}:{S_FLG+3}], s{S_FOFF} offen sc1")]
    return poll_addr() + [VM("poll", f"buffer_load_dword v{V_POLL}, v{V_POLL+1}, s[{S_FLG}:{S_FLG+3}], s{S_FOFF} offen sc1")]
def poll_test():
    return [f"v_subrev_u32 v{V_POLL}, s{S_NEED}, v{V_POLL}", f"v_cmp_lt_u32 vcc, 15, v{V_POLL}", "s_nop 0", f"s_and_b32 s{S_TP}, vcc_lo, 0xff"]
def smem_flags():
    return [f"s_buffer_load_dwordx8 s[{S_PT}:{S_PT+7}], s[{S_FLG}:{S_FLG+3}], s{S_FOFF} glc"]
def smem_reduce():
    return [f"s_sub_u32 s{S_PT+i}, s{S_PT+i}, s{S_NEED}" for i in range(8)] + [f"s_max_u32 s{S_PT}, s{S_PT}, s{S_PT+i}" for i in range(1, 8)]
def smem_test():
    return smem_flags() + ["s_waitcnt lgkmcnt(0)"] + smem_reduce() + [f"s_cmp_lt_u32 s{S_PT}, 16"]
def diag(site):
    if not OPT.get("diag"): return []
    return [f"s_lshl_b32 s{S_TP}, s2, 8", f"s_add_u32 s{S_TP}, s{S_TP}, {site << 4}", f"s_add_u32 s{S_TP}, s{S_TP}, s{S_WAVE}", f"s_lshl_b32 s{S_BUDGET}, s{S_NEED}, 16", f"s_add_u32 s{S_TP}, s{S_TP}, s{S_BUDGET}",
            f"v_mov_b32 v{V_POLL+1}, s{S_TP}", f"buffer_store_dword v{V_POLL+1}, off, s[{S_DBG}:{S_DBG+3}], 0 offset:{4 + 8 * site} sc1",
            f"buffer_store_dword v{V_POLL}, v{V_T4}, s[{S_DBG}:{S_DBG+3}], 0 offen offset:192 sc1"]
def poll_slow(site):
    l = [f"L_pollslow{site}:"] + ([f"s_add_u32 s{S_TAG+1}, s{S_TAG+1}, {1 << (6 * site)}"] if OPT["stamp"] else [])
    l += [f"s_mov_b32 s{S_TP}, {60 if site == 0 else 200}", f"L_pollsm{site}:"] + smem_test() + [f"s_cbranch_scc1 L_pollok{site}",
          f"s_sub_u32 s{S_TP}, s{S_TP}, 1", f"s_cbranch_scc1 L_pollvec{site}", "s_sleep 1", f"s_branch L_pollsm{site}"]
    l += [f"L_pollvec{site}:"] + poll_addr() + [
            f"s_sub_u32 s{S_BUDGET}, s{S_BUDGET}, 1",
            f"s_cbranch_scc1 L_pollgiveup{site}",
            "s_sleep 2",
            f"buffer_load_dword v{V_POLL}, v{V_POLL+1}, s[{S_FLG}:{S_FLG+3}], s{S_FOFF} offen sc1",
            "s_waitcnt vmcnt(0)"]
    if site == 0 and OPT["l2"]:
        l += [f"s_bitcmp1_b32 s{S_NEED}, 9", "s_cbranch_scc1 L_nomix",
              f"v_xor_b32 v{V_POLL+1}, s{S_NEED}, v{V_POLL}", f"v_lshrrev_b32 v{V_POLL+1}, 5, v{V_POLL+1}", f"v_add_u32 v{V_POLL+1}, -1, v{V_POLL+1}",
              f"v_cmp_gt_u32 vcc, 31, v{V_POLL+1}", "s_nop 1", f"s_and_b32 s{S_TP}, vcc_lo, {'0xff' if OPT['l2'] == 3 else '0xff00'}", "s_cbranch_scc0 L_nomix"]
        l += fin([x for j in range(4) for x in k_st(j, BX)] + [x for e in range(NVE) for x in v_st(e, 112)])
        l += ["s_waitcnt vmcnt(0)", "s_barrier", f"s_and_b32 s{S_NEED}, s{S_NEED}, 0xfffffc00", f"s_add_u32 s{S_NEED}, s{S_NEED}, {16 << 5}",
              f"v_mov_b32 v{V_FVAL}, s{S_NEED}", f"s_add_u32 s{S_NEED}, s{S_NEED}, 1", f"s_mov_b32 s{S_FOFF}, 32"] + fin(flag_post()) + ["s_branch L_pollvec0", "L_nomix:"]
    l += poll_test() + [
            f"s_cbranch_scc1 L_pollvec{site}",
            f"s_branch L_pollok{site}",
            f"L_pollgiveup{site}:"] + diag(site) + [
            f"s_mov_b32 s{S_BUDGET}, 0",
            f"s_branch L_pollok{site}"]
    return l
def tag_load():
    return [VM("tag", f"buffer_load_dword v{V_FVAL}, off, s[{S_DBG}:{S_DBG+3}], s{S_HOFF} sc1")]
def tag_check():
    return [f"s_cmp_lg_u32 s{S_WAVE}, 0", "s_cbranch_scc1 L_tagdone",
            f"v_readfirstlane_b32 s{S_TAG}, v{V_FVAL}", f"s_mov_b32 s{S_RET}, 100",
            "s_waitcnt lgkmcnt(0)"] + ([f"s_mov_b32 s101, s{S_OWN}", f"s_mov_b32 s100, s{S_TAG}"] if OPT["stamp"] else []) + [f"s_and_b32 s{S_OWN}, s{S_OWN}, 0xfffffc00",
            "L_tagretry:", f"s_cmp_eq_u32 s{S_TAG}, s{S_OWN}", f"s_cselect_b32 s{S_TAG}, 0, s{S_TAG}", f"s_cmp_lg_u32 s{S_TAG}, 0", "s_cbranch_scc1 L_tagok",
            f"s_sub_u32 s{S_RET}, s{S_RET}, 1", "s_cbranch_scc1 L_tagslow", "s_sleep 4",
            f"s_buffer_load_dword s{S_TAG}, s[{S_DBG}:{S_DBG+3}], s{S_HOFF} glc", "s_waitcnt lgkmcnt(0)", "s_branch L_tagretry",
            "L_tagok:", f"s_add_u32 s{S_TAG}, s{S_TAG}, s{S_XCC}", f"v_mov_b32 v{V_FVAL}, s{S_TAG}", f"v_mov_b32 v{V_T}, {RING}", DS("w", f"ds_write_b32 v{V_T}, v{V_FVAL}"), "L_tagdone:"]
def tag_get():
    return [f"v_mov_b32 v{V_T}, {RING}", DS("tg", f"ds_read_b32 v{V_T+1}, v{V_T}")]
def tag_use():
    return [f"v_readfirstlane_b32 s{S_NEED}, v{V_T+1}", f"s_add_u32 s{S_NEED}, s{S_NEED}, 1"]
def tag_slow():
    return ["L_tagslow:",
            f"s_sub_u32 s{S_BUDGET}, s{S_BUDGET}, 1",
            "s_cbranch_scc1 L_taggiveup",
            "s_sleep 2",
            f"buffer_load_dword v{V_FVAL}, off, s[{S_DBG}:{S_DBG+3}], s{S_HOFF} sc1",
            "s_waitcnt vmcnt(0)",
            f"v_readfirstlane_b32 s{S_TAG}, v{V_FVAL}", "s_nop 0", f"s_cmp_eq_u32 s{S_TAG}, s{S_OWN}", "s_cbranch_scc1 L_tagslow",
            f"s_cmp_eq_u32 s{S_TAG}, 0", "s_cbranch_scc1 L_tagslow",
            "s_branch L_tagok",
            "L_taggiveup:"] + diag(15) + [
            f"s_mov_b32 s{S_BUDGET}, 0",
            "s_branch L_tagok"]

def text_of(x):
    return "s_waitcnt" if isinstance(x, (W, LG)) else (x.text if isinstance(x, (VM, DS)) else x)
def kind_of(x):
    t = text_of(x)
    if t.endswith(":"): return "label"
    if t.startswith("v_"): return "valu"
    if t.startswith("ds_"): return "ds"
    if t.startswith("buffer_store"): return "store"
    if t.startswith("buffer_"): return "load"
    return "salu"
def cost_of(x):
    k = kind_of(x); t = text_of(x)
    if k == "label": return 0
    if k == "store": return 20 if "x4" in t else (OPT["x2c"] if "x2" in t else 16 if "x3" in t else 8)
    if k == "load": return OPT["ldc"]
    if t.startswith("ds_write"): return 16 if ("b128" in t or "write2" in t) else 8
    if t.startswith(("v_exp", "v_rcp")): return 8
    if t.startswith("v_mfma"): return 32 if "x4_f32" in t else 8
    if t.startswith("s_nop"): return 4 * (int(t.split()[1]) + 1)
    if t.startswith("s_cbranch") or t.startswith("s_branch"): return 12
    if t.startswith("s_barrier"): return 8
    return 4
def gap_time(ops):
    t = 4; prev = None
    for o in ops:
        if o is None: continue
        k = kind_of(o)
        if k == "label": continue
        if k == "salu": t += cost_of(o)
        else: t = max(t, 8) + cost_of(o) + (8 if (k != "valu" and prev == "valu") else 0)
        prev = k
    return t

class Stream:
    def __init__(self, ops, first, last, maxper=99, dense=0):
        self.nb = {}; self.dl = []; l = []
        for o in ops:
            if isinstance(o, tuple):
                if o[0] == "nb": self.nb[len(l)] = o[1]
                else: self.dl.append((len(l), o[1]))
            else: l.append(o)
        ops = l
        self.ops = list(ops); self.first = first; self.last = last; self.maxper = maxper; self.dense = dense
        self.total = sum(cost_of(o) for o in self.ops); self.done = 0; self.i = 0
        self.gate = {}; self.i0 = 0

def pack(NG, A, B, C, T, streams, novm=(), nosalu=(), vmgap=4, light=(), noval=()):
    out = []; over = 0; lastvm = -99
    for g in range(NG):
        a, b, c, tl = list(A[g]), list(B[g]), list(C[g]), list(T[g])
        cnt = {}; inC = set(); blocked = set()
        while True:
            best = None; bl = None; bsec = None
            for st in streams:
                if st.i >= len(st.ops) or g < st.first: continue
                if g < st.nb.get(st.i, 0): continue
                force = g >= st.last or any(st.i < n and g >= dg for n, dg in st.dl)
                if (cnt.get(id(st), 0) >= st.maxper or id(st) in blocked) and not force: continue
                o = st.ops[st.i]; k = kind_of(o); cst = cost_of(o)
                if k == "salu" and g in nosalu:
                    assert not force, (g, text_of(o))
                    continue
                if k in ("load", "store") and (g in novm or g - lastvm < vmgap) and not force: continue
                if k in ("load", "store", "ds"):
                    sec = "b" if id(st) not in inC and id(st) not in blocked else "c"
                    if sec == "c" and not force: continue
                elif k == "salu" and not a and cnt.get(id(st), 0) == 0:
                    sec = "a"
                else: sec = "c"
                tgt = st.total * (g - st.first + 1) / (st.last - st.first + 1)
                lag = tgt - st.done
                if not force:
                    if g in noval: continue
                    if lag < cst / 2 - OPT["ahead"] and cst: continue
                    trial = (a + [o] if sec == "a" else a) + (b + [o] if sec == "b" else b) + (c + [o] if sec == "c" else c) + tl
                    gt = gap_time(trial)
                    if g in light and gt > 12 and k != "salu" and lag < OPT["llag"]: continue
                    if gt > 16:
                        if g % 2 == 0: continue
                        big = k == "store" or text_of(o).startswith(("ds_write_b128", "ds_write2"))
                        lim = max(20, st.dense) if lag > 24 else 16
                        if big and not (a + b + c + tl): lim = 32
                        if gt > lim: continue
                key = (force, k in ("load", "store"), lag / max(1, (st.last - g + 1)) ** 0.5)
                if best is None or key > bl: best = st; bl = key; bsec = sec
            if best is None: break
            o = best.ops[best.i]
            if bsec == "a": a.append(o)
            elif bsec == "b":
                b.append(o)
            else: c.append(o)
            if bsec == "c" or bsec == "b" and kind_of(o) != "ds" and False: inC.add(id(best))
            if bsec == "c": inC.add(id(best))
            if " m0," in text_of(o): blocked.add(id(best))
            if kind_of(o) in ("load", "store"): lastvm = g
            best.i += 1; best.done += cost_of(o); cnt[id(best)] = cnt.get(id(best), 0) + 1
        ops = a + b + c + tl
        tt = gap_time(ops)
        if tt > 16: over += tt - 16
        out.append(ops)
    for st in streams: assert st.i == len(st.ops)
    return out, over

def pack_dense(NG, A, B, C, T, streams, novm=(), nosalu=(), vmgap=2):
    jobs = []
    for st in streams:
        r = st.first; rel = []
        for i in range(len(st.ops)):
            r = max(r, st.nb.get(i, 0)); rel.append(r)
        for i, o in enumerate(st.ops):
            d = min([st.last] + [dg for n, dg in st.dl if i < n])
            k = kind_of(o)
            jobs.append([rel[i], d, cost_of(o) + (OPT["dx"] if k in ("store", "load") else 0) - (2 if k == "salu" else 0)])
    for g in range(NG): jobs.append([g, g, max(0, gap_time(A[g] + B[g] + C[g] + T[g]) - 8)])
    level = [None] * NG
    while jobs:
        free = [g for g in range(NG) if level[g] is None]
        pts_r = sorted({j[0] for j in jobs}); pts_d = sorted({j[1] for j in jobs})
        best = None
        for a_ in pts_r:
            ws = sorted((j[1], j[2]) for j in jobs if j[0] >= a_)
            w = 0; i = 0
            for b_ in pts_d:
                if b_ < a_: continue
                while i < len(ws) and ws[i][0] <= b_: w += ws[i][1]; i += 1
                n = sum(1 for g in free if a_ <= g <= b_)
                if n and (best is None or w / n > best[0]): best = (w / n, a_, b_)
        dn, a_, b_ = best
        if dn <= 8: break
        for g in free:
            if a_ <= g <= b_: level[g] = dn
        jobs = [j for j in jobs if not (j[0] >= a_ and j[1] <= b_)]
    extra = [2 * (level[g] - 8) if (level[g] is not None and g % 2) else 0 for g in range(NG)]
    return pack_dense1(NG, A, B, C, T, streams, novm, nosalu, vmgap, extra)
def pack_dense1(NG, A, B, C, T, streams, novm, nosalu, vmgap, extra):
    out = []; over = 0; lastvm = -99
    fixed = [gap_time(A[g] + B[g] + C[g] + T[g]) - (8 if not (B[g] + C[g] + T[g]) else 8) for g in range(NG)]
    for g in range(NG):
        a, b, c, tl = list(A[g]), list(B[g]), list(C[g]), list(T[g])
        carry = (carry if g else 0) + extra[g]
        bud = 16 + (carry if g % 2 else 0)
        blocked = set(); inC = set()
        for st in streams: st.i0 = st.i
        while True:
            best = None; bl = None
            cur = gap_time(a + b + c + tl)
            for st in streams:
                if st.i >= len(st.ops) or g < st.first or g < st.nb.get(st.i, 0): continue
                if st.i in st.gate:
                    o_, j_ = st.gate[st.i]
                    if (o_.i0 if (kind_of(st.ops[st.i]) == "store" and g < NG - 1) else o_.i) <= j_: continue
                    if o_.i0 <= j_: inC.add(id(st))
                force = g >= st.last or any(st.i < n and g >= dg for n, dg in st.dl)
                if id(st) in blocked and not force: continue
                o = st.ops[st.i]; k = kind_of(o)
                if k == "salu" and g in nosalu:
                    assert not force
                    continue
                mem = k in ("load", "store", "ds")
                if k in ("load", "store") and (g in novm or g - lastvm < vmgap) and not force: continue
                sec = "b" if (mem and id(st) not in inC) else ("a" if (k == "salu" and not a and id(st) not in inC and id(st) not in blocked and not any(x is st for x in ())) else "c")
                if sec == "a" and any(id(st) == y for y in inC): sec = "c"
                if mem and sec == "c" and not force: continue
                trial = gap_time((a + [o] if sec == "a" else a) + (b + [o] if sec == "b" else b) + (c + [o] if sec == "c" else c) + tl)
                if not force and trial > bud and not (cur < 16 and trial <= bud + 12 and g % 2): continue
                tgt = st.total * (g - st.first + 1) / (st.last - st.first + 1)
                n_, dd = min([(len(st.ops), st.last)] + [(n, dg) for n, dg in st.dl if st.i < n], key=lambda x: x[1])
                need = sum(cost_of(x) for x in st.ops[st.i:n_]) / max(1, dd - g + 1)
                key = (force, mem, need)
                if best is None or key > bl: best = st; bl = key; bsec = sec
            if best is None: break
            o = best.ops[best.i]
            {"a": a, "b": b, "c": c}[bsec].append(o)
            if bsec == "c" or (bsec == "b"):
                if bsec == "c": inC.add(id(best))
                else: usedb = True
            if bsec in ("a", "b"): best._g = g
            if " m0," in text_of(o): blocked.add(id(best))
            if kind_of(o) in ("load", "store"): lastvm = g
            best.i += 1; best.done += cost_of(o)
            if bsec == "b" and not a: a.append(None)
        a = [x for x in a if x is not None]
        ops = a + b + c + tl
        tt = gap_time(ops)
        carry = max(0, carry - max(0, tt - 16)) if extra[g] or g % 2 == 0 else 0
        if tt > 16: over += tt - 16
        out.append(ops)
    for st in streams: assert st.i == len(st.ops)
    return out, over

POLLSITES = []
def gen_seg(name, groups, nxt, sm=(), bars=(), tasks=(), dma=(), extra=(), endops=(), fixed=(), peel=True, vmgap=None):
    starts = []; n = 0
    for g in groups: starts.append(n); n += len(g.mf)
    NG = n
    A = [[] for _ in range(NG)]; B = [[] for _ in range(NG)]; C = [[] for _ in range(NG)]; T = [[] for _ in range(NG)]
    streams = []; novm = set(range(0, NG, 2)); nosalu = set()
    allg = list(groups) + list(nxt)
    assert len(groups) % 3 == 0
    for i, g in enumerate(groups):
        g0 = starts[i]; ln = len(g.mf)
        if i + 2 < len(allg):
            t = allg[i + 2]
            if not (OPT["ab"] & 4 and name.startswith("k") and i % 2): B[g0].append(rd_op(i + 2, 0, t)); B[g0 + ln // 2].append(rd_op(i + 2, 1, t))
            if t.reb:
                assert g0 > 0
                C[g0 - 1] += t.reb
        if i + 1 < len(allg):
            A[g0 + ln - 1].append(LG(("fr", (2 * i + 2) % NFS), ("fr", (2 * i + 3) % NFS)))
    for ops, f, l in sm: streams.append(Stream(ops, f, l))
    streams += list(extra)
    if endops:
        A[NG-4] += endops[:1]; A[NG-2] += [A[NG-1][0]] + list(endops[1:-1]); A[NG-1] = []; T[NG-1] = list(endops[-1:]); nosalu |= {NG-2, NG-1}
    for grp in dma:
        dl = []
        for part, pos in grp[:-2]: dl += dma_tile(part, pos, peel)
        k = max(i for i, x in enumerate(dl) if isinstance(x, VM)) + 1
        lim = NG - 3 if endops else NG - 1
        if grp[-1] + 1 > lim: k = len(dl)
        streams.append(Stream(dl[:k], grp[-2], grp[-1], maxper=2))
        if dl[k:]: streams.append(Stream(dl[k:], grp[-1] + 1, min(lim, grp[-1] + 12), maxper=2))
    bars = [(g, list(tg)) for g, tg in bars]
    for t in tasks:
        k_ = t[0]
        if k_ == "vst" and t[1] >= NVE: continue
        if k_ == "cv":
            _, cv, h, buf, rs, outb = HT[t[1]]
            ops = cv(h, buf, rs, outb)[t[2]:t[3]]
            if t[2] == 0: ops = [W(t[1])] + ops
            streams.append(Stream(ops, t[4], t[5]))
        elif k_ in ("kst", "vst", "wst"):
            grp = k_st(t[1], BX, pre=OPT["pa"]) if k_ == "kst" else v_st(t[1], BZ) if k_ == "vst" else v_st(t[1], BX, "wst")
            g = t[2]; assert not B[g] and not A[g], (name, g)
            B[g].append(grp[-1]); novm |= set(range(g - OPT["sb"], g + OPT["sa"] + 1))
            if grp[:-1]: streams.append(Stream(grp[:-1], max(0, g - 5), g - 1))
        elif k_ in ("ld", "ldn"):
            ld, _, h, buf, rs, _o = HT[t[1]]
            adv = {"ka": k_adv(), "va": v_adv()}.get(t[1], []) if k_ == "ld" else []
            ops = ld(h, buf, rs, t[1])
            if len(t) > 4: ops = ops[2:] if t[4] == "raw" else ops[:2]
            streams.append(Stream(adv + ops, t[2], t[3], maxper=1))
        elif k_ == "post":
            bi = t[2] if len(t) > 2 else -1
            bars[bi][1].append(t[1])
            streams.append(Stream(flag_post(), bars[bi][0] + 1, min(NG - 3, bars[bi][0] + 14), maxper=1))
        elif k_ == "pf":
            streams.append(Stream([VM("pf", f"buffer_load_dword v{V_T4}, v{V_DMA}, s[{S_DBG}:{S_DBG+3}], s{S_HOFF} offen")], t[1], t[2]))
        elif k_ == "rld":
            streams.append(Stream([VM("rs", f"buffer_load_dwordx4 v[{V_T4}:{V_T4+3}], v{V_DMA}, s[{S_WS}:{S_WS+3}], s{S_RC} offen sc1")], t[1], t[2]))
        elif k_ == "rst":
            g = t[1]; assert g % 2 == 1 and not B[g] and not A[g] and not A[g - 1], (name, g)
            A[g - 1].append(W("rs")); B[g].append(VM("rs2", f"buffer_store_dwordx4 v[{V_T4}:{V_T4+3}], v{V_DMA}, s[{S_WS}:{S_WS+3}], s{S_RC} offen sc1"))
            novm |= set(range(g - OPT["sb"], g + OPT["sa"] + 1))
            streams.append(Stream([f"s_add_u32 s{S_RC}, s{S_RC}, s{S_RD}", f"s_sub_u32 s{S_RD}, 1024, s{S_RD}"], g + 1, g + 8, maxper=1))
        elif k_ == "pollld": streams.append(Stream(poll_load(), t[1], t[2], maxper=1))
        elif k_ == "pollchk":
            ps = len(POLLSITES); POLLSITES.append(ps)
            g = t[1]; assert g % 4 == 1
            pt = poll_test()
            A[g] += [W("poll")]; T[g] += pt[:2]; novm |= {g, g + 4}
            A[g + 3] += [pt[3]]; A[g + 4] += [f"s_cbranch_scc1 L_pollslow{ps}", f"L_pollok{ps}:"]; nosalu |= {g + 3, g + 4}
            A[g + 5] += [f"s_add_u32 s{S_NEED}, s{S_NEED}, 1"]
        elif k_ == "spollld": A[t[1]] += smem_flags()
        elif k_ == "spollchk":
            ps = len(POLLSITES); POLLSITES.append(ps)
            A[t[1]] += ["s_waitcnt lgkmcnt(0)"]
            streams.append(Stream(smem_reduce(), t[1] + 1, t[2] - 1, maxper=3))
            A[t[2]] += [f"s_cmp_ge_u32 s{S_PT}, 16", f"s_cbranch_scc1 L_pollslow{ps}", f"L_pollok{ps}:", f"s_add_u32 s{S_NEED}, s{S_NEED}, 1"]
        elif k_ == "step": streams.append(Stream(rd_step(t[1]), t[2], t[3], maxper=1))
        elif k_ == "q": streams.append(Stream(q_dma(t[1]), t[2], t[3], maxper=2))
        else: raise Exception(k_)
    noval = set()
    for g, tags in bars:
        i = [j for j in range(len(groups)) if starts[j] + len(groups[j].mf) - 1 == g]
        assert i, (name, g)
        if len(groups[i[0]].mf) == 8 and OPT["bm"] >= 4:
            A[g - 2] += A[g] + ([W(*tags)] if tags else []); A[g] = []
            A[g - 1] += ["s_barrier"]; novm |= {g - 2, g - 1}; noval |= {g - 1} | ({g - 2} if OPT["bm"] == 5 else set())
            continue
        if len(groups[i[0]].mf) == 8:
            A[g - 2] += A[g]; A[g] = []
            if tags: A[g - 1] += [W(*tags)]
            noval |= {0: set(), 1: {g}, 2: {g - 1, g}, 3: {g - 1}}[OPT["bm"]]
        elif tags: A[g - 2] += [W(*tags)]
        A[g] += ["s_barrier"]; novm |= {g}
    for g, sec, ops in fixed: {"A": A, "B": B, "C": C, "T": T}[sec][g] += ops
    if endops:
        for st_ in streams: st_.last = min(st_.last, NG - 2)
    m0w = sorted((st.first, st.last) for st in streams if any(" m0," in text_of(o) for o in st.ops))
    assert all(m0w[i][1] < m0w[i + 1][0] for i in range(len(m0w) - 1)), (name, m0w)
    if name in str(OPT["dense"]).split(","): fill, over = pack_dense(NG, A, B, C, T, streams, novm, nosalu, vmgap or OPT["dvg"])
    else:
        fill, over = pack(NG, A, B, C, T, streams, novm, nosalu, vmgap or OPT["vmgap"], (), noval)
        if OPT["twop"] and name[0] in "kz":
            vg = {g for g in range(NG) if any(kind_of(o) in ("load", "store") for o in fill[g])}
            for st_ in streams: st_.i = 0; st_.done = 0
            fill, over = pack(NG, A, B, C, T, streams, set(novm) | (set(range(NG)) - vg), nosalu, vmgap or OPT["vmgap"], {g - 1 for g in vg})
    if over: print(f"seg {name}: over budget by {over} cycles", file=sys.stderr)
    out = istamp(name)
    g = 0
    for i, gr in enumerate(groups):
        for j, d, b, c in gr.mf:
            if (OPT["pvs"] & 1 and d[0] in "a ") or (OPT["pvs"] & 2 and d.startswith("v")): out.append(f"{MF} {d}, {b}, {FR(2*i+j)}, {c}")
            else: out.append(f"{MF} {d}, {FR(2*i+j)}, {b}, {c}")
            out += fill[g]; g += 1
    return with_nop(out)

GBAR = 79
def seg_groups(it):
    return qk_full(it + 1) if it % 2 else pv_seq(it - 2)
def gen_iter(it, tasks=(), dma=(), name=None, endops=(), peel=False, nxt=None, extra=(), bars=None, groups=None, sm=None, step=True):
    q = it % 2
    smB = softmax_part(it, 1); smA = softmax_part(it + 1, 0)
    if sm is None: sm = ([(smB + [("dl", 57), ("nb", 47)] + smA, 0, 95)] if OPT["flex"] else [(smB, 0, 50), (smA, 52, 95)]) if q else [(smB + smA, 0, 95)]
    need = [("dv", (it - 1) % 8), ("dv", it % 8)] if q else [("dk", (it + 2) % 8), ("dk", (it + 3) % 8)]
    tasks = list(tasks) + ([("step", "p" if q else "q", 30, GBAR - 3)] if step else [])
    return gen_seg(name or f"i{it}", groups or seg_groups(it), nxt if nxt is not None else seg_groups(it + 1)[:2], sm,
                   bars if bars is not None else [(GBAR, need)], tasks, dma, extra, endops, peel=peel)

K_ = lambda *j: tuple(("k", x) for x in j)
V_ = lambda *j: tuple(("v", x) for x in j)
def steady(k):
    ckv, ckk = OPT["ckv"], OPT["ckk"]
    plv, plk = OPT["plv"], OPT["plk"]
    if OPT.get("p15"):
        return {
            5: ([("cv", "wb", 0, 99, 30, 95), ("pollchk", 1), ("post", "vst")], [K_(0, 1) + (8, 74)]),
            6: ([("wst", 0, 1), ("wst", 1, 9), ("wst", 2, 17), ("post", "wst"), ("ld", "ka", 26, 60), ("ld", "kb", 61, 95)], [K_(2, 3) + (26, 90)]),
            7: ([("cv", "ka", 0, 30, 45, 95), ("pollld", plv, plv + 8)], [K_(4, 5) + (11, 92)]),
            0: ([("cv", "ka", 30, 99, 0, 50), ("cv", "kb", 0, 20, 51, 95), ("pollchk", ckv), ("ld", "va", 52, 95)], [V_(0, 1) + (ckv + 7, 74)]),
            1: ([("cv", "kb", 20, 99, 0, 95)], [V_(2, 3) + (0, GBAR - 5)]),
            2: ([("cv", "va", 0, 99, 10, 95), ("kst", 0, 1), ("kst", 1, 9), ("kst", 2, 17), ("kst", 3, 25), ("post", "kst"), ("ld", "vb", 33, 60)], [K_(6, 7) + (33, 74)]),
            3: ([("cv", "vb", 0, 99, 50, 95), ("ldn", "wa", 0, 44)], [V_(4, 5) + (0, 90)]),
            4: ([("vst", 0, 1), ("vst", 1, 9), ("vst", 2, 17), ("cv", "wa", 0, 99, 30, 95), ("ld", "wb", 25, 50), ("pollld", 52, 60)], [V_(6, 7) + (25, GBAR - 5)]),
        }[k]
    if OPT["bal"]:
        c = [int(x) for x in str(OPT["cut"]).split(",")]
        a1, a2, b1, b2, v1, v2, w1 = c
        return {
            5: ([("cv", "ka", 0, a1, OPT["w5"], 95), ("pollchk", 1), ("vst", 0, 9), ("vst", 1, 17), ("vst", 2, 25), ("vst", 3, 33), ("post", "vst")], [K_(0, 1) + (41, 74)]) if ckk == 1 else
               ([("cv", "ka", 0, a1, 0, 95), ("pollchk", ckk), ("vst", 0, 1), ("vst", 1, 9), ("vst", 2, 17), ("vst", 3, 25), ("post", "vst")], [K_(0, 1) + (ckk + 7, 92)]),
            6: ([("cv", "ka", a1, a2, 0, 95), ("ld", "kb", 0, 44)] + [("rld", 70, 92)] * OPT["rs"], [K_(2, 3) + (0, 90)]),
            7: ([("cv", "ka", a2, 99, 0, 60 if b1 < 12 else 44), ("cv", "kb", 0, b1, 61 if b1 < 12 else 45, 95), ("ld", "va", 11, OPT["lva"]), ("pollld", plv, plv + 8)], [K_(4, 5) + (11, 92)]),
            0: ([("cv", "kb", b1, b2, 0, 95), ("pollchk", ckv)] + [("rst", 81)] * OPT["rs"], [V_(0, 1) + (ckv + 7, 74)]),
            1: ([("cv", "kb", b2, 99, 0, 30), ("cv", "va", 0, v1, 31, 95), ("ld", "vb", 32, 80)], [V_(2, 3) + (0, GBAR - 5)]) if b2 < 56 else
               ([("cv", "va", 0, v1, 20, 95), ("ld", "vb", 0, 40)], [V_(2, 3) + (0, 90)]),
            2: ([("cv", "va", v1, v2, 0, 95), ("kst", 0, 1), ("kst", 1, 9), ("kst", 2, 17), ("kst", 3, 25), ("post", "kst")], [K_(6, 7) + (33, 74)]),
            3: ([("cv", "va", v2, 99, 0, 50), ("cv", "vb", 0, w1, 51, 95), ("ld", "ka", 0, 44)], [V_(4, 5) + (0, 90)]),
            4: ([("cv", "vb", w1, 99, 0, 95), ("pollld", plk, plk + 16)] + ([("pf", 80, 92)] if OPT["pf2"] else []), [V_(6, 7) + (0, GBAR - 5)]),
        }[k]
    return {
        1: ([("cv", "va", 0, 22, 0, 95), ("ld", "vb", 0, 44)], [V_(2, 3) + (0, GBAR - 5)]),
        2: ([("cv", "va", 22, 99, 0, 95), ("kst", 0, 1), ("kst", 1, 9), ("kst", 2, 17), ("kst", 3, 25), ("post", "kst")], [K_(6, 7) + (33, 74)]),
        3: ([("cv", "vb", 0, 22, 0, 95), ("ld", "ka", 0, 44)], [V_(4, 5) + (0, GBAR - 5)]),
        4: ([("cv", "vb", 22, 99, 0, 95), ("pollld", plk, plk + 16)] + ([("pf", 80, 92)] if OPT["pf2"] else []), [V_(6, 7) + (0, GBAR - 5)]),
        5: ([("cv", "ka", 0, 16, 0, 95), ("pollchk", 1), ("vst", 0, 9), ("vst", 1, 17), ("vst", 2, 25), ("vst", 3, 33), ("post", "vst")], [K_(0, 1) + (41, 74)]),
        6: ([("cv", "ka", 16, 99, 0, 95), ("ld", "kb", 0, 30)], [K_(2, 3) + (31, 74)]),
        7: ([("cv", "kb", 0, 24, 40, 95), ("ld", "va", 11, 40), ("pollld", plv, plv + 8)], [K_(4, 5) + (41, 90)]),
        0: ([("cv", "kb", 24, 99, 0, 95), ("pollchk", ckv)], [V_(0, 1) + (ckv + 7, ckv + 44)]),
    }[k]

GA = V_RS[0]; TA = V_RS[0] + 1; BA = V_RS[0] + 2
RL = [V_CT, V_CT + 4, NEGM(0), NEGM(1)]
S_EO = 24
def epi_addr():
    return [f"v_bfe_u32 v{TA}, v{V_DMA}, 8, 2", f"v_mul_u32_u24 v{GA}, 1536, v{TA}", f"v_lshlrev_b32 v{BA}, 4, v{TA}",
            f"v_bfe_u32 v{TA}, v{V_DMA}, 4, 4", f"v_mul_u32_u24 v{TA}, {12 if V64 else 8}, v{TA}", f"v_add_u32 v{GA}, v{GA}, v{TA}", f"v_mov_b32 v{TA}, 1.0"] + [f"v_mov_b32 v{ONES+i}, 0x3f803f80" for i in range(4 * OPT["lmf"])] + [
            f"s_lshl_b32 s{S_EO}, s{S_QB}, 2", f"s_add_u32 s{S_EO}, s{S_EO}, s{S_WAVE}", f"s_mul_i32 s{S_EO}, s{S_EO}, {STAGE}",
            f"s_add_u32 s{S_QL}, s{S_EO}, 6144", f"s_add_u32 s{S_QS}, s{S_EO}, 12288", f"s_add_u32 s{S_TAG}, s{S_EO}, 18432"]
S_EQ = [S_EO, S_QL, S_QS, S_TAG]
def epi_l(qs, gap=("s_nop 7", "s_nop 1"), acc=False):
    fl = [f"v_mfma_f32_16x16x4_f32 v[{RL[q]}:{RL[q]+3}], v{V_L[q]}, v{TA}, " + (f"v[{RL[q]}:{RL[q]+3}]" if acc else "0") for q in qs] + list(gap)
    return fl + [f"v_rcp_f32 v{RL[q]+r}, v{RL[q]+r}" for q in qs for r in range(4)]
class Epi:
    def __init__(self, temps): self.temps = temps; self.n = 0; self.pend = []
    def flush(self, k=99):
        p = self.pend[:k]; self.pend = self.pend[k:]
        return p
    def chunk(self, qb, n, pk=False, inv=False):
        p = []
        if V64:
            for r in range(4):
                o = self.temps[self.n % len(self.temps)]; self.n += 1; rl = RL[qb] + r
                if inv:
                    p += [f"v_mul_f32 v{o+e}, v{O0(6*n+e)+r}, v{rl}" for e in range(6)] + [f"v_cvt_pk_bf16_f32 v{o+i}, v{o+2*i}, v{o+2*i+1}" for i in range(3)] + self.flush(1)
                    self.pend.append(VM("out", f"buffer_store_dwordx3 v[{o}:{o+2}], v{GA}, s[{S_OUT}:{S_OUT+3}], s{S_EQ[qb]} offen offset:{n*192 + r*384}{OF}"))
                    continue
                p += [f"v_accvgpr_read_b32 v{o+e}, a{O(qb,6*n+e)+r}" for e in range(6)]
                if pk: p += [f"v_pk_mul_f32 v[{o+2*i}:{o+2*i+1}], v[{o+2*i}:{o+2*i+1}], v[{rl&~1}:{(rl&~1)+1}] " + ("op_sel:[0,1] op_sel_hi:[1,1]" if rl & 1 else "op_sel_hi:[1,0]") for i in range(3)]
                else: p += [f"v_mul_f32 v{o+e}, v{o+e}, v{rl}" for e in range(6)]
                p += [f"v_cvt_pk_bf16_f32 v{o+i}, v{o+2*i}, v{o+2*i+1}" for i in range(3)] + self.flush(1)
                self.pend.append(VM("out", f"buffer_store_dwordx3 v[{o}:{o+2}], v{GA}, s[{S_OUT}:{S_OUT+3}], s{S_EQ[qb]} offen offset:{n*192 + r*384}{OF}"))
            return p
        ob = self.temps[self.n % len(self.temps)]; self.n += 1
        for r in range(4):
            o = ob + 4 * r
            if inv:
                p += [f"v_mul_f32 v{o+e}, v{OV(qb,3*e+n)+r}, v{RL[qb]+r}" for e in range(4)]
                p += [f"v_cvt_pk_bf16_f32 v{o+i}, v{o+2*i}, v{o+2*i+1}" for i in range(2)] + self.flush(1)
                self.pend.append(VM("out", f"buffer_store_dwordx2 v[{o}:{o+1}], v{GA}, s[{S_OUT}:{S_OUT+3}], s{S_EQ[qb]} offen offset:{n*128 + r*384}{OF}"))
                continue
            p += [f"v_accvgpr_read_b32 v{o+e}, a{O(qb,3*e+n)+r}" for e in range(4)]
            rl = RL[qb] + r
            if pk: p += [f"v_pk_mul_f32 v[{o+2*i}:{o+2*i+1}], v[{o+2*i}:{o+2*i+1}], v[{rl&~1}:{(rl&~1)+1}] " + ("op_sel:[0,1] op_sel_hi:[1,1]" if rl & 1 else "op_sel_hi:[1,0]") for i in range(2)]
            else: p += [f"v_mul_f32 v{o+e}, v{o+e}, v{rl}" for e in range(4)]
            p += [f"v_cvt_pk_bf16_f32 v{o+i}, v{o+2*i}, v{o+2*i+1}" for i in range(2)]
            p += self.flush(1)
            self.pend.append(VM("out", f"buffer_store_dwordx2 v[{o}:{o+1}], v{GA}, s[{S_OUT}:{S_OUT+3}], s{S_EQ[qb]} offen offset:{n*128 + r*384}{OF}"))
        return p

def gen_tail():
    sp = softmax_part
    g57 = qk_half(58) + rebase(qk_half(59), V_RDK, A0 - A2)
    g58 = pv_seq(56)
    g59 = rebase(qk_half(60), V_RDK, A1 - A0) + rebase(qk_half(61), V_RDK, A2 - A1)
    g60 = rebase(pv_seq(58), [V_RD], B2 - B1) + rebase(pv_seq(59), [V_RD], B0 - B2)
    g61 = rebase(pv_seq(60), [V_RD], B1 - B0) + rebase(qk_half(62), V_RDK, A0 - A2)
    g62 = rebase(qk_half(63), V_RDK, A1 - A0) + ([] if OPT["f3"] else rebase(pv_seq(61), [V_RD], B2 - B1))
    g63 = []
    for dbs in ([chunk_dbs(0), [6, 7, 8], [9, 10, 11]] if V64 else [chunk_dbs(n) for n in range(3)]):
        if OPT["f3"]: g63 += [pv_grp(61, db, va=V_RD3) for db in dbs]
        g63 += [pv_grp(62, db) for db in dbs] + [pv_grp(63, db, va=V_RD2) for db in dbs]
    if OPT["f3"]: g63[0].reb += [f"v_add_u32 v{V_RD3}, {B2 - B1}, v{V_RD}", f"v_mov_b32 v{V_RD2}, v{V_RD}", f"v_subrev_u32 v{V_RD}, {B1 - B0}, v{V_RD}"]
    else: g63[0].reb += [f"v_subrev_u32 v{V_RD2}, {B2 - B1}, v{V_RD}", f"v_subrev_u32 v{V_RD}, {B2 - B0}, v{V_RD}"]
    first57 = g57[:2]
    Z0 = OPT["z0"] and OPT["lastp"]
    p = []
    p += gen_seg("S57", g57, g58[:2], [(sp(57, 1) + [("dl", 50), ("nb", 28)] + sp(58, 0), 0, 95)], [(7, [("dk", 5)])] * (1 - Z0) + [(GBAR, [("dv", 0), ("dv", 1)])],
                 [("step", "p", 30, GBAR - 3)], [] if Z0 else [(K_(62, 63) + (8, 60)) if OPT["tv"] else (K_(62, 63) + V_(58, 59) + (8, 90))], peel=False)
    p += gen_seg("S58", g58, g59[:2], [(sp(58, 1) + sp(59, 0), 0, 95), (epi_addr(), 0, 95)], [(GBAR, [("dk", 7)] if OPT["tv"] else [("dk", 7), ("dv", 3)])], [],
                 [(V_(58, 59, 60, 61) + (0, 74)) if OPT["tv"] else (V_(60, 61) + (0, 60))], peel=False)
    p += gen_seg("S59", g59, g60[:2], [(sp(59, 1) + [("dl", 50), ("nb", 28)] + sp(60, 0), 0, 95)], [(15, [("dv", 5)])], [], [V_(62, 63) + (16, 60)], peel=False)
    p += gen_seg("S60", g60, g61[:2], [(sp(60, 1) + sp(61, 0), 0, 95)], [(GBAR, [("dv", 7)])])
    ep = Epi([BX + 6 * i for i in range(5)] if V64 else [BX] if OPT["omv"] else [BX, BY])
    if OPT["om0"]:
        t5 = ep.temps; ep.temps = [UNIT[0], UNIT[0] + 6]
        e01 = [x for n in range(NCH) for x in ep.chunk(0, n, False, True)]
        ep.temps = t5; ep.n = 0
        e01 += [x for n in range(NCH) for x in ep.chunk(1, n)] + ep.flush()
    else: e01 = [x for qb in (0, 1) for n in range(NCH) for x in ep.chunk(qb, n, OPT["pk"])] + ep.flush()
    chk = [f"v_max3_f32 v{V_T+2}, v{V_L[0]}, v{V_L[1]}, v{V_L[2]}", f"v_max_f32 v{V_T+2}, v{V_T+2}, v{V_L[3]}",
           f"s_mov_b32 s{S_TMP}, 0x{f32bits(2.0**OPT['thr']):08x}", f"v_cmp_lt_f32 s[{S_PT}:{S_PT+1}], s{S_TMP}, v{V_T+2}"]
    c = [ep.chunk(2, j, OPT["pk"]) + ep.chunk(3, j, OPT["pk"]) + ep.flush() for j in range(NCH - 1)] + [[]]
    sm = sp(61, 1) + epi_l((0, 1), [])[2:] + [("dl", 50), ("nb", 76)] + sp(62, 0) + [("nb", 98)] + sp(62, 1) + [("nb", 124)] + sp(63, 0) + [("nb", 148)] + sp(63, 1) + [("dl", 205)] + chk + [("nb", 214)] + epi_l((2, 3), [])[2:]
    ee = e01 + [("nb", 228)] + c[0] + [("nb", 260)] + c[1]
    lastsm = 220
    if OPT["f3"]:
        sm = sp(61, 1) + epi_l((0, 1), [])[2:] + [("dl", 50), ("nb", 76)] + sp(62, 0) + [("nb", 98)] + sp(62, 1) + [("dl", 157), ("nb", 124)] + sp(63, 0) + [("nb", 148)] + sp(63, 1) + [("dl", 173)] + chk + [("nb", 182)] + epi_l((2, 3), [])[2:]
        ee = e01 + [("dl", OPT["ed"]), ("nb", 196)] + c[0] + [("dl", OPT["ed1"]), ("nb", 244)] + c[1]
        lastsm = 190
        if V64:
            lm = OPT["lmf"]
            sm = sp(61, 1, lm) + epi_l((0, 1), [])[2:] + [("dl", 50), ("nb", 76)] + sp(62, 0, lm) + [("nb", 98)] + sp(62, 1, lm) + [("dl", 165), ("nb", 124)] + sp(63, 0, lm) + [("nb", 148)] + sp(63, 1, lm) + [("dl", 187 if lm else 189)]
            if lm:
                chk = [f"v_max3_f32 v{V_T+2}, v{V_L[0]}, v{V_L[1]}, v{RL[2]}"] + [f"v_max3_f32 v{V_T+2}, v{V_T+2}, v{a_}, v{a_+1}" for a_ in (RL[2] + 1, RL[2] + 3, RL[3] + 1)] + [f"v_max_f32 v{V_T+2}, v{V_T+2}, v{RL[3]+3}"] + chk[2:]
                sm += [("nb", 198)] + chk + epi_l((2, 3), [])[2:]
            else: sm += chk + [("nb", 198)] + epi_l((2, 3), [])[2:]
            ee = e01 + [("dl", OPT["ed"] + 20), ("nb", 220)] + c[0]
            lastsm = 206
    if OPT["sst"]:
        prod = []; ev = []
        for x in ee:
            if isinstance(x, VM): prod.append(x)
            else: ev.append(x)
        es = Stream(ev, 52, 286); ss = Stream(prod, 52, 287)
        cv = [i for i, x in enumerate(es.ops) if text_of(x).startswith("v_cvt_pk")][(2 if V64 else 1)::(3 if V64 else 2)]
        rd = [i for i, x in enumerate(es.ops) if text_of(x).startswith("v_accvgpr_read")][0::(6 if V64 else 4)]
        if OPT["om0"]: rd = [0] + [c_ + 1 for c_ in cv[:-1]]
        assert len(cv) == len(prod) == len(rd)
        for k in range(len(prod)):
            ss.gate[k] = (es, cv[k]); ss.nb[k] = max([0] + [gp for i, gp in es.nb.items() if i <= cv[k]])
            kk = k + (1 if V64 else 4) * len(ep.temps)
            if OPT["om0"] and k < 8: kk = k + 2 if k < 6 else len(prod)
            if kk < len(prod): es.gate[rd[kk]] = (ss, k)
        xs = [es, ss]
        LT = [96, 102, 108, 114, 120, 64, 70, 144]
        if V64: xs.append(Stream([x for q in (2, 3) for r in range(4) for x in [f"v_accvgpr_read_b32 v{LT[4*(q-2)+r]+e}, a{O(q,6+e)+r}" for e in range(3)] +
                                  [f"v_mul_f32 v{LT[4*(q-2)+r]+e}, v{LT[4*(q-2)+r]+e}, v{RL[q]+r}" for e in range(3)]], 256, 287))
        if OPT["omv"]: xs.append(Stream([f"v_accvgpr_read_b32 v{OV(q, db)+r}, a{O(q, db)+r}" for q in (2, 3) for db in (2, 5, 8, 11) for r in range(4)], 0, 140))
    else: xs = [Stream(ee, 52, 287)]
    p += gen_seg("S61", g61 + g62 + g63, [], [(sm, 0, lastsm)], extra=xs,
                 fixed=[(1, "T", epi_l((0, 1))[:1]), (3, "T", epi_l((0, 1))[1:2]), (lastsm - 15, "T", epi_l((2, 3), acc=V64 and OPT["lmf"])[:1]), (lastsm - 13, "T", epi_l((2, 3), acc=V64 and OPT["lmf"])[1:2]), (lastsm + 5, "A", [f"s_cmp_lg_u64 s[{S_PT}:{S_PT+1}], 0", "s_cbranch_scc1 L_slow"]), (95, "T", istamp("S62")), (191, "T", istamp("S63"))])
    p += istamp("fin") + ["s_nop 7"]
    if OPT["omv"]: ep.temps = [UNIT[0], UNIT[1]]
    if V64:
        for q in (2, 3):
            for r in range(4):
                o = LT[4 * (q - 2) + r]
                p += [f"v_accvgpr_read_b32 v{o+e}, a{O(q,6+e)+r}" for e in range(3, 6)] + [f"v_cvt_pk_bf16_f32 v{o}, v{o}, v{o+1}"]
                p += [f"v_mul_f32 v{o+e}, v{o+e}, v{RL[q]+r}" for e in range(3, 6)] + [f"v_cvt_pk_bf16_f32 v{o+i}, v{o+2*i}, v{o+2*i+1}" for i in (1, 2)]
                p += [VM("out", f"buffer_store_dwordx3 v[{o}:{o+2}], v{GA}, s[{S_OUT}:{S_OUT+3}], s{S_EQ[q]} offen offset:{192 + r*384}{OF}")]
        return first57, p
    p += ep.chunk(2, NCH - 1, True, OPT["omv"]) + ep.flush() + ep.chunk(3, NCH - 1, True, OPT["omv"]) + ep.flush()
    return first57, p
def slow_epi():
    ep = Epi([64 + 6 * i for i in range(8)] if V64 else [64 + 16 * i for i in range(4)])
    seq = ["s_nop 1"] + epi_l((0, 1)) + epi_l((2, 3)) + ["s_nop 0"]
    for qb in range(4):
        for n in range(NCH): seq += ep.chunk(qb, n, True)
    return seq + ep.flush()

def kfrag(g):
    return 2 * (g >> 2) + (g & 1), (g >> 1) & 1
def gen_slow():
    KF = 64; VF = 112; SS = 160; PP = 224; M = [240, 241, 242, 243]; KA = [244, 245]; LA = 246; t = V_T
    p = ["L_slow:", "s_waitcnt vmcnt(0) lgkmcnt(0)", "s_nop 15"]
    for i in range(192): p.append(f"v_accvgpr_write_b32 a{i}, 0")
    for q in range(4): p += [f"v_mov_b32 v{V_L[q]}, 0", f"v_mov_b32 v{M[q]}, 0xff7fffff"]
    p += [f"v_subrev_u32 v{KA[0]}, {A1}, v{V_RDK[0]}", f"v_subrev_u32 v{KA[1]}, {A1}, v{V_RDK[1]}", f"v_subrev_u32 v{LA}, {B0}, v{V_RD}",
          f"s_mov_b32 s{S_PT}, 0", "L_slowloop:"]
    for i in range(1, 5): p.append(f"s_add_u32 s{S_PT+i}, s{S_PT}, {[0, 6144, 12288, 16384, 20480][i]}")
    for f in range(12):
        s, tb = kfrag(f)
        p.append(f"buffer_load_dwordx4 v[{KF+4*f}:{KF+4*f+3}], v{KA[s&1]}, s[{S_WS}:{S_WS+3}], s{S_PT+tb} offen offset:{(s>>1)*128} sc1")
    for db in range(12):
        p.append(f"buffer_load_dwordx4 v[{VF+4*db}:{VF+4*db+3}], v{LA}, s[{S_WS}:{S_WS+3}], s{S_PT+2+db//4} offen offset:{(db%4)*1024} sc1")
    p.append("s_waitcnt vmcnt(12)")
    for f in range(12):
        s, tb = kfrag(f)
        for qb in range(4):
            d = vr(SS + 8 * qb + 4 * tb, 4)
            p.append(f"{MF} {d}, v[{KF+4*f}:{KF+4*f+3}], {Qf(qb,s)}, {'0' if s == 0 else d}")
    p.append("s_nop 9")
    for qb in range(4):
        sb = SS + 8 * qb
        p += [f"v_max3_f32 v{t}, v{sb}, v{sb+1}, v{sb+2}", f"v_max3_f32 v{t}, v{t}, v{sb+3}, v{sb+4}",
              f"v_max3_f32 v{t}, v{t}, v{sb+5}, v{sb+6}", f"v_max3_f32 v{t}, v{t}, v{sb+7}, v{M[qb]}"]
        p += xlane("v_max_f32", t)
        p += [f"v_sub_f32 v{t+1}, v{M[qb]}, v{t}", f"v_exp_f32 v{t+1}, v{t+1}", f"v_mov_b32 v{M[qb]}, v{t}"]
        for i in range(8): p.append(f"v_sub_f32 v{sb+i}, v{sb+i}, v{t}")
        for i in range(8): p.append(f"v_exp_f32 v{sb+i}, v{sb+i}")
        p.append(f"v_mul_f32 v{V_L[qb]}, v{V_L[qb]}, v{t+1}")
        for i in range(8): p.append(f"v_add_f32 v{V_L[qb]}, v{V_L[qb]}, v{sb+i}")
        for i in range(4): p.append(f"v_cvt_pk_bf16_f32 v{PP+4*qb+i}, v{sb+2*i}, v{sb+2*i+1}")
        p += [f"ds_bpermute_b32 v{248+r}, v{BA}, v{t+1} offset:{4*r}" for r in range(4)] + ["s_waitcnt lgkmcnt(0)"]
        for i in range(48):
            a = O(qb, 0) + i; tt = t + 2 + (i % 2)
            p += [f"v_accvgpr_read_b32 v{tt}, a{a}", f"v_mul_f32 v{tt}, v{tt}, v{248+i%4}", f"v_accvgpr_write_b32 a{a}, v{tt}"]
    p += ["s_waitcnt vmcnt(0)", "s_nop 1"]
    for db in range(12):
        for qb in range(4):
            d = ar(O(qb, db), 4)
            p.append(f"{MF} {d}, v[{PP+4*qb}:{PP+4*qb+3}], v[{VF+4*db}:{VF+4*db+3}], {d}")
    p += [f"s_add_u32 s{S_PT}, s{S_PT}, {STAGE}", f"s_cmp_lt_u32 s{S_PT}, {HEADBYTES}", "s_nop 7", "s_cbranch_scc1 L_slowloop"]
    e = slow_epi(); resolve(e)
    return p + fin(e) + ["s_branch L_fin"]

def xlane(op, t, u=None):
    u = t + 1 if u is None else u
    l = []
    for sw in ("v_permlane16_swap_b32", "v_permlane32_swap_b32"):
        l += [f"v_mov_b32 v{u}, v{t}", "s_nop 1", f"{sw} v{t}, v{u}", "s_nop 1", f"{op} v{t}, v{t}, v{u}"]
    return l
def rowmax2(t, qs, tq):
    l = []
    ab = [(Sq(t, j, 0), Sq(t, j, 1)) for j in range(2)]
    l += [f"v_max3_f32 v{tq[j]}, v{a}, v{a+1}, v{a+2}" for j, (a, b) in enumerate(ab)]
    l += [f"v_max3_f32 v{tq[j]}, v{tq[j]}, v{a+3}, v{b}" for j, (a, b) in enumerate(ab)]
    l += [f"v_max3_f32 v{tq[j]}, v{tq[j]}, v{b+1}, v{b+2}" for j, (a, b) in enumerate(ab)]
    l += [f"v_max_f32 v{tq[j]}, v{tq[j]}, v{b+3}" for j, (a, b) in enumerate(ab)]
    for sw in ("v_permlane16_swap_b32", "v_permlane32_swap_b32"):
        l += [f"v_mov_b32 v{tq[j]+1}, v{tq[j]}" for j in range(2)] + ["s_nop 0"]
        l += [f"{sw} v{tq[j]}, v{tq[j]+1}" for j in range(2)] + ["s_nop 0"]
        l += [f"v_max_f32 v{tq[j]}, v{tq[j]}, v{tq[j]+1}" for j in range(2)]
    l += [f"v_sub_f32 v{NEGM(qs[j])+i}, 0, v{tq[j]}" for j in range(2) for i in range(4)]
    return l
def sm_one(t, sl):
    a, b = Sq(t, sl, 0), Sq(t, sl, 1); tq = V_CT; qb = slot_q(t, sl); rs = [r + i for r in (a, b) for i in range(4)]
    l = [f"v_max3_f32 v{tq}, v{a}, v{a+1}, v{a+2}", f"v_max3_f32 v{tq+2}, v{a+3}, v{b}, v{b+1}",
         f"v_max3_f32 v{tq}, v{tq}, v{b+2}, v{b+3}", f"v_max_f32 v{tq}, v{tq}, v{tq+2}"] + xlane("v_max_f32", tq)
    l += [f"v_sub_f32 v{r}, v{r}, v{tq}" for r in rs] + [f"v_exp_f32 v{r}, v{r}" for r in rs] + [f"v_sub_f32 v{NEGM(qb)+i}, 0, v{tq}" for i in range(4)]
    l += [f"v_add_f32 v{V_L[qb]}, v{V_L[qb]}, v{r}" for r in rs] + [f"v_cvt_pk_bf16_f32 v{a+i}, v{rs[2*i]}, v{rs[2*i+1]}" for i in range(4)]
    return l
def addneg(t, sl):
    n = NEGM(slot_q(t, sl))
    return [f"v_add_f32 v{Sq(t,sl,tb)+i}, v{Sq(t,sl,tb)+i}, v{n}" for tb in range(2) for i in range(4)]

def resolve(seq):
    vm = []; ds = []
    for x in seq:
        if isinstance(x, VM): vm.append(x.tag)
        elif isinstance(x, DS): ds.append(x.tag)
        elif isinstance(x, (W, LG)):
            q = vm if isinstance(x, W) else ds
            best = None
            for tag in x.tags:
                n = 0; found = False
                for t in reversed(q):
                    if t == tag: found = True; break
                    n += 1
                if found: best = n if best is None else min(best, n)
            if best is not None:
                x.n = best if getattr(x, "n", None) is None else min(x.n, best)
        else:
            assert not x.startswith(("ds_", "buffer_")) or "UNTRACKED" in x, x
def vm_size(x):
    t = x.text
    if t.startswith("buffer_store"): return 0
    if x.tag == "pre": return 3.0
    if " lds" in t: return 1.0
    if "dwordx4" in t or "dwordx3" in t: return 0.75
    if "dwordx2" in t and "offen" in t: return 0.375
    return 0.125
def pace(seq, cap):
    out = []; q = []; on = False; q2 = []; cap2 = OPT["cap2"] / 4; n2 = 0
    for x in seq:
        if x == ";ENDCAP2": cap2 = 0; continue
        if isinstance(x, W): q = q[len(q) - min(len(q), x.n):]; q2 = q2[len(q2) - min(len(q2), x.n):]; on = True
        elif isinstance(x, VM):
            sz = vm_size(x); ld = not x.text.startswith("buffer_store")
            if on and ld and sum(q) + sz > cap:
                while q and sum(q) + sz > cap: q.pop(0)
                w = W(); w.n = len(q); q2 = q2[len(q2) - min(len(q2), w.n):]
                if out and out[-1] == "s_nop 0": out.pop()
                out.append(w)
            if cap2 and (on or OPT["cap2e"]) and ld and sum(q2) + sz > (cap2 if on else OPT["cap2e"] / 4):
                while q2 and sum(q2) + sz > (cap2 if on else OPT["cap2e"] / 4): q2.pop(0)
                w = W(); w.n = len(q2); n2 += 1
                out += [f"s_bitcmp{OPT['cap2p']}_b32 s2, 0", f"s_cbranch_scc1 L_thr{n2}", w, f"L_thr{n2}:"]
            q.append(sz); q2.append(sz)
        out.append(x)
    return out
def fin(seq):
    out = []
    for x in seq:
        if isinstance(x, (W, LG)):
            if OPT["ab"] and getattr(x, "n", None) is None: x.n = 63
            assert getattr(x, "n", None) is not None, x.tags
            out.append(f"s_waitcnt vmcnt({min(x.n, 63)})" if isinstance(x, W) else f"s_waitcnt lgkmcnt({min(x.n, 15)})")
        elif isinstance(x, (VM, DS)): out.append(x.text)
        else: out.append(x.replace(" ;UNTRACKED", ""))
    return out
def groups_of(l):
    out = [[]]
    for x in l:
        out[-1].append(x)
        if isinstance(x, VM): out.append([])
    tail = out.pop()
    if tail: out[-1] += tail
    return out
def sprinkle(code, l):
    if not l: return list(code)
    gs = groups_of(l); out = []; n = len(code); m = len(gs); j = 0
    for i, x in enumerate(code):
        while j < m and i * m >= j * n: out += with_nop(gs[j]); j += 1
        out.append(x)
    for g in gs[j:]: out += with_nop(g)
    return out
def srd(p, s, lo, hi, off_s, size):
    p += [f"s_add_u32 s{s}, s{lo}, s{off_s}", f"s_addc_u32 s{s+1}, s{hi}, 0", f"s_mov_b32 s{s+2}, {size}", f"s_mov_b32 s{s+3}, 0x20000"]

def gen_main():
    p = []
    p += [f"{NAME}_kernel:", "s_cmp_ge_u32 s2, 256", "s_cbranch_scc1 L_done",
          "s_load_dwordx16 s[40:55], s[0:1], 0", "s_load_dwordx4 s[16:19], s[0:1], 64"]
    if OPT["stamp"]: p += ["s_memtime s[98:99]" if OPT["stamp"] == 6 else "s_memrealtime s[98:99]"]
    p += [f"s_and_b32 s{S_HEAD}, s2, 7", f"s_lshr_b32 s{S_QB}, s2, 3", f"s_lshr_b32 s24, s{S_QB}, 3", f"s_lshl_b32 s{S_HEAD}, s{S_HEAD}, 2",
          f"s_add_u32 s{S_HEAD}, s{S_HEAD}, s24", f"s_and_b32 s{S_QB}, s{S_QB}, 7"]
    p += ["s_getpc_b64 s[60:61]", "L_pc:", f"s_sub_u32 s60, s60, L_pc-{NAME}_kernel", "s_subb_u32 s61, s61, 0",
          f"s_mov_b32 s62, L_slow-{NAME}_kernel", "s_mov_b32 s63, 0x20000",
          "s_lshr_b32 s22, s2, 3", "s_lshl_b32 s22, s22, 12",
          "v_lshlrev_b32 v30, 4, v0",
          VM("pf", "buffer_load_dwordx4 v[128:131], v30, s[60:63], s22 offen" + (" nt" if OPT["pfnt"] else ""))]
    p += ["v_lshrrev_b32 v24, 6, v0",
          "v_and_b32 v25, 63, v0",
          f"v_readfirstlane_b32 s{S_WAVE}, v24",
          f"v_lshlrev_b32 v{V_RD}, 4, v25",
          "v_mul_u32_u24 v26, 43, v25", "v_lshrrev_b32 v26, 10, v26",
          "v_mul_u32_u24 v27, 24, v26",
          "v_sub_u32 v27, v25, v27",
          "v_lshrrev_b32 v28, 1, v24",
          "v_and_b32 v29, 1, v24",
          "v_lshlrev_b32 v30, 4, v29",
          "v_lshl_add_u32 v30, v28, 2, v30",
          "v_add_u32 v30, v30, v26",
          "v_mul_u32_u24 v30, 768, v30",
          "v_lshrrev_b32 v48, 1, v26", "v_lshlrev_b32 v48, 30, v48",
          "v_lshl_add_u32 v30, v27, 4, v30", f"v_or_b32 v{V_KLD}, v30, v48",
          f"v_lshl_or_b32 v{V_KSC}, v27, 3, v48",
          "v_mul_u32_u24 v30, 6144, v24",
          ] + (["v_mul_u32_u24 v31, 12, v25", f"v_add_u32 v{V_VLD}, v30, v31"] if V64 else [f"v_add3_u32 v{V_VLD}, v30, v{V_RD}, v48"])
    for sd, size in ((S_QK, HEADBYTES), (S_QV, HEADBYTES), (S_KS, 12288), (S_KZ, 12288), (S_VS, 4096), (S_VZ, 4096), (S_FLG, 64)):
        p += [f"s_mov_b32 s{sd+2}, {size}", f"s_mov_b32 s{sd+3}, 0x20000"]
    p += [f"s_mul_i32 s{S_PK0}, s{S_QB}, {STAGE}", f"s_add_u32 s{S_PK1}, s{S_PK0}, 6144", f"s_mov_b32 s{S_PV0}, s{S_PK0}",
          f"s_lshr_b32 s{S_PKS}, s{S_QB}, 1", f"s_mul_i32 s{S_PKS}, s{S_PKS}, 384", f"s_lshl_b32 s{S_PVS}, s{S_QB}, 6",
          f"s_lshl_b32 s24, s{S_WAVE}, 4", f"s_add_u32 s{S_PVS}, s{S_PVS}, s24",
          f"s_mul_i32 s24, s{S_HEAD}, {HEADBYTES}", f"s_mul_i32 s56, s{S_HEAD}, 12288", f"s_lshl_b32 s57, s{S_HEAD}, 12",
          f"s_lshl_b32 s58, s{S_HEAD}, 10", f"s_add_u32 s58, s58, {FLAG_OFF + 96}",
          f"s_or_b32 s{S_RET}, s{S_QB}, s{S_WAVE}"]
    p += ["s_waitcnt lgkmcnt(0)"] + istamp("karg", True)
    def base(sd, lo, off): return [f"s_add_u32 s{sd}, s{lo}, s{off}", f"s_addc_u32 s{sd+1}, s{lo+1}, 0"]
    p += base(S_QK, 42, 24) + base(S_KS, 46, 56) + base(S_KZ, 48, 56)
    kl = [k_ld(0, BX, 32, "k0a"), k_ld(1, BY, 36, "k0b")]; vl = [v_ld(0, 112, 40, "v0a"), v_ld(1, 80, 44, "v0b")]
    for x in kl[1][:2]: x.tag = "k0a"
    for x in vl[1][:2]: x.tag = "v0a"
    if OPT["ksc"]:
        for x in kl[0][2:] + kl[1][2:]: x.tag = "kraw"
        for x in kl[1][:2]: x.tag = "k0b"
        p += kl[0][2:] + kl[1][2:] + kl[0][:2] + kl[1][:2]; kl[1] = []
    else: p += kl[0][2:] + kl[0][:2] + kl[1][:2]
    p += base(S_FLG, 18, 58) + base(S_VS, 50, 57) + base(S_VZ, 52, 57) + base(S_QV, 44, 24)
    p += [f"s_mul_i32 s59, s{S_HEAD}, 786432"] + base(S_OUT, 54, 59) + base(S_Q, 40, 59)
    p += [f"s_cmp_lg_u32 s{S_RET}, 0", "s_cbranch_scc1 L_notleader0", f"s_buffer_load_dwordx16 s[40:55], s[{S_FLG}:{S_FLG+3}], 0 glc", "L_notleader0:"]
    p += kl[1][2:]
    p += [f"s_add_u32 s24, s24, {WSOFF}"] * (1 if WSOFF else 0)
    srd(p, S_WS, 18, 19, 24, HEADBYTES)
    p += [f"s_mov_b32 s{S_Q+2}, 786432", f"s_mov_b32 s{S_Q+3}, 0x20000"]
    p += [f"s_mov_b32 s{S_DBG}, s16", f"s_mov_b32 s{S_DBG+1}, s17", f"s_add_u32 s{S_PV1}, s{S_PK0}, 3072", f"s_add_u32 s{S_PV2}, s{S_PK0}, 6144"]
    p += [f"s_mov_b32 s{S_DBG+2}, 256", f"s_mov_b32 s{S_DBG+3}, 0x20000", f"s_lshl_b32 s{S_HOFF}, s{S_HEAD}, 3"]
    p += [f"s_cmp_lg_u32 s{S_RET}, 0", "s_cbranch_scc1 L_notleader", "s_waitcnt lgkmcnt(0)", f"s_mov_b32 s{S_TP}, 1"]
    for i in range(16):
        p += [f"s_lshr_b32 s{40+i}, s{40+i}, 10", f"s_min_u32 s{40+i}, s{40+i}, 31", f"s_bitset1_b32 s{S_TP}, s{40+i}"]
    p += [f"s_ff0_i32_b32 s{S_TP}, s{S_TP}", f"s_lshl_b32 s{S_TP}, s{S_TP}, 10", f"v_mov_b32 v{V_POLL}, s{S_TP}",
          "s_mov_b64 exec, 1", f"buffer_store_dword v{V_POLL}, off, s[{S_DBG}:{S_DBG+3}], s{S_HOFF} sc1 ;UNTRACKED", "s_mov_b64 exec, -1",
          "L_notleader:"]
    p += [f"s_lshl_b32 s24, s{S_QB}, 2", f"s_add_u32 s24, s24, 32", f"s_buffer_load_dword s{S_OWN}, s[{S_FLG}:{S_FLG+3}], s24 glc",
          ] + ([f"s_getreg_b32 s{S_XCC}, hwreg(HW_REG_XCC_ID, 0, 4)", f"s_lshl_b32 s{S_XCC}, s{S_XCC}, 5", f"s_mov_b32 s{S_FOFF}, {32 if OPT['l2'] == 3 else 0}"] if OPT["l2"] else
          [f"s_mov_b32 s{S_XCC}, 0", f"s_mov_b32 s{S_FOFF}, 32"])
    p += vl[0][2:] + vl[0][:2] + vl[1][:2] + (vl[1][2:] if OPT["greedy"] else []) + istamp("iss", True)
    if OPT["pre"]:
        st = OPT["pre"]
        p += [f"v_mul_u32_u24 v31, {st}, v25", f"v_mul_u32_u24 v30, 6144, v24", "v_add_u32 v31, v30, v31"]
        if st == 128: p += ["v_or_b32 v31, v31, v48"]
        p += [VM("pre", f"buffer_load_dword v132, v31, s[{S_WS}:{S_WS+3}], s{S_PK0} offen" + (" nt" if OPT["prent"] else ""))]
        if st == 64: p += ["v_add_u32 v30, 4096, v31", "s_mov_b64 exec, 0xffffffff", VM("pre", f"buffer_load_dword v133, v30, s[{S_WS}:{S_WS+3}], s{S_PK0} offen nt"), "s_mov_b64 exec, -1"]
    p += [f"s_mov_b32 s{S_OUT+2}, 786432", f"s_mov_b32 s{S_OUT+3}, 0x20000"]
    p += [f"s_lshl_b32 s24, s{S_WAVE}, 8", f"s_add_u32 s{S_HOFF}, s{S_HOFF}, s24"]
    p += ["v_mul_u32_u24 v30, 3072, v24", f"v_add_u32 v{V_DMA}, v30, v{V_RD}"]
    p += ["v_lshl_add_u32 v30, v24, 3, v26",
          "v_mul_u32_u24 v30, 384, v30",
          "v_lshlrev_b32 v31, 2, v29",
          "v_xor_b32 v31, v27, v31",
          "v_lshl_add_u32 v30, v31, 4, v30", f"v_or_b32 v{V_KST}, v30, v48",
          "v_lshlrev_b32 v30, 8, v24",
          "v_add_u32 v30, 12288, v30",
          ] + (["v_lshrrev_b32 v31, 5, v25", "v_mul_u32_u24 v31, 6144, v31", "v_add_u32 v30, v30, v31", "v_and_b32 v31, 1, v25", "v_mul_u32_u24 v31, 3072, v31", "v_add_u32 v30, v30, v31",
          "v_bfe_u32 v31, v25, 1, 4", f"v_lshl_add_u32 v{V_VST}, v31, 4, v30"] if V64 else
          ["v_lshrrev_b32 v31, 4, v25", "v_lshl_add_u32 v30, v31, 10, v30", "v_and_b32 v31, 15, v25",
          "v_lshl_add_u32 v30, v31, 4, v30", f"v_or_b32 v{V_VST}, v30, v48"])
    p += [f"s_lshl_b32 s24, s{S_QB}, 2",
          f"v_lshl_add_u32 v{V_FLAG}, v0, 2, s24", f"v_cmp_lt_u32 vcc, 0, v0", "v_mov_b32 v30, 0x40000000", "s_nop 0",
          f"v_cndmask_b32 v{V_FLAG}, v{V_FLAG}, v30, vcc"]
    p += [f"s_mul_i32 s{S_DMK}, s{S_WAVE}, 3072", f"s_add_u32 s{S_DMK}, s{S_DMK}, 12288", f"s_add_u32 s{S_DMV}, s{S_DMK}, {STAGE}",
          f"s_add_u32 s24, s{S_QB}, 1", "s_and_b32 s24, s24, 7", f"s_mul_i32 s{S_GOFFK}, s24, {STAGE}", f"s_add_u32 s{S_GOFF}, s{S_GOFFK}, 12288",
          f"s_mov_b32 s{S_RK}, {A2}", f"s_mov_b32 s{S_RV}, {B1}", f"v_add_u32 v{V_RD}, {B0}, v{V_RD}",
          f"s_mov_b32 s{S_CS}, 0x{f32bits(CSCALE):08x}", f"s_mov_b32 s{S_MASK}, 0xffff0000",
          f"s_mov_b32 s{S_BUDGET}, 100000"] + ([f"s_mov_b32 s{S_TAG+1}, 0"] if OPT["stamp"] else [])
    p += ["v_and_b32 v26, 15, v25", "v_lshrrev_b32 v27, 4, v25", "v_bfe_u32 v28, v25, 1, 3",
          "v_xor_b32 v29, v27, v28", "v_mul_u32_u24 v30, 384, v26", f"v_lshl_add_u32 v{V_RDK[0]}, v29, 4, v30",
          f"v_xor_b32 v{V_RDK[1]}, 64, v{V_RDK[0]}"]
    p += [f"s_mul_i32 s{S_QL}, s{S_WAVE}, 6144", f"s_add_u32 s{S_QL}, s{S_QL}, {B1}",
          "v_lshrrev_b32 v29, 1, v27", "v_xor_b32 v29, v29, v28", "v_lshl_add_u32 v31, v29, 4, v30",
          "v_and_b32 v29, 1, v27", "v_lshl_add_u32 v31, v29, 3, v31"]
    for kk in range(4):
        p += [f"v_xor_b32 v{VQR[kk]}, {32*kk}, v31", f"v_add_u32 v{VQR[kk]}, s{S_QL}, v{VQR[kk]}"]
    p += [f"s_lshl_b32 s24, s{S_QB}, 2", f"s_add_u32 s24, s24, s{S_WAVE}", f"s_mul_i32 s24, s24, {STAGE}"]
    for b in range(6):
        p += [f"v_add_u32 v26, {64*b}, v25", "v_mul_u32_u24 v27, 2731, v26", "v_lshrrev_b32 v27, 17, v27",
              "v_and_b32 v27, 7, v27", "v_xor_b32 v26, v26, v27", f"v_lshlrev_b32 v{VQD+b}, 4, v26", f"v_add_u32 v{VQD+b}, s24, v{VQD+b}"]
    for q in range(4): p.append(f"v_mov_b32 v{V_L[q]}, 0")
    KF = 144
    def kf_reads(): return [DS("kf", f"ds_read_b128 v[{KF+4*f}:{KF+4*f+3}], v{V_RDK[kfrag(f)[0]&1]} offset:{kfrag(f)[1]*6144 + (kfrag(f)[0]>>1)*128}") for f in range(12)]
    def qk0(qb):
        l = []
        for f in sorted(range(12), key=lambda f: kfrag(f)[::-1]):
            s, tb = kfrag(f)
            d = vr(Sq(0, qb, tb), 4)
            l.append(f"{MF} {d}, v[{KF+4*f}:{KF+4*f+3}], {Qf(qb,s)}, {'0' if s == 0 else d}")
        return l
    STF0 = "" if OPT["l2"] else STF
    def own_k(b):
        l = []
        for j in range(4):
            l += k_st(j, b, "kst", STF0)
            va = V_KST if j == 0 else V_KA + (j & 1)
            l += ["s_mov_b64 exec, s[62:63]", DS("w", f"ds_write_b128 v{va}, v[{b+4*j}:{b+4*j+3}] offset:{j*768}"), "s_mov_b64 exec, -1"]
        return l
    def own_v(b):
        l = [x for e in range(NVE) for x in v_st(e, b, "vst", STF0)]
        if V64: return l + [DS("w", f"ds_write_b128 v{V_VST}, v[{b+4*e}:{b+4*e+3}] offset:{STAGE - 12288 + e*1024}") for e in range(3)]
        l += ["s_mov_b64 exec, s[62:63]"] + [DS("w", f"ds_write_b128 v{V_VST}, v[{b+4*e}:{b+4*e+3}] offset:{STAGE - 12288 + e*3072}") for e in range(4)] + ["s_mov_b64 exec, -1"]
        return l
    p += ["s_mov_b32 s62, -1", "s_mov_b32 s63, 0xffff"]
    qa = OPT["qa"]
    qb_, qc = OPT["qb"], OPT["qc"]
    R = lambda a, b: list(range(a, b))
    if OPT["split"]:
        p += [W("k0a")] + vl[1][2:] + k_cv(0, BX, 32, BX) + [W("k0b")] + istamp("k0b", True) + k_cv(1, BY, 36, BX) + own_k(BX)
        p += tag_load() + with_nop(q_dma(R(0, qa))) + [W("v0a")] + v_cv(0, 112, 40, 112)
        p += [W("tag")] + tag_check() + ["s_waitcnt lgkmcnt(0)", "s_barrier"] + flag_post() + tag_get() + istamp("post", True)
        p += with_nop(q_dma(R(qa, qb_))) + v_cv(1, 80, 44, 112) + own_v(112) + with_nop(q_dma(R(qb_, 12))) + istamp("vst", True)
    elif OPT["greedy"]:
        p += [W("k0a")] + with_nop(q_dma(R(0, 3))) + k_cv(0, BX, 32, BX) + [W("k0b")] + istamp("k0b", True) + with_nop(q_dma(R(3, 6))) + k_cv(1, BY, 36, BX) + own_k(BX)
        p += [W("v0a")] + with_nop(q_dma(R(6, 9))) + v_cv(0, 112, 40, 112) + [W("v0b")] + with_nop(q_dma(R(9, 12))) + v_cv(1, 80, 44, 112) + own_v(112)
        p += tag_load() + with_nop(q_dma(R(12, 18))) + istamp("vst", True)
    else:
        p += [W("k0a")] + vl[1][2:] + k_cv(0, BX, 32, BX) + [W("k0b")] + istamp("k0b", True) + k_cv(1, BY, 36, BX) + own_k(BX)
        p += with_nop(q_dma(R(0, qa))) + istamp("kst", True)
        p += [W("v0a")] + sprinkle(v_cv(0, 112, 40, 112), q_dma(R(qa, qb_))) + [W("v0b")] + v_cv(1, 80, 44, 112) + ([LG("w")] if OPT["eb"] else []) + own_v(112)
        p += tag_load() + with_nop(q_dma(R(qb_, OPT["qe"]))) + istamp("vst", True)
        if OPT["eb"]: p += ["s_barrier"] + kf_reads() + [W(("q", 0))] + q_frags(0) + [LG(("qf", 0))] + qk0(0) + ["s_nop 7"] + sm_one(0, 0)
        if OPT["q3b"]: p += [W(("q", 0))] + q_frags(0) + [LG(("qf", 0))] + with_nop(q_dma(R(18, 18 + OPT["q3b"])))
    if not OPT["split"]:
        if OPT["iw"]:
            p += ["s_mov_b64 exec, 0"] + [x for w in range(3) for x in (f"s_cmp_eq_u32 s{S_WAVE}, {w}", f"s_cbranch_scc1 L_iw{w}")] + ["s_branch L_iw3", "L_iwret:", "s_mov_b64 exec, -1"]
        p += [W("tag")] + tag_check() + istamp("tag", True)
        p += ["s_waitcnt lgkmcnt(0)", "s_barrier"] + flag_post(True) + tag_get() + istamp("post", True)
    if OPT["pf2"]:
        p += [f"s_mov_b32 s{S_DBG}, s60", f"s_mov_b32 s{S_DBG+1}, s61", f"s_mov_b32 s{S_DBG+2}, L_slow-{NAME}_kernel",
              "s_lshr_b32 s24, s2, 3", f"s_mul_i32 s{S_HOFF}, s24, 43", f"s_lshr_b32 s{S_HOFF}, s{S_HOFF}, 7",
              f"s_mul_i32 s{S_RET}, s{S_HOFF}, 3", f"s_sub_u32 s24, s24, s{S_RET}", "s_lshl_b32 s24, s24, 10",
              f"s_mul_i32 s{S_HOFF}, s{S_HOFF}, 12288", f"s_add_u32 s{S_HOFF}, s{S_HOFF}, s24"]
    if not OPT["eb"]: p += kf_reads()
    ps = len(POLLSITES); POLLSITES.append(ps)
    g3n = OPT["g3n"]
    pollchk = ["s_waitcnt lgkmcnt(0)"] + smem_reduce() + [f"s_cmp_ge_u32 s{S_PT}, 16", f"s_cbranch_scc1 L_pollslow{ps}", f"L_pollok{ps}:",
          f"s_add_u32 s{S_NEED}, s{S_NEED}, 1"] + [f"s_mov_b32 s{S_FOFF}, 32"] * (OPT["l2"] == 2) + istamp("poll", True)
    sm00 = rowmax2(0, (0, 1), (V_CT, V_CT + 2)) + addneg(0, 0) + addneg(0, 1) + softmax_part(0, 0)
    qrest = R(OPT["qe"] if OPT["greedy"] == 0 else 18, 18 + g3n)
    if OPT["fs"]:
        hand = with_nop(dma_tile("k", 1, True) + dma_tile("k", 2, True) + dma_tile("k", 3, True) + dma_tile("v", 1, True)) + k_adv() + v_adv()
        def inter(mf, fill):
            out = []; fill = list(fill)
            for m in mf:
                out.append(m); cur = []
                while fill and gap_time(cur + [fill[0]]) <= 20: cur.append(fill.pop(0))
                out += cur
            return out + fill
        NPV0 = 3; rest3 = []
        p += with_nop(q_dma(R(OPT["qe"], 18)))
        if OPT["fp"]:
            NPV0 = 2; a_ = OPT["fpa"]
            if OPT["eb"]: p += [LG("tg")] + tag_use() + with_nop(q_dma(R(18, 21)))
            else: p += [W(("q", 0))] + q_frags(0) + [LG("tg")] + tag_use() + [LG(("qf", 0))] + with_nop(q_dma(R(18, 21))) + qk0(0)
            for qb in (1, 2):
                sm = [] if (qb == 1 and OPT["eb"]) else sm_one(0, qb - 1)
                p += [W(("q", qb))] + q_frags(qb) + (smem_flags() if qb == 2 else with_nop(q_dma(R(21, 24)))) + sm[:a_] + [LG(("qf", qb))] + inter(qk0(qb), sm[a_:])
            g0 = [Grp([(V_RD, (d0 + e) * 1024) for e in range(2)], [(e, ar(O(q, d0 + e), 4), vr(P(0, q), 4), "0") for q in range(2) for e in range(2)]) for d0 in range(0, 12, 2)]
            p += [";ENDCAP2"] + [rd_op(i, j, g0[i]) for i in range(2) for j in range(2)] + pollchk + hand
            p += gen_seg("S0", g0, [], [(sm_one(0, 2), 0, 23)], tasks=[("ldn", "ka", 0, 10), ("ldn", "kb", 11, 23)][:OPT["k1s"]], vmgap=2)
            sm3 = sm_one(0, 3); k3 = [i for i, x in enumerate(sm3) if x.startswith("v_sub_f32")][0]
            neg = [x for x in sm3 if x.startswith(f"v_sub_f32 v{NEGM(3)}") or (", 0, v" in x and x.startswith("v_sub"))]
            p += [W(("q", 3))] + q_frags(3) + [LG(("qf", 3))] + qk0(3) + ["s_nop 7"] + sm3[:k3] + neg
            rest3 = [x for x in sm3[k3:] if x not in neg]
        else:
            for qb in range(4):
                if qb == 3:
                    g0 = []
                    for d0 in range(0, 12, 2):
                        g0.append(Grp([(V_RD, (d0 + e) * 1024) for e in range(2)], [(e, ar(O(q, d0 + e), 4), vr(P(0, q), 4), "0") for q in range(3) for e in range(2)]))
                    p += [rd_op(i, j, g0[i]) for i in range(2) for j in range(2)] + [LG(("fr", 0), ("fr", 1))]
                    p += gen_seg("S0", g0, [], tasks=[("ldn", "ka", 0, 16), ("ldn", "kb", 17, 35)][:OPT["k1s"]], vmgap=2)
                if qb == 0 and OPT["q3b"]: p += [LG("kf")] + tag_use()
                else: p += [W(("q", qb))] + q_frags(qb) + ([LG("tg")] + tag_use() if qb == 0 else []) + (smem_flags() if qb == OPT["pq"] else []) + [LG(("qf", qb))]
                if qb < 2: p += with_nop(q_dma([x for x in R(18 + 3 * qb, 21 + 3 * qb) if x >= 18 + OPT["q3b"]]))
                p += qk0(qb) + (pollchk + hand if qb == OPT["pq"] else ["s_nop 7"]) + sm_one(0, qb)
        sp = softmax_part
        g1 = qk_tile(1, 1, [(q, q) for q in range(4)])
        gi1 = rebase(qk_full(2), V_RDK, A1 - A0)
        gi2 = [Grp([(V_RD, w * 12288 + db * 1024) for w in range(2)],
                   [x for q in range(3, NPV0 - 1, -1) for x in ((0, ar(O(q, db), 4), vr(P(0, q), 4), "0"), (1, ar(O(q, db), 4), vr(P(1, q), 4), ar(O(q, db), 4)))] +
                   [(1, ar(O(q, db), 4), vr(P(1, q), 4), ar(O(q, db), 4)) for q in range(NPV0)]) for db in range(12)]
        L2_ = len(gi2[0].mf)
        gi3 = rebase(qk_full(4), V_RDK, A2 - A1)
        gi4 = rebase(pv_seq(2), [V_RD], B1 - B0)
        p += istamp("pre-dk1", True) + [W(("dk", 1)), "s_barrier"] + [rd_op(i, j, g1[i]) for i in range(2) for j in range(2)] + [LG(("fr", 0), ("fr", 1))]
        pa = [f"v_bfe_u32 v{V_T4}, v{V_DMA}, 4, 6", f"v_lshlrev_b32 v{V_T4}, 2, v{V_T4}"] + [f"v_xor_b32 v{V_T4+j}, {16*j}, v{V_KST}" for j in (1, 2, 3)]
        p += gen_seg("S1", g1, gi1[:2], [(rest3 + (pa if OPT["pa"] else []), 0, 40)], [(31, [("dk", 3)])], [("ldn", "ka", 0, 14), ("ldn", "kb", 15, 30)][OPT["k1s"]:] +
                     ([("cv", "ka", 0, 99, OPT["fb"], 47)] if OPT["k1s"] and OPT["fb"] < 47 else []), [K_(4, 5) + (32, 46)], vmgap=2)
        p += gen_seg("S5", gi1, gi2[:2], [(sp(1, 0) + sp(1, 1) + [("dl", 54), ("nb", 47)] + sp(2, 0), 2, 95)], [(GBAR, [("dv", 1)])],
                     ([("cv", "kb", 0, 99, OPT["fa"], 95), ("ldn", "va", 20, 40)] if (OPT["k1s"] and OPT["fb"] < 47) else
                      [("cv", "ka", 0, 99, OPT["fa"], 60), ("cv", "kb", 0, 99, 61, 95), ("ldn", "va", 20, 40, "raw"), ("ldn", "va", 62, 76, "sc")]), [V_(2, 3) + (0, 18)])
        p += gen_seg("i2", gi2, gi3[:2], [(sp(2, 1) + sp(3, 0), 0, 12 * L2_ - 1)], [(10 * L2_ - 1, [("dk", 5)])],
                     [("kst", j, 2 * L2_ * j + 1) for j in range(4)] + [("ld", "vb", 6 * L2_ + 4, 12 * L2_ - 1)], [], vmgap=2)
        p += gen_seg("i3", gi3, gi4[:2], [(sp(3, 1) + [("dl", 57), ("nb", 47)] + sp(4, 0), 0, 95)], [(15, []), (GBAR, [("dv", 3)])],
                     [("post", "kst", 0), ("cv", "va", 0, 99, 0, 95)], [K_(6, 7) + V_(4, 5) + (18, 90)])
        p += [f"s_mov_b32 s{S_CNT}, {7 - OPT['lastp']}"]
        p += gen_seg("i4", gi4, seg_groups(5)[:2], [(sp(4, 1) + sp(5, 0), 0, 94)], [(GBAR, [("dk", 7)])],
                     [("ld", "ka", 0, 30), ("cv", "vb", 0, 99, 20, 94), ("step", "q", 30, 70), ("pollld", OPT["pl4"], OPT["pl4"] + 8)], [V_(6, 7) + (32, 74)],
                     endops=["s_nop 0", "s_branch L_join"])
    elif OPT["split"]:
        ps2 = len(POLLSITES); POLLSITES.append(ps2)
        pollchk2 = ["s_waitcnt lgkmcnt(0)"] + smem_reduce() + [f"s_cmp_ge_u32 s{S_PT}, 16", f"s_cbranch_scc1 L_pollslow{ps2}", f"L_pollok{ps2}:",
              f"s_add_u32 s{S_NEED}, s{S_NEED}, 1"] + istamp("pollV", True)
        p += [W(("q", 0))] + q_frags(0) + [LG("tg")] + tag_use() + [LG(("qf", 0))] + smem_flags() + qk0(0) + pollchk
        p += with_nop(dma_tile("k", 1, True)) + k_adv() + v_adv()
        p += [W("vst"), "s_barrier"] + flag_post() + istamp("postV", True)
        p += with_nop(dma_tile("k", 2, True) + dma_tile("k", 3, True))
        p += [W(("q", 1))] + q_frags(1) + with_nop(q_dma(R(12, 15))) + [LG(("qf", 1))] + qk0(1) + ["s_nop 7"]
        g0 = pv_unchained(0, True)[:6]
        p += [rd_op(i, j, g0[i]) for i in range(2) for j in range(2)] + sprinkle(sm00, q_dma(R(15, 18 + g3n))) + smem_flags() + [LG(("fr", 0), ("fr", 1))]
        p += gen_seg("S0", g0, [], tasks=[("q", R(18 + g3n, 24), 0, 22)] if g3n < 6 else [], vmgap=2) + pollchk2
        p += with_nop(dma_tile("v", 1, True))
        g3n = 6
    elif OPT["own1"] == 2:
        p += [W(("q", 0))] + q_frags(0) + [LG("tg")] + tag_use() + with_nop(q_dma(qrest[:3])) + [LG(("qf", 0))] + qk0(0)
        p += [W(("q", 1))] + q_frags(1) + smem_flags() + with_nop(q_dma(qrest[3:])) + [LG(("qf", 1))] + qk0(1) + pollchk
        g0 = pv_unchained(0, True)[:6]
        p += [rd_op(i, j, g0[i]) for i in range(2) for j in range(2)]
        p += sprinkle(sm00, dma_tile("k", 1, True) + dma_tile("k", 2, True) + dma_tile("k", 3, True) + dma_tile("v", 1, True)) + k_adv() + v_adv() + [LG(("fr", 0), ("fr", 1))]
        p += gen_seg("S0", g0, [], tasks=[("q", R(18 + g3n, 24), 0, 22)] if g3n < 6 else [], vmgap=2)
        g3n = 6
    elif OPT["own1"]:
        pre0 = [x for x in qrest[:3] if x < 18]; post0 = [x for x in qrest[:3] if x >= 18]
        p += [W(("q", 0))] + q_frags(0) + [LG("tg")] + tag_use() + with_nop(q_dma(pre0)) + [LG(("qf", 0))] + with_nop(q_dma(post0)) + qk0(0)
        if OPT["q0f"]: p += ["s_nop 7"] + sm_one(0, 0); sm00 = sm_one(0, 1)
        p += [W(("q", 1))] + q_frags(1) + with_nop(q_dma(qrest[3:6])) + [LG(("qf", 1))] + qk0(1) + ["s_nop 7"]
        g0 = pv_unchained(0, True)[:6]
        p += [rd_op(i, j, g0[i]) for i in range(2) for j in range(2)] + sprinkle(sm00, q_dma(qrest[6:])) + smem_flags() + [LG(("fr", 0), ("fr", 1))]
        p += gen_seg("S0", g0, []) + pollchk
        p += with_nop(dma_tile("k", 1, True) + dma_tile("k", 2, True) + dma_tile("k", 3, True) + dma_tile("v", 1, True)) + k_adv() + v_adv()
        if OPT["qf"]: p += with_nop(q_dma(R(18 + g3n, 24))); g3n = 6
    else:
        p += [W(("q", 0))] + q_frags(0) + [LG("tg")] + tag_use() + [W(("q", 1))] + q_frags(1) + smem_flags()
        p += [LG(("qf", 0))] + with_nop(q_dma(qrest)) + pollchk
        p += with_nop(dma_tile("k", 1, True)) + k_adv() + v_adv()
        p += sprinkle(qk0(0) + qk0(1), dma_tile("k", 2, True)) + ["s_nop 7"]
        p += sprinkle(sm00, dma_tile("k", 3, True) + dma_tile("v", 1, True))
    if not OPT["fs"]:
        sp = softmax_part
        g1 = qk_half(0, ws=(1,))
        g2 = rebase(qk_half(1), V_RDK, A1 - A0)
        g3 = pv_unchained(0, True)[6 if OPT["own1"] else 0:]
        g4 = rebase(pv_unchained(1), [V_RD], B1 - B0)
        g5 = rebase(qk_half(2, True), V_RDK, A0 - A1) + rebase(qk_half(3), V_RDK, A1 - A0)
        gi3 = rebase(qk_full(4), V_RDK, A2 - A1)
        gi4 = rebase(pv_seq(2, True), [V_RD], B0 - B1) + rebase(pv_seq(3), [V_RD], B1 - B0)
        p += istamp("pre-dk1", True) + [W(("dk", 1)), "s_barrier"] + [rd_op(i, j, g1[i]) for i in range(2) for j in range(2)]
        p += [LG(("fr", 0), ("fr", 1))]
        p += gen_seg("S1", g1, g2[:2], [], [(15, [("dk", 3)])], [], [V_(2, 3) + (0, 21)], vmgap=2)
        p += gen_seg("S2", g2, g3[:2], [(sp(0, 1), 3, 47)], [(39, [("dv", 3)])] if OPT["own1"] else [], ([("q", R(18 + g3n, 24), 0, 24)] if g3n < 6 else []) + [("ldn", "ka", 25 if g3n < 6 else 0, 47)])
        if OPT["own1"]: p += gen_seg("S3", g3, g4[:2], [(sp(1, 0), 0, 23)], [], [("ldn", "kb", 0, 23)])
        else: p += gen_seg("S3", g3, g4[:2], [(sp(1, 0), 0, 47)], [(15, [("dv", 3)])], [("ldn", "kb", 0, 22), ("ldn", "va", 23, 46, "raw")])
        p += gen_seg("S4", g4, g5[:2], [(sp(1, 1), 0, 21)], [], [("ldn", "va", 0, 30, "raw")] if OPT["own1"] else [], extra=[Stream([W(("q", 2))] + q_frags(2) + [W(("q", 3))] + q_frags(3), 16, 46)])
        p += istamp("pre-S5", True) + ["s_waitcnt lgkmcnt(0)", "s_barrier"]
        p += gen_seg("S5", g5, gi3[:2], [(rowmax2(2, (2, 3), (V_T, V_T + 2)), 27, 45), (addneg(2, 0) + addneg(2, 1) + sp(2, 0) + addneg(2, 2) + addneg(2, 3) + sp(2, 1), 46, 95)],
                     [(GBAR + 8, [("dk", 5)])], [("cv", "ka", 0, 99, 0, 34), ("cv", "kb", 0, 99, 35, 72), ("kst", 0, 73), ("kst", 1, 77), ("kst", 2, 89), ("kst", 3, 93),
                     ("ldn", "va", 36, 60, "sc")], [K_(4, 5) + (1, 24)])
        p += gen_seg("i3", gi3, gi4[:2], [(sp(3, 0) + sp(3, 1), 0, 54), (sp(4, 0), 55, 95)], [(OPT["pb"], []), (GBAR, [])],
                     [("ld", "vb", 0, 22), ("post", "kst", 0), ("cv", "va", 0, 99, 10, 95)], [K_(6, 7) + V_(4, 5) + (24, 90)])
        p += [f"s_mov_b32 s{S_CNT}, {7 - OPT['lastp']}", f"s_mul_i32 s{S_RC}, s{S_QB}, {STAGE}", f"s_mov_b32 s{S_RD}, 12288"]
        p += gen_seg("i4", gi4, seg_groups(5)[:2], [(sp(4, 1) + sp(5, 0), 0, 94)], [(47, []), (GBAR + 8, [("dk", 7)])],
                     [("ld", "ka", 0, 30), ("cv", "vb", 0, 99, 30, 94), ("step", "q", 30, 70), ("pollld", OPT["pl4"], OPT["pl4"] + 8)], [V_(6, 7) + (52, 84)],
                     endops=["s_nop 0", "s_branch L_join"])
    p += [".p2align 6"] + ["s_nop 0"] * OPT.get("pad", 0) + ["L_loop:"]
    pro_ = p
    first57, tail = gen_tail()
    bodyA = []
    for k in (1, 2, 3, 4, 5, 6, 7, 0):
        if k == 5: bodyA.append("L_join:"); jpos = len(bodyA)
        eo = [f"s_sub_u32 s{S_CNT}, s{S_CNT}, 1", f"s_cmp_lg_u32 s{S_CNT}, 0", "s_cbranch_scc1 L_loop"] if k == 0 else ()
        t, d = steady(k)
        if OPT["ab"] & 8: d = []
        if OPT["ab"] & 16: t = [x for x in t if x[0] not in ("cv", "kst", "vst", "ld")]
        if OPT["ab"] & 1024: t = [x for x in t if not (x[0] in ("cv", "ld") and x[1] in ("va", "vb")) and x[0] != "vst"]
        if OPT["ab"] & 128: t = [x for x in t if x[0] not in ("cv",)]
        if OPT["ab"] & 256: t = [x for x in t if x[0] not in ("kst", "vst")]
        if OPT["ab"] & 512: t = [x for x in t if x[0] not in ("ld",)]
        bars = None
        if OPT["nb6"]:
            dk = lambda *x: [("dk", i) for i in x]; dv = lambda *x: [("dv", i) for i in x]
            bars = {0: [], 4: [], 7: [(GBAR, dv(6, 7) + dk(2, 3))], 3: [(GBAR, dv(2, 3) + dk(6, 7))]}.get(k)
        bodyA += gen_iter(16 + k, t, d, name=f"k{k}", endops=eo, bars=bars)
    lastt = []
    if OPT["lastp"]:
        for k in (1, 2, 3, 4, 5, 6, 7, 0):
            t, d = steady(k)
            t = [x for x in t if not ((x[0] in ("ld", "cv") and x[1] == "ka") or (x[0] in ("ld", "cv") and x[1] == "kb" and k != 1) or x[:2] == ("ld", "va") or x[0] == "pf")]
            dk = lambda *x: [("dk", i) for i in x]; dv = lambda *x: [("dv", i) for i in x]
            bars = {0: [], 4: [], 7: [(GBAR, dv(6, 7) + dk(2, 3))], 3: [(GBAR, dv(2, 3) + dk(6, 7))]}.get(k) if OPT["nb6"] else None
            if k == 0 and OPT["z0"]: bars = [(15, dk(5))]; d = [V_(0, 1) + K_(6, 7) + (16, 90)]
            ex = [Stream([f"v_accvgpr_read_b32 v{O0(db)+r}, a{O(0, db)+r}" for db in range(12) for r in range(4)], 4, 95)] if (k == 7 and OPT["om0"]) else []
            OM[0] = k == 0
            lastt += gen_iter(16 + k, t, d, name=f"z{k}", bars=bars, extra=ex)
            OM[0] = False
    tail = lastt + tail
    assert OPT["qo"] or [g.rd for g in first57] == [g.rd for g in seg_groups(17)[:2]]
    tailc = tail + ["L_fin:"]
    resolve(pro_ + bodyA[jpos:] + bodyA + bodyA + tailc)
    if OPT["cap"]: pro_ = pace(pro_, OPT["cap"] / 4)
    P_ = Prog()
    P_.extend(fin(pro_))
    a0 = len(P_.ins); P_.extend(fin(bodyA)); a1 = len(P_.ins)
    P_.extend(fin(tailc))
    p = P_
    if OPT["stamp"]:
        p("s_waitcnt vmcnt(0) lgkmcnt(0)")
        p.extend(istamp("end"))
        p("s_waitcnt lgkmcnt(0)")
        p.extend(istamp("end2"))
        p(f"v_writelane_b32 v{V_STAMP}, s{S_TAG+1}, 63")
        p(f"v_writelane_b32 v{V_STAMP}, s{S_BUDGET}, 62"); p(f"v_writelane_b32 v{V_STAMP}, s{S_NEED}, 61"); p(f"v_writelane_b32 v{V_STAMP}, s101, 60"); p(f"v_writelane_b32 v{V_STAMP}, s100, 59")
        p("s_add_u32 s8, s18, 0xfa00000"); p("s_addc_u32 s9, s19, 0"); p("s_mov_b32 s10, 1048576"); p("s_mov_b32 s11, 0x20000")
        p("s_lshl_b32 s24, s2, 2"); p(f"s_add_u32 s24, s24, s{S_WAVE}"); p("s_lshl_b32 s24, s24, 8")
        p(f"v_bfe_u32 v32, v{V_DMA}, 4, 6"); p("v_lshlrev_b32 v32, 2, v32")
        p(f"buffer_store_dword v{V_STAMP}, v32, s[8:11], s24 offen")
        if OPT["stamp"] == 8: STAMPS.sort(key=lambda n: 0)
        open(sys.argv[1] + ".stamps", "w").write("\n".join(order_stamps()))
    if OPT["calx"]:
        p("s_waitcnt vmcnt(0)")
        p("L_cal:")
        p("s_memrealtime s[40:41]")
        p("s_waitcnt lgkmcnt(0)")
        p("s_sub_u32 s40, s40, s100")
        p("s_cmp_lt_u32 s40, 10000")
        p("s_cbranch_scc1 L_cal")
    p("L_done:")
    p("s_endpgm")
    main_end0 = len(p.ins)
    for ps in POLLSITES: p.extend(poll_slow(ps))
    p.extend(tag_slow())
    main_end = len(p.ins)
    p.extend(gen_slow())
    slow_end = len(p.ins)
    ji = [i for i, x in enumerate(p.ins) if x.text == "L_join:"][0]
    lin = p.ins[:a0] + p.ins[ji:a1] + p.ins[a0:main_end0]
    sl = [i for i, x in enumerate(p.ins) if x.text == "L_slowloop:"][0]
    bi = [i for i, x in enumerate(p.ins) if x.text == "s_cbranch_scc1 L_slowloop"][0]
    probs = check_hazards(lin, "main") + check_hazards(p.ins[main_end:bi+1] + p.ins[sl:slow_end], "slow") + check_hazards(p.ins[main_end0:main_end], "aux")
    for x in probs: print(x, file=sys.stderr)
    return p

def kd(name, vgpr, sgpr, accum):
    return f""".amdhsa_kernel {name}
  .amdhsa_next_free_vgpr {vgpr}
  .amdhsa_next_free_sgpr {sgpr}
  .amdhsa_accum_offset {accum}
  .amdhsa_group_segment_fixed_size 0
  .amdhsa_kernarg_size 80
  .amdhsa_user_sgpr_count 2
  .amdhsa_user_sgpr_kernarg_segment_ptr 1
  .amdhsa_system_sgpr_workgroup_id_x 1
.end_amdhsa_kernel
"""
def build_text(body):
    o = HEADER + f"; @launch grid=(256,1,1) block=(256,1,1) lds={LDS_BYTES}\n" + '.amdgcn_target "amdgcn-amd-amdhsa--gfx950"\n.text\n'
    o += f".globl {NAME}_kernel\n.p2align 8\n.type {NAME}_kernel,@function\n" + body
    return o + '.section .rodata,"a"\n.p2align 6\n' + kd(NAME + "_kernel", 512, 102, 256)
def addresses(lines):
    import subprocess, types, ctypes
    _o = ctypes.CDLL
    class F:
        def __getattr__(s, n):
            x = types.SimpleNamespace(); object.__setattr__(s, n, x); return x
    ctypes.CDLL = lambda n, *a, **k: (F() if "amdhip" in n else _o(n, *a, **k))
    sys.path.insert(0, "cdna_kernels")
    import cdna_launch as cl
    t = []
    for i, l in enumerate(lines):
        if l.strip().startswith("v_"): t.append(f"L_adr{i}:")
        t.append(l)
    open("_a.s", "w").write(cl.with_harness_metadata(build_text("\n".join(t) + "\n"), NAME + "_kernel", 10, launch_lists=True))
    subprocess.run([cl.ROCM_CLANG, "-x", "assembler", "-target", "amdgcn-amd-amdhsa", "-mcpu=gfx950", "_a.s", "-o", "_a.co"], check=True)
    r = subprocess.run(["llvm-objdump", "-t", "_a.co"], capture_output=True, text=True).stdout
    return {int(x.split()[-1][5:]): int(x.split()[0], 16) for x in r.split("\n") if "L_adr" in x}
def add_stubs(text):
    base = text.rstrip("\n").split("\n")
    lo = base.index("L_iwret:"); hi = base.index("L_fin:"); l0 = base.index("L_loop:")
    l1 = max(i for i, l in enumerate(base) if l.strip() == "s_cbranch_scc1 L_loop")
    pos = []
    for it in range(6):
        lines = []; idx = []
        chains = [[k for k in range(len(pos)) if k % 4 == w] for w in range(4)]
        nxt = {}
        for w in range(4):
            for a, b in zip(chains[w], chains[w][1:] + [None]): nxt[a] = f"L_pg{b}" if b is not None else "L_iwret"
        for i, l in enumerate(base):
            idx.append(len(lines)); lines.append(l)
            if i in pos:
                k = pos.index(i)
                lines += ([f"L_iw{k}:"] if k < 4 else []) + [f"L_pg{k}:", f"    s_cbranch_execz {nxt[k]}"]
        if len(pos) < 4: lines += [x for w in range(len(pos), 4) for x in (f"L_iw{w}:", "    s_branch L_iwret")]
        ad = addresses(lines); inv = {j: i for i, j in enumerate(idx)}
        first = min(i for i, l in enumerate(base) if l.strip().startswith("v_mfma") and "a[0:3]" in l)
        mf = sorted((a, inv[j]) for j, a in ad.items() if lo < inv[j] < hi and (inv[j] < first or base[inv[j]].strip().startswith("v_mfma")))
        new = [min(i for a, i in mf if i > base.index("L_join:"))]
        pg = mf[0][0] >> 12
        for a, i in mf:
            if (a + 8) >> 12 > pg:
                pg = (a + 8) >> 12
                if OPT["iw"] == 2 or not (l0 < i < l1): new.append(i)
        new = sorted(set(new))
        if new == pos: break
        pos = new
    print("page stubs:", len(pos), file=sys.stderr)
    return "\n".join(lines) + "\n"
out = HEADER
out += f"; @launch grid=(256,1,1) block=(256,1,1) lds={LDS_BYTES}\n"
out += '.amdgcn_target "amdgcn-amd-amdhsa--gfx950"\n.text\n'
body_ = gen_main().text()
if OPT["iw"]: body_ = add_stubs(body_)
out += f".globl {NAME}_kernel\n.p2align 8\n.type {NAME}_kernel,@function\n" + body_
out += '.section .rodata,"a"\n.p2align 6\n' + kd(NAME + "_kernel", 512, 102, 256)
open(sys.argv[1], "w").write(out)
```

```python
import sys, math
from asmlib import *

NAME = "standalone__kv_cache_quant_int4_int2_kv_with_per_channel_or_per_token_scales__prompt"
OPT = dict(stamp=0, vmgap=4, sb=6, sa=6, ahead=8, thr=64, pf2=0, calx="", qa=6, plv=2, plk=10, ckv=1, ckk=1, tden=24, touch=0, w0poll=0, cap=48, qb=6, q3e=1, ksc=0, few=1, qc=15, pb=39, pl4=40, l2=3, k1e=0, greedy=0, g3n=3, pre=0, own1=1, ab=0, pk=0, split=0, prent=1, bal=1, flex=1, w2=0, dense="S61,S5,S2,S3,S4", dx=4, dvg=2, f3=1, pvs=1, qo=0, po=0, x2c=12, sst=1, q0f=1, nb6=1, tv=1, omv=0, ldc=8, rs=0, scnt=0, iw=2, pfnt=0, v64=1, lastp=1, lmf=1, fs=1, pq=2, fa=20, k1s=0, fb=99, pa=1, twop=0, llag=24, w5=40, z0=1, q3b=0, fp=1, fpa=14, eb=0, bm=1, snk=3, cap2=20, cap3=0, m2=85, m3=0, om0=0, lva=70, qe=15, qf=0, ed=200, ed1=250, cut="22,46,6,42,10,30,10")
for a in sys.argv[2:]:
    k, v = a.split("="); OPT[k] = int(v) if v.lstrip("-").isdigit() else v
NS = 6
STAGE = 24576
HEADBYTES = 64 * STAGE
RING = NS * STAGE
LDS_BYTES = RING + 128
A0, B0, A1, B1, A2, B2 = [i * STAGE for i in range(6)]
CSCALE = (192.0 ** -0.5) * math.log2(math.e)
HEADER = open("cdna_kernels/" + NAME + ".s.ref").read().split("; Override launch geometry")[0]
MF = "v_mfma_f32_16x16x32_bf16"
V64 = OPT["v64"]; NVE = 3 if V64 else 4
NCH = 2 if V64 else 3
def chunk_dbs(n): return list(range(6 * n, 6 * n + 6)) if V64 else [3 * e + n for e in range(4)]

V_FVAL = 0; V_RD = 1; V_RDK = [2, 3]; V_DMA = 4; V_L = [5, 6, 7, 8]
V_KLD = 9; V_KSC = 10; V_KST = 11; V_VLD = 12; V_FLAG = 13; V_RD2 = 59; V_RD3 = 60
V_T = 16; NTP = 2
V_VST = 15; V_STAMP = 14; V_T4 = 20
V_FR = 24; NFS = 6
V_CT = 48; V_VO = 52; V_RS = [56, 60]; BX = 224; BY = 240; BZ = 144
V_POLL = V_VO; V_KA = V_VO + 2
UNIT = [64, 80, 160, 176]; HI = [96, 112]
VQD = 136; VQR = [22, 23, 142, 143]
def Sq(t, sl, tb): return (UNIT[t % 4] if tb == 0 else HI[t % 2]) + 4 * sl
def P(t, sl): return UNIT[t % 4] + 4 * sl
def NEGM(qb): return 128 + 4 * qb
def O(qb, db): return (qb * 12 + db) * 4
def Qf(qb, s, half=None):
    i = qb * 6 + s
    base, f = (192 + 4 * i, ar) if i < 16 else (192 + 4 * (i - 16), vr)
    return f(base, 4) if half is None else f(base + 2 * half, 2)
def FR(f): return vr(V_FR + 4 * (f % NFS), 4)

S_RDELTA = 3; S_WS = 4; S_Q = 8; S_OUT = 12; S_FLG = 20
S_WAVE = 25; S_DMK = 26; S_GOFF = 27; S_RK = 28; S_TMP = 29; S_RV = 30; S_CNT = 31; S_GOFFK = 32
S_PK0 = 33; S_PK1 = 34; S_PV0 = 35; S_PKS = 36; S_PVS = 37; S_CS = 38; S_RET = 39; S_PV1 = 16; S_PV2 = 17
S_QL = 40; S_QS = 41; S_TAG = 42; S_FOFF = 44; S_XCC = 45; S_OWN = 46; S_RC = 46; S_RD = 47
S_PT = 48; S_DMV = 56; S_TK = 57; S_TV = 58; S_TP = 59
S_QK = 64; S_QV = 68; S_KS = 72; S_KZ = 76; S_VS = 80; S_VZ = 84; S_DBG = 88
S_NEED = 92; S_HOFF = 93; S_HEAD = 94; S_QB = 95; S_BUDGET = 96; S_MASK = 97
WSOFF = OPT.get("wsoff", 0) << 20
FLAG_OFF = WSOFF + (49 << 20)
SC1 = {0: " sc1", 1: "", 2: " nt", 3: " sc0", 4: " sc1 nt", 5: " sc0 sc1"}[OPT.get("dmaf", 0)]; NTKV = " nt"; NTQ = " nt"; STF = " sc1" if not OPT.get("stp") else ""; OF = {0: " sc0 sc1", 1: " sc1", 2: " sc1 nt", 3: " sc0 sc1 nt"}[OPT.get("of", 0)]

STAMPS = []
def istamp(name, force=False):
    if OPT["calx"] == name: return ["s_memrealtime s[98:99]"]
    if OPT["stamp"] not in (6, 8, 9): return []
    if OPT["stamp"] == 8 and name.startswith(("k", "z")) and not force: return []
    if OPT["few"] and force and name not in ("karg", "k0b", "vst", "tag", "post", "poll", "postV", "pollV", "pre-dk1"): return []
    if OPT["stamp"] != 8 and force: return []
    STAMPS.append(name)
    return ["s_waitcnt lgkmcnt(0)"] * (1 if force else 0) + [f"v_mov_b32_dpp v{V_STAMP}, v{V_STAMP} wave_shr:1 row_mask:0xf bank_mask:0xf", f"v_writelane_b32 v{V_STAMP}, s98, 0",
            ("s_memtime" if OPT["stamp"] == 6 else "s_memrealtime") + " s[98:99]"]

def order_stamps():
    l = list(STAMPS); out = []
    if "S62" in l:
        l.remove("S61"); l.insert(l.index("S62"), "S61")
    for n in l:
        if "." in n: continue
        out.append(n); out += [m for m in l if m.startswith(n + ".")]
    return out
class W:
    def __init__(self, *tags): self.tags = tags
class VM:
    def __init__(self, tag, text): self.tag = tag; self.text = text
class LG:
    def __init__(self, *tags): self.tags = tags
class DS:
    def __init__(self, tag, text): self.tag = tag; self.text = text

def mode_of(t):
    if OPT["fs"] and t < 4: return "f"
    return {0: "a", 1: "a", 2: "b", 3: "b", 58: "a", 59: "a", 60: "a", 61: "b", 62: "b", 63: "b"}.get(t, "f")
def slot_q(t, sl):
    m = mode_of(t)
    return sl if m == "f" else (sl & 1) + (0 if m == "a" else 2)
ONES = 20
def softmax_part(t, half, lm=False):
    if lm:
        l = [x for x in softmax_part(t, half) if not x.startswith("v_add")]
        out = []
        for x in l:
            out.append(x)
        k = [i for i, x in enumerate(out) if x.startswith("v_cvt_pk")][3]
        mm = lambda sl: f"{MF} v[{RL[slot_q(t, sl)]}:{RL[slot_q(t, sl)]+3}], v[{P(t, sl)}:{P(t, sl)+3}], v[{ONES}:{ONES+3}], " + ("0" if (t, half) == (61, 1) else f"v[{RL[slot_q(t, sl)]}:{RL[slot_q(t, sl)]+3}]")
        return out[:k + 3] + [mm(2 * half)] + out[k + 3:] + ["s_nop 1", mm(2 * half + 1)]
    flat = []; prev = None
    for gp in range(8):
        sl = 2 * half + gp // 4; pi = gp % 4; l = V_L[slot_q(t, sl)]
        t0 = V_T + 2 * (gp % NTP); t1 = t0 + 1
        src = Sq(t, sl, pi >> 1) + 2 * (pi & 1)
        E = [f"v_exp_f32 v{t0}, v{src}", f"v_exp_f32 v{t1}, v{src+1}"]
        A = [f"v_add_f32 v{l}, v{l}, v{t0}", f"v_add_f32 v{l}, v{l}, v{t1}"]
        C = [f"v_cvt_pk_bf16_f32 v{P(t,sl)+pi}, v{t0}, v{t1}"]
        if 16 <= t < 26:
            if OPT["ab"] & 1: A = []
            if OPT["ab"] & 2: E = [x.replace("v_exp_f32", "v_mov_b32") for x in E]
            if OPT["ab"] & 32: C = []
            if OPT["ab"] & 64: E = []; A = []; C = []
        flat += E if prev is None else E[:1] + prev[0] + E[1:] + prev[1]
        prev = (A, C)
    return flat + prev[0] + prev[1]

class Grp:
    def __init__(self, rd, mf): self.rd = rd; self.mf = mf; self.reb = []
def qk_tile(t, w, slots, czero=False):
    gs = []
    if OPT["qo"] == 1 and len(slots) == 4:
        for s_ in range(6):
            rd = [(V_RDK[s_ & 1], w * 12288 + tb * 6144 + (s_ >> 1) * 128) for tb in range(2)]
            mf = []
            for sl, qb in slots:
                for tb in range(2):
                    d = vr(Sq(t, sl, tb), 4)
                    mf.append((tb, d, Qf(qb, s_), (("0" if czero else vr(NEGM(qb), 4)) if s_ == 0 else d)))
            gs.append(Grp(rd, mf))
        return gs
    for gi in range(6):
        s0 = 2 * (gi >> 1); tb = gi & 1
        rd = [(V_RDK[j], w * 12288 + tb * 6144 + (s0 >> 1) * 128) for j in range(2)]
        mf = []
        for sl, qb in slots:
            d = vr(Sq(t, sl, tb), 4)
            x = qb & 1 if OPT.get("snk", 0) & 2 else 0
            mf += [(x, d, Qf(qb, s0 + x), (("0" if czero else vr(NEGM(qb), 4)) if s0 == 0 else d)), (1 - x, d, Qf(qb, s0 + 1 - x), d)]
        gs.append(Grp(rd, mf))
    return gs
def qk_full(t): return [g for w in range(2) for g in qk_tile(t + w, w, [(q, q) for q in range(4)])]
def qk_half(t, czero=False, ws=(0, 1)):
    return [g for w in ws for g in qk_tile(t, w, [(2 * w + j, slot_q(t, j)) for j in range(2)], czero)]
def OV(qb, db): return (BY if qb == 2 else BZ) + 4 * (db // 3)
OM = [False]
def O0(db): return (BX + 4 * db) if db < 8 else (BZ + 4 * (db - 8))
def pv_grp(t, db, first=False, va=V_RD):
    m = mode_of(t); mf = []
    for qb in (range(4) if m == "f" else [slot_q(t, 0), slot_q(t, 1)]):
        d = ar(O(qb, db), 4)
        if OPT["omv"] and t >= 61 and db % 3 == 2: d = " " + vr(OV(qb, db), 4)
        if OPT["om0"] and qb == 0 and (t >= 56 or OM[0]): d = " " + vr(O0(db), 4)
        for w0 in range(2):
            w = w0 ^ (qb & 1 if OPT.get("snk", 0) & 1 else 0)
            b = P(t + w, qb) if m == "f" else P(t, 2 * w + (qb & 1))
            mf.append((w, d, vr(b, 4), "0" if (first and w0 == 0) else d))
    return Grp([(va, w * 12288 + db * 1024) for w in range(2)], mf)
def pv_seq(t, first=False):
    if OPT["po"] == 1 and mode_of(t) == "f":
        gs = []
        for d0 in range(0, 12, 2):
            for w in range(2):
                mf = [(e, ar(O(qb, d0 + e), 4), vr(P(t + w, qb), 4), ar(O(qb, d0 + e), 4)) for qb in range(4) for e in range(2)]
                gs.append(Grp([(V_RD, w * 12288 + (d0 + e) * 1024) for e in range(2)], mf))
        return gs
    if OPT["po"] == 2 and mode_of(t) == "f":
        gs = []
        for db in range(12):
            mf = [(w, ar(O(qb, db), 4), vr(P(t + w, qb), 4), ar(O(qb, db), 4)) for w in range(2) for qb in range(4)]
            gs.append(Grp([(V_RD, w * 12288 + db * 1024) for w in range(2)], mf))
        return gs
    return [pv_grp(t, db, first) for db in range(12)]
def pv_unchained(t, first=False):
    gs = []
    for w in range(2):
        for d0 in range(0, 12, 2):
            mf = []
            for j in range(2):
                qb = slot_q(t, j)
                for e in range(2):
                    d = ar(O(qb, d0 + e), 4)
                    mf.append((e, d, vr(P(t, 2 * w + j), 4), "0" if (first and w == 0) else d))
            gs.append(Grp([(V_RD, w * 12288 + (d0 + e) * 1024) for e in range(2)], mf))
    return gs
def rebase(gs, regs, delta):
    op = "v_add_u32" if delta >= 0 else "v_subrev_u32"
    gs[0].reb += [f"{op} v{r}, {abs(delta)}, v{r}" for r in regs]
    return gs
def rd_op(gi, j, g):
    f = 2 * gi + j
    return DS(("fr", f % NFS), f"ds_read_b128 {FR(f)}, v{g.rd[j][0]} offset:{g.rd[j][1]}")

def dma_tile(part, pos, peel=False):
    dm, go, tmp = (S_DMK, S_GOFFK, S_TK) if part == "k" else (S_DMV, S_GOFF, S_TV)
    l = [f"s_mov_b32 m0, s{dm}"]
    for j in range(3):
        l.append(VM(("d" + part, pos % 8), f"buffer_load_dwordx4 v{V_DMA}, s[{S_WS}:{S_WS+3}], s{go} offen offset:{j*1024}{SC1} lds"))
    if peel and pos < 7:
        l += [f"s_add_u32 s{go}, s{go}, {STAGE}", f"s_sub_u32 s{tmp}, s{go}, {8*STAGE}", f"s_min_u32 s{go}, s{go}, s{tmp}"]
    elif peel and pos == 7:
        l += [f"s_mov_b32 s{go}, {8*STAGE + (0 if part == 'k' else 12288)}"]
    else:
        l += [f"s_add_u32 s{go}, s{go}, {STAGE}"]
    if pos % 2 == 0: l += [f"s_add_u32 s{dm}, s{dm}, 12288"]
    else: l += [f"s_add_u32 s{dm}, s{dm}, {2*STAGE - 12288}", f"s_sub_u32 s{tmp}, s{dm}, {RING}", f"s_min_u32 s{dm}, s{dm}, s{tmp}"]
    return l
QOFF = [STAGE, 0, 2 * STAGE, STAGE]
def q_dma(lst):
    l = []
    if not lst: return l
    for i in lst:
        a, b = divmod(i, 6)
        l += [f"s_mov_b32 s{S_QS}, {a*6144}"] * (1 if (b == 0 or i == lst[0]) else 0)
        l += [f"s_add_u32 m0, s{S_QL}, {QOFF[a] + b*1024}",
              VM(("q", a), f"buffer_load_dwordx4 v{VQD+b}, s[{S_Q}:{S_Q+3}], s{S_QS} offen{NTQ} lds")]
    return l
def q_frags(qb):
    l = []
    for s in range(6):
        for h in range(2):
            sp = s + 6 * h
            l.append(DS(("qf", qb), f"ds_read_b64 {Qf(qb,s,h)}, v{VQR[sp&3]} offset:{QOFF[qb] + (sp>>2)*128}"))
    return l
def with_nop(l):
    out = []
    for i, x in enumerate(l):
        out.append(x)
        if isinstance(x, str) and " m0," in x and i + 1 < len(l) and isinstance(l[i + 1], VM): out.append("s_nop 0")
    return out
def rd_step(kind):
    cur, regs = (S_RK, V_RDK) if kind == "q" else (S_RV, [V_RD])
    return [f"s_add_u32 s{S_TMP}, s{cur}, {2*STAGE}", f"s_sub_u32 s{S_RDELTA}, s{S_TMP}, {RING}",
            f"s_min_u32 s{S_TMP}, s{S_TMP}, s{S_RDELTA}", f"s_sub_u32 s{S_RDELTA}, s{S_TMP}, s{cur}", f"s_mov_b32 s{cur}, s{S_TMP}"] + \
           [f"v_add_u32 v{r}, s{S_RDELTA}, v{r}" for r in regs]

def k_ld(h, buf, rs, tag, scal_first=True):
    sc = [VM(tag, f"buffer_load_dwordx2 v[{rs+2*i}:{rs+2*i+1}], v{V_KSC}, s[{srd_}:{srd_+3}], s{S_PKS} offen offset:{192*h}" + (" nt" if OPT["scnt"] else ""))
          for i, srd_ in enumerate((S_KS, S_KZ))]
    l = []
    for j in range(4):
        so = S_PK0 if j < 2 else S_PK1
        l.append(VM(tag, f"buffer_load_dwordx4 v[{buf+4*j}:{buf+4*j+3}], v{V_KLD}, s[{S_QK}:{S_QK+3}], s{so} offen offset:{(j&1)*1536+384*h}{NTKV}"))
    return sc + l if scal_first else l + sc
def v_ld(h, buf, rs, tag, scal_first=True):
    sc = [VM(tag, f"buffer_load_dwordx2 v[{rs+2*i}:{rs+2*i+1}], off, s[{srd_}:{srd_+3}], s{S_PVS} offset:{8*h}" + (" nt" if OPT["scnt"] else ""))
          for i, srd_ in enumerate((S_VS, S_VZ))]
    l = []
    for r in range(4):
        so = S_PV0 if h == 0 else S_PV1
        l.append(VM(tag, f"buffer_load_dwordx{NVE} v[{buf+4*r}:{buf+4*r+NVE-1}], v{V_VLD}, s[{S_QV}:{S_QV+3}], s{so} offen offset:{r*768}{NTKV}"))
    return sc + l if scal_first else l + sc
def k_cv(h, buf, rs, out):
    l = []
    s0, s1, z0, z1 = V_CT, V_CT + 1, V_CT + 2, V_CT + 3
    for i in range(2):
        l += [f"v_lshlrev_b32 v{s0}, 16, v{rs+i}", f"v_and_b32 v{s1}, s{S_MASK}, v{rs+i}",
              f"v_lshlrev_b32 v{z0}, 16, v{rs+2+i}", f"v_and_b32 v{z1}, s{S_MASK}, v{rs+2+i}",
              f"v_mul_f32 v{s0}, s{S_CS}, v{s0}", f"v_mul_f32 v{s1}, s{S_CS}, v{s1}",
              f"v_mul_f32_e64 v{z0}, -v{z0}, v{s0}", f"v_mul_f32_e64 v{z1}, -v{z1}, v{s1}"]
        if OPT.get("nz", 0) & 1: l[-2:] = [f"v_mov_b32 v{z0}, 0", f"v_mov_b32 v{z1}, 0"]
        for j in range(4):
            a = buf + 4 * j + 2 * i; b = a + 1
            l += [f"v_cvt_f32_i32 v{a}, v{a}", f"v_cvt_f32_i32 v{b}, v{b}",
                  f"v_fma_f32 v{a}, v{a}, v{s0}, v{z0}", f"v_fma_f32 v{b}, v{b}, v{s1}, v{z1}",
                  f"v_cvt_pk_bf16_f32 v{out+4*j+2*h+i}, v{a}, v{b}"]
    return l
def k_st(j, out, tag="kst", STF=STF, pre=False):
    va = V_KST; g = []
    if j and pre: va = V_T4 + j
    elif j:
        va = V_KA + (j & 1); g.append(f"v_xor_b32 v{va}, {16*j}, v{V_KST}")
    g.append(VM(tag, f"buffer_store_dwordx4 v[{out+4*j}:{out+4*j+3}], v{va}, s[{S_WS}:{S_WS+3}], s{S_PK0} offen offset:{j*768}{STF}"))
    return g
def v_cv(h, buf, rs, out):
    l = []
    s0, s1, z0, z1 = V_CT, V_CT + 1, V_CT + 2, V_CT + 3
    for i in range(2):
        l += [f"v_lshlrev_b32 v{s0}, 16, v{rs+i}", f"v_and_b32 v{s1}, s{S_MASK}, v{rs+i}",
              f"v_lshlrev_b32 v{z0}, 16, v{rs+2+i}", f"v_and_b32 v{z1}, s{S_MASK}, v{rs+2+i}",
              f"v_mul_f32_e64 v{z0}, -v{z0}, v{s0}", f"v_mul_f32_e64 v{z1}, -v{z1}, v{s1}"]
        if OPT.get("nz", 0) & 2: l[-2:] = [f"v_mov_b32 v{z0}, 0", f"v_mov_b32 v{z1}, 0"]
        for e in range(NVE):
            a = buf + 4 * (2 * i) + e; b = buf + 4 * (2 * i + 1) + e
            l += [f"v_cvt_f32_i32 v{a}, v{a}", f"v_cvt_f32_i32 v{b}, v{b}",
                  f"v_fma_f32 v{a}, v{a}, v{s0}, v{z0}", f"v_fma_f32 v{b}, v{b}, v{s1}, v{z1}"]
    for e, i in [(0, 0), (1, 0), (0, 1), (1, 1), (2, 0), (2, 1), (3, 0), (3, 1)][:2 * NVE]:
        l.append(f"v_cvt_pk_bf16_f32 v{out+4*e+2*h+i}, v{buf+8*i+e}, v{buf+8*i+4+e}")
    return l
def v_st(e, out, tag="vst", STF=STF):
    so = S_PV0 if (e < 2 or V64) else S_PV2
    return [VM(tag, f"buffer_store_dwordx4 v[{out+4*e}:{out+4*e+3}], v{V_VST}, s[{S_WS}:{S_WS+3}], s{so} offen offset:{e*1024 if V64 else (e&1)*3072}{STF}")]
def k_adv():
    return [f"s_add_u32 s{S_PK0}, s{S_PK0}, {8*STAGE}", f"s_add_u32 s{S_PK1}, s{S_PK1}, {8*STAGE}", f"s_add_u32 s{S_PKS}, s{S_PKS}, {4*384}"]
def v_adv():
    return [f"s_add_u32 s{r}, s{r}, {8*STAGE}" for r in (S_PV0, S_PV1, S_PV2)] + [f"s_add_u32 s{S_PVS}, s{S_PVS}, {8*64}"]
HT = {"ka": (k_ld, k_cv, 0, BX, V_RS[0], BX), "kb": (k_ld, k_cv, 1, BY, V_RS[1], BX),
      "va": (v_ld, v_cv, 0, BZ, V_RS[0], BZ), "vb": (v_ld, v_cv, 1, BY, V_RS[1], BZ),
      "wa": (v_ld, v_cv, 0, BX, V_RS[0], BX), "wb": (v_ld, v_cv, 1, BY, V_RS[1], BX)}
def flag_post(first=False):
    return [f"v_add_u32 v{V_FVAL}, 1, v{V_FVAL}"] + [
            VM("flag", f"buffer_store_dword v{V_FVAL}, v{V_FLAG}, s[{S_FLG}:{S_FLG+3}], 0 offen")] * (OPT["l2"] == 1 or (OPT["l2"] == 2 and first)) + [
            VM("flag", f"buffer_store_dword v{V_FVAL}, v{V_FLAG}, s[{S_FLG}:{S_FLG+3}], 0 offen offset:32 sc1")]
def poll_addr():
    return [f"v_bfe_u32 v{V_POLL+1}, v{V_DMA}, 4, 6", f"v_lshlrev_b32 v{V_POLL+1}, 2, v{V_POLL+1}"]
def poll_load():
    if OPT["pa"]: return [VM("poll", f"buffer_load_dword v{V_POLL}, v{V_T4}, s[{S_FLG}:{S_FLG+3}], s{S_FOFF} offen sc1")]
    return poll_addr() + [VM("poll", f"buffer_load_dword v{V_POLL}, v{V_POLL+1}, s[{S_FLG}:{S_FLG+3}], s{S_FOFF} offen sc1")]
def poll_test():
    return [f"v_subrev_u32 v{V_POLL}, s{S_NEED}, v{V_POLL}", f"v_cmp_lt_u32 vcc, 15, v{V_POLL}", "s_nop 0", f"s_and_b32 s{S_TP}, vcc_lo, 0xff"]
def smem_flags():
    return [f"s_buffer_load_dwordx8 s[{S_PT}:{S_PT+7}], s[{S_FLG}:{S_FLG+3}], s{S_FOFF} glc"]
def smem_reduce():
    return [f"s_sub_u32 s{S_PT+i}, s{S_PT+i}, s{S_NEED}" for i in range(8)] + [f"s_max_u32 s{S_PT}, s{S_PT}, s{S_PT+i}" for i in range(1, 8)]
def smem_test():
    return smem_flags() + ["s_waitcnt lgkmcnt(0)"] + smem_reduce() + [f"s_cmp_lt_u32 s{S_PT}, 16"]
def diag(site):
    if not OPT.get("diag"): return []
    return [f"s_lshl_b32 s{S_TP}, s2, 8", f"s_add_u32 s{S_TP}, s{S_TP}, {site << 4}", f"s_add_u32 s{S_TP}, s{S_TP}, s{S_WAVE}", f"s_lshl_b32 s{S_BUDGET}, s{S_NEED}, 16", f"s_add_u32 s{S_TP}, s{S_TP}, s{S_BUDGET}",
            f"v_mov_b32 v{V_POLL+1}, s{S_TP}", f"buffer_store_dword v{V_POLL+1}, off, s[{S_DBG}:{S_DBG+3}], 0 offset:{4 + 8 * site} sc1",
            f"buffer_store_dword v{V_POLL}, v{V_T4}, s[{S_DBG}:{S_DBG+3}], 0 offen offset:192 sc1"]
def poll_slow(site):
    l = [f"L_pollslow{site}:"] + ([f"s_add_u32 s{S_TAG+1}, s{S_TAG+1}, {1 << (6 * site)}"] if OPT["stamp"] else [])
    l += [f"s_mov_b32 s{S_TP}, {60 if site == 0 else 200}", f"L_pollsm{site}:"] + smem_test() + [f"s_cbranch_scc1 L_pollok{site}",
          f"s_sub_u32 s{S_TP}, s{S_TP}, 1", f"s_cbranch_scc1 L_pollvec{site}", "s_sleep 1", f"s_branch L_pollsm{site}"]
    l += [f"L_pollvec{site}:"] + poll_addr() + [
            f"s_sub_u32 s{S_BUDGET}, s{S_BUDGET}, 1",
            f"s_cbranch_scc1 L_pollgiveup{site}",
            "s_sleep 2",
            f"buffer_load_dword v{V_POLL}, v{V_POLL+1}, s[{S_FLG}:{S_FLG+3}], s{S_FOFF} offen sc1",
            "s_waitcnt vmcnt(0)"]
    if site == 0 and OPT["l2"]:
        l += [f"s_bitcmp1_b32 s{S_NEED}, 9", "s_cbranch_scc1 L_nomix",
              f"v_xor_b32 v{V_POLL+1}, s{S_NEED}, v{V_POLL}", f"v_lshrrev_b32 v{V_POLL+1}, 5, v{V_POLL+1}", f"v_add_u32 v{V_POLL+1}, -1, v{V_POLL+1}",
              f"v_cmp_gt_u32 vcc, 31, v{V_POLL+1}", "s_nop 1", f"s_and_b32 s{S_TP}, vcc_lo, {'0xff' if OPT['l2'] == 3 else '0xff00'}", "s_cbranch_scc0 L_nomix"]
        l += fin([x for j in range(4) for x in k_st(j, BX)] + [x for e in range(NVE) for x in v_st(e, 112)])
        l += ["s_waitcnt vmcnt(0)", "s_barrier", f"s_and_b32 s{S_NEED}, s{S_NEED}, 0xfffffc00", f"s_add_u32 s{S_NEED}, s{S_NEED}, {16 << 5}",
              f"v_mov_b32 v{V_FVAL}, s{S_NEED}", f"s_add_u32 s{S_NEED}, s{S_NEED}, 1", f"s_mov_b32 s{S_FOFF}, 32"] + fin(flag_post()) + ["s_branch L_pollvec0", "L_nomix:"]
    l += poll_test() + [
            f"s_cbranch_scc1 L_pollvec{site}",
            f"s_branch L_pollok{site}",
            f"L_pollgiveup{site}:"] + diag(site) + [
            f"s_mov_b32 s{S_BUDGET}, 0",
            f"s_branch L_pollok{site}"]
    return l
def tag_load():
    return [VM("tag", f"buffer_load_dword v{V_FVAL}, off, s[{S_DBG}:{S_DBG+3}], s{S_HOFF} sc1")]
def tag_check():
    return [f"s_cmp_lg_u32 s{S_WAVE}, 0", "s_cbranch_scc1 L_tagdone",
            f"v_readfirstlane_b32 s{S_TAG}, v{V_FVAL}", f"s_mov_b32 s{S_RET}, 100",
            "s_waitcnt lgkmcnt(0)"] + ([f"s_mov_b32 s101, s{S_OWN}"] if OPT["stamp"] else []) + [f"s_and_b32 s{S_OWN}, s{S_OWN}, 0xfffffc00",
            "L_tagretry:", f"s_cmp_eq_u32 s{S_TAG}, s{S_OWN}", f"s_cselect_b32 s{S_TAG}, 0, s{S_TAG}", f"s_cmp_lg_u32 s{S_TAG}, 0", "s_cbranch_scc1 L_tagok",
            f"s_sub_u32 s{S_RET}, s{S_RET}, 1", "s_cbranch_scc1 L_tagslow", "s_sleep 4",
            f"s_buffer_load_dword s{S_TAG}, s[{S_DBG}:{S_DBG+3}], s{S_HOFF} glc", "s_waitcnt lgkmcnt(0)", "s_branch L_tagretry",
            "L_tagok:", f"s_add_u32 s{S_TAG}, s{S_TAG}, s{S_XCC}", f"v_mov_b32 v{V_FVAL}, s{S_TAG}", f"v_mov_b32 v{V_T}, {RING}", DS("w", f"ds_write_b32 v{V_T}, v{V_FVAL}"), "L_tagdone:"]
def tag_get():
    return [f"v_mov_b32 v{V_T}, {RING}", DS("tg", f"ds_read_b32 v{V_T+1}, v{V_T}")]
def tag_use():
    return [f"v_readfirstlane_b32 s{S_NEED}, v{V_T+1}", f"s_add_u32 s{S_NEED}, s{S_NEED}, 1"]
def tag_slow():
    return ["L_tagslow:",
            f"s_sub_u32 s{S_BUDGET}, s{S_BUDGET}, 1",
            "s_cbranch_scc1 L_taggiveup",
            "s_sleep 2",
            f"buffer_load_dword v{V_FVAL}, off, s[{S_DBG}:{S_DBG+3}], s{S_HOFF} sc1",
            "s_waitcnt vmcnt(0)",
            f"v_readfirstlane_b32 s{S_TAG}, v{V_FVAL}", "s_nop 0", f"s_cmp_eq_u32 s{S_TAG}, s{S_OWN}", "s_cbranch_scc1 L_tagslow",
            f"s_cmp_eq_u32 s{S_TAG}, 0", "s_cbranch_scc1 L_tagslow",
            "s_branch L_tagok",
            "L_taggiveup:"] + diag(15) + [
            f"s_mov_b32 s{S_BUDGET}, 0",
            "s_branch L_tagok"]

def text_of(x):
    return "s_waitcnt" if isinstance(x, (W, LG)) else (x.text if isinstance(x, (VM, DS)) else x)
def kind_of(x):
    t = text_of(x)
    if t.endswith(":"): return "label"
    if t.startswith("v_"): return "valu"
    if t.startswith("ds_"): return "ds"
    if t.startswith("buffer_store"): return "store"
    if t.startswith("buffer_"): return "load"
    return "salu"
def cost_of(x):
    k = kind_of(x); t = text_of(x)
    if k == "label": return 0
    if k == "store": return 20 if "x4" in t else (OPT["x2c"] if "x2" in t else 16 if "x3" in t else 8)
    if k == "load": return OPT["ldc"]
    if t.startswith("ds_write"): return 16 if ("b128" in t or "write2" in t) else 8
    if t.startswith(("v_exp", "v_rcp")): return 8
    if t.startswith("v_mfma"): return 32 if "x4_f32" in t else 8
    if t.startswith("s_nop"): return 4 * (int(t.split()[1]) + 1)
    if t.startswith("s_cbranch") or t.startswith("s_branch"): return 12
    if t.startswith("s_barrier"): return 8
    return 4
def gap_time(ops):
    t = 4; prev = None
    for o in ops:
        if o is None: continue
        k = kind_of(o)
        if k == "label": continue
        if k == "salu": t += cost_of(o)
        else: t = max(t, 8) + cost_of(o) + (8 if (k != "valu" and prev == "valu") else 0)
        prev = k
    return t

class Stream:
    def __init__(self, ops, first, last, maxper=99, dense=0):
        self.nb = {}; self.dl = []; l = []
        for o in ops:
            if isinstance(o, tuple):
                if o[0] == "nb": self.nb[len(l)] = o[1]
                else: self.dl.append((len(l), o[1]))
            else: l.append(o)
        ops = l
        self.ops = list(ops); self.first = first; self.last = last; self.maxper = maxper; self.dense = dense
        self.total = sum(cost_of(o) for o in self.ops); self.done = 0; self.i = 0
        self.gate = {}; self.i0 = 0

def pack(NG, A, B, C, T, streams, novm=(), nosalu=(), vmgap=4, light=(), noval=()):
    out = []; over = 0; lastvm = -99
    for g in range(NG):
        a, b, c, tl = list(A[g]), list(B[g]), list(C[g]), list(T[g])
        cnt = {}; inC = set(); blocked = set()
        while True:
            best = None; bl = None; bsec = None
            for st in streams:
                if st.i >= len(st.ops) or g < st.first: continue
                if g < st.nb.get(st.i, 0): continue
                force = g >= st.last or any(st.i < n and g >= dg for n, dg in st.dl)
                if (cnt.get(id(st), 0) >= st.maxper or id(st) in blocked) and not force: continue
                o = st.ops[st.i]; k = kind_of(o); cst = cost_of(o)
                if k == "salu" and g in nosalu:
                    assert not force, (g, text_of(o))
                    continue
                if k in ("load", "store") and (g in novm or g - lastvm < vmgap) and not force: continue
                if k in ("load", "store", "ds"):
                    sec = "b" if id(st) not in inC and id(st) not in blocked else "c"
                    if sec == "c" and not force: continue
                elif k == "salu" and not a and cnt.get(id(st), 0) == 0:
                    sec = "a"
                else: sec = "c"
                tgt = st.total * (g - st.first + 1) / (st.last - st.first + 1)
                lag = tgt - st.done
                if not force:
                    if g in noval: continue
                    if lag < cst / 2 - OPT["ahead"] and cst: continue
                    trial = (a + [o] if sec == "a" else a) + (b + [o] if sec == "b" else b) + (c + [o] if sec == "c" else c) + tl
                    gt = gap_time(trial)
                    if g in light and gt > 12 and k != "salu" and lag < OPT["llag"]: continue
                    if gt > 16:
                        if g % 2 == 0: continue
                        big = k == "store" or text_of(o).startswith(("ds_write_b128", "ds_write2"))
                        lim = max(20, st.dense) if lag > 24 else 16
                        if big and not (a + b + c + tl): lim = 32
                        if gt > lim: continue
                key = (force, k in ("load", "store"), lag / max(1, (st.last - g + 1)) ** 0.5)
                if best is None or key > bl: best = st; bl = key; bsec = sec
            if best is None: break
            o = best.ops[best.i]
            if bsec == "a": a.append(o)
            elif bsec == "b":
                b.append(o)
            else: c.append(o)
            if bsec == "c" or bsec == "b" and kind_of(o) != "ds" and False: inC.add(id(best))
            if bsec == "c": inC.add(id(best))
            if " m0," in text_of(o): blocked.add(id(best))
            if kind_of(o) in ("load", "store"): lastvm = g
            best.i += 1; best.done += cost_of(o); cnt[id(best)] = cnt.get(id(best), 0) + 1
        ops = a + b + c + tl
        tt = gap_time(ops)
        if tt > 16: over += tt - 16
        out.append(ops)
    for st in streams: assert st.i == len(st.ops)
    return out, over

def pack_dense(NG, A, B, C, T, streams, novm=(), nosalu=(), vmgap=2):
    jobs = []
    for st in streams:
        r = st.first; rel = []
        for i in range(len(st.ops)):
            r = max(r, st.nb.get(i, 0)); rel.append(r)
        for i, o in enumerate(st.ops):
            d = min([st.last] + [dg for n, dg in st.dl if i < n])
            k = kind_of(o)
            jobs.append([rel[i], d, cost_of(o) + (OPT["dx"] if k in ("store", "load") else 0) - (2 if k == "salu" else 0)])
    for g in range(NG): jobs.append([g, g, max(0, gap_time(A[g] + B[g] + C[g] + T[g]) - 8)])
    level = [None] * NG
    while jobs:
        free = [g for g in range(NG) if level[g] is None]
        pts_r = sorted({j[0] for j in jobs}); pts_d = sorted({j[1] for j in jobs})
        best = None
        for a_ in pts_r:
            ws = sorted((j[1], j[2]) for j in jobs if j[0] >= a_)
            w = 0; i = 0
            for b_ in pts_d:
                if b_ < a_: continue
                while i < len(ws) and ws[i][0] <= b_: w += ws[i][1]; i += 1
                n = sum(1 for g in free if a_ <= g <= b_)
                if n and (best is None or w / n > best[0]): best = (w / n, a_, b_)
        dn, a_, b_ = best
        if dn <= 8: break
        for g in free:
            if a_ <= g <= b_: level[g] = dn
        jobs = [j for j in jobs if not (j[0] >= a_ and j[1] <= b_)]
    extra = [2 * (level[g] - 8) if (level[g] is not None and g % 2) else 0 for g in range(NG)]
    return pack_dense1(NG, A, B, C, T, streams, novm, nosalu, vmgap, extra)
def pack_dense1(NG, A, B, C, T, streams, novm, nosalu, vmgap, extra):
    out = []; over = 0; lastvm = -99
    fixed = [gap_time(A[g] + B[g] + C[g] + T[g]) - (8 if not (B[g] + C[g] + T[g]) else 8) for g in range(NG)]
    for g in range(NG):
        a, b, c, tl = list(A[g]), list(B[g]), list(C[g]), list(T[g])
        carry = (carry if g else 0) + extra[g]
        bud = 16 + (carry if g % 2 else 0)
        blocked = set(); inC = set()
        for st in streams: st.i0 = st.i
        while True:
            best = None; bl = None
            cur = gap_time(a + b + c + tl)
            for st in streams:
                if st.i >= len(st.ops) or g < st.first or g < st.nb.get(st.i, 0): continue
                if st.i in st.gate:
                    o_, j_ = st.gate[st.i]
                    if (o_.i0 if (kind_of(st.ops[st.i]) == "store" and g < NG - 1) else o_.i) <= j_: continue
                    if o_.i0 <= j_: inC.add(id(st))
                force = g >= st.last or any(st.i < n and g >= dg for n, dg in st.dl)
                if id(st) in blocked and not force: continue
                o = st.ops[st.i]; k = kind_of(o)
                if k == "salu" and g in nosalu:
                    assert not force
                    continue
                mem = k in ("load", "store", "ds")
                if k in ("load", "store") and (g in novm or g - lastvm < vmgap) and not force: continue
                sec = "b" if (mem and id(st) not in inC) else ("a" if (k == "salu" and not a and id(st) not in inC and id(st) not in blocked and not any(x is st for x in ())) else "c")
                if sec == "a" and any(id(st) == y for y in inC): sec = "c"
                if mem and sec == "c" and not force: continue
                trial = gap_time((a + [o] if sec == "a" else a) + (b + [o] if sec == "b" else b) + (c + [o] if sec == "c" else c) + tl)
                if not force and trial > bud and not (cur < 16 and trial <= bud + 12 and g % 2): continue
                tgt = st.total * (g - st.first + 1) / (st.last - st.first + 1)
                n_, dd = min([(len(st.ops), st.last)] + [(n, dg) for n, dg in st.dl if st.i < n], key=lambda x: x[1])
                need = sum(cost_of(x) for x in st.ops[st.i:n_]) / max(1, dd - g + 1)
                key = (force, mem, need)
                if best is None or key > bl: best = st; bl = key; bsec = sec
            if best is None: break
            o = best.ops[best.i]
            {"a": a, "b": b, "c": c}[bsec].append(o)
            if bsec == "c" or (bsec == "b"):
                if bsec == "c": inC.add(id(best))
                else: usedb = True
            if bsec in ("a", "b"): best._g = g
            if " m0," in text_of(o): blocked.add(id(best))
            if kind_of(o) in ("load", "store"): lastvm = g
            best.i += 1; best.done += cost_of(o)
            if bsec == "b" and not a: a.append(None)
        a = [x for x in a if x is not None]
        ops = a + b + c + tl
        tt = gap_time(ops)
        carry = max(0, carry - max(0, tt - 16)) if extra[g] or g % 2 == 0 else 0
        if tt > 16: over += tt - 16
        out.append(ops)
    for st in streams: assert st.i == len(st.ops)
    return out, over

POLLSITES = []
def gen_seg(name, groups, nxt, sm=(), bars=(), tasks=(), dma=(), extra=(), endops=(), fixed=(), peel=True, vmgap=None):
    starts = []; n = 0
    for g in groups: starts.append(n); n += len(g.mf)
    NG = n
    A = [[] for _ in range(NG)]; B = [[] for _ in range(NG)]; C = [[] for _ in range(NG)]; T = [[] for _ in range(NG)]
    streams = []; novm = set(range(0, NG, 2)); nosalu = set()
    allg = list(groups) + list(nxt)
    assert len(groups) % 3 == 0
    for i, g in enumerate(groups):
        g0 = starts[i]; ln = len(g.mf)
        if i + 2 < len(allg):
            t = allg[i + 2]
            if not (OPT["ab"] & 4 and name.startswith("k") and i % 2): B[g0].append(rd_op(i + 2, 0, t)); B[g0 + ln // 2].append(rd_op(i + 2, 1, t))
            if t.reb:
                assert g0 > 0
                C[g0 - 1] += t.reb
        if i + 1 < len(allg):
            A[g0 + ln - 1].append(LG(("fr", (2 * i + 2) % NFS), ("fr", (2 * i + 3) % NFS)))
    for ops, f, l in sm: streams.append(Stream(ops, f, l))
    streams += list(extra)
    if endops:
        A[NG-4] += endops[:1]; A[NG-2] += [A[NG-1][0]] + list(endops[1:-1]); A[NG-1] = []; T[NG-1] = list(endops[-1:]); nosalu |= {NG-2, NG-1}
    for grp in dma:
        dl = []
        for part, pos in grp[:-2]: dl += dma_tile(part, pos, peel)
        k = max(i for i, x in enumerate(dl) if isinstance(x, VM)) + 1
        lim = NG - 3 if endops else NG - 1
        if grp[-1] + 1 > lim: k = len(dl)
        streams.append(Stream(dl[:k], grp[-2], grp[-1], maxper=2))
        if dl[k:]: streams.append(Stream(dl[k:], grp[-1] + 1, min(lim, grp[-1] + 12), maxper=2))
    bars = [(g, list(tg)) for g, tg in bars]
    for t in tasks:
        k_ = t[0]
        if k_ == "vst" and t[1] >= NVE: continue
        if k_ == "cv":
            _, cv, h, buf, rs, outb = HT[t[1]]
            ops = cv(h, buf, rs, outb)[t[2]:t[3]]
            if t[2] == 0: ops = [W(t[1])] + ops
            streams.append(Stream(ops, t[4], t[5]))
        elif k_ in ("kst", "vst", "wst"):
            grp = k_st(t[1], BX, pre=OPT["pa"]) if k_ == "kst" else v_st(t[1], BZ) if k_ == "vst" else v_st(t[1], BX, "wst")
            g = t[2]; assert not B[g] and not A[g], (name, g)
            B[g].append(grp[-1]); novm |= set(range(g - OPT["sb"], g + OPT["sa"] + 1))
            if grp[:-1]: streams.append(Stream(grp[:-1], max(0, g - 5), g - 1))
        elif k_ in ("ld", "ldn"):
            ld, _, h, buf, rs, _o = HT[t[1]]
            adv = {"ka": k_adv(), "va": v_adv()}.get(t[1], []) if k_ == "ld" else []
            ops = ld(h, buf, rs, t[1])
            if len(t) > 4: ops = ops[2:] if t[4] == "raw" else ops[:2]
            streams.append(Stream(adv + ops, t[2], t[3], maxper=1))
        elif k_ == "post":
            bi = t[2] if len(t) > 2 else -1
            bars[bi][1].append(t[1])
            streams.append(Stream(flag_post(), bars[bi][0] + 1, min(NG - 3, bars[bi][0] + 14), maxper=1))
        elif k_ == "pf":
            streams.append(Stream([VM("pf", f"buffer_load_dword v{V_T4}, v{V_DMA}, s[{S_DBG}:{S_DBG+3}], s{S_HOFF} offen")], t[1], t[2]))
        elif k_ == "rld":
            streams.append(Stream([VM("rs", f"buffer_load_dwordx4 v[{V_T4}:{V_T4+3}], v{V_DMA}, s[{S_WS}:{S_WS+3}], s{S_RC} offen sc1")], t[1], t[2]))
        elif k_ == "rst":
            g = t[1]; assert g % 2 == 1 and not B[g] and not A[g] and not A[g - 1], (name, g)
            A[g - 1].append(W("rs")); B[g].append(VM("rs2", f"buffer_store_dwordx4 v[{V_T4}:{V_T4+3}], v{V_DMA}, s[{S_WS}:{S_WS+3}], s{S_RC} offen sc1"))
            novm |= set(range(g - OPT["sb"], g + OPT["sa"] + 1))
            streams.append(Stream([f"s_add_u32 s{S_RC}, s{S_RC}, s{S_RD}", f"s_sub_u32 s{S_RD}, 1024, s{S_RD}"], g + 1, g + 8, maxper=1))
        elif k_ == "pollld": streams.append(Stream(poll_load(), t[1], t[2], maxper=1))
        elif k_ == "pollchk":
            ps = len(POLLSITES); POLLSITES.append(ps)
            g = t[1]; assert g % 4 == 1
            pt = poll_test()
            A[g] += [W("poll")]; T[g] += pt[:2]; novm |= {g, g + 4}
            A[g + 3] += [pt[3]]; A[g + 4] += [f"s_cbranch_scc1 L_pollslow{ps}", f"L_pollok{ps}:"]; nosalu |= {g + 3, g + 4}
            A[g + 5] += [f"s_add_u32 s{S_NEED}, s{S_NEED}, 1"]
        elif k_ == "spollld": A[t[1]] += smem_flags()
        elif k_ == "spollchk":
            ps = len(POLLSITES); POLLSITES.append(ps)
            A[t[1]] += ["s_waitcnt lgkmcnt(0)"]
            streams.append(Stream(smem_reduce(), t[1] + 1, t[2] - 1, maxper=3))
            A[t[2]] += [f"s_cmp_ge_u32 s{S_PT}, 16", f"s_cbranch_scc1 L_pollslow{ps}", f"L_pollok{ps}:", f"s_add_u32 s{S_NEED}, s{S_NEED}, 1"]
        elif k_ == "step": streams.append(Stream(rd_step(t[1]), t[2], t[3], maxper=1))
        elif k_ == "q": streams.append(Stream(q_dma(t[1]), t[2], t[3], maxper=2))
        else: raise Exception(k_)
    noval = set()
    for g, tags in bars:
        i = [j for j in range(len(groups)) if starts[j] + len(groups[j].mf) - 1 == g]
        assert i, (name, g)
        if len(groups[i[0]].mf) == 8 and OPT["bm"] >= 4:
            A[g - 2] += A[g] + ([W(*tags)] if tags else []); A[g] = []
            A[g - 1] += ["s_barrier"]; novm |= {g - 2, g - 1}; noval |= {g - 1} | ({g - 2} if OPT["bm"] == 5 else set())
            continue
        if len(groups[i[0]].mf) == 8:
            A[g - 2] += A[g]; A[g] = []
            if tags: A[g - 1] += [W(*tags)]
            noval |= {0: set(), 1: {g}, 2: {g - 1, g}, 3: {g - 1}}[OPT["bm"]]
        elif tags: A[g - 2] += [W(*tags)]
        A[g] += ["s_barrier"]; novm |= {g}
    for g, sec, ops in fixed: {"A": A, "B": B, "C": C, "T": T}[sec][g] += ops
    if endops:
        for st_ in streams: st_.last = min(st_.last, NG - 2)
    m0w = sorted((st.first, st.last) for st in streams if any(" m0," in text_of(o) for o in st.ops))
    assert all(m0w[i][1] < m0w[i + 1][0] for i in range(len(m0w) - 1)), (name, m0w)
    if name in str(OPT["dense"]).split(","): fill, over = pack_dense(NG, A, B, C, T, streams, novm, nosalu, vmgap or OPT["dvg"])
    else:
        fill, over = pack(NG, A, B, C, T, streams, novm, nosalu, vmgap or OPT["vmgap"], (), noval)
        if OPT["twop"] and name[0] in "kz":
            vg = {g for g in range(NG) if any(kind_of(o) in ("load", "store") for o in fill[g])}
            for st_ in streams: st_.i = 0; st_.done = 0
            fill, over = pack(NG, A, B, C, T, streams, set(novm) | (set(range(NG)) - vg), nosalu, vmgap or OPT["vmgap"], {g - 1 for g in vg})
    if over: print(f"seg {name}: over budget by {over} cycles", file=sys.stderr)
    out = istamp(name)
    g = 0
    for i, gr in enumerate(groups):
        for j, d, b, c in gr.mf:
            if (OPT["pvs"] & 1 and d[0] in "a ") or (OPT["pvs"] & 2 and d.startswith("v")): out.append(f"{MF} {d}, {b}, {FR(2*i+j)}, {c}")
            else: out.append(f"{MF} {d}, {FR(2*i+j)}, {b}, {c}")
            out += fill[g]; g += 1
    return with_nop(out)

GBAR = 79
def seg_groups(it):
    return qk_full(it + 1) if it % 2 else pv_seq(it - 2)
def gen_iter(it, tasks=(), dma=(), name=None, endops=(), peel=False, nxt=None, extra=(), bars=None, groups=None, sm=None, step=True):
    q = it % 2
    smB = softmax_part(it, 1); smA = softmax_part(it + 1, 0)
    if sm is None: sm = ([(smB + [("dl", 57), ("nb", 47)] + smA, 0, 95)] if OPT["flex"] else [(smB, 0, 50), (smA, 52, 95)]) if q else [(smB + smA, 0, 95)]
    need = [("dv", (it - 1) % 8), ("dv", it % 8)] if q else [("dk", (it + 2) % 8), ("dk", (it + 3) % 8)]
    tasks = list(tasks) + ([("step", "p" if q else "q", 30, GBAR - 3)] if step else [])
    return gen_seg(name or f"i{it}", groups or seg_groups(it), nxt if nxt is not None else seg_groups(it + 1)[:2], sm,
                   bars if bars is not None else [(GBAR, need)], tasks, dma, extra, endops, peel=peel)

K_ = lambda *j: tuple(("k", x) for x in j)
V_ = lambda *j: tuple(("v", x) for x in j)
def steady(k):
    ckv, ckk = OPT["ckv"], OPT["ckk"]
    plv, plk = OPT["plv"], OPT["plk"]
    if OPT.get("p15"):
        return {
            5: ([("cv", "wb", 0, 99, 30, 95), ("pollchk", 1), ("post", "vst")], [K_(0, 1) + (8, 74)]),
            6: ([("wst", 0, 1), ("wst", 1, 9), ("wst", 2, 17), ("post", "wst"), ("ld", "ka", 26, 60), ("ld", "kb", 61, 95)], [K_(2, 3) + (26, 90)]),
            7: ([("cv", "ka", 0, 30, 45, 95), ("pollld", plv, plv + 8)], [K_(4, 5) + (11, 92)]),
            0: ([("cv", "ka", 30, 99, 0, 50), ("cv", "kb", 0, 20, 51, 95), ("pollchk", ckv), ("ld", "va", 52, 95)], [V_(0, 1) + (ckv + 7, 74)]),
            1: ([("cv", "kb", 20, 99, 0, 95)], [V_(2, 3) + (0, GBAR - 5)]),
            2: ([("cv", "va", 0, 99, 10, 95), ("kst", 0, 1), ("kst", 1, 9), ("kst", 2, 17), ("kst", 3, 25), ("post", "kst"), ("ld", "vb", 33, 60)], [K_(6, 7) + (33, 74)]),
            3: ([("cv", "vb", 0, 99, 50, 95), ("ldn", "wa", 0, 44)], [V_(4, 5) + (0, 90)]),
            4: ([("vst", 0, 1), ("vst", 1, 9), ("vst", 2, 17), ("cv", "wa", 0, 99, 30, 95), ("ld", "wb", 25, 50), ("pollld", 52, 60)], [V_(6, 7) + (25, GBAR - 5)]),
        }[k]
    if OPT["bal"]:
        c = [int(x) for x in str(OPT["cut"]).split(",")]
        a1, a2, b1, b2, v1, v2, w1 = c
        return {
            5: ([("cv", "ka", 0, a1, OPT["w5"], 95), ("pollchk", 1), ("vst", 0, 9), ("vst", 1, 17), ("vst", 2, 25), ("vst", 3, 33), ("post", "vst")], [K_(0, 1) + (41, 74)]) if ckk == 1 else
               ([("cv", "ka", 0, a1, 0, 95), ("pollchk", ckk), ("vst", 0, 1), ("vst", 1, 9), ("vst", 2, 17), ("vst", 3, 25), ("post", "vst")], [K_(0, 1) + (ckk + 7, 92)]),
            6: ([("cv", "ka", a1, a2, 0, 95), ("ld", "kb", 0, 44)] + [("rld", 70, 92)] * OPT["rs"], [K_(2, 3) + (0, 90)]),
            7: ([("cv", "ka", a2, 99, 0, 60 if b1 < 12 else 44), ("cv", "kb", 0, b1, 61 if b1 < 12 else 45, 95), ("ld", "va", 11, OPT["lva"]), ("pollld", plv, plv + 8)], [K_(4, 5) + (11, 92)]),
            0: ([("cv", "kb", b1, b2, 0, 95), ("pollchk", ckv)] + [("rst", 81)] * OPT["rs"], [V_(0, 1) + (ckv + 7, 74)]),
            1: ([("cv", "kb", b2, 99, 0, 30), ("cv", "va", 0, v1, 31, 95), ("ld", "vb", 32, 80)], [V_(2, 3) + (0, GBAR - 5)]) if b2 < 56 else
               ([("cv", "va", 0, v1, 20, 95), ("ld", "vb", 0, 40)], [V_(2, 3) + (0, 90)]),
            2: ([("cv", "va", v1, v2, 0, 95), ("kst", 0, 1), ("kst", 1, 9), ("kst", 2, 17), ("kst", 3, 25), ("post", "kst")], [K_(6, 7) + (33, 74)]),
            3: ([("cv", "va", v2, 99, 0, 50), ("cv", "vb", 0, w1, 51, 95), ("ld", "ka", 0, 44)], [V_(4, 5) + (0, 90)]),
            4: ([("cv", "vb", w1, 99, 0, 95), ("pollld", plk, plk + 16)] + ([("pf", 80, 92)] if OPT["pf2"] else []), [V_(6, 7) + (0, GBAR - 5)]),
        }[k]
    return {
        1: ([("cv", "va", 0, 22, 0, 95), ("ld", "vb", 0, 44)], [V_(2, 3) + (0, GBAR - 5)]),
        2: ([("cv", "va", 22, 99, 0, 95), ("kst", 0, 1), ("kst", 1, 9), ("kst", 2, 17), ("kst", 3, 25), ("post", "kst")], [K_(6, 7) + (33, 74)]),
        3: ([("cv", "vb", 0, 22, 0, 95), ("ld", "ka", 0, 44)], [V_(4, 5) + (0, GBAR - 5)]),
        4: ([("cv", "vb", 22, 99, 0, 95), ("pollld", plk, plk + 16)] + ([("pf", 80, 92)] if OPT["pf2"] else []), [V_(6, 7) + (0, GBAR - 5)]),
        5: ([("cv", "ka", 0, 16, 0, 95), ("pollchk", 1), ("vst", 0, 9), ("vst", 1, 17), ("vst", 2, 25), ("vst", 3, 33), ("post", "vst")], [K_(0, 1) + (41, 74)]),
        6: ([("cv", "ka", 16, 99, 0, 95), ("ld", "kb", 0, 30)], [K_(2, 3) + (31, 74)]),
        7: ([("cv", "kb", 0, 24, 40, 95), ("ld", "va", 11, 40), ("pollld", plv, plv + 8)], [K_(4, 5) + (41, 90)]),
        0: ([("cv", "kb", 24, 99, 0, 95), ("pollchk", ckv)], [V_(0, 1) + (ckv + 7, ckv + 44)]),
    }[k]

GA = V_RS[0]; TA = V_RS[0] + 1; BA = V_RS[0] + 2
RL = [V_CT, V_CT + 4, NEGM(0), NEGM(1)]
S_EO = 24
def epi_addr():
    return [f"v_bfe_u32 v{TA}, v{V_DMA}, 8, 2", f"v_mul_u32_u24 v{GA}, 1536, v{TA}", f"v_lshlrev_b32 v{BA}, 4, v{TA}",
            f"v_bfe_u32 v{TA}, v{V_DMA}, 4, 4", f"v_mul_u32_u24 v{TA}, {12 if V64 else 8}, v{TA}", f"v_add_u32 v{GA}, v{GA}, v{TA}", f"v_mov_b32 v{TA}, 1.0"] + [f"v_mov_b32 v{ONES+i}, 0x3f803f80" for i in range(4 * OPT["lmf"])] + [
            f"s_lshl_b32 s{S_EO}, s{S_QB}, 2", f"s_add_u32 s{S_EO}, s{S_EO}, s{S_WAVE}", f"s_mul_i32 s{S_EO}, s{S_EO}, {STAGE}",
            f"s_add_u32 s{S_QL}, s{S_EO}, 6144", f"s_add_u32 s{S_QS}, s{S_EO}, 12288", f"s_add_u32 s{S_TAG}, s{S_EO}, 18432"]
S_EQ = [S_EO, S_QL, S_QS, S_TAG]
def epi_l(qs, gap=("s_nop 7", "s_nop 1"), acc=False):
    fl = [f"v_mfma_f32_16x16x4_f32 v[{RL[q]}:{RL[q]+3}], v{V_L[q]}, v{TA}, " + (f"v[{RL[q]}:{RL[q]+3}]" if acc else "0") for q in qs] + list(gap)
    return fl + [f"v_rcp_f32 v{RL[q]+r}, v{RL[q]+r}" for q in qs for r in range(4)]
class Epi:
    def __init__(self, temps): self.temps = temps; self.n = 0; self.pend = []
    def flush(self, k=99):
        p = self.pend[:k]; self.pend = self.pend[k:]
        return p
    def chunk(self, qb, n, pk=False, inv=False):
        p = []
        if V64:
            for r in range(4):
                o = self.temps[self.n % len(self.temps)]; self.n += 1; rl = RL[qb] + r
                if inv:
                    p += [f"v_mul_f32 v{o+e}, v{O0(6*n+e)+r}, v{rl}" for e in range(6)] + [f"v_cvt_pk_bf16_f32 v{o+i}, v{o+2*i}, v{o+2*i+1}" for i in range(3)] + self.flush(1)
                    self.pend.append(VM("out", f"buffer_store_dwordx3 v[{o}:{o+2}], v{GA}, s[{S_OUT}:{S_OUT+3}], s{S_EQ[qb]} offen offset:{n*192 + r*384}{OF}"))
                    continue
                p += [f"v_accvgpr_read_b32 v{o+e}, a{O(qb,6*n+e)+r}" for e in range(6)]
                if pk: p += [f"v_pk_mul_f32 v[{o+2*i}:{o+2*i+1}], v[{o+2*i}:{o+2*i+1}], v[{rl&~1}:{(rl&~1)+1}] " + ("op_sel:[0,1] op_sel_hi:[1,1]" if rl & 1 else "op_sel_hi:[1,0]") for i in range(3)]
                else: p += [f"v_mul_f32 v{o+e}, v{o+e}, v{rl}" for e in range(6)]
                p += [f"v_cvt_pk_bf16_f32 v{o+i}, v{o+2*i}, v{o+2*i+1}" for i in range(3)] + self.flush(1)
                self.pend.append(VM("out", f"buffer_store_dwordx3 v[{o}:{o+2}], v{GA}, s[{S_OUT}:{S_OUT+3}], s{S_EQ[qb]} offen offset:{n*192 + r*384}{OF}"))
            return p
        ob = self.temps[self.n % len(self.temps)]; self.n += 1
        for r in range(4):
            o = ob + 4 * r
            if inv:
                p += [f"v_mul_f32 v{o+e}, v{OV(qb,3*e+n)+r}, v{RL[qb]+r}" for e in range(4)]
                p += [f"v_cvt_pk_bf16_f32 v{o+i}, v{o+2*i}, v{o+2*i+1}" for i in range(2)] + self.flush(1)
                self.pend.append(VM("out", f"buffer_store_dwordx2 v[{o}:{o+1}], v{GA}, s[{S_OUT}:{S_OUT+3}], s{S_EQ[qb]} offen offset:{n*128 + r*384}{OF}"))
                continue
            p += [f"v_accvgpr_read_b32 v{o+e}, a{O(qb,3*e+n)+r}" for e in range(4)]
            rl = RL[qb] + r
            if pk: p += [f"v_pk_mul_f32 v[{o+2*i}:{o+2*i+1}], v[{o+2*i}:{o+2*i+1}], v[{rl&~1}:{(rl&~1)+1}] " + ("op_sel:[0,1] op_sel_hi:[1,1]" if rl & 1 else "op_sel_hi:[1,0]") for i in range(2)]
            else: p += [f"v_mul_f32 v{o+e}, v{o+e}, v{rl}" for e in range(4)]
            p += [f"v_cvt_pk_bf16_f32 v{o+i}, v{o+2*i}, v{o+2*i+1}" for i in range(2)]
            p += self.flush(1)
            self.pend.append(VM("out", f"buffer_store_dwordx2 v[{o}:{o+1}], v{GA}, s[{S_OUT}:{S_OUT+3}], s{S_EQ[qb]} offen offset:{n*128 + r*384}{OF}"))
        return p

def gen_tail():
    sp = softmax_part
    g57 = qk_half(58) + rebase(qk_half(59), V_RDK, A0 - A2)
    g58 = pv_seq(56)
    g59 = rebase(qk_half(60), V_RDK, A1 - A0) + rebase(qk_half(61), V_RDK, A2 - A1)
    g60 = rebase(pv_seq(58), [V_RD], B2 - B1) + rebase(pv_seq(59), [V_RD], B0 - B2)
    g61 = rebase(pv_seq(60), [V_RD], B1 - B0) + rebase(qk_half(62), V_RDK, A0 - A2)
    g62 = rebase(qk_half(63), V_RDK, A1 - A0) + ([] if OPT["f3"] else rebase(pv_seq(61), [V_RD], B2 - B1))
    g63 = []
    for dbs in ([chunk_dbs(0), [6, 7, 8], [9, 10, 11]] if V64 else [chunk_dbs(n) for n in range(3)]):
        if OPT["f3"]: g63 += [pv_grp(61, db, va=V_RD3) for db in dbs]
        g63 += [pv_grp(62, db) for db in dbs] + [pv_grp(63, db, va=V_RD2) for db in dbs]
    if OPT["f3"]: g63[0].reb += [f"v_add_u32 v{V_RD3}, {B2 - B1}, v{V_RD}", f"v_mov_b32 v{V_RD2}, v{V_RD}", f"v_subrev_u32 v{V_RD}, {B1 - B0}, v{V_RD}"]
    else: g63[0].reb += [f"v_subrev_u32 v{V_RD2}, {B2 - B1}, v{V_RD}", f"v_subrev_u32 v{V_RD}, {B2 - B0}, v{V_RD}"]
    first57 = g57[:2]
    Z0 = OPT["z0"] and OPT["lastp"]
    p = []
    p += gen_seg("S57", g57, g58[:2], [(sp(57, 1) + [("dl", 50), ("nb", 28)] + sp(58, 0), 0, 95)], [(7, [("dk", 5)])] * (1 - Z0) + [(GBAR, [("dv", 0), ("dv", 1)])],
                 [("step", "p", 30, GBAR - 3)], [] if Z0 else [(K_(62, 63) + (8, 60)) if OPT["tv"] else (K_(62, 63) + V_(58, 59) + (8, 90))], peel=False)
    p += gen_seg("S58", g58, g59[:2], [(sp(58, 1) + sp(59, 0), 0, 95), (epi_addr(), 0, 95)], [(GBAR, [("dk", 7)] if OPT["tv"] else [("dk", 7), ("dv", 3)])], [],
                 [(V_(58, 59, 60, 61) + (0, 74)) if OPT["tv"] else (V_(60, 61) + (0, 60))], peel=False)
    p += gen_seg("S59", g59, g60[:2], [(sp(59, 1) + [("dl", 50), ("nb", 28)] + sp(60, 0), 0, 95)], [(15, [("dv", 5)])], [], [V_(62, 63) + (16, 60)], peel=False)
    p += gen_seg("S60", g60, g61[:2], [(sp(60, 1) + sp(61, 0), 0, 95)], [(GBAR, [("dv", 7)])])
    ep = Epi([BX + 6 * i for i in range(5)] if V64 else [BX] if OPT["omv"] else [BX, BY])
    if OPT["om0"]:
        t5 = ep.temps; ep.temps = [UNIT[0], UNIT[0] + 6]
        e01 = [x for n in range(NCH) for x in ep.chunk(0, n, False, True)]
        ep.temps = t5; ep.n = 0
        e01 += [x for n in range(NCH) for x in ep.chunk(1, n)] + ep.flush()
    else: e01 = [x for qb in (0, 1) for n in range(NCH) for x in ep.chunk(qb, n, OPT["pk"])] + ep.flush()
    chk = [f"v_max3_f32 v{V_T+2}, v{V_L[0]}, v{V_L[1]}, v{V_L[2]}", f"v_max_f32 v{V_T+2}, v{V_T+2}, v{V_L[3]}",
           f"s_mov_b32 s{S_TMP}, 0x{f32bits(2.0**OPT['thr']):08x}", f"v_cmp_lt_f32 s[{S_PT}:{S_PT+1}], s{S_TMP}, v{V_T+2}"]
    c = [ep.chunk(2, j, OPT["pk"]) + ep.chunk(3, j, OPT["pk"]) + ep.flush() for j in range(NCH - 1)] + [[]]
    sm = sp(61, 1) + epi_l((0, 1), [])[2:] + [("dl", 50), ("nb", 76)] + sp(62, 0) + [("nb", 98)] + sp(62, 1) + [("nb", 124)] + sp(63, 0) + [("nb", 148)] + sp(63, 1) + [("dl", 205)] + chk + [("nb", 214)] + epi_l((2, 3), [])[2:]
    ee = e01 + [("nb", 228)] + c[0] + [("nb", 260)] + c[1]
    lastsm = 220
    if OPT["f3"]:
        sm = sp(61, 1) + epi_l((0, 1), [])[2:] + [("dl", 50), ("nb", 76)] + sp(62, 0) + [("nb", 98)] + sp(62, 1) + [("dl", 157), ("nb", 124)] + sp(63, 0) + [("nb", 148)] + sp(63, 1) + [("dl", 173)] + chk + [("nb", 182)] + epi_l((2, 3), [])[2:]
        ee = e01 + [("dl", OPT["ed"]), ("nb", 196)] + c[0] + [("dl", OPT["ed1"]), ("nb", 244)] + c[1]
        lastsm = 190
        if V64:
            lm = OPT["lmf"]
            sm = sp(61, 1, lm) + epi_l((0, 1), [])[2:] + [("dl", 50), ("nb", 76)] + sp(62, 0, lm) + [("nb", 98)] + sp(62, 1, lm) + [("dl", 165), ("nb", 124)] + sp(63, 0, lm) + [("nb", 148)] + sp(63, 1, lm) + [("dl", 187 if lm else 189)]
            if lm:
                chk = [f"v_max3_f32 v{V_T+2}, v{V_L[0]}, v{V_L[1]}, v{RL[2]}"] + [f"v_max3_f32 v{V_T+2}, v{V_T+2}, v{a_}, v{a_+1}" for a_ in (RL[2] + 1, RL[2] + 3, RL[3] + 1)] + [f"v_max_f32 v{V_T+2}, v{V_T+2}, v{RL[3]+3}"] + chk[2:]
                sm += [("nb", 198)] + chk + epi_l((2, 3), [])[2:]
            else: sm += chk + [("nb", 198)] + epi_l((2, 3), [])[2:]
            ee = e01 + [("dl", OPT["ed"] + 20), ("nb", 220)] + c[0]
            lastsm = 206
    if OPT["sst"]:
        prod = []; ev = []
        for x in ee:
            if isinstance(x, VM): prod.append(x)
            else: ev.append(x)
        es = Stream(ev, 52, 286); ss = Stream(prod, 52, 287)
        cv = [i for i, x in enumerate(es.ops) if text_of(x).startswith("v_cvt_pk")][(2 if V64 else 1)::(3 if V64 else 2)]
        rd = [i for i, x in enumerate(es.ops) if text_of(x).startswith("v_accvgpr_read")][0::(6 if V64 else 4)]
        if OPT["om0"]: rd = [0] + [c_ + 1 for c_ in cv[:-1]]
        assert len(cv) == len(prod) == len(rd)
        for k in range(len(prod)):
            ss.gate[k] = (es, cv[k]); ss.nb[k] = max([0] + [gp for i, gp in es.nb.items() if i <= cv[k]])
            kk = k + (1 if V64 else 4) * len(ep.temps)
            if OPT["om0"] and k < 8: kk = k + 2 if k < 6 else len(prod)
            if kk < len(prod): es.gate[rd[kk]] = (ss, k)
        xs = [es, ss]
        LT = [96, 102, 108, 114, 120, 64, 70, 144]
        if V64: xs.append(Stream([x for q in (2, 3) for r in range(4) for x in [f"v_accvgpr_read_b32 v{LT[4*(q-2)+r]+e}, a{O(q,6+e)+r}" for e in range(3)] +
                                  [f"v_mul_f32 v{LT[4*(q-2)+r]+e}, v{LT[4*(q-2)+r]+e}, v{RL[q]+r}" for e in range(3)]], 256, 287))
        if OPT["omv"]: xs.append(Stream([f"v_accvgpr_read_b32 v{OV(q, db)+r}, a{O(q, db)+r}" for q in (2, 3) for db in (2, 5, 8, 11) for r in range(4)], 0, 140))
    else: xs = [Stream(ee, 52, 287)]
    p += gen_seg("S61", g61 + g62 + g63, [], [(sm, 0, lastsm)], extra=xs,
                 fixed=[(1, "T", epi_l((0, 1))[:1]), (3, "T", epi_l((0, 1))[1:2]), (lastsm - 15, "T", epi_l((2, 3), acc=V64 and OPT["lmf"])[:1]), (lastsm - 13, "T", epi_l((2, 3), acc=V64 and OPT["lmf"])[1:2]), (lastsm + 5, "A", [f"s_cmp_lg_u64 s[{S_PT}:{S_PT+1}], 0", "s_cbranch_scc1 L_slow"]), (95, "T", istamp("S62")), (191, "T", istamp("S63"))])
    p += istamp("fin") + ["s_nop 7"]
    if OPT["omv"]: ep.temps = [UNIT[0], UNIT[1]]
    if V64:
        for q in (2, 3):
            for r in range(4):
                o = LT[4 * (q - 2) + r]
                p += [f"v_accvgpr_read_b32 v{o+e}, a{O(q,6+e)+r}" for e in range(3, 6)] + [f"v_cvt_pk_bf16_f32 v{o}, v{o}, v{o+1}"]
                p += [f"v_mul_f32 v{o+e}, v{o+e}, v{RL[q]+r}" for e in range(3, 6)] + [f"v_cvt_pk_bf16_f32 v{o+i}, v{o+2*i}, v{o+2*i+1}" for i in (1, 2)]
                p += [VM("out", f"buffer_store_dwordx3 v[{o}:{o+2}], v{GA}, s[{S_OUT}:{S_OUT+3}], s{S_EQ[q]} offen offset:{192 + r*384}{OF}")]
        return first57, p
    p += ep.chunk(2, NCH - 1, True, OPT["omv"]) + ep.flush() + ep.chunk(3, NCH - 1, True, OPT["omv"]) + ep.flush()
    return first57, p
def slow_epi():
    ep = Epi([64 + 6 * i for i in range(8)] if V64 else [64 + 16 * i for i in range(4)])
    seq = ["s_nop 1"] + epi_l((0, 1)) + epi_l((2, 3)) + ["s_nop 0"]
    for qb in range(4):
        for n in range(NCH): seq += ep.chunk(qb, n, True)
    return seq + ep.flush()

def kfrag(g):
    return 2 * (g >> 2) + (g & 1), (g >> 1) & 1
def gen_slow():
    KF = 64; VF = 112; SS = 160; PP = 224; M = [240, 241, 242, 243]; KA = [244, 245]; LA = 246; t = V_T
    p = ["L_slow:", "s_waitcnt vmcnt(0) lgkmcnt(0)", "s_nop 15"]
    for i in range(192): p.append(f"v_accvgpr_write_b32 a{i}, 0")
    for q in range(4): p += [f"v_mov_b32 v{V_L[q]}, 0", f"v_mov_b32 v{M[q]}, 0xff7fffff"]
    p += [f"v_subrev_u32 v{KA[0]}, {A1}, v{V_RDK[0]}", f"v_subrev_u32 v{KA[1]}, {A1}, v{V_RDK[1]}", f"v_subrev_u32 v{LA}, {B0}, v{V_RD}",
          f"s_mov_b32 s{S_PT}, 0", "L_slowloop:"]
    for i in range(1, 5): p.append(f"s_add_u32 s{S_PT+i}, s{S_PT}, {[0, 6144, 12288, 16384, 20480][i]}")
    for f in range(12):
        s, tb = kfrag(f)
        p.append(f"buffer_load_dwordx4 v[{KF+4*f}:{KF+4*f+3}], v{KA[s&1]}, s[{S_WS}:{S_WS+3}], s{S_PT+tb} offen offset:{(s>>1)*128} sc1")
    for db in range(12):
        p.append(f"buffer_load_dwordx4 v[{VF+4*db}:{VF+4*db+3}], v{LA}, s[{S_WS}:{S_WS+3}], s{S_PT+2+db//4} offen offset:{(db%4)*1024} sc1")
    p.append("s_waitcnt vmcnt(12)")
    for f in range(12):
        s, tb = kfrag(f)
        for qb in range(4):
            d = vr(SS + 8 * qb + 4 * tb, 4)
            p.append(f"{MF} {d}, v[{KF+4*f}:{KF+4*f+3}], {Qf(qb,s)}, {'0' if s == 0 else d}")
    p.append("s_nop 9")
    for qb in range(4):
        sb = SS + 8 * qb
        p += [f"v_max3_f32 v{t}, v{sb}, v{sb+1}, v{sb+2}", f"v_max3_f32 v{t}, v{t}, v{sb+3}, v{sb+4}",
              f"v_max3_f32 v{t}, v{t}, v{sb+5}, v{sb+6}", f"v_max3_f32 v{t}, v{t}, v{sb+7}, v{M[qb]}"]
        p += xlane("v_max_f32", t)
        p += [f"v_sub_f32 v{t+1}, v{M[qb]}, v{t}", f"v_exp_f32 v{t+1}, v{t+1}", f"v_mov_b32 v{M[qb]}, v{t}"]
        for i in range(8): p.append(f"v_sub_f32 v{sb+i}, v{sb+i}, v{t}")
        for i in range(8): p.append(f"v_exp_f32 v{sb+i}, v{sb+i}")
        p.append(f"v_mul_f32 v{V_L[qb]}, v{V_L[qb]}, v{t+1}")
        for i in range(8): p.append(f"v_add_f32 v{V_L[qb]}, v{V_L[qb]}, v{sb+i}")
        for i in range(4): p.append(f"v_cvt_pk_bf16_f32 v{PP+4*qb+i}, v{sb+2*i}, v{sb+2*i+1}")
        p += [f"ds_bpermute_b32 v{248+r}, v{BA}, v{t+1} offset:{4*r}" for r in range(4)] + ["s_waitcnt lgkmcnt(0)"]
        for i in range(48):
            a = O(qb, 0) + i; tt = t + 2 + (i % 2)
            p += [f"v_accvgpr_read_b32 v{tt}, a{a}", f"v_mul_f32 v{tt}, v{tt}, v{248+i%4}", f"v_accvgpr_write_b32 a{a}, v{tt}"]
    p += ["s_waitcnt vmcnt(0)", "s_nop 1"]
    for db in range(12):
        for qb in range(4):
            d = ar(O(qb, db), 4)
            p.append(f"{MF} {d}, v[{PP+4*qb}:{PP+4*qb+3}], v[{VF+4*db}:{VF+4*db+3}], {d}")
    p += [f"s_add_u32 s{S_PT}, s{S_PT}, {STAGE}", f"s_cmp_lt_u32 s{S_PT}, {HEADBYTES}", "s_nop 7", "s_cbranch_scc1 L_slowloop"]
    e = slow_epi(); resolve(e)
    return p + fin(e) + ["s_branch L_fin"]

def xlane(op, t, u=None):
    u = t + 1 if u is None else u
    l = []
    for sw in ("v_permlane16_swap_b32", "v_permlane32_swap_b32"):
        l += [f"v_mov_b32 v{u}, v{t}", "s_nop 1", f"{sw} v{t}, v{u}", "s_nop 1", f"{op} v{t}, v{t}, v{u}"]
    return l
def rowmax2(t, qs, tq):
    l = []
    ab = [(Sq(t, j, 0), Sq(t, j, 1)) for j in range(2)]
    l += [f"v_max3_f32 v{tq[j]}, v{a}, v{a+1}, v{a+2}" for j, (a, b) in enumerate(ab)]
    l += [f"v_max3_f32 v{tq[j]}, v{tq[j]}, v{a+3}, v{b}" for j, (a, b) in enumerate(ab)]
    l += [f"v_max3_f32 v{tq[j]}, v{tq[j]}, v{b+1}, v{b+2}" for j, (a, b) in enumerate(ab)]
    l += [f"v_max_f32 v{tq[j]}, v{tq[j]}, v{b+3}" for j, (a, b) in enumerate(ab)]
    for sw in ("v_permlane16_swap_b32", "v_permlane32_swap_b32"):
        l += [f"v_mov_b32 v{tq[j]+1}, v{tq[j]}" for j in range(2)] + ["s_nop 0"]
        l += [f"{sw} v{tq[j]}, v{tq[j]+1}" for j in range(2)] + ["s_nop 0"]
        l += [f"v_max_f32 v{tq[j]}, v{tq[j]}, v{tq[j]+1}" for j in range(2)]
    l += [f"v_sub_f32 v{NEGM(qs[j])+i}, 0, v{tq[j]}" for j in range(2) for i in range(4)]
    return l
def sm_one(t, sl):
    a, b = Sq(t, sl, 0), Sq(t, sl, 1); tq = V_CT; qb = slot_q(t, sl); rs = [r + i for r in (a, b) for i in range(4)]
    l = [f"v_max3_f32 v{tq}, v{a}, v{a+1}, v{a+2}", f"v_max3_f32 v{tq+2}, v{a+3}, v{b}, v{b+1}",
         f"v_max3_f32 v{tq}, v{tq}, v{b+2}, v{b+3}", f"v_max_f32 v{tq}, v{tq}, v{tq+2}"] + xlane("v_max_f32", tq)
    l += [f"v_sub_f32 v{r}, v{r}, v{tq}" for r in rs] + [f"v_exp_f32 v{r}, v{r}" for r in rs] + [f"v_sub_f32 v{NEGM(qb)+i}, 0, v{tq}" for i in range(4)]
    l += [f"v_add_f32 v{V_L[qb]}, v{V_L[qb]}, v{r}" for r in rs] + [f"v_cvt_pk_bf16_f32 v{a+i}, v{rs[2*i]}, v{rs[2*i+1]}" for i in range(4)]
    return l
def addneg(t, sl):
    n = NEGM(slot_q(t, sl))
    return [f"v_add_f32 v{Sq(t,sl,tb)+i}, v{Sq(t,sl,tb)+i}, v{n}" for tb in range(2) for i in range(4)]

def resolve(seq):
    vm = []; ds = []
    for x in seq:
        if isinstance(x, VM): vm.append(x.tag)
        elif isinstance(x, DS): ds.append(x.tag)
        elif isinstance(x, (W, LG)):
            q = vm if isinstance(x, W) else ds
            best = None
            for tag in x.tags:
                n = 0; found = False
                for t in reversed(q):
                    if t == tag: found = True; break
                    n += 1
                if found: best = n if best is None else min(best, n)
            if best is not None:
                x.n = best if getattr(x, "n", None) is None else min(x.n, best)
        else:
            assert not x.startswith(("ds_", "buffer_")) or "UNTRACKED" in x, x
def vm_size(x):
    t = x.text
    if t.startswith("buffer_store"): return 0
    if x.tag == "pre": return 3.0
    if " lds" in t: return 1.0
    if "dwordx4" in t or "dwordx3" in t: return 0.75
    if "dwordx2" in t and "offen" in t: return 0.375
    return 0.125
S_THR = 100
def pace(seq, cap):
    out = []; q = []; on = False; caps = [OPT["cap2"] / 4, OPT["cap3"] / 4]; qs = [[], []]; n2 = 0
    for x in seq:
        if x == ";ENDCAP2": caps = [0, 0]; continue
        if isinstance(x, W):
            q = q[len(q) - min(len(q), x.n):]; qs = [r[len(r) - min(len(r), x.n):] for r in qs]; on = True
        elif isinstance(x, VM):
            sz = vm_size(x); ld = not x.text.startswith("buffer_store")
            if on and ld and sum(q) + sz > cap:
                while q and sum(q) + sz > cap: q.pop(0)
                w = W(); w.n = len(q); qs = [r[len(r) - min(len(r), w.n):] for r in qs]
                if out and out[-1] == "s_nop 0": out.pop()
                out.append(w)
            for c in range(2):
                if caps[c] and on and ld and sum(qs[c]) + sz > caps[c]:
                    while qs[c] and sum(qs[c]) + sz > caps[c]: qs[c].pop(0)
                    w = W(); w.n = len(qs[c]); n2 += 1
                    out += [f"s_bitcmp0_b32 s{S_THR}, {c}", f"s_cbranch_scc1 L_thr{n2}", w, f"L_thr{n2}:"]
            q.append(sz)
            for r in qs: r.append(sz)
        out.append(x)
    return out
def fin(seq):
    out = []
    for x in seq:
        if isinstance(x, (W, LG)):
            if OPT["ab"] and getattr(x, "n", None) is None: x.n = 63
            assert getattr(x, "n", None) is not None, x.tags
            out.append(f"s_waitcnt vmcnt({min(x.n, 63)})" if isinstance(x, W) else f"s_waitcnt lgkmcnt({min(x.n, 15)})")
        elif isinstance(x, (VM, DS)): out.append(x.text)
        else: out.append(x.replace(" ;UNTRACKED", ""))
    return out
def groups_of(l):
    out = [[]]
    for x in l:
        out[-1].append(x)
        if isinstance(x, VM): out.append([])
    tail = out.pop()
    if tail: out[-1] += tail
    return out
def sprinkle(code, l):
    if not l: return list(code)
    gs = groups_of(l); out = []; n = len(code); m = len(gs); j = 0
    for i, x in enumerate(code):
        while j < m and i * m >= j * n: out += with_nop(gs[j]); j += 1
        out.append(x)
    for g in gs[j:]: out += with_nop(g)
    return out
def srd(p, s, lo, hi, off_s, size):
    p += [f"s_add_u32 s{s}, s{lo}, s{off_s}", f"s_addc_u32 s{s+1}, s{hi}, 0", f"s_mov_b32 s{s+2}, {size}", f"s_mov_b32 s{s+3}, 0x20000"]

def gen_main():
    p = []
    p += [f"{NAME}_kernel:", "s_cmp_ge_u32 s2, 256", "s_cbranch_scc1 L_done",
          "s_load_dwordx16 s[40:55], s[0:1], 0", "s_load_dwordx4 s[16:19], s[0:1], 64"]
    if OPT["stamp"]: p += ["s_memtime s[98:99]" if OPT["stamp"] == 6 else "s_memrealtime s[98:99]"]
    p += [f"s_and_b32 s{S_HEAD}, s2, 7", f"s_lshr_b32 s{S_QB}, s2, 3", f"s_lshr_b32 s24, s{S_QB}, 3", f"s_lshl_b32 s{S_HEAD}, s{S_HEAD}, 2",
          f"s_add_u32 s{S_HEAD}, s{S_HEAD}, s24", f"s_and_b32 s{S_QB}, s{S_QB}, 7"]
    p += ["s_getpc_b64 s[60:61]", "L_pc:", f"s_sub_u32 s60, s60, L_pc-{NAME}_kernel", "s_subb_u32 s61, s61, 0",
          f"s_mov_b32 s62, L_slow-{NAME}_kernel", "s_mov_b32 s63, 0x20000",
          "s_lshr_b32 s22, s2, 3", "s_lshl_b32 s22, s22, 12",
          "v_lshlrev_b32 v30, 4, v0",
          VM("pf", "buffer_load_dwordx4 v[128:131], v30, s[60:63], s22 offen" + (" nt" if OPT["pfnt"] else ""))]
    p += ["v_lshrrev_b32 v24, 6, v0",
          "v_and_b32 v25, 63, v0",
          f"v_readfirstlane_b32 s{S_WAVE}, v24",
          f"v_lshlrev_b32 v{V_RD}, 4, v25",
          "v_mul_u32_u24 v26, 43, v25", "v_lshrrev_b32 v26, 10, v26",
          "v_mul_u32_u24 v27, 24, v26",
          "v_sub_u32 v27, v25, v27",
          "v_lshrrev_b32 v28, 1, v24",
          "v_and_b32 v29, 1, v24",
          "v_lshlrev_b32 v30, 4, v29",
          "v_lshl_add_u32 v30, v28, 2, v30",
          "v_add_u32 v30, v30, v26",
          "v_mul_u32_u24 v30, 768, v30",
          "v_lshrrev_b32 v48, 1, v26", "v_lshlrev_b32 v48, 30, v48",
          "v_lshl_add_u32 v30, v27, 4, v30", f"v_or_b32 v{V_KLD}, v30, v48",
          f"v_lshl_or_b32 v{V_KSC}, v27, 3, v48",
          "v_mul_u32_u24 v30, 6144, v24",
          ] + (["v_mul_u32_u24 v31, 12, v25", f"v_add_u32 v{V_VLD}, v30, v31"] if V64 else [f"v_add3_u32 v{V_VLD}, v30, v{V_RD}, v48"])
    for sd, size in ((S_QK, HEADBYTES), (S_QV, HEADBYTES), (S_KS, 12288), (S_KZ, 12288), (S_VS, 4096), (S_VZ, 4096), (S_FLG, 64)):
        p += [f"s_mov_b32 s{sd+2}, {size}", f"s_mov_b32 s{sd+3}, 0x20000"]
    p += [f"s_mul_i32 s{S_PK0}, s{S_QB}, {STAGE}", f"s_add_u32 s{S_PK1}, s{S_PK0}, 6144", f"s_mov_b32 s{S_PV0}, s{S_PK0}",
          f"s_lshr_b32 s{S_PKS}, s{S_QB}, 1", f"s_mul_i32 s{S_PKS}, s{S_PKS}, 384", f"s_lshl_b32 s{S_PVS}, s{S_QB}, 6",
          f"s_lshl_b32 s24, s{S_WAVE}, 4", f"s_add_u32 s{S_PVS}, s{S_PVS}, s24",
          f"s_mul_i32 s24, s{S_HEAD}, {HEADBYTES}", f"s_mul_i32 s56, s{S_HEAD}, 12288", f"s_lshl_b32 s57, s{S_HEAD}, 12",
          f"s_lshl_b32 s58, s{S_HEAD}, 10", f"s_add_u32 s58, s58, {FLAG_OFF + 96}",
          f"s_or_b32 s{S_RET}, s{S_QB}, s{S_WAVE}"]
    p += ["s_waitcnt lgkmcnt(0)"] + istamp("karg", True)
    def base(sd, lo, off): return [f"s_add_u32 s{sd}, s{lo}, s{off}", f"s_addc_u32 s{sd+1}, s{lo+1}, 0"]
    p += base(S_QK, 42, 24) + base(S_KS, 46, 56) + base(S_KZ, 48, 56)
    kl = [k_ld(0, BX, 32, "k0a"), k_ld(1, BY, 36, "k0b")]; vl = [v_ld(0, 112, 40, "v0a"), v_ld(1, 80, 44, "v0b")]
    for x in kl[1][:2]: x.tag = "k0a"
    for x in vl[1][:2]: x.tag = "v0a"
    if OPT["ksc"]:
        for x in kl[0][2:] + kl[1][2:]: x.tag = "kraw"
        for x in kl[1][:2]: x.tag = "k0b"
        p += kl[0][2:] + kl[1][2:] + kl[0][:2] + kl[1][:2]; kl[1] = []
    else: p += kl[0][2:] + kl[0][:2] + kl[1][:2]
    p += base(S_FLG, 18, 58) + base(S_VS, 50, 57) + base(S_VZ, 52, 57) + base(S_QV, 44, 24)
    p += [f"s_mul_i32 s59, s{S_HEAD}, 786432"] + base(S_OUT, 54, 59) + base(S_Q, 40, 59)
    p += [f"s_cmp_lg_u32 s{S_RET}, 0", "s_cbranch_scc1 L_notleader0", f"s_buffer_load_dwordx16 s[40:55], s[{S_FLG}:{S_FLG+3}], 0 glc", "L_notleader0:"]
    p += kl[1][2:]
    p += [f"s_add_u32 s24, s24, {WSOFF}"] * (1 if WSOFF else 0)
    srd(p, S_WS, 18, 19, 24, HEADBYTES)
    p += [f"s_mov_b32 s{S_Q+2}, 786432", f"s_mov_b32 s{S_Q+3}, 0x20000"]
    p += [f"s_mov_b32 s{S_DBG}, s16", f"s_mov_b32 s{S_DBG+1}, s17", f"s_add_u32 s{S_PV1}, s{S_PK0}, 3072", f"s_add_u32 s{S_PV2}, s{S_PK0}, 6144"]
    p += [f"s_mov_b32 s{S_DBG+2}, 256", f"s_mov_b32 s{S_DBG+3}, 0x20000", f"s_lshl_b32 s{S_HOFF}, s{S_HEAD}, 3"]
    p += [f"s_cmp_lg_u32 s{S_RET}, 0", "s_cbranch_scc1 L_notleader", "s_waitcnt lgkmcnt(0)", f"s_mov_b32 s{S_TP}, 1"]
    for i in range(16):
        p += [f"s_lshr_b32 s{40+i}, s{40+i}, 10", f"s_min_u32 s{40+i}, s{40+i}, 31", f"s_bitset1_b32 s{S_TP}, s{40+i}"]
    p += [f"s_ff0_i32_b32 s{S_TP}, s{S_TP}", f"s_lshl_b32 s{S_TP}, s{S_TP}, 10", f"v_mov_b32 v{V_POLL}, s{S_TP}",
          "s_mov_b64 exec, 1", f"buffer_store_dword v{V_POLL}, off, s[{S_DBG}:{S_DBG+3}], s{S_HOFF} sc1 ;UNTRACKED", "s_mov_b64 exec, -1",
          "L_notleader:"]
    p += [f"s_lshl_b32 s24, s{S_QB}, 2", f"s_add_u32 s24, s24, 32", f"s_buffer_load_dword s{S_OWN}, s[{S_FLG}:{S_FLG+3}], s24 glc",
          ] + ([f"s_getreg_b32 s{S_XCC}, hwreg(HW_REG_XCC_ID, 0, 4)", f"s_lshl_b32 s{S_XCC}, s{S_XCC}, 5", f"s_mov_b32 s{S_FOFF}, {32 if OPT['l2'] == 3 else 0}"] if OPT["l2"] else
          [f"s_mov_b32 s{S_XCC}, 0", f"s_mov_b32 s{S_FOFF}, 32"])
    p += vl[0][2:] + vl[0][:2] + vl[1][:2] + (vl[1][2:] if OPT["greedy"] else []) + istamp("iss", True)
    if OPT["pre"]:
        st = OPT["pre"]
        p += [f"v_mul_u32_u24 v31, {st}, v25", f"v_mul_u32_u24 v30, 6144, v24", "v_add_u32 v31, v30, v31"]
        if st == 128: p += ["v_or_b32 v31, v31, v48"]
        p += [VM("pre", f"buffer_load_dword v132, v31, s[{S_WS}:{S_WS+3}], s{S_PK0} offen" + (" nt" if OPT["prent"] else ""))]
        if st == 64: p += ["v_add_u32 v30, 4096, v31", "s_mov_b64 exec, 0xffffffff", VM("pre", f"buffer_load_dword v133, v30, s[{S_WS}:{S_WS+3}], s{S_PK0} offen nt"), "s_mov_b64 exec, -1"]
    p += [f"s_mov_b32 s{S_OUT+2}, 786432", f"s_mov_b32 s{S_OUT+3}, 0x20000"]
    p += [f"s_lshl_b32 s24, s{S_WAVE}, 8", f"s_add_u32 s{S_HOFF}, s{S_HOFF}, s24"]
    p += ["v_mul_u32_u24 v30, 3072, v24", f"v_add_u32 v{V_DMA}, v30, v{V_RD}"]
    p += ["v_lshl_add_u32 v30, v24, 3, v26",
          "v_mul_u32_u24 v30, 384, v30",
          "v_lshlrev_b32 v31, 2, v29",
          "v_xor_b32 v31, v27, v31",
          "v_lshl_add_u32 v30, v31, 4, v30", f"v_or_b32 v{V_KST}, v30, v48",
          "v_lshlrev_b32 v30, 8, v24",
          "v_add_u32 v30, 12288, v30",
          ] + (["v_lshrrev_b32 v31, 5, v25", "v_mul_u32_u24 v31, 6144, v31", "v_add_u32 v30, v30, v31", "v_and_b32 v31, 1, v25", "v_mul_u32_u24 v31, 3072, v31", "v_add_u32 v30, v30, v31",
          "v_bfe_u32 v31, v25, 1, 4", f"v_lshl_add_u32 v{V_VST}, v31, 4, v30"] if V64 else
          ["v_lshrrev_b32 v31, 4, v25", "v_lshl_add_u32 v30, v31, 10, v30", "v_and_b32 v31, 15, v25",
          "v_lshl_add_u32 v30, v31, 4, v30", f"v_or_b32 v{V_VST}, v30, v48"])
    p += [f"s_lshl_b32 s24, s{S_QB}, 2",
          f"v_lshl_add_u32 v{V_FLAG}, v0, 2, s24", f"v_cmp_lt_u32 vcc, 0, v0", "v_mov_b32 v30, 0x40000000", "s_nop 0",
          f"v_cndmask_b32 v{V_FLAG}, v{V_FLAG}, v30, vcc"]
    p += [f"s_mul_i32 s{S_DMK}, s{S_WAVE}, 3072", f"s_add_u32 s{S_DMK}, s{S_DMK}, 12288", f"s_add_u32 s{S_DMV}, s{S_DMK}, {STAGE}",
          f"s_add_u32 s24, s{S_QB}, 1", "s_and_b32 s24, s24, 7", f"s_mul_i32 s{S_GOFFK}, s24, {STAGE}", f"s_add_u32 s{S_GOFF}, s{S_GOFFK}, 12288",
          f"s_mov_b32 s{S_RK}, {A2}", f"s_mov_b32 s{S_RV}, {B1}", f"v_add_u32 v{V_RD}, {B0}, v{V_RD}",
          f"s_mov_b32 s{S_CS}, 0x{f32bits(CSCALE):08x}", f"s_mov_b32 s{S_MASK}, 0xffff0000",
          f"s_and_b32 s24, s2, 7", f"s_lshl_b32 s24, s24, 1", f"s_lshr_b32 s{S_THR}, {sum(((OPT['m2'] >> i & 1) | (OPT['m3'] >> i & 1) << 1) << (2 * i) for i in range(8))}, s24",
          f"s_mov_b32 s{S_BUDGET}, 100000"] + ([f"s_mov_b32 s{S_TAG+1}, 0"] if OPT["stamp"] else [])
    p += ["v_and_b32 v26, 15, v25", "v_lshrrev_b32 v27, 4, v25", "v_bfe_u32 v28, v25, 1, 3",
          "v_xor_b32 v29, v27, v28", "v_mul_u32_u24 v30, 384, v26", f"v_lshl_add_u32 v{V_RDK[0]}, v29, 4, v30",
          f"v_xor_b32 v{V_RDK[1]}, 64, v{V_RDK[0]}"]
    p += [f"s_mul_i32 s{S_QL}, s{S_WAVE}, 6144", f"s_add_u32 s{S_QL}, s{S_QL}, {B1}",
          "v_lshrrev_b32 v29, 1, v27", "v_xor_b32 v29, v29, v28", "v_lshl_add_u32 v31, v29, 4, v30",
          "v_and_b32 v29, 1, v27", "v_lshl_add_u32 v31, v29, 3, v31"]
    for kk in range(4):
        p += [f"v_xor_b32 v{VQR[kk]}, {32*kk}, v31", f"v_add_u32 v{VQR[kk]}, s{S_QL}, v{VQR[kk]}"]
    p += [f"s_lshl_b32 s24, s{S_QB}, 2", f"s_add_u32 s24, s24, s{S_WAVE}", f"s_mul_i32 s24, s24, {STAGE}"]
    for b in range(6):
        p += [f"v_add_u32 v26, {64*b}, v25", "v_mul_u32_u24 v27, 2731, v26", "v_lshrrev_b32 v27, 17, v27",
              "v_and_b32 v27, 7, v27", "v_xor_b32 v26, v26, v27", f"v_lshlrev_b32 v{VQD+b}, 4, v26", f"v_add_u32 v{VQD+b}, s24, v{VQD+b}"]
    for q in range(4): p.append(f"v_mov_b32 v{V_L[q]}, 0")
    KF = 144
    def kf_reads(): return [DS("kf", f"ds_read_b128 v[{KF+4*f}:{KF+4*f+3}], v{V_RDK[kfrag(f)[0]&1]} offset:{kfrag(f)[1]*6144 + (kfrag(f)[0]>>1)*128}") for f in range(12)]
    def qk0(qb):
        l = []
        for f in sorted(range(12), key=lambda f: kfrag(f)[::-1]):
            s, tb = kfrag(f)
            d = vr(Sq(0, qb, tb), 4)
            l.append(f"{MF} {d}, v[{KF+4*f}:{KF+4*f+3}], {Qf(qb,s)}, {'0' if s == 0 else d}")
        return l
    STF0 = "" if OPT["l2"] else STF
    def own_k(b):
        l = []
        for j in range(4):
            l += k_st(j, b, "kst", STF0)
            va = V_KST if j == 0 else V_KA + (j & 1)
            l += ["s_mov_b64 exec, s[62:63]", DS("w", f"ds_write_b128 v{va}, v[{b+4*j}:{b+4*j+3}] offset:{j*768}"), "s_mov_b64 exec, -1"]
        return l
    def own_v(b):
        l = [x for e in range(NVE) for x in v_st(e, b, "vst", STF0)]
        if V64: return l + [DS("w", f"ds_write_b128 v{V_VST}, v[{b+4*e}:{b+4*e+3}] offset:{STAGE - 12288 + e*1024}") for e in range(3)]
        l += ["s_mov_b64 exec, s[62:63]"] + [DS("w", f"ds_write_b128 v{V_VST}, v[{b+4*e}:{b+4*e+3}] offset:{STAGE - 12288 + e*3072}") for e in range(4)] + ["s_mov_b64 exec, -1"]
        return l
    p += ["s_mov_b32 s62, -1", "s_mov_b32 s63, 0xffff"]
    qa = OPT["qa"]
    qb_, qc = OPT["qb"], OPT["qc"]
    R = lambda a, b: list(range(a, b))
    if OPT["split"]:
        p += [W("k0a")] + vl[1][2:] + k_cv(0, BX, 32, BX) + [W("k0b")] + istamp("k0b", True) + k_cv(1, BY, 36, BX) + own_k(BX)
        p += tag_load() + with_nop(q_dma(R(0, qa))) + [W("v0a")] + v_cv(0, 112, 40, 112)
        p += [W("tag")] + tag_check() + ["s_waitcnt lgkmcnt(0)", "s_barrier"] + flag_post() + tag_get() + istamp("post", True)
        p += with_nop(q_dma(R(qa, qb_))) + v_cv(1, 80, 44, 112) + own_v(112) + with_nop(q_dma(R(qb_, 12))) + istamp("vst", True)
    elif OPT["greedy"]:
        p += [W("k0a")] + with_nop(q_dma(R(0, 3))) + k_cv(0, BX, 32, BX) + [W("k0b")] + istamp("k0b", True) + with_nop(q_dma(R(3, 6))) + k_cv(1, BY, 36, BX) + own_k(BX)
        p += [W("v0a")] + with_nop(q_dma(R(6, 9))) + v_cv(0, 112, 40, 112) + [W("v0b")] + with_nop(q_dma(R(9, 12))) + v_cv(1, 80, 44, 112) + own_v(112)
        p += tag_load() + with_nop(q_dma(R(12, 18))) + istamp("vst", True)
    else:
        p += [W("k0a")] + vl[1][2:] + k_cv(0, BX, 32, BX) + [W("k0b")] + istamp("k0b", True) + k_cv(1, BY, 36, BX) + own_k(BX)
        p += with_nop(q_dma(R(0, qa))) + istamp("kst", True)
        p += [W("v0a")] + sprinkle(v_cv(0, 112, 40, 112), q_dma(R(qa, qb_))) + [W("v0b")] + v_cv(1, 80, 44, 112) + ([LG("w")] if OPT["eb"] else []) + own_v(112)
        p += tag_load() + with_nop(q_dma(R(qb_, OPT["qe"]))) + istamp("vst", True)
        if OPT["eb"]: p += ["s_barrier"] + kf_reads() + [W(("q", 0))] + q_frags(0) + [LG(("qf", 0))] + qk0(0) + ["s_nop 7"] + sm_one(0, 0)
        if OPT["q3b"]: p += [W(("q", 0))] + q_frags(0) + [LG(("qf", 0))] + with_nop(q_dma(R(18, 18 + OPT["q3b"])))
    if not OPT["split"]:
        if OPT["iw"]:
            p += ["s_mov_b64 exec, 0"] + [x for w in range(3) for x in (f"s_cmp_eq_u32 s{S_WAVE}, {w}", f"s_cbranch_scc1 L_iw{w}")] + ["s_branch L_iw3", "L_iwret:", "s_mov_b64 exec, -1"]
        p += [W("tag")] + tag_check() + istamp("tag", True)
        p += ["s_waitcnt lgkmcnt(0)", "s_barrier"] + flag_post(True) + tag_get() + istamp("post", True)
    if OPT["pf2"]:
        p += [f"s_mov_b32 s{S_DBG}, s60", f"s_mov_b32 s{S_DBG+1}, s61", f"s_mov_b32 s{S_DBG+2}, L_slow-{NAME}_kernel",
              "s_lshr_b32 s24, s2, 3", f"s_mul_i32 s{S_HOFF}, s24, 43", f"s_lshr_b32 s{S_HOFF}, s{S_HOFF}, 7",
              f"s_mul_i32 s{S_RET}, s{S_HOFF}, 3", f"s_sub_u32 s24, s24, s{S_RET}", "s_lshl_b32 s24, s24, 10",
              f"s_mul_i32 s{S_HOFF}, s{S_HOFF}, 12288", f"s_add_u32 s{S_HOFF}, s{S_HOFF}, s24"]
    if not OPT["eb"]: p += kf_reads()
    ps = len(POLLSITES); POLLSITES.append(ps)
    g3n = OPT["g3n"]
    pollchk = ["s_waitcnt lgkmcnt(0)"] + smem_reduce() + [f"s_cmp_ge_u32 s{S_PT}, 16", f"s_cbranch_scc1 L_pollslow{ps}", f"L_pollok{ps}:",
          f"s_add_u32 s{S_NEED}, s{S_NEED}, 1"] + [f"s_mov_b32 s{S_FOFF}, 32"] * (OPT["l2"] == 2) + istamp("poll", True)
    sm00 = rowmax2(0, (0, 1), (V_CT, V_CT + 2)) + addneg(0, 0) + addneg(0, 1) + softmax_part(0, 0)
    qrest = R(OPT["qe"] if OPT["greedy"] == 0 else 18, 18 + g3n)
    if OPT["fs"]:
        hand = with_nop(dma_tile("k", 1, True) + dma_tile("k", 2, True) + dma_tile("k", 3, True) + dma_tile("v", 1, True)) + k_adv() + v_adv()
        def inter(mf, fill):
            out = []; fill = list(fill)
            for m in mf:
                out.append(m); cur = []
                while fill and gap_time(cur + [fill[0]]) <= 20: cur.append(fill.pop(0))
                out += cur
            return out + fill
        NPV0 = 3; rest3 = []
        p += with_nop(q_dma(R(OPT["qe"], 18)))
        if OPT["fp"]:
            NPV0 = 2; a_ = OPT["fpa"]
            if OPT["eb"]: p += [LG("tg")] + tag_use() + with_nop(q_dma(R(18, 21)))
            else: p += [W(("q", 0))] + q_frags(0) + [LG("tg")] + tag_use() + [LG(("qf", 0))] + with_nop(q_dma(R(18, 21))) + qk0(0)
            for qb in (1, 2):
                sm = [] if (qb == 1 and OPT["eb"]) else sm_one(0, qb - 1)
                p += [W(("q", qb))] + q_frags(qb) + (smem_flags() if qb == 2 else with_nop(q_dma(R(21, 24)))) + sm[:a_] + [LG(("qf", qb))] + inter(qk0(qb), sm[a_:])
            g0 = [Grp([(V_RD, (d0 + e) * 1024) for e in range(2)], [(e, ar(O(q, d0 + e), 4), vr(P(0, q), 4), "0") for q in range(2) for e in range(2)]) for d0 in range(0, 12, 2)]
            p += [";ENDCAP2"] + [rd_op(i, j, g0[i]) for i in range(2) for j in range(2)] + pollchk + hand
            p += gen_seg("S0", g0, [], [(sm_one(0, 2), 0, 23)], tasks=[("ldn", "ka", 0, 10), ("ldn", "kb", 11, 23)][:OPT["k1s"]], vmgap=2)
            sm3 = sm_one(0, 3); k3 = [i for i, x in enumerate(sm3) if x.startswith("v_sub_f32")][0]
            neg = [x for x in sm3 if x.startswith(f"v_sub_f32 v{NEGM(3)}") or (", 0, v" in x and x.startswith("v_sub"))]
            p += [W(("q", 3))] + q_frags(3) + [LG(("qf", 3))] + qk0(3) + ["s_nop 7"] + sm3[:k3] + neg
            rest3 = [x for x in sm3[k3:] if x not in neg]
        else:
            for qb in range(4):
                if qb == 3:
                    g0 = []
                    for d0 in range(0, 12, 2):
                        g0.append(Grp([(V_RD, (d0 + e) * 1024) for e in range(2)], [(e, ar(O(q, d0 + e), 4), vr(P(0, q), 4), "0") for q in range(3) for e in range(2)]))
                    p += [rd_op(i, j, g0[i]) for i in range(2) for j in range(2)] + [LG(("fr", 0), ("fr", 1))]
                    p += gen_seg("S0", g0, [], tasks=[("ldn", "ka", 0, 16), ("ldn", "kb", 17, 35)][:OPT["k1s"]], vmgap=2)
                if qb == 0 and OPT["q3b"]: p += [LG("kf")] + tag_use()
                else: p += [W(("q", qb))] + q_frags(qb) + ([LG("tg")] + tag_use() if qb == 0 else []) + (smem_flags() if qb == OPT["pq"] else []) + [LG(("qf", qb))]
                if qb < 2: p += with_nop(q_dma([x for x in R(18 + 3 * qb, 21 + 3 * qb) if x >= 18 + OPT["q3b"]]))
                p += qk0(qb) + (pollchk + hand if qb == OPT["pq"] else ["s_nop 7"]) + sm_one(0, qb)
        sp = softmax_part
        g1 = qk_tile(1, 1, [(q, q) for q in range(4)])
        gi1 = rebase(qk_full(2), V_RDK, A1 - A0)
        gi2 = [Grp([(V_RD, w * 12288 + db * 1024) for w in range(2)],
                   [x for q in range(3, NPV0 - 1, -1) for x in ((0, ar(O(q, db), 4), vr(P(0, q), 4), "0"), (1, ar(O(q, db), 4), vr(P(1, q), 4), ar(O(q, db), 4)))] +
                   [(1, ar(O(q, db), 4), vr(P(1, q), 4), ar(O(q, db), 4)) for q in range(NPV0)]) for db in range(12)]
        L2_ = len(gi2[0].mf)
        gi3 = rebase(qk_full(4), V_RDK, A2 - A1)
        gi4 = rebase(pv_seq(2), [V_RD], B1 - B0)
        p += istamp("pre-dk1", True) + [W(("dk", 1)), "s_barrier"] + [rd_op(i, j, g1[i]) for i in range(2) for j in range(2)] + [LG(("fr", 0), ("fr", 1))]
        pa = [f"v_bfe_u32 v{V_T4}, v{V_DMA}, 4, 6", f"v_lshlrev_b32 v{V_T4}, 2, v{V_T4}"] + [f"v_xor_b32 v{V_T4+j}, {16*j}, v{V_KST}" for j in (1, 2, 3)]
        p += gen_seg("S1", g1, gi1[:2], [(rest3 + (pa if OPT["pa"] else []), 0, 40)], [(31, [("dk", 3)])], [("ldn", "ka", 0, 14), ("ldn", "kb", 15, 30)][OPT["k1s"]:] +
                     ([("cv", "ka", 0, 99, OPT["fb"], 47)] if OPT["k1s"] and OPT["fb"] < 47 else []), [K_(4, 5) + (32, 46)], vmgap=2)
        p += gen_seg("S5", gi1, gi2[:2], [(sp(1, 0) + sp(1, 1) + [("dl", 54), ("nb", 47)] + sp(2, 0), 2, 95)], [(GBAR, [("dv", 1)])],
                     ([("cv", "kb", 0, 99, OPT["fa"], 95), ("ldn", "va", 20, 40)] if (OPT["k1s"] and OPT["fb"] < 47) else
                      [("cv", "ka", 0, 99, OPT["fa"], 60), ("cv", "kb", 0, 99, 61, 95), ("ldn", "va", 20, 40, "raw"), ("ldn", "va", 62, 76, "sc")]), [V_(2, 3) + (0, 18)])
        p += gen_seg("i2", gi2, gi3[:2], [(sp(2, 1) + sp(3, 0), 0, 12 * L2_ - 1)], [(10 * L2_ - 1, [("dk", 5)])],
                     [("kst", j, 2 * L2_ * j + 1) for j in range(4)] + [("ld", "vb", 6 * L2_ + 4, 12 * L2_ - 1)], [], vmgap=2)
        p += gen_seg("i3", gi3, gi4[:2], [(sp(3, 1) + [("dl", 57), ("nb", 47)] + sp(4, 0), 0, 95)], [(15, []), (GBAR, [("dv", 3)])],
                     [("post", "kst", 0), ("cv", "va", 0, 99, 0, 95)], [K_(6, 7) + V_(4, 5) + (18, 90)])
        p += [f"s_mov_b32 s{S_CNT}, {7 - OPT['lastp']}"]
        p += gen_seg("i4", gi4, seg_groups(5)[:2], [(sp(4, 1) + sp(5, 0), 0, 94)], [(GBAR, [("dk", 7)])],
                     [("ld", "ka", 0, 30), ("cv", "vb", 0, 99, 20, 94), ("step", "q", 30, 70), ("pollld", OPT["pl4"], OPT["pl4"] + 8)], [V_(6, 7) + (32, 74)],
                     endops=["s_nop 0", "s_branch L_join"])
    elif OPT["split"]:
        ps2 = len(POLLSITES); POLLSITES.append(ps2)
        pollchk2 = ["s_waitcnt lgkmcnt(0)"] + smem_reduce() + [f"s_cmp_ge_u32 s{S_PT}, 16", f"s_cbranch_scc1 L_pollslow{ps2}", f"L_pollok{ps2}:",
              f"s_add_u32 s{S_NEED}, s{S_NEED}, 1"] + istamp("pollV", True)
        p += [W(("q", 0))] + q_frags(0) + [LG("tg")] + tag_use() + [LG(("qf", 0))] + smem_flags() + qk0(0) + pollchk
        p += with_nop(dma_tile("k", 1, True)) + k_adv() + v_adv()
        p += [W("vst"), "s_barrier"] + flag_post() + istamp("postV", True)
        p += with_nop(dma_tile("k", 2, True) + dma_tile("k", 3, True))
        p += [W(("q", 1))] + q_frags(1) + with_nop(q_dma(R(12, 15))) + [LG(("qf", 1))] + qk0(1) + ["s_nop 7"]
        g0 = pv_unchained(0, True)[:6]
        p += [rd_op(i, j, g0[i]) for i in range(2) for j in range(2)] + sprinkle(sm00, q_dma(R(15, 18 + g3n))) + smem_flags() + [LG(("fr", 0), ("fr", 1))]
        p += gen_seg("S0", g0, [], tasks=[("q", R(18 + g3n, 24), 0, 22)] if g3n < 6 else [], vmgap=2) + pollchk2
        p += with_nop(dma_tile("v", 1, True))
        g3n = 6
    elif OPT["own1"] == 2:
        p += [W(("q", 0))] + q_frags(0) + [LG("tg")] + tag_use() + with_nop(q_dma(qrest[:3])) + [LG(("qf", 0))] + qk0(0)
        p += [W(("q", 1))] + q_frags(1) + smem_flags() + with_nop(q_dma(qrest[3:])) + [LG(("qf", 1))] + qk0(1) + pollchk
        g0 = pv_unchained(0, True)[:6]
        p += [rd_op(i, j, g0[i]) for i in range(2) for j in range(2)]
        p += sprinkle(sm00, dma_tile("k", 1, True) + dma_tile("k", 2, True) + dma_tile("k", 3, True) + dma_tile("v", 1, True)) + k_adv() + v_adv() + [LG(("fr", 0), ("fr", 1))]
        p += gen_seg("S0", g0, [], tasks=[("q", R(18 + g3n, 24), 0, 22)] if g3n < 6 else [], vmgap=2)
        g3n = 6
    elif OPT["own1"]:
        pre0 = [x for x in qrest[:3] if x < 18]; post0 = [x for x in qrest[:3] if x >= 18]
        p += [W(("q", 0))] + q_frags(0) + [LG("tg")] + tag_use() + with_nop(q_dma(pre0)) + [LG(("qf", 0))] + with_nop(q_dma(post0)) + qk0(0)
        if OPT["q0f"]: p += ["s_nop 7"] + sm_one(0, 0); sm00 = sm_one(0, 1)
        p += [W(("q", 1))] + q_frags(1) + with_nop(q_dma(qrest[3:6])) + [LG(("qf", 1))] + qk0(1) + ["s_nop 7"]
        g0 = pv_unchained(0, True)[:6]
        p += [rd_op(i, j, g0[i]) for i in range(2) for j in range(2)] + sprinkle(sm00, q_dma(qrest[6:])) + smem_flags() + [LG(("fr", 0), ("fr", 1))]
        p += gen_seg("S0", g0, []) + pollchk
        p += with_nop(dma_tile("k", 1, True) + dma_tile("k", 2, True) + dma_tile("k", 3, True) + dma_tile("v", 1, True)) + k_adv() + v_adv()
        if OPT["qf"]: p += with_nop(q_dma(R(18 + g3n, 24))); g3n = 6
    else:
        p += [W(("q", 0))] + q_frags(0) + [LG("tg")] + tag_use() + [W(("q", 1))] + q_frags(1) + smem_flags()
        p += [LG(("qf", 0))] + with_nop(q_dma(qrest)) + pollchk
        p += with_nop(dma_tile("k", 1, True)) + k_adv() + v_adv()
        p += sprinkle(qk0(0) + qk0(1), dma_tile("k", 2, True)) + ["s_nop 7"]
        p += sprinkle(sm00, dma_tile("k", 3, True) + dma_tile("v", 1, True))
    if not OPT["fs"]:
        sp = softmax_part
        g1 = qk_half(0, ws=(1,))
        g2 = rebase(qk_half(1), V_RDK, A1 - A0)
        g3 = pv_unchained(0, True)[6 if OPT["own1"] else 0:]
        g4 = rebase(pv_unchained(1), [V_RD], B1 - B0)
        g5 = rebase(qk_half(2, True), V_RDK, A0 - A1) + rebase(qk_half(3), V_RDK, A1 - A0)
        gi3 = rebase(qk_full(4), V_RDK, A2 - A1)
        gi4 = rebase(pv_seq(2, True), [V_RD], B0 - B1) + rebase(pv_seq(3), [V_RD], B1 - B0)
        p += istamp("pre-dk1", True) + [W(("dk", 1)), "s_barrier"] + [rd_op(i, j, g1[i]) for i in range(2) for j in range(2)]
        p += [LG(("fr", 0), ("fr", 1))]
        p += gen_seg("S1", g1, g2[:2], [], [(15, [("dk", 3)])], [], [V_(2, 3) + (0, 21)], vmgap=2)
        p += gen_seg("S2", g2, g3[:2], [(sp(0, 1), 3, 47)], [(39, [("dv", 3)])] if OPT["own1"] else [], ([("q", R(18 + g3n, 24), 0, 24)] if g3n < 6 else []) + [("ldn", "ka", 25 if g3n < 6 else 0, 47)])
        if OPT["own1"]: p += gen_seg("S3", g3, g4[:2], [(sp(1, 0), 0, 23)], [], [("ldn", "kb", 0, 23)])
        else: p += gen_seg("S3", g3, g4[:2], [(sp(1, 0), 0, 47)], [(15, [("dv", 3)])], [("ldn", "kb", 0, 22), ("ldn", "va", 23, 46, "raw")])
        p += gen_seg("S4", g4, g5[:2], [(sp(1, 1), 0, 21)], [], [("ldn", "va", 0, 30, "raw")] if OPT["own1"] else [], extra=[Stream([W(("q", 2))] + q_frags(2) + [W(("q", 3))] + q_frags(3), 16, 46)])
        p += istamp("pre-S5", True) + ["s_waitcnt lgkmcnt(0)", "s_barrier"]
        p += gen_seg("S5", g5, gi3[:2], [(rowmax2(2, (2, 3), (V_T, V_T + 2)), 27, 45), (addneg(2, 0) + addneg(2, 1) + sp(2, 0) + addneg(2, 2) + addneg(2, 3) + sp(2, 1), 46, 95)],
                     [(GBAR + 8, [("dk", 5)])], [("cv", "ka", 0, 99, 0, 34), ("cv", "kb", 0, 99, 35, 72), ("kst", 0, 73), ("kst", 1, 77), ("kst", 2, 89), ("kst", 3, 93),
                     ("ldn", "va", 36, 60, "sc")], [K_(4, 5) + (1, 24)])
        p += gen_seg("i3", gi3, gi4[:2], [(sp(3, 0) + sp(3, 1), 0, 54), (sp(4, 0), 55, 95)], [(OPT["pb"], []), (GBAR, [])],
                     [("ld", "vb", 0, 22), ("post", "kst", 0), ("cv", "va", 0, 99, 10, 95)], [K_(6, 7) + V_(4, 5) + (24, 90)])
        p += [f"s_mov_b32 s{S_CNT}, {7 - OPT['lastp']}", f"s_mul_i32 s{S_RC}, s{S_QB}, {STAGE}", f"s_mov_b32 s{S_RD}, 12288"]
        p += gen_seg("i4", gi4, seg_groups(5)[:2], [(sp(4, 1) + sp(5, 0), 0, 94)], [(47, []), (GBAR + 8, [("dk", 7)])],
                     [("ld", "ka", 0, 30), ("cv", "vb", 0, 99, 30, 94), ("step", "q", 30, 70), ("pollld", OPT["pl4"], OPT["pl4"] + 8)], [V_(6, 7) + (52, 84)],
                     endops=["s_nop 0", "s_branch L_join"])
    p += [".p2align 6"] + ["s_nop 0"] * OPT.get("pad", 0) + ["L_loop:"]
    pro_ = p
    first57, tail = gen_tail()
    bodyA = []
    for k in (1, 2, 3, 4, 5, 6, 7, 0):
        if k == 5: bodyA.append("L_join:"); jpos = len(bodyA)
        eo = [f"s_sub_u32 s{S_CNT}, s{S_CNT}, 1", f"s_cmp_lg_u32 s{S_CNT}, 0", "s_cbranch_scc1 L_loop"] if k == 0 else ()
        t, d = steady(k)
        if OPT["ab"] & 8: d = []
        if OPT["ab"] & 16: t = [x for x in t if x[0] not in ("cv", "kst", "vst", "ld")]
        if OPT["ab"] & 1024: t = [x for x in t if not (x[0] in ("cv", "ld") and x[1] in ("va", "vb")) and x[0] != "vst"]
        if OPT["ab"] & 128: t = [x for x in t if x[0] not in ("cv",)]
        if OPT["ab"] & 256: t = [x for x in t if x[0] not in ("kst", "vst")]
        if OPT["ab"] & 512: t = [x for x in t if x[0] not in ("ld",)]
        bars = None
        if OPT["nb6"]:
            dk = lambda *x: [("dk", i) for i in x]; dv = lambda *x: [("dv", i) for i in x]
            bars = {0: [], 4: [], 7: [(GBAR, dv(6, 7) + dk(2, 3))], 3: [(GBAR, dv(2, 3) + dk(6, 7))]}.get(k)
        bodyA += gen_iter(16 + k, t, d, name=f"k{k}", endops=eo, bars=bars)
    lastt = []
    if OPT["lastp"]:
        for k in (1, 2, 3, 4, 5, 6, 7, 0):
            t, d = steady(k)
            t = [x for x in t if not ((x[0] in ("ld", "cv") and x[1] == "ka") or (x[0] in ("ld", "cv") and x[1] == "kb" and k != 1) or x[:2] == ("ld", "va") or x[0] == "pf")]
            dk = lambda *x: [("dk", i) for i in x]; dv = lambda *x: [("dv", i) for i in x]
            bars = {0: [], 4: [], 7: [(GBAR, dv(6, 7) + dk(2, 3))], 3: [(GBAR, dv(2, 3) + dk(6, 7))]}.get(k) if OPT["nb6"] else None
            if k == 0 and OPT["z0"]: bars = [(15, dk(5))]; d = [V_(0, 1) + K_(6, 7) + (16, 90)]
            ex = [Stream([f"v_accvgpr_read_b32 v{O0(db)+r}, a{O(0, db)+r}" for db in range(12) for r in range(4)], 4, 95)] if (k == 7 and OPT["om0"]) else []
            OM[0] = k == 0
            lastt += gen_iter(16 + k, t, d, name=f"z{k}", bars=bars, extra=ex)
            OM[0] = False
    tail = lastt + tail
    assert OPT["qo"] or [g.rd for g in first57] == [g.rd for g in seg_groups(17)[:2]]
    tailc = tail + ["L_fin:"]
    resolve(pro_ + bodyA[jpos:] + bodyA + bodyA + tailc)
    if OPT["cap"]: pro_ = pace(pro_, OPT["cap"] / 4)
    P_ = Prog()
    P_.extend(fin(pro_))
    a0 = len(P_.ins); P_.extend(fin(bodyA)); a1 = len(P_.ins)
    P_.extend(fin(tailc))
    p = P_
    if OPT["stamp"]:
        p("s_waitcnt vmcnt(0) lgkmcnt(0)")
        p.extend(istamp("end"))
        p("s_waitcnt lgkmcnt(0)")
        p.extend(istamp("end2"))
        p(f"v_writelane_b32 v{V_STAMP}, s{S_TAG+1}, 63")
        p(f"v_writelane_b32 v{V_STAMP}, s{S_BUDGET}, 62"); p(f"v_writelane_b32 v{V_STAMP}, s{S_NEED}, 61"); p(f"v_writelane_b32 v{V_STAMP}, s101, 60"); pass
        p("s_add_u32 s8, s18, 0xfa00000"); p("s_addc_u32 s9, s19, 0"); p("s_mov_b32 s10, 1048576"); p("s_mov_b32 s11, 0x20000")
        p("s_lshl_b32 s24, s2, 2"); p(f"s_add_u32 s24, s24, s{S_WAVE}"); p("s_lshl_b32 s24, s24, 8")
        p(f"v_bfe_u32 v32, v{V_DMA}, 4, 6"); p("v_lshlrev_b32 v32, 2, v32")
        p(f"buffer_store_dword v{V_STAMP}, v32, s[8:11], s24 offen")
        if OPT["stamp"] == 8: STAMPS.sort(key=lambda n: 0)
        open(sys.argv[1] + ".stamps", "w").write("\n".join(order_stamps()))
    if OPT["calx"]:
        p("s_waitcnt vmcnt(0)")
        p("L_cal:")
        p("s_memrealtime s[40:41]")
        p("s_waitcnt lgkmcnt(0)")
        p("s_sub_u32 s40, s40, s98")
        p("s_cmp_lt_u32 s40, 10000")
        p("s_cbranch_scc1 L_cal")
    p("L_done:")
    p("s_endpgm")
    main_end0 = len(p.ins)
    for ps in POLLSITES: p.extend(poll_slow(ps))
    p.extend(tag_slow())
    main_end = len(p.ins)
    p.extend(gen_slow())
    slow_end = len(p.ins)
    ji = [i for i, x in enumerate(p.ins) if x.text == "L_join:"][0]
    lin = p.ins[:a0] + p.ins[ji:a1] + p.ins[a0:main_end0]
    sl = [i for i, x in enumerate(p.ins) if x.text == "L_slowloop:"][0]
    bi = [i for i, x in enumerate(p.ins) if x.text == "s_cbranch_scc1 L_slowloop"][0]
    probs = check_hazards(lin, "main") + check_hazards(p.ins[main_end:bi+1] + p.ins[sl:slow_end], "slow") + check_hazards(p.ins[main_end0:main_end], "aux")
    for x in probs: print(x, file=sys.stderr)
    return p

def kd(name, vgpr, sgpr, accum):
    return f""".amdhsa_kernel {name}
  .amdhsa_next_free_vgpr {vgpr}
  .amdhsa_next_free_sgpr {sgpr}
  .amdhsa_accum_offset {accum}
  .amdhsa_group_segment_fixed_size 0
  .amdhsa_kernarg_size 80
  .amdhsa_user_sgpr_count 2
  .amdhsa_user_sgpr_kernarg_segment_ptr 1
  .amdhsa_system_sgpr_workgroup_id_x 1
.end_amdhsa_kernel
"""
def build_text(body):
    o = HEADER + f"; @launch grid=(256,1,1) block=(256,1,1) lds={LDS_BYTES}\n" + '.amdgcn_target "amdgcn-amd-amdhsa--gfx950"\n.text\n'
    o += f".globl {NAME}_kernel\n.p2align 8\n.type {NAME}_kernel,@function\n" + body
    return o + '.section .rodata,"a"\n.p2align 6\n' + kd(NAME + "_kernel", 512, 102, 256)
def addresses(lines):
    import subprocess, types, ctypes
    _o = ctypes.CDLL
    class F:
        def __getattr__(s, n):
            x = types.SimpleNamespace(); object.__setattr__(s, n, x); return x
    ctypes.CDLL = lambda n, *a, **k: (F() if "amdhip" in n else _o(n, *a, **k))
    sys.path.insert(0, "cdna_kernels")
    import cdna_launch as cl
    t = []
    for i, l in enumerate(lines):
        if l.strip().startswith("v_"): t.append(f"L_adr{i}:")
        t.append(l)
    open("_a.s", "w").write(cl.with_harness_metadata(build_text("\n".join(t) + "\n"), NAME + "_kernel", 10, launch_lists=True))
    subprocess.run([cl.ROCM_CLANG, "-x", "assembler", "-target", "amdgcn-amd-amdhsa", "-mcpu=gfx950", "_a.s", "-o", "_a.co"], check=True)
    r = subprocess.run(["llvm-objdump", "-t", "_a.co"], capture_output=True, text=True).stdout
    return {int(x.split()[-1][5:]): int(x.split()[0], 16) for x in r.split("\n") if "L_adr" in x}
def add_stubs(text):
    base = text.rstrip("\n").split("\n")
    lo = base.index("L_iwret:"); hi = base.index("L_fin:"); l0 = base.index("L_loop:")
    l1 = max(i for i, l in enumerate(base) if l.strip() == "s_cbranch_scc1 L_loop")
    pos = []
    for it in range(6):
        lines = []; idx = []
        chains = [[k for k in range(len(pos)) if k % 4 == w] for w in range(4)]
        nxt = {}
        for w in range(4):
            for a, b in zip(chains[w], chains[w][1:] + [None]): nxt[a] = f"L_pg{b}" if b is not None else "L_iwret"
        for i, l in enumerate(base):
            idx.append(len(lines)); lines.append(l)
            if i in pos:
                k = pos.index(i)
                lines += ([f"L_iw{k}:"] if k < 4 else []) + [f"L_pg{k}:", f"    s_cbranch_execz {nxt[k]}"]
        if len(pos) < 4: lines += [x for w in range(len(pos), 4) for x in (f"L_iw{w}:", "    s_branch L_iwret")]
        ad = addresses(lines); inv = {j: i for i, j in enumerate(idx)}
        first = min(i for i, l in enumerate(base) if l.strip().startswith("v_mfma") and "a[0:3]" in l)
        mf = sorted((a, inv[j]) for j, a in ad.items() if lo < inv[j] < hi and (inv[j] < first or base[inv[j]].strip().startswith("v_mfma")))
        new = [min(i for a, i in mf if i > base.index("L_join:"))]
        pg = mf[0][0] >> 12
        for a, i in mf:
            if (a + 8) >> 12 > pg:
                pg = (a + 8) >> 12
                if OPT["iw"] == 2 or not (l0 < i < l1): new.append(i)
        new = sorted(set(new))
        if new == pos: break
        pos = new
    print("page stubs:", len(pos), file=sys.stderr)
    return "\n".join(lines) + "\n"
out = HEADER
out += f"; @launch grid=(256,1,1) block=(256,1,1) lds={LDS_BYTES}\n"
out += '.amdgcn_target "amdgcn-amd-amdhsa--gfx950"\n.text\n'
body_ = gen_main().text()
if OPT["iw"]: body_ = add_stubs(body_)
out += f".globl {NAME}_kernel\n.p2align 8\n.type {NAME}_kernel,@function\n" + body_
out += '.section .rodata,"a"\n.p2align 6\n' + kd(NAME + "_kernel", 512, 102, 256)
open(sys.argv[1], "w").write(out)
```

```python
import sys, math
from asmlib import *

NAME = "standalone__kv_cache_quant_int4_int2_kv_with_per_channel_or_per_token_scales__prompt"
OPT = dict(stamp=0, vmgap=4, sb=6, sa=6, ahead=8, thr=64, pf2=0, calx="", qa=6, plv=2, plk=10, ckv=1, ckk=1, tden=24, touch=0, w0poll=0, cap=48, qb=6, q3e=1, ksc=0, few=1, qc=15, pb=39, pl4=40, l2=3, k1e=0, greedy=0, g3n=3, pre=0, own1=1, ab=0, pk=0, split=0, prent=1, bal=1, flex=1, w2=0, dense="S61,S5,S2,S3,S4", dx=4, dvg=2, f3=1, pvs=1, qo=0, po=0, x2c=12, sst=1, q0f=1, nb6=1, tv=1, omv=0, ldc=8, rs=0, scnt=0, iw=2, pfnt=0, v64=1, lastp=1, lmf=1, fs=1, pq=2, fa=20, k1s=0, fb=99, pa=1, twop=0, llag=24, w5=40, z0=1, q3b=0, fp=1, fpa=14, eb=0, bm=1, snk=3, t2=0, cap2=20, cap3=0, m2=85, m3=0, om0=0, lva=70, qe=15, qf=0, ed=200, ed1=250, cut="22,46,6,42,10,30,10")
for a in sys.argv[2:]:
    k, v = a.split("="); OPT[k] = int(v) if v.lstrip("-").isdigit() else v
NS = 6
STAGE = 24576
HEADBYTES = 64 * STAGE
RING = NS * STAGE
LDS_BYTES = RING + 128
A0, B0, A1, B1, A2, B2 = [i * STAGE for i in range(6)]
CSCALE = (192.0 ** -0.5) * math.log2(math.e)
HEADER = open("cdna_kernels/" + NAME + ".s.ref").read().split("; Override launch geometry")[0]
MF = "v_mfma_f32_16x16x32_bf16"
V64 = OPT["v64"]; NVE = 3 if V64 else 4
NCH = 2 if V64 else 3
def chunk_dbs(n): return list(range(6 * n, 6 * n + 6)) if V64 else [3 * e + n for e in range(4)]

V_FVAL = 0; V_RD = 1; V_RDK = [2, 3]; V_DMA = 4; V_L = [5, 6, 7, 8]
V_KLD = 9; V_KSC = 10; V_KST = 11; V_VLD = 12; V_FLAG = 13; V_RD2 = 59; V_RD3 = 60
V_T = 16; NTP = 2
V_VST = 15; V_STAMP = 14; V_T4 = 20
V_FR = 24; NFS = 6
V_CT = 48; V_VO = 52; V_RS = [56, 60]; BX = 224; BY = 240; BZ = 144
V_POLL = V_VO; V_KA = V_VO + 2
UNIT = [64, 80, 160, 176]; HI = [96, 112]
VQD = 136; VQR = [22, 23, 142, 143]
def Sq(t, sl, tb): return (UNIT[t % 4] if tb == 0 else HI[t % 2]) + 4 * sl
def P(t, sl): return UNIT[t % 4] + 4 * sl
def NEGM(qb): return 128 + 4 * qb
def O(qb, db): return (qb * 12 + db) * 4
def Qf(qb, s, half=None):
    i = qb * 6 + s
    base, f = (192 + 4 * i, ar) if i < 16 else (192 + 4 * (i - 16), vr)
    return f(base, 4) if half is None else f(base + 2 * half, 2)
def FR(f): return vr(V_FR + 4 * (f % NFS), 4)

S_RDELTA = 3; S_WS = 4; S_Q = 8; S_OUT = 12; S_FLG = 20
S_WAVE = 25; S_DMK = 26; S_GOFF = 27; S_RK = 28; S_TMP = 29; S_RV = 30; S_CNT = 31; S_GOFFK = 32
S_PK0 = 33; S_PK1 = 34; S_PV0 = 35; S_PKS = 36; S_PVS = 37; S_CS = 38; S_RET = 39; S_PV1 = 16; S_PV2 = 17
S_QL = 40; S_QS = 41; S_TAG = 42; S_FOFF = 44; S_XCC = 45; S_OWN = 46; S_RC = 46; S_RD = 47
S_PT = 48; S_DMV = 56; S_TK = 57; S_TV = 58; S_TP = 59
S_QK = 64; S_QV = 68; S_KS = 72; S_KZ = 76; S_VS = 80; S_VZ = 84; S_DBG = 88
S_NEED = 92; S_HOFF = 93; S_HEAD = 94; S_QB = 95; S_BUDGET = 96; S_MASK = 97
WSOFF = OPT.get("wsoff", 0) << 20
FLAG_OFF = WSOFF + (49 << 20)
SC1 = {0: " sc1", 1: "", 2: " nt", 3: " sc0", 4: " sc1 nt", 5: " sc0 sc1"}[OPT.get("dmaf", 0)]; NTKV = " nt"; NTQ = " nt"; STF = " sc1" if not OPT.get("stp") else ""; OF = {0: " sc0 sc1", 1: " sc1", 2: " sc1 nt", 3: " sc0 sc1 nt"}[OPT.get("of", 0)]

STAMPS = []
def istamp(name, force=False):
    if OPT["calx"] == name: return ["s_memrealtime s[98:99]"]
    if OPT["stamp"] not in (6, 8, 9): return []
    if OPT["stamp"] == 8 and name.startswith(("k", "z")) and not force: return []
    if OPT["few"] and force and name not in ("karg", "k0b", "vst", "tag", "post", "poll", "postV", "pollV", "pre-dk1"): return []
    if OPT["stamp"] != 8 and force: return []
    STAMPS.append(name)
    return ["s_waitcnt lgkmcnt(0)"] * (1 if force else 0) + [f"v_mov_b32_dpp v{V_STAMP}, v{V_STAMP} wave_shr:1 row_mask:0xf bank_mask:0xf", f"v_writelane_b32 v{V_STAMP}, s98, 0",
            ("s_memtime" if OPT["stamp"] == 6 else "s_memrealtime") + " s[98:99]"]

def order_stamps():
    l = list(STAMPS); out = []
    if "S62" in l:
        l.remove("S61"); l.insert(l.index("S62"), "S61")
        l.remove("S59"); l.insert(l.index("S60"), "S59")
    for n in l:
        if "." in n: continue
        out.append(n); out += [m for m in l if m.startswith(n + ".")]
    return out
class W:
    def __init__(self, *tags): self.tags = tags
class VM:
    def __init__(self, tag, text): self.tag = tag; self.text = text
class LG:
    def __init__(self, *tags): self.tags = tags
class DS:
    def __init__(self, tag, text): self.tag = tag; self.text = text

def mode_of(t):
    if OPT["fs"] and t < 4: return "f"
    return {0: "a", 1: "a", 2: "b", 3: "b", 58: "a", 59: "a", 60: "a", 61: "b", 62: "b", 63: "b"}.get(t, "f")
def slot_q(t, sl):
    m = mode_of(t)
    return sl if m == "f" else (sl & 1) + (0 if m == "a" else 2)
ONES = 20
def softmax_part(t, half, lm=False):
    if lm:
        l = [x for x in softmax_part(t, half) if not x.startswith("v_add")]
        out = []
        for x in l:
            out.append(x)
        k = [i for i, x in enumerate(out) if x.startswith("v_cvt_pk")][3]
        mm = lambda sl: f"{MF} v[{RL[slot_q(t, sl)]}:{RL[slot_q(t, sl)]+3}], v[{P(t, sl)}:{P(t, sl)+3}], v[{ONES}:{ONES+3}], " + ("0" if (t, half) == (61, 1 - OPT["t2"]) else f"v[{RL[slot_q(t, sl)]}:{RL[slot_q(t, sl)]+3}]")
        return out[:k + 3] + [mm(2 * half)] + out[k + 3:] + ["s_nop 1", mm(2 * half + 1)]
    flat = []; prev = None
    for gp in range(8):
        sl = 2 * half + gp // 4; pi = gp % 4; l = V_L[slot_q(t, sl)]
        t0 = V_T + 2 * (gp % NTP); t1 = t0 + 1
        src = Sq(t, sl, pi >> 1) + 2 * (pi & 1)
        E = [f"v_exp_f32 v{t0}, v{src}", f"v_exp_f32 v{t1}, v{src+1}"]
        A = [f"v_add_f32 v{l}, v{l}, v{t0}", f"v_add_f32 v{l}, v{l}, v{t1}"]
        C = [f"v_cvt_pk_bf16_f32 v{P(t,sl)+pi}, v{t0}, v{t1}"]
        if 16 <= t < 26:
            if OPT["ab"] & 1: A = []
            if OPT["ab"] & 2: E = [x.replace("v_exp_f32", "v_mov_b32") for x in E]
            if OPT["ab"] & 32: C = []
            if OPT["ab"] & 64: E = []; A = []; C = []
        flat += E if prev is None else E[:1] + prev[0] + E[1:] + prev[1]
        prev = (A, C)
    return flat + prev[0] + prev[1]

class Grp:
    def __init__(self, rd, mf): self.rd = rd; self.mf = mf; self.reb = []
def qk_tile(t, w, slots, czero=False):
    gs = []
    if OPT["qo"] == 1 and len(slots) == 4:
        for s_ in range(6):
            rd = [(V_RDK[s_ & 1], w * 12288 + tb * 6144 + (s_ >> 1) * 128) for tb in range(2)]
            mf = []
            for sl, qb in slots:
                for tb in range(2):
                    d = vr(Sq(t, sl, tb), 4)
                    mf.append((tb, d, Qf(qb, s_), (("0" if czero else vr(NEGM(qb), 4)) if s_ == 0 else d)))
            gs.append(Grp(rd, mf))
        return gs
    for gi in range(6):
        s0 = 2 * (gi >> 1); tb = gi & 1
        rd = [(V_RDK[j], w * 12288 + tb * 6144 + (s0 >> 1) * 128) for j in range(2)]
        mf = []
        for sl, qb in slots:
            d = vr(Sq(t, sl, tb), 4)
            x = qb & 1 if OPT.get("snk", 0) & 2 else 0
            mf += [(x, d, Qf(qb, s0 + x), (("0" if czero else vr(NEGM(qb), 4)) if s0 == 0 else d)), (1 - x, d, Qf(qb, s0 + 1 - x), d)]
        gs.append(Grp(rd, mf))
    return gs
def qk_full(t): return [g for w in range(2) for g in qk_tile(t + w, w, [(q, q) for q in range(4)])]
def qk_half(t, czero=False, ws=(0, 1)):
    return [g for w in ws for g in qk_tile(t, w, [(2 * w + j, slot_q(t, j)) for j in range(2)], czero)]
def OV(qb, db): return (BY if qb == 2 else BZ) + 4 * (db // 3)
OM = [False]
def O0(db): return (BX + 4 * db) if db < 8 else (BZ + 4 * (db - 8))
def pv_grp(t, db, first=False, va=V_RD):
    m = mode_of(t); mf = []
    for qb in (range(4) if m == "f" else [slot_q(t, 0), slot_q(t, 1)]):
        d = ar(O(qb, db), 4)
        if OPT["omv"] and t >= 61 and db % 3 == 2: d = " " + vr(OV(qb, db), 4)
        if OPT["om0"] and qb == 0 and (t >= 56 or OM[0]): d = " " + vr(O0(db), 4)
        for w0 in range(2):
            w = w0 ^ (qb & 1 if OPT.get("snk", 0) & 1 else 0)
            b = P(t + w, qb) if m == "f" else P(t, 2 * w + (qb & 1))
            mf.append((w, d, vr(b, 4), "0" if (first and w0 == 0) else d))
    return Grp([(va, w * 12288 + db * 1024) for w in range(2)], mf)
def pv_seq(t, first=False):
    if OPT["po"] == 1 and mode_of(t) == "f":
        gs = []
        for d0 in range(0, 12, 2):
            for w in range(2):
                mf = [(e, ar(O(qb, d0 + e), 4), vr(P(t + w, qb), 4), ar(O(qb, d0 + e), 4)) for qb in range(4) for e in range(2)]
                gs.append(Grp([(V_RD, w * 12288 + (d0 + e) * 1024) for e in range(2)], mf))
        return gs
    if OPT["po"] == 2 and mode_of(t) == "f":
        gs = []
        for db in range(12):
            mf = [(w, ar(O(qb, db), 4), vr(P(t + w, qb), 4), ar(O(qb, db), 4)) for w in range(2) for qb in range(4)]
            gs.append(Grp([(V_RD, w * 12288 + db * 1024) for w in range(2)], mf))
        return gs
    return [pv_grp(t, db, first) for db in range(12)]
def pv_unchained(t, first=False):
    gs = []
    for w in range(2):
        for d0 in range(0, 12, 2):
            mf = []
            for j in range(2):
                qb = slot_q(t, j)
                for e in range(2):
                    d = ar(O(qb, d0 + e), 4)
                    mf.append((e, d, vr(P(t, 2 * w + j), 4), "0" if (first and w == 0) else d))
            gs.append(Grp([(V_RD, w * 12288 + (d0 + e) * 1024) for e in range(2)], mf))
    return gs
def rebase(gs, regs, delta):
    op = "v_add_u32" if delta >= 0 else "v_subrev_u32"
    gs[0].reb += [f"{op} v{r}, {abs(delta)}, v{r}" for r in regs]
    return gs
def rd_op(gi, j, g):
    f = 2 * gi + j
    return DS(("fr", f % NFS), f"ds_read_b128 {FR(f)}, v{g.rd[j][0]} offset:{g.rd[j][1]}")

def dma_tile(part, pos, peel=False):
    dm, go, tmp = (S_DMK, S_GOFFK, S_TK) if part == "k" else (S_DMV, S_GOFF, S_TV)
    l = [f"s_mov_b32 m0, s{dm}"]
    for j in range(3):
        l.append(VM(("d" + part, pos % 8), f"buffer_load_dwordx4 v{V_DMA}, s[{S_WS}:{S_WS+3}], s{go} offen offset:{j*1024}{SC1} lds"))
    if peel and pos < 7:
        l += [f"s_add_u32 s{go}, s{go}, {STAGE}", f"s_sub_u32 s{tmp}, s{go}, {8*STAGE}", f"s_min_u32 s{go}, s{go}, s{tmp}"]
    elif peel and pos == 7:
        l += [f"s_mov_b32 s{go}, {8*STAGE + (0 if part == 'k' else 12288)}"]
    else:
        l += [f"s_add_u32 s{go}, s{go}, {STAGE}"]
    if pos % 2 == 0: l += [f"s_add_u32 s{dm}, s{dm}, 12288"]
    else: l += [f"s_add_u32 s{dm}, s{dm}, {2*STAGE - 12288}", f"s_sub_u32 s{tmp}, s{dm}, {RING}", f"s_min_u32 s{dm}, s{dm}, s{tmp}"]
    return l
QOFF = [STAGE, 0, 2 * STAGE, STAGE]
def q_dma(lst):
    l = []
    if not lst: return l
    for i in lst:
        a, b = divmod(i, 6)
        l += [f"s_mov_b32 s{S_QS}, {a*6144}"] * (1 if (b == 0 or i == lst[0]) else 0)
        l += [f"s_add_u32 m0, s{S_QL}, {QOFF[a] + b*1024}",
              VM(("q", a), f"buffer_load_dwordx4 v{VQD+b}, s[{S_Q}:{S_Q+3}], s{S_QS} offen{NTQ} lds")]
    return l
def q_frags(qb):
    l = []
    for s in range(6):
        for h in range(2):
            sp = s + 6 * h
            l.append(DS(("qf", qb), f"ds_read_b64 {Qf(qb,s,h)}, v{VQR[sp&3]} offset:{QOFF[qb] + (sp>>2)*128}"))
    return l
def with_nop(l):
    out = []
    for i, x in enumerate(l):
        out.append(x)
        if isinstance(x, str) and " m0," in x and i + 1 < len(l) and isinstance(l[i + 1], VM): out.append("s_nop 0")
    return out
def rd_step(kind):
    cur, regs = (S_RK, V_RDK) if kind == "q" else (S_RV, [V_RD])
    return [f"s_add_u32 s{S_TMP}, s{cur}, {2*STAGE}", f"s_sub_u32 s{S_RDELTA}, s{S_TMP}, {RING}",
            f"s_min_u32 s{S_TMP}, s{S_TMP}, s{S_RDELTA}", f"s_sub_u32 s{S_RDELTA}, s{S_TMP}, s{cur}", f"s_mov_b32 s{cur}, s{S_TMP}"] + \
           [f"v_add_u32 v{r}, s{S_RDELTA}, v{r}" for r in regs]

def k_ld(h, buf, rs, tag, scal_first=True):
    sc = [VM(tag, f"buffer_load_dwordx2 v[{rs+2*i}:{rs+2*i+1}], v{V_KSC}, s[{srd_}:{srd_+3}], s{S_PKS} offen offset:{192*h}" + (" nt" if OPT["scnt"] else ""))
          for i, srd_ in enumerate((S_KS, S_KZ))]
    l = []
    for j in range(4):
        so = S_PK0 if j < 2 else S_PK1
        l.append(VM(tag, f"buffer_load_dwordx4 v[{buf+4*j}:{buf+4*j+3}], v{V_KLD}, s[{S_QK}:{S_QK+3}], s{so} offen offset:{(j&1)*1536+384*h}{NTKV}"))
    return sc + l if scal_first else l + sc
def v_ld(h, buf, rs, tag, scal_first=True):
    sc = [VM(tag, f"buffer_load_dwordx2 v[{rs+2*i}:{rs+2*i+1}], off, s[{srd_}:{srd_+3}], s{S_PVS} offset:{8*h}" + (" nt" if OPT["scnt"] else ""))
          for i, srd_ in enumerate((S_VS, S_VZ))]
    l = []
    for r in range(4):
        so = S_PV0 if h == 0 else S_PV1
        l.append(VM(tag, f"buffer_load_dwordx{NVE} v[{buf+4*r}:{buf+4*r+NVE-1}], v{V_VLD}, s[{S_QV}:{S_QV+3}], s{so} offen offset:{r*768}{NTKV}"))
    return sc + l if scal_first else l + sc
def k_cv(h, buf, rs, out):
    l = []
    s0, s1, z0, z1 = V_CT, V_CT + 1, V_CT + 2, V_CT + 3
    for i in range(2):
        l += [f"v_lshlrev_b32 v{s0}, 16, v{rs+i}", f"v_and_b32 v{s1}, s{S_MASK}, v{rs+i}",
              f"v_lshlrev_b32 v{z0}, 16, v{rs+2+i}", f"v_and_b32 v{z1}, s{S_MASK}, v{rs+2+i}",
              f"v_mul_f32 v{s0}, s{S_CS}, v{s0}", f"v_mul_f32 v{s1}, s{S_CS}, v{s1}",
              f"v_mul_f32_e64 v{z0}, -v{z0}, v{s0}", f"v_mul_f32_e64 v{z1}, -v{z1}, v{s1}"]
        if OPT.get("nz", 0) & 1: l[-2:] = [f"v_mov_b32 v{z0}, 0", f"v_mov_b32 v{z1}, 0"]
        for j in range(4):
            a = buf + 4 * j + 2 * i; b = a + 1
            l += [f"v_cvt_f32_i32 v{a}, v{a}", f"v_cvt_f32_i32 v{b}, v{b}",
                  f"v_fma_f32 v{a}, v{a}, v{s0}, v{z0}", f"v_fma_f32 v{b}, v{b}, v{s1}, v{z1}",
                  f"v_cvt_pk_bf16_f32 v{out+4*j+2*h+i}, v{a}, v{b}"]
    return l
def k_st(j, out, tag="kst", STF=STF, pre=False):
    va = V_KST; g = []
    if j and pre: va = V_T4 + j
    elif j:
        va = V_KA + (j & 1); g.append(f"v_xor_b32 v{va}, {16*j}, v{V_KST}")
    g.append(VM(tag, f"buffer_store_dwordx4 v[{out+4*j}:{out+4*j+3}], v{va}, s[{S_WS}:{S_WS+3}], s{S_PK0} offen offset:{j*768}{STF}"))
    return g
def v_cv(h, buf, rs, out):
    l = []
    s0, s1, z0, z1 = V_CT, V_CT + 1, V_CT + 2, V_CT + 3
    for i in range(2):
        l += [f"v_lshlrev_b32 v{s0}, 16, v{rs+i}", f"v_and_b32 v{s1}, s{S_MASK}, v{rs+i}",
              f"v_lshlrev_b32 v{z0}, 16, v{rs+2+i}", f"v_and_b32 v{z1}, s{S_MASK}, v{rs+2+i}",
              f"v_mul_f32_e64 v{z0}, -v{z0}, v{s0}", f"v_mul_f32_e64 v{z1}, -v{z1}, v{s1}"]
        if OPT.get("nz", 0) & 2: l[-2:] = [f"v_mov_b32 v{z0}, 0", f"v_mov_b32 v{z1}, 0"]
        for e in range(NVE):
            a = buf + 4 * (2 * i) + e; b = buf + 4 * (2 * i + 1) + e
            l += [f"v_cvt_f32_i32 v{a}, v{a}", f"v_cvt_f32_i32 v{b}, v{b}",
                  f"v_fma_f32 v{a}, v{a}, v{s0}, v{z0}", f"v_fma_f32 v{b}, v{b}, v{s1}, v{z1}"]
    for e, i in [(0, 0), (1, 0), (0, 1), (1, 1), (2, 0), (2, 1), (3, 0), (3, 1)][:2 * NVE]:
        l.append(f"v_cvt_pk_bf16_f32 v{out+4*e+2*h+i}, v{buf+8*i+e}, v{buf+8*i+4+e}")
    return l
def v_st(e, out, tag="vst", STF=STF):
    so = S_PV0 if (e < 2 or V64) else S_PV2
    return [VM(tag, f"buffer_store_dwordx4 v[{out+4*e}:{out+4*e+3}], v{V_VST}, s[{S_WS}:{S_WS+3}], s{so} offen offset:{e*1024 if V64 else (e&1)*3072}{STF}")]
def k_adv():
    return [f"s_add_u32 s{S_PK0}, s{S_PK0}, {8*STAGE}", f"s_add_u32 s{S_PK1}, s{S_PK1}, {8*STAGE}", f"s_add_u32 s{S_PKS}, s{S_PKS}, {4*384}"]
def v_adv():
    return [f"s_add_u32 s{r}, s{r}, {8*STAGE}" for r in (S_PV0, S_PV1, S_PV2)] + [f"s_add_u32 s{S_PVS}, s{S_PVS}, {8*64}"]
HT = {"ka": (k_ld, k_cv, 0, BX, V_RS[0], BX), "kb": (k_ld, k_cv, 1, BY, V_RS[1], BX),
      "va": (v_ld, v_cv, 0, BZ, V_RS[0], BZ), "vb": (v_ld, v_cv, 1, BY, V_RS[1], BZ),
      "wa": (v_ld, v_cv, 0, BX, V_RS[0], BX), "wb": (v_ld, v_cv, 1, BY, V_RS[1], BX)}
def flag_post(first=False):
    return [f"v_add_u32 v{V_FVAL}, 1, v{V_FVAL}"] + [
            VM("flag", f"buffer_store_dword v{V_FVAL}, v{V_FLAG}, s[{S_FLG}:{S_FLG+3}], 0 offen")] * (OPT["l2"] == 1 or (OPT["l2"] == 2 and first)) + [
            VM("flag", f"buffer_store_dword v{V_FVAL}, v{V_FLAG}, s[{S_FLG}:{S_FLG+3}], 0 offen offset:32 sc1")]
def poll_addr():
    return [f"v_bfe_u32 v{V_POLL+1}, v{V_DMA}, 4, 6", f"v_lshlrev_b32 v{V_POLL+1}, 2, v{V_POLL+1}"]
def poll_load():
    if OPT["pa"]: return [VM("poll", f"buffer_load_dword v{V_POLL}, v{V_T4}, s[{S_FLG}:{S_FLG+3}], s{S_FOFF} offen sc1")]
    return poll_addr() + [VM("poll", f"buffer_load_dword v{V_POLL}, v{V_POLL+1}, s[{S_FLG}:{S_FLG+3}], s{S_FOFF} offen sc1")]
def poll_test():
    return [f"v_subrev_u32 v{V_POLL}, s{S_NEED}, v{V_POLL}", f"v_cmp_lt_u32 vcc, 15, v{V_POLL}", "s_nop 0", f"s_and_b32 s{S_TP}, vcc_lo, 0xff"]
def smem_flags():
    return [f"s_buffer_load_dwordx8 s[{S_PT}:{S_PT+7}], s[{S_FLG}:{S_FLG+3}], s{S_FOFF} glc"]
def smem_reduce():
    return [f"s_sub_u32 s{S_PT+i}, s{S_PT+i}, s{S_NEED}" for i in range(8)] + [f"s_max_u32 s{S_PT}, s{S_PT}, s{S_PT+i}" for i in range(1, 8)]
def smem_test():
    return smem_flags() + ["s_waitcnt lgkmcnt(0)"] + smem_reduce() + [f"s_cmp_lt_u32 s{S_PT}, 16"]
def diag(site):
    if not OPT.get("diag"): return []
    return [f"s_lshl_b32 s{S_TP}, s2, 8", f"s_add_u32 s{S_TP}, s{S_TP}, {site << 4}", f"s_add_u32 s{S_TP}, s{S_TP}, s{S_WAVE}", f"s_lshl_b32 s{S_BUDGET}, s{S_NEED}, 16", f"s_add_u32 s{S_TP}, s{S_TP}, s{S_BUDGET}",
            f"v_mov_b32 v{V_POLL+1}, s{S_TP}", f"buffer_store_dword v{V_POLL+1}, off, s[{S_DBG}:{S_DBG+3}], 0 offset:{4 + 8 * site} sc1",
            f"buffer_store_dword v{V_POLL}, v{V_T4}, s[{S_DBG}:{S_DBG+3}], 0 offen offset:192 sc1"]
def poll_slow(site):
    l = [f"L_pollslow{site}:"] + ([f"s_add_u32 s{S_TAG+1}, s{S_TAG+1}, {1 << (6 * site)}"] if OPT["stamp"] else [])
    l += [f"s_mov_b32 s{S_TP}, {60 if site == 0 else 200}", f"L_pollsm{site}:"] + smem_test() + [f"s_cbranch_scc1 L_pollok{site}",
          f"s_sub_u32 s{S_TP}, s{S_TP}, 1", f"s_cbranch_scc1 L_pollvec{site}", "s_sleep 1", f"s_branch L_pollsm{site}"]
    l += [f"L_pollvec{site}:"] + poll_addr() + [
            f"s_sub_u32 s{S_BUDGET}, s{S_BUDGET}, 1",
            f"s_cbranch_scc1 L_pollgiveup{site}",
            "s_sleep 2",
            f"buffer_load_dword v{V_POLL}, v{V_POLL+1}, s[{S_FLG}:{S_FLG+3}], s{S_FOFF} offen sc1",
            "s_waitcnt vmcnt(0)"]
    if site == 0 and OPT["l2"]:
        l += [f"s_bitcmp1_b32 s{S_NEED}, 9", "s_cbranch_scc1 L_nomix",
              f"v_xor_b32 v{V_POLL+1}, s{S_NEED}, v{V_POLL}", f"v_lshrrev_b32 v{V_POLL+1}, 5, v{V_POLL+1}", f"v_add_u32 v{V_POLL+1}, -1, v{V_POLL+1}",
              f"v_cmp_gt_u32 vcc, 31, v{V_POLL+1}", "s_nop 1", f"s_and_b32 s{S_TP}, vcc_lo, {'0xff' if OPT['l2'] == 3 else '0xff00'}", "s_cbranch_scc0 L_nomix"]
        l += fin([x for j in range(4) for x in k_st(j, BX)] + [x for e in range(NVE) for x in v_st(e, 112)])
        l += ["s_waitcnt vmcnt(0)", "s_barrier", f"s_and_b32 s{S_NEED}, s{S_NEED}, 0xfffffc00", f"s_add_u32 s{S_NEED}, s{S_NEED}, {16 << 5}",
              f"v_mov_b32 v{V_FVAL}, s{S_NEED}", f"s_add_u32 s{S_NEED}, s{S_NEED}, 1", f"s_mov_b32 s{S_FOFF}, 32"] + fin(flag_post()) + ["s_branch L_pollvec0", "L_nomix:"]
    l += poll_test() + [
            f"s_cbranch_scc1 L_pollvec{site}",
            f"s_branch L_pollok{site}",
            f"L_pollgiveup{site}:"] + diag(site) + [
            f"s_mov_b32 s{S_BUDGET}, 0",
            f"s_branch L_pollok{site}"]
    return l
def tag_load():
    return [VM("tag", f"buffer_load_dword v{V_FVAL}, off, s[{S_DBG}:{S_DBG+3}], s{S_HOFF} sc1")]
def tag_check():
    return [f"s_cmp_lg_u32 s{S_WAVE}, 0", "s_cbranch_scc1 L_tagdone",
            f"v_readfirstlane_b32 s{S_TAG}, v{V_FVAL}", f"s_mov_b32 s{S_RET}, 100",
            "s_waitcnt lgkmcnt(0)"] + ([f"s_mov_b32 s101, s{S_OWN}"] if OPT["stamp"] else []) + [f"s_and_b32 s{S_OWN}, s{S_OWN}, 0xfffffc00",
            "L_tagretry:", f"s_cmp_eq_u32 s{S_TAG}, s{S_OWN}", f"s_cselect_b32 s{S_TAG}, 0, s{S_TAG}", f"s_cmp_lg_u32 s{S_TAG}, 0", "s_cbranch_scc1 L_tagok",
            f"s_sub_u32 s{S_RET}, s{S_RET}, 1", "s_cbranch_scc1 L_tagslow", "s_sleep 4",
            f"s_buffer_load_dword s{S_TAG}, s[{S_DBG}:{S_DBG+3}], s{S_HOFF} glc", "s_waitcnt lgkmcnt(0)", "s_branch L_tagretry",
            "L_tagok:", f"s_add_u32 s{S_TAG}, s{S_TAG}, s{S_XCC}", f"v_mov_b32 v{V_FVAL}, s{S_TAG}", f"v_mov_b32 v{V_T}, {RING}", DS("w", f"ds_write_b32 v{V_T}, v{V_FVAL}"), "L_tagdone:"]
def tag_get():
    return [f"v_mov_b32 v{V_T}, {RING}", DS("tg", f"ds_read_b32 v{V_T+1}, v{V_T}")]
def tag_use():
    return [f"v_readfirstlane_b32 s{S_NEED}, v{V_T+1}", f"s_add_u32 s{S_NEED}, s{S_NEED}, 1"]
def tag_slow():
    return ["L_tagslow:",
            f"s_sub_u32 s{S_BUDGET}, s{S_BUDGET}, 1",
            "s_cbranch_scc1 L_taggiveup",
            "s_sleep 2",
            f"buffer_load_dword v{V_FVAL}, off, s[{S_DBG}:{S_DBG+3}], s{S_HOFF} sc1",
            "s_waitcnt vmcnt(0)",
            f"v_readfirstlane_b32 s{S_TAG}, v{V_FVAL}", "s_nop 0", f"s_cmp_eq_u32 s{S_TAG}, s{S_OWN}", "s_cbranch_scc1 L_tagslow",
            f"s_cmp_eq_u32 s{S_TAG}, 0", "s_cbranch_scc1 L_tagslow",
            "s_branch L_tagok",
            "L_taggiveup:"] + diag(15) + [
            f"s_mov_b32 s{S_BUDGET}, 0",
            "s_branch L_tagok"]

def text_of(x):
    return "s_waitcnt" if isinstance(x, (W, LG)) else (x.text if isinstance(x, (VM, DS)) else x)
def kind_of(x):
    t = text_of(x)
    if t.endswith(":"): return "label"
    if t.startswith("v_"): return "valu"
    if t.startswith("ds_"): return "ds"
    if t.startswith("buffer_store"): return "store"
    if t.startswith("buffer_"): return "load"
    return "salu"
def cost_of(x):
    k = kind_of(x); t = text_of(x)
    if k == "label": return 0
    if k == "store": return 20 if "x4" in t else (OPT["x2c"] if "x2" in t else 16 if "x3" in t else 8)
    if k == "load": return OPT["ldc"]
    if t.startswith("ds_write"): return 16 if ("b128" in t or "write2" in t) else 8
    if t.startswith(("v_exp", "v_rcp")): return 8
    if t.startswith("v_mfma"): return 32 if "x4_f32" in t else 8
    if t.startswith("s_nop"): return 4 * (int(t.split()[1]) + 1)
    if t.startswith("s_cbranch") or t.startswith("s_branch"): return 12
    if t.startswith("s_barrier"): return 8
    return 4
def gap_time(ops):
    t = 4; prev = None
    for o in ops:
        if o is None: continue
        k = kind_of(o)
        if k == "label": continue
        if k == "salu": t += cost_of(o)
        else: t = max(t, 8) + cost_of(o) + (8 if (k != "valu" and prev == "valu") else 0)
        prev = k
    return t

class Stream:
    def __init__(self, ops, first, last, maxper=99, dense=0):
        self.nb = {}; self.dl = []; l = []
        for o in ops:
            if isinstance(o, tuple):
                if o[0] == "nb": self.nb[len(l)] = o[1]
                else: self.dl.append((len(l), o[1]))
            else: l.append(o)
        ops = l
        self.ops = list(ops); self.first = first; self.last = last; self.maxper = maxper; self.dense = dense
        self.total = sum(cost_of(o) for o in self.ops); self.done = 0; self.i = 0
        self.gate = {}; self.i0 = 0

def pack(NG, A, B, C, T, streams, novm=(), nosalu=(), vmgap=4, light=(), noval=()):
    out = []; over = 0; lastvm = -99
    for g in range(NG):
        a, b, c, tl = list(A[g]), list(B[g]), list(C[g]), list(T[g])
        cnt = {}; inC = set(); blocked = set()
        while True:
            best = None; bl = None; bsec = None
            for st in streams:
                if st.i >= len(st.ops) or g < st.first: continue
                if g < st.nb.get(st.i, 0): continue
                force = g >= st.last or any(st.i < n and g >= dg for n, dg in st.dl)
                if (cnt.get(id(st), 0) >= st.maxper or id(st) in blocked) and not force: continue
                o = st.ops[st.i]; k = kind_of(o); cst = cost_of(o)
                if k == "salu" and g in nosalu:
                    assert not force, (g, text_of(o))
                    continue
                if k in ("load", "store") and (g in novm or g - lastvm < vmgap) and not force: continue
                if k in ("load", "store", "ds"):
                    sec = "b" if id(st) not in inC and id(st) not in blocked else "c"
                    if sec == "c" and not force: continue
                elif k == "salu" and not a and cnt.get(id(st), 0) == 0:
                    sec = "a"
                else: sec = "c"
                tgt = st.total * (g - st.first + 1) / (st.last - st.first + 1)
                lag = tgt - st.done
                if not force:
                    if g in noval: continue
                    if lag < cst / 2 - OPT["ahead"] and cst: continue
                    trial = (a + [o] if sec == "a" else a) + (b + [o] if sec == "b" else b) + (c + [o] if sec == "c" else c) + tl
                    gt = gap_time(trial)
                    if g in light and gt > 12 and k != "salu" and lag < OPT["llag"]: continue
                    if gt > 16:
                        if g % 2 == 0: continue
                        big = k == "store" or text_of(o).startswith(("ds_write_b128", "ds_write2"))
                        lim = max(20, st.dense) if lag > 24 else 16
                        if big and not (a + b + c + tl): lim = 32
                        if gt > lim: continue
                key = (force, k in ("load", "store"), lag / max(1, (st.last - g + 1)) ** 0.5)
                if best is None or key > bl: best = st; bl = key; bsec = sec
            if best is None: break
            o = best.ops[best.i]
            if bsec == "a": a.append(o)
            elif bsec == "b":
                b.append(o)
            else: c.append(o)
            if bsec == "c" or bsec == "b" and kind_of(o) != "ds" and False: inC.add(id(best))
            if bsec == "c": inC.add(id(best))
            if " m0," in text_of(o): blocked.add(id(best))
            if kind_of(o) in ("load", "store"): lastvm = g
            best.i += 1; best.done += cost_of(o); cnt[id(best)] = cnt.get(id(best), 0) + 1
        ops = a + b + c + tl
        tt = gap_time(ops)
        if tt > 16: over += tt - 16
        out.append(ops)
    for st in streams: assert st.i == len(st.ops)
    return out, over

def pack_dense(NG, A, B, C, T, streams, novm=(), nosalu=(), vmgap=2):
    jobs = []
    for st in streams:
        r = st.first; rel = []
        for i in range(len(st.ops)):
            r = max(r, st.nb.get(i, 0)); rel.append(r)
        for i, o in enumerate(st.ops):
            d = min([st.last] + [dg for n, dg in st.dl if i < n])
            k = kind_of(o)
            jobs.append([rel[i], d, cost_of(o) + (OPT["dx"] if k in ("store", "load") else 0) - (2 if k == "salu" else 0)])
    for g in range(NG): jobs.append([g, g, max(0, gap_time(A[g] + B[g] + C[g] + T[g]) - 8)])
    level = [None] * NG
    while jobs:
        free = [g for g in range(NG) if level[g] is None]
        pts_r = sorted({j[0] for j in jobs}); pts_d = sorted({j[1] for j in jobs})
        best = None
        for a_ in pts_r:
            ws = sorted((j[1], j[2]) for j in jobs if j[0] >= a_)
            w = 0; i = 0
            for b_ in pts_d:
                if b_ < a_: continue
                while i < len(ws) and ws[i][0] <= b_: w += ws[i][1]; i += 1
                n = sum(1 for g in free if a_ <= g <= b_)
                if n and (best is None or w / n > best[0]): best = (w / n, a_, b_)
        dn, a_, b_ = best
        if dn <= 8: break
        for g in free:
            if a_ <= g <= b_: level[g] = dn
        jobs = [j for j in jobs if not (j[0] >= a_ and j[1] <= b_)]
    extra = [2 * (level[g] - 8) if (level[g] is not None and g % 2) else 0 for g in range(NG)]
    return pack_dense1(NG, A, B, C, T, streams, novm, nosalu, vmgap, extra)
def pack_dense1(NG, A, B, C, T, streams, novm, nosalu, vmgap, extra):
    out = []; over = 0; lastvm = -99
    fixed = [gap_time(A[g] + B[g] + C[g] + T[g]) - (8 if not (B[g] + C[g] + T[g]) else 8) for g in range(NG)]
    for g in range(NG):
        a, b, c, tl = list(A[g]), list(B[g]), list(C[g]), list(T[g])
        carry = (carry if g else 0) + extra[g]
        bud = 16 + (carry if g % 2 else 0)
        blocked = set(); inC = set()
        for st in streams: st.i0 = st.i
        while True:
            best = None; bl = None
            cur = gap_time(a + b + c + tl)
            for st in streams:
                if st.i >= len(st.ops) or g < st.first or g < st.nb.get(st.i, 0): continue
                if st.i in st.gate:
                    o_, j_ = st.gate[st.i]
                    if (o_.i0 if (kind_of(st.ops[st.i]) == "store" and g < NG - 1) else o_.i) <= j_: continue
                    if o_.i0 <= j_: inC.add(id(st))
                force = g >= st.last or any(st.i < n and g >= dg for n, dg in st.dl)
                if id(st) in blocked and not force: continue
                o = st.ops[st.i]; k = kind_of(o)
                if k == "salu" and g in nosalu:
                    assert not force
                    continue
                mem = k in ("load", "store", "ds")
                if k in ("load", "store") and (g in novm or g - lastvm < vmgap) and not force: continue
                sec = "b" if (mem and id(st) not in inC) else ("a" if (k == "salu" and not a and id(st) not in inC and id(st) not in blocked and not any(x is st for x in ())) else "c")
                if sec == "a" and any(id(st) == y for y in inC): sec = "c"
                if mem and sec == "c" and not force: continue
                trial = gap_time((a + [o] if sec == "a" else a) + (b + [o] if sec == "b" else b) + (c + [o] if sec == "c" else c) + tl)
                if not force and trial > bud and not (cur < 16 and trial <= bud + 12 and g % 2): continue
                tgt = st.total * (g - st.first + 1) / (st.last - st.first + 1)
                n_, dd = min([(len(st.ops), st.last)] + [(n, dg) for n, dg in st.dl if st.i < n], key=lambda x: x[1])
                need = sum(cost_of(x) for x in st.ops[st.i:n_]) / max(1, dd - g + 1)
                key = (force, mem, need)
                if best is None or key > bl: best = st; bl = key; bsec = sec
            if best is None: break
            o = best.ops[best.i]
            {"a": a, "b": b, "c": c}[bsec].append(o)
            if bsec == "c" or (bsec == "b"):
                if bsec == "c": inC.add(id(best))
                else: usedb = True
            if bsec in ("a", "b"): best._g = g
            if " m0," in text_of(o): blocked.add(id(best))
            if kind_of(o) in ("load", "store"): lastvm = g
            best.i += 1; best.done += cost_of(o)
            if bsec == "b" and not a: a.append(None)
        a = [x for x in a if x is not None]
        ops = a + b + c + tl
        tt = gap_time(ops)
        carry = max(0, carry - max(0, tt - 16)) if extra[g] or g % 2 == 0 else 0
        if tt > 16: over += tt - 16
        out.append(ops)
    for st in streams: assert st.i == len(st.ops)
    return out, over

POLLSITES = []
def gen_seg(name, groups, nxt, sm=(), bars=(), tasks=(), dma=(), extra=(), endops=(), fixed=(), peel=True, vmgap=None):
    starts = []; n = 0
    for g in groups: starts.append(n); n += len(g.mf)
    NG = n
    A = [[] for _ in range(NG)]; B = [[] for _ in range(NG)]; C = [[] for _ in range(NG)]; T = [[] for _ in range(NG)]
    streams = []; novm = set(range(0, NG, 2)); nosalu = set()
    allg = list(groups) + list(nxt)
    assert len(groups) % 3 == 0
    for i, g in enumerate(groups):
        g0 = starts[i]; ln = len(g.mf)
        if i + 2 < len(allg):
            t = allg[i + 2]
            if not (OPT["ab"] & 4 and name.startswith("k") and i % 2): B[g0].append(rd_op(i + 2, 0, t)); B[g0 + ln // 2].append(rd_op(i + 2, 1, t))
            if t.reb:
                assert g0 > 0
                C[g0 - 1] += t.reb
        if i + 1 < len(allg):
            A[g0 + ln - 1].append(LG(("fr", (2 * i + 2) % NFS), ("fr", (2 * i + 3) % NFS)))
    for ops, f, l in sm: streams.append(Stream(ops, f, l))
    streams += list(extra)
    if endops:
        A[NG-4] += endops[:1]; A[NG-2] += [A[NG-1][0]] + list(endops[1:-1]); A[NG-1] = []; T[NG-1] = list(endops[-1:]); nosalu |= {NG-2, NG-1}
    for grp in dma:
        dl = []
        for part, pos in grp[:-2]: dl += dma_tile(part, pos, peel)
        k = max(i for i, x in enumerate(dl) if isinstance(x, VM)) + 1
        lim = NG - 3 if endops else NG - 1
        if grp[-1] + 1 > lim: k = len(dl)
        streams.append(Stream(dl[:k], grp[-2], grp[-1], maxper=2))
        if dl[k:]: streams.append(Stream(dl[k:], grp[-1] + 1, min(lim, grp[-1] + 12), maxper=2))
    bars = [(g, list(tg)) for g, tg in bars]
    for t in tasks:
        k_ = t[0]
        if k_ == "vst" and t[1] >= NVE: continue
        if k_ == "cv":
            _, cv, h, buf, rs, outb = HT[t[1]]
            ops = cv(h, buf, rs, outb)[t[2]:t[3]]
            if t[2] == 0: ops = [W(t[1])] + ops
            streams.append(Stream(ops, t[4], t[5]))
        elif k_ in ("kst", "vst", "wst"):
            grp = k_st(t[1], BX, pre=OPT["pa"]) if k_ == "kst" else v_st(t[1], BZ) if k_ == "vst" else v_st(t[1], BX, "wst")
            g = t[2]; assert not B[g] and not A[g], (name, g)
            B[g].append(grp[-1]); novm |= set(range(g - OPT["sb"], g + OPT["sa"] + 1))
            if grp[:-1]: streams.append(Stream(grp[:-1], max(0, g - 5), g - 1))
        elif k_ in ("ld", "ldn"):
            ld, _, h, buf, rs, _o = HT[t[1]]
            adv = {"ka": k_adv(), "va": v_adv()}.get(t[1], []) if k_ == "ld" else []
            ops = ld(h, buf, rs, t[1])
            if len(t) > 4: ops = ops[2:] if t[4] == "raw" else ops[:2]
            streams.append(Stream(adv + ops, t[2], t[3], maxper=1))
        elif k_ == "post":
            bi = t[2] if len(t) > 2 else -1
            bars[bi][1].append(t[1])
            streams.append(Stream(flag_post(), bars[bi][0] + 1, min(NG - 3, bars[bi][0] + 14), maxper=1))
        elif k_ == "pf":
            streams.append(Stream([VM("pf", f"buffer_load_dword v{V_T4}, v{V_DMA}, s[{S_DBG}:{S_DBG+3}], s{S_HOFF} offen")], t[1], t[2]))
        elif k_ == "rld":
            streams.append(Stream([VM("rs", f"buffer_load_dwordx4 v[{V_T4}:{V_T4+3}], v{V_DMA}, s[{S_WS}:{S_WS+3}], s{S_RC} offen sc1")], t[1], t[2]))
        elif k_ == "rst":
            g = t[1]; assert g % 2 == 1 and not B[g] and not A[g] and not A[g - 1], (name, g)
            A[g - 1].append(W("rs")); B[g].append(VM("rs2", f"buffer_store_dwordx4 v[{V_T4}:{V_T4+3}], v{V_DMA}, s[{S_WS}:{S_WS+3}], s{S_RC} offen sc1"))
            novm |= set(range(g - OPT["sb"], g + OPT["sa"] + 1))
            streams.append(Stream([f"s_add_u32 s{S_RC}, s{S_RC}, s{S_RD}", f"s_sub_u32 s{S_RD}, 1024, s{S_RD}"], g + 1, g + 8, maxper=1))
        elif k_ == "pollld": streams.append(Stream(poll_load(), t[1], t[2], maxper=1))
        elif k_ == "pollchk":
            ps = len(POLLSITES); POLLSITES.append(ps)
            g = t[1]; assert g % 4 == 1
            pt = poll_test()
            A[g] += [W("poll")]; T[g] += pt[:2]; novm |= {g, g + 4}
            A[g + 3] += [pt[3]]; A[g + 4] += [f"s_cbranch_scc1 L_pollslow{ps}", f"L_pollok{ps}:"]; nosalu |= {g + 3, g + 4}
            A[g + 5] += [f"s_add_u32 s{S_NEED}, s{S_NEED}, 1"]
        elif k_ == "spollld": A[t[1]] += smem_flags()
        elif k_ == "spollchk":
            ps = len(POLLSITES); POLLSITES.append(ps)
            A[t[1]] += ["s_waitcnt lgkmcnt(0)"]
            streams.append(Stream(smem_reduce(), t[1] + 1, t[2] - 1, maxper=3))
            A[t[2]] += [f"s_cmp_ge_u32 s{S_PT}, 16", f"s_cbranch_scc1 L_pollslow{ps}", f"L_pollok{ps}:", f"s_add_u32 s{S_NEED}, s{S_NEED}, 1"]
        elif k_ == "step": streams.append(Stream(rd_step(t[1]), t[2], t[3], maxper=1))
        elif k_ == "q": streams.append(Stream(q_dma(t[1]), t[2], t[3], maxper=2))
        else: raise Exception(k_)
    noval = set()
    for g, tags in bars:
        i = [j for j in range(len(groups)) if starts[j] + len(groups[j].mf) - 1 == g]
        assert i, (name, g)
        if len(groups[i[0]].mf) == 8 and OPT["bm"] >= 4:
            A[g - 2] += A[g] + ([W(*tags)] if tags else []); A[g] = []
            A[g - 1] += ["s_barrier"]; novm |= {g - 2, g - 1}; noval |= {g - 1} | ({g - 2} if OPT["bm"] == 5 else set())
            continue
        if len(groups[i[0]].mf) == 8:
            A[g - 2] += A[g]; A[g] = []
            if tags: A[g - 1] += [W(*tags)]
            noval |= {0: set(), 1: {g}, 2: {g - 1, g}, 3: {g - 1}}[OPT["bm"]]
        elif tags: A[g - 2] += [W(*tags)]
        A[g] += ["s_barrier"]; novm |= {g}
    for g, sec, ops in fixed: {"A": A, "B": B, "C": C, "T": T}[sec][g] += ops
    if endops:
        for st_ in streams: st_.last = min(st_.last, NG - 2)
    m0w = sorted((st.first, st.last) for st in streams if any(" m0," in text_of(o) for o in st.ops))
    assert all(m0w[i][1] < m0w[i + 1][0] for i in range(len(m0w) - 1)), (name, m0w)
    if name in str(OPT["dense"]).split(","): fill, over = pack_dense(NG, A, B, C, T, streams, novm, nosalu, vmgap or OPT["dvg"])
    else:
        fill, over = pack(NG, A, B, C, T, streams, novm, nosalu, vmgap or OPT["vmgap"], (), noval)
        if OPT["twop"] and name[0] in "kz":
            vg = {g for g in range(NG) if any(kind_of(o) in ("load", "store") for o in fill[g])}
            for st_ in streams: st_.i = 0; st_.done = 0
            fill, over = pack(NG, A, B, C, T, streams, set(novm) | (set(range(NG)) - vg), nosalu, vmgap or OPT["vmgap"], {g - 1 for g in vg})
    if over: print(f"seg {name}: over budget by {over} cycles", file=sys.stderr)
    out = istamp(name)
    g = 0
    for i, gr in enumerate(groups):
        for j, d, b, c in gr.mf:
            if (OPT["pvs"] & 1 and d[0] in "a ") or (OPT["pvs"] & 2 and d.startswith("v")): out.append(f"{MF} {d}, {b}, {FR(2*i+j)}, {c}")
            else: out.append(f"{MF} {d}, {FR(2*i+j)}, {b}, {c}")
            out += fill[g]; g += 1
    return with_nop(out)

GBAR = 79
def seg_groups(it):
    return qk_full(it + 1) if it % 2 else pv_seq(it - 2)
def gen_iter(it, tasks=(), dma=(), name=None, endops=(), peel=False, nxt=None, extra=(), bars=None, groups=None, sm=None, step=True):
    q = it % 2
    smB = softmax_part(it, 1); smA = softmax_part(it + 1, 0)
    if sm is None: sm = ([(smB + [("dl", 57), ("nb", 47)] + smA, 0, 95)] if OPT["flex"] else [(smB, 0, 50), (smA, 52, 95)]) if q else [(smB + smA, 0, 95)]
    need = [("dv", (it - 1) % 8), ("dv", it % 8)] if q else [("dk", (it + 2) % 8), ("dk", (it + 3) % 8)]
    tasks = list(tasks) + ([("step", "p" if q else "q", 30, GBAR - 3)] if step else [])
    return gen_seg(name or f"i{it}", groups or seg_groups(it), nxt if nxt is not None else seg_groups(it + 1)[:2], sm,
                   bars if bars is not None else [(GBAR, need)], tasks, dma, extra, endops, peel=peel)

K_ = lambda *j: tuple(("k", x) for x in j)
V_ = lambda *j: tuple(("v", x) for x in j)
def steady(k):
    ckv, ckk = OPT["ckv"], OPT["ckk"]
    plv, plk = OPT["plv"], OPT["plk"]
    if OPT.get("p15"):
        return {
            5: ([("cv", "wb", 0, 99, 30, 95), ("pollchk", 1), ("post", "vst")], [K_(0, 1) + (8, 74)]),
            6: ([("wst", 0, 1), ("wst", 1, 9), ("wst", 2, 17), ("post", "wst"), ("ld", "ka", 26, 60), ("ld", "kb", 61, 95)], [K_(2, 3) + (26, 90)]),
            7: ([("cv", "ka", 0, 30, 45, 95), ("pollld", plv, plv + 8)], [K_(4, 5) + (11, 92)]),
            0: ([("cv", "ka", 30, 99, 0, 50), ("cv", "kb", 0, 20, 51, 95), ("pollchk", ckv), ("ld", "va", 52, 95)], [V_(0, 1) + (ckv + 7, 74)]),
            1: ([("cv", "kb", 20, 99, 0, 95)], [V_(2, 3) + (0, GBAR - 5)]),
            2: ([("cv", "va", 0, 99, 10, 95), ("kst", 0, 1), ("kst", 1, 9), ("kst", 2, 17), ("kst", 3, 25), ("post", "kst"), ("ld", "vb", 33, 60)], [K_(6, 7) + (33, 74)]),
            3: ([("cv", "vb", 0, 99, 50, 95), ("ldn", "wa", 0, 44)], [V_(4, 5) + (0, 90)]),
            4: ([("vst", 0, 1), ("vst", 1, 9), ("vst", 2, 17), ("cv", "wa", 0, 99, 30, 95), ("ld", "wb", 25, 50), ("pollld", 52, 60)], [V_(6, 7) + (25, GBAR - 5)]),
        }[k]
    if OPT["bal"]:
        c = [int(x) for x in str(OPT["cut"]).split(",")]
        a1, a2, b1, b2, v1, v2, w1 = c
        return {
            5: ([("cv", "ka", 0, a1, OPT["w5"], 95), ("pollchk", 1), ("vst", 0, 9), ("vst", 1, 17), ("vst", 2, 25), ("vst", 3, 33), ("post", "vst")], [K_(0, 1) + (41, 74)]) if ckk == 1 else
               ([("cv", "ka", 0, a1, 0, 95), ("pollchk", ckk), ("vst", 0, 1), ("vst", 1, 9), ("vst", 2, 17), ("vst", 3, 25), ("post", "vst")], [K_(0, 1) + (ckk + 7, 92)]),
            6: ([("cv", "ka", a1, a2, 0, 95), ("ld", "kb", 0, 44)] + [("rld", 70, 92)] * OPT["rs"], [K_(2, 3) + (0, 90)]),
            7: ([("cv", "ka", a2, 99, 0, 60 if b1 < 12 else 44), ("cv", "kb", 0, b1, 61 if b1 < 12 else 45, 95), ("ld", "va", 11, OPT["lva"]), ("pollld", plv, plv + 8)], [K_(4, 5) + (11, 92)]),
            0: ([("cv", "kb", b1, b2, 0, 95), ("pollchk", ckv)] + [("rst", 81)] * OPT["rs"], [V_(0, 1) + (ckv + 7, 74)]),
            1: ([("cv", "kb", b2, 99, 0, 30), ("cv", "va", 0, v1, 31, 95), ("ld", "vb", 32, 80)], [V_(2, 3) + (0, GBAR - 5)]) if b2 < 56 else
               ([("cv", "va", 0, v1, 20, 95), ("ld", "vb", 0, 40)], [V_(2, 3) + (0, 90)]),
            2: ([("cv", "va", v1, v2, 0, 95), ("kst", 0, 1), ("kst", 1, 9), ("kst", 2, 17), ("kst", 3, 25), ("post", "kst")], [K_(6, 7) + (33, 74)]),
            3: ([("cv", "va", v2, 99, 0, 50), ("cv", "vb", 0, w1, 51, 95), ("ld", "ka", 0, 44)], [V_(4, 5) + (0, 90)]),
            4: ([("cv", "vb", w1, 99, 0, 95), ("pollld", plk, plk + 16)] + ([("pf", 80, 92)] if OPT["pf2"] else []), [V_(6, 7) + (0, GBAR - 5)]),
        }[k]
    return {
        1: ([("cv", "va", 0, 22, 0, 95), ("ld", "vb", 0, 44)], [V_(2, 3) + (0, GBAR - 5)]),
        2: ([("cv", "va", 22, 99, 0, 95), ("kst", 0, 1), ("kst", 1, 9), ("kst", 2, 17), ("kst", 3, 25), ("post", "kst")], [K_(6, 7) + (33, 74)]),
        3: ([("cv", "vb", 0, 22, 0, 95), ("ld", "ka", 0, 44)], [V_(4, 5) + (0, GBAR - 5)]),
        4: ([("cv", "vb", 22, 99, 0, 95), ("pollld", plk, plk + 16)] + ([("pf", 80, 92)] if OPT["pf2"] else []), [V_(6, 7) + (0, GBAR - 5)]),
        5: ([("cv", "ka", 0, 16, 0, 95), ("pollchk", 1), ("vst", 0, 9), ("vst", 1, 17), ("vst", 2, 25), ("vst", 3, 33), ("post", "vst")], [K_(0, 1) + (41, 74)]),
        6: ([("cv", "ka", 16, 99, 0, 95), ("ld", "kb", 0, 30)], [K_(2, 3) + (31, 74)]),
        7: ([("cv", "kb", 0, 24, 40, 95), ("ld", "va", 11, 40), ("pollld", plv, plv + 8)], [K_(4, 5) + (41, 90)]),
        0: ([("cv", "kb", 24, 99, 0, 95), ("pollchk", ckv)], [V_(0, 1) + (ckv + 7, ckv + 44)]),
    }[k]

GA = V_RS[0]; TA = V_RS[0] + 1; BA = V_RS[0] + 2
RL = [V_CT, V_CT + 4, NEGM(0), NEGM(1)]
S_EO = 24
def epi_addr():
    return [f"v_bfe_u32 v{TA}, v{V_DMA}, 8, 2", f"v_mul_u32_u24 v{GA}, 1536, v{TA}", f"v_lshlrev_b32 v{BA}, 4, v{TA}",
            f"v_bfe_u32 v{TA}, v{V_DMA}, 4, 4", f"v_mul_u32_u24 v{TA}, {12 if V64 else 8}, v{TA}", f"v_add_u32 v{GA}, v{GA}, v{TA}", f"v_mov_b32 v{TA}, 1.0"] + [f"v_mov_b32 v{ONES+i}, 0x3f803f80" for i in range(4 * OPT["lmf"])] + [
            f"s_lshl_b32 s{S_EO}, s{S_QB}, 2", f"s_add_u32 s{S_EO}, s{S_EO}, s{S_WAVE}", f"s_mul_i32 s{S_EO}, s{S_EO}, {STAGE}",
            f"s_add_u32 s{S_QL}, s{S_EO}, 6144", f"s_add_u32 s{S_QS}, s{S_EO}, 12288", f"s_add_u32 s{S_TAG}, s{S_EO}, 18432"]
S_EQ = [S_EO, S_QL, S_QS, S_TAG]
def epi_l(qs, gap=("s_nop 7", "s_nop 1"), acc=False):
    fl = [f"v_mfma_f32_16x16x4_f32 v[{RL[q]}:{RL[q]+3}], v{V_L[q]}, v{TA}, " + (f"v[{RL[q]}:{RL[q]+3}]" if acc else "0") for q in qs] + list(gap)
    return fl + [f"v_rcp_f32 v{RL[q]+r}, v{RL[q]+r}" for q in qs for r in range(4)]
class Epi:
    def __init__(self, temps): self.temps = temps; self.n = 0; self.pend = []
    def flush(self, k=99):
        p = self.pend[:k]; self.pend = self.pend[k:]
        return p
    def chunk(self, qb, n, pk=False, inv=False):
        p = []
        if V64:
            for r in range(4):
                o = self.temps[self.n % len(self.temps)]; self.n += 1; rl = RL[qb] + r
                if inv:
                    p += [f"v_mul_f32 v{o+e}, v{O0(6*n+e)+r}, v{rl}" for e in range(6)] + [f"v_cvt_pk_bf16_f32 v{o+i}, v{o+2*i}, v{o+2*i+1}" for i in range(3)] + self.flush(1)
                    self.pend.append(VM("out", f"buffer_store_dwordx3 v[{o}:{o+2}], v{GA}, s[{S_OUT}:{S_OUT+3}], s{S_EQ[qb]} offen offset:{n*192 + r*384}{OF}"))
                    continue
                p += [f"v_accvgpr_read_b32 v{o+e}, a{O(qb,6*n+e)+r}" for e in range(6)]
                if pk: p += [f"v_pk_mul_f32 v[{o+2*i}:{o+2*i+1}], v[{o+2*i}:{o+2*i+1}], v[{rl&~1}:{(rl&~1)+1}] " + ("op_sel:[0,1] op_sel_hi:[1,1]" if rl & 1 else "op_sel_hi:[1,0]") for i in range(3)]
                else: p += [f"v_mul_f32 v{o+e}, v{o+e}, v{rl}" for e in range(6)]
                p += [f"v_cvt_pk_bf16_f32 v{o+i}, v{o+2*i}, v{o+2*i+1}" for i in range(3)] + self.flush(1)
                self.pend.append(VM("out", f"buffer_store_dwordx3 v[{o}:{o+2}], v{GA}, s[{S_OUT}:{S_OUT+3}], s{S_EQ[qb]} offen offset:{n*192 + r*384}{OF}"))
            return p
        ob = self.temps[self.n % len(self.temps)]; self.n += 1
        for r in range(4):
            o = ob + 4 * r
            if inv:
                p += [f"v_mul_f32 v{o+e}, v{OV(qb,3*e+n)+r}, v{RL[qb]+r}" for e in range(4)]
                p += [f"v_cvt_pk_bf16_f32 v{o+i}, v{o+2*i}, v{o+2*i+1}" for i in range(2)] + self.flush(1)
                self.pend.append(VM("out", f"buffer_store_dwordx2 v[{o}:{o+1}], v{GA}, s[{S_OUT}:{S_OUT+3}], s{S_EQ[qb]} offen offset:{n*128 + r*384}{OF}"))
                continue
            p += [f"v_accvgpr_read_b32 v{o+e}, a{O(qb,3*e+n)+r}" for e in range(4)]
            rl = RL[qb] + r
            if pk: p += [f"v_pk_mul_f32 v[{o+2*i}:{o+2*i+1}], v[{o+2*i}:{o+2*i+1}], v[{rl&~1}:{(rl&~1)+1}] " + ("op_sel:[0,1] op_sel_hi:[1,1]" if rl & 1 else "op_sel_hi:[1,0]") for i in range(2)]
            else: p += [f"v_mul_f32 v{o+e}, v{o+e}, v{rl}" for e in range(4)]
            p += [f"v_cvt_pk_bf16_f32 v{o+i}, v{o+2*i}, v{o+2*i+1}" for i in range(2)]
            p += self.flush(1)
            self.pend.append(VM("out", f"buffer_store_dwordx2 v[{o}:{o+1}], v{GA}, s[{S_OUT}:{S_OUT+3}], s{S_EQ[qb]} offen offset:{n*128 + r*384}{OF}"))
        return p

def gen_tail():
    sp = softmax_part
    g57 = qk_half(58) + rebase(qk_half(59), V_RDK, A0 - A2)
    g58 = pv_seq(56)
    g59 = rebase(qk_half(60), V_RDK, A1 - A0) + rebase(qk_half(61), V_RDK, A2 - A1)
    g60 = rebase(pv_seq(58), [V_RD], B2 - B1) + rebase(pv_seq(59), [V_RD], B0 - B2)
    g61 = rebase(pv_seq(60), [V_RD], B1 - B0) + rebase(qk_half(62), V_RDK, A0 - A2)
    g62 = rebase(qk_half(63), V_RDK, A1 - A0) + ([] if OPT["f3"] else rebase(pv_seq(61), [V_RD], B2 - B1))
    T2 = OPT["t2"]
    if T2:
        g59 = rebase(qk_half(60), V_RDK, A1 - A0) + rebase(pv_seq(58), [V_RD], B2 - B1)
        g60 = rebase(pv_seq(59), [V_RD], B0 - B2) + rebase(pv_seq(60), [V_RD], B1 - B0)
        g61 = rebase(qk_half(61), V_RDK, A2 - A1) + rebase(qk_half(62), V_RDK, A0 - A2)
    g63 = []
    for dbs in ([chunk_dbs(0), [6, 7, 8], [9, 10, 11]] if V64 else [chunk_dbs(n) for n in range(3)]):
        if OPT["f3"]: g63 += [pv_grp(61, db, va=V_RD3) for db in dbs]
        g63 += [pv_grp(62, db) for db in dbs] + [pv_grp(63, db, va=V_RD2) for db in dbs]
    if OPT["f3"]: g63[0].reb += [f"v_add_u32 v{V_RD3}, {B2 - B1}, v{V_RD}", f"v_mov_b32 v{V_RD2}, v{V_RD}", f"v_subrev_u32 v{V_RD}, {B1 - B0}, v{V_RD}"]
    else: g63[0].reb += [f"v_subrev_u32 v{V_RD2}, {B2 - B1}, v{V_RD}", f"v_subrev_u32 v{V_RD}, {B2 - B0}, v{V_RD}"]
    first57 = g57[:2]
    Z0 = OPT["z0"] and OPT["lastp"]
    p = []
    p += gen_seg("S57", g57, g58[:2], [(sp(57, 1) + [("dl", 50), ("nb", 28)] + sp(58, 0), 0, 95)], [(7, [("dk", 5)])] * (1 - Z0) + [(GBAR, [("dv", 0), ("dv", 1)])],
                 [("step", "p", 30, GBAR - 3)], [] if Z0 else [(K_(62, 63) + (8, 60)) if OPT["tv"] else (K_(62, 63) + V_(58, 59) + (8, 90))], peel=False)
    p += gen_seg("S58", g58, g59[:2], [(sp(58, 1) + sp(59, 0), 0, 95), (epi_addr(), 0, 95)], [(GBAR, [("dk", 7)] if OPT["tv"] else [("dk", 7), ("dv", 3)])], [],
                 [(V_(58, 59, 60, 61) + (0, 74)) if OPT["tv"] else (V_(60, 61) + (0, 60))], peel=False)
    if T2:
        p += gen_seg("S59", g59 + g60, g61[:2], [(sp(59, 1) + [("dl", 93), ("nb", 28)] + sp(60, 0) + [("nb", 52)] + sp(60, 1) + [("dl", 141), ("nb", 156)] + epi_l((0, 1), [])[2:], 0, 190)],
                     [(15, [("dv", 5)]), (135, [("dv", 7)])], [], [V_(62, 63) + (16, 60)], peel=False,
                     fixed=[(145, "T", epi_l((0, 1))[:1]), (147, "T", epi_l((0, 1))[1:2]), (95, "T", istamp("S60"))])
    else:
        p += gen_seg("S59", g59, g60[:2], [(sp(59, 1) + [("dl", 50), ("nb", 28)] + sp(60, 0), 0, 95)], [(15, [("dv", 5)])], [], [V_(62, 63) + (16, 60)], peel=False)
        p += gen_seg("S60", g60, g61[:2], [(sp(60, 1) + sp(61, 0), 0, 95)], [(GBAR, [("dv", 7)])])
    ep = Epi([BX + 6 * i for i in range(5)] if V64 else [BX] if OPT["omv"] else [BX, BY])
    if OPT["om0"]:
        t5 = ep.temps; ep.temps = [UNIT[0], UNIT[0] + 6]
        e01 = [x for n in range(NCH) for x in ep.chunk(0, n, False, True)]
        ep.temps = t5; ep.n = 0
        e01 += [x for n in range(NCH) for x in ep.chunk(1, n)] + ep.flush()
    else: e01 = [x for qb in (0, 1) for n in range(NCH) for x in ep.chunk(qb, n, OPT["pk"])] + ep.flush()
    chk = [f"v_max3_f32 v{V_T+2}, v{V_L[0]}, v{V_L[1]}, v{V_L[2]}", f"v_max_f32 v{V_T+2}, v{V_T+2}, v{V_L[3]}",
           f"s_mov_b32 s{S_TMP}, 0x{f32bits(2.0**OPT['thr']):08x}", f"v_cmp_lt_f32 s[{S_PT}:{S_PT+1}], s{S_TMP}, v{V_T+2}"]
    c = [ep.chunk(2, j, OPT["pk"]) + ep.chunk(3, j, OPT["pk"]) + ep.flush() for j in range(NCH - 1)] + [[]]
    sm = sp(61, 1) + epi_l((0, 1), [])[2:] + [("dl", 50), ("nb", 76)] + sp(62, 0) + [("nb", 98)] + sp(62, 1) + [("nb", 124)] + sp(63, 0) + [("nb", 148)] + sp(63, 1) + [("dl", 205)] + chk + [("nb", 214)] + epi_l((2, 3), [])[2:]
    ee = e01 + [("nb", 228)] + c[0] + [("nb", 260)] + c[1]
    lastsm = 220
    if OPT["f3"]:
        sm = sp(61, 1) + epi_l((0, 1), [])[2:] + [("dl", 50), ("nb", 76)] + sp(62, 0) + [("nb", 98)] + sp(62, 1) + [("dl", 157), ("nb", 124)] + sp(63, 0) + [("nb", 148)] + sp(63, 1) + [("dl", 173)] + chk + [("nb", 182)] + epi_l((2, 3), [])[2:]
        ee = e01 + [("dl", OPT["ed"]), ("nb", 196)] + c[0] + [("dl", OPT["ed1"]), ("nb", 244)] + c[1]
        lastsm = 190
        if V64:
            lm = OPT["lmf"]
            sm = sp(61, 1, lm) + epi_l((0, 1), [])[2:] + [("dl", 50), ("nb", 76)] + sp(62, 0, lm) + [("nb", 98)] + sp(62, 1, lm) + [("dl", 165), ("nb", 124)] + sp(63, 0, lm) + [("nb", 148)] + sp(63, 1, lm) + [("dl", 187 if lm else 189)]
            if T2: sm = [("nb", 28)] + sp(61, 0, lm) + [("nb", 52)] + sp(61, 1, lm) + [("dl", 97), ("nb", 76)] + sp(62, 0, lm) + [("nb", 100)] + sp(62, 1, lm) + [("dl", 165), ("nb", 124)] + sp(63, 0, lm) + [("nb", 148)] + sp(63, 1, lm) + [("dl", 187)]
            if lm:
                chk = [f"v_max3_f32 v{V_T+2}, v{V_L[0]}, v{V_L[1]}, v{RL[2]}"] + [f"v_max3_f32 v{V_T+2}, v{V_T+2}, v{a_}, v{a_+1}" for a_ in (RL[2] + 1, RL[2] + 3, RL[3] + 1)] + [f"v_max_f32 v{V_T+2}, v{V_T+2}, v{RL[3]+3}"] + chk[2:]
                sm += [("nb", 198)] + chk + epi_l((2, 3), [])[2:]
            else: sm += chk + [("nb", 198)] + epi_l((2, 3), [])[2:]
            ee = e01 + [("dl", OPT["ed"] + 20), ("nb", 220)] + c[0]
            lastsm = 206
    if OPT["sst"]:
        prod = []; ev = []
        for x in ee:
            if isinstance(x, VM): prod.append(x)
            else: ev.append(x)
        es = Stream(ev, 4 if T2 else 52, 286); ss = Stream(prod, 4 if T2 else 52, 287)
        cv = [i for i, x in enumerate(es.ops) if text_of(x).startswith("v_cvt_pk")][(2 if V64 else 1)::(3 if V64 else 2)]
        rd = [i for i, x in enumerate(es.ops) if text_of(x).startswith("v_accvgpr_read")][0::(6 if V64 else 4)]
        if OPT["om0"]: rd = [0] + [c_ + 1 for c_ in cv[:-1]]
        assert len(cv) == len(prod) == len(rd)
        for k in range(len(prod)):
            ss.gate[k] = (es, cv[k]); ss.nb[k] = max([0] + [gp for i, gp in es.nb.items() if i <= cv[k]])
            kk = k + (1 if V64 else 4) * len(ep.temps)
            if OPT["om0"] and k < 8: kk = k + 2 if k < 6 else len(prod)
            if kk < len(prod): es.gate[rd[kk]] = (ss, k)
        xs = [es, ss]
        LT = [96, 102, 108, 114, 120, 64, 70, 144]
        if V64: xs.append(Stream([x for q in (2, 3) for r in range(4) for x in [f"v_accvgpr_read_b32 v{LT[4*(q-2)+r]+e}, a{O(q,6+e)+r}" for e in range(3)] +
                                  [f"v_mul_f32 v{LT[4*(q-2)+r]+e}, v{LT[4*(q-2)+r]+e}, v{RL[q]+r}" for e in range(3)]], 256, 287))
        if OPT["omv"]: xs.append(Stream([f"v_accvgpr_read_b32 v{OV(q, db)+r}, a{O(q, db)+r}" for q in (2, 3) for db in (2, 5, 8, 11) for r in range(4)], 0, 140))
    else: xs = [Stream(ee, 52, 287)]
    p += gen_seg("S61", g61 + g62 + g63, [], [(sm, 0, lastsm)], extra=xs,
                 fixed=[(1, "T", epi_l((0, 1))[:1]), (3, "T", epi_l((0, 1))[1:2])] * (1 - T2) + [(lastsm - 15, "T", epi_l((2, 3), acc=V64 and OPT["lmf"])[:1]), (lastsm - 13, "T", epi_l((2, 3), acc=V64 and OPT["lmf"])[1:2]), (lastsm + 5, "A", [f"s_cmp_lg_u64 s[{S_PT}:{S_PT+1}], 0", "s_cbranch_scc1 L_slow"]), (95, "T", istamp("S62")), (191, "T", istamp("S63"))])
    p += istamp("fin") + ["s_nop 7"]
    if OPT["omv"]: ep.temps = [UNIT[0], UNIT[1]]
    if V64:
        for q in (2, 3):
            for r in range(4):
                o = LT[4 * (q - 2) + r]
                p += [f"v_accvgpr_read_b32 v{o+e}, a{O(q,6+e)+r}" for e in range(3, 6)] + [f"v_cvt_pk_bf16_f32 v{o}, v{o}, v{o+1}"]
                p += [f"v_mul_f32 v{o+e}, v{o+e}, v{RL[q]+r}" for e in range(3, 6)] + [f"v_cvt_pk_bf16_f32 v{o+i}, v{o+2*i}, v{o+2*i+1}" for i in (1, 2)]
                p += [VM("out", f"buffer_store_dwordx3 v[{o}:{o+2}], v{GA}, s[{S_OUT}:{S_OUT+3}], s{S_EQ[q]} offen offset:{192 + r*384}{OF}")]
        return first57, p
    p += ep.chunk(2, NCH - 1, True, OPT["omv"]) + ep.flush() + ep.chunk(3, NCH - 1, True, OPT["omv"]) + ep.flush()
    return first57, p
def slow_epi():
    ep = Epi([64 + 6 * i for i in range(8)] if V64 else [64 + 16 * i for i in range(4)])
    seq = ["s_nop 1"] + epi_l((0, 1)) + epi_l((2, 3)) + ["s_nop 0"]
    for qb in range(4):
        for n in range(NCH): seq += ep.chunk(qb, n, True)
    return seq + ep.flush()

def kfrag(g):
    return 2 * (g >> 2) + (g & 1), (g >> 1) & 1
def gen_slow():
    KF = 64; VF = 112; SS = 160; PP = 224; M = [240, 241, 242, 243]; KA = [244, 245]; LA = 246; t = V_T
    p = ["L_slow:", "s_waitcnt vmcnt(0) lgkmcnt(0)", "s_nop 15"]
    for i in range(192): p.append(f"v_accvgpr_write_b32 a{i}, 0")
    for q in range(4): p += [f"v_mov_b32 v{V_L[q]}, 0", f"v_mov_b32 v{M[q]}, 0xff7fffff"]
    p += [f"v_subrev_u32 v{KA[0]}, {A1}, v{V_RDK[0]}", f"v_subrev_u32 v{KA[1]}, {A1}, v{V_RDK[1]}", f"v_subrev_u32 v{LA}, {B0}, v{V_RD}",
          f"s_mov_b32 s{S_PT}, 0", "L_slowloop:"]
    for i in range(1, 5): p.append(f"s_add_u32 s{S_PT+i}, s{S_PT}, {[0, 6144, 12288, 16384, 20480][i]}")
    for f in range(12):
        s, tb = kfrag(f)
        p.append(f"buffer_load_dwordx4 v[{KF+4*f}:{KF+4*f+3}], v{KA[s&1]}, s[{S_WS}:{S_WS+3}], s{S_PT+tb} offen offset:{(s>>1)*128} sc1")
    for db in range(12):
        p.append(f"buffer_load_dwordx4 v[{VF+4*db}:{VF+4*db+3}], v{LA}, s[{S_WS}:{S_WS+3}], s{S_PT+2+db//4} offen offset:{(db%4)*1024} sc1")
    p.append("s_waitcnt vmcnt(12)")
    for f in range(12):
        s, tb = kfrag(f)
        for qb in range(4):
            d = vr(SS + 8 * qb + 4 * tb, 4)
            p.append(f"{MF} {d}, v[{KF+4*f}:{KF+4*f+3}], {Qf(qb,s)}, {'0' if s == 0 else d}")
    p.append("s_nop 9")
    for qb in range(4):
        sb = SS + 8 * qb
        p += [f"v_max3_f32 v{t}, v{sb}, v{sb+1}, v{sb+2}", f"v_max3_f32 v{t}, v{t}, v{sb+3}, v{sb+4}",
              f"v_max3_f32 v{t}, v{t}, v{sb+5}, v{sb+6}", f"v_max3_f32 v{t}, v{t}, v{sb+7}, v{M[qb]}"]
        p += xlane("v_max_f32", t)
        p += [f"v_sub_f32 v{t+1}, v{M[qb]}, v{t}", f"v_exp_f32 v{t+1}, v{t+1}", f"v_mov_b32 v{M[qb]}, v{t}"]
        for i in range(8): p.append(f"v_sub_f32 v{sb+i}, v{sb+i}, v{t}")
        for i in range(8): p.append(f"v_exp_f32 v{sb+i}, v{sb+i}")
        p.append(f"v_mul_f32 v{V_L[qb]}, v{V_L[qb]}, v{t+1}")
        for i in range(8): p.append(f"v_add_f32 v{V_L[qb]}, v{V_L[qb]}, v{sb+i}")
        for i in range(4): p.append(f"v_cvt_pk_bf16_f32 v{PP+4*qb+i}, v{sb+2*i}, v{sb+2*i+1}")
        p += [f"ds_bpermute_b32 v{248+r}, v{BA}, v{t+1} offset:{4*r}" for r in range(4)] + ["s_waitcnt lgkmcnt(0)"]
        for i in range(48):
            a = O(qb, 0) + i; tt = t + 2 + (i % 2)
            p += [f"v_accvgpr_read_b32 v{tt}, a{a}", f"v_mul_f32 v{tt}, v{tt}, v{248+i%4}", f"v_accvgpr_write_b32 a{a}, v{tt}"]
    p += ["s_waitcnt vmcnt(0)", "s_nop 1"]
    for db in range(12):
        for qb in range(4):
            d = ar(O(qb, db), 4)
            p.append(f"{MF} {d}, v[{PP+4*qb}:{PP+4*qb+3}], v[{VF+4*db}:{VF+4*db+3}], {d}")
    p += [f"s_add_u32 s{S_PT}, s{S_PT}, {STAGE}", f"s_cmp_lt_u32 s{S_PT}, {HEADBYTES}", "s_nop 7", "s_cbranch_scc1 L_slowloop"]
    e = slow_epi(); resolve(e)
    return p + fin(e) + ["s_branch L_fin"]

def xlane(op, t, u=None):
    u = t + 1 if u is None else u
    l = []
    for sw in ("v_permlane16_swap_b32", "v_permlane32_swap_b32"):
        l += [f"v_mov_b32 v{u}, v{t}", "s_nop 1", f"{sw} v{t}, v{u}", "s_nop 1", f"{op} v{t}, v{t}, v{u}"]
    return l
def rowmax2(t, qs, tq):
    l = []
    ab = [(Sq(t, j, 0), Sq(t, j, 1)) for j in range(2)]
    l += [f"v_max3_f32 v{tq[j]}, v{a}, v{a+1}, v{a+2}" for j, (a, b) in enumerate(ab)]
    l += [f"v_max3_f32 v{tq[j]}, v{tq[j]}, v{a+3}, v{b}" for j, (a, b) in enumerate(ab)]
    l += [f"v_max3_f32 v{tq[j]}, v{tq[j]}, v{b+1}, v{b+2}" for j, (a, b) in enumerate(ab)]
    l += [f"v_max_f32 v{tq[j]}, v{tq[j]}, v{b+3}" for j, (a, b) in enumerate(ab)]
    for sw in ("v_permlane16_swap_b32", "v_permlane32_swap_b32"):
        l += [f"v_mov_b32 v{tq[j]+1}, v{tq[j]}" for j in range(2)] + ["s_nop 0"]
        l += [f"{sw} v{tq[j]}, v{tq[j]+1}" for j in range(2)] + ["s_nop 0"]
        l += [f"v_max_f32 v{tq[j]}, v{tq[j]}, v{tq[j]+1}" for j in range(2)]
    l += [f"v_sub_f32 v{NEGM(qs[j])+i}, 0, v{tq[j]}" for j in range(2) for i in range(4)]
    return l
def sm_one(t, sl):
    a, b = Sq(t, sl, 0), Sq(t, sl, 1); tq = V_CT; qb = slot_q(t, sl); rs = [r + i for r in (a, b) for i in range(4)]
    l = [f"v_max3_f32 v{tq}, v{a}, v{a+1}, v{a+2}", f"v_max3_f32 v{tq+2}, v{a+3}, v{b}, v{b+1}",
         f"v_max3_f32 v{tq}, v{tq}, v{b+2}, v{b+3}", f"v_max_f32 v{tq}, v{tq}, v{tq+2}"] + xlane("v_max_f32", tq)
    l += [f"v_sub_f32 v{r}, v{r}, v{tq}" for r in rs] + [f"v_exp_f32 v{r}, v{r}" for r in rs] + [f"v_sub_f32 v{NEGM(qb)+i}, 0, v{tq}" for i in range(4)]
    l += [f"v_add_f32 v{V_L[qb]}, v{V_L[qb]}, v{r}" for r in rs] + [f"v_cvt_pk_bf16_f32 v{a+i}, v{rs[2*i]}, v{rs[2*i+1]}" for i in range(4)]
    return l
def addneg(t, sl):
    n = NEGM(slot_q(t, sl))
    return [f"v_add_f32 v{Sq(t,sl,tb)+i}, v{Sq(t,sl,tb)+i}, v{n}" for tb in range(2) for i in range(4)]

def resolve(seq):
    vm = []; ds = []
    for x in seq:
        if isinstance(x, VM): vm.append(x.tag)
        elif isinstance(x, DS): ds.append(x.tag)
        elif isinstance(x, (W, LG)):
            q = vm if isinstance(x, W) else ds
            best = None
            for tag in x.tags:
                n = 0; found = False
                for t in reversed(q):
                    if t == tag: found = True; break
                    n += 1
                if found: best = n if best is None else min(best, n)
            if best is not None:
                x.n = best if getattr(x, "n", None) is None else min(x.n, best)
        else:
            assert not x.startswith(("ds_", "buffer_")) or "UNTRACKED" in x, x
def vm_size(x):
    t = x.text
    if t.startswith("buffer_store"): return 0
    if x.tag == "pre": return 3.0
    if " lds" in t: return 1.0
    if "dwordx4" in t or "dwordx3" in t: return 0.75
    if "dwordx2" in t and "offen" in t: return 0.375
    return 0.125
S_THR = 100
def pace(seq, cap):
    out = []; q = []; on = False; caps = [OPT["cap2"] / 4, OPT["cap3"] / 4]; qs = [[], []]; n2 = 0
    for x in seq:
        if x == ";ENDCAP2": caps = [0, 0]; continue
        if isinstance(x, W):
            q = q[len(q) - min(len(q), x.n):]; qs = [r[len(r) - min(len(r), x.n):] for r in qs]; on = True
        elif isinstance(x, VM):
            sz = vm_size(x); ld = not x.text.startswith("buffer_store")
            if on and ld and sum(q) + sz > cap:
                while q and sum(q) + sz > cap: q.pop(0)
                w = W(); w.n = len(q); qs = [r[len(r) - min(len(r), w.n):] for r in qs]
                if out and out[-1] == "s_nop 0": out.pop()
                out.append(w)
            for c in range(2):
                if caps[c] and on and ld and sum(qs[c]) + sz > caps[c]:
                    while qs[c] and sum(qs[c]) + sz > caps[c]: qs[c].pop(0)
                    w = W(); w.n = len(qs[c]); n2 += 1
                    out += [f"s_bitcmp0_b32 s{S_THR}, {c}", f"s_cbranch_scc1 L_thr{n2}", w, f"L_thr{n2}:"]
            q.append(sz)
            for r in qs: r.append(sz)
        out.append(x)
    return out
def fin(seq):
    out = []
    for x in seq:
        if isinstance(x, (W, LG)):
            if OPT["ab"] and getattr(x, "n", None) is None: x.n = 63
            assert getattr(x, "n", None) is not None, x.tags
            out.append(f"s_waitcnt vmcnt({min(x.n, 63)})" if isinstance(x, W) else f"s_waitcnt lgkmcnt({min(x.n, 15)})")
        elif isinstance(x, (VM, DS)): out.append(x.text)
        else: out.append(x.replace(" ;UNTRACKED", ""))
    return out
def groups_of(l):
    out = [[]]
    for x in l:
        out[-1].append(x)
        if isinstance(x, VM): out.append([])
    tail = out.pop()
    if tail: out[-1] += tail
    return out
def sprinkle(code, l):
    if not l: return list(code)
    gs = groups_of(l); out = []; n = len(code); m = len(gs); j = 0
    for i, x in enumerate(code):
        while j < m and i * m >= j * n: out += with_nop(gs[j]); j += 1
        out.append(x)
    for g in gs[j:]: out += with_nop(g)
    return out
def srd(p, s, lo, hi, off_s, size):
    p += [f"s_add_u32 s{s}, s{lo}, s{off_s}", f"s_addc_u32 s{s+1}, s{hi}, 0", f"s_mov_b32 s{s+2}, {size}", f"s_mov_b32 s{s+3}, 0x20000"]

def gen_main():
    p = []
    p += [f"{NAME}_kernel:", "s_cmp_ge_u32 s2, 256", "s_cbranch_scc1 L_done",
          "s_load_dwordx16 s[40:55], s[0:1], 0", "s_load_dwordx4 s[16:19], s[0:1], 64"]
    if OPT["stamp"]: p += ["s_memtime s[98:99]" if OPT["stamp"] == 6 else "s_memrealtime s[98:99]"]
    p += [f"s_and_b32 s{S_HEAD}, s2, 7", f"s_lshr_b32 s{S_QB}, s2, 3", f"s_lshr_b32 s24, s{S_QB}, 3", f"s_lshl_b32 s{S_HEAD}, s{S_HEAD}, 2",
          f"s_add_u32 s{S_HEAD}, s{S_HEAD}, s24", f"s_and_b32 s{S_QB}, s{S_QB}, 7"]
    p += ["s_getpc_b64 s[60:61]", "L_pc:", f"s_sub_u32 s60, s60, L_pc-{NAME}_kernel", "s_subb_u32 s61, s61, 0",
          f"s_mov_b32 s62, L_slow-{NAME}_kernel", "s_mov_b32 s63, 0x20000",
          "s_lshr_b32 s22, s2, 3", "s_lshl_b32 s22, s22, 12",
          "v_lshlrev_b32 v30, 4, v0",
          VM("pf", "buffer_load_dwordx4 v[128:131], v30, s[60:63], s22 offen" + (" nt" if OPT["pfnt"] else ""))]
    p += ["v_lshrrev_b32 v24, 6, v0",
          "v_and_b32 v25, 63, v0",
          f"v_readfirstlane_b32 s{S_WAVE}, v24",
          f"v_lshlrev_b32 v{V_RD}, 4, v25",
          "v_mul_u32_u24 v26, 43, v25", "v_lshrrev_b32 v26, 10, v26",
          "v_mul_u32_u24 v27, 24, v26",
          "v_sub_u32 v27, v25, v27",
          "v_lshrrev_b32 v28, 1, v24",
          "v_and_b32 v29, 1, v24",
          "v_lshlrev_b32 v30, 4, v29",
          "v_lshl_add_u32 v30, v28, 2, v30",
          "v_add_u32 v30, v30, v26",
          "v_mul_u32_u24 v30, 768, v30",
          "v_lshrrev_b32 v48, 1, v26", "v_lshlrev_b32 v48, 30, v48",
          "v_lshl_add_u32 v30, v27, 4, v30", f"v_or_b32 v{V_KLD}, v30, v48",
          f"v_lshl_or_b32 v{V_KSC}, v27, 3, v48",
          "v_mul_u32_u24 v30, 6144, v24",
          ] + (["v_mul_u32_u24 v31, 12, v25", f"v_add_u32 v{V_VLD}, v30, v31"] if V64 else [f"v_add3_u32 v{V_VLD}, v30, v{V_RD}, v48"])
    for sd, size in ((S_QK, HEADBYTES), (S_QV, HEADBYTES), (S_KS, 12288), (S_KZ, 12288), (S_VS, 4096), (S_VZ, 4096), (S_FLG, 64)):
        p += [f"s_mov_b32 s{sd+2}, {size}", f"s_mov_b32 s{sd+3}, 0x20000"]
    p += [f"s_mul_i32 s{S_PK0}, s{S_QB}, {STAGE}", f"s_add_u32 s{S_PK1}, s{S_PK0}, 6144", f"s_mov_b32 s{S_PV0}, s{S_PK0}",
          f"s_lshr_b32 s{S_PKS}, s{S_QB}, 1", f"s_mul_i32 s{S_PKS}, s{S_PKS}, 384", f"s_lshl_b32 s{S_PVS}, s{S_QB}, 6",
          f"s_lshl_b32 s24, s{S_WAVE}, 4", f"s_add_u32 s{S_PVS}, s{S_PVS}, s24",
          f"s_mul_i32 s24, s{S_HEAD}, {HEADBYTES}", f"s_mul_i32 s56, s{S_HEAD}, 12288", f"s_lshl_b32 s57, s{S_HEAD}, 12",
          f"s_lshl_b32 s58, s{S_HEAD}, 10", f"s_add_u32 s58, s58, {FLAG_OFF + 96}",
          f"s_or_b32 s{S_RET}, s{S_QB}, s{S_WAVE}"]
    p += ["s_waitcnt lgkmcnt(0)"] + istamp("karg", True)
    def base(sd, lo, off): return [f"s_add_u32 s{sd}, s{lo}, s{off}", f"s_addc_u32 s{sd+1}, s{lo+1}, 0"]
    p += base(S_QK, 42, 24) + base(S_KS, 46, 56) + base(S_KZ, 48, 56)
    kl = [k_ld(0, BX, 32, "k0a"), k_ld(1, BY, 36, "k0b")]; vl = [v_ld(0, 112, 40, "v0a"), v_ld(1, 80, 44, "v0b")]
    for x in kl[1][:2]: x.tag = "k0a"
    for x in vl[1][:2]: x.tag = "v0a"
    if OPT["ksc"]:
        for x in kl[0][2:] + kl[1][2:]: x.tag = "kraw"
        for x in kl[1][:2]: x.tag = "k0b"
        p += kl[0][2:] + kl[1][2:] + kl[0][:2] + kl[1][:2]; kl[1] = []
    else: p += kl[0][2:] + kl[0][:2] + kl[1][:2]
    p += base(S_FLG, 18, 58) + base(S_VS, 50, 57) + base(S_VZ, 52, 57) + base(S_QV, 44, 24)
    p += [f"s_mul_i32 s59, s{S_HEAD}, 786432"] + base(S_OUT, 54, 59) + base(S_Q, 40, 59)
    p += [f"s_cmp_lg_u32 s{S_RET}, 0", "s_cbranch_scc1 L_notleader0", f"s_buffer_load_dwordx16 s[40:55], s[{S_FLG}:{S_FLG+3}], 0 glc", "L_notleader0:"]
    p += kl[1][2:]
    p += [f"s_add_u32 s24, s24, {WSOFF}"] * (1 if WSOFF else 0)
    srd(p, S_WS, 18, 19, 24, HEADBYTES)
    p += [f"s_mov_b32 s{S_Q+2}, 786432", f"s_mov_b32 s{S_Q+3}, 0x20000"]
    p += [f"s_mov_b32 s{S_DBG}, s16", f"s_mov_b32 s{S_DBG+1}, s17", f"s_add_u32 s{S_PV1}, s{S_PK0}, 3072", f"s_add_u32 s{S_PV2}, s{S_PK0}, 6144"]
    p += [f"s_mov_b32 s{S_DBG+2}, 256", f"s_mov_b32 s{S_DBG+3}, 0x20000", f"s_lshl_b32 s{S_HOFF}, s{S_HEAD}, 3"]
    p += [f"s_cmp_lg_u32 s{S_RET}, 0", "s_cbranch_scc1 L_notleader", "s_waitcnt lgkmcnt(0)", f"s_mov_b32 s{S_TP}, 1"]
    for i in range(16):
        p += [f"s_lshr_b32 s{40+i}, s{40+i}, 10", f"s_min_u32 s{40+i}, s{40+i}, 31", f"s_bitset1_b32 s{S_TP}, s{40+i}"]
    p += [f"s_ff0_i32_b32 s{S_TP}, s{S_TP}", f"s_lshl_b32 s{S_TP}, s{S_TP}, 10", f"v_mov_b32 v{V_POLL}, s{S_TP}",
          "s_mov_b64 exec, 1", f"buffer_store_dword v{V_POLL}, off, s[{S_DBG}:{S_DBG+3}], s{S_HOFF} sc1 ;UNTRACKED", "s_mov_b64 exec, -1",
          "L_notleader:"]
    p += [f"s_lshl_b32 s24, s{S_QB}, 2", f"s_add_u32 s24, s24, 32", f"s_buffer_load_dword s{S_OWN}, s[{S_FLG}:{S_FLG+3}], s24 glc",
          ] + ([f"s_getreg_b32 s{S_XCC}, hwreg(HW_REG_XCC_ID, 0, 4)", f"s_lshl_b32 s{S_XCC}, s{S_XCC}, 5", f"s_mov_b32 s{S_FOFF}, {32 if OPT['l2'] == 3 else 0}"] if OPT["l2"] else
          [f"s_mov_b32 s{S_XCC}, 0", f"s_mov_b32 s{S_FOFF}, 32"])
    p += vl[0][2:] + vl[0][:2] + vl[1][:2] + (vl[1][2:] if OPT["greedy"] else []) + istamp("iss", True)
    if OPT["pre"]:
        st = OPT["pre"]
        p += [f"v_mul_u32_u24 v31, {st}, v25", f"v_mul_u32_u24 v30, 6144, v24", "v_add_u32 v31, v30, v31"]
        if st == 128: p += ["v_or_b32 v31, v31, v48"]
        p += [VM("pre", f"buffer_load_dword v132, v31, s[{S_WS}:{S_WS+3}], s{S_PK0} offen" + (" nt" if OPT["prent"] else ""))]
        if st == 64: p += ["v_add_u32 v30, 4096, v31", "s_mov_b64 exec, 0xffffffff", VM("pre", f"buffer_load_dword v133, v30, s[{S_WS}:{S_WS+3}], s{S_PK0} offen nt"), "s_mov_b64 exec, -1"]
    p += [f"s_mov_b32 s{S_OUT+2}, 786432", f"s_mov_b32 s{S_OUT+3}, 0x20000"]
    p += [f"s_lshl_b32 s24, s{S_WAVE}, 8", f"s_add_u32 s{S_HOFF}, s{S_HOFF}, s24"]
    p += ["v_mul_u32_u24 v30, 3072, v24", f"v_add_u32 v{V_DMA}, v30, v{V_RD}"]
    p += ["v_lshl_add_u32 v30, v24, 3, v26",
          "v_mul_u32_u24 v30, 384, v30",
          "v_lshlrev_b32 v31, 2, v29",
          "v_xor_b32 v31, v27, v31",
          "v_lshl_add_u32 v30, v31, 4, v30", f"v_or_b32 v{V_KST}, v30, v48",
          "v_lshlrev_b32 v30, 8, v24",
          "v_add_u32 v30, 12288, v30",
          ] + (["v_lshrrev_b32 v31, 5, v25", "v_mul_u32_u24 v31, 6144, v31", "v_add_u32 v30, v30, v31", "v_and_b32 v31, 1, v25", "v_mul_u32_u24 v31, 3072, v31", "v_add_u32 v30, v30, v31",
          "v_bfe_u32 v31, v25, 1, 4", f"v_lshl_add_u32 v{V_VST}, v31, 4, v30"] if V64 else
          ["v_lshrrev_b32 v31, 4, v25", "v_lshl_add_u32 v30, v31, 10, v30", "v_and_b32 v31, 15, v25",
          "v_lshl_add_u32 v30, v31, 4, v30", f"v_or_b32 v{V_VST}, v30, v48"])
    p += [f"s_lshl_b32 s24, s{S_QB}, 2",
          f"v_lshl_add_u32 v{V_FLAG}, v0, 2, s24", f"v_cmp_lt_u32 vcc, 0, v0", "v_mov_b32 v30, 0x40000000", "s_nop 0",
          f"v_cndmask_b32 v{V_FLAG}, v{V_FLAG}, v30, vcc"]
    p += [f"s_mul_i32 s{S_DMK}, s{S_WAVE}, 3072", f"s_add_u32 s{S_DMK}, s{S_DMK}, 12288", f"s_add_u32 s{S_DMV}, s{S_DMK}, {STAGE}",
          f"s_add_u32 s24, s{S_QB}, 1", "s_and_b32 s24, s24, 7", f"s_mul_i32 s{S_GOFFK}, s24, {STAGE}", f"s_add_u32 s{S_GOFF}, s{S_GOFFK}, 12288",
          f"s_mov_b32 s{S_RK}, {A2}", f"s_mov_b32 s{S_RV}, {B1}", f"v_add_u32 v{V_RD}, {B0}, v{V_RD}",
          f"s_mov_b32 s{S_CS}, 0x{f32bits(CSCALE):08x}", f"s_mov_b32 s{S_MASK}, 0xffff0000",
          f"s_and_b32 s24, s2, 7", f"s_lshl_b32 s24, s24, 1", f"s_lshr_b32 s{S_THR}, {sum(((OPT['m2'] >> i & 1) | (OPT['m3'] >> i & 1) << 1) << (2 * i) for i in range(8))}, s24",
          f"s_mov_b32 s{S_BUDGET}, 100000"] + ([f"s_mov_b32 s{S_TAG+1}, 0"] if OPT["stamp"] else [])
    p += ["v_and_b32 v26, 15, v25", "v_lshrrev_b32 v27, 4, v25", "v_bfe_u32 v28, v25, 1, 3",
          "v_xor_b32 v29, v27, v28", "v_mul_u32_u24 v30, 384, v26", f"v_lshl_add_u32 v{V_RDK[0]}, v29, 4, v30",
          f"v_xor_b32 v{V_RDK[1]}, 64, v{V_RDK[0]}"]
    p += [f"s_mul_i32 s{S_QL}, s{S_WAVE}, 6144", f"s_add_u32 s{S_QL}, s{S_QL}, {B1}",
          "v_lshrrev_b32 v29, 1, v27", "v_xor_b32 v29, v29, v28", "v_lshl_add_u32 v31, v29, 4, v30",
          "v_and_b32 v29, 1, v27", "v_lshl_add_u32 v31, v29, 3, v31"]
    for kk in range(4):
        p += [f"v_xor_b32 v{VQR[kk]}, {32*kk}, v31", f"v_add_u32 v{VQR[kk]}, s{S_QL}, v{VQR[kk]}"]
    p += [f"s_lshl_b32 s24, s{S_QB}, 2", f"s_add_u32 s24, s24, s{S_WAVE}", f"s_mul_i32 s24, s24, {STAGE}"]
    for b in range(6):
        p += [f"v_add_u32 v26, {64*b}, v25", "v_mul_u32_u24 v27, 2731, v26", "v_lshrrev_b32 v27, 17, v27",
              "v_and_b32 v27, 7, v27", "v_xor_b32 v26, v26, v27", f"v_lshlrev_b32 v{VQD+b}, 4, v26", f"v_add_u32 v{VQD+b}, s24, v{VQD+b}"]
    for q in range(4): p.append(f"v_mov_b32 v{V_L[q]}, 0")
    KF = 144
    def kf_reads(): return [DS("kf", f"ds_read_b128 v[{KF+4*f}:{KF+4*f+3}], v{V_RDK[kfrag(f)[0]&1]} offset:{kfrag(f)[1]*6144 + (kfrag(f)[0]>>1)*128}") for f in range(12)]
    def qk0(qb):
        l = []
        for f in sorted(range(12), key=lambda f: kfrag(f)[::-1]):
            s, tb = kfrag(f)
            d = vr(Sq(0, qb, tb), 4)
            l.append(f"{MF} {d}, v[{KF+4*f}:{KF+4*f+3}], {Qf(qb,s)}, {'0' if s == 0 else d}")
        return l
    STF0 = "" if OPT["l2"] else STF
    def own_k(b):
        l = []
        for j in range(4):
            l += k_st(j, b, "kst", STF0)
            va = V_KST if j == 0 else V_KA + (j & 1)
            l += ["s_mov_b64 exec, s[62:63]", DS("w", f"ds_write_b128 v{va}, v[{b+4*j}:{b+4*j+3}] offset:{j*768}"), "s_mov_b64 exec, -1"]
        return l
    def own_v(b):
        l = [x for e in range(NVE) for x in v_st(e, b, "vst", STF0)]
        if V64: return l + [DS("w", f"ds_write_b128 v{V_VST}, v[{b+4*e}:{b+4*e+3}] offset:{STAGE - 12288 + e*1024}") for e in range(3)]
        l += ["s_mov_b64 exec, s[62:63]"] + [DS("w", f"ds_write_b128 v{V_VST}, v[{b+4*e}:{b+4*e+3}] offset:{STAGE - 12288 + e*3072}") for e in range(4)] + ["s_mov_b64 exec, -1"]
        return l
    p += ["s_mov_b32 s62, -1", "s_mov_b32 s63, 0xffff"]
    qa = OPT["qa"]
    qb_, qc = OPT["qb"], OPT["qc"]
    R = lambda a, b: list(range(a, b))
    if OPT["split"]:
        p += [W("k0a")] + vl[1][2:] + k_cv(0, BX, 32, BX) + [W("k0b")] + istamp("k0b", True) + k_cv(1, BY, 36, BX) + own_k(BX)
        p += tag_load() + with_nop(q_dma(R(0, qa))) + [W("v0a")] + v_cv(0, 112, 40, 112)
        p += [W("tag")] + tag_check() + ["s_waitcnt lgkmcnt(0)", "s_barrier"] + flag_post() + tag_get() + istamp("post", True)
        p += with_nop(q_dma(R(qa, qb_))) + v_cv(1, 80, 44, 112) + own_v(112) + with_nop(q_dma(R(qb_, 12))) + istamp("vst", True)
    elif OPT["greedy"]:
        p += [W("k0a")] + with_nop(q_dma(R(0, 3))) + k_cv(0, BX, 32, BX) + [W("k0b")] + istamp("k0b", True) + with_nop(q_dma(R(3, 6))) + k_cv(1, BY, 36, BX) + own_k(BX)
        p += [W("v0a")] + with_nop(q_dma(R(6, 9))) + v_cv(0, 112, 40, 112) + [W("v0b")] + with_nop(q_dma(R(9, 12))) + v_cv(1, 80, 44, 112) + own_v(112)
        p += tag_load() + with_nop(q_dma(R(12, 18))) + istamp("vst", True)
    else:
        p += [W("k0a")] + vl[1][2:] + k_cv(0, BX, 32, BX) + [W("k0b")] + istamp("k0b", True) + k_cv(1, BY, 36, BX) + own_k(BX)
        p += with_nop(q_dma(R(0, qa))) + istamp("kst", True)
        p += [W("v0a")] + sprinkle(v_cv(0, 112, 40, 112), q_dma(R(qa, qb_))) + [W("v0b")] + v_cv(1, 80, 44, 112) + ([LG("w")] if OPT["eb"] else []) + own_v(112)
        p += tag_load() + with_nop(q_dma(R(qb_, OPT["qe"]))) + istamp("vst", True)
        if OPT["eb"]: p += ["s_barrier"] + kf_reads() + [W(("q", 0))] + q_frags(0) + [LG(("qf", 0))] + qk0(0) + ["s_nop 7"] + sm_one(0, 0)
        if OPT["q3b"]: p += [W(("q", 0))] + q_frags(0) + [LG(("qf", 0))] + with_nop(q_dma(R(18, 18 + OPT["q3b"])))
    if not OPT["split"]:
        if OPT["iw"]:
            p += ["s_mov_b64 exec, 0"] + [x for w in range(3) for x in (f"s_cmp_eq_u32 s{S_WAVE}, {w}", f"s_cbranch_scc1 L_iw{w}")] + ["s_branch L_iw3", "L_iwret:", "s_mov_b64 exec, -1"]
        p += [W("tag")] + tag_check() + istamp("tag", True)
        p += ["s_waitcnt lgkmcnt(0)", "s_barrier"] + flag_post(True) + tag_get() + istamp("post", True)
    if OPT["pf2"]:
        p += [f"s_mov_b32 s{S_DBG}, s60", f"s_mov_b32 s{S_DBG+1}, s61", f"s_mov_b32 s{S_DBG+2}, L_slow-{NAME}_kernel",
              "s_lshr_b32 s24, s2, 3", f"s_mul_i32 s{S_HOFF}, s24, 43", f"s_lshr_b32 s{S_HOFF}, s{S_HOFF}, 7",
              f"s_mul_i32 s{S_RET}, s{S_HOFF}, 3", f"s_sub_u32 s24, s24, s{S_RET}", "s_lshl_b32 s24, s24, 10",
              f"s_mul_i32 s{S_HOFF}, s{S_HOFF}, 12288", f"s_add_u32 s{S_HOFF}, s{S_HOFF}, s24"]
    if not OPT["eb"]: p += kf_reads()
    ps = len(POLLSITES); POLLSITES.append(ps)
    g3n = OPT["g3n"]
    pollchk = ["s_waitcnt lgkmcnt(0)"] + smem_reduce() + [f"s_cmp_ge_u32 s{S_PT}, 16", f"s_cbranch_scc1 L_pollslow{ps}", f"L_pollok{ps}:",
          f"s_add_u32 s{S_NEED}, s{S_NEED}, 1"] + [f"s_mov_b32 s{S_FOFF}, 32"] * (OPT["l2"] == 2) + istamp("poll", True)
    sm00 = rowmax2(0, (0, 1), (V_CT, V_CT + 2)) + addneg(0, 0) + addneg(0, 1) + softmax_part(0, 0)
    qrest = R(OPT["qe"] if OPT["greedy"] == 0 else 18, 18 + g3n)
    if OPT["fs"]:
        hand = with_nop(dma_tile("k", 1, True) + dma_tile("k", 2, True) + dma_tile("k", 3, True) + dma_tile("v", 1, True)) + k_adv() + v_adv()
        def inter(mf, fill):
            out = []; fill = list(fill)
            for m in mf:
                out.append(m); cur = []
                while fill and gap_time(cur + [fill[0]]) <= 20: cur.append(fill.pop(0))
                out += cur
            return out + fill
        NPV0 = 3; rest3 = []
        p += with_nop(q_dma(R(OPT["qe"], 18)))
        if OPT["fp"]:
            NPV0 = 2; a_ = OPT["fpa"]
            if OPT["eb"]: p += [LG("tg")] + tag_use() + with_nop(q_dma(R(18, 21)))
            else: p += [W(("q", 0))] + q_frags(0) + [LG("tg")] + tag_use() + [LG(("qf", 0))] + with_nop(q_dma(R(18, 21))) + qk0(0)
            for qb in (1, 2):
                sm = [] if (qb == 1 and OPT["eb"]) else sm_one(0, qb - 1)
                p += [W(("q", qb))] + q_frags(qb) + (smem_flags() if qb == 2 else with_nop(q_dma(R(21, 24)))) + sm[:a_] + [LG(("qf", qb))] + inter(qk0(qb), sm[a_:])
            g0 = [Grp([(V_RD, (d0 + e) * 1024) for e in range(2)], [(e, ar(O(q, d0 + e), 4), vr(P(0, q), 4), "0") for q in range(2) for e in range(2)]) for d0 in range(0, 12, 2)]
            p += [";ENDCAP2"] + [rd_op(i, j, g0[i]) for i in range(2) for j in range(2)] + pollchk + hand
            p += gen_seg("S0", g0, [], [(sm_one(0, 2), 0, 23)], tasks=[("ldn", "ka", 0, 10), ("ldn", "kb", 11, 23)][:OPT["k1s"]], vmgap=2)
            sm3 = sm_one(0, 3); k3 = [i for i, x in enumerate(sm3) if x.startswith("v_sub_f32")][0]
            neg = [x for x in sm3 if x.startswith(f"v_sub_f32 v{NEGM(3)}") or (", 0, v" in x and x.startswith("v_sub"))]
            p += [W(("q", 3))] + q_frags(3) + [LG(("qf", 3))] + qk0(3) + ["s_nop 7"] + sm3[:k3] + neg
            rest3 = [x for x in sm3[k3:] if x not in neg]
        else:
            for qb in range(4):
                if qb == 3:
                    g0 = []
                    for d0 in range(0, 12, 2):
                        g0.append(Grp([(V_RD, (d0 + e) * 1024) for e in range(2)], [(e, ar(O(q, d0 + e), 4), vr(P(0, q), 4), "0") for q in range(3) for e in range(2)]))
                    p += [rd_op(i, j, g0[i]) for i in range(2) for j in range(2)] + [LG(("fr", 0), ("fr", 1))]
                    p += gen_seg("S0", g0, [], tasks=[("ldn", "ka", 0, 16), ("ldn", "kb", 17, 35)][:OPT["k1s"]], vmgap=2)
                if qb == 0 and OPT["q3b"]: p += [LG("kf")] + tag_use()
                else: p += [W(("q", qb))] + q_frags(qb) + ([LG("tg")] + tag_use() if qb == 0 else []) + (smem_flags() if qb == OPT["pq"] else []) + [LG(("qf", qb))]
                if qb < 2: p += with_nop(q_dma([x for x in R(18 + 3 * qb, 21 + 3 * qb) if x >= 18 + OPT["q3b"]]))
                p += qk0(qb) + (pollchk + hand if qb == OPT["pq"] else ["s_nop 7"]) + sm_one(0, qb)
        sp = softmax_part
        g1 = qk_tile(1, 1, [(q, q) for q in range(4)])
        gi1 = rebase(qk_full(2), V_RDK, A1 - A0)
        gi2 = [Grp([(V_RD, w * 12288 + db * 1024) for w in range(2)],
                   [x for q in range(3, NPV0 - 1, -1) for x in ((0, ar(O(q, db), 4), vr(P(0, q), 4), "0"), (1, ar(O(q, db), 4), vr(P(1, q), 4), ar(O(q, db), 4)))] +
                   [(1, ar(O(q, db), 4), vr(P(1, q), 4), ar(O(q, db), 4)) for q in range(NPV0)]) for db in range(12)]
        L2_ = len(gi2[0].mf)
        gi3 = rebase(qk_full(4), V_RDK, A2 - A1)
        gi4 = rebase(pv_seq(2), [V_RD], B1 - B0)
        p += istamp("pre-dk1", True) + [W(("dk", 1)), "s_barrier"] + [rd_op(i, j, g1[i]) for i in range(2) for j in range(2)] + [LG(("fr", 0), ("fr", 1))]
        pa = [f"v_bfe_u32 v{V_T4}, v{V_DMA}, 4, 6", f"v_lshlrev_b32 v{V_T4}, 2, v{V_T4}"] + [f"v_xor_b32 v{V_T4+j}, {16*j}, v{V_KST}" for j in (1, 2, 3)]
        p += gen_seg("S1", g1, gi1[:2], [(rest3 + (pa if OPT["pa"] else []), 0, 40)], [(31, [("dk", 3)])], [("ldn", "ka", 0, 14), ("ldn", "kb", 15, 30)][OPT["k1s"]:] +
                     ([("cv", "ka", 0, 99, OPT["fb"], 47)] if OPT["k1s"] and OPT["fb"] < 47 else []), [K_(4, 5) + (32, 46)], vmgap=2)
        p += gen_seg("S5", gi1, gi2[:2], [(sp(1, 0) + sp(1, 1) + [("dl", 54), ("nb", 47)] + sp(2, 0), 2, 95)], [(GBAR, [("dv", 1)])],
                     ([("cv", "kb", 0, 99, OPT["fa"], 95), ("ldn", "va", 20, 40)] if (OPT["k1s"] and OPT["fb"] < 47) else
                      [("cv", "ka", 0, 99, OPT["fa"], 60), ("cv", "kb", 0, 99, 61, 95), ("ldn", "va", 20, 40, "raw"), ("ldn", "va", 62, 76, "sc")]), [V_(2, 3) + (0, 18)])
        p += gen_seg("i2", gi2, gi3[:2], [(sp(2, 1) + sp(3, 0), 0, 12 * L2_ - 1)], [(10 * L2_ - 1, [("dk", 5)])],
                     [("kst", j, 2 * L2_ * j + 1) for j in range(4)] + [("ld", "vb", 6 * L2_ + 4, 12 * L2_ - 1)], [], vmgap=2)
        p += gen_seg("i3", gi3, gi4[:2], [(sp(3, 1) + [("dl", 57), ("nb", 47)] + sp(4, 0), 0, 95)], [(15, []), (GBAR, [("dv", 3)])],
                     [("post", "kst", 0), ("cv", "va", 0, 99, 0, 95)], [K_(6, 7) + V_(4, 5) + (18, 90)])
        p += [f"s_mov_b32 s{S_CNT}, {7 - OPT['lastp']}"]
        p += gen_seg("i4", gi4, seg_groups(5)[:2], [(sp(4, 1) + sp(5, 0), 0, 94)], [(GBAR, [("dk", 7)])],
                     [("ld", "ka", 0, 30), ("cv", "vb", 0, 99, 20, 94), ("step", "q", 30, 70), ("pollld", OPT["pl4"], OPT["pl4"] + 8)], [V_(6, 7) + (32, 74)],
                     endops=["s_nop 0", "s_branch L_join"])
    elif OPT["split"]:
        ps2 = len(POLLSITES); POLLSITES.append(ps2)
        pollchk2 = ["s_waitcnt lgkmcnt(0)"] + smem_reduce() + [f"s_cmp_ge_u32 s{S_PT}, 16", f"s_cbranch_scc1 L_pollslow{ps2}", f"L_pollok{ps2}:",
              f"s_add_u32 s{S_NEED}, s{S_NEED}, 1"] + istamp("pollV", True)
        p += [W(("q", 0))] + q_frags(0) + [LG("tg")] + tag_use() + [LG(("qf", 0))] + smem_flags() + qk0(0) + pollchk
        p += with_nop(dma_tile("k", 1, True)) + k_adv() + v_adv()
        p += [W("vst"), "s_barrier"] + flag_post() + istamp("postV", True)
        p += with_nop(dma_tile("k", 2, True) + dma_tile("k", 3, True))
        p += [W(("q", 1))] + q_frags(1) + with_nop(q_dma(R(12, 15))) + [LG(("qf", 1))] + qk0(1) + ["s_nop 7"]
        g0 = pv_unchained(0, True)[:6]
        p += [rd_op(i, j, g0[i]) for i in range(2) for j in range(2)] + sprinkle(sm00, q_dma(R(15, 18 + g3n))) + smem_flags() + [LG(("fr", 0), ("fr", 1))]
        p += gen_seg("S0", g0, [], tasks=[("q", R(18 + g3n, 24), 0, 22)] if g3n < 6 else [], vmgap=2) + pollchk2
        p += with_nop(dma_tile("v", 1, True))
        g3n = 6
    elif OPT["own1"] == 2:
        p += [W(("q", 0))] + q_frags(0) + [LG("tg")] + tag_use() + with_nop(q_dma(qrest[:3])) + [LG(("qf", 0))] + qk0(0)
        p += [W(("q", 1))] + q_frags(1) + smem_flags() + with_nop(q_dma(qrest[3:])) + [LG(("qf", 1))] + qk0(1) + pollchk
        g0 = pv_unchained(0, True)[:6]
        p += [rd_op(i, j, g0[i]) for i in range(2) for j in range(2)]
        p += sprinkle(sm00, dma_tile("k", 1, True) + dma_tile("k", 2, True) + dma_tile("k", 3, True) + dma_tile("v", 1, True)) + k_adv() + v_adv() + [LG(("fr", 0), ("fr", 1))]
        p += gen_seg("S0", g0, [], tasks=[("q", R(18 + g3n, 24), 0, 22)] if g3n < 6 else [], vmgap=2)
        g3n = 6
    elif OPT["own1"]:
        pre0 = [x for x in qrest[:3] if x < 18]; post0 = [x for x in qrest[:3] if x >= 18]
        p += [W(("q", 0))] + q_frags(0) + [LG("tg")] + tag_use() + with_nop(q_dma(pre0)) + [LG(("qf", 0))] + with_nop(q_dma(post0)) + qk0(0)
        if OPT["q0f"]: p += ["s_nop 7"] + sm_one(0, 0); sm00 = sm_one(0, 1)
        p += [W(("q", 1))] + q_frags(1) + with_nop(q_dma(qrest[3:6])) + [LG(("qf", 1))] + qk0(1) + ["s_nop 7"]
        g0 = pv_unchained(0, True)[:6]
        p += [rd_op(i, j, g0[i]) for i in range(2) for j in range(2)] + sprinkle(sm00, q_dma(qrest[6:])) + smem_flags() + [LG(("fr", 0), ("fr", 1))]
        p += gen_seg("S0", g0, []) + pollchk
        p += with_nop(dma_tile("k", 1, True) + dma_tile("k", 2, True) + dma_tile("k", 3, True) + dma_tile("v", 1, True)) + k_adv() + v_adv()
        if OPT["qf"]: p += with_nop(q_dma(R(18 + g3n, 24))); g3n = 6
    else:
        p += [W(("q", 0))] + q_frags(0) + [LG("tg")] + tag_use() + [W(("q", 1))] + q_frags(1) + smem_flags()
        p += [LG(("qf", 0))] + with_nop(q_dma(qrest)) + pollchk
        p += with_nop(dma_tile("k", 1, True)) + k_adv() + v_adv()
        p += sprinkle(qk0(0) + qk0(1), dma_tile("k", 2, True)) + ["s_nop 7"]
        p += sprinkle(sm00, dma_tile("k", 3, True) + dma_tile("v", 1, True))
    if not OPT["fs"]:
        sp = softmax_part
        g1 = qk_half(0, ws=(1,))
        g2 = rebase(qk_half(1), V_RDK, A1 - A0)
        g3 = pv_unchained(0, True)[6 if OPT["own1"] else 0:]
        g4 = rebase(pv_unchained(1), [V_RD], B1 - B0)
        g5 = rebase(qk_half(2, True), V_RDK, A0 - A1) + rebase(qk_half(3), V_RDK, A1 - A0)
        gi3 = rebase(qk_full(4), V_RDK, A2 - A1)
        gi4 = rebase(pv_seq(2, True), [V_RD], B0 - B1) + rebase(pv_seq(3), [V_RD], B1 - B0)
        p += istamp("pre-dk1", True) + [W(("dk", 1)), "s_barrier"] + [rd_op(i, j, g1[i]) for i in range(2) for j in range(2)]
        p += [LG(("fr", 0), ("fr", 1))]
        p += gen_seg("S1", g1, g2[:2], [], [(15, [("dk", 3)])], [], [V_(2, 3) + (0, 21)], vmgap=2)
        p += gen_seg("S2", g2, g3[:2], [(sp(0, 1), 3, 47)], [(39, [("dv", 3)])] if OPT["own1"] else [], ([("q", R(18 + g3n, 24), 0, 24)] if g3n < 6 else []) + [("ldn", "ka", 25 if g3n < 6 else 0, 47)])
        if OPT["own1"]: p += gen_seg("S3", g3, g4[:2], [(sp(1, 0), 0, 23)], [], [("ldn", "kb", 0, 23)])
        else: p += gen_seg("S3", g3, g4[:2], [(sp(1, 0), 0, 47)], [(15, [("dv", 3)])], [("ldn", "kb", 0, 22), ("ldn", "va", 23, 46, "raw")])
        p += gen_seg("S4", g4, g5[:2], [(sp(1, 1), 0, 21)], [], [("ldn", "va", 0, 30, "raw")] if OPT["own1"] else [], extra=[Stream([W(("q", 2))] + q_frags(2) + [W(("q", 3))] + q_frags(3), 16, 46)])
        p += istamp("pre-S5", True) + ["s_waitcnt lgkmcnt(0)", "s_barrier"]
        p += gen_seg("S5", g5, gi3[:2], [(rowmax2(2, (2, 3), (V_T, V_T + 2)), 27, 45), (addneg(2, 0) + addneg(2, 1) + sp(2, 0) + addneg(2, 2) + addneg(2, 3) + sp(2, 1), 46, 95)],
                     [(GBAR + 8, [("dk", 5)])], [("cv", "ka", 0, 99, 0, 34), ("cv", "kb", 0, 99, 35, 72), ("kst", 0, 73), ("kst", 1, 77), ("kst", 2, 89), ("kst", 3, 93),
                     ("ldn", "va", 36, 60, "sc")], [K_(4, 5) + (1, 24)])
        p += gen_seg("i3", gi3, gi4[:2], [(sp(3, 0) + sp(3, 1), 0, 54), (sp(4, 0), 55, 95)], [(OPT["pb"], []), (GBAR, [])],
                     [("ld", "vb", 0, 22), ("post", "kst", 0), ("cv", "va", 0, 99, 10, 95)], [K_(6, 7) + V_(4, 5) + (24, 90)])
        p += [f"s_mov_b32 s{S_CNT}, {7 - OPT['lastp']}", f"s_mul_i32 s{S_RC}, s{S_QB}, {STAGE}", f"s_mov_b32 s{S_RD}, 12288"]
        p += gen_seg("i4", gi4, seg_groups(5)[:2], [(sp(4, 1) + sp(5, 0), 0, 94)], [(47, []), (GBAR + 8, [("dk", 7)])],
                     [("ld", "ka", 0, 30), ("cv", "vb", 0, 99, 30, 94), ("step", "q", 30, 70), ("pollld", OPT["pl4"], OPT["pl4"] + 8)], [V_(6, 7) + (52, 84)],
                     endops=["s_nop 0", "s_branch L_join"])
    p += [".p2align 6"] + ["s_nop 0"] * OPT.get("pad", 0) + ["L_loop:"]
    pro_ = p
    first57, tail = gen_tail()
    bodyA = []
    for k in (1, 2, 3, 4, 5, 6, 7, 0):
        if k == 5: bodyA.append("L_join:"); jpos = len(bodyA)
        eo = [f"s_sub_u32 s{S_CNT}, s{S_CNT}, 1", f"s_cmp_lg_u32 s{S_CNT}, 0", "s_cbranch_scc1 L_loop"] if k == 0 else ()
        t, d = steady(k)
        if OPT["ab"] & 8: d = []
        if OPT["ab"] & 16: t = [x for x in t if x[0] not in ("cv", "kst", "vst", "ld")]
        if OPT["ab"] & 1024: t = [x for x in t if not (x[0] in ("cv", "ld") and x[1] in ("va", "vb")) and x[0] != "vst"]
        if OPT["ab"] & 128: t = [x for x in t if x[0] not in ("cv",)]
        if OPT["ab"] & 256: t = [x for x in t if x[0] not in ("kst", "vst")]
        if OPT["ab"] & 512: t = [x for x in t if x[0] not in ("ld",)]
        bars = None
        if OPT["nb6"]:
            dk = lambda *x: [("dk", i) for i in x]; dv = lambda *x: [("dv", i) for i in x]
            bars = {0: [], 4: [], 7: [(GBAR, dv(6, 7) + dk(2, 3))], 3: [(GBAR, dv(2, 3) + dk(6, 7))]}.get(k)
        bodyA += gen_iter(16 + k, t, d, name=f"k{k}", endops=eo, bars=bars)
    lastt = []
    if OPT["lastp"]:
        for k in (1, 2, 3, 4, 5, 6, 7, 0):
            t, d = steady(k)
            t = [x for x in t if not ((x[0] in ("ld", "cv") and x[1] == "ka") or (x[0] in ("ld", "cv") and x[1] == "kb" and k != 1) or x[:2] == ("ld", "va") or x[0] == "pf")]
            dk = lambda *x: [("dk", i) for i in x]; dv = lambda *x: [("dv", i) for i in x]
            bars = {0: [], 4: [], 7: [(GBAR, dv(6, 7) + dk(2, 3))], 3: [(GBAR, dv(2, 3) + dk(6, 7))]}.get(k) if OPT["nb6"] else None
            if k == 0 and OPT["z0"]: bars = [(15, dk(5))]; d = [V_(0, 1) + K_(6, 7) + (16, 90)]
            ex = [Stream([f"v_accvgpr_read_b32 v{O0(db)+r}, a{O(0, db)+r}" for db in range(12) for r in range(4)], 4, 95)] if (k == 7 and OPT["om0"]) else []
            OM[0] = k == 0
            lastt += gen_iter(16 + k, t, d, name=f"z{k}", bars=bars, extra=ex)
            OM[0] = False
    tail = lastt + tail
    assert OPT["qo"] or [g.rd for g in first57] == [g.rd for g in seg_groups(17)[:2]]
    tailc = tail + ["L_fin:"]
    resolve(pro_ + bodyA[jpos:] + bodyA + bodyA + tailc)
    if OPT["cap"]: pro_ = pace(pro_, OPT["cap"] / 4)
    P_ = Prog()
    P_.extend(fin(pro_))
    a0 = len(P_.ins); P_.extend(fin(bodyA)); a1 = len(P_.ins)
    P_.extend(fin(tailc))
    p = P_
    if OPT["stamp"]:
        p("s_waitcnt vmcnt(0) lgkmcnt(0)")
        p.extend(istamp("end"))
        p("s_waitcnt lgkmcnt(0)")
        p.extend(istamp("end2"))
        p(f"v_writelane_b32 v{V_STAMP}, s{S_TAG+1}, 63")
        p(f"v_writelane_b32 v{V_STAMP}, s{S_BUDGET}, 62"); p(f"v_writelane_b32 v{V_STAMP}, s{S_NEED}, 61"); p(f"v_writelane_b32 v{V_STAMP}, s101, 60"); pass
        p("s_add_u32 s8, s18, 0xfa00000"); p("s_addc_u32 s9, s19, 0"); p("s_mov_b32 s10, 1048576"); p("s_mov_b32 s11, 0x20000")
        p("s_lshl_b32 s24, s2, 2"); p(f"s_add_u32 s24, s24, s{S_WAVE}"); p("s_lshl_b32 s24, s24, 8")
        p(f"v_bfe_u32 v32, v{V_DMA}, 4, 6"); p("v_lshlrev_b32 v32, 2, v32")
        p(f"buffer_store_dword v{V_STAMP}, v32, s[8:11], s24 offen")
        if OPT["stamp"] == 8: STAMPS.sort(key=lambda n: 0)
        open(sys.argv[1] + ".stamps", "w").write("\n".join(order_stamps()))
    if OPT["calx"]:
        p("s_waitcnt vmcnt(0)")
        if OPT.get("calp", -1) >= 0: p(f"s_bitcmp{1 - OPT['calp']}_b32 s2, 0"); p("s_cbranch_scc1 L_done")
        p("L_cal:")
        p("s_memrealtime s[40:41]")
        p("s_waitcnt lgkmcnt(0)")
        p("s_sub_u32 s40, s40, s98")
        p("s_cmp_lt_u32 s40, 10000")
        p("s_cbranch_scc1 L_cal")
    p("L_done:")
    p("s_endpgm")
    main_end0 = len(p.ins)
    for ps in POLLSITES: p.extend(poll_slow(ps))
    p.extend(tag_slow())
    main_end = len(p.ins)
    p.extend(gen_slow())
    slow_end = len(p.ins)
    ji = [i for i, x in enumerate(p.ins) if x.text == "L_join:"][0]
    lin = p.ins[:a0] + p.ins[ji:a1] + p.ins[a0:main_end0]
    sl = [i for i, x in enumerate(p.ins) if x.text == "L_slowloop:"][0]
    bi = [i for i, x in enumerate(p.ins) if x.text == "s_cbranch_scc1 L_slowloop"][0]
    probs = check_hazards(lin, "main") + check_hazards(p.ins[main_end:bi+1] + p.ins[sl:slow_end], "slow") + check_hazards(p.ins[main_end0:main_end], "aux")
    for x in probs: print(x, file=sys.stderr)
    return p

def kd(name, vgpr, sgpr, accum):
    return f""".amdhsa_kernel {name}
  .amdhsa_next_free_vgpr {vgpr}
  .amdhsa_next_free_sgpr {sgpr}
  .amdhsa_accum_offset {accum}
  .amdhsa_group_segment_fixed_size 0
  .amdhsa_kernarg_size 80
  .amdhsa_user_sgpr_count 2
  .amdhsa_user_sgpr_kernarg_segment_ptr 1
  .amdhsa_system_sgpr_workgroup_id_x 1
.end_amdhsa_kernel
"""
def build_text(body):
    o = HEADER + f"; @launch grid=(256,1,1) block=(256,1,1) lds={LDS_BYTES}\n" + '.amdgcn_target "amdgcn-amd-amdhsa--gfx950"\n.text\n'
    o += f".globl {NAME}_kernel\n.p2align 8\n.type {NAME}_kernel,@function\n" + body
    return o + '.section .rodata,"a"\n.p2align 6\n' + kd(NAME + "_kernel", 512, 102, 256)
def addresses(lines):
    import subprocess, types, ctypes
    _o = ctypes.CDLL
    class F:
        def __getattr__(s, n):
            x = types.SimpleNamespace(); object.__setattr__(s, n, x); return x
    ctypes.CDLL = lambda n, *a, **k: (F() if "amdhip" in n else _o(n, *a, **k))
    sys.path.insert(0, "cdna_kernels")
    import cdna_launch as cl
    t = []
    for i, l in enumerate(lines):
        if l.strip().startswith("v_"): t.append(f"L_adr{i}:")
        t.append(l)
    open("_a.s", "w").write(cl.with_harness_metadata(build_text("\n".join(t) + "\n"), NAME + "_kernel", 10, launch_lists=True))
    subprocess.run([cl.ROCM_CLANG, "-x", "assembler", "-target", "amdgcn-amd-amdhsa", "-mcpu=gfx950", "_a.s", "-o", "_a.co"], check=True)
    r = subprocess.run(["llvm-objdump", "-t", "_a.co"], capture_output=True, text=True).stdout
    return {int(x.split()[-1][5:]): int(x.split()[0], 16) for x in r.split("\n") if "L_adr" in x}
def add_stubs(text):
    base = text.rstrip("\n").split("\n")
    lo = base.index("L_iwret:"); hi = base.index("L_fin:"); l0 = base.index("L_loop:")
    l1 = max(i for i, l in enumerate(base) if l.strip() == "s_cbranch_scc1 L_loop")
    pos = []
    for it in range(6):
        lines = []; idx = []
        chains = [[k for k in range(len(pos)) if k % 4 == w] for w in range(4)]
        nxt = {}
        for w in range(4):
            for a, b in zip(chains[w], chains[w][1:] + [None]): nxt[a] = f"L_pg{b}" if b is not None else "L_iwret"
        for i, l in enumerate(base):
            idx.append(len(lines)); lines.append(l)
            if i in pos:
                k = pos.index(i)
                lines += ([f"L_iw{k}:"] if k < 4 else []) + [f"L_pg{k}:", f"    s_cbranch_execz {nxt[k]}"]
        if len(pos) < 4: lines += [x for w in range(len(pos), 4) for x in (f"L_iw{w}:", "    s_branch L_iwret")]
        ad = addresses(lines); inv = {j: i for i, j in enumerate(idx)}
        first = min(i for i, l in enumerate(base) if l.strip().startswith("v_mfma") and "a[0:3]" in l)
        mf = sorted((a, inv[j]) for j, a in ad.items() if lo < inv[j] < hi and (inv[j] < first or base[inv[j]].strip().startswith("v_mfma")))
        new = [min(i for a, i in mf if i > base.index("L_join:"))]
        pg = mf[0][0] >> 12
        for a, i in mf:
            if (a + 8) >> 12 > pg:
                pg = (a + 8) >> 12
                if OPT["iw"] == 2 or not (l0 < i < l1): new.append(i)
        new = sorted(set(new))
        if new == pos: break
        pos = new
    print("page stubs:", len(pos), file=sys.stderr)
    return "\n".join(lines) + "\n"
out = HEADER
out += f"; @launch grid=(256,1,1) block=(256,1,1) lds={LDS_BYTES}\n"
out += '.amdgcn_target "amdgcn-amd-amdhsa--gfx950"\n.text\n'
body_ = gen_main().text()
if OPT["iw"]: body_ = add_stubs(body_)
out += f".globl {NAME}_kernel\n.p2align 8\n.type {NAME}_kernel,@function\n" + body_
out += '.section .rodata,"a"\n.p2align 6\n' + kd(NAME + "_kernel", 512, 102, 256)
open(sys.argv[1], "w").write(out)
```
